```python
import torch

def _softmax(x, axis=-1):
    return torch.softmax(x, dim=axis)
def _gelu(x):
    return torch.nn.functional.gelu(x, approximate="tanh")
def _silu(x):
    return torch.nn.functional.silu(x)
def _sigmoid(x):
    return torch.sigmoid(x)
def _layernorm(x, axis=-1, eps=1e-5):
    m = x.mean(dim=axis, keepdim=True)
    v = x.var(dim=axis, keepdim=True, unbiased=False)
    return (x - m) / torch.sqrt(v + eps)
def _scatter_add(tgt, idx, src, axis=0):
    return tgt.clone().index_add_(axis, idx, src)
def _segment_sum(src, seg, n):
    out = torch.zeros((n,) + src.shape[1:], dtype=src.dtype)
    return out.index_add_(0, seg, src)
def _pad(x, pw):
    flat = tuple(v for pair in reversed(pw) for v in pair)
    return torch.nn.functional.pad(x, flat)

kernel_name = 'sequential_preLN__softmax_full_mha__swiglu_ffn__prompt'

def setup_inputs():

    _w = (lambda a: (lambda t: t.to(torch.bfloat16) if t.is_floating_point() else t)(torch.as_tensor(a)))
    def _A_setup():
        B, S, D = 1, 2048, 640
        return {
            "x": _w((lambda *s: torch.randn(*s, dtype=torch.bfloat16) * 0.05)(B, S, D)),
            "wqkv": _w((lambda *s: torch.randn(*s, dtype=torch.bfloat16) * 0.05)(D, 3 * D)),
            "wo": _w((lambda *s: torch.randn(*s, dtype=torch.bfloat16) * 0.05)(D, D)),
        }
    _A_in = _A_setup()

    def _B_setup():
        B, S, D, F = 1, 2048, 640, 1728
        return {
            "x": _w((lambda *s: torch.randn(*s, dtype=torch.bfloat16) * 0.05)(B, S, D)),
            "w_gate": _w((lambda *s: torch.randn(*s, dtype=torch.bfloat16) * 0.05)(D, F)),
            "w_up": _w((lambda *s: torch.randn(*s, dtype=torch.bfloat16) * 0.05)(D, F)),
            "w_down": _w((lambda *s: torch.randn(*s, dtype=torch.bfloat16) * 0.05)(F, D)),
        }
    _B_in = _B_setup()

    return {
        "A_x": _A_in["x"],
        "A_wqkv": _A_in["wqkv"],
        "A_wo": _A_in["wo"],
        "B_x": _B_in["x"],
        "B_w_gate": _B_in["w_gate"],
        "B_w_up": _B_in["w_up"],
        "B_w_down": _B_in["w_down"],
    }

def reference(A_x, A_wqkv, A_wo, B_x, B_w_gate, B_w_up, B_w_down):
    def _A_ref(x, wqkv, wo):
        B, S, D = x.shape
        H = 32; Dh = D // H
        qkv = (lambda x, *d: x.permute(*d))((x @ wqkv).reshape(B, S, 3, H, Dh), 2, 0, 3, 1, 4)
        q, k, v = qkv[0], qkv[1], qkv[2]
        scale = Dh ** -0.5
        scores = torch.einsum("bhqd,bhkd->bhqk", q, k) * scale
        p = _softmax(scores, axis=-1)
        o = torch.einsum("bhqk,bhkd->bhqd", p, v)
        return (lambda x, *d: x.permute(*d))(o, 0, 2, 1, 3).reshape(B, S, D) @ wo

    def _B_ref(x, w_gate, w_up, w_down):
        g = _silu(x @ w_gate)
        u = x @ w_up
        return (g * u) @ w_down

    x = A_x
    h = x + _A_ref(_layernorm(x, axis=-1), A_wqkv, A_wo)
    h2 = h + _B_ref(_layernorm(h, axis=-1), B_w_gate, B_w_up, B_w_down)
    return h2
```

```python
import re

REG_RE = re.compile(r'(?<![\w.])(-?)(\|?)([vas])(?:(\d+)|\[(\d+):(\d+)\])')

def regs_of(tok):
    out = set()
    t = tok.strip()
    for m in REG_RE.finditer(t):
        c = m.group(3)
        if m.group(4) is not None:
            out.add((c, int(m.group(4))))
        else:
            for i in range(int(m.group(5)), int(m.group(6)) + 1):
                out.add((c, i))
    if re.search(r'\bvcc\b', t): out |= {('s', 'vcc')}
    if re.search(r'\bexec\b', t): out |= {('s', 'exec')}
    if re.search(r'\bm0\b', t): out |= {('s', 'm0')}
    return out

TRANS = ('v_exp_f32', 'v_log_f32', 'v_rcp_f32', 'v_rsq_f32', 'v_sqrt_f32', 'v_sin_f32', 'v_cos_f32', 'v_rcp_iflag_f32', 'v_exp_f16')

class Ins:
    def __init__(self, text):
        self.text = text
        t = text.split(';')[0].strip()
        self.label = None
        self.op = None
        self.defs = set(); self.uses = set()
        self.srcA = set(); self.srcB = set(); self.srcC = set()
        if not t or t.startswith('.'):
            return
        if t.endswith(':'):
            self.label = t[:-1]; return
        parts = t.split(None, 1)
        self.op = op = parts[0]
        rest = parts[1] if len(parts) > 1 else ''
        ops = [x.strip() for x in re.split(r',(?![^\[]*\])', rest)] if rest else []
        self.ops = ops
        R = [regs_of(x) for x in ops]
        self.is_mfma = op.startswith('v_mfma')
        self.is_valu = op.startswith('v_') and not self.is_mfma
        self.is_salu = op.startswith('s_')
        self.is_vmem = op.startswith('buffer_') or op.startswith('global_')
        self.is_ds = op.startswith('ds_')
        self.is_lds_dma = self.is_vmem and (re.search(r'\blds\b', rest) is not None or 'load_lds' in op)
        self.is_store = self.is_vmem and ('store' in op or 'atomic' in op)
        self.is_branch = op.startswith('s_cbranch') or op == 's_branch'
        self.target = ops[0] if self.is_branch else None
        allr = set().union(*R) if R else set()
        if self.is_mfma:
            self.defs = R[0]; self.srcA = R[1]; self.srcB = R[2]; self.srcC = R[3]
            self.uses = R[1] | R[2] | R[3]
            m = re.match(r'v_mfma_f32_(\d+)x(\d+)x(\d+)', op)
            mm = int(m.group(1))
            if '_2b_' in op: self.passes = 16
            elif mm == 32: self.passes = 8
            elif mm == 16: self.passes = 8 if '_4b_' in op else 4
            else: self.passes = 2
        elif self.is_valu:
            if op.startswith('v_cmpx'):
                self.defs = R[0] | {('s', 'exec')}; self.uses = set().union(*R[1:])
            elif op.startswith('v_permlane') and 'swap' in op:
                self.defs = R[0] | R[1]; self.uses = R[0] | R[1]
            elif op.startswith('v_add_co') or op.startswith('v_sub_co') or op.startswith('v_addc_co'):
                self.defs = R[0] | R[1]; self.uses = set().union(*R[2:])
            elif op == 'v_nop':
                pass
            else:
                self.defs = R[0]; self.uses = set().union(*R[1:]) if len(R) > 1 else set()
                if op.startswith('v_dot2c') or op.startswith('v_fmac') or op.startswith('v_writelane') or 'UNUSED_PRESERVE' in rest:
                    self.uses |= R[0]
        elif self.is_vmem:
            if self.is_store or self.is_lds_dma or op in ('buffer_wbl2', 'buffer_inv'):
                self.uses = allr
                if self.is_lds_dma: self.uses |= {('s', 'm0')}
                if self.is_store:
                    self.data = R[0] if op.startswith('buffer_') else R[1]
                    if 'atomic' in op and re.search(r'\bsc0\b', rest): self.defs = R[0]
            else:
                self.defs = R[0]; self.uses = set().union(*R[1:])
        elif self.is_ds:
            if op.startswith('ds_read') or op.startswith('ds_bpermute') or op.startswith('ds_swizzle') or '_rtn' in op:
                self.defs = R[0]; self.uses = set().union(*R[1:])
            else:
                self.uses = allr
        elif self.is_salu:
            if op.startswith('s_cmp') or op in ('s_waitcnt', 's_barrier', 's_nop', 's_endpgm', 's_setprio', 's_sleep') or self.is_branch:
                self.uses = allr
            elif op.endswith('saveexec_b64'):
                self.defs = R[0] | {('s', 'exec')}; self.uses = set().union(*R[1:]) | {('s', 'exec')}
            else:
                self.defs = R[0] if R else set(); self.uses = set().union(*R[1:]) if len(R) > 1 else set()
    def states(self):
        if self.op is None: return 0
        if self.op == 's_nop': return int(self.ops[0]) + 1
        return 1

def vg(s): return {r for r in s if r[0] in 'va'}
def sg(s): return {r for r in s if r[0] == 's'}

def need(p, c):
    n = 0
    if p.op is None or c.op is None: return 0
    pv = vg(p.defs); ps = sg(p.defs)
    if p.is_valu:
        if ps:
            if c.is_vmem and (ps & c.uses): n = max(n, 5)
            if c.is_valu and (ps & c.uses): n = max(n, 4 if ('readlane' in c.op or 'writelane' in c.op) else 2)
            if c.is_salu and (ps & c.uses): n = max(n, 1)
            if ('s', 'exec') in ps and (c.is_mfma or c.op.startswith('v_permlane') or 'readlane' in c.op or 'readfirstlane' in c.op): n = max(n, 4)
            if ('s', 'exec') in ps and 'dpp' in c.text: n = max(n, 5)
        if pv:
            if c.is_mfma and (pv & c.uses): n = max(n, 2)
            if c.is_valu and c.op.startswith('v_permlane') and (pv & c.uses): n = max(n, 2)
            if c.is_valu and ('row_' in c.text or 'quad_perm' in c.text or 'dpp' in c.op) and (pv & c.uses): n = max(n, 2)
            if c.is_valu and ('readlane' in c.op or 'readfirstlane' in c.op) and (pv & c.uses): n = max(n, 1)
            if p.op in TRANS or p.op.replace('_e32','').replace('_e64','') in TRANS:
                if (c.is_valu or c.is_mfma or c.is_vmem or c.is_ds) and (pv & c.uses): n = max(n, 1)
            if p.op.startswith('v_dot'):
                if c.op == p.op:
                    srcab = set().union(*[regs_of(x) for x in c.ops[1:3]])
                    if pv & srcab: n = max(n, 3)
                elif (pv & (c.uses | c.defs)): n = max(n, 3)
            if ('sdwa' in p.op or 'op_sel' in p.text) and not p.op.startswith('v_pk') and c.is_valu and (pv & (c.uses | c.defs)): n = max(n, 1)
    if p.is_salu and ('s', 'm0') in ps and (c.is_lds_dma or 'addtid' in c.op): n = max(n, 1)
    if p.is_mfma:
        D = p.defs
        k = {2: 0, 4: 1, 8: 2, 16: 3}[p.passes]
        if c.is_mfma:
            if D & c.srcC:
                if c.srcC == D and c.passes == p.passes: n = max(n, [2, 0, 0, 0][k])
                else: n = max(n, [4, 6, 10, 18][k])
            if D & (c.srcA | c.srcB): n = max(n, [5, 8, 12, 20][k])
            if (D & c.defs) and not (D & c.srcC): n = max(n, [4, 6, 10, 18][k])
        elif c.is_valu or c.is_vmem or c.is_ds:
            if D & (c.uses | c.defs): n = max(n, [5, 8, 12, 20][k])
        if (c.is_valu) and (vg(p.srcC) & c.defs): n = max(n, [1, 3, 7, 15][k])
    if p.is_store and ('x4' in p.op or 'x3' in p.op):
        if (c.is_valu or c.is_mfma) and (p.data & c.defs): n = max(n, 2)
        elif (p.data & c.defs): n = max(n, 1)
    return n

def pad_hazards(lines, verbose=False):
    ins = [Ins(l) for l in lines]
    MAXW = 21
    changed = True
    total = 0
    while changed:
        changed = False
        labels = {x.label: i for i, x in enumerate(ins) if x.label}
        preds = {}
        for i, x in enumerate(ins):
            if x.op and x.is_branch and x.target in labels:
                preds.setdefault(labels[x.target], []).append(i)
        for i, c in enumerate(ins):
            if c.op is None: continue
            worst = 0
            stack = [(i - 1, 0)]
            seen = set()
            while stack:
                j, dist = stack.pop()
                while j >= 0 and dist < MAXW:
                    if (j, dist) in seen: break
                    seen.add((j, dist))
                    p = ins[j]
                    if p.label:
                        for b in preds.get(j, []):
                            stack.append((b, dist))
                    if p.op:
                        if p.op in ('s_branch', 's_endpgm') and j != None and (j + 1 <= i) and not (j, 'taken') in seen:
                            if not any(j == b for bl in preds.values() for b in bl) or True:
                                pass
                        nn = need(p, c)
                        if nn - dist > worst: worst = nn - dist
                        dist += p.states()
                    if j - 1 >= 0 and ins[j - 1].op in ('s_branch', 's_endpgm', 's_setpc_b64'):
                        break
                    j -= 1
            if worst > 0:
                if verbose: print("pad", worst, "before", c.text.strip())
                ins.insert(i, Ins(f"    s_nop {worst - 1}"))
                total += worst
                changed = True
                break
    return [x.text for x in ins], total

class K:
    def __init__(self, name):
        self.name = name
        self.lines = []
        self.nv = 0; self.na = 0; self.ns = 0
        self.vnext = 1; self.snext = 3; self.anext = 0
        self.uid = 0
    def v(self, n=1, align=None):
        al = align or (2 if n >= 2 else 1)
        self.vnext = (self.vnext + al - 1) // al * al
        r = self.vnext; self.vnext += n
        return r
    def a(self, n=1):
        r = self.anext; self.anext += n
        return r
    def s(self, n=1, align=None):
        al = align or (4 if n >= 4 else (2 if n >= 2 else 1))
        self.snext = (self.snext + al - 1) // al * al
        r = self.snext; self.snext += n
        assert self.snext <= 100, "out of sgprs"
        return r
    def __call__(self, text):
        for l in text.split('\n'):
            l = l.strip()
            if not l: continue
            if l.endswith(':'): self.lines.append(l)
            else: self.lines.append('    ' + l)
    def label(self, base):
        self.uid += 1
        return f"L_{self.name}_{base}_{self.uid}"
    def finish(self, verbose=False):
        lines, tot = pad_hazards(self.lines, verbose)
        maxv = maxa = maxs = -1
        for l in lines:
            for r in regs_of(l.split(';')[0]):
                if isinstance(r[1], int):
                    if r[0] == 'v': maxv = max(maxv, r[1])
                    if r[0] == 'a': maxa = max(maxa, r[1])
                    if r[0] == 's': maxs = max(maxs, r[1])
        assert maxv < 256 and maxa < 256 and maxs < 102
        acc = (maxv + 1 + 3) // 4 * 4
        nfv = acc + maxa + 1 if maxa >= 0 else maxv + 1
        head = f".globl {self.name}\n.p2align 8\n.type {self.name},@function\n{self.name}:\n"
        body = "\n".join(lines) + "\n"
        desc = f""".amdhsa_kernel {self.name}
  .amdhsa_next_free_vgpr {nfv}
  .amdhsa_next_free_sgpr {max(maxs + 1, 16)}
  .amdhsa_accum_offset {acc}
  .amdhsa_group_segment_fixed_size 0
  .amdhsa_kernarg_size 80
  .amdhsa_user_sgpr_count 2
  .amdhsa_user_sgpr_kernarg_segment_ptr 1
  .amdhsa_system_sgpr_workgroup_id_x 1
.end_amdhsa_kernel
"""
        self.info = dict(nfv=nfv, acc=acc, sgpr=maxs + 1, nops=tot, ninstr=sum(1 for l in lines if l.startswith('    ')))
        return head + body, desc

def vr(b, n=1): return f"v{b}" if n == 1 else f"v[{b}:{b+n-1}]"
def ar(b, n=1): return f"a{b}" if n == 1 else f"a[{b}:{b+n-1}]"
def sr(b, n=1): return f"s{b}" if n == 1 else f"s[{b}:{b+n-1}]"
```

```python
import sys, importlib
from asmlib import *
HEADER = """; Kernarg layout for this problem (80 bytes, ptrs only, base s[0:1]):
"""
def build(kernels, path, verbose=False):
    launches = ""; body = ""; descs = ""
    seen = set()
    for k, (grid, block, lds) in kernels:
        launches += f"; @launch kernel={k.name} grid=({grid},1,1) block=({block},1,1) lds={lds}\n"
        if k.name in seen: continue
        seen.add(k.name)
        b, d = k.finish(verbose)
        print(k.name, k.info, "lds", lds, file=sys.stderr)
        body += b; descs += ".p2align 6\n" + d
    s = HEADER + launches + '.amdgcn_target "amdgcn-amd-amdhsa--gfx950"\n.text\n' + body + '.section .rodata,"a"\n' + descs
    open(path, "w").write(s)
```

```python
from asmlib import *
from layout import *

def srd(k, s, base_lo, base_hi, size):
    k(f"s_mov_b32 s{s}, s{base_lo}\ns_mov_b32 s{s+1}, s{base_hi}")
    k(f"s_mov_b32 s{s+2}, {size}\ns_mov_b32 s{s+3}, 0x20000")

def gen_k1(NS=4, rot=True):
    k = K("k1_qkv_kernel")
    SLOT = 32768
    sP = k.s(4)
    sWS = k.s(2)
    sX = k.s(4); sW = k.s(4); sO = k.s(4)
    s_w = k.s(); s_tb = k.s(); s_cg = k.s(); s_t0 = k.s(); s_t1 = k.s(); s_t2 = k.s()
    s_ox = k.s(); s_ow = k.s(); s_m0x = k.s(); s_slot = k.s(); s_cnt = k.s(); s_delta = k.s(); s_ones = k.s()
    s_rs = k.s()
    vX = [k.v() for _ in range(4)]; vW = [k.v() for _ in range(4)]
    vXA = [[k.v() for _ in range(4)] for _ in range(2)]
    vWA = [k.v() for _ in range(2)]
    vt = [k.v() for _ in range(6)]
    vl = k.v()
    acc = [[k.v(16, 4) for _ in range(2)] for _ in range(2)]
    fx = [[k.v(4, 4) for _ in range(2)] for _ in range(2)]
    fw = [[k.v(4, 4) for _ in range(2)] for _ in range(2)]
    vsum = k.v(); vsq = k.v(); vcs = k.v()
    L_end = k.label("end"); L_spare = k.label("spare"); L_v = k.label("vpath")

    k(f"""s_load_dwordx4 {sr(sP,4)}, s[0:1], {KA_X}
    s_load_dwordx2 {sr(sWS,2)}, s[0:1], {KA_WS}
    s_cmp_ge_u32 s2, 256
    s_cbranch_scc1 {L_end}
    v_lshrrev_b32 v{vt[0]}, 6, v0
    v_and_b32 v{vl}, 63, v0
    v_readfirstlane_b32 s{s_w}, v{vt[0]}
    s_and_b32 s{s_t0}, s2, 3
    s_lshl_b32 s{s_t0}, s{s_t0}, 2
    s_bfe_u32 s{s_t1}, s2, 0x20003
    s_add_u32 s{s_tb}, s{s_t0}, s{s_t1}
    s_bfe_u32 s{s_t0}, s2, 0x10002
    s_lshl_b32 s{s_t0}, s{s_t0}, 3
    s_lshr_b32 s{s_t1}, s2, 5
    s_add_u32 s{s_cg}, s{s_t0}, s{s_t1}
    s_cmp_eq_u32 s{s_cg}, 15
    s_cbranch_scc1 {L_spare}
    """)
    k(f"""v_lshrrev_b32 v{vt[0]}, 3, v{vl}
    s_lshl_b32 s{s_t0}, s{s_w}, 5
    v_add_u32 v{vt[0]}, s{s_t0}, v{vt[0]}
    v_mul_u32_u24 v{vt[0]}, 1280, v{vt[0]}
    v_lshrrev_b32 v{vt[1]}, 4, v{vl}
    v_and_b32 v{vt[2]}, 7, v{vl}
    v_xor_b32 v{vt[2]}, v{vt[2]}, v{vt[1]}
    v_lshl_add_u32 v{vX[0]}, v{vt[2]}, 4, v{vt[0]}
    v_xor_b32 v{vX[1]}, 64, v{vX[0]}
    v_add_u32 v{vX[2]}, {2*(8*1280-1024)}, v{vX[0]}
    v_add_u32 v{vX[1]}, {8*1280-1024}, v{vX[1]}
    v_add_u32 v{vX[3]}, {2*(8*1280-1024)}, v{vX[1]}
    """)
    k(f"""s_lshl_b32 s{s_t0}, s{s_w}, 4
    v_add_u32 v{vt[0]}, s{s_t0}, v{vt[1]}
    v_mul_u32_u24 v{vt[0]}, 3840, v{vt[0]}
    v_and_b32 v{vt[2]}, 15, v{vl}
    v_lshlrev_b32 v{vt[3]}, 2, v{vt[1]}
    v_xor_b32 v{vt[2]}, v{vt[2]}, v{vt[3]}
    v_lshl_add_u32 v{vW[0]}, v{vt[2]}, 4, v{vt[0]}
    v_add_u32 v{vW[1]}, {4*3840-1024}, v{vW[0]}
    v_add_u32 v{vW[2]}, {2*(4*3840-1024)}, v{vW[0]}
    v_add_u32 v{vW[3]}, {3*(4*3840-1024)}, v{vW[0]}
    s_mul_i32 s{s_t0}, s{s_tb}, {128*1280}
    s_lshl_b32 s{s_t1}, s{s_cg}, 8
    s_lshl_b32 s{s_m0x}, s{s_w}, 12
    """)
    if rot:
        k(f"s_and_b32 s{s_t2}, s2, 7\ns_lshl_b32 s{s_ox}, s{s_t2}, 7\ns_mul_i32 s{s_ow}, s{s_t2}, {64*3840}")
    else:
        k(f"s_mov_b32 s{s_ox}, 0\ns_mov_b32 s{s_ow}, 0")
    k(f"""s_waitcnt lgkmcnt(0)
    s_add_u32 s{sX}, s{sP}, s{s_t0}
    s_addc_u32 s{sX+1}, s{sP+1}, 0
    s_mov_b32 s{sX+2}, {128*1280}
    s_mov_b32 s{sX+3}, 0x20000
    s_add_u32 s{sW}, s{sP+2}, s{s_t1}
    s_addc_u32 s{sW+1}, s{sP+3}, 0
    s_sub_u32 s{sW+2}, {640*3840}, s{s_t1}
    s_mov_b32 s{sW+3}, 0x20000
    """)
    def dma_chunk(slot_expr_sgpr=None, slot_const=None):
        if slot_const is not None:
            k(f"s_add_u32 m0, s{s_m0x}, {slot_const*SLOT}")
        else:
            k(f"s_add_u32 m0, s{s_m0x}, s{slot_expr_sgpr}")
        for i in range(4):
            k(f"buffer_load_dwordx4 v{vX[i]}, {sr(sX,4)}, s{s_ox} offen offset:{i*1024} lds")
        k(f"s_add_u32 m0, m0, 16384")
        for i in range(4):
            k(f"buffer_load_dwordx4 v{vW[i]}, {sr(sW,4)}, s{s_ow} offen offset:{i*1024} lds")
        k(f"""s_add_u32 s{s_ox}, s{s_ox}, 128
        s_add_u32 s{s_ow}, s{s_ow}, {64*3840}
        s_cmp_eq_u32 s{s_ox}, 1280
        s_cselect_b32 s{s_ox}, 0, s{s_ox}
        s_cselect_b32 s{s_ow}, 0, s{s_ow}""")
    for c in range(NS):
        dma_chunk(slot_const=c)
    k(f"""s_lshr_b32 s{s_t0}, s{s_w}, 1
    s_and_b32 s{s_t1}, s{s_w}, 1
    v_and_b32 v{vt[0]}, 31, v{vl}
    v_lshrrev_b32 v{vt[1]}, 5, v{vl}
    v_bfe_u32 v{vt[2]}, v{vl}, 1, 3
    v_xor_b32 v{vt[2]}, v{vt[2]}, v{vt[1]}
    v_lshlrev_b32 v{vt[2]}, 4, v{vt[2]}
    v_lshl_add_u32 v{vt[2]}, v{vt[0]}, 7, v{vt[2]}
    s_lshl_b32 s{s_t2}, s{s_w}, 12
    v_add_u32 v{vXA[0][0]}, s{s_t2}, v{vt[2]}
    v_xor_b32 v{vXA[1][0]}, 4096, v{vXA[0][0]}
    """)
    for mt in range(2):
        for s in range(1, 4):
            k(f"v_xor_b32 v{vXA[mt][s]}, {32*s}, v{vXA[mt][0]}")
    k(f"""v_bfe_u32 v{vt[2]}, v{vl}, 2, 2
    v_lshl_add_u32 v{vt[3]}, v{vt[1]}, 3, v{vt[2]}
    v_lshlrev_b32 v{vt[3]}, 8, v{vt[3]}
    s_lshl_b32 s{s_t2}, s{s_t1}, 1
    s_add_u32 s{s_t2}, s{s_t2}, s{s_t0}
    v_xor_b32 v{vt[2]}, s{s_t2}, v{vt[2]}
    v_lshl_add_u32 v{vt[3]}, v{vt[2]}, 6, v{vt[3]}
    v_bfe_u32 v{vt[2]}, v{vl}, 4, 1
    v_lshl_add_u32 v{vt[3]}, v{vt[2]}, 5, v{vt[3]}
    v_and_b32 v{vt[2]}, 3, v{vl}
    v_lshl_add_u32 v{vt[3]}, v{vt[2]}, 3, v{vt[3]}
    v_add_u32 v{vWA[0]}, 16384, v{vt[3]}
    v_xor_b32 v{vWA[1]}, 64, v{vWA[0]}
    s_mov_b32 s{s_ones}, 0x3f803f80
    v_mov_b32 v{vsum}, 0
    v_mov_b32 v{vsq}, 0
    v_mov_b32 v{vcs}, 0
    s_mov_b32 s{s_slot}, 0
    """)
    for nt in range(2):
        for mt in range(2):
            for i in range(16):
                k(f"v_mov_b32 v{acc[nt][mt]+i}, 0")
    def reads(buf, s):
        out = []
        for mt in range(2):
            out.append(f"ds_read_b128 {vr(fx[buf][mt],4)}, v{vXA[mt][s]}")
        for nt in range(2):
            for rd in range(2):
                out.append(f"ds_read_b64_tr_b16 {vr(fw[buf][nt]+2*rd,2)}, v{vWA[nt]} offset:{(16*s+4*rd)*256}")
        return out
    def mfmas(buf, vpath):
        out = []
        for nt in range(2):
            for mt in range(2):
                a, b = (fx[buf][mt], fw[buf][nt]) if vpath else (fw[buf][nt], fx[buf][mt])
                out.append(f"v_mfma_f32_32x32x16_bf16 {vr(acc[nt][mt],16)}, {vr(a,4)}, {vr(b,4)}, {vr(acc[nt][mt],16)}")
        return out
    def dots(buf):
        out = []
        for i in range(4):
            out.append(f"v_dot2c_f32_bf16 v{vsum}, s{s_ones}, v{fx[buf][0]+i}")
            out.append(f"v_dot2c_f32_bf16 v{vsq}, v{fx[buf][0]+i}, v{fx[buf][0]+i}")
            out.append(f"v_dot2c_f32_bf16 v{vcs}, s{s_ones}, v{fw[buf][0]+i}")
        return out
    def kstep(buf, vpath, rd, extra=[]):
        m = mfmas(buf, vpath); d = dots(buf)
        fill = [[] for _ in range(4)]
        for i, x in enumerate(rd): fill[i * 2 // len(rd) if rd else 0].append(x)
        for i, x in enumerate(extra): fill[min(3, i * 4 // max(1, len(extra)))].append(x)
        for i, x in enumerate(d): fill[i // 3].append(x)
        for i in range(4):
            k(m[i])
            for x in fill[i]: k(x)
    def chunk(vpath, mode, vm):
        for s in range(3):
            k("s_waitcnt lgkmcnt(0)")
            kstep(s & 1, vpath, reads((s + 1) & 1, s + 1))
        k("s_waitcnt lgkmcnt(0)")
        if mode == 'last':
            kstep(1, vpath, [])
            return
        k(f"s_waitcnt vmcnt({vm})\ns_barrier")
        k(f"""s_add_u32 s{s_rs}, s{s_slot}, {SLOT}
        s_cmp_eq_u32 s{s_rs}, {NS*SLOT}
        s_cselect_b32 s{s_delta}, {(-(NS-1)*SLOT) & 0xffffffff}, {SLOT}""") if False else None
        k(f"s_cmp_eq_u32 s{s_slot}, {(NS-1)*SLOT}")
        k(f"s_mov_b32 s{s_delta}, {SLOT}")
        k(f"s_cselect_b32 s{s_delta}, {(-(NS-1)*SLOT) & 0xffffffff}, s{s_delta}")
        adds = [f"v_add_u32 v{r}, s{s_delta}, v{r}" for r in [vXA[0][0], vXA[1][0], vWA[0], vWA[1]]]
        for x in adds: k(x)
        rest = [f"v_add_u32 v{vXA[mt][s]}, s{s_delta}, v{vXA[mt][s]}" for s in range(1, 4) for mt in range(2)]
        if mode == 'dma':
            dma_chunk(slot_expr_sgpr=s_slot)
        k(f"s_add_u32 s{s_slot}, s{s_slot}, s{s_delta}")
        kstep(1, vpath, reads(0, 0), rest)
    def mainloop(vpath):
        k(f"s_waitcnt vmcnt({8*(NS-1)})\ns_barrier")
        for x in reads(0, 0): k(x)
        nloop = 10 - NS
        L = k.label("loop")
        k(f"s_mov_b32 s{s_cnt}, {nloop}")
        k(f"{L}:")
        chunk(vpath, 'dma', 8 * (NS - 2))
        k(f"s_sub_u32 s{s_cnt}, s{s_cnt}, 1\ns_cmp_lg_u32 s{s_cnt}, 0\ns_cbranch_scc1 {L}")
        for c in range(nloop, 9):
            chunk(vpath, 'nodma', 8 * (8 - c))
        chunk(vpath, 'last', 0)
    XB = 0
    NM, RS, CS = XB, XB + 512, XB + 1024
    def stats(vpath):
        t = vt
        k(f"""v_mov_b32 v{t[0]}, v{vsum}
        v_mov_b32 v{t[1]}, v{vsq}
        v_mov_b32 v{t[2]}, v{vcs}
        v_permlane32_swap_b32 v{t[0]}, v{vsum}
        v_permlane32_swap_b32 v{t[1]}, v{vsq}
        v_permlane32_swap_b32 v{t[2]}, v{vcs}
        v_add_f32 v{vsum}, v{vsum}, v{t[0]}
        v_add_f32 v{vsq}, v{vsq}, v{t[1]}
        v_add_f32 v{vcs}, v{vcs}, v{t[2]}
        v_mul_f32 v{vsum}, {f2u(-1.0/640):#x}, v{vsum}
        v_mul_f32 v{vsq}, {f2u(1.0/640):#x}, v{vsq}
        v_fma_f32 v{vsq}, -v{vsum}, v{vsum}, v{vsq}
        v_max_f32 v{vsq}, 0, v{vsq}
        v_add_f32 v{vsq}, {f2u(1e-5):#x}, v{vsq}
        v_rsq_f32 v{vsq}, v{vsq}
        s_cmp_lt_u32 s{s_cg}, 5
        s_cselect_b32 s{s_t2}, {f2u(QSCALE):#x}, 1.0
        v_mul_f32 v{vsq}, s{s_t2}, v{vsq}
        v_and_b32 v{t[0]}, 31, v{vl}
        s_lshl_b32 s{s_t2}, s{s_w}, 7
        v_lshl_add_u32 v{t[1]}, v{t[0]}, 2, s{s_t2}
        ds_write_b32 v{t[1]}, v{vsum} offset:{NM}
        ds_write_b32 v{t[1]}, v{vsq} offset:{RS}
        s_lshl_b32 s{s_t2}, s{s_t1}, 1
        s_add_u32 s{s_t2}, s{s_t2}, s{s_t0}
        s_lshl_b32 s{s_t2}, s{s_t2}, 7
        v_lshl_add_u32 v{t[2]}, v{t[0]}, 2, s{s_t2}
        ds_write_b32 v{t[2]}, v{vcs} offset:{CS}
        s_waitcnt lgkmcnt(0)
        s_barrier
        """)
    def epilogue(vpath):
        t = vt
        stats(vpath)
        la = fx[0][0]
        rg = k.v(32, 4)
        hoff = t[3]
        k(f"v_lshrrev_b32 v{hoff}, 5, v{vl}\nv_lshlrev_b32 v{hoff}, 4, v{hoff}")
        srd(k, sO, sWS, sWS + 1, WSEND)
        if not vpath:
            k(f"""v_xor_b32 v{t[4]}, 128, v{t[1]}
            ds_read_b32 v{la+0}, v{t[1]} offset:{NM}
            ds_read_b32 v{la+2}, v{t[1]} offset:{RS}
            ds_read_b32 v{la+4}, v{t[4]} offset:{NM}
            ds_read_b32 v{la+6}, v{t[4]} offset:{RS}
            v_add_u32 v{t[5]}, s{s_t2}, v{hoff}
            v_xor_b32 v{t[4]}, 128, v{t[5]}""")
            for nt in range(2):
                for j in range(4):
                    k(f"ds_read_b128 {vr(rg+16*nt+4*j,4)}, v{t[5] if nt==0 else t[4]} offset:{CS+32*j}")
            k(f"""v_lshlrev_b32 v{t[0]}, 4, v{t[0]}
            v_lshl_add_u32 v{t[0]}, v{hoff}, 11, v{t[0]}
            s_lshl_b32 s{s_ox}, s{s_cg}, 19
            s_lshl_b32 s{s_ow}, s{s_t2}, 10
            s_add_u32 s{s_ox}, s{s_ox}, s{s_ow}
            s_lshl_b32 s{s_ow}, s{s_tb}, 11
            s_add_u32 s{s_ox}, s{s_ox}, s{s_ow}
            s_lshl_b32 s{s_ow}, s{s_w}, 9
            s_add_u32 s{s_ox}, s{s_ox}, s{s_ow}
            s_waitcnt lgkmcnt(0)
            v_mov_b32 v{la+1}, v{la+0}
            v_mov_b32 v{la+3}, v{la+2}
            v_mov_b32 v{la+5}, v{la+4}
            v_mov_b32 v{la+7}, v{la+6}""")
            for nt in range(2):
                for mt in range(2):
                    A = acc[nt][mt]
                    for p in range(8):
                        k(f"v_pk_fma_f32 {vr(A+2*p,2)}, {vr(rg+16*nt+2*p,2)}, {vr(la+4*mt,2)}, {vr(A+2*p,2)}")
                    for p in range(8):
                        k(f"v_pk_mul_f32 {vr(A+2*p,2)}, {vr(A+2*p,2)}, {vr(la+4*mt+2,2)}")
                    for p in range(8):
                        k(f"v_cvt_pk_bf16_f32 v{A+p}, v{A+2*p}, v{A+2*p+1}")
                    k(f"s_xor_b32 s{s_ow}, s{s_ox}, {(nt*4*32768) | (mt*512)}")
                    k(f"s_add_u32 s{s_rs}, s{s_ow}, {2*32768}")
                    for jp in range(2):
                        k(f"v_permlane32_swap_b32 v{A+4*jp}, v{A+4*jp+2}\nv_permlane32_swap_b32 v{A+4*jp+1}, v{A+4*jp+3}")
                    k(f"buffer_store_dwordx4 {vr(A,4)}, v{t[0]}, {sr(sO,4)}, s{s_ow} offen")
                    k(f"buffer_store_dwordx4 {vr(A+4,4)}, v{t[0]}, {sr(sO,4)}, s{s_rs} offen")
        else:
            rg2 = k.v(32, 4)
            k(f"""v_xor_b32 v{t[4]}, 128, v{t[2]}
            ds_read_b32 v{la+0}, v{t[2]} offset:{CS}
            ds_read_b32 v{la+2}, v{t[4]} offset:{CS}
            s_lshl_b32 s{s_ow}, s{s_w}, 7
            v_add_u32 v{t[5]}, s{s_ow}, v{hoff}
            v_xor_b32 v{t[4]}, 128, v{t[5]}""")
            for mt in range(2):
                for j in range(4):
                    k(f"ds_read_b128 {vr(rg+16*mt+4*j,4)}, v{t[5] if mt==0 else t[4]} offset:{NM+32*j}")
                    k(f"ds_read_b128 {vr(rg2+16*mt+4*j,4)}, v{t[5] if mt==0 else t[4]} offset:{RS+32*j}")
            va = [la + 4, la + 5]
            k(f"""s_sub_u32 s{s_ox}, s{s_cg}, 10
            s_lshl_b32 s{s_ox}, s{s_ox}, 7
            s_lshr_b32 s{s_ow}, s{s_t2}, 2
            s_add_u32 s{s_ox}, s{s_ox}, s{s_ow}
            v_add_u32 v{t[0]}, s{s_ox}, v{t[0]}
            v_mul_u32_u24 v{hoff}, 21, v{hoff}""")
            for nt in range(2):
                if nt == 1: k(f"v_xor_b32 v{t[0]}, 32, v{t[0]}")
                k(f"""v_mul_u32_u24 v{t[1]}, 3277, v{t[0]}
                v_lshrrev_b32 v{t[1]}, 16, v{t[1]}
                v_mul_u32_u24 v{t[2]}, {VHEAD - 320}, v{t[1]}
                v_lshl_add_u32 v{t[2]}, v{t[0]}, 4, v{t[2]}
                v_add_u32 v{va[nt]}, v{t[2]}, v{hoff}""")
            k(f"""s_lshl_b32 s{s_ox}, s{s_tb}, 2
            s_add_u32 s{s_ox}, s{s_ox}, s{s_w}
            s_xor_b32 s{s_ow}, s{s_ox}, 1
            s_mul_i32 s{s_ox}, s{s_ox}, 1344
            s_mul_i32 s{s_ow}, s{s_ow}, 1344
            s_add_u32 s{s_ox}, s{s_ox}, {VIMG}
            s_add_u32 s{s_ow}, s{s_ow}, {VIMG}
            s_waitcnt lgkmcnt(0)
            v_mov_b32 v{la+1}, v{la+0}
            v_mov_b32 v{la+3}, v{la+2}""")
            for nt in range(2):
                for mt in range(2):
                    A = acc[nt][mt]
                    for p in range(8):
                        k(f"v_pk_fma_f32 {vr(A+2*p,2)}, {vr(rg+16*mt+2*p,2)}, {vr(la+2*nt,2)}, {vr(A+2*p,2)}")
                    for p in range(8):
                        k(f"v_pk_mul_f32 {vr(A+2*p,2)}, {vr(A+2*p,2)}, {vr(rg2+16*mt+2*p,2)}")
                    for p in range(8):
                        k(f"v_cvt_pk_bf16_f32 v{A+p}, v{A+2*p}, v{A+2*p+1}")
                    so = s_ox if mt == 0 else s_ow
                    k(f"buffer_store_dwordx4 {vr(A,4)}, v{va[nt]}, {sr(sO,4)}, s{so} offen")
                    k(f"buffer_store_dwordx4 {vr(A+4,4)}, v{va[nt]}, {sr(sO,4)}, s{so} offen offset:672")
        k("s_endpgm")
    k(f"s_cmp_ge_u32 s{s_cg}, 10\ns_cbranch_scc1 {L_v}")
    vsave = k.vnext
    mainloop(False); epilogue(False)
    k.vnext = vsave
    k(f"{L_v}:")
    mainloop(True); epilogue(True)
    k(f"{L_spare}:")
    k(f"""s_waitcnt lgkmcnt(0)""")
    srd(k, sO, sWS, sWS + 1, WSEND)
    k(f"""s_lshl_b32 s{s_t0}, s{s_tb}, 1
    s_mul_i32 s{s_t0}, s{s_t0}, {VHEAD}
    s_add_u32 s{s_t0}, s{s_t0}, {VIMG + 320}
    s_add_u32 s{s_t1}, s{s_t0}, {VHEAD}
    v_mul_u32_u24 v{vt[0]}, 336, v0""")
    o = acc[0][0]
    for i in range(4): k(f"v_mov_b32 v{o+i}, 0x3f803f80")
    k(f"""buffer_store_dwordx4 {vr(o,4)}, v{vt[0]}, {sr(sO,4)}, s{s_t0} offen
    buffer_store_dwordx4 {vr(o,4)}, v{vt[0]}, {sr(sO,4)}, s{s_t1} offen
    {L_end}:
    s_endpgm""")
    lds = NS * SLOT
    return k, (256, 256, lds)
```

```python
from asmlib import *
from layout import *
from k1 import srd

M16 = "v_mfma_f32_32x32x16_bf16"
M8 = "v_mfma_f32_32x32x8_bf16"

def gen_k2(prio=None, prep=True):
    k = K("k2_attn_kernel")
    SLOT = 24576; NS = 3; PREP = NS * SLOT
    sP = k.s(8)
    sWD = k.s(2); sWS = k.s(2)
    sO = k.s(4); sA = k.s(4); sB = k.s(4)
    s_w = k.s(); s_h = k.s(); s_qb = k.s(); s_pa = k.s(); s_pr = k.s(); s_odd8 = k.s()
    s_t0 = k.s(); s_t1 = k.s(); s_t2 = k.s(); s_t3 = k.s()
    so = [k.s() for _ in range(3)]; s_d = k.s(); s_mo = k.s(); s_ms = k.s()
    s_c = k.s(); s_slotn = k.s(); s_slotd = k.s()
    s_po = [k.s() for _ in range(4)]
    s_tok = k.s(); sE = k.s(2); sF = k.s(2); sG = k.s(2)
    vl = k.v(); vl16 = k.v(); vq = k.v(); vr31 = k.v()
    vKA = [k.v(), k.v()]; vKR = [k.v(), k.v()]; vVA = [k.v(), k.v()]
    vt = [k.v() for _ in range(6)]
    vPA = k.v()
    S = [k.v(16, 4), k.v(16, 4)]; O = k.v(16, 4); C = k.v(16, 4); P = k.v(8, 4)
    Qm = k.v(4, 4); Qr = k.v(2); Km = k.v(4, 4); Kr = k.v(2); V0 = k.v(4, 4); V1 = [k.v(4, 4), k.v(4, 4)]
    PR = k.v(16, 4)
    L_end = k.label("end"); L_slow = k.label("slow"); L_store = k.label("store")
    k(f"""s_load_dwordx2 {sr(sWS,2)}, s[0:1], {KA_WS}
    s_load_dwordx8 {sr(sP,8)}, s[0:1], {KA_WO}
    s_load_dwordx2 {sr(sWD,2)}, s[0:1], {KA_WD}
    s_cmp_ge_u32 s2, 256
    s_cbranch_scc1 {L_end}
    v_lshrrev_b32 v{vt[0]}, 6, v0
    v_and_b32 v{vl}, 63, v0
    v_readfirstlane_b32 s{s_w}, v{vt[0]}
    v_lshlrev_b32 v{vl16}, 4, v{vl}
    s_and_b32 s{s_t0}, s2, 7
    s_lshl_b32 s{s_t0}, s{s_t0}, 2
    s_bfe_u32 s{s_t1}, s2, 0x20003
    s_add_u32 s{s_h}, s{s_t0}, s{s_t1}
    s_lshr_b32 s{s_qb}, s2, 5
    s_lshr_b32 s{s_t0}, s{s_h}, 1
    s_mul_i32 s{s_t0}, s{s_t0}, 5
    s_and_b32 s{s_t1}, s{s_h}, 1
    s_lshl_b32 s{s_odd8}, s{s_t1}, 3
    s_mul_i32 s{s_t1}, s{s_t1}, 3
    s_add_u32 s{s_pa}, s{s_t0}, s{s_t1}
    s_lshl_b32 s{s_pa}, s{s_pa}, 15
    s_add_u32 s{s_pr}, s{s_t0}, 2
    s_lshl_b32 s{s_pr}, s{s_pr}, 15
    """)
    Lkw = k.label("kw"); Lkd = k.label("kd")
    k(f"""s_cmp_lt_u32 s{s_w}, 4
    s_cbranch_scc1 {Lkw}
    s_sub_u32 s{s_t0}, s{s_w}, 4
    s_mul_i32 s{s_t0}, s{s_t0}, 3072
    s_mul_i32 s{s_t1}, s{s_h}, {VHEAD}
    s_add_u32 s{s_t1}, s{s_t1}, {VIMG}
    s_add_u32 s{so[0]}, s{s_t1}, s{s_t0}
    s_add_u32 s{so[1]}, s{so[0]}, 1024
    s_add_u32 s{so[2]}, s{so[0]}, 2048
    s_mov_b32 s{s_d}, 10752
    s_add_u32 s{s_mo}, s{s_t0}, 12288
    s_mov_b32 s{s_ms}, 1024
    s_branch {Lkd}
    {Lkw}:
    s_lshl_b32 s{s_mo}, s{s_w}, 10
    s_add_u32 s{s_t0}, s{s_mo}, {80*32768}
    s_add_u32 s{so[0]}, s{s_pa}, s{s_t0}
    s_add_u32 s{so[1]}, s{so[0]}, 32768
    s_add_u32 s{so[2]}, s{s_pr}, s{s_t0}
    s_mov_b32 s{s_d}, 4096
    s_mov_b32 s{s_ms}, 4096
    {Lkd}:
    s_waitcnt lgkmcnt(0)""")
    srd(k, sO, sWS, sWS + 1, WSEND)
    def dma(slot_s=None, slot_c=None):
        if slot_c is not None: k(f"s_add_u32 m0, s{s_mo}, {slot_c*SLOT}")
        else: k(f"s_add_u32 m0, s{s_mo}, s{slot_s}")
        for i in range(3):
            k(f"buffer_load_dwordx4 v{vl16}, {sr(sO,4)}, s{so[i]} offen lds")
            if i < 2: k(f"s_add_u32 m0, m0, s{s_ms}")
            k(f"s_add_u32 s{so[i]}, s{so[i]}, s{s_d}")
    dma(slot_c=0)
    k(f"""v_and_b32 v{vr31}, 31, v{vl}
    v_lshlrev_b32 v{vr31}, 4, v{vr31}
    v_lshrrev_b32 v{vt[1]}, 5, v{vl}
    v_lshl_add_u32 v{vq}, v{vt[1]}, 15, v{vr31}
    s_lshl_b32 s{s_tok}, s{s_qb}, 8
    s_lshl_b32 s{s_t0}, s{s_w}, 5
    s_add_u32 s{s_tok}, s{s_tok}, s{s_t0}
    s_lshl_b32 s{s_t0}, s{s_tok}, 4
    s_add_u32 s{s_t1}, s{s_t0}, s{s_pa}
    s_add_u32 s{s_t2}, s{s_t0}, s{s_pr}
    s_add_u32 s{s_t2}, s{s_t2}, s{s_odd8}
    v_mov_b32 v{Qr}, 0
    v_mov_b32 v{Qr+1}, 0
    buffer_load_dwordx4 {vr(Qm,4)}, v{vq}, {sr(sO,4)}, s{s_t1} offen
    s_mov_b32 exec_hi, 0
    buffer_load_dwordx2 {vr(Qr,2)}, v{vr31}, {sr(sO,4)}, s{s_t2} offen
    s_mov_b64 exec, -1
    """)
    dma(slot_c=1)
    nprep = 0
    if prep:
        nprep = 4
        Lwd = k.label("wd"); Lwo = k.label("wo"); Lwo2 = k.label("wo2"); Lgo = k.label("go"); Lnone = k.label("none"); Lcommon = k.label("c16")
        u, cb, R0, A_, B_, C_, st = s_t0, s_t1, s_t2, s_t3, s_slotn, s_slotd, s_c
        k(f"""s_lshl_b32 s{s_po[0]}, s2, 3
        s_add_u32 s{s_po[0]}, s{s_po[0]}, s{s_w}
        s_mov_b32 s{sA+3}, 0x20000
        s_mov_b32 s{sB+3}, 0x20000
        s_mov_b32 s{B_}, 8
        s_mov_b32 s{C_}, 4
        v_lshrrev_b32 v{vt[2]}, 4, v{vl}
        s_cmp_ge_u32 s{s_po[0]}, 1080
        s_cbranch_scc1 {Lwd}
        s_mul_i32 s{u}, s{s_po[0]}, 2428
        s_lshr_b32 s{u}, s{u}, 16
        s_mul_i32 s{cb}, s{u}, 27
        s_sub_u32 s{cb}, s{s_po[0]}, s{cb}
        s_lshl_b32 s{R0}, s{u}, 4
        s_mov_b32 s{A_}, 0
        s_mov_b32 s{st}, 3456
        s_mov_b32 s{sA}, s{sP+4}
        s_mov_b32 s{sA+1}, s{sP+5}
        s_mov_b32 s{sB}, s{sP+6}
        s_mov_b32 s{sB+1}, s{sP+7}
        s_mov_b32 s{sA+2}, {640*3456}
        s_mov_b32 s{sB+2}, {640*3456}
        """)
        for Tl in range(4):
            k(f"""s_lshl_b32 s{sE}, s{cb}, 2
            s_add_u32 s{sE}, s{sE}, {Tl}
            s_mul_i32 s{sE+1}, s{sE}, 9363
            s_lshr_b32 s{sE+1}, s{sE+1}, 16
            s_mul_i32 s{sE+1}, s{sE+1}, 273
            s_add_u32 s{sE}, s{sE}, s{sE+1}
            s_mul_i32 s{sE+1}, s{u}, 7
            s_add_u32 s{sE}, s{sE}, s{sE+1}
            s_lshl_b32 s{sE}, s{sE}, 10
            s_add_u32 s{s_po[Tl]}, s{sE}, {WGUP}""")
        k(f"""v_and_b32 v{vt[3]}, 1, v{vt[2]}
        v_lshrrev_b32 v{vt[2]}, 1, v{vt[2]}
        s_branch {Lgo}
        {Lwd}:
        s_mov_b32 s{st}, 1280
        s_cmp_ge_u32 s{s_po[0]}, 1620
        s_cbranch_scc1 {Lwo}
        s_sub_u32 s{cb}, s{s_po[0]}, 1080
        s_mul_i32 s{u}, s{cb}, 6554
        s_lshr_b32 s{u}, s{u}, 16
        s_lshl_b32 s{R0}, s{u}, 5
        s_mov_b32 s{A_}, 16
        s_mov_b32 s{sA}, s{sWD}
        s_mov_b32 s{sA+1}, s{sWD+1}
        s_mov_b32 s{sA+2}, {1728*1280}
        s_mov_b32 s{sF}, {54*5-5}
        s_mov_b32 s{sF+1}, {WDP}
        s_branch {Lcommon}
        {Lwo}:
        s_min_u32 s{s_po[0]}, s{s_po[0]}, 1819
        s_sub_u32 s{cb}, s{s_po[0]}, 1620
        s_mul_i32 s{u}, s{cb}, 6554
        s_lshr_b32 s{u}, s{u}, 16
        s_mul_i32 s{R0}, s{u}, 40
        s_mov_b32 s{A_}, 20
        s_mov_b32 s{sA}, s{sP}
        s_mov_b32 s{sA+1}, s{sP+1}
        s_mov_b32 s{sA+2}, {640*1280}
        s_mov_b32 s{sF}, {20*5-5}
        s_mov_b32 s{sF+1}, {WOP}
        s_cmp_lt_u32 s{u}, 16
        s_cbranch_scc1 {Lcommon}
        s_mul_i32 s{R0}, s{u}, 160
        s_sub_u32 s{R0}, s{R0}, {16*160-16}
        s_mov_b32 s{A_}, 80
        s_mov_b32 s{B_}, 20
        s_mov_b32 s{C_}, 40
        {Lcommon}:
        s_mul_i32 s{sE}, s{u}, 10
        s_sub_u32 s{cb}, s{cb}, s{sE}
        s_mov_b32 s{sB}, s{sA}
        s_mov_b32 s{sB+1}, s{sA+1}
        s_mov_b32 s{sB+2}, s{sA+2}""")
        for Tl in range(4):
            k(f"""s_lshl_b32 s{sE}, s{cb}, 2
            s_add_u32 s{sE}, s{sE}, {Tl}
            s_mul_i32 s{sE+1}, s{sE}, 13108
            s_lshr_b32 s{sE+1}, s{sE+1}, 16
            s_mul_i32 s{sE+1}, s{sE+1}, s{sF}
            s_add_u32 s{sE}, s{sE}, s{sE+1}
            s_mul_i32 s{sE+1}, s{u}, 5
            s_add_u32 s{sE}, s{sE}, s{sE+1}
            s_lshl_b32 s{sE}, s{sE}, 10
            s_add_u32 s{s_po[Tl]}, s{sE}, s{sF+1}""")
        k(f"""v_lshrrev_b32 v{vt[3]}, 1, v{vt[2]}
        v_and_b32 v{vt[2]}, 1, v{vt[2]}
        {Lgo}:""")
        k(f"""v_lshlrev_b32 v{vt[3]}, 11, v{vt[3]}
        v_lshl_add_u32 v{vt[3]}, v{vt[2]}, 9, v{vt[3]}
        v_bfe_u32 v{vt[2]}, v{vl}, 2, 2
        v_lshl_add_u32 v{vt[3]}, v{vt[2]}, 7, v{vt[3]}
        v_and_b32 v{vt[2]}, 3, v{vl}
        v_lshl_add_u32 v{vt[3]}, v{vt[2]}, 3, v{vt[3]}
        s_lshl_b32 s{sE}, s{s_w}, 12
        s_add_u32 s{sE}, s{sE}, {PREP}
        v_add_u32 v{vPA}, s{sE}, v{vt[3]}
        v_mul_u32_u24 v{vt[2]}, s{C_}, v{vt[1]}
        v_bfe_u32 v{vt[3]}, v{vl}, 3, 2
        v_add_u32 v{vt[2]}, v{vt[2]}, v{vt[3]}
        v_mul_u32_u24 v{vt[2]}, s{st}, v{vt[2]}
        v_and_b32 v{vt[3]}, 7, v{vl}
        v_lshl_add_u32 v{vt[2]}, v{vt[3]}, 4, v{vt[2]}
        s_mov_b32 m0, s{sE}
        s_mul_i32 s{R0}, s{R0}, s{st}
        s_lshl_b32 s{cb}, s{cb}, 7
        s_add_u32 s{R0}, s{R0}, s{cb}
        s_mul_i32 s{A_}, s{A_}, s{st}
        s_mul_i32 s{B_}, s{B_}, s{st}
        buffer_load_dwordx4 v{vt[2]}, {sr(sA,4)}, s{R0} offen lds
        s_add_u32 m0, m0, 1024
        s_add_u32 s{sE}, s{R0}, s{B_}
        buffer_load_dwordx4 v{vt[2]}, {sr(sA,4)}, s{sE} offen lds
        s_add_u32 m0, m0, 1024
        s_add_u32 s{R0}, s{R0}, s{A_}
        buffer_load_dwordx4 v{vt[2]}, {sr(sB,4)}, s{R0} offen lds
        s_add_u32 m0, m0, 1024
        s_add_u32 s{sE}, s{R0}, s{B_}
        buffer_load_dwordx4 v{vt[2]}, {sr(sB,4)}, s{sE} offen lds
        """)
    k(f"""v_lshl_add_u32 v{vKA[0]}, v{vt[1]}, 12, v{vr31}
    v_add_u32 v{vKR[0]}, s{s_odd8}, v{vr31}
    v_add_u32 v{vKR[0]}, 8192, v{vKR[0]}
    v_mul_u32_u24 v{vt[0]}, 336, v{vt[1]}
    v_add_u32 v{vt[0]}, v{vt[0]}, v{vr31}
    v_add_u32 v{vVA[0]}, 12288, v{vt[0]}
    v_add_u32 v{vKA[1]}, {SLOT}, v{vKA[0]}
    v_add_u32 v{vKR[1]}, {SLOT}, v{vKR[0]}
    v_add_u32 v{vVA[1]}, {SLOT}, v{vVA[0]}
    s_mov_b32 s{s_c}, 0
    s_mov_b32 s{s_slotn}, {SLOT}
    s_mov_b32 s{s_slotd}, {2*SLOT}""")
    for i in range(16): k(f"v_mov_b32 v{O+i}, 0\nv_mov_b32 v{C+i}, 0")
    def rdK(t):
        n = t // 8; t %= 8
        return [f"ds_read_b128 {vr(Km,4)}, v{vKA[n]} offset:{t*512}", f"ds_read_b64 {vr(Kr,2)}, v{vKR[n]} offset:{t*512}"]
    def rdV(t):
        n = t // 8; tt = t % 8
        return [f"ds_read_b128 {vr(V0,4)}, v{vVA[n]} offset:{tt*1344}", f"ds_read_b128 {vr(V1[t&1],4)}, v{vVA[n]} offset:{tt*1344+672}"]
    k(f"s_waitcnt vmcnt({3+nprep})\ns_barrier")
    for x in rdK(0): k(x)
    k(f"""s_waitcnt lgkmcnt(0)
    {M8} {vr(S[0],16)}, {vr(Kr,2)}, {vr(Qr,2)}, {vr(C,16)}
    {M16} {vr(S[0],16)}, {vr(Km,4)}, {vr(Qm,4)}, {vr(S[0],16)}""")
    for x in rdK(1) + rdV(0): k(x)
    if prio == 'young':
        Lp = k.label("p"); k(f"s_cmp_lt_u32 s{s_w}, 4\ns_cbranch_scc1 {Lp}\ns_setprio 1\n{Lp}:")
    L = k.label("loop")
    k("s_nop 7")
    k(f"{L}:")
    for t in range(8):
        s = S[t & 1]; sn = S[(t + 1) & 1]
        e = lambda i: k(f"v_exp_f32 v{s+i}, v{s+i}")
        c = lambda i: k(f"v_cvt_pk_bf16_f32 v{P+i}, v{s+2*i}, v{s+2*i+1}")
        if prio == 'cyc': k(f"s_setprio {3 - (t & 3)}")
        e(0); e(1); e(2); e(3)
        k("s_waitcnt lgkmcnt(0)")
        k(f"{M8} {vr(sn,16)}, {vr(Kr,2)}, {vr(Qr,2)}, {vr(C,16)}")
        e(4); c(0); e(5); c(1); e(6); e(7)
        k(f"{M16} {vr(sn,16)}, {vr(Km,4)}, {vr(Qm,4)}, {vr(sn,16)}")
        c(2); e(8); c(3); e(9); e(10); e(11)
        k(f"{M16} {vr(O,16)}, {vr(V0,4)}, {vr(P,4)}, {vr(O,16)}")
        c(4); e(12); c(5); e(13); e(14); e(15); c(6)
        if t == 6:
            Ls = k.label("skip")
            k(f"s_waitcnt vmcnt(0)\ns_barrier\ns_cmp_ge_u32 s{s_c}, 6\ns_cbranch_scc1 {Ls}")
            dma(slot_s=s_slotd)
            k(f"{Ls}:")
        rd = rdK(t + 2) + rdV(t + 1)
        k(rd[0]); c(7); k(rd[1]); k(rd[2]); k(rd[3])
        k(f"{M16} {vr(O,16)}, {vr(V1[t&1],4)}, {vr(P+4,4)}, {vr(O,16)}")
    k(f"""v_mov_b32 v{vKA[0]}, v{vKA[1]}
    v_mov_b32 v{vKR[0]}, v{vKR[1]}
    v_mov_b32 v{vVA[0]}, v{vVA[1]}
    s_sub_u32 s{s_t0}, s{s_slotd}, s{s_slotn}
    s_mov_b32 s{s_slotn}, s{s_slotd}
    s_add_u32 s{s_slotd}, s{s_slotd}, {SLOT}
    s_cmp_eq_u32 s{s_slotd}, {NS*SLOT}
    s_cselect_b32 s{s_slotd}, 0, s{s_slotd}
    v_add_u32 v{vKA[1]}, s{s_t0}, v{vKA[1]}
    v_add_u32 v{vKR[1]}, s{s_t0}, v{vKR[1]}
    v_add_u32 v{vVA[1]}, s{s_t0}, v{vVA[1]}""")
    if prep:
        Lnp = k.label("np")
        k(f"s_cmp_lg_u32 s{s_c}, 0\ns_cbranch_scc1 {Lnp}")
        for Tl in range(4):
            for rd in range(2):
                k(f"ds_read_b64_tr_b16 {vr(PR+4*Tl+2*rd,2)}, v{vPA} offset:{rd*1024+Tl*32}")
        k("s_waitcnt lgkmcnt(0)")
        for Tl in range(4):
            k(f"buffer_store_dwordx4 {vr(PR+4*Tl,4)}, v{vl16}, {sr(sO,4)}, s{s_po[Tl]} offen")
        k(f"{Lnp}:")
    k(f"s_add_u32 s{s_c}, s{s_c}, 1\ns_cmp_lt_u32 s{s_c}, 8\ns_cbranch_scc1 {L}")
    t0, t1, t2 = vt[0], vt[1], vt[2]
    k(f"""s_nop 7
    s_nop 3
    v_mov_b32 v{t0}, v{O+8}
    v_mov_b32 v{t1}, v{O+8}
    v_add_f32 v{t2}, |v{O}|, |v{O+1}|
    v_permlane32_swap_b32 v{t0}, v{t1}""")
    for i in range(2, 12): k(f"v_add_f32 v{t2}, |v{O+i}|, v{t2}")
    k(f"""v_cmp_lt_f32 vcc, {f2u(2.0**-64):#x}, v{t1}
    s_mov_b32 s{s_t0}, {f2u(2.0**64):#x}
    s_mov_b32 s{s_t1}, 0x7f800000
    v_cmp_gt_f32 {sr(sE,2)}, s{s_t0}, v{t1}
    v_cmp_gt_f32 {sr(sF,2)}, s{s_t1}, v{t2}
    s_and_b64 vcc, vcc, {sr(sE,2)}
    s_and_b64 vcc, vcc, {sr(sF,2)}
    s_cmp_eq_u64 vcc, -1
    s_cbranch_scc0 {L_slow}
    {L_store}:
    v_rcp_f32 v{t1}, v{t1}""")
    k(f"""v_bfe_u32 v{t0}, v{vl}, 4, 1
    v_mul_u32_u24 v{t0}, {20*1024}, v{t0}
    v_and_b32 v{t2}, 15, v{vl}
    v_lshl_add_u32 v{t0}, v{t2}, 4, v{t0}
    v_lshrrev_b32 v{t2}, 5, v{vl}
    v_lshl_add_u32 v{t2}, v{t2}, 8, v{t0}
    s_lshr_b32 s{s_t0}, s{s_tok}, 4
    s_mul_i32 s{s_t0}, s{s_t0}, {20*1024}
    s_add_u32 s{s_t0}, s{s_t0}, {OIMG}
    s_lshl_b32 s{s_t1}, s{s_h}, 9
    s_add_u32 s{s_t1}, s{s_t1}, s{s_t0}
    s_lshr_b32 s{s_t2}, s{s_h}, 1
    s_lshl_b32 s{s_t2}, s{s_t2}, 8
    s_add_u32 s{s_t2}, s{s_t2}, s{s_t0}
    s_add_u32 s{s_t2}, s{s_t2}, s{s_odd8}
    s_add_u32 s{s_t2}, s{s_t2}, {16*1024}""")
    for i in range(12): k(f"v_mul_f32 v{O+i}, v{t1}, v{O+i}")
    for i in range(6): k(f"v_cvt_pk_bf16_f32 v{O+i}, v{O+2*i}, v{O+2*i+1}")
    k(f"""buffer_store_dwordx4 {vr(O,4)}, v{t2}, {sr(sO,4)}, s{s_t1} offen
    s_mov_b32 exec_hi, 0
    buffer_store_dwordx2 {vr(O+4,2)}, v{t0}, {sr(sO,4)}, s{s_t2} offen
    {L_end}:
    s_endpgm""")
    k(f"{L_slow}:")
    vV = vt[3]; vm = vt[4]
    k(f"""s_add_u32 s{so[0]}, s{s_pa}, {80*32768}
    s_add_u32 s{so[1]}, s{s_pr}, {80*32768}
    s_add_u32 s{so[1]}, s{so[1]}, s{s_odd8}
    v_mov_b32 v{vm}, 0xff800000
    s_mov_b32 s{s_c}, 0""")
    L1 = k.label("mx")
    k(f"""{L1}:
    buffer_load_dwordx4 {vr(Km,4)}, v{vq}, {sr(sO,4)}, s{so[0]} offen
    buffer_load_dwordx2 {vr(Kr,2)}, v{vr31}, {sr(sO,4)}, s{so[1]} offen
    s_add_u32 s{so[0]}, s{so[0]}, 512
    s_add_u32 s{so[1]}, s{so[1]}, 512
    s_waitcnt vmcnt(0)
    {M8} {vr(S[0],16)}, {vr(Kr,2)}, {vr(Qr,2)}, 0
    {M16} {vr(S[0],16)}, {vr(Km,4)}, {vr(Qm,4)}, {vr(S[0],16)}""")
    for i in range(8): k(f"v_max3_f32 v{vm}, v{S[0]+2*i}, v{S[0]+2*i+1}, v{vm}")
    k(f"""s_add_u32 s{s_c}, s{s_c}, 1
    s_cmp_lt_u32 s{s_c}, 64
    s_cbranch_scc1 {L1}
    v_mov_b32 v{t0}, v{vm}
    v_permlane32_swap_b32 v{t0}, v{vm}
    v_max_f32 v{vm}, v{vm}, v{t0}""")
    for i in range(16): k(f"v_sub_f32 v{C+i}, 0, v{vm}\nv_mov_b32 v{O+i}, 0")
    k(f"""s_add_u32 s{so[0]}, s{s_pa}, {80*32768}
    s_add_u32 s{so[1]}, s{s_pr}, {80*32768}
    s_add_u32 s{so[1]}, s{so[1]}, s{s_odd8}
    s_mul_i32 s{so[2]}, s{s_h}, {VHEAD}
    s_add_u32 s{so[2]}, s{so[2]}, {VIMG}
    v_lshrrev_b32 v{vV}, 5, v{vl}
    v_mul_u32_u24 v{vV}, 336, v{vV}
    v_add_u32 v{vV}, v{vV}, v{vr31}
    s_mov_b32 s{s_c}, 0""")
    L2 = k.label("pv")
    k(f"""{L2}:
    buffer_load_dwordx4 {vr(Km,4)}, v{vq}, {sr(sO,4)}, s{so[0]} offen
    buffer_load_dwordx2 {vr(Kr,2)}, v{vr31}, {sr(sO,4)}, s{so[1]} offen
    buffer_load_dwordx4 {vr(V0,4)}, v{vV}, {sr(sO,4)}, s{so[2]} offen
    buffer_load_dwordx4 {vr(V1[0],4)}, v{vV}, {sr(sO,4)}, s{so[2]} offen offset:672
    s_add_u32 s{so[0]}, s{so[0]}, 512
    s_add_u32 s{so[1]}, s{so[1]}, 512
    s_add_u32 s{so[2]}, s{so[2]}, 1344
    s_waitcnt vmcnt(0)
    {M8} {vr(S[0],16)}, {vr(Kr,2)}, {vr(Qr,2)}, {vr(C,16)}
    {M16} {vr(S[0],16)}, {vr(Km,4)}, {vr(Qm,4)}, {vr(S[0],16)}""")
    for i in range(16): k(f"v_exp_f32 v{S[0]+i}, v{S[0]+i}")
    for i in range(8): k(f"v_cvt_pk_bf16_f32 v{P+i}, v{S[0]+2*i}, v{S[0]+2*i+1}")
    k(f"""{M16} {vr(O,16)}, {vr(V0,4)}, {vr(P,4)}, {vr(O,16)}
    {M16} {vr(O,16)}, {vr(V1[0],4)}, {vr(P+4,4)}, {vr(O,16)}
    s_add_u32 s{s_c}, s{s_c}, 1
    s_cmp_lt_u32 s{s_c}, 64
    s_cbranch_scc1 {L2}
    v_mov_b32 v{t0}, v{O+8}
    v_mov_b32 v{t1}, v{O+8}
    v_permlane32_swap_b32 v{t0}, v{t1}
    s_branch {L_store}""")
    return k, (256, 512, PREP + 32768)
```

```python
from asmlib import *
from layout import *
from k1 import srd
MF = "v_mfma_f32_16x16x32_bf16"

def gen_k35(which):
    k3 = which == 3
    k = K("k3_oproj_kernel" if k3 else "k5_down_kernel")
    NU, CK, NSL = (20, 4, 5) if k3 else (54, 3, 6)
    NCH = NU // CK
    PW = (5 * CK + 3) // 4
    SLOT = 4 * PW * 1024
    BIMG, WP = (OIMG, WOP) if k3 else (ACT, WDP)
    XS = NSL * SLOT
    OPC = CK + PW
    sWS = k.s(2); sPX = k.s(2)
    sB = k.s(4); sW = k.s(4); sO = k.s(4); sX = k.s(4)
    s_w = k.s(); s_tb = k.s(); s_c = k.s(); s_t0 = k.s(); s_t1 = k.s(); s_t2 = k.s()
    s_bo = k.s(); s_wo = k.s(); s_m0 = k.s(); s_cnt = k.s(); s_ones = k.s()
    vl = k.v(); vl16 = k.v(); vA = k.v(); vt = [k.v() for _ in range(8)]
    vrow = [k.v() for _ in range(3)]
    acc = k.v(20, 4)
    fa = [k.v(20, 4), k.v(20, 4)]
    fb = k.v(4 * CK * NSL, 4)
    res = k.v(12, 4)
    L_end = k.label("end")
    k(f"""s_load_dwordx2 {sr(sWS,2)}, s[0:1], {KA_WS}
    s_load_dwordx2 {sr(sPX,2)}, s[0:1], {KA_X if k3 else KA_OUT}
    s_cmp_ge_u32 s2, 256
    s_cbranch_scc1 {L_end}
    v_lshrrev_b32 v{vt[0]}, 6, v0
    v_and_b32 v{vl}, 63, v0
    v_readfirstlane_b32 s{s_w}, v{vt[0]}
    v_lshlrev_b32 v{vl16}, 4, v{vl}
    s_and_b32 s{s_t0}, s2, 3
    s_lshl_b32 s{s_t0}, s{s_t0}, 3
    s_bfe_u32 s{s_t1}, s2, 0x30003
    s_add_u32 s{s_tb}, s{s_t0}, s{s_t1}
    s_bfe_u32 s{s_t0}, s2, 0x10002
    s_lshl_b32 s{s_t0}, s{s_t0}, 2
    s_lshr_b32 s{s_t1}, s2, 6
    s_add_u32 s{s_c}, s{s_t0}, s{s_t1}
    s_lshl_b32 s{s_t0}, s{s_tb}, 2
    s_add_u32 s{s_t0}, s{s_t0}, s{s_w}
    s_mul_i32 s{s_t1}, s{s_t0}, {NU*1024}
    s_add_u32 s{s_t1}, s{s_t1}, {BIMG}
    s_mul_i32 s{s_t2}, s{s_c}, {NU*5120}
    s_add_u32 s{s_t2}, s{s_t2}, {WP}
    s_mul_i32 s{s_m0}, s{s_w}, {PW*1024}
    s_mov_b32 s{s_bo}, 0
    s_mov_b32 s{s_wo}, s{s_m0}
    s_waitcnt lgkmcnt(0)
    s_add_u32 s{sB}, s{sWS}, s{s_t1}
    s_addc_u32 s{sB+1}, s{sWS+1}, 0
    s_mov_b32 s{sB+2}, {NU*1024}
    s_mov_b32 s{sB+3}, 0x20000
    s_add_u32 s{sW}, s{sWS}, s{s_t2}
    s_addc_u32 s{sW+1}, s{sWS+1}, 0
    s_mov_b32 s{sW+2}, {NU*5120}
    s_mov_b32 s{sW+3}, 0x20000""")
    def loadB(slot, ks):
        k(f"buffer_load_dwordx4 {vr(fb+4*(slot*CK+ks),4)}, v{vl16}, {sr(sB,4)}, s{s_bo} offen offset:{ks*1024}")
        if ks == CK - 1: k(f"s_add_u32 s{s_bo}, s{s_bo}, {CK*1024}")
    def dmaW(slot):
        k(f"s_add_u32 m0, s{s_m0}, {slot*SLOT}")
        if PW > 4: k(f"s_add_u32 s{s_t2}, s{s_wo}, 4096")
        for i in range(min(PW, 4)):
            k(f"buffer_load_dwordx4 v{vl16}, {sr(sW,4)}, s{s_wo} offen offset:{i*1024} lds")
        if PW > 4: k("s_add_u32 m0, m0, 4096")
        k(f"s_add_u32 s{s_wo}, s{s_wo}, {CK*5120}")
        for i in range(4, PW):
            k(f"buffer_load_dwordx4 v{vl16}, {sr(sW,4)}, s{s_t2} offen offset:{(i-4)*1024} lds")
    for X in range(NSL):
        for ks in range(CK - 1): loadB(X, ks)
        dmaW(X)
        loadB(X, CK - 1)
    srd(k, sO, sWS, sWS + 1, WSEND)
    for i in range(3):
        k(f"""v_add_u32 v{vt[0]}, {64*i}, v{vl}
        v_mul_u32_u24 v{vt[1]}, 6554, v{vt[0]}
        v_lshrrev_b32 v{vt[1]}, 16, v{vt[1]}
        v_mul_u32_u24 v{vt[1]}, {1280-160}, v{vt[1]}
        v_lshl_add_u32 v{vrow[i]}, v{vt[0]}, 4, v{vt[1]}""")
    k(f"""s_mul_i32 s{s_t1}, s{s_t0}, {16*1280}
    s_mul_i32 s{s_t2}, s{s_c}, 160
    s_add_u32 s{s_t1}, s{s_t1}, s{s_t2}
    s_add_u32 s{sX}, s{sPX}, s{s_t1}
    s_addc_u32 s{sX+1}, s{sPX+1}, 0
    s_sub_u32 s{sX+2}, {2048*1280}, s{s_t1}
    s_mov_b32 s{sX+3}, 0x20000""")
    vH = vt[6]; s_ho = k.s(); s_xs = k.s()
    k(f"""v_lshrrev_b32 v{vt[0]}, 4, v{vl}
    v_and_b32 v{vt[1]}, 15, v{vl}
    v_lshlrev_b32 v{vt[2]}, 4, v{vt[1]}
    v_lshl_add_u32 v{vH}, v{vt[0]}, 9, v{vt[2]}
    s_lshr_b32 s{s_t1}, s{s_t0}, 1
    s_mul_i32 s{s_t1}, s{s_t1}, 40
    s_mul_i32 s{s_t2}, s{s_c}, 5
    s_add_u32 s{s_t1}, s{s_t1}, s{s_t2}
    s_lshl_b32 s{s_t1}, s{s_t1}, 10
    s_and_b32 s{s_t2}, s{s_w}, 1
    s_lshl_b32 s{s_t2}, s{s_t2}, 8
    s_add_u32 s{s_t1}, s{s_t1}, s{s_t2}
    s_add_u32 s{s_ho}, s{s_t1}, {HIMG}
    s_mul_i32 s{s_xs}, s{s_w}, 3072
    s_add_u32 s{s_xs}, s{s_xs}, {XS}""")
    vD = vt[7]
    k(f"""v_mul_u32_u24 v{vt[1]}, 160, v{vt[1]}
    v_lshl_add_u32 v{vt[1]}, v{vt[0]}, 3, v{vt[1]}
    v_add_u32 v{vD}, s{s_xs}, v{vt[1]}""")
    if k3:
        k(f"s_mov_b32 m0, s{s_xs}")
        for i in range(3):
            k(f"buffer_load_dwordx4 v{vrow[i]}, {sr(sX,4)}, 0 offen lds")
            if i < 2: k("s_add_u32 m0, m0, 1024")
    else:
        k(f"s_add_u32 s{s_t1}, s{s_ho}, 4096")
        k(f"buffer_load_dwordx4 {vr(res,4)}, v{vH}, {sr(sO,4)}, s{s_ho} offen")
        k(f"buffer_load_dwordx4 {vr(res+4,4)}, v{vH}, {sr(sO,4)}, s{s_ho} offen offset:2048")
        k(f"buffer_load_dwordx4 {vr(res+8,4)}, v{vH}, {sr(sO,4)}, s{s_t1} offen")
    NX = 3
    k(f"v_mov_b32 v{vA}, v{vl16}")
    for i in range(20): k(f"v_mov_b32 v{acc+i}, 0")
    def rdA(buf, ks): return [f"ds_read_b128 {vr(fa[buf]+4*T,4)}, v{vA} offset:{(ks*5+T)*1024}" for T in range(5)]
    k(f"s_waitcnt vmcnt({min(63, 1 + OPC*(NSL-1) + NX)})\ns_barrier")
    for x in rdA(0, 0): k(x)
    step = [0]
    def chunk(slot, loads, vm, last):
        for ks in range(CK):
            buf = step[0] & 1; step[0] += 1
            k("s_waitcnt lgkmcnt(0)")
            if ks == CK - 1:
                if last:
                    k("s_waitcnt vmcnt(0)")
                    rd = []
                else:
                    k(f"s_waitcnt vmcnt({vm})\ns_barrier")
                    d = SLOT if slot < NSL - 1 else -(NSL - 1) * SLOT
                    k(f"v_add_u32 v{vA}, {d & 0xffffffff:#x}, v{vA}")
                    if loads: dmaW(slot)
                    rd = rdA(buf ^ 1, 0)
            else:
                rd = rdA(buf ^ 1, ks + 1)
            b = fb + 4 * (slot * CK + ks)
            for T in range(5):
                k(f"{MF} {vr(acc+4*T,4)}, {vr(fa[buf]+4*T,4)}, {vr(b,4)}, {vr(acc+4*T,4)}")
                if T < len(rd): k(rd[T])
            if loads: loadB(slot, ks)
    nloop = (NCH - NSL) // NSL
    assert nloop * NSL + NSL == NCH and (NSL * CK) % 2 == 0
    if nloop:
        L = k.label("loop")
        k(f"s_mov_b32 s{s_cnt}, {nloop}\n{L}:")
        for slot in range(NSL):
            chunk(slot, True, 1 + OPC * (NSL - 2) + (CK - 1), False)
        k(f"s_sub_u32 s{s_cnt}, s{s_cnt}, 1\ns_cmp_lg_u32 s{s_cnt}, 0\ns_cbranch_scc1 {L}")
    for slot in range(NSL):
        rem = NSL - 2 - slot
        chunk(slot, False, 1 + OPC * rem + (NX if not nloop else 0) if rem >= 0 else 0, slot == NSL - 1)
    t = vt
    if k3:
        for T in range(5): k(f"ds_read_b64 {vr(fa[0]+2*T,2)}, v{vD} offset:{T*32}")
        k(f"s_mov_b32 s{s_ones}, 0x3f803f80\nv_mov_b32 v{t[0]}, 0\nv_mov_b32 v{t[1]}, 0\ns_waitcnt lgkmcnt(0)")
        src = fa[0]
    else:
        for p in range(3):
            k(f"v_permlane32_swap_b32 v{res+4*p}, v{res+4*p+2}\nv_permlane32_swap_b32 v{res+4*p+1}, v{res+4*p+3}")
        src = res
    pk = fa[1]
    for T in range(5):
        for d in range(2):
            x = src + 2 * T + d; a = acc + 4 * T + 2 * d
            k(f"""v_lshlrev_b32 v{t[2]}, 16, v{x}
            v_and_b32 v{t[3]}, 0xffff0000, v{x}
            v_add_f32 v{a}, v{a}, v{t[2]}
            v_add_f32 v{a+1}, v{a+1}, v{t[3]}
            v_cvt_pk_bf16_f32 v{pk+2*T+d}, v{a}, v{a+1}""")
    if k3:
        for i in range(10):
            k(f"v_dot2c_f32_bf16 v{t[0]}, s{s_ones}, v{pk+i}\nv_dot2c_f32_bf16 v{t[1]}, v{pk+i}, v{pk+i}")
        for p in range(3):
            k(f"v_permlane32_swap_b32 v{pk+4*p}, v{pk+4*p+2}\nv_permlane32_swap_b32 v{pk+4*p+1}, v{pk+4*p+3}")
        k(f"""s_add_u32 s{s_t1}, s{s_ho}, 4096
        buffer_store_dwordx4 {vr(pk,4)}, v{vH}, {sr(sO,4)}, s{s_ho} offen
        buffer_store_dwordx4 {vr(pk+4,4)}, v{vH}, {sr(sO,4)}, s{s_ho} offen offset:2048
        v_mov_b32 v{t[2]}, v{t[0]}
        v_mov_b32 v{t[3]}, v{t[1]}
        v_permlane32_swap_b32 v{t[2]}, v{t[0]}
        v_permlane32_swap_b32 v{t[3]}, v{t[1]}
        v_add_f32 v{t[0]}, v{t[0]}, v{t[2]}
        v_add_f32 v{t[1]}, v{t[1]}, v{t[3]}
        v_mov_b32 v{t[2]}, v{t[0]}
        v_mov_b32 v{t[3]}, v{t[1]}
        v_permlane16_swap_b32 v{t[2]}, v{t[0]}
        v_permlane16_swap_b32 v{t[3]}, v{t[1]}
        v_add_f32 v{acc}, v{t[0]}, v{t[2]}
        v_add_f32 v{acc+1}, v{t[1]}, v{t[3]}
        v_lshlrev_b32 v{t[4]}, 3, v{vl}
        s_lshl_b32 s{s_t2}, s{s_c}, 14
        s_lshl_b32 s{s_t0}, s{s_t0}, 7
        s_add_u32 s{s_t2}, s{s_t2}, s{s_t0}
        s_add_u32 s{s_t2}, s{s_t2}, {STATS}
        s_mov_b32 exec_hi, 0
        buffer_store_dwordx4 {vr(pk+8,4)}, v{vH}, {sr(sO,4)}, s{s_t1} offen
        s_mov_b32 exec_lo, 0xffff
        buffer_store_dwordx2 {vr(acc,2)}, v{t[4]}, {sr(sO,4)}, s{s_t2} offen""")
    else:
        for T in range(5): k(f"ds_write_b64 v{vD}, {vr(pk+2*T,2)} offset:{T*32}")
        k(f"v_add_u32 v{t[0]}, s{s_xs}, v{vl16}\ns_waitcnt lgkmcnt(0)")
        for i in range(3): k(f"ds_read_b128 {vr(fa[0]+4*i,4)}, v{t[0]} offset:{i*1024}")
        for i in range(3):
            k(f"s_waitcnt lgkmcnt({2-i})")
            if i == 2: k("s_mov_b32 exec_hi, 0")
            k(f"buffer_store_dwordx4 {vr(fa[0]+4*i,4)}, v{vrow[i]}, {sr(sX,4)}, 0 offen")
    k(f"{L_end}:\ns_endpgm")
    return k, (256, 256, XS + 4 * 3072)
```

```python
from asmlib import *
from layout import *
from k1 import srd
M16 = "v_mfma_f32_32x32x16_bf16"

def gen_k4():
    k = K("k4_gateup_kernel")
    CK, NSL, NCH, PW = 4, 5, 10, 7
    SLOT = 28672; OPC = CK + PW
    CSB = NSL * SLOT
    sWS = k.s(2); sB = k.s(4); sW = k.s(4); sO = k.s(4)
    s_w = k.s(); s_tb = k.s(); s_g = k.s(); s_t0 = k.s(); s_t1 = k.s(); s_t2 = k.s()
    s_bo = k.s(); s_wo = k.s(); s_m0 = k.s(); s_ones = k.s()
    vl = k.v(); vl16 = k.v(); vB = [k.v() for _ in range(4)]; vA = [k.v() for _ in range(4)]
    vt = [k.v() for _ in range(4)]; vcsa = k.v()
    vcs = [k.v() for _ in range(7)]
    st = k.v(8, 4); par = k.v(6, 2)
    acc = [k.v(16, 4) for _ in range(7)]
    fa = [k.v(28, 4), k.v(28, 4)]
    fb = k.a(16 * NSL)
    L_end = k.label("end")
    k(f"""s_load_dwordx2 {sr(sWS,2)}, s[0:1], {KA_WS}
    s_cmp_ge_u32 s2, 256
    s_cbranch_scc1 {L_end}
    v_lshrrev_b32 v{vt[0]}, 6, v0
    v_and_b32 v{vl}, 63, v0
    v_readfirstlane_b32 s{s_w}, v{vt[0]}
    v_lshlrev_b32 v{vl16}, 4, v{vl}
    s_and_b32 s{s_t0}, s2, 1
    s_lshl_b32 s{s_t0}, s{s_t0}, 3
    s_bfe_u32 s{s_t1}, s2, 0x30003
    s_add_u32 s{s_tb}, s{s_t0}, s{s_t1}
    s_bfe_u32 s{s_t0}, s2, 0x20001
    s_lshl_b32 s{s_t0}, s{s_t0}, 2
    s_lshr_b32 s{s_t1}, s2, 6
    s_add_u32 s{s_g}, s{s_t0}, s{s_t1}
    s_lshl_b32 s{s_tb}, s{s_tb}, 2
    s_add_u32 s{s_tb}, s{s_tb}, s{s_w}
    s_mul_i32 s{s_t1}, s{s_tb}, 40960
    s_add_u32 s{s_t1}, s{s_t1}, {HIMG}
    s_mul_i32 s{s_t2}, s{s_g}, {40*7168}
    s_add_u32 s{s_t2}, s{s_t2}, {WGUP}
    s_mul_i32 s{s_m0}, s{s_w}, {PW*1024}
    s_mov_b32 s{s_bo}, 0
    s_mov_b32 s{s_wo}, s{s_m0}
    s_lshl_b32 s{s_t0}, s{s_w}, 10
    v_add_u32 v{vB[0]}, s{s_t0}, v{vl16}
    v_xor_b32 v{vB[1]}, 1024, v{vB[0]}
    v_xor_b32 v{vB[2]}, 2048, v{vB[0]}
    v_xor_b32 v{vB[3]}, 3072, v{vB[0]}
    s_waitcnt lgkmcnt(0)
    s_add_u32 s{sB}, s{sWS}, s{s_t1}
    s_addc_u32 s{sB+1}, s{sWS+1}, 0
    s_mov_b32 s{sB+2}, 40960
    s_mov_b32 s{sB+3}, 0x20000
    s_add_u32 s{sW}, s{sWS}, s{s_t2}
    s_addc_u32 s{sW+1}, s{sWS+1}, 0
    s_mov_b32 s{sW+2}, {40*7168}
    s_mov_b32 s{sW+3}, 0x20000""")
    def loadB(slot, ks):
        k(f"buffer_load_dwordx4 {ar(fb+4*(slot*CK+ks),4)}, v{vB[ks]}, {sr(sB,4)}, s{s_bo} offen")
        if ks == CK - 1: k(f"s_add_u32 s{s_bo}, s{s_bo}, {CK*1024}")
    def dmaW(slot):
        out = [f"s_add_u32 m0, s{s_m0}, {slot*SLOT}", f"s_add_u32 s{s_t2}, s{s_wo}, 4096"]
        for i in range(4):
            out.append(f"buffer_load_dwordx4 v{vl16}, {sr(sW,4)}, s{s_wo} offen offset:{i*1024} lds")
        out += ["s_add_u32 m0, m0, 4096", f"s_add_u32 s{s_wo}, s{s_wo}, {SLOT}"]
        for i in range(4, PW):
            out.append(f"buffer_load_dwordx4 v{vl16}, {sr(sW,4)}, s{s_t2} offen offset:{(i-4)*1024} lds")
        return out
    for X in range(NSL):
        for ks in range(CK - 1): loadB(X, ks)
        for x in dmaW(X): k(x)
        loadB(X, CK - 1)
    srd(k, sO, sWS, sWS + 1, WSEND)
    k(f"""v_and_b32 v{vt[0]}, 31, v{vl}
    v_lshrrev_b32 v{vt[1]}, 5, v{vl}
    v_lshlrev_b32 v{vt[2]}, 3, v{vt[0]}
    v_lshl_add_u32 v{vt[2]}, v{vt[1]}, 16, v{vt[2]}
    s_lshl_b32 s{s_t0}, s{s_tb}, 8
    s_add_u32 s{s_t0}, s{s_t0}, {STATS}""")
    for i in range(4):
        k(f"buffer_load_dwordx2 {vr(st+2*i,2)}, v{vt[2]}, {sr(sO,4)}, s{s_t0} offen")
        if i < 3: k(f"s_add_u32 s{s_t0}, s{s_t0}, 16384")
    NX = 4
    for s in range(4):
        k(f"s_xor_b32 s{s_t0}, s{s_w}, {s}\ns_mul_i32 s{s_t0}, s{s_t0}, 7168\nv_add_u32 v{vA[s]}, s{s_t0}, v{vl16}")
    k(f"""v_lshlrev_b32 v{vt[2]}, 2, v0
    v_add_u32 v{vt[2]}, {CSB}, v{vt[2]}
    v_mov_b32 v{vt[3]}, 0
    ds_write_b32 v{vt[2]}, v{vt[3]}
    v_lshlrev_b32 v{vcsa}, 2, v{vt[0]}
    v_add_u32 v{vcsa}, {CSB}, v{vcsa}
    s_mov_b32 s{s_ones}, 0x3f803f80""")
    for T in range(7):
        k(f"v_mov_b32 v{vcs[T]}, 0")
        for i in range(16): k(f"v_mov_b32 v{acc[T]+i}, 0")
    def rdA(buf, ks): return [f"ds_read_b128 {vr(fa[buf]+4*T,4)}, v{vA[ks]} offset:{T*1024}" for T in range(7)]
    k(f"s_waitcnt vmcnt({min(63, 1 + OPC*(NSL-1) + NX)}) lgkmcnt(0)\ns_barrier")
    for x in rdA(0, 0): k(x)
    for ch in range(NCH):
        slot = ch % NSL; loads = ch + NSL < NCH; last = ch == NCH - 1
        for ks in range(CK):
            buf = ks & 1
            fill = [[] for _ in range(7)]
            k("s_waitcnt lgkmcnt(0)")
            d = SLOT if slot < NSL - 1 else -(NSL - 1) * SLOT
            if ks == CK - 1:
                if last:
                    k("s_waitcnt vmcnt(0)"); rd = []
                else:
                    if loads: vm = 1 + OPC * (NSL - 2) + (CK - 1)
                    else: vm = 1 + OPC * (NCH - 2 - ch)
                    k(f"s_waitcnt vmcnt({vm})\ns_barrier")
                    if loads:
                        for i, x in enumerate(dmaW(slot)): fill[min(6, i * 7 // 11)].append(x)
                    rd = rdA(buf ^ 1, 0)
                    fill[6].append(f"v_add_u32 v{vA[3]}, {d & 0xffffffff:#x}, v{vA[3]}")
            else:
                rd = rdA(buf ^ 1, ks + 1)
                if not last: fill[6].append(f"v_add_u32 v{vA[ks]}, {d & 0xffffffff:#x}, v{vA[ks]}")
            for T in range(7):
                if T < len(rd): fill[T].insert(0, rd[T])
                if ks == 0:
                    for i in range(4): fill[T].append(f"v_dot2c_f32_bf16 v{vcs[T]}, s{s_ones}, v{fa[buf]+4*T+i}")
            b = fb + 4 * (slot * CK + ks)
            for T in range(7):
                k(f"{M16} {vr(acc[T],16)}, {vr(fa[buf]+4*T,4)}, {ar(b,4)}, {vr(acc[T],16)}")
                for x in fill[T]: k(x)
            if loads: loadB(slot, ks)
    for T in range(7): k(f"ds_add_f32 v{vcsa}, v{vcs[T]} offset:{T*128}")
    t = vt
    k(f"""v_add_f32 v{st}, v{st}, v{st+2}
    v_add_f32 v{st+1}, v{st+1}, v{st+3}
    v_add_f32 v{st+4}, v{st+4}, v{st+6}
    v_add_f32 v{st+5}, v{st+5}, v{st+7}
    v_add_f32 v{st}, v{st}, v{st+4}
    v_add_f32 v{st+1}, v{st+1}, v{st+5}
    v_mov_b32 v{st+2}, v{st}
    v_mov_b32 v{st+3}, v{st+1}
    v_permlane32_swap_b32 v{st+2}, v{st}
    v_permlane32_swap_b32 v{st+3}, v{st+1}
    v_add_f32 v{st}, v{st}, v{st+2}
    v_add_f32 v{st+1}, v{st+1}, v{st+3}
    v_mul_f32 v{par}, {f2u(-1.0/640):#x}, v{st}
    v_mul_f32 v{st+1}, {f2u(1.0/640):#x}, v{st+1}
    v_fma_f32 v{st+1}, -v{par}, v{par}, v{st+1}
    v_max_f32 v{st+1}, 0, v{st+1}
    v_add_f32 v{par+4}, {f2u(1e-5):#x}, v{st+1}
    v_rsq_f32 v{par+2}, v{par+4}
    v_mov_b32 v{par+1}, v{par}
    v_mov_b32 v{par+5}, v{par+4}
    v_mul_f32 v{par+2}, {f2u(-math.log2(math.e)):#x}, v{par+2}
    v_lshrrev_b32 v{t[0]}, 5, v{vl}
    v_mov_b32 v{par+3}, v{par+2}
    v_lshlrev_b32 v{t[1]}, 4, v{t[0]}
    v_add_u32 v{t[1]}, {CSB}, v{t[1]}
    v_bfe_u32 v{t[2]}, v{vl}, 4, 1
    v_mul_u32_u24 v{t[2]}, 55296, v{t[2]}
    v_lshl_add_u32 v{t[2]}, v{t[0]}, 8, v{t[2]}
    v_and_b32 v{t[3]}, 15, v{vl}
    v_lshl_add_u32 v{t[2]}, v{t[3]}, 4, v{t[2]}
    s_mul_i32 s{s_t0}, s{s_tb}, {2*55296}
    s_mul_i32 s{s_t1}, s{s_g}, 3584
    s_add_u32 s{s_t0}, s{s_t0}, s{s_t1}
    s_add_u32 s{s_t0}, s{s_t0}, {ACT}
    s_waitcnt lgkmcnt(0)
    s_barrier""")
    cs = [fa[0], fa[0] + 16, fa[0] + 32]; tmp = fa[0] + 48
    def rdcs(T):
        for j in range(4): k(f"ds_read_b128 {vr(cs[T%3]+4*j,4)}, v{t[1]} offset:{T*128+32*j}")
    rdcs(0); rdcs(1)
    for T in range(7):
        A = acc[T]; c = cs[T % 3]
        if T + 2 < 7: rdcs(T + 2)
        k(f"s_waitcnt lgkmcnt({4*min(2, 6-T)})")
        for p in range(8): k(f"v_pk_fma_f32 {vr(A+2*p,2)}, {vr(c+2*p,2)}, {vr(par,2)}, {vr(A+2*p,2)}")
        for p in range(4): k(f"v_pk_mul_f32 {vr(tmp+2*p,2)}, {vr(A+2*p,2)}, {vr(par+2,2)}")
        for i in range(8): k(f"v_exp_f32 v{tmp+i}, v{tmp+i}")
        for p in range(4): k(f"v_pk_mul_f32 {vr(A+2*p,2)}, {vr(A+2*p,2)}, {vr(A+8+2*p,2)}")
        for p in range(4): k(f"v_pk_fma_f32 {vr(tmp+2*p,2)}, {vr(tmp+2*p,2)}, {vr(par+4,2)}, {vr(par+4,2)}")
        for i in range(8): k(f"v_rcp_f32 v{tmp+i}, v{tmp+i}")
        for p in range(4): k(f"v_pk_mul_f32 {vr(A+2*p,2)}, {vr(A+2*p,2)}, {vr(tmp+2*p,2)}")
        for p in range(4): k(f"v_cvt_pk_bf16_f32 v{A+8+p}, v{A+2*p}, v{A+2*p+1}")
        k(f"buffer_store_dwordx4 {vr(A+8,4)}, v{t[2]}, {sr(sO,4)}, s{s_t0} offen offset:{T*512}")
        if T == 2: k(f"s_cmp_eq_u32 s{s_g}, 15\ns_cbranch_scc1 {L_end}")
    k(f"{L_end}:\ns_endpgm")
    return k, (256, 256, CSB + 1024)
```

```python
QKP   = 0x0000000
VIMG  = 0x0500000
VHEAD = 86016
OIMG  = 0x0800000
HIMG  = 0x0B00000
STATS = 0x0E00000
ACT   = 0x1000000
WOP   = 0x1800000
WGUP  = 0x1900000
WDP   = 0x1E00000
WSEND = 0x2200000
STAMPS = 0x2080000
KA_X, KA_WQKV, KA_WO, KA_BX, KA_WG, KA_WU, KA_WD, KA_OUT, KA_DBG, KA_WS = 0, 8, 16, 24, 32, 40, 48, 56, 64, 72
import math, struct
def f2u(x): return struct.unpack('<I', struct.pack('<f', x))[0]
QSCALE = (20 ** -0.5) * math.log2(math.e)
```

```python
import re

REG_RE = re.compile(r'(?<![\w.])(-?)(\|?)([vas])(?:(\d+)|\[(\d+):(\d+)\])')

def regs_of(tok):
    out = set()
    t = tok.strip()
    for m in REG_RE.finditer(t):
        c = m.group(3)
        if m.group(4) is not None:
            out.add((c, int(m.group(4))))
        else:
            for i in range(int(m.group(5)), int(m.group(6)) + 1):
                out.add((c, i))
    if re.search(r'\bvcc\b', t): out |= {('s', 'vcc')}
    if re.search(r'\bexec\b', t): out |= {('s', 'exec')}
    if re.search(r'\bm0\b', t): out |= {('s', 'm0')}
    return out

TRANS = ('v_exp_f32', 'v_log_f32', 'v_rcp_f32', 'v_rsq_f32', 'v_sqrt_f32', 'v_sin_f32', 'v_cos_f32', 'v_rcp_iflag_f32', 'v_exp_f16')

class Ins:
    def __init__(self, text):
        self.text = text
        t = text.split(';')[0].strip()
        self.label = None
        self.op = None
        self.defs = set(); self.uses = set()
        self.srcA = set(); self.srcB = set(); self.srcC = set()
        if not t or t.startswith('.'):
            return
        if t.endswith(':'):
            self.label = t[:-1]; return
        parts = t.split(None, 1)
        self.op = op = parts[0]
        rest = parts[1] if len(parts) > 1 else ''
        ops = [x.strip() for x in re.split(r',(?![^\[]*\])', rest)] if rest else []
        self.ops = ops
        R = [regs_of(x) for x in ops]
        self.is_mfma = op.startswith('v_mfma')
        self.is_valu = op.startswith('v_') and not self.is_mfma
        self.is_salu = op.startswith('s_')
        self.is_vmem = op.startswith('buffer_') or op.startswith('global_')
        self.is_ds = op.startswith('ds_')
        self.is_lds_dma = self.is_vmem and (re.search(r'\blds\b', rest) is not None or 'load_lds' in op)
        self.is_store = self.is_vmem and ('store' in op or 'atomic' in op)
        self.is_branch = op.startswith('s_cbranch') or op == 's_branch'
        self.target = ops[0] if self.is_branch else None
        allr = set().union(*R) if R else set()
        if self.is_mfma:
            self.defs = R[0]; self.srcA = R[1]; self.srcB = R[2]; self.srcC = R[3]
            self.uses = R[1] | R[2] | R[3]
            m = re.match(r'v_mfma_f32_(\d+)x(\d+)x(\d+)', op)
            mm = int(m.group(1))
            if '_2b_' in op: self.passes = 16
            elif mm == 32: self.passes = 8
            elif mm == 16: self.passes = 8 if '_4b_' in op else 4
            else: self.passes = 2
        elif self.is_valu:
            if op.startswith('v_cmpx'):
                self.defs = R[0] | {('s', 'exec')}; self.uses = set().union(*R[1:])
            elif op.startswith('v_permlane') and 'swap' in op:
                self.defs = R[0] | R[1]; self.uses = R[0] | R[1]
            elif op.startswith('v_add_co') or op.startswith('v_sub_co') or op.startswith('v_addc_co'):
                self.defs = R[0] | R[1]; self.uses = set().union(*R[2:])
            elif op == 'v_nop':
                pass
            else:
                self.defs = R[0]; self.uses = set().union(*R[1:]) if len(R) > 1 else set()
                if op.startswith('v_dot2c') or op.startswith('v_fmac') or op.startswith('v_writelane') or 'UNUSED_PRESERVE' in rest:
                    self.uses |= R[0]
        elif self.is_vmem:
            if self.is_store or self.is_lds_dma or op in ('buffer_wbl2', 'buffer_inv'):
                self.uses = allr
                if self.is_lds_dma: self.uses |= {('s', 'm0')}
                if self.is_store:
                    self.data = R[0] if op.startswith('buffer_') else R[1]
                    if 'atomic' in op and re.search(r'\bsc0\b', rest): self.defs = R[0]
            else:
                self.defs = R[0]; self.uses = set().union(*R[1:])
        elif self.is_ds:
            if op.startswith('ds_read') or op.startswith('ds_bpermute') or op.startswith('ds_swizzle') or '_rtn' in op:
                self.defs = R[0]; self.uses = set().union(*R[1:])
            else:
                self.uses = allr
        elif self.is_salu:
            if op.startswith('s_cmp') or op in ('s_waitcnt', 's_barrier', 's_nop', 's_endpgm', 's_setprio', 's_sleep') or self.is_branch:
                self.uses = allr
            elif op.endswith('saveexec_b64'):
                self.defs = R[0] | {('s', 'exec')}; self.uses = set().union(*R[1:]) | {('s', 'exec')}
            else:
                self.defs = R[0] if R else set(); self.uses = set().union(*R[1:]) if len(R) > 1 else set()
    def states(self):
        if self.op is None: return 0
        if self.op == 's_nop': return int(self.ops[0]) + 1
        return 1

def vg(s): return {r for r in s if r[0] in 'va'}
def sg(s): return {r for r in s if r[0] == 's'}

def need(p, c):
    n = 0
    if p.op is None or c.op is None: return 0
    pv = vg(p.defs); ps = sg(p.defs)
    if p.is_valu:
        if ps:
            if c.is_vmem and (ps & c.uses): n = max(n, 5)
            if c.is_valu and (ps & c.uses): n = max(n, 4 if ('readlane' in c.op or 'writelane' in c.op) else 2)
            if c.is_salu and (ps & c.uses): n = max(n, 1)
            if ('s', 'exec') in ps and (c.is_mfma or c.op.startswith('v_permlane') or 'readlane' in c.op or 'readfirstlane' in c.op): n = max(n, 4)
            if ('s', 'exec') in ps and 'dpp' in c.text: n = max(n, 5)
        if pv:
            if c.is_mfma and (pv & c.uses): n = max(n, 2)
            if c.is_valu and c.op.startswith('v_permlane') and (pv & c.uses): n = max(n, 2)
            if c.is_valu and ('row_' in c.text or 'quad_perm' in c.text or 'dpp' in c.op) and (pv & c.uses): n = max(n, 2)
            if c.is_valu and ('readlane' in c.op or 'readfirstlane' in c.op) and (pv & c.uses): n = max(n, 1)
            if p.op in TRANS or p.op.replace('_e32','').replace('_e64','') in TRANS:
                if (c.is_valu or c.is_mfma or c.is_vmem or c.is_ds) and (pv & c.uses): n = max(n, 1)
            if p.op.startswith('v_dot'):
                if c.op == p.op:
                    srcab = set().union(*[regs_of(x) for x in c.ops[1:3]])
                    if pv & srcab: n = max(n, 3)
                elif (pv & (c.uses | c.defs)): n = max(n, 3)
            if ('sdwa' in p.op or 'op_sel' in p.text) and not p.op.startswith('v_pk') and c.is_valu and (pv & (c.uses | c.defs)): n = max(n, 1)
    if p.is_salu and ('s', 'm0') in ps and (c.is_lds_dma or 'addtid' in c.op): n = max(n, 1)
    if p.is_mfma:
        D = p.defs
        k = {2: 0, 4: 1, 8: 2, 16: 3}[p.passes]
        if c.is_mfma:
            if D & c.srcC:
                if c.srcC == D and c.passes == p.passes: n = max(n, [2, 0, 0, 0][k])
                else: n = max(n, [4, 6, 10, 18][k])
            if D & (c.srcA | c.srcB): n = max(n, [5, 8, 12, 20][k])
            if (D & c.defs) and not (D & c.srcC): n = max(n, [4, 6, 10, 18][k])
        elif c.is_valu or c.is_vmem or c.is_ds:
            if D & (c.uses | c.defs): n = max(n, [5, 8, 12, 20][k])
        if (c.is_valu) and (vg(p.srcC) & c.defs): n = max(n, [1, 3, 7, 15][k])
    if p.is_store and ('x4' in p.op or 'x3' in p.op):
        if (c.is_valu or c.is_mfma) and (p.data & c.defs): n = max(n, 2)
        elif (p.data & c.defs): n = max(n, 1)
    return n

def pad_hazards(lines, verbose=False):
    ins = [Ins(l) for l in lines]
    MAXW = 21
    changed = True
    total = 0
    while changed:
        changed = False
        labels = {x.label: i for i, x in enumerate(ins) if x.label}
        preds = {}
        for i, x in enumerate(ins):
            if x.op and x.is_branch and x.target in labels:
                preds.setdefault(labels[x.target], []).append(i)
        for i, c in enumerate(ins):
            if c.op is None: continue
            worst = 0
            stack = [(i - 1, 0)]
            seen = set()
            while stack:
                j, dist = stack.pop()
                while j >= 0 and dist < MAXW:
                    if (j, dist) in seen: break
                    seen.add((j, dist))
                    p = ins[j]
                    if p.label:
                        for b in preds.get(j, []):
                            stack.append((b, dist))
                    if p.op:
                        if p.op in ('s_branch', 's_endpgm') and j != None and (j + 1 <= i) and not (j, 'taken') in seen:
                            if not any(j == b for bl in preds.values() for b in bl) or True:
                                pass
                        nn = need(p, c)
                        if nn - dist > worst: worst = nn - dist
                        dist += p.states()
                    if j - 1 >= 0 and ins[j - 1].op in ('s_branch', 's_endpgm', 's_setpc_b64'):
                        break
                    j -= 1
            if worst > 0:
                if verbose: print("pad", worst, "before", c.text.strip())
                ins.insert(i, Ins(f"    s_nop {worst - 1}"))
                total += worst
                changed = True
                break
    return [x.text for x in ins], total

class K:
    def __init__(self, name):
        self.name = name
        self.lines = []
        self.nv = 0; self.na = 0; self.ns = 0
        self.vnext = 1; self.snext = 3; self.anext = 0
        self.uid = 0
    def v(self, n=1, align=None):
        al = align or (2 if n >= 2 else 1)
        self.vnext = (self.vnext + al - 1) // al * al
        r = self.vnext; self.vnext += n
        return r
    def a(self, n=1):
        r = self.anext; self.anext += n
        return r
    def s(self, n=1, align=None):
        al = align or (4 if n >= 4 else (2 if n >= 2 else 1))
        self.snext = (self.snext + al - 1) // al * al
        r = self.snext; self.snext += n
        assert self.snext <= 100, "out of sgprs"
        return r
    def __call__(self, text):
        for l in text.split('\n'):
            l = l.strip()
            if not l: continue
            if l.endswith(':'): self.lines.append(l)
            else: self.lines.append('    ' + l)
    STAMP = False
    kidx = 0
    def stamp(self, i, real=False):
        if not K.STAMP: return
        if not hasattr(self, 'sT'): self.sT = 80
        self(f"s_memtime s[{self.sT+2*i}:{self.sT+2*i+1}]")
    def stamp_real(self, i):
        if not K.STAMP: return
        if not hasattr(self, 'sT'): self.sT = 80
        self(f"s_memrealtime s[{self.sT+2*i}:{self.sT+2*i+1}]")
    def stamp_flush(self, srd, s_w, nst=8):
        if not K.STAMP: return
        self.stamp_real(nst - 1)
        self("s_mov_b64 exec, -1\ns_waitcnt lgkmcnt(0) vmcnt(0)")
        self("s_nop 7\ns_nop 7")
        for i in range(nst): self(f"v_mov_b32 v{2+i}, s{self.sT+2*i}")
        self(f"s_lshl_b32 s78, s2, 4\ns_add_u32 s78, s78, s{s_w}\ns_lshl_b32 s78, s78, 5\ns_add_u32 s78, s78, {0x2080000 + self.kidx * 0x20000}")
        self(f"v_mov_b32 v1, 0\ns_mov_b64 exec, 1")
        self(f"buffer_store_dwordx4 v[2:5], v1, s[{srd}:{srd+3}], s78 offen")
        self(f"buffer_store_dwordx4 v[6:9], v1, s[{srd}:{srd+3}], s78 offen offset:16")
    def label(self, base):
        self.uid += 1
        return f"L_{self.name}_{base}_{self.uid}"
    def finish(self, verbose=False):
        lines, tot = pad_hazards(self.lines, verbose)
        maxv = maxa = maxs = -1
        for l in lines:
            for r in regs_of(l.split(';')[0]):
                if isinstance(r[1], int):
                    if r[0] == 'v': maxv = max(maxv, r[1])
                    if r[0] == 'a': maxa = max(maxa, r[1])
                    if r[0] == 's': maxs = max(maxs, r[1])
        assert maxv < 256 and maxa < 256 and maxs < 102
        maxv = max(maxv, 3)
        acc = (maxv + 1 + 3) // 4 * 4
        nfv = acc + maxa + 1 if maxa >= 0 else maxv + 1
        head = f".globl {self.name}\n.p2align 8\n.type {self.name},@function\n{self.name}:\n"
        body = "\n".join(lines) + "\n"
        desc = f""".amdhsa_kernel {self.name}
  .amdhsa_next_free_vgpr {nfv}
  .amdhsa_next_free_sgpr {max(maxs + 1, 16)}
  .amdhsa_accum_offset {acc}
  .amdhsa_group_segment_fixed_size 0
  .amdhsa_kernarg_size 80
  .amdhsa_user_sgpr_count 2
  .amdhsa_user_sgpr_kernarg_segment_ptr 1
  .amdhsa_system_sgpr_workgroup_id_x 1
.end_amdhsa_kernel
"""
        self.info = dict(nfv=nfv, acc=acc, sgpr=maxs + 1, nops=tot, ninstr=sum(1 for l in lines if l.startswith('    ')))
        return head + body, desc

def vr(b, n=1): return f"v{b}" if n == 1 else f"v[{b}:{b+n-1}]"
def ar(b, n=1): return f"a{b}" if n == 1 else f"a[{b}:{b+n-1}]"
def sr(b, n=1): return f"s{b}" if n == 1 else f"s[{b}:{b+n-1}]"
```

```python
from asmlib import *
from layout import *

def srd(k, s, base_lo, base_hi, size):
    k(f"s_mov_b32 s{s}, s{base_lo}\ns_mov_b32 s{s+1}, s{base_hi}")
    k(f"s_mov_b32 s{s+2}, {size}\ns_mov_b32 s{s+3}, 0x20000")

def gen_k1(NS=4, rot=True):
    k = K("k1_qkv_kernel")
    SLOT = 32768
    sP = k.s(4)
    sWS = k.s(2)
    sX = k.s(4); sW = k.s(4); sO = k.s(4)
    s_w = k.s(); s_tb = k.s(); s_cg = k.s(); s_t0 = k.s(); s_t1 = k.s(); s_t2 = k.s()
    s_ox = k.s(); s_ow = k.s(); s_m0x = k.s(); s_slot = k.s(); s_cnt = k.s(); s_delta = k.s(); s_ones = k.s()
    s_rs = k.s()
    vX = [k.v() for _ in range(4)]; vW = [k.v() for _ in range(4)]
    vXA = [[k.v() for _ in range(4)] for _ in range(2)]
    vWA = [k.v() for _ in range(2)]
    vt = [k.v() for _ in range(6)]
    vl = k.v()
    acc = [[k.v(16, 4) for _ in range(2)] for _ in range(2)]
    fx = [[k.v(4, 4) for _ in range(2)] for _ in range(2)]
    fw = [[k.v(4, 4) for _ in range(2)] for _ in range(2)]
    vsum = k.v(); vsq = k.v(); vcs = k.v()
    L_end = k.label("end"); L_spare = k.label("spare"); L_v = k.label("vpath")

    k.kidx = 0; k.stamp_real(0); k.stamp(1)
    k(f"""s_load_dwordx4 {sr(sP,4)}, s[0:1], {KA_X}
    s_load_dwordx2 {sr(sWS,2)}, s[0:1], {KA_WS}
    s_cmp_ge_u32 s2, 256
    s_cbranch_scc1 {L_end}
    v_lshrrev_b32 v{vt[0]}, 6, v0
    v_and_b32 v{vl}, 63, v0
    v_readfirstlane_b32 s{s_w}, v{vt[0]}
    s_and_b32 s{s_t0}, s2, 3
    s_lshl_b32 s{s_t0}, s{s_t0}, 2
    s_bfe_u32 s{s_t1}, s2, 0x20003
    s_add_u32 s{s_tb}, s{s_t0}, s{s_t1}
    s_bfe_u32 s{s_t0}, s2, 0x10002
    s_lshl_b32 s{s_t0}, s{s_t0}, 3
    s_lshr_b32 s{s_t1}, s2, 5
    s_add_u32 s{s_cg}, s{s_t0}, s{s_t1}
    s_cmp_eq_u32 s{s_cg}, 15
    s_cbranch_scc1 {L_spare}
    """)
    k(f"""v_lshrrev_b32 v{vt[0]}, 3, v{vl}
    s_lshl_b32 s{s_t0}, s{s_w}, 5
    v_add_u32 v{vt[0]}, s{s_t0}, v{vt[0]}
    v_mul_u32_u24 v{vt[0]}, 1280, v{vt[0]}
    v_lshrrev_b32 v{vt[1]}, 4, v{vl}
    v_and_b32 v{vt[2]}, 7, v{vl}
    v_xor_b32 v{vt[2]}, v{vt[2]}, v{vt[1]}
    v_lshl_add_u32 v{vX[0]}, v{vt[2]}, 4, v{vt[0]}
    v_xor_b32 v{vX[1]}, 64, v{vX[0]}
    v_add_u32 v{vX[2]}, {2*(8*1280-1024)}, v{vX[0]}
    v_add_u32 v{vX[1]}, {8*1280-1024}, v{vX[1]}
    v_add_u32 v{vX[3]}, {2*(8*1280-1024)}, v{vX[1]}
    """)
    k(f"""s_lshl_b32 s{s_t0}, s{s_w}, 4
    v_add_u32 v{vt[0]}, s{s_t0}, v{vt[1]}
    v_mul_u32_u24 v{vt[0]}, 3840, v{vt[0]}
    v_and_b32 v{vt[2]}, 15, v{vl}
    v_lshlrev_b32 v{vt[3]}, 2, v{vt[1]}
    v_xor_b32 v{vt[2]}, v{vt[2]}, v{vt[3]}
    v_lshl_add_u32 v{vW[0]}, v{vt[2]}, 4, v{vt[0]}
    v_add_u32 v{vW[1]}, {4*3840-1024}, v{vW[0]}
    v_add_u32 v{vW[2]}, {2*(4*3840-1024)}, v{vW[0]}
    v_add_u32 v{vW[3]}, {3*(4*3840-1024)}, v{vW[0]}
    s_mul_i32 s{s_t0}, s{s_tb}, {128*1280}
    s_lshl_b32 s{s_t1}, s{s_cg}, 8
    s_lshl_b32 s{s_m0x}, s{s_w}, 12
    """)
    if rot:
        k(f"s_and_b32 s{s_t2}, s2, 7\ns_lshl_b32 s{s_ox}, s{s_t2}, 7\ns_mul_i32 s{s_ow}, s{s_t2}, {64*3840}")
    else:
        k(f"s_mov_b32 s{s_ox}, 0\ns_mov_b32 s{s_ow}, 0")
    k(f"""s_waitcnt lgkmcnt(0)
    s_add_u32 s{sX}, s{sP}, s{s_t0}
    s_addc_u32 s{sX+1}, s{sP+1}, 0
    s_mov_b32 s{sX+2}, {128*1280}
    s_mov_b32 s{sX+3}, 0x20000
    s_add_u32 s{sW}, s{sP+2}, s{s_t1}
    s_addc_u32 s{sW+1}, s{sP+3}, 0
    s_sub_u32 s{sW+2}, {640*3840}, s{s_t1}
    s_mov_b32 s{sW+3}, 0x20000
    """)
    def dma_chunk(slot_expr_sgpr=None, slot_const=None):
        if slot_const is not None:
            k(f"s_add_u32 m0, s{s_m0x}, {slot_const*SLOT}")
        else:
            k(f"s_add_u32 m0, s{s_m0x}, s{slot_expr_sgpr}")
        for i in range(4):
            k(f"buffer_load_dwordx4 v{vX[i]}, {sr(sX,4)}, s{s_ox} offen offset:{i*1024} lds")
        k(f"s_add_u32 m0, m0, 16384")
        for i in range(4):
            k(f"buffer_load_dwordx4 v{vW[i]}, {sr(sW,4)}, s{s_ow} offen offset:{i*1024} lds")
        k(f"""s_add_u32 s{s_ox}, s{s_ox}, 128
        s_add_u32 s{s_ow}, s{s_ow}, {64*3840}
        s_cmp_eq_u32 s{s_ox}, 1280
        s_cselect_b32 s{s_ox}, 0, s{s_ox}
        s_cselect_b32 s{s_ow}, 0, s{s_ow}""")
    for c in range(NS):
        dma_chunk(slot_const=c)
    k(f"""s_lshr_b32 s{s_t0}, s{s_w}, 1
    s_and_b32 s{s_t1}, s{s_w}, 1
    v_and_b32 v{vt[0]}, 31, v{vl}
    v_lshrrev_b32 v{vt[1]}, 5, v{vl}
    v_bfe_u32 v{vt[2]}, v{vl}, 1, 3
    v_xor_b32 v{vt[2]}, v{vt[2]}, v{vt[1]}
    v_lshlrev_b32 v{vt[2]}, 4, v{vt[2]}
    v_lshl_add_u32 v{vt[2]}, v{vt[0]}, 7, v{vt[2]}
    s_lshl_b32 s{s_t2}, s{s_w}, 12
    v_add_u32 v{vXA[0][0]}, s{s_t2}, v{vt[2]}
    v_xor_b32 v{vXA[1][0]}, 4096, v{vXA[0][0]}
    """)
    for mt in range(2):
        for s in range(1, 4):
            k(f"v_xor_b32 v{vXA[mt][s]}, {32*s}, v{vXA[mt][0]}")
    k(f"""v_bfe_u32 v{vt[2]}, v{vl}, 2, 2
    v_lshl_add_u32 v{vt[3]}, v{vt[1]}, 3, v{vt[2]}
    v_lshlrev_b32 v{vt[3]}, 8, v{vt[3]}
    s_lshl_b32 s{s_t2}, s{s_t1}, 1
    s_add_u32 s{s_t2}, s{s_t2}, s{s_t0}
    v_xor_b32 v{vt[2]}, s{s_t2}, v{vt[2]}
    v_lshl_add_u32 v{vt[3]}, v{vt[2]}, 6, v{vt[3]}
    v_bfe_u32 v{vt[2]}, v{vl}, 4, 1
    v_lshl_add_u32 v{vt[3]}, v{vt[2]}, 5, v{vt[3]}
    v_and_b32 v{vt[2]}, 3, v{vl}
    v_lshl_add_u32 v{vt[3]}, v{vt[2]}, 3, v{vt[3]}
    v_add_u32 v{vWA[0]}, 16384, v{vt[3]}
    v_xor_b32 v{vWA[1]}, 64, v{vWA[0]}
    s_mov_b32 s{s_ones}, 0x3f803f80
    v_mov_b32 v{vsum}, 0
    v_mov_b32 v{vsq}, 0
    v_mov_b32 v{vcs}, 0
    s_mov_b32 s{s_slot}, 0
    """)
    for nt in range(2):
        for mt in range(2):
            for i in range(16):
                k(f"v_mov_b32 v{acc[nt][mt]+i}, 0")
    def reads(buf, s):
        out = []
        for mt in range(2):
            out.append(f"ds_read_b128 {vr(fx[buf][mt],4)}, v{vXA[mt][s]}")
        for nt in range(2):
            for rd in range(2):
                out.append(f"ds_read_b64_tr_b16 {vr(fw[buf][nt]+2*rd,2)}, v{vWA[nt]} offset:{(16*s+4*rd)*256}")
        return out
    def mfmas(buf, vpath):
        out = []
        for nt in range(2):
            for mt in range(2):
                a, b = (fx[buf][mt], fw[buf][nt]) if vpath else (fw[buf][nt], fx[buf][mt])
                out.append(f"v_mfma_f32_32x32x16_bf16 {vr(acc[nt][mt],16)}, {vr(a,4)}, {vr(b,4)}, {vr(acc[nt][mt],16)}")
        return out
    def dots(buf):
        out = []
        for i in range(4):
            out.append(f"v_dot2c_f32_bf16 v{vsum}, s{s_ones}, v{fx[buf][0]+i}")
            out.append(f"v_dot2c_f32_bf16 v{vsq}, v{fx[buf][0]+i}, v{fx[buf][0]+i}")
            out.append(f"v_dot2c_f32_bf16 v{vcs}, s{s_ones}, v{fw[buf][0]+i}")
        return out
    def kstep(buf, vpath, rd, extra=[]):
        m = mfmas(buf, vpath); d = dots(buf)
        fill = [[] for _ in range(4)]
        for i, x in enumerate(rd): fill[i * 2 // len(rd) if rd else 0].append(x)
        for i, x in enumerate(extra): fill[min(3, i * 4 // max(1, len(extra)))].append(x)
        for i, x in enumerate(d): fill[i // 3].append(x)
        for i in range(4):
            k(m[i])
            for x in fill[i]: k(x)
    def chunk(vpath, mode, vm):
        for s in range(3):
            k("s_waitcnt lgkmcnt(0)")
            kstep(s & 1, vpath, reads((s + 1) & 1, s + 1))
        k("s_waitcnt lgkmcnt(0)")
        if mode == 'last':
            kstep(1, vpath, [])
            return
        k(f"s_waitcnt vmcnt({vm})\ns_barrier")
        k(f"""s_add_u32 s{s_rs}, s{s_slot}, {SLOT}
        s_cmp_eq_u32 s{s_rs}, {NS*SLOT}
        s_cselect_b32 s{s_delta}, {(-(NS-1)*SLOT) & 0xffffffff}, {SLOT}""") if False else None
        k(f"s_cmp_eq_u32 s{s_slot}, {(NS-1)*SLOT}")
        k(f"s_mov_b32 s{s_delta}, {SLOT}")
        k(f"s_cselect_b32 s{s_delta}, {(-(NS-1)*SLOT) & 0xffffffff}, s{s_delta}")
        adds = [f"v_add_u32 v{r}, s{s_delta}, v{r}" for r in [vXA[0][0], vXA[1][0], vWA[0], vWA[1]]]
        for x in adds: k(x)
        rest = [f"v_add_u32 v{vXA[mt][s]}, s{s_delta}, v{vXA[mt][s]}" for s in range(1, 4) for mt in range(2)]
        if mode == 'dma':
            dma_chunk(slot_expr_sgpr=s_slot)
        k(f"s_add_u32 s{s_slot}, s{s_slot}, s{s_delta}")
        kstep(1, vpath, reads(0, 0), rest)
    def mainloop(vpath):
        k.stamp(2)
        k(f"s_waitcnt vmcnt({8*(NS-1)})\ns_barrier")
        k.stamp(3)
        for x in reads(0, 0): k(x)
        nloop = 10 - NS
        L = k.label("loop")
        k(f"s_mov_b32 s{s_cnt}, {nloop}")
        k(f"{L}:")
        chunk(vpath, 'dma', 8 * (NS - 2))
        k(f"s_sub_u32 s{s_cnt}, s{s_cnt}, 1\ns_cmp_lg_u32 s{s_cnt}, 0\ns_cbranch_scc1 {L}")
        for c in range(nloop, 9):
            chunk(vpath, 'nodma', 8 * (8 - c))
        chunk(vpath, 'last', 0)
    XB = 0
    NM, RS, CS = XB, XB + 512, XB + 1024
    def stats(vpath):
        t = vt
        k(f"""v_mov_b32 v{t[0]}, v{vsum}
        v_mov_b32 v{t[1]}, v{vsq}
        v_mov_b32 v{t[2]}, v{vcs}
        v_permlane32_swap_b32 v{t[0]}, v{vsum}
        v_permlane32_swap_b32 v{t[1]}, v{vsq}
        v_permlane32_swap_b32 v{t[2]}, v{vcs}
        v_add_f32 v{vsum}, v{vsum}, v{t[0]}
        v_add_f32 v{vsq}, v{vsq}, v{t[1]}
        v_add_f32 v{vcs}, v{vcs}, v{t[2]}
        v_mul_f32 v{vsum}, {f2u(-1.0/640):#x}, v{vsum}
        v_mul_f32 v{vsq}, {f2u(1.0/640):#x}, v{vsq}
        v_fma_f32 v{vsq}, -v{vsum}, v{vsum}, v{vsq}
        v_max_f32 v{vsq}, 0, v{vsq}
        v_add_f32 v{vsq}, {f2u(1e-5):#x}, v{vsq}
        v_rsq_f32 v{vsq}, v{vsq}
        s_cmp_lt_u32 s{s_cg}, 5
        s_cselect_b32 s{s_t2}, {f2u(QSCALE):#x}, 1.0
        v_mul_f32 v{vsq}, s{s_t2}, v{vsq}
        v_and_b32 v{t[0]}, 31, v{vl}
        s_lshl_b32 s{s_t2}, s{s_w}, 7
        v_lshl_add_u32 v{t[1]}, v{t[0]}, 2, s{s_t2}
        ds_write_b32 v{t[1]}, v{vsum} offset:{NM}
        ds_write_b32 v{t[1]}, v{vsq} offset:{RS}
        s_lshl_b32 s{s_t2}, s{s_t1}, 1
        s_add_u32 s{s_t2}, s{s_t2}, s{s_t0}
        s_lshl_b32 s{s_t2}, s{s_t2}, 7
        v_lshl_add_u32 v{t[2]}, v{t[0]}, 2, s{s_t2}
        ds_write_b32 v{t[2]}, v{vcs} offset:{CS}
        s_waitcnt lgkmcnt(0)
        s_barrier
        """)
    def epilogue(vpath):
        t = vt
        k.stamp(4)
        stats(vpath)
        k.stamp(5)
        la = fx[0][0]
        rg = k.v(32, 4)
        hoff = t[3]
        k(f"v_lshrrev_b32 v{hoff}, 5, v{vl}\nv_lshlrev_b32 v{hoff}, 4, v{hoff}")
        srd(k, sO, sWS, sWS + 1, WSEND)
        if not vpath:
            k(f"""v_xor_b32 v{t[4]}, 128, v{t[1]}
            ds_read_b32 v{la+0}, v{t[1]} offset:{NM}
            ds_read_b32 v{la+2}, v{t[1]} offset:{RS}
            ds_read_b32 v{la+4}, v{t[4]} offset:{NM}
            ds_read_b32 v{la+6}, v{t[4]} offset:{RS}
            v_add_u32 v{t[5]}, s{s_t2}, v{hoff}
            v_xor_b32 v{t[4]}, 128, v{t[5]}""")
            for nt in range(2):
                for j in range(4):
                    k(f"ds_read_b128 {vr(rg+16*nt+4*j,4)}, v{t[5] if nt==0 else t[4]} offset:{CS+32*j}")
            k(f"""v_lshlrev_b32 v{t[0]}, 4, v{t[0]}
            v_lshl_add_u32 v{t[0]}, v{hoff}, 11, v{t[0]}
            s_lshl_b32 s{s_ox}, s{s_cg}, 19
            s_lshl_b32 s{s_ow}, s{s_t2}, 10
            s_add_u32 s{s_ox}, s{s_ox}, s{s_ow}
            s_lshl_b32 s{s_ow}, s{s_tb}, 11
            s_add_u32 s{s_ox}, s{s_ox}, s{s_ow}
            s_lshl_b32 s{s_ow}, s{s_w}, 9
            s_add_u32 s{s_ox}, s{s_ox}, s{s_ow}
            s_waitcnt lgkmcnt(0)
            v_mov_b32 v{la+1}, v{la+0}
            v_mov_b32 v{la+3}, v{la+2}
            v_mov_b32 v{la+5}, v{la+4}
            v_mov_b32 v{la+7}, v{la+6}""")
            for nt in range(2):
                for mt in range(2):
                    A = acc[nt][mt]
                    for p in range(8):
                        k(f"v_pk_fma_f32 {vr(A+2*p,2)}, {vr(rg+16*nt+2*p,2)}, {vr(la+4*mt,2)}, {vr(A+2*p,2)}")
                    for p in range(8):
                        k(f"v_pk_mul_f32 {vr(A+2*p,2)}, {vr(A+2*p,2)}, {vr(la+4*mt+2,2)}")
                    for p in range(8):
                        k(f"v_cvt_pk_bf16_f32 v{A+p}, v{A+2*p}, v{A+2*p+1}")
                    k(f"s_xor_b32 s{s_ow}, s{s_ox}, {(nt*4*32768) | (mt*512)}")
                    k(f"s_add_u32 s{s_rs}, s{s_ow}, {2*32768}")
                    for jp in range(2):
                        k(f"v_permlane32_swap_b32 v{A+4*jp}, v{A+4*jp+2}\nv_permlane32_swap_b32 v{A+4*jp+1}, v{A+4*jp+3}")
                    k(f"buffer_store_dwordx4 {vr(A,4)}, v{t[0]}, {sr(sO,4)}, s{s_ow} offen")
                    k(f"buffer_store_dwordx4 {vr(A+4,4)}, v{t[0]}, {sr(sO,4)}, s{s_rs} offen")
        else:
            rg2 = k.v(32, 4)
            k(f"""v_xor_b32 v{t[4]}, 128, v{t[2]}
            ds_read_b32 v{la+0}, v{t[2]} offset:{CS}
            ds_read_b32 v{la+2}, v{t[4]} offset:{CS}
            s_lshl_b32 s{s_ow}, s{s_w}, 7
            v_add_u32 v{t[5]}, s{s_ow}, v{hoff}
            v_xor_b32 v{t[4]}, 128, v{t[5]}""")
            for mt in range(2):
                for j in range(4):
                    k(f"ds_read_b128 {vr(rg+16*mt+4*j,4)}, v{t[5] if mt==0 else t[4]} offset:{NM+32*j}")
                    k(f"ds_read_b128 {vr(rg2+16*mt+4*j,4)}, v{t[5] if mt==0 else t[4]} offset:{RS+32*j}")
            va = [la + 4, la + 5]
            k(f"""s_sub_u32 s{s_ox}, s{s_cg}, 10
            s_lshl_b32 s{s_ox}, s{s_ox}, 7
            s_lshr_b32 s{s_ow}, s{s_t2}, 2
            s_add_u32 s{s_ox}, s{s_ox}, s{s_ow}
            v_add_u32 v{t[0]}, s{s_ox}, v{t[0]}
            v_mul_u32_u24 v{hoff}, 21, v{hoff}""")
            for nt in range(2):
                if nt == 1: k(f"v_xor_b32 v{t[0]}, 32, v{t[0]}")
                k(f"""v_mul_u32_u24 v{t[1]}, 3277, v{t[0]}
                v_lshrrev_b32 v{t[1]}, 16, v{t[1]}
                v_mul_u32_u24 v{t[2]}, {VHEAD - 320}, v{t[1]}
                v_lshl_add_u32 v{t[2]}, v{t[0]}, 4, v{t[2]}
                v_add_u32 v{va[nt]}, v{t[2]}, v{hoff}""")
            k(f"""s_lshl_b32 s{s_ox}, s{s_tb}, 2
            s_add_u32 s{s_ox}, s{s_ox}, s{s_w}
            s_xor_b32 s{s_ow}, s{s_ox}, 1
            s_mul_i32 s{s_ox}, s{s_ox}, 1344
            s_mul_i32 s{s_ow}, s{s_ow}, 1344
            s_add_u32 s{s_ox}, s{s_ox}, {VIMG}
            s_add_u32 s{s_ow}, s{s_ow}, {VIMG}
            s_waitcnt lgkmcnt(0)
            v_mov_b32 v{la+1}, v{la+0}
            v_mov_b32 v{la+3}, v{la+2}""")
            for nt in range(2):
                for mt in range(2):
                    A = acc[nt][mt]
                    for p in range(8):
                        k(f"v_pk_fma_f32 {vr(A+2*p,2)}, {vr(rg+16*mt+2*p,2)}, {vr(la+2*nt,2)}, {vr(A+2*p,2)}")
                    for p in range(8):
                        k(f"v_pk_mul_f32 {vr(A+2*p,2)}, {vr(A+2*p,2)}, {vr(rg2+16*mt+2*p,2)}")
                    for p in range(8):
                        k(f"v_cvt_pk_bf16_f32 v{A+p}, v{A+2*p}, v{A+2*p+1}")
                    so = s_ox if mt == 0 else s_ow
                    k(f"buffer_store_dwordx4 {vr(A,4)}, v{va[nt]}, {sr(sO,4)}, s{so} offen")
                    k(f"buffer_store_dwordx4 {vr(A+4,4)}, v{va[nt]}, {sr(sO,4)}, s{so} offen offset:672")
        k.stamp(6); k.stamp_flush(sO, s_w)
        k("s_endpgm")
    k(f"s_cmp_ge_u32 s{s_cg}, 10\ns_cbranch_scc1 {L_v}")
    vsave = k.vnext
    mainloop(False); epilogue(False)
    k.vnext = vsave
    k(f"{L_v}:")
    mainloop(True); epilogue(True)
    k(f"{L_spare}:")
    k(f"""s_waitcnt lgkmcnt(0)""")
    srd(k, sO, sWS, sWS + 1, WSEND)
    k(f"""s_lshl_b32 s{s_t0}, s{s_tb}, 1
    s_mul_i32 s{s_t0}, s{s_t0}, {VHEAD}
    s_add_u32 s{s_t0}, s{s_t0}, {VIMG + 320}
    s_add_u32 s{s_t1}, s{s_t0}, {VHEAD}
    v_mul_u32_u24 v{vt[0]}, 336, v0""")
    o = acc[0][0]
    for i in range(4): k(f"v_mov_b32 v{o+i}, 0x3f803f80")
    k(f"""buffer_store_dwordx4 {vr(o,4)}, v{vt[0]}, {sr(sO,4)}, s{s_t0} offen
    buffer_store_dwordx4 {vr(o,4)}, v{vt[0]}, {sr(sO,4)}, s{s_t1} offen
    {L_end}:
    s_endpgm""")
    lds = NS * SLOT
    return k, (256, 256, lds)
```

```python
from asmlib import *
from layout import *
from k1 import srd

M16 = "v_mfma_f32_32x32x16_bf16"
M8 = "v_mfma_f32_32x32x8_bf16"

def gen_k2(prio=None, prep=True, sched=1, exp=''):
    k = K("k2_attn_kernel")
    SLOT = 24576; NS = 3; PREP = NS * SLOT
    sP = k.s(8)
    sWD = k.s(2); sWS = k.s(2)
    sO = k.s(4); sA = k.s(4); sB = k.s(4)
    s_w = k.s(); s_h = k.s(); s_qb = k.s(); s_pa = k.s(); s_pr = k.s(); s_odd8 = k.s()
    s_t0 = k.s(); s_t1 = k.s(); s_t2 = k.s(); s_t3 = k.s()
    so = [k.s() for _ in range(3)]; s_d = k.s(); s_mo = k.s(); s_ms = k.s()
    s_c = k.s(); s_slotn = k.s(); s_slotd = k.s()
    s_po = [k.s() for _ in range(4)]
    s_tok = k.s(); sE = k.s(2); sF = k.s(2); sG = k.s(2)
    vl = k.v(); vl16 = k.v(); vq = k.v(); vr31 = k.v()
    vKA = [k.v(), k.v()]; vKR = [k.v(), k.v()]; vVA = [k.v(), k.v()]
    vt = [k.v() for _ in range(6)]
    vPA = k.v()
    S = [k.v(16, 4), k.v(16, 4)]; O = k.v(16, 4); C = k.v(16, 4); P = k.v(8, 4)
    Qm = k.v(4, 4); Qr = k.v(2); Km = k.v(4, 4); Kr = k.v(2); V0 = k.v(4, 4); V1 = [k.v(4, 4), k.v(4, 4)]
    PR = k.v(16, 4)
    L_end = k.label("end"); L_slow = k.label("slow"); L_store = k.label("store")
    k.kidx = 1; k.stamp_real(0); k.stamp(1)
    k(f"""s_load_dwordx2 {sr(sWS,2)}, s[0:1], {KA_WS}
    s_load_dwordx8 {sr(sP,8)}, s[0:1], {KA_WO}
    s_load_dwordx2 {sr(sWD,2)}, s[0:1], {KA_WD}
    s_cmp_ge_u32 s2, 256
    s_cbranch_scc1 {L_end}
    v_lshrrev_b32 v{vt[0]}, 6, v0
    v_and_b32 v{vl}, 63, v0
    v_readfirstlane_b32 s{s_w}, v{vt[0]}
    v_lshlrev_b32 v{vl16}, 4, v{vl}
    s_and_b32 s{s_t0}, s2, 7
    s_lshl_b32 s{s_t0}, s{s_t0}, 2
    s_bfe_u32 s{s_t1}, s2, 0x20003
    s_add_u32 s{s_h}, s{s_t0}, s{s_t1}
    s_lshr_b32 s{s_qb}, s2, 5
    s_lshr_b32 s{s_t0}, s{s_h}, 1
    s_mul_i32 s{s_t0}, s{s_t0}, 5
    s_and_b32 s{s_t1}, s{s_h}, 1
    s_lshl_b32 s{s_odd8}, s{s_t1}, 3
    s_mul_i32 s{s_t1}, s{s_t1}, 3
    s_add_u32 s{s_pa}, s{s_t0}, s{s_t1}
    s_lshl_b32 s{s_pa}, s{s_pa}, 15
    s_add_u32 s{s_pr}, s{s_t0}, 2
    s_lshl_b32 s{s_pr}, s{s_pr}, 15
    """)
    Lkw = k.label("kw"); Lkd = k.label("kd")
    k(f"""s_cmp_lt_u32 s{s_w}, 4
    s_cbranch_scc1 {Lkw}
    s_sub_u32 s{s_t0}, s{s_w}, 4
    s_mul_i32 s{s_t0}, s{s_t0}, 3072
    s_mul_i32 s{s_t1}, s{s_h}, {VHEAD}
    s_add_u32 s{s_t1}, s{s_t1}, {VIMG}
    s_add_u32 s{so[0]}, s{s_t1}, s{s_t0}
    s_add_u32 s{so[1]}, s{so[0]}, 1024
    s_add_u32 s{so[2]}, s{so[0]}, 2048
    s_mov_b32 s{s_d}, 10752
    s_add_u32 s{s_mo}, s{s_t0}, 12288
    s_mov_b32 s{s_ms}, 1024
    s_branch {Lkd}
    {Lkw}:
    s_lshl_b32 s{s_mo}, s{s_w}, 10
    s_add_u32 s{s_t0}, s{s_mo}, {80*32768}
    s_add_u32 s{so[0]}, s{s_pa}, s{s_t0}
    s_add_u32 s{so[1]}, s{so[0]}, 32768
    s_add_u32 s{so[2]}, s{s_pr}, s{s_t0}
    s_mov_b32 s{s_d}, 4096
    s_mov_b32 s{s_ms}, 4096
    {Lkd}:
    s_waitcnt lgkmcnt(0)""")
    srd(k, sO, sWS, sWS + 1, WSEND)
    def dma(slot_s=None, slot_c=None):
        if slot_c is not None: k(f"s_add_u32 m0, s{s_mo}, {slot_c*SLOT}")
        else: k(f"s_add_u32 m0, s{s_mo}, s{slot_s}")
        for i in range(3):
            k(f"buffer_load_dwordx4 v{vl16}, {sr(sO,4)}, s{so[i]} offen lds")
            if i < 2: k(f"s_add_u32 m0, m0, s{s_ms}")
            k(f"s_add_u32 s{so[i]}, s{so[i]}, s{s_d}")
    dma(slot_c=0)
    k(f"""v_and_b32 v{vr31}, 31, v{vl}
    v_lshlrev_b32 v{vr31}, 4, v{vr31}
    v_lshrrev_b32 v{vt[1]}, 5, v{vl}
    v_lshl_add_u32 v{vq}, v{vt[1]}, 15, v{vr31}
    s_lshl_b32 s{s_tok}, s{s_qb}, 8
    s_lshl_b32 s{s_t0}, s{s_w}, 5
    s_add_u32 s{s_tok}, s{s_tok}, s{s_t0}
    s_lshl_b32 s{s_t0}, s{s_tok}, 4
    s_add_u32 s{s_t1}, s{s_t0}, s{s_pa}
    s_add_u32 s{s_t2}, s{s_t0}, s{s_pr}
    s_add_u32 s{s_t2}, s{s_t2}, s{s_odd8}
    v_mov_b32 v{Qr}, 0
    v_mov_b32 v{Qr+1}, 0
    buffer_load_dwordx4 {vr(Qm,4)}, v{vq}, {sr(sO,4)}, s{s_t1} offen
    s_mov_b32 exec_hi, 0
    buffer_load_dwordx2 {vr(Qr,2)}, v{vr31}, {sr(sO,4)}, s{s_t2} offen
    s_mov_b64 exec, -1
    """)
    dma(slot_c=1)
    nprep = 0
    if prep:
        nprep = 4
        Lwd = k.label("wd"); Lwo = k.label("wo"); Lwo2 = k.label("wo2"); Lgo = k.label("go"); Lnone = k.label("none"); Lcommon = k.label("c16")
        u, cb, R0, A_, B_, C_, st = s_t0, s_t1, s_t2, s_t3, s_slotn, s_slotd, s_c
        k(f"""s_lshl_b32 s{s_po[0]}, s2, 3
        s_add_u32 s{s_po[0]}, s{s_po[0]}, s{s_w}
        s_mov_b32 s{sA+3}, 0x20000
        s_mov_b32 s{sB+3}, 0x20000
        s_mov_b32 s{B_}, 8
        s_mov_b32 s{C_}, 4
        v_lshrrev_b32 v{vt[2]}, 4, v{vl}
        s_cmp_ge_u32 s{s_po[0]}, 1080
        s_cbranch_scc1 {Lwd}
        s_mul_i32 s{u}, s{s_po[0]}, 2428
        s_lshr_b32 s{u}, s{u}, 16
        s_mul_i32 s{cb}, s{u}, 27
        s_sub_u32 s{cb}, s{s_po[0]}, s{cb}
        s_lshl_b32 s{R0}, s{u}, 4
        s_mov_b32 s{A_}, 0
        s_mov_b32 s{st}, 3456
        s_mov_b32 s{sA}, s{sP+4}
        s_mov_b32 s{sA+1}, s{sP+5}
        s_mov_b32 s{sB}, s{sP+6}
        s_mov_b32 s{sB+1}, s{sP+7}
        s_mov_b32 s{sA+2}, {640*3456}
        s_mov_b32 s{sB+2}, {640*3456}
        """)
        for Tl in range(4):
            k(f"""s_lshl_b32 s{sE}, s{cb}, 2
            s_add_u32 s{sE}, s{sE}, {Tl}
            s_mul_i32 s{sE+1}, s{sE}, 9363
            s_lshr_b32 s{sE+1}, s{sE+1}, 16
            s_mul_i32 s{sE+1}, s{sE+1}, 273
            s_add_u32 s{sE}, s{sE}, s{sE+1}
            s_mul_i32 s{sE+1}, s{u}, 7
            s_add_u32 s{sE}, s{sE}, s{sE+1}
            s_lshl_b32 s{sE}, s{sE}, 10
            s_add_u32 s{s_po[Tl]}, s{sE}, {WGUP}""")
        k(f"""v_and_b32 v{vt[3]}, 1, v{vt[2]}
        v_lshrrev_b32 v{vt[2]}, 1, v{vt[2]}
        s_branch {Lgo}
        {Lwd}:
        s_mov_b32 s{st}, 1280
        s_cmp_ge_u32 s{s_po[0]}, 1620
        s_cbranch_scc1 {Lwo}
        s_sub_u32 s{cb}, s{s_po[0]}, 1080
        s_mul_i32 s{u}, s{cb}, 6554
        s_lshr_b32 s{u}, s{u}, 16
        s_lshl_b32 s{R0}, s{u}, 5
        s_mov_b32 s{A_}, 16
        s_mov_b32 s{sA}, s{sWD}
        s_mov_b32 s{sA+1}, s{sWD+1}
        s_mov_b32 s{sA+2}, {1728*1280}
        s_mov_b32 s{sF}, {54*5-5}
        s_mov_b32 s{sF+1}, {WDP}
        s_branch {Lcommon}
        {Lwo}:
        s_min_u32 s{s_po[0]}, s{s_po[0]}, 1819
        s_sub_u32 s{cb}, s{s_po[0]}, 1620
        s_mul_i32 s{u}, s{cb}, 6554
        s_lshr_b32 s{u}, s{u}, 16
        s_mul_i32 s{R0}, s{u}, 40
        s_mov_b32 s{A_}, 20
        s_mov_b32 s{sA}, s{sP}
        s_mov_b32 s{sA+1}, s{sP+1}
        s_mov_b32 s{sA+2}, {640*1280}
        s_mov_b32 s{sF}, {20*5-5}
        s_mov_b32 s{sF+1}, {WOP}
        s_cmp_lt_u32 s{u}, 16
        s_cbranch_scc1 {Lcommon}
        s_mul_i32 s{R0}, s{u}, 160
        s_sub_u32 s{R0}, s{R0}, {16*160-16}
        s_mov_b32 s{A_}, 80
        s_mov_b32 s{B_}, 20
        s_mov_b32 s{C_}, 40
        {Lcommon}:
        s_mul_i32 s{sE}, s{u}, 10
        s_sub_u32 s{cb}, s{cb}, s{sE}
        s_mov_b32 s{sB}, s{sA}
        s_mov_b32 s{sB+1}, s{sA+1}
        s_mov_b32 s{sB+2}, s{sA+2}""")
        for Tl in range(4):
            k(f"""s_lshl_b32 s{sE}, s{cb}, 2
            s_add_u32 s{sE}, s{sE}, {Tl}
            s_mul_i32 s{sE+1}, s{sE}, 13108
            s_lshr_b32 s{sE+1}, s{sE+1}, 16
            s_mul_i32 s{sE+1}, s{sE+1}, s{sF}
            s_add_u32 s{sE}, s{sE}, s{sE+1}
            s_mul_i32 s{sE+1}, s{u}, 5
            s_add_u32 s{sE}, s{sE}, s{sE+1}
            s_lshl_b32 s{sE}, s{sE}, 10
            s_add_u32 s{s_po[Tl]}, s{sE}, s{sF+1}""")
        k(f"""v_lshrrev_b32 v{vt[3]}, 1, v{vt[2]}
        v_and_b32 v{vt[2]}, 1, v{vt[2]}
        {Lgo}:""")
        k(f"""v_lshlrev_b32 v{vt[3]}, 11, v{vt[3]}
        v_lshl_add_u32 v{vt[3]}, v{vt[2]}, 9, v{vt[3]}
        v_bfe_u32 v{vt[2]}, v{vl}, 2, 2
        v_lshl_add_u32 v{vt[3]}, v{vt[2]}, 7, v{vt[3]}
        v_and_b32 v{vt[2]}, 3, v{vl}
        v_lshl_add_u32 v{vt[3]}, v{vt[2]}, 3, v{vt[3]}
        s_lshl_b32 s{sE}, s{s_w}, 12
        s_add_u32 s{sE}, s{sE}, {PREP}
        v_add_u32 v{vPA}, s{sE}, v{vt[3]}
        v_mul_u32_u24 v{vt[2]}, s{C_}, v{vt[1]}
        v_bfe_u32 v{vt[3]}, v{vl}, 3, 2
        v_add_u32 v{vt[2]}, v{vt[2]}, v{vt[3]}
        v_mul_u32_u24 v{vt[2]}, s{st}, v{vt[2]}
        v_and_b32 v{vt[3]}, 7, v{vl}
        v_lshl_add_u32 v{vt[2]}, v{vt[3]}, 4, v{vt[2]}
        s_mov_b32 m0, s{sE}
        s_mul_i32 s{R0}, s{R0}, s{st}
        s_lshl_b32 s{cb}, s{cb}, 7
        s_add_u32 s{R0}, s{R0}, s{cb}
        s_mul_i32 s{A_}, s{A_}, s{st}
        s_mul_i32 s{B_}, s{B_}, s{st}
        buffer_load_dwordx4 v{vt[2]}, {sr(sA,4)}, s{R0} offen lds
        s_add_u32 m0, m0, 1024
        s_add_u32 s{sE}, s{R0}, s{B_}
        buffer_load_dwordx4 v{vt[2]}, {sr(sA,4)}, s{sE} offen lds
        s_add_u32 m0, m0, 1024
        s_add_u32 s{R0}, s{R0}, s{A_}
        buffer_load_dwordx4 v{vt[2]}, {sr(sB,4)}, s{R0} offen lds
        s_add_u32 m0, m0, 1024
        s_add_u32 s{sE}, s{R0}, s{B_}
        buffer_load_dwordx4 v{vt[2]}, {sr(sB,4)}, s{sE} offen lds
        """)
    k(f"""v_lshl_add_u32 v{vKA[0]}, v{vt[1]}, 12, v{vr31}
    v_add_u32 v{vKR[0]}, s{s_odd8}, v{vr31}
    v_add_u32 v{vKR[0]}, 8192, v{vKR[0]}
    v_mul_u32_u24 v{vt[0]}, 336, v{vt[1]}
    v_add_u32 v{vt[0]}, v{vt[0]}, v{vr31}
    v_add_u32 v{vVA[0]}, 12288, v{vt[0]}
    v_add_u32 v{vKA[1]}, {SLOT}, v{vKA[0]}
    v_add_u32 v{vKR[1]}, {SLOT}, v{vKR[0]}
    v_add_u32 v{vVA[1]}, {SLOT}, v{vVA[0]}
    s_mov_b32 s{s_c}, 0
    s_mov_b32 s{s_slotn}, {SLOT}
    s_mov_b32 s{s_slotd}, {2*SLOT}""")
    for i in range(16): k(f"v_mov_b32 v{O+i}, 0\nv_mov_b32 v{C+i}, 0")
    def rdK(t):
        n = t // 8; t %= 8
        return [f"ds_read_b128 {vr(Km,4)}, v{vKA[n]} offset:{t*512}", f"ds_read_b64 {vr(Kr,2)}, v{vKR[n]} offset:{t*512}"]
    def rdV(t):
        n = t // 8; tt = t % 8
        return [f"ds_read_b128 {vr(V0,4)}, v{vVA[n]} offset:{tt*1344}", f"ds_read_b128 {vr(V1[t&1],4)}, v{vVA[n]} offset:{tt*1344+672}"]
    k.stamp(2)
    k(f"s_waitcnt vmcnt({3+nprep})\ns_barrier")
    k.stamp(3)
    for x in rdK(0): k(x)
    k(f"""s_waitcnt lgkmcnt(0)
    {M8} {vr(S[0],16)}, {vr(Kr,2)}, {vr(Qr,2)}, {vr(C,16)}
    {M16} {vr(S[0],16)}, {vr(Km,4)}, {vr(Qm,4)}, {vr(S[0],16)}""")
    for x in rdK(1) + rdV(0): k(x)
    if prio == 'young':
        Lp = k.label("p"); k(f"s_cmp_lt_u32 s{s_w}, 4\ns_cbranch_scc1 {Lp}\ns_setprio 1\n{Lp}:")
    L = k.label("loop")
    k("s_nop 7")
    k(f"{L}:")
    for t in range(8):
        s = S[t & 1]; sn = S[(t + 1) & 1]
        e = lambda *a: [k(f"v_exp_f32 v{s+i}, v{s+i}") for i in a]
        c = lambda i: k(f"v_cvt_pk_bf16_f32 v{P+i}, v{s+2*i}, v{s+2*i+1}")
        def bar():
            if t == 6:
                Ls = k.label("skip")
                k(f"s_waitcnt vmcnt(0)\ns_barrier\ns_cmp_ge_u32 s{s_c}, 6\ns_cbranch_scc1 {Ls}")
                dma(slot_s=s_slotd)
                k(f"{Ls}:")
        if prio == 'cyc': k(f"s_setprio {3 - (t & 3)}")
        rk = rdK(t + 2); rv = rdV(t + 1)
        def pr(ph):
            if isinstance(prio, tuple):
                q = (4 * t + ph - 26) % 32
                cum = 0
                for lvl, ln in enumerate(prio):
                    if q == cum and ln > 0: k(f"s_setprio {3 - lvl}")
                    cum += ln
        if sched == 0:
            e(0, 1, 2, 3)
            k("s_waitcnt lgkmcnt(0)")
            k(f"{M8} {vr(sn,16)}, {vr(Kr,2)}, {vr(Qr,2)}, {vr(C,16)}")
            e(4); c(0); e(5); c(1); e(6, 7)
            k(f"{M16} {vr(sn,16)}, {vr(Km,4)}, {vr(Qm,4)}, {vr(sn,16)}")
            c(2); e(8); c(3); e(9, 10, 11)
            k(f"{M16} {vr(O,16)}, {vr(V0,4)}, {vr(P,4)}, {vr(O,16)}")
            c(4); e(12); c(5); e(13, 14, 15); c(6)
            bar()
            k(rk[0]); c(7); k(rk[1]); k(rv[0]); k(rv[1])
            k(f"{M16} {vr(O,16)}, {vr(V1[t&1],4)}, {vr(P+4,4)}, {vr(O,16)}")
        elif sched == 1:
            pr(0)
            e(0, 1, 2, 3)
            k("s_waitcnt lgkmcnt(2)")
            k(f"{M8} {vr(sn,16)}, {vr(Kr,2)}, {vr(Qr,2)}, {vr(C,16)}")
            pr(1)
            e(4); c(0); e(5); c(1); e(6, 7)
            k(f"{M16} {vr(sn,16)}, {vr(Km,4)}, {vr(Qm,4)}, {vr(sn,16)}")
            bar()
            pr(2)
            k(rk[0]); k(rk[1])
            c(2); e(8); c(3); e(9, 10, 11)
            k("s_waitcnt lgkmcnt(2)")
            k(f"{M16} {vr(O,16)}, {vr(V0,4)}, {vr(P,4)}, {vr(O,16)}")
            pr(3)
            c(4); e(12); c(5); e(13, 14, 15); c(6)
            k(rv[0]); c(7); k(rv[1]); k("s_nop 0")
            k(f"{M16} {vr(O,16)}, {vr(V1[t&1],4)}, {vr(P+4,4)}, {vr(O,16)}")
    if exp:
        i0 = k.lines.index(f"{L}:")
        body = k.lines[i0+1:]
        if 'c0' in exp: body = [l.replace(f", {vr(C,16)}", ", 0") for l in body]
        if 'nods' in exp: body = [l if not ('ds_read' in l or 'lgkmcnt' in l) else None for l in body]
        if 'nobar' in exp: body = [l if l is None or not ('s_barrier' in l) else None for l in body]
        if 'nodma' in exp: body = [l if l is None or not ('offen lds' in l) else None for l in body]
        if 'nomfma' in exp: body = [l if l is None or not ('v_mfma' in l) else None for l in body]
        if 'nopv' in exp: body = [l if l is None or not ('v_mfma' in l and f"{vr(O,16)}" in l) else None for l in body]
        if 'noqk' in exp: body = [l if l is None or not ('v_mfma' in l and f"{vr(O,16)}" not in l) else None for l in body]
        if 'm16' in exp: body = [l.replace(M8, M16).replace(vr(Kr,2), vr(Km,4)).replace(vr(Qr,2), vr(Qm,4)) if l and M8 in l else l for l in body]
        k.lines[i0+1:] = [l for l in body if l is not None]
    k(f"""v_mov_b32 v{vKA[0]}, v{vKA[1]}
    v_mov_b32 v{vKR[0]}, v{vKR[1]}
    v_mov_b32 v{vVA[0]}, v{vVA[1]}
    s_sub_u32 s{s_t0}, s{s_slotd}, s{s_slotn}
    s_mov_b32 s{s_slotn}, s{s_slotd}
    s_add_u32 s{s_slotd}, s{s_slotd}, {SLOT}
    s_cmp_eq_u32 s{s_slotd}, {NS*SLOT}
    s_cselect_b32 s{s_slotd}, 0, s{s_slotd}
    v_add_u32 v{vKA[1]}, s{s_t0}, v{vKA[1]}
    v_add_u32 v{vKR[1]}, s{s_t0}, v{vKR[1]}
    v_add_u32 v{vVA[1]}, s{s_t0}, v{vVA[1]}""")
    if prep:
        Lnp = k.label("np")
        k(f"s_cmp_lg_u32 s{s_c}, 0\ns_cbranch_scc1 {Lnp}")
        for Tl in range(4):
            for rd in range(2):
                k(f"ds_read_b64_tr_b16 {vr(PR+4*Tl+2*rd,2)}, v{vPA} offset:{rd*1024+Tl*32}")
        k("s_waitcnt lgkmcnt(0)")
        for Tl in range(4):
            k(f"buffer_store_dwordx4 {vr(PR+4*Tl,4)}, v{vl16}, {sr(sO,4)}, s{s_po[Tl]} offen")
        k(f"{Lnp}:")
    k(f"s_add_u32 s{s_c}, s{s_c}, 1\ns_cmp_lt_u32 s{s_c}, 8\ns_cbranch_scc1 {L}")
    t0, t1, t2 = vt[0], vt[1], vt[2]
    k.stamp(4); k.stamp(5)
    k(f"""s_nop 7
    s_nop 3
    v_mov_b32 v{t0}, v{O+8}
    v_mov_b32 v{t1}, v{O+8}
    v_add_f32 v{t2}, |v{O}|, |v{O+1}|
    v_permlane32_swap_b32 v{t0}, v{t1}""")
    for i in range(2, 12):
        if i == 8: k("s_mov_b32 exec_hi, 0")
        k(f"v_add_f32 v{t2}, |v{O+i}|, v{t2}")
    k("s_mov_b32 exec_hi, -1")
    k(f"""v_cmp_lt_f32 vcc, {f2u(2.0**-64):#x}, v{t1}
    s_mov_b32 s{s_t0}, {f2u(2.0**64):#x}
    s_mov_b32 s{s_t1}, 0x7f800000
    v_cmp_gt_f32 {sr(sE,2)}, s{s_t0}, v{t1}
    v_cmp_gt_f32 {sr(sF,2)}, s{s_t1}, v{t2}
    s_and_b64 vcc, vcc, {sr(sE,2)}
    s_and_b64 vcc, vcc, {sr(sF,2)}
    s_cmp_eq_u64 vcc, -1
    s_cbranch_scc0 {L_slow}
    {L_store}:
    v_rcp_f32 v{t1}, v{t1}""")
    k(f"""v_bfe_u32 v{t0}, v{vl}, 4, 1
    v_mul_u32_u24 v{t0}, {20*1024}, v{t0}
    v_and_b32 v{t2}, 15, v{vl}
    v_lshl_add_u32 v{t0}, v{t2}, 4, v{t0}
    v_lshrrev_b32 v{t2}, 5, v{vl}
    v_lshl_add_u32 v{t2}, v{t2}, 8, v{t0}
    s_lshr_b32 s{s_t0}, s{s_tok}, 4
    s_mul_i32 s{s_t0}, s{s_t0}, {20*1024}
    s_add_u32 s{s_t0}, s{s_t0}, {OIMG}
    s_lshl_b32 s{s_t1}, s{s_h}, 9
    s_add_u32 s{s_t1}, s{s_t1}, s{s_t0}
    s_lshr_b32 s{s_t2}, s{s_h}, 1
    s_lshl_b32 s{s_t2}, s{s_t2}, 8
    s_add_u32 s{s_t2}, s{s_t2}, s{s_t0}
    s_add_u32 s{s_t2}, s{s_t2}, s{s_odd8}
    s_add_u32 s{s_t2}, s{s_t2}, {16*1024}""")
    for i in range(12): k(f"v_mul_f32 v{O+i}, v{t1}, v{O+i}")
    for i in range(6): k(f"v_cvt_pk_bf16_f32 v{O+i}, v{O+2*i}, v{O+2*i+1}")
    k(f"""buffer_store_dwordx4 {vr(O,4)}, v{t2}, {sr(sO,4)}, s{s_t1} offen
    s_mov_b32 exec_hi, 0
    buffer_store_dwordx2 {vr(O+4,2)}, v{t0}, {sr(sO,4)}, s{s_t2} offen""")
    k.stamp(6); k.stamp_flush(sO, s_w)
    k(f"{L_end}:\ns_endpgm")
    k(f"{L_slow}:")
    vV = vt[3]; vm = vt[4]
    k(f"""s_add_u32 s{so[0]}, s{s_pa}, {80*32768}
    s_add_u32 s{so[1]}, s{s_pr}, {80*32768}
    s_add_u32 s{so[1]}, s{so[1]}, s{s_odd8}
    v_mov_b32 v{vm}, 0xff800000
    s_mov_b32 s{s_c}, 0""")
    L1 = k.label("mx")
    k(f"""{L1}:
    buffer_load_dwordx4 {vr(Km,4)}, v{vq}, {sr(sO,4)}, s{so[0]} offen
    buffer_load_dwordx2 {vr(Kr,2)}, v{vr31}, {sr(sO,4)}, s{so[1]} offen
    s_add_u32 s{so[0]}, s{so[0]}, 512
    s_add_u32 s{so[1]}, s{so[1]}, 512
    s_waitcnt vmcnt(0)
    {M8} {vr(S[0],16)}, {vr(Kr,2)}, {vr(Qr,2)}, 0
    {M16} {vr(S[0],16)}, {vr(Km,4)}, {vr(Qm,4)}, {vr(S[0],16)}""")
    for i in range(8): k(f"v_max3_f32 v{vm}, v{S[0]+2*i}, v{S[0]+2*i+1}, v{vm}")
    k(f"""s_add_u32 s{s_c}, s{s_c}, 1
    s_cmp_lt_u32 s{s_c}, 64
    s_cbranch_scc1 {L1}
    v_mov_b32 v{t0}, v{vm}
    v_permlane32_swap_b32 v{t0}, v{vm}
    v_max_f32 v{vm}, v{vm}, v{t0}""")
    for i in range(16): k(f"v_sub_f32 v{C+i}, 0, v{vm}\nv_mov_b32 v{O+i}, 0")
    k(f"""s_add_u32 s{so[0]}, s{s_pa}, {80*32768}
    s_add_u32 s{so[1]}, s{s_pr}, {80*32768}
    s_add_u32 s{so[1]}, s{so[1]}, s{s_odd8}
    s_mul_i32 s{so[2]}, s{s_h}, {VHEAD}
    s_add_u32 s{so[2]}, s{so[2]}, {VIMG}
    v_lshrrev_b32 v{vV}, 5, v{vl}
    v_mul_u32_u24 v{vV}, 336, v{vV}
    v_add_u32 v{vV}, v{vV}, v{vr31}
    s_mov_b32 s{s_c}, 0""")
    L2 = k.label("pv")
    k(f"""{L2}:
    buffer_load_dwordx4 {vr(Km,4)}, v{vq}, {sr(sO,4)}, s{so[0]} offen
    buffer_load_dwordx2 {vr(Kr,2)}, v{vr31}, {sr(sO,4)}, s{so[1]} offen
    buffer_load_dwordx4 {vr(V0,4)}, v{vV}, {sr(sO,4)}, s{so[2]} offen
    buffer_load_dwordx4 {vr(V1[0],4)}, v{vV}, {sr(sO,4)}, s{so[2]} offen offset:672
    s_add_u32 s{so[0]}, s{so[0]}, 512
    s_add_u32 s{so[1]}, s{so[1]}, 512
    s_add_u32 s{so[2]}, s{so[2]}, 1344
    s_waitcnt vmcnt(0)
    {M8} {vr(S[0],16)}, {vr(Kr,2)}, {vr(Qr,2)}, {vr(C,16)}
    {M16} {vr(S[0],16)}, {vr(Km,4)}, {vr(Qm,4)}, {vr(S[0],16)}""")
    for i in range(16): k(f"v_exp_f32 v{S[0]+i}, v{S[0]+i}")
    for i in range(8): k(f"v_cvt_pk_bf16_f32 v{P+i}, v{S[0]+2*i}, v{S[0]+2*i+1}")
    k(f"""{M16} {vr(O,16)}, {vr(V0,4)}, {vr(P,4)}, {vr(O,16)}
    {M16} {vr(O,16)}, {vr(V1[0],4)}, {vr(P+4,4)}, {vr(O,16)}
    s_add_u32 s{s_c}, s{s_c}, 1
    s_cmp_lt_u32 s{s_c}, 64
    s_cbranch_scc1 {L2}
    v_mov_b32 v{t0}, v{O+8}
    v_mov_b32 v{t1}, v{O+8}
    v_permlane32_swap_b32 v{t0}, v{t1}
    s_branch {L_store}""")
    return k, (256, 512, PREP + 32768)
```

```python
from asmlib import *
from layout import *
from k1 import srd
MF = "v_mfma_f32_16x16x32_bf16"

def gen_k35(which):
    k3 = which == 3
    k = K("k3_oproj_kernel" if k3 else "k5_down_kernel")
    NU, CK, NSL = (20, 4, 5) if k3 else (54, 3, 6)
    NCH = NU // CK
    PW = (5 * CK + 3) // 4
    SLOT = 4 * PW * 1024
    BIMG, WP = (OIMG, WOP) if k3 else (ACT, WDP)
    XS = NSL * SLOT
    OPC = CK + PW
    sWS = k.s(2); sPX = k.s(2)
    sB = k.s(4); sW = k.s(4); sO = k.s(4); sX = k.s(4)
    s_w = k.s(); s_tb = k.s(); s_c = k.s(); s_t0 = k.s(); s_t1 = k.s(); s_t2 = k.s()
    s_bo = k.s(); s_wo = k.s(); s_m0 = k.s(); s_cnt = k.s(); s_ones = k.s()
    vl = k.v(); vl16 = k.v(); vA = k.v(); vt = [k.v() for _ in range(8)]
    vrow = [k.v() for _ in range(3)]
    acc = k.v(20, 4)
    fa = [k.v(20, 4), k.v(20, 4)]
    fb = k.v(4 * CK * NSL, 4)
    res = k.v(12, 4)
    L_end = k.label("end")
    k.kidx = 2 if k3 else 4; k.stamp_real(0); k.stamp(1)
    k(f"""s_load_dwordx2 {sr(sWS,2)}, s[0:1], {KA_WS}
    s_load_dwordx2 {sr(sPX,2)}, s[0:1], {KA_X if k3 else KA_OUT}
    s_cmp_ge_u32 s2, 256
    s_cbranch_scc1 {L_end}
    v_lshrrev_b32 v{vt[0]}, 6, v0
    v_and_b32 v{vl}, 63, v0
    v_readfirstlane_b32 s{s_w}, v{vt[0]}
    v_lshlrev_b32 v{vl16}, 4, v{vl}
    s_and_b32 s{s_t0}, s2, 3
    s_lshl_b32 s{s_t0}, s{s_t0}, 3
    s_bfe_u32 s{s_t1}, s2, 0x30003
    s_add_u32 s{s_tb}, s{s_t0}, s{s_t1}
    s_bfe_u32 s{s_t0}, s2, 0x10002
    s_lshl_b32 s{s_t0}, s{s_t0}, 2
    s_lshr_b32 s{s_t1}, s2, 6
    s_add_u32 s{s_c}, s{s_t0}, s{s_t1}
    s_lshl_b32 s{s_t0}, s{s_tb}, 2
    s_add_u32 s{s_t0}, s{s_t0}, s{s_w}
    s_mul_i32 s{s_t1}, s{s_t0}, {NU*1024}
    s_add_u32 s{s_t1}, s{s_t1}, {BIMG}
    s_mul_i32 s{s_t2}, s{s_c}, {NU*5120}
    s_add_u32 s{s_t2}, s{s_t2}, {WP}
    s_mul_i32 s{s_m0}, s{s_w}, {PW*1024}
    s_mov_b32 s{s_bo}, 0
    s_mov_b32 s{s_wo}, s{s_m0}
    s_waitcnt lgkmcnt(0)
    s_add_u32 s{sB}, s{sWS}, s{s_t1}
    s_addc_u32 s{sB+1}, s{sWS+1}, 0
    s_mov_b32 s{sB+2}, {NU*1024}
    s_mov_b32 s{sB+3}, 0x20000
    s_add_u32 s{sW}, s{sWS}, s{s_t2}
    s_addc_u32 s{sW+1}, s{sWS+1}, 0
    s_mov_b32 s{sW+2}, {NU*5120}
    s_mov_b32 s{sW+3}, 0x20000""")
    def loadB(slot, ks):
        k(f"buffer_load_dwordx4 {vr(fb+4*(slot*CK+ks),4)}, v{vl16}, {sr(sB,4)}, s{s_bo} offen offset:{ks*1024}")
        if ks == CK - 1: k(f"s_add_u32 s{s_bo}, s{s_bo}, {CK*1024}")
    def dmaW(slot):
        k(f"s_add_u32 m0, s{s_m0}, {slot*SLOT}")
        if PW > 4: k(f"s_add_u32 s{s_t2}, s{s_wo}, 4096")
        for i in range(min(PW, 4)):
            k(f"buffer_load_dwordx4 v{vl16}, {sr(sW,4)}, s{s_wo} offen offset:{i*1024} lds")
        if PW > 4: k("s_add_u32 m0, m0, 4096")
        k(f"s_add_u32 s{s_wo}, s{s_wo}, {CK*5120}")
        for i in range(4, PW):
            k(f"buffer_load_dwordx4 v{vl16}, {sr(sW,4)}, s{s_t2} offen offset:{(i-4)*1024} lds")
    for X in range(NSL):
        for ks in range(CK - 1): loadB(X, ks)
        dmaW(X)
        loadB(X, CK - 1)
    srd(k, sO, sWS, sWS + 1, WSEND)
    for i in range(3):
        k(f"""v_add_u32 v{vt[0]}, {64*i}, v{vl}
        v_mul_u32_u24 v{vt[1]}, 6554, v{vt[0]}
        v_lshrrev_b32 v{vt[1]}, 16, v{vt[1]}
        v_mul_u32_u24 v{vt[1]}, {1280-160}, v{vt[1]}
        v_lshl_add_u32 v{vrow[i]}, v{vt[0]}, 4, v{vt[1]}""")
    k(f"""s_mul_i32 s{s_t1}, s{s_t0}, {16*1280}
    s_mul_i32 s{s_t2}, s{s_c}, 160
    s_add_u32 s{s_t1}, s{s_t1}, s{s_t2}
    s_add_u32 s{sX}, s{sPX}, s{s_t1}
    s_addc_u32 s{sX+1}, s{sPX+1}, 0
    s_sub_u32 s{sX+2}, {2048*1280}, s{s_t1}
    s_mov_b32 s{sX+3}, 0x20000""")
    vH = vt[6]; s_ho = k.s(); s_xs = k.s()
    k(f"""v_lshrrev_b32 v{vt[0]}, 4, v{vl}
    v_and_b32 v{vt[1]}, 15, v{vl}
    v_lshlrev_b32 v{vt[2]}, 4, v{vt[1]}
    v_lshl_add_u32 v{vH}, v{vt[0]}, 9, v{vt[2]}
    s_lshr_b32 s{s_t1}, s{s_t0}, 1
    s_mul_i32 s{s_t1}, s{s_t1}, 40
    s_mul_i32 s{s_t2}, s{s_c}, 5
    s_add_u32 s{s_t1}, s{s_t1}, s{s_t2}
    s_lshl_b32 s{s_t1}, s{s_t1}, 10
    s_and_b32 s{s_t2}, s{s_w}, 1
    s_lshl_b32 s{s_t2}, s{s_t2}, 8
    s_add_u32 s{s_t1}, s{s_t1}, s{s_t2}
    s_add_u32 s{s_ho}, s{s_t1}, {HIMG}
    s_mul_i32 s{s_xs}, s{s_w}, 3072
    s_add_u32 s{s_xs}, s{s_xs}, {XS}""")
    vD = vt[7]
    k(f"""v_mul_u32_u24 v{vt[1]}, 160, v{vt[1]}
    v_lshl_add_u32 v{vt[1]}, v{vt[0]}, 3, v{vt[1]}
    v_add_u32 v{vD}, s{s_xs}, v{vt[1]}""")
    if k3:
        k(f"s_mov_b32 m0, s{s_xs}")
        for i in range(3):
            k(f"buffer_load_dwordx4 v{vrow[i]}, {sr(sX,4)}, 0 offen lds")
            if i < 2: k("s_add_u32 m0, m0, 1024")
    else:
        k(f"s_add_u32 s{s_t1}, s{s_ho}, 4096")
        k(f"buffer_load_dwordx4 {vr(res,4)}, v{vH}, {sr(sO,4)}, s{s_ho} offen")
        k(f"buffer_load_dwordx4 {vr(res+4,4)}, v{vH}, {sr(sO,4)}, s{s_ho} offen offset:2048")
        k(f"buffer_load_dwordx4 {vr(res+8,4)}, v{vH}, {sr(sO,4)}, s{s_t1} offen")
    NX = 3
    k(f"v_mov_b32 v{vA}, v{vl16}")
    for i in range(20): k(f"v_mov_b32 v{acc+i}, 0")
    def rdA(buf, ks): return [f"ds_read_b128 {vr(fa[buf]+4*T,4)}, v{vA} offset:{(ks*5+T)*1024}" for T in range(5)]
    k.stamp(2)
    k(f"s_waitcnt vmcnt({min(63, 1 + OPC*(NSL-1) + NX)})\ns_barrier")
    k.stamp(3)
    for x in rdA(0, 0): k(x)
    step = [0]
    def chunk(slot, loads, vm, last):
        for ks in range(CK):
            buf = step[0] & 1; step[0] += 1
            k("s_waitcnt lgkmcnt(0)")
            if ks == CK - 1:
                if last:
                    k("s_waitcnt vmcnt(0)")
                    rd = []
                else:
                    k(f"s_waitcnt vmcnt({vm})\ns_barrier")
                    d = SLOT if slot < NSL - 1 else -(NSL - 1) * SLOT
                    k(f"v_add_u32 v{vA}, {d & 0xffffffff:#x}, v{vA}")
                    if loads: dmaW(slot)
                    rd = rdA(buf ^ 1, 0)
            else:
                rd = rdA(buf ^ 1, ks + 1)
            b = fb + 4 * (slot * CK + ks)
            for T in range(5):
                k(f"{MF} {vr(acc+4*T,4)}, {vr(fa[buf]+4*T,4)}, {vr(b,4)}, {vr(acc+4*T,4)}")
                if T < len(rd): k(rd[T])
            if loads: loadB(slot, ks)
    nloop = (NCH - NSL) // NSL
    assert nloop * NSL + NSL == NCH and (NSL * CK) % 2 == 0
    if nloop:
        L = k.label("loop")
        k(f"s_mov_b32 s{s_cnt}, {nloop}\n{L}:")
        for slot in range(NSL):
            chunk(slot, True, 1 + OPC * (NSL - 2) + (CK - 1), False)
        k(f"s_sub_u32 s{s_cnt}, s{s_cnt}, 1\ns_cmp_lg_u32 s{s_cnt}, 0\ns_cbranch_scc1 {L}")
    for slot in range(NSL):
        rem = NSL - 2 - slot
        chunk(slot, False, 1 + OPC * rem + (NX if not nloop else 0) if rem >= 0 else 0, slot == NSL - 1)
    t = vt
    k.stamp(4); k.stamp(5)
    if k3:
        for T in range(5): k(f"ds_read_b64 {vr(fa[0]+2*T,2)}, v{vD} offset:{T*32}")
        k(f"s_mov_b32 s{s_ones}, 0x3f803f80\nv_mov_b32 v{t[0]}, 0\nv_mov_b32 v{t[1]}, 0\ns_waitcnt lgkmcnt(0)")
        src = fa[0]
    else:
        for p in range(3):
            k(f"v_permlane32_swap_b32 v{res+4*p}, v{res+4*p+2}\nv_permlane32_swap_b32 v{res+4*p+1}, v{res+4*p+3}")
        src = res
    pk = fa[1]
    for T in range(5):
        for d in range(2):
            x = src + 2 * T + d; a = acc + 4 * T + 2 * d
            k(f"""v_lshlrev_b32 v{t[2]}, 16, v{x}
            v_and_b32 v{t[3]}, 0xffff0000, v{x}
            v_add_f32 v{a}, v{a}, v{t[2]}
            v_add_f32 v{a+1}, v{a+1}, v{t[3]}
            v_cvt_pk_bf16_f32 v{pk+2*T+d}, v{a}, v{a+1}""")
    if k3:
        for i in range(10):
            k(f"v_dot2c_f32_bf16 v{t[0]}, s{s_ones}, v{pk+i}\nv_dot2c_f32_bf16 v{t[1]}, v{pk+i}, v{pk+i}")
        for p in range(3):
            k(f"v_permlane32_swap_b32 v{pk+4*p}, v{pk+4*p+2}\nv_permlane32_swap_b32 v{pk+4*p+1}, v{pk+4*p+3}")
        k(f"""s_add_u32 s{s_t1}, s{s_ho}, 4096
        buffer_store_dwordx4 {vr(pk,4)}, v{vH}, {sr(sO,4)}, s{s_ho} offen
        buffer_store_dwordx4 {vr(pk+4,4)}, v{vH}, {sr(sO,4)}, s{s_ho} offen offset:2048
        v_mov_b32 v{t[2]}, v{t[0]}
        v_mov_b32 v{t[3]}, v{t[1]}
        v_permlane32_swap_b32 v{t[2]}, v{t[0]}
        v_permlane32_swap_b32 v{t[3]}, v{t[1]}
        v_add_f32 v{t[0]}, v{t[0]}, v{t[2]}
        v_add_f32 v{t[1]}, v{t[1]}, v{t[3]}
        v_mov_b32 v{t[2]}, v{t[0]}
        v_mov_b32 v{t[3]}, v{t[1]}
        v_permlane16_swap_b32 v{t[2]}, v{t[0]}
        v_permlane16_swap_b32 v{t[3]}, v{t[1]}
        v_add_f32 v{acc}, v{t[0]}, v{t[2]}
        v_add_f32 v{acc+1}, v{t[1]}, v{t[3]}
        v_lshlrev_b32 v{t[4]}, 3, v{vl}
        s_lshl_b32 s{s_t2}, s{s_c}, 14
        s_lshl_b32 s{s_t0}, s{s_t0}, 7
        s_add_u32 s{s_t2}, s{s_t2}, s{s_t0}
        s_add_u32 s{s_t2}, s{s_t2}, {STATS}
        s_mov_b32 exec_hi, 0
        buffer_store_dwordx4 {vr(pk+8,4)}, v{vH}, {sr(sO,4)}, s{s_t1} offen
        s_mov_b32 exec_lo, 0xffff
        buffer_store_dwordx2 {vr(acc,2)}, v{t[4]}, {sr(sO,4)}, s{s_t2} offen""")
    else:
        for T in range(5): k(f"ds_write_b64 v{vD}, {vr(pk+2*T,2)} offset:{T*32}")
        k(f"v_add_u32 v{t[0]}, s{s_xs}, v{vl16}\ns_waitcnt lgkmcnt(0)")
        for i in range(3): k(f"ds_read_b128 {vr(fa[0]+4*i,4)}, v{t[0]} offset:{i*1024}")
        for i in range(3):
            k(f"s_waitcnt lgkmcnt({2-i})")
            if i == 2: k("s_mov_b32 exec_hi, 0")
            k(f"buffer_store_dwordx4 {vr(fa[0]+4*i,4)}, v{vrow[i]}, {sr(sX,4)}, 0 offen")
    k.stamp(6); k.stamp_flush(sO, s_w)
    k(f"{L_end}:\ns_endpgm")
    return k, (256, 256, XS + 4 * 3072)
```

```python
from asmlib import *
from layout import *
from k1 import srd
M16 = "v_mfma_f32_32x32x16_bf16"

def gen_k4():
    k = K("k4_gateup_kernel")
    CK, NSL, NCH, PW = 4, 5, 10, 7
    SLOT = 28672; OPC = CK + PW
    CSB = NSL * SLOT
    sWS = k.s(2); sB = k.s(4); sW = k.s(4); sO = k.s(4)
    s_w = k.s(); s_tb = k.s(); s_g = k.s(); s_t0 = k.s(); s_t1 = k.s(); s_t2 = k.s()
    s_bo = k.s(); s_wo = k.s(); s_m0 = k.s(); s_ones = k.s()
    vl = k.v(); vl16 = k.v(); vB = [k.v() for _ in range(4)]; vA = [k.v() for _ in range(4)]
    vt = [k.v() for _ in range(4)]; vcsa = k.v()
    vcs = [k.v() for _ in range(7)]
    st = k.v(8, 4); par = k.v(6, 2)
    acc = [k.v(16, 4) for _ in range(7)]
    fa = [k.v(28, 4), k.v(28, 4)]
    fb = k.a(16 * NSL)
    L_end = k.label("end"); L_fin = k.label("fin")
    k.kidx = 3; k.stamp_real(0); k.stamp(1)
    k(f"""s_load_dwordx2 {sr(sWS,2)}, s[0:1], {KA_WS}
    s_cmp_ge_u32 s2, 256
    s_cbranch_scc1 {L_end}
    v_lshrrev_b32 v{vt[0]}, 6, v0
    v_and_b32 v{vl}, 63, v0
    v_readfirstlane_b32 s{s_w}, v{vt[0]}
    v_lshlrev_b32 v{vl16}, 4, v{vl}
    s_and_b32 s{s_t0}, s2, 1
    s_lshl_b32 s{s_t0}, s{s_t0}, 3
    s_bfe_u32 s{s_t1}, s2, 0x30003
    s_add_u32 s{s_tb}, s{s_t0}, s{s_t1}
    s_bfe_u32 s{s_t0}, s2, 0x20001
    s_lshl_b32 s{s_t0}, s{s_t0}, 2
    s_lshr_b32 s{s_t1}, s2, 6
    s_add_u32 s{s_g}, s{s_t0}, s{s_t1}
    s_lshl_b32 s{s_tb}, s{s_tb}, 2
    s_add_u32 s{s_tb}, s{s_tb}, s{s_w}
    s_mul_i32 s{s_t1}, s{s_tb}, 40960
    s_add_u32 s{s_t1}, s{s_t1}, {HIMG}
    s_mul_i32 s{s_t2}, s{s_g}, {40*7168}
    s_add_u32 s{s_t2}, s{s_t2}, {WGUP}
    s_mul_i32 s{s_m0}, s{s_w}, {PW*1024}
    s_mov_b32 s{s_bo}, 0
    s_mov_b32 s{s_wo}, s{s_m0}
    s_lshl_b32 s{s_t0}, s{s_w}, 10
    v_add_u32 v{vB[0]}, s{s_t0}, v{vl16}
    v_xor_b32 v{vB[1]}, 1024, v{vB[0]}
    v_xor_b32 v{vB[2]}, 2048, v{vB[0]}
    v_xor_b32 v{vB[3]}, 3072, v{vB[0]}
    s_waitcnt lgkmcnt(0)
    s_add_u32 s{sB}, s{sWS}, s{s_t1}
    s_addc_u32 s{sB+1}, s{sWS+1}, 0
    s_mov_b32 s{sB+2}, 40960
    s_mov_b32 s{sB+3}, 0x20000
    s_add_u32 s{sW}, s{sWS}, s{s_t2}
    s_addc_u32 s{sW+1}, s{sWS+1}, 0
    s_mov_b32 s{sW+2}, {40*7168}
    s_mov_b32 s{sW+3}, 0x20000""")
    def loadB(slot, ks):
        k(f"buffer_load_dwordx4 {ar(fb+4*(slot*CK+ks),4)}, v{vB[ks]}, {sr(sB,4)}, s{s_bo} offen")
        if ks == CK - 1: k(f"s_add_u32 s{s_bo}, s{s_bo}, {CK*1024}")
    def dmaW(slot):
        out = [f"s_add_u32 m0, s{s_m0}, {slot*SLOT}", f"s_add_u32 s{s_t2}, s{s_wo}, 4096"]
        for i in range(4):
            out.append(f"buffer_load_dwordx4 v{vl16}, {sr(sW,4)}, s{s_wo} offen offset:{i*1024} lds")
        out += ["s_add_u32 m0, m0, 4096", f"s_add_u32 s{s_wo}, s{s_wo}, {SLOT}"]
        for i in range(4, PW):
            out.append(f"buffer_load_dwordx4 v{vl16}, {sr(sW,4)}, s{s_t2} offen offset:{(i-4)*1024} lds")
        return out
    for X in range(NSL):
        for ks in range(CK - 1): loadB(X, ks)
        for x in dmaW(X): k(x)
        loadB(X, CK - 1)
    srd(k, sO, sWS, sWS + 1, WSEND)
    k(f"""v_and_b32 v{vt[0]}, 31, v{vl}
    v_lshrrev_b32 v{vt[1]}, 5, v{vl}
    v_lshlrev_b32 v{vt[2]}, 3, v{vt[0]}
    v_lshl_add_u32 v{vt[2]}, v{vt[1]}, 16, v{vt[2]}
    s_lshl_b32 s{s_t0}, s{s_tb}, 8
    s_add_u32 s{s_t0}, s{s_t0}, {STATS}""")
    for i in range(4):
        k(f"buffer_load_dwordx2 {vr(st+2*i,2)}, v{vt[2]}, {sr(sO,4)}, s{s_t0} offen")
        if i < 3: k(f"s_add_u32 s{s_t0}, s{s_t0}, 16384")
    NX = 4
    for s in range(4):
        k(f"s_xor_b32 s{s_t0}, s{s_w}, {s}\ns_mul_i32 s{s_t0}, s{s_t0}, 7168\nv_add_u32 v{vA[s]}, s{s_t0}, v{vl16}")
    k(f"""v_lshlrev_b32 v{vt[2]}, 2, v0
    v_add_u32 v{vt[2]}, {CSB}, v{vt[2]}
    v_mov_b32 v{vt[3]}, 0
    ds_write_b32 v{vt[2]}, v{vt[3]}
    v_lshlrev_b32 v{vcsa}, 2, v{vt[0]}
    v_add_u32 v{vcsa}, {CSB}, v{vcsa}
    s_mov_b32 s{s_ones}, 0x3f803f80""")
    for T in range(7):
        k(f"v_mov_b32 v{vcs[T]}, 0")
        for i in range(16): k(f"v_mov_b32 v{acc[T]+i}, 0")
    def rdA(buf, ks): return [f"ds_read_b128 {vr(fa[buf]+4*T,4)}, v{vA[ks]} offset:{T*1024}" for T in range(7)]
    k.stamp(2)
    k(f"s_waitcnt vmcnt({min(63, 1 + OPC*(NSL-1) + NX)}) lgkmcnt(0)\ns_barrier")
    k.stamp(3)
    for x in rdA(0, 0): k(x)
    for ch in range(NCH):
        slot = ch % NSL; loads = ch + NSL < NCH; last = ch == NCH - 1
        for ks in range(CK):
            buf = ks & 1
            fill = [[] for _ in range(7)]
            k("s_waitcnt lgkmcnt(0)")
            d = SLOT if slot < NSL - 1 else -(NSL - 1) * SLOT
            if ks == CK - 1:
                if last:
                    k("s_waitcnt vmcnt(0)"); rd = []
                else:
                    if loads: vm = 1 + OPC * (NSL - 2) + (CK - 1)
                    else: vm = 1 + OPC * (NCH - 2 - ch)
                    k(f"s_waitcnt vmcnt({vm})\ns_barrier")
                    if loads:
                        for i, x in enumerate(dmaW(slot)): fill[min(6, i * 7 // 11)].append(x)
                    rd = rdA(buf ^ 1, 0)
                    fill[6].append(f"v_add_u32 v{vA[3]}, {d & 0xffffffff:#x}, v{vA[3]}")
            else:
                rd = rdA(buf ^ 1, ks + 1)
                if not last: fill[6].append(f"v_add_u32 v{vA[ks]}, {d & 0xffffffff:#x}, v{vA[ks]}")
            for T in range(7):
                if T < len(rd): fill[T].insert(0, rd[T])
                if ks == 0:
                    for i in range(4): fill[T].append(f"v_dot2c_f32_bf16 v{vcs[T]}, s{s_ones}, v{fa[buf]+4*T+i}")
            b = fb + 4 * (slot * CK + ks)
            for T in range(7):
                k(f"{M16} {vr(acc[T],16)}, {vr(fa[buf]+4*T,4)}, {ar(b,4)}, {vr(acc[T],16)}")
                for x in fill[T]: k(x)
            if loads: loadB(slot, ks)
    k.stamp(4)
    for T in range(7): k(f"ds_add_f32 v{vcsa}, v{vcs[T]} offset:{T*128}")
    t = vt
    k(f"""v_add_f32 v{st}, v{st}, v{st+2}
    v_add_f32 v{st+1}, v{st+1}, v{st+3}
    v_add_f32 v{st+4}, v{st+4}, v{st+6}
    v_add_f32 v{st+5}, v{st+5}, v{st+7}
    v_add_f32 v{st}, v{st}, v{st+4}
    v_add_f32 v{st+1}, v{st+1}, v{st+5}
    v_mov_b32 v{st+2}, v{st}
    v_mov_b32 v{st+3}, v{st+1}
    v_permlane32_swap_b32 v{st+2}, v{st}
    v_permlane32_swap_b32 v{st+3}, v{st+1}
    v_add_f32 v{st}, v{st}, v{st+2}
    v_add_f32 v{st+1}, v{st+1}, v{st+3}
    v_mul_f32 v{par}, {f2u(-1.0/640):#x}, v{st}
    v_mul_f32 v{st+1}, {f2u(1.0/640):#x}, v{st+1}
    v_fma_f32 v{st+1}, -v{par}, v{par}, v{st+1}
    v_max_f32 v{st+1}, 0, v{st+1}
    v_add_f32 v{par+4}, {f2u(1e-5):#x}, v{st+1}
    v_rsq_f32 v{par+2}, v{par+4}
    v_mov_b32 v{par+1}, v{par}
    v_mov_b32 v{par+5}, v{par+4}
    v_mul_f32 v{par+2}, {f2u(-math.log2(math.e)):#x}, v{par+2}
    v_lshrrev_b32 v{t[0]}, 5, v{vl}
    v_mov_b32 v{par+3}, v{par+2}
    v_lshlrev_b32 v{t[1]}, 4, v{t[0]}
    v_add_u32 v{t[1]}, {CSB}, v{t[1]}
    v_bfe_u32 v{t[2]}, v{vl}, 4, 1
    v_mul_u32_u24 v{t[2]}, 55296, v{t[2]}
    v_lshl_add_u32 v{t[2]}, v{t[0]}, 8, v{t[2]}
    v_and_b32 v{t[3]}, 15, v{vl}
    v_lshl_add_u32 v{t[2]}, v{t[3]}, 4, v{t[2]}
    s_mul_i32 s{s_t0}, s{s_tb}, {2*55296}
    s_mul_i32 s{s_t1}, s{s_g}, 3584
    s_add_u32 s{s_t0}, s{s_t0}, s{s_t1}
    s_add_u32 s{s_t0}, s{s_t0}, {ACT}
    s_waitcnt lgkmcnt(0)
    s_barrier""")
    k.stamp(5)
    if K.STAMP: k("s_waitcnt lgkmcnt(0)")
    cs = [fa[0], fa[0] + 16, fa[0] + 32]; tmp = fa[0] + 48
    def rdcs(T):
        for j in range(4): k(f"ds_read_b128 {vr(cs[T%3]+4*j,4)}, v{t[1]} offset:{T*128+32*j}")
    rdcs(0); rdcs(1)
    for T in range(7):
        A = acc[T]; c = cs[T % 3]
        if T + 2 < 7: rdcs(T + 2)
        k(f"s_waitcnt lgkmcnt({4*min(2, 6-T)})")
        for p in range(8): k(f"v_pk_fma_f32 {vr(A+2*p,2)}, {vr(c+2*p,2)}, {vr(par,2)}, {vr(A+2*p,2)}")
        for p in range(4): k(f"v_pk_mul_f32 {vr(tmp+2*p,2)}, {vr(A+2*p,2)}, {vr(par+2,2)}")
        for i in range(8): k(f"v_exp_f32 v{tmp+i}, v{tmp+i}")
        for p in range(4): k(f"v_pk_mul_f32 {vr(A+2*p,2)}, {vr(A+2*p,2)}, {vr(A+8+2*p,2)}")
        for p in range(4): k(f"v_pk_fma_f32 {vr(tmp+2*p,2)}, {vr(tmp+2*p,2)}, {vr(par+4,2)}, {vr(par+4,2)}")
        for i in range(8): k(f"v_rcp_f32 v{tmp+i}, v{tmp+i}")
        for p in range(4): k(f"v_pk_mul_f32 {vr(A+2*p,2)}, {vr(A+2*p,2)}, {vr(tmp+2*p,2)}")
        for p in range(4): k(f"v_cvt_pk_bf16_f32 v{A+8+p}, v{A+2*p}, v{A+2*p+1}")
        k(f"buffer_store_dwordx4 {vr(A+8,4)}, v{t[2]}, {sr(sO,4)}, s{s_t0} offen offset:{T*512}")
        if T == 2: k(f"s_cmp_eq_u32 s{s_g}, 15\ns_cbranch_scc1 {L_fin}")
    k(f"{L_fin}:")
    k.stamp(6); k.stamp_flush(sO, s_w)
    k(f"{L_end}:\ns_endpgm")
    return k, (256, 256, CSB + 1024)
```

```python
import sys, os
from build import build
import k1,k2,k35,k4
from asmlib import K
K.STAMP = bool(os.environ.get('STAMP'))
seq = os.environ.get("SEQ", "12345")
g = {'1': k1.gen_k1(**eval(os.environ.get('K1','{}'))), '2': k2.gen_k2(**eval(os.environ.get('K2','{}'))), '3': k35.gen_k35(3,**eval(os.environ.get('K3','{}'))), '4': k4.gen_k4(**eval(os.environ.get('K4','{}'))), '5': k35.gen_k35(5,**eval(os.environ.get('K5','{}')))}
def empty():
    k = K("k0_empty_kernel"); k("s_endpgm"); return k, (256, 256, 0)
g['0'] = empty()
ks = [g[c] for c in seq]
build(ks, sys.argv[1] if len(sys.argv)>1 else "t.s", verbose=bool(os.environ.get("V")))
```

```python
import re

REG_RE = re.compile(r'(?<![\w.])(-?)(\|?)([vas])(?:(\d+)|\[(\d+):(\d+)\])')

def regs_of(tok):
    out = set()
    t = tok.strip()
    for m in REG_RE.finditer(t):
        c = m.group(3)
        if m.group(4) is not None:
            out.add((c, int(m.group(4))))
        else:
            for i in range(int(m.group(5)), int(m.group(6)) + 1):
                out.add((c, i))
    if re.search(r'\bvcc\b', t): out |= {('s', 'vcc')}
    if re.search(r'\bexec\b', t): out |= {('s', 'exec')}
    if re.search(r'\bm0\b', t): out |= {('s', 'm0')}
    return out

TRANS = ('v_exp_f32', 'v_log_f32', 'v_rcp_f32', 'v_rsq_f32', 'v_sqrt_f32', 'v_sin_f32', 'v_cos_f32', 'v_rcp_iflag_f32', 'v_exp_f16')

class Ins:
    def __init__(self, text):
        self.text = text
        t = text.split(';')[0].strip()
        self.label = None
        self.op = None
        self.defs = set(); self.uses = set()
        self.srcA = set(); self.srcB = set(); self.srcC = set()
        if not t or t.startswith('.'):
            return
        if t.endswith(':'):
            self.label = t[:-1]; return
        parts = t.split(None, 1)
        self.op = op = parts[0]
        rest = parts[1] if len(parts) > 1 else ''
        ops = [x.strip() for x in re.split(r',(?![^\[]*\])', rest)] if rest else []
        self.ops = ops
        R = [regs_of(x) for x in ops]
        self.is_mfma = op.startswith('v_mfma')
        self.is_valu = op.startswith('v_') and not self.is_mfma
        self.is_salu = op.startswith('s_')
        self.is_vmem = op.startswith('buffer_') or op.startswith('global_')
        self.is_ds = op.startswith('ds_')
        self.is_lds_dma = self.is_vmem and (re.search(r'\blds\b', rest) is not None or 'load_lds' in op)
        self.is_store = self.is_vmem and ('store' in op or 'atomic' in op)
        self.is_branch = op.startswith('s_cbranch') or op == 's_branch'
        self.target = ops[0] if self.is_branch else None
        allr = set().union(*R) if R else set()
        if self.is_mfma:
            self.defs = R[0]; self.srcA = R[1]; self.srcB = R[2]; self.srcC = R[3]
            self.uses = R[1] | R[2] | R[3]
            m = re.match(r'v_mfma_f32_(\d+)x(\d+)x(\d+)', op)
            mm = int(m.group(1))
            if '_2b_' in op: self.passes = 16
            elif mm == 32: self.passes = 8
            elif mm == 16: self.passes = 8 if '_4b_' in op else 4
            else: self.passes = 2
        elif self.is_valu:
            if op.startswith('v_cmpx'):
                self.defs = R[0] | {('s', 'exec')}; self.uses = set().union(*R[1:])
            elif op.startswith('v_permlane') and 'swap' in op:
                self.defs = R[0] | R[1]; self.uses = R[0] | R[1]
            elif op.startswith('v_add_co') or op.startswith('v_sub_co') or op.startswith('v_addc_co'):
                self.defs = R[0] | R[1]; self.uses = set().union(*R[2:])
            elif op == 'v_nop':
                pass
            else:
                self.defs = R[0]; self.uses = set().union(*R[1:]) if len(R) > 1 else set()
                if op.startswith('v_dot2c') or op.startswith('v_fmac') or op.startswith('v_writelane') or 'UNUSED_PRESERVE' in rest:
                    self.uses |= R[0]
        elif self.is_vmem:
            if self.is_store or self.is_lds_dma or op in ('buffer_wbl2', 'buffer_inv'):
                self.uses = allr
                if self.is_lds_dma: self.uses |= {('s', 'm0')}
                if self.is_store:
                    self.data = R[0] if op.startswith('buffer_') else R[1]
                    if 'atomic' in op and re.search(r'\bsc0\b', rest): self.defs = R[0]
            else:
                self.defs = R[0]; self.uses = set().union(*R[1:])
        elif self.is_ds:
            if op.startswith('ds_read') or op.startswith('ds_bpermute') or op.startswith('ds_swizzle') or '_rtn' in op:
                self.defs = R[0]; self.uses = set().union(*R[1:])
            else:
                self.uses = allr
        elif self.is_salu:
            if op.startswith('s_cmp') or op in ('s_waitcnt', 's_barrier', 's_nop', 's_endpgm', 's_setprio', 's_sleep') or self.is_branch:
                self.uses = allr
            elif op.endswith('saveexec_b64'):
                self.defs = R[0] | {('s', 'exec')}; self.uses = set().union(*R[1:]) | {('s', 'exec')}
            else:
                self.defs = R[0] if R else set(); self.uses = set().union(*R[1:]) if len(R) > 1 else set()
    def states(self):
        if self.op is None: return 0
        if self.op == 's_nop': return int(self.ops[0]) + 1
        return 1

def vg(s): return {r for r in s if r[0] in 'va'}
def sg(s): return {r for r in s if r[0] == 's'}

def need(p, c):
    n = 0
    if p.op is None or c.op is None: return 0
    pv = vg(p.defs); ps = sg(p.defs)
    if p.is_valu:
        if ps:
            if c.is_vmem and (ps & c.uses): n = max(n, 5)
            if c.is_valu and (ps & c.uses): n = max(n, 4 if ('readlane' in c.op or 'writelane' in c.op) else 2)
            if c.is_salu and (ps & c.uses): n = max(n, 1)
            if ('s', 'exec') in ps and (c.is_mfma or c.op.startswith('v_permlane') or 'readlane' in c.op or 'readfirstlane' in c.op): n = max(n, 4)
            if ('s', 'exec') in ps and 'dpp' in c.text: n = max(n, 5)
        if pv:
            if c.is_mfma and (pv & c.uses): n = max(n, 2)
            if c.is_valu and c.op.startswith('v_permlane') and (pv & c.uses): n = max(n, 2)
            if c.is_valu and ('row_' in c.text or 'quad_perm' in c.text or 'dpp' in c.op) and (pv & c.uses): n = max(n, 2)
            if c.is_valu and ('readlane' in c.op or 'readfirstlane' in c.op) and (pv & c.uses): n = max(n, 1)
            if p.op in TRANS or p.op.replace('_e32','').replace('_e64','') in TRANS:
                if (c.is_valu or c.is_mfma or c.is_vmem or c.is_ds) and (pv & c.uses): n = max(n, 1)
            if p.op.startswith('v_dot'):
                if c.op == p.op:
                    srcab = set().union(*[regs_of(x) for x in c.ops[1:3]])
                    if pv & srcab: n = max(n, 3)
                elif (pv & (c.uses | c.defs)): n = max(n, 3)
            if ('sdwa' in p.op or 'op_sel' in p.text) and not p.op.startswith('v_pk') and c.is_valu and (pv & (c.uses | c.defs)): n = max(n, 1)
    if p.is_salu and ('s', 'm0') in ps and (c.is_lds_dma or 'addtid' in c.op): n = max(n, 1)
    if p.is_mfma:
        D = p.defs
        k = {2: 0, 4: 1, 8: 2, 16: 3}[p.passes]
        if c.is_mfma:
            if D & c.srcC:
                if c.srcC == D and c.passes == p.passes: n = max(n, [2, 0, 0, 0][k])
                else: n = max(n, [4, 6, 10, 18][k])
            if D & (c.srcA | c.srcB): n = max(n, [5, 8, 12, 20][k])
            if (D & c.defs) and not (D & c.srcC): n = max(n, [4, 6, 10, 18][k])
        elif c.is_valu or c.is_vmem or c.is_ds:
            if D & (c.uses | c.defs): n = max(n, [5, 8, 12, 20][k])
        if (c.is_valu) and (vg(p.srcC) & c.defs): n = max(n, [1, 3, 7, 15][k])
    if p.is_store and ('x4' in p.op or 'x3' in p.op):
        if (c.is_valu or c.is_mfma) and (p.data & c.defs): n = max(n, 2)
        elif (p.data & c.defs): n = max(n, 1)
    return n

def pad_hazards(lines, verbose=False):
    ins = [Ins(l) for l in lines]
    MAXW = 21
    total = 0
    while True:
        labels = {x.label: i for i, x in enumerate(ins) if x.label}
        preds = {}
        for i, x in enumerate(ins):
            if x.op and x.is_branch and x.target in labels:
                preds.setdefault(labels[x.target], []).append(i)
        pads = []
        for i, c in enumerate(ins):
            if c.op is None: continue
            worst = 0
            stack = [(i - 1, 0)] if i > 0 and ins[i - 1].op not in ('s_branch', 's_endpgm', 's_setpc_b64') else []
            seen = set()
            while stack:
                j, dist = stack.pop()
                while j >= 0 and dist < MAXW:
                    if (j, dist) in seen: break
                    seen.add((j, dist))
                    p = ins[j]
                    if p.label:
                        for b in preds.get(j, []):
                            stack.append((b, dist))
                    if p.op:
                        nn = need(p, c)
                        if nn - dist > worst: worst = nn - dist
                        dist += p.states()
                    if j - 1 >= 0 and ins[j - 1].op in ('s_branch', 's_endpgm', 's_setpc_b64'):
                        break
                    j -= 1
            if worst > 0:
                if pads and i - pads[-1][0] < MAXW + 2: continue
                pads.append((i, worst))
        if not pads: break
        for i, worst in reversed(pads):
            if verbose: print("pad", worst, "before", ins[i].text.strip())
            w = worst
            while w > 0:
                n = min(w, 16)
                ins.insert(i, Ins(f"    s_nop {n - 1}")); w -= n
            total += worst
    return [x.text for x in ins], total

class K:
    def __init__(self, name):
        self.name = name
        self.lines = []
        self.nv = 0; self.na = 0; self.ns = 0
        self.vnext = 1; self.snext = 3; self.anext = 0
        self.uid = 0
    def v(self, n=1, align=None):
        al = align or (2 if n >= 2 else 1)
        self.vnext = (self.vnext + al - 1) // al * al
        r = self.vnext; self.vnext += n
        return r
    def a(self, n=1):
        r = self.anext; self.anext += n
        return r
    def s(self, n=1, align=None):
        al = align or (4 if n >= 4 else (2 if n >= 2 else 1))
        self.snext = (self.snext + al - 1) // al * al
        r = self.snext; self.snext += n
        assert self.snext <= 100, "out of sgprs"
        return r
    def __call__(self, text):
        for l in text.split('\n'):
            l = l.strip()
            if not l: continue
            if l.endswith(':'): self.lines.append(l)
            else: self.lines.append('    ' + l)
    STAMP = False
    kidx = 0
    def stamp(self, i, real=False):
        if not K.STAMP: return
        if not hasattr(self, 'sT'): self.sT = 80
        self(f"s_memtime s[{self.sT+2*i}:{self.sT+2*i+1}]")
    def stamp_real(self, i):
        if not K.STAMP: return
        if not hasattr(self, 'sT'): self.sT = 80
        self(f"s_memrealtime s[{self.sT+2*i}:{self.sT+2*i+1}]")
    def stamp_flush(self, srd, s_w, nst=8):
        if not K.STAMP: return
        self.stamp_real(nst - 1)
        self("s_mov_b64 exec, -1\ns_waitcnt lgkmcnt(0) vmcnt(0)")
        self("s_nop 7\ns_nop 7")
        for i in range(nst): self(f"v_mov_b32 v{2+i}, s{self.sT+2*i}")
        self(f"s_lshl_b32 s78, s2, 4\ns_add_u32 s78, s78, s{s_w}\ns_lshl_b32 s78, s78, 5\ns_add_u32 s78, s78, {0x1B40000 + self.kidx * 0x20000}")
        self(f"v_mov_b32 v1, 0\ns_mov_b64 exec, 1")
        self(f"buffer_store_dwordx4 v[2:5], v1, s[{srd}:{srd+3}], s78 offen")
        self(f"buffer_store_dwordx4 v[6:9], v1, s[{srd}:{srd+3}], s78 offen offset:16")
    def label(self, base):
        self.uid += 1
        return f"L_{self.name}_{base}_{self.uid}"
    def finish(self, verbose=False):
        lines, tot = pad_hazards(self.lines, verbose)
        maxv = maxa = maxs = -1
        for l in lines:
            for r in regs_of(l.split(';')[0]):
                if isinstance(r[1], int):
                    if r[0] == 'v': maxv = max(maxv, r[1])
                    if r[0] == 'a': maxa = max(maxa, r[1])
                    if r[0] == 's': maxs = max(maxs, r[1])
        assert maxv < 256 and maxa < 256 and maxs < 102
        maxv = max(maxv, 3)
        acc = (maxv + 1 + 3) // 4 * 4
        nfv = acc + maxa + 1 if maxa >= 0 else maxv + 1
        head = f".globl {self.name}\n.p2align 8\n.type {self.name},@function\n{self.name}:\n"
        body = "\n".join(lines) + "\n"
        desc = f""".amdhsa_kernel {self.name}
  .amdhsa_next_free_vgpr {nfv}
  .amdhsa_next_free_sgpr {max(maxs + 1, 16)}
  .amdhsa_accum_offset {acc}
  .amdhsa_group_segment_fixed_size 0
  .amdhsa_kernarg_size 80
  .amdhsa_user_sgpr_count 2
  .amdhsa_user_sgpr_kernarg_segment_ptr 1
  .amdhsa_system_sgpr_workgroup_id_x 1
.end_amdhsa_kernel
"""
        self.info = dict(nfv=nfv, acc=acc, sgpr=maxs + 1, nops=tot, ninstr=sum(1 for l in lines if l.startswith('    ')))
        return head + body, desc

def vr(b, n=1): return f"v{b}" if n == 1 else f"v[{b}:{b+n-1}]"
def ar(b, n=1): return f"a{b}" if n == 1 else f"a[{b}:{b+n-1}]"
def sr(b, n=1): return f"s{b}" if n == 1 else f"s[{b}:{b+n-1}]"
```

```python
from asmlib import *
from layout import *

def srd(k, s, base_lo, base_hi, size):
    k(f"s_mov_b32 s{s}, s{base_lo}\ns_mov_b32 s{s+1}, s{base_hi}")
    k(f"s_mov_b32 s{s+2}, {size}\ns_mov_b32 s{s+3}, 0x20000")

def gen_k1(rot=True, nostat=False, cprio=2):
    k = K("k1_qkv_kernel")
    SLOT = 32768; NS = 4
    sP = k.s(4); sWS = k.s(2)
    sX = k.s(4); sW = k.s(4); sO = k.s(4)
    s_w = k.s(); s_tb = k.s(); s_cg = k.s(); s_t0 = k.s(); s_t1 = k.s(); s_t2 = k.s()
    s_ox = k.s(); s_ow = k.s(); s_m0x = k.s(); s_slot = k.s(); s_cnt = k.s(); s_delta = k.s(); s_rs = k.s(); s_msk = k.s()
    vl = k.v(); vt = [k.v() for _ in range(6)]
    vXA = [[k.v() for _ in range(4)] for _ in range(2)]
    vWA = [k.v() for _ in range(2)]
    vbase = k.vnext
    L_end = k.label("end"); L_spare = k.label("spare"); L_v = k.label("vpath"); L_help = k.label("help")
    NM, RS, CS = 0, 512, 1024
    k.kidx = 0; k.stamp_real(0); k.stamp(1)
    k(f"""s_load_dwordx4 {sr(sP,4)}, s[0:1], {KA_X}
    s_load_dwordx2 {sr(sWS,2)}, s[0:1], {KA_WS}
    s_cmp_ge_u32 s2, 256
    s_cbranch_scc1 {L_end}
    v_lshrrev_b32 v{vt[0]}, 6, v0
    v_and_b32 v{vl}, 63, v0
    v_readfirstlane_b32 s{s_w}, v{vt[0]}
    s_and_b32 s{s_t0}, s2, 3
    s_lshl_b32 s{s_t0}, s{s_t0}, 2
    s_bfe_u32 s{s_t1}, s2, 0x20003
    s_add_u32 s{s_tb}, s{s_t0}, s{s_t1}
    s_bfe_u32 s{s_t0}, s2, 0x10002
    s_lshl_b32 s{s_t0}, s{s_t0}, 3
    s_lshr_b32 s{s_t1}, s2, 5
    s_add_u32 s{s_cg}, s{s_t0}, s{s_t1}
    s_cmp_eq_u32 s{s_cg}, 15
    s_cbranch_scc1 {L_spare}
    s_mov_b32 s{s_msk}, 0xffff0000
    s_cmp_lt_u32 s{s_w}, 4
    s_cbranch_scc1 {L_help}
    s_setprio {cprio}
    s_sub_u32 s{s_w}, s{s_w}, 4""")
    def xaddr(mts):
        k(f"""v_and_b32 v{vt[0]}, 31, v{vl}
        v_lshrrev_b32 v{vt[1]}, 5, v{vl}
        v_bfe_u32 v{vt[2]}, v{vl}, 1, 3
        v_xor_b32 v{vt[2]}, v{vt[2]}, v{vt[1]}
        v_lshlrev_b32 v{vt[2]}, 4, v{vt[2]}
        v_lshl_add_u32 v{vt[2]}, v{vt[0]}, 7, v{vt[2]}""")
    def advance(regs):
        k(f"s_cmp_eq_u32 s{s_slot}, {(NS-1)*SLOT}\ns_mov_b32 s{s_delta}, {SLOT}")
        k(f"s_cselect_b32 s{s_delta}, {(-(NS-1)*SLOT) & 0xffffffff}, s{s_delta}")
        k(f"s_add_u32 s{s_slot}, s{s_slot}, s{s_delta}")
        return [f"v_add_u32 v{r}, s{s_delta}, v{r}" for r in regs]
    acc = [[k.v(16, 4) for _ in range(2)] for _ in range(2)]
    fx = [[k.v(4, 4) for _ in range(2)] for _ in range(2)]
    fw = [[k.v(4, 4) for _ in range(2)] for _ in range(2)]
    vcs = k.v(2); vu = [k.v(2), k.v(2)]
    xaddr(2)
    k(f"""s_lshr_b32 s{s_t0}, s{s_w}, 1
    s_and_b32 s{s_t1}, s{s_w}, 1
    s_lshl_b32 s{s_t2}, s{s_t0}, 13
    v_add_u32 v{vXA[0][0]}, s{s_t2}, v{vt[2]}""")
    for s in range(1, 4): k(f"v_xor_b32 v{vXA[0][s]}, {32*s}, v{vXA[0][0]}")
    k(f"""v_bfe_u32 v{vt[2]}, v{vl}, 2, 2
    v_lshl_add_u32 v{vt[3]}, v{vt[1]}, 3, v{vt[2]}
    v_lshlrev_b32 v{vt[3]}, 8, v{vt[3]}
    s_lshl_b32 s{s_t2}, s{s_t1}, 1
    s_add_u32 s{s_t2}, s{s_t2}, s{s_t0}
    v_xor_b32 v{vt[2]}, s{s_t2}, v{vt[2]}
    v_lshl_add_u32 v{vt[3]}, v{vt[2]}, 6, v{vt[3]}
    v_bfe_u32 v{vt[2]}, v{vl}, 4, 1
    v_lshl_add_u32 v{vt[3]}, v{vt[2]}, 5, v{vt[3]}
    v_and_b32 v{vt[2]}, 3, v{vl}
    v_lshl_add_u32 v{vt[3]}, v{vt[2]}, 3, v{vt[3]}
    v_add_u32 v{vWA[0]}, 16384, v{vt[3]}
    v_xor_b32 v{vWA[1]}, 64, v{vWA[0]}
    v_mov_b32 v{vcs}, 0
    v_mov_b32 v{vcs+1}, 0
    s_mov_b32 s{s_slot}, 0""")
    def reads(buf, s):
        out = []
        for mt in range(2):
            out.append(f"ds_read_b128 {vr(fx[buf][mt],4)}, v{vXA[0][s]} offset:{mt*4096}")
        for nt in range(2):
            for rd in range(2):
                out.append(f"ds_read_b64_tr_b16 {vr(fw[buf][nt]+2*rd,2)}, v{vWA[nt]} offset:{(16*s+4*rd)*256}")
        return [out[2], out[3], out[0], out[1], out[4], out[5]]
    def kstep(buf, vpath, rd, extra=[], first=False):
        m = []
        for nt in range(2):
            for mt in range(2):
                a, b = (fx[buf][mt], fw[buf][nt]) if vpath else (fw[buf][nt], fx[buf][mt])
                m.append(f"v_mfma_f32_32x32x16_bf16 {vr(acc[nt][mt],16)}, {vr(a,4)}, {vr(b,4)}, {'0' if first else vr(acc[nt][mt],16)}")
        d = []
        if not nostat:
            for i in range(4):
                u = vu[i & 1]
                d += [f"v_lshlrev_b32 v{u}, 16, v{fw[buf][0]+i}", f"v_and_b32 v{u+1}, s{s_msk}, v{fw[buf][0]+i}",
                      f"v_add_f32 v{vcs}, v{vcs}, v{u}", f"v_add_f32 v{vcs+1}, v{vcs+1}, v{u+1}"]
        fill = [[] for _ in range(4)]
        for i, x in enumerate(rd): fill[i // 3].append(x)
        for i, x in enumerate(extra): fill[2 + (i & 1)].append(x)
        for i, x in enumerate(d): fill[[0, 0, 1, 1, 1, 2, 2, 2, 2, 2, 3, 3, 3, 3, 3, 3][i]].append(x)
        for i in range(4):
            k(m[i])
            for x in fill[i]: k(x)
    def chunk(vpath, last, first=False):
        for s in range(3):
            k("s_waitcnt lgkmcnt(0)")
            kstep(s & 1, vpath, reads((s + 1) & 1, s + 1), first=first and s == 0)
        k("s_waitcnt lgkmcnt(0)")
        if last:
            kstep(1, vpath, [])
            return
        k("s_barrier")
        ad = advance([vXA[0][0], vWA[0], vWA[1], vXA[0][1], vXA[0][2], vXA[0][3]])
        for x in ad[:3]: k(x)
        kstep(1, vpath, reads(0, 0), ad[3:])
    def mainloop(vpath):
        k.stamp(2)
        k("s_barrier")
        k.stamp(3)
        for x in reads(0, 0): k(x)
        chunk(vpath, False, first=True)
        L = k.label("loop")
        k(f"s_mov_b32 s{s_cnt}, 8\n{L}:")
        chunk(vpath, False)
        k(f"s_sub_u32 s{s_cnt}, s{s_cnt}, 1\ns_cmp_lg_u32 s{s_cnt}, 0\ns_cbranch_scc1 {L}")
        chunk(vpath, True)
    def epilogue(vpath):
        t = vt
        k.stamp(4)
        k(f"""v_add_f32 v{vcs}, v{vcs}, v{vcs+1}
        v_and_b32 v{t[0]}, 31, v{vl}
        v_mov_b32 v{vcs+1}, v{vcs}
        s_lshl_b32 s{s_t2}, s{s_t2}, 7
        v_lshl_add_u32 v{t[2]}, v{t[0]}, 2, s{s_t2}
        v_permlane32_swap_b32 v{vcs+1}, v{vcs}
        s_lshl_b32 s{s_ow}, s{s_t0}, 8
        v_lshl_add_u32 v{t[1]}, v{t[0]}, 2, s{s_ow}
        v_add_f32 v{vcs}, v{vcs}, v{vcs+1}
        s_waitcnt lgkmcnt(0)
        ds_write_b32 v{t[2]}, v{vcs} offset:{CS}""")
        if WSOFF: k(f"s_add_u32 s{sWS}, s{sWS}, {WSOFF}\ns_addc_u32 s{sWS+1}, s{sWS+1}, 0")
        srd(k, sO, sWS, sWS + 1, WSEND)
        la = fx[0][0]; rg = k.v(32, 4); hoff = t[3]
        k(f"""v_lshrrev_b32 v{hoff}, 5, v{vl}
        v_lshlrev_b32 v{hoff}, 4, v{hoff}
        s_waitcnt lgkmcnt(0)
        s_barrier""")
        k.stamp(5)
        if not vpath:
            k(f"""ds_read_b32 v{la+0}, v{t[1]} offset:{NM}
            ds_read_b32 v{la+2}, v{t[1]} offset:{RS}
            ds_read_b32 v{la+4}, v{t[1]} offset:{NM+128}
            ds_read_b32 v{la+6}, v{t[1]} offset:{RS+128}
            v_add_u32 v{t[5]}, s{s_t2}, v{hoff}
            v_xor_b32 v{t[4]}, 128, v{t[5]}""")
            for nt in range(2):
                for j in range(4):
                    k(f"ds_read_b128 {vr(rg+16*nt+4*j,4)}, v{t[5] if nt==0 else t[4]} offset:{CS+32*j}")
            k(f"""v_lshlrev_b32 v{t[0]}, 4, v{t[0]}
            v_lshl_add_u32 v{t[0]}, v{hoff}, 11, v{t[0]}
            s_lshl_b32 s{s_ox}, s{s_cg}, 19
            s_lshl_b32 s{s_ow}, s{s_t2}, 10
            s_add_u32 s{s_ox}, s{s_ox}, s{s_ow}
            s_lshl_b32 s{s_ow}, s{s_tb}, 11
            s_add_u32 s{s_ox}, s{s_ox}, s{s_ow}
            s_lshl_b32 s{s_ow}, s{s_t0}, 10
            s_add_u32 s{s_ox}, s{s_ox}, s{s_ow}
            s_waitcnt lgkmcnt(0)
            v_mov_b32 v{la+1}, v{la+0}
            v_mov_b32 v{la+3}, v{la+2}
            v_mov_b32 v{la+5}, v{la+4}
            v_mov_b32 v{la+7}, v{la+6}""")
            for nt in range(2):
                for mt in range(2):
                    A = acc[nt][mt]
                    for p in range(8):
                        k(f"v_pk_fma_f32 {vr(A+2*p,2)}, {vr(rg+16*nt+2*p,2)}, {vr(la+4*mt,2)}, {vr(A+2*p,2)}")
                    for p in range(8):
                        k(f"v_pk_mul_f32 {vr(A+2*p,2)}, {vr(A+2*p,2)}, {vr(la+4*mt+2,2)}")
                    for p in range(8):
                        k(f"v_cvt_pk_bf16_f32 v{A+p}, v{A+2*p}, v{A+2*p+1}")
                    k(f"s_xor_b32 s{s_ow}, s{s_ox}, {(nt*4*32768) | (mt*512)}")
                    k(f"s_add_u32 s{s_rs}, s{s_ow}, {2*32768}")
                    for jp in range(2):
                        k(f"v_permlane32_swap_b32 v{A+4*jp}, v{A+4*jp+2}\nv_permlane32_swap_b32 v{A+4*jp+1}, v{A+4*jp+3}")
                    k(f"buffer_store_dwordx4 {vr(A,4)}, v{t[0]}, {sr(sO,4)}, s{s_ow} offen")
                    k(f"buffer_store_dwordx4 {vr(A+4,4)}, v{t[0]}, {sr(sO,4)}, s{s_rs} offen")
        else:
            rg2 = k.v(32, 4)
            k(f"""v_xor_b32 v{t[4]}, 128, v{t[2]}
            ds_read_b32 v{la+0}, v{t[2]} offset:{CS}
            ds_read_b32 v{la+2}, v{t[4]} offset:{CS}
            v_add_u32 v{t[5]}, s{s_ow}, v{hoff}""")
            for mt in range(2):
                for j in range(4):
                    k(f"ds_read_b128 {vr(rg+16*mt+4*j,4)}, v{t[5]} offset:{NM+128*mt+32*j}")
                    k(f"ds_read_b128 {vr(rg2+16*mt+4*j,4)}, v{t[5]} offset:{RS+128*mt+32*j}")
            va = [la + 4, la + 5]
            k(f"""s_sub_u32 s{s_ox}, s{s_cg}, 10
            s_lshl_b32 s{s_ox}, s{s_ox}, 7
            s_lshr_b32 s{s_ow}, s{s_t2}, 2
            s_add_u32 s{s_ox}, s{s_ox}, s{s_ow}
            v_add_u32 v{t[0]}, s{s_ox}, v{t[0]}
            v_mul_u32_u24 v{hoff}, 21, v{hoff}""")
            for nt in range(2):
                if nt == 1: k(f"v_xor_b32 v{t[0]}, 32, v{t[0]}")
                k(f"""v_mul_u32_u24 v{t[1]}, 3277, v{t[0]}
                v_lshrrev_b32 v{t[1]}, 16, v{t[1]}
                v_mul_u32_u24 v{t[2]}, {VHEAD - 320}, v{t[1]}
                v_lshl_add_u32 v{t[2]}, v{t[0]}, 4, v{t[2]}
                v_add_u32 v{va[nt]}, v{t[2]}, v{hoff}""")
            k(f"""s_lshl_b32 s{s_ox}, s{s_tb}, 1
            s_add_u32 s{s_ox}, s{s_ox}, s{s_t0}
            s_mul_i32 s{s_ox}, s{s_ox}, 2688
            s_add_u32 s{s_ox}, s{s_ox}, {VIMG}
            s_waitcnt lgkmcnt(0)
            v_mov_b32 v{la+1}, v{la+0}
            v_mov_b32 v{la+3}, v{la+2}""")
            for nt in range(2):
                for mt in range(2):
                    A = acc[nt][mt]
                    for p in range(8):
                        k(f"v_pk_fma_f32 {vr(A+2*p,2)}, {vr(rg+16*mt+2*p,2)}, {vr(la+2*nt,2)}, {vr(A+2*p,2)}")
                    for p in range(8):
                        k(f"v_pk_mul_f32 {vr(A+2*p,2)}, {vr(A+2*p,2)}, {vr(rg2+16*mt+2*p,2)}")
                    for p in range(8):
                        k(f"v_cvt_pk_bf16_f32 v{A+p}, v{A+2*p}, v{A+2*p+1}")
                    k(f"buffer_store_dwordx4 {vr(A,4)}, v{va[nt]}, {sr(sO,4)}, s{s_ox} offen offset:{1344*mt}")
                    k(f"buffer_store_dwordx4 {vr(A+4,4)}, v{va[nt]}, {sr(sO,4)}, s{s_ox} offen offset:{1344*mt+672}")
        k.stamp(6); k.stamp_flush(sO, s_w)
        k("s_endpgm")
    k(f"s_cmp_ge_u32 s{s_cg}, 10\ns_cbranch_scc1 {L_v}")
    vsave = k.vnext
    mainloop(False); epilogue(False)
    k.vnext = vsave
    k(f"{L_v}:")
    mainloop(True); epilogue(True)
    k.vnext = vbase
    vX = [k.v() for _ in range(4)]; vW = [k.v() for _ in range(4)]
    hx = [k.v(16, 4), k.v(16, 4)]; vsum = k.v(2); vsq = k.v(2); hu = [k.v(2), k.v(2)]
    k(f"""{L_help}:
    v_lshrrev_b32 v{vt[0]}, 3, v{vl}
    s_lshl_b32 s{s_t0}, s{s_w}, 5
    v_add_u32 v{vt[0]}, s{s_t0}, v{vt[0]}
    v_mul_u32_u24 v{vt[0]}, 1280, v{vt[0]}
    v_lshrrev_b32 v{vt[1]}, 4, v{vl}
    v_and_b32 v{vt[2]}, 7, v{vl}
    v_xor_b32 v{vt[2]}, v{vt[2]}, v{vt[1]}
    v_lshl_add_u32 v{vX[0]}, v{vt[2]}, 4, v{vt[0]}
    v_xor_b32 v{vX[1]}, 64, v{vX[0]}
    v_add_u32 v{vX[2]}, {2*(8*1280-1024)}, v{vX[0]}
    v_add_u32 v{vX[1]}, {8*1280-1024}, v{vX[1]}
    v_add_u32 v{vX[3]}, {2*(8*1280-1024)}, v{vX[1]}
    s_lshl_b32 s{s_t0}, s{s_w}, 4
    v_add_u32 v{vt[0]}, s{s_t0}, v{vt[1]}
    v_mul_u32_u24 v{vt[0]}, 3840, v{vt[0]}
    v_and_b32 v{vt[2]}, 15, v{vl}
    v_lshlrev_b32 v{vt[3]}, 2, v{vt[1]}
    v_xor_b32 v{vt[2]}, v{vt[2]}, v{vt[3]}
    v_lshl_add_u32 v{vW[0]}, v{vt[2]}, 4, v{vt[0]}
    v_add_u32 v{vW[1]}, {4*3840-1024}, v{vW[0]}
    v_add_u32 v{vW[2]}, {2*(4*3840-1024)}, v{vW[0]}
    v_add_u32 v{vW[3]}, {3*(4*3840-1024)}, v{vW[0]}
    s_mul_i32 s{s_t0}, s{s_tb}, {128*1280}
    s_lshl_b32 s{s_t1}, s{s_cg}, 8
    s_lshl_b32 s{s_m0x}, s{s_w}, 12""")
    if rot:
        k(f"s_and_b32 s{s_t2}, s2, 7\ns_lshl_b32 s{s_ox}, s{s_t2}, 7\ns_mul_i32 s{s_ow}, s{s_t2}, {64*3840}")
    else:
        k(f"s_mov_b32 s{s_ox}, 0\ns_mov_b32 s{s_ow}, 0")
    k(f"""s_waitcnt lgkmcnt(0)
    s_add_u32 s{sX}, s{sP}, s{s_t0}
    s_addc_u32 s{sX+1}, s{sP+1}, 0
    s_mov_b32 s{sX+2}, {128*1280}
    s_mov_b32 s{sX+3}, 0x20000
    s_add_u32 s{sW}, s{sP+2}, s{s_t1}
    s_addc_u32 s{sW+1}, s{sP+3}, 0
    s_sub_u32 s{sW+2}, {640*3840}, s{s_t1}
    s_mov_b32 s{sW+3}, 0x20000""")
    def dma_chunk(slot_const=None):
        if slot_const is not None: k(f"s_add_u32 m0, s{s_m0x}, {slot_const*SLOT}")
        else: k(f"s_add_u32 m0, s{s_m0x}, s{s_rs}")
        k(f"s_add_u32 s{s_t0}, s{s_ox}, 128")
        for i in range(4):
            k(f"buffer_load_dwordx4 v{vX[i]}, {sr(sX,4)}, s{s_ox} offen offset:{i*1024} lds")
        k(f"s_add_u32 m0, m0, 16384\ns_add_u32 s{s_t1}, s{s_ow}, {64*3840}")
        for i in range(4):
            k(f"buffer_load_dwordx4 v{vW[i]}, {sr(sW,4)}, s{s_ow} offen offset:{i*1024} lds")
        k(f"""s_cmp_eq_u32 s{s_t0}, 1280
        s_cselect_b32 s{s_ox}, 0, s{s_t0}
        s_cselect_b32 s{s_ow}, 0, s{s_t1}""")
    dma_chunk(0); dma_chunk(1)
    xaddr(1)
    k(f"v_add_u32 v{vXA[0][0]}, s{s_m0x}, v{vt[2]}")
    for s in range(1, 4): k(f"v_xor_b32 v{vXA[0][s]}, {32*s}, v{vXA[0][0]}")
    k(f"""v_mov_b32 v{vsum}, 0
    v_mov_b32 v{vsum+1}, 0
    v_mov_b32 v{vsq}, 0
    v_mov_b32 v{vsq+1}, 0
    s_mov_b32 s{s_slot}, 0
    s_mov_b32 s{s_rs}, {3*SLOT}
    s_waitcnt vmcnt(8)
    s_barrier""")
    def hreads(buf):
        for s in range(4): k(f"ds_read_b128 {vr(hx[buf]+4*s,4)}, v{vXA[0][s]}")
    def hstats(buf):
        if nostat: return
        for i in range(16):
            u = hu[i & 1]
            k(f"""v_lshlrev_b32 v{u}, 16, v{hx[buf]+i}
            v_and_b32 v{u+1}, s{s_msk}, v{hx[buf]+i}
            v_add_f32 v{vsum}, v{vsum}, v{u}
            v_add_f32 v{vsum+1}, v{vsum+1}, v{u+1}
            v_fmac_f32 v{vsq}, v{u}, v{u}
            v_fmac_f32 v{vsq+1}, v{u+1}, v{u+1}""")
    hreads(0)
    dma_chunk(2)
    def hiter(buf, dma, vm):
        k(f"s_waitcnt vmcnt({vm}) lgkmcnt(0)\ns_barrier")
        for x in advance(vXA[0]): k(x)
        hreads(buf ^ 1)
        if dma:
            dma_chunk()
            k(f"s_add_u32 s{s_rs}, s{s_rs}, {SLOT}\ns_and_b32 s{s_rs}, s{s_rs}, {NS*SLOT-1}")
        hstats(buf)
    L = k.label("hloop")
    hiter(0, True, 8)
    k(f"s_mov_b32 s{s_cnt}, 3\n{L}:")
    hiter(1, True, 8); hiter(0, True, 8)
    k(f"s_sub_u32 s{s_cnt}, s{s_cnt}, 1\ns_cmp_lg_u32 s{s_cnt}, 0\ns_cbranch_scc1 {L}")
    hiter(1, False, 8); hiter(0, False, 0)
    k("s_waitcnt lgkmcnt(0)")
    hstats(1)
    t = vt
    k(f"""v_add_f32 v{vsum}, v{vsum}, v{vsum+1}
    v_add_f32 v{vsq}, v{vsq}, v{vsq+1}
    v_mov_b32 v{vsum+1}, v{vsum}
    v_mov_b32 v{vsq+1}, v{vsq}
    v_and_b32 v{t[0]}, 31, v{vl}
    s_lshl_b32 s{s_t2}, s{s_w}, 7
    v_permlane32_swap_b32 v{vsum+1}, v{vsum}
    v_permlane32_swap_b32 v{vsq+1}, v{vsq}
    v_add_f32 v{vsum}, v{vsum}, v{vsum+1}
    v_add_f32 v{vsq}, v{vsq}, v{vsq+1}
    v_mul_f32 v{vsum}, {f2u(-1.0/640):#x}, v{vsum}
    v_mul_f32 v{vsq}, {f2u(1.0/640):#x}, v{vsq}
    v_fma_f32 v{vsq}, -v{vsum}, v{vsum}, v{vsq}
    v_max_f32 v{vsq}, 0, v{vsq}
    v_add_f32 v{vsq}, {f2u(1e-5):#x}, v{vsq}
    v_rsq_f32 v{vsq}, v{vsq}
    s_cmp_lt_u32 s{s_cg}, 5
    s_cselect_b32 s{s_t1}, {f2u(QSCALE):#x}, 1.0
    v_lshl_add_u32 v{t[1]}, v{t[0]}, 2, s{s_t2}
    v_mul_f32 v{vsq}, s{s_t1}, v{vsq}
    ds_write_b32 v{t[1]}, v{vsum} offset:{NM}
    ds_write_b32 v{t[1]}, v{vsq} offset:{RS}
    s_waitcnt lgkmcnt(0)
    s_barrier
    s_endpgm""")
    k(f"{L_spare}:\ns_waitcnt lgkmcnt(0)")
    if WSOFF: k(f"s_add_u32 s{sWS}, s{sWS}, {WSOFF}\ns_addc_u32 s{sWS+1}, s{sWS+1}, 0")
    srd(k, sO, sWS, sWS + 1, WSEND)
    srd(k, sX, sWS, sWS + 1, CSG + ZERO_BYTES)
    o = hx[0]
    k(f"""s_lshl_b32 s{s_t0}, s{s_tb}, 1
    s_mul_i32 s{s_t0}, s{s_t0}, {VHEAD}
    s_add_u32 s{s_t0}, s{s_t0}, {VIMG + 320}
    v_mul_u32_u24 v{vt[0]}, 336, v0
    v_lshlrev_b32 v{vt[1]}, 4, v0
    s_lshl_b32 s{s_t1}, s{s_tb}, 13
    s_add_u32 s{s_t1}, s{s_t1}, {CSG}""")
    for i in range(4): k(f"v_mov_b32 v{o+i}, 0x3f803f80\nv_mov_b32 v{o+4+i}, 0")
    k(f"""buffer_store_dwordx4 {vr(o,4)}, v{vt[0]}, {sr(sO,4)}, s{s_t0} offen
    buffer_store_dwordx4 {vr(o+4,4)}, v{vt[1]}, {sr(sX,4)}, s{s_t1} offen
    {L_end}:
    s_endpgm""")
    return k, (256, 512, NS * SLOT)
```

```python
QKP   = 0x0000000
VIMG  = 0x0500000
VHEAD = 86016
OIMG  = 0x07C0000
HIMG  = 0x0A40000
STATS = 0x0CC0000
CSG   = 0x0CE0000
FLG   = 0x0CE4000
F2, F3, F4, FP = FLG, FLG + 0x400, FLG + 0xC00, FLG + 0x1400
ZERO_BYTES = 0x5800
ACT   = 0x0D00000
WOP   = 0x13C0000
WGUP  = 0x14A0000
WDP   = 0x1900000
STAMPS = 0x1B40000
WSEND = 0x1C40000
KA_X, KA_WQKV, KA_WO, KA_BX, KA_WG, KA_WU, KA_WD, KA_OUT, KA_DBG, KA_WS = 0, 8, 16, 24, 32, 40, 48, 56, 64, 72
import math, struct
def f2u(x): return struct.unpack('<I', struct.pack('<f', x))[0]
QSCALE = (20 ** -0.5) * math.log2(math.e)
assert VIMG + 32 * VHEAD + 4096 <= OIMG and OIMG + 128 * 20480 <= HIMG and HIMG + 64 * 40960 <= STATS
assert ACT + 128 * 55296 <= WOP and WOP + 819200 <= WGUP and WGUP + 40 * 112 * 1024 <= WDP and WDP + 8 * 54 * 5120 <= STAMPS
import os
WSOFF = int(os.environ.get('WSOFF', '0'), 0)
```

```python
from asmlib import *
from layout import *
from k1 import srd
M16 = "v_mfma_f32_32x32x16_bf16"
M8 = "v_mfma_f32_32x32x8_bf16"
MF = "v_mfma_f32_16x16x32_bf16"
LDS_ALL = 163840

class Ctx:
    def __init__(self, name, fused):
        self.k = k = K(name); self.fused = fused
        self.sc = " sc1" if fused else ""
        self.sWS = k.s(2); self.sO = k.s(4); self.s_w = k.s(); self.s_wl = k.s()
        self.vl = k.v(); self.vl16 = k.v()
        self.L_end = k.label("end")
        self.s0 = k.snext; self.v0 = k.vnext
    def reset(self):
        self.k.snext = self.s0; self.k.vnext = self.v0; self.k.anext = 0
    def entry(self, kidx, extra_loads=""):
        k = self.k
        k.kidx = kidx; k.stamp_real(0); k.stamp(1)
        k(f"""s_load_dwordx2 {sr(self.sWS,2)}, s[0:1], {KA_WS}""")
        k(extra_loads)
        k(f"""s_cmp_ge_u32 s2, 256
        s_cbranch_scc1 {self.L_end}
        v_lshrrev_b32 v{self.vl16}, 6, v0
        v_and_b32 v{self.vl}, 63, v0
        v_readfirstlane_b32 s{self.s_w}, v{self.vl16}
        v_lshlrev_b32 v{self.vl16}, 4, v{self.vl}
        s_and_b32 s{self.s_wl}, s{self.s_w}, 3""")
    def ws_srd(self):
        self.k("s_waitcnt lgkmcnt(0)")
        if WSOFF: self.k(f"s_add_u32 s{self.sWS}, s{self.sWS}, {WSOFF}\ns_addc_u32 s{self.sWS+1}, s{self.sWS+1}, 0")
        srd(self.k, self.sO, self.sWS, self.sWS + 1, WSEND)
    def finish(self):
        k = self.k
        k.stamp(6); k.stamp_flush(self.sO, self.s_w)
        k(f"{self.L_end}:\ns_endpgm")
    def signal(self, s_off, vtmp):
        k = self.k
        k(f"""v_mov_b32 v{vtmp}, 1
        v_mov_b32 v{vtmp+1}, 0
        s_mov_b64 exec, 1
        buffer_store_dword v{vtmp}, v{vtmp+1}, {sr(self.sO,4)}, s{s_off} offen sc1
        s_mov_b64 exec, -1""")
    def poll(self, s_off, n, vtmp, stmp):
        k = self.k
        L = k.label("poll"); Lx = k.label("pollx")
        k(f"""v_and_b32 v{vtmp}, {n-1}, v{self.vl}
        v_lshlrev_b32 v{vtmp}, 2, v{vtmp}
        s_mov_b32 s{stmp}, 0
        {L}:
        buffer_load_dword v{vtmp+1}, v{vtmp}, {sr(self.sO,4)}, s{s_off} offen sc1
        s_add_u32 s{stmp}, s{stmp}, 1
        s_cmp_gt_u32 s{stmp}, 0x40000
        s_cbranch_scc1 {Lx}
        s_waitcnt vmcnt(0)
        v_cmp_ne_u32 vcc, 0, v{vtmp+1}
        s_cmp_eq_u64 vcc, -1
        s_cbranch_scc0 {L}
        {Lx}:""")

def p2(c, prio=(16, 10, 4, 2), prep=True, cs_in=True):
    k = c.k; sO = c.sO; s_w = c.s_w; vl = c.vl; vl16 = c.vl16; sc = c.sc
    SL = 12288; VB = 3 * SL; PREP = 6 * SL
    sP = k.s(8); sWD = k.s(2); sA = k.s(4); sB = k.s(4)
    s_h = k.s(); s_pa = k.s(); s_pr = k.s(); s_odd8 = k.s(); s_tok = k.s()
    s_t0 = k.s(); s_t1 = k.s(); s_t2 = k.s(); s_t3 = k.s()
    so = [k.s() for _ in range(3)]; s_d = k.s(); s_mo = k.s(); s_ms = k.s()
    sG = k.s(2)
    sE = k.s(2); sF = k.s(2); p = [k.s() for _ in range(8)]
    vq = k.v(); vr31 = k.v(); vKA = k.v(); vKR = k.v(); vVA = k.v(); vPA = k.v(); vPS = k.v()
    vt = [k.v() for _ in range(6)]
    S = [k.v(16, 4), k.v(16, 4)]; O = k.v(16, 4); P = k.v(8, 4)
    Qm = k.v(4, 4); Qr = k.v(2); Km = k.v(4, 4); Kr = k.v(2); V0 = k.v(4, 4); V1 = [k.v(4, 4), k.v(4, 4)]
    PR = k.v(16, 4); C = S[1]; vcs = k.v(4, 2); vfp = k.v(4, 4)
    L_slow = k.label("slow"); L_store = k.label("store")
    c.entry(1, f"s_load_dwordx8 {sr(sP,8)}, s[0:1], {KA_WO}\ns_load_dwordx2 {sr(sWD,2)}, s[0:1], {KA_WD}")
    k(f"""s_and_b32 s{s_t0}, s2, 7
    s_lshl_b32 s{s_t0}, s{s_t0}, 2
    s_bfe_u32 s{s_t1}, s2, 0x20003
    s_add_u32 s{s_h}, s{s_t0}, s{s_t1}
    s_lshr_b32 s{s_t0}, s{s_h}, 1
    s_mul_i32 s{s_t0}, s{s_t0}, 5
    s_and_b32 s{s_t1}, s{s_h}, 1
    s_lshl_b32 s{s_odd8}, s{s_t1}, 3
    s_mul_i32 s{s_t1}, s{s_t1}, 3
    s_add_u32 s{s_pa}, s{s_t0}, s{s_t1}
    s_lshl_b32 s{s_pa}, s{s_pa}, 15
    s_add_u32 s{s_pr}, s{s_t0}, 2
    s_lshl_b32 s{s_pr}, s{s_pr}, 15
    s_lshl_b32 s{s_t0}, s{c.s_wl}, 10
    s_add_u32 s{s_t1}, s{s_t0}, {80*32768}
    s_add_u32 s{so[0]}, s{s_pa}, s{s_t1}
    s_add_u32 s{so[2]}, s{s_pr}, s{s_t1}
    s_mul_i32 s{s_t1}, s{c.s_wl}, 3072
    s_mul_i32 s{s_t2}, s{s_h}, {VHEAD}
    s_add_u32 s{s_t2}, s{s_t2}, s{s_t1}
    s_add_u32 s{s_t2}, s{s_t2}, {VIMG}
    s_add_u32 s{s_t3}, s{s_t2}, 2048
    s_add_u32 s{s_t1}, s{s_t1}, {VB}
    s_cmp_lt_u32 s{s_w}, 4
    s_cselect_b32 s{so[0]}, s{so[0]}, s{s_t2}
    s_cselect_b32 s{so[2]}, s{so[2]}, s{s_t3}
    s_cselect_b32 s{s_mo}, s{s_t0}, s{s_t1}
    s_movk_i32 s{s_t0}, 1024
    s_cselect_b32 s{so[1]}, 32768, s{s_t0}
    s_movk_i32 s{s_d}, 10752
    s_cselect_b32 s{s_d}, 4096, s{s_d}
    s_movk_i32 s{s_ms}, 1024
    s_cselect_b32 s{s_ms}, 4096, s{s_ms}
    s_add_u32 s{so[1]}, s{so[1]}, s{so[0]}""")
    c.ws_srd()
    def dma(slot):
        out = [f"s_add_u32 m0, s{s_mo}, {slot*SL}", "s_nop 0"]
        for i in range(3):
            out.append(f"buffer_load_dwordx4 v{vl16}, {sr(sO,4)}, s{so[i]} offen lds")
            if i < 2: out.append(f"s_add_u32 m0, m0, s{s_ms}")
            out.append(f"s_add_u32 s{so[i]}, s{so[i]}, s{s_d}")
        return out
    for x in dma(0): k(x)
    k(f"""v_and_b32 v{vr31}, 31, v{vl}
    v_lshlrev_b32 v{vr31}, 4, v{vr31}
    v_lshrrev_b32 v{vt[1]}, 5, v{vl}
    v_lshl_add_u32 v{vq}, v{vt[1]}, 15, v{vr31}
    s_lshr_b32 s{s_tok}, s2, 5
    s_lshl_b32 s{s_tok}, s{s_tok}, 8
    s_lshl_b32 s{s_t0}, s{s_w}, 5
    s_add_u32 s{s_tok}, s{s_tok}, s{s_t0}
    s_lshl_b32 s{s_t0}, s{s_tok}, 4
    s_add_u32 s{s_t1}, s{s_t0}, s{s_pa}
    s_add_u32 s{s_t2}, s{s_t0}, s{s_pr}
    s_add_u32 s{s_t2}, s{s_t2}, s{s_odd8}
    v_mov_b32 v{Qr}, 0
    v_mov_b32 v{Qr+1}, 0
    buffer_load_dwordx4 {vr(Qm,4)}, v{vq}, {sr(sO,4)}, s{s_t1} offen
    s_mov_b32 exec_hi, 0
    buffer_load_dwordx2 {vr(Qr,2)}, v{vr31}, {sr(sO,4)}, s{s_t2} offen
    s_mov_b32 exec_hi, -1""")
    for x in dma(1): k(x)
    k(f"""v_lshl_add_u32 v{vKA}, v{vt[1]}, 12, v{vr31}
    v_add_u32 v{vKR}, s{s_odd8}, v{vr31}
    v_add_u32 v{vKR}, 8192, v{vKR}
    v_mul_u32_u24 v{vt[0]}, 336, v{vt[1]}
    v_add_u32 v{vt[0]}, v{vt[0]}, v{vr31}
    v_add_u32 v{vVA}, {VB}, v{vt[0]}""")
    id_, u, cb, st, R0, A_, B_, C_ = p
    s_po = s_t3
    def prep0():
        Ld = k.label("pd"); Lo = k.label("po"); Lc = k.label("pc"); Lg = k.label("pg")
        k(f"""s_lshl_b32 s{id_}, s2, 3
        s_add_u32 s{id_}, s{id_}, s{s_w}
        s_mov_b32 s{sA+3}, 0x20000
        s_mov_b32 s{sB+3}, 0x20000
        s_mov_b32 s{B_}, 8
        s_mov_b32 s{C_}, 4
        v_bfe_u32 v{vt[2]}, v{vl}, 4, 1
        s_cmp_ge_u32 s{id_}, 1080
        s_cbranch_scc1 {Ld}
        s_mul_i32 s{u}, s{id_}, 2428
        s_lshr_b32 s{u}, s{u}, 16
        s_mul_i32 s{cb}, s{u}, 27
        s_sub_u32 s{cb}, s{id_}, s{cb}
        s_lshl_b32 s{R0}, s{u}, 4
        s_mov_b32 s{A_}, 0
        s_movk_i32 s{st}, 3456
        s_mov_b64 {sr(sA,2)}, {sr(sP+4,2)}
        s_mov_b64 {sr(sB,2)}, {sr(sP+6,2)}
        s_mov_b32 s{sA+2}, {640*3456}
        s_mul_i32 s{s_po}, s{u}, {112*1024}
        s_add_u32 s{s_po}, s{s_po}, {WGUP}
        v_lshlrev_b32 v{vt[2]}, 11, v{vt[2]}
        v_lshl_add_u32 v{vt[3]}, v{vt[1]}, 9, v{vt[2]}
        s_branch {Lg}
        {Ld}:
        s_min_u32 s{id_}, s{id_}, 1819
        s_cmp_lt_u32 s{id_}, 1620
        s_movk_i32 s{cb}, 1620
        s_cselect_b32 s{cb}, 1080, s{cb}
        s_cselect_b64 {sr(sA,2)}, {sr(sWD,2)}, {sr(sP,2)}
        s_cselect_b32 s{A_}, 16, 20
        s_cselect_b32 s{R0}, 32, 40
        s_mov_b32 s{s_po}, {WOP}
        s_cselect_b32 s{s_po}, {WDP}, s{s_po}
        s_mov_b32 s{sA+2}, {640*1280}
        s_cselect_b32 s{sA+2}, {1728*1280}, s{sA+2}
        s_sub_u32 s{cb}, s{id_}, s{cb}
        s_mul_i32 s{u}, s{cb}, 6554
        s_lshr_b32 s{u}, s{u}, 16
        s_mul_i32 s{st}, s{u}, 10
        s_sub_u32 s{cb}, s{cb}, s{st}
        s_mul_i32 s{R0}, s{R0}, s{u}
        s_mul_i32 s{st}, s{u}, {40*1024}
        s_add_u32 s{s_po}, s{s_po}, s{st}
        s_mul_i32 s{st}, s{u}, 160
        s_sub_u32 s{st}, s{st}, {16*160-16}
        s_cmp_ge_u32 s{id_}, 1780
        s_cselect_b32 s{R0}, s{st}, s{R0}
        s_cselect_b32 s{A_}, 80, s{A_}
        s_cselect_b32 s{B_}, 20, 8
        s_cselect_b32 s{C_}, 40, 4
        s_movk_i32 s{st}, 1280
        s_mov_b64 {sr(sB,2)}, {sr(sA,2)}
        v_lshlrev_b32 v{vt[2]}, 9, v{vt[2]}
        v_lshl_add_u32 v{vt[3]}, v{vt[1]}, 11, v{vt[2]}
        {Lg}:
        s_mov_b32 s{sB+2}, s{sA+2}
        s_lshl_b32 s{sE}, s{cb}, 12
        s_add_u32 s{s_po}, s{s_po}, s{sE}
        s_lshl_b32 s{sF}, s{cb}, 9
        s_add_u32 s{sF}, s{sF}, {CSG}
        s_cmp_lt_u32 s{id_}, 1080
        s_cselect_b32 s{sF}, s{sF}, {WSEND}
        v_bfe_u32 v{vt[2]}, v{vl}, 2, 2
        v_lshl_add_u32 v{vt[3]}, v{vt[2]}, 7, v{vt[3]}
        v_and_b32 v{vt[2]}, 3, v{vl}
        v_lshl_add_u32 v{vt[3]}, v{vt[2]}, 3, v{vt[3]}
        s_lshl_b32 s{sF+1}, s{s_w}, 12
        s_add_u32 s{sF+1}, s{sF+1}, {PREP}
        v_add_u32 v{vPA}, s{sF+1}, v{vt[3]}
        v_mul_u32_u24 v{vt[2]}, s{C_}, v{vt[1]}
        v_bfe_u32 v{vt[3]}, v{vl}, 3, 2
        v_add_u32 v{vt[2]}, v{vt[2]}, v{vt[3]}
        v_mul_u32_u24 v{vt[2]}, s{st}, v{vt[2]}
        v_and_b32 v{vt[3]}, 7, v{vl}
        v_lshl_add_u32 v{vPS}, v{vt[3]}, 4, v{vt[2]}
        s_mul_i32 s{R0}, s{R0}, s{st}
        s_lshl_b32 s{cb}, s{cb}, 7
        s_add_u32 s{R0}, s{R0}, s{cb}
        s_mul_i32 s{A_}, s{A_}, s{st}
        s_mul_i32 s{B_}, s{B_}, s{st}
        s_add_u32 s{A_}, s{A_}, s{R0}
        s_add_u32 s{C_}, s{A_}, s{B_}
        s_add_u32 s{B_}, s{B_}, s{R0}""")
    def prep1():
        return [f"s_mov_b32 m0, s{sF+1}", "s_nop 0",
                f"buffer_load_dwordx4 v{vPS}, {sr(sA,4)}, s{R0} offen lds", "s_add_u32 m0, m0, 1024", "s_nop 0",
                f"buffer_load_dwordx4 v{vPS}, {sr(sA,4)}, s{B_} offen lds", "s_add_u32 m0, m0, 1024", "s_nop 0",
                f"buffer_load_dwordx4 v{vPS}, {sr(sB,4)}, s{A_} offen lds", "s_add_u32 m0, m0, 1024", "s_nop 0",
                f"buffer_load_dwordx4 v{vPS}, {sr(sB,4)}, s{C_} offen lds"]
    def prep2a():
        return [f"ds_read_b64_tr_b16 {vr(PR+4*Tl+2*rd,2)}, v{vPA} offset:{rd*1024+Tl*32}" for Tl in range(4) for rd in range(2)]
    def prep2b():
        return [f"buffer_store_dwordx4 {vr(PR+4*Tl,4)}, v{vl16}, {sr(sO,4)}, s{s_po} offen offset:{Tl*1024}{sc}" for Tl in range(4)]
    def prep3():
        o = [f"s_mov_b32 s{sE}, 0x3f803f80"]
        o += [f"v_mov_b32 v{vcs+i}, 0" for i in range(4)]
        o += [f"v_dot2c_f32_bf16 v{vcs+Tl}, s{sE}, v{PR+4*Tl+i}" for i in range(4) for Tl in range(4)]
        o += [f"v_lshlrev_b32 v{vPS}, 2, v{vl}", "s_nop 1",
              f"v_permlane32_swap_b32 v{vcs}, v{vcs+1}", f"v_permlane32_swap_b32 v{vcs+2}, v{vcs+3}",
              f"v_add_f32 v{vcs}, v{vcs}, v{vcs+1}", f"v_add_f32 v{vcs+2}, v{vcs+2}, v{vcs+3}",
              f"buffer_atomic_add_f32 v{vcs}, v{vPS}, {sr(sO,4)}, s{sF} offen",
              f"buffer_atomic_add_f32 v{vcs+2}, v{vPS}, {sr(sO,4)}, s{sF} offen offset:256"]
        return o
    if prep: prep0()
    def rdK(t):
        o = ((t // 8) % 3) * SL + (t % 8) * 512
        return [f"ds_read_b128 {vr(Km,4)}, v{vKA} offset:{o}", f"ds_read_b64 {vr(Kr,2)}, v{vKR} offset:{o}"]
    def rdV(t):
        o = ((t // 8) % 3) * SL + (t % 8) * 1344
        return [f"ds_read_b128 {vr(V0,4)}, v{vVA} offset:{o}", f"ds_read_b128 {vr(V1[t&1],4)}, v{vVA} offset:{o+672}"]
    k.stamp(2)
    k("s_waitcnt vmcnt(3)\ns_barrier")
    k.stamp(3)
    for x in rdK(0) + rdV(0): k(x)
    k(f"""s_waitcnt lgkmcnt(2)
    {M8} {vr(S[0],16)}, {vr(Kr,2)}, {vr(Qr,2)}, 0
    {M16} {vr(S[0],16)}, {vr(Km,4)}, {vr(Qm,4)}, {vr(S[0],16)}""")
    for x in rdK(1): k(x)
    TP = 23
    side = []
    def spread(n):
        for _ in range(n):
            if side: k(side.pop(0))
    for t in range(64):
        s = S[t & 1]; sn = S[(t + 1) & 1]; ch = t // 8; last = t == 63
        e = lambda *a: [(k(f"v_exp_f32 v{s+i}, v{s+i}"), spread(1)) for i in a]
        cv = lambda i: k(f"v_cvt_pk_bf16_f32 v{P+i}, v{s+2*i}, v{s+2*i+1}")
        def pr(ph):
            if prio:
                q = (4 * t + ph - 26) % 32
                cum = 0
                for lvl, ln in enumerate(prio):
                    if (q == cum and ln > 0) or (t == 0 and ph == 0 and cum <= q < cum + ln): k(f"s_setprio {3 - lvl}")
                    cum += ln
        pr(0)
        e(0, 1, 2, 3)
        if not last:
            k(f"s_waitcnt lgkmcnt({2 if t > 0 else 0})")
            k(f"{M8} {vr(sn,16)}, {vr(Kr,2)}, {vr(Qr,2)}, 0")
        pr(1)
        e(4); cv(0); e(5); cv(1); e(6, 7)
        if not last: k(f"{M16} {vr(sn,16)}, {vr(Km,4)}, {vr(Qm,4)}, {vr(sn,16)}")
        if t % 8 == 6 and ch < 7:
            assert not side
            k(f"s_waitcnt vmcnt({ {1: 4, 3: 6 if cs_in else 4}.get(ch, 0) if prep else 0})\ns_barrier")
            if ch < 6: side += dma((ch + 2) % 3)
            if prep and ch == 0: side += prep1()
            if prep and ch == 4 and c.fused:
                Ln = k.label("nf")
                k(f"s_cmp_lg_u32 s{s_w}, 0\ns_cbranch_scc1 {Ln}\ns_lshl_b32 s{s_t0}, s2, 2\ns_add_u32 s{s_t0}, s{s_t0}, {FP}")
                c.signal(s_t0, vt[2]); k(f"{Ln}:")
            if prep and ch == 6 and c.fused:
                k(f"s_mov_b32 s{s_t0}, {FP}\nbuffer_load_dwordx4 {vr(vfp,4)}, v{vl16}, {sr(sO,4)}, s{s_t0} offen sc1")
        pr(2)
        if t < 62:
            for x in rdK(t + 2): k(x)
        if prep and t == TP:
            for x in prep2a(): k(x)
        cv(2); e(8); cv(3); e(9, 10, 11)
        nK = 2 if t < 62 else 0
        k(f"s_waitcnt lgkmcnt({nK + (8 if prep and t == TP else 0)})")
        k(f"{M16} {vr(O,16)}, {vr(V0,4)}, {vr(P,4)}, {'0' if t == 0 else vr(O,16)}")
        pr(3)
        if prep and t == TP + 1: side += prep2b() + (prep3() if cs_in else [])
        cv(4); e(12); cv(5); e(13, 14, 15); cv(6)
        if not last:
            rv = rdV(t + 1)
            k(rv[0]); cv(7); k(rv[1]); k("s_nop 0")
        else:
            cv(7)
        k(f"{M16} {vr(O,16)}, {vr(V1[t&1],4)}, {vr(P+4,4)}, {vr(O,16)}")
    assert not side
    t0, t1, t2 = vt[0], vt[1], vt[2]
    k.stamp(4); k.stamp(5)
    k(f"""s_setprio 0
    v_bfe_u32 v{vt[3]}, v{vl}, 4, 1
    v_mul_u32_u24 v{vt[3]}, {20*1024}, v{vt[3]}
    v_and_b32 v{vt[4]}, 15, v{vl}
    v_lshl_add_u32 v{vt[3]}, v{vt[4]}, 4, v{vt[3]}
    v_lshrrev_b32 v{vt[4]}, 5, v{vl}
    v_lshl_add_u32 v{vt[4]}, v{vt[4]}, 8, v{vt[3]}
    s_mov_b32 s{p[1]}, {f2u(2.0**64):#x}
    s_mov_b32 s{p[2]}, 0x7f800000
    v_mov_b32 v{t0}, v{O+8}
    v_mov_b32 v{t1}, v{O+8}
    v_add_f32 v{t2}, |v{O}|, |v{O+1}|
    v_add_f32 v{t2}, |v{O+2}|, v{t2}
    v_permlane32_swap_b32 v{t0}, v{t1}""")
    for i in range(3, 12):
        if i == 8: k("s_mov_b32 exec_hi, 0")
        k(f"v_add_f32 v{t2}, |v{O+i}|, v{t2}")
    k(f"""s_mov_b32 exec_hi, -1
    v_cmp_lt_f32 vcc, {f2u(2.0**-64):#x}, v{t1}
    v_cmp_gt_f32 {sr(sE,2)}, s{p[1]}, v{t1}
    v_cmp_gt_f32 {sr(sG,2)}, s{p[2]}, v{t2}
    s_and_b64 vcc, vcc, {sr(sE,2)}
    s_and_b64 vcc, vcc, {sr(sG,2)}
    s_cmp_eq_u64 vcc, -1
    s_cbranch_scc0 {L_slow}
    {L_store}:
    v_rcp_f32 v{t1}, v{t1}
    s_lshr_b32 s{s_t0}, s{s_tok}, 4
    s_mul_i32 s{s_t0}, s{s_t0}, {20*1024}
    s_add_u32 s{s_t0}, s{s_t0}, {OIMG}
    s_lshl_b32 s{s_t1}, s{s_h}, 9
    s_add_u32 s{s_t1}, s{s_t1}, s{s_t0}
    s_lshr_b32 s{s_t2}, s{s_h}, 1
    s_lshl_b32 s{s_t2}, s{s_t2}, 8
    s_add_u32 s{s_t2}, s{s_t2}, s{s_t0}
    s_add_u32 s{s_t2}, s{s_t2}, s{s_odd8}
    s_add_u32 s{s_t2}, s{s_t2}, {16*1024}""")
    for i in range(12): k(f"v_mul_f32 v{O+i}, v{t1}, v{O+i}")
    for i in range(6): k(f"v_cvt_pk_bf16_f32 v{O+i}, v{O+2*i}, v{O+2*i+1}")
    k(f"""buffer_store_dwordx4 {vr(O,4)}, v{vt[4]}, {sr(sO,4)}, s{s_t1} offen{sc}
    s_mov_b32 exec_hi, 0
    buffer_store_dwordx2 {vr(O+4,2)}, v{vt[3]}, {sr(sO,4)}, s{s_t2} offen{sc}
    s_mov_b32 exec_hi, -1""")
    def slow():
        vV = vKA; vm = vKR; cnt = p[3]
        k(f"""{L_slow}:
        s_add_u32 s{so[0]}, s{s_pa}, {80*32768}
        s_add_u32 s{so[1]}, s{s_pr}, {80*32768}
        s_add_u32 s{so[1]}, s{so[1]}, s{s_odd8}
        v_mov_b32 v{vm}, 0xff800000
        s_mov_b32 s{cnt}, 0""")
        L1 = k.label("mx")
        k(f"""{L1}:
        buffer_load_dwordx4 {vr(Km,4)}, v{vq}, {sr(sO,4)}, s{so[0]} offen
        buffer_load_dwordx2 {vr(Kr,2)}, v{vr31}, {sr(sO,4)}, s{so[1]} offen
        s_add_u32 s{so[0]}, s{so[0]}, 512
        s_add_u32 s{so[1]}, s{so[1]}, 512
        s_waitcnt vmcnt(0)
        {M8} {vr(S[0],16)}, {vr(Kr,2)}, {vr(Qr,2)}, 0
        {M16} {vr(S[0],16)}, {vr(Km,4)}, {vr(Qm,4)}, {vr(S[0],16)}""")
        for i in range(8): k(f"v_max3_f32 v{vm}, v{S[0]+2*i}, v{S[0]+2*i+1}, v{vm}")
        k(f"""s_add_u32 s{cnt}, s{cnt}, 1
        s_cmp_lt_u32 s{cnt}, 64
        s_cbranch_scc1 {L1}
        v_mov_b32 v{t0}, v{vm}
        v_permlane32_swap_b32 v{t0}, v{vm}
        v_max_f32 v{vm}, v{vm}, v{t0}""")
        for i in range(16): k(f"v_sub_f32 v{C+i}, 0, v{vm}\nv_mov_b32 v{O+i}, 0")
        k(f"""s_add_u32 s{so[0]}, s{s_pa}, {80*32768}
        s_add_u32 s{so[1]}, s{s_pr}, {80*32768}
        s_add_u32 s{so[1]}, s{so[1]}, s{s_odd8}
        s_mul_i32 s{so[2]}, s{s_h}, {VHEAD}
        s_add_u32 s{so[2]}, s{so[2]}, {VIMG}
        v_lshrrev_b32 v{vV}, 5, v{vl}
        v_mul_u32_u24 v{vV}, 336, v{vV}
        v_add_u32 v{vV}, v{vV}, v{vr31}
        s_mov_b32 s{cnt}, 0""")
        L2 = k.label("pv")
        k(f"""{L2}:
        buffer_load_dwordx4 {vr(Km,4)}, v{vq}, {sr(sO,4)}, s{so[0]} offen
        buffer_load_dwordx2 {vr(Kr,2)}, v{vr31}, {sr(sO,4)}, s{so[1]} offen
        buffer_load_dwordx4 {vr(V0,4)}, v{vV}, {sr(sO,4)}, s{so[2]} offen
        buffer_load_dwordx4 {vr(V1[0],4)}, v{vV}, {sr(sO,4)}, s{so[2]} offen offset:672
        s_add_u32 s{so[0]}, s{so[0]}, 512
        s_add_u32 s{so[1]}, s{so[1]}, 512
        s_add_u32 s{so[2]}, s{so[2]}, 1344
        s_waitcnt vmcnt(0)
        {M8} {vr(S[0],16)}, {vr(Kr,2)}, {vr(Qr,2)}, {vr(C,16)}
        {M16} {vr(S[0],16)}, {vr(Km,4)}, {vr(Qm,4)}, {vr(S[0],16)}""")
        for i in range(16): k(f"v_exp_f32 v{S[0]+i}, v{S[0]+i}")
        for i in range(8): k(f"v_cvt_pk_bf16_f32 v{P+i}, v{S[0]+2*i}, v{S[0]+2*i+1}")
        k(f"""{M16} {vr(O,16)}, {vr(V0,4)}, {vr(P,4)}, {vr(O,16)}
        {M16} {vr(O,16)}, {vr(V1[0],4)}, {vr(P+4,4)}, {vr(O,16)}
        s_add_u32 s{cnt}, s{cnt}, 1
        s_cmp_lt_u32 s{cnt}, 64
        s_cbranch_scc1 {L2}
        v_mov_b32 v{t0}, v{O+8}
        v_mov_b32 v{t1}, v{O+8}
        v_permlane32_swap_b32 v{t0}, v{t1}
        s_branch {L_store}""")
    c.p2 = dict(slow=slow, vfp=vfp, s_h=s_h, prep3=(lambda: [k(x) for x in prep3()]) if prep and not cs_in else (lambda: None), vt=vt, st=[s_t0, s_t1, s_t2])
    return PREP + 32768

def gen(which, opt):
    if which == '2':
        c = Ctx("k2_attn_kernel", False)
        lds = p2(c, **opt('K2'))
        c.p2['prep3'](); c.finish(); c.p2['slow']()
        return c.k, (256, 512, lds)
    import ph2
    return ph2.gen(which, opt)
```

```python
from ph import *

def lw(c, L):
    c.k(f"s_cmp_ge_u32 s{c.s_w}, 4\ns_cbranch_scc1 {L}")

class P35:
    def __init__(self, c, which, D=12):
        self.c = c; self.k3 = k3 = which == 3; k = c.k
        self.NU = 20 if k3 else 54; self.CK = 4; self.SLOT = 20480
        self.NCH = (self.NU + 3) // 4; self.NSL = 5 if k3 else 7
        self.XS = self.NSL * self.SLOT; self.D = 20 if k3 else D
        self.lds = self.XS + 4 * 3072
        c.reset()
        self.sPX = k.s(2); self.sB = k.s(4); self.sX = k.s(4)
        (self.s_tb16, self.s_c, self.s_t0, self.s_t1, self.s_t2, self.s_bo, self.s_wo, self.s_m0, self.s_xs, self.s_ho,
         self.s_cnt) = [k.s() for _ in range(11)]
        self.vt = [k.v() for _ in range(6)]; self.vH = k.v(); self.vD = k.v(); self.vA = [k.v() for _ in range(3)]
        self.vrow = [k.v() for _ in range(3)]
        self.acc = k.v(20, 4); self.fa = [k.v(20, 4) for _ in range(3)]; self.res = k.v(12, 4)
        self.fb = k.v(4 * self.D, 4)
    def ptr_load(self): return f"s_load_dwordx2 {sr(self.sPX,2)}, s[0:1], {KA_X if self.k3 else KA_OUT}"
    def ids(self):
        k = self.c.k
        k(f"""s_and_b32 s{self.s_t0}, s2, 3
        s_lshl_b32 s{self.s_t0}, s{self.s_t0}, 3
        s_bfe_u32 s{self.s_t1}, s2, 0x30003
        s_add_u32 s{self.s_tb16}, s{self.s_t0}, s{self.s_t1}
        s_lshl_b32 s{self.s_tb16}, s{self.s_tb16}, 2
        s_add_u32 s{self.s_tb16}, s{self.s_tb16}, s{self.c.s_wl}
        s_bfe_u32 s{self.s_t0}, s2, 0x10002
        s_lshl_b32 s{self.s_t0}, s{self.s_t0}, 2
        s_lshr_b32 s{self.s_t1}, s2, 6
        s_add_u32 s{self.s_c}, s{self.s_t0}, s{self.s_t1}""")
    def ld_setup(self):
        k = self.c.k
        k(f"""s_mul_i32 s{self.s_wo}, s{self.c.s_wl}, 8
        s_add_u32 s{self.s_wo}, s{self.s_wo}, s{self.s_c}
        s_mul_i32 s{self.s_wo}, s{self.s_wo}, 5120
        s_add_u32 s{self.s_wo}, s{self.s_wo}, {WOP if self.k3 else WDP}
        s_mul_i32 s{self.s_m0}, s{self.c.s_wl}, 5120""")
    def ld_chunk(self, slot):
        k = self.c.k; c = self.c
        k(f"s_add_u32 m0, s{self.s_m0}, {slot*self.SLOT}\ns_add_u32 s{self.s_t2}, s{self.s_wo}, 4096")
        for i in range(4):
            k(f"buffer_load_dwordx4 v{c.vl16}, {sr(c.sO,4)}, s{self.s_wo} offen offset:{i*1024}{c.sc} lds")
        k(f"s_add_u32 m0, m0, 4096\ns_add_u32 s{self.s_wo}, s{self.s_wo}, {4*40960}")
        k(f"buffer_load_dwordx4 v{c.vl16}, {sr(c.sO,4)}, s{self.s_t2} offen{c.sc} lds")
    def ld_main(self, issued):
        k = self.c.k; NCH = self.NCH
        k(f"s_waitcnt vmcnt({5*(issued-1)})\ns_barrier")
        for ch in range(NCH - 1):
            k(f"s_waitcnt vmcnt({5*max(0, issued-ch-2)})\ns_barrier")
            while issued < NCH and issued < ch + self.NSL and issued <= ch + 1 + self.ahead:
                self.ld_chunk(issued % self.NSL); issued += 1
    def setup(self):
        k = self.c.k; c = self.c; vt = self.vt; vl = c.vl
        for i in range(3):
            k(f"""v_add_u32 v{vt[0]}, {64*i}, v{vl}
            v_mul_u32_u24 v{vt[1]}, 6554, v{vt[0]}
            v_lshrrev_b32 v{vt[1]}, 16, v{vt[1]}
            v_mul_u32_u24 v{vt[1]}, {1280-160}, v{vt[1]}
            v_lshl_add_u32 v{self.vrow[i]}, v{vt[0]}, 4, v{vt[1]}""")
        k(f"""s_mul_i32 s{self.s_t1}, s{self.s_tb16}, {16*1280}
        s_mul_i32 s{self.s_t2}, s{self.s_c}, 160
        s_add_u32 s{self.s_t1}, s{self.s_t1}, s{self.s_t2}
        s_waitcnt lgkmcnt(0)
        s_add_u32 s{self.sX}, s{self.sPX}, s{self.s_t1}
        s_addc_u32 s{self.sX+1}, s{self.sPX+1}, 0
        s_sub_u32 s{self.sX+2}, {2048*1280}, s{self.s_t1}
        s_mov_b32 s{self.sX+3}, 0x20000
        s_mul_i32 s{self.s_xs}, s{c.s_wl}, 3072
        s_add_u32 s{self.s_xs}, s{self.s_xs}, {self.XS}""")
        if self.k3:
            k(f"s_mov_b32 m0, s{self.s_xs}")
            for i in range(3):
                k(f"s_nop 0\nbuffer_load_dwordx4 v{self.vrow[i]}, {sr(self.sX,4)}, 0 offen lds")
                if i < 2: k("s_add_u32 m0, m0, 1024")
        k(f"""v_lshrrev_b32 v{vt[0]}, 4, v{vl}
        v_and_b32 v{vt[1]}, 15, v{vl}
        v_lshlrev_b32 v{vt[2]}, 4, v{vt[1]}
        v_lshl_add_u32 v{self.vH}, v{vt[0]}, 9, v{vt[2]}
        s_lshr_b32 s{self.s_t1}, s{self.s_tb16}, 1
        s_mul_i32 s{self.s_t1}, s{self.s_t1}, 40
        s_mul_i32 s{self.s_t2}, s{self.s_c}, 5
        s_add_u32 s{self.s_t1}, s{self.s_t1}, s{self.s_t2}
        s_lshl_b32 s{self.s_t1}, s{self.s_t1}, 10
        s_and_b32 s{self.s_t2}, s{c.s_w}, 1
        s_lshl_b32 s{self.s_t2}, s{self.s_t2}, 8
        s_add_u32 s{self.s_t1}, s{self.s_t1}, s{self.s_t2}
        s_add_u32 s{self.s_ho}, s{self.s_t1}, {HIMG}
        v_mul_u32_u24 v{vt[1]}, 160, v{vt[1]}
        v_lshl_add_u32 v{vt[1]}, v{vt[0]}, 3, v{vt[1]}
        v_add_u32 v{self.vD}, s{self.s_xs}, v{vt[1]}
        v_mov_b32 v{self.vA[0]}, v{c.vl16}
        v_add_u32 v{self.vA[1]}, {3*self.SLOT}, v{c.vl16}
        v_add_u32 v{self.vA[2]}, {6*self.SLOT}, v{c.vl16}
        s_mul_i32 s{self.s_bo}, s{self.s_tb16}, {self.NU*1024}
        s_add_u32 s{self.s_bo}, s{self.s_bo}, {OIMG if self.k3 else ACT}""")
    def loadB(self, u):
        k = self.c.k; c = self.c
        k(f"buffer_load_dwordx4 {vr(self.fb+4*(u % self.D),4)}, v{c.vl16}, {sr(c.sO,4)}, s{self.s_bo} offen offset:{(u%4)*1024}{c.sc}")
        if u % 4 == 3: k(f"s_add_u32 s{self.s_bo}, s{self.s_bo}, 4096")
    def rdA(self, u):
        slot = (u // 4) % self.NSL
        return [f"ds_read_b128 {vr(self.fa[u%3]+4*T,4)}, v{self.vA[slot//3]} offset:{(slot%3)*self.SLOT+((u%4)*5+T)*1024}" for T in range(5)]
    def main(self):
        k = self.c.k; c = self.c; NU = self.NU; D = self.D; res = self.res
        nres = 0
        for u in range(D):
            self.loadB(u)
            if u == 3 and not self.k3:
                k(f"""s_add_u32 s{self.s_t1}, s{self.s_ho}, 4096
                buffer_load_dwordx4 {vr(res,4)}, v{self.vH}, {sr(c.sO,4)}, s{self.s_ho} offen{c.sc}
                buffer_load_dwordx4 {vr(res+4,4)}, v{self.vH}, {sr(c.sO,4)}, s{self.s_ho} offen offset:2048{c.sc}
                buffer_load_dwordx4 {vr(res+8,4)}, v{self.vH}, {sr(c.sO,4)}, s{self.s_t1} offen{c.sc}""")
        if not c.fused: k.stamp(2)
        k("s_barrier")
        if not c.fused: k.stamp(3)
        for x in self.rdA(0) + self.rdA(1): k(x)
        for u in range(NU):
            rd = []
            if u % 4 == 2 and u // 4 < self.NCH - 1: k("s_barrier")
            if u + 2 < NU: rd = self.rdA(u + 2)
            younger = min(NU - 1, u + D - 1) - u + (3 if (not self.k3 and u <= 3) else 0)
            k(f"s_waitcnt vmcnt({younger}) lgkmcnt({5 if u + 1 < NU else 0})")
            b = self.fb + 4 * (u % D)
            for T in range(5):
                k(f"{MF} {vr(self.acc+4*T,4)}, {vr(self.fa[u%3]+4*T,4)}, {vr(b,4)}, {'0' if u == 0 else vr(self.acc+4*T,4)}")
                if T < len(rd): k(rd[T])
            if u + D < NU: self.loadB(u + D)
        if self.k3:
            for T in range(5): k(f"ds_read_b64 {vr(self.fa[0]+2*T,2)}, v{self.vD} offset:{T*32}")
            k("s_waitcnt lgkmcnt(0)")
    def epilogue(self):
        k = self.c.k; c = self.c; t = self.vt; acc = self.acc; res = self.res; sO = c.sO; vH = self.vH; sc = c.sc
        if self.k3:
            k(f"s_mov_b32 s{self.s_cnt}, 0x3f803f80\nv_mov_b32 v{t[0]}, 0\nv_mov_b32 v{t[1]}, 0")
            src = self.fa[0]
        else:
            for p in range(3):
                k(f"v_permlane32_swap_b32 v{res+4*p}, v{res+4*p+2}\nv_permlane32_swap_b32 v{res+4*p+1}, v{res+4*p+3}")
            src = res
        pk = self.fa[1]
        for T in range(5):
            for d in range(2):
                x = src + 2 * T + d; a = acc + 4 * T + 2 * d
                k(f"""v_lshlrev_b32 v{t[2+2*d]}, 16, v{x}
                v_and_b32 v{t[3+2*d]}, 0xffff0000, v{x}
                v_add_f32 v{a}, v{a}, v{t[2+2*d]}
                v_add_f32 v{a+1}, v{a+1}, v{t[3+2*d]}
                v_cvt_pk_bf16_f32 v{pk+2*T+d}, v{a}, v{a+1}""")
        if self.k3:
            for i in range(10):
                k(f"v_dot2c_f32_bf16 v{t[0]}, s{self.s_cnt}, v{pk+i}\nv_dot2c_f32_bf16 v{t[1]}, v{pk+i}, v{pk+i}")
            for p in range(3):
                k(f"v_permlane32_swap_b32 v{pk+4*p}, v{pk+4*p+2}\nv_permlane32_swap_b32 v{pk+4*p+1}, v{pk+4*p+3}")
            k(f"""s_add_u32 s{self.s_t1}, s{self.s_ho}, 4096
            buffer_store_dwordx4 {vr(pk,4)}, v{vH}, {sr(sO,4)}, s{self.s_ho} offen{sc}
            buffer_store_dwordx4 {vr(pk+4,4)}, v{vH}, {sr(sO,4)}, s{self.s_ho} offen offset:2048{sc}
            s_mov_b32 exec_hi, 0
            buffer_store_dwordx4 {vr(pk+8,4)}, v{vH}, {sr(sO,4)}, s{self.s_t1} offen{sc}
            s_mov_b32 exec_hi, -1
            v_mov_b32 v{t[2]}, v{t[0]}
            v_mov_b32 v{t[3]}, v{t[1]}
            v_permlane32_swap_b32 v{t[2]}, v{t[0]}
            v_permlane32_swap_b32 v{t[3]}, v{t[1]}
            v_add_f32 v{t[0]}, v{t[0]}, v{t[2]}
            v_add_f32 v{t[1]}, v{t[1]}, v{t[3]}
            v_mov_b32 v{t[2]}, v{t[0]}
            v_mov_b32 v{t[3]}, v{t[1]}
            v_permlane16_swap_b32 v{t[2]}, v{t[0]}
            v_permlane16_swap_b32 v{t[3]}, v{t[1]}
            v_add_f32 v{acc}, v{t[0]}, v{t[2]}
            v_add_f32 v{acc+1}, v{t[1]}, v{t[3]}
            v_lshlrev_b32 v{t[4]}, 3, v{c.vl}
            s_lshl_b32 s{self.s_t2}, s{self.s_c}, 14
            s_lshl_b32 s{self.s_t0}, s{self.s_tb16}, 7
            s_add_u32 s{self.s_t2}, s{self.s_t2}, s{self.s_t0}
            s_add_u32 s{self.s_t2}, s{self.s_t2}, {STATS}
            s_mov_b64 exec, 0xffff
            buffer_store_dwordx2 {vr(acc,2)}, v{t[4]}, {sr(sO,4)}, s{self.s_t2} offen{sc}
            s_mov_b64 exec, -1""")
        else:
            for T in range(5): k(f"ds_write_b64 v{self.vD}, {vr(pk+2*T,2)} offset:{T*32}")
            k(f"v_add_u32 v{t[0]}, s{self.s_xs}, v{c.vl16}\ns_waitcnt lgkmcnt(0)")
            for i in range(3): k(f"ds_read_b128 {vr(self.fa[0]+4*i,4)}, v{t[0]} offset:{i*1024}")
            for i in range(3):
                k(f"s_waitcnt lgkmcnt({2-i})")
                if i == 2: k("s_mov_b32 exec_hi, 0")
                k(f"buffer_store_dwordx4 {vr(self.fa[0]+4*i,4)}, v{self.vrow[i]}, {sr(self.sX,4)}, 0 offen")
            k("s_mov_b32 exec_hi, -1")

class P4:
    CK, NSL, NCH, SLOT = 4, 5, 10, 28672
    CSB = 5 * 28672
    def __init__(self, c, D=12):
        self.c = c; k = c.k; self.D = D; self.lds = self.CSB + 1024
        c.reset()
        (self.s_tb, self.s_g, self.s_t0, self.s_t1, self.s_t2, self.s_bo, self.s_wo, self.s_m0) = [k.s() for _ in range(8)]
        self.vt = [k.v() for _ in range(4)]; self.vA = [k.v() for _ in range(3)]
        self.st = k.v(8, 4); self.par = k.v(6, 2)
        self.acc = [k.v(16, 4) for _ in range(7)]
        self.fa = [k.v(28, 4), k.v(28, 4)]
        self.fb = k.v(4 * D, 4)
    def ids(self):
        k = self.c.k
        k(f"""s_and_b32 s{self.s_t0}, s2, 1
        s_lshl_b32 s{self.s_t0}, s{self.s_t0}, 3
        s_bfe_u32 s{self.s_t1}, s2, 0x30003
        s_add_u32 s{self.s_tb}, s{self.s_t0}, s{self.s_t1}
        s_lshl_b32 s{self.s_tb}, s{self.s_tb}, 2
        s_add_u32 s{self.s_tb}, s{self.s_tb}, s{self.c.s_wl}
        s_bfe_u32 s{self.s_t0}, s2, 0x20001
        s_lshl_b32 s{self.s_t0}, s{self.s_t0}, 2
        s_lshr_b32 s{self.s_t1}, s2, 6
        s_add_u32 s{self.s_g}, s{self.s_t0}, s{self.s_t1}""")
    def ld_setup(self):
        k = self.c.k
        k(f"""s_mul_i32 s{self.s_wo}, s{self.c.s_wl}, 16
        s_add_u32 s{self.s_wo}, s{self.s_wo}, s{self.s_g}
        s_mul_i32 s{self.s_wo}, s{self.s_wo}, 7168
        s_add_u32 s{self.s_wo}, s{self.s_wo}, {WGUP}
        s_mul_i32 s{self.s_m0}, s{self.c.s_wl}, 7168""")
    def ld_chunk(self, slot):
        k = self.c.k; c = self.c
        k(f"s_add_u32 m0, s{self.s_m0}, {slot*self.SLOT}\ns_add_u32 s{self.s_t2}, s{self.s_wo}, 4096")
        for i in range(4):
            k(f"buffer_load_dwordx4 v{c.vl16}, {sr(c.sO,4)}, s{self.s_wo} offen offset:{i*1024}{c.sc} lds")
        k(f"s_add_u32 m0, m0, 4096\ns_add_u32 s{self.s_wo}, s{self.s_wo}, {4*112*1024}")
        for i in range(3):
            k(f"buffer_load_dwordx4 v{c.vl16}, {sr(c.sO,4)}, s{self.s_t2} offen offset:{i*1024}{c.sc} lds")
    def ld_cs(self):
        k = self.c.k; c = self.c
        k(f"""s_mul_i32 s{self.s_t2}, s{self.s_g}, 896
        s_mov_b32 m0, {self.CSB}
        s_add_u32 s{self.s_t2}, s{self.s_t2}, {CSG}
        buffer_load_dwordx4 v{c.vl16}, {sr(c.sO,4)}, s{self.s_t2} offen{c.sc} lds""")
    def ld_main(self, issued, extra):
        k = self.c.k; NCH = self.NCH
        k(f"s_waitcnt vmcnt({7*(issued-1)+extra})\ns_barrier")
        for ch in range(NCH - 1):
            k(f"s_waitcnt vmcnt({7*max(0, issued-ch-2)})\ns_barrier")
            while issued < NCH and issued <= ch + self.NSL and issued <= ch + 1 + self.ahead:
                self.ld_chunk(issued % self.NSL); issued += 1
    def setup(self):
        k = self.c.k; c = self.c; vt = self.vt
        k(f"""v_mov_b32 v{self.vA[0]}, v{c.vl16}
        v_add_u32 v{self.vA[1]}, {2*self.SLOT}, v{c.vl16}
        v_add_u32 v{self.vA[2]}, {4*self.SLOT}, v{c.vl16}
        s_mul_i32 s{self.s_bo}, s{self.s_tb}, 40960
        s_add_u32 s{self.s_bo}, s{self.s_bo}, {HIMG}
        v_and_b32 v{vt[0]}, 31, v{c.vl}
        v_lshrrev_b32 v{vt[1]}, 5, v{c.vl}
        v_lshlrev_b32 v{vt[2]}, 3, v{vt[0]}
        v_lshl_add_u32 v{vt[2]}, v{vt[1]}, 16, v{vt[2]}
        s_lshl_b32 s{self.s_t0}, s{self.s_tb}, 8
        s_add_u32 s{self.s_t0}, s{self.s_t0}, {STATS}""")
    def loadB(self, u):
        k = self.c.k; c = self.c
        k(f"buffer_load_dwordx4 {vr(self.fb+4*(u % self.D),4)}, v{c.vl16}, {sr(c.sO,4)}, s{self.s_bo} offen offset:{(u%4)*1024}{c.sc}")
        if u % 4 == 3: k(f"s_add_u32 s{self.s_bo}, s{self.s_bo}, 4096")
    def rdA(self, u):
        slot = (u // 4) % self.NSL
        return [f"ds_read_b128 {vr(self.fa[u&1]+4*T,4)}, v{self.vA[slot//2]} offset:{(slot%2)*self.SLOT+((u%4)*7+T)*1024}" for T in range(7)]
    def main(self):
        k = self.c.k; c = self.c; D = self.D; st = self.st
        for u in range(D):
            self.loadB(u)
            if u == 3:
                for i in range(4):
                    k(f"buffer_load_dwordx2 {vr(st+2*i,2)}, v{self.vt[2]}, {sr(c.sO,4)}, s{self.s_t0} offen{c.sc}")
                    if i < 3: k(f"s_add_u32 s{self.s_t0}, s{self.s_t0}, 16384")
        if not c.fused: k.stamp(2)
        k("s_barrier")
        if not c.fused: k.stamp(3)
        for x in self.rdA(0): k(x)
        for u in range(40):
            younger = min(39, u + D - 1) - u + (4 if u <= 3 else 0)
            k(f"s_waitcnt vmcnt({younger}) lgkmcnt(0)")
            if u % 4 == 3 and u < 39: k("s_barrier")
            rd = self.rdA(u + 1) if u < 39 else []
            b = self.fb + 4 * (u % D)
            for T in range(7):
                k(f"{M16} {vr(self.acc[T],16)}, {vr(self.fa[u&1]+4*T,4)}, {vr(b,4)}, {'0' if u == 0 else vr(self.acc[T],16)}")
                for x in rd[2*T:2*T+2]: k(x)
                if T == 4 and u + D < 40 and u > 0: self.loadB(u + D - 1) if False else None
            if u + D < 40: self.loadB(u + D)
    def epilogue(self, L_fin):
        k = self.c.k; c = self.c; t = self.vt; st = self.st; par = self.par; vl = c.vl
        k(f"""v_lshrrev_b32 v{t[0]}, 5, v{vl}
        v_lshlrev_b32 v{t[1]}, 4, v{t[0]}
        v_add_u32 v{t[1]}, {self.CSB}, v{t[1]}""")
        cs = [self.fa[0], self.fa[0] + 16, self.fa[0] + 32]; tmp = self.fb
        def rdcs(T):
            for j in range(4): k(f"ds_read_b128 {vr(cs[T%3]+4*j,4)}, v{t[1]} offset:{T*128+32*j}")
        rdcs(0); rdcs(1)
        k(f"""v_add_f32 v{st}, v{st}, v{st+2}
        v_add_f32 v{st+1}, v{st+1}, v{st+3}
        v_add_f32 v{st+4}, v{st+4}, v{st+6}
        v_add_f32 v{st+5}, v{st+5}, v{st+7}
        v_add_f32 v{st}, v{st}, v{st+4}
        v_add_f32 v{st+1}, v{st+1}, v{st+5}
        v_mov_b32 v{st+2}, v{st}
        v_mov_b32 v{st+3}, v{st+1}
        v_bfe_u32 v{t[2]}, v{vl}, 4, 1
        v_mul_u32_u24 v{t[2]}, 55296, v{t[2]}
        v_permlane32_swap_b32 v{st+2}, v{st}
        v_permlane32_swap_b32 v{st+3}, v{st+1}
        v_add_f32 v{st}, v{st}, v{st+2}
        v_add_f32 v{st+1}, v{st+1}, v{st+3}
        v_mul_f32 v{par}, {f2u(-1.0/640):#x}, v{st}
        v_mul_f32 v{st+1}, {f2u(1.0/640):#x}, v{st+1}
        v_fma_f32 v{st+1}, -v{par}, v{par}, v{st+1}
        v_max_f32 v{st+1}, 0, v{st+1}
        v_add_f32 v{par+4}, {f2u(1e-5):#x}, v{st+1}
        v_rsq_f32 v{par+2}, v{par+4}
        v_mov_b32 v{par+1}, v{par}
        v_mov_b32 v{par+5}, v{par+4}
        v_mul_f32 v{par+2}, {f2u(-math.log2(math.e)):#x}, v{par+2}
        v_lshl_add_u32 v{t[2]}, v{t[0]}, 8, v{t[2]}
        v_mov_b32 v{par+3}, v{par+2}
        v_and_b32 v{t[3]}, 15, v{vl}
        v_lshl_add_u32 v{t[2]}, v{t[3]}, 4, v{t[2]}
        s_mul_i32 s{self.s_t0}, s{self.s_tb}, {2*55296}
        s_mul_i32 s{self.s_t1}, s{self.s_g}, 3584
        s_add_u32 s{self.s_t0}, s{self.s_t0}, s{self.s_t1}
        s_add_u32 s{self.s_t0}, s{self.s_t0}, {ACT}""")
        for T in range(7):
            A = self.acc[T]; cc = cs[T % 3]
            if T + 2 < 7: rdcs(T + 2)
            k(f"s_waitcnt lgkmcnt({4*min(2, 6-T)})")
            for p in range(8): k(f"v_pk_fma_f32 {vr(A+2*p,2)}, {vr(cc+2*p,2)}, {vr(par,2)}, {vr(A+2*p,2)}")
            for p in range(4): k(f"v_pk_mul_f32 {vr(tmp+2*p,2)}, {vr(A+2*p,2)}, {vr(par+2,2)}")
            for i in range(8): k(f"v_exp_f32 v{tmp+i}, v{tmp+i}")
            for p in range(4): k(f"v_pk_mul_f32 {vr(A+2*p,2)}, {vr(A+2*p,2)}, {vr(A+8+2*p,2)}")
            for p in range(4): k(f"v_pk_fma_f32 {vr(tmp+2*p,2)}, {vr(tmp+2*p,2)}, {vr(par+4,2)}, {vr(par+4,2)}")
            for i in range(8): k(f"v_rcp_f32 v{tmp+i}, v{tmp+i}")
            for p in range(4): k(f"v_pk_mul_f32 {vr(A+2*p,2)}, {vr(A+2*p,2)}, {vr(tmp+2*p,2)}")
            for p in range(4): k(f"v_cvt_pk_bf16_f32 v{A+8+p}, v{A+2*p}, v{A+2*p+1}")
            k(f"buffer_store_dwordx4 {vr(A+8,4)}, v{t[2]}, {sr(c.sO,4)}, s{self.s_t0} offen offset:{T*512}{c.sc}")
            if T == 2: k(f"s_cmp_eq_u32 s{self.s_g}, 15\ns_cbranch_scc1 {L_fin}")
        k(f"{L_fin}:")

def gen(which, opt):
    if which in '35':
        o = opt('K' + which)
        c = Ctx("k3_oproj_kernel" if which == '3' else "k5_down_kernel", False); k = c.k
        P = P35(c, int(which), D=o.get('D', 12)); P.ahead = o.get('ahead', 2)
        c.entry(int(which) - 1, P.ptr_load())
        P.ids(); c.ws_srd()
        L = k.label("ld"); lw(c, L)
        P.setup(); P.main(); k.stamp(4); k.stamp(5); P.epilogue(); c.finish()
        k(f"{L}:"); P.ld_setup()
        for ch in range(2): P.ld_chunk(ch)
        P.ld_main(2); k("s_endpgm")
        return k, (256, 512, P.lds)
    if which == '4':
        o = opt('K4')
        c = Ctx("k4_gateup_kernel", False); k = c.k
        P = P4(c, D=o.get('D', 12)); P.ahead = o.get('ahead', 2)
        c.entry(3); P.ids(); c.ws_srd()
        L = k.label("ld"); lw(c, L)
        P.setup(); P.main(); k.stamp(4); k.stamp(5); P.epilogue(k.label("fin")); c.finish()
        k(f"{L}:"); P.ld_setup()
        for ch in range(2): P.ld_chunk(ch)
        P.ld_cs()
        P.ld_main(2, 1); k("s_endpgm")
        return k, (256, 512, P.lds)
    import mega
    return mega.gen(opt)
```

```python
import sys, os
from build import build
from asmlib import K
K.STAMP = bool(os.environ.get('STAMP'))
seq = os.environ.get("SEQ", "12345")
def opt(n): return eval(os.environ.get(n, '{}') or '{}')
def empty():
    k = K("k0_empty_kernel"); k("s_endpgm"); return k, (256, 256, 0)
g = {}
for c in set(seq):
    if c == '0': g[c] = empty()
    elif c == '1':
        import k1; g[c] = k1.gen_k1(**opt('K1'))
    else:
        import ph; g[c] = ph.gen(c, opt)
ks = [g[c] for c in seq]
build(ks, sys.argv[1] if len(sys.argv)>1 else "t.s", verbose=bool(os.environ.get("V")))
```

```python
import sys, os
from build import build
from asmlib import K
K.STAMP = os.environ.get('STAMP') or False
seq = os.environ.get("SEQ", "12345")
def opt(n): return eval(os.environ.get(n, '{}') or '{}')
def empty():
    k = K("k0_empty_kernel"); k("s_endpgm"); return k, (256, 256, 0)
def dump():
    from layout import STAMPS, KA_WS, KA_DBG
    k = K("k9_dump_kernel")
    k(f'''s_load_dwordx2 s[4:5], s[0:1], {KA_WS}
    s_load_dwordx2 s[6:7], s[0:1], {KA_DBG}
    s_cmp_ge_u32 s2, 1
    s_cbranch_scc1 L_dump_end
    s_waitcnt lgkmcnt(0)
    s_mov_b32 s8, s4
    s_mov_b32 s9, s5
    s_mov_b32 s10, 0x2000000
    s_mov_b32 s11, 0x20000
    s_mov_b32 s12, s6
    s_mov_b32 s13, s7
    s_mov_b32 s14, 64
    s_mov_b32 s15, 0x20000
    v_mul_u32_u24 v1, 21846, v0
    v_lshrrev_b32 v1, 16, v1
    v_mul_u32_u24 v2, 3, v1
    v_sub_u32 v2, v0, v2
    v_lshlrev_b32 v3, 17, v1
    v_mul_u32_u24 v4, 28, v2
    v_cmp_eq_u32 vcc, 2, v2
    v_add_u32 v3, v3, v4
    s_mov_b32 s16, {STAMPS}
    v_cndmask_b32 v5, 0, 52, vcc
    v_sub_u32 v3, v3, v5
    buffer_load_dword v6, v3, s[8:11], s16 offen
    buffer_load_dword v7, v3, s[8:11], s16 offen offset:20
    s_waitcnt vmcnt(0)
    v_sub_u32 v7, v7, v6
    v_cndmask_b32 v6, v6, v7, vcc
    v_lshlrev_b32 v8, 2, v0
    buffer_store_dword v6, v8, s[12:15], 0 offen
    L_dump_end:
    s_endpgm''')
    return k, (1, 64, 0)
g = {}
for c in set(seq):
    if c == '0': g[c] = empty()
    elif c == '9': g[c] = dump()
    elif c == 'f':
        import full; g[c] = full.gen(opt)
    elif c == '1':
        import k1; g[c] = k1.gen_k1(**opt('K1'))
    else:
        import ph; g[c] = ph.gen(c, opt)
ks = [g[c] for c in seq]
build(ks, sys.argv[1] if len(sys.argv)>1 else "t.s", verbose=bool(os.environ.get("V")))
```

```python
import re

REG_RE = re.compile(r'(?<![\w.])(-?)(\|?)([vas])(?:(\d+)|\[(\d+):(\d+)\])')

def regs_of(tok):
    out = set()
    t = tok.strip()
    for m in REG_RE.finditer(t):
        c = m.group(3)
        if m.group(4) is not None:
            out.add((c, int(m.group(4))))
        else:
            for i in range(int(m.group(5)), int(m.group(6)) + 1):
                out.add((c, i))
    if re.search(r'\bvcc\b', t): out |= {('s', 'vcc')}
    if re.search(r'\bexec\b', t): out |= {('s', 'exec')}
    if re.search(r'\bm0\b', t): out |= {('s', 'm0')}
    return out

TRANS = ('v_exp_f32', 'v_log_f32', 'v_rcp_f32', 'v_rsq_f32', 'v_sqrt_f32', 'v_sin_f32', 'v_cos_f32', 'v_rcp_iflag_f32', 'v_exp_f16')

class Ins:
    def __init__(self, text):
        self.text = text
        t = text.split(';')[0].strip()
        self.label = None
        self.op = None
        self.defs = set(); self.uses = set()
        self.srcA = set(); self.srcB = set(); self.srcC = set()
        if not t or t.startswith('.'):
            return
        if t.endswith(':'):
            self.label = t[:-1]; return
        parts = t.split(None, 1)
        self.op = op = parts[0]
        rest = parts[1] if len(parts) > 1 else ''
        ops = [x.strip() for x in re.split(r',(?![^\[]*\])', rest)] if rest else []
        self.ops = ops
        R = [regs_of(x) for x in ops]
        self.is_mfma = op.startswith('v_mfma')
        self.is_valu = op.startswith('v_') and not self.is_mfma
        self.is_salu = op.startswith('s_')
        self.is_vmem = op.startswith('buffer_') or op.startswith('global_')
        self.is_ds = op.startswith('ds_')
        self.is_lds_dma = self.is_vmem and (re.search(r'\blds\b', rest) is not None or 'load_lds' in op)
        self.is_store = self.is_vmem and ('store' in op or 'atomic' in op)
        self.is_branch = op.startswith('s_cbranch') or op == 's_branch'
        self.target = ops[0] if self.is_branch else None
        allr = set().union(*R) if R else set()
        if self.is_mfma:
            self.defs = R[0]; self.srcA = R[1]; self.srcB = R[2]; self.srcC = R[3]
            self.uses = R[1] | R[2] | R[3]
            m = re.match(r'v_mfma_f32_(\d+)x(\d+)x(\d+)', op)
            mm = int(m.group(1))
            if '_2b_' in op: self.passes = 16
            elif mm == 32: self.passes = 8
            elif mm == 16: self.passes = 8 if '_4b_' in op else 4
            else: self.passes = 2
        elif self.is_valu:
            if op.startswith('v_cmpx'):
                self.defs = R[0] | {('s', 'exec')}; self.uses = set().union(*R[1:])
            elif op.startswith('v_permlane') and 'swap' in op:
                self.defs = R[0] | R[1]; self.uses = R[0] | R[1]
            elif op.startswith('v_add_co') or op.startswith('v_sub_co') or op.startswith('v_addc_co'):
                self.defs = R[0] | R[1]; self.uses = set().union(*R[2:])
            elif op == 'v_nop':
                pass
            else:
                self.defs = R[0]; self.uses = set().union(*R[1:]) if len(R) > 1 else set()
                if op.startswith('v_dot2c') or op.startswith('v_fmac') or op.startswith('v_writelane') or 'UNUSED_PRESERVE' in rest:
                    self.uses |= R[0]
        elif self.is_vmem:
            if self.is_store or self.is_lds_dma or op in ('buffer_wbl2', 'buffer_inv'):
                self.uses = allr
                if self.is_lds_dma: self.uses |= {('s', 'm0')}
                if self.is_store:
                    self.data = R[0] if op.startswith('buffer_') else R[1]
                    if 'atomic' in op and re.search(r'\bsc0\b', rest): self.defs = R[0]
            else:
                self.defs = R[0]; self.uses = set().union(*R[1:])
        elif self.is_ds:
            if op.startswith('ds_read') or op.startswith('ds_bpermute') or op.startswith('ds_swizzle') or '_rtn' in op:
                self.defs = R[0]; self.uses = set().union(*R[1:])
            else:
                self.uses = allr
        elif self.is_salu:
            if op.startswith('s_cmp') or op in ('s_waitcnt', 's_barrier', 's_nop', 's_endpgm', 's_setprio', 's_sleep') or self.is_branch:
                self.uses = allr
            elif op.endswith('saveexec_b64'):
                self.defs = R[0] | {('s', 'exec')}; self.uses = set().union(*R[1:]) | {('s', 'exec')}
            else:
                self.defs = R[0] if R else set(); self.uses = set().union(*R[1:]) if len(R) > 1 else set()
    def states(self):
        if self.op is None: return 0
        if self.op == 's_nop': return int(self.ops[0]) + 1
        return 1

def vg(s): return {r for r in s if r[0] in 'va'}
def sg(s): return {r for r in s if r[0] == 's'}

def need(p, c):
    n = 0
    if p.op is None or c.op is None: return 0
    pv = vg(p.defs); ps = sg(p.defs)
    if p.is_valu:
        if ps:
            if c.is_vmem and (ps & c.uses): n = max(n, 5)
            if c.is_valu and (ps & c.uses): n = max(n, 4 if ('readlane' in c.op or 'writelane' in c.op) else 2)
            if c.is_salu and (ps & c.uses): n = max(n, 1)
            if ('s', 'exec') in ps and (c.is_mfma or c.op.startswith('v_permlane') or 'readlane' in c.op or 'readfirstlane' in c.op): n = max(n, 4)
            if ('s', 'exec') in ps and 'dpp' in c.text: n = max(n, 5)
        if pv:
            if c.is_mfma and (pv & c.uses): n = max(n, 2)
            if c.is_valu and c.op.startswith('v_permlane') and (pv & c.uses): n = max(n, 2)
            if c.is_valu and ('row_' in c.text or 'quad_perm' in c.text or 'dpp' in c.op) and (pv & c.uses): n = max(n, 2)
            if c.is_valu and ('readlane' in c.op or 'readfirstlane' in c.op) and (pv & c.uses): n = max(n, 1)
            if p.op in TRANS or p.op.replace('_e32','').replace('_e64','') in TRANS:
                if (c.is_valu or c.is_mfma or c.is_vmem or c.is_ds) and (pv & c.uses): n = max(n, 1)
            if p.op.startswith('v_dot'):
                if c.op == p.op:
                    srcab = set().union(*[regs_of(x) for x in c.ops[1:3]])
                    if pv & srcab: n = max(n, 3)
                elif (pv & (c.uses | c.defs)): n = max(n, 3)
            if ('sdwa' in p.op or 'op_sel' in p.text) and not p.op.startswith('v_pk') and c.is_valu and (pv & (c.uses | c.defs)): n = max(n, 1)
    if p.is_salu and ('s', 'm0') in ps and (c.is_lds_dma or 'addtid' in c.op): n = max(n, 1)
    if p.is_mfma:
        D = p.defs
        k = {2: 0, 4: 1, 8: 2, 16: 3}[p.passes]
        if c.is_mfma:
            if D & c.srcC:
                if c.srcC == D and c.passes == p.passes: n = max(n, [2, 0, 0, 0][k])
                else: n = max(n, [4, 6, 10, 18][k])
            if D & (c.srcA | c.srcB): n = max(n, [5, 8, 12, 20][k])
            if (D & c.defs) and not (D & c.srcC): n = max(n, [4, 6, 10, 18][k])
        elif c.is_valu or c.is_vmem or c.is_ds:
            if D & (c.uses | c.defs): n = max(n, [5, 8, 12, 20][k])
        if (c.is_valu) and (vg(p.srcC) & c.defs): n = max(n, [1, 3, 7, 15][k])
    if p.is_store and ('x4' in p.op or 'x3' in p.op):
        if (c.is_valu or c.is_mfma) and (p.data & c.defs): n = max(n, 2)
        elif (p.data & c.defs): n = max(n, 1)
    return n

def pad_hazards(lines, verbose=False):
    ins = [Ins(l) for l in lines]
    MAXW = 21
    total = 0
    while True:
        labels = {x.label: i for i, x in enumerate(ins) if x.label}
        preds = {}
        for i, x in enumerate(ins):
            if x.op and x.is_branch and x.target in labels:
                preds.setdefault(labels[x.target], []).append(i)
        pads = []
        for i, c in enumerate(ins):
            if c.op is None: continue
            worst = 0
            stack = [(i - 1, 0)] if i > 0 and ins[i - 1].op not in ('s_branch', 's_endpgm', 's_setpc_b64') else []
            seen = set()
            while stack:
                j, dist = stack.pop()
                while j >= 0 and dist < MAXW:
                    if (j, dist) in seen: break
                    seen.add((j, dist))
                    p = ins[j]
                    if p.label:
                        for b in preds.get(j, []):
                            stack.append((b, dist))
                    if p.op:
                        nn = need(p, c)
                        if nn - dist > worst: worst = nn - dist
                        dist += p.states()
                    if j - 1 >= 0 and ins[j - 1].op in ('s_branch', 's_endpgm', 's_setpc_b64'):
                        break
                    j -= 1
            if worst > 0:
                if pads and i - pads[-1][0] < MAXW + 2: continue
                pads.append((i, worst))
        if not pads: break
        for i, worst in reversed(pads):
            if verbose: print("pad", worst, "before", ins[i].text.strip())
            w = worst
            while w > 0:
                n = min(w, 16)
                ins.insert(i, Ins(f"    s_nop {n - 1}")); w -= n
            total += worst
    return [x.text for x in ins], total

def check_srds(lines):
    ins = [Ins(l) for l in lines]
    labels = {x.label: i for i, x in enumerate(ins) if x.label}
    preds = {}
    for i, x in enumerate(ins):
        if x.op and x.is_branch and x.target in labels: preds.setdefault(labels[x.target], []).append(i)
    memo = {}
    def writers(start, reg):
        key = (start, reg)
        out = set(); stack = [start - 1]; seen = set()
        while stack:
            j = stack.pop()
            while True:
                if j < 0: out.add(-1); break
                if j in seen: break
                seen.add(j)
                p = ins[j]
                if p.label:
                    stack.extend(preds.get(j, []))
                if p.op and ('s', reg) in p.defs: out.add(j); break
                if j - 1 >= 0 and ins[j - 1].op in ('s_branch', 's_endpgm'): break
                j -= 1
        return out
    bad = 0; last = {}
    for i, c in enumerate(ins):
        if c.op and c.op.startswith('buffer_') and c.op not in ('buffer_wbl2', 'buffer_inv'):
            m = re.search(r's\[(\d+):(\d+)\]', c.text)
            n = int(m.group(1))
            pv = last.get(n)
            last[n] = i
            if pv is not None and not any(ins[j].label or (ins[j].op and any(('s', n + d) in ins[j].defs for d in range(4))) for j in range(pv, i)): continue
            ok = [('s_mov_b32', 's_add_u32', 's_mov_b64', 's_cselect_b64', 's_cselect_b32', 's_load_dwordx4'), ('s_mov_b32', 's_addc_u32', 's_mov_b64', 's_cselect_b64', 's_cselect_b32', 's_load_dwordx4'),
                  ('s_mov_b32', 's_movk_i32', 's_sub_u32', 's_cselect_b32'), ('s_mov_b32',)]
            for d in range(4):
                for w in writers(i, n + d):
                    good = w >= 0 and ins[w].op in ok[d]
                    if good and d == 3: good = '0x20000' in ins[w].text
                    if good and d < 2 and ins[w].op != 's_load_dwordx4': good = bool(re.match(r's', ins[w].ops[1]))
                    if good and d == 0 and ins[w].op == 's_add_u32': good = ins[w + 1].op == 's_addc_u32'
                    if not good:
                        bad += 1; print("SRD CHECK:", c.text.strip(), "word", d, "<-", ins[w].text.strip() if w >= 0 else "entry")
    assert bad == 0, "SRD check failed"

class K:
    def __init__(self, name):
        self.name = name
        self.lines = []
        self.nv = 0; self.na = 0; self.ns = 0
        self.vnext = 1; self.snext = 3; self.anext = 0
        self.uid = 0
    def v(self, n=1, align=None):
        al = align or (2 if n >= 2 else 1)
        self.vnext = (self.vnext + al - 1) // al * al
        r = self.vnext; self.vnext += n
        return r
    def a(self, n=1):
        r = self.anext; self.anext += n
        return r
    def s(self, n=1, align=None):
        al = align or (4 if n >= 4 else (2 if n >= 2 else 1))
        self.snext = (self.snext + al - 1) // al * al
        r = self.snext; self.snext += n
        assert self.snext <= 66, "out of sgprs"
        return r
    def __call__(self, text):
        for l in text.split('\n'):
            l = l.strip()
            if not l: continue
            if l.endswith(':'): self.lines.append(l)
            else: self.lines.append('    ' + l)
    STAMP = False
    kidx = 0
    sT = 68
    NST = 16
    def stamp(self, i, real=False):
        if not K.STAMP: return
        if K.STAMP == 'light':
            self.maxst = 0; return
        if i == 'n':
            i = self.nst = getattr(self, 'nst', 1) + 1
        assert i < 15
        self.maxst = max(getattr(self, 'maxst', 0), i)
        self(f"s_memtime s[{self.sT+2*i}:{self.sT+2*i+1}]")
    def stamp_real(self, i):
        if not K.STAMP: return
        self(f"s_memrealtime s[{self.sT+2*i}:{self.sT+2*i+1}]")
    def stamp_flush(self, srd, s_w):
        if not K.STAMP: return
        self.stamp_real(15)
        self("s_mov_b64 exec, -1\ns_waitcnt lgkmcnt(0) vmcnt(0)")
        self("s_nop 7\ns_nop 7")
        for i in range(16): self(f"v_mov_b32 v{4+i}, s{self.sT+2*i}" if i <= self.maxst or i == 15 else f"v_mov_b32 v{4+i}, s{self.sT+2*self.maxst}")
        self(f"s_lshl_b32 s66, s2, 3\ns_add_u32 s66, s66, s{s_w}\ns_lshl_b32 s66, s66, 6\ns_add_u32 s66, s66, {0x1B80000 + self.kidx * 0x20000}")
        self(f"v_mov_b32 v1, 0\ns_mov_b64 exec, 1")
        for j in range(4): self(f"buffer_store_dwordx4 v[{4+4*j}:{7+4*j}], v1, s[{srd}:{srd+3}], s66 offen offset:{16*j}")
    def label(self, base):
        self.uid += 1
        return f"L_{self.name}_{base}_{self.uid}"
    def finish(self, verbose=False):
        lines, tot = pad_hazards(self.lines, verbose)
        check_srds(lines)
        maxv = maxa = maxs = -1
        for l in lines:
            for r in regs_of(l.split(';')[0]):
                if isinstance(r[1], int):
                    if r[0] == 'v': maxv = max(maxv, r[1])
                    if r[0] == 'a': maxa = max(maxa, r[1])
                    if r[0] == 's': maxs = max(maxs, r[1])
        assert maxv < 256 and maxa < 256 and maxs < 102
        maxv = max(maxv, 3)
        acc = (maxv + 1 + 3) // 4 * 4
        nfv = acc + maxa + 1 if maxa >= 0 else maxv + 1
        head = f".globl {self.name}\n.p2align 8\n.type {self.name},@function\n{self.name}:\n"
        body = "\n".join(lines) + "\n"
        desc = f""".amdhsa_kernel {self.name}
  .amdhsa_next_free_vgpr {nfv}
  .amdhsa_next_free_sgpr {max(maxs + 1, 16)}
  .amdhsa_accum_offset {acc}
  .amdhsa_group_segment_fixed_size 0
  .amdhsa_kernarg_size 80
  .amdhsa_user_sgpr_count 2
  .amdhsa_user_sgpr_kernarg_segment_ptr 1
  .amdhsa_system_sgpr_workgroup_id_x 1
.end_amdhsa_kernel
"""
        self.info = dict(nfv=nfv, acc=acc, sgpr=maxs + 1, nops=tot, ninstr=sum(1 for l in lines if l.startswith('    ')))
        return head + body, desc

def vr(b, n=1): return f"v{b}" if n == 1 else f"v[{b}:{b+n-1}]"
def ar(b, n=1): return f"a{b}" if n == 1 else f"a[{b}:{b+n-1}]"
def sr(b, n=1): return f"s{b}" if n == 1 else f"s[{b}:{b+n-1}]"
```

```python
import sys, importlib
from asmlib import *
HEADER = """; Pre-LN transformer block (LN -> QKV -> softmax MHA -> o-proj + residual -> LN -> SwiGLU FFN + residual), one launch.
"""
def build(kernels, path, verbose=False):
    launches = ""; body = ""; descs = ""
    seen = set()
    for k, (grid, block, lds) in kernels:
        launches += f"; @launch kernel={k.name} grid=({grid},1,1) block=({block},1,1) lds={lds}\n"
        if k.name in seen: continue
        seen.add(k.name)
        b, d = k.finish(verbose)
        print(k.name, k.info, "lds", lds, file=sys.stderr)
        body += b; descs += ".p2align 6\n" + d
    if len(kernels) == 1 and kernels[0][0].name.startswith("sequential"):
        k, (grid, block, lds) = kernels[0]
        launches = f"; @launch grid=({grid},1,1) block=({block},1,1) lds={lds}\n"
    s = HEADER + launches + '.amdgcn_target "amdgcn-amd-amdhsa--gfx950"\n.text\n' + body + 'L_code_end:\n.section .rodata,"a"\n' + descs
    open(path, "w").write(s)
```

```python
from ph2 import *
NAME = "sequential_preLN__softmax_full_mha__swiglu_ffn__prompt_kernel"

def gen(opt):
    o = opt('M')
    c = Ctx(NAME, True); k = c.k
    sO = c.sO; sWS = c.sWS; s_w = c.s_w; s_wl = c.s_wl; vl = c.vl; vl16 = c.vl16; sc = c.sc
    rot = o.get('rot', True)
    sD = k.s(4)
    s_po = k.s(); s_cs = k.s(); vPA = k.v()
    c.s0 = k.snext; c.v0 = k.vnext
    SLOT = 32768; NS = 4
    SL = 12288; VB = 3 * SL; PREP = 6 * SL
    NM, RS, CS = 0, 512, 1024
    sP = k.s(4); sX = k.s(4); sW = k.s(4); sQ = k.s(8); sWD = k.s(2); sPC = k.s(2)
    s_tb = k.s(); s_cg = k.s(); s_t0 = k.s(); s_t1 = k.s(); s_t2 = k.s()
    s_ox = k.s(); s_ow = k.s(); s_m0x = k.s(); s_slot = k.s(); s_cnt = k.s(); s_delta = k.s(); s_rs = k.s(); s_msk = k.s()
    vt = [k.v() for _ in range(6)]
    vXA = [k.v() for _ in range(4)]; vWA = [k.v() for _ in range(2)]
    vbase = k.vnext
    L_spare = k.label("spare"); L_v = k.label("vpath"); L_comp = k.label("comp"); L_hprep = k.label("hprep")
    L_J0 = k.label("J0"); L_J = k.label("J")
    k.kidx = 1; k.stamp_real(0); k.stamp(1)
    vX = [k.v() for _ in range(4)]; vW = [k.v() for _ in range(4)]
    hx = [k.v(16, 4), k.v(16, 4)]; vsum = k.v(2); vsq = k.v(2); hu = [k.v(2), k.v(2)]; vPS = k.v()
    k(f"""s_load_dwordx4 {sr(sP,4)}, s[0:1], {KA_X}
    s_load_dwordx4 {sr(sD,4)}, s[0:1], {KA_DBG}
    s_cmp_ge_u32 s2, 256
    s_cbranch_scc1 {c.L_end}
    v_lshrrev_b32 v{vt[0]}, 6, v0
    v_and_b32 v{vl}, 63, v0
    v_readfirstlane_b32 s{s_w}, v{vt[0]}
    s_and_b32 s{s_t0}, s2, 3
    s_lshl_b32 s{s_t0}, s{s_t0}, 2
    s_bfe_u32 s{s_t1}, s2, 0x20003
    s_add_u32 s{s_tb}, s{s_t0}, s{s_t1}
    s_bfe_u32 s{s_t0}, s2, 0x10002
    s_lshl_b32 s{s_t0}, s{s_t0}, 3
    s_lshr_b32 s{s_t1}, s2, 5
    s_add_u32 s{s_cg}, s{s_t0}, s{s_t1}
    s_and_b32 s{s_wl}, s{s_w}, 3
    s_cmp_eq_u32 s{s_cg}, 15
    s_cbranch_scc1 {L_spare}
    s_cmp_ge_u32 s{s_w}, 4
    s_cbranch_scc1 {L_comp}
    v_lshrrev_b32 v{vt[0]}, 3, v{vl}
    v_lshl_add_u32 v{vt[0]}, s{s_w}, 5, v{vt[0]}
    v_mul_u32_u24 v{vt[0]}, 1280, v{vt[0]}
    v_lshrrev_b32 v{vt[1]}, 4, v{vl}
    v_and_b32 v{vt[2]}, 7, v{vl}
    v_xor_b32 v{vt[2]}, v{vt[2]}, v{vt[1]}
    v_lshl_add_u32 v{vX[0]}, v{vt[2]}, 4, v{vt[0]}
    v_xor_b32 v{vX[1]}, 64, v{vX[0]}
    v_add_u32 v{vX[2]}, {2*(8*1280-1024)}, v{vX[0]}
    v_add_u32 v{vX[1]}, {8*1280-1024}, v{vX[1]}
    v_add_u32 v{vX[3]}, {2*(8*1280-1024)}, v{vX[1]}
    v_lshl_add_u32 v{vt[0]}, s{s_w}, 4, v{vt[1]}
    v_mul_u32_u24 v{vt[0]}, 3840, v{vt[0]}
    v_and_b32 v{vt[2]}, 15, v{vl}
    v_lshlrev_b32 v{vt[3]}, 2, v{vt[1]}
    v_xor_b32 v{vt[2]}, v{vt[2]}, v{vt[3]}
    v_lshl_add_u32 v{vW[0]}, v{vt[2]}, 4, v{vt[0]}
    v_add_u32 v{vW[1]}, {4*3840-1024}, v{vW[0]}
    v_add_u32 v{vW[2]}, {2*(4*3840-1024)}, v{vW[0]}
    v_add_u32 v{vW[3]}, {3*(4*3840-1024)}, v{vW[0]}
    s_mul_i32 s{s_t0}, s{s_tb}, {128*1280}
    s_lshl_b32 s{s_t1}, s{s_cg}, 8
    s_lshl_b32 s{s_m0x}, s{s_w}, 12
    s_mov_b32 s{sX+2}, {128*1280}
    s_mov_b32 s{sX+3}, 0x20000
    s_sub_u32 s{sW+2}, {640*3840}, s{s_t1}
    s_mov_b32 s{sW+3}, 0x20000""")
    if rot: k(f"s_and_b32 s{s_t2}, s2, 7\ns_lshl_b32 s{s_ox}, s{s_t2}, 7\ns_mul_i32 s{s_ow}, s{s_t2}, {64*3840}")
    else: k(f"s_mov_b32 s{s_ox}, 0\ns_mov_b32 s{s_ow}, 0")
    k(f"""s_waitcnt lgkmcnt(0)
    s_add_u32 s{sX}, s{sP}, s{s_t0}
    s_addc_u32 s{sX+1}, s{sP+1}, 0
    s_add_u32 s{sW}, s{sP+2}, s{s_t1}
    s_addc_u32 s{sW+1}, s{sP+3}, 0""")
    def dma_chunk(slot_const=None):
        if slot_const is not None: k(f"s_add_u32 m0, s{s_m0x}, {slot_const*SLOT}")
        else: k(f"s_add_u32 m0, s{s_m0x}, s{s_rs}")
        k(f"s_add_u32 s{s_t0}, s{s_ox}, 128")
        for i in range(4):
            k(f"buffer_load_dwordx4 v{vX[i]}, {sr(sX,4)}, s{s_ox} offen offset:{i*1024} lds")
        k(f"s_add_u32 m0, m0, 16384\ns_add_u32 s{s_t1}, s{s_ow}, {64*3840}")
        for i in range(4):
            k(f"buffer_load_dwordx4 v{vW[i]}, {sr(sW,4)}, s{s_ow} offen offset:{i*1024} lds")
        k(f"""s_cmp_eq_u32 s{s_t0}, 1280
        s_cselect_b32 s{s_ox}, 0, s{s_t0}
        s_cselect_b32 s{s_ow}, 0, s{s_t1}""")
    def common_setup():
        k(f"""s_mov_b64 {sr(sWS,2)}, {sr(sD+2,2)}
        s_movk_i32 s{sD+2}, 256
        s_mov_b32 s{sD+3}, 0x20000
        v_lshlrev_b32 v{vl16}, 4, v{vl}""")
        srd(k, sO, sWS, sWS + 1, WSEND)
        k(f"s_load_dwordx8 {sr(sQ,8)}, s[0:1], {KA_WO}\ns_load_dwordx2 {sr(sWD,2)}, s[0:1], {KA_WD}")
    def xaddr():
        k(f"""v_and_b32 v{vt[0]}, 31, v{vl}
        v_lshrrev_b32 v{vt[1]}, 5, v{vl}
        v_bfe_u32 v{vt[2]}, v{vl}, 1, 3
        v_xor_b32 v{vt[2]}, v{vt[2]}, v{vt[1]}
        v_lshlrev_b32 v{vt[2]}, 4, v{vt[2]}
        v_lshl_add_u32 v{vt[2]}, v{vt[0]}, 7, v{vt[2]}""")
    def advance(regs):
        k(f"s_cmp_eq_u32 s{s_slot}, {(NS-1)*SLOT}\ns_mov_b32 s{s_delta}, {SLOT}")
        k(f"s_cselect_b32 s{s_delta}, {(-(NS-1)*SLOT) & 0xffffffff}, s{s_delta}")
        k(f"s_add_u32 s{s_slot}, s{s_slot}, s{s_delta}")
        return [f"v_add_u32 v{r}, s{s_delta}, v{r}" for r in regs]
    def prep_decode(loads):
        pid, u, cb, st, R0, A_, B_, C_ = s_t0, s_t1, s_t2, s_ox, s_ow, s_m0x, s_slot, s_delta
        sA, sB = sX, sW
        Ld = k.label("pd"); Lg = k.label("pg")
        k(f"""s_lshl_b32 s{pid}, s2, 2
        s_add_u32 s{pid}, s{pid}, s{s_wl}
        s_mov_b32 s{B_}, 8
        s_mov_b32 s{C_}, 4
        v_bfe_u32 v{vt[2]}, v{vl}, 4, 1
        v_lshrrev_b32 v{vt[1]}, 5, v{vl}
        s_waitcnt lgkmcnt(0)
        s_cmp_ge_u32 s{pid}, 560
        s_cbranch_scc1 {Ld}
        s_mul_i32 s{u}, s{pid}, 4682
        s_lshr_b32 s{u}, s{u}, 16
        s_mul_i32 s{cb}, s{u}, 14
        s_sub_u32 s{cb}, s{pid}, s{cb}
        s_mul_i32 s{s_po}, s{u}, {112*1024}
        s_add_u32 s{s_po}, s{s_po}, {WGUP}
        s_mov_b32 s{s_cs}, {CSG}
        v_lshlrev_b32 v{vt[2]}, 11, v{vt[2]}
        v_lshl_add_u32 v{vt[3]}, v{vt[1]}, 9, v{vt[2]}""")
        if loads:
            k(f"""s_lshl_b32 s{R0}, s{u}, 4
            s_mov_b32 s{A_}, 0
            s_movk_i32 s{st}, 3456
            s_mov_b64 {sr(sA,2)}, {sr(sQ+4,2)}
            s_mov_b64 {sr(sB,2)}, {sr(sQ+6,2)}
            s_mov_b32 s{sA+2}, {640*3456}""")
        k(f"""s_branch {Lg}
        {Ld}:
        s_min_u32 s{pid}, s{pid}, 929
        s_cmp_lt_u32 s{pid}, 830
        s_movk_i32 s{cb}, 830
        s_cselect_b32 s{cb}, 560, s{cb}
        s_mov_b32 s{s_po}, {WOP}
        s_cselect_b32 s{s_po}, {WDP}, s{s_po}""")
        if loads:
            k(f"""s_cselect_b64 {sr(sA,2)}, {sr(sWD,2)}, {sr(sQ,2)}
            s_cselect_b32 s{A_}, 16, 20
            s_cselect_b32 s{R0}, 32, 40
            s_mov_b32 s{sA+2}, {640*1280}
            s_cselect_b32 s{sA+2}, {1728*1280}, s{sA+2}""")
        k(f"""s_sub_u32 s{cb}, s{pid}, s{cb}
        s_mul_i32 s{u}, s{cb}, 13108
        s_lshr_b32 s{u}, s{u}, 16
        s_mul_i32 s{st}, s{u}, 5
        s_sub_u32 s{cb}, s{cb}, s{st}
        s_mul_i32 s{st}, s{u}, {40*1024}
        s_add_u32 s{s_po}, s{s_po}, s{st}
        s_mov_b32 s{s_cs}, {WSEND}
        v_lshlrev_b32 v{vt[2]}, 9, v{vt[2]}
        v_lshl_add_u32 v{vt[3]}, v{vt[1]}, 11, v{vt[2]}""")
        if loads:
            k(f"""s_mul_i32 s{R0}, s{R0}, s{u}
            s_mul_i32 s{st}, s{u}, 160
            s_sub_u32 s{st}, s{st}, {16*160-16}
            s_cmp_ge_u32 s{pid}, 910
            s_cselect_b32 s{R0}, s{st}, s{R0}
            s_cselect_b32 s{A_}, 80, s{A_}
            s_cselect_b32 s{B_}, 20, 8
            s_cselect_b32 s{C_}, 40, 4
            s_movk_i32 s{st}, 1280
            s_mov_b64 {sr(sB,2)}, {sr(sA,2)}""")
        k(f"""{Lg}:
        s_lshl_b32 s{cb}, s{cb}, 1
        s_lshr_b32 s{pid}, s{s_w}, 2
        s_add_u32 s{pid}, s{pid}, s{cb}
        s_lshl_b32 s{u}, s{pid}, 12
        s_add_u32 s{s_po}, s{s_po}, s{u}
        s_lshl_b32 s{u}, s{pid}, 9
        s_add_u32 s{s_cs}, s{s_cs}, s{u}
        v_bfe_u32 v{vt[2]}, v{vl}, 2, 2
        v_lshl_add_u32 v{vt[3]}, v{vt[2]}, 7, v{vt[3]}
        v_and_b32 v{vt[2]}, 3, v{vl}
        v_lshl_add_u32 v{vt[3]}, v{vt[2]}, 3, v{vt[3]}
        s_lshl_b32 s{u}, s{s_w}, 12
        s_add_u32 s{u}, s{u}, {PREP}
        v_add_u32 v{vPA}, s{u}, v{vt[3]}""")
        if loads:
            k(f"""s_mov_b32 s{sB+2}, s{sA+2}
            s_mov_b32 s{sA+3}, 0x20000
            s_mov_b32 s{sB+3}, 0x20000
            v_mul_u32_u24 v{vt[2]}, s{C_}, v{vt[1]}
            v_bfe_u32 v{vt[3]}, v{vl}, 3, 2
            v_add_u32 v{vt[2]}, v{vt[2]}, v{vt[3]}
            v_mul_u32_u24 v{vt[2]}, s{st}, v{vt[2]}
            v_and_b32 v{vt[3]}, 7, v{vl}
            v_lshl_add_u32 v{vPS}, v{vt[3]}, 4, v{vt[2]}
            s_mul_i32 s{R0}, s{R0}, s{st}
            s_lshl_b32 s{cb}, s{cb}, 7
            s_add_u32 s{R0}, s{R0}, s{cb}
            s_mul_i32 s{A_}, s{A_}, s{st}
            s_mul_i32 s{B_}, s{B_}, s{st}
            s_add_u32 s{A_}, s{A_}, s{R0}
            s_add_u32 s{C_}, s{A_}, s{B_}
            s_add_u32 s{B_}, s{B_}, s{R0}""")
            for hf in range(2):
                k(f"s_add_u32 m0, s{u}, {hf*(4*4096-128)}")
                for i, (sd, so_) in enumerate(((sA, R0), (sA, B_), (sB, A_), (sB, C_))):
                    k(f"s_nop 0\nbuffer_load_dwordx4 v{vPS}, {sr(sd,4)}, s{so_} offen offset:{128*hf} lds")
                    if i < 3: k("s_add_u32 m0, m0, 1024")
    dma_chunk(0); dma_chunk(1)
    common_setup()
    xaddr()
    k(f"v_add_u32 v{vXA[0]}, s{s_m0x}, v{vt[2]}")
    for s in range(1, 4): k(f"v_xor_b32 v{vXA[s]}, {32*s}, v{vXA[0]}")
    k(f"""v_mov_b32 v{vsum}, 0
    v_mov_b32 v{vsum+1}, 0
    v_mov_b32 v{vsq}, 0
    v_mov_b32 v{vsq+1}, 0
    s_mov_b32 s{s_msk}, 0xffff0000
    s_mov_b32 s{s_slot}, 0
    s_mov_b32 s{s_rs}, {3*SLOT}
    s_waitcnt vmcnt(8)
    s_barrier""")
    k.stamp(2)
    def hreads(buf):
        for s in range(4): k(f"ds_read_b128 {vr(hx[buf]+4*s,4)}, v{vXA[s]}")
    def hstats(buf):
        for i in range(16):
            u = hu[i & 1]
            k(f"""v_lshlrev_b32 v{u}, 16, v{hx[buf]+i}
            v_and_b32 v{u+1}, s{s_msk}, v{hx[buf]+i}
            v_add_f32 v{vsum}, v{vsum}, v{u}
            v_add_f32 v{vsum+1}, v{vsum+1}, v{u+1}
            v_fmac_f32 v{vsq}, v{u}, v{u}
            v_fmac_f32 v{vsq+1}, v{u+1}, v{u+1}""")
    hreads(0)
    dma_chunk(2)
    def hiter(buf, dma, vm, stats=True):
        k(f"s_waitcnt vmcnt({vm}) lgkmcnt(0)\ns_barrier")
        for x in advance(vXA): k(x)
        hreads(buf ^ 1)
        if dma:
            dma_chunk()
            k(f"s_add_u32 s{s_rs}, s{s_rs}, {SLOT}\ns_and_b32 s{s_rs}, s{s_rs}, {NS*SLOT-1}")
        if stats: hstats(buf)
    L = k.label("hloop")
    hiter(0, True, 8)
    k(f"s_mov_b32 s{s_cnt}, 3\n{L}:")
    hiter(1, True, 8); hiter(0, True, 8)
    k(f"s_sub_u32 s{s_cnt}, s{s_cnt}, 1\ns_cmp_lg_u32 s{s_cnt}, 0\ns_cbranch_scc1 {L}")
    hiter(1, False, 8)
    k("s_waitcnt lgkmcnt(0)")
    hstats(0)
    k(f"s_waitcnt vmcnt(0)\ns_barrier")
    k.stamp(3)
    for x in advance(vXA): k(x)
    hreads(1)
    k("s_waitcnt lgkmcnt(0)")
    hstats(1)
    t = vt
    k(f"""v_add_f32 v{vsum}, v{vsum}, v{vsum+1}
    v_add_f32 v{vsq}, v{vsq}, v{vsq+1}
    v_mov_b32 v{vsum+1}, v{vsum}
    v_mov_b32 v{vsq+1}, v{vsq}
    v_and_b32 v{t[0]}, 31, v{vl}
    s_lshl_b32 s{s_t2}, s{s_w}, 7
    v_permlane32_swap_b32 v{vsum+1}, v{vsum}
    v_permlane32_swap_b32 v{vsq+1}, v{vsq}
    v_add_f32 v{vsum}, v{vsum}, v{vsum+1}
    v_add_f32 v{vsq}, v{vsq}, v{vsq+1}
    v_mul_f32 v{vsum}, {f2u(-1.0/640):#x}, v{vsum}
    v_mul_f32 v{vsq}, {f2u(1.0/640):#x}, v{vsq}
    v_fma_f32 v{vsq}, -v{vsum}, v{vsum}, v{vsq}
    v_max_f32 v{vsq}, 0, v{vsq}
    v_add_f32 v{vsq}, {f2u(1e-5):#x}, v{vsq}
    v_rsq_f32 v{vsq}, v{vsq}
    s_cmp_lt_u32 s{s_cg}, 5
    s_cselect_b32 s{s_t1}, {f2u(QSCALE):#x}, 1.0
    v_lshl_add_u32 v{t[1]}, v{t[0]}, 2, s{s_t2}
    v_mul_f32 v{vsq}, s{s_t1}, v{vsq}
    ds_write_b32 v{t[1]}, v{vsum} offset:{NM}
    ds_write_b32 v{t[1]}, v{vsq} offset:{RS}
    s_waitcnt lgkmcnt(0)
    s_barrier
    {L_hprep}:""")
    prep_decode(True)
    k(f"s_branch {L_J}")
    k.vnext = vbase
    acc = [[k.v(16, 4) for _ in range(2)] for _ in range(2)]
    fx = [[k.v(4, 4) for _ in range(2)] for _ in range(2)]
    fw = [[k.v(4, 4) for _ in range(2)] for _ in range(2)]
    acs = k.v(16, 4); ones = k.v(4, 4); vpf = k.v(4, 4)
    k(f"""{L_comp}:
    s_getpc_b64 {sr(sPC,2)}
    L_pf_here:
    s_lshr_b32 s{s_t0}, s2, 3
    s_lshl_b32 s{s_t0}, s{s_t0}, 2
    s_add_u32 s{s_t0}, s{s_t0}, s{s_wl}
    s_lshl_b32 s{s_t0}, s{s_t0}, 10
    s_min_u32 s{s_t0}, s{s_t0}, L_code_end - {NAME} - 1024
    s_sub_u32 s{sPC}, s{sPC}, L_pf_here - {NAME}
    s_subb_u32 s{sPC+1}, s{sPC+1}, 0
    v_lshl_add_u32 v{vt[0]}, v{vl}, 4, s{s_t0}
    global_load_dwordx4 {vr(vpf,4)}, v{vt[0]}, {sr(sPC,2)}
    s_setprio {o.get('cprio', 2)}
    s_waitcnt lgkmcnt(0)""")
    common_setup()
    xaddr()
    k(f"""s_lshr_b32 s{s_t0}, s{s_wl}, 1
    s_and_b32 s{s_t1}, s{s_wl}, 1
    s_lshl_b32 s{s_t2}, s{s_t0}, 13
    v_add_u32 v{vXA[0]}, s{s_t2}, v{vt[2]}""")
    for s in range(1, 4): k(f"v_xor_b32 v{vXA[s]}, {32*s}, v{vXA[0]}")
    k(f"""v_bfe_u32 v{vt[2]}, v{vl}, 2, 2
    v_lshl_add_u32 v{vt[3]}, v{vt[1]}, 3, v{vt[2]}
    v_lshlrev_b32 v{vt[3]}, 8, v{vt[3]}
    s_lshl_b32 s{s_t2}, s{s_t1}, 1
    s_add_u32 s{s_t2}, s{s_t2}, s{s_t0}
    v_xor_b32 v{vt[2]}, s{s_t2}, v{vt[2]}
    v_lshl_add_u32 v{vt[3]}, v{vt[2]}, 6, v{vt[3]}
    v_bfe_u32 v{vt[2]}, v{vl}, 4, 1
    v_lshl_add_u32 v{vt[3]}, v{vt[2]}, 5, v{vt[3]}
    v_and_b32 v{vt[2]}, 3, v{vl}
    v_lshl_add_u32 v{vt[3]}, v{vt[2]}, 3, v{vt[3]}
    v_add_u32 v{vWA[0]}, 16384, v{vt[3]}
    v_xor_b32 v{vWA[1]}, 64, v{vWA[0]}
    s_mov_b32 s{s_slot}, 0""")
    for i in range(4): k(f"v_mov_b32 v{ones+i}, 0x3f803f80")
    def reads(buf, s):
        out = []
        for mt in range(2):
            out.append(f"ds_read_b128 {vr(fx[buf][mt],4)}, v{vXA[s]} offset:{mt*4096}")
        for nt in range(2):
            for rd in range(2):
                out.append(f"ds_read_b64_tr_b16 {vr(fw[buf][nt]+2*rd,2)}, v{vWA[nt]} offset:{(16*s+4*rd)*256}")
        return [out[2], out[3], out[0], out[1], out[4], out[5]]
    def kstep(buf, vpath, rd, extra=[], first=False):
        m = []
        for nt in range(2):
            for mt in range(2):
                a, b = (fx[buf][mt], fw[buf][nt]) if vpath else (fw[buf][nt], fx[buf][mt])
                m.append(f"{M16} {vr(acc[nt][mt],16)}, {vr(a,4)}, {vr(b,4)}, {'0' if first else vr(acc[nt][mt],16)}")
        m.append(f"{M16} {vr(acs,16)}, {vr(ones,4)}, {vr(fw[buf][0],4)}, {'0' if first else vr(acs,16)}")
        fill = [[] for _ in range(5)]
        for i, x in enumerate(rd): fill[i // 2].append(x)
        for i, x in enumerate(extra): fill[3].append(x)
        for i in range(5):
            k(m[i])
            for x in fill[i]: k(x)
    def chunk(vpath, last, first=False):
        for s in range(3):
            k("s_waitcnt lgkmcnt(0)")
            kstep(s & 1, vpath, reads((s + 1) & 1, s + 1), first=first and s == 0)
        k("s_waitcnt lgkmcnt(0)")
        if last:
            kstep(1, vpath, [])
            return
        k("s_barrier")
        ad = advance([vXA[0], vWA[0], vWA[1], vXA[1], vXA[2], vXA[3]])
        for x in ad[:3]: k(x)
        kstep(1, vpath, reads(0, 0), ad[3:])
    def mainloop(vpath):
        k("s_barrier")
        k.stamp(2)
        for x in reads(0, 0): k(x)
        chunk(vpath, False, first=True)
        L = k.label("loop")
        k(f"s_mov_b32 s{s_cnt}, 8\n{L}:")
        chunk(vpath, False)
        k(f"s_sub_u32 s{s_cnt}, s{s_cnt}, 1\ns_cmp_lg_u32 s{s_cnt}, 0\ns_cbranch_scc1 {L}")
        chunk(vpath, True)
        k.stamp(3)
    def epilogue(vpath):
        t = vt
        la = fx[0][0]; rg = k.v(32, 4); hoff = t[3]
        k(f"""v_and_b32 v{t[0]}, 31, v{vl}
        s_lshl_b32 s{s_t2}, s{s_t2}, 7
        v_lshl_add_u32 v{t[2]}, v{t[0]}, 2, s{s_t2}
        s_lshl_b32 s{s_ow}, s{s_t0}, 8
        v_lshl_add_u32 v{t[1]}, v{t[0]}, 2, s{s_ow}
        v_lshrrev_b32 v{hoff}, 5, v{vl}
        v_lshlrev_b32 v{hoff}, 4, v{hoff}
        ds_write_b32 v{t[2]}, v{acs} offset:{CS}
        s_waitcnt lgkmcnt(0)
        s_barrier""")
        if not vpath:
            k(f"""ds_read_b32 v{la+0}, v{t[1]} offset:{NM}
            ds_read_b32 v{la+2}, v{t[1]} offset:{RS}
            ds_read_b32 v{la+4}, v{t[1]} offset:{NM+128}
            ds_read_b32 v{la+6}, v{t[1]} offset:{RS+128}
            v_add_u32 v{t[5]}, s{s_t2}, v{hoff}
            v_xor_b32 v{t[4]}, 128, v{t[5]}""")
            for nt in range(2):
                for j in range(4):
                    k(f"ds_read_b128 {vr(rg+16*nt+4*j,4)}, v{t[5] if nt==0 else t[4]} offset:{CS+32*j}")
            k(f"""v_lshlrev_b32 v{t[0]}, 4, v{t[0]}
            v_lshl_add_u32 v{t[0]}, v{hoff}, 11, v{t[0]}
            s_lshl_b32 s{s_ox}, s{s_cg}, 19
            s_lshl_b32 s{s_ow}, s{s_t2}, 10
            s_add_u32 s{s_ox}, s{s_ox}, s{s_ow}
            s_lshl_b32 s{s_ow}, s{s_tb}, 11
            s_add_u32 s{s_ox}, s{s_ox}, s{s_ow}
            s_lshl_b32 s{s_ow}, s{s_t0}, 10
            s_add_u32 s{s_ox}, s{s_ox}, s{s_ow}
            s_waitcnt lgkmcnt(0)
            v_mov_b32 v{la+1}, v{la+0}
            v_mov_b32 v{la+3}, v{la+2}
            v_mov_b32 v{la+5}, v{la+4}
            v_mov_b32 v{la+7}, v{la+6}""")
            for nt in range(2):
                for mt in range(2):
                    A = acc[nt][mt]
                    for p in range(8):
                        k(f"v_pk_fma_f32 {vr(A+2*p,2)}, {vr(rg+16*nt+2*p,2)}, {vr(la+4*mt,2)}, {vr(A+2*p,2)}")
                    for p in range(8):
                        k(f"v_pk_mul_f32 {vr(A+2*p,2)}, {vr(A+2*p,2)}, {vr(la+4*mt+2,2)}")
                    for p in range(8):
                        k(f"v_cvt_pk_bf16_f32 v{A+p}, v{A+2*p}, v{A+2*p+1}")
                    k(f"s_xor_b32 s{s_ow}, s{s_ox}, {(nt*4*32768) | (mt*512)}")
                    k(f"s_add_u32 s{s_rs}, s{s_ow}, {2*32768}")
                    for jp in range(2):
                        k(f"v_permlane32_swap_b32 v{A+4*jp}, v{A+4*jp+2}\nv_permlane32_swap_b32 v{A+4*jp+1}, v{A+4*jp+3}")
                    k(f"buffer_store_dwordx4 {vr(A,4)}, v{t[0]}, {sr(sO,4)}, s{s_ow} offen{sc}")
                    k(f"buffer_store_dwordx4 {vr(A+4,4)}, v{t[0]}, {sr(sO,4)}, s{s_rs} offen{sc}")
        else:
            rg2 = k.v(32, 4)
            k(f"""v_xor_b32 v{t[4]}, 128, v{t[2]}
            ds_read_b32 v{la+0}, v{t[2]} offset:{CS}
            ds_read_b32 v{la+2}, v{t[4]} offset:{CS}
            v_add_u32 v{t[5]}, s{s_ow}, v{hoff}""")
            for mt in range(2):
                for j in range(4):
                    k(f"ds_read_b128 {vr(rg+16*mt+4*j,4)}, v{t[5]} offset:{NM+128*mt+32*j}")
                    k(f"ds_read_b128 {vr(rg2+16*mt+4*j,4)}, v{t[5]} offset:{RS+128*mt+32*j}")
            va = [la + 4, la + 5]
            k(f"""s_sub_u32 s{s_ox}, s{s_cg}, 10
            s_lshl_b32 s{s_ox}, s{s_ox}, 7
            s_lshr_b32 s{s_ow}, s{s_t2}, 2
            s_add_u32 s{s_ox}, s{s_ox}, s{s_ow}
            v_add_u32 v{t[0]}, s{s_ox}, v{t[0]}
            v_mul_u32_u24 v{hoff}, 21, v{hoff}""")
            for nt in range(2):
                if nt == 1: k(f"v_xor_b32 v{t[0]}, 32, v{t[0]}")
                k(f"""v_mul_u32_u24 v{t[1]}, 3277, v{t[0]}
                v_lshrrev_b32 v{t[1]}, 16, v{t[1]}
                v_mul_u32_u24 v{t[2]}, {VHEAD - 320}, v{t[1]}
                v_lshl_add_u32 v{t[2]}, v{t[0]}, 4, v{t[2]}
                v_add_u32 v{va[nt]}, v{t[2]}, v{hoff}""")
            k(f"""s_lshl_b32 s{s_ox}, s{s_tb}, 1
            s_add_u32 s{s_ox}, s{s_ox}, s{s_t0}
            s_mul_i32 s{s_ox}, s{s_ox}, 2688
            s_add_u32 s{s_ox}, s{s_ox}, {VIMG}
            s_waitcnt lgkmcnt(0)
            v_mov_b32 v{la+1}, v{la+0}
            v_mov_b32 v{la+3}, v{la+2}""")
            for nt in range(2):
                for mt in range(2):
                    A = acc[nt][mt]
                    for p in range(8):
                        k(f"v_pk_fma_f32 {vr(A+2*p,2)}, {vr(rg+16*mt+2*p,2)}, {vr(la+2*nt,2)}, {vr(A+2*p,2)}")
                    for p in range(8):
                        k(f"v_pk_mul_f32 {vr(A+2*p,2)}, {vr(A+2*p,2)}, {vr(rg2+16*mt+2*p,2)}")
                    for p in range(8):
                        k(f"v_cvt_pk_bf16_f32 v{A+p}, v{A+2*p}, v{A+2*p+1}")
                    k(f"buffer_store_dwordx4 {vr(A,4)}, v{va[nt]}, {sr(sO,4)}, s{s_ox} offen offset:{1344*mt}{sc}")
                    k(f"buffer_store_dwordx4 {vr(A+4,4)}, v{va[nt]}, {sr(sO,4)}, s{s_ox} offen offset:{1344*mt+672}{sc}")
    k(f"s_cmp_ge_u32 s{s_cg}, 10\ns_cbranch_scc1 {L_v}")
    vsave = k.vnext
    mainloop(False); epilogue(False); k(f"s_branch {L_J0}")
    k.vnext = vsave
    k(f"{L_v}:")
    mainloop(True); epilogue(True)
    k(f"{L_J0}:\ns_setprio 0")
    k.stamp(4)
    prep_decode(False)
    k(f"""{L_J}:
    s_lshl_b32 s{c.s_f}, s{s_cg}, 5
    s_add_u32 s{c.s_f}, s{c.s_f}, s{s_tb}
    s_lshl_b32 s{c.s_f}, s{c.s_f}, {FL}
    s_add_u32 s{c.s_f}, s{c.s_f}, {F1}""")
    def spare():
        o4 = hx[0]
        k(f"{L_spare}:\ns_waitcnt lgkmcnt(0)")
        common_setup()
        srd(k, sX, sWS, sWS + 1, CSG + ZERO_BYTES)
        k(f"""s_lshl_b32 s{s_t0}, s{s_tb}, 1
        s_mul_i32 s{s_t0}, s{s_t0}, {VHEAD}
        s_add_u32 s{s_t0}, s{s_t0}, {VIMG + 320}
        v_mul_u32_u24 v{vt[0]}, 336, v0
        v_lshlrev_b32 v{vt[1]}, 4, v0
        s_lshl_b32 s{s_t1}, s{s_tb}, 13
        s_add_u32 s{s_t1}, s{s_t1}, {CSG}""")
        for i in range(4): k(f"v_mov_b32 v{o4+i}, 0x3f803f80\nv_mov_b32 v{o4+4+i}, 0")
        for z in range((ZERO_BYTES + 131071) // 131072):
            k(f"buffer_store_dwordx4 {vr(o4+4,4)}, v{vt[1]}, {sr(sX,4)}, s{s_t1} offen{sc}\ns_add_u32 s{s_t1}, s{s_t1}, 131072")
        Ln = k.label("sn")
        k(f"""buffer_store_dwordx4 {vr(o4,4)}, v{vt[0]}, {sr(sO,4)}, s{s_t0} offen{sc}
        s_waitcnt vmcnt(0)
        s_barrier
        s_cmp_lg_u32 s{s_w}, 4
        s_cbranch_scc1 {Ln}
        s_lshl_b32 s{s_t0}, s{s_tb}, 4
        v_mov_b32 v{vt[2]}, 1
        v_mov_b32 v{vt[3]}, 0
        s_mov_b64 exec, 1
        buffer_store_dword v{vt[2]}, v{vt[3]}, {sr(sD,4)}, s{s_t0} offen sc1
        s_mov_b64 exec, -1
        {Ln}:""")
        k.stamp(2); k.stamp(3)
        k(f"s_cmp_ge_u32 s{s_w}, 4\ns_cbranch_scc1 {L_J0}\ns_branch {L_hprep}")
    def deferred(fn):
        n = len(k.lines); fn(); out = k.lines[n:]; del k.lines[n:]; return out
    spare_code = deferred(spare)
    c.reset()
    prio = o.get('prio', (16, 10, 4, 2))
    s_h = k.s(); s_pa = k.s(); s_pr = k.s(); s_odd8 = k.s(); s_tok = k.s()
    s_t0 = k.s(); s_t1 = k.s(); s_t2 = k.s(); s_t3 = k.s()
    so = [k.s() for _ in range(3)]; s_d = k.s(); s_mo = k.s(); s_ms = k.s(); s_q1 = k.s(); s_q2 = k.s()
    sG = k.s(2); sE = k.s(2)
    vq = k.v(); vr31 = k.v(); vKA = k.v(); vKR = k.v(); vVA = k.v()
    vt = [k.v() for _ in range(6)]
    S = [k.v(16, 4), k.v(16, 4)]; O = k.v(16, 4); P = k.v(8, 4)
    Qm = k.v(4, 4); Qr = k.v(2); Km = k.v(4, 4); Kr = k.v(2); V0 = k.v(4, 4); V1 = [k.v(4, 4), k.v(4, 4)]
    PR = O; C = S[1]; vcs = P; vfp = k.v(4, 4)
    L_slow = k.label("slow"); L_store = k.label("store")
    k(f"""s_and_b32 s{s_t0}, s2, 7
    s_lshl_b32 s{s_t0}, s{s_t0}, 2
    s_bfe_u32 s{s_t1}, s2, 0x20003
    s_add_u32 s{s_h}, s{s_t0}, s{s_t1}
    s_lshr_b32 s{s_q1}, s{s_h}, 1
    s_mul_i32 s{s_t0}, s{s_q1}, 5
    s_and_b32 s{s_t1}, s{s_h}, 1
    s_lshl_b32 s{s_odd8}, s{s_t1}, 3
    s_mul_i32 s{s_t1}, s{s_t1}, 3
    s_add_u32 s{s_pa}, s{s_t0}, s{s_t1}
    s_lshl_b32 s{s_pa}, s{s_pa}, 15
    s_add_u32 s{s_pr}, s{s_t0}, 2
    s_lshl_b32 s{s_pr}, s{s_pr}, 15
    s_lshl_b32 s{s_t0}, s{s_wl}, 10
    s_add_u32 s{s_t1}, s{s_t0}, {80*32768}
    s_add_u32 s{so[0]}, s{s_pa}, s{s_t1}
    s_add_u32 s{so[2]}, s{s_pr}, s{s_t1}
    s_mul_i32 s{s_t1}, s{s_wl}, 3072
    s_mul_i32 s{s_t2}, s{s_h}, {VHEAD}
    s_add_u32 s{s_t2}, s{s_t2}, s{s_t1}
    s_add_u32 s{s_t2}, s{s_t2}, {VIMG}
    s_add_u32 s{s_t3}, s{s_t2}, 2048
    s_add_u32 s{s_t1}, s{s_t1}, {VB}
    s_cmp_lt_u32 s{s_w}, 4
    s_cselect_b32 s{so[0]}, s{so[0]}, s{s_t2}
    s_cselect_b32 s{so[2]}, s{so[2]}, s{s_t3}
    s_cselect_b32 s{s_mo}, s{s_t0}, s{s_t1}
    s_movk_i32 s{s_t0}, 1024
    s_cselect_b32 s{so[1]}, 32768, s{s_t0}
    s_movk_i32 s{s_d}, 10752
    s_cselect_b32 s{s_d}, 4096, s{s_d}
    s_movk_i32 s{s_ms}, 1024
    s_cselect_b32 s{s_ms}, 4096, s{s_ms}
    s_add_u32 s{so[1]}, s{so[1]}, s{so[0]}
    v_and_b32 v{vr31}, 31, v{vl}
    v_lshlrev_b32 v{vr31}, 4, v{vr31}
    v_lshrrev_b32 v{vt[1]}, 5, v{vl}
    v_lshl_add_u32 v{vq}, v{vt[1]}, 15, v{vr31}
    v_lshl_add_u32 v{vKA}, v{vt[1]}, 12, v{vr31}
    v_add_u32 v{vKR}, s{s_odd8}, v{vr31}
    v_add_u32 v{vKR}, 8192, v{vKR}
    v_mul_u32_u24 v{vt[0]}, 336, v{vt[1]}
    v_add_u32 v{vt[0]}, v{vt[0]}, v{vr31}
    v_add_u32 v{vVA}, {VB}, v{vt[0]}
    v_cmp_lt_u32 vcc, {20*16}, v{vr31}
    v_mov_b32 v{vt[0]}, 0x40000
    v_mov_b32 v{Qr}, 0
    v_cndmask_b32 v{vVA}, v{vVA}, v{vt[0]}, vcc
    v_cmp_lt_u32 vcc, 31, v{vl}
    v_mov_b32 v{Qr+1}, 0
    s_lshr_b32 s{s_tok}, s2, 5
    v_cndmask_b32 v{vKR}, v{vKR}, v{vt[0]}, vcc
    s_lshl_b32 s{s_tok}, s{s_tok}, 8
    s_lshl_b32 s{s_t0}, s{s_w}, 5
    s_add_u32 s{s_tok}, s{s_tok}, s{s_t0}""")
    Lh = k.label("jh"); Lx = k.label("jx"); Lp = k.label("jp"); Lz = k.label("jz"); Lzx = k.label("jzx")
    k(f"""s_cmp_lt_u32 s{s_w}, 4
    s_cbranch_scc1 {Lh}
    s_cmp_lg_u32 s{s_w}, 4
    s_cbranch_scc1 {Lzx}
    v_and_b32 v{vt[3]}, 15, v{vl}
    v_lshlrev_b32 v{vt[3]}, 4, v{vt[3]}
    s_mov_b32 s{s_t1}, 0
    {Lz}:
    buffer_load_dword v{vt[4]}, v{vt[3]}, {sr(sD,4)}, 0 offen sc1
    s_add_u32 s{s_t1}, s{s_t1}, 1
    s_cmp_gt_u32 s{s_t1}, 0x40000
    s_cbranch_scc1 {Lzx}
    s_waitcnt vmcnt(0)
    v_cmp_ne_u32 vcc, 0, v{vt[4]}
    s_cmp_eq_u64 vcc, -1
    s_cbranch_scc0 {Lz}
    {Lzx}:
    s_waitcnt vmcnt(0)""")
    k.stamp(5)
    k(f"""s_barrier
    s_cmp_lg_u32 s{s_w}, 4
    s_cbranch_scc1 {Lx}""")
    c.signal(c.s_f, vt[2])
    k(f"""s_mul_i32 s{s_t0}, s{s_q1}, 40
    s_add_u32 s{s_t1}, s{s_t0}, 39
    s_lshr_b32 s{s_t0}, s{s_t0}, 7
    s_lshr_b32 s{s_t1}, s{s_t1}, 7
    s_lshl_b32 s{s_t0}, s{s_t0}, {FL+5}
    s_lshl_b32 s{s_t1}, s{s_t1}, {FL+5}
    s_add_u32 s{s_t0}, s{s_t0}, {F1}
    s_add_u32 s{s_t1}, s{s_t1}, {F1}
    v_lshrrev_b32 v{vt[2]}, 4, v{vl}
    v_min_u32 v{vt[2]}, 2, v{vt[2]}
    v_mul_u32_u24 v{vt[2]}, 160, v{vt[2]}
    v_and_b32 v{vt[3]}, 15, v{vl}
    v_add_u32 v{vt[3]}, v{vt[3]}, v{vt[2]}
    v_lshlrev_b32 v{vt[3]}, {FL}, v{vt[3]}
    s_mov_b32 s{s_t2}, 0
    {Lp}:
    buffer_load_dword v{vt[4]}, v{vt[3]}, {sr(sO,4)}, s{s_t0} offen sc1
    buffer_load_dword v{vt[5]}, v{vt[3]}, {sr(sO,4)}, s{s_t1} offen sc1
    s_add_u32 s{s_t2}, s{s_t2}, 1
    s_cmp_gt_u32 s{s_t2}, 0x40000
    s_cbranch_scc1 {Lx}
    s_waitcnt vmcnt(0)
    v_min_u32 v{vt[4]}, v{vt[4]}, v{vt[5]}
    v_cmp_ne_u32 vcc, 0, v{vt[4]}
    s_cmp_eq_u64 vcc, -1
    s_cbranch_scc0 {Lp}
    s_branch {Lx}
    {Lh}:""")
    k.stamp(4); k.stamp(5)
    k(f"""s_waitcnt vmcnt(8)
    s_barrier
    s_waitcnt vmcnt(0)
    {Lx}:
    s_lshl_b32 s{s_t0}, s{s_tok}, 4
    s_add_u32 s{s_q1}, s{s_t0}, s{s_pa}
    s_add_u32 s{s_q2}, s{s_t0}, s{s_pr}
    s_add_u32 s{s_q2}, s{s_q2}, s{s_odd8}
    s_barrier""")
    k.stamp(6)
    def dma(slot):
        out = [f"s_add_u32 m0, s{s_mo}, {slot*SL}", "s_nop 0"]
        for i in range(3):
            out.append(f"buffer_load_dwordx4 v{vl16}, {sr(sO,4)}, s{so[i]} offen lds")
            if i < 2: out.append(f"s_add_u32 m0, m0, s{s_ms}")
            out.append(f"s_add_u32 s{so[i]}, s{so[i]}, s{s_d}")
        return out
    for x in dma(0): k(x)
    k(f"""buffer_load_dwordx4 {vr(Qm,4)}, v{vq}, {sr(sO,4)}, s{s_q1} offen
    s_mov_b32 exec_hi, 0
    buffer_load_dwordx2 {vr(Qr,2)}, v{vr31}, {sr(sO,4)}, s{s_q2} offen
    s_mov_b32 exec_hi, -1""")
    for x in dma(1): k(x)
    for Tl in range(4):
        for rd in range(2): k(f"ds_read_b64_tr_b16 {vr(PR+4*Tl+2*rd,2)}, v{vPA} offset:{rd*1024+Tl*32}")
    k(f"s_mov_b32 s{sE}, 0x3f803f80\nv_lshlrev_b32 v{vt[2]}, 2, v{vl}")
    for i in range(4): k(f"v_mov_b32 v{vcs+i}, 0")
    k("s_waitcnt lgkmcnt(0)")
    for Tl in range(4): k(f"buffer_store_dwordx4 {vr(PR+4*Tl,4)}, v{vl16}, {sr(sO,4)}, s{s_po} offen offset:{Tl*1024}{sc}")
    for i in range(4):
        for Tl in range(4): k(f"v_dot2c_f32_bf16 v{vcs+Tl}, s{sE}, v{PR+4*Tl+i}")
    k(f"""v_permlane32_swap_b32 v{vcs}, v{vcs+1}
    v_permlane32_swap_b32 v{vcs+2}, v{vcs+3}
    v_add_f32 v{vcs}, v{vcs}, v{vcs+1}
    v_add_f32 v{vcs+2}, v{vcs+2}, v{vcs+3}
    buffer_atomic_add_f32 v{vcs}, v{vt[2]}, {sr(sO,4)}, s{s_cs} offen
    buffer_atomic_add_f32 v{vcs+2}, v{vt[2]}, {sr(sO,4)}, s{s_cs} offen offset:256""")
    def rdK(t):
        o_ = ((t // 8) % 3) * SL + (t % 8) * 512
        return [f"ds_read_b128 {vr(Km,4)}, v{vKA} offset:{o_}", f"ds_read_b64 {vr(Kr,2)}, v{vKR} offset:{o_}"]
    def rdV(t):
        o_ = ((t // 8) % 3) * SL + (t % 8) * 1344
        return [f"ds_read_b128 {vr(V0,4)}, v{vVA} offset:{o_}", f"ds_read_b128 {vr(V1[t&1],4)}, v{vVA} offset:{o_+672}"]
    k("s_waitcnt vmcnt(9)\ns_barrier")
    k.stamp(7)
    for x in rdK(0) + rdV(0): k(x)
    k(f"""s_waitcnt lgkmcnt(2)
    {M8} {vr(S[0],16)}, {vr(Kr,2)}, {vr(Qr,2)}, 0
    {M16} {vr(S[0],16)}, {vr(Km,4)}, {vr(Qm,4)}, {vr(S[0],16)}""")
    for x in rdK(1): k(x)
    side = []
    def spread(n):
        for _ in range(n):
            if side: k(side.pop(0))
    for t in range(64):
        s = S[t & 1]; sn = S[(t + 1) & 1]; ch = t // 8; last = t == 63
        e = lambda *a: [(k(f"v_exp_f32 v{s+i}, v{s+i}"), spread(1)) for i in a]
        cv = lambda i: k(f"v_cvt_pk_bf16_f32 v{P+i}, v{s+2*i}, v{s+2*i+1}")
        def pr(ph):
            if prio:
                q = (4 * t + ph - 26) % 32
                cum = 0
                for lvl, ln in enumerate(prio):
                    if (q == cum and ln > 0) or (t == 0 and ph == 0 and cum <= q < cum + ln): k(f"s_setprio {3 - lvl}")
                    cum += ln
        pr(0)
        e(0, 1, 2, 3)
        if not last:
            k(f"s_waitcnt lgkmcnt({2 if t > 0 else 0})")
            k(f"{M8} {vr(sn,16)}, {vr(Kr,2)}, {vr(Qr,2)}, 0")
        pr(1)
        e(4); cv(0); e(5); cv(1); e(6, 7)
        if not last: k(f"{M16} {vr(sn,16)}, {vr(Km,4)}, {vr(Qm,4)}, {vr(sn,16)}")
        if t % 8 == 6 and ch < 7:
            assert not side
            k(f"s_waitcnt vmcnt({6 if ch == 0 else 0})\ns_barrier")
            if ch < 6: side += dma((ch + 2) % 3)
            if ch == 1:
                Ln = k.label("nf")
                k(f"s_cmp_lg_u32 s{s_w}, 0\ns_cbranch_scc1 {Ln}\ns_lshl_b32 s{s_t0}, s2, 2\ns_add_u32 s{s_t0}, s{s_t0}, {FP}")
                c.signal(s_t0, vt[2]); k(f"{Ln}:")
            if ch == 6:
                k(f"s_mov_b32 s{s_t0}, {FP}\nbuffer_load_dwordx4 {vr(vfp,4)}, v{vl16}, {sr(sO,4)}, s{s_t0} offen sc1")
        pr(2)
        if t < 62:
            for x in rdK(t + 2): k(x)
        cv(2); e(8); cv(3); e(9, 10, 11)
        k(f"s_waitcnt lgkmcnt({2 if t < 62 else 0})")
        k(f"{M16} {vr(O,16)}, {vr(V0,4)}, {vr(P,4)}, {'0' if t == 0 else vr(O,16)}")
        pr(3)
        cv(4); e(12); cv(5); e(13, 14, 15); cv(6)
        if not last:
            rv = rdV(t + 1)
            k(rv[0]); cv(7); k(rv[1]); k("s_nop 0")
        else:
            cv(7)
        k(f"{M16} {vr(O,16)}, {vr(V1[t&1],4)}, {vr(P+4,4)}, {vr(O,16)}")
    assert not side
    t0, t1, t2 = vt[0], vt[1], vt[2]
    k(f"""s_setprio 0
    v_bfe_u32 v{vt[3]}, v{vl}, 4, 1
    v_mul_u32_u24 v{vt[3]}, {20*1024}, v{vt[3]}
    v_and_b32 v{vt[4]}, 15, v{vl}
    v_lshl_add_u32 v{vt[3]}, v{vt[4]}, 4, v{vt[3]}
    v_lshrrev_b32 v{vt[4]}, 5, v{vl}
    v_lshl_add_u32 v{vt[4]}, v{vt[4]}, 8, v{vt[3]}
    s_mov_b32 s{s_q1}, {f2u(2.0**64):#x}
    s_mov_b32 s{s_q2}, 0x7f800000
    v_mov_b32 v{t0}, v{O+8}
    v_mov_b32 v{t1}, v{O+8}
    v_add_f32 v{t2}, |v{O}|, |v{O+1}|
    v_add_f32 v{t2}, |v{O+2}|, v{t2}
    v_permlane32_swap_b32 v{t0}, v{t1}""")
    for i in range(3, 12): k(f"v_add_f32 v{t2}, |v{O+i}|, v{t2}")
    k(f"""v_cmp_lt_f32 vcc, {f2u(2.0**-64):#x}, v{t1}
    v_cmp_gt_f32 {sr(sE,2)}, s{s_q1}, v{t1}
    v_cmp_gt_f32 {sr(sG,2)}, s{s_q2}, v{t2}
    s_and_b64 vcc, vcc, {sr(sE,2)}
    s_and_b64 vcc, vcc, {sr(sG,2)}
    s_cmp_eq_u64 vcc, -1
    s_cbranch_scc0 {L_slow}
    {L_store}:
    v_rcp_f32 v{t1}, v{t1}
    s_lshr_b32 s{s_t0}, s{s_tok}, 4
    s_mul_i32 s{s_t0}, s{s_t0}, {20*1024}
    s_add_u32 s{s_t0}, s{s_t0}, {OIMG}
    s_lshl_b32 s{s_t1}, s{s_h}, 9
    s_add_u32 s{s_t1}, s{s_t1}, s{s_t0}
    s_lshr_b32 s{s_t2}, s{s_h}, 1
    s_lshl_b32 s{s_t2}, s{s_t2}, 8
    s_add_u32 s{s_t2}, s{s_t2}, s{s_t0}
    s_add_u32 s{s_t2}, s{s_t2}, s{s_odd8}
    s_add_u32 s{s_t2}, s{s_t2}, {16*1024}""")
    for i in range(12): k(f"v_mul_f32 v{O+i}, v{t1}, v{O+i}")
    for i in range(6): k(f"v_cvt_pk_bf16_f32 v{O+i}, v{O+2*i}, v{O+2*i+1}")
    k(f"""buffer_store_dwordx4 {vr(O,4)}, v{vt[4]}, {sr(sO,4)}, s{s_t1} offen{sc}
    s_mov_b32 exec_hi, 0
    buffer_store_dwordx2 {vr(O+4,2)}, v{vt[3]}, {sr(sO,4)}, s{s_t2} offen{sc}
    s_mov_b32 exec_hi, -1""")
    def slow():
        vV = vKA; vm = vKR; cnt = s_t3
        k(f"""{L_slow}:
        s_add_u32 s{so[0]}, s{s_pa}, {80*32768}
        s_add_u32 s{so[1]}, s{s_pr}, {80*32768}
        s_add_u32 s{so[1]}, s{so[1]}, s{s_odd8}
        v_mov_b32 v{vm}, 0xff800000
        s_mov_b32 s{cnt}, 0""")
        L1 = k.label("mx")
        k(f"""{L1}:
        buffer_load_dwordx4 {vr(Km,4)}, v{vq}, {sr(sO,4)}, s{so[0]} offen
        buffer_load_dwordx2 {vr(Kr,2)}, v{vr31}, {sr(sO,4)}, s{so[1]} offen
        s_add_u32 s{so[0]}, s{so[0]}, 512
        s_add_u32 s{so[1]}, s{so[1]}, 512
        s_waitcnt vmcnt(0)
        {M8} {vr(S[0],16)}, {vr(Kr,2)}, {vr(Qr,2)}, 0
        {M16} {vr(S[0],16)}, {vr(Km,4)}, {vr(Qm,4)}, {vr(S[0],16)}""")
        for i in range(8): k(f"v_max3_f32 v{vm}, v{S[0]+2*i}, v{S[0]+2*i+1}, v{vm}")
        k(f"""s_add_u32 s{cnt}, s{cnt}, 1
        s_cmp_lt_u32 s{cnt}, 64
        s_cbranch_scc1 {L1}
        v_mov_b32 v{t0}, v{vm}
        v_permlane32_swap_b32 v{t0}, v{vm}
        v_max_f32 v{vm}, v{vm}, v{t0}""")
        for i in range(16): k(f"v_sub_f32 v{C+i}, 0, v{vm}\nv_mov_b32 v{O+i}, 0")
        k(f"""s_add_u32 s{so[0]}, s{s_pa}, {80*32768}
        s_add_u32 s{so[1]}, s{s_pr}, {80*32768}
        s_add_u32 s{so[1]}, s{so[1]}, s{s_odd8}
        s_mul_i32 s{so[2]}, s{s_h}, {VHEAD}
        s_add_u32 s{so[2]}, s{so[2]}, {VIMG}
        v_lshrrev_b32 v{vV}, 5, v{vl}
        v_mul_u32_u24 v{vV}, 336, v{vV}
        v_add_u32 v{vV}, v{vV}, v{vr31}
        s_mov_b32 s{cnt}, 0""")
        L2 = k.label("pv")
        k(f"""{L2}:
        buffer_load_dwordx4 {vr(Km,4)}, v{vq}, {sr(sO,4)}, s{so[0]} offen
        buffer_load_dwordx2 {vr(Kr,2)}, v{vr31}, {sr(sO,4)}, s{so[1]} offen
        buffer_load_dwordx4 {vr(V0,4)}, v{vV}, {sr(sO,4)}, s{so[2]} offen
        buffer_load_dwordx4 {vr(V1[0],4)}, v{vV}, {sr(sO,4)}, s{so[2]} offen offset:672
        s_add_u32 s{so[0]}, s{so[0]}, 512
        s_add_u32 s{so[1]}, s{so[1]}, 512
        s_add_u32 s{so[2]}, s{so[2]}, 1344
        s_waitcnt vmcnt(0)
        {M8} {vr(S[0],16)}, {vr(Kr,2)}, {vr(Qr,2)}, {vr(C,16)}
        {M16} {vr(S[0],16)}, {vr(Km,4)}, {vr(Qm,4)}, {vr(S[0],16)}""")
        for i in range(16): k(f"v_exp_f32 v{S[0]+i}, v{S[0]+i}")
        for i in range(8): k(f"v_cvt_pk_bf16_f32 v{P+i}, v{S[0]+2*i}, v{S[0]+2*i+1}")
        k(f"""{M16} {vr(O,16)}, {vr(V0,4)}, {vr(P,4)}, {vr(O,16)}
        {M16} {vr(O,16)}, {vr(V1[0],4)}, {vr(P+4,4)}, {vr(O,16)}
        s_add_u32 s{cnt}, s{cnt}, 1
        s_cmp_lt_u32 s{cnt}, 64
        s_cbranch_scc1 {L2}
        v_mov_b32 v{t0}, v{O+8}
        v_mov_b32 v{t1}, v{O+8}
        v_permlane32_swap_b32 v{t0}, v{t1}
        s_branch {L_store}""")
    slow_code = deferred(slow)
    L3 = k.label("ld")
    k.stamp(8); k.nst = 8
    k(f"""s_lshr_b32 s{c.s_f}, s2, 5
    s_lshl_b32 s{c.s_f}, s{c.s_f}, 5
    s_add_u32 s{c.s_f}, s{c.s_f}, s{s_h}
    s_lshl_b32 s{c.s_f}, s{c.s_f}, {FL}
    s_add_u32 s{c.s_f}, s{c.s_f}, {F2}""")
    P3 = P35(c, 3)
    k(P3.ptr_load()); P3.ids()
    lw(c, L3)
    def handoff(vt, stmp, n):
        Ln = k.label("nw0")
        k("s_barrier")
        k(f"s_cmp_lg_u32 s{c.s_w}, 0\ns_cbranch_scc1 {Ln}")
        c.signal(c.s_f, vt); c.poll(c.s_p, n, vt, stmp)
        k(f"{Ln}:\ns_barrier")
    k("s_barrier")
    P3.setup()
    k(f"""s_lshr_b32 s{c.s_p}, s{P3.s_tb16}, 4
    s_lshl_b32 s{c.s_p}, s{c.s_p}, {FL+5}
    s_add_u32 s{c.s_p}, s{c.s_p}, {F2}
    s_waitcnt vmcnt(3)""")
    handoff(P3.vt[0], P3.s_t0, 32)
    k.stamp('n')
    P3.main(init=False, resident=True)
    k("s_barrier")
    P3.epilogue()
    k(f"""s_lshr_b32 s{c.s_f}, s{P3.s_tb16}, 3
    s_lshl_b32 s{c.s_f}, s{c.s_f}, 5
    s_bfe_u32 s{P3.s_t0}, s{P3.s_tb16}, 0x10002
    s_lshl_b32 s{P3.s_t0}, s{P3.s_t0}, 3
    s_add_u32 s{c.s_f}, s{c.s_f}, s{P3.s_t0}
    s_add_u32 s{c.s_f}, s{c.s_f}, s{P3.s_c}
    s_lshl_b32 s{c.s_f}, s{c.s_f}, {FL}
    s_add_u32 s{c.s_f}, s{c.s_f}, {F3}""")
    Q4 = P4(c, D=o.get('D4', 12)); Q4.ahead = o.get('ahead4', 4)
    Q4.ids(); Q4.setup()
    k(f"""s_lshr_b32 s{c.s_p}, s{Q4.s_tb}, 2
    s_lshl_b32 s{c.s_p}, s{c.s_p}, {FL+5}
    s_add_u32 s{c.s_p}, s{c.s_p}, {F3}
    s_waitcnt vmcnt(0)""")
    k.stamp('n')
    handoff(Q4.st, Q4.s_t1, 16)
    k.stamp('n')
    Q4.main(init=False, endbar=True)
    Q4.epilogue(k.label("fin"))
    k(f"""s_lshr_b32 s{c.s_f}, s{Q4.s_tb}, 2
    s_lshl_b32 s{c.s_f}, s{c.s_f}, 5
    s_add_u32 s{c.s_f}, s{c.s_f}, s{Q4.s_g}
    s_lshl_b32 s{c.s_f}, s{c.s_f}, {FL}
    s_add_u32 s{c.s_f}, s{c.s_f}, {F4}""")
    P5 = P35(c, 5, D=o.get('D5', 12)); P5.ahead = o.get('ahead5', 5)
    k("s_nop 1"); k(P5.ptr_load()); P5.ids(); P5.setup()
    k(f"""s_lshr_b32 s{c.s_p}, s{P5.s_tb16}, 3
    s_lshl_b32 s{c.s_p}, s{c.s_p}, {FL+5}
    s_add_u32 s{c.s_p}, s{c.s_p}, {F4}
    s_waitcnt vmcnt(0)""")
    k.stamp('n')
    handoff(P5.vt[0], P5.s_t0, 16)
    k.stamp('n')
    P5.main(init=False)
    P5.epilogue()
    c.finish()
    k(f"{L3}:")
    Lp = k.label("fp"); Lok = k.label("fpok")
    k(f"""s_mov_b32 s{P3.s_cnt}, 0
    s_waitcnt vmcnt(2)
    {Lp}:
    v_min_u32 v{vfp}, v{vfp}, v{vfp+1}
    v_min3_u32 v{vfp}, v{vfp}, v{vfp+2}, v{vfp+3}
    s_add_u32 s{P3.s_cnt}, s{P3.s_cnt}, 1
    v_cmp_ne_u32 vcc, 0, v{vfp}
    s_cmp_eq_u64 vcc, -1
    s_cbranch_scc1 {Lok}
    s_cmp_gt_u32 s{P3.s_cnt}, 0x40000
    s_cbranch_scc1 {Lok}
    s_mov_b32 s{P3.s_t0}, {FP}
    buffer_load_dwordx4 {vr(vfp,4)}, v{c.vl16}, {sr(c.sO,4)}, s{P3.s_t0} offen sc1
    s_waitcnt vmcnt(0)
    s_branch {Lp}
    {Lok}:
    s_barrier""")
    P3.ld_setup()
    k("s_waitcnt vmcnt(0)\ns_barrier")
    for ch in range(5): P3.ld_chunk(ch)
    k("s_waitcnt vmcnt(0)\ns_barrier")
    Q4.ids(); Q4.ld_setup()
    k("s_barrier")
    n4 = o.get('pre4', 2)
    for ch in range(n4): Q4.ld_chunk(ch)
    k("s_barrier")
    for ch in range(n4, 5): Q4.ld_chunk(ch)
    Q4.ld_cs()
    k("s_waitcnt vmcnt(29)\ns_barrier")
    Q4.ld_main(5, 1, init=False)
    P5.ids(); P5.ld_setup()
    k("s_barrier")
    n5 = o.get('pre5', 4)
    for ch in range(n5): P5.ld_chunk(ch)
    k("s_barrier")
    for ch in range(n5, 7): P5.ld_chunk(ch)
    k("s_waitcnt vmcnt(30)\ns_barrier")
    P5.ld_main(7, init=False)
    if K.STAMP:
        for i in range(9, 15): k.stamp(i)
        k.stamp_flush(c.sO, c.s_w)
    k("s_endpgm")
    k.lines += slow_code + spare_code
    return k, (256, 512, max(P3.lds, Q4.lds, P5.lds))
```

```python
from asmlib import *
from layout import *

def srd(k, s, base_lo, base_hi, size):
    k(f"s_mov_b32 s{s}, s{base_lo}\ns_mov_b32 s{s+1}, s{base_hi}")
    k(f"s_mov_b32 s{s+2}, {size}\ns_mov_b32 s{s+3}, 0x20000")

def gen_k1(rot=True, nostat=False, cprio=2, pf=True):
    k = K("k1_qkv_kernel")
    SLOT = 32768; NS = 4
    sP = k.s(4); sWS = k.s(2)
    sX = k.s(4); sW = k.s(4); sO = k.s(4)
    s_w = k.s(); s_tb = k.s(); s_cg = k.s(); s_t0 = k.s(); s_t1 = k.s(); s_t2 = k.s()
    s_ox = k.s(); s_ow = k.s(); s_m0x = k.s(); s_slot = k.s(); s_cnt = k.s(); s_delta = k.s(); s_rs = k.s(); s_msk = k.s()
    vl = k.v(); vt = [k.v() for _ in range(6)]
    vXA = [[k.v() for _ in range(4)] for _ in range(2)]
    vWA = [k.v() for _ in range(2)]
    vbase = k.vnext
    L_end = k.label("end"); L_spare = k.label("spare"); L_v = k.label("vpath"); L_help = k.label("help")
    NM, RS, CS = 0, 512, 1024
    k.kidx = 0; k.stamp_real(0); k.stamp(1)
    k(f"""s_load_dwordx4 {sr(sP,4)}, s[0:1], {KA_X}
    s_load_dwordx2 {sr(sWS,2)}, s[0:1], {KA_WS}
    s_cmp_ge_u32 s2, 256
    s_cbranch_scc1 {L_end}
    v_lshrrev_b32 v{vt[0]}, 6, v0
    v_and_b32 v{vl}, 63, v0
    v_readfirstlane_b32 s{s_w}, v{vt[0]}
    s_and_b32 s{s_t0}, s2, 3
    s_lshl_b32 s{s_t0}, s{s_t0}, 2
    s_bfe_u32 s{s_t1}, s2, 0x20003
    s_add_u32 s{s_tb}, s{s_t0}, s{s_t1}
    s_bfe_u32 s{s_t0}, s2, 0x10002
    s_lshl_b32 s{s_t0}, s{s_t0}, 3
    s_lshr_b32 s{s_t1}, s2, 5
    s_add_u32 s{s_cg}, s{s_t0}, s{s_t1}
    s_cmp_eq_u32 s{s_cg}, 15
    s_cbranch_scc1 {L_spare}
    s_mov_b32 s{s_msk}, 0xffff0000
    s_cmp_lt_u32 s{s_w}, 4
    s_cbranch_scc1 {L_help}
    s_setprio {cprio}
    s_sub_u32 s{s_w}, s{s_w}, 4""")
    if pf:
        sPC = k.s(2); vpf = k.v(4, 4)
        k(f'''s_getpc_b64 {sr(sPC,2)}
        L_pf_here:
        s_lshr_b32 s{s_t0}, s2, 3
        s_lshl_b32 s{s_t0}, s{s_t0}, 2
        s_add_u32 s{s_t0}, s{s_t0}, s{s_w}
        s_lshl_b32 s{s_t0}, s{s_t0}, 10
        s_min_u32 s{s_t0}, s{s_t0}, L_code_end - L_pf_here - 1024
        v_lshl_add_u32 v{vt[0]}, v{vl}, 4, s{s_t0}
        global_load_dwordx4 {vr(vpf,4)}, v{vt[0]}, {sr(sPC,2)}''')
    def xaddr(mts):
        k(f"""v_and_b32 v{vt[0]}, 31, v{vl}
        v_lshrrev_b32 v{vt[1]}, 5, v{vl}
        v_bfe_u32 v{vt[2]}, v{vl}, 1, 3
        v_xor_b32 v{vt[2]}, v{vt[2]}, v{vt[1]}
        v_lshlrev_b32 v{vt[2]}, 4, v{vt[2]}
        v_lshl_add_u32 v{vt[2]}, v{vt[0]}, 7, v{vt[2]}""")
    def advance(regs):
        k(f"s_cmp_eq_u32 s{s_slot}, {(NS-1)*SLOT}\ns_mov_b32 s{s_delta}, {SLOT}")
        k(f"s_cselect_b32 s{s_delta}, {(-(NS-1)*SLOT) & 0xffffffff}, s{s_delta}")
        k(f"s_add_u32 s{s_slot}, s{s_slot}, s{s_delta}")
        return [f"v_add_u32 v{r}, s{s_delta}, v{r}" for r in regs]
    acc = [[k.v(16, 4) for _ in range(2)] for _ in range(2)]
    fx = [[k.v(4, 4) for _ in range(2)] for _ in range(2)]
    fw = [[k.v(4, 4) for _ in range(2)] for _ in range(2)]
    vcs = k.v(2); vu = [k.v(2), k.v(2)]
    xaddr(2)
    k(f"""s_lshr_b32 s{s_t0}, s{s_w}, 1
    s_and_b32 s{s_t1}, s{s_w}, 1
    s_lshl_b32 s{s_t2}, s{s_t0}, 13
    v_add_u32 v{vXA[0][0]}, s{s_t2}, v{vt[2]}""")
    for s in range(1, 4): k(f"v_xor_b32 v{vXA[0][s]}, {32*s}, v{vXA[0][0]}")
    k(f"""v_bfe_u32 v{vt[2]}, v{vl}, 2, 2
    v_lshl_add_u32 v{vt[3]}, v{vt[1]}, 3, v{vt[2]}
    v_lshlrev_b32 v{vt[3]}, 8, v{vt[3]}
    s_lshl_b32 s{s_t2}, s{s_t1}, 1
    s_add_u32 s{s_t2}, s{s_t2}, s{s_t0}
    v_xor_b32 v{vt[2]}, s{s_t2}, v{vt[2]}
    v_lshl_add_u32 v{vt[3]}, v{vt[2]}, 6, v{vt[3]}
    v_bfe_u32 v{vt[2]}, v{vl}, 4, 1
    v_lshl_add_u32 v{vt[3]}, v{vt[2]}, 5, v{vt[3]}
    v_and_b32 v{vt[2]}, 3, v{vl}
    v_lshl_add_u32 v{vt[3]}, v{vt[2]}, 3, v{vt[3]}
    v_add_u32 v{vWA[0]}, 16384, v{vt[3]}
    v_xor_b32 v{vWA[1]}, 64, v{vWA[0]}
    v_mov_b32 v{vcs}, 0
    v_mov_b32 v{vcs+1}, 0
    s_mov_b32 s{s_slot}, 0""")
    def reads(buf, s):
        out = []
        for mt in range(2):
            out.append(f"ds_read_b128 {vr(fx[buf][mt],4)}, v{vXA[0][s]} offset:{mt*4096}")
        for nt in range(2):
            for rd in range(2):
                out.append(f"ds_read_b64_tr_b16 {vr(fw[buf][nt]+2*rd,2)}, v{vWA[nt]} offset:{(16*s+4*rd)*256}")
        return [out[2], out[3], out[0], out[1], out[4], out[5]]
    def kstep(buf, vpath, rd, extra=[], first=False):
        m = []
        for nt in range(2):
            for mt in range(2):
                a, b = (fx[buf][mt], fw[buf][nt]) if vpath else (fw[buf][nt], fx[buf][mt])
                m.append(f"v_mfma_f32_32x32x16_bf16 {vr(acc[nt][mt],16)}, {vr(a,4)}, {vr(b,4)}, {'0' if first else vr(acc[nt][mt],16)}")
        d = []
        if not nostat:
            for i in range(4):
                u = vu[i & 1]
                d += [f"v_lshlrev_b32 v{u}, 16, v{fw[buf][0]+i}", f"v_and_b32 v{u+1}, s{s_msk}, v{fw[buf][0]+i}",
                      f"v_add_f32 v{vcs}, v{vcs}, v{u}", f"v_add_f32 v{vcs+1}, v{vcs+1}, v{u+1}"]
        fill = [[] for _ in range(4)]
        for i, x in enumerate(rd): fill[i // 3].append(x)
        for i, x in enumerate(extra): fill[2 + (i & 1)].append(x)
        for i, x in enumerate(d): fill[[0, 0, 1, 1, 1, 2, 2, 2, 2, 2, 3, 3, 3, 3, 3, 3][i]].append(x)
        for i in range(4):
            k(m[i])
            for x in fill[i]: k(x)
    def chunk(vpath, last, first=False):
        for s in range(3):
            k("s_waitcnt lgkmcnt(0)")
            kstep(s & 1, vpath, reads((s + 1) & 1, s + 1), first=first and s == 0)
        k("s_waitcnt lgkmcnt(0)")
        if last:
            kstep(1, vpath, [])
            return
        k("s_barrier")
        ad = advance([vXA[0][0], vWA[0], vWA[1], vXA[0][1], vXA[0][2], vXA[0][3]])
        for x in ad[:3]: k(x)
        kstep(1, vpath, reads(0, 0), ad[3:])
    def mainloop(vpath):
        k.stamp(2)
        k("s_barrier")
        k.stamp(3)
        for x in reads(0, 0): k(x)
        chunk(vpath, False, first=True)
        L = k.label("loop")
        k(f"s_mov_b32 s{s_cnt}, 8\n{L}:")
        chunk(vpath, False)
        k(f"s_sub_u32 s{s_cnt}, s{s_cnt}, 1\ns_cmp_lg_u32 s{s_cnt}, 0\ns_cbranch_scc1 {L}")
        chunk(vpath, True)
    def epilogue(vpath):
        t = vt
        k.stamp(4)
        k(f"""v_add_f32 v{vcs}, v{vcs}, v{vcs+1}
        v_and_b32 v{t[0]}, 31, v{vl}
        v_mov_b32 v{vcs+1}, v{vcs}
        s_lshl_b32 s{s_t2}, s{s_t2}, 7
        v_lshl_add_u32 v{t[2]}, v{t[0]}, 2, s{s_t2}
        v_permlane32_swap_b32 v{vcs+1}, v{vcs}
        s_lshl_b32 s{s_ow}, s{s_t0}, 8
        v_lshl_add_u32 v{t[1]}, v{t[0]}, 2, s{s_ow}
        v_add_f32 v{vcs}, v{vcs}, v{vcs+1}
        s_waitcnt lgkmcnt(0)
        ds_write_b32 v{t[2]}, v{vcs} offset:{CS}""")
        if WSOFF: k(f"s_add_u32 s{sWS}, s{sWS}, {WSOFF}\ns_addc_u32 s{sWS+1}, s{sWS+1}, 0")
        srd(k, sO, sWS, sWS + 1, WSEND)
        la = fx[0][0]; rg = k.v(32, 4); hoff = t[3]
        k(f"""v_lshrrev_b32 v{hoff}, 5, v{vl}
        v_lshlrev_b32 v{hoff}, 4, v{hoff}
        s_waitcnt lgkmcnt(0)
        s_barrier""")
        k.stamp(5)
        if not vpath:
            k(f"""ds_read_b32 v{la+0}, v{t[1]} offset:{NM}
            ds_read_b32 v{la+2}, v{t[1]} offset:{RS}
            ds_read_b32 v{la+4}, v{t[1]} offset:{NM+128}
            ds_read_b32 v{la+6}, v{t[1]} offset:{RS+128}
            v_add_u32 v{t[5]}, s{s_t2}, v{hoff}
            v_xor_b32 v{t[4]}, 128, v{t[5]}""")
            for nt in range(2):
                for j in range(4):
                    k(f"ds_read_b128 {vr(rg+16*nt+4*j,4)}, v{t[5] if nt==0 else t[4]} offset:{CS+32*j}")
            k(f"""v_lshlrev_b32 v{t[0]}, 4, v{t[0]}
            v_lshl_add_u32 v{t[0]}, v{hoff}, 11, v{t[0]}
            s_lshl_b32 s{s_ox}, s{s_cg}, 19
            s_lshl_b32 s{s_ow}, s{s_t2}, 10
            s_add_u32 s{s_ox}, s{s_ox}, s{s_ow}
            s_lshl_b32 s{s_ow}, s{s_tb}, 11
            s_add_u32 s{s_ox}, s{s_ox}, s{s_ow}
            s_lshl_b32 s{s_ow}, s{s_t0}, 10
            s_add_u32 s{s_ox}, s{s_ox}, s{s_ow}
            s_waitcnt lgkmcnt(0)
            v_mov_b32 v{la+1}, v{la+0}
            v_mov_b32 v{la+3}, v{la+2}
            v_mov_b32 v{la+5}, v{la+4}
            v_mov_b32 v{la+7}, v{la+6}""")
            for nt in range(2):
                for mt in range(2):
                    A = acc[nt][mt]
                    for p in range(8):
                        k(f"v_pk_fma_f32 {vr(A+2*p,2)}, {vr(rg+16*nt+2*p,2)}, {vr(la+4*mt,2)}, {vr(A+2*p,2)}")
                    for p in range(8):
                        k(f"v_pk_mul_f32 {vr(A+2*p,2)}, {vr(A+2*p,2)}, {vr(la+4*mt+2,2)}")
                    for p in range(8):
                        k(f"v_cvt_pk_bf16_f32 v{A+p}, v{A+2*p}, v{A+2*p+1}")
                    k(f"s_xor_b32 s{s_ow}, s{s_ox}, {(nt*4*32768) | (mt*512)}")
                    k(f"s_add_u32 s{s_rs}, s{s_ow}, {2*32768}")
                    for jp in range(2):
                        k(f"v_permlane32_swap_b32 v{A+4*jp}, v{A+4*jp+2}\nv_permlane32_swap_b32 v{A+4*jp+1}, v{A+4*jp+3}")
                    k(f"buffer_store_dwordx4 {vr(A,4)}, v{t[0]}, {sr(sO,4)}, s{s_ow} offen")
                    k(f"buffer_store_dwordx4 {vr(A+4,4)}, v{t[0]}, {sr(sO,4)}, s{s_rs} offen")
        else:
            rg2 = k.v(32, 4)
            k(f"""v_xor_b32 v{t[4]}, 128, v{t[2]}
            ds_read_b32 v{la+0}, v{t[2]} offset:{CS}
            ds_read_b32 v{la+2}, v{t[4]} offset:{CS}
            v_add_u32 v{t[5]}, s{s_ow}, v{hoff}""")
            for mt in range(2):
                for j in range(4):
                    k(f"ds_read_b128 {vr(rg+16*mt+4*j,4)}, v{t[5]} offset:{NM+128*mt+32*j}")
                    k(f"ds_read_b128 {vr(rg2+16*mt+4*j,4)}, v{t[5]} offset:{RS+128*mt+32*j}")
            va = [la + 4, la + 5]
            k(f"""s_sub_u32 s{s_ox}, s{s_cg}, 10
            s_lshl_b32 s{s_ox}, s{s_ox}, 7
            s_lshr_b32 s{s_ow}, s{s_t2}, 2
            s_add_u32 s{s_ox}, s{s_ox}, s{s_ow}
            v_add_u32 v{t[0]}, s{s_ox}, v{t[0]}
            v_mul_u32_u24 v{hoff}, 21, v{hoff}""")
            for nt in range(2):
                if nt == 1: k(f"v_xor_b32 v{t[0]}, 32, v{t[0]}")
                k(f"""v_mul_u32_u24 v{t[1]}, 3277, v{t[0]}
                v_lshrrev_b32 v{t[1]}, 16, v{t[1]}
                v_mul_u32_u24 v{t[2]}, {VHEAD - 320}, v{t[1]}
                v_lshl_add_u32 v{t[2]}, v{t[0]}, 4, v{t[2]}
                v_add_u32 v{va[nt]}, v{t[2]}, v{hoff}""")
            k(f"""s_lshl_b32 s{s_ox}, s{s_tb}, 1
            s_add_u32 s{s_ox}, s{s_ox}, s{s_t0}
            s_mul_i32 s{s_ox}, s{s_ox}, 2688
            s_add_u32 s{s_ox}, s{s_ox}, {VIMG}
            s_waitcnt lgkmcnt(0)
            v_mov_b32 v{la+1}, v{la+0}
            v_mov_b32 v{la+3}, v{la+2}""")
            for nt in range(2):
                for mt in range(2):
                    A = acc[nt][mt]
                    for p in range(8):
                        k(f"v_pk_fma_f32 {vr(A+2*p,2)}, {vr(rg+16*mt+2*p,2)}, {vr(la+2*nt,2)}, {vr(A+2*p,2)}")
                    for p in range(8):
                        k(f"v_pk_mul_f32 {vr(A+2*p,2)}, {vr(A+2*p,2)}, {vr(rg2+16*mt+2*p,2)}")
                    for p in range(8):
                        k(f"v_cvt_pk_bf16_f32 v{A+p}, v{A+2*p}, v{A+2*p+1}")
                    k(f"buffer_store_dwordx4 {vr(A,4)}, v{va[nt]}, {sr(sO,4)}, s{s_ox} offen offset:{1344*mt}")
                    k(f"buffer_store_dwordx4 {vr(A+4,4)}, v{va[nt]}, {sr(sO,4)}, s{s_ox} offen offset:{1344*mt+672}")
        k.stamp(6); k.stamp_flush(sO, s_w)
        k("s_endpgm")
    k(f"s_cmp_ge_u32 s{s_cg}, 10\ns_cbranch_scc1 {L_v}")
    vsave = k.vnext
    mainloop(False); epilogue(False)
    k.vnext = vsave
    k(f"{L_v}:")
    mainloop(True); epilogue(True)
    k.vnext = vbase
    vX = [k.v() for _ in range(4)]; vW = [k.v() for _ in range(4)]
    hx = [k.v(16, 4), k.v(16, 4)]; vsum = k.v(2); vsq = k.v(2); hu = [k.v(2), k.v(2)]
    k(f"""{L_help}:
    v_lshrrev_b32 v{vt[0]}, 3, v{vl}
    s_lshl_b32 s{s_t0}, s{s_w}, 5
    v_add_u32 v{vt[0]}, s{s_t0}, v{vt[0]}
    v_mul_u32_u24 v{vt[0]}, 1280, v{vt[0]}
    v_lshrrev_b32 v{vt[1]}, 4, v{vl}
    v_and_b32 v{vt[2]}, 7, v{vl}
    v_xor_b32 v{vt[2]}, v{vt[2]}, v{vt[1]}
    v_lshl_add_u32 v{vX[0]}, v{vt[2]}, 4, v{vt[0]}
    v_xor_b32 v{vX[1]}, 64, v{vX[0]}
    v_add_u32 v{vX[2]}, {2*(8*1280-1024)}, v{vX[0]}
    v_add_u32 v{vX[1]}, {8*1280-1024}, v{vX[1]}
    v_add_u32 v{vX[3]}, {2*(8*1280-1024)}, v{vX[1]}
    s_lshl_b32 s{s_t0}, s{s_w}, 4
    v_add_u32 v{vt[0]}, s{s_t0}, v{vt[1]}
    v_mul_u32_u24 v{vt[0]}, 3840, v{vt[0]}
    v_and_b32 v{vt[2]}, 15, v{vl}
    v_lshlrev_b32 v{vt[3]}, 2, v{vt[1]}
    v_xor_b32 v{vt[2]}, v{vt[2]}, v{vt[3]}
    v_lshl_add_u32 v{vW[0]}, v{vt[2]}, 4, v{vt[0]}
    v_add_u32 v{vW[1]}, {4*3840-1024}, v{vW[0]}
    v_add_u32 v{vW[2]}, {2*(4*3840-1024)}, v{vW[0]}
    v_add_u32 v{vW[3]}, {3*(4*3840-1024)}, v{vW[0]}
    s_mul_i32 s{s_t0}, s{s_tb}, {128*1280}
    s_lshl_b32 s{s_t1}, s{s_cg}, 8
    s_lshl_b32 s{s_m0x}, s{s_w}, 12""")
    if rot:
        k(f"s_and_b32 s{s_t2}, s2, 7\ns_lshl_b32 s{s_ox}, s{s_t2}, 7\ns_mul_i32 s{s_ow}, s{s_t2}, {64*3840}")
    else:
        k(f"s_mov_b32 s{s_ox}, 0\ns_mov_b32 s{s_ow}, 0")
    k(f"""s_waitcnt lgkmcnt(0)
    s_add_u32 s{sX}, s{sP}, s{s_t0}
    s_addc_u32 s{sX+1}, s{sP+1}, 0
    s_mov_b32 s{sX+2}, {128*1280}
    s_mov_b32 s{sX+3}, 0x20000
    s_add_u32 s{sW}, s{sP+2}, s{s_t1}
    s_addc_u32 s{sW+1}, s{sP+3}, 0
    s_sub_u32 s{sW+2}, {640*3840}, s{s_t1}
    s_mov_b32 s{sW+3}, 0x20000""")
    def dma_chunk(slot_const=None):
        if slot_const is not None: k(f"s_add_u32 m0, s{s_m0x}, {slot_const*SLOT}")
        else: k(f"s_add_u32 m0, s{s_m0x}, s{s_rs}")
        k(f"s_add_u32 s{s_t0}, s{s_ox}, 128")
        for i in range(4):
            k(f"buffer_load_dwordx4 v{vX[i]}, {sr(sX,4)}, s{s_ox} offen offset:{i*1024} lds")
        k(f"s_add_u32 m0, m0, 16384\ns_add_u32 s{s_t1}, s{s_ow}, {64*3840}")
        for i in range(4):
            k(f"buffer_load_dwordx4 v{vW[i]}, {sr(sW,4)}, s{s_ow} offen offset:{i*1024} lds")
        k(f"""s_cmp_eq_u32 s{s_t0}, 1280
        s_cselect_b32 s{s_ox}, 0, s{s_t0}
        s_cselect_b32 s{s_ow}, 0, s{s_t1}""")
    dma_chunk(0); dma_chunk(1)
    xaddr(1)
    k(f"v_add_u32 v{vXA[0][0]}, s{s_m0x}, v{vt[2]}")
    for s in range(1, 4): k(f"v_xor_b32 v{vXA[0][s]}, {32*s}, v{vXA[0][0]}")
    k(f"""v_mov_b32 v{vsum}, 0
    v_mov_b32 v{vsum+1}, 0
    v_mov_b32 v{vsq}, 0
    v_mov_b32 v{vsq+1}, 0
    s_mov_b32 s{s_slot}, 0
    s_mov_b32 s{s_rs}, {3*SLOT}
    s_waitcnt vmcnt(8)
    s_barrier""")
    def hreads(buf):
        for s in range(4): k(f"ds_read_b128 {vr(hx[buf]+4*s,4)}, v{vXA[0][s]}")
    def hstats(buf):
        if nostat: return
        for i in range(16):
            u = hu[i & 1]
            k(f"""v_lshlrev_b32 v{u}, 16, v{hx[buf]+i}
            v_and_b32 v{u+1}, s{s_msk}, v{hx[buf]+i}
            v_add_f32 v{vsum}, v{vsum}, v{u}
            v_add_f32 v{vsum+1}, v{vsum+1}, v{u+1}
            v_fmac_f32 v{vsq}, v{u}, v{u}
            v_fmac_f32 v{vsq+1}, v{u+1}, v{u+1}""")
    hreads(0)
    dma_chunk(2)
    def hiter(buf, dma, vm):
        k(f"s_waitcnt vmcnt({vm}) lgkmcnt(0)\ns_barrier")
        for x in advance(vXA[0]): k(x)
        hreads(buf ^ 1)
        if dma:
            dma_chunk()
            k(f"s_add_u32 s{s_rs}, s{s_rs}, {SLOT}\ns_and_b32 s{s_rs}, s{s_rs}, {NS*SLOT-1}")
        hstats(buf)
    L = k.label("hloop")
    hiter(0, True, 8)
    k(f"s_mov_b32 s{s_cnt}, 3\n{L}:")
    hiter(1, True, 8); hiter(0, True, 8)
    k(f"s_sub_u32 s{s_cnt}, s{s_cnt}, 1\ns_cmp_lg_u32 s{s_cnt}, 0\ns_cbranch_scc1 {L}")
    hiter(1, False, 8); hiter(0, False, 0)
    k("s_waitcnt lgkmcnt(0)")
    hstats(1)
    t = vt
    k(f"""v_add_f32 v{vsum}, v{vsum}, v{vsum+1}
    v_add_f32 v{vsq}, v{vsq}, v{vsq+1}
    v_mov_b32 v{vsum+1}, v{vsum}
    v_mov_b32 v{vsq+1}, v{vsq}
    v_and_b32 v{t[0]}, 31, v{vl}
    s_lshl_b32 s{s_t2}, s{s_w}, 7
    v_permlane32_swap_b32 v{vsum+1}, v{vsum}
    v_permlane32_swap_b32 v{vsq+1}, v{vsq}
    v_add_f32 v{vsum}, v{vsum}, v{vsum+1}
    v_add_f32 v{vsq}, v{vsq}, v{vsq+1}
    v_mul_f32 v{vsum}, {f2u(-1.0/640):#x}, v{vsum}
    v_mul_f32 v{vsq}, {f2u(1.0/640):#x}, v{vsq}
    v_fma_f32 v{vsq}, -v{vsum}, v{vsum}, v{vsq}
    v_max_f32 v{vsq}, 0, v{vsq}
    v_add_f32 v{vsq}, {f2u(1e-5):#x}, v{vsq}
    v_rsq_f32 v{vsq}, v{vsq}
    s_cmp_lt_u32 s{s_cg}, 5
    s_cselect_b32 s{s_t1}, {f2u(QSCALE):#x}, 1.0
    v_lshl_add_u32 v{t[1]}, v{t[0]}, 2, s{s_t2}
    v_mul_f32 v{vsq}, s{s_t1}, v{vsq}
    ds_write_b32 v{t[1]}, v{vsum} offset:{NM}
    ds_write_b32 v{t[1]}, v{vsq} offset:{RS}
    s_waitcnt lgkmcnt(0)
    s_barrier
    s_endpgm""")
    k(f"{L_spare}:\ns_waitcnt lgkmcnt(0)")
    if WSOFF: k(f"s_add_u32 s{sWS}, s{sWS}, {WSOFF}\ns_addc_u32 s{sWS+1}, s{sWS+1}, 0")
    srd(k, sO, sWS, sWS + 1, WSEND)
    srd(k, sX, sWS, sWS + 1, CSG + ZERO_BYTES)
    o = hx[0]
    k(f"""s_lshl_b32 s{s_t0}, s{s_tb}, 1
    s_mul_i32 s{s_t0}, s{s_t0}, {VHEAD}
    s_add_u32 s{s_t0}, s{s_t0}, {VIMG + 320}
    v_mul_u32_u24 v{vt[0]}, 336, v0
    v_lshlrev_b32 v{vt[1]}, 4, v0
    s_lshl_b32 s{s_t1}, s{s_tb}, 13
    s_add_u32 s{s_t1}, s{s_t1}, {CSG}""")
    for i in range(4): k(f"v_mov_b32 v{o+i}, 0x3f803f80\nv_mov_b32 v{o+4+i}, 0")
    k(f"""buffer_store_dwordx4 {vr(o,4)}, v{vt[0]}, {sr(sO,4)}, s{s_t0} offen
    buffer_store_dwordx4 {vr(o+4,4)}, v{vt[1]}, {sr(sX,4)}, s{s_t1} offen
    {L_end}:
    s_endpgm""")
    return k, (256, 512, NS * SLOT)
```

```python
QKP   = 0x0000000
VIMG  = 0x0500000
ONES  = 0x0790000
VHEAD = 86016
OIMG  = 0x07C0000
HIMG  = 0x0A40000
STATS = 0x0CC0000
CSG   = 0x0CE0000
FLG   = 0x0CE4000
import os
FS = int(os.environ.get('FS', '64'))
FL = FS.bit_length() - 1
F2, F3, F4, F1 = FLG, FLG + 0x400 * FS // 4, FLG + 0xC00 * FS // 4, FLG + 0x1400 * FS // 4
FP = FLG + 0x1C00 * FS // 4
FP2 = FP + 0x400
ZERO_BYTES = FP2 + 0x400 - CSG
LN1   = 0x0D30000
ACT   = 0x0D40000
WOP   = 0x1400000
WGUP  = 0x14E0000
WDP   = 0x1940000
STAMPS = 0x1B80000
WSEND = 0x1C80000
KA_X, KA_WQKV, KA_WO, KA_BX, KA_WG, KA_WU, KA_WD, KA_OUT, KA_DBG, KA_WS = 0, 8, 16, 24, 32, 40, 48, 56, 64, 72
import math, struct
def f2u(x): return struct.unpack('<I', struct.pack('<f', x))[0]
QSCALE = (20 ** -0.5) * math.log2(math.e)
assert VIMG + 32 * VHEAD + 4096 <= OIMG and OIMG + 128 * 20480 <= HIMG and HIMG + 64 * 40960 <= STATS
assert ACT + 128 * 55296 <= WOP and WOP + 819200 <= WGUP and WGUP + 40 * 112 * 1024 <= WDP and WDP + 8 * 54 * 5120 <= STAMPS
import os
WSOFF = int(os.environ.get('WSOFF', '0'), 0)
assert CSG + ZERO_BYTES <= LN1
if os.environ.get('ACT0'): ACT = QKP
```

```python
from ph2 import *

def gen(opt):
    o = opt('M')
    c = Ctx("k2_fused_kernel", True); k = c.k
    p2(c, **opt('K2'))
    vfp = c.p2['vfp']; s_h = c.p2['s_h']; vt2 = c.p2['vt']; st2 = c.p2['st']
    L3 = k.label("ld")
    k.stamp('n')
    k(f"""s_lshr_b32 s{c.s_f}, s2, 5
    s_lshl_b32 s{c.s_f}, s{c.s_f}, 5
    s_add_u32 s{c.s_f}, s{c.s_f}, s{s_h}
    s_lshl_b32 s{c.s_f}, s{c.s_f}, 2
    s_add_u32 s{c.s_f}, s{c.s_f}, {F2}""")
    P3 = P35(c, 3)
    k(P3.ptr_load()); P3.ids()
    lw(c, L3)
    def handoff(vt, stmp, n):
        Ln = k.label("nw0")
        k.stamp('n')
        k("s_barrier")
        k.stamp('n')
        k(f"s_cmp_lg_u32 s{c.s_w}, 0\ns_cbranch_scc1 {Ln}")
        c.signal(c.s_f, vt); c.poll(c.s_p, n, vt, stmp)
        k(f"{Ln}:\ns_barrier")
    k("s_barrier")
    P3.setup()
    k(f"""s_lshr_b32 s{c.s_p}, s{P3.s_tb16}, 4
    s_lshl_b32 s{c.s_p}, s{c.s_p}, 7
    s_add_u32 s{c.s_p}, s{c.s_p}, {F2}
    s_waitcnt vmcnt(3)""")
    handoff(P3.vt[0], P3.s_t0, 32)
    k.stamp('n')
    P3.main(init=False, resident=True)
    k.stamp('n')
    k("s_barrier")
    P3.epilogue()
    k(f"""s_lshr_b32 s{c.s_f}, s{P3.s_tb16}, 3
    s_lshl_b32 s{c.s_f}, s{c.s_f}, 5
    s_bfe_u32 s{P3.s_t0}, s{P3.s_tb16}, 0x10002
    s_lshl_b32 s{P3.s_t0}, s{P3.s_t0}, 3
    s_add_u32 s{c.s_f}, s{c.s_f}, s{P3.s_t0}
    s_add_u32 s{c.s_f}, s{c.s_f}, s{P3.s_c}
    s_lshl_b32 s{c.s_f}, s{c.s_f}, 2
    s_add_u32 s{c.s_f}, s{c.s_f}, {F3}""")
    Q4 = P4(c, D=o.get('D4', 12)); Q4.ahead = o.get('ahead4', 3)
    Q4.ids(); Q4.setup()
    k(f"""s_lshr_b32 s{c.s_p}, s{Q4.s_tb}, 2
    s_lshl_b32 s{c.s_p}, s{c.s_p}, 7
    s_add_u32 s{c.s_p}, s{c.s_p}, {F3}
    s_waitcnt vmcnt(0)""")
    handoff(Q4.st, Q4.s_t1, 16)
    k.stamp('n')
    Q4.main(init=False, endbar=True)
    k.stamp('n')
    Q4.epilogue(k.label("fin"))
    k(f"""s_lshr_b32 s{c.s_f}, s{Q4.s_tb}, 2
    s_lshl_b32 s{c.s_f}, s{c.s_f}, 5
    s_add_u32 s{c.s_f}, s{c.s_f}, s{Q4.s_g}
    s_lshl_b32 s{c.s_f}, s{c.s_f}, 2
    s_add_u32 s{c.s_f}, s{c.s_f}, {F4}""")
    P5 = P35(c, 5, D=o.get('D5', 12)); P5.ahead = o.get('ahead5', 5)
    k("s_nop 1"); k(P5.ptr_load()); P5.ids(); P5.setup()
    k(f"""s_lshr_b32 s{c.s_p}, s{P5.s_tb16}, 3
    s_lshl_b32 s{c.s_p}, s{c.s_p}, 7
    s_add_u32 s{c.s_p}, s{c.s_p}, {F4}
    s_waitcnt vmcnt(0)""")
    handoff(P5.vt[0], P5.s_t0, 16)
    k.stamp('n')
    P5.main(init=False)
    P5.epilogue()
    c.finish()
    k(f"{L3}:")
    Lp = k.label("fp"); Lok = k.label("fpok")
    k(f"""s_mov_b32 s{P3.s_cnt}, 0
    s_waitcnt vmcnt(2)
    {Lp}:
    v_min_u32 v{vfp}, v{vfp}, v{vfp+1}
    v_min3_u32 v{vfp}, v{vfp}, v{vfp+2}, v{vfp+3}
    s_add_u32 s{P3.s_cnt}, s{P3.s_cnt}, 1
    v_cmp_ne_u32 vcc, 0, v{vfp}
    s_cmp_eq_u64 vcc, -1
    s_cbranch_scc1 {Lok}
    s_cmp_gt_u32 s{P3.s_cnt}, 0x40000
    s_cbranch_scc1 {Lok}
    s_mov_b32 s{P3.s_t0}, {FP}
    buffer_load_dwordx4 {vr(vfp,4)}, v{c.vl16}, {sr(c.sO,4)}, s{P3.s_t0} offen sc1
    s_waitcnt vmcnt(0)
    s_branch {Lp}
    {Lok}:
    s_barrier""")
    P3.ld_setup()
    k("s_waitcnt vmcnt(0)\ns_barrier")
    for ch in range(5): P3.ld_chunk(ch)
    k("s_waitcnt vmcnt(0)\ns_barrier")
    Q4.ids(); Q4.ld_setup()
    k("s_barrier")
    n4 = o.get('pre4', 3)
    for ch in range(n4): Q4.ld_chunk(ch)
    k("s_barrier")
    for ch in range(n4, 5): Q4.ld_chunk(ch)
    Q4.ld_cs()
    k("s_waitcnt vmcnt(29)\ns_barrier")
    Q4.ld_main(5, 1, init=False)
    P5.ids(); P5.ld_setup()
    k("s_barrier")
    n5 = o.get('pre5', 7)
    for ch in range(n5): P5.ld_chunk(ch)
    k("s_barrier")
    for ch in range(n5, 7): P5.ld_chunk(ch)
    k("s_waitcnt vmcnt(30)\ns_barrier")
    P5.ld_main(7, init=False)
    k("s_endpgm")
    c.p2['slow']()
    return k, (256, 512, max(P3.lds, Q4.lds, P5.lds))
```

```python
from asmlib import *
from layout import *
from k1 import srd
import os
M16 = "v_mfma_f32_32x32x16_bf16"
M8 = "v_mfma_f32_32x32x8_bf16"
MF = "v_mfma_f32_16x16x32_bf16"
LDS_ALL = 163840

class Ctx:
    def __init__(self, name, fused):
        self.k = k = K(name); self.fused = fused
        self.sc = " sc1" if fused else ""; self.lsc = " sc1" if fused and os.environ.get("LSC") else ""
        self.sWS = k.s(2); self.sO = k.s(4); self.s_w = k.s(); self.s_wl = k.s(); self.s_f = k.s(); self.s_p = k.s()
        self.vl = k.v(); self.vl16 = k.v()
        self.L_end = k.label("end")
        self.s0 = k.snext; self.v0 = k.vnext
    def reset(self):
        self.k.snext = self.s0; self.k.vnext = self.v0; self.k.anext = 0
    def entry(self, kidx, extra_loads=""):
        k = self.k
        k.kidx = kidx; k.stamp_real(0); k.stamp(1)
        k(f"""s_load_dwordx2 {sr(self.sWS,2)}, s[0:1], {KA_WS}""")
        k(extra_loads)
        k(f"""s_cmp_ge_u32 s2, 256
        s_cbranch_scc1 {self.L_end}
        v_lshrrev_b32 v{self.vl16}, 6, v0
        v_and_b32 v{self.vl}, 63, v0
        v_readfirstlane_b32 s{self.s_w}, v{self.vl16}
        v_lshlrev_b32 v{self.vl16}, 4, v{self.vl}
        s_and_b32 s{self.s_wl}, s{self.s_w}, 3""")
    def ws_srd(self):
        self.k("s_waitcnt lgkmcnt(0)")
        if WSOFF: self.k(f"s_add_u32 s{self.sWS}, s{self.sWS}, {WSOFF}\ns_addc_u32 s{self.sWS+1}, s{self.sWS+1}, 0")
        srd(self.k, self.sO, self.sWS, self.sWS + 1, WSEND)
    def finish(self):
        k = self.k
        k.stamp('n' if self.fused else max(6, getattr(k, 'maxst', 0) + 1)); k.stamp_flush(self.sO, self.s_w)
        k(f"{self.L_end}:\ns_endpgm")
    def signal(self, s_off, vtmp):
        k = self.k
        k(f"""v_mov_b32 v{vtmp}, 1
        v_mov_b32 v{vtmp+1}, 0
        s_mov_b64 exec, 1
        buffer_store_dword v{vtmp}, v{vtmp+1}, {sr(self.sO,4)}, s{s_off} offen sc1
        s_mov_b64 exec, -1""")
    def poll(self, s_off, n, vtmp, stmp):
        k = self.k
        L = k.label("poll"); Lx = k.label("pollx")
        k(f"""v_and_b32 v{vtmp}, {n-1}, v{self.vl}
        v_lshlrev_b32 v{vtmp}, {FL}, v{vtmp}
        s_mov_b32 s{stmp}, 0
        {L}:
        buffer_load_dword v{vtmp+1}, v{vtmp}, {sr(self.sO,4)}, s{s_off} offen sc1
        s_add_u32 s{stmp}, s{stmp}, 1
        s_cmp_gt_u32 s{stmp}, 0x40000
        s_cbranch_scc1 {Lx}
        s_waitcnt vmcnt(0)
        v_cmp_ne_u32 vcc, 0, v{vtmp+1}
        s_cmp_eq_u64 vcc, -1
        s_cbranch_scc0 {L}
        {Lx}:""")

def p2(c, prio=(16, 10, 4, 2), prep=True, cs_in=True, zv=False, zk=False, spread_st=3, oob=False, fine=False):
    k = c.k; sO = c.sO; s_w = c.s_w; vl = c.vl; vl16 = c.vl16; sc = c.sc
    SL = 12288; VB = 3 * SL; PREP = 6 * SL
    sP = k.s(8); sWD = k.s(2); sA = k.s(4); sB = k.s(4)
    s_h = k.s(); s_pa = k.s(); s_pr = k.s(); s_odd8 = k.s(); s_tok = k.s()
    s_t0 = k.s(); s_t1 = k.s(); s_t2 = k.s(); s_t3 = k.s()
    so = [k.s() for _ in range(3)]; s_d = k.s(); s_mo = k.s(); s_ms = k.s()
    sG = k.s(2); sZ = sP + 2
    sE = k.s(2); sF = k.s(2); p = [k.s() for _ in range(8)]
    vq = k.v(); vr31 = k.v(); vKA = k.v(); vKR = k.v(); vVA = k.v(); vPA = k.v(); vPS = k.v()
    vt = [k.v() for _ in range(6)]
    S = [k.v(16, 4), k.v(16, 4)]; O = k.v(16, 4); P = k.v(8, 4)
    Qm = k.v(4, 4); Qr = k.v(2); Km = k.v(4, 4); Kr = k.v(2); V0 = k.v(4, 4); V1 = [k.v(4, 4), k.v(4, 4)]
    PR = k.v(16, 4); C = S[1]; vcs = k.v(4, 2); vfp = k.v(4, 4)
    L_slow = k.label("slow"); L_store = k.label("store")
    c.entry(1, f"s_load_dwordx8 {sr(sP,8)}, s[0:1], {KA_WO}\ns_load_dwordx2 {sr(sWD,2)}, s[0:1], {KA_WD}")
    k(f"""s_and_b32 s{s_t0}, s2, 7
    s_lshl_b32 s{s_t0}, s{s_t0}, 2
    s_bfe_u32 s{s_t1}, s2, 0x20003
    s_add_u32 s{s_h}, s{s_t0}, s{s_t1}
    s_lshr_b32 s{s_t0}, s{s_h}, 1
    s_mul_i32 s{s_t0}, s{s_t0}, 5
    s_and_b32 s{s_t1}, s{s_h}, 1
    s_lshl_b32 s{s_odd8}, s{s_t1}, 3
    s_mul_i32 s{s_t1}, s{s_t1}, 3
    s_add_u32 s{s_pa}, s{s_t0}, s{s_t1}
    s_lshl_b32 s{s_pa}, s{s_pa}, 15
    s_add_u32 s{s_pr}, s{s_t0}, 2
    s_lshl_b32 s{s_pr}, s{s_pr}, 15
    s_lshl_b32 s{s_t0}, s{c.s_wl}, 10
    s_add_u32 s{s_t1}, s{s_t0}, {80*32768}
    s_add_u32 s{so[0]}, s{s_pa}, s{s_t1}
    s_add_u32 s{so[2]}, s{s_pr}, s{s_t1}
    s_mul_i32 s{s_t1}, s{c.s_wl}, 3072
    s_mul_i32 s{s_t2}, s{s_h}, {VHEAD}
    s_add_u32 s{s_t2}, s{s_t2}, s{s_t1}
    s_add_u32 s{s_t2}, s{s_t2}, {VIMG}
    s_add_u32 s{s_t3}, s{s_t2}, 2048
    s_add_u32 s{s_t1}, s{s_t1}, {VB}
    s_cmp_lt_u32 s{s_w}, 4
    s_cselect_b32 s{so[0]}, s{so[0]}, s{s_t2}
    s_cselect_b32 s{so[2]}, s{so[2]}, s{s_t3}
    s_cselect_b32 s{s_mo}, s{s_t0}, s{s_t1}
    s_movk_i32 s{s_t0}, 1024
    s_cselect_b32 s{so[1]}, 32768, s{s_t0}
    s_movk_i32 s{s_d}, 10752
    s_cselect_b32 s{s_d}, 4096, s{s_d}
    s_movk_i32 s{s_ms}, 1024
    s_cselect_b32 s{s_ms}, 4096, s{s_ms}
    s_add_u32 s{so[1]}, s{so[1]}, s{so[0]}""")
    c.ws_srd()
    def dma(slot):
        out = [f"s_add_u32 m0, s{s_mo}, {slot*SL}", "s_nop 0"]
        for i in range(3):
            out.append(f"buffer_load_dwordx4 v{vl16}, {sr(sO,4)}, s{so[i]} offen lds")
            if i < 2: out.append(f"s_add_u32 m0, m0, s{s_ms}")
            out.append(f"s_add_u32 s{so[i]}, s{so[i]}, s{s_d}")
        return out
    for x in dma(0): k(x)
    k(f"""v_and_b32 v{vr31}, 31, v{vl}
    v_lshlrev_b32 v{vr31}, 4, v{vr31}
    v_lshrrev_b32 v{vt[1]}, 5, v{vl}
    v_lshl_add_u32 v{vq}, v{vt[1]}, 15, v{vr31}
    s_lshr_b32 s{s_tok}, s2, 5
    s_lshl_b32 s{s_tok}, s{s_tok}, 8
    s_lshl_b32 s{s_t0}, s{s_w}, 5
    s_add_u32 s{s_tok}, s{s_tok}, s{s_t0}
    s_lshl_b32 s{s_t0}, s{s_tok}, 4
    s_add_u32 s{s_t1}, s{s_t0}, s{s_pa}
    s_add_u32 s{s_t2}, s{s_t0}, s{s_pr}
    s_add_u32 s{s_t2}, s{s_t2}, s{s_odd8}
    v_mov_b32 v{Qr}, 0
    v_mov_b32 v{Qr+1}, 0
    buffer_load_dwordx4 {vr(Qm,4)}, v{vq}, {sr(sO,4)}, s{s_t1} offen
    s_mov_b32 exec_hi, 0
    buffer_load_dwordx2 {vr(Qr,2)}, v{vr31}, {sr(sO,4)}, s{s_t2} offen
    s_mov_b32 exec_hi, -1""")
    for x in dma(1): k(x)
    k(f"""v_lshl_add_u32 v{vKA}, v{vt[1]}, 12, v{vr31}
    v_add_u32 v{vKR}, s{s_odd8}, v{vr31}
    v_add_u32 v{vKR}, 8192, v{vKR}
    v_mul_u32_u24 v{vt[0]}, 336, v{vt[1]}
    v_add_u32 v{vt[0]}, v{vt[0]}, v{vr31}
    v_add_u32 v{vVA}, {VB}, v{vt[0]}""")
    if oob:
        k(f"""v_cmp_lt_u32 vcc, {20*16}, v{vr31}
        v_mov_b32 v{vt[0]}, 0x40000
        v_cndmask_b32 v{vVA}, v{vVA}, v{vt[0]}, vcc
        v_cmp_lt_u32 vcc, 31, v{vl}
        v_cndmask_b32 v{vKR}, v{vKR}, v{vt[0]}, vcc""")
    id_, u, cb, st, R0, A_, B_, C_ = p
    s_po = s_t3
    def prep0():
        Ld = k.label("pd"); Lo = k.label("po"); Lc = k.label("pc"); Lg = k.label("pg")
        k(f"""s_lshl_b32 s{id_}, s2, 3
        s_add_u32 s{id_}, s{id_}, s{s_w}
        s_mov_b32 s{sA+3}, 0x20000
        s_mov_b32 s{sB+3}, 0x20000
        s_mov_b32 s{B_}, 8
        s_mov_b32 s{C_}, 4
        v_bfe_u32 v{vt[2]}, v{vl}, 4, 1
        s_cmp_ge_u32 s{id_}, 1080
        s_cbranch_scc1 {Ld}
        s_mul_i32 s{u}, s{id_}, 2428
        s_lshr_b32 s{u}, s{u}, 16
        s_mul_i32 s{cb}, s{u}, 27
        s_sub_u32 s{cb}, s{id_}, s{cb}
        s_lshl_b32 s{R0}, s{u}, 4
        s_mov_b32 s{A_}, 0
        s_movk_i32 s{st}, 3456
        s_mov_b64 {sr(sA,2)}, {sr(sP+4,2)}
        s_mov_b64 {sr(sB,2)}, {sr(sP+6,2)}
        s_mov_b32 s{sA+2}, {640*3456}
        s_mul_i32 s{s_po}, s{u}, {112*1024}
        s_add_u32 s{s_po}, s{s_po}, {WGUP}
        v_lshlrev_b32 v{vt[2]}, 11, v{vt[2]}
        v_lshl_add_u32 v{vt[3]}, v{vt[1]}, 9, v{vt[2]}
        s_branch {Lg}
        {Ld}:
        s_min_u32 s{id_}, s{id_}, 1819
        s_cmp_lt_u32 s{id_}, 1620
        s_movk_i32 s{cb}, 1620
        s_cselect_b32 s{cb}, 1080, s{cb}
        s_cselect_b64 {sr(sA,2)}, {sr(sWD,2)}, {sr(sP,2)}
        s_cselect_b32 s{A_}, 16, 20
        s_cselect_b32 s{R0}, 32, 40
        s_mov_b32 s{s_po}, {WOP}
        s_cselect_b32 s{s_po}, {WDP}, s{s_po}
        s_mov_b32 s{sA+2}, {640*1280}
        s_cselect_b32 s{sA+2}, {1728*1280}, s{sA+2}
        s_sub_u32 s{cb}, s{id_}, s{cb}
        s_mul_i32 s{u}, s{cb}, 6554
        s_lshr_b32 s{u}, s{u}, 16
        s_mul_i32 s{st}, s{u}, 10
        s_sub_u32 s{cb}, s{cb}, s{st}
        s_mul_i32 s{R0}, s{R0}, s{u}
        s_mul_i32 s{st}, s{u}, {40*1024}
        s_add_u32 s{s_po}, s{s_po}, s{st}
        s_mul_i32 s{st}, s{u}, 160
        s_sub_u32 s{st}, s{st}, {16*160-16}
        s_cmp_ge_u32 s{id_}, 1780
        s_cselect_b32 s{R0}, s{st}, s{R0}
        s_cselect_b32 s{A_}, 80, s{A_}
        s_cselect_b32 s{B_}, 20, 8
        s_cselect_b32 s{C_}, 40, 4
        s_movk_i32 s{st}, 1280
        s_mov_b64 {sr(sB,2)}, {sr(sA,2)}
        v_lshlrev_b32 v{vt[2]}, 9, v{vt[2]}
        v_lshl_add_u32 v{vt[3]}, v{vt[1]}, 11, v{vt[2]}
        {Lg}:
        s_mov_b32 s{sB+2}, s{sA+2}
        s_lshl_b32 s{sE}, s{cb}, 12
        s_add_u32 s{s_po}, s{s_po}, s{sE}
        s_lshl_b32 s{sF}, s{cb}, 9
        s_add_u32 s{sF}, s{sF}, {CSG}
        s_cmp_lt_u32 s{id_}, 1080
        s_cselect_b32 s{sF}, s{sF}, {WSEND}
        v_bfe_u32 v{vt[2]}, v{vl}, 2, 2
        v_lshl_add_u32 v{vt[3]}, v{vt[2]}, 7, v{vt[3]}
        v_and_b32 v{vt[2]}, 3, v{vl}
        v_lshl_add_u32 v{vt[3]}, v{vt[2]}, 3, v{vt[3]}
        s_lshl_b32 s{sF+1}, s{s_w}, 12
        s_add_u32 s{sF+1}, s{sF+1}, {PREP}
        v_add_u32 v{vPA}, s{sF+1}, v{vt[3]}
        v_mul_u32_u24 v{vt[2]}, s{C_}, v{vt[1]}
        v_bfe_u32 v{vt[3]}, v{vl}, 3, 2
        v_add_u32 v{vt[2]}, v{vt[2]}, v{vt[3]}
        v_mul_u32_u24 v{vt[2]}, s{st}, v{vt[2]}
        v_and_b32 v{vt[3]}, 7, v{vl}
        v_lshl_add_u32 v{vPS}, v{vt[3]}, 4, v{vt[2]}
        s_mul_i32 s{R0}, s{R0}, s{st}
        s_lshl_b32 s{cb}, s{cb}, 7
        s_add_u32 s{R0}, s{R0}, s{cb}
        s_mul_i32 s{A_}, s{A_}, s{st}
        s_mul_i32 s{B_}, s{B_}, s{st}
        s_add_u32 s{A_}, s{A_}, s{R0}
        s_add_u32 s{C_}, s{A_}, s{B_}
        s_add_u32 s{B_}, s{B_}, s{R0}""")
    def prep1():
        return [f"s_mov_b32 m0, s{sF+1}", "s_nop 0",
                f"buffer_load_dwordx4 v{vPS}, {sr(sA,4)}, s{R0} offen lds", "s_add_u32 m0, m0, 1024", "s_nop 0",
                f"buffer_load_dwordx4 v{vPS}, {sr(sA,4)}, s{B_} offen lds", "s_add_u32 m0, m0, 1024", "s_nop 0",
                f"buffer_load_dwordx4 v{vPS}, {sr(sB,4)}, s{A_} offen lds", "s_add_u32 m0, m0, 1024", "s_nop 0",
                f"buffer_load_dwordx4 v{vPS}, {sr(sB,4)}, s{C_} offen lds"]
    def prep2a():
        return [f"ds_read_b64_tr_b16 {vr(PR+4*Tl+2*rd,2)}, v{vPA} offset:{rd*1024+Tl*32}" for Tl in range(4) for rd in range(2)]
    def prep2b():
        return [f"buffer_store_dwordx4 {vr(PR+4*Tl,4)}, v{vl16}, {sr(sO,4)}, s{s_po} offen offset:{Tl*1024}{sc}" for Tl in range(4)]
    def prep3():
        o = [f"s_mov_b32 s{sE}, 0x3f803f80"]
        o += [f"v_mov_b32 v{vcs+i}, 0" for i in range(4)]
        o += [f"v_dot2c_f32_bf16 v{vcs+Tl}, s{sE}, v{PR+4*Tl+i}" for i in range(4) for Tl in range(4)]
        o += [f"v_lshlrev_b32 v{vPS}, 2, v{vl}", "s_nop 1",
              f"v_permlane32_swap_b32 v{vcs}, v{vcs+1}", f"v_permlane32_swap_b32 v{vcs+2}, v{vcs+3}",
              f"v_add_f32 v{vcs}, v{vcs}, v{vcs+1}", f"v_add_f32 v{vcs+2}, v{vcs+2}, v{vcs+3}",
              f"buffer_atomic_add_f32 v{vcs}, v{vPS}, {sr(sO,4)}, s{sF} offen",
              f"buffer_atomic_add_f32 v{vcs+2}, v{vPS}, {sr(sO,4)}, s{sF} offen offset:256"]
        return o
    if prep: prep0()
    def rdK(t):
        o = ((t // 8) % 3) * SL + (t % 8) * 512
        r = [f"ds_read_b128 {vr(Km,4)}, v{vKA} offset:{o}", f"ds_read_b64 {vr(Kr,2)}, v{vKR} offset:{o}"]
        if zk: r = [r[0], "s_mov_b32 exec_hi, 0\n" + r[1] + "\ns_mov_b32 exec_hi, -1"]
        return r
    def rdV(t):
        o = ((t // 8) % 3) * SL + (t % 8) * 1344
        return [f"ds_read_b128 {vr(V0,4)}, v{vVA} offset:{o}", f"ds_read_b128 {vr(V1[t&1],4)}, v{vVA} offset:{o+672}"]
    if not c.fused: k.stamp(2)
    k("s_waitcnt vmcnt(3)\ns_barrier")
    if not c.fused: k.stamp(3)
    if zv or zk:
        k(f"s_mov_b32 s{sZ}, 0x1fffff\ns_mov_b32 s{sZ+1}, 0x1fffff")
        for r in list(range(V0, V0 + 4)) + list(range(V1[0], V1[0] + 8)) + [Kr, Kr + 1]: k(f"v_mov_b32 v{r}, 0")
    for x in rdK(0): k(x)
    if zv: k(f"s_mov_b64 exec, {sr(sZ,2)}")
    for x in rdV(0): k(x)
    if zv: k("s_mov_b64 exec, -1")
    k(f"""s_waitcnt lgkmcnt(2)
    {M8} {vr(S[0],16)}, {vr(Kr,2)}, {vr(Qr,2)}, 0
    {M16} {vr(S[0],16)}, {vr(Km,4)}, {vr(Qm,4)}, {vr(S[0],16)}""")
    for x in rdK(1): k(x)
    TP = 23
    side = []
    vm = [0]
    def spread(n):
        for _ in range(n):
            if side:
                x = side.pop(0)
                if x == 'KV': vm[0] = 0; continue
                k(x)
                if x.startswith('buffer_'): vm[0] += 1
    for t in range(64):
        s = S[t & 1]; sn = S[(t + 1) & 1]; ch = t // 8; last = t == 63
        e = lambda *a: [(k(f"v_exp_f32 v{s+i}, v{s+i}"), spread(1)) for i in a]
        cv = lambda i: k(f"v_cvt_pk_bf16_f32 v{P+i}, v{s+2*i}, v{s+2*i+1}")
        def pr(ph):
            if prio:
                q = (4 * t + ph - 26) % 32
                cum = 0
                for lvl, ln in enumerate(prio):
                    if (q == cum and ln > 0) or (t == 0 and ph == 0 and cum <= q < cum + ln): k(f"s_setprio {3 - lvl}")
                    cum += ln
        pr(0)
        e(0, 1, 2, 3)
        if not last:
            k(f"s_waitcnt lgkmcnt({2 if t > 0 else 0})")
            k(f"{M8} {vr(sn,16)}, {vr(Kr,2)}, {vr(Qr,2)}, 0")
        pr(1)
        e(4); cv(0); e(5); cv(1); e(6, 7)
        if not last: k(f"{M16} {vr(sn,16)}, {vr(Km,4)}, {vr(Qm,4)}, {vr(sn,16)}")
        if t % 8 == 6 and ch < 7:
            assert not side
            k(f"s_waitcnt vmcnt({0 if ch in (2, 5) else vm[0]})\ns_barrier")
            if fine: k.stamp(4 + ch)
            if ch < 6: side += dma((ch + 2) % 3) + ['KV']
            if prep and ch == 0: side += prep1()
            if prep and ch == 5 and c.fused:
                Ln = k.label("nf")
                k(f"s_cmp_lg_u32 s{s_w}, 0\ns_cbranch_scc1 {Ln}\ns_lshl_b32 s{s_t0}, s2, 2\ns_add_u32 s{s_t0}, s{s_t0}, {FP}")
                c.signal(s_t0, vt[2]); k(f"{Ln}:")
            if prep and ch == 6 and c.fused:
                k(f"s_mov_b32 s{s_t0}, {FP}\nbuffer_load_dwordx4 {vr(vfp,4)}, v{vl16}, {sr(sO,4)}, s{s_t0} offen sc1")
        pr(2)
        if t < 62:
            for x in rdK(t + 2): k(x)
        if prep and t == TP:
            for x in prep2a(): k(x)
        cv(2); e(8); cv(3); e(9, 10, 11)
        nK = 2 if t < 62 else 0
        k(f"s_waitcnt lgkmcnt({nK + (8 if prep and t == TP else 0)})")
        k(f"{M16} {vr(O,16)}, {vr(V0,4)}, {vr(P,4)}, {'0' if t == 0 else vr(O,16)}")
        pr(3)
        if prep and t > TP and (t - TP - 1) % spread_st == 0 and (t - TP - 1) // spread_st < 4: side.append(prep2b()[(t - TP - 1) // spread_st])
        if prep and cs_in and t == TP + 2: side += prep3()
        cv(4); e(12); cv(5); e(13, 14, 15); cv(6)
        if not last:
            rv = rdV(t + 1)
            if zv:
                k("s_nop 0"); cv(7); k(f"s_mov_b64 exec, {sr(sZ,2)}"); k(rv[0]); k(rv[1]); k("s_mov_b64 exec, -1")
            else:
                k(rv[0]); cv(7); k(rv[1]); k("s_nop 0")
        else:
            cv(7)
        k(f"{M16} {vr(O,16)}, {vr(V1[t&1],4)}, {vr(P+4,4)}, {vr(O,16)}")
    assert not side
    t0, t1, t2 = vt[0], vt[1], vt[2]
    if fine: k.stamp(11)
    elif not c.fused: k.stamp(4); k.stamp(5)
    k(f"""s_setprio 0
    v_bfe_u32 v{vt[3]}, v{vl}, 4, 1
    v_mul_u32_u24 v{vt[3]}, {20*1024}, v{vt[3]}
    v_and_b32 v{vt[4]}, 15, v{vl}
    v_lshl_add_u32 v{vt[3]}, v{vt[4]}, 4, v{vt[3]}
    v_lshrrev_b32 v{vt[4]}, 5, v{vl}
    v_lshl_add_u32 v{vt[4]}, v{vt[4]}, 8, v{vt[3]}
    s_mov_b32 s{p[1]}, {f2u(2.0**64):#x}
    s_mov_b32 s{p[2]}, 0x7f800000
    v_mov_b32 v{t0}, v{O+8}
    v_mov_b32 v{t1}, v{O+8}
    v_add_f32 v{t2}, |v{O}|, |v{O+1}|
    v_add_f32 v{t2}, |v{O+2}|, v{t2}
    v_permlane32_swap_b32 v{t0}, v{t1}""")
    for i in range(3, 12):
        if i == 8: k("s_mov_b32 exec_hi, 0")
        k(f"v_add_f32 v{t2}, |v{O+i}|, v{t2}")
    k(f"""s_mov_b32 exec_hi, -1
    v_cmp_lt_f32 vcc, {f2u(2.0**-64):#x}, v{t1}
    v_cmp_gt_f32 {sr(sE,2)}, s{p[1]}, v{t1}
    v_cmp_gt_f32 {sr(sG,2)}, s{p[2]}, v{t2}
    s_and_b64 vcc, vcc, {sr(sE,2)}
    s_and_b64 vcc, vcc, {sr(sG,2)}
    s_cmp_eq_u64 vcc, -1
    s_cbranch_scc0 {L_slow}
    {L_store}:
    v_rcp_f32 v{t1}, v{t1}
    s_lshr_b32 s{s_t0}, s{s_tok}, 4
    s_mul_i32 s{s_t0}, s{s_t0}, {20*1024}
    s_add_u32 s{s_t0}, s{s_t0}, {OIMG}
    s_lshl_b32 s{s_t1}, s{s_h}, 9
    s_add_u32 s{s_t1}, s{s_t1}, s{s_t0}
    s_lshr_b32 s{s_t2}, s{s_h}, 1
    s_lshl_b32 s{s_t2}, s{s_t2}, 8
    s_add_u32 s{s_t2}, s{s_t2}, s{s_t0}
    s_add_u32 s{s_t2}, s{s_t2}, s{s_odd8}
    s_add_u32 s{s_t2}, s{s_t2}, {16*1024}""")
    for i in range(12): k(f"v_mul_f32 v{O+i}, v{t1}, v{O+i}")
    for i in range(6): k(f"v_cvt_pk_bf16_f32 v{O+i}, v{O+2*i}, v{O+2*i+1}")
    k(f"""buffer_store_dwordx4 {vr(O,4)}, v{vt[4]}, {sr(sO,4)}, s{s_t1} offen{sc}
    s_mov_b32 exec_hi, 0
    buffer_store_dwordx2 {vr(O+4,2)}, v{vt[3]}, {sr(sO,4)}, s{s_t2} offen{sc}
    s_mov_b32 exec_hi, -1""")
    def slow():
        vV = vKA; vm = vKR; cnt = p[3]
        k(f"""{L_slow}:
        s_add_u32 s{so[0]}, s{s_pa}, {80*32768}
        s_add_u32 s{so[1]}, s{s_pr}, {80*32768}
        s_add_u32 s{so[1]}, s{so[1]}, s{s_odd8}
        v_mov_b32 v{vm}, 0xff800000
        s_mov_b32 s{cnt}, 0""")
        L1 = k.label("mx")
        k(f"""{L1}:
        buffer_load_dwordx4 {vr(Km,4)}, v{vq}, {sr(sO,4)}, s{so[0]} offen
        buffer_load_dwordx2 {vr(Kr,2)}, v{vr31}, {sr(sO,4)}, s{so[1]} offen
        s_add_u32 s{so[0]}, s{so[0]}, 512
        s_add_u32 s{so[1]}, s{so[1]}, 512
        s_waitcnt vmcnt(0)
        {M8} {vr(S[0],16)}, {vr(Kr,2)}, {vr(Qr,2)}, 0
        {M16} {vr(S[0],16)}, {vr(Km,4)}, {vr(Qm,4)}, {vr(S[0],16)}""")
        for i in range(8): k(f"v_max3_f32 v{vm}, v{S[0]+2*i}, v{S[0]+2*i+1}, v{vm}")
        k(f"""s_add_u32 s{cnt}, s{cnt}, 1
        s_cmp_lt_u32 s{cnt}, 64
        s_cbranch_scc1 {L1}
        v_mov_b32 v{t0}, v{vm}
        v_permlane32_swap_b32 v{t0}, v{vm}
        v_max_f32 v{vm}, v{vm}, v{t0}""")
        for i in range(16): k(f"v_sub_f32 v{C+i}, 0, v{vm}\nv_mov_b32 v{O+i}, 0")
        k(f"""s_add_u32 s{so[0]}, s{s_pa}, {80*32768}
        s_add_u32 s{so[1]}, s{s_pr}, {80*32768}
        s_add_u32 s{so[1]}, s{so[1]}, s{s_odd8}
        s_mul_i32 s{so[2]}, s{s_h}, {VHEAD}
        s_add_u32 s{so[2]}, s{so[2]}, {VIMG}
        v_lshrrev_b32 v{vV}, 5, v{vl}
        v_mul_u32_u24 v{vV}, 336, v{vV}
        v_add_u32 v{vV}, v{vV}, v{vr31}
        s_mov_b32 s{cnt}, 0""")
        L2 = k.label("pv")
        k(f"""{L2}:
        buffer_load_dwordx4 {vr(Km,4)}, v{vq}, {sr(sO,4)}, s{so[0]} offen
        buffer_load_dwordx2 {vr(Kr,2)}, v{vr31}, {sr(sO,4)}, s{so[1]} offen
        buffer_load_dwordx4 {vr(V0,4)}, v{vV}, {sr(sO,4)}, s{so[2]} offen
        buffer_load_dwordx4 {vr(V1[0],4)}, v{vV}, {sr(sO,4)}, s{so[2]} offen offset:672
        s_add_u32 s{so[0]}, s{so[0]}, 512
        s_add_u32 s{so[1]}, s{so[1]}, 512
        s_add_u32 s{so[2]}, s{so[2]}, 1344
        s_waitcnt vmcnt(0)
        {M8} {vr(S[0],16)}, {vr(Kr,2)}, {vr(Qr,2)}, {vr(C,16)}
        {M16} {vr(S[0],16)}, {vr(Km,4)}, {vr(Qm,4)}, {vr(S[0],16)}""")
        for i in range(16): k(f"v_exp_f32 v{S[0]+i}, v{S[0]+i}")
        for i in range(8): k(f"v_cvt_pk_bf16_f32 v{P+i}, v{S[0]+2*i}, v{S[0]+2*i+1}")
        k(f"""{M16} {vr(O,16)}, {vr(V0,4)}, {vr(P,4)}, {vr(O,16)}
        {M16} {vr(O,16)}, {vr(V1[0],4)}, {vr(P+4,4)}, {vr(O,16)}
        s_add_u32 s{cnt}, s{cnt}, 1
        s_cmp_lt_u32 s{cnt}, 64
        s_cbranch_scc1 {L2}
        v_mov_b32 v{t0}, v{O+8}
        v_mov_b32 v{t1}, v{O+8}
        v_permlane32_swap_b32 v{t0}, v{t1}
        s_branch {L_store}""")
    c.p2 = dict(slow=slow, vfp=vfp, s_h=s_h, prep3=(lambda: [k(x) for x in prep3()]) if prep and not cs_in else (lambda: None), vt=vt, st=[s_t0, s_t1, s_t2])
    return PREP + 32768

def gen(which, opt):
    if which == '2':
        c = Ctx("k2_attn_kernel", False)
        lds = p2(c, **opt('K2'))
        c.p2['prep3'](); c.finish(); c.p2['slow']()
        return c.k, (256, 512, lds)
    import ph2
    return ph2.gen(which, opt)
```

```python
from ph import *

def lw(c, L):
    c.k(f"s_cmp_ge_u32 s{c.s_w}, 4\ns_cbranch_scc1 {L}")

class P35:
    def __init__(self, c, which, D=12):
        self.c = c; self.k3 = k3 = which == 3; k = c.k
        self.NU = 20 if k3 else 54; self.CK = 4; self.SLOT = 20480
        self.NCH = (self.NU + 3) // 4; self.NSL = 5 if k3 else 7
        self.XS = self.NSL * self.SLOT; self.D = 20 if k3 else D
        self.lds = self.XS + 4 * 3072
        c.reset()
        self.sPX = k.s(2); self.sB = k.s(4); self.sX = k.s(4)
        (self.s_tb16, self.s_c, self.s_t0, self.s_t1, self.s_t2, self.s_bo, self.s_wo, self.s_m0, self.s_xs, self.s_ho,
         self.s_cnt) = [k.s() for _ in range(11)]
        self.vt = [k.v() for _ in range(6)]; self.vH = k.v(); self.vD = k.v(); self.vA = [k.v() for _ in range(3)]
        self.vrow = [k.v() for _ in range(3)]
        self.acc = k.v(20, 4); self.fa = [k.v(20, 4) for _ in range(3)]; self.res = k.v(12, 4)
        self.fb = k.v(4 * self.D, 4)
    def ptr_load(self): return f"s_load_dwordx2 {sr(self.sPX,2)}, s[0:1], {KA_X if self.k3 else KA_OUT}"
    def ids(self):
        k = self.c.k
        k(f"""s_and_b32 s{self.s_t0}, s2, 3
        s_lshl_b32 s{self.s_t0}, s{self.s_t0}, 3
        s_bfe_u32 s{self.s_t1}, s2, 0x30003
        s_add_u32 s{self.s_tb16}, s{self.s_t0}, s{self.s_t1}
        s_lshl_b32 s{self.s_tb16}, s{self.s_tb16}, 2
        s_add_u32 s{self.s_tb16}, s{self.s_tb16}, s{self.c.s_wl}
        s_bfe_u32 s{self.s_t0}, s2, 0x10002
        s_lshl_b32 s{self.s_t0}, s{self.s_t0}, 2
        s_lshr_b32 s{self.s_t1}, s2, 6
        s_add_u32 s{self.s_c}, s{self.s_t0}, s{self.s_t1}""")
    def ld_setup(self):
        k = self.c.k
        k(f"""s_mul_i32 s{self.s_wo}, s{self.c.s_wl}, 8
        s_add_u32 s{self.s_wo}, s{self.s_wo}, s{self.s_c}
        s_mul_i32 s{self.s_wo}, s{self.s_wo}, 5120
        s_add_u32 s{self.s_wo}, s{self.s_wo}, {WOP if self.k3 else WDP}
        s_mul_i32 s{self.s_m0}, s{self.c.s_wl}, 5120""")
    def ld_chunk(self, slot):
        k = self.c.k; c = self.c
        k(f"s_add_u32 m0, s{self.s_m0}, {slot*self.SLOT}\ns_add_u32 s{self.s_t2}, s{self.s_wo}, 4096")
        for i in range(4):
            k(f"buffer_load_dwordx4 v{c.vl16}, {sr(c.sO,4)}, s{self.s_wo} offen offset:{i*1024}{c.lsc} lds")
        k(f"s_add_u32 m0, m0, 4096\ns_add_u32 s{self.s_wo}, s{self.s_wo}, {4*40960}")
        k(f"buffer_load_dwordx4 v{c.vl16}, {sr(c.sO,4)}, s{self.s_t2} offen{c.lsc} lds")
    def ld_main(self, issued, init=True):
        k = self.c.k; NCH = self.NCH
        if init: k(f"s_waitcnt vmcnt({5*(issued-1)})\ns_barrier")
        for ch in range(NCH - 1):
            k(f"s_waitcnt vmcnt({5*max(0, issued-ch-2)})\ns_barrier")
            while issued < NCH and issued < ch + self.NSL and issued <= ch + 1 + self.ahead:
                self.ld_chunk(issued % self.NSL); issued += 1
    def setup(self):
        k = self.c.k; c = self.c; vt = self.vt; vl = c.vl
        for i in range(3):
            k(f"""v_add_u32 v{vt[0]}, {64*i}, v{vl}
            v_mul_u32_u24 v{vt[1]}, 6554, v{vt[0]}
            v_lshrrev_b32 v{vt[1]}, 16, v{vt[1]}
            v_mul_u32_u24 v{vt[1]}, {1280-160}, v{vt[1]}
            v_lshl_add_u32 v{self.vrow[i]}, v{vt[0]}, 4, v{vt[1]}""")
        k(f"""s_mul_i32 s{self.s_t1}, s{self.s_tb16}, {16*1280}
        s_mul_i32 s{self.s_t2}, s{self.s_c}, 160
        s_add_u32 s{self.s_t1}, s{self.s_t1}, s{self.s_t2}
        s_waitcnt lgkmcnt(0)
        s_add_u32 s{self.sX}, s{self.sPX}, s{self.s_t1}
        s_addc_u32 s{self.sX+1}, s{self.sPX+1}, 0
        s_sub_u32 s{self.sX+2}, {2048*1280}, s{self.s_t1}
        s_mov_b32 s{self.sX+3}, 0x20000
        s_mul_i32 s{self.s_xs}, s{c.s_wl}, 3072
        s_add_u32 s{self.s_xs}, s{self.s_xs}, {self.XS}""")
        if self.k3:
            k(f"s_mov_b32 m0, s{self.s_xs}")
            for i in range(3):
                k(f"s_nop 0\nbuffer_load_dwordx4 v{self.vrow[i]}, {sr(self.sX,4)}, 0 offen lds")
                if i < 2: k("s_add_u32 m0, m0, 1024")
        k(f"""v_lshrrev_b32 v{vt[0]}, 4, v{vl}
        v_and_b32 v{vt[1]}, 15, v{vl}
        v_lshlrev_b32 v{vt[2]}, 4, v{vt[1]}
        v_lshl_add_u32 v{self.vH}, v{vt[0]}, 9, v{vt[2]}
        s_lshr_b32 s{self.s_t1}, s{self.s_tb16}, 1
        s_mul_i32 s{self.s_t1}, s{self.s_t1}, 40
        s_mul_i32 s{self.s_t2}, s{self.s_c}, 5
        s_add_u32 s{self.s_t1}, s{self.s_t1}, s{self.s_t2}
        s_lshl_b32 s{self.s_t1}, s{self.s_t1}, 10
        s_and_b32 s{self.s_t2}, s{c.s_w}, 1
        s_lshl_b32 s{self.s_t2}, s{self.s_t2}, 8
        s_add_u32 s{self.s_t1}, s{self.s_t1}, s{self.s_t2}
        s_add_u32 s{self.s_ho}, s{self.s_t1}, {HIMG}
        v_mul_u32_u24 v{vt[1]}, 160, v{vt[1]}
        v_lshl_add_u32 v{vt[1]}, v{vt[0]}, 3, v{vt[1]}
        v_add_u32 v{self.vD}, s{self.s_xs}, v{vt[1]}
        v_mov_b32 v{self.vA[0]}, v{c.vl16}
        v_add_u32 v{self.vA[1]}, {3*self.SLOT}, v{c.vl16}
        v_add_u32 v{self.vA[2]}, {6*self.SLOT}, v{c.vl16}
        s_mul_i32 s{self.s_bo}, s{self.s_tb16}, {self.NU*1024}
        s_add_u32 s{self.s_bo}, s{self.s_bo}, {OIMG if self.k3 else ACT}""")
    def loadB(self, u):
        k = self.c.k; c = self.c
        k(f"buffer_load_dwordx4 {vr(self.fb+4*(u % self.D),4)}, v{c.vl16}, {sr(c.sO,4)}, s{self.s_bo} offen offset:{(u%4)*1024}{c.lsc}")
        if u % 4 == 3: k(f"s_add_u32 s{self.s_bo}, s{self.s_bo}, 4096")
    def rdA(self, u):
        slot = (u // 4) % self.NSL
        return [f"ds_read_b128 {vr(self.fa[u%3]+4*T,4)}, v{self.vA[slot//3]} offset:{(slot%3)*self.SLOT+((u%4)*5+T)*1024}" for T in range(5)]
    def main(self, init=True, resident=False):
        k = self.c.k; c = self.c; NU = self.NU; D = self.D; res = self.res
        nres = 0
        for u in range(D):
            self.loadB(u)
            if u == 3 and not self.k3:
                k(f"""s_add_u32 s{self.s_t1}, s{self.s_ho}, 4096
                buffer_load_dwordx4 {vr(res,4)}, v{self.vH}, {sr(c.sO,4)}, s{self.s_ho} offen{c.lsc}
                buffer_load_dwordx4 {vr(res+4,4)}, v{self.vH}, {sr(c.sO,4)}, s{self.s_ho} offen offset:2048{c.lsc}
                buffer_load_dwordx4 {vr(res+8,4)}, v{self.vH}, {sr(c.sO,4)}, s{self.s_t1} offen{c.lsc}""")
        if not c.fused: k.stamp(2)
        if init: k("s_barrier")
        if not c.fused: k.stamp(3)
        for x in self.rdA(0) + self.rdA(1): k(x)
        for u in range(NU):
            rd = []
            if u % 4 == 2 and u // 4 < self.NCH - 1 and not resident: k("s_barrier")
            if u + 2 < NU: rd = self.rdA(u + 2)
            younger = min(NU - 1, u + D - 1) - u + (3 if (not self.k3 and u <= 3) else 0)
            k(f"s_waitcnt vmcnt({younger}) lgkmcnt({5 if u + 1 < NU else 0})")
            b = self.fb + 4 * (u % D)
            for T in range(5):
                k(f"{MF} {vr(self.acc+4*T,4)}, {vr(self.fa[u%3]+4*T,4)}, {vr(b,4)}, {'0' if u == 0 else vr(self.acc+4*T,4)}")
                if T < len(rd): k(rd[T])
            if u + D < NU: self.loadB(u + D)
        if self.k3:
            for T in range(5): k(f"ds_read_b64 {vr(self.fa[0]+2*T,2)}, v{self.vD} offset:{T*32}")
            k("s_waitcnt lgkmcnt(0)")
    def epilogue(self):
        k = self.c.k; c = self.c; t = self.vt; acc = self.acc; res = self.res; sO = c.sO; vH = self.vH; sc = c.sc
        if self.k3:
            k(f"s_mov_b32 s{self.s_cnt}, 0x3f803f80\nv_mov_b32 v{t[0]}, 0\nv_mov_b32 v{t[1]}, 0")
            src = self.fa[0]
        else:
            for p in range(3):
                k(f"v_permlane32_swap_b32 v{res+4*p}, v{res+4*p+2}\nv_permlane32_swap_b32 v{res+4*p+1}, v{res+4*p+3}")
            src = res
        pk = self.fa[1]
        for T in range(5):
            for d in range(2):
                x = src + 2 * T + d; a = acc + 4 * T + 2 * d
                k(f"""v_lshlrev_b32 v{t[2+2*d]}, 16, v{x}
                v_and_b32 v{t[3+2*d]}, 0xffff0000, v{x}
                v_add_f32 v{a}, v{a}, v{t[2+2*d]}
                v_add_f32 v{a+1}, v{a+1}, v{t[3+2*d]}
                v_cvt_pk_bf16_f32 v{pk+2*T+d}, v{a}, v{a+1}""")
        if self.k3:
            for i in range(10):
                k(f"v_dot2c_f32_bf16 v{t[0]}, s{self.s_cnt}, v{pk+i}\nv_dot2c_f32_bf16 v{t[1]}, v{pk+i}, v{pk+i}")
            for p in range(3):
                k(f"v_permlane32_swap_b32 v{pk+4*p}, v{pk+4*p+2}\nv_permlane32_swap_b32 v{pk+4*p+1}, v{pk+4*p+3}")
            k(f"""s_add_u32 s{self.s_t1}, s{self.s_ho}, 4096
            buffer_store_dwordx4 {vr(pk,4)}, v{vH}, {sr(sO,4)}, s{self.s_ho} offen{sc}
            buffer_store_dwordx4 {vr(pk+4,4)}, v{vH}, {sr(sO,4)}, s{self.s_ho} offen offset:2048{sc}
            s_mov_b32 exec_hi, 0
            buffer_store_dwordx4 {vr(pk+8,4)}, v{vH}, {sr(sO,4)}, s{self.s_t1} offen{sc}
            s_mov_b32 exec_hi, -1
            v_mov_b32 v{t[2]}, v{t[0]}
            v_mov_b32 v{t[3]}, v{t[1]}
            v_permlane32_swap_b32 v{t[2]}, v{t[0]}
            v_permlane32_swap_b32 v{t[3]}, v{t[1]}
            v_add_f32 v{t[0]}, v{t[0]}, v{t[2]}
            v_add_f32 v{t[1]}, v{t[1]}, v{t[3]}
            v_mov_b32 v{t[2]}, v{t[0]}
            v_mov_b32 v{t[3]}, v{t[1]}
            v_permlane16_swap_b32 v{t[2]}, v{t[0]}
            v_permlane16_swap_b32 v{t[3]}, v{t[1]}
            v_add_f32 v{acc}, v{t[0]}, v{t[2]}
            v_add_f32 v{acc+1}, v{t[1]}, v{t[3]}
            v_lshlrev_b32 v{t[4]}, 3, v{c.vl}
            s_lshl_b32 s{self.s_t2}, s{self.s_c}, 14
            s_lshl_b32 s{self.s_t0}, s{self.s_tb16}, 7
            s_add_u32 s{self.s_t2}, s{self.s_t2}, s{self.s_t0}
            s_add_u32 s{self.s_t2}, s{self.s_t2}, {STATS}
            s_mov_b64 exec, 0xffff
            buffer_store_dwordx2 {vr(acc,2)}, v{t[4]}, {sr(sO,4)}, s{self.s_t2} offen{sc}
            s_mov_b64 exec, -1""")
        else:
            for T in range(5): k(f"ds_write_b64 v{self.vD}, {vr(pk+2*T,2)} offset:{T*32}")
            k(f"v_add_u32 v{t[0]}, s{self.s_xs}, v{c.vl16}\ns_waitcnt lgkmcnt(0)")
            for i in range(3): k(f"ds_read_b128 {vr(self.fa[0]+4*i,4)}, v{t[0]} offset:{i*1024}")
            for i in range(3):
                k(f"s_waitcnt lgkmcnt({2-i})")
                if i == 2: k("s_mov_b32 exec_hi, 0")
                k(f"buffer_store_dwordx4 {vr(self.fa[0]+4*i,4)}, v{self.vrow[i]}, {sr(self.sX,4)}, 0 offen")
            k("s_mov_b32 exec_hi, -1")

class P4:
    CK, NSL, NCH, SLOT = 4, 5, 10, 28672
    CSB = 5 * 28672
    def __init__(self, c, D=12):
        self.c = c; k = c.k; self.D = D; self.lds = self.CSB + 1024
        c.reset()
        (self.s_tb, self.s_g, self.s_t0, self.s_t1, self.s_t2, self.s_bo, self.s_wo, self.s_m0) = [k.s() for _ in range(8)]
        self.vt = [k.v() for _ in range(4)]; self.vA = [k.v() for _ in range(3)]
        self.st = k.v(8, 4); self.par = k.v(6, 2)
        self.acc = [k.v(16, 4) for _ in range(7)]
        self.fa = [k.v(28, 4), k.v(28, 4)]
        self.fb = k.v(4 * D, 4)
    def ids(self):
        k = self.c.k
        k(f"""s_and_b32 s{self.s_t0}, s2, 1
        s_lshl_b32 s{self.s_t0}, s{self.s_t0}, 3
        s_bfe_u32 s{self.s_t1}, s2, 0x30003
        s_add_u32 s{self.s_tb}, s{self.s_t0}, s{self.s_t1}
        s_lshl_b32 s{self.s_tb}, s{self.s_tb}, 2
        s_add_u32 s{self.s_tb}, s{self.s_tb}, s{self.c.s_wl}
        s_bfe_u32 s{self.s_t0}, s2, 0x20001
        s_lshl_b32 s{self.s_t0}, s{self.s_t0}, 2
        s_lshr_b32 s{self.s_t1}, s2, 6
        s_add_u32 s{self.s_g}, s{self.s_t0}, s{self.s_t1}""")
    def ld_setup(self):
        k = self.c.k
        k(f"""s_mul_i32 s{self.s_wo}, s{self.c.s_wl}, 16
        s_add_u32 s{self.s_wo}, s{self.s_wo}, s{self.s_g}
        s_mul_i32 s{self.s_wo}, s{self.s_wo}, 7168
        s_add_u32 s{self.s_wo}, s{self.s_wo}, {WGUP}
        s_mul_i32 s{self.s_m0}, s{self.c.s_wl}, 7168""")
    def ld_chunk(self, slot):
        k = self.c.k; c = self.c
        k(f"s_add_u32 m0, s{self.s_m0}, {slot*self.SLOT}\ns_add_u32 s{self.s_t2}, s{self.s_wo}, 4096")
        for i in range(4):
            k(f"buffer_load_dwordx4 v{c.vl16}, {sr(c.sO,4)}, s{self.s_wo} offen offset:{i*1024}{c.lsc} lds")
        k(f"s_add_u32 m0, m0, 4096\ns_add_u32 s{self.s_wo}, s{self.s_wo}, {4*112*1024}")
        for i in range(3):
            k(f"buffer_load_dwordx4 v{c.vl16}, {sr(c.sO,4)}, s{self.s_t2} offen offset:{i*1024}{c.lsc} lds")
    def ld_cs(self):
        k = self.c.k; c = self.c
        k(f"""s_mul_i32 s{self.s_t2}, s{self.s_g}, 896
        s_mov_b32 m0, {self.CSB}
        s_add_u32 s{self.s_t2}, s{self.s_t2}, {CSG}
        buffer_load_dwordx4 v{c.vl16}, {sr(c.sO,4)}, s{self.s_t2} offen{c.lsc} lds""")
    def ld_main(self, issued, extra, init=True):
        k = self.c.k; NCH = self.NCH
        if init: k(f"s_waitcnt vmcnt({7*(issued-1)+extra})\ns_barrier")
        for ch in range(NCH - 1):
            k(f"s_waitcnt vmcnt({7*max(0, issued-ch-2)})\ns_barrier")
            while issued < NCH and issued <= ch + self.NSL and issued <= ch + 1 + self.ahead:
                self.ld_chunk(issued % self.NSL); issued += 1
    def setup(self):
        k = self.c.k; c = self.c; vt = self.vt
        k(f"""v_mov_b32 v{self.vA[0]}, v{c.vl16}
        v_add_u32 v{self.vA[1]}, {2*self.SLOT}, v{c.vl16}
        v_add_u32 v{self.vA[2]}, {4*self.SLOT}, v{c.vl16}
        s_mul_i32 s{self.s_bo}, s{self.s_tb}, 40960
        s_add_u32 s{self.s_bo}, s{self.s_bo}, {HIMG}
        v_and_b32 v{vt[0]}, 31, v{c.vl}
        v_lshrrev_b32 v{vt[1]}, 5, v{c.vl}
        v_lshlrev_b32 v{vt[2]}, 3, v{vt[0]}
        v_lshl_add_u32 v{vt[2]}, v{vt[1]}, 16, v{vt[2]}
        s_lshl_b32 s{self.s_t0}, s{self.s_tb}, 8
        s_add_u32 s{self.s_t0}, s{self.s_t0}, {STATS}""")
    def loadB(self, u):
        k = self.c.k; c = self.c
        k(f"buffer_load_dwordx4 {vr(self.fb+4*(u % self.D),4)}, v{c.vl16}, {sr(c.sO,4)}, s{self.s_bo} offen offset:{(u%4)*1024}{c.lsc}")
        if u % 4 == 3: k(f"s_add_u32 s{self.s_bo}, s{self.s_bo}, 4096")
    def rdA(self, u):
        slot = (u // 4) % self.NSL
        return [f"ds_read_b128 {vr(self.fa[u&1]+4*T,4)}, v{self.vA[slot//2]} offset:{(slot%2)*self.SLOT+((u%4)*7+T)*1024}" for T in range(7)]
    def main(self, init=True, endbar=False):
        k = self.c.k; c = self.c; D = self.D; st = self.st
        for u in range(D):
            self.loadB(u)
            if u == 3:
                for i in range(4):
                    k(f"buffer_load_dwordx2 {vr(st+2*i,2)}, v{self.vt[2]}, {sr(c.sO,4)}, s{self.s_t0} offen{c.lsc}")
                    if i < 3: k(f"s_add_u32 s{self.s_t0}, s{self.s_t0}, 16384")
        if not c.fused: k.stamp(2)
        if init: k("s_barrier")
        if not c.fused: k.stamp(3)
        for x in self.rdA(0): k(x)
        for u in range(40):
            younger = min(39, u + D - 1) - u + (4 if u <= 3 else 0)
            k(f"s_waitcnt vmcnt({younger}) lgkmcnt(0)")
            if u % 4 == 3 and (u < 39 or endbar): k("s_barrier")
            rd = self.rdA(u + 1) if u < 39 else []
            b = self.fb + 4 * (u % D)
            for T in range(7):
                k(f"{M16} {vr(self.acc[T],16)}, {vr(self.fa[u&1]+4*T,4)}, {vr(b,4)}, {'0' if u == 0 else vr(self.acc[T],16)}")
                for x in rd[2*T:2*T+2]: k(x)
                if T == 4 and u + D < 40 and u > 0: self.loadB(u + D - 1) if False else None
            if u + D < 40: self.loadB(u + D)
    def epilogue(self, L_fin):
        k = self.c.k; c = self.c; t = self.vt; st = self.st; par = self.par; vl = c.vl
        k(f"""v_lshrrev_b32 v{t[0]}, 5, v{vl}
        v_lshlrev_b32 v{t[1]}, 4, v{t[0]}
        v_add_u32 v{t[1]}, {self.CSB}, v{t[1]}""")
        cs = [self.fa[0], self.fa[0] + 16, self.fa[0] + 32]; tmp = self.fb
        def rdcs(T):
            for j in range(4): k(f"ds_read_b128 {vr(cs[T%3]+4*j,4)}, v{t[1]} offset:{T*128+32*j}")
        rdcs(0); rdcs(1)
        k(f"""v_add_f32 v{st}, v{st}, v{st+2}
        v_add_f32 v{st+1}, v{st+1}, v{st+3}
        v_add_f32 v{st+4}, v{st+4}, v{st+6}
        v_add_f32 v{st+5}, v{st+5}, v{st+7}
        v_add_f32 v{st}, v{st}, v{st+4}
        v_add_f32 v{st+1}, v{st+1}, v{st+5}
        v_mov_b32 v{st+2}, v{st}
        v_mov_b32 v{st+3}, v{st+1}
        v_bfe_u32 v{t[2]}, v{vl}, 4, 1
        v_mul_u32_u24 v{t[2]}, 55296, v{t[2]}
        v_permlane32_swap_b32 v{st+2}, v{st}
        v_permlane32_swap_b32 v{st+3}, v{st+1}
        v_add_f32 v{st}, v{st}, v{st+2}
        v_add_f32 v{st+1}, v{st+1}, v{st+3}
        v_mul_f32 v{par}, {f2u(-1.0/640):#x}, v{st}
        v_mul_f32 v{st+1}, {f2u(1.0/640):#x}, v{st+1}
        v_fma_f32 v{st+1}, -v{par}, v{par}, v{st+1}
        v_max_f32 v{st+1}, 0, v{st+1}
        v_add_f32 v{par+4}, {f2u(1e-5):#x}, v{st+1}
        v_rsq_f32 v{par+2}, v{par+4}
        v_mov_b32 v{par+1}, v{par}
        v_mov_b32 v{par+5}, v{par+4}
        v_mul_f32 v{par+2}, {f2u(-math.log2(math.e)):#x}, v{par+2}
        v_lshl_add_u32 v{t[2]}, v{t[0]}, 8, v{t[2]}
        v_mov_b32 v{par+3}, v{par+2}
        v_and_b32 v{t[3]}, 15, v{vl}
        v_lshl_add_u32 v{t[2]}, v{t[3]}, 4, v{t[2]}
        s_mul_i32 s{self.s_t0}, s{self.s_tb}, {2*55296}
        s_mul_i32 s{self.s_t1}, s{self.s_g}, 3584
        s_add_u32 s{self.s_t0}, s{self.s_t0}, s{self.s_t1}
        s_add_u32 s{self.s_t0}, s{self.s_t0}, {ACT}""")
        for T in range(7):
            A = self.acc[T]; cc = cs[T % 3]
            if T + 2 < 7: rdcs(T + 2)
            k(f"s_waitcnt lgkmcnt({4*min(2, 6-T)})")
            for p in range(8): k(f"v_pk_fma_f32 {vr(A+2*p,2)}, {vr(cc+2*p,2)}, {vr(par,2)}, {vr(A+2*p,2)}")
            for p in range(4): k(f"v_pk_mul_f32 {vr(tmp+2*p,2)}, {vr(A+2*p,2)}, {vr(par+2,2)}")
            for i in range(8): k(f"v_exp_f32 v{tmp+i}, v{tmp+i}")
            for p in range(4): k(f"v_pk_mul_f32 {vr(A+2*p,2)}, {vr(A+2*p,2)}, {vr(A+8+2*p,2)}")
            for p in range(4): k(f"v_pk_fma_f32 {vr(tmp+2*p,2)}, {vr(tmp+2*p,2)}, {vr(par+4,2)}, {vr(par+4,2)}")
            for i in range(8): k(f"v_rcp_f32 v{tmp+i}, v{tmp+i}")
            for p in range(4): k(f"v_pk_mul_f32 {vr(A+2*p,2)}, {vr(A+2*p,2)}, {vr(tmp+2*p,2)}")
            for p in range(4): k(f"v_cvt_pk_bf16_f32 v{A+8+p}, v{A+2*p}, v{A+2*p+1}")
            k(f"buffer_store_dwordx4 {vr(A+8,4)}, v{t[2]}, {sr(c.sO,4)}, s{self.s_t0} offen offset:{T*512}{c.sc}")
            if T == 2: k(f"s_cmp_eq_u32 s{self.s_g}, 15\ns_cbranch_scc1 {L_fin}")
        k(f"{L_fin}:")

def gen(which, opt):
    if which in '35':
        o = opt('K' + which)
        c = Ctx("k3_oproj_kernel" if which == '3' else "k5_down_kernel", False); k = c.k
        P = P35(c, int(which), D=o.get('D', 12)); P.ahead = o.get('ahead', 2)
        c.entry(int(which) - 1, P.ptr_load())
        P.ids(); c.ws_srd()
        L = k.label("ld"); lw(c, L)
        P.setup(); P.main(); k.stamp(4); k.stamp(5); P.epilogue(); c.finish()
        k(f"{L}:"); P.ld_setup()
        for ch in range(2): P.ld_chunk(ch)
        P.ld_main(2); k("s_endpgm")
        return k, (256, 512, P.lds)
    if which == '4':
        o = opt('K4')
        c = Ctx("k4_gateup_kernel", False); k = c.k
        P = P4(c, D=o.get('D', 12)); P.ahead = o.get('ahead', 2)
        c.entry(3); P.ids(); c.ws_srd()
        L = k.label("ld"); lw(c, L)
        P.setup(); P.main(); k.stamp(4); k.stamp(5); P.epilogue(k.label("fin")); c.finish()
        k(f"{L}:"); P.ld_setup()
        for ch in range(2): P.ld_chunk(ch)
        P.ld_cs()
        P.ld_main(2, 1); k("s_endpgm")
        return k, (256, 512, P.lds)
    import mega
    return mega.gen(opt)
```

```python
from ph2 import *
NAME = "sequential_preLN__softmax_full_mha__swiglu_ffn__prompt_kernel"

def gen(opt):
    o = opt('M')
    c = Ctx(NAME, True); k = c.k
    sO = c.sO; sWS = c.sWS; s_w = c.s_w; s_wl = c.s_wl; vl = c.vl; vl16 = c.vl16; sc = c.sc
    rot = o.get('rot', True)
    sD = k.s(4)
    s_po = k.s(); s_cs = k.s(); vPA = k.v(); vPS = k.v(); sA = k.s(4); sB = k.s(4); sR = [k.s() for _ in range(5)]
    c.s0 = k.snext; c.v0 = k.vnext
    SLOT = 32768; NS = 4
    SL = 12288; VB = 3 * SL; PREP = 6 * SL
    sP = k.s(4); sX = sA; sW = sB; sQ = k.s(8); sWD = k.s(2); sPC = k.s(2)
    s_tb = k.s(); s_cg = k.s(); s_t0 = k.s(); s_t2 = k.s()
    s_ow, s_m0x, s_slot, s_delta, s_t1 = sR
    s_ox = k.s(); s_cnt = k.s(); s_rs = k.s(); s_msk = k.s()
    vt = [k.v() for _ in range(6)]
    vXA = [k.v() for _ in range(4)]; vWA = [k.v(), k.v()]
    vX = [k.v() for _ in range(4)]; vW = [k.v() for _ in range(4)]
    acc = [[k.v(16, 4) for _ in range(2)] for _ in range(2)]
    fx = [[k.v(4, 4) for _ in range(2)] for _ in range(2)]
    fw = [[k.v(4, 4) for _ in range(2)] for _ in range(2)]
    acs = k.v(16, 4); ones = k.v(4, 4); vpf = k.v(4, 4)
    XCH = NS * SLOT; NM, RS, CS = 0, 512, 1024
    L_spare = k.label("spare"); L_v = k.label("vpath"); L_J0 = k.label("J0"); L_comp = k.label("comp")
    k.kidx = 1; k.stamp_real(0); k.stamp(1)
    k(f"""s_load_dwordx4 {sr(sP,4)}, s[0:1], {KA_X}
    s_load_dwordx4 {sr(sD,4)}, s[0:1], {KA_DBG}
    s_cmp_ge_u32 s2, 256
    s_cbranch_scc1 {c.L_end}
    v_lshrrev_b32 v{vt[0]}, 6, v0
    v_and_b32 v{vl}, 63, v0
    v_readfirstlane_b32 s{s_w}, v{vt[0]}
    s_and_b32 s{s_t0}, s2, 3
    s_lshl_b32 s{s_t0}, s{s_t0}, 2
    s_bfe_u32 s{s_t1}, s2, 0x20003
    s_add_u32 s{s_tb}, s{s_t0}, s{s_t1}
    s_bfe_u32 s{s_t0}, s2, 0x10002
    s_lshl_b32 s{s_t0}, s{s_t0}, 3
    s_lshr_b32 s{s_t1}, s2, 5
    s_add_u32 s{s_cg}, s{s_t0}, s{s_t1}
    s_and_b32 s{s_wl}, s{s_w}, 3
    s_cmp_eq_u32 s{s_cg}, 15
    s_cbranch_scc1 {L_spare}
    s_cmp_ge_u32 s{s_w}, 4
    s_cbranch_scc1 {L_comp}
    v_lshrrev_b32 v{vt[0]}, 3, v{vl}
    v_lshl_add_u32 v{vt[0]}, s{s_w}, 5, v{vt[0]}
    v_mul_u32_u24 v{vt[0]}, 1280, v{vt[0]}
    v_lshrrev_b32 v{vt[1]}, 4, v{vl}
    v_and_b32 v{vt[2]}, 7, v{vl}
    v_xor_b32 v{vt[2]}, v{vt[2]}, v{vt[1]}
    v_lshl_add_u32 v{vX[0]}, v{vt[2]}, 4, v{vt[0]}
    v_xor_b32 v{vX[1]}, 64, v{vX[0]}
    v_add_u32 v{vX[2]}, {2*(8*1280-1024)}, v{vX[0]}
    v_add_u32 v{vX[1]}, {8*1280-1024}, v{vX[1]}
    v_add_u32 v{vX[3]}, {2*(8*1280-1024)}, v{vX[1]}
    v_lshl_add_u32 v{vt[0]}, s{s_w}, 4, v{vt[1]}
    v_mul_u32_u24 v{vt[0]}, 3840, v{vt[0]}
    v_and_b32 v{vt[2]}, 15, v{vl}
    v_lshlrev_b32 v{vt[3]}, 2, v{vt[1]}
    v_xor_b32 v{vt[2]}, v{vt[2]}, v{vt[3]}
    v_lshl_add_u32 v{vW[0]}, v{vt[2]}, 4, v{vt[0]}
    v_add_u32 v{vW[1]}, {4*3840-1024}, v{vW[0]}
    v_add_u32 v{vW[2]}, {2*(4*3840-1024)}, v{vW[0]}
    v_add_u32 v{vW[3]}, {3*(4*3840-1024)}, v{vW[0]}
    s_mul_i32 s{s_t0}, s{s_tb}, {128*1280}
    s_lshl_b32 s{s_t1}, s{s_cg}, 8
    s_lshl_b32 s{s_m0x}, s{s_w}, 12
    s_mov_b32 s{sX+2}, {128*1280}
    s_mov_b32 s{sX+3}, 0x20000
    s_sub_u32 s{sW+2}, {640*3840}, s{s_t1}
    s_mov_b32 s{sW+3}, 0x20000""")
    if rot: k(f"s_and_b32 s{s_t2}, s2, 7\ns_lshl_b32 s{s_ox}, s{s_t2}, 7\ns_mul_i32 s{s_ow}, s{s_t2}, {64*3840}")
    else: k(f"s_mov_b32 s{s_ox}, 0\ns_mov_b32 s{s_ow}, 0")
    k(f"""s_waitcnt lgkmcnt(0)
    s_add_u32 s{sX}, s{sP}, s{s_t0}
    s_addc_u32 s{sX+1}, s{sP+1}, 0
    s_add_u32 s{sW}, s{sP+2}, s{s_t1}
    s_addc_u32 s{sW+1}, s{sP+3}, 0""")
    def dma_chunk(slot_const=None):
        if slot_const is not None: k(f"s_add_u32 m0, s{s_m0x}, {slot_const*SLOT}")
        else: k(f"s_add_u32 m0, s{s_m0x}, s{s_rs}")
        k(f"s_add_u32 s{s_t0}, s{s_ox}, 128")
        for i in range(4):
            k(f"buffer_load_dwordx4 v{vX[i]}, {sr(sX,4)}, s{s_ox} offen offset:{i*1024} lds")
        k(f"s_add_u32 m0, m0, 16384\ns_add_u32 s{s_t1}, s{s_ow}, {64*3840}")
        for i in range(4):
            k(f"buffer_load_dwordx4 v{vW[i]}, {sr(sW,4)}, s{s_ow} offen offset:{i*1024} lds")
        k(f"s_cmp_eq_u32 s{s_t0}, 1280\ns_cselect_b32 s{s_ox}, 0, s{s_t0}\ns_cselect_b32 s{s_ow}, 0, s{s_t1}")
    def common_setup():
        k(f"""s_mov_b64 {sr(sWS,2)}, {sr(sD+2,2)}
        s_movk_i32 s{sD+2}, 256
        s_mov_b32 s{sD+3}, 0x20000
        v_lshlrev_b32 v{vl16}, 4, v{vl}""")
        srd(k, sO, sWS, sWS + 1, WSEND)
        k(f"s_load_dwordx8 {sr(sQ,8)}, s[0:1], {KA_WO}\ns_load_dwordx2 {sr(sWD,2)}, s[0:1], {KA_WD}")
    def xaddr():
        k(f"""v_and_b32 v{vt[0]}, 31, v{vl}
        v_lshrrev_b32 v{vt[1]}, 5, v{vl}
        v_bfe_u32 v{vt[2]}, v{vl}, 1, 3
        v_xor_b32 v{vt[2]}, v{vt[2]}, v{vt[1]}
        v_lshlrev_b32 v{vt[2]}, 4, v{vt[2]}
        v_lshl_add_u32 v{vt[2]}, v{vt[0]}, 7, v{vt[2]}""")
    def advance(regs):
        k(f"s_cmp_eq_u32 s{s_slot}, {(NS-1)*SLOT}\ns_mov_b32 s{s_delta}, {SLOT}")
        k(f"s_cselect_b32 s{s_delta}, {(-(NS-1)*SLOT) & 0xffffffff}, s{s_delta}")
        k(f"s_add_u32 s{s_slot}, s{s_slot}, s{s_delta}")
        return [f"v_add_u32 v{r}, s{s_delta}, v{r}" for r in regs]
    def prep_decode(loads):
        pid, cb, st = s_t0, s_t2, s_ox
        R0, A_, B_, C_, u = sR
        Ld = k.label("pd"); Lg = k.label("pg")
        k(f"""s_lshl_b32 s{pid}, s2, 2
        s_add_u32 s{pid}, s{pid}, s{s_wl}
        s_mov_b32 s{B_}, 8
        s_mov_b32 s{C_}, 4
        v_bfe_u32 v{vt[2]}, v{vl}, 4, 1
        v_lshrrev_b32 v{vt[1]}, 5, v{vl}
        s_waitcnt lgkmcnt(0)
        s_cmp_ge_u32 s{pid}, 560
        s_cbranch_scc1 {Ld}
        s_mul_i32 s{u}, s{pid}, 4682
        s_lshr_b32 s{u}, s{u}, 16
        s_mul_i32 s{cb}, s{u}, 14
        s_sub_u32 s{cb}, s{pid}, s{cb}
        s_mul_i32 s{s_po}, s{u}, {112*1024}
        s_add_u32 s{s_po}, s{s_po}, {WGUP}
        s_mov_b32 s{s_cs}, {CSG}
        v_lshlrev_b32 v{vt[2]}, 11, v{vt[2]}
        v_lshl_add_u32 v{vt[3]}, v{vt[1]}, 9, v{vt[2]}""")
        if loads:
            k(f"""s_lshl_b32 s{R0}, s{u}, 4
            s_mov_b32 s{A_}, 0
            s_movk_i32 s{st}, 3456
            s_mov_b64 {sr(sA,2)}, {sr(sQ+4,2)}
            s_mov_b64 {sr(sB,2)}, {sr(sQ+6,2)}
            s_mov_b32 s{sA+2}, {640*3456}""")
        k(f"""s_branch {Lg}
        {Ld}:
        s_min_u32 s{pid}, s{pid}, 929
        s_cmp_lt_u32 s{pid}, 830
        s_movk_i32 s{cb}, 830
        s_cselect_b32 s{cb}, 560, s{cb}
        s_mov_b32 s{s_po}, {WOP}
        s_cselect_b32 s{s_po}, {WDP}, s{s_po}""")
        if loads:
            k(f"""s_cselect_b64 {sr(sA,2)}, {sr(sWD,2)}, {sr(sQ,2)}
            s_cselect_b32 s{A_}, 16, 20
            s_cselect_b32 s{R0}, 32, 40
            s_mov_b32 s{sA+2}, {640*1280}
            s_cselect_b32 s{sA+2}, {1728*1280}, s{sA+2}""")
        k(f"""s_sub_u32 s{cb}, s{pid}, s{cb}
        s_mul_i32 s{u}, s{cb}, 13108
        s_lshr_b32 s{u}, s{u}, 16
        s_mul_i32 s{st}, s{u}, 5
        s_sub_u32 s{cb}, s{cb}, s{st}
        s_mul_i32 s{st}, s{u}, {40*1024}
        s_add_u32 s{s_po}, s{s_po}, s{st}
        s_mov_b32 s{s_cs}, {WSEND}
        v_lshlrev_b32 v{vt[2]}, 9, v{vt[2]}
        v_lshl_add_u32 v{vt[3]}, v{vt[1]}, 11, v{vt[2]}""")
        if loads:
            k(f"""s_mul_i32 s{R0}, s{R0}, s{u}
            s_mul_i32 s{st}, s{u}, 160
            s_sub_u32 s{st}, s{st}, {16*160-16}
            s_cmp_ge_u32 s{pid}, 910
            s_cselect_b32 s{R0}, s{st}, s{R0}
            s_cselect_b32 s{A_}, 80, s{A_}
            s_cselect_b32 s{B_}, 20, 8
            s_cselect_b32 s{C_}, 40, 4
            s_movk_i32 s{st}, 1280
            s_mov_b64 {sr(sB,2)}, {sr(sA,2)}""")
        k(f"""{Lg}:
        s_lshl_b32 s{cb}, s{cb}, 1
        s_lshr_b32 s{pid}, s{s_w}, 2
        s_add_u32 s{pid}, s{pid}, s{cb}
        s_lshl_b32 s{u}, s{pid}, 12
        s_add_u32 s{s_po}, s{s_po}, s{u}
        s_lshl_b32 s{u}, s{pid}, 9
        s_add_u32 s{s_cs}, s{s_cs}, s{u}
        v_bfe_u32 v{vt[2]}, v{vl}, 2, 2
        v_lshl_add_u32 v{vt[3]}, v{vt[2]}, 7, v{vt[3]}
        v_and_b32 v{vt[2]}, 3, v{vl}
        v_lshl_add_u32 v{vt[3]}, v{vt[2]}, 3, v{vt[3]}
        s_lshl_b32 s{u}, s{s_w}, 12
        s_add_u32 s{u}, s{u}, {PREP}
        v_add_u32 v{vPA}, s{u}, v{vt[3]}""")
        if loads:
            k(f"""s_mov_b32 s{sB+2}, s{sA+2}
            s_mov_b32 s{sA+3}, 0x20000
            s_mov_b32 s{sB+3}, 0x20000
            v_mul_u32_u24 v{vt[2]}, s{C_}, v{vt[1]}
            v_bfe_u32 v{vt[3]}, v{vl}, 3, 2
            v_add_u32 v{vt[2]}, v{vt[2]}, v{vt[3]}
            v_mul_u32_u24 v{vt[2]}, s{st}, v{vt[2]}
            v_and_b32 v{vt[3]}, 7, v{vl}
            v_lshl_add_u32 v{vPS}, v{vt[3]}, 4, v{vt[2]}
            s_mul_i32 s{R0}, s{R0}, s{st}
            s_lshl_b32 s{cb}, s{pid}, 7
            s_add_u32 s{R0}, s{R0}, s{cb}
            s_mul_i32 s{A_}, s{A_}, s{st}
            s_mul_i32 s{B_}, s{B_}, s{st}
            s_add_u32 s{A_}, s{A_}, s{R0}
            s_add_u32 s{C_}, s{A_}, s{B_}
            s_add_u32 s{B_}, s{B_}, s{R0}""")
    dma_chunk(0); dma_chunk(1)
    common_setup()
    k(f"""s_mov_b32 s{s_rs}, {3*SLOT}
    s_waitcnt vmcnt(8)
    s_barrier""")
    k.stamp(2)
    dma_chunk(2)
    L = k.label("hloop"); Lz = k.label("hz"); Lzx = k.label("hzx"); Lnz = k.label("hnz")
    k(f"s_mov_b32 s{s_cnt}, 7\n{L}:\ns_waitcnt vmcnt(8)\ns_barrier")
    dma_chunk()
    k(f"""s_add_u32 s{s_rs}, s{s_rs}, {SLOT}
    s_and_b32 s{s_rs}, s{s_rs}, {NS*SLOT-1}
    s_sub_u32 s{s_cnt}, s{s_cnt}, 1
    s_cmp_lg_u32 s{s_cnt}, 0
    s_cbranch_scc1 {L}
    v_and_b32 v{vt[3]}, 15, v{vl}
    v_lshlrev_b32 v{vt[3]}, 4, v{vt[3]}
    buffer_load_dword v{vt[4]}, v{vt[3]}, {sr(sD,4)}, 0 offen sc1
    s_waitcnt vmcnt(9)
    s_barrier
    s_waitcnt vmcnt(1)
    s_barrier
    s_cmp_lg_u32 s{s_w}, 0
    s_cbranch_scc1 {Lnz}
    s_mov_b32 s{s_t1}, 0
    {Lz}:
    s_waitcnt vmcnt(0)
    v_cmp_ne_u32 vcc, 0, v{vt[4]}
    s_add_u32 s{s_t1}, s{s_t1}, 1
    s_cmp_eq_u64 vcc, -1
    s_cbranch_scc1 {Lzx}
    s_cmp_gt_u32 s{s_t1}, 0x40000
    s_cbranch_scc1 {Lzx}
    buffer_load_dword v{vt[4]}, v{vt[3]}, {sr(sD,4)}, 0 offen sc1
    s_branch {Lz}
    {Lzx}:
    s_mov_b32 m0, {XCH}
    s_lshl_b32 s{s_t0}, s{s_tb}, 10
    s_add_u32 s{s_t0}, s{s_t0}, {LN1}
    buffer_load_dwordx4 v{vl16}, {sr(sO,4)}, s{s_t0} offen sc1 lds
    {Lnz}:
    s_waitcnt vmcnt(0)""")
    k.stamp(3)
    k(f"s_barrier\ns_branch {L_J0}")
    k(f"""{L_comp}:
    s_getpc_b64 {sr(sPC,2)}
    L_pf_here:
    s_lshr_b32 s{s_t0}, s2, 3
    s_lshl_b32 s{s_t0}, s{s_t0}, 2
    s_add_u32 s{s_t0}, s{s_t0}, s{s_wl}
    s_lshl_b32 s{s_t0}, s{s_t0}, 10
    s_sub_u32 s{sPC}, s{sPC}, L_pf_here - {NAME}
    s_subb_u32 s{sPC+1}, s{sPC+1}, 0
    s_cmp_gt_u32 s{s_t0}, L_code_end - {NAME} - 1024
    s_cbranch_scc1 L_pf_skip
    v_lshl_add_u32 v{vt[0]}, v{vl}, 4, s{s_t0}
    global_load_dwordx4 {vr(vpf,4)}, v{vt[0]}, {sr(sPC,2)}
    L_pf_skip:
    s_waitcnt lgkmcnt(0)""")
    common_setup()
    xaddr()
    k(f"""s_lshr_b32 s{s_t0}, s{s_wl}, 1
    s_and_b32 s{s_t1}, s{s_wl}, 1
    s_lshl_b32 s{s_t2}, s{s_t0}, 13
    v_add_u32 v{vXA[0]}, s{s_t2}, v{vt[2]}""")
    for s in range(1, 4): k(f"v_xor_b32 v{vXA[s]}, {32*s}, v{vXA[0]}")
    k(f"""v_bfe_u32 v{vt[2]}, v{vl}, 2, 2
    v_lshl_add_u32 v{vt[3]}, v{vt[1]}, 3, v{vt[2]}
    v_lshlrev_b32 v{vt[3]}, 8, v{vt[3]}
    s_lshl_b32 s{s_t2}, s{s_t1}, 1
    s_add_u32 s{s_t2}, s{s_t2}, s{s_t0}
    v_xor_b32 v{vt[2]}, s{s_t2}, v{vt[2]}
    v_lshl_add_u32 v{vt[3]}, v{vt[2]}, 6, v{vt[3]}
    v_bfe_u32 v{vt[2]}, v{vl}, 4, 1
    v_lshl_add_u32 v{vt[3]}, v{vt[2]}, 5, v{vt[3]}
    v_and_b32 v{vt[2]}, 3, v{vl}
    v_lshl_add_u32 v{vt[3]}, v{vt[2]}, 3, v{vt[3]}
    v_add_u32 v{vWA[0]}, 16384, v{vt[3]}
    v_xor_b32 v{vWA[1]}, 64, v{vWA[0]}
    s_mov_b32 s{s_slot}, 0""")
    for i in range(4): k(f"v_mov_b32 v{ones+i}, 0x3f803f80")
    def reads(buf, s):
        out = []
        for mt in range(2):
            out.append(f"ds_read_b128 {vr(fx[buf][mt],4)}, v{vXA[s]} offset:{mt*4096}")
        for nt in range(2):
            for rd in range(2):
                out.append(f"ds_read_b64_tr_b16 {vr(fw[buf][nt]+2*rd,2)}, v{vWA[nt]} offset:{(16*s+4*rd)*256}")
        return [out[2], out[3], out[0], out[1], out[4], out[5]]
    def mfmas(buf, vpath, first):
        m = []
        for nt in range(2):
            for mt in range(2):
                a, b = (fx[buf][mt], fw[buf][nt]) if vpath else (fw[buf][nt], fx[buf][mt])
                m.append(f"{M16} {vr(acc[nt][mt],16)}, {vr(a,4)}, {vr(b,4)}, {'0' if first else vr(acc[nt][mt],16)}")
        m.append(f"{M16} {vr(acs,16)}, {vr(ones,4)}, {vr(fw[buf][0],4)}, {'0' if first else vr(acs,16)}")
        return m
    def chunk(vpath, last, first=False):
        for s in range(3):
            k("s_waitcnt lgkmcnt(0)")
            m = mfmas(s & 1, vpath, first and s == 0); rd = reads((s + 1) & 1, s + 1)
            ad = []
            if not last and s == 0: ad = [None]
            for i in range(5):
                k(m[i])
                for x in rd[2*i:2*i+2]: k(x)
                if i == 3 and not last:
                    if s == 0: adv[:] = advance([vXA[0], vXA[1], vXA[2], vXA[3], vWA[0], vWA[1]])
                    k(adv[s])
        k("s_waitcnt lgkmcnt(0)")
        m = mfmas(1, vpath, False)
        if last:
            for x in m: k(x)
            return
        k(m[0])
        for x in adv[3:]: k(x)
        k(m[1])
        k("s_barrier")
        rd = reads(0, 0)
        for x in rd[:3]: k(x)
        k(m[2])
        for x in rd[3:]: k(x)
        k(m[3]); k(m[4])
    adv = []
    def mainloop(vpath):
        k("s_barrier")
        k.stamp(2)
        for x in reads(0, 0): k(x)
        chunk(vpath, False, first=True)
        L = k.label("loop")
        k(f"s_mov_b32 s{s_cnt}, 8\n{L}:")
        chunk(vpath, False)
        k(f"s_sub_u32 s{s_cnt}, s{s_cnt}, 1\ns_cmp_lg_u32 s{s_cnt}, 0\ns_cbranch_scc1 {L}")
        chunk(vpath, True)
        k.stamp(3)
    def epilogue(vpath):
        t = vt
        la = fx[0][0]; rg = k.v(32, 4); hoff = t[3]
        k(f"""v_and_b32 v{t[0]}, 31, v{vl}
        s_lshl_b32 s{s_t2}, s{s_t2}, 7
        s_add_u32 s{s_ox}, s{s_t2}, {XCH}
        v_lshl_add_u32 v{t[2]}, v{t[0]}, 2, s{s_ox}
        s_lshl_b32 s{s_ow}, s{s_t0}, 8
        s_add_u32 s{s_ow}, s{s_ow}, {XCH}
        v_lshl_add_u32 v{t[1]}, v{t[0]}, 2, s{s_ow}
        v_lshrrev_b32 v{hoff}, 5, v{vl}
        v_lshlrev_b32 v{hoff}, 4, v{hoff}
        s_cmp_lt_u32 s{s_cg}, 5
        s_cselect_b32 s{s_cnt}, {f2u(QSCALE):#x}, 1.0
        ds_write_b32 v{t[2]}, v{acs} offset:{CS}
        s_waitcnt lgkmcnt(0)
        s_barrier""")
        if not vpath:
            k(f"""ds_read_b32 v{la+0}, v{t[1]} offset:{NM}
            ds_read_b32 v{la+2}, v{t[1]} offset:{RS}
            ds_read_b32 v{la+4}, v{t[1]} offset:{NM+128}
            ds_read_b32 v{la+6}, v{t[1]} offset:{RS+128}
            v_add_u32 v{t[5]}, s{s_ox}, v{hoff}
            v_xor_b32 v{t[4]}, 128, v{t[5]}""")
            for nt in range(2):
                for j in range(4):
                    k(f"ds_read_b128 {vr(rg+16*nt+4*j,4)}, v{t[5] if nt==0 else t[4]} offset:{CS+32*j}")
            k(f"""v_lshlrev_b32 v{t[0]}, 4, v{t[0]}
            v_lshl_add_u32 v{t[0]}, v{hoff}, 11, v{t[0]}
            s_lshl_b32 s{s_ox}, s{s_cg}, 19
            s_lshl_b32 s{s_ow}, s{s_t2}, 10
            s_add_u32 s{s_ox}, s{s_ox}, s{s_ow}
            s_lshl_b32 s{s_ow}, s{s_tb}, 11
            s_add_u32 s{s_ox}, s{s_ox}, s{s_ow}
            s_lshl_b32 s{s_ow}, s{s_t0}, 10
            s_add_u32 s{s_ox}, s{s_ox}, s{s_ow}
            s_waitcnt lgkmcnt(4)
            v_mov_b32 v{la+1}, v{la+0}
            v_mul_f32 v{la+3}, s{s_cnt}, v{la+2}
            v_mul_f32 v{la+2}, s{s_cnt}, v{la+2}
            v_mov_b32 v{la+5}, v{la+4}
            v_mul_f32 v{la+7}, s{s_cnt}, v{la+6}
            v_mul_f32 v{la+6}, s{s_cnt}, v{la+6}""")
            for nt in range(2):
                if nt == 1: k("s_waitcnt lgkmcnt(0)")
                for mt in range(2):
                    A = acc[nt][mt]
                    for p in range(8):
                        k(f"v_pk_fma_f32 {vr(A+2*p,2)}, {vr(rg+16*nt+2*p,2)}, {vr(la+4*mt,2)}, {vr(A+2*p,2)}")
                    for p in range(8):
                        k(f"v_pk_mul_f32 {vr(A+2*p,2)}, {vr(A+2*p,2)}, {vr(la+4*mt+2,2)}")
                    for p in range(8):
                        k(f"v_cvt_pk_bf16_f32 v{A+p}, v{A+2*p}, v{A+2*p+1}")
                    k(f"s_xor_b32 s{s_ow}, s{s_ox}, {(nt*4*32768) | (mt*512)}")
                    k(f"s_add_u32 s{s_rs}, s{s_ow}, {2*32768}")
                    for jp in range(2):
                        k(f"v_permlane32_swap_b32 v{A+4*jp}, v{A+4*jp+2}\nv_permlane32_swap_b32 v{A+4*jp+1}, v{A+4*jp+3}")
                    k(f"buffer_store_dwordx4 {vr(A,4)}, v{t[0]}, {sr(sO,4)}, s{s_ow} offen{sc}")
                    k(f"buffer_store_dwordx4 {vr(A+4,4)}, v{t[0]}, {sr(sO,4)}, s{s_rs} offen{sc}")
        else:
            rg2 = k.v(32, 4)
            k(f"""v_xor_b32 v{t[4]}, 128, v{t[2]}
            ds_read_b32 v{la+2}, v{t[4]} offset:{CS}
            v_add_u32 v{t[5]}, s{s_ow}, v{hoff}""")
            for mt in range(2):
                for j in range(4):
                    k(f"ds_read_b128 {vr(rg+16*mt+4*j,4)}, v{t[5]} offset:{NM+128*mt+32*j}")
                    k(f"ds_read_b128 {vr(rg2+16*mt+4*j,4)}, v{t[5]} offset:{RS+128*mt+32*j}")
            va = [la + 4, la + 5]
            k(f"""s_sub_u32 s{s_ox}, s{s_cg}, 10
            s_lshl_b32 s{s_ox}, s{s_ox}, 7
            s_lshr_b32 s{s_ow}, s{s_t2}, 2
            s_add_u32 s{s_ox}, s{s_ox}, s{s_ow}
            v_add_u32 v{t[0]}, s{s_ox}, v{t[0]}
            v_mul_u32_u24 v{hoff}, 21, v{hoff}""")
            for nt in range(2):
                if nt == 1: k(f"v_xor_b32 v{t[0]}, 32, v{t[0]}")
                k(f"""v_mul_u32_u24 v{t[1]}, 3277, v{t[0]}
                v_lshrrev_b32 v{t[1]}, 16, v{t[1]}
                v_mul_u32_u24 v{t[2]}, {VHEAD - 320}, v{t[1]}
                v_lshl_add_u32 v{t[2]}, v{t[0]}, 4, v{t[2]}
                v_add_u32 v{va[nt]}, v{t[2]}, v{hoff}""")
            k(f"""s_lshl_b32 s{s_ox}, s{s_tb}, 1
            s_add_u32 s{s_ox}, s{s_ox}, s{s_t0}
            s_mul_i32 s{s_ox}, s{s_ox}, 2688
            s_add_u32 s{s_ox}, s{s_ox}, {VIMG}
            v_mov_b32 v{la+0}, v{acs}
            v_mov_b32 v{la+1}, v{acs}
            s_waitcnt lgkmcnt(8)
            v_mov_b32 v{la+3}, v{la+2}""")
            for mt in range(2):
                if mt == 1: k("s_waitcnt lgkmcnt(0)")
                for nt in range(2):
                    A = acc[nt][mt]
                    for p in range(8):
                        k(f"v_pk_fma_f32 {vr(A+2*p,2)}, {vr(rg+16*mt+2*p,2)}, {vr(la+2*nt,2)}, {vr(A+2*p,2)}")
                    for p in range(8):
                        k(f"v_pk_mul_f32 {vr(A+2*p,2)}, {vr(A+2*p,2)}, {vr(rg2+16*mt+2*p,2)}")
                    for p in range(8):
                        k(f"v_cvt_pk_bf16_f32 v{A+p}, v{A+2*p}, v{A+2*p+1}")
                    k(f"buffer_store_dwordx4 {vr(A,4)}, v{va[nt]}, {sr(sO,4)}, s{s_ox} offen offset:{1344*mt}{sc}")
                    k(f"buffer_store_dwordx4 {vr(A+4,4)}, v{va[nt]}, {sr(sO,4)}, s{s_ox} offen offset:{1344*mt+672}{sc}")
    k(f"s_cmp_ge_u32 s{s_cg}, 10\ns_cbranch_scc1 {L_v}")
    vsave = k.vnext
    mainloop(False); epilogue(False); k(f"s_branch {L_J0}")
    k.vnext = vsave
    k(f"{L_v}:")
    mainloop(True); epilogue(True)
    k(f"{L_J0}:\ns_setprio 0")
    k.stamp(4)
    prep_decode(True)
    k(f"""s_lshl_b32 s{c.s_f}, s{s_cg}, 5
    s_add_u32 s{c.s_f}, s{c.s_f}, s{s_tb}
    s_lshl_b32 s{c.s_f}, s{c.s_f}, {FL}
    s_add_u32 s{c.s_f}, s{c.s_f}, {F1}""")
    def spare():
        o4 = acs; xb = acc[0][0]; sm = [fw[0][0], fw[0][0] + 1]; sq = [fw[0][0] + 2, fw[0][0] + 3]
        k(f"""{L_spare}:
        v_lshrrev_b32 v{vt[0]}, 3, v{vl}
        v_lshl_add_u32 v{vt[0]}, s{s_w}, 4, v{vt[0]}
        v_mul_u32_u24 v{vt[0]}, 1280, v{vt[0]}
        v_and_b32 v{vt[2]}, 7, v{vl}
        v_lshl_add_u32 v{vX[0]}, v{vt[2]}, 4, v{vt[0]}
        v_add_u32 v{vX[1]}, {8*1280}, v{vX[0]}
        s_mul_i32 s{s_t0}, s{s_tb}, {128*1280}
        s_mov_b32 s{sX+2}, {128*1280}
        s_mov_b32 s{sX+3}, 0x20000
        s_waitcnt lgkmcnt(0)
        s_add_u32 s{sX}, s{sP}, s{s_t0}
        s_addc_u32 s{sX+1}, s{sP+1}, 0""")
        for g in range(2):
            for i in range(10): k(f"buffer_load_dwordx4 {vr(xb+40*g+4*i,4)}, v{vX[g]}, {sr(sX,4)}, 0 offen offset:{128*i}")
        common_setup()
        srd(k, sW, sWS, sWS + 1, CSG + ZERO_BYTES)
        o4 = xb + 80
        k(f"""s_lshl_b32 s{s_t0}, s{s_tb}, 1
        s_mul_i32 s{s_t0}, s{s_t0}, {VHEAD}
        s_add_u32 s{s_t0}, s{s_t0}, {VIMG + 320}
        v_mul_u32_u24 v{vt[0]}, 336, v0
        v_lshlrev_b32 v{vt[1]}, 4, v0
        s_lshl_b32 s{s_t1}, s{s_tb}, 13
        s_add_u32 s{s_t1}, s{s_t1}, {CSG}
        s_mov_b32 s{s_msk}, 0x3f803f80""")
        for i in range(4): k(f"v_mov_b32 v{o4+i}, 0x3f803f80\nv_mov_b32 v{o4+4+i}, 0")
        nz = (ZERO_BYTES + 131071) // 131072
        for z in range(nz):
            k(f"buffer_store_dwordx4 {vr(o4+4,4)}, v{vt[1]}, {sr(sW,4)}, s{s_t1} offen{sc}\ns_add_u32 s{s_t1}, s{s_t1}, 131072")
        k(f"buffer_store_dwordx4 {vr(o4,4)}, v{vt[0]}, {sr(sO,4)}, s{s_t0} offen{sc}")
        st = o4 + 8
        for i in range(4): k(f"v_mov_b32 v{st+i}, 0")
        for g in range(2):
            for i in range(10):
                k(f"s_waitcnt vmcnt({19 - 10*g - i + nz + 1})")
                for j in range(4):
                    x = xb + 40 * g + 4 * i + j
                    k(f"v_dot2c_f32_bf16 v{st+2*g}, s{s_msk}, v{x}\nv_dot2c_f32_bf16 v{st+2*g+1}, v{x}, v{x}")
        for ctl in ("quad_perm:[1,0,3,2]", "quad_perm:[2,3,0,1]", "row_half_mirror"):
            for i in range(4): k(f"v_add_f32_dpp v{st+i}, v{st+i}, v{st+i} {ctl} row_mask:0xf bank_mask:0xf")
        Ln = k.label("sn")
        k(f"""v_and_b32 v{vt[2]}, 1, v{vl}
        v_cmp_eq_u32 vcc, 1, v{vt[2]}
        v_lshrrev_b32 v{vt[3]}, 3, v{vl}
        v_lshl_add_u32 v{vt[3]}, v{vt[2]}, 3, v{vt[3]}
        v_cndmask_b32 v{st}, v{st}, v{st+2}, vcc
        v_cndmask_b32 v{st+1}, v{st+1}, v{st+3}, vcc
        v_lshlrev_b32 v{vt[3]}, 2, v{vt[3]}
        v_mul_f32 v{st}, {f2u(-1.0/640):#x}, v{st}
        v_mul_f32 v{st+1}, {f2u(1.0/640):#x}, v{st+1}
        v_fma_f32 v{st+1}, -v{st}, v{st}, v{st+1}
        v_max_f32 v{st+1}, 0, v{st+1}
        v_add_f32 v{st+1}, {f2u(1e-5):#x}, v{st+1}
        v_rsq_f32 v{st+1}, v{st+1}
        s_lshl_b32 s{s_t0}, s{s_tb}, 10
        s_lshl_b32 s{s_t1}, s{s_w}, 6
        s_add_u32 s{s_t0}, s{s_t0}, s{s_t1}
        s_add_u32 s{s_t0}, s{s_t0}, {LN1}
        s_mov_b32 exec_lo, 0x03030303
        s_mov_b32 exec_hi, 0x03030303
        buffer_store_dword v{st}, v{vt[3]}, {sr(sO,4)}, s{s_t0} offen{sc}
        buffer_store_dword v{st+1}, v{vt[3]}, {sr(sO,4)}, s{s_t0} offen offset:512{sc}
        s_mov_b64 exec, -1
        s_waitcnt vmcnt(0)
        s_barrier
        s_cmp_lg_u32 s{s_w}, 4
        s_cbranch_scc1 {Ln}
        s_lshl_b32 s{s_t0}, s{s_tb}, 4
        v_mov_b32 v{vt[2]}, 1
        v_mov_b32 v{vt[3]}, 0
        s_mov_b64 exec, 1
        buffer_store_dword v{vt[2]}, v{vt[3]}, {sr(sD,4)}, s{s_t0} offen sc1
        s_mov_b64 exec, -1
        {Ln}:""")
        k.stamp(2); k.stamp(3)
        k(f"s_branch {L_J0}")
    def deferred(fn):
        n = len(k.lines); fn(); out = k.lines[n:]; del k.lines[n:]; return out
    spare_code = deferred(spare)
    c.reset()
    prio = o.get('prio', (16, 10, 4, 2))
    s_h = k.s(); s_pa = k.s(); s_pr = k.s(); s_odd8 = k.s(); s_tok = k.s()
    s_t0 = k.s(); s_t1 = k.s(); s_t2 = k.s(); s_t3 = k.s()
    so = [k.s() for _ in range(3)]; s_d = k.s(); s_mo = k.s(); s_ms = k.s(); s_q1 = k.s(); s_q2 = k.s()
    sG = k.s(2); sE = k.s(2)
    vq = k.v(); vr31 = k.v(); vKA = k.v(); vKR = k.v(); vVA = k.v()
    vt = [k.v() for _ in range(6)]
    S = [k.v(16, 4), k.v(16, 4)]; O = k.v(16, 4); P = k.v(8, 4)
    Qm = k.v(4, 4); Qr = k.v(2); Km = k.v(4, 4); Kr = k.v(2); V0 = k.v(4, 4); V1 = [k.v(4, 4), k.v(4, 4)]
    PR = k.v(16, 4); C = S[1]; vcs = k.v(4, 2); vca = k.v(); vfp = k.v(4, 4)
    L_slow = k.label("slow"); L_store = k.label("store")
    k(f"""s_and_b32 s{s_t0}, s2, 7
    s_lshl_b32 s{s_t0}, s{s_t0}, 2
    s_bfe_u32 s{s_t1}, s2, 0x20003
    s_add_u32 s{s_h}, s{s_t0}, s{s_t1}
    s_lshr_b32 s{s_q1}, s{s_h}, 1
    s_mul_i32 s{s_t0}, s{s_q1}, 5
    s_and_b32 s{s_t1}, s{s_h}, 1
    s_lshl_b32 s{s_odd8}, s{s_t1}, 3
    s_mul_i32 s{s_t1}, s{s_t1}, 3
    s_add_u32 s{s_pa}, s{s_t0}, s{s_t1}
    s_lshl_b32 s{s_pa}, s{s_pa}, 15
    s_add_u32 s{s_pr}, s{s_t0}, 2
    s_lshl_b32 s{s_pr}, s{s_pr}, 15
    s_lshl_b32 s{s_t0}, s{s_wl}, 10
    s_add_u32 s{s_t1}, s{s_t0}, {80*32768}
    s_add_u32 s{so[0]}, s{s_pa}, s{s_t1}
    s_add_u32 s{so[2]}, s{s_pr}, s{s_t1}
    s_mul_i32 s{s_t1}, s{s_wl}, 3072
    s_mul_i32 s{s_t2}, s{s_h}, {VHEAD}
    s_add_u32 s{s_t2}, s{s_t2}, s{s_t1}
    s_add_u32 s{s_t2}, s{s_t2}, {VIMG}
    s_add_u32 s{s_t3}, s{s_t2}, 2048
    s_add_u32 s{s_t1}, s{s_t1}, {VB}
    s_cmp_lt_u32 s{s_w}, 4
    s_cselect_b32 s{so[0]}, s{so[0]}, s{s_t2}
    s_cselect_b32 s{so[2]}, s{so[2]}, s{s_t3}
    s_cselect_b32 s{s_mo}, s{s_t0}, s{s_t1}
    s_movk_i32 s{s_t0}, 1024
    s_cselect_b32 s{so[1]}, 32768, s{s_t0}
    s_movk_i32 s{s_d}, 10752
    s_cselect_b32 s{s_d}, 4096, s{s_d}
    s_movk_i32 s{s_ms}, 1024
    s_cselect_b32 s{s_ms}, 4096, s{s_ms}
    s_add_u32 s{so[1]}, s{so[1]}, s{so[0]}
    v_and_b32 v{vr31}, 31, v{vl}
    v_lshlrev_b32 v{vr31}, 4, v{vr31}
    v_lshrrev_b32 v{vt[1]}, 5, v{vl}
    v_lshl_add_u32 v{vq}, v{vt[1]}, 15, v{vr31}
    v_lshl_add_u32 v{vKA}, v{vt[1]}, 12, v{vr31}
    v_add_u32 v{vKR}, s{s_odd8}, v{vr31}
    v_add_u32 v{vKR}, 8192, v{vKR}
    v_mul_u32_u24 v{vt[0]}, 336, v{vt[1]}
    v_add_u32 v{vt[0]}, v{vt[0]}, v{vr31}
    v_add_u32 v{vVA}, {VB}, v{vt[0]}
    v_cmp_lt_u32 vcc, {20*16}, v{vr31}
    v_mov_b32 v{vt[0]}, 0x40000
    v_mov_b32 v{Qr}, 0
    v_cndmask_b32 v{vVA}, v{vVA}, v{vt[0]}, vcc
    v_cmp_lt_u32 vcc, 31, v{vl}
    v_mov_b32 v{Qr+1}, 0
    s_lshr_b32 s{s_tok}, s2, 5
    v_cndmask_b32 v{vKR}, v{vKR}, v{vt[0]}, vcc
    s_lshl_b32 s{s_tok}, s{s_tok}, 8
    s_lshl_b32 s{s_t0}, s{s_w}, 5
    s_add_u32 s{s_tok}, s{s_tok}, s{s_t0}""")
    p1 = [f"s_mov_b32 m0, s{sR[4]}", "s_nop 0"]
    for i, (sd, so_) in enumerate(((sA, sR[0]), (sA, sR[2]), (sB, sR[1]), (sB, sR[3]))):
        p1.append(f"buffer_load_dwordx4 v{vPS}, {sr(sd,4)}, s{so_} offen lds")
        if i < 3: p1 += ["s_add_u32 m0, m0, 1024", "s_nop 0"]
    edge_prep = o.get('edge_prep', False)
    Lx = k.label("jx"); Lp = k.label("jp"); Lz = k.label("jz"); Lzx = k.label("jzx"); Lns = k.label("jns")
    k(f"""s_cmp_lg_u32 s{s_w}, 0
    s_cbranch_scc1 {Lzx}
    v_and_b32 v{vt[3]}, 15, v{vl}
    v_lshlrev_b32 v{vt[3]}, 4, v{vt[3]}
    s_mov_b32 s{s_t1}, 0
    {Lz}:
    buffer_load_dword v{vt[4]}, v{vt[3]}, {sr(sD,4)}, 0 offen sc1
    s_add_u32 s{s_t1}, s{s_t1}, 1
    s_cmp_gt_u32 s{s_t1}, 0x40000
    s_cbranch_scc1 {Lzx}
    s_waitcnt vmcnt(0)
    v_cmp_ne_u32 vcc, 0, v{vt[4]}
    s_cmp_eq_u64 vcc, -1
    s_cbranch_scc0 {Lz}
    {Lzx}:
    s_waitcnt vmcnt(0)""")
    k.stamp(5)
    k(f"""s_barrier
    s_cmp_lg_u32 s{s_w}, 0
    s_cbranch_scc1 {Lns}""")
    c.signal(c.s_f, vt[2])
    k(f"{Lns}:")
    if edge_prep:
        for x in p1: k(x)
    k(f"""s_cmp_lg_u32 s{s_w}, 0
    s_cbranch_scc1 {Lx}
    s_mul_i32 s{s_t0}, s{s_q1}, 40
    s_add_u32 s{s_t1}, s{s_t0}, 39
    s_lshr_b32 s{s_t0}, s{s_t0}, 7
    s_lshr_b32 s{s_t1}, s{s_t1}, 7
    s_lshl_b32 s{s_t0}, s{s_t0}, {FL+5}
    s_lshl_b32 s{s_t1}, s{s_t1}, {FL+5}
    s_add_u32 s{s_t0}, s{s_t0}, {F1}
    s_add_u32 s{s_t1}, s{s_t1}, {F1}
    v_lshrrev_b32 v{vt[2]}, 4, v{vl}
    v_min_u32 v{vt[2]}, 2, v{vt[2]}
    v_mul_u32_u24 v{vt[2]}, 160, v{vt[2]}
    v_and_b32 v{vt[3]}, 15, v{vl}
    v_add_u32 v{vt[3]}, v{vt[3]}, v{vt[2]}
    v_lshlrev_b32 v{vt[3]}, {FL}, v{vt[3]}
    s_mov_b32 s{s_t2}, 0
    {Lp}:
    buffer_load_dword v{vt[4]}, v{vt[3]}, {sr(sO,4)}, s{s_t0} offen sc1
    buffer_load_dword v{vt[5]}, v{vt[3]}, {sr(sO,4)}, s{s_t1} offen sc1
    s_add_u32 s{s_t2}, s{s_t2}, 1
    s_cmp_gt_u32 s{s_t2}, 0x40000
    s_cbranch_scc1 {Lx}
    s_waitcnt vmcnt(0)
    v_min_u32 v{vt[4]}, v{vt[4]}, v{vt[5]}
    v_cmp_ne_u32 vcc, 0, v{vt[4]}
    s_cmp_eq_u64 vcc, -1
    s_cbranch_scc0 {Lp}
    {Lx}:
    s_lshl_b32 s{s_t0}, s{s_tok}, 4
    s_add_u32 s{s_q1}, s{s_t0}, s{s_pa}
    s_add_u32 s{s_q2}, s{s_t0}, s{s_pr}
    s_add_u32 s{s_q2}, s{s_q2}, s{s_odd8}
    s_barrier""")
    k.stamp(6)
    def dma(slot):
        out = [f"s_add_u32 m0, s{s_mo}, {slot*SL}", "s_nop 0"]
        for i in range(3):
            out.append(f"buffer_load_dwordx4 v{vl16}, {sr(sO,4)}, s{so[i]} offen lds")
            if i < 2: out.append(f"s_add_u32 m0, m0, s{s_ms}")
            out.append(f"s_add_u32 s{so[i]}, s{so[i]}, s{s_d}")
        return out
    for x in dma(0): k(x)
    k(f"""buffer_load_dwordx4 {vr(Qm,4)}, v{vq}, {sr(sO,4)}, s{s_q1} offen
    s_mov_b32 exec_hi, 0
    buffer_load_dwordx2 {vr(Qr,2)}, v{vr31}, {sr(sO,4)}, s{s_q2} offen
    s_mov_b32 exec_hi, -1""")
    for x in dma(1): k(x)
    p2a = [f"ds_read_b64_tr_b16 {vr(PR+4*Tl+2*rd,2)}, v{vPA} offset:{rd*1024+Tl*32}" for Tl in range(4) for rd in range(2)]
    p2c = [f"s_mov_b32 s{sE}, 0x3f803f80", f"v_lshlrev_b32 v{vca}, 2, v{vl}"] + [f"v_mov_b32 v{vcs+i}, 0" for i in range(4)]
    p2c += [f"v_dot2c_f32_bf16 v{vcs+Tl}, s{sE}, v{PR+4*Tl+i}" for i in range(4) for Tl in range(4)]
    p2c += ["s_nop 1", f"v_permlane32_swap_b32 v{vcs}, v{vcs+1}", f"v_permlane32_swap_b32 v{vcs+2}, v{vcs+3}",
            f"v_add_f32 v{vcs}, v{vcs}, v{vcs+1}", f"v_add_f32 v{vcs+2}, v{vcs+2}, v{vcs+3}"]
    late = [f"buffer_store_dwordx4 {vr(PR+4*Tl,4)}, v{vl16}, {sr(sO,4)}, s{s_po} offen offset:{Tl*1024}{sc}" for Tl in range(4)]
    late += [f"buffer_atomic_add_f32 v{vcs}, v{vca}, {sr(sO,4)}, s{s_cs} offen", f"buffer_atomic_add_f32 v{vcs+2}, v{vca}, {sr(sO,4)}, s{s_cs} offen offset:256"]
    TL = o.get('TL', 9); TP = 23
    late_t = o.get('late_t', [25, 27, 29, 32, 34, 36])
    if edge_prep:
        TL = TP = -9; late_t = o.get('late_t', [8, 10, 12, 16, 18, 20])
        k("s_waitcnt vmcnt(8)")
        for x in p2a: k(x)
        k("s_waitcnt lgkmcnt(0)")
        for x in p2c: k(x)
    def rdK(t):
        o_ = ((t // 8) % 3) * SL + (t % 8) * 512
        return [f"ds_read_b128 {vr(Km,4)}, v{vKA} offset:{o_}", f"ds_read_b64 {vr(Kr,2)}, v{vKR} offset:{o_}"]
    def rdV(t):
        o_ = ((t // 8) % 3) * SL + (t % 8) * 1344
        return [f"ds_read_b128 {vr(V0,4)}, v{vVA} offset:{o_}", f"ds_read_b128 {vr(V1[t&1],4)}, v{vVA} offset:{o_+672}"]
    k("s_waitcnt vmcnt(3)\ns_barrier")
    k.stamp(7)
    for x in rdK(0) + rdV(0): k(x)
    k(f"""s_waitcnt lgkmcnt(2)
    {M8} {vr(S[0],16)}, {vr(Kr,2)}, {vr(Qr,2)}, 0
    {M16} {vr(S[0],16)}, {vr(Km,4)}, {vr(Qm,4)}, {vr(S[0],16)}""")
    for x in rdK(1): k(x)
    side = []
    def spread(n):
        for _ in range(n):
            if side: k(side.pop(0))
    for t in range(64):
        s = S[t & 1]; sn = S[(t + 1) & 1]; ch = t // 8; last = t == 63
        e = lambda *a: [(k(f"v_exp_f32 v{s+i}, v{s+i}"), spread(1)) for i in a]
        cv = lambda i: k(f"v_cvt_pk_bf16_f32 v{P+i}, v{s+2*i}, v{s+2*i+1}")
        def pr(ph):
            if prio:
                q = (4 * t + ph - 26) % 32
                cum = 0
                for lvl, ln in enumerate(prio):
                    if (q == cum and ln > 0) or (t == 0 and ph == 0 and cum <= q < cum + ln): k(f"s_setprio {3 - lvl}")
                    cum += ln
        pr(0)
        e(0, 1, 2, 3)
        if not last:
            k(f"s_waitcnt lgkmcnt({2 if t > 0 else 0})")
            k(f"{M8} {vr(sn,16)}, {vr(Kr,2)}, {vr(Qr,2)}, 0")
        pr(1)
        e(4); cv(0); e(5); cv(1); e(6, 7)
        if not last: k(f"{M16} {vr(sn,16)}, {vr(Km,4)}, {vr(Qm,4)}, {vr(sn,16)}")
        if t % 8 == 6 and ch < 7:
            assert not side
            nl = sum(1 for x in late_t + [TL] * 4 if t - 8 < x < t)
            sig = max(late_t) < t - 8 and max(late_t) >= t - 16
            k(f"s_waitcnt vmcnt({nl})\ns_barrier")
            if ch < 6: side += dma((ch + 2) % 3)
            if sig:
                Ln = k.label("nf")
                k(f"s_cmp_lg_u32 s{s_w}, 0\ns_cbranch_scc1 {Ln}\ns_lshl_b32 s{s_t0}, s2, 2\ns_add_u32 s{s_t0}, s{s_t0}, {FP}")
                c.signal(s_t0, vt[2]); k(f"{Ln}:")
            if ch == 6:
                k(f"s_mov_b32 s{s_t0}, {FP}\nbuffer_load_dwordx4 {vr(vfp,4)}, v{vl16}, {sr(sO,4)}, s{s_t0} offen sc1")
        pr(2)
        if t < 62:
            for x in rdK(t + 2): k(x)
        if t == TP:
            for x in p2a: k(x)
        cv(2); e(8); cv(3); e(9, 10, 11)
        k(f"s_waitcnt lgkmcnt({(2 if t < 62 else 0) + (8 if t == TP else 0)})")
        k(f"{M16} {vr(O,16)}, {vr(V0,4)}, {vr(P,4)}, {'0' if t == 0 else vr(O,16)}")
        pr(3)
        if t in late_t: side.append(late[late_t.index(t)])
        if t == TL: side += p1
        if t == TP + 1: side += p2c
        cv(4); e(12); cv(5); e(13, 14, 15); cv(6)
        if not last:
            rv = rdV(t + 1)
            k(rv[0]); cv(7); k(rv[1]); k("s_nop 0")
        else:
            cv(7)
        k(f"{M16} {vr(O,16)}, {vr(V1[t&1],4)}, {vr(P+4,4)}, {vr(O,16)}")
    assert not side
    t0, t1, t2 = vt[0], vt[1], vt[2]
    k(f"""s_setprio 0
    v_bfe_u32 v{vt[3]}, v{vl}, 4, 1
    v_mul_u32_u24 v{vt[3]}, {20*1024}, v{vt[3]}
    v_and_b32 v{vt[4]}, 15, v{vl}
    v_lshl_add_u32 v{vt[3]}, v{vt[4]}, 4, v{vt[3]}
    v_lshrrev_b32 v{vt[4]}, 5, v{vl}
    v_lshl_add_u32 v{vt[4]}, v{vt[4]}, 8, v{vt[3]}
    s_mov_b32 s{s_q1}, {f2u(2.0**64):#x}
    s_mov_b32 s{s_q2}, 0x7f800000
    v_mov_b32 v{t0}, v{O+8}
    v_mov_b32 v{t1}, v{O+8}
    v_add_f32 v{t2}, |v{O}|, |v{O+1}|
    v_add_f32 v{t2}, |v{O+2}|, v{t2}
    v_permlane32_swap_b32 v{t0}, v{t1}""")
    for i in range(3, 12): k(f"v_add_f32 v{t2}, |v{O+i}|, v{t2}")
    k(f"""v_cmp_lt_f32 vcc, {f2u(2.0**-64):#x}, v{t1}
    v_cmp_gt_f32 {sr(sE,2)}, s{s_q1}, v{t1}
    v_cmp_gt_f32 {sr(sG,2)}, s{s_q2}, v{t2}
    s_and_b64 vcc, vcc, {sr(sE,2)}
    s_and_b64 vcc, vcc, {sr(sG,2)}
    s_cmp_eq_u64 vcc, -1
    s_cbranch_scc0 {L_slow}
    {L_store}:
    v_rcp_f32 v{t1}, v{t1}
    s_lshr_b32 s{s_t0}, s{s_tok}, 4
    s_mul_i32 s{s_t0}, s{s_t0}, {20*1024}
    s_add_u32 s{s_t0}, s{s_t0}, {OIMG}
    s_lshl_b32 s{s_t1}, s{s_h}, 9
    s_add_u32 s{s_t1}, s{s_t1}, s{s_t0}
    s_lshr_b32 s{s_t2}, s{s_h}, 1
    s_lshl_b32 s{s_t2}, s{s_t2}, 8
    s_add_u32 s{s_t2}, s{s_t2}, s{s_t0}
    s_add_u32 s{s_t2}, s{s_t2}, s{s_odd8}
    s_add_u32 s{s_t2}, s{s_t2}, {16*1024}""")
    for i in range(12): k(f"v_mul_f32 v{O+i}, v{t1}, v{O+i}")
    for i in range(6): k(f"v_cvt_pk_bf16_f32 v{O+i}, v{O+2*i}, v{O+2*i+1}")
    k(f"""buffer_store_dwordx4 {vr(O,4)}, v{vt[4]}, {sr(sO,4)}, s{s_t1} offen{sc}
    s_mov_b32 exec_hi, 0
    buffer_store_dwordx2 {vr(O+4,2)}, v{vt[3]}, {sr(sO,4)}, s{s_t2} offen{sc}
    s_mov_b32 exec_hi, -1""")
    def slow():
        vV = vKA; vm = vKR; cnt = s_t3
        k(f"""{L_slow}:
        s_add_u32 s{so[0]}, s{s_pa}, {80*32768}
        s_add_u32 s{so[1]}, s{s_pr}, {80*32768}
        s_add_u32 s{so[1]}, s{so[1]}, s{s_odd8}
        v_mov_b32 v{vm}, 0xff800000
        s_mov_b32 s{cnt}, 0""")
        L1 = k.label("mx")
        k(f"""{L1}:
        buffer_load_dwordx4 {vr(Km,4)}, v{vq}, {sr(sO,4)}, s{so[0]} offen
        buffer_load_dwordx2 {vr(Kr,2)}, v{vr31}, {sr(sO,4)}, s{so[1]} offen
        s_add_u32 s{so[0]}, s{so[0]}, 512
        s_add_u32 s{so[1]}, s{so[1]}, 512
        s_waitcnt vmcnt(0)
        {M8} {vr(S[0],16)}, {vr(Kr,2)}, {vr(Qr,2)}, 0
        {M16} {vr(S[0],16)}, {vr(Km,4)}, {vr(Qm,4)}, {vr(S[0],16)}""")
        for i in range(8): k(f"v_max3_f32 v{vm}, v{S[0]+2*i}, v{S[0]+2*i+1}, v{vm}")
        k(f"""s_add_u32 s{cnt}, s{cnt}, 1
        s_cmp_lt_u32 s{cnt}, 64
        s_cbranch_scc1 {L1}
        v_mov_b32 v{t0}, v{vm}
        v_permlane32_swap_b32 v{t0}, v{vm}
        v_max_f32 v{vm}, v{vm}, v{t0}""")
        for i in range(16): k(f"v_sub_f32 v{C+i}, 0, v{vm}\nv_mov_b32 v{O+i}, 0")
        k(f"""s_add_u32 s{so[0]}, s{s_pa}, {80*32768}
        s_add_u32 s{so[1]}, s{s_pr}, {80*32768}
        s_add_u32 s{so[1]}, s{so[1]}, s{s_odd8}
        s_mul_i32 s{so[2]}, s{s_h}, {VHEAD}
        s_add_u32 s{so[2]}, s{so[2]}, {VIMG}
        v_lshrrev_b32 v{vV}, 5, v{vl}
        v_mul_u32_u24 v{vV}, 336, v{vV}
        v_add_u32 v{vV}, v{vV}, v{vr31}
        s_mov_b32 s{cnt}, 0""")
        L2 = k.label("pv")
        k(f"""{L2}:
        buffer_load_dwordx4 {vr(Km,4)}, v{vq}, {sr(sO,4)}, s{so[0]} offen
        buffer_load_dwordx2 {vr(Kr,2)}, v{vr31}, {sr(sO,4)}, s{so[1]} offen
        buffer_load_dwordx4 {vr(V0,4)}, v{vV}, {sr(sO,4)}, s{so[2]} offen
        buffer_load_dwordx4 {vr(V1[0],4)}, v{vV}, {sr(sO,4)}, s{so[2]} offen offset:672
        s_add_u32 s{so[0]}, s{so[0]}, 512
        s_add_u32 s{so[1]}, s{so[1]}, 512
        s_add_u32 s{so[2]}, s{so[2]}, 1344
        s_waitcnt vmcnt(0)
        {M8} {vr(S[0],16)}, {vr(Kr,2)}, {vr(Qr,2)}, {vr(C,16)}
        {M16} {vr(S[0],16)}, {vr(Km,4)}, {vr(Qm,4)}, {vr(S[0],16)}""")
        for i in range(16): k(f"v_exp_f32 v{S[0]+i}, v{S[0]+i}")
        for i in range(8): k(f"v_cvt_pk_bf16_f32 v{P+i}, v{S[0]+2*i}, v{S[0]+2*i+1}")
        k(f"""{M16} {vr(O,16)}, {vr(V0,4)}, {vr(P,4)}, {vr(O,16)}
        {M16} {vr(O,16)}, {vr(V1[0],4)}, {vr(P+4,4)}, {vr(O,16)}
        s_add_u32 s{cnt}, s{cnt}, 1
        s_cmp_lt_u32 s{cnt}, 64
        s_cbranch_scc1 {L2}
        v_mov_b32 v{t0}, v{O+8}
        v_mov_b32 v{t1}, v{O+8}
        v_permlane32_swap_b32 v{t0}, v{t1}
        s_branch {L_store}""")
    slow_code = deferred(slow)
    L3 = k.label("ld")
    k.stamp(8); k.nst = 8
    if o.get('fine1'):
        k.maxst = 14; k.stamp = lambda *a, **kw: None
    k(f"""s_lshr_b32 s{c.s_f}, s2, 5
    s_lshl_b32 s{c.s_f}, s{c.s_f}, 5
    s_add_u32 s{c.s_f}, s{c.s_f}, s{s_h}
    s_lshl_b32 s{c.s_f}, s{c.s_f}, {FL}
    s_add_u32 s{c.s_f}, s{c.s_f}, {F2}""")
    P3 = P35(c, 3, D=o.get('D3', 20), D0=o.get('D30'))
    k(P3.ptr_load()); P3.ids()
    lw(c, L3)
    def handoff(vt, stmp, n):
        Ln = k.label("nw0")
        k("s_barrier")
        k(f"s_cmp_lg_u32 s{c.s_w}, 0\ns_cbranch_scc1 {Ln}")
        c.signal(c.s_f, vt); c.poll(c.s_p, n, vt, stmp)
        k(f"{Ln}:\ns_barrier")
    k("s_barrier")
    P3.setup()
    k(f"""s_lshr_b32 s{c.s_p}, s{P3.s_tb16}, 4
    s_lshl_b32 s{c.s_p}, s{c.s_p}, {FL+5}
    s_add_u32 s{c.s_p}, s{c.s_p}, {F2}
    s_waitcnt vmcnt(3)""")
    handoff(P3.vt[0], P3.s_t0, 32)
    k.stamp('n')
    P3.main(init=False, resident=True)
    k("s_barrier")
    P3.epilogue()
    k(f"""s_lshr_b32 s{c.s_f}, s{P3.s_tb16}, 3
    s_lshl_b32 s{c.s_f}, s{c.s_f}, 5
    s_bfe_u32 s{P3.s_t0}, s{P3.s_tb16}, 0x10002
    s_lshl_b32 s{P3.s_t0}, s{P3.s_t0}, 3
    s_add_u32 s{c.s_f}, s{c.s_f}, s{P3.s_t0}
    s_add_u32 s{c.s_f}, s{c.s_f}, s{P3.s_c}
    s_lshl_b32 s{c.s_f}, s{c.s_f}, {FL}
    s_add_u32 s{c.s_f}, s{c.s_f}, {F3}""")
    Q4 = P4(c, D=o.get('D4', 12), D0=o.get('D40')); Q4.ahead = o.get('ahead4', 4)
    Q4.ids(); Q4.setup()
    k(f"""s_lshr_b32 s{c.s_p}, s{Q4.s_tb}, 2
    s_lshl_b32 s{c.s_p}, s{c.s_p}, {FL+5}
    s_add_u32 s{c.s_p}, s{c.s_p}, {F3}
    s_waitcnt vmcnt(0)""")
    k.stamp('n')
    handoff(Q4.st, Q4.s_t1, 16)
    k.stamp('n')
    Q4.main(init=False, endbar=True)
    Q4.epilogue(k.label("fin"))
    k(f"""s_lshr_b32 s{c.s_f}, s{Q4.s_tb}, 2
    s_lshl_b32 s{c.s_f}, s{c.s_f}, 5
    s_add_u32 s{c.s_f}, s{c.s_f}, s{Q4.s_g}
    s_lshl_b32 s{c.s_f}, s{c.s_f}, {FL}
    s_add_u32 s{c.s_f}, s{c.s_f}, {F4}""")
    P5 = P35(c, 5, D=o.get('D5', 8), D0=o.get('D50')); P5.ahead = o.get('ahead5', 5)
    k("s_nop 1"); k(P5.ptr_load()); P5.ids(); P5.setup()
    k(f"""s_lshr_b32 s{c.s_p}, s{P5.s_tb16}, 3
    s_lshl_b32 s{c.s_p}, s{c.s_p}, {FL+5}
    s_add_u32 s{c.s_p}, s{c.s_p}, {F4}
    s_waitcnt vmcnt(0)""")
    k.stamp('n')
    handoff(P5.vt[0], P5.s_t0, 16)
    k.stamp('n')
    P5.main(init=False)
    P5.epilogue()
    c.finish()
    k(f"{L3}:")
    Lp = k.label("fp"); Lok = k.label("fpok")
    k(f"""s_mov_b32 s{P3.s_cnt}, 0
    s_waitcnt vmcnt(2)
    {Lp}:
    v_min_u32 v{vfp}, v{vfp}, v{vfp+1}
    v_min3_u32 v{vfp}, v{vfp}, v{vfp+2}, v{vfp+3}
    s_add_u32 s{P3.s_cnt}, s{P3.s_cnt}, 1
    v_cmp_ne_u32 vcc, 0, v{vfp}
    s_cmp_eq_u64 vcc, -1
    s_cbranch_scc1 {Lok}
    s_cmp_gt_u32 s{P3.s_cnt}, 0x40000
    s_cbranch_scc1 {Lok}
    s_mov_b32 s{P3.s_t0}, {FP}
    buffer_load_dwordx4 {vr(vfp,4)}, v{c.vl16}, {sr(c.sO,4)}, s{P3.s_t0} offen sc1
    s_waitcnt vmcnt(0)
    s_branch {Lp}
    {Lok}:
    s_barrier""")
    P3.ld_setup()
    k("s_waitcnt vmcnt(0)\ns_barrier")
    for ch in range(5): P3.ld_chunk(ch)
    k("s_waitcnt vmcnt(0)\ns_barrier")
    Q4.ids(); Q4.ld_setup()
    k("s_barrier")
    n4 = o.get('pre4', 2)
    for ch in range(n4): Q4.ld_chunk(ch)
    k("s_barrier")
    for ch in range(n4, 5): Q4.ld_chunk(ch)
    Q4.ld_cs()
    k("s_waitcnt vmcnt(29)\ns_barrier")
    Q4.ld_main(5, 1, init=False)
    P5.ids(); P5.ld_setup()
    k("s_barrier")
    n5 = o.get('pre5', 4)
    for ch in range(n5): P5.ld_chunk(ch)
    k("s_barrier")
    for ch in range(n5, 7): P5.ld_chunk(ch)
    k("s_waitcnt vmcnt(30)\ns_barrier")
    P5.ld_main(7, init=False)
    if K.STAMP:
        for i in range(9, 15): k.stamp(i)
        k.stamp_flush(c.sO, c.s_w)
    k("s_endpgm")
    k.lines += slow_code + spare_code
    return k, (256, 512, max(P3.lds, Q4.lds, P5.lds))
```

```python
from ph import *

def lw(c, L):
    c.k(f"s_cmp_ge_u32 s{c.s_w}, 4\ns_cbranch_scc1 {L}")

class P35:
    def __init__(self, c, which, D=12, D0=None):
        self.c = c; self.k3 = k3 = which == 3; k = c.k
        self.NU = 20 if k3 else 54; self.CK = 4; self.SLOT = 20480
        self.NCH = (self.NU + 3) // 4; self.NSL = 5 if k3 else 7
        self.XS = self.NSL * self.SLOT; self.D = D; self.D0 = D0 or D
        self.lds = self.XS + 4 * 3072
        c.reset()
        self.sPX = k.s(2); self.sB = k.s(4); self.sX = k.s(4)
        (self.s_tb16, self.s_c, self.s_t0, self.s_t1, self.s_t2, self.s_bo, self.s_wo, self.s_m0, self.s_xs, self.s_ho,
         self.s_cnt) = [k.s() for _ in range(11)]
        self.vt = [k.v() for _ in range(6)]; self.vH = k.v(); self.vD = k.v(); self.vA = [k.v() for _ in range(3)]
        self.vrow = [k.v() for _ in range(3)]
        self.acc = k.v(20, 4); self.fa = [k.v(20, 4) for _ in range(3)]; self.res = k.v(12, 4)
        self.fb = k.v(4 * self.D, 4)
    def ptr_load(self): return f"s_load_dwordx2 {sr(self.sPX,2)}, s[0:1], {KA_X if self.k3 else KA_OUT}"
    def ids(self):
        k = self.c.k
        k(f"""s_and_b32 s{self.s_t0}, s2, 3
        s_lshl_b32 s{self.s_t0}, s{self.s_t0}, 3
        s_bfe_u32 s{self.s_t1}, s2, 0x30003
        s_add_u32 s{self.s_tb16}, s{self.s_t0}, s{self.s_t1}
        s_lshl_b32 s{self.s_tb16}, s{self.s_tb16}, 2
        s_add_u32 s{self.s_tb16}, s{self.s_tb16}, s{self.c.s_wl}
        s_bfe_u32 s{self.s_t0}, s2, 0x10002
        s_lshl_b32 s{self.s_t0}, s{self.s_t0}, 2
        s_lshr_b32 s{self.s_t1}, s2, 6
        s_add_u32 s{self.s_c}, s{self.s_t0}, s{self.s_t1}""")
    def ld_setup(self):
        k = self.c.k
        k(f"""s_mul_i32 s{self.s_wo}, s{self.c.s_wl}, 8
        s_add_u32 s{self.s_wo}, s{self.s_wo}, s{self.s_c}
        s_mul_i32 s{self.s_wo}, s{self.s_wo}, 5120
        s_add_u32 s{self.s_wo}, s{self.s_wo}, {WOP if self.k3 else WDP}
        s_mul_i32 s{self.s_m0}, s{self.c.s_wl}, 5120""")
    def ld_chunk(self, slot):
        k = self.c.k; c = self.c
        k(f"s_add_u32 m0, s{self.s_m0}, {slot*self.SLOT}\ns_add_u32 s{self.s_t2}, s{self.s_wo}, 4096")
        for i in range(4):
            k(f"buffer_load_dwordx4 v{c.vl16}, {sr(c.sO,4)}, s{self.s_wo} offen offset:{i*1024}{c.lsc} lds")
        k(f"s_add_u32 m0, m0, 4096\ns_add_u32 s{self.s_wo}, s{self.s_wo}, {4*40960}")
        k(f"buffer_load_dwordx4 v{c.vl16}, {sr(c.sO,4)}, s{self.s_t2} offen{c.lsc} lds")
    def ld_main(self, issued, init=True):
        k = self.c.k; NCH = self.NCH
        if init: k(f"s_waitcnt vmcnt({5*(issued-1)})\ns_barrier")
        for ch in range(NCH - 1):
            k(f"s_waitcnt vmcnt({5*max(0, issued-ch-2)})\ns_barrier")
            while issued < NCH and issued < ch + self.NSL and issued <= ch + 1 + self.ahead:
                self.ld_chunk(issued % self.NSL); issued += 1
    def setup(self):
        k = self.c.k; c = self.c; vt = self.vt; vl = c.vl
        for i in range(3):
            k(f"""v_add_u32 v{vt[0]}, {64*i}, v{vl}
            v_mul_u32_u24 v{vt[1]}, 6554, v{vt[0]}
            v_lshrrev_b32 v{vt[1]}, 16, v{vt[1]}
            v_mul_u32_u24 v{vt[1]}, {1280-160}, v{vt[1]}
            v_lshl_add_u32 v{self.vrow[i]}, v{vt[0]}, 4, v{vt[1]}""")
        k(f"""s_mul_i32 s{self.s_t1}, s{self.s_tb16}, {16*1280}
        s_mul_i32 s{self.s_t2}, s{self.s_c}, 160
        s_add_u32 s{self.s_t1}, s{self.s_t1}, s{self.s_t2}
        s_waitcnt lgkmcnt(0)
        s_add_u32 s{self.sX}, s{self.sPX}, s{self.s_t1}
        s_addc_u32 s{self.sX+1}, s{self.sPX+1}, 0
        s_sub_u32 s{self.sX+2}, {2048*1280}, s{self.s_t1}
        s_mov_b32 s{self.sX+3}, 0x20000
        s_mul_i32 s{self.s_xs}, s{c.s_wl}, 3072
        s_add_u32 s{self.s_xs}, s{self.s_xs}, {self.XS}""")
        if self.k3:
            k(f"s_mov_b32 m0, s{self.s_xs}")
            for i in range(3):
                k(f"s_nop 0\nbuffer_load_dwordx4 v{self.vrow[i]}, {sr(self.sX,4)}, 0 offen lds")
                if i < 2: k("s_add_u32 m0, m0, 1024")
        k(f"""v_lshrrev_b32 v{vt[0]}, 4, v{vl}
        v_and_b32 v{vt[1]}, 15, v{vl}
        v_lshlrev_b32 v{vt[2]}, 4, v{vt[1]}
        v_lshl_add_u32 v{self.vH}, v{vt[0]}, 9, v{vt[2]}
        s_lshr_b32 s{self.s_t1}, s{self.s_tb16}, 1
        s_mul_i32 s{self.s_t1}, s{self.s_t1}, 40
        s_mul_i32 s{self.s_t2}, s{self.s_c}, 5
        s_add_u32 s{self.s_t1}, s{self.s_t1}, s{self.s_t2}
        s_lshl_b32 s{self.s_t1}, s{self.s_t1}, 10
        s_and_b32 s{self.s_t2}, s{c.s_w}, 1
        s_lshl_b32 s{self.s_t2}, s{self.s_t2}, 8
        s_add_u32 s{self.s_t1}, s{self.s_t1}, s{self.s_t2}
        s_add_u32 s{self.s_ho}, s{self.s_t1}, {HIMG}
        v_mul_u32_u24 v{vt[1]}, 160, v{vt[1]}
        v_lshl_add_u32 v{vt[1]}, v{vt[0]}, 3, v{vt[1]}
        v_add_u32 v{self.vD}, s{self.s_xs}, v{vt[1]}
        v_mov_b32 v{self.vA[0]}, v{c.vl16}
        v_add_u32 v{self.vA[1]}, {3*self.SLOT}, v{c.vl16}
        v_add_u32 v{self.vA[2]}, {6*self.SLOT}, v{c.vl16}
        s_mul_i32 s{self.s_bo}, s{self.s_tb16}, {self.NU*1024}
        s_add_u32 s{self.s_bo}, s{self.s_bo}, {OIMG if self.k3 else ACT}""")
    def loadB(self, u):
        k = self.c.k; c = self.c
        k(f"buffer_load_dwordx4 {vr(self.fb+4*(u % self.D),4)}, v{c.vl16}, {sr(c.sO,4)}, s{self.s_bo} offen offset:{(u%4)*1024}{c.lsc}")
        if u % 4 == 3: k(f"s_add_u32 s{self.s_bo}, s{self.s_bo}, 4096")
    def rdA(self, u):
        slot = (u // 4) % self.NSL
        return [f"ds_read_b128 {vr(self.fa[u%3]+4*T,4)}, v{self.vA[slot//3]} offset:{(slot%3)*self.SLOT+((u%4)*5+T)*1024}" for T in range(5)]
    def main(self, init=True, resident=False):
        k = self.c.k; c = self.c; NU = self.NU; D = self.D; res = self.res
        order = []
        def resld():
            k(f"""s_add_u32 s{self.s_t1}, s{self.s_ho}, 4096
            buffer_load_dwordx4 {vr(res,4)}, v{self.vH}, {sr(c.sO,4)}, s{self.s_ho} offen{c.lsc}
            buffer_load_dwordx4 {vr(res+4,4)}, v{self.vH}, {sr(c.sO,4)}, s{self.s_ho} offen offset:2048{c.lsc}
            buffer_load_dwordx4 {vr(res+8,4)}, v{self.vH}, {sr(c.sO,4)}, s{self.s_t1} offen{c.lsc}""")
            order.extend('rrr')
        nxt = 0
        for u in range(self.D0):
            self.loadB(u); order.append(u); nxt += 1
        if not c.fused: k.stamp(2)
        if init: k("s_barrier")
        if not c.fused: k.stamp(3)
        for x in self.rdA(0) + self.rdA(1): k(x)
        for u in range(NU):
            rd = []
            if u % 4 == 2 and u // 4 < self.NCH - 1 and not resident: k("s_barrier")
            if u + 2 < NU: rd = self.rdA(u + 2)
            younger = len(order) - 1 - order.index(u)
            if u == NU - 1: younger = 0
            k(f"s_waitcnt vmcnt({younger}) lgkmcnt({5 if u + 1 < NU else 0})")
            b = self.fb + 4 * (u % D)
            for T in range(5):
                k(f"{MF} {vr(self.acc+4*T,4)}, {vr(self.fa[u%3]+4*T,4)}, {vr(b,4)}, {'0' if u == 0 else vr(self.acc+4*T,4)}")
                if T < len(rd): k(rd[T])
                if T == 2 and nxt < NU and nxt < u + D:
                    self.loadB(nxt); order.append(nxt); nxt += 1
            if nxt < NU and nxt <= u + D:
                self.loadB(nxt); order.append(nxt); nxt += 1
            if not self.k3 and u == NU - 12: resld()
        if self.k3:
            for T in range(5): k(f"ds_read_b64 {vr(self.fa[0]+2*T,2)}, v{self.vD} offset:{T*32}")
            k("s_waitcnt lgkmcnt(0)")
    def epilogue(self):
        k = self.c.k; c = self.c; t = self.vt; acc = self.acc; res = self.res; sO = c.sO; vH = self.vH; sc = c.sc
        if self.k3:
            k(f"s_mov_b32 s{self.s_cnt}, 0x3f803f80\nv_mov_b32 v{t[0]}, 0\nv_mov_b32 v{t[1]}, 0")
            src = self.fa[0]
        else:
            for p in range(3):
                k(f"v_permlane32_swap_b32 v{res+4*p}, v{res+4*p+2}\nv_permlane32_swap_b32 v{res+4*p+1}, v{res+4*p+3}")
            src = res
        pk = self.fa[1]
        for T in range(5):
            for d in range(2):
                x = src + 2 * T + d; a = acc + 4 * T + 2 * d
                k(f"""v_lshlrev_b32 v{t[2+2*d]}, 16, v{x}
                v_and_b32 v{t[3+2*d]}, 0xffff0000, v{x}
                v_add_f32 v{a}, v{a}, v{t[2+2*d]}
                v_add_f32 v{a+1}, v{a+1}, v{t[3+2*d]}
                v_cvt_pk_bf16_f32 v{pk+2*T+d}, v{a}, v{a+1}""")
        if self.k3:
            for i in range(10):
                k(f"v_dot2c_f32_bf16 v{t[0]}, s{self.s_cnt}, v{pk+i}\nv_dot2c_f32_bf16 v{t[1]}, v{pk+i}, v{pk+i}")
            for p in range(3):
                k(f"v_permlane32_swap_b32 v{pk+4*p}, v{pk+4*p+2}\nv_permlane32_swap_b32 v{pk+4*p+1}, v{pk+4*p+3}")
            k(f"""s_add_u32 s{self.s_t1}, s{self.s_ho}, 4096
            buffer_store_dwordx4 {vr(pk,4)}, v{vH}, {sr(sO,4)}, s{self.s_ho} offen{sc}
            buffer_store_dwordx4 {vr(pk+4,4)}, v{vH}, {sr(sO,4)}, s{self.s_ho} offen offset:2048{sc}
            s_mov_b32 exec_hi, 0
            buffer_store_dwordx4 {vr(pk+8,4)}, v{vH}, {sr(sO,4)}, s{self.s_t1} offen{sc}
            s_mov_b32 exec_hi, -1
            v_mov_b32 v{t[2]}, v{t[0]}
            v_mov_b32 v{t[3]}, v{t[1]}
            v_permlane32_swap_b32 v{t[2]}, v{t[0]}
            v_permlane32_swap_b32 v{t[3]}, v{t[1]}
            v_add_f32 v{t[0]}, v{t[0]}, v{t[2]}
            v_add_f32 v{t[1]}, v{t[1]}, v{t[3]}
            v_mov_b32 v{t[2]}, v{t[0]}
            v_mov_b32 v{t[3]}, v{t[1]}
            v_permlane16_swap_b32 v{t[2]}, v{t[0]}
            v_permlane16_swap_b32 v{t[3]}, v{t[1]}
            v_add_f32 v{acc}, v{t[0]}, v{t[2]}
            v_add_f32 v{acc+1}, v{t[1]}, v{t[3]}
            v_lshlrev_b32 v{t[4]}, 3, v{c.vl}
            s_lshl_b32 s{self.s_t2}, s{self.s_c}, 14
            s_lshl_b32 s{self.s_t0}, s{self.s_tb16}, 7
            s_add_u32 s{self.s_t2}, s{self.s_t2}, s{self.s_t0}
            s_add_u32 s{self.s_t2}, s{self.s_t2}, {STATS}
            s_mov_b64 exec, 0xffff
            buffer_store_dwordx2 {vr(acc,2)}, v{t[4]}, {sr(sO,4)}, s{self.s_t2} offen{sc}
            s_mov_b64 exec, -1""")
        else:
            for T in range(5): k(f"ds_write_b64 v{self.vD}, {vr(pk+2*T,2)} offset:{T*32}")
            k(f"v_add_u32 v{t[0]}, s{self.s_xs}, v{c.vl16}\ns_waitcnt lgkmcnt(0)")
            for i in range(3): k(f"ds_read_b128 {vr(self.fa[0]+4*i,4)}, v{t[0]} offset:{i*1024}")
            for i in range(3):
                k(f"s_waitcnt lgkmcnt({2-i})")
                if i == 2: k("s_mov_b32 exec_hi, 0")
                k(f"buffer_store_dwordx4 {vr(self.fa[0]+4*i,4)}, v{self.vrow[i]}, {sr(self.sX,4)}, 0 offen")
            k("s_mov_b32 exec_hi, -1")

class P4:
    CK, NSL, NCH, SLOT = 4, 5, 10, 28672
    CSB = 5 * 28672
    def __init__(self, c, D=12, D0=None):
        self.c = c; k = c.k; self.D = D; self.D0 = D0 or D; self.lds = self.CSB + 1024
        c.reset()
        (self.s_tb, self.s_g, self.s_t0, self.s_t1, self.s_t2, self.s_bo, self.s_wo, self.s_m0) = [k.s() for _ in range(8)]
        self.vt = [k.v() for _ in range(4)]; self.vA = [k.v() for _ in range(3)]
        self.st = k.v(8, 4); self.par = k.v(6, 2)
        self.acc = [k.v(16, 4) for _ in range(7)]
        self.fa = [k.v(28, 4), k.v(28, 4)]
        self.fb = k.v(4 * D, 4)
    def ids(self):
        k = self.c.k
        k(f"""s_and_b32 s{self.s_t0}, s2, 1
        s_lshl_b32 s{self.s_t0}, s{self.s_t0}, 3
        s_bfe_u32 s{self.s_t1}, s2, 0x30003
        s_add_u32 s{self.s_tb}, s{self.s_t0}, s{self.s_t1}
        s_lshl_b32 s{self.s_tb}, s{self.s_tb}, 2
        s_add_u32 s{self.s_tb}, s{self.s_tb}, s{self.c.s_wl}
        s_bfe_u32 s{self.s_t0}, s2, 0x20001
        s_lshl_b32 s{self.s_t0}, s{self.s_t0}, 2
        s_lshr_b32 s{self.s_t1}, s2, 6
        s_add_u32 s{self.s_g}, s{self.s_t0}, s{self.s_t1}""")
    def ld_setup(self):
        k = self.c.k
        k(f"""s_mul_i32 s{self.s_wo}, s{self.c.s_wl}, 16
        s_add_u32 s{self.s_wo}, s{self.s_wo}, s{self.s_g}
        s_mul_i32 s{self.s_wo}, s{self.s_wo}, 7168
        s_add_u32 s{self.s_wo}, s{self.s_wo}, {WGUP}
        s_mul_i32 s{self.s_m0}, s{self.c.s_wl}, 7168""")
    def ld_chunk(self, slot):
        k = self.c.k; c = self.c
        k(f"s_add_u32 m0, s{self.s_m0}, {slot*self.SLOT}\ns_add_u32 s{self.s_t2}, s{self.s_wo}, 4096")
        for i in range(4):
            k(f"buffer_load_dwordx4 v{c.vl16}, {sr(c.sO,4)}, s{self.s_wo} offen offset:{i*1024}{c.lsc} lds")
        k(f"s_add_u32 m0, m0, 4096\ns_add_u32 s{self.s_wo}, s{self.s_wo}, {4*112*1024}")
        for i in range(3):
            k(f"buffer_load_dwordx4 v{c.vl16}, {sr(c.sO,4)}, s{self.s_t2} offen offset:{i*1024}{c.lsc} lds")
    def ld_cs(self):
        k = self.c.k; c = self.c
        k(f"""s_mul_i32 s{self.s_t2}, s{self.s_g}, 896
        s_mov_b32 m0, {self.CSB}
        s_add_u32 s{self.s_t2}, s{self.s_t2}, {CSG}
        buffer_load_dwordx4 v{c.vl16}, {sr(c.sO,4)}, s{self.s_t2} offen{c.lsc} lds""")
    def ld_main(self, issued, extra, init=True):
        k = self.c.k; NCH = self.NCH
        if init: k(f"s_waitcnt vmcnt({7*(issued-1)+extra})\ns_barrier")
        for ch in range(NCH - 1):
            k(f"s_waitcnt vmcnt({7*max(0, issued-ch-2)})\ns_barrier")
            while issued < NCH and issued <= ch + self.NSL and issued <= ch + 1 + self.ahead:
                self.ld_chunk(issued % self.NSL); issued += 1
    def setup(self):
        k = self.c.k; c = self.c; vt = self.vt
        k(f"""v_mov_b32 v{self.vA[0]}, v{c.vl16}
        v_add_u32 v{self.vA[1]}, {2*self.SLOT}, v{c.vl16}
        v_add_u32 v{self.vA[2]}, {4*self.SLOT}, v{c.vl16}
        s_mul_i32 s{self.s_bo}, s{self.s_tb}, 40960
        s_add_u32 s{self.s_bo}, s{self.s_bo}, {HIMG}
        v_and_b32 v{vt[0]}, 31, v{c.vl}
        v_lshrrev_b32 v{vt[1]}, 5, v{c.vl}
        v_lshlrev_b32 v{vt[2]}, 3, v{vt[0]}
        v_lshl_add_u32 v{vt[2]}, v{vt[1]}, 16, v{vt[2]}
        s_lshl_b32 s{self.s_t0}, s{self.s_tb}, 8
        s_add_u32 s{self.s_t0}, s{self.s_t0}, {STATS}""")
    def loadB(self, u):
        k = self.c.k; c = self.c
        k(f"buffer_load_dwordx4 {vr(self.fb+4*(u % self.D),4)}, v{c.vl16}, {sr(c.sO,4)}, s{self.s_bo} offen offset:{(u%4)*1024}{c.lsc}")
        if u % 4 == 3: k(f"s_add_u32 s{self.s_bo}, s{self.s_bo}, 4096")
    def rdA(self, u):
        slot = (u // 4) % self.NSL
        return [f"ds_read_b128 {vr(self.fa[u&1]+4*T,4)}, v{self.vA[slot//2]} offset:{(slot%2)*self.SLOT+((u%4)*7+T)*1024}" for T in range(7)]
    def main(self, init=True, endbar=False):
        k = self.c.k; c = self.c; D = self.D; st = self.st
        order = []; nxt = 0
        for u in range(self.D0):
            self.loadB(u); order.append(u); nxt += 1
        if not c.fused: k.stamp(2)
        if init: k("s_barrier")
        if not c.fused: k.stamp(3)
        for x in self.rdA(0): k(x)
        for u in range(40):
            younger = len(order) - 1 - order.index(u)
            if u == 39: younger = 0
            k(f"s_waitcnt vmcnt({younger}) lgkmcnt(0)")
            bar = u % 4 == 3 and (u < 39 or endbar)
            rd = self.rdA(u + 1) if u < 39 else []
            b = self.fb + 4 * (u % D)
            r0 = 2 if bar else 0
            for T in range(7):
                k(f"{M16} {vr(self.acc[T],16)}, {vr(self.fa[u&1]+4*T,4)}, {vr(b,4)}, {'0' if u == 0 else vr(self.acc[T],16)}")
                if bar and T == 1: k("s_barrier")
                if T >= r0 - 1 or not bar:
                    j = T - (r0 - 1 if bar else 0)
                    for x in rd[2*j:2*j+2]: k(x)
                if T == 5 and nxt < 40 and nxt < u + D:
                    self.loadB(nxt); order.append(nxt); nxt += 1
            if nxt < 40 and nxt <= u + D:
                self.loadB(nxt); order.append(nxt); nxt += 1
            if u == 20:
                for i in range(4):
                    k(f"buffer_load_dwordx2 {vr(st+2*i,2)}, v{self.vt[2]}, {sr(c.sO,4)}, s{self.s_t0} offen{c.lsc}")
                    if i < 3: k(f"s_add_u32 s{self.s_t0}, s{self.s_t0}, 16384")
                order.extend('ssss')
    def epilogue(self, L_fin):
        k = self.c.k; c = self.c; t = self.vt; st = self.st; par = self.par; vl = c.vl
        k(f"""v_lshrrev_b32 v{t[0]}, 5, v{vl}
        v_lshlrev_b32 v{t[1]}, 4, v{t[0]}
        v_add_u32 v{t[1]}, {self.CSB}, v{t[1]}""")
        cs = [self.fa[0], self.fa[0] + 16, self.fa[0] + 32]; tmp = self.fb
        def rdcs(T):
            for j in range(4): k(f"ds_read_b128 {vr(cs[T%3]+4*j,4)}, v{t[1]} offset:{T*128+32*j}")
        rdcs(0); rdcs(1)
        k(f"""v_add_f32 v{st}, v{st}, v{st+2}
        v_add_f32 v{st+1}, v{st+1}, v{st+3}
        v_add_f32 v{st+4}, v{st+4}, v{st+6}
        v_add_f32 v{st+5}, v{st+5}, v{st+7}
        v_add_f32 v{st}, v{st}, v{st+4}
        v_add_f32 v{st+1}, v{st+1}, v{st+5}
        v_mov_b32 v{st+2}, v{st}
        v_mov_b32 v{st+3}, v{st+1}
        v_bfe_u32 v{t[2]}, v{vl}, 4, 1
        v_mul_u32_u24 v{t[2]}, 55296, v{t[2]}
        v_permlane32_swap_b32 v{st+2}, v{st}
        v_permlane32_swap_b32 v{st+3}, v{st+1}
        v_add_f32 v{st}, v{st}, v{st+2}
        v_add_f32 v{st+1}, v{st+1}, v{st+3}
        v_mul_f32 v{par}, {f2u(-1.0/640):#x}, v{st}
        v_mul_f32 v{st+1}, {f2u(1.0/640):#x}, v{st+1}
        v_fma_f32 v{st+1}, -v{par}, v{par}, v{st+1}
        v_max_f32 v{st+1}, 0, v{st+1}
        v_add_f32 v{par+4}, {f2u(1e-5):#x}, v{st+1}
        v_rsq_f32 v{par+2}, v{par+4}
        v_mov_b32 v{par+1}, v{par}
        v_mov_b32 v{par+5}, v{par+4}
        v_mul_f32 v{par+2}, {f2u(-math.log2(math.e)):#x}, v{par+2}
        v_lshl_add_u32 v{t[2]}, v{t[0]}, 8, v{t[2]}
        v_mov_b32 v{par+3}, v{par+2}
        v_and_b32 v{t[3]}, 15, v{vl}
        v_lshl_add_u32 v{t[2]}, v{t[3]}, 4, v{t[2]}
        s_mul_i32 s{self.s_t0}, s{self.s_tb}, {2*55296}
        s_mul_i32 s{self.s_t1}, s{self.s_g}, 3584
        s_add_u32 s{self.s_t0}, s{self.s_t0}, s{self.s_t1}
        s_add_u32 s{self.s_t0}, s{self.s_t0}, {ACT}""")
        for T in range(7):
            A = self.acc[T]; cc = cs[T % 3]
            if T + 2 < 7: rdcs(T + 2)
            k(f"s_waitcnt lgkmcnt({4*min(2, 6-T)})")
            for p in range(8): k(f"v_pk_fma_f32 {vr(A+2*p,2)}, {vr(cc+2*p,2)}, {vr(par,2)}, {vr(A+2*p,2)}")
            for p in range(4): k(f"v_pk_mul_f32 {vr(tmp+2*p,2)}, {vr(A+2*p,2)}, {vr(par+2,2)}")
            for i in range(8): k(f"v_exp_f32 v{tmp+i}, v{tmp+i}")
            for p in range(4): k(f"v_pk_mul_f32 {vr(A+2*p,2)}, {vr(A+2*p,2)}, {vr(A+8+2*p,2)}")
            for p in range(4): k(f"v_pk_fma_f32 {vr(tmp+2*p,2)}, {vr(tmp+2*p,2)}, {vr(par+4,2)}, {vr(par+4,2)}")
            for i in range(8): k(f"v_rcp_f32 v{tmp+i}, v{tmp+i}")
            for p in range(4): k(f"v_pk_mul_f32 {vr(A+2*p,2)}, {vr(A+2*p,2)}, {vr(tmp+2*p,2)}")
            for p in range(4): k(f"v_cvt_pk_bf16_f32 v{A+8+p}, v{A+2*p}, v{A+2*p+1}")
            k(f"buffer_store_dwordx4 {vr(A+8,4)}, v{t[2]}, {sr(c.sO,4)}, s{self.s_t0} offen offset:{T*512}{c.sc}")
            if T == 2: k(f"s_cmp_eq_u32 s{self.s_g}, 15\ns_cbranch_scc1 {L_fin}")
        k(f"{L_fin}:")

def gen(which, opt):
    if which in '35':
        o = opt('K' + which)
        c = Ctx("k3_oproj_kernel" if which == '3' else "k5_down_kernel", False); k = c.k
        P = P35(c, int(which), D=o.get('D', 12 if which == '5' else 20)); P.ahead = o.get('ahead', 2)
        c.entry(int(which) - 1, P.ptr_load())
        P.ids(); c.ws_srd()
        L = k.label("ld"); lw(c, L)
        P.setup(); P.main(); k.stamp(4); k.stamp(5); P.epilogue(); c.finish()
        k(f"{L}:"); P.ld_setup()
        for ch in range(2): P.ld_chunk(ch)
        P.ld_main(2); k("s_endpgm")
        return k, (256, 512, P.lds)
    if which == '4':
        o = opt('K4')
        c = Ctx("k4_gateup_kernel", False); k = c.k
        P = P4(c, D=o.get('D', 12)); P.ahead = o.get('ahead', 2)
        c.entry(3); P.ids(); c.ws_srd()
        L = k.label("ld"); lw(c, L)
        P.setup(); P.main(); k.stamp(4); k.stamp(5); P.epilogue(k.label("fin")); c.finish()
        k(f"{L}:"); P.ld_setup()
        for ch in range(2): P.ld_chunk(ch)
        P.ld_cs()
        P.ld_main(2, 1); k("s_endpgm")
        return k, (256, 512, P.lds)
    import mega
    return mega.gen(opt)
```

```python
from ph2 import *
NAME = "sequential_preLN__softmax_full_mha__swiglu_ffn__prompt_kernel"

def gen(opt):
    o = opt('M')
    c = Ctx(NAME, True); k = c.k
    sO = c.sO; sWS = c.sWS; s_w = c.s_w; s_wl = c.s_wl; vl = c.vl; vl16 = c.vl16; sc = c.sc
    rot = o.get('rot', True)
    sD = k.s(4)
    s_po = k.s(); s_cs = k.s(); vPA = k.v(); vPS = k.v(); sA = k.s(4); sB = k.s(4); sR = [k.s() for _ in range(5)]
    c.s0 = k.snext; c.v0 = k.vnext
    SLOT = 32768; NS = 4
    SL = 12288; VB = 3 * SL; PREP = 6 * SL
    sP = k.s(4); sX = sA; sW = sB; sQ = k.s(8); sWD = k.s(2); sPC = k.s(2)
    s_tb = k.s(); s_cg = k.s(); s_t0 = k.s(); s_t2 = k.s()
    s_ow, s_m0x, s_slot, s_delta, s_t1 = sR
    s_ox = k.s(); s_cnt = k.s(); s_rs = k.s(); s_msk = k.s()
    vt = [k.v() for _ in range(6)]
    vXA = [k.v() for _ in range(4)]; vWA = [k.v(), k.v()]
    vX = [k.v() for _ in range(4)]; vW = [k.v() for _ in range(4)]
    acc = [[k.v(16, 4) for _ in range(2)] for _ in range(2)]
    fx = [[k.v(4, 4) for _ in range(2)] for _ in range(2)]
    fw = [[k.v(4, 4) for _ in range(2)] for _ in range(2)]
    acs = k.v(16, 4); ones = k.v(4, 4); vpf = k.v(4, 4)
    XCH = NS * SLOT; NM, RS, CS = 0, 512, 1024
    L_spare = k.label("spare"); L_v = k.label("vpath"); L_J0 = k.label("J0"); L_comp = k.label("comp")
    k.kidx = 1; k.stamp_real(0); k.stamp(1)
    k(f"""s_load_dwordx4 {sr(sP,4)}, s[0:1], {KA_X}
    s_load_dwordx4 {sr(sD,4)}, s[0:1], {KA_DBG}
    s_cmp_ge_u32 s2, 256
    s_cbranch_scc1 {c.L_end}
    v_lshrrev_b32 v{vt[0]}, 6, v0
    v_and_b32 v{vl}, 63, v0
    v_readfirstlane_b32 s{s_w}, v{vt[0]}
    s_and_b32 s{s_t0}, s2, 3
    s_lshl_b32 s{s_t0}, s{s_t0}, 2
    s_bfe_u32 s{s_t1}, s2, 0x20003
    s_add_u32 s{s_tb}, s{s_t0}, s{s_t1}
    s_bfe_u32 s{s_t0}, s2, 0x10002
    s_lshl_b32 s{s_t0}, s{s_t0}, 3
    s_lshr_b32 s{s_t1}, s2, 5
    s_add_u32 s{s_cg}, s{s_t0}, s{s_t1}
    s_and_b32 s{s_wl}, s{s_w}, 3
    s_cmp_eq_u32 s{s_cg}, 15
    s_cbranch_scc1 {L_spare}
    s_cmp_ge_u32 s{s_w}, 4
    s_cbranch_scc1 {L_comp}
    v_lshrrev_b32 v{vt[0]}, 3, v{vl}
    v_lshl_add_u32 v{vt[0]}, s{s_w}, 5, v{vt[0]}
    v_mul_u32_u24 v{vt[0]}, 1280, v{vt[0]}
    v_lshrrev_b32 v{vt[1]}, 4, v{vl}
    v_and_b32 v{vt[2]}, 7, v{vl}
    v_xor_b32 v{vt[2]}, v{vt[2]}, v{vt[1]}
    v_lshl_add_u32 v{vX[0]}, v{vt[2]}, 4, v{vt[0]}
    v_xor_b32 v{vX[1]}, 64, v{vX[0]}
    v_add_u32 v{vX[2]}, {2*(8*1280-1024)}, v{vX[0]}
    v_add_u32 v{vX[1]}, {8*1280-1024}, v{vX[1]}
    v_add_u32 v{vX[3]}, {2*(8*1280-1024)}, v{vX[1]}
    v_lshl_add_u32 v{vt[0]}, s{s_w}, 4, v{vt[1]}
    v_mul_u32_u24 v{vt[0]}, 3840, v{vt[0]}
    v_and_b32 v{vt[2]}, 15, v{vl}
    v_lshlrev_b32 v{vt[3]}, 2, v{vt[1]}
    v_xor_b32 v{vt[2]}, v{vt[2]}, v{vt[3]}
    v_lshl_add_u32 v{vW[0]}, v{vt[2]}, 4, v{vt[0]}
    v_add_u32 v{vW[1]}, {4*3840-1024}, v{vW[0]}
    v_add_u32 v{vW[2]}, {2*(4*3840-1024)}, v{vW[0]}
    v_add_u32 v{vW[3]}, {3*(4*3840-1024)}, v{vW[0]}
    s_mul_i32 s{s_t0}, s{s_tb}, {128*1280}
    s_lshl_b32 s{s_t1}, s{s_cg}, 8
    s_lshl_b32 s{s_m0x}, s{s_w}, 12
    s_mov_b32 s{sX+2}, {128*1280}
    s_mov_b32 s{sX+3}, 0x20000
    s_sub_u32 s{sW+2}, {640*3840}, s{s_t1}
    s_mov_b32 s{sW+3}, 0x20000""")
    if rot: k(f"s_and_b32 s{s_t2}, s2, 7\ns_lshl_b32 s{s_ox}, s{s_t2}, 7\ns_mul_i32 s{s_ow}, s{s_t2}, {64*3840}")
    else: k(f"s_mov_b32 s{s_ox}, 0\ns_mov_b32 s{s_ow}, 0")
    k(f"""s_waitcnt lgkmcnt(0)
    s_add_u32 s{sX}, s{sP}, s{s_t0}
    s_addc_u32 s{sX+1}, s{sP+1}, 0
    s_add_u32 s{sW}, s{sP+2}, s{s_t1}
    s_addc_u32 s{sW+1}, s{sP+3}, 0""")
    def dma_chunk(slot_const=None):
        if slot_const is not None: k(f"s_add_u32 m0, s{s_m0x}, {slot_const*SLOT}")
        else: k(f"s_add_u32 m0, s{s_m0x}, s{s_rs}")
        k(f"s_add_u32 s{s_t0}, s{s_ox}, 128")
        for i in range(4):
            k(f"buffer_load_dwordx4 v{vX[i]}, {sr(sX,4)}, s{s_ox} offen offset:{i*1024} lds")
        k(f"s_add_u32 m0, m0, 16384\ns_add_u32 s{s_t1}, s{s_ow}, {64*3840}")
        for i in range(4):
            k(f"buffer_load_dwordx4 v{vW[i]}, {sr(sW,4)}, s{s_ow} offen offset:{i*1024} lds")
        k(f"s_cmp_eq_u32 s{s_t0}, 1280\ns_cselect_b32 s{s_ox}, 0, s{s_t0}\ns_cselect_b32 s{s_ow}, 0, s{s_t1}")
    def common_setup():
        k(f"""s_mov_b64 {sr(sWS,2)}, {sr(sD+2,2)}
        s_movk_i32 s{sD+2}, 256
        s_mov_b32 s{sD+3}, 0x20000
        v_lshlrev_b32 v{vl16}, 4, v{vl}""")
        srd(k, sO, sWS, sWS + 1, WSEND)
        k(f"s_load_dwordx8 {sr(sQ,8)}, s[0:1], {KA_WO}\ns_load_dwordx2 {sr(sWD,2)}, s[0:1], {KA_WD}")
    def xaddr():
        k(f"""v_and_b32 v{vt[0]}, 31, v{vl}
        v_lshrrev_b32 v{vt[1]}, 5, v{vl}
        v_bfe_u32 v{vt[2]}, v{vl}, 1, 3
        v_xor_b32 v{vt[2]}, v{vt[2]}, v{vt[1]}
        v_lshlrev_b32 v{vt[2]}, 4, v{vt[2]}
        v_lshl_add_u32 v{vt[2]}, v{vt[0]}, 7, v{vt[2]}""")
    def advance(regs):
        k(f"s_cmp_eq_u32 s{s_slot}, {(NS-1)*SLOT}\ns_mov_b32 s{s_delta}, {SLOT}")
        k(f"s_cselect_b32 s{s_delta}, {(-(NS-1)*SLOT) & 0xffffffff}, s{s_delta}")
        k(f"s_add_u32 s{s_slot}, s{s_slot}, s{s_delta}")
        return [f"v_add_u32 v{r}, s{s_delta}, v{r}" for r in regs]
    def prep_decode(loads):
        pid, cb, st = s_t0, s_t2, s_ox
        R0, A_, B_, C_, u = sR
        Ld = k.label("pd"); Lg = k.label("pg")
        k(f"""s_lshl_b32 s{pid}, s2, 2
        s_add_u32 s{pid}, s{pid}, s{s_wl}
        s_mov_b32 s{B_}, 8
        s_mov_b32 s{C_}, 4
        v_bfe_u32 v{vt[2]}, v{vl}, 4, 1
        v_lshrrev_b32 v{vt[1]}, 5, v{vl}
        s_waitcnt lgkmcnt(0)
        s_cmp_ge_u32 s{pid}, 560
        s_cbranch_scc1 {Ld}
        s_mul_i32 s{u}, s{pid}, 4682
        s_lshr_b32 s{u}, s{u}, 16
        s_mul_i32 s{cb}, s{u}, 14
        s_sub_u32 s{cb}, s{pid}, s{cb}
        s_mul_i32 s{s_po}, s{u}, {112*1024}
        s_add_u32 s{s_po}, s{s_po}, {WGUP}
        s_mov_b32 s{s_cs}, {CSG}
        v_lshlrev_b32 v{vt[2]}, 11, v{vt[2]}
        v_lshl_add_u32 v{vt[3]}, v{vt[1]}, 9, v{vt[2]}""")
        if loads:
            k(f"""s_lshl_b32 s{R0}, s{u}, 4
            s_mov_b32 s{A_}, 0
            s_movk_i32 s{st}, 3456
            s_mov_b64 {sr(sA,2)}, {sr(sQ+4,2)}
            s_mov_b64 {sr(sB,2)}, {sr(sQ+6,2)}
            s_mov_b32 s{sA+2}, {640*3456}""")
        k(f"""s_branch {Lg}
        {Ld}:
        s_min_u32 s{pid}, s{pid}, 929
        s_cmp_lt_u32 s{pid}, 830
        s_movk_i32 s{cb}, 830
        s_cselect_b32 s{cb}, 560, s{cb}
        s_mov_b32 s{s_po}, {WOP}
        s_cselect_b32 s{s_po}, {WDP}, s{s_po}""")
        if loads:
            k(f"""s_cselect_b64 {sr(sA,2)}, {sr(sWD,2)}, {sr(sQ,2)}
            s_cselect_b32 s{A_}, 16, 20
            s_cselect_b32 s{R0}, 32, 40
            s_mov_b32 s{sA+2}, {640*1280}
            s_cselect_b32 s{sA+2}, {1728*1280}, s{sA+2}""")
        k(f"""s_sub_u32 s{cb}, s{pid}, s{cb}
        s_mul_i32 s{u}, s{cb}, 13108
        s_lshr_b32 s{u}, s{u}, 16
        s_mul_i32 s{st}, s{u}, 5
        s_sub_u32 s{cb}, s{cb}, s{st}
        s_mul_i32 s{st}, s{u}, {40*1024}
        s_add_u32 s{s_po}, s{s_po}, s{st}
        s_mov_b32 s{s_cs}, {WSEND}
        v_lshlrev_b32 v{vt[2]}, 9, v{vt[2]}
        v_lshl_add_u32 v{vt[3]}, v{vt[1]}, 11, v{vt[2]}""")
        if loads:
            k(f"""s_mul_i32 s{R0}, s{R0}, s{u}
            s_mul_i32 s{st}, s{u}, 160
            s_sub_u32 s{st}, s{st}, {16*160-16}
            s_cmp_ge_u32 s{pid}, 910
            s_cselect_b32 s{R0}, s{st}, s{R0}
            s_cselect_b32 s{A_}, 80, s{A_}
            s_cselect_b32 s{B_}, 20, 8
            s_cselect_b32 s{C_}, 40, 4
            s_movk_i32 s{st}, 1280
            s_mov_b64 {sr(sB,2)}, {sr(sA,2)}""")
        k(f"""{Lg}:
        s_lshl_b32 s{cb}, s{cb}, 1
        s_lshr_b32 s{pid}, s{s_w}, 2
        s_add_u32 s{pid}, s{pid}, s{cb}
        s_lshl_b32 s{u}, s{pid}, 12
        s_add_u32 s{s_po}, s{s_po}, s{u}
        s_lshl_b32 s{u}, s{pid}, 9
        s_add_u32 s{s_cs}, s{s_cs}, s{u}
        v_bfe_u32 v{vt[2]}, v{vl}, 2, 2
        v_lshl_add_u32 v{vt[3]}, v{vt[2]}, 7, v{vt[3]}
        v_and_b32 v{vt[2]}, 3, v{vl}
        v_lshl_add_u32 v{vt[3]}, v{vt[2]}, 3, v{vt[3]}
        s_lshl_b32 s{u}, s{s_w}, 12
        s_add_u32 s{u}, s{u}, {PREP}
        v_add_u32 v{vPA}, s{u}, v{vt[3]}""")
        if loads:
            k(f"""s_mov_b32 s{sB+2}, s{sA+2}
            s_mov_b32 s{sA+3}, 0x20000
            s_mov_b32 s{sB+3}, 0x20000
            v_mul_u32_u24 v{vt[2]}, s{C_}, v{vt[1]}
            v_bfe_u32 v{vt[3]}, v{vl}, 3, 2
            v_add_u32 v{vt[2]}, v{vt[2]}, v{vt[3]}
            v_mul_u32_u24 v{vt[2]}, s{st}, v{vt[2]}
            v_and_b32 v{vt[3]}, 7, v{vl}
            v_lshl_add_u32 v{vPS}, v{vt[3]}, 4, v{vt[2]}
            s_mul_i32 s{R0}, s{R0}, s{st}
            s_lshl_b32 s{cb}, s{pid}, 7
            s_add_u32 s{R0}, s{R0}, s{cb}
            s_mul_i32 s{A_}, s{A_}, s{st}
            s_mul_i32 s{B_}, s{B_}, s{st}
            s_add_u32 s{A_}, s{A_}, s{R0}
            s_add_u32 s{C_}, s{A_}, s{B_}
            s_add_u32 s{B_}, s{B_}, s{R0}""")
    dma_chunk(0); dma_chunk(1)
    common_setup()
    k(f"""s_mov_b32 s{s_rs}, {3*SLOT}
    s_waitcnt vmcnt(8)
    s_barrier""")
    k.stamp(2)
    dma_chunk(2)
    L = k.label("hloop"); Lz = k.label("hz"); Lzx = k.label("hzx"); Lnz = k.label("hnz")
    k(f"s_mov_b32 s{s_cnt}, 7\n{L}:\ns_waitcnt vmcnt(8)\ns_barrier")
    dma_chunk()
    k(f"""s_add_u32 s{s_rs}, s{s_rs}, {SLOT}
    s_and_b32 s{s_rs}, s{s_rs}, {NS*SLOT-1}
    s_sub_u32 s{s_cnt}, s{s_cnt}, 1
    s_cmp_lg_u32 s{s_cnt}, 0
    s_cbranch_scc1 {L}
    v_and_b32 v{vt[3]}, 15, v{vl}
    v_lshlrev_b32 v{vt[3]}, 4, v{vt[3]}
    buffer_load_dword v{vt[4]}, v{vt[3]}, {sr(sD,4)}, 0 offen sc1
    s_waitcnt vmcnt(9)
    s_barrier
    s_waitcnt vmcnt(1)
    s_barrier
    s_cmp_lg_u32 s{s_w}, 0
    s_cbranch_scc1 {Lnz}
    s_mov_b32 s{s_t1}, 0
    {Lz}:
    s_waitcnt vmcnt(0)
    v_cmp_ne_u32 vcc, 0, v{vt[4]}
    s_add_u32 s{s_t1}, s{s_t1}, 1
    s_cmp_eq_u64 vcc, -1
    s_cbranch_scc1 {Lzx}
    s_cmp_gt_u32 s{s_t1}, 0x40000
    s_cbranch_scc1 {Lzx}
    buffer_load_dword v{vt[4]}, v{vt[3]}, {sr(sD,4)}, 0 offen sc1
    s_branch {Lz}
    {Lzx}:
    s_mov_b32 m0, {XCH}
    s_lshl_b32 s{s_t0}, s{s_tb}, 10
    s_add_u32 s{s_t0}, s{s_t0}, {LN1}
    buffer_load_dwordx4 v{vl16}, {sr(sO,4)}, s{s_t0} offen sc1 lds
    {Lnz}:
    s_waitcnt vmcnt(0)""")
    k.stamp(3)
    k(f"s_barrier\ns_branch {L_J0}")
    k(f"""{L_comp}:
    s_getpc_b64 {sr(sPC,2)}
    L_pf_here:
    s_lshr_b32 s{s_t0}, s2, 3
    s_lshl_b32 s{s_t0}, s{s_t0}, 2
    s_add_u32 s{s_t0}, s{s_t0}, s{s_wl}
    s_lshl_b32 s{s_t0}, s{s_t0}, 10
    s_sub_u32 s{sPC}, s{sPC}, L_pf_here - {NAME}
    s_subb_u32 s{sPC+1}, s{sPC+1}, 0
    s_cmp_gt_u32 s{s_t0}, L_code_end - {NAME} - 1024
    s_cbranch_scc1 L_pf_skip
    v_lshl_add_u32 v{vt[0]}, v{vl}, 4, s{s_t0}
    global_load_dwordx4 {vr(vpf,4)}, v{vt[0]}, {sr(sPC,2)}
    L_pf_skip:
    s_waitcnt lgkmcnt(0)""")
    common_setup()
    xaddr()
    k(f"""s_lshr_b32 s{s_t0}, s{s_wl}, 1
    s_and_b32 s{s_t1}, s{s_wl}, 1
    s_lshl_b32 s{s_t2}, s{s_t0}, 13
    v_add_u32 v{vXA[0]}, s{s_t2}, v{vt[2]}""")
    for s in range(1, 4): k(f"v_xor_b32 v{vXA[s]}, {32*s}, v{vXA[0]}")
    k(f"""v_bfe_u32 v{vt[2]}, v{vl}, 2, 2
    v_lshl_add_u32 v{vt[3]}, v{vt[1]}, 3, v{vt[2]}
    v_lshlrev_b32 v{vt[3]}, 8, v{vt[3]}
    s_lshl_b32 s{s_t2}, s{s_t1}, 1
    s_add_u32 s{s_t2}, s{s_t2}, s{s_t0}
    v_xor_b32 v{vt[2]}, s{s_t2}, v{vt[2]}
    v_lshl_add_u32 v{vt[3]}, v{vt[2]}, 6, v{vt[3]}
    v_bfe_u32 v{vt[2]}, v{vl}, 4, 1
    v_lshl_add_u32 v{vt[3]}, v{vt[2]}, 5, v{vt[3]}
    v_and_b32 v{vt[2]}, 3, v{vl}
    v_lshl_add_u32 v{vt[3]}, v{vt[2]}, 3, v{vt[3]}
    v_add_u32 v{vWA[0]}, 16384, v{vt[3]}
    v_xor_b32 v{vWA[1]}, 64, v{vWA[0]}
    s_mov_b32 s{s_slot}, 0""")
    for i in range(4): k(f"v_mov_b32 v{ones+i}, 0x3f803f80")
    def reads(buf, s):
        out = []
        for mt in range(2):
            out.append(f"ds_read_b128 {vr(fx[buf][mt],4)}, v{vXA[s]} offset:{mt*4096}")
        for nt in range(2):
            for rd in range(2):
                out.append(f"ds_read_b64_tr_b16 {vr(fw[buf][nt]+2*rd,2)}, v{vWA[nt]} offset:{(16*s+4*rd)*256}")
        return [out[2], out[3], out[0], out[1], out[4], out[5]]
    def mfmas(buf, vpath, first):
        m = []
        for nt in range(2):
            for mt in range(2):
                a, b = (fx[buf][mt], fw[buf][nt]) if vpath else (fw[buf][nt], fx[buf][mt])
                m.append(f"{M16} {vr(acc[nt][mt],16)}, {vr(a,4)}, {vr(b,4)}, {'0' if first else vr(acc[nt][mt],16)}")
        m.append(f"{M16} {vr(acs,16)}, {vr(ones,4)}, {vr(fw[buf][0],4)}, {'0' if first else vr(acs,16)}")
        return m
    def chunk(vpath, last, first=False):
        for s in range(3):
            k("s_waitcnt lgkmcnt(0)")
            m = mfmas(s & 1, vpath, first and s == 0); rd = reads((s + 1) & 1, s + 1)
            ad = []
            if not last and s == 0: ad = [None]
            for i in range(5):
                k(m[i])
                for x in rd[2*i:2*i+2]: k(x)
                if i == 3 and not last:
                    if s == 0: adv[:] = advance([vXA[0], vXA[1], vXA[2], vXA[3], vWA[0], vWA[1]])
                    k(adv[s])
        k("s_waitcnt lgkmcnt(0)")
        m = mfmas(1, vpath, False)
        if last:
            for x in m: k(x)
            return
        k(m[0])
        for x in adv[3:]: k(x)
        k(m[1])
        k("s_barrier")
        rd = reads(0, 0)
        for x in rd[:3]: k(x)
        k(m[2])
        for x in rd[3:]: k(x)
        k(m[3]); k(m[4])
    adv = []
    def mainloop(vpath):
        k("s_barrier")
        k.stamp(2)
        for x in reads(0, 0): k(x)
        chunk(vpath, False, first=True)
        L = k.label("loop")
        k(f"s_mov_b32 s{s_cnt}, 8\n{L}:")
        chunk(vpath, False)
        k(f"s_sub_u32 s{s_cnt}, s{s_cnt}, 1\ns_cmp_lg_u32 s{s_cnt}, 0\ns_cbranch_scc1 {L}")
        chunk(vpath, True)
        k.stamp(3)
    def epilogue(vpath):
        t = vt
        la = fx[0][0]; rg = k.v(32, 4); hoff = t[3]
        k(f"""v_and_b32 v{t[0]}, 31, v{vl}
        s_lshl_b32 s{s_t2}, s{s_t2}, 7
        s_add_u32 s{s_ox}, s{s_t2}, {XCH}
        v_lshl_add_u32 v{t[2]}, v{t[0]}, 2, s{s_ox}
        s_lshl_b32 s{s_ow}, s{s_t0}, 8
        s_add_u32 s{s_ow}, s{s_ow}, {XCH}
        v_lshl_add_u32 v{t[1]}, v{t[0]}, 2, s{s_ow}
        v_lshrrev_b32 v{hoff}, 5, v{vl}
        v_lshlrev_b32 v{hoff}, 4, v{hoff}
        s_cmp_lt_u32 s{s_cg}, 5
        s_cselect_b32 s{s_cnt}, {f2u(QSCALE):#x}, 1.0
        ds_write_b32 v{t[2]}, v{acs} offset:{CS}
        s_waitcnt lgkmcnt(0)
        s_barrier""")
        if not vpath:
            k(f"""ds_read_b32 v{la+0}, v{t[1]} offset:{NM}
            ds_read_b32 v{la+2}, v{t[1]} offset:{RS}
            ds_read_b32 v{la+4}, v{t[1]} offset:{NM+128}
            ds_read_b32 v{la+6}, v{t[1]} offset:{RS+128}
            v_add_u32 v{t[5]}, s{s_ox}, v{hoff}
            v_xor_b32 v{t[4]}, 128, v{t[5]}""")
            for nt in range(2):
                for j in range(4):
                    k(f"ds_read_b128 {vr(rg+16*nt+4*j,4)}, v{t[5] if nt==0 else t[4]} offset:{CS+32*j}")
            k(f"""v_lshlrev_b32 v{t[0]}, 4, v{t[0]}
            v_lshl_add_u32 v{t[0]}, v{hoff}, 11, v{t[0]}
            s_lshl_b32 s{s_ox}, s{s_cg}, 19
            s_lshl_b32 s{s_ow}, s{s_t2}, 10
            s_add_u32 s{s_ox}, s{s_ox}, s{s_ow}
            s_lshl_b32 s{s_ow}, s{s_tb}, 11
            s_add_u32 s{s_ox}, s{s_ox}, s{s_ow}
            s_lshl_b32 s{s_ow}, s{s_t0}, 10
            s_add_u32 s{s_ox}, s{s_ox}, s{s_ow}
            s_waitcnt lgkmcnt(4)
            v_mov_b32 v{la+1}, v{la+0}
            v_mul_f32 v{la+3}, s{s_cnt}, v{la+2}
            v_mul_f32 v{la+2}, s{s_cnt}, v{la+2}
            v_mov_b32 v{la+5}, v{la+4}
            v_mul_f32 v{la+7}, s{s_cnt}, v{la+6}
            v_mul_f32 v{la+6}, s{s_cnt}, v{la+6}""")
            for nt in range(2):
                if nt == 1: k("s_waitcnt lgkmcnt(0)")
                for mt in range(2):
                    A = acc[nt][mt]
                    for p in range(8):
                        k(f"v_pk_fma_f32 {vr(A+2*p,2)}, {vr(rg+16*nt+2*p,2)}, {vr(la+4*mt,2)}, {vr(A+2*p,2)}")
                    for p in range(8):
                        k(f"v_pk_mul_f32 {vr(A+2*p,2)}, {vr(A+2*p,2)}, {vr(la+4*mt+2,2)}")
                    for p in range(8):
                        k(f"v_cvt_pk_bf16_f32 v{A+p}, v{A+2*p}, v{A+2*p+1}")
                    k(f"s_xor_b32 s{s_ow}, s{s_ox}, {(nt*4*32768) | (mt*512)}")
                    k(f"s_add_u32 s{s_rs}, s{s_ow}, {2*32768}")
                    for jp in range(2):
                        k(f"v_permlane32_swap_b32 v{A+4*jp}, v{A+4*jp+2}\nv_permlane32_swap_b32 v{A+4*jp+1}, v{A+4*jp+3}")
                    k(f"buffer_store_dwordx4 {vr(A,4)}, v{t[0]}, {sr(sO,4)}, s{s_ow} offen{sc}")
                    k(f"buffer_store_dwordx4 {vr(A+4,4)}, v{t[0]}, {sr(sO,4)}, s{s_rs} offen{sc}")
        else:
            rg2 = k.v(32, 4)
            k(f"""v_xor_b32 v{t[4]}, 128, v{t[2]}
            ds_read_b32 v{la+2}, v{t[4]} offset:{CS}
            v_add_u32 v{t[5]}, s{s_ow}, v{hoff}""")
            for mt in range(2):
                for j in range(4):
                    k(f"ds_read_b128 {vr(rg+16*mt+4*j,4)}, v{t[5]} offset:{NM+128*mt+32*j}")
                    k(f"ds_read_b128 {vr(rg2+16*mt+4*j,4)}, v{t[5]} offset:{RS+128*mt+32*j}")
            va = [la + 4, la + 5]
            k(f"""s_sub_u32 s{s_ox}, s{s_cg}, 10
            s_lshl_b32 s{s_ox}, s{s_ox}, 7
            s_lshr_b32 s{s_ow}, s{s_t2}, 2
            s_add_u32 s{s_ox}, s{s_ox}, s{s_ow}
            v_add_u32 v{t[0]}, s{s_ox}, v{t[0]}
            v_mul_u32_u24 v{hoff}, 21, v{hoff}""")
            for nt in range(2):
                if nt == 1: k(f"v_xor_b32 v{t[0]}, 32, v{t[0]}")
                k(f"""v_mul_u32_u24 v{t[1]}, 3277, v{t[0]}
                v_lshrrev_b32 v{t[1]}, 16, v{t[1]}
                v_mul_u32_u24 v{t[2]}, {VHEAD - 320}, v{t[1]}
                v_lshl_add_u32 v{t[2]}, v{t[0]}, 4, v{t[2]}
                v_add_u32 v{va[nt]}, v{t[2]}, v{hoff}""")
            k(f"""s_lshl_b32 s{s_ox}, s{s_tb}, 1
            s_add_u32 s{s_ox}, s{s_ox}, s{s_t0}
            s_mul_i32 s{s_ox}, s{s_ox}, 2688
            s_add_u32 s{s_ox}, s{s_ox}, {VIMG}
            v_mov_b32 v{la+0}, v{acs}
            v_mov_b32 v{la+1}, v{acs}
            s_waitcnt lgkmcnt(8)
            v_mov_b32 v{la+3}, v{la+2}""")
            for mt in range(2):
                if mt == 1: k("s_waitcnt lgkmcnt(0)")
                for nt in range(2):
                    A = acc[nt][mt]
                    for p in range(8):
                        k(f"v_pk_fma_f32 {vr(A+2*p,2)}, {vr(rg+16*mt+2*p,2)}, {vr(la+2*nt,2)}, {vr(A+2*p,2)}")
                    for p in range(8):
                        k(f"v_pk_mul_f32 {vr(A+2*p,2)}, {vr(A+2*p,2)}, {vr(rg2+16*mt+2*p,2)}")
                    for p in range(8):
                        k(f"v_cvt_pk_bf16_f32 v{A+p}, v{A+2*p}, v{A+2*p+1}")
                    k(f"buffer_store_dwordx4 {vr(A,4)}, v{va[nt]}, {sr(sO,4)}, s{s_ox} offen offset:{1344*mt}{sc}")
                    k(f"buffer_store_dwordx4 {vr(A+4,4)}, v{va[nt]}, {sr(sO,4)}, s{s_ox} offen offset:{1344*mt+672}{sc}")
    k(f"s_cmp_ge_u32 s{s_cg}, 10\ns_cbranch_scc1 {L_v}")
    vsave = k.vnext
    mainloop(False); epilogue(False); k(f"s_branch {L_J0}")
    k.vnext = vsave
    k(f"{L_v}:")
    mainloop(True); epilogue(True)
    k(f"{L_J0}:\ns_setprio 0")
    k.stamp(4)
    prep_decode(True)
    k(f"""s_lshl_b32 s{c.s_f}, s{s_cg}, 5
    s_add_u32 s{c.s_f}, s{c.s_f}, s{s_tb}
    s_lshl_b32 s{c.s_f}, s{c.s_f}, {FL}
    s_add_u32 s{c.s_f}, s{c.s_f}, {F1}""")
    def spare():
        o4 = acs; xb = acc[0][0]; sm = [fw[0][0], fw[0][0] + 1]; sq = [fw[0][0] + 2, fw[0][0] + 3]
        k(f"""{L_spare}:
        v_lshrrev_b32 v{vt[0]}, 3, v{vl}
        v_lshl_add_u32 v{vt[0]}, s{s_w}, 4, v{vt[0]}
        v_mul_u32_u24 v{vt[0]}, 1280, v{vt[0]}
        v_and_b32 v{vt[2]}, 7, v{vl}
        v_lshl_add_u32 v{vX[0]}, v{vt[2]}, 4, v{vt[0]}
        v_add_u32 v{vX[1]}, {8*1280}, v{vX[0]}
        s_mul_i32 s{s_t0}, s{s_tb}, {128*1280}
        s_mov_b32 s{sX+2}, {128*1280}
        s_mov_b32 s{sX+3}, 0x20000
        s_waitcnt lgkmcnt(0)
        s_add_u32 s{sX}, s{sP}, s{s_t0}
        s_addc_u32 s{sX+1}, s{sP+1}, 0""")
        for g in range(2):
            for i in range(10): k(f"buffer_load_dwordx4 {vr(xb+40*g+4*i,4)}, v{vX[g]}, {sr(sX,4)}, 0 offen offset:{128*i}")
        common_setup()
        srd(k, sW, sWS, sWS + 1, CSG + ZERO_BYTES)
        o4 = xb + 80
        k(f"""s_lshl_b32 s{s_t0}, s{s_tb}, 1
        s_mul_i32 s{s_t0}, s{s_t0}, {VHEAD}
        s_add_u32 s{s_t0}, s{s_t0}, {VIMG + 320}
        v_mul_u32_u24 v{vt[0]}, 336, v0
        v_lshlrev_b32 v{vt[1]}, 4, v0
        s_lshl_b32 s{s_t1}, s{s_tb}, 13
        s_add_u32 s{s_t1}, s{s_t1}, {CSG}
        s_mov_b32 s{s_msk}, 0x3f803f80""")
        for i in range(4): k(f"v_mov_b32 v{o4+i}, 0x3f803f80\nv_mov_b32 v{o4+4+i}, 0")
        nz = (ZERO_BYTES + 131071) // 131072
        for z in range(nz):
            k(f"buffer_store_dwordx4 {vr(o4+4,4)}, v{vt[1]}, {sr(sW,4)}, s{s_t1} offen{sc}\ns_add_u32 s{s_t1}, s{s_t1}, 131072")
        k(f"buffer_store_dwordx4 {vr(o4,4)}, v{vt[0]}, {sr(sO,4)}, s{s_t0} offen{sc}")
        st = o4 + 8
        for i in range(4): k(f"v_mov_b32 v{st+i}, 0")
        for g in range(2):
            for i in range(10):
                k(f"s_waitcnt vmcnt({19 - 10*g - i + nz + 1})")
                for j in range(4):
                    x = xb + 40 * g + 4 * i + j
                    k(f"v_dot2c_f32_bf16 v{st+2*g}, s{s_msk}, v{x}\nv_dot2c_f32_bf16 v{st+2*g+1}, v{x}, v{x}")
        for ctl in ("quad_perm:[1,0,3,2]", "quad_perm:[2,3,0,1]", "row_half_mirror"):
            for i in range(4): k(f"v_add_f32_dpp v{st+i}, v{st+i}, v{st+i} {ctl} row_mask:0xf bank_mask:0xf")
        Ln = k.label("sn")
        k(f"""v_and_b32 v{vt[2]}, 1, v{vl}
        v_cmp_eq_u32 vcc, 1, v{vt[2]}
        v_lshrrev_b32 v{vt[3]}, 3, v{vl}
        v_lshl_add_u32 v{vt[3]}, v{vt[2]}, 3, v{vt[3]}
        v_cndmask_b32 v{st}, v{st}, v{st+2}, vcc
        v_cndmask_b32 v{st+1}, v{st+1}, v{st+3}, vcc
        v_lshlrev_b32 v{vt[3]}, 2, v{vt[3]}
        v_mul_f32 v{st}, {f2u(-1.0/640):#x}, v{st}
        v_mul_f32 v{st+1}, {f2u(1.0/640):#x}, v{st+1}
        v_fma_f32 v{st+1}, -v{st}, v{st}, v{st+1}
        v_max_f32 v{st+1}, 0, v{st+1}
        v_add_f32 v{st+1}, {f2u(1e-5):#x}, v{st+1}
        v_rsq_f32 v{st+1}, v{st+1}
        s_lshl_b32 s{s_t0}, s{s_tb}, 10
        s_lshl_b32 s{s_t1}, s{s_w}, 6
        s_add_u32 s{s_t0}, s{s_t0}, s{s_t1}
        s_add_u32 s{s_t0}, s{s_t0}, {LN1}
        s_mov_b32 exec_lo, 0x03030303
        s_mov_b32 exec_hi, 0x03030303
        buffer_store_dword v{st}, v{vt[3]}, {sr(sO,4)}, s{s_t0} offen{sc}
        buffer_store_dword v{st+1}, v{vt[3]}, {sr(sO,4)}, s{s_t0} offen offset:512{sc}
        s_mov_b64 exec, -1
        s_waitcnt vmcnt(0)
        s_barrier
        s_cmp_lg_u32 s{s_w}, 4
        s_cbranch_scc1 {Ln}
        s_lshl_b32 s{s_t0}, s{s_tb}, 4
        v_mov_b32 v{vt[2]}, 1
        v_mov_b32 v{vt[3]}, 0
        s_mov_b64 exec, 1
        buffer_store_dword v{vt[2]}, v{vt[3]}, {sr(sD,4)}, s{s_t0} offen sc1
        s_mov_b64 exec, -1
        {Ln}:""")
        k.stamp(2); k.stamp(3)
        k(f"s_branch {L_J0}")
    def deferred(fn):
        n = len(k.lines); fn(); out = k.lines[n:]; del k.lines[n:]; return out
    spare_code = deferred(spare)
    c.reset()
    prio = o.get('prio', (16, 10, 4, 2))
    s_h = k.s(); s_pa = k.s(); s_pr = k.s(); s_odd8 = k.s(); s_tok = k.s()
    s_t0 = k.s(); s_t1 = k.s(); s_t2 = k.s(); s_t3 = k.s()
    so = [k.s() for _ in range(3)]; s_d = k.s(); s_mo = k.s(); s_ms = k.s(); s_q1 = k.s(); s_q2 = k.s()
    sG = k.s(2); sE = k.s(2)
    vq = k.v(); vr31 = k.v(); vKA = k.v(); vKR = k.v(); vVA = k.v()
    vt = [k.v() for _ in range(6)]
    S = [k.v(16, 4), k.v(16, 4)]; O = k.v(16, 4); P = k.v(8, 4)
    Qm = k.v(4, 4); Qr = k.v(2); Km = k.v(4, 4); Kr = k.v(2); V0 = k.v(4, 4); V1 = [k.v(4, 4), k.v(4, 4)]
    PR = k.v(16, 4); C = S[1]; vcs = k.v(4, 2); vca = k.v(); vfp = k.v(4, 4)
    L_slow = k.label("slow"); L_store = k.label("store")
    k(f"""s_and_b32 s{s_t0}, s2, 7
    s_lshl_b32 s{s_t0}, s{s_t0}, 2
    s_bfe_u32 s{s_t1}, s2, 0x20003
    s_add_u32 s{s_h}, s{s_t0}, s{s_t1}
    s_lshr_b32 s{s_q1}, s{s_h}, 1
    s_mul_i32 s{s_t0}, s{s_q1}, 5
    s_and_b32 s{s_t1}, s{s_h}, 1
    s_lshl_b32 s{s_odd8}, s{s_t1}, 3
    s_mul_i32 s{s_t1}, s{s_t1}, 3
    s_add_u32 s{s_pa}, s{s_t0}, s{s_t1}
    s_lshl_b32 s{s_pa}, s{s_pa}, 15
    s_add_u32 s{s_pr}, s{s_t0}, 2
    s_lshl_b32 s{s_pr}, s{s_pr}, 15
    s_lshl_b32 s{s_t0}, s{s_wl}, 10
    s_add_u32 s{s_t1}, s{s_t0}, {80*32768}
    s_add_u32 s{so[0]}, s{s_pa}, s{s_t1}
    s_add_u32 s{so[2]}, s{s_pr}, s{s_t1}
    s_mul_i32 s{s_t1}, s{s_wl}, 3072
    s_mul_i32 s{s_t2}, s{s_h}, {VHEAD}
    s_add_u32 s{s_t2}, s{s_t2}, s{s_t1}
    s_add_u32 s{s_t2}, s{s_t2}, {VIMG}
    s_add_u32 s{s_t3}, s{s_t2}, 2048
    s_add_u32 s{s_t1}, s{s_t1}, {VB}
    s_cmp_lt_u32 s{s_w}, 4
    s_cselect_b32 s{so[0]}, s{so[0]}, s{s_t2}
    s_cselect_b32 s{so[2]}, s{so[2]}, s{s_t3}
    s_cselect_b32 s{s_mo}, s{s_t0}, s{s_t1}
    s_movk_i32 s{s_t0}, 1024
    s_cselect_b32 s{so[1]}, 32768, s{s_t0}
    s_movk_i32 s{s_d}, 10752
    s_cselect_b32 s{s_d}, 4096, s{s_d}
    s_movk_i32 s{s_ms}, 1024
    s_cselect_b32 s{s_ms}, 4096, s{s_ms}
    s_add_u32 s{so[1]}, s{so[1]}, s{so[0]}
    v_and_b32 v{vr31}, 31, v{vl}
    v_lshlrev_b32 v{vr31}, 4, v{vr31}
    v_lshrrev_b32 v{vt[1]}, 5, v{vl}
    v_lshl_add_u32 v{vq}, v{vt[1]}, 15, v{vr31}
    v_lshl_add_u32 v{vKA}, v{vt[1]}, 12, v{vr31}
    v_add_u32 v{vKR}, s{s_odd8}, v{vr31}
    v_add_u32 v{vKR}, 8192, v{vKR}
    v_mul_u32_u24 v{vt[0]}, 336, v{vt[1]}
    v_add_u32 v{vt[0]}, v{vt[0]}, v{vr31}
    v_add_u32 v{vVA}, {VB}, v{vt[0]}
    v_cmp_lt_u32 vcc, {20*16}, v{vr31}
    v_mov_b32 v{vt[0]}, 0x40000
    v_mov_b32 v{Qr}, 0
    v_cndmask_b32 v{vVA}, v{vVA}, v{vt[0]}, vcc
    v_cmp_lt_u32 vcc, 31, v{vl}
    v_mov_b32 v{Qr+1}, 0
    s_lshr_b32 s{s_tok}, s2, 5
    v_cndmask_b32 v{vKR}, v{vKR}, v{vt[0]}, vcc
    s_lshl_b32 s{s_tok}, s{s_tok}, 8
    s_lshl_b32 s{s_t0}, s{s_w}, 5
    s_add_u32 s{s_tok}, s{s_tok}, s{s_t0}""")
    p1 = [f"s_mov_b32 m0, s{sR[4]}", "s_nop 0"]
    for i, (sd, so_) in enumerate(((sA, sR[0]), (sA, sR[2]), (sB, sR[1]), (sB, sR[3]))):
        p1.append(f"buffer_load_dwordx4 v{vPS}, {sr(sd,4)}, s{so_} offen lds")
        if i < 3: p1 += ["s_add_u32 m0, m0, 1024", "s_nop 0"]
    edge_prep = o.get('edge_prep', False)
    Lx = k.label("jx"); Lp = k.label("jp"); Lz = k.label("jz"); Lzx = k.label("jzx"); Lns = k.label("jns")
    k(f"""s_cmp_lg_u32 s{s_w}, 0
    s_cbranch_scc1 {Lzx}
    v_and_b32 v{vt[3]}, 15, v{vl}
    v_lshlrev_b32 v{vt[3]}, 4, v{vt[3]}
    s_mov_b32 s{s_t1}, 0
    {Lz}:
    buffer_load_dword v{vt[4]}, v{vt[3]}, {sr(sD,4)}, 0 offen sc1
    s_add_u32 s{s_t1}, s{s_t1}, 1
    s_cmp_gt_u32 s{s_t1}, 0x40000
    s_cbranch_scc1 {Lzx}
    s_waitcnt vmcnt(0)
    v_cmp_ne_u32 vcc, 0, v{vt[4]}
    s_cmp_eq_u64 vcc, -1
    s_cbranch_scc0 {Lz}
    {Lzx}:
    s_waitcnt vmcnt(0)""")
    k.stamp(5)
    k(f"""s_barrier
    s_cmp_lg_u32 s{s_w}, 0
    s_cbranch_scc1 {Lns}""")
    c.signal(c.s_f, vt[2])
    k(f"{Lns}:")
    if edge_prep:
        for x in p1: k(x)
    k(f"""s_cmp_lg_u32 s{s_w}, 0
    s_cbranch_scc1 {Lx}
    s_mul_i32 s{s_t0}, s{s_q1}, 40
    s_add_u32 s{s_t1}, s{s_t0}, 39
    s_lshr_b32 s{s_t0}, s{s_t0}, 7
    s_lshr_b32 s{s_t1}, s{s_t1}, 7
    s_lshl_b32 s{s_t0}, s{s_t0}, {FL+5}
    s_lshl_b32 s{s_t1}, s{s_t1}, {FL+5}
    s_add_u32 s{s_t0}, s{s_t0}, {F1}
    s_add_u32 s{s_t1}, s{s_t1}, {F1}
    v_lshrrev_b32 v{vt[2]}, 4, v{vl}
    v_min_u32 v{vt[2]}, 2, v{vt[2]}
    v_mul_u32_u24 v{vt[2]}, 160, v{vt[2]}
    v_and_b32 v{vt[3]}, 15, v{vl}
    v_add_u32 v{vt[3]}, v{vt[3]}, v{vt[2]}
    v_lshlrev_b32 v{vt[3]}, {FL}, v{vt[3]}
    s_mov_b32 s{s_t2}, 0
    {Lp}:
    buffer_load_dword v{vt[4]}, v{vt[3]}, {sr(sO,4)}, s{s_t0} offen sc1
    buffer_load_dword v{vt[5]}, v{vt[3]}, {sr(sO,4)}, s{s_t1} offen sc1
    s_add_u32 s{s_t2}, s{s_t2}, 1
    s_cmp_gt_u32 s{s_t2}, 0x40000
    s_cbranch_scc1 {Lx}
    s_waitcnt vmcnt(0)
    v_min_u32 v{vt[4]}, v{vt[4]}, v{vt[5]}
    v_cmp_ne_u32 vcc, 0, v{vt[4]}
    s_cmp_eq_u64 vcc, -1
    s_cbranch_scc0 {Lp}
    {Lx}:
    s_lshl_b32 s{s_t0}, s{s_tok}, 4
    s_add_u32 s{s_q1}, s{s_t0}, s{s_pa}
    s_add_u32 s{s_q2}, s{s_t0}, s{s_pr}
    s_add_u32 s{s_q2}, s{s_q2}, s{s_odd8}
    s_barrier""")
    k.stamp(6)
    def dma(slot):
        out = [f"s_add_u32 m0, s{s_mo}, {slot*SL}", "s_nop 0"]
        for i in range(3):
            out.append(f"buffer_load_dwordx4 v{vl16}, {sr(sO,4)}, s{so[i]} offen lds")
            if i < 2: out.append(f"s_add_u32 m0, m0, s{s_ms}")
            out.append(f"s_add_u32 s{so[i]}, s{so[i]}, s{s_d}")
        return out
    for x in dma(0): k(x)
    k(f"""buffer_load_dwordx4 {vr(Qm,4)}, v{vq}, {sr(sO,4)}, s{s_q1} offen
    s_mov_b32 exec_hi, 0
    buffer_load_dwordx2 {vr(Qr,2)}, v{vr31}, {sr(sO,4)}, s{s_q2} offen
    s_mov_b32 exec_hi, -1""")
    for x in dma(1): k(x)
    p2a = [f"ds_read_b64_tr_b16 {vr(PR+4*Tl+2*rd,2)}, v{vPA} offset:{rd*1024+Tl*32}" for Tl in range(4) for rd in range(2)]
    p2c = [f"s_mov_b32 s{sE}, 0x3f803f80", f"v_lshlrev_b32 v{vca}, 2, v{vl}"] + [f"v_mov_b32 v{vcs+i}, 0" for i in range(4)]
    p2c += [f"v_dot2c_f32_bf16 v{vcs+Tl}, s{sE}, v{PR+4*Tl+i}" for i in range(4) for Tl in range(4)]
    p2c += ["s_nop 1", f"v_permlane32_swap_b32 v{vcs}, v{vcs+1}", f"v_permlane32_swap_b32 v{vcs+2}, v{vcs+3}",
            f"v_add_f32 v{vcs}, v{vcs}, v{vcs+1}", f"v_add_f32 v{vcs+2}, v{vcs+2}, v{vcs+3}"]
    late = [f"buffer_store_dwordx4 {vr(PR+4*Tl,4)}, v{vl16}, {sr(sO,4)}, s{s_po} offen offset:{Tl*1024}{sc}" for Tl in range(4)]
    late += [f"buffer_atomic_add_f32 v{vcs}, v{vca}, {sr(sO,4)}, s{s_cs} offen", f"buffer_atomic_add_f32 v{vcs+2}, v{vca}, {sr(sO,4)}, s{s_cs} offen offset:256"]
    TL = o.get('TL', 9); TP = 23
    late_t = o.get('late_t', [25, 27, 29, 32, 34, 36])
    if edge_prep:
        TL = TP = -9; late_t = o.get('late_t', [8, 10, 12, 16, 18, 20])
        k("s_waitcnt vmcnt(8)")
        for x in p2a: k(x)
        k("s_waitcnt lgkmcnt(0)")
        for x in p2c: k(x)
    def rdK(t):
        o_ = ((t // 8) % 3) * SL + (t % 8) * 512
        return [f"ds_read_b128 {vr(Km,4)}, v{vKA} offset:{o_}", f"ds_read_b64 {vr(Kr,2)}, v{vKR} offset:{o_}"]
    def rdV(t):
        o_ = ((t // 8) % 3) * SL + (t % 8) * 1344
        return [f"ds_read_b128 {vr(V0,4)}, v{vVA} offset:{o_}", f"ds_read_b128 {vr(V1[t&1],4)}, v{vVA} offset:{o_+672}"]
    k("s_waitcnt vmcnt(3)\ns_barrier")
    k.stamp(7)
    for x in rdK(0) + rdV(0): k(x)
    k(f"""s_waitcnt lgkmcnt(2)
    {M8} {vr(S[0],16)}, {vr(Kr,2)}, {vr(Qr,2)}, 0
    {M16} {vr(S[0],16)}, {vr(Km,4)}, {vr(Qm,4)}, {vr(S[0],16)}""")
    for x in rdK(1): k(x)
    side = []
    def spread(n):
        for _ in range(n):
            if side: k(side.pop(0))
    for t in range(64):
        s = S[t & 1]; sn = S[(t + 1) & 1]; ch = t // 8; last = t == 63
        e = lambda *a: [(k(f"v_exp_f32 v{s+i}, v{s+i}"), spread(1)) for i in a]
        cv = lambda i: k(f"v_cvt_pk_bf16_f32 v{P+i}, v{s+2*i}, v{s+2*i+1}")
        def pr(ph):
            if prio:
                q = (4 * t + ph - 26) % 32
                cum = 0
                for lvl, ln in enumerate(prio):
                    if (q == cum and ln > 0) or (t == 0 and ph == 0 and cum <= q < cum + ln): k(f"s_setprio {3 - lvl}")
                    cum += ln
        pr(0)
        e(0, 1, 2, 3)
        if not last:
            k(f"s_waitcnt lgkmcnt({2 if t > 0 else 0})")
            k(f"{M8} {vr(sn,16)}, {vr(Kr,2)}, {vr(Qr,2)}, 0")
        pr(1)
        e(4); cv(0); e(5); cv(1); e(6, 7)
        if not last: k(f"{M16} {vr(sn,16)}, {vr(Km,4)}, {vr(Qm,4)}, {vr(sn,16)}")
        if t % 8 == 6 and ch < 7:
            assert not side
            nl = sum(1 for x in late_t + [TL] * 4 if t - 8 < x < t)
            sig = max(late_t) < t - 8 and max(late_t) >= t - 16
            k(f"s_waitcnt vmcnt({nl})\ns_barrier")
            if ch < 6: side += dma((ch + 2) % 3)
            if sig:
                Ln = k.label("nf")
                k(f"s_cmp_lg_u32 s{s_w}, 0\ns_cbranch_scc1 {Ln}\ns_lshl_b32 s{s_t0}, s2, 2\ns_add_u32 s{s_t0}, s{s_t0}, {FP}")
                c.signal(s_t0, vt[2]); k(f"{Ln}:")
            if ch == 6:
                k(f"s_mov_b32 s{s_t0}, {FP}\nbuffer_load_dwordx4 {vr(vfp,4)}, v{vl16}, {sr(sO,4)}, s{s_t0} offen sc1")
        pr(2)
        if t < 62:
            for x in rdK(t + 2): k(x)
        if t == TP:
            for x in p2a: k(x)
        cv(2); e(8); cv(3); e(9, 10, 11)
        k(f"s_waitcnt lgkmcnt({(2 if t < 62 else 0) + (8 if t == TP else 0)})")
        k(f"{M16} {vr(O,16)}, {vr(V0,4)}, {vr(P,4)}, {'0' if t == 0 else vr(O,16)}")
        pr(3)
        if t in late_t: side.append(late[late_t.index(t)])
        if t == TL: side += p1
        if t == TP + 1: side += p2c
        cv(4); e(12); cv(5); e(13, 14, 15); cv(6)
        if not last:
            rv = rdV(t + 1)
            k(rv[0]); cv(7); k(rv[1]); k("s_nop 0")
        else:
            cv(7)
        k(f"{M16} {vr(O,16)}, {vr(V1[t&1],4)}, {vr(P+4,4)}, {vr(O,16)}")
    assert not side
    t0, t1, t2 = vt[0], vt[1], vt[2]
    k(f"""s_setprio 0
    v_bfe_u32 v{vt[3]}, v{vl}, 4, 1
    v_mul_u32_u24 v{vt[3]}, {20*1024}, v{vt[3]}
    v_and_b32 v{vt[4]}, 15, v{vl}
    v_lshl_add_u32 v{vt[3]}, v{vt[4]}, 4, v{vt[3]}
    v_lshrrev_b32 v{vt[4]}, 5, v{vl}
    v_lshl_add_u32 v{vt[4]}, v{vt[4]}, 8, v{vt[3]}
    s_mov_b32 s{s_q1}, {f2u(2.0**64):#x}
    s_mov_b32 s{s_q2}, 0x7f800000
    v_mov_b32 v{t0}, v{O+8}
    v_mov_b32 v{t1}, v{O+8}
    v_add_f32 v{t2}, |v{O}|, |v{O+1}|
    v_add_f32 v{t2}, |v{O+2}|, v{t2}
    v_permlane32_swap_b32 v{t0}, v{t1}""")
    for i in range(3, 12): k(f"v_add_f32 v{t2}, |v{O+i}|, v{t2}")
    k(f"""v_cmp_lt_f32 vcc, {f2u(2.0**-64):#x}, v{t1}
    v_cmp_gt_f32 {sr(sE,2)}, s{s_q1}, v{t1}
    v_cmp_gt_f32 {sr(sG,2)}, s{s_q2}, v{t2}
    s_and_b64 vcc, vcc, {sr(sE,2)}
    s_and_b64 vcc, vcc, {sr(sG,2)}
    s_cmp_eq_u64 vcc, -1
    s_cbranch_scc0 {L_slow}
    {L_store}:
    v_rcp_f32 v{t1}, v{t1}
    s_lshr_b32 s{s_t0}, s{s_tok}, 4
    s_mul_i32 s{s_t0}, s{s_t0}, {20*1024}
    s_add_u32 s{s_t0}, s{s_t0}, {OIMG}
    s_lshl_b32 s{s_t1}, s{s_h}, 9
    s_add_u32 s{s_t1}, s{s_t1}, s{s_t0}
    s_lshr_b32 s{s_t2}, s{s_h}, 1
    s_lshl_b32 s{s_t2}, s{s_t2}, 8
    s_add_u32 s{s_t2}, s{s_t2}, s{s_t0}
    s_add_u32 s{s_t2}, s{s_t2}, s{s_odd8}
    s_add_u32 s{s_t2}, s{s_t2}, {16*1024}""")
    for i in range(12): k(f"v_mul_f32 v{O+i}, v{t1}, v{O+i}")
    for i in range(6): k(f"v_cvt_pk_bf16_f32 v{O+i}, v{O+2*i}, v{O+2*i+1}")
    k(f"""buffer_store_dwordx4 {vr(O,4)}, v{vt[4]}, {sr(sO,4)}, s{s_t1} offen{sc}
    s_mov_b32 exec_hi, 0
    buffer_store_dwordx2 {vr(O+4,2)}, v{vt[3]}, {sr(sO,4)}, s{s_t2} offen{sc}
    s_mov_b32 exec_hi, -1""")
    def slow():
        vV = vKA; vm = vKR; cnt = s_t3
        k(f"""{L_slow}:
        s_add_u32 s{so[0]}, s{s_pa}, {80*32768}
        s_add_u32 s{so[1]}, s{s_pr}, {80*32768}
        s_add_u32 s{so[1]}, s{so[1]}, s{s_odd8}
        v_mov_b32 v{vm}, 0xff800000
        s_mov_b32 s{cnt}, 0""")
        L1 = k.label("mx")
        k(f"""{L1}:
        buffer_load_dwordx4 {vr(Km,4)}, v{vq}, {sr(sO,4)}, s{so[0]} offen
        buffer_load_dwordx2 {vr(Kr,2)}, v{vr31}, {sr(sO,4)}, s{so[1]} offen
        s_add_u32 s{so[0]}, s{so[0]}, 512
        s_add_u32 s{so[1]}, s{so[1]}, 512
        s_waitcnt vmcnt(0)
        {M8} {vr(S[0],16)}, {vr(Kr,2)}, {vr(Qr,2)}, 0
        {M16} {vr(S[0],16)}, {vr(Km,4)}, {vr(Qm,4)}, {vr(S[0],16)}""")
        for i in range(8): k(f"v_max3_f32 v{vm}, v{S[0]+2*i}, v{S[0]+2*i+1}, v{vm}")
        k(f"""s_add_u32 s{cnt}, s{cnt}, 1
        s_cmp_lt_u32 s{cnt}, 64
        s_cbranch_scc1 {L1}
        v_mov_b32 v{t0}, v{vm}
        v_permlane32_swap_b32 v{t0}, v{vm}
        v_max_f32 v{vm}, v{vm}, v{t0}""")
        for i in range(16): k(f"v_sub_f32 v{C+i}, 0, v{vm}\nv_mov_b32 v{O+i}, 0")
        k(f"""s_add_u32 s{so[0]}, s{s_pa}, {80*32768}
        s_add_u32 s{so[1]}, s{s_pr}, {80*32768}
        s_add_u32 s{so[1]}, s{so[1]}, s{s_odd8}
        s_mul_i32 s{so[2]}, s{s_h}, {VHEAD}
        s_add_u32 s{so[2]}, s{so[2]}, {VIMG}
        v_lshrrev_b32 v{vV}, 5, v{vl}
        v_mul_u32_u24 v{vV}, 336, v{vV}
        v_add_u32 v{vV}, v{vV}, v{vr31}
        s_mov_b32 s{cnt}, 0""")
        L2 = k.label("pv")
        k(f"""{L2}:
        buffer_load_dwordx4 {vr(Km,4)}, v{vq}, {sr(sO,4)}, s{so[0]} offen
        buffer_load_dwordx2 {vr(Kr,2)}, v{vr31}, {sr(sO,4)}, s{so[1]} offen
        buffer_load_dwordx4 {vr(V0,4)}, v{vV}, {sr(sO,4)}, s{so[2]} offen
        buffer_load_dwordx4 {vr(V1[0],4)}, v{vV}, {sr(sO,4)}, s{so[2]} offen offset:672
        s_add_u32 s{so[0]}, s{so[0]}, 512
        s_add_u32 s{so[1]}, s{so[1]}, 512
        s_add_u32 s{so[2]}, s{so[2]}, 1344
        s_waitcnt vmcnt(0)
        {M8} {vr(S[0],16)}, {vr(Kr,2)}, {vr(Qr,2)}, {vr(C,16)}
        {M16} {vr(S[0],16)}, {vr(Km,4)}, {vr(Qm,4)}, {vr(S[0],16)}""")
        for i in range(16): k(f"v_exp_f32 v{S[0]+i}, v{S[0]+i}")
        for i in range(8): k(f"v_cvt_pk_bf16_f32 v{P+i}, v{S[0]+2*i}, v{S[0]+2*i+1}")
        k(f"""{M16} {vr(O,16)}, {vr(V0,4)}, {vr(P,4)}, {vr(O,16)}
        {M16} {vr(O,16)}, {vr(V1[0],4)}, {vr(P+4,4)}, {vr(O,16)}
        s_add_u32 s{cnt}, s{cnt}, 1
        s_cmp_lt_u32 s{cnt}, 64
        s_cbranch_scc1 {L2}
        v_mov_b32 v{t0}, v{O+8}
        v_mov_b32 v{t1}, v{O+8}
        v_permlane32_swap_b32 v{t0}, v{t1}
        s_branch {L_store}""")
    slow_code = deferred(slow)
    L3 = k.label("ld")
    k.stamp(8); k.nst = 8
    if o.get('fine1'):
        k.maxst = 14; k.stamp = lambda *a, **kw: None
    k(f"""s_lshr_b32 s{c.s_f}, s2, 5
    s_lshl_b32 s{c.s_f}, s{c.s_f}, 5
    s_add_u32 s{c.s_f}, s{c.s_f}, s{s_h}
    s_lshl_b32 s{c.s_f}, s{c.s_f}, {FL}
    s_add_u32 s{c.s_f}, s{c.s_f}, {F2}""")
    P3 = P35(c, 3, D=o.get('D3', 20), D0=o.get('D30', 6))
    P3.rowmap = o.get('row3', True)
    k(P3.ptr_load()); P3.ids()
    lw(c, L3)
    def handoff(vt, stmp, n):
        Ln = k.label("nw0")
        k("s_barrier")
        k(f"s_cmp_lg_u32 s{c.s_w}, 0\ns_cbranch_scc1 {Ln}")
        c.signal(c.s_f, vt); c.poll(c.s_p, n, vt, stmp)
        k(f"{Ln}:\ns_barrier")
    k("s_barrier")
    P3.setup()
    k(f"""s_lshr_b32 s{c.s_p}, s{P3.s_tb16}, 4
    s_lshl_b32 s{c.s_p}, s{c.s_p}, {FL+5}
    s_add_u32 s{c.s_p}, s{c.s_p}, {F2}
    s_waitcnt vmcnt(3)""")
    handoff(P3.vt[0], P3.s_t0, 32)
    k.stamp('n')
    P3.main(init=False, resident=True)
    k("s_barrier")
    P3.epilogue()
    k(f"""s_lshr_b32 s{c.s_f}, s{P3.s_tb16}, 3
    s_lshl_b32 s{c.s_f}, s{c.s_f}, 5
    s_bfe_u32 s{P3.s_t0}, s{P3.s_tb16}, 0x10002
    s_lshl_b32 s{P3.s_t0}, s{P3.s_t0}, 3
    s_add_u32 s{c.s_f}, s{c.s_f}, s{P3.s_t0}
    s_add_u32 s{c.s_f}, s{c.s_f}, s{P3.s_c}
    s_lshl_b32 s{c.s_f}, s{c.s_f}, {FL}
    s_add_u32 s{c.s_f}, s{c.s_f}, {F3}""")
    Q4 = P4(c, D=o.get('D4', 12), D0=o.get('D40', 4)); Q4.ahead = o.get('ahead4', 4)
    Q4.ids(); Q4.setup()
    k(f"""s_lshr_b32 s{c.s_p}, s{Q4.s_tb}, 2
    s_lshl_b32 s{c.s_p}, s{c.s_p}, {FL+5}
    s_add_u32 s{c.s_p}, s{c.s_p}, {F3}
    s_waitcnt vmcnt(0)""")
    k.stamp('n')
    handoff(Q4.st, Q4.s_t1, 16)
    k.stamp('n')
    Q4.main(init=False, endbar=True)
    Q4.epilogue(k.label("fin"))
    k(f"""s_lshr_b32 s{c.s_f}, s{Q4.s_tb}, 2
    s_lshl_b32 s{c.s_f}, s{c.s_f}, 5
    s_add_u32 s{c.s_f}, s{c.s_f}, s{Q4.s_g}
    s_lshl_b32 s{c.s_f}, s{c.s_f}, {FL}
    s_add_u32 s{c.s_f}, s{c.s_f}, {F4}""")
    P5 = P35(c, 5, D=o.get('D5', 8), D0=o.get('D50', 4)); P5.ahead = o.get('ahead5', 5); P5.rowmap = o.get('row5', True)
    k("s_nop 1"); k(P5.ptr_load()); P5.ids(); P5.setup()
    k(f"""s_lshr_b32 s{c.s_p}, s{P5.s_tb16}, 3
    s_lshl_b32 s{c.s_p}, s{c.s_p}, {FL+5}
    s_add_u32 s{c.s_p}, s{c.s_p}, {F4}
    s_waitcnt vmcnt(0)""")
    k.stamp('n')
    handoff(P5.vt[0], P5.s_t0, 16)
    k.stamp('n')
    P5.main(init=False)
    P5.epilogue()
    c.finish()
    k(f"{L3}:")
    Lp = k.label("fp"); Lok = k.label("fpok")
    k(f"""s_mov_b32 s{P3.s_cnt}, 0
    s_waitcnt vmcnt(2)
    {Lp}:
    v_min_u32 v{vfp}, v{vfp}, v{vfp+1}
    v_min3_u32 v{vfp}, v{vfp}, v{vfp+2}, v{vfp+3}
    s_add_u32 s{P3.s_cnt}, s{P3.s_cnt}, 1
    v_cmp_ne_u32 vcc, 0, v{vfp}
    s_cmp_eq_u64 vcc, -1
    s_cbranch_scc1 {Lok}
    s_cmp_gt_u32 s{P3.s_cnt}, 0x40000
    s_cbranch_scc1 {Lok}
    s_mov_b32 s{P3.s_t0}, {FP}
    buffer_load_dwordx4 {vr(vfp,4)}, v{c.vl16}, {sr(c.sO,4)}, s{P3.s_t0} offen sc1
    s_waitcnt vmcnt(0)
    s_branch {Lp}
    {Lok}:
    s_barrier""")
    P3.ld_setup()
    k("s_waitcnt vmcnt(0)\ns_barrier")
    for ch in range(5): P3.ld_chunk(ch)
    k("s_waitcnt vmcnt(0)\ns_barrier")
    Q4.ids(); Q4.ld_setup()
    k("s_barrier")
    n4 = o.get('pre4', 2)
    for ch in range(n4): Q4.ld_chunk(ch)
    k("s_barrier")
    for ch in range(n4, 5): Q4.ld_chunk(ch)
    Q4.ld_cs()
    k("s_waitcnt vmcnt(29)\ns_barrier")
    if o.get('warm5', True):
        def warm():
            k(f'''s_lshr_b32 s{Q4.s_t0}, s2, 3
            s_lshl_b32 s{Q4.s_t0}, s{Q4.s_t0}, 2
            s_add_u32 s{Q4.s_t0}, s{Q4.s_t0}, s{c.s_wl}
            s_mul_i32 s{Q4.s_t0}, s{Q4.s_t0}, 8320
            s_add_u32 s{Q4.s_t0}, s{Q4.s_t0}, {WDP + 28*40960}''')
            for i in range(9):
                k(f"buffer_load_dwordx4 {vr(Q4.acc[0]+4*(i%4),4)}, v{c.vl16}, {sr(c.sO,4)}, s{Q4.s_t0} offen offset:{(i%4)*1024}")
                if i % 4 == 3: k(f"s_add_u32 s{Q4.s_t0}, s{Q4.s_t0}, 4096")
        Q4.warm = warm; Q4.nwarm = 9
    Q4.ld_main(5, 1, init=False)
    P5.ids(); P5.ld_setup()
    k("s_barrier")
    n5 = o.get('pre5', 4)
    for ch in range(n5): P5.ld_chunk(ch)
    k("s_barrier")
    for ch in range(n5, 7): P5.ld_chunk(ch)
    k("s_waitcnt vmcnt(30)\ns_barrier")
    P5.ld_main(7, init=False)
    if K.STAMP:
        for i in range(9, 15): k.stamp(i)
        k.stamp_flush(c.sO, c.s_w)
    k("s_endpgm")
    k.lines += slow_code + spare_code
    return k, (256, 512, max(P3.lds, Q4.lds, P5.lds))
```

```python
from ph import *

def lw(c, L):
    c.k(f"s_cmp_ge_u32 s{c.s_w}, 4\ns_cbranch_scc1 {L}")

class P35:
    def __init__(self, c, which, D=12, D0=None):
        self.c = c; self.k3 = k3 = which == 3; k = c.k
        self.NU = 20 if k3 else 54; self.CK = 4; self.SLOT = 20480
        self.NCH = (self.NU + 3) // 4; self.NSL = 5 if k3 else 7
        self.XS = self.NSL * self.SLOT; self.D = D; self.D0 = D0 or D
        self.lds = self.XS + 4 * 3072
        c.reset()
        self.sPX = k.s(2); self.sB = k.s(4); self.sX = k.s(4)
        (self.s_tb16, self.s_c, self.s_t0, self.s_t1, self.s_t2, self.s_bo, self.s_wo, self.s_m0, self.s_xs, self.s_ho,
         self.s_cnt) = [k.s() for _ in range(11)]
        self.vt = [k.v() for _ in range(6)]; self.vH = k.v(); self.vD = k.v(); self.vA = [k.v() for _ in range(3)]
        self.vrow = [k.v() for _ in range(3)]
        self.acc = k.v(20, 4); self.fa = [k.v(20, 4) for _ in range(3)]; self.res = k.v(12, 4)
        self.fb = k.v(4 * self.D, 4)
    def ptr_load(self): return f"s_load_dwordx2 {sr(self.sPX,2)}, s[0:1], {KA_X if self.k3 else KA_OUT}"
    rowmap = False
    def ids(self):
        k = self.c.k
        if self.rowmap:
            k(f"""s_and_b32 s{self.s_t0}, s2, 7
            s_lshl_b32 s{self.s_t0}, s{self.s_t0}, 2
            s_bfe_u32 s{self.s_t1}, s2, 0x20003
            s_add_u32 s{self.s_tb16}, s{self.s_t0}, s{self.s_t1}
            s_lshl_b32 s{self.s_tb16}, s{self.s_tb16}, 2
            s_add_u32 s{self.s_tb16}, s{self.s_tb16}, s{self.c.s_wl}
            s_lshr_b32 s{self.s_c}, s2, 5""")
            return
        k(f"""s_and_b32 s{self.s_t0}, s2, 3
        s_lshl_b32 s{self.s_t0}, s{self.s_t0}, 3
        s_bfe_u32 s{self.s_t1}, s2, 0x30003
        s_add_u32 s{self.s_tb16}, s{self.s_t0}, s{self.s_t1}
        s_lshl_b32 s{self.s_tb16}, s{self.s_tb16}, 2
        s_add_u32 s{self.s_tb16}, s{self.s_tb16}, s{self.c.s_wl}
        s_bfe_u32 s{self.s_t0}, s2, 0x10002
        s_lshl_b32 s{self.s_t0}, s{self.s_t0}, 2
        s_lshr_b32 s{self.s_t1}, s2, 6
        s_add_u32 s{self.s_c}, s{self.s_t0}, s{self.s_t1}""")
    def ld_setup(self):
        k = self.c.k
        k(f"""s_mul_i32 s{self.s_wo}, s{self.c.s_wl}, 8
        s_add_u32 s{self.s_wo}, s{self.s_wo}, s{self.s_c}
        s_mul_i32 s{self.s_wo}, s{self.s_wo}, 5120
        s_add_u32 s{self.s_wo}, s{self.s_wo}, {WOP if self.k3 else WDP}
        s_mul_i32 s{self.s_m0}, s{self.c.s_wl}, 5120""")
    def ld_chunk(self, slot):
        k = self.c.k; c = self.c
        k(f"s_add_u32 m0, s{self.s_m0}, {slot*self.SLOT}\ns_add_u32 s{self.s_t2}, s{self.s_wo}, 4096")
        for i in range(4):
            k(f"buffer_load_dwordx4 v{c.vl16}, {sr(c.sO,4)}, s{self.s_wo} offen offset:{i*1024}{c.lsc} lds")
        k(f"s_add_u32 m0, m0, 4096\ns_add_u32 s{self.s_wo}, s{self.s_wo}, {4*40960}")
        k(f"buffer_load_dwordx4 v{c.vl16}, {sr(c.sO,4)}, s{self.s_t2} offen{c.lsc} lds")
    def ld_main(self, issued, init=True):
        k = self.c.k; NCH = self.NCH
        if init: k(f"s_waitcnt vmcnt({5*(issued-1)})\ns_barrier")
        for ch in range(NCH - 1):
            k(f"s_waitcnt vmcnt({5*max(0, issued-ch-2)})\ns_barrier")
            while issued < NCH and issued < ch + self.NSL and issued <= ch + 1 + self.ahead:
                self.ld_chunk(issued % self.NSL); issued += 1
    def setup(self):
        k = self.c.k; c = self.c; vt = self.vt; vl = c.vl
        for i in range(3):
            k(f"""v_add_u32 v{vt[0]}, {64*i}, v{vl}
            v_mul_u32_u24 v{vt[1]}, 6554, v{vt[0]}
            v_lshrrev_b32 v{vt[1]}, 16, v{vt[1]}
            v_mul_u32_u24 v{vt[1]}, {1280-160}, v{vt[1]}
            v_lshl_add_u32 v{self.vrow[i]}, v{vt[0]}, 4, v{vt[1]}""")
        k(f"""s_mul_i32 s{self.s_t1}, s{self.s_tb16}, {16*1280}
        s_mul_i32 s{self.s_t2}, s{self.s_c}, 160
        s_add_u32 s{self.s_t1}, s{self.s_t1}, s{self.s_t2}
        s_waitcnt lgkmcnt(0)
        s_add_u32 s{self.sX}, s{self.sPX}, s{self.s_t1}
        s_addc_u32 s{self.sX+1}, s{self.sPX+1}, 0
        s_sub_u32 s{self.sX+2}, {2048*1280}, s{self.s_t1}
        s_mov_b32 s{self.sX+3}, 0x20000
        s_mul_i32 s{self.s_xs}, s{c.s_wl}, 3072
        s_add_u32 s{self.s_xs}, s{self.s_xs}, {self.XS}""")
        if self.k3:
            k(f"s_mov_b32 m0, s{self.s_xs}")
            for i in range(3):
                k(f"s_nop 0\nbuffer_load_dwordx4 v{self.vrow[i]}, {sr(self.sX,4)}, 0 offen lds")
                if i < 2: k("s_add_u32 m0, m0, 1024")
        k(f"""v_lshrrev_b32 v{vt[0]}, 4, v{vl}
        v_and_b32 v{vt[1]}, 15, v{vl}
        v_lshlrev_b32 v{vt[2]}, 4, v{vt[1]}
        v_lshl_add_u32 v{self.vH}, v{vt[0]}, 9, v{vt[2]}
        s_lshr_b32 s{self.s_t1}, s{self.s_tb16}, 1
        s_mul_i32 s{self.s_t1}, s{self.s_t1}, 40
        s_mul_i32 s{self.s_t2}, s{self.s_c}, 5
        s_add_u32 s{self.s_t1}, s{self.s_t1}, s{self.s_t2}
        s_lshl_b32 s{self.s_t1}, s{self.s_t1}, 10
        s_and_b32 s{self.s_t2}, s{c.s_w}, 1
        s_lshl_b32 s{self.s_t2}, s{self.s_t2}, 8
        s_add_u32 s{self.s_t1}, s{self.s_t1}, s{self.s_t2}
        s_add_u32 s{self.s_ho}, s{self.s_t1}, {HIMG}
        v_mul_u32_u24 v{vt[1]}, 160, v{vt[1]}
        v_lshl_add_u32 v{vt[1]}, v{vt[0]}, 3, v{vt[1]}
        v_add_u32 v{self.vD}, s{self.s_xs}, v{vt[1]}
        v_mov_b32 v{self.vA[0]}, v{c.vl16}
        v_add_u32 v{self.vA[1]}, {3*self.SLOT}, v{c.vl16}
        v_add_u32 v{self.vA[2]}, {6*self.SLOT}, v{c.vl16}
        s_mul_i32 s{self.s_bo}, s{self.s_tb16}, {self.NU*1024}
        s_add_u32 s{self.s_bo}, s{self.s_bo}, {OIMG if self.k3 else ACT}""")
    def loadB(self, u):
        k = self.c.k; c = self.c
        k(f"buffer_load_dwordx4 {vr(self.fb+4*(u % self.D),4)}, v{c.vl16}, {sr(c.sO,4)}, s{self.s_bo} offen offset:{(u%4)*1024}{c.lsc}")
        if u % 4 == 3: k(f"s_add_u32 s{self.s_bo}, s{self.s_bo}, 4096")
    def rdA(self, u):
        slot = (u // 4) % self.NSL
        return [f"ds_read_b128 {vr(self.fa[u%3]+4*T,4)}, v{self.vA[slot//3]} offset:{(slot%3)*self.SLOT+((u%4)*5+T)*1024}" for T in range(5)]
    def main(self, init=True, resident=False):
        k = self.c.k; c = self.c; NU = self.NU; D = self.D; res = self.res
        order = []
        def resld():
            k(f"""s_add_u32 s{self.s_t1}, s{self.s_ho}, 4096
            buffer_load_dwordx4 {vr(res,4)}, v{self.vH}, {sr(c.sO,4)}, s{self.s_ho} offen{c.lsc}
            buffer_load_dwordx4 {vr(res+4,4)}, v{self.vH}, {sr(c.sO,4)}, s{self.s_ho} offen offset:2048{c.lsc}
            buffer_load_dwordx4 {vr(res+8,4)}, v{self.vH}, {sr(c.sO,4)}, s{self.s_t1} offen{c.lsc}""")
            order.extend('rrr')
        nxt = 0
        for u in range(self.D0):
            self.loadB(u); order.append(u); nxt += 1
        if not c.fused: k.stamp(2)
        if init: k("s_barrier")
        if not c.fused: k.stamp(3)
        for x in self.rdA(0) + self.rdA(1): k(x)
        for u in range(NU):
            rd = []
            if u % 4 == 2 and u // 4 < self.NCH - 1 and not resident: k("s_barrier")
            if u + 2 < NU: rd = self.rdA(u + 2)
            younger = len(order) - 1 - order.index(u)
            if u == NU - 1: younger = 0
            k(f"s_waitcnt vmcnt({younger}) lgkmcnt({5 if u + 1 < NU else 0})")
            b = self.fb + 4 * (u % D)
            for T in range(5):
                k(f"{MF} {vr(self.acc+4*T,4)}, {vr(self.fa[u%3]+4*T,4)}, {vr(b,4)}, {'0' if u == 0 else vr(self.acc+4*T,4)}")
                if T < len(rd): k(rd[T])
                if T == 2 and nxt < NU and nxt < u + D:
                    self.loadB(nxt); order.append(nxt); nxt += 1
            if nxt < NU and nxt <= u + D:
                self.loadB(nxt); order.append(nxt); nxt += 1
            if not self.k3 and u == NU - 12: resld()
        if self.k3:
            for T in range(5): k(f"ds_read_b64 {vr(self.fa[0]+2*T,2)}, v{self.vD} offset:{T*32}")
            k("s_waitcnt lgkmcnt(0)")
    def epilogue(self):
        k = self.c.k; c = self.c; t = self.vt; acc = self.acc; res = self.res; sO = c.sO; vH = self.vH; sc = c.sc
        if self.k3:
            k(f"s_mov_b32 s{self.s_cnt}, 0x3f803f80\nv_mov_b32 v{t[0]}, 0\nv_mov_b32 v{t[1]}, 0")
            src = self.fa[0]
        else:
            for p in range(3):
                k(f"v_permlane32_swap_b32 v{res+4*p}, v{res+4*p+2}\nv_permlane32_swap_b32 v{res+4*p+1}, v{res+4*p+3}")
            src = res
        pk = self.fa[1]
        for T in range(5):
            for d in range(2):
                x = src + 2 * T + d; a = acc + 4 * T + 2 * d
                k(f"""v_lshlrev_b32 v{t[2+2*d]}, 16, v{x}
                v_and_b32 v{t[3+2*d]}, 0xffff0000, v{x}
                v_add_f32 v{a}, v{a}, v{t[2+2*d]}
                v_add_f32 v{a+1}, v{a+1}, v{t[3+2*d]}
                v_cvt_pk_bf16_f32 v{pk+2*T+d}, v{a}, v{a+1}""")
        if self.k3:
            for i in range(10):
                k(f"v_dot2c_f32_bf16 v{t[0]}, s{self.s_cnt}, v{pk+i}\nv_dot2c_f32_bf16 v{t[1]}, v{pk+i}, v{pk+i}")
            for p in range(3):
                k(f"v_permlane32_swap_b32 v{pk+4*p}, v{pk+4*p+2}\nv_permlane32_swap_b32 v{pk+4*p+1}, v{pk+4*p+3}")
            k(f"""s_add_u32 s{self.s_t1}, s{self.s_ho}, 4096
            buffer_store_dwordx4 {vr(pk,4)}, v{vH}, {sr(sO,4)}, s{self.s_ho} offen{sc}
            buffer_store_dwordx4 {vr(pk+4,4)}, v{vH}, {sr(sO,4)}, s{self.s_ho} offen offset:2048{sc}
            s_mov_b32 exec_hi, 0
            buffer_store_dwordx4 {vr(pk+8,4)}, v{vH}, {sr(sO,4)}, s{self.s_t1} offen{sc}
            s_mov_b32 exec_hi, -1
            v_mov_b32 v{t[2]}, v{t[0]}
            v_mov_b32 v{t[3]}, v{t[1]}
            v_permlane32_swap_b32 v{t[2]}, v{t[0]}
            v_permlane32_swap_b32 v{t[3]}, v{t[1]}
            v_add_f32 v{t[0]}, v{t[0]}, v{t[2]}
            v_add_f32 v{t[1]}, v{t[1]}, v{t[3]}
            v_mov_b32 v{t[2]}, v{t[0]}
            v_mov_b32 v{t[3]}, v{t[1]}
            v_permlane16_swap_b32 v{t[2]}, v{t[0]}
            v_permlane16_swap_b32 v{t[3]}, v{t[1]}
            v_add_f32 v{acc}, v{t[0]}, v{t[2]}
            v_add_f32 v{acc+1}, v{t[1]}, v{t[3]}
            v_lshlrev_b32 v{t[4]}, 3, v{c.vl}
            s_lshl_b32 s{self.s_t2}, s{self.s_c}, 14
            s_lshl_b32 s{self.s_t0}, s{self.s_tb16}, 7
            s_add_u32 s{self.s_t2}, s{self.s_t2}, s{self.s_t0}
            s_add_u32 s{self.s_t2}, s{self.s_t2}, {STATS}
            s_mov_b64 exec, 0xffff
            buffer_store_dwordx2 {vr(acc,2)}, v{t[4]}, {sr(sO,4)}, s{self.s_t2} offen{sc}
            s_mov_b64 exec, -1""")
        else:
            for T in range(5): k(f"ds_write_b64 v{self.vD}, {vr(pk+2*T,2)} offset:{T*32}")
            k(f"v_add_u32 v{t[0]}, s{self.s_xs}, v{c.vl16}\ns_waitcnt lgkmcnt(0)")
            for i in range(3): k(f"ds_read_b128 {vr(self.fa[0]+4*i,4)}, v{t[0]} offset:{i*1024}")
            for i in range(3):
                k(f"s_waitcnt lgkmcnt({2-i})")
                if i == 2: k("s_mov_b32 exec_hi, 0")
                k(f"buffer_store_dwordx4 {vr(self.fa[0]+4*i,4)}, v{self.vrow[i]}, {sr(self.sX,4)}, 0 offen")
            k("s_mov_b32 exec_hi, -1")

class P4:
    CK, NSL, NCH, SLOT = 4, 5, 10, 28672
    CSB = 5 * 28672
    def __init__(self, c, D=12, D0=None):
        self.c = c; k = c.k; self.D = D; self.D0 = D0 or D; self.lds = self.CSB + 1024
        c.reset()
        (self.s_tb, self.s_g, self.s_t0, self.s_t1, self.s_t2, self.s_bo, self.s_wo, self.s_m0) = [k.s() for _ in range(8)]
        self.vt = [k.v() for _ in range(4)]; self.vA = [k.v() for _ in range(3)]
        self.st = k.v(8, 4); self.par = k.v(6, 2)
        self.acc = [k.v(16, 4) for _ in range(7)]
        self.fa = [k.v(28, 4), k.v(28, 4)]
        self.fb = k.v(4 * D, 4)
    def ids(self):
        k = self.c.k
        k(f"""s_and_b32 s{self.s_t0}, s2, 1
        s_lshl_b32 s{self.s_t0}, s{self.s_t0}, 3
        s_bfe_u32 s{self.s_t1}, s2, 0x30003
        s_add_u32 s{self.s_tb}, s{self.s_t0}, s{self.s_t1}
        s_lshl_b32 s{self.s_tb}, s{self.s_tb}, 2
        s_add_u32 s{self.s_tb}, s{self.s_tb}, s{self.c.s_wl}
        s_bfe_u32 s{self.s_t0}, s2, 0x20001
        s_lshl_b32 s{self.s_t0}, s{self.s_t0}, 2
        s_lshr_b32 s{self.s_t1}, s2, 6
        s_add_u32 s{self.s_g}, s{self.s_t0}, s{self.s_t1}""")
    def ld_setup(self):
        k = self.c.k
        k(f"""s_mul_i32 s{self.s_wo}, s{self.c.s_wl}, 16
        s_add_u32 s{self.s_wo}, s{self.s_wo}, s{self.s_g}
        s_mul_i32 s{self.s_wo}, s{self.s_wo}, 7168
        s_add_u32 s{self.s_wo}, s{self.s_wo}, {WGUP}
        s_mul_i32 s{self.s_m0}, s{self.c.s_wl}, 7168""")
    def ld_chunk(self, slot):
        k = self.c.k; c = self.c
        k(f"s_add_u32 m0, s{self.s_m0}, {slot*self.SLOT}\ns_add_u32 s{self.s_t2}, s{self.s_wo}, 4096")
        for i in range(4):
            k(f"buffer_load_dwordx4 v{c.vl16}, {sr(c.sO,4)}, s{self.s_wo} offen offset:{i*1024}{c.lsc} lds")
        k(f"s_add_u32 m0, m0, 4096\ns_add_u32 s{self.s_wo}, s{self.s_wo}, {4*112*1024}")
        for i in range(3):
            k(f"buffer_load_dwordx4 v{c.vl16}, {sr(c.sO,4)}, s{self.s_t2} offen offset:{i*1024}{c.lsc} lds")
    def ld_cs(self):
        k = self.c.k; c = self.c
        k(f"""s_mul_i32 s{self.s_t2}, s{self.s_g}, 896
        s_mov_b32 m0, {self.CSB}
        s_add_u32 s{self.s_t2}, s{self.s_t2}, {CSG}
        buffer_load_dwordx4 v{c.vl16}, {sr(c.sO,4)}, s{self.s_t2} offen{c.lsc} lds""")
    def ld_main(self, issued, extra, init=True):
        k = self.c.k; NCH = self.NCH
        if init: k(f"s_waitcnt vmcnt({7*(issued-1)+extra})\ns_barrier")
        for ch in range(NCH - 1):
            k(f"s_waitcnt vmcnt({7*max(0, issued-ch-2) + (self.nwarm if self.warm and ch > 4 else 0)})\ns_barrier")
            while issued < NCH and issued <= ch + self.NSL and issued <= ch + 1 + self.ahead:
                self.ld_chunk(issued % self.NSL); issued += 1
            if ch == 4 and self.warm: self.warm()
            if ch >= 4 and self.warm: pass
    warm = None
    def setup(self):
        k = self.c.k; c = self.c; vt = self.vt
        k(f"""v_mov_b32 v{self.vA[0]}, v{c.vl16}
        v_add_u32 v{self.vA[1]}, {2*self.SLOT}, v{c.vl16}
        v_add_u32 v{self.vA[2]}, {4*self.SLOT}, v{c.vl16}
        s_mul_i32 s{self.s_bo}, s{self.s_tb}, 40960
        s_add_u32 s{self.s_bo}, s{self.s_bo}, {HIMG}
        v_and_b32 v{vt[0]}, 31, v{c.vl}
        v_lshrrev_b32 v{vt[1]}, 5, v{c.vl}
        v_lshlrev_b32 v{vt[2]}, 3, v{vt[0]}
        v_lshl_add_u32 v{vt[2]}, v{vt[1]}, 16, v{vt[2]}
        s_lshl_b32 s{self.s_t0}, s{self.s_tb}, 8
        s_add_u32 s{self.s_t0}, s{self.s_t0}, {STATS}""")
    def loadB(self, u):
        k = self.c.k; c = self.c
        k(f"buffer_load_dwordx4 {vr(self.fb+4*(u % self.D),4)}, v{c.vl16}, {sr(c.sO,4)}, s{self.s_bo} offen offset:{(u%4)*1024}{c.lsc}")
        if u % 4 == 3: k(f"s_add_u32 s{self.s_bo}, s{self.s_bo}, 4096")
    def rdA(self, u):
        slot = (u // 4) % self.NSL
        return [f"ds_read_b128 {vr(self.fa[u&1]+4*T,4)}, v{self.vA[slot//2]} offset:{(slot%2)*self.SLOT+((u%4)*7+T)*1024}" for T in range(7)]
    def main(self, init=True, endbar=False):
        k = self.c.k; c = self.c; D = self.D; st = self.st
        order = []; nxt = 0
        for u in range(self.D0):
            self.loadB(u); order.append(u); nxt += 1
        if not c.fused: k.stamp(2)
        if init: k("s_barrier")
        if not c.fused: k.stamp(3)
        for x in self.rdA(0): k(x)
        for u in range(40):
            younger = len(order) - 1 - order.index(u)
            if u == 39: younger = 0
            k(f"s_waitcnt vmcnt({younger}) lgkmcnt(0)")
            bar = u % 4 == 3 and (u < 39 or endbar)
            rd = self.rdA(u + 1) if u < 39 else []
            b = self.fb + 4 * (u % D)
            r0 = 2 if bar else 0
            for T in range(7):
                k(f"{M16} {vr(self.acc[T],16)}, {vr(self.fa[u&1]+4*T,4)}, {vr(b,4)}, {'0' if u == 0 else vr(self.acc[T],16)}")
                if bar and T == 1: k("s_barrier")
                if T >= r0 - 1 or not bar:
                    j = T - (r0 - 1 if bar else 0)
                    for x in rd[2*j:2*j+2]: k(x)
                if T == 5 and nxt < 40 and nxt < u + D:
                    self.loadB(nxt); order.append(nxt); nxt += 1
            if nxt < 40 and nxt <= u + D:
                self.loadB(nxt); order.append(nxt); nxt += 1
            if u == 20:
                for i in range(4):
                    k(f"buffer_load_dwordx2 {vr(st+2*i,2)}, v{self.vt[2]}, {sr(c.sO,4)}, s{self.s_t0} offen{c.lsc}")
                    if i < 3: k(f"s_add_u32 s{self.s_t0}, s{self.s_t0}, 16384")
                order.extend('ssss')
    def epilogue(self, L_fin):
        k = self.c.k; c = self.c; t = self.vt; st = self.st; par = self.par; vl = c.vl
        k(f"""v_lshrrev_b32 v{t[0]}, 5, v{vl}
        v_lshlrev_b32 v{t[1]}, 4, v{t[0]}
        v_add_u32 v{t[1]}, {self.CSB}, v{t[1]}""")
        cs = [self.fa[0], self.fa[0] + 16, self.fa[0] + 32]; tmp = self.fb
        def rdcs(T):
            for j in range(4): k(f"ds_read_b128 {vr(cs[T%3]+4*j,4)}, v{t[1]} offset:{T*128+32*j}")
        rdcs(0); rdcs(1)
        k(f"""v_add_f32 v{st}, v{st}, v{st+2}
        v_add_f32 v{st+1}, v{st+1}, v{st+3}
        v_add_f32 v{st+4}, v{st+4}, v{st+6}
        v_add_f32 v{st+5}, v{st+5}, v{st+7}
        v_add_f32 v{st}, v{st}, v{st+4}
        v_add_f32 v{st+1}, v{st+1}, v{st+5}
        v_mov_b32 v{st+2}, v{st}
        v_mov_b32 v{st+3}, v{st+1}
        v_bfe_u32 v{t[2]}, v{vl}, 4, 1
        v_mul_u32_u24 v{t[2]}, 55296, v{t[2]}
        v_permlane32_swap_b32 v{st+2}, v{st}
        v_permlane32_swap_b32 v{st+3}, v{st+1}
        v_add_f32 v{st}, v{st}, v{st+2}
        v_add_f32 v{st+1}, v{st+1}, v{st+3}
        v_mul_f32 v{par}, {f2u(-1.0/640):#x}, v{st}
        v_mul_f32 v{st+1}, {f2u(1.0/640):#x}, v{st+1}
        v_fma_f32 v{st+1}, -v{par}, v{par}, v{st+1}
        v_max_f32 v{st+1}, 0, v{st+1}
        v_add_f32 v{par+4}, {f2u(1e-5):#x}, v{st+1}
        v_rsq_f32 v{par+2}, v{par+4}
        v_mov_b32 v{par+1}, v{par}
        v_mov_b32 v{par+5}, v{par+4}
        v_mul_f32 v{par+2}, {f2u(-math.log2(math.e)):#x}, v{par+2}
        v_lshl_add_u32 v{t[2]}, v{t[0]}, 8, v{t[2]}
        v_mov_b32 v{par+3}, v{par+2}
        v_and_b32 v{t[3]}, 15, v{vl}
        v_lshl_add_u32 v{t[2]}, v{t[3]}, 4, v{t[2]}
        s_mul_i32 s{self.s_t0}, s{self.s_tb}, {2*55296}
        s_mul_i32 s{self.s_t1}, s{self.s_g}, 3584
        s_add_u32 s{self.s_t0}, s{self.s_t0}, s{self.s_t1}
        s_add_u32 s{self.s_t0}, s{self.s_t0}, {ACT}""")
        for T in range(7):
            A = self.acc[T]; cc = cs[T % 3]
            if T + 2 < 7: rdcs(T + 2)
            k(f"s_waitcnt lgkmcnt({4*min(2, 6-T)})")
            for p in range(8): k(f"v_pk_fma_f32 {vr(A+2*p,2)}, {vr(cc+2*p,2)}, {vr(par,2)}, {vr(A+2*p,2)}")
            for p in range(4): k(f"v_pk_mul_f32 {vr(tmp+2*p,2)}, {vr(A+2*p,2)}, {vr(par+2,2)}")
            for i in range(8): k(f"v_exp_f32 v{tmp+i}, v{tmp+i}")
            for p in range(4): k(f"v_pk_mul_f32 {vr(A+2*p,2)}, {vr(A+2*p,2)}, {vr(A+8+2*p,2)}")
            for p in range(4): k(f"v_pk_fma_f32 {vr(tmp+2*p,2)}, {vr(tmp+2*p,2)}, {vr(par+4,2)}, {vr(par+4,2)}")
            for i in range(8): k(f"v_rcp_f32 v{tmp+i}, v{tmp+i}")
            for p in range(4): k(f"v_pk_mul_f32 {vr(A+2*p,2)}, {vr(A+2*p,2)}, {vr(tmp+2*p,2)}")
            for p in range(4): k(f"v_cvt_pk_bf16_f32 v{A+8+p}, v{A+2*p}, v{A+2*p+1}")
            k(f"buffer_store_dwordx4 {vr(A+8,4)}, v{t[2]}, {sr(c.sO,4)}, s{self.s_t0} offen offset:{T*512}{c.sc}")
            if T == 2: k(f"s_cmp_eq_u32 s{self.s_g}, 15\ns_cbranch_scc1 {L_fin}")
        k(f"{L_fin}:")

def gen(which, opt):
    if which in '35':
        o = opt('K' + which)
        c = Ctx("k3_oproj_kernel" if which == '3' else "k5_down_kernel", False); k = c.k
        P = P35(c, int(which), D=o.get('D', 12 if which == '5' else 20)); P.ahead = o.get('ahead', 2)
        c.entry(int(which) - 1, P.ptr_load())
        P.ids(); c.ws_srd()
        L = k.label("ld"); lw(c, L)
        P.setup(); P.main(); k.stamp(4); k.stamp(5); P.epilogue(); c.finish()
        k(f"{L}:"); P.ld_setup()
        for ch in range(2): P.ld_chunk(ch)
        P.ld_main(2); k("s_endpgm")
        return k, (256, 512, P.lds)
    if which == '4':
        o = opt('K4')
        c = Ctx("k4_gateup_kernel", False); k = c.k
        P = P4(c, D=o.get('D', 12)); P.ahead = o.get('ahead', 2)
        c.entry(3); P.ids(); c.ws_srd()
        L = k.label("ld"); lw(c, L)
        P.setup(); P.main(); k.stamp(4); k.stamp(5); P.epilogue(k.label("fin")); c.finish()
        k(f"{L}:"); P.ld_setup()
        for ch in range(2): P.ld_chunk(ch)
        P.ld_cs()
        P.ld_main(2, 1); k("s_endpgm")
        return k, (256, 512, P.lds)
    import mega
    return mega.gen(opt)
```

```python
from ph2 import *
NAME = "sequential_preLN__softmax_full_mha__swiglu_ffn__prompt_kernel"

def gen(opt):
    o = opt('M')
    c = Ctx(NAME, True); k = c.k
    sO = c.sO; sWS = c.sWS; s_w = c.s_w; s_wl = c.s_wl; vl = c.vl; vl16 = c.vl16; sc = c.sc
    rot = o.get('rot', True)
    sD = k.s(4)
    s_po = k.s(); s_cs = k.s(); vPA = k.v(); vPS = k.v(); sA = k.s(4); sB = k.s(4); sR = [k.s() for _ in range(5)]
    c.s0 = k.snext; c.v0 = k.vnext
    SLOT = 32768; NS = 4
    SL = 12288; VB = 3 * SL; PREP = 6 * SL
    sP = k.s(4); sX = sA; sW = sB; sQ = k.s(8); sWD = k.s(2); sPC = k.s(2)
    s_tb = k.s(); s_cg = k.s(); s_t0 = k.s(); s_t2 = k.s()
    s_ow, s_m0x, s_slot, s_delta, s_t1 = sR
    s_ox = k.s(); s_cnt = k.s(); s_rs = k.s(); s_msk = k.s()
    vt = [k.v() for _ in range(6)]
    vXA = [k.v() for _ in range(4)]; vWA = [k.v(), k.v()]
    vX = [k.v() for _ in range(4)]; vW = [k.v() for _ in range(4)]
    acc = [[k.v(16, 4) for _ in range(2)] for _ in range(2)]
    fx = [[k.v(4, 4) for _ in range(2)] for _ in range(2)]
    fw = [[k.v(4, 4) for _ in range(2)] for _ in range(2)]
    acs = k.v(16, 4); ones = k.v(4, 4); vpf = k.v(4, 4)
    XCH = NS * SLOT; NM, RS, CS = 0, 512, 1024
    L_spare = k.label("spare"); L_v = k.label("vpath"); L_J0 = k.label("J0"); L_comp = k.label("comp")
    k.kidx = 1; k.stamp_real(0); k.stamp(1)
    k(f"""s_load_dwordx4 {sr(sP,4)}, s[0:1], {KA_X}
    s_load_dwordx4 {sr(sD,4)}, s[0:1], {KA_DBG}
    s_cmp_ge_u32 s2, 256
    s_cbranch_scc1 {c.L_end}
    v_lshrrev_b32 v{vt[0]}, 6, v0
    v_and_b32 v{vl}, 63, v0
    v_readfirstlane_b32 s{s_w}, v{vt[0]}
    s_and_b32 s{s_t0}, s2, 3
    s_lshl_b32 s{s_t0}, s{s_t0}, 2
    s_bfe_u32 s{s_t1}, s2, 0x20003
    s_add_u32 s{s_tb}, s{s_t0}, s{s_t1}
    s_bfe_u32 s{s_t0}, s2, 0x10002
    s_lshl_b32 s{s_t0}, s{s_t0}, 3
    s_lshr_b32 s{s_t1}, s2, 5
    s_add_u32 s{s_cg}, s{s_t0}, s{s_t1}
    s_and_b32 s{s_wl}, s{s_w}, 3
    s_cmp_eq_u32 s{s_cg}, 15
    s_cbranch_scc1 {L_spare}
    s_cmp_ge_u32 s{s_w}, 4
    s_cbranch_scc1 {L_comp}
    v_lshrrev_b32 v{vt[0]}, 3, v{vl}
    v_lshl_add_u32 v{vt[0]}, s{s_w}, 5, v{vt[0]}
    v_mul_u32_u24 v{vt[0]}, 1280, v{vt[0]}
    v_lshrrev_b32 v{vt[1]}, 4, v{vl}
    v_and_b32 v{vt[2]}, 7, v{vl}
    v_xor_b32 v{vt[2]}, v{vt[2]}, v{vt[1]}
    v_lshl_add_u32 v{vX[0]}, v{vt[2]}, 4, v{vt[0]}
    v_xor_b32 v{vX[1]}, 64, v{vX[0]}
    v_add_u32 v{vX[2]}, {2*(8*1280-1024)}, v{vX[0]}
    v_add_u32 v{vX[1]}, {8*1280-1024}, v{vX[1]}
    v_add_u32 v{vX[3]}, {2*(8*1280-1024)}, v{vX[1]}
    v_lshl_add_u32 v{vt[0]}, s{s_w}, 4, v{vt[1]}
    v_mul_u32_u24 v{vt[0]}, 3840, v{vt[0]}
    v_and_b32 v{vt[2]}, 15, v{vl}
    v_lshlrev_b32 v{vt[3]}, 2, v{vt[1]}
    v_xor_b32 v{vt[2]}, v{vt[2]}, v{vt[3]}
    v_lshl_add_u32 v{vW[0]}, v{vt[2]}, 4, v{vt[0]}
    v_add_u32 v{vW[1]}, {4*3840-1024}, v{vW[0]}
    v_add_u32 v{vW[2]}, {2*(4*3840-1024)}, v{vW[0]}
    v_add_u32 v{vW[3]}, {3*(4*3840-1024)}, v{vW[0]}
    s_mul_i32 s{s_t0}, s{s_tb}, {128*1280}
    s_lshl_b32 s{s_t1}, s{s_cg}, 8
    s_lshl_b32 s{s_m0x}, s{s_w}, 12
    s_mov_b32 s{sX+2}, {128*1280}
    s_mov_b32 s{sX+3}, 0x20000
    s_sub_u32 s{sW+2}, {640*3840}, s{s_t1}
    s_mov_b32 s{sW+3}, 0x20000""")
    if rot: k(f"s_and_b32 s{s_t2}, s2, 7\ns_lshl_b32 s{s_ox}, s{s_t2}, 7\ns_mul_i32 s{s_ow}, s{s_t2}, {64*3840}")
    else: k(f"s_mov_b32 s{s_ox}, 0\ns_mov_b32 s{s_ow}, 0")
    k(f"""s_waitcnt lgkmcnt(0)
    s_add_u32 s{sX}, s{sP}, s{s_t0}
    s_addc_u32 s{sX+1}, s{sP+1}, 0
    s_add_u32 s{sW}, s{sP+2}, s{s_t1}
    s_addc_u32 s{sW+1}, s{sP+3}, 0""")
    def dma_chunk(slot_const=None):
        if slot_const is not None: k(f"s_add_u32 m0, s{s_m0x}, {slot_const*SLOT}")
        else: k(f"s_add_u32 m0, s{s_m0x}, s{s_rs}")
        k(f"s_add_u32 s{s_t0}, s{s_ox}, 128")
        for i in range(4):
            k(f"buffer_load_dwordx4 v{vX[i]}, {sr(sX,4)}, s{s_ox} offen offset:{i*1024} lds")
        k(f"s_add_u32 m0, m0, 16384\ns_add_u32 s{s_t1}, s{s_ow}, {64*3840}")
        for i in range(4):
            k(f"buffer_load_dwordx4 v{vW[i]}, {sr(sW,4)}, s{s_ow} offen offset:{i*1024} lds")
        k(f"s_cmp_eq_u32 s{s_t0}, 1280\ns_cselect_b32 s{s_ox}, 0, s{s_t0}\ns_cselect_b32 s{s_ow}, 0, s{s_t1}")
    def common_setup():
        k(f"""s_mov_b64 {sr(sWS,2)}, {sr(sD+2,2)}
        s_movk_i32 s{sD+2}, 256
        s_mov_b32 s{sD+3}, 0x20000
        v_lshlrev_b32 v{vl16}, 4, v{vl}""")
        srd(k, sO, sWS, sWS + 1, WSEND)
        k(f"s_load_dwordx8 {sr(sQ,8)}, s[0:1], {KA_WO}\ns_load_dwordx2 {sr(sWD,2)}, s[0:1], {KA_WD}")
    def xaddr():
        k(f"""v_and_b32 v{vt[0]}, 31, v{vl}
        v_lshrrev_b32 v{vt[1]}, 5, v{vl}
        v_bfe_u32 v{vt[2]}, v{vl}, 1, 3
        v_xor_b32 v{vt[2]}, v{vt[2]}, v{vt[1]}
        v_lshlrev_b32 v{vt[2]}, 4, v{vt[2]}
        v_lshl_add_u32 v{vt[2]}, v{vt[0]}, 7, v{vt[2]}""")
    def advance(regs):
        k(f"s_cmp_eq_u32 s{s_slot}, {(NS-1)*SLOT}\ns_mov_b32 s{s_delta}, {SLOT}")
        k(f"s_cselect_b32 s{s_delta}, {(-(NS-1)*SLOT) & 0xffffffff}, s{s_delta}")
        k(f"s_add_u32 s{s_slot}, s{s_slot}, s{s_delta}")
        return [f"v_add_u32 v{r}, s{s_delta}, v{r}" for r in regs]
    def prep_decode(loads):
        pid, cb, st = s_t0, s_t2, s_ox
        R0, A_, B_, C_, u = sR
        Ld = k.label("pd"); Lg = k.label("pg")
        k(f"""s_lshl_b32 s{pid}, s2, 2
        s_add_u32 s{pid}, s{pid}, s{s_wl}
        s_mov_b32 s{B_}, 8
        s_mov_b32 s{C_}, 4
        v_bfe_u32 v{vt[2]}, v{vl}, 4, 1
        v_lshrrev_b32 v{vt[1]}, 5, v{vl}
        s_waitcnt lgkmcnt(0)
        s_cmp_ge_u32 s{pid}, 560
        s_cbranch_scc1 {Ld}
        s_mul_i32 s{u}, s{pid}, 4682
        s_lshr_b32 s{u}, s{u}, 16
        s_mul_i32 s{cb}, s{u}, 14
        s_sub_u32 s{cb}, s{pid}, s{cb}
        s_mul_i32 s{s_po}, s{u}, {112*1024}
        s_add_u32 s{s_po}, s{s_po}, {WGUP}
        s_mov_b32 s{s_cs}, {CSG}
        v_lshlrev_b32 v{vt[2]}, 11, v{vt[2]}
        v_lshl_add_u32 v{vt[3]}, v{vt[1]}, 9, v{vt[2]}""")
        if loads:
            k(f"""s_lshl_b32 s{R0}, s{u}, 4
            s_mov_b32 s{A_}, 0
            s_movk_i32 s{st}, 3456
            s_mov_b64 {sr(sA,2)}, {sr(sQ+4,2)}
            s_mov_b64 {sr(sB,2)}, {sr(sQ+6,2)}
            s_mov_b32 s{sA+2}, {640*3456}""")
        k(f"""s_branch {Lg}
        {Ld}:
        s_min_u32 s{pid}, s{pid}, 929
        s_cmp_lt_u32 s{pid}, 830
        s_movk_i32 s{cb}, 830
        s_cselect_b32 s{cb}, 560, s{cb}
        s_mov_b32 s{s_po}, {WOP}
        s_cselect_b32 s{s_po}, {WDP}, s{s_po}""")
        if loads:
            k(f"""s_cselect_b64 {sr(sA,2)}, {sr(sWD,2)}, {sr(sQ,2)}
            s_cselect_b32 s{A_}, 16, 20
            s_cselect_b32 s{R0}, 32, 40
            s_mov_b32 s{sA+2}, {640*1280}
            s_cselect_b32 s{sA+2}, {1728*1280}, s{sA+2}""")
        k(f"""s_sub_u32 s{cb}, s{pid}, s{cb}
        s_mul_i32 s{u}, s{cb}, 13108
        s_lshr_b32 s{u}, s{u}, 16
        s_mul_i32 s{st}, s{u}, 5
        s_sub_u32 s{cb}, s{cb}, s{st}
        s_mul_i32 s{st}, s{u}, {40*1024}
        s_add_u32 s{s_po}, s{s_po}, s{st}
        s_mov_b32 s{s_cs}, {WSEND}
        v_lshlrev_b32 v{vt[2]}, 9, v{vt[2]}
        v_lshl_add_u32 v{vt[3]}, v{vt[1]}, 11, v{vt[2]}""")
        if loads:
            k(f"""s_mul_i32 s{R0}, s{R0}, s{u}
            s_mul_i32 s{st}, s{u}, 160
            s_sub_u32 s{st}, s{st}, {16*160-16}
            s_cmp_ge_u32 s{pid}, 910
            s_cselect_b32 s{R0}, s{st}, s{R0}
            s_cselect_b32 s{A_}, 80, s{A_}
            s_cselect_b32 s{B_}, 20, 8
            s_cselect_b32 s{C_}, 40, 4
            s_movk_i32 s{st}, 1280
            s_mov_b64 {sr(sB,2)}, {sr(sA,2)}""")
        k(f"""{Lg}:
        s_lshl_b32 s{cb}, s{cb}, 1
        s_lshr_b32 s{pid}, s{s_w}, 2
        s_add_u32 s{pid}, s{pid}, s{cb}
        s_lshl_b32 s{u}, s{pid}, 12
        s_add_u32 s{s_po}, s{s_po}, s{u}
        s_lshl_b32 s{u}, s{pid}, 9
        s_add_u32 s{s_cs}, s{s_cs}, s{u}
        v_bfe_u32 v{vt[2]}, v{vl}, 2, 2
        v_lshl_add_u32 v{vt[3]}, v{vt[2]}, 7, v{vt[3]}
        v_and_b32 v{vt[2]}, 3, v{vl}
        v_lshl_add_u32 v{vt[3]}, v{vt[2]}, 3, v{vt[3]}
        s_lshl_b32 s{u}, s{s_w}, 12
        s_add_u32 s{u}, s{u}, {PREP}
        v_add_u32 v{vPA}, s{u}, v{vt[3]}""")
        if loads:
            k(f"""s_mov_b32 s{sB+2}, s{sA+2}
            s_mov_b32 s{sA+3}, 0x20000
            s_mov_b32 s{sB+3}, 0x20000
            v_mul_u32_u24 v{vt[2]}, s{C_}, v{vt[1]}
            v_bfe_u32 v{vt[3]}, v{vl}, 3, 2
            v_add_u32 v{vt[2]}, v{vt[2]}, v{vt[3]}
            v_mul_u32_u24 v{vt[2]}, s{st}, v{vt[2]}
            v_and_b32 v{vt[3]}, 7, v{vl}
            v_lshl_add_u32 v{vPS}, v{vt[3]}, 4, v{vt[2]}
            s_mul_i32 s{R0}, s{R0}, s{st}
            s_lshl_b32 s{cb}, s{pid}, 7
            s_add_u32 s{R0}, s{R0}, s{cb}
            s_mul_i32 s{A_}, s{A_}, s{st}
            s_mul_i32 s{B_}, s{B_}, s{st}
            s_add_u32 s{A_}, s{A_}, s{R0}
            s_add_u32 s{C_}, s{A_}, s{B_}
            s_add_u32 s{B_}, s{B_}, s{R0}""")
    dma_chunk(0); dma_chunk(1)
    common_setup()
    k(f"""s_mov_b32 s{s_rs}, {3*SLOT}
    s_waitcnt vmcnt(8)
    s_barrier""")
    k.stamp(2)
    dma_chunk(2)
    L = k.label("hloop"); Lz = k.label("hz"); Lzx = k.label("hzx"); Lnz = k.label("hnz")
    k(f"s_mov_b32 s{s_cnt}, 7\n{L}:\ns_waitcnt vmcnt(8)\ns_barrier")
    dma_chunk()
    k(f"""s_add_u32 s{s_rs}, s{s_rs}, {SLOT}
    s_and_b32 s{s_rs}, s{s_rs}, {NS*SLOT-1}
    s_sub_u32 s{s_cnt}, s{s_cnt}, 1
    s_cmp_lg_u32 s{s_cnt}, 0
    s_cbranch_scc1 {L}
    v_and_b32 v{vt[3]}, 15, v{vl}
    v_lshlrev_b32 v{vt[3]}, 4, v{vt[3]}
    buffer_load_dword v{vt[4]}, v{vt[3]}, {sr(sD,4)}, 0 offen sc1
    s_waitcnt vmcnt(9)
    s_barrier
    s_waitcnt vmcnt(1)
    s_barrier
    s_cmp_lg_u32 s{s_w}, 0
    s_cbranch_scc1 {Lnz}
    s_mov_b32 s{s_t1}, 0
    {Lz}:
    s_waitcnt vmcnt(0)
    v_cmp_ne_u32 vcc, 0, v{vt[4]}
    s_add_u32 s{s_t1}, s{s_t1}, 1
    s_cmp_eq_u64 vcc, -1
    s_cbranch_scc1 {Lzx}
    s_cmp_gt_u32 s{s_t1}, 0x40000
    s_cbranch_scc1 {Lzx}
    buffer_load_dword v{vt[4]}, v{vt[3]}, {sr(sD,4)}, 0 offen sc1
    s_branch {Lz}
    {Lzx}:
    s_mov_b32 m0, {XCH}
    s_lshl_b32 s{s_t0}, s{s_tb}, 10
    s_add_u32 s{s_t0}, s{s_t0}, {LN1}
    buffer_load_dwordx4 v{vl16}, {sr(sO,4)}, s{s_t0} offen sc1 lds
    {Lnz}:
    s_waitcnt vmcnt(0)""")
    k.stamp(3)
    k(f"s_barrier\ns_branch {L_J0}")
    k(f"""{L_comp}:
    s_getpc_b64 {sr(sPC,2)}
    L_pf_here:
    s_lshr_b32 s{s_t0}, s2, 3
    s_lshl_b32 s{s_t0}, s{s_t0}, 2
    s_add_u32 s{s_t0}, s{s_t0}, s{s_wl}
    s_lshl_b32 s{s_t0}, s{s_t0}, 10
    s_sub_u32 s{sPC}, s{sPC}, L_pf_here - {NAME}
    s_subb_u32 s{sPC+1}, s{sPC+1}, 0
    s_cmp_gt_u32 s{s_t0}, L_code_end - {NAME} - 1024
    s_cbranch_scc1 L_pf_skip
    v_lshl_add_u32 v{vt[0]}, v{vl}, 4, s{s_t0}
    global_load_dwordx4 {vr(vpf,4)}, v{vt[0]}, {sr(sPC,2)}
    L_pf_skip:
    s_waitcnt lgkmcnt(0)""")
    common_setup()
    xaddr()
    k(f"""s_lshr_b32 s{s_t0}, s{s_wl}, 1
    s_and_b32 s{s_t1}, s{s_wl}, 1
    s_lshl_b32 s{s_t2}, s{s_t0}, 13
    v_add_u32 v{vXA[0]}, s{s_t2}, v{vt[2]}""")
    for s in range(1, 4): k(f"v_xor_b32 v{vXA[s]}, {32*s}, v{vXA[0]}")
    k(f"""v_bfe_u32 v{vt[2]}, v{vl}, 2, 2
    v_lshl_add_u32 v{vt[3]}, v{vt[1]}, 3, v{vt[2]}
    v_lshlrev_b32 v{vt[3]}, 8, v{vt[3]}
    s_lshl_b32 s{s_t2}, s{s_t1}, 1
    s_add_u32 s{s_t2}, s{s_t2}, s{s_t0}
    v_xor_b32 v{vt[2]}, s{s_t2}, v{vt[2]}
    v_lshl_add_u32 v{vt[3]}, v{vt[2]}, 6, v{vt[3]}
    v_bfe_u32 v{vt[2]}, v{vl}, 4, 1
    v_lshl_add_u32 v{vt[3]}, v{vt[2]}, 5, v{vt[3]}
    v_and_b32 v{vt[2]}, 3, v{vl}
    v_lshl_add_u32 v{vt[3]}, v{vt[2]}, 3, v{vt[3]}
    v_add_u32 v{vWA[0]}, 16384, v{vt[3]}
    v_xor_b32 v{vWA[1]}, 64, v{vWA[0]}
    s_mov_b32 s{s_slot}, 0""")
    for i in range(4): k(f"v_mov_b32 v{ones+i}, 0x3f803f80")
    def reads(buf, s):
        out = []
        for mt in range(2):
            out.append(f"ds_read_b128 {vr(fx[buf][mt],4)}, v{vXA[s]} offset:{mt*4096}")
        for nt in range(2):
            for rd in range(2):
                out.append(f"ds_read_b64_tr_b16 {vr(fw[buf][nt]+2*rd,2)}, v{vWA[nt]} offset:{(16*s+4*rd)*256}")
        return [out[2], out[3], out[0], out[1], out[4], out[5]]
    def mfmas(buf, vpath, first):
        m = []
        for nt in range(2):
            for mt in range(2):
                a, b = (fx[buf][mt], fw[buf][nt]) if vpath else (fw[buf][nt], fx[buf][mt])
                m.append(f"{M16} {vr(acc[nt][mt],16)}, {vr(a,4)}, {vr(b,4)}, {'0' if first else vr(acc[nt][mt],16)}")
        m.append(f"{M16} {vr(acs,16)}, {vr(ones,4)}, {vr(fw[buf][0],4)}, {'0' if first else vr(acs,16)}")
        return m
    def chunk(vpath, last, first=False):
        for s in range(3):
            k("s_waitcnt lgkmcnt(0)")
            m = mfmas(s & 1, vpath, first and s == 0); rd = reads((s + 1) & 1, s + 1)
            ad = []
            if not last and s == 0: ad = [None]
            for i in range(5):
                k(m[i])
                for x in rd[2*i:2*i+2]: k(x)
                if i == 3 and not last:
                    if s == 0: adv[:] = advance([vXA[0], vXA[1], vXA[2], vXA[3], vWA[0], vWA[1]])
                    k(adv[s])
        k("s_waitcnt lgkmcnt(0)")
        m = mfmas(1, vpath, False)
        if last:
            for x in m: k(x)
            return
        k(m[0])
        for x in adv[3:]: k(x)
        k(m[1])
        k("s_barrier")
        rd = reads(0, 0)
        for x in rd[:3]: k(x)
        k(m[2])
        for x in rd[3:]: k(x)
        k(m[3]); k(m[4])
    adv = []
    def mainloop(vpath):
        k("s_barrier")
        k.stamp(2)
        for x in reads(0, 0): k(x)
        chunk(vpath, False, first=True)
        L = k.label("loop")
        k(f"s_mov_b32 s{s_cnt}, 8\n{L}:")
        chunk(vpath, False)
        k(f"s_sub_u32 s{s_cnt}, s{s_cnt}, 1\ns_cmp_lg_u32 s{s_cnt}, 0\ns_cbranch_scc1 {L}")
        chunk(vpath, True)
        k.stamp(3)
    def epilogue(vpath):
        t = vt
        la = fx[0][0]; rg = k.v(32, 4); hoff = t[3]
        k(f"""v_and_b32 v{t[0]}, 31, v{vl}
        s_lshl_b32 s{s_t2}, s{s_t2}, 7
        s_add_u32 s{s_ox}, s{s_t2}, {XCH}
        v_lshl_add_u32 v{t[2]}, v{t[0]}, 2, s{s_ox}
        s_lshl_b32 s{s_ow}, s{s_t0}, 8
        s_add_u32 s{s_ow}, s{s_ow}, {XCH}
        v_lshl_add_u32 v{t[1]}, v{t[0]}, 2, s{s_ow}
        v_lshrrev_b32 v{hoff}, 5, v{vl}
        v_lshlrev_b32 v{hoff}, 4, v{hoff}
        s_cmp_lt_u32 s{s_cg}, 5
        s_cselect_b32 s{s_cnt}, {f2u(QSCALE):#x}, 1.0
        ds_write_b32 v{t[2]}, v{acs} offset:{CS}
        s_waitcnt lgkmcnt(0)
        s_barrier""")
        if not vpath:
            k(f"""ds_read_b32 v{la+0}, v{t[1]} offset:{NM}
            ds_read_b32 v{la+2}, v{t[1]} offset:{RS}
            ds_read_b32 v{la+4}, v{t[1]} offset:{NM+128}
            ds_read_b32 v{la+6}, v{t[1]} offset:{RS+128}
            v_add_u32 v{t[5]}, s{s_ox}, v{hoff}
            v_xor_b32 v{t[4]}, 128, v{t[5]}""")
            for nt in range(2):
                for j in range(4):
                    k(f"ds_read_b128 {vr(rg+16*nt+4*j,4)}, v{t[5] if nt==0 else t[4]} offset:{CS+32*j}")
            k(f"""v_lshlrev_b32 v{t[0]}, 4, v{t[0]}
            v_lshl_add_u32 v{t[0]}, v{hoff}, 11, v{t[0]}
            s_lshl_b32 s{s_ox}, s{s_cg}, 19
            s_lshl_b32 s{s_ow}, s{s_t2}, 10
            s_add_u32 s{s_ox}, s{s_ox}, s{s_ow}
            s_lshl_b32 s{s_ow}, s{s_tb}, 11
            s_add_u32 s{s_ox}, s{s_ox}, s{s_ow}
            s_lshl_b32 s{s_ow}, s{s_t0}, 10
            s_add_u32 s{s_ox}, s{s_ox}, s{s_ow}
            s_waitcnt lgkmcnt(4)
            v_mov_b32 v{la+1}, v{la+0}
            v_mul_f32 v{la+3}, s{s_cnt}, v{la+2}
            v_mul_f32 v{la+2}, s{s_cnt}, v{la+2}
            v_mov_b32 v{la+5}, v{la+4}
            v_mul_f32 v{la+7}, s{s_cnt}, v{la+6}
            v_mul_f32 v{la+6}, s{s_cnt}, v{la+6}""")
            for nt in range(2):
                if nt == 1: k("s_waitcnt lgkmcnt(0)")
                for mt in range(2):
                    A = acc[nt][mt]
                    for p in range(8):
                        k(f"v_pk_fma_f32 {vr(A+2*p,2)}, {vr(rg+16*nt+2*p,2)}, {vr(la+4*mt,2)}, {vr(A+2*p,2)}")
                    for p in range(8):
                        k(f"v_pk_mul_f32 {vr(A+2*p,2)}, {vr(A+2*p,2)}, {vr(la+4*mt+2,2)}")
                    for p in range(8):
                        k(f"v_cvt_pk_bf16_f32 v{A+p}, v{A+2*p}, v{A+2*p+1}")
                    k(f"s_xor_b32 s{s_ow}, s{s_ox}, {(nt*4*32768) | (mt*512)}")
                    k(f"s_add_u32 s{s_rs}, s{s_ow}, {2*32768}")
                    for jp in range(2):
                        k(f"v_permlane32_swap_b32 v{A+4*jp}, v{A+4*jp+2}\nv_permlane32_swap_b32 v{A+4*jp+1}, v{A+4*jp+3}")
                    k(f"buffer_store_dwordx4 {vr(A,4)}, v{t[0]}, {sr(sO,4)}, s{s_ow} offen{sc}")
                    k(f"buffer_store_dwordx4 {vr(A+4,4)}, v{t[0]}, {sr(sO,4)}, s{s_rs} offen{sc}")
        else:
            rg2 = k.v(32, 4)
            k(f"""v_xor_b32 v{t[4]}, 128, v{t[2]}
            ds_read_b32 v{la+2}, v{t[4]} offset:{CS}
            v_add_u32 v{t[5]}, s{s_ow}, v{hoff}""")
            for mt in range(2):
                for j in range(4):
                    k(f"ds_read_b128 {vr(rg+16*mt+4*j,4)}, v{t[5]} offset:{NM+128*mt+32*j}")
                    k(f"ds_read_b128 {vr(rg2+16*mt+4*j,4)}, v{t[5]} offset:{RS+128*mt+32*j}")
            va = [la + 4, la + 5]
            k(f"""s_sub_u32 s{s_ox}, s{s_cg}, 10
            s_lshl_b32 s{s_ox}, s{s_ox}, 7
            s_lshr_b32 s{s_ow}, s{s_t2}, 2
            s_add_u32 s{s_ox}, s{s_ox}, s{s_ow}
            v_add_u32 v{t[0]}, s{s_ox}, v{t[0]}
            v_mul_u32_u24 v{hoff}, 21, v{hoff}""")
            for nt in range(2):
                if nt == 1: k(f"v_xor_b32 v{t[0]}, 32, v{t[0]}")
                k(f"""v_mul_u32_u24 v{t[1]}, 3277, v{t[0]}
                v_lshrrev_b32 v{t[1]}, 16, v{t[1]}
                v_mul_u32_u24 v{t[2]}, {VHEAD - 320}, v{t[1]}
                v_lshl_add_u32 v{t[2]}, v{t[0]}, 4, v{t[2]}
                v_add_u32 v{va[nt]}, v{t[2]}, v{hoff}""")
            k(f"""s_lshl_b32 s{s_ox}, s{s_tb}, 1
            s_add_u32 s{s_ox}, s{s_ox}, s{s_t0}
            s_mul_i32 s{s_ox}, s{s_ox}, 2688
            s_add_u32 s{s_ox}, s{s_ox}, {VIMG}
            v_mov_b32 v{la+0}, v{acs}
            v_mov_b32 v{la+1}, v{acs}
            s_waitcnt lgkmcnt(8)
            v_mov_b32 v{la+3}, v{la+2}""")
            for mt in range(2):
                if mt == 1: k("s_waitcnt lgkmcnt(0)")
                for nt in range(2):
                    A = acc[nt][mt]
                    for p in range(8):
                        k(f"v_pk_fma_f32 {vr(A+2*p,2)}, {vr(rg+16*mt+2*p,2)}, {vr(la+2*nt,2)}, {vr(A+2*p,2)}")
                    for p in range(8):
                        k(f"v_pk_mul_f32 {vr(A+2*p,2)}, {vr(A+2*p,2)}, {vr(rg2+16*mt+2*p,2)}")
                    for p in range(8):
                        k(f"v_cvt_pk_bf16_f32 v{A+p}, v{A+2*p}, v{A+2*p+1}")
                    k(f"buffer_store_dwordx4 {vr(A,4)}, v{va[nt]}, {sr(sO,4)}, s{s_ox} offen offset:{1344*mt}{sc}")
                    k(f"buffer_store_dwordx4 {vr(A+4,4)}, v{va[nt]}, {sr(sO,4)}, s{s_ox} offen offset:{1344*mt+672}{sc}")
    k(f"s_cmp_ge_u32 s{s_cg}, 10\ns_cbranch_scc1 {L_v}")
    vsave = k.vnext
    mainloop(False); epilogue(False); k(f"s_branch {L_J0}")
    k.vnext = vsave
    k(f"{L_v}:")
    mainloop(True); epilogue(True)
    k(f"{L_J0}:\ns_setprio 0")
    k.stamp(4)
    prep_decode(True)
    k(f"""s_lshl_b32 s{c.s_f}, s{s_cg}, 5
    s_add_u32 s{c.s_f}, s{c.s_f}, s{s_tb}
    s_lshl_b32 s{c.s_f}, s{c.s_f}, {FL}
    s_add_u32 s{c.s_f}, s{c.s_f}, {F1}""")
    def spare():
        o4 = acs; xb = acc[0][0]; sm = [fw[0][0], fw[0][0] + 1]; sq = [fw[0][0] + 2, fw[0][0] + 3]
        k(f"""{L_spare}:
        v_lshrrev_b32 v{vt[0]}, 3, v{vl}
        v_lshl_add_u32 v{vt[0]}, s{s_w}, 4, v{vt[0]}
        v_mul_u32_u24 v{vt[0]}, 1280, v{vt[0]}
        v_and_b32 v{vt[2]}, 7, v{vl}
        v_lshl_add_u32 v{vX[0]}, v{vt[2]}, 4, v{vt[0]}
        v_add_u32 v{vX[1]}, {8*1280}, v{vX[0]}
        s_mul_i32 s{s_t0}, s{s_tb}, {128*1280}
        s_mov_b32 s{sX+2}, {128*1280}
        s_mov_b32 s{sX+3}, 0x20000
        s_waitcnt lgkmcnt(0)
        s_add_u32 s{sX}, s{sP}, s{s_t0}
        s_addc_u32 s{sX+1}, s{sP+1}, 0""")
        for g in range(2):
            for i in range(10): k(f"buffer_load_dwordx4 {vr(xb+40*g+4*i,4)}, v{vX[g]}, {sr(sX,4)}, 0 offen offset:{128*i}")
        common_setup()
        srd(k, sW, sWS, sWS + 1, CSG + ZERO_BYTES)
        o4 = xb + 80
        k(f"""s_lshl_b32 s{s_t0}, s{s_tb}, 1
        s_mul_i32 s{s_t0}, s{s_t0}, {VHEAD}
        s_add_u32 s{s_t0}, s{s_t0}, {VIMG + 320}
        v_mul_u32_u24 v{vt[0]}, 336, v0
        v_lshlrev_b32 v{vt[1]}, 4, v0
        s_lshl_b32 s{s_t1}, s{s_tb}, 13
        s_add_u32 s{s_t1}, s{s_t1}, {CSG}
        s_mov_b32 s{s_msk}, 0x3f803f80""")
        for i in range(4): k(f"v_mov_b32 v{o4+i}, 0x3f803f80\nv_mov_b32 v{o4+4+i}, 0")
        nz = (ZERO_BYTES + 131071) // 131072
        for z in range(nz):
            k(f"buffer_store_dwordx4 {vr(o4+4,4)}, v{vt[1]}, {sr(sW,4)}, s{s_t1} offen{sc}\ns_add_u32 s{s_t1}, s{s_t1}, 131072")
        k(f"buffer_store_dwordx4 {vr(o4,4)}, v{vt[0]}, {sr(sO,4)}, s{s_t0} offen{sc}")
        st = o4 + 8
        for i in range(4): k(f"v_mov_b32 v{st+i}, 0")
        for g in range(2):
            for i in range(10):
                k(f"s_waitcnt vmcnt({19 - 10*g - i + nz + 1})")
                for j in range(4):
                    x = xb + 40 * g + 4 * i + j
                    k(f"v_dot2c_f32_bf16 v{st+2*g}, s{s_msk}, v{x}\nv_dot2c_f32_bf16 v{st+2*g+1}, v{x}, v{x}")
        for ctl in ("quad_perm:[1,0,3,2]", "quad_perm:[2,3,0,1]", "row_half_mirror"):
            for i in range(4): k(f"v_add_f32_dpp v{st+i}, v{st+i}, v{st+i} {ctl} row_mask:0xf bank_mask:0xf")
        Ln = k.label("sn")
        k(f"""v_and_b32 v{vt[2]}, 1, v{vl}
        v_cmp_eq_u32 vcc, 1, v{vt[2]}
        v_lshrrev_b32 v{vt[3]}, 3, v{vl}
        v_lshl_add_u32 v{vt[3]}, v{vt[2]}, 3, v{vt[3]}
        v_cndmask_b32 v{st}, v{st}, v{st+2}, vcc
        v_cndmask_b32 v{st+1}, v{st+1}, v{st+3}, vcc
        v_lshlrev_b32 v{vt[3]}, 2, v{vt[3]}
        v_mul_f32 v{st}, {f2u(-1.0/640):#x}, v{st}
        v_mul_f32 v{st+1}, {f2u(1.0/640):#x}, v{st+1}
        v_fma_f32 v{st+1}, -v{st}, v{st}, v{st+1}
        v_max_f32 v{st+1}, 0, v{st+1}
        v_add_f32 v{st+1}, {f2u(1e-5):#x}, v{st+1}
        v_rsq_f32 v{st+1}, v{st+1}
        s_lshl_b32 s{s_t0}, s{s_tb}, 10
        s_lshl_b32 s{s_t1}, s{s_w}, 6
        s_add_u32 s{s_t0}, s{s_t0}, s{s_t1}
        s_add_u32 s{s_t0}, s{s_t0}, {LN1}
        s_mov_b32 exec_lo, 0x03030303
        s_mov_b32 exec_hi, 0x03030303
        buffer_store_dword v{st}, v{vt[3]}, {sr(sO,4)}, s{s_t0} offen{sc}
        buffer_store_dword v{st+1}, v{vt[3]}, {sr(sO,4)}, s{s_t0} offen offset:512{sc}
        s_mov_b64 exec, -1
        s_waitcnt vmcnt(0)
        s_barrier
        s_cmp_lg_u32 s{s_w}, 4
        s_cbranch_scc1 {Ln}
        s_lshl_b32 s{s_t0}, s{s_tb}, 4
        v_mov_b32 v{vt[2]}, 1
        v_mov_b32 v{vt[3]}, 0
        s_mov_b64 exec, 1
        buffer_store_dword v{vt[2]}, v{vt[3]}, {sr(sD,4)}, s{s_t0} offen sc1
        s_mov_b64 exec, -1
        {Ln}:""")
        k.stamp(2); k.stamp(3)
        k(f"s_branch {L_J0}")
    def deferred(fn):
        n = len(k.lines); fn(); out = k.lines[n:]; del k.lines[n:]; return out
    spare_code = deferred(spare)
    c.reset()
    prio = o.get('prio', (16, 10, 4, 2))
    s_h = k.s(); s_pa = k.s(); s_pr = k.s(); s_odd8 = k.s(); s_tok = k.s()
    s_t0 = k.s(); s_t1 = k.s(); s_t2 = k.s(); s_t3 = k.s()
    so = [k.s() for _ in range(3)]; s_d = k.s(); s_mo = k.s(); s_ms = k.s(); s_q1 = k.s(); s_q2 = k.s()
    sG = k.s(2); sE = k.s(2)
    vq = k.v(); vr31 = k.v(); vKA = k.v(); vKR = k.v(); vVA = k.v()
    vt = [k.v() for _ in range(6)]
    S = [k.v(16, 4), k.v(16, 4)]; O = k.v(16, 4); P = k.v(8, 4)
    Qm = k.v(4, 4); Qr = k.v(2); Km = k.v(4, 4); Kr = k.v(2); V0 = k.v(4, 4); V1 = [k.v(4, 4), k.v(4, 4)]
    PR = k.v(16, 4); C = S[1]; vcs = k.v(4, 2); vca = k.v(); vfp = k.v(4, 4)
    L_slow = k.label("slow"); L_store = k.label("store")
    k(f"""s_and_b32 s{s_t0}, s2, 7
    s_lshl_b32 s{s_t0}, s{s_t0}, 2
    s_bfe_u32 s{s_t1}, s2, 0x20003
    s_add_u32 s{s_h}, s{s_t0}, s{s_t1}
    s_lshr_b32 s{s_q1}, s{s_h}, 1
    s_mul_i32 s{s_t0}, s{s_q1}, 5
    s_and_b32 s{s_t1}, s{s_h}, 1
    s_lshl_b32 s{s_odd8}, s{s_t1}, 3
    s_mul_i32 s{s_t1}, s{s_t1}, 3
    s_add_u32 s{s_pa}, s{s_t0}, s{s_t1}
    s_lshl_b32 s{s_pa}, s{s_pa}, 15
    s_add_u32 s{s_pr}, s{s_t0}, 2
    s_lshl_b32 s{s_pr}, s{s_pr}, 15
    s_lshl_b32 s{s_t0}, s{s_wl}, 10
    s_add_u32 s{s_t1}, s{s_t0}, {80*32768}
    s_add_u32 s{so[0]}, s{s_pa}, s{s_t1}
    s_add_u32 s{so[2]}, s{s_pr}, s{s_t1}
    s_mul_i32 s{s_t1}, s{s_wl}, 3072
    s_mul_i32 s{s_t2}, s{s_h}, {VHEAD}
    s_add_u32 s{s_t2}, s{s_t2}, s{s_t1}
    s_add_u32 s{s_t2}, s{s_t2}, {VIMG}
    s_add_u32 s{s_t3}, s{s_t2}, 2048
    s_add_u32 s{s_t1}, s{s_t1}, {VB}
    s_cmp_lt_u32 s{s_w}, 4
    s_cselect_b32 s{so[0]}, s{so[0]}, s{s_t2}
    s_cselect_b32 s{so[2]}, s{so[2]}, s{s_t3}
    s_cselect_b32 s{s_mo}, s{s_t0}, s{s_t1}
    s_movk_i32 s{s_t0}, 1024
    s_cselect_b32 s{so[1]}, 32768, s{s_t0}
    s_movk_i32 s{s_d}, 10752
    s_cselect_b32 s{s_d}, 4096, s{s_d}
    s_movk_i32 s{s_ms}, 1024
    s_cselect_b32 s{s_ms}, 4096, s{s_ms}
    s_add_u32 s{so[1]}, s{so[1]}, s{so[0]}
    v_and_b32 v{vr31}, 31, v{vl}
    v_lshlrev_b32 v{vr31}, 4, v{vr31}
    v_lshrrev_b32 v{vt[1]}, 5, v{vl}
    v_lshl_add_u32 v{vq}, v{vt[1]}, 15, v{vr31}
    v_lshl_add_u32 v{vKA}, v{vt[1]}, 12, v{vr31}
    v_add_u32 v{vKR}, s{s_odd8}, v{vr31}
    v_add_u32 v{vKR}, 8192, v{vKR}
    v_mul_u32_u24 v{vt[0]}, 336, v{vt[1]}
    v_add_u32 v{vt[0]}, v{vt[0]}, v{vr31}
    v_add_u32 v{vVA}, {VB}, v{vt[0]}
    v_cmp_lt_u32 vcc, {20*16}, v{vr31}
    v_mov_b32 v{vt[0]}, 0x40000
    v_mov_b32 v{Qr}, 0
    v_cndmask_b32 v{vVA}, v{vVA}, v{vt[0]}, vcc
    v_cmp_lt_u32 vcc, 31, v{vl}
    v_mov_b32 v{Qr+1}, 0
    s_lshr_b32 s{s_tok}, s2, 5
    v_cndmask_b32 v{vKR}, v{vKR}, v{vt[0]}, vcc
    s_lshl_b32 s{s_tok}, s{s_tok}, 8
    s_lshl_b32 s{s_t0}, s{s_w}, 5
    s_add_u32 s{s_tok}, s{s_tok}, s{s_t0}""")
    p1 = [f"s_mov_b32 m0, s{sR[4]}", "s_nop 0"]
    for i, (sd, so_) in enumerate(((sA, sR[0]), (sA, sR[2]), (sB, sR[1]), (sB, sR[3]))):
        p1.append(f"buffer_load_dwordx4 v{vPS}, {sr(sd,4)}, s{so_} offen lds")
        if i < 3: p1 += ["s_add_u32 m0, m0, 1024", "s_nop 0"]
    edge_prep = o.get('edge_prep', False)
    Lx = k.label("jx"); Lp = k.label("jp"); Lz = k.label("jz"); Lzx = k.label("jzx"); Lns = k.label("jns")
    k(f"""s_cmp_lg_u32 s{s_w}, 0
    s_cbranch_scc1 {Lzx}
    v_and_b32 v{vt[3]}, 15, v{vl}
    v_lshlrev_b32 v{vt[3]}, 4, v{vt[3]}
    s_mov_b32 s{s_t1}, 0
    {Lz}:
    buffer_load_dword v{vt[4]}, v{vt[3]}, {sr(sD,4)}, 0 offen sc1
    s_add_u32 s{s_t1}, s{s_t1}, 1
    s_cmp_gt_u32 s{s_t1}, 0x40000
    s_cbranch_scc1 {Lzx}
    s_waitcnt vmcnt(0)
    v_cmp_ne_u32 vcc, 0, v{vt[4]}
    s_cmp_eq_u64 vcc, -1
    s_cbranch_scc0 {Lz}
    {Lzx}:
    s_waitcnt vmcnt(0)""")
    k.stamp(5)
    k(f"""s_barrier
    s_cmp_lg_u32 s{s_w}, 0
    s_cbranch_scc1 {Lns}""")
    c.signal(c.s_f, vt[2])
    k(f"{Lns}:")
    if edge_prep:
        for x in p1: k(x)
    k(f"""s_cmp_lg_u32 s{s_w}, 0
    s_cbranch_scc1 {Lx}
    s_mul_i32 s{s_t0}, s{s_q1}, 40
    s_add_u32 s{s_t1}, s{s_t0}, 39
    s_lshr_b32 s{s_t0}, s{s_t0}, 7
    s_lshr_b32 s{s_t1}, s{s_t1}, 7
    s_lshl_b32 s{s_t0}, s{s_t0}, {FL+5}
    s_lshl_b32 s{s_t1}, s{s_t1}, {FL+5}
    s_add_u32 s{s_t0}, s{s_t0}, {F1}
    s_add_u32 s{s_t1}, s{s_t1}, {F1}
    v_lshrrev_b32 v{vt[2]}, 4, v{vl}
    v_min_u32 v{vt[2]}, 2, v{vt[2]}
    v_mul_u32_u24 v{vt[2]}, 160, v{vt[2]}
    v_and_b32 v{vt[3]}, 15, v{vl}
    v_add_u32 v{vt[3]}, v{vt[3]}, v{vt[2]}
    v_lshlrev_b32 v{vt[3]}, {FL}, v{vt[3]}
    s_mov_b32 s{s_t2}, 0
    {Lp}:
    buffer_load_dword v{vt[4]}, v{vt[3]}, {sr(sO,4)}, s{s_t0} offen sc1
    buffer_load_dword v{vt[5]}, v{vt[3]}, {sr(sO,4)}, s{s_t1} offen sc1
    s_add_u32 s{s_t2}, s{s_t2}, 1
    s_cmp_gt_u32 s{s_t2}, 0x40000
    s_cbranch_scc1 {Lx}
    s_waitcnt vmcnt(0)
    v_min_u32 v{vt[4]}, v{vt[4]}, v{vt[5]}
    v_cmp_ne_u32 vcc, 0, v{vt[4]}
    s_cmp_eq_u64 vcc, -1
    s_cbranch_scc0 {Lp}
    {Lx}:
    s_lshl_b32 s{s_t0}, s{s_tok}, 4
    s_add_u32 s{s_q1}, s{s_t0}, s{s_pa}
    s_add_u32 s{s_q2}, s{s_t0}, s{s_pr}
    s_add_u32 s{s_q2}, s{s_q2}, s{s_odd8}
    s_barrier""")
    k.stamp(6)
    def dma(slot):
        out = [f"s_add_u32 m0, s{s_mo}, {slot*SL}", "s_nop 0"]
        for i in range(3):
            out.append(f"buffer_load_dwordx4 v{vl16}, {sr(sO,4)}, s{so[i]} offen lds")
            if i < 2: out.append(f"s_add_u32 m0, m0, s{s_ms}")
            out.append(f"s_add_u32 s{so[i]}, s{so[i]}, s{s_d}")
        return out
    for x in dma(0): k(x)
    k(f"""buffer_load_dwordx4 {vr(Qm,4)}, v{vq}, {sr(sO,4)}, s{s_q1} offen
    s_mov_b32 exec_hi, 0
    buffer_load_dwordx2 {vr(Qr,2)}, v{vr31}, {sr(sO,4)}, s{s_q2} offen
    s_mov_b32 exec_hi, -1""")
    for x in dma(1): k(x)
    p2a = [f"ds_read_b64_tr_b16 {vr(PR+4*Tl+2*rd,2)}, v{vPA} offset:{rd*1024+Tl*32}" for Tl in range(4) for rd in range(2)]
    p2c = [f"s_mov_b32 s{sE}, 0x3f803f80", f"v_lshlrev_b32 v{vca}, 2, v{vl}"] + [f"v_mov_b32 v{vcs+i}, 0" for i in range(4)]
    p2c += [f"v_dot2c_f32_bf16 v{vcs+Tl}, s{sE}, v{PR+4*Tl+i}" for i in range(4) for Tl in range(4)]
    p2c += ["s_nop 1", f"v_permlane32_swap_b32 v{vcs}, v{vcs+1}", f"v_permlane32_swap_b32 v{vcs+2}, v{vcs+3}",
            f"v_add_f32 v{vcs}, v{vcs}, v{vcs+1}", f"v_add_f32 v{vcs+2}, v{vcs+2}, v{vcs+3}"]
    late = [f"buffer_store_dwordx4 {vr(PR+4*Tl,4)}, v{vl16}, {sr(sO,4)}, s{s_po} offen offset:{Tl*1024}{sc}" for Tl in range(4)]
    late += [f"buffer_atomic_add_f32 v{vcs}, v{vca}, {sr(sO,4)}, s{s_cs} offen", f"buffer_atomic_add_f32 v{vcs+2}, v{vca}, {sr(sO,4)}, s{s_cs} offen offset:256"]
    TL = o.get('TL', 9); TP = 23
    late_t = o.get('late_t', [25, 27, 29, 32, 34, 36])
    if edge_prep:
        TL = TP = -9; late_t = o.get('late_t', [8, 10, 12, 16, 18, 20])
        k("s_waitcnt vmcnt(8)")
        for x in p2a: k(x)
        k("s_waitcnt lgkmcnt(0)")
        for x in p2c: k(x)
    def rdK(t):
        o_ = ((t // 8) % 3) * SL + (t % 8) * 512
        return [f"ds_read_b128 {vr(Km,4)}, v{vKA} offset:{o_}", f"ds_read_b64 {vr(Kr,2)}, v{vKR} offset:{o_}"]
    def rdV(t):
        o_ = ((t // 8) % 3) * SL + (t % 8) * 1344
        return [f"ds_read_b128 {vr(V0,4)}, v{vVA} offset:{o_}", f"ds_read_b128 {vr(V1[t&1],4)}, v{vVA} offset:{o_+672}"]
    k("s_waitcnt vmcnt(3)\ns_barrier")
    k.stamp(7)
    for x in rdK(0) + rdV(0): k(x)
    k(f"""s_waitcnt lgkmcnt(2)
    {M8} {vr(S[0],16)}, {vr(Kr,2)}, {vr(Qr,2)}, 0
    {M16} {vr(S[0],16)}, {vr(Km,4)}, {vr(Qm,4)}, {vr(S[0],16)}""")
    for x in rdK(1): k(x)
    side = []
    def spread(n):
        for _ in range(n):
            if side: k(side.pop(0))
    for t in range(64):
        s = S[t & 1]; sn = S[(t + 1) & 1]; ch = t // 8; last = t == 63
        e = lambda *a: [(k(f"v_exp_f32 v{s+i}, v{s+i}"), spread(1)) for i in a]
        cv = lambda i: k(f"v_cvt_pk_bf16_f32 v{P+i}, v{s+2*i}, v{s+2*i+1}")
        def pr(ph):
            if prio:
                q = (4 * t + ph - 26) % 32
                cum = 0
                for lvl, ln in enumerate(prio):
                    if (q == cum and ln > 0) or (t == 0 and ph == 0 and cum <= q < cum + ln): k(f"s_setprio {3 - lvl}")
                    cum += ln
        pr(0)
        e(0, 1, 2, 3)
        if not last:
            k(f"s_waitcnt lgkmcnt({2 if t > 0 else 0})")
            k(f"{M8} {vr(sn,16)}, {vr(Kr,2)}, {vr(Qr,2)}, 0")
        pr(1)
        e(4); cv(0); e(5); cv(1); e(6, 7)
        if not last: k(f"{M16} {vr(sn,16)}, {vr(Km,4)}, {vr(Qm,4)}, {vr(sn,16)}")
        if t % 8 == 6 and ch < 7:
            assert not side
            nl = sum(1 for x in late_t + [TL] * 4 if t - 8 < x < t)
            sig = max(late_t) < t - 8 and max(late_t) >= t - 16
            k(f"s_waitcnt vmcnt({nl})\ns_barrier")
            if ch < 6: side += dma((ch + 2) % 3)
            if sig:
                Ln = k.label("nf")
                k(f"s_cmp_lg_u32 s{s_w}, 0\ns_cbranch_scc1 {Ln}\ns_lshl_b32 s{s_t0}, s2, 2\ns_add_u32 s{s_t0}, s{s_t0}, {FP}")
                c.signal(s_t0, vt[2]); k(f"{Ln}:")
            if ch == 6:
                k(f"s_mov_b32 s{s_t0}, {FP}\nbuffer_load_dwordx4 {vr(vfp,4)}, v{vl16}, {sr(sO,4)}, s{s_t0} offen sc1")
        pr(2)
        if t < 62:
            for x in rdK(t + 2): k(x)
        if t == TP:
            for x in p2a: k(x)
        cv(2); e(8); cv(3); e(9, 10, 11)
        k(f"s_waitcnt lgkmcnt({(2 if t < 62 else 0) + (8 if t == TP else 0)})")
        k(f"{M16} {vr(O,16)}, {vr(V0,4)}, {vr(P,4)}, {'0' if t == 0 else vr(O,16)}")
        pr(3)
        if t in late_t: side.append(late[late_t.index(t)])
        if t == TL: side += p1
        if t == TP + 1: side += p2c
        cv(4); e(12); cv(5); e(13, 14, 15); cv(6)
        if not last:
            rv = rdV(t + 1)
            k(rv[0]); cv(7); k(rv[1]); k("s_nop 0")
        else:
            cv(7)
        k(f"{M16} {vr(O,16)}, {vr(V1[t&1],4)}, {vr(P+4,4)}, {vr(O,16)}")
    assert not side
    t0, t1, t2 = vt[0], vt[1], vt[2]
    k(f"""s_setprio 0
    v_bfe_u32 v{vt[3]}, v{vl}, 4, 1
    v_mul_u32_u24 v{vt[3]}, {20*1024}, v{vt[3]}
    v_and_b32 v{vt[4]}, 15, v{vl}
    v_lshl_add_u32 v{vt[3]}, v{vt[4]}, 4, v{vt[3]}
    v_lshrrev_b32 v{vt[4]}, 5, v{vl}
    v_lshl_add_u32 v{vt[4]}, v{vt[4]}, 8, v{vt[3]}
    s_mov_b32 s{s_q1}, {f2u(2.0**64):#x}
    s_mov_b32 s{s_q2}, 0x7f800000
    v_mov_b32 v{t0}, v{O+8}
    v_mov_b32 v{t1}, v{O+8}
    v_add_f32 v{t2}, |v{O}|, |v{O+1}|
    v_add_f32 v{t2}, |v{O+2}|, v{t2}
    v_permlane32_swap_b32 v{t0}, v{t1}""")
    for i in range(3, 12): k(f"v_add_f32 v{t2}, |v{O+i}|, v{t2}")
    k(f"""v_cmp_lt_f32 vcc, {f2u(2.0**-64):#x}, v{t1}
    v_cmp_gt_f32 {sr(sE,2)}, s{s_q1}, v{t1}
    v_cmp_gt_f32 {sr(sG,2)}, s{s_q2}, v{t2}
    s_and_b64 vcc, vcc, {sr(sE,2)}
    s_and_b64 vcc, vcc, {sr(sG,2)}
    s_cmp_eq_u64 vcc, -1
    s_cbranch_scc0 {L_slow}
    {L_store}:
    v_rcp_f32 v{t1}, v{t1}
    s_lshr_b32 s{s_t0}, s{s_tok}, 4
    s_mul_i32 s{s_t0}, s{s_t0}, {20*1024}
    s_add_u32 s{s_t0}, s{s_t0}, {OIMG}
    s_lshl_b32 s{s_t1}, s{s_h}, 9
    s_add_u32 s{s_t1}, s{s_t1}, s{s_t0}
    s_lshr_b32 s{s_t2}, s{s_h}, 1
    s_lshl_b32 s{s_t2}, s{s_t2}, 8
    s_add_u32 s{s_t2}, s{s_t2}, s{s_t0}
    s_add_u32 s{s_t2}, s{s_t2}, s{s_odd8}
    s_add_u32 s{s_t2}, s{s_t2}, {16*1024}""")
    for i in range(12): k(f"v_mul_f32 v{O+i}, v{t1}, v{O+i}")
    for i in range(6): k(f"v_cvt_pk_bf16_f32 v{O+i}, v{O+2*i}, v{O+2*i+1}")
    k(f"""buffer_store_dwordx4 {vr(O,4)}, v{vt[4]}, {sr(sO,4)}, s{s_t1} offen{sc}
    s_mov_b32 exec_hi, 0
    buffer_store_dwordx2 {vr(O+4,2)}, v{vt[3]}, {sr(sO,4)}, s{s_t2} offen{sc}
    s_mov_b32 exec_hi, -1""")
    def slow():
        vV = vKA; vm = vKR; cnt = s_t3
        k(f"""{L_slow}:
        s_add_u32 s{so[0]}, s{s_pa}, {80*32768}
        s_add_u32 s{so[1]}, s{s_pr}, {80*32768}
        s_add_u32 s{so[1]}, s{so[1]}, s{s_odd8}
        v_mov_b32 v{vm}, 0xff800000
        s_mov_b32 s{cnt}, 0""")
        L1 = k.label("mx")
        k(f"""{L1}:
        buffer_load_dwordx4 {vr(Km,4)}, v{vq}, {sr(sO,4)}, s{so[0]} offen
        buffer_load_dwordx2 {vr(Kr,2)}, v{vr31}, {sr(sO,4)}, s{so[1]} offen
        s_add_u32 s{so[0]}, s{so[0]}, 512
        s_add_u32 s{so[1]}, s{so[1]}, 512
        s_waitcnt vmcnt(0)
        {M8} {vr(S[0],16)}, {vr(Kr,2)}, {vr(Qr,2)}, 0
        {M16} {vr(S[0],16)}, {vr(Km,4)}, {vr(Qm,4)}, {vr(S[0],16)}""")
        for i in range(8): k(f"v_max3_f32 v{vm}, v{S[0]+2*i}, v{S[0]+2*i+1}, v{vm}")
        k(f"""s_add_u32 s{cnt}, s{cnt}, 1
        s_cmp_lt_u32 s{cnt}, 64
        s_cbranch_scc1 {L1}
        v_mov_b32 v{t0}, v{vm}
        v_permlane32_swap_b32 v{t0}, v{vm}
        v_max_f32 v{vm}, v{vm}, v{t0}""")
        for i in range(16): k(f"v_sub_f32 v{C+i}, 0, v{vm}\nv_mov_b32 v{O+i}, 0")
        k(f"""s_add_u32 s{so[0]}, s{s_pa}, {80*32768}
        s_add_u32 s{so[1]}, s{s_pr}, {80*32768}
        s_add_u32 s{so[1]}, s{so[1]}, s{s_odd8}
        s_mul_i32 s{so[2]}, s{s_h}, {VHEAD}
        s_add_u32 s{so[2]}, s{so[2]}, {VIMG}
        v_lshrrev_b32 v{vV}, 5, v{vl}
        v_mul_u32_u24 v{vV}, 336, v{vV}
        v_add_u32 v{vV}, v{vV}, v{vr31}
        s_mov_b32 s{cnt}, 0""")
        L2 = k.label("pv")
        k(f"""{L2}:
        buffer_load_dwordx4 {vr(Km,4)}, v{vq}, {sr(sO,4)}, s{so[0]} offen
        buffer_load_dwordx2 {vr(Kr,2)}, v{vr31}, {sr(sO,4)}, s{so[1]} offen
        buffer_load_dwordx4 {vr(V0,4)}, v{vV}, {sr(sO,4)}, s{so[2]} offen
        buffer_load_dwordx4 {vr(V1[0],4)}, v{vV}, {sr(sO,4)}, s{so[2]} offen offset:672
        s_add_u32 s{so[0]}, s{so[0]}, 512
        s_add_u32 s{so[1]}, s{so[1]}, 512
        s_add_u32 s{so[2]}, s{so[2]}, 1344
        s_waitcnt vmcnt(0)
        {M8} {vr(S[0],16)}, {vr(Kr,2)}, {vr(Qr,2)}, {vr(C,16)}
        {M16} {vr(S[0],16)}, {vr(Km,4)}, {vr(Qm,4)}, {vr(S[0],16)}""")
        for i in range(16): k(f"v_exp_f32 v{S[0]+i}, v{S[0]+i}")
        for i in range(8): k(f"v_cvt_pk_bf16_f32 v{P+i}, v{S[0]+2*i}, v{S[0]+2*i+1}")
        k(f"""{M16} {vr(O,16)}, {vr(V0,4)}, {vr(P,4)}, {vr(O,16)}
        {M16} {vr(O,16)}, {vr(V1[0],4)}, {vr(P+4,4)}, {vr(O,16)}
        s_add_u32 s{cnt}, s{cnt}, 1
        s_cmp_lt_u32 s{cnt}, 64
        s_cbranch_scc1 {L2}
        v_mov_b32 v{t0}, v{O+8}
        v_mov_b32 v{t1}, v{O+8}
        v_permlane32_swap_b32 v{t0}, v{t1}
        s_branch {L_store}""")
    slow_code = deferred(slow)
    L3 = k.label("ld")
    k.stamp(8); k.nst = 8
    if o.get('fine1'):
        k.maxst = 14; k.stamp = lambda *a, **kw: None
    k(f"""s_lshr_b32 s{c.s_f}, s2, 5
    s_lshl_b32 s{c.s_f}, s{c.s_f}, 5
    s_add_u32 s{c.s_f}, s{c.s_f}, s{s_h}
    s_lshl_b32 s{c.s_f}, s{c.s_f}, {FL}
    s_add_u32 s{c.s_f}, s{c.s_f}, {F2}""")
    P3 = P35(c, 3, D=o.get('D3', 20), D0=o.get('D30', 6))
    P3.rowmap = o.get('row3', False)
    k(P3.ptr_load()); P3.ids()
    lw(c, L3)
    def handoff(vt, stmp, n):
        Ln = k.label("nw0")
        k("s_barrier")
        k(f"s_cmp_lg_u32 s{c.s_w}, 0\ns_cbranch_scc1 {Ln}")
        c.signal(c.s_f, vt); c.poll(c.s_p, n, vt, stmp)
        k(f"{Ln}:\ns_barrier")
    k("s_barrier")
    P3.setup()
    k(f"""s_lshr_b32 s{c.s_p}, s{P3.s_tb16}, 4
    s_lshl_b32 s{c.s_p}, s{c.s_p}, {FL+5}
    s_add_u32 s{c.s_p}, s{c.s_p}, {F2}
    s_waitcnt vmcnt(3)""")
    handoff(P3.vt[0], P3.s_t0, 32)
    k.stamp('n')
    if o.get('fine') == 3: P3.fine = {0: 2, 1: 3, 4: 4, 8: 5, 12: 6, 16: 7, 19: 8}
    P3.main(init=False, resident=True)
    k("s_barrier")
    P3.epilogue()
    k(f"""s_lshr_b32 s{c.s_f}, s{P3.s_tb16}, 3
    s_lshl_b32 s{c.s_f}, s{c.s_f}, 5
    s_bfe_u32 s{P3.s_t0}, s{P3.s_tb16}, 0x10002
    s_lshl_b32 s{P3.s_t0}, s{P3.s_t0}, 3
    s_add_u32 s{c.s_f}, s{c.s_f}, s{P3.s_t0}
    s_add_u32 s{c.s_f}, s{c.s_f}, s{P3.s_c}
    s_lshl_b32 s{c.s_f}, s{c.s_f}, {FL}
    s_add_u32 s{c.s_f}, s{c.s_f}, {F3}""")
    Q4 = P4(c, D=o.get('D4', 12), D0=o.get('D40', 4)); Q4.ahead = o.get('ahead4', 4)
    Q4.ids(); Q4.setup()
    k(f"""s_lshr_b32 s{c.s_p}, s{Q4.s_tb}, 2
    s_lshl_b32 s{c.s_p}, s{c.s_p}, {FL+5}
    s_add_u32 s{c.s_p}, s{c.s_p}, {F3}
    s_waitcnt vmcnt(0)""")
    k.stamp('n')
    handoff(Q4.st, Q4.s_t1, 16)
    k.stamp('n')
    if o.get('fine') == 4: Q4.fine = {0: 2, 1: 3, 4: 4, 12: 5, 20: 6, 30: 7, 39: 8}
    Q4.main(init=False, endbar=True)
    Q4.epilogue(k.label("fin"))
    k(f"""s_lshr_b32 s{c.s_f}, s{Q4.s_tb}, 2
    s_lshl_b32 s{c.s_f}, s{c.s_f}, 5
    s_add_u32 s{c.s_f}, s{c.s_f}, s{Q4.s_g}
    s_lshl_b32 s{c.s_f}, s{c.s_f}, {FL}
    s_add_u32 s{c.s_f}, s{c.s_f}, {F4}""")
    P5 = P35(c, 5, D=o.get('D5', 8), D0=o.get('D50', 4)); P5.ahead = o.get('ahead5', 5); P5.rowmap = o.get('row5', False); P5.bar8 = o.get('bar8', True)
    k("s_nop 1"); k(P5.ptr_load()); P5.ids(); P5.setup()
    k(f"""s_lshr_b32 s{c.s_p}, s{P5.s_tb16}, 3
    s_lshl_b32 s{c.s_p}, s{c.s_p}, {FL+5}
    s_add_u32 s{c.s_p}, s{c.s_p}, {F4}
    s_waitcnt vmcnt(0)""")
    k.stamp('n')
    handoff(P5.vt[0], P5.s_t0, 16)
    k.stamp('n')
    if o.get('fine') == 5: P5.fine = {0: 2, 1: 3, 8: 4, 16: 5, 28: 6, 40: 7, 53: 8}
    P5.main(init=False)
    P5.epilogue()
    c.finish()
    k(f"{L3}:")
    Lp = k.label("fp"); Lok = k.label("fpok")
    k(f"""s_mov_b32 s{P3.s_cnt}, 0
    s_waitcnt vmcnt(2)
    {Lp}:
    v_min_u32 v{vfp}, v{vfp}, v{vfp+1}
    v_min3_u32 v{vfp}, v{vfp}, v{vfp+2}, v{vfp+3}
    s_add_u32 s{P3.s_cnt}, s{P3.s_cnt}, 1
    v_cmp_ne_u32 vcc, 0, v{vfp}
    s_cmp_eq_u64 vcc, -1
    s_cbranch_scc1 {Lok}
    s_cmp_gt_u32 s{P3.s_cnt}, 0x40000
    s_cbranch_scc1 {Lok}
    s_mov_b32 s{P3.s_t0}, {FP}
    buffer_load_dwordx4 {vr(vfp,4)}, v{c.vl16}, {sr(c.sO,4)}, s{P3.s_t0} offen sc1
    s_waitcnt vmcnt(0)
    s_branch {Lp}
    {Lok}:
    s_barrier""")
    P3.ld_setup()
    k("s_waitcnt vmcnt(0)\ns_barrier")
    for ch in range(5): P3.ld_chunk(ch)
    k("s_waitcnt vmcnt(0)\ns_barrier")
    Q4.ids(); Q4.ld_setup()
    k("s_barrier")
    n4 = o.get('pre4', 2)
    for ch in range(n4): Q4.ld_chunk(ch)
    k("s_barrier")
    for ch in range(n4, 5): Q4.ld_chunk(ch)
    Q4.ld_cs()
    k("s_waitcnt vmcnt(29)\ns_barrier")
    rg5 = None
    if o.get('reg5', True):
        rg5 = dict(base=20, addr=[8, 9, 10])
        s5 = 64
        def warm():
            k(f"""s_bfe_u32 s{Q4.s_t0}, s2, 0x10002
            s_lshl_b32 s{Q4.s_t0}, s{Q4.s_t0}, 2
            s_lshr_b32 s{Q4.s_t1}, s2, 6
            s_add_u32 s{Q4.s_t0}, s{Q4.s_t0}, s{Q4.s_t1}
            s_lshl_b32 s{Q4.s_t1}, s{c.s_wl}, 3
            s_add_u32 s{Q4.s_t0}, s{Q4.s_t0}, s{Q4.s_t1}
            s_mul_i32 s{Q4.s_t0}, s{Q4.s_t0}, 5120
            s_add_u32 s{Q4.s_t0}, s{Q4.s_t0}, {WDP + 28*40960}""")
        def warm_chunk(j):
            k(f"s_add_u32 s{Q4.s_t1}, s{Q4.s_t0}, 4096")
            for i in range(5):
                k(f"buffer_load_dwordx4 {vr(rg5['base'] + 20*j + 4*i, 4)}, v{c.vl16}, {sr(c.sO,4)}, s{Q4.s_t0 if i < 4 else Q4.s_t1} offen offset:{(i%4)*1024}")
            k(f"s_add_u32 s{Q4.s_t0}, s{Q4.s_t0}, {4*40960}")
        assert not P5.rowmap
        Q4.warm = warm; Q4.warm_chunk = warm_chunk
    Q4.ld_main(5, 1, init=False)
    P5.ids(); P5.ld_setup()
    if rg5:
        k(f"""v_add_u32 v8, s{P5.s_m0}, v{c.vl16}
        v_add_u32 v9, {3*P5.SLOT}, v8
        v_add_u32 v10, {6*P5.SLOT}, v8""")
    k("s_barrier")
    n5 = o.get('pre5', 4)
    for ch in range(n5): P5.ld_chunk(ch)
    k("s_barrier")
    for ch in range(n5, 7): P5.ld_chunk(ch)
    if P5.bar8:
        k("s_waitcnt vmcnt(25)\ns_barrier")
        P5.ld_main8(rg5)
    else:
        k("s_waitcnt vmcnt(30)\ns_barrier")
        P5.ld_main(7, init=False)
    if K.STAMP:
        for i in range(9, 15): k.stamp(i)
        k.stamp_flush(c.sO, c.s_w)
    k("s_endpgm")
    k.lines += slow_code + spare_code
    return k, (256, 512, max(P3.lds, Q4.lds, P5.lds))
```

```python
from ph import *

def lw(c, L):
    c.k(f"s_cmp_ge_u32 s{c.s_w}, 4\ns_cbranch_scc1 {L}")

class P35:
    def __init__(self, c, which, D=12, D0=None):
        self.c = c; self.k3 = k3 = which == 3; k = c.k
        self.NU = 20 if k3 else 54; self.CK = 4; self.SLOT = 20480
        self.NCH = (self.NU + 3) // 4; self.NSL = 5 if k3 else 7
        self.XS = self.NSL * self.SLOT; self.D = D; self.D0 = D0 or D
        self.lds = self.XS + 4 * 3072
        c.reset()
        self.sPX = k.s(2); self.sB = k.s(4); self.sX = k.s(4)
        (self.s_tb16, self.s_c, self.s_t0, self.s_t1, self.s_t2, self.s_bo, self.s_wo, self.s_m0, self.s_xs, self.s_ho,
         self.s_cnt) = [k.s() for _ in range(11)]
        self.vt = [k.v() for _ in range(6)]; self.vH = k.v(); self.vD = k.v(); self.vA = [k.v() for _ in range(3)]
        self.vrow = [k.v() for _ in range(3)]
        self.acc = k.v(20, 4); self.fa = [k.v(20, 4) for _ in range(3)]; self.res = k.v(12, 4)
        self.fb = k.v(4 * self.D, 4)
    def ptr_load(self): return f"s_load_dwordx2 {sr(self.sPX,2)}, s[0:1], {KA_X if self.k3 else KA_OUT}"
    rowmap = False
    bar8 = False
    def ld_main8(self, regs=None):
        k = self.c.k; c = self.c
        issued = 7
        for kb in range(6):
            need = min(13, 2 * kb + 3)
            if regs is None: k(f"s_waitcnt vmcnt({5*max(0, issued - 1 - need)})")
            else: k("s_waitcnt vmcnt(0) lgkmcnt(0)" if kb == 0 else "s_waitcnt lgkmcnt(0)")
            k("s_barrier")
            while issued < 14 and issued <= 2 * kb + 7:
                if regs is None: self.ld_chunk(issued % 7)
                else:
                    slot = issued % 7
                    for i in range(5):
                        k(f"ds_write_b128 v{regs['addr'][slot // 3]}, {vr(regs['base'] + 20*(issued-7) + 4*i, 4)} offset:{(slot % 3)*self.SLOT + i*1024}")
                issued += 1
    def ids(self):
        k = self.c.k
        if self.rowmap:
            k(f"""s_and_b32 s{self.s_t0}, s2, 7
            s_lshl_b32 s{self.s_t0}, s{self.s_t0}, 2
            s_bfe_u32 s{self.s_t1}, s2, 0x20003
            s_add_u32 s{self.s_tb16}, s{self.s_t0}, s{self.s_t1}
            s_lshl_b32 s{self.s_tb16}, s{self.s_tb16}, 2
            s_add_u32 s{self.s_tb16}, s{self.s_tb16}, s{self.c.s_wl}
            s_lshr_b32 s{self.s_c}, s2, 5""")
            return
        k(f"""s_and_b32 s{self.s_t0}, s2, 3
        s_lshl_b32 s{self.s_t0}, s{self.s_t0}, 3
        s_bfe_u32 s{self.s_t1}, s2, 0x30003
        s_add_u32 s{self.s_tb16}, s{self.s_t0}, s{self.s_t1}
        s_lshl_b32 s{self.s_tb16}, s{self.s_tb16}, 2
        s_add_u32 s{self.s_tb16}, s{self.s_tb16}, s{self.c.s_wl}
        s_bfe_u32 s{self.s_t0}, s2, 0x10002
        s_lshl_b32 s{self.s_t0}, s{self.s_t0}, 2
        s_lshr_b32 s{self.s_t1}, s2, 6
        s_add_u32 s{self.s_c}, s{self.s_t0}, s{self.s_t1}""")
    def ld_setup(self):
        k = self.c.k
        k(f"""s_mul_i32 s{self.s_wo}, s{self.c.s_wl}, 8
        s_add_u32 s{self.s_wo}, s{self.s_wo}, s{self.s_c}
        s_mul_i32 s{self.s_wo}, s{self.s_wo}, 5120
        s_add_u32 s{self.s_wo}, s{self.s_wo}, {WOP if self.k3 else WDP}
        s_mul_i32 s{self.s_m0}, s{self.c.s_wl}, 5120""")
    def ld_chunk(self, slot):
        k = self.c.k; c = self.c
        k(f"s_add_u32 m0, s{self.s_m0}, {slot*self.SLOT}\ns_add_u32 s{self.s_t2}, s{self.s_wo}, 4096")
        for i in range(4):
            k(f"buffer_load_dwordx4 v{c.vl16}, {sr(c.sO,4)}, s{self.s_wo} offen offset:{i*1024}{c.lsc} lds")
        k(f"s_add_u32 m0, m0, 4096\ns_add_u32 s{self.s_wo}, s{self.s_wo}, {4*40960}")
        k(f"buffer_load_dwordx4 v{c.vl16}, {sr(c.sO,4)}, s{self.s_t2} offen{c.lsc} lds")
    def ld_main(self, issued, init=True):
        k = self.c.k; NCH = self.NCH
        if init: k(f"s_waitcnt vmcnt({5*(issued-1)})\ns_barrier")
        for ch in range(NCH - 1):
            k(f"s_waitcnt vmcnt({5*max(0, issued-ch-2)})\ns_barrier")
            while issued < NCH and issued < ch + self.NSL and issued <= ch + 1 + self.ahead:
                self.ld_chunk(issued % self.NSL); issued += 1
    def setup(self):
        k = self.c.k; c = self.c; vt = self.vt; vl = c.vl
        for i in range(3):
            k(f"""v_add_u32 v{vt[0]}, {64*i}, v{vl}
            v_mul_u32_u24 v{vt[1]}, 6554, v{vt[0]}
            v_lshrrev_b32 v{vt[1]}, 16, v{vt[1]}
            v_mul_u32_u24 v{vt[1]}, {1280-160}, v{vt[1]}
            v_lshl_add_u32 v{self.vrow[i]}, v{vt[0]}, 4, v{vt[1]}""")
        k(f"""s_mul_i32 s{self.s_t1}, s{self.s_tb16}, {16*1280}
        s_mul_i32 s{self.s_t2}, s{self.s_c}, 160
        s_add_u32 s{self.s_t1}, s{self.s_t1}, s{self.s_t2}
        s_waitcnt lgkmcnt(0)
        s_add_u32 s{self.sX}, s{self.sPX}, s{self.s_t1}
        s_addc_u32 s{self.sX+1}, s{self.sPX+1}, 0
        s_sub_u32 s{self.sX+2}, {2048*1280}, s{self.s_t1}
        s_mov_b32 s{self.sX+3}, 0x20000
        s_mul_i32 s{self.s_xs}, s{c.s_wl}, 3072
        s_add_u32 s{self.s_xs}, s{self.s_xs}, {self.XS}""")
        if self.k3:
            k(f"s_mov_b32 m0, s{self.s_xs}")
            for i in range(3):
                k(f"s_nop 0\nbuffer_load_dwordx4 v{self.vrow[i]}, {sr(self.sX,4)}, 0 offen lds")
                if i < 2: k("s_add_u32 m0, m0, 1024")
        k(f"""v_lshrrev_b32 v{vt[0]}, 4, v{vl}
        v_and_b32 v{vt[1]}, 15, v{vl}
        v_lshlrev_b32 v{vt[2]}, 4, v{vt[1]}
        v_lshl_add_u32 v{self.vH}, v{vt[0]}, 9, v{vt[2]}
        s_lshr_b32 s{self.s_t1}, s{self.s_tb16}, 1
        s_mul_i32 s{self.s_t1}, s{self.s_t1}, 40
        s_mul_i32 s{self.s_t2}, s{self.s_c}, 5
        s_add_u32 s{self.s_t1}, s{self.s_t1}, s{self.s_t2}
        s_lshl_b32 s{self.s_t1}, s{self.s_t1}, 10
        s_and_b32 s{self.s_t2}, s{c.s_w}, 1
        s_lshl_b32 s{self.s_t2}, s{self.s_t2}, 8
        s_add_u32 s{self.s_t1}, s{self.s_t1}, s{self.s_t2}
        s_add_u32 s{self.s_ho}, s{self.s_t1}, {HIMG}
        v_mul_u32_u24 v{vt[1]}, 160, v{vt[1]}
        v_lshl_add_u32 v{vt[1]}, v{vt[0]}, 3, v{vt[1]}
        v_add_u32 v{self.vD}, s{self.s_xs}, v{vt[1]}
        v_mov_b32 v{self.vA[0]}, v{c.vl16}
        v_add_u32 v{self.vA[1]}, {3*self.SLOT}, v{c.vl16}
        v_add_u32 v{self.vA[2]}, {6*self.SLOT}, v{c.vl16}
        s_mul_i32 s{self.s_bo}, s{self.s_tb16}, {self.NU*1024}
        s_add_u32 s{self.s_bo}, s{self.s_bo}, {OIMG if self.k3 else ACT}""")
    def loadB(self, u):
        k = self.c.k; c = self.c
        k(f"buffer_load_dwordx4 {vr(self.fb+4*(u % self.D),4)}, v{c.vl16}, {sr(c.sO,4)}, s{self.s_bo} offen offset:{(u%4)*1024}{c.lsc}")
        if u % 4 == 3: k(f"s_add_u32 s{self.s_bo}, s{self.s_bo}, 4096")
    def rdA(self, u):
        slot = (u // 4) % self.NSL
        return [f"ds_read_b128 {vr(self.fa[u%3]+4*T,4)}, v{self.vA[slot//3]} offset:{(slot%3)*self.SLOT+((u%4)*5+T)*1024}" for T in range(5)]
    def main(self, init=True, resident=False):
        k = self.c.k; c = self.c; NU = self.NU; D = self.D; res = self.res
        order = []
        def resld():
            k(f"""s_add_u32 s{self.s_t1}, s{self.s_ho}, 4096
            buffer_load_dwordx4 {vr(res,4)}, v{self.vH}, {sr(c.sO,4)}, s{self.s_ho} offen{c.lsc}
            buffer_load_dwordx4 {vr(res+4,4)}, v{self.vH}, {sr(c.sO,4)}, s{self.s_ho} offen offset:2048{c.lsc}
            buffer_load_dwordx4 {vr(res+8,4)}, v{self.vH}, {sr(c.sO,4)}, s{self.s_t1} offen{c.lsc}""")
            order.extend('rrr')
        nxt = 0
        for u in range(self.D0):
            self.loadB(u); order.append(u); nxt += 1
        if not c.fused: k.stamp(2)
        if init: k("s_barrier")
        if not c.fused: k.stamp(3)
        for x in self.rdA(0) + self.rdA(1): k(x)
        for u in range(NU):
            rd = []
            if self.bar8:
                if u % 8 == 6 and u < 48: k("s_barrier")
            elif u % 4 == 2 and u // 4 < self.NCH - 1 and not resident: k("s_barrier")
            if u + 2 < NU: rd = self.rdA(u + 2)
            younger = len(order) - 1 - order.index(u)
            if u == NU - 1: younger = 0
            k(f"s_waitcnt vmcnt({younger}) lgkmcnt({5 if u + 1 < NU else 0})")
            if u in getattr(self, 'fine', {}): k.stamp(self.fine[u]); k("s_waitcnt lgkmcnt(0)") if K.STAMP else None
            b = self.fb + 4 * (u % D)
            for T in range(5):
                k(f"{MF} {vr(self.acc+4*T,4)}, {vr(self.fa[u%3]+4*T,4)}, {vr(b,4)}, {'0' if u == 0 else vr(self.acc+4*T,4)}")
                if T < len(rd): k(rd[T])
                if T == 2 and nxt < NU and nxt < u + D:
                    self.loadB(nxt); order.append(nxt); nxt += 1
            if nxt < NU and nxt <= u + D:
                self.loadB(nxt); order.append(nxt); nxt += 1
            if not self.k3 and u == NU - 12: resld()
        if self.k3:
            for T in range(5): k(f"ds_read_b64 {vr(self.fa[0]+2*T,2)}, v{self.vD} offset:{T*32}")
            k("s_waitcnt lgkmcnt(0)")
    def epilogue(self):
        k = self.c.k; c = self.c; t = self.vt; acc = self.acc; res = self.res; sO = c.sO; vH = self.vH; sc = c.sc
        if self.k3:
            k(f"s_mov_b32 s{self.s_cnt}, 0x3f803f80\nv_mov_b32 v{t[0]}, 0\nv_mov_b32 v{t[1]}, 0")
            src = self.fa[0]
        else:
            for p in range(3):
                k(f"v_permlane32_swap_b32 v{res+4*p}, v{res+4*p+2}\nv_permlane32_swap_b32 v{res+4*p+1}, v{res+4*p+3}")
            src = res
        pk = self.fa[1]
        for T in range(5):
            for d in range(2):
                x = src + 2 * T + d; a = acc + 4 * T + 2 * d
                k(f"""v_lshlrev_b32 v{t[2+2*d]}, 16, v{x}
                v_and_b32 v{t[3+2*d]}, 0xffff0000, v{x}
                v_add_f32 v{a}, v{a}, v{t[2+2*d]}
                v_add_f32 v{a+1}, v{a+1}, v{t[3+2*d]}
                v_cvt_pk_bf16_f32 v{pk+2*T+d}, v{a}, v{a+1}""")
        if self.k3:
            for i in range(10):
                k(f"v_dot2c_f32_bf16 v{t[0]}, s{self.s_cnt}, v{pk+i}\nv_dot2c_f32_bf16 v{t[1]}, v{pk+i}, v{pk+i}")
            for p in range(3):
                k(f"v_permlane32_swap_b32 v{pk+4*p}, v{pk+4*p+2}\nv_permlane32_swap_b32 v{pk+4*p+1}, v{pk+4*p+3}")
            k(f"""s_add_u32 s{self.s_t1}, s{self.s_ho}, 4096
            buffer_store_dwordx4 {vr(pk,4)}, v{vH}, {sr(sO,4)}, s{self.s_ho} offen{sc}
            buffer_store_dwordx4 {vr(pk+4,4)}, v{vH}, {sr(sO,4)}, s{self.s_ho} offen offset:2048{sc}
            s_mov_b32 exec_hi, 0
            buffer_store_dwordx4 {vr(pk+8,4)}, v{vH}, {sr(sO,4)}, s{self.s_t1} offen{sc}
            s_mov_b32 exec_hi, -1
            v_mov_b32 v{t[2]}, v{t[0]}
            v_mov_b32 v{t[3]}, v{t[1]}
            v_permlane32_swap_b32 v{t[2]}, v{t[0]}
            v_permlane32_swap_b32 v{t[3]}, v{t[1]}
            v_add_f32 v{t[0]}, v{t[0]}, v{t[2]}
            v_add_f32 v{t[1]}, v{t[1]}, v{t[3]}
            v_mov_b32 v{t[2]}, v{t[0]}
            v_mov_b32 v{t[3]}, v{t[1]}
            v_permlane16_swap_b32 v{t[2]}, v{t[0]}
            v_permlane16_swap_b32 v{t[3]}, v{t[1]}
            v_add_f32 v{acc}, v{t[0]}, v{t[2]}
            v_add_f32 v{acc+1}, v{t[1]}, v{t[3]}
            v_lshlrev_b32 v{t[4]}, 3, v{c.vl}
            s_lshl_b32 s{self.s_t2}, s{self.s_c}, 14
            s_lshl_b32 s{self.s_t0}, s{self.s_tb16}, 7
            s_add_u32 s{self.s_t2}, s{self.s_t2}, s{self.s_t0}
            s_add_u32 s{self.s_t2}, s{self.s_t2}, {STATS}
            s_mov_b64 exec, 0xffff
            buffer_store_dwordx2 {vr(acc,2)}, v{t[4]}, {sr(sO,4)}, s{self.s_t2} offen{sc}
            s_mov_b64 exec, -1""")
        else:
            for T in range(5): k(f"ds_write_b64 v{self.vD}, {vr(pk+2*T,2)} offset:{T*32}")
            k(f"v_add_u32 v{t[0]}, s{self.s_xs}, v{c.vl16}\ns_waitcnt lgkmcnt(0)")
            for i in range(3): k(f"ds_read_b128 {vr(self.fa[0]+4*i,4)}, v{t[0]} offset:{i*1024}")
            for i in range(3):
                k(f"s_waitcnt lgkmcnt({2-i})")
                if i == 2: k("s_mov_b32 exec_hi, 0")
                k(f"buffer_store_dwordx4 {vr(self.fa[0]+4*i,4)}, v{self.vrow[i]}, {sr(self.sX,4)}, 0 offen")
            k("s_mov_b32 exec_hi, -1")

class P4:
    CK, NSL, NCH, SLOT = 4, 5, 10, 28672
    CSB = 5 * 28672
    def __init__(self, c, D=12, D0=None):
        self.c = c; k = c.k; self.D = D; self.D0 = D0 or D; self.lds = self.CSB + 1024
        c.reset()
        (self.s_tb, self.s_g, self.s_t0, self.s_t1, self.s_t2, self.s_bo, self.s_wo, self.s_m0) = [k.s() for _ in range(8)]
        self.vt = [k.v() for _ in range(4)]; self.vA = [k.v() for _ in range(3)]
        self.st = k.v(8, 4); self.par = k.v(6, 2)
        self.acc = [k.v(16, 4) for _ in range(7)]
        self.fa = [k.v(28, 4), k.v(28, 4)]
        self.fb = k.v(4 * D, 4)
    def ids(self):
        k = self.c.k
        k(f"""s_and_b32 s{self.s_t0}, s2, 1
        s_lshl_b32 s{self.s_t0}, s{self.s_t0}, 3
        s_bfe_u32 s{self.s_t1}, s2, 0x30003
        s_add_u32 s{self.s_tb}, s{self.s_t0}, s{self.s_t1}
        s_lshl_b32 s{self.s_tb}, s{self.s_tb}, 2
        s_add_u32 s{self.s_tb}, s{self.s_tb}, s{self.c.s_wl}
        s_bfe_u32 s{self.s_t0}, s2, 0x20001
        s_lshl_b32 s{self.s_t0}, s{self.s_t0}, 2
        s_lshr_b32 s{self.s_t1}, s2, 6
        s_add_u32 s{self.s_g}, s{self.s_t0}, s{self.s_t1}""")
    def ld_setup(self):
        k = self.c.k
        k(f"""s_mul_i32 s{self.s_wo}, s{self.c.s_wl}, 16
        s_add_u32 s{self.s_wo}, s{self.s_wo}, s{self.s_g}
        s_mul_i32 s{self.s_wo}, s{self.s_wo}, 7168
        s_add_u32 s{self.s_wo}, s{self.s_wo}, {WGUP}
        s_mul_i32 s{self.s_m0}, s{self.c.s_wl}, 7168""")
    def ld_chunk(self, slot):
        k = self.c.k; c = self.c
        k(f"s_add_u32 m0, s{self.s_m0}, {slot*self.SLOT}\ns_add_u32 s{self.s_t2}, s{self.s_wo}, 4096")
        for i in range(4):
            k(f"buffer_load_dwordx4 v{c.vl16}, {sr(c.sO,4)}, s{self.s_wo} offen offset:{i*1024}{c.lsc} lds")
        k(f"s_add_u32 m0, m0, 4096\ns_add_u32 s{self.s_wo}, s{self.s_wo}, {4*112*1024}")
        for i in range(3):
            k(f"buffer_load_dwordx4 v{c.vl16}, {sr(c.sO,4)}, s{self.s_t2} offen offset:{i*1024}{c.lsc} lds")
    def ld_cs(self):
        k = self.c.k; c = self.c
        k(f"""s_mul_i32 s{self.s_t2}, s{self.s_g}, 896
        s_mov_b32 m0, {self.CSB}
        s_add_u32 s{self.s_t2}, s{self.s_t2}, {CSG}
        buffer_load_dwordx4 v{c.vl16}, {sr(c.sO,4)}, s{self.s_t2} offen{c.lsc} lds""")
    def ld_main(self, issued, extra, init=True):
        k = self.c.k; NCH = self.NCH
        if init: k(f"s_waitcnt vmcnt({7*(issued-1)+extra})\ns_barrier")
        nw = 0
        for ch in range(NCH - 1):
            k(f"s_waitcnt vmcnt({min(63, 7*max(0, issued-ch-2) + 5*nw)})\ns_barrier")
            while issued < NCH and issued <= ch + self.NSL and issued <= ch + 1 + self.ahead:
                self.ld_chunk(issued % self.NSL); issued += 1
            if self.warm and ch >= 4:
                assert issued == NCH
                if ch == 4: self.warm()
                for j in {4: (0,), 5: (1, 2), 6: (3, 4), 7: (5, 6), 8: ()}[ch]:
                    self.warm_chunk(j); nw += 1
    warm = None
    def setup(self):
        k = self.c.k; c = self.c; vt = self.vt
        k(f"""v_mov_b32 v{self.vA[0]}, v{c.vl16}
        v_add_u32 v{self.vA[1]}, {2*self.SLOT}, v{c.vl16}
        v_add_u32 v{self.vA[2]}, {4*self.SLOT}, v{c.vl16}
        s_mul_i32 s{self.s_bo}, s{self.s_tb}, 40960
        s_add_u32 s{self.s_bo}, s{self.s_bo}, {HIMG}
        v_and_b32 v{vt[0]}, 31, v{c.vl}
        v_lshrrev_b32 v{vt[1]}, 5, v{c.vl}
        v_lshlrev_b32 v{vt[2]}, 3, v{vt[0]}
        v_lshl_add_u32 v{vt[2]}, v{vt[1]}, 16, v{vt[2]}
        s_lshl_b32 s{self.s_t0}, s{self.s_tb}, 8
        s_add_u32 s{self.s_t0}, s{self.s_t0}, {STATS}""")
    def loadB(self, u):
        k = self.c.k; c = self.c
        k(f"buffer_load_dwordx4 {vr(self.fb+4*(u % self.D),4)}, v{c.vl16}, {sr(c.sO,4)}, s{self.s_bo} offen offset:{(u%4)*1024}{c.lsc}")
        if u % 4 == 3: k(f"s_add_u32 s{self.s_bo}, s{self.s_bo}, 4096")
    def rdA(self, u):
        slot = (u // 4) % self.NSL
        return [f"ds_read_b128 {vr(self.fa[u&1]+4*T,4)}, v{self.vA[slot//2]} offset:{(slot%2)*self.SLOT+((u%4)*7+T)*1024}" for T in range(7)]
    def main(self, init=True, endbar=False):
        k = self.c.k; c = self.c; D = self.D; st = self.st
        order = []; nxt = 0
        for u in range(self.D0):
            self.loadB(u); order.append(u); nxt += 1
        if not c.fused: k.stamp(2)
        if init: k("s_barrier")
        if not c.fused: k.stamp(3)
        for x in self.rdA(0): k(x)
        for u in range(40):
            younger = len(order) - 1 - order.index(u)
            if u == 39: younger = 0
            k(f"s_waitcnt vmcnt({younger}) lgkmcnt(0)")
            if u in getattr(self, 'fine', {}): k.stamp(self.fine[u])
            bar = u % 4 == 3 and (u < 39 or endbar)
            rd = self.rdA(u + 1) if u < 39 else []
            b = self.fb + 4 * (u % D)
            r0 = 2 if bar else 0
            for T in range(7):
                k(f"{M16} {vr(self.acc[T],16)}, {vr(self.fa[u&1]+4*T,4)}, {vr(b,4)}, {'0' if u == 0 else vr(self.acc[T],16)}")
                if bar and T == 1: k("s_barrier")
                if T >= r0 - 1 or not bar:
                    j = T - (r0 - 1 if bar else 0)
                    for x in rd[2*j:2*j+2]: k(x)
                if T == 5 and nxt < 40 and nxt < u + D:
                    self.loadB(nxt); order.append(nxt); nxt += 1
            if nxt < 40 and nxt <= u + D:
                self.loadB(nxt); order.append(nxt); nxt += 1
            if u == 20:
                for i in range(4):
                    k(f"buffer_load_dwordx2 {vr(st+2*i,2)}, v{self.vt[2]}, {sr(c.sO,4)}, s{self.s_t0} offen{c.lsc}")
                    if i < 3: k(f"s_add_u32 s{self.s_t0}, s{self.s_t0}, 16384")
                order.extend('ssss')
    def epilogue(self, L_fin):
        k = self.c.k; c = self.c; t = self.vt; st = self.st; par = self.par; vl = c.vl
        k(f"""v_lshrrev_b32 v{t[0]}, 5, v{vl}
        v_lshlrev_b32 v{t[1]}, 4, v{t[0]}
        v_add_u32 v{t[1]}, {self.CSB}, v{t[1]}""")
        cs = [self.fa[0], self.fa[0] + 16, self.fa[0] + 32]; tmp = self.fb
        def rdcs(T):
            for j in range(4): k(f"ds_read_b128 {vr(cs[T%3]+4*j,4)}, v{t[1]} offset:{T*128+32*j}")
        rdcs(0); rdcs(1)
        k(f"""v_add_f32 v{st}, v{st}, v{st+2}
        v_add_f32 v{st+1}, v{st+1}, v{st+3}
        v_add_f32 v{st+4}, v{st+4}, v{st+6}
        v_add_f32 v{st+5}, v{st+5}, v{st+7}
        v_add_f32 v{st}, v{st}, v{st+4}
        v_add_f32 v{st+1}, v{st+1}, v{st+5}
        v_mov_b32 v{st+2}, v{st}
        v_mov_b32 v{st+3}, v{st+1}
        v_bfe_u32 v{t[2]}, v{vl}, 4, 1
        v_mul_u32_u24 v{t[2]}, 55296, v{t[2]}
        v_permlane32_swap_b32 v{st+2}, v{st}
        v_permlane32_swap_b32 v{st+3}, v{st+1}
        v_add_f32 v{st}, v{st}, v{st+2}
        v_add_f32 v{st+1}, v{st+1}, v{st+3}
        v_mul_f32 v{par}, {f2u(-1.0/640):#x}, v{st}
        v_mul_f32 v{st+1}, {f2u(1.0/640):#x}, v{st+1}
        v_fma_f32 v{st+1}, -v{par}, v{par}, v{st+1}
        v_max_f32 v{st+1}, 0, v{st+1}
        v_add_f32 v{par+4}, {f2u(1e-5):#x}, v{st+1}
        v_rsq_f32 v{par+2}, v{par+4}
        v_mov_b32 v{par+1}, v{par}
        v_mov_b32 v{par+5}, v{par+4}
        v_mul_f32 v{par+2}, {f2u(-math.log2(math.e)):#x}, v{par+2}
        v_lshl_add_u32 v{t[2]}, v{t[0]}, 8, v{t[2]}
        v_mov_b32 v{par+3}, v{par+2}
        v_and_b32 v{t[3]}, 15, v{vl}
        v_lshl_add_u32 v{t[2]}, v{t[3]}, 4, v{t[2]}
        s_mul_i32 s{self.s_t0}, s{self.s_tb}, {2*55296}
        s_mul_i32 s{self.s_t1}, s{self.s_g}, 3584
        s_add_u32 s{self.s_t0}, s{self.s_t0}, s{self.s_t1}
        s_add_u32 s{self.s_t0}, s{self.s_t0}, {ACT}""")
        for T in range(7):
            A = self.acc[T]; cc = cs[T % 3]
            if T + 2 < 7: rdcs(T + 2)
            k(f"s_waitcnt lgkmcnt({4*min(2, 6-T)})")
            for p in range(8): k(f"v_pk_fma_f32 {vr(A+2*p,2)}, {vr(cc+2*p,2)}, {vr(par,2)}, {vr(A+2*p,2)}")
            for p in range(4): k(f"v_pk_mul_f32 {vr(tmp+2*p,2)}, {vr(A+2*p,2)}, {vr(par+2,2)}")
            for i in range(8): k(f"v_exp_f32 v{tmp+i}, v{tmp+i}")
            for p in range(4): k(f"v_pk_mul_f32 {vr(A+2*p,2)}, {vr(A+2*p,2)}, {vr(A+8+2*p,2)}")
            for p in range(4): k(f"v_pk_fma_f32 {vr(tmp+2*p,2)}, {vr(tmp+2*p,2)}, {vr(par+4,2)}, {vr(par+4,2)}")
            for i in range(8): k(f"v_rcp_f32 v{tmp+i}, v{tmp+i}")
            for p in range(4): k(f"v_pk_mul_f32 {vr(A+2*p,2)}, {vr(A+2*p,2)}, {vr(tmp+2*p,2)}")
            for p in range(4): k(f"v_cvt_pk_bf16_f32 v{A+8+p}, v{A+2*p}, v{A+2*p+1}")
            k(f"buffer_store_dwordx4 {vr(A+8,4)}, v{t[2]}, {sr(c.sO,4)}, s{self.s_t0} offen offset:{T*512}{c.sc}")
            if T == 2: k(f"s_cmp_eq_u32 s{self.s_g}, 15\ns_cbranch_scc1 {L_fin}")
        k(f"{L_fin}:")

def gen(which, opt):
    if which in '35':
        o = opt('K' + which)
        c = Ctx("k3_oproj_kernel" if which == '3' else "k5_down_kernel", False); k = c.k
        P = P35(c, int(which), D=o.get('D', 12 if which == '5' else 20)); P.ahead = o.get('ahead', 2)
        c.entry(int(which) - 1, P.ptr_load())
        P.ids(); c.ws_srd()
        L = k.label("ld"); lw(c, L)
        P.setup(); P.main(); k.stamp(4); k.stamp(5); P.epilogue(); c.finish()
        k(f"{L}:"); P.ld_setup()
        for ch in range(2): P.ld_chunk(ch)
        P.ld_main(2); k("s_endpgm")
        return k, (256, 512, P.lds)
    if which == '4':
        o = opt('K4')
        c = Ctx("k4_gateup_kernel", False); k = c.k
        P = P4(c, D=o.get('D', 12)); P.ahead = o.get('ahead', 2)
        c.entry(3); P.ids(); c.ws_srd()
        L = k.label("ld"); lw(c, L)
        P.setup(); P.main(); k.stamp(4); k.stamp(5); P.epilogue(k.label("fin")); c.finish()
        k(f"{L}:"); P.ld_setup()
        for ch in range(2): P.ld_chunk(ch)
        P.ld_cs()
        P.ld_main(2, 1); k("s_endpgm")
        return k, (256, 512, P.lds)
    import mega
    return mega.gen(opt)
```

```python
from ph2 import *
NAME = "sequential_preLN__softmax_full_mha__swiglu_ffn__prompt_kernel"

def gen(opt):
    o = opt('M')
    c = Ctx(NAME, True); k = c.k
    sO = c.sO; sWS = c.sWS; s_w = c.s_w; s_wl = c.s_wl; vl = c.vl; vl16 = c.vl16; sc = c.sc
    rot = o.get('rot', True)
    sD = k.s(4)
    s_po = k.s(); s_cs = k.s(); vPA = k.v(); vPS = k.v(); sA = k.s(4); sB = k.s(4); sR = [k.s() for _ in range(5)]
    c.s0 = k.snext; c.v0 = k.vnext
    SLOT = 32768; NS = 4
    SL = 12288; VB = 3 * SL; PREP = 6 * SL
    sP = k.s(4); sX = sA; sW = sB; sQ = k.s(8); sWD = k.s(2); sPC = k.s(2)
    s_tb = k.s(); s_cg = k.s(); s_t0 = k.s(); s_t2 = k.s()
    s_ow, s_m0x, s_slot, s_delta, s_t1 = sR
    s_ox = k.s(); s_cnt = k.s(); s_rs = k.s(); s_msk = k.s()
    vt = [k.v() for _ in range(6)]
    vXA = [k.v() for _ in range(4)]; vWA = [k.v(), k.v()]
    vX = [k.v() for _ in range(4)]; vW = [k.v() for _ in range(4)]
    acc = [[k.v(16, 4) for _ in range(2)] for _ in range(2)]
    fx = [[k.v(4, 4) for _ in range(2)] for _ in range(2)]
    fw = [[k.v(4, 4) for _ in range(2)] for _ in range(2)]
    acs = k.v(16, 4); ones = k.v(4, 4); vpf = k.v(16, 4)
    XCH = NS * SLOT; NM, RS, CS = 0, 512, 1024
    L_spare = k.label("spare"); L_v = k.label("vpath"); L_J0 = k.label("J0"); L_comp = k.label("comp")
    k.kidx = 1; k.stamp_real(0); k.stamp(1)
    k(f"""s_load_dwordx4 {sr(sP,4)}, s[0:1], {KA_X}
    s_load_dwordx4 {sr(sD,4)}, s[0:1], {KA_DBG}
    s_cmp_ge_u32 s2, 256
    s_cbranch_scc1 {c.L_end}
    v_lshrrev_b32 v{vt[0]}, 6, v0
    v_and_b32 v{vl}, 63, v0
    v_readfirstlane_b32 s{s_w}, v{vt[0]}
    s_and_b32 s{s_t0}, s2, 3
    s_lshl_b32 s{s_t0}, s{s_t0}, 2
    s_bfe_u32 s{s_t1}, s2, 0x20003
    s_add_u32 s{s_tb}, s{s_t0}, s{s_t1}
    s_bfe_u32 s{s_t0}, s2, 0x10002
    s_lshl_b32 s{s_t0}, s{s_t0}, 3
    s_lshr_b32 s{s_t1}, s2, 5
    s_add_u32 s{s_cg}, s{s_t0}, s{s_t1}
    s_and_b32 s{s_wl}, s{s_w}, 3
    s_cmp_eq_u32 s{s_cg}, 15
    s_cbranch_scc1 {L_spare}
    s_cmp_ge_u32 s{s_w}, 4
    s_cbranch_scc1 {L_comp}
    v_lshrrev_b32 v{vt[0]}, 3, v{vl}
    v_lshl_add_u32 v{vt[0]}, s{s_w}, 5, v{vt[0]}
    v_mul_u32_u24 v{vt[0]}, 1280, v{vt[0]}
    v_lshrrev_b32 v{vt[1]}, 4, v{vl}
    v_and_b32 v{vt[2]}, 7, v{vl}
    v_xor_b32 v{vt[2]}, v{vt[2]}, v{vt[1]}
    v_lshl_add_u32 v{vX[0]}, v{vt[2]}, 4, v{vt[0]}
    v_xor_b32 v{vX[1]}, 64, v{vX[0]}
    v_add_u32 v{vX[2]}, {2*(8*1280-1024)}, v{vX[0]}
    v_add_u32 v{vX[1]}, {8*1280-1024}, v{vX[1]}
    v_add_u32 v{vX[3]}, {2*(8*1280-1024)}, v{vX[1]}
    v_lshl_add_u32 v{vt[0]}, s{s_w}, 4, v{vt[1]}
    v_mul_u32_u24 v{vt[0]}, 3840, v{vt[0]}
    v_and_b32 v{vt[2]}, 15, v{vl}
    v_lshlrev_b32 v{vt[3]}, 2, v{vt[1]}
    v_xor_b32 v{vt[2]}, v{vt[2]}, v{vt[3]}
    v_lshl_add_u32 v{vW[0]}, v{vt[2]}, 4, v{vt[0]}
    v_add_u32 v{vW[1]}, {4*3840-1024}, v{vW[0]}
    v_add_u32 v{vW[2]}, {2*(4*3840-1024)}, v{vW[0]}
    v_add_u32 v{vW[3]}, {3*(4*3840-1024)}, v{vW[0]}
    s_mul_i32 s{s_t0}, s{s_tb}, {128*1280}
    s_lshl_b32 s{s_t1}, s{s_cg}, 8
    s_lshl_b32 s{s_m0x}, s{s_w}, 12
    s_mov_b32 s{sX+2}, {128*1280}
    s_mov_b32 s{sX+3}, 0x20000
    s_sub_u32 s{sW+2}, {640*3840}, s{s_t1}
    s_mov_b32 s{sW+3}, 0x20000""")
    if rot: k(f"s_and_b32 s{s_t2}, s2, 7\ns_lshl_b32 s{s_ox}, s{s_t2}, 7\ns_mul_i32 s{s_ow}, s{s_t2}, {64*3840}")
    else: k(f"s_mov_b32 s{s_ox}, 0\ns_mov_b32 s{s_ow}, 0")
    k(f"""s_waitcnt lgkmcnt(0)
    s_add_u32 s{sX}, s{sP}, s{s_t0}
    s_addc_u32 s{sX+1}, s{sP+1}, 0
    s_add_u32 s{sW}, s{sP+2}, s{s_t1}
    s_addc_u32 s{sW+1}, s{sP+3}, 0""")
    def dma_chunk(slot_const=None):
        if slot_const is not None: k(f"s_add_u32 m0, s{s_m0x}, {slot_const*SLOT}")
        else: k(f"s_add_u32 m0, s{s_m0x}, s{s_rs}")
        k(f"s_add_u32 s{s_t0}, s{s_ox}, 128")
        for i in range(4):
            k(f"buffer_load_dwordx4 v{vX[i]}, {sr(sX,4)}, s{s_ox} offen offset:{i*1024} lds")
        k(f"s_add_u32 m0, m0, 16384\ns_add_u32 s{s_t1}, s{s_ow}, {64*3840}")
        for i in range(4):
            k(f"buffer_load_dwordx4 v{vW[i]}, {sr(sW,4)}, s{s_ow} offen offset:{i*1024} lds")
        k(f"s_cmp_eq_u32 s{s_t0}, 1280\ns_cselect_b32 s{s_ox}, 0, s{s_t0}\ns_cselect_b32 s{s_ow}, 0, s{s_t1}")
    def common_setup():
        k(f"""s_mov_b64 {sr(sWS,2)}, {sr(sD+2,2)}
        s_movk_i32 s{sD+2}, 256
        s_mov_b32 s{sD+3}, 0x20000
        v_lshlrev_b32 v{vl16}, 4, v{vl}""")
        srd(k, sO, sWS, sWS + 1, WSEND)
        k(f"s_load_dwordx8 {sr(sQ,8)}, s[0:1], {KA_WO}\ns_load_dwordx2 {sr(sWD,2)}, s[0:1], {KA_WD}")
    def xaddr():
        k(f"""v_and_b32 v{vt[0]}, 31, v{vl}
        v_lshrrev_b32 v{vt[1]}, 5, v{vl}
        v_bfe_u32 v{vt[2]}, v{vl}, 1, 3
        v_xor_b32 v{vt[2]}, v{vt[2]}, v{vt[1]}
        v_lshlrev_b32 v{vt[2]}, 4, v{vt[2]}
        v_lshl_add_u32 v{vt[2]}, v{vt[0]}, 7, v{vt[2]}""")
    def advance(regs):
        k(f"s_cmp_eq_u32 s{s_slot}, {(NS-1)*SLOT}\ns_mov_b32 s{s_delta}, {SLOT}")
        k(f"s_cselect_b32 s{s_delta}, {(-(NS-1)*SLOT) & 0xffffffff}, s{s_delta}")
        k(f"s_add_u32 s{s_slot}, s{s_slot}, s{s_delta}")
        return [f"v_add_u32 v{r}, s{s_delta}, v{r}" for r in regs]
    def prep_decode(loads):
        pid, cb, st = s_t0, s_t2, s_ox
        R0, A_, B_, C_, u = sR
        Ld = k.label("pd"); Lg = k.label("pg")
        k(f"""s_lshl_b32 s{pid}, s2, 2
        s_add_u32 s{pid}, s{pid}, s{s_wl}
        s_mov_b32 s{B_}, 8
        s_mov_b32 s{C_}, 4
        v_bfe_u32 v{vt[2]}, v{vl}, 4, 1
        v_lshrrev_b32 v{vt[1]}, 5, v{vl}
        s_waitcnt lgkmcnt(0)
        s_cmp_ge_u32 s{pid}, 560
        s_cbranch_scc1 {Ld}
        s_mul_i32 s{u}, s{pid}, 4682
        s_lshr_b32 s{u}, s{u}, 16
        s_mul_i32 s{cb}, s{u}, 14
        s_sub_u32 s{cb}, s{pid}, s{cb}
        s_mul_i32 s{s_po}, s{u}, {112*1024}
        s_add_u32 s{s_po}, s{s_po}, {WGUP}
        s_mov_b32 s{s_cs}, {CSG}
        v_lshlrev_b32 v{vt[2]}, 11, v{vt[2]}
        v_lshl_add_u32 v{vt[3]}, v{vt[1]}, 9, v{vt[2]}""")
        if loads:
            k(f"""s_lshl_b32 s{R0}, s{u}, 4
            s_mov_b32 s{A_}, 0
            s_movk_i32 s{st}, 3456
            s_mov_b64 {sr(sA,2)}, {sr(sQ+4,2)}
            s_mov_b64 {sr(sB,2)}, {sr(sQ+6,2)}
            s_mov_b32 s{sA+2}, {640*3456}""")
        k(f"""s_branch {Lg}
        {Ld}:
        s_min_u32 s{pid}, s{pid}, 929
        s_cmp_lt_u32 s{pid}, 830
        s_movk_i32 s{cb}, 830
        s_cselect_b32 s{cb}, 560, s{cb}
        s_mov_b32 s{s_po}, {WOP}
        s_cselect_b32 s{s_po}, {WDP}, s{s_po}""")
        if loads:
            k(f"""s_cselect_b64 {sr(sA,2)}, {sr(sWD,2)}, {sr(sQ,2)}
            s_cselect_b32 s{A_}, 16, 20
            s_cselect_b32 s{R0}, 32, 40
            s_mov_b32 s{sA+2}, {640*1280}
            s_cselect_b32 s{sA+2}, {1728*1280}, s{sA+2}""")
        k(f"""s_sub_u32 s{cb}, s{pid}, s{cb}
        s_mul_i32 s{u}, s{cb}, 13108
        s_lshr_b32 s{u}, s{u}, 16
        s_mul_i32 s{st}, s{u}, 5
        s_sub_u32 s{cb}, s{cb}, s{st}
        s_mul_i32 s{st}, s{u}, {40*1024}
        s_add_u32 s{s_po}, s{s_po}, s{st}
        s_mov_b32 s{s_cs}, {WSEND}
        v_lshlrev_b32 v{vt[2]}, 9, v{vt[2]}
        v_lshl_add_u32 v{vt[3]}, v{vt[1]}, 11, v{vt[2]}""")
        if loads:
            k(f"""s_mul_i32 s{R0}, s{R0}, s{u}
            s_mul_i32 s{st}, s{u}, 160
            s_sub_u32 s{st}, s{st}, {16*160-16}
            s_cmp_ge_u32 s{pid}, 910
            s_cselect_b32 s{R0}, s{st}, s{R0}
            s_cselect_b32 s{A_}, 80, s{A_}
            s_cselect_b32 s{B_}, 20, 8
            s_cselect_b32 s{C_}, 40, 4
            s_movk_i32 s{st}, 1280
            s_mov_b64 {sr(sB,2)}, {sr(sA,2)}""")
        k(f"""{Lg}:
        s_lshl_b32 s{cb}, s{cb}, 1
        s_lshr_b32 s{pid}, s{s_w}, 2
        s_add_u32 s{pid}, s{pid}, s{cb}
        s_lshl_b32 s{u}, s{pid}, 12
        s_add_u32 s{s_po}, s{s_po}, s{u}
        s_lshl_b32 s{u}, s{pid}, 9
        s_add_u32 s{s_cs}, s{s_cs}, s{u}
        v_bfe_u32 v{vt[2]}, v{vl}, 2, 2
        v_lshl_add_u32 v{vt[3]}, v{vt[2]}, 7, v{vt[3]}
        v_and_b32 v{vt[2]}, 3, v{vl}
        v_lshl_add_u32 v{vt[3]}, v{vt[2]}, 3, v{vt[3]}
        s_lshl_b32 s{u}, s{s_w}, 12
        s_add_u32 s{u}, s{u}, {PREP}
        v_add_u32 v{vPA}, s{u}, v{vt[3]}""")
        if loads:
            k(f"""s_mov_b32 s{sB+2}, s{sA+2}
            s_mov_b32 s{sA+3}, 0x20000
            s_mov_b32 s{sB+3}, 0x20000
            v_mul_u32_u24 v{vt[2]}, s{C_}, v{vt[1]}
            v_bfe_u32 v{vt[3]}, v{vl}, 3, 2
            v_add_u32 v{vt[2]}, v{vt[2]}, v{vt[3]}
            v_mul_u32_u24 v{vt[2]}, s{st}, v{vt[2]}
            v_and_b32 v{vt[3]}, 7, v{vl}
            v_lshl_add_u32 v{vPS}, v{vt[3]}, 4, v{vt[2]}
            s_mul_i32 s{R0}, s{R0}, s{st}
            s_lshl_b32 s{cb}, s{pid}, 7
            s_add_u32 s{R0}, s{R0}, s{cb}
            s_mul_i32 s{A_}, s{A_}, s{st}
            s_mul_i32 s{B_}, s{B_}, s{st}
            s_add_u32 s{A_}, s{A_}, s{R0}
            s_add_u32 s{C_}, s{A_}, s{B_}
            s_add_u32 s{B_}, s{B_}, s{R0}""")
    dma_chunk(0); dma_chunk(1)
    common_setup()
    k(f"""s_mov_b32 s{s_rs}, {3*SLOT}
    s_waitcnt vmcnt(8)
    s_barrier""")
    k.stamp(2)
    dma_chunk(2)
    L = k.label("hloop"); Lz = k.label("hz"); Lzx = k.label("hzx"); Lnz = k.label("hnz")
    k(f"s_mov_b32 s{s_cnt}, 7\n{L}:\ns_waitcnt vmcnt(8)\ns_barrier")
    dma_chunk()
    k(f"""s_add_u32 s{s_rs}, s{s_rs}, {SLOT}
    s_and_b32 s{s_rs}, s{s_rs}, {NS*SLOT-1}
    s_sub_u32 s{s_cnt}, s{s_cnt}, 1
    s_cmp_lg_u32 s{s_cnt}, 0
    s_cbranch_scc1 {L}
    v_and_b32 v{vt[3]}, 15, v{vl}
    v_lshlrev_b32 v{vt[3]}, 4, v{vt[3]}
    buffer_load_dword v{vt[4]}, v{vt[3]}, {sr(sD,4)}, 0 offen sc1
    s_waitcnt vmcnt(9)
    s_barrier
    s_waitcnt vmcnt(1)
    s_barrier
    s_cmp_lg_u32 s{s_w}, 0
    s_cbranch_scc1 {Lnz}
    s_mov_b32 s{s_t1}, 0
    {Lz}:
    s_waitcnt vmcnt(0)
    v_cmp_ne_u32 vcc, 0, v{vt[4]}
    s_add_u32 s{s_t1}, s{s_t1}, 1
    s_cmp_eq_u64 vcc, -1
    s_cbranch_scc1 {Lzx}
    s_cmp_gt_u32 s{s_t1}, 0x40000
    s_cbranch_scc1 {Lzx}
    buffer_load_dword v{vt[4]}, v{vt[3]}, {sr(sD,4)}, 0 offen sc1
    s_branch {Lz}
    {Lzx}:
    s_mov_b32 m0, {XCH}
    s_lshl_b32 s{s_t0}, s{s_tb}, 10
    s_add_u32 s{s_t0}, s{s_t0}, {LN1}
    buffer_load_dwordx4 v{vl16}, {sr(sO,4)}, s{s_t0} offen sc1 lds
    {Lnz}:
    s_waitcnt vmcnt(0)""")
    k.stamp(3)
    k(f"s_barrier\ns_branch {L_J0}")
    k(f"""{L_comp}:
    s_getpc_b64 {sr(sPC,2)}
    L_pf_here:
    s_lshr_b32 s{s_t0}, s2, 3
    s_lshl_b32 s{s_t0}, s{s_t0}, 2
    s_add_u32 s{s_t0}, s{s_t0}, s{s_wl}
    s_lshl_b32 s{s_t0}, s{s_t0}, 10
    s_sub_u32 s{sPC}, s{sPC}, L_pf_here - {NAME}
    s_subb_u32 s{sPC+1}, s{sPC+1}, 0
    s_cmp_gt_u32 s{s_t0}, L_code_end - {NAME} - 1024
    s_cbranch_scc1 L_pf_skip
    v_lshl_add_u32 v{vt[0]}, v{vl}, 4, s{s_t0}
    global_load_dwordx4 {vr(vpf,4)}, v{vt[0]}, {sr(sPC,2)}
    L_pf_skip:
    s_waitcnt lgkmcnt(0)""")
    if o.get('spf'):
        k(f"""s_mov_b64 {sr(sX,2)}, {sr(sP,2)}
        s_mov_b32 s{sX+2}, {2048*1280}
        s_mov_b32 s{sX+3}, 0x20000
        s_mov_b64 {sr(sW,2)}, {sr(sP+2,2)}
        s_mov_b32 s{sW+2}, {640*3840}
        s_mov_b32 s{sW+3}, 0x20000
        s_mul_i32 s{s_t0}, s{s_tb}, 15
        s_add_u32 s{s_t0}, s{s_t0}, s{s_cg}
        s_lshl_b32 s{s_t0}, s{s_t0}, 2
        s_add_u32 s{s_t0}, s{s_t0}, s{s_wl}
        s_mul_i32 s{s_t0}, s{s_t0}, 3072
        v_lshlrev_b32 v{vt[0]}, 4, v{vl}""")
        for i in range(3):
            if o['spf'] & 1: k(f"buffer_load_dwordx4 {vr(vpf+4+4*i,4)}, v{vt[0]}, {sr(sX,4)}, s{s_t0} offen offset:{1024*i}")
            if o['spf'] & 2: k(f"buffer_load_dwordx4 {vr(vpf+4+4*i,4)}, v{vt[0]}, {sr(sW,4)}, s{s_t0} offen offset:{1024*i}")
    common_setup()
    xaddr()
    k(f"""s_lshr_b32 s{s_t0}, s{s_wl}, 1
    s_and_b32 s{s_t1}, s{s_wl}, 1
    s_lshl_b32 s{s_t2}, s{s_t0}, 13
    v_add_u32 v{vXA[0]}, s{s_t2}, v{vt[2]}""")
    for s in range(1, 4): k(f"v_xor_b32 v{vXA[s]}, {32*s}, v{vXA[0]}")
    k(f"""v_bfe_u32 v{vt[2]}, v{vl}, 2, 2
    v_lshl_add_u32 v{vt[3]}, v{vt[1]}, 3, v{vt[2]}
    v_lshlrev_b32 v{vt[3]}, 8, v{vt[3]}
    s_lshl_b32 s{s_t2}, s{s_t1}, 1
    s_add_u32 s{s_t2}, s{s_t2}, s{s_t0}
    v_xor_b32 v{vt[2]}, s{s_t2}, v{vt[2]}
    v_lshl_add_u32 v{vt[3]}, v{vt[2]}, 6, v{vt[3]}
    v_bfe_u32 v{vt[2]}, v{vl}, 4, 1
    v_lshl_add_u32 v{vt[3]}, v{vt[2]}, 5, v{vt[3]}
    v_and_b32 v{vt[2]}, 3, v{vl}
    v_lshl_add_u32 v{vt[3]}, v{vt[2]}, 3, v{vt[3]}
    v_add_u32 v{vWA[0]}, 16384, v{vt[3]}
    v_xor_b32 v{vWA[1]}, 64, v{vWA[0]}
    s_mov_b32 s{s_slot}, 0""")
    for i in range(4): k(f"v_mov_b32 v{ones+i}, 0x3f803f80")
    def reads(buf, s):
        out = []
        for mt in range(2):
            out.append(f"ds_read_b128 {vr(fx[buf][mt],4)}, v{vXA[s]} offset:{mt*4096}")
        for nt in range(2):
            for rd in range(2):
                out.append(f"ds_read_b64_tr_b16 {vr(fw[buf][nt]+2*rd,2)}, v{vWA[nt]} offset:{(16*s+4*rd)*256}")
        return [out[2], out[3], out[0], out[1], out[4], out[5]]
    def mfmas(buf, vpath, first):
        m = []
        for nt in range(2):
            for mt in range(2):
                a, b = (fx[buf][mt], fw[buf][nt]) if vpath else (fw[buf][nt], fx[buf][mt])
                m.append(f"{M16} {vr(acc[nt][mt],16)}, {vr(a,4)}, {vr(b,4)}, {'0' if first else vr(acc[nt][mt],16)}")
        m.append(f"{M16} {vr(acs,16)}, {vr(ones,4)}, {vr(fw[buf][0],4)}, {'0' if first else vr(acs,16)}")
        return m
    def chunk(vpath, last, first=False):
        for s in range(3):
            k("s_waitcnt lgkmcnt(0)")
            m = mfmas(s & 1, vpath, first and s == 0); rd = reads((s + 1) & 1, s + 1)
            ad = []
            if not last and s == 0: ad = [None]
            for i in range(5):
                k(m[i])
                for x in rd[2*i:2*i+2]: k(x)
                if i == 3 and not last:
                    if s == 0: adv[:] = advance([vXA[0], vXA[1], vXA[2], vXA[3], vWA[0], vWA[1]])
                    k(adv[s])
        k("s_waitcnt lgkmcnt(0)")
        m = mfmas(1, vpath, False)
        if last:
            for x in m: k(x)
            return
        k(m[0])
        for x in adv[3:]: k(x)
        k(m[1])
        k("s_barrier")
        rd = reads(0, 0)
        for x in rd[:3]: k(x)
        k(m[2])
        for x in rd[3:]: k(x)
        k(m[3]); k(m[4])
    adv = []
    def mainloop(vpath):
        k("s_barrier")
        k.stamp(2)
        for x in reads(0, 0): k(x)
        chunk(vpath, False, first=True)
        L = k.label("loop")
        k(f"s_mov_b32 s{s_cnt}, 8\n{L}:")
        chunk(vpath, False)
        k(f"s_sub_u32 s{s_cnt}, s{s_cnt}, 1\ns_cmp_lg_u32 s{s_cnt}, 0\ns_cbranch_scc1 {L}")
        chunk(vpath, True)
        k.stamp(3)
    def epilogue(vpath):
        t = vt
        la = fx[0][0]; rg = k.v(32, 4); hoff = t[3]
        k(f"""v_and_b32 v{t[0]}, 31, v{vl}
        s_lshl_b32 s{s_t2}, s{s_t2}, 7
        s_add_u32 s{s_ox}, s{s_t2}, {XCH}
        v_lshl_add_u32 v{t[2]}, v{t[0]}, 2, s{s_ox}
        s_lshl_b32 s{s_ow}, s{s_t0}, 8
        s_add_u32 s{s_ow}, s{s_ow}, {XCH}
        v_lshl_add_u32 v{t[1]}, v{t[0]}, 2, s{s_ow}
        v_lshrrev_b32 v{hoff}, 5, v{vl}
        v_lshlrev_b32 v{hoff}, 4, v{hoff}
        s_cmp_lt_u32 s{s_cg}, 5
        s_cselect_b32 s{s_cnt}, {f2u(QSCALE):#x}, 1.0
        ds_write_b32 v{t[2]}, v{acs} offset:{CS}
        s_waitcnt lgkmcnt(0)
        s_barrier""")
        if not vpath:
            k(f"""ds_read_b32 v{la+0}, v{t[1]} offset:{NM}
            ds_read_b32 v{la+2}, v{t[1]} offset:{RS}
            ds_read_b32 v{la+4}, v{t[1]} offset:{NM+128}
            ds_read_b32 v{la+6}, v{t[1]} offset:{RS+128}
            v_add_u32 v{t[5]}, s{s_ox}, v{hoff}
            v_xor_b32 v{t[4]}, 128, v{t[5]}""")
            for nt in range(2):
                for j in range(4):
                    k(f"ds_read_b128 {vr(rg+16*nt+4*j,4)}, v{t[5] if nt==0 else t[4]} offset:{CS+32*j}")
            k(f"""v_lshlrev_b32 v{t[0]}, 4, v{t[0]}
            v_lshl_add_u32 v{t[0]}, v{hoff}, 11, v{t[0]}
            s_lshl_b32 s{s_ox}, s{s_cg}, 19
            s_lshl_b32 s{s_ow}, s{s_t2}, 10
            s_add_u32 s{s_ox}, s{s_ox}, s{s_ow}
            s_lshl_b32 s{s_ow}, s{s_tb}, 11
            s_add_u32 s{s_ox}, s{s_ox}, s{s_ow}
            s_lshl_b32 s{s_ow}, s{s_t0}, 10
            s_add_u32 s{s_ox}, s{s_ox}, s{s_ow}
            s_waitcnt lgkmcnt(4)
            v_mov_b32 v{la+1}, v{la+0}
            v_mul_f32 v{la+3}, s{s_cnt}, v{la+2}
            v_mul_f32 v{la+2}, s{s_cnt}, v{la+2}
            v_mov_b32 v{la+5}, v{la+4}
            v_mul_f32 v{la+7}, s{s_cnt}, v{la+6}
            v_mul_f32 v{la+6}, s{s_cnt}, v{la+6}""")
            for nt in range(2):
                if nt == 1: k("s_waitcnt lgkmcnt(0)")
                for mt in range(2):
                    A = acc[nt][mt]
                    for p in range(8):
                        k(f"v_pk_fma_f32 {vr(A+2*p,2)}, {vr(rg+16*nt+2*p,2)}, {vr(la+4*mt,2)}, {vr(A+2*p,2)}")
                    for p in range(8):
                        k(f"v_pk_mul_f32 {vr(A+2*p,2)}, {vr(A+2*p,2)}, {vr(la+4*mt+2,2)}")
                    for p in range(8):
                        k(f"v_cvt_pk_bf16_f32 v{A+p}, v{A+2*p}, v{A+2*p+1}")
                    k(f"s_xor_b32 s{s_ow}, s{s_ox}, {(nt*4*32768) | (mt*512)}")
                    k(f"s_add_u32 s{s_rs}, s{s_ow}, {2*32768}")
                    for jp in range(2):
                        k(f"v_permlane32_swap_b32 v{A+4*jp}, v{A+4*jp+2}\nv_permlane32_swap_b32 v{A+4*jp+1}, v{A+4*jp+3}")
                    k(f"buffer_store_dwordx4 {vr(A,4)}, v{t[0]}, {sr(sO,4)}, s{s_ow} offen{sc}")
                    k(f"buffer_store_dwordx4 {vr(A+4,4)}, v{t[0]}, {sr(sO,4)}, s{s_rs} offen{sc}")
        else:
            rg2 = k.v(32, 4)
            k(f"""v_xor_b32 v{t[4]}, 128, v{t[2]}
            ds_read_b32 v{la+2}, v{t[4]} offset:{CS}
            v_add_u32 v{t[5]}, s{s_ow}, v{hoff}""")
            for mt in range(2):
                for j in range(4):
                    k(f"ds_read_b128 {vr(rg+16*mt+4*j,4)}, v{t[5]} offset:{NM+128*mt+32*j}")
                    k(f"ds_read_b128 {vr(rg2+16*mt+4*j,4)}, v{t[5]} offset:{RS+128*mt+32*j}")
            va = [la + 4, la + 5]
            k(f"""s_sub_u32 s{s_ox}, s{s_cg}, 10
            s_lshl_b32 s{s_ox}, s{s_ox}, 7
            s_lshr_b32 s{s_ow}, s{s_t2}, 2
            s_add_u32 s{s_ox}, s{s_ox}, s{s_ow}
            v_add_u32 v{t[0]}, s{s_ox}, v{t[0]}
            v_mul_u32_u24 v{hoff}, 21, v{hoff}""")
            for nt in range(2):
                if nt == 1: k(f"v_xor_b32 v{t[0]}, 32, v{t[0]}")
                k(f"""v_mul_u32_u24 v{t[1]}, 3277, v{t[0]}
                v_lshrrev_b32 v{t[1]}, 16, v{t[1]}
                v_mul_u32_u24 v{t[2]}, {VHEAD - 320}, v{t[1]}
                v_lshl_add_u32 v{t[2]}, v{t[0]}, 4, v{t[2]}
                v_add_u32 v{va[nt]}, v{t[2]}, v{hoff}""")
            k(f"""s_lshl_b32 s{s_ox}, s{s_tb}, 1
            s_add_u32 s{s_ox}, s{s_ox}, s{s_t0}
            s_mul_i32 s{s_ox}, s{s_ox}, 2688
            s_add_u32 s{s_ox}, s{s_ox}, {VIMG}
            v_mov_b32 v{la+0}, v{acs}
            v_mov_b32 v{la+1}, v{acs}
            s_waitcnt lgkmcnt(8)
            v_mov_b32 v{la+3}, v{la+2}""")
            for mt in range(2):
                if mt == 1: k("s_waitcnt lgkmcnt(0)")
                for nt in range(2):
                    A = acc[nt][mt]
                    for p in range(8):
                        k(f"v_pk_fma_f32 {vr(A+2*p,2)}, {vr(rg+16*mt+2*p,2)}, {vr(la+2*nt,2)}, {vr(A+2*p,2)}")
                    for p in range(8):
                        k(f"v_pk_mul_f32 {vr(A+2*p,2)}, {vr(A+2*p,2)}, {vr(rg2+16*mt+2*p,2)}")
                    for p in range(8):
                        k(f"v_cvt_pk_bf16_f32 v{A+p}, v{A+2*p}, v{A+2*p+1}")
                    k(f"buffer_store_dwordx4 {vr(A,4)}, v{va[nt]}, {sr(sO,4)}, s{s_ox} offen offset:{1344*mt}{sc}")
                    k(f"buffer_store_dwordx4 {vr(A+4,4)}, v{va[nt]}, {sr(sO,4)}, s{s_ox} offen offset:{1344*mt+672}{sc}")
    k(f"s_cmp_ge_u32 s{s_cg}, 10\ns_cbranch_scc1 {L_v}")
    vsave = k.vnext
    mainloop(False); epilogue(False); k(f"s_branch {L_J0}")
    k.vnext = vsave
    k(f"{L_v}:")
    mainloop(True); epilogue(True)
    k(f"{L_J0}:\ns_setprio 0")
    k.stamp(4)
    prep_decode(True)
    k(f"""s_lshl_b32 s{c.s_f}, s{s_cg}, 5
    s_add_u32 s{c.s_f}, s{c.s_f}, s{s_tb}
    s_lshl_b32 s{c.s_f}, s{c.s_f}, {FL}
    s_add_u32 s{c.s_f}, s{c.s_f}, {F1}""")
    def spare():
        o4 = acs; xb = acc[0][0]; sm = [fw[0][0], fw[0][0] + 1]; sq = [fw[0][0] + 2, fw[0][0] + 3]
        k(f"""{L_spare}:
        v_lshrrev_b32 v{vt[0]}, 3, v{vl}
        v_lshl_add_u32 v{vt[0]}, s{s_w}, 4, v{vt[0]}
        v_mul_u32_u24 v{vt[0]}, 1280, v{vt[0]}
        v_and_b32 v{vt[2]}, 7, v{vl}
        v_lshl_add_u32 v{vX[0]}, v{vt[2]}, 4, v{vt[0]}
        v_add_u32 v{vX[1]}, {8*1280}, v{vX[0]}
        s_mul_i32 s{s_t0}, s{s_tb}, {128*1280}
        s_mov_b32 s{sX+2}, {128*1280}
        s_mov_b32 s{sX+3}, 0x20000
        s_waitcnt lgkmcnt(0)
        s_add_u32 s{sX}, s{sP}, s{s_t0}
        s_addc_u32 s{sX+1}, s{sP+1}, 0""")
        for g in range(2):
            for i in range(10): k(f"buffer_load_dwordx4 {vr(xb+40*g+4*i,4)}, v{vX[g]}, {sr(sX,4)}, 0 offen offset:{128*i}")
        common_setup()
        srd(k, sW, sWS, sWS + 1, CSG + ZERO_BYTES)
        o4 = xb + 80
        k(f"""s_lshl_b32 s{s_t0}, s{s_tb}, 1
        s_mul_i32 s{s_t0}, s{s_t0}, {VHEAD}
        s_add_u32 s{s_t0}, s{s_t0}, {VIMG + 320}
        v_mul_u32_u24 v{vt[0]}, 336, v0
        v_lshlrev_b32 v{vt[1]}, 4, v0
        s_lshl_b32 s{s_t1}, s{s_tb}, 13
        s_add_u32 s{s_t1}, s{s_t1}, {CSG}
        s_mov_b32 s{s_msk}, 0x3f803f80""")
        for i in range(4): k(f"v_mov_b32 v{o4+i}, 0x3f803f80\nv_mov_b32 v{o4+4+i}, 0")
        nz = (ZERO_BYTES + 131071) // 131072
        for z in range(nz):
            k(f"buffer_store_dwordx4 {vr(o4+4,4)}, v{vt[1]}, {sr(sW,4)}, s{s_t1} offen{sc}\ns_add_u32 s{s_t1}, s{s_t1}, 131072")
        k(f"buffer_store_dwordx4 {vr(o4,4)}, v{vt[0]}, {sr(sO,4)}, s{s_t0} offen{sc}")
        st = o4 + 8
        for i in range(4): k(f"v_mov_b32 v{st+i}, 0")
        for g in range(2):
            for i in range(10):
                k(f"s_waitcnt vmcnt({19 - 10*g - i + nz + 1})")
                for j in range(4):
                    x = xb + 40 * g + 4 * i + j
                    k(f"v_dot2c_f32_bf16 v{st+2*g}, s{s_msk}, v{x}\nv_dot2c_f32_bf16 v{st+2*g+1}, v{x}, v{x}")
        for ctl in ("quad_perm:[1,0,3,2]", "quad_perm:[2,3,0,1]", "row_half_mirror"):
            for i in range(4): k(f"v_add_f32_dpp v{st+i}, v{st+i}, v{st+i} {ctl} row_mask:0xf bank_mask:0xf")
        Ln = k.label("sn")
        k(f"""v_and_b32 v{vt[2]}, 1, v{vl}
        v_cmp_eq_u32 vcc, 1, v{vt[2]}
        v_lshrrev_b32 v{vt[3]}, 3, v{vl}
        v_lshl_add_u32 v{vt[3]}, v{vt[2]}, 3, v{vt[3]}
        v_cndmask_b32 v{st}, v{st}, v{st+2}, vcc
        v_cndmask_b32 v{st+1}, v{st+1}, v{st+3}, vcc
        v_lshlrev_b32 v{vt[3]}, 2, v{vt[3]}
        v_mul_f32 v{st}, {f2u(-1.0/640):#x}, v{st}
        v_mul_f32 v{st+1}, {f2u(1.0/640):#x}, v{st+1}
        v_fma_f32 v{st+1}, -v{st}, v{st}, v{st+1}
        v_max_f32 v{st+1}, 0, v{st+1}
        v_add_f32 v{st+1}, {f2u(1e-5):#x}, v{st+1}
        v_rsq_f32 v{st+1}, v{st+1}
        s_lshl_b32 s{s_t0}, s{s_tb}, 10
        s_lshl_b32 s{s_t1}, s{s_w}, 6
        s_add_u32 s{s_t0}, s{s_t0}, s{s_t1}
        s_add_u32 s{s_t0}, s{s_t0}, {LN1}
        s_mov_b32 exec_lo, 0x03030303
        s_mov_b32 exec_hi, 0x03030303
        buffer_store_dword v{st}, v{vt[3]}, {sr(sO,4)}, s{s_t0} offen{sc}
        buffer_store_dword v{st+1}, v{vt[3]}, {sr(sO,4)}, s{s_t0} offen offset:512{sc}
        s_mov_b64 exec, -1
        s_waitcnt vmcnt(0)
        s_barrier
        s_cmp_lg_u32 s{s_w}, 4
        s_cbranch_scc1 {Ln}
        s_lshl_b32 s{s_t0}, s{s_tb}, 4
        v_mov_b32 v{vt[2]}, 1
        v_mov_b32 v{vt[3]}, 0
        s_mov_b64 exec, 1
        buffer_store_dword v{vt[2]}, v{vt[3]}, {sr(sD,4)}, s{s_t0} offen sc1
        s_mov_b64 exec, -1
        {Ln}:""")
        k.stamp(2); k.stamp(3)
        k(f"s_branch {L_J0}")
    def deferred(fn):
        n = len(k.lines); fn(); out = k.lines[n:]; del k.lines[n:]; return out
    spare_code = deferred(spare)
    c.reset()
    prio = o.get('prio', (18, 6, 3, 1))
    s_h = k.s(); s_pa = k.s(); s_pr = k.s(); s_odd8 = k.s(); s_tok = k.s()
    s_t0 = k.s(); s_t1 = k.s(); s_t2 = k.s(); s_t3 = k.s()
    so = [k.s() for _ in range(3)]; s_d = k.s(); s_mo = k.s(); s_ms = k.s(); s_q1 = k.s(); s_q2 = k.s()
    sG = k.s(2); sE = k.s(2)
    vq = k.v(); vr31 = k.v(); vKA = k.v(); vKR = k.v(); vVA = k.v(); vqr = k.v()
    vt = [k.v() for _ in range(6)]
    S = [k.v(32, 4), k.v(32, 4)]; O = k.v(16, 4); OY = k.v(16, 4); P = k.v(8, 4)
    Qm = k.v(4, 4); QmY = k.v(4, 4); Qr = k.v(2); Km = k.v(4, 4); Kr = k.v(2); V0 = k.v(4, 4); V1 = [k.v(4, 4), k.v(4, 4)]
    PR = k.v(16, 4); C = S[1]; vcs = k.v(4, 2); vca = k.v(); vfp = k.v(4, 4)
    L_slow = k.label("slow"); L_store = k.label("store")
    k(f"""s_and_b32 s{s_t0}, s2, 7
    s_lshl_b32 s{s_t0}, s{s_t0}, 2
    s_bfe_u32 s{s_t1}, s2, 0x20003
    s_add_u32 s{s_h}, s{s_t0}, s{s_t1}
    s_lshr_b32 s{s_q1}, s{s_h}, 1
    s_mul_i32 s{s_t0}, s{s_q1}, 5
    s_and_b32 s{s_t1}, s{s_h}, 1
    s_lshl_b32 s{s_odd8}, s{s_t1}, 3
    s_mul_i32 s{s_t1}, s{s_t1}, 3
    s_add_u32 s{s_pa}, s{s_t0}, s{s_t1}
    s_lshl_b32 s{s_pa}, s{s_pa}, 15
    s_add_u32 s{s_pr}, s{s_t0}, 2
    s_lshl_b32 s{s_pr}, s{s_pr}, 15
    s_lshr_b32 s{s_q2}, s{s_wl}, 1
    s_and_b32 s{s_t3}, s{s_w}, 1
    s_lshl_b32 s{s_t0}, s{s_q2}, 14
    s_lshl_b32 s{s_t1}, s{s_t3}, 10
    s_add_u32 s{s_t0}, s{s_t0}, s{s_t1}
    s_add_u32 s{s_t0}, s{s_t0}, {80*32768}
    s_add_u32 s{so[0]}, s{s_pa}, s{s_t0}
    s_add_u32 s{so[2]}, s{s_pr}, s{s_t0}
    s_mul_i32 s{s_mo}, s{s_q2}, 6144
    s_mul_i32 s{s_t3}, s{s_t3}, 3072
    s_mul_i32 s{s_t2}, s{s_h}, {VHEAD}
    s_mul_i32 s{s_t0}, s{s_q2}, {32*1344}
    s_add_u32 s{s_t2}, s{s_t2}, s{s_t0}
    s_add_u32 s{s_t2}, s{s_t2}, s{s_t3}
    s_add_u32 s{s_t2}, s{s_t2}, {VIMG}
    s_add_u32 s{s_t3}, s{s_t3}, {VB}
    s_add_u32 s{s_t0}, s{s_t2}, 2048
    s_cmp_lt_u32 s{s_w}, 4
    s_cselect_b32 s{so[0]}, s{so[0]}, s{s_t2}
    s_cselect_b32 s{so[2]}, s{so[2]}, s{s_t0}
    s_cselect_b32 s{s_t1}, s{s_t1}, s{s_t3}
    s_movk_i32 s{s_t0}, 1024
    s_cselect_b32 s{so[1]}, 32768, s{s_t0}
    s_movk_i32 s{s_d}, 5376
    s_cselect_b32 s{s_d}, 2048, s{s_d}
    s_cselect_b32 s{s_ms}, 2048, s{s_t0}
    s_add_u32 s{so[1]}, s{so[1]}, s{so[0]}
    s_add_u32 s{s_mo}, s{s_mo}, s{s_t1}
    s_lshr_b32 s{s_t3}, s{s_w}, 2
    s_mul_i32 s{s_t0}, s{s_t3}, 6144
    v_and_b32 v{vr31}, 31, v{vl}
    v_lshlrev_b32 v{vr31}, 4, v{vr31}
    v_lshrrev_b32 v{vt[1]}, 5, v{vl}
    v_lshl_add_u32 v{vq}, v{vt[1]}, 15, v{vr31}
    v_add_u32 v{vt[2]}, s{s_t0}, v{vr31}
    v_lshl_add_u32 v{vKA}, v{vt[1]}, 11, v{vt[2]}
    v_add_u32 v{vKR}, s{s_odd8}, v{vt[2]}
    v_add_u32 v{vKR}, 4096, v{vKR}
    v_mul_u32_u24 v{vt[0]}, 336, v{vt[1]}
    v_add_u32 v{vt[0]}, v{vt[0]}, v{vt[2]}
    v_add_u32 v{vVA}, {VB}, v{vt[0]}
    v_cmp_lt_u32 vcc, {20*16}, v{vr31}
    v_mov_b32 v{vt[0]}, 0x40000
    v_xor_b32 v{vt[1]}, s{s_t3}, v{vt[1]}
    v_cndmask_b32 v{vVA}, v{vVA}, v{vt[0]}, vcc
    v_lshl_add_u32 v{vqr}, v{vt[1]}, 9, v{vr31}
    s_lshr_b32 s{s_tok}, s2, 5
    s_lshl_b32 s{s_tok}, s{s_tok}, 8
    s_lshl_b32 s{s_t0}, s{s_wl}, 6
    s_add_u32 s{s_tok}, s{s_tok}, s{s_t0}
    s_lshl_b32 s{s_t0}, s{s_t3}, 5
    s_add_u32 s{s_tok}, s{s_tok}, s{s_t0}""")
    p1 = [f"s_mov_b32 m0, s{sR[4]}", "s_nop 0"]
    for i, (sd, so_) in enumerate(((sA, sR[0]), (sA, sR[2]), (sB, sR[1]), (sB, sR[3]))):
        p1.append(f"buffer_load_dwordx4 v{vPS}, {sr(sd,4)}, s{so_} offen lds")
        if i < 3: p1 += ["s_add_u32 m0, m0, 1024", "s_nop 0"]
    edge_prep = o.get('edge_prep', False)
    Lx = k.label("jx"); Lp = k.label("jp"); Lz = k.label("jz"); Lzx = k.label("jzx"); Lns = k.label("jns")
    k(f"""s_cmp_lg_u32 s{s_w}, 0
    s_cbranch_scc1 {Lzx}
    v_and_b32 v{vt[3]}, 15, v{vl}
    v_lshlrev_b32 v{vt[3]}, 4, v{vt[3]}
    s_mov_b32 s{s_t1}, 0
    {Lz}:
    buffer_load_dword v{vt[4]}, v{vt[3]}, {sr(sD,4)}, 0 offen sc1
    s_add_u32 s{s_t1}, s{s_t1}, 1
    s_cmp_gt_u32 s{s_t1}, 0x40000
    s_cbranch_scc1 {Lzx}
    s_waitcnt vmcnt(0)
    v_cmp_ne_u32 vcc, 0, v{vt[4]}
    s_cmp_eq_u64 vcc, -1
    s_cbranch_scc0 {Lz}
    {Lzx}:
    s_waitcnt vmcnt(0)""")
    k.stamp(5)
    k(f"""s_barrier
    s_cmp_lg_u32 s{s_w}, 0
    s_cbranch_scc1 {Lns}""")
    c.signal(c.s_f, vt[2])
    k(f"{Lns}:")
    if edge_prep:
        for x in p1: k(x)
    k(f"""s_cmp_lg_u32 s{s_w}, 0
    s_cbranch_scc1 {Lx}
    s_mul_i32 s{s_t0}, s{s_q1}, 40
    s_add_u32 s{s_t1}, s{s_t0}, 39
    s_lshr_b32 s{s_t0}, s{s_t0}, 7
    s_lshr_b32 s{s_t1}, s{s_t1}, 7
    s_lshl_b32 s{s_t0}, s{s_t0}, {FL+5}
    s_lshl_b32 s{s_t1}, s{s_t1}, {FL+5}
    s_add_u32 s{s_t0}, s{s_t0}, {F1}
    s_add_u32 s{s_t1}, s{s_t1}, {F1}
    v_lshrrev_b32 v{vt[2]}, 4, v{vl}
    v_min_u32 v{vt[2]}, 2, v{vt[2]}
    v_mul_u32_u24 v{vt[2]}, 160, v{vt[2]}
    v_and_b32 v{vt[3]}, 15, v{vl}
    v_add_u32 v{vt[3]}, v{vt[3]}, v{vt[2]}
    v_lshlrev_b32 v{vt[3]}, {FL}, v{vt[3]}
    s_mov_b32 s{s_t2}, 0
    {Lp}:
    buffer_load_dword v{vt[4]}, v{vt[3]}, {sr(sO,4)}, s{s_t0} offen sc1
    buffer_load_dword v{vt[5]}, v{vt[3]}, {sr(sO,4)}, s{s_t1} offen sc1
    s_add_u32 s{s_t2}, s{s_t2}, 1
    s_cmp_gt_u32 s{s_t2}, 0x40000
    s_cbranch_scc1 {Lx}
    s_waitcnt vmcnt(0)
    v_min_u32 v{vt[4]}, v{vt[4]}, v{vt[5]}
    v_cmp_ne_u32 vcc, 0, v{vt[4]}
    s_cmp_eq_u64 vcc, -1
    s_cbranch_scc0 {Lp}
    {Lx}:
    s_lshl_b32 s{s_t0}, s{s_tok}, 4
    s_add_u32 s{s_q1}, s{s_t0}, s{s_pa}
    s_xor_b32 s{s_t3}, s{s_q1}, 512
    s_andn2_b32 s{s_q2}, s{s_t0}, 512
    s_add_u32 s{s_q2}, s{s_q2}, s{s_pr}
    s_add_u32 s{s_q2}, s{s_q2}, s{s_odd8}
    s_barrier""")
    k.stamp(6)
    def dma(slot):
        out = [f"s_add_u32 m0, s{s_mo}, {slot*SL}", "s_nop 0"]
        for i in range(3):
            out.append(f"buffer_load_dwordx4 v{vl16}, {sr(sO,4)}, s{so[i]} offen lds")
            if i < 2: out.append(f"s_add_u32 m0, m0, s{s_ms}")
            out.append(f"s_add_u32 s{so[i]}, s{so[i]}, s{s_d}")
        return out
    for x in dma(0): k(x)
    k(f"""buffer_load_dwordx4 {vr(Qm,4)}, v{vq}, {sr(sO,4)}, s{s_q1} offen
    buffer_load_dwordx4 {vr(QmY,4)}, v{vq}, {sr(sO,4)}, s{s_t3} offen
    buffer_load_dwordx2 {vr(Qr,2)}, v{vqr}, {sr(sO,4)}, s{s_q2} offen""")
    for x in dma(1): k(x)
    p2a = [f"ds_read_b64_tr_b16 {vr(PR+4*Tl+2*rd,2)}, v{vPA} offset:{rd*1024+Tl*32}" for Tl in range(4) for rd in range(2)]
    p2c = [f"s_mov_b32 s{sE}, 0x3f803f80", f"v_lshlrev_b32 v{vca}, 2, v{vl}"] + [f"v_mov_b32 v{vcs+i}, 0" for i in range(4)]
    p2c += [f"v_dot2c_f32_bf16 v{vcs+Tl}, s{sE}, v{PR+4*Tl+i}" for i in range(4) for Tl in range(4)]
    p2c += ["s_nop 1", f"v_permlane32_swap_b32 v{vcs}, v{vcs+1}", f"v_permlane32_swap_b32 v{vcs+2}, v{vcs+3}",
            f"v_add_f32 v{vcs}, v{vcs}, v{vcs+1}", f"v_add_f32 v{vcs+2}, v{vcs+2}, v{vcs+3}"]
    late = [f"buffer_store_dwordx4 {vr(PR+4*Tl,4)}, v{vl16}, {sr(sO,4)}, s{s_po} offen offset:{Tl*1024}{sc}" for Tl in range(4)]
    late += [f"buffer_atomic_add_f32 v{vcs}, v{vca}, {sr(sO,4)}, s{s_cs} offen", f"buffer_atomic_add_f32 v{vcs+2}, v{vca}, {sr(sO,4)}, s{s_cs} offen offset:256"]
    TL = o.get('TL', 4); TP = 11
    late_t = o.get('late_t', [13, 15, 16, 17, 19, 20]); TSIG = 26
    assert not edge_prep
    M2B = "v_mfma_f32_32x32x4_2b_bf16"
    def rdK(t):
        o_ = ((t // 4) % 3) * SL + (t % 4) * 512
        return [f"ds_read_b128 {vr(Km,4)}, v{vKA} offset:{o_}", f"ds_read_b64 {vr(Kr,2)}, v{vKR} offset:{o_}"]
    def rdV(t):
        o_ = ((t // 4) % 3) * SL + (t % 4) * 1344
        return [f"ds_read_b128 {vr(V0,4)}, v{vVA} offset:{o_}", f"ds_read_b128 {vr(V1[t&1],4)}, v{vVA} offset:{o_+672}"]
    k("s_waitcnt vmcnt(3)\ns_barrier")
    k.stamp(7)
    for x in rdK(0): k(x)
    k(f"""s_waitcnt lgkmcnt(0)
    {M2B} {vr(S[0],32)}, {vr(Kr,2)}, {vr(Qr,2)}, 0
    {M16} {vr(S[0],16)}, {vr(Km,4)}, {vr(Qm,4)}, {vr(S[0],16)}
    {M16} {vr(S[0]+16,16)}, {vr(Km,4)}, {vr(QmY,4)}, {vr(S[0]+16,16)}""")
    for x in rdK(1) + rdV(0): k(x)
    side = []; vm = [0]
    def spread(n):
        for _ in range(n):
            if side:
                x = side.pop(0)
                if x == 'KV': vm[0] = 0; continue
                k(x)
                if x.startswith('buffer_'): vm[0] += 1
    NT = 32
    for t in range(NT):
        s = S[t & 1]; sn = S[(t + 1) & 1]; pe = t // 4; last = t == NT - 1
        e = lambda *a: [(k(f"v_exp_f32 v{s+i}, v{s+i}"), spread(1)) for i in a]
        cv = lambda i: k(f"v_cvt_pk_bf16_f32 v{P+i%8}, v{s+2*i}, v{s+2*i+1}")
        def pr(ph):
            if prio:
                q = (7 * t + ph - 19) % 28
                cum = 0
                for lvl, ln in enumerate(prio):
                    if (q == cum and ln > 0) or (t == 0 and ph == 0 and cum <= q < cum + ln): k(f"s_setprio {3 - lvl}")
                    cum += ln
        z = lambda r: '0' if t == 0 else vr(r, 16)
        pr(0)
        e(0, 1, 2, 3)
        if not last:
            k("s_waitcnt lgkmcnt(2)")
            k(f"{M2B} {vr(sn,32)}, {vr(Kr,2)}, {vr(Qr,2)}, 0")
        pr(1)
        e(4); cv(0); e(5); cv(1); e(6, 7); cv(2); e(8); cv(3); e(9, 10)
        k("s_waitcnt lgkmcnt(0)")
        k(f"{M16} {vr(O,16)}, {vr(V0,4)}, {vr(P,4)}, {z(O)}")
        pr(2)
        e(11); cv(4); e(12); cv(5); e(13, 14)
        if not last: k(f"{M16} {vr(sn,16)}, {vr(Km,4)}, {vr(Qm,4)}, {vr(sn,16)}")
        pr(3)
        e(15); cv(6); e(16); cv(7); e(17, 18)
        k(f"{M16} {vr(O,16)}, {vr(V1[t&1],4)}, {vr(P+4,4)}, {vr(O,16)}")
        pr(4)
        e(19); cv(8); e(20); cv(9); e(21, 22)
        if not last: k(f"{M16} {vr(sn+16,16)}, {vr(Km,4)}, {vr(QmY,4)}, {vr(sn+16,16)}")
        if t % 4 == 2 and pe < 7:
            assert not side
            k(f"s_waitcnt vmcnt({0 if t in (TP - 1, TSIG - 4) else vm[0]})\ns_barrier")
            if o.get('fine') == 2: k.stamp({0: 1, 1: 2, 2: 3, 3: 4, 4: 5, 5: 6, 6: 9}[pe])
            if pe < 6: side += dma((pe + 2) % 3) + ['KV']
            if t == TSIG - 4:
                Ln = k.label("nf")
                k(f"s_cmp_lg_u32 s{s_w}, 0\ns_cbranch_scc1 {Ln}\ns_lshl_b32 s{s_t0}, s2, 2\ns_add_u32 s{s_t0}, s{s_t0}, {FP}")
                c.signal(s_t0, vt[2]); k(f"{Ln}:")
        pr(5)
        if t < NT - 2:
            for x in rdK(t + 2): k(x)
        if t == TP:
            for x in p2a: k(x)
        if t == TL: side += p1
        if t == TP + 1 and not o.get('nocs'): side += p2c
        if t in late_t: side.append(late[late_t.index(t)])
        if t == 28: k(f"s_mov_b32 s{s_t0}, {FP}\nbuffer_load_dwordx4 {vr(vfp,4)}, v{vl16}, {sr(sO,4)}, s{s_t0} offen sc1")
        e(23); cv(10); e(24); cv(11); e(25, 26)
        k(f"{M16} {vr(OY,16)}, {vr(V0,4)}, {vr(P,4)}, {z(OY)}")
        pr(6)
        e(27); cv(12); e(28); cv(13); e(29, 30, 31); cv(14)
        if not last:
            rv = rdV(t + 1)
            k(rv[0]); cv(15); k(rv[1]); k("s_nop 0")
        else:
            cv(15)
        k(f"{M16} {vr(OY,16)}, {vr(V1[t&1],4)}, {vr(P+4,4)}, {vr(OY,16)}")
    assert not side
    if o.get('fine') == 2: k.stamp(10)
    k(f"""s_setprio 0
    s_mul_i32 s{s_t0}, s{s_w}, 3072
    s_add_u32 s{s_t0}, s{s_t0}, {PREP}
    v_add_u32 v{vt[0]}, s{s_t0}, v{vl16}
    s_xor_b32 s{s_t1}, s{s_w}, 4
    s_mul_i32 s{s_t1}, s{s_t1}, 3072
    s_add_u32 s{s_t1}, s{s_t1}, {PREP}
    v_add_u32 v{vt[1]}, s{s_t1}, v{vl16}""")
    for j in range(3): k(f"ds_write_b128 v{vt[0]}, {vr(OY+4*j,4)} offset:{1024*j}")
    k("s_waitcnt lgkmcnt(0)\ns_barrier")
    for j in range(3): k(f"ds_read_b128 {vr(OY+4*j,4)}, v{vt[1]} offset:{1024*j}")
    t0, t1, t2 = vt[0], vt[1], vt[2]
    k(f"""v_bfe_u32 v{vt[3]}, v{vl}, 4, 1
    v_mul_u32_u24 v{vt[3]}, {20*1024}, v{vt[3]}
    v_and_b32 v{vt[4]}, 15, v{vl}
    v_lshl_add_u32 v{vt[3]}, v{vt[4]}, 4, v{vt[3]}
    v_lshrrev_b32 v{vt[4]}, 5, v{vl}
    v_lshl_add_u32 v{vt[4]}, v{vt[4]}, 8, v{vt[3]}
    s_mov_b32 s{s_q1}, {f2u(2.0**64):#x}
    s_mov_b32 s{s_q2}, 0x7f800000
    s_waitcnt lgkmcnt(0)""")
    for i in range(12): k(f"v_add_f32 v{O+i}, v{O+i}, v{OY+i}")
    k(f"""v_mov_b32 v{t0}, v{O+8}
    v_mov_b32 v{t1}, v{O+8}
    v_add_f32 v{t2}, |v{O}|, |v{O+1}|
    v_add_f32 v{t2}, |v{O+2}|, v{t2}
    v_permlane32_swap_b32 v{t0}, v{t1}""")
    for i in range(3, 12): k(f"v_add_f32 v{t2}, |v{O+i}|, v{t2}")
    k(f"""v_cmp_lt_f32 vcc, {f2u(2.0**-64):#x}, v{t1}
    v_cmp_gt_f32 {sr(sE,2)}, s{s_q1}, v{t1}
    v_cmp_gt_f32 {sr(sG,2)}, s{s_q2}, v{t2}
    s_and_b64 vcc, vcc, {sr(sE,2)}
    s_and_b64 vcc, vcc, {sr(sG,2)}
    s_cmp_eq_u64 vcc, -1
    s_cbranch_scc0 {L_slow}
    {L_store}:
    v_rcp_f32 v{t1}, v{t1}
    s_lshr_b32 s{s_t0}, s{s_tok}, 4
    s_mul_i32 s{s_t0}, s{s_t0}, {20*1024}
    s_add_u32 s{s_t0}, s{s_t0}, {OIMG}
    s_lshl_b32 s{s_t1}, s{s_h}, 9
    s_add_u32 s{s_t1}, s{s_t1}, s{s_t0}
    s_lshr_b32 s{s_t2}, s{s_h}, 1
    s_lshl_b32 s{s_t2}, s{s_t2}, 8
    s_add_u32 s{s_t2}, s{s_t2}, s{s_t0}
    s_add_u32 s{s_t2}, s{s_t2}, s{s_odd8}
    s_add_u32 s{s_t2}, s{s_t2}, {16*1024}""")
    for i in range(12): k(f"v_mul_f32 v{O+i}, v{t1}, v{O+i}")
    for i in range(6): k(f"v_cvt_pk_bf16_f32 v{O+i}, v{O+2*i}, v{O+2*i+1}")
    k(f"""buffer_store_dwordx4 {vr(O,4)}, v{vt[4]}, {sr(sO,4)}, s{s_t1} offen{sc}
    s_mov_b32 exec_hi, 0
    buffer_store_dwordx2 {vr(O+4,2)}, v{vt[3]}, {sr(sO,4)}, s{s_t2} offen{sc}
    s_mov_b32 exec_hi, -1""")
    def slow():
        vV = vKA; vm = vKR; cnt = s_t3
        k(f"""{L_slow}:
        s_lshl_b32 s{so[0]}, s{s_tok}, 4
        s_add_u32 s{so[0]}, s{so[0]}, s{s_pr}
        s_add_u32 s{so[0]}, s{so[0]}, s{s_odd8}
        v_mov_b32 v{Qr}, 0
        v_mov_b32 v{Qr+1}, 0
        s_mov_b32 exec_hi, 0
        buffer_load_dwordx2 {vr(Qr,2)}, v{vr31}, {sr(sO,4)}, s{so[0]} offen
        s_mov_b32 exec_hi, -1
        s_add_u32 s{so[0]}, s{s_pa}, {80*32768}
        s_add_u32 s{so[1]}, s{s_pr}, {80*32768}
        s_add_u32 s{so[1]}, s{so[1]}, s{s_odd8}
        v_mov_b32 v{vm}, 0xff800000
        s_mov_b32 s{cnt}, 0""")
        L1 = k.label("mx")
        k(f"""{L1}:
        buffer_load_dwordx4 {vr(Km,4)}, v{vq}, {sr(sO,4)}, s{so[0]} offen
        buffer_load_dwordx2 {vr(Kr,2)}, v{vr31}, {sr(sO,4)}, s{so[1]} offen
        s_add_u32 s{so[0]}, s{so[0]}, 512
        s_add_u32 s{so[1]}, s{so[1]}, 512
        s_waitcnt vmcnt(0)
        {M8} {vr(S[0],16)}, {vr(Kr,2)}, {vr(Qr,2)}, 0
        {M16} {vr(S[0],16)}, {vr(Km,4)}, {vr(Qm,4)}, {vr(S[0],16)}""")
        for i in range(8): k(f"v_max3_f32 v{vm}, v{S[0]+2*i}, v{S[0]+2*i+1}, v{vm}")
        k(f"""s_add_u32 s{cnt}, s{cnt}, 1
        s_cmp_lt_u32 s{cnt}, 64
        s_cbranch_scc1 {L1}
        v_mov_b32 v{t0}, v{vm}
        v_permlane32_swap_b32 v{t0}, v{vm}
        v_max_f32 v{vm}, v{vm}, v{t0}""")
        for i in range(16): k(f"v_sub_f32 v{C+i}, 0, v{vm}\nv_mov_b32 v{O+i}, 0")
        k(f"""s_add_u32 s{so[0]}, s{s_pa}, {80*32768}
        s_add_u32 s{so[1]}, s{s_pr}, {80*32768}
        s_add_u32 s{so[1]}, s{so[1]}, s{s_odd8}
        s_mul_i32 s{so[2]}, s{s_h}, {VHEAD}
        s_add_u32 s{so[2]}, s{so[2]}, {VIMG}
        v_lshrrev_b32 v{vV}, 5, v{vl}
        v_mul_u32_u24 v{vV}, 336, v{vV}
        v_add_u32 v{vV}, v{vV}, v{vr31}
        s_mov_b32 s{cnt}, 0""")
        L2 = k.label("pv")
        k(f"""{L2}:
        buffer_load_dwordx4 {vr(Km,4)}, v{vq}, {sr(sO,4)}, s{so[0]} offen
        buffer_load_dwordx2 {vr(Kr,2)}, v{vr31}, {sr(sO,4)}, s{so[1]} offen
        buffer_load_dwordx4 {vr(V0,4)}, v{vV}, {sr(sO,4)}, s{so[2]} offen
        buffer_load_dwordx4 {vr(V1[0],4)}, v{vV}, {sr(sO,4)}, s{so[2]} offen offset:672
        s_add_u32 s{so[0]}, s{so[0]}, 512
        s_add_u32 s{so[1]}, s{so[1]}, 512
        s_add_u32 s{so[2]}, s{so[2]}, 1344
        s_waitcnt vmcnt(0)
        {M8} {vr(S[0],16)}, {vr(Kr,2)}, {vr(Qr,2)}, {vr(C,16)}
        {M16} {vr(S[0],16)}, {vr(Km,4)}, {vr(Qm,4)}, {vr(S[0],16)}""")
        for i in range(16): k(f"v_exp_f32 v{S[0]+i}, v{S[0]+i}")
        for i in range(8): k(f"v_cvt_pk_bf16_f32 v{P+i}, v{S[0]+2*i}, v{S[0]+2*i+1}")
        k(f"""{M16} {vr(O,16)}, {vr(V0,4)}, {vr(P,4)}, {vr(O,16)}
        {M16} {vr(O,16)}, {vr(V1[0],4)}, {vr(P+4,4)}, {vr(O,16)}
        s_add_u32 s{cnt}, s{cnt}, 1
        s_cmp_lt_u32 s{cnt}, 64
        s_cbranch_scc1 {L2}
        v_mov_b32 v{t0}, v{O+8}
        v_mov_b32 v{t1}, v{O+8}
        v_permlane32_swap_b32 v{t0}, v{t1}
        s_branch {L_store}""")
    slow_code = deferred(slow)
    L3 = k.label("ld")
    k.stamp(8); k.nst = 8
    if o.get('fine1') or o.get('fine') == 2:
        k.maxst = 14; k.stamp = lambda *a, **kw: None
    k(f"""s_lshr_b32 s{c.s_f}, s2, 5
    s_lshl_b32 s{c.s_f}, s{c.s_f}, 5
    s_add_u32 s{c.s_f}, s{c.s_f}, s{s_h}
    s_lshl_b32 s{c.s_f}, s{c.s_f}, {FL}
    s_add_u32 s{c.s_f}, s{c.s_f}, {F2}""")
    P3 = P35(c, 3, D=o.get('D3', 20), D0=o.get('D30', 6))
    P3.rowmap = o.get('row3', False)
    k(P3.ptr_load()); P3.ids()
    lw(c, L3)
    def handoff(vt, stmp, n):
        Ln = k.label("nw0")
        k("s_barrier")
        k(f"s_cmp_lg_u32 s{c.s_w}, 0\ns_cbranch_scc1 {Ln}")
        c.signal(c.s_f, vt); c.poll(c.s_p, n, vt, stmp)
        k(f"{Ln}:\ns_barrier")
    P3.setup()
    k(f"""s_lshr_b32 s{c.s_p}, s{P3.s_tb16}, 4
    s_lshl_b32 s{c.s_p}, s{c.s_p}, {FL+5}
    s_add_u32 s{c.s_p}, s{c.s_p}, {F2}
    s_waitcnt vmcnt(3)""")
    handoff(P3.vt[0], P3.s_t0, 32)
    k.stamp('n')
    if o.get('fine') == 3: P3.fine = {0: 2, 1: 3, 4: 4, 8: 5, 12: 6, 16: 7, 19: 8}
    P3.main(init=False, resident=True)
    k("s_barrier")
    P3.epilogue()
    k(f"""s_lshr_b32 s{c.s_f}, s{P3.s_tb16}, 3
    s_lshl_b32 s{c.s_f}, s{c.s_f}, 5
    s_bfe_u32 s{P3.s_t0}, s{P3.s_tb16}, 0x10002
    s_lshl_b32 s{P3.s_t0}, s{P3.s_t0}, 3
    s_add_u32 s{c.s_f}, s{c.s_f}, s{P3.s_t0}
    s_add_u32 s{c.s_f}, s{c.s_f}, s{P3.s_c}
    s_lshl_b32 s{c.s_f}, s{c.s_f}, {FL}
    s_add_u32 s{c.s_f}, s{c.s_f}, {F3}""")
    Q4 = P4(c, D=o.get('D4', 12), D0=o.get('D40', 4)); Q4.ahead = o.get('ahead4', 4); Q4.thin = o.get('thin4'); Q4.nob = o.get('nob')
    Q4.ids(); Q4.setup()
    k(f"""s_lshr_b32 s{c.s_p}, s{Q4.s_tb}, 2
    s_lshl_b32 s{c.s_p}, s{c.s_p}, {FL+5}
    s_add_u32 s{c.s_p}, s{c.s_p}, {F3}
    s_waitcnt vmcnt(0)""")
    k.stamp('n')
    handoff(Q4.st, Q4.s_t1, 16)
    k.stamp('n')
    if o.get('fine') == 4: Q4.fine = {0: 2, 1: 3, 4: 4, 12: 5, 20: 6, 30: 7, 39: 8}
    Q4.main(init=False, endbar=True)
    Q4.epilogue(k.label("fin"))
    k(f"""s_lshr_b32 s{c.s_f}, s{Q4.s_tb}, 2
    s_lshl_b32 s{c.s_f}, s{c.s_f}, 5
    s_add_u32 s{c.s_f}, s{c.s_f}, s{Q4.s_g}
    s_lshl_b32 s{c.s_f}, s{c.s_f}, {FL}
    s_add_u32 s{c.s_f}, s{c.s_f}, {F4}""")
    P5 = P35(c, 5, D=o.get('D5', 12), D0=o.get('D50', 4)); P5.ahead = o.get('ahead5', 5); P5.rowmap = o.get('row5', False); P5.bar8 = o.get('bar8', True)
    k("s_nop 1"); k(P5.ptr_load()); P5.ids(); P5.setup()
    k(f"""s_lshr_b32 s{c.s_p}, s{P5.s_tb16}, 3
    s_lshl_b32 s{c.s_p}, s{c.s_p}, {FL+5}
    s_add_u32 s{c.s_p}, s{c.s_p}, {F4}
    s_waitcnt vmcnt(0)""")
    k.stamp('n')
    handoff(P5.vt[0], P5.s_t0, 16)
    k.stamp('n')
    if o.get('fine') == 5: P5.fine = {0: 2, 1: 3, 8: 4, 16: 5, 28: 6, 40: 7, 53: 8}
    P5.main(init=False)
    P5.epilogue()
    c.finish()
    k(f"{L3}:")
    Lp = k.label("fp"); Lok = k.label("fpok")
    k(f"""s_mov_b32 s{P3.s_cnt}, 0
    s_waitcnt vmcnt(2)
    {Lp}:
    v_min_u32 v{vfp}, v{vfp}, v{vfp+1}
    v_min3_u32 v{vfp}, v{vfp}, v{vfp+2}, v{vfp+3}
    s_add_u32 s{P3.s_cnt}, s{P3.s_cnt}, 1
    v_cmp_ne_u32 vcc, 0, v{vfp}
    s_cmp_eq_u64 vcc, -1
    s_cbranch_scc1 {Lok}
    s_cmp_gt_u32 s{P3.s_cnt}, 0x40000
    s_cbranch_scc1 {Lok}
    s_mov_b32 s{P3.s_t0}, {FP}
    buffer_load_dwordx4 {vr(vfp,4)}, v{c.vl16}, {sr(c.sO,4)}, s{P3.s_t0} offen sc1
    s_waitcnt vmcnt(0)
    s_branch {Lp}
    {Lok}:""")
    P3.ld_setup()
    k("s_waitcnt vmcnt(0)\ns_barrier")
    for ch in range(5): P3.ld_chunk(ch)
    k("s_waitcnt vmcnt(0)\ns_barrier")
    Q4.ids(); Q4.ld_setup()
    k("s_barrier")
    n4 = o.get('pre4', 2)
    for ch in range(n4): Q4.ld_chunk(ch)
    k("s_barrier")
    for ch in range(n4, 5): Q4.ld_chunk(ch)
    Q4.ld_cs()
    k("s_waitcnt vmcnt(29)\ns_barrier")
    rg5 = None
    if o.get('reg5', True):
        rg5 = dict(base=20, addr=[8, 9, 10])
        s5 = 64
        def warm():
            k(f"""s_bfe_u32 s{Q4.s_t0}, s2, 0x10002
            s_lshl_b32 s{Q4.s_t0}, s{Q4.s_t0}, 2
            s_lshr_b32 s{Q4.s_t1}, s2, 6
            s_add_u32 s{Q4.s_t0}, s{Q4.s_t0}, s{Q4.s_t1}
            s_lshl_b32 s{Q4.s_t1}, s{c.s_wl}, 3
            s_add_u32 s{Q4.s_t0}, s{Q4.s_t0}, s{Q4.s_t1}
            s_mul_i32 s{Q4.s_t0}, s{Q4.s_t0}, 5120
            s_add_u32 s{Q4.s_t0}, s{Q4.s_t0}, {WDP + 28*40960}""")
        def warm_chunk(j):
            k(f"s_add_u32 s{Q4.s_t1}, s{Q4.s_t0}, 4096")
            for i in range(5):
                k(f"buffer_load_dwordx4 {vr(rg5['base'] + 20*j + 4*i, 4)}, v{c.vl16}, {sr(c.sO,4)}, s{Q4.s_t0 if i < 4 else Q4.s_t1} offen offset:{(i%4)*1024}")
            k(f"s_add_u32 s{Q4.s_t0}, s{Q4.s_t0}, {4*40960}")
        assert not P5.rowmap
        Q4.warm = warm; Q4.warm_chunk = warm_chunk
    Q4.ld_main(5, 1, init=False)
    P5.ids(); P5.ld_setup()
    if rg5:
        k(f"""v_add_u32 v8, s{P5.s_m0}, v{c.vl16}
        v_add_u32 v9, {3*P5.SLOT}, v8
        v_add_u32 v10, {6*P5.SLOT}, v8""")
    k("s_barrier")
    n5 = o.get('pre5', 4)
    for ch in range(n5): P5.ld_chunk(ch)
    k("s_barrier")
    for ch in range(n5, 7): P5.ld_chunk(ch)
    if P5.bar8:
        k("s_waitcnt vmcnt(25)\ns_barrier")
        P5.ld_main8(rg5)
    else:
        k("s_waitcnt vmcnt(30)\ns_barrier")
        P5.ld_main(7, init=False)
    if K.STAMP:
        for i in range(9, 15): k.stamp(i)
        k.stamp_flush(c.sO, c.s_w)
    k("s_endpgm")
    k.lines += slow_code + spare_code
    return k, (256, 512, max(P3.lds, Q4.lds, P5.lds))
```

```python
from ph import *

def lw(c, L):
    c.k(f"s_cmp_ge_u32 s{c.s_w}, 4\ns_cbranch_scc1 {L}")

class P35:
    def __init__(self, c, which, D=12, D0=None):
        self.c = c; self.k3 = k3 = which == 3; k = c.k
        self.NU = 20 if k3 else 54; self.CK = 4; self.SLOT = 20480
        self.NCH = (self.NU + 3) // 4; self.NSL = 5 if k3 else 7
        self.XS = self.NSL * self.SLOT; self.D = D; self.D0 = D0 or D
        self.lds = self.XS + 4 * 3072
        c.reset()
        self.sPX = k.s(2); self.sB = k.s(4); self.sX = k.s(4)
        (self.s_tb16, self.s_c, self.s_t0, self.s_t1, self.s_t2, self.s_bo, self.s_wo, self.s_m0, self.s_xs, self.s_ho,
         self.s_cnt) = [k.s() for _ in range(11)]
        self.vt = [k.v() for _ in range(6)]; self.vH = k.v(); self.vD = k.v(); self.vA = [k.v() for _ in range(3)]
        self.vrow = [k.v() for _ in range(3)]
        self.acc = k.v(20, 4); self.fa = [k.v(20, 4) for _ in range(3)]; self.res = k.v(12, 4)
        self.fb = k.v(4 * self.D, 4)
    def ptr_load(self): return f"s_load_dwordx2 {sr(self.sPX,2)}, s[0:1], {KA_X if self.k3 else KA_OUT}"
    rowmap = False
    bar8 = False
    def ld_main8(self, regs=None):
        k = self.c.k; c = self.c
        issued = 7
        for kb in range(6):
            need = min(13, 2 * kb + 3)
            if regs is None: k(f"s_waitcnt vmcnt({5*max(0, issued - 1 - need)})")
            else: k("s_waitcnt vmcnt(0) lgkmcnt(0)" if kb == 0 else "s_waitcnt lgkmcnt(0)")
            k("s_barrier")
            while issued < 14 and issued <= 2 * kb + 7:
                if regs is None: self.ld_chunk(issued % 7)
                else:
                    slot = issued % 7
                    for i in range(5):
                        k(f"ds_write_b128 v{regs['addr'][slot // 3]}, {vr(regs['base'] + 20*(issued-7) + 4*i, 4)} offset:{(slot % 3)*self.SLOT + i*1024}")
                issued += 1
    def ids(self):
        k = self.c.k
        if self.rowmap:
            k(f"""s_and_b32 s{self.s_t0}, s2, 7
            s_lshl_b32 s{self.s_t0}, s{self.s_t0}, 2
            s_bfe_u32 s{self.s_t1}, s2, 0x20003
            s_add_u32 s{self.s_tb16}, s{self.s_t0}, s{self.s_t1}
            s_lshl_b32 s{self.s_tb16}, s{self.s_tb16}, 2
            s_add_u32 s{self.s_tb16}, s{self.s_tb16}, s{self.c.s_wl}
            s_lshr_b32 s{self.s_c}, s2, 5""")
            return
        k(f"""s_and_b32 s{self.s_t0}, s2, 3
        s_lshl_b32 s{self.s_t0}, s{self.s_t0}, 3
        s_bfe_u32 s{self.s_t1}, s2, 0x30003
        s_add_u32 s{self.s_tb16}, s{self.s_t0}, s{self.s_t1}
        s_lshl_b32 s{self.s_tb16}, s{self.s_tb16}, 2
        s_add_u32 s{self.s_tb16}, s{self.s_tb16}, s{self.c.s_wl}
        s_bfe_u32 s{self.s_t0}, s2, 0x10002
        s_lshl_b32 s{self.s_t0}, s{self.s_t0}, 2
        s_lshr_b32 s{self.s_t1}, s2, 6
        s_add_u32 s{self.s_c}, s{self.s_t0}, s{self.s_t1}""")
    def ld_setup(self):
        k = self.c.k
        k(f"""s_mul_i32 s{self.s_wo}, s{self.c.s_wl}, 8
        s_add_u32 s{self.s_wo}, s{self.s_wo}, s{self.s_c}
        s_mul_i32 s{self.s_wo}, s{self.s_wo}, 5120
        s_add_u32 s{self.s_wo}, s{self.s_wo}, {WOP if self.k3 else WDP}
        s_mul_i32 s{self.s_m0}, s{self.c.s_wl}, 5120""")
    def ld_chunk(self, slot):
        k = self.c.k; c = self.c
        k(f"s_add_u32 m0, s{self.s_m0}, {slot*self.SLOT}\ns_add_u32 s{self.s_t2}, s{self.s_wo}, 4096")
        for i in range(4):
            k(f"buffer_load_dwordx4 v{c.vl16}, {sr(c.sO,4)}, s{self.s_wo} offen offset:{i*1024}{c.lsc} lds")
        k(f"s_add_u32 m0, m0, 4096\ns_add_u32 s{self.s_wo}, s{self.s_wo}, {4*40960}")
        k(f"buffer_load_dwordx4 v{c.vl16}, {sr(c.sO,4)}, s{self.s_t2} offen{c.lsc} lds")
    def ld_main(self, issued, init=True):
        k = self.c.k; NCH = self.NCH
        if init: k(f"s_waitcnt vmcnt({5*(issued-1)})\ns_barrier")
        for ch in range(NCH - 1):
            k(f"s_waitcnt vmcnt({5*max(0, issued-ch-2)})\ns_barrier")
            while issued < NCH and issued < ch + self.NSL and issued <= ch + 1 + self.ahead:
                self.ld_chunk(issued % self.NSL); issued += 1
    def setup(self):
        k = self.c.k; c = self.c; vt = self.vt; vl = c.vl
        for i in range(3):
            k(f"""v_add_u32 v{vt[0]}, {64*i}, v{vl}
            v_mul_u32_u24 v{vt[1]}, 6554, v{vt[0]}
            v_lshrrev_b32 v{vt[1]}, 16, v{vt[1]}
            v_mul_u32_u24 v{vt[1]}, {1280-160}, v{vt[1]}
            v_lshl_add_u32 v{self.vrow[i]}, v{vt[0]}, 4, v{vt[1]}""")
        k(f"""s_mul_i32 s{self.s_t1}, s{self.s_tb16}, {16*1280}
        s_mul_i32 s{self.s_t2}, s{self.s_c}, 160
        s_add_u32 s{self.s_t1}, s{self.s_t1}, s{self.s_t2}
        s_waitcnt lgkmcnt(0)
        s_add_u32 s{self.sX}, s{self.sPX}, s{self.s_t1}
        s_addc_u32 s{self.sX+1}, s{self.sPX+1}, 0
        s_sub_u32 s{self.sX+2}, {2048*1280}, s{self.s_t1}
        s_mov_b32 s{self.sX+3}, 0x20000
        s_mul_i32 s{self.s_xs}, s{c.s_wl}, 3072
        s_add_u32 s{self.s_xs}, s{self.s_xs}, {self.XS}""")
        if self.k3:
            k(f"s_mov_b32 m0, s{self.s_xs}")
            for i in range(3):
                k(f"s_nop 0\nbuffer_load_dwordx4 v{self.vrow[i]}, {sr(self.sX,4)}, 0 offen lds")
                if i < 2: k("s_add_u32 m0, m0, 1024")
        k(f"""v_lshrrev_b32 v{vt[0]}, 4, v{vl}
        v_and_b32 v{vt[1]}, 15, v{vl}
        v_lshlrev_b32 v{vt[2]}, 4, v{vt[1]}
        v_lshl_add_u32 v{self.vH}, v{vt[0]}, 9, v{vt[2]}
        s_lshr_b32 s{self.s_t1}, s{self.s_tb16}, 1
        s_mul_i32 s{self.s_t1}, s{self.s_t1}, 40
        s_mul_i32 s{self.s_t2}, s{self.s_c}, 5
        s_add_u32 s{self.s_t1}, s{self.s_t1}, s{self.s_t2}
        s_lshl_b32 s{self.s_t1}, s{self.s_t1}, 10
        s_and_b32 s{self.s_t2}, s{c.s_w}, 1
        s_lshl_b32 s{self.s_t2}, s{self.s_t2}, 8
        s_add_u32 s{self.s_t1}, s{self.s_t1}, s{self.s_t2}
        s_add_u32 s{self.s_ho}, s{self.s_t1}, {HIMG}
        v_mul_u32_u24 v{vt[1]}, 160, v{vt[1]}
        v_lshl_add_u32 v{vt[1]}, v{vt[0]}, 3, v{vt[1]}
        v_add_u32 v{self.vD}, s{self.s_xs}, v{vt[1]}
        v_mov_b32 v{self.vA[0]}, v{c.vl16}
        v_add_u32 v{self.vA[1]}, {3*self.SLOT}, v{c.vl16}
        v_add_u32 v{self.vA[2]}, {6*self.SLOT}, v{c.vl16}
        s_mul_i32 s{self.s_bo}, s{self.s_tb16}, {self.NU*1024}
        s_add_u32 s{self.s_bo}, s{self.s_bo}, {OIMG if self.k3 else ACT}""")
    def loadB(self, u):
        k = self.c.k; c = self.c
        k(f"buffer_load_dwordx4 {vr(self.fb+4*(u % self.D),4)}, v{c.vl16}, {sr(c.sO,4)}, s{self.s_bo} offen offset:{(u%4)*1024}{c.lsc}")
        if u % 4 == 3: k(f"s_add_u32 s{self.s_bo}, s{self.s_bo}, 4096")
    def rdA(self, u):
        slot = (u // 4) % self.NSL
        return [f"ds_read_b128 {vr(self.fa[u%3]+4*T,4)}, v{self.vA[slot//3]} offset:{(slot%3)*self.SLOT+((u%4)*5+T)*1024}" for T in range(5)]
    def main(self, init=True, resident=False):
        k = self.c.k; c = self.c; NU = self.NU; D = self.D; res = self.res
        order = []
        def resld():
            k(f"""s_add_u32 s{self.s_t1}, s{self.s_ho}, 4096
            buffer_load_dwordx4 {vr(res,4)}, v{self.vH}, {sr(c.sO,4)}, s{self.s_ho} offen{c.lsc}
            buffer_load_dwordx4 {vr(res+4,4)}, v{self.vH}, {sr(c.sO,4)}, s{self.s_ho} offen offset:2048{c.lsc}
            buffer_load_dwordx4 {vr(res+8,4)}, v{self.vH}, {sr(c.sO,4)}, s{self.s_t1} offen{c.lsc}""")
            order.extend('rrr')
        nxt = 0
        for u in range(self.D0):
            self.loadB(u); order.append(u); nxt += 1
        if not c.fused: k.stamp(2)
        if init: k("s_barrier")
        if not c.fused: k.stamp(3)
        for x in self.rdA(0) + self.rdA(1): k(x)
        for u in range(NU):
            rd = []
            if self.bar8:
                if u % 8 == 6 and u < 48: k("s_barrier")
            elif u % 4 == 2 and u // 4 < self.NCH - 1 and not resident: k("s_barrier")
            if u + 2 < NU: rd = self.rdA(u + 2)
            younger = len(order) - 1 - order.index(u)
            if u == NU - 1: younger = 0
            k(f"s_waitcnt vmcnt({younger}) lgkmcnt({5 if u + 1 < NU else 0})")
            if u in getattr(self, 'fine', {}): k.stamp(self.fine[u]); k("s_waitcnt lgkmcnt(0)") if K.STAMP else None
            b = self.fb + 4 * (u % D)
            for T in range(5):
                k(f"{MF} {vr(self.acc+4*T,4)}, {vr(self.fa[u%3]+4*T,4)}, {vr(b,4)}, {'0' if u == 0 else vr(self.acc+4*T,4)}")
                if T < len(rd): k(rd[T])
                if T == 2 and nxt < NU and nxt < u + D:
                    self.loadB(nxt); order.append(nxt); nxt += 1
            if nxt < NU and nxt <= u + D:
                self.loadB(nxt); order.append(nxt); nxt += 1
            if not self.k3 and u == NU - 12: resld()
        if self.k3:
            for T in range(5): k(f"ds_read_b64 {vr(self.fa[0]+2*T,2)}, v{self.vD} offset:{T*32}")
            k("s_waitcnt lgkmcnt(0)")
    def epilogue(self):
        k = self.c.k; c = self.c; t = self.vt; acc = self.acc; res = self.res; sO = c.sO; vH = self.vH; sc = c.sc
        if self.k3:
            k(f"s_mov_b32 s{self.s_cnt}, 0x3f803f80\nv_mov_b32 v{t[0]}, 0\nv_mov_b32 v{t[1]}, 0")
            src = self.fa[0]
        else:
            for p in range(3):
                k(f"v_permlane32_swap_b32 v{res+4*p}, v{res+4*p+2}\nv_permlane32_swap_b32 v{res+4*p+1}, v{res+4*p+3}")
            src = res
        pk = self.fa[1]
        for T in range(5):
            for d in range(2):
                x = src + 2 * T + d; a = acc + 4 * T + 2 * d
                k(f"""v_lshlrev_b32 v{t[2+2*d]}, 16, v{x}
                v_and_b32 v{t[3+2*d]}, 0xffff0000, v{x}
                v_add_f32 v{a}, v{a}, v{t[2+2*d]}
                v_add_f32 v{a+1}, v{a+1}, v{t[3+2*d]}
                v_cvt_pk_bf16_f32 v{pk+2*T+d}, v{a}, v{a+1}""")
        if self.k3:
            for i in range(10):
                k(f"v_dot2c_f32_bf16 v{t[0]}, s{self.s_cnt}, v{pk+i}\nv_dot2c_f32_bf16 v{t[1]}, v{pk+i}, v{pk+i}")
            for p in range(3):
                k(f"v_permlane32_swap_b32 v{pk+4*p}, v{pk+4*p+2}\nv_permlane32_swap_b32 v{pk+4*p+1}, v{pk+4*p+3}")
            k(f"""s_add_u32 s{self.s_t1}, s{self.s_ho}, 4096
            buffer_store_dwordx4 {vr(pk,4)}, v{vH}, {sr(sO,4)}, s{self.s_ho} offen{sc}
            buffer_store_dwordx4 {vr(pk+4,4)}, v{vH}, {sr(sO,4)}, s{self.s_ho} offen offset:2048{sc}
            s_mov_b32 exec_hi, 0
            buffer_store_dwordx4 {vr(pk+8,4)}, v{vH}, {sr(sO,4)}, s{self.s_t1} offen{sc}
            s_mov_b32 exec_hi, -1
            v_mov_b32 v{t[2]}, v{t[0]}
            v_mov_b32 v{t[3]}, v{t[1]}
            v_permlane32_swap_b32 v{t[2]}, v{t[0]}
            v_permlane32_swap_b32 v{t[3]}, v{t[1]}
            v_add_f32 v{t[0]}, v{t[0]}, v{t[2]}
            v_add_f32 v{t[1]}, v{t[1]}, v{t[3]}
            v_mov_b32 v{t[2]}, v{t[0]}
            v_mov_b32 v{t[3]}, v{t[1]}
            v_permlane16_swap_b32 v{t[2]}, v{t[0]}
            v_permlane16_swap_b32 v{t[3]}, v{t[1]}
            v_add_f32 v{acc}, v{t[0]}, v{t[2]}
            v_add_f32 v{acc+1}, v{t[1]}, v{t[3]}
            v_lshlrev_b32 v{t[4]}, 3, v{c.vl}
            s_lshl_b32 s{self.s_t2}, s{self.s_c}, 14
            s_lshl_b32 s{self.s_t0}, s{self.s_tb16}, 7
            s_add_u32 s{self.s_t2}, s{self.s_t2}, s{self.s_t0}
            s_add_u32 s{self.s_t2}, s{self.s_t2}, {STATS}
            s_mov_b64 exec, 0xffff
            buffer_store_dwordx2 {vr(acc,2)}, v{t[4]}, {sr(sO,4)}, s{self.s_t2} offen{sc}
            s_mov_b64 exec, -1""")
        else:
            for T in range(5): k(f"ds_write_b64 v{self.vD}, {vr(pk+2*T,2)} offset:{T*32}")
            k(f"v_add_u32 v{t[0]}, s{self.s_xs}, v{c.vl16}\ns_waitcnt lgkmcnt(0)")
            for i in range(3): k(f"ds_read_b128 {vr(self.fa[0]+4*i,4)}, v{t[0]} offset:{i*1024}")
            for i in range(3):
                k(f"s_waitcnt lgkmcnt({2-i})")
                if i == 2: k("s_mov_b32 exec_hi, 0")
                k(f"buffer_store_dwordx4 {vr(self.fa[0]+4*i,4)}, v{self.vrow[i]}, {sr(self.sX,4)}, 0 offen")
            k("s_mov_b32 exec_hi, -1")

class P4:
    CK, NSL, NCH, SLOT = 4, 5, 10, 28672
    CSB = 5 * 28672
    def __init__(self, c, D=12, D0=None):
        self.c = c; k = c.k; self.D = D; self.D0 = D0 or D; self.lds = self.CSB + 1024
        c.reset()
        (self.s_tb, self.s_g, self.s_t0, self.s_t1, self.s_t2, self.s_bo, self.s_wo, self.s_m0) = [k.s() for _ in range(8)]
        self.vt = [k.v() for _ in range(4)]; self.vA = [k.v() for _ in range(3)]
        self.st = k.v(8, 4); self.par = k.v(6, 2)
        self.acc = [k.v(16, 4) for _ in range(7)]
        self.fa = [k.v(28, 4), k.v(28, 4)]
        self.fb = k.v(4 * D, 4)
    def ids(self):
        k = self.c.k
        k(f"""s_and_b32 s{self.s_t0}, s2, 1
        s_lshl_b32 s{self.s_t0}, s{self.s_t0}, 3
        s_bfe_u32 s{self.s_t1}, s2, 0x30003
        s_add_u32 s{self.s_tb}, s{self.s_t0}, s{self.s_t1}
        s_lshl_b32 s{self.s_tb}, s{self.s_tb}, 2
        s_add_u32 s{self.s_tb}, s{self.s_tb}, s{self.c.s_wl}
        s_bfe_u32 s{self.s_t0}, s2, 0x20001
        s_lshl_b32 s{self.s_t0}, s{self.s_t0}, 2
        s_lshr_b32 s{self.s_t1}, s2, 6
        s_add_u32 s{self.s_g}, s{self.s_t0}, s{self.s_t1}""")
    def ld_setup(self):
        k = self.c.k
        k(f"""s_mul_i32 s{self.s_wo}, s{self.c.s_wl}, 16
        s_add_u32 s{self.s_wo}, s{self.s_wo}, s{self.s_g}
        s_mul_i32 s{self.s_wo}, s{self.s_wo}, 7168
        s_add_u32 s{self.s_wo}, s{self.s_wo}, {WGUP}
        s_mul_i32 s{self.s_m0}, s{self.c.s_wl}, 7168""")
    thin = None
    def ld_chunk(self, slot, thin=False):
        k = self.c.k; c = self.c
        k(f"s_add_u32 m0, s{self.s_m0}, {slot*self.SLOT}\ns_add_u32 s{self.s_t2}, s{self.s_wo}, 4096")
        for i in range(4):
            k(f"buffer_load_dwordx4 v{c.vl16}, {sr(c.sO,4)}, s{self.s_wo} offen offset:{i*1024}{c.lsc} lds")
        k(f"s_add_u32 m0, m0, 4096\ns_add_u32 s{self.s_wo}, s{self.s_wo}, {4*112*1024}")
        if thin and self.thin is not None: k(f"s_waitcnt vmcnt({self.thin})")
        for i in range(3):
            k(f"buffer_load_dwordx4 v{c.vl16}, {sr(c.sO,4)}, s{self.s_t2} offen offset:{i*1024}{c.lsc} lds")
    def ld_cs(self):
        k = self.c.k; c = self.c
        k(f"""s_mul_i32 s{self.s_t2}, s{self.s_g}, 896
        s_mov_b32 m0, {self.CSB}
        s_add_u32 s{self.s_t2}, s{self.s_t2}, {CSG}
        buffer_load_dwordx4 v{c.vl16}, {sr(c.sO,4)}, s{self.s_t2} offen{c.lsc} lds""")
    def ld_main(self, issued, extra, init=True):
        k = self.c.k; NCH = self.NCH
        if init: k(f"s_waitcnt vmcnt({7*(issued-1)+extra})\ns_barrier")
        nw = 0
        for ch in range(NCH - 1):
            k(f"s_waitcnt vmcnt({min(63, 7*max(0, issued-ch-2) + 5*nw)})\ns_barrier")
            while issued < NCH and issued <= ch + self.NSL and issued <= ch + 1 + self.ahead:
                self.ld_chunk(issued % self.NSL, True); issued += 1
            if self.warm and ch >= 4:
                assert issued == NCH
                if ch == 4: self.warm()
                for i_, j in enumerate(self.wsched[ch]):
                    if i_ and self.thin is not None: k(f"s_waitcnt vmcnt({self.thin + 1})")
                    self.warm_chunk(j); nw += 1
    warm = None
    nob = False
    wsched = {4: (), 5: (0, 1), 6: (2, 3), 7: (4, 5), 8: (6,)}
    def setup(self):
        k = self.c.k; c = self.c; vt = self.vt
        k(f"""v_mov_b32 v{self.vA[0]}, v{c.vl16}
        v_add_u32 v{self.vA[1]}, {2*self.SLOT}, v{c.vl16}
        v_add_u32 v{self.vA[2]}, {4*self.SLOT}, v{c.vl16}
        s_mul_i32 s{self.s_bo}, s{self.s_tb}, 40960
        s_add_u32 s{self.s_bo}, s{self.s_bo}, {HIMG}
        v_and_b32 v{vt[0]}, 31, v{c.vl}
        v_lshrrev_b32 v{vt[1]}, 5, v{c.vl}
        v_lshlrev_b32 v{vt[2]}, 3, v{vt[0]}
        v_lshl_add_u32 v{vt[2]}, v{vt[1]}, 16, v{vt[2]}
        s_lshl_b32 s{self.s_t0}, s{self.s_tb}, 8
        s_add_u32 s{self.s_t0}, s{self.s_t0}, {STATS}""")
    def loadB(self, u):
        k = self.c.k; c = self.c
        k(f"buffer_load_dwordx4 {vr(self.fb+4*(u % self.D),4)}, v{c.vl16}, {sr(c.sO,4)}, s{self.s_bo} offen offset:{(u%4)*1024}{c.lsc}")
        if u % 4 == 3: k(f"s_add_u32 s{self.s_bo}, s{self.s_bo}, 4096")
    def rdA(self, u):
        slot = (u // 4) % self.NSL
        return [f"ds_read_b128 {vr(self.fa[u&1]+4*T,4)}, v{self.vA[slot//2]} offset:{(slot%2)*self.SLOT+((u%4)*7+T)*1024}" for T in range(7)]
    def main(self, init=True, endbar=False):
        k = self.c.k; c = self.c; D = self.D; st = self.st
        order = []; nxt = 0
        for u in range(self.D0):
            self.loadB(u); order.append(u); nxt += 1
        if not c.fused: k.stamp(2)
        if init: k("s_barrier")
        if not c.fused: k.stamp(3)
        for x in self.rdA(0): k(x)
        for u in range(40):
            younger = len(order) - 1 - order.index(u)
            if u == 39: younger = 0
            k(f"s_waitcnt vmcnt({younger}) lgkmcnt(0)")
            if u in getattr(self, 'fine', {}): k.stamp(self.fine[u])
            bar = u % 4 == 3 and (u < 39 or endbar)
            rd = self.rdA(u + 1) if u < 39 else []
            b = self.fb + 4 * (u % D)
            r0 = 2 if bar else 0
            for T in range(7):
                k(f"{M16} {vr(self.acc[T],16)}, {vr(self.fa[u&1]+4*T,4)}, {vr(b,4)}, {'0' if u == 0 else vr(self.acc[T],16)}")
                if bar and T == 1: k("s_barrier")
                if T >= r0 - 1 or not bar:
                    j = T - (r0 - 1 if bar else 0)
                    for x in rd[2*j:2*j+2]: k(x)
                if T == 5 and nxt < 40 and nxt < u + D:
                    self.loadB(nxt); order.append(nxt); nxt += 1
            if nxt < 40 and nxt <= u + D:
                if not self.nob: self.loadB(nxt)
                order.append(nxt); nxt += 1
            if u == 20:
                for i in range(4):
                    k(f"buffer_load_dwordx2 {vr(st+2*i,2)}, v{self.vt[2]}, {sr(c.sO,4)}, s{self.s_t0} offen{c.lsc}")
                    if i < 3: k(f"s_add_u32 s{self.s_t0}, s{self.s_t0}, 16384")
                order.extend('ssss')
    def epilogue(self, L_fin):
        k = self.c.k; c = self.c; t = self.vt; st = self.st; par = self.par; vl = c.vl
        k(f"""v_lshrrev_b32 v{t[0]}, 5, v{vl}
        v_lshlrev_b32 v{t[1]}, 4, v{t[0]}
        v_add_u32 v{t[1]}, {self.CSB}, v{t[1]}""")
        cs = [self.fa[0], self.fa[0] + 16, self.fa[0] + 32]; tmp = self.fb
        def rdcs(T):
            for j in range(4): k(f"ds_read_b128 {vr(cs[T%3]+4*j,4)}, v{t[1]} offset:{T*128+32*j}")
        rdcs(0); rdcs(1)
        k(f"""v_add_f32 v{st}, v{st}, v{st+2}
        v_add_f32 v{st+1}, v{st+1}, v{st+3}
        v_add_f32 v{st+4}, v{st+4}, v{st+6}
        v_add_f32 v{st+5}, v{st+5}, v{st+7}
        v_add_f32 v{st}, v{st}, v{st+4}
        v_add_f32 v{st+1}, v{st+1}, v{st+5}
        v_mov_b32 v{st+2}, v{st}
        v_mov_b32 v{st+3}, v{st+1}
        v_bfe_u32 v{t[2]}, v{vl}, 4, 1
        v_mul_u32_u24 v{t[2]}, 55296, v{t[2]}
        v_permlane32_swap_b32 v{st+2}, v{st}
        v_permlane32_swap_b32 v{st+3}, v{st+1}
        v_add_f32 v{st}, v{st}, v{st+2}
        v_add_f32 v{st+1}, v{st+1}, v{st+3}
        v_mul_f32 v{par}, {f2u(-1.0/640):#x}, v{st}
        v_mul_f32 v{st+1}, {f2u(1.0/640):#x}, v{st+1}
        v_fma_f32 v{st+1}, -v{par}, v{par}, v{st+1}
        v_max_f32 v{st+1}, 0, v{st+1}
        v_add_f32 v{par+4}, {f2u(1e-5):#x}, v{st+1}
        v_rsq_f32 v{par+2}, v{par+4}
        v_mov_b32 v{par+1}, v{par}
        v_mov_b32 v{par+5}, v{par+4}
        v_mul_f32 v{par+2}, {f2u(-math.log2(math.e)):#x}, v{par+2}
        v_lshl_add_u32 v{t[2]}, v{t[0]}, 8, v{t[2]}
        v_mov_b32 v{par+3}, v{par+2}
        v_and_b32 v{t[3]}, 15, v{vl}
        v_lshl_add_u32 v{t[2]}, v{t[3]}, 4, v{t[2]}
        s_mul_i32 s{self.s_t0}, s{self.s_tb}, {2*55296}
        s_mul_i32 s{self.s_t1}, s{self.s_g}, 3584
        s_add_u32 s{self.s_t0}, s{self.s_t0}, s{self.s_t1}
        s_add_u32 s{self.s_t0}, s{self.s_t0}, {ACT}""")
        for T in range(7):
            A = self.acc[T]; cc = cs[T % 3]
            if T + 2 < 7: rdcs(T + 2)
            k(f"s_waitcnt lgkmcnt({4*min(2, 6-T)})")
            for p in range(8): k(f"v_pk_fma_f32 {vr(A+2*p,2)}, {vr(cc+2*p,2)}, {vr(par,2)}, {vr(A+2*p,2)}")
            for p in range(4): k(f"v_pk_mul_f32 {vr(tmp+2*p,2)}, {vr(A+2*p,2)}, {vr(par+2,2)}")
            for i in range(8): k(f"v_exp_f32 v{tmp+i}, v{tmp+i}")
            for p in range(4): k(f"v_pk_mul_f32 {vr(A+2*p,2)}, {vr(A+2*p,2)}, {vr(A+8+2*p,2)}")
            for p in range(4): k(f"v_pk_fma_f32 {vr(tmp+2*p,2)}, {vr(tmp+2*p,2)}, {vr(par+4,2)}, {vr(par+4,2)}")
            for i in range(8): k(f"v_rcp_f32 v{tmp+i}, v{tmp+i}")
            for p in range(4): k(f"v_pk_mul_f32 {vr(A+2*p,2)}, {vr(A+2*p,2)}, {vr(tmp+2*p,2)}")
            for p in range(4): k(f"v_cvt_pk_bf16_f32 v{A+8+p}, v{A+2*p}, v{A+2*p+1}")
            k(f"buffer_store_dwordx4 {vr(A+8,4)}, v{t[2]}, {sr(c.sO,4)}, s{self.s_t0} offen offset:{T*512}{c.sc}")
            if T == 2: k(f"s_cmp_eq_u32 s{self.s_g}, 15\ns_cbranch_scc1 {L_fin}")
        k(f"{L_fin}:")

def gen(which, opt):
    if which in '35':
        o = opt('K' + which)
        c = Ctx("k3_oproj_kernel" if which == '3' else "k5_down_kernel", False); k = c.k
        P = P35(c, int(which), D=o.get('D', 12 if which == '5' else 20)); P.ahead = o.get('ahead', 2)
        c.entry(int(which) - 1, P.ptr_load())
        P.ids(); c.ws_srd()
        L = k.label("ld"); lw(c, L)
        P.setup(); P.main(); k.stamp(4); k.stamp(5); P.epilogue(); c.finish()
        k(f"{L}:"); P.ld_setup()
        for ch in range(2): P.ld_chunk(ch)
        P.ld_main(2); k("s_endpgm")
        return k, (256, 512, P.lds)
    if which == '4':
        o = opt('K4')
        c = Ctx("k4_gateup_kernel", False); k = c.k
        P = P4(c, D=o.get('D', 12)); P.ahead = o.get('ahead', 2)
        c.entry(3); P.ids(); c.ws_srd()
        L = k.label("ld"); lw(c, L)
        P.setup(); P.main(); k.stamp(4); k.stamp(5); P.epilogue(k.label("fin")); c.finish()
        k(f"{L}:"); P.ld_setup()
        for ch in range(2): P.ld_chunk(ch)
        P.ld_cs()
        P.ld_main(2, 1); k("s_endpgm")
        return k, (256, 512, P.lds)
    import mega
    return mega.gen(opt)
```

```python
from ph2 import *
NAME = "sequential_preLN__softmax_full_mha__swiglu_ffn__prompt_kernel"

def gen(opt):
    o = opt('M')
    c = Ctx(NAME, True); k = c.k
    sO = c.sO; sWS = c.sWS; s_w = c.s_w; s_wl = c.s_wl; vl = c.vl; vl16 = c.vl16; sc = c.sc
    rot = o.get('rot', True)
    sD = k.s(4)
    s_po = k.s(); s_cs = k.s(); vPA = k.v(); vPS = k.v(); sA = k.s(4); sB = k.s(4); sR = [k.s() for _ in range(5)]
    c.s0 = k.snext; c.v0 = k.vnext
    SLOT = 32768; NS = 4
    SL = 12288; VB = 3 * SL; PREP = 6 * SL
    sP = k.s(4); sX = sA; sW = sB; sQ = k.s(8); sWD = k.s(2); sPC = k.s(2)
    s_tb = k.s(); s_cg = k.s(); s_t0 = k.s(); s_t2 = k.s()
    s_ow, s_m0x, s_slot, s_delta, s_t1 = sR
    s_ox = k.s(); s_cnt = k.s(); s_rs = k.s(); s_msk = k.s()
    vt = [k.v() for _ in range(6)]
    vXA = [k.v() for _ in range(4)]; vWA = [k.v(), k.v()]
    vX = [k.v() for _ in range(4)]; vW = [k.v() for _ in range(4)]
    acc = [[k.v(16, 4) for _ in range(2)] for _ in range(2)]
    fx = [[k.v(4, 4) for _ in range(2)] for _ in range(2)]
    fw = [[k.v(4, 4) for _ in range(2)] for _ in range(2)]
    acs = k.v(16, 4); ones = k.v(4, 4); vpf = k.v(16, 4)
    XCH = NS * SLOT; NM, RS, CS = 0, 512, 1024
    L_spare = k.label("spare"); L_v = k.label("vpath"); L_J0 = k.label("J0"); L_comp = k.label("comp")
    k.kidx = 1; k.stamp_real(0); k.stamp(1)
    k(f"""s_load_dwordx4 {sr(sP,4)}, s[0:1], {KA_X}
    s_load_dwordx4 {sr(sD,4)}, s[0:1], {KA_DBG}
    s_cmp_ge_u32 s2, 256
    s_cbranch_scc1 {c.L_end}
    v_lshrrev_b32 v{vt[0]}, 6, v0
    v_and_b32 v{vl}, 63, v0
    v_readfirstlane_b32 s{s_w}, v{vt[0]}
    s_and_b32 s{s_t0}, s2, 3
    s_lshl_b32 s{s_t0}, s{s_t0}, 2
    s_bfe_u32 s{s_t1}, s2, 0x20003
    s_add_u32 s{s_tb}, s{s_t0}, s{s_t1}
    s_bfe_u32 s{s_t0}, s2, 0x10002
    s_lshl_b32 s{s_t0}, s{s_t0}, 3
    s_lshr_b32 s{s_t1}, s2, 5
    s_add_u32 s{s_cg}, s{s_t0}, s{s_t1}
    s_and_b32 s{s_wl}, s{s_w}, 3
    s_cmp_eq_u32 s{s_cg}, 15
    s_cbranch_scc1 {L_spare}
    s_cmp_ge_u32 s{s_w}, 4
    s_cbranch_scc1 {L_comp}
    v_lshrrev_b32 v{vt[0]}, 3, v{vl}
    v_lshl_add_u32 v{vt[0]}, s{s_w}, 5, v{vt[0]}
    v_mul_u32_u24 v{vt[0]}, 1280, v{vt[0]}
    v_lshrrev_b32 v{vt[1]}, 4, v{vl}
    v_and_b32 v{vt[2]}, 7, v{vl}
    v_xor_b32 v{vt[2]}, v{vt[2]}, v{vt[1]}
    v_lshl_add_u32 v{vX[0]}, v{vt[2]}, 4, v{vt[0]}
    v_xor_b32 v{vX[1]}, 64, v{vX[0]}
    v_add_u32 v{vX[2]}, {2*(8*1280-1024)}, v{vX[0]}
    v_add_u32 v{vX[1]}, {8*1280-1024}, v{vX[1]}
    v_add_u32 v{vX[3]}, {2*(8*1280-1024)}, v{vX[1]}
    v_lshl_add_u32 v{vt[0]}, s{s_w}, 4, v{vt[1]}
    v_mul_u32_u24 v{vt[0]}, 3840, v{vt[0]}
    v_and_b32 v{vt[2]}, 15, v{vl}
    v_lshlrev_b32 v{vt[3]}, 2, v{vt[1]}
    v_xor_b32 v{vt[2]}, v{vt[2]}, v{vt[3]}
    v_lshl_add_u32 v{vW[0]}, v{vt[2]}, 4, v{vt[0]}
    v_add_u32 v{vW[1]}, {4*3840-1024}, v{vW[0]}
    v_add_u32 v{vW[2]}, {2*(4*3840-1024)}, v{vW[0]}
    v_add_u32 v{vW[3]}, {3*(4*3840-1024)}, v{vW[0]}
    s_mul_i32 s{s_t0}, s{s_tb}, {128*1280}
    s_lshl_b32 s{s_t1}, s{s_cg}, 8
    s_lshl_b32 s{s_m0x}, s{s_w}, 12
    s_mov_b32 s{sX+2}, {128*1280}
    s_mov_b32 s{sX+3}, 0x20000
    s_sub_u32 s{sW+2}, {640*3840}, s{s_t1}
    s_mov_b32 s{sW+3}, 0x20000""")
    if rot: k(f"s_and_b32 s{s_t2}, s2, 7\ns_lshl_b32 s{s_ox}, s{s_t2}, 7\ns_mul_i32 s{s_ow}, s{s_t2}, {64*3840}")
    else: k(f"s_mov_b32 s{s_ox}, 0\ns_mov_b32 s{s_ow}, 0")
    k(f"""s_waitcnt lgkmcnt(0)
    s_add_u32 s{sX}, s{sP}, s{s_t0}
    s_addc_u32 s{sX+1}, s{sP+1}, 0
    s_add_u32 s{sW}, s{sP+2}, s{s_t1}
    s_addc_u32 s{sW+1}, s{sP+3}, 0""")
    def dma_chunk(slot_const=None):
        if slot_const is not None: k(f"s_add_u32 m0, s{s_m0x}, {slot_const*SLOT}")
        else: k(f"s_add_u32 m0, s{s_m0x}, s{s_rs}")
        k(f"s_add_u32 s{s_t0}, s{s_ox}, 128")
        for i in range(4):
            k(f"buffer_load_dwordx4 v{vX[i]}, {sr(sX,4)}, s{s_ox} offen offset:{i*1024} lds")
        k(f"s_add_u32 m0, m0, 16384\ns_add_u32 s{s_t1}, s{s_ow}, {64*3840}")
        for i in range(4):
            k(f"buffer_load_dwordx4 v{vW[i]}, {sr(sW,4)}, s{s_ow} offen offset:{i*1024} lds")
        k(f"s_cmp_eq_u32 s{s_t0}, 1280\ns_cselect_b32 s{s_ox}, 0, s{s_t0}\ns_cselect_b32 s{s_ow}, 0, s{s_t1}")
    def common_setup():
        k(f"""s_mov_b64 {sr(sWS,2)}, {sr(sD+2,2)}
        s_movk_i32 s{sD+2}, 256
        s_mov_b32 s{sD+3}, 0x20000
        v_lshlrev_b32 v{vl16}, 4, v{vl}""")
        srd(k, sO, sWS, sWS + 1, WSEND)
        k(f"s_load_dwordx8 {sr(sQ,8)}, s[0:1], {KA_WO}\ns_load_dwordx2 {sr(sWD,2)}, s[0:1], {KA_WD}")
    def xaddr():
        k(f"""v_and_b32 v{vt[0]}, 31, v{vl}
        v_lshrrev_b32 v{vt[1]}, 5, v{vl}
        v_bfe_u32 v{vt[2]}, v{vl}, 1, 3
        v_xor_b32 v{vt[2]}, v{vt[2]}, v{vt[1]}
        v_lshlrev_b32 v{vt[2]}, 4, v{vt[2]}
        v_lshl_add_u32 v{vt[2]}, v{vt[0]}, 7, v{vt[2]}""")
    def advance(regs):
        k(f"s_cmp_eq_u32 s{s_slot}, {(NS-1)*SLOT}\ns_mov_b32 s{s_delta}, {SLOT}")
        k(f"s_cselect_b32 s{s_delta}, {(-(NS-1)*SLOT) & 0xffffffff}, s{s_delta}")
        k(f"s_add_u32 s{s_slot}, s{s_slot}, s{s_delta}")
        return [f"v_add_u32 v{r}, s{s_delta}, v{r}" for r in regs]
    def prep_decode(loads):
        pid, cb, st = s_t0, s_t2, s_ox
        R0, A_, B_, C_, u = sR
        Ld = k.label("pd"); Lg = k.label("pg")
        k(f"""s_lshl_b32 s{pid}, s2, 2
        s_add_u32 s{pid}, s{pid}, s{s_wl}
        s_mov_b32 s{B_}, 8
        s_mov_b32 s{C_}, 4
        v_bfe_u32 v{vt[2]}, v{vl}, 4, 1
        v_lshrrev_b32 v{vt[1]}, 5, v{vl}
        s_waitcnt lgkmcnt(0)
        s_cmp_ge_u32 s{pid}, 560
        s_cbranch_scc1 {Ld}
        s_mul_i32 s{u}, s{pid}, 4682
        s_lshr_b32 s{u}, s{u}, 16
        s_mul_i32 s{cb}, s{u}, 14
        s_sub_u32 s{cb}, s{pid}, s{cb}
        s_mul_i32 s{s_po}, s{u}, {112*1024}
        s_add_u32 s{s_po}, s{s_po}, {WGUP}
        s_mov_b32 s{s_cs}, {CSG}
        v_lshlrev_b32 v{vt[2]}, 11, v{vt[2]}
        v_lshl_add_u32 v{vt[3]}, v{vt[1]}, 9, v{vt[2]}""")
        if loads:
            k(f"""s_lshl_b32 s{R0}, s{u}, 4
            s_mov_b32 s{A_}, 0
            s_movk_i32 s{st}, 3456
            s_mov_b64 {sr(sA,2)}, {sr(sQ+4,2)}
            s_mov_b64 {sr(sB,2)}, {sr(sQ+6,2)}
            s_mov_b32 s{sA+2}, {640*3456}""")
        k(f"""s_branch {Lg}
        {Ld}:
        s_min_u32 s{pid}, s{pid}, 929
        s_cmp_lt_u32 s{pid}, 830
        s_movk_i32 s{cb}, 830
        s_cselect_b32 s{cb}, 560, s{cb}
        s_mov_b32 s{s_po}, {WOP}
        s_cselect_b32 s{s_po}, {WDP}, s{s_po}""")
        if loads:
            k(f"""s_cselect_b64 {sr(sA,2)}, {sr(sWD,2)}, {sr(sQ,2)}
            s_cselect_b32 s{A_}, 16, 20
            s_cselect_b32 s{R0}, 32, 40
            s_mov_b32 s{sA+2}, {640*1280}
            s_cselect_b32 s{sA+2}, {1728*1280}, s{sA+2}""")
        k(f"""s_sub_u32 s{cb}, s{pid}, s{cb}
        s_mul_i32 s{u}, s{cb}, 13108
        s_lshr_b32 s{u}, s{u}, 16
        s_mul_i32 s{st}, s{u}, 5
        s_sub_u32 s{cb}, s{cb}, s{st}
        s_mul_i32 s{st}, s{u}, {40*1024}
        s_add_u32 s{s_po}, s{s_po}, s{st}
        s_mov_b32 s{s_cs}, {WSEND}
        v_lshlrev_b32 v{vt[2]}, 9, v{vt[2]}
        v_lshl_add_u32 v{vt[3]}, v{vt[1]}, 11, v{vt[2]}""")
        if loads:
            k(f"""s_mul_i32 s{R0}, s{R0}, s{u}
            s_mul_i32 s{st}, s{u}, 160
            s_sub_u32 s{st}, s{st}, {16*160-16}
            s_cmp_ge_u32 s{pid}, 910
            s_cselect_b32 s{R0}, s{st}, s{R0}
            s_cselect_b32 s{A_}, 80, s{A_}
            s_cselect_b32 s{B_}, 20, 8
            s_cselect_b32 s{C_}, 40, 4
            s_movk_i32 s{st}, 1280
            s_mov_b64 {sr(sB,2)}, {sr(sA,2)}""")
        k(f"""{Lg}:
        s_lshl_b32 s{cb}, s{cb}, 1
        s_lshr_b32 s{pid}, s{s_w}, 2
        s_add_u32 s{pid}, s{pid}, s{cb}
        s_lshl_b32 s{u}, s{pid}, 12
        s_add_u32 s{s_po}, s{s_po}, s{u}
        s_lshl_b32 s{u}, s{pid}, 9
        s_add_u32 s{s_cs}, s{s_cs}, s{u}
        v_bfe_u32 v{vt[2]}, v{vl}, 2, 2
        v_lshl_add_u32 v{vt[3]}, v{vt[2]}, 7, v{vt[3]}
        v_and_b32 v{vt[2]}, 3, v{vl}
        v_lshl_add_u32 v{vt[3]}, v{vt[2]}, 3, v{vt[3]}
        s_lshl_b32 s{u}, s{s_w}, 12
        s_add_u32 s{u}, s{u}, {PREP}
        v_add_u32 v{vPA}, s{u}, v{vt[3]}""")
        if loads:
            k(f"""s_mov_b32 s{sB+2}, s{sA+2}
            s_mov_b32 s{sA+3}, 0x20000
            s_mov_b32 s{sB+3}, 0x20000
            v_mul_u32_u24 v{vt[2]}, s{C_}, v{vt[1]}
            v_bfe_u32 v{vt[3]}, v{vl}, 3, 2
            v_add_u32 v{vt[2]}, v{vt[2]}, v{vt[3]}
            v_mul_u32_u24 v{vt[2]}, s{st}, v{vt[2]}
            v_and_b32 v{vt[3]}, 7, v{vl}
            v_lshl_add_u32 v{vPS}, v{vt[3]}, 4, v{vt[2]}
            s_mul_i32 s{R0}, s{R0}, s{st}
            s_lshl_b32 s{cb}, s{pid}, 7
            s_add_u32 s{R0}, s{R0}, s{cb}
            s_mul_i32 s{A_}, s{A_}, s{st}
            s_mul_i32 s{B_}, s{B_}, s{st}
            s_add_u32 s{A_}, s{A_}, s{R0}
            s_add_u32 s{C_}, s{A_}, s{B_}
            s_add_u32 s{B_}, s{B_}, s{R0}""")
    dma_chunk(0); dma_chunk(1)
    common_setup()
    k(f"""s_mov_b32 s{s_rs}, {3*SLOT}
    s_waitcnt vmcnt(8)
    s_barrier""")
    k.stamp(2)
    dma_chunk(2)
    L = k.label("hloop"); Lz = k.label("hz"); Lzx = k.label("hzx"); Lnz = k.label("hnz")
    k(f"s_mov_b32 s{s_cnt}, 7\n{L}:\ns_waitcnt vmcnt(8)\ns_barrier")
    dma_chunk()
    k(f"""s_add_u32 s{s_rs}, s{s_rs}, {SLOT}
    s_and_b32 s{s_rs}, s{s_rs}, {NS*SLOT-1}
    s_sub_u32 s{s_cnt}, s{s_cnt}, 1
    s_cmp_lg_u32 s{s_cnt}, 0
    s_cbranch_scc1 {L}
    v_and_b32 v{vt[3]}, 15, v{vl}
    v_lshlrev_b32 v{vt[3]}, 4, v{vt[3]}
    buffer_load_dword v{vt[4]}, v{vt[3]}, {sr(sD,4)}, 0 offen sc1
    s_waitcnt vmcnt(9)
    s_barrier
    s_waitcnt vmcnt(1)
    s_barrier
    s_cmp_lg_u32 s{s_w}, 0
    s_cbranch_scc1 {Lnz}
    s_mov_b32 s{s_t1}, 0
    {Lz}:
    s_waitcnt vmcnt(0)
    v_cmp_ne_u32 vcc, 0, v{vt[4]}
    s_add_u32 s{s_t1}, s{s_t1}, 1
    s_cmp_eq_u64 vcc, -1
    s_cbranch_scc1 {Lzx}
    s_cmp_gt_u32 s{s_t1}, 0x40000
    s_cbranch_scc1 {Lzx}
    buffer_load_dword v{vt[4]}, v{vt[3]}, {sr(sD,4)}, 0 offen sc1
    s_branch {Lz}
    {Lzx}:
    s_mov_b32 m0, {XCH}
    s_lshl_b32 s{s_t0}, s{s_tb}, 10
    s_add_u32 s{s_t0}, s{s_t0}, {LN1}
    buffer_load_dwordx4 v{vl16}, {sr(sO,4)}, s{s_t0} offen sc1 lds
    {Lnz}:
    s_waitcnt vmcnt(0)""")
    k.stamp(3)
    k(f"s_barrier\ns_branch {L_J0}")
    k(f"""{L_comp}:
    s_getpc_b64 {sr(sPC,2)}
    L_pf_here:
    s_lshr_b32 s{s_t0}, s2, 3
    s_lshl_b32 s{s_t0}, s{s_t0}, 2
    s_add_u32 s{s_t0}, s{s_t0}, s{s_wl}
    s_lshl_b32 s{s_t0}, s{s_t0}, 10
    s_sub_u32 s{sPC}, s{sPC}, L_pf_here - {NAME}
    s_subb_u32 s{sPC+1}, s{sPC+1}, 0
    s_cmp_gt_u32 s{s_t0}, L_code_end - {NAME} - 1024
    s_cbranch_scc1 L_pf_skip
    v_lshl_add_u32 v{vt[0]}, v{vl}, 4, s{s_t0}
    global_load_dwordx4 {vr(vpf,4)}, v{vt[0]}, {sr(sPC,2)}
    L_pf_skip:
    s_waitcnt lgkmcnt(0)""")
    if o.get('spf'):
        k(f"""s_mov_b64 {sr(sX,2)}, {sr(sP,2)}
        s_mov_b32 s{sX+2}, {2048*1280}
        s_mov_b32 s{sX+3}, 0x20000
        s_mov_b64 {sr(sW,2)}, {sr(sP+2,2)}
        s_mov_b32 s{sW+2}, {640*3840}
        s_mov_b32 s{sW+3}, 0x20000
        s_mul_i32 s{s_t0}, s{s_tb}, 15
        s_add_u32 s{s_t0}, s{s_t0}, s{s_cg}
        s_lshl_b32 s{s_t0}, s{s_t0}, 2
        s_add_u32 s{s_t0}, s{s_t0}, s{s_wl}
        s_mul_i32 s{s_t0}, s{s_t0}, 3072
        v_lshlrev_b32 v{vt[0]}, 4, v{vl}""")
        for i in range(3):
            if o['spf'] & 1: k(f"buffer_load_dwordx4 {vr(vpf+4+4*i,4)}, v{vt[0]}, {sr(sX,4)}, s{s_t0} offen offset:{1024*i}")
            if o['spf'] & 2: k(f"buffer_load_dwordx4 {vr(vpf+4+4*i,4)}, v{vt[0]}, {sr(sW,4)}, s{s_t0} offen offset:{1024*i}")
    common_setup()
    xaddr()
    k(f"""s_lshr_b32 s{s_t0}, s{s_wl}, 1
    s_and_b32 s{s_t1}, s{s_wl}, 1
    s_lshl_b32 s{s_t2}, s{s_t0}, 13
    v_add_u32 v{vXA[0]}, s{s_t2}, v{vt[2]}""")
    for s in range(1, 4): k(f"v_xor_b32 v{vXA[s]}, {32*s}, v{vXA[0]}")
    k(f"""v_bfe_u32 v{vt[2]}, v{vl}, 2, 2
    v_lshl_add_u32 v{vt[3]}, v{vt[1]}, 3, v{vt[2]}
    v_lshlrev_b32 v{vt[3]}, 8, v{vt[3]}
    s_lshl_b32 s{s_t2}, s{s_t1}, 1
    s_add_u32 s{s_t2}, s{s_t2}, s{s_t0}
    v_xor_b32 v{vt[2]}, s{s_t2}, v{vt[2]}
    v_lshl_add_u32 v{vt[3]}, v{vt[2]}, 6, v{vt[3]}
    v_bfe_u32 v{vt[2]}, v{vl}, 4, 1
    v_lshl_add_u32 v{vt[3]}, v{vt[2]}, 5, v{vt[3]}
    v_and_b32 v{vt[2]}, 3, v{vl}
    v_lshl_add_u32 v{vt[3]}, v{vt[2]}, 3, v{vt[3]}
    v_add_u32 v{vWA[0]}, 16384, v{vt[3]}
    v_xor_b32 v{vWA[1]}, 64, v{vWA[0]}
    s_mov_b32 s{s_slot}, 0""")
    for i in range(4): k(f"v_mov_b32 v{ones+i}, 0x3f803f80")
    def reads(buf, s):
        out = []
        for mt in range(2):
            out.append(f"ds_read_b128 {vr(fx[buf][mt],4)}, v{vXA[s]} offset:{mt*4096}")
        for nt in range(2):
            for rd in range(2):
                out.append(f"ds_read_b64_tr_b16 {vr(fw[buf][nt]+2*rd,2)}, v{vWA[nt]} offset:{(16*s+4*rd)*256}")
        return [out[2], out[3], out[0], out[1], out[4], out[5]]
    def mfmas(buf, vpath, first):
        m = []
        for nt in range(2):
            for mt in range(2):
                a, b = (fx[buf][mt], fw[buf][nt]) if vpath else (fw[buf][nt], fx[buf][mt])
                m.append(f"{M16} {vr(acc[nt][mt],16)}, {vr(a,4)}, {vr(b,4)}, {'0' if first else vr(acc[nt][mt],16)}")
        m.append(f"{M16} {vr(acs,16)}, {vr(ones,4)}, {vr(fw[buf][0],4)}, {'0' if first else vr(acs,16)}")
        return m
    def chunk(vpath, last, first=False):
        for s in range(3):
            k("s_waitcnt lgkmcnt(0)")
            m = mfmas(s & 1, vpath, first and s == 0); rd = reads((s + 1) & 1, s + 1)
            ad = []
            if not last and s == 0: ad = [None]
            for i in range(5):
                k(m[i])
                for x in rd[2*i:2*i+2]: k(x)
                if i == 3 and not last:
                    if s == 0: adv[:] = advance([vXA[0], vXA[1], vXA[2], vXA[3], vWA[0], vWA[1]])
                    k(adv[s])
        k("s_waitcnt lgkmcnt(0)")
        m = mfmas(1, vpath, False)
        if last:
            for x in m: k(x)
            return
        k(m[0])
        for x in adv[3:]: k(x)
        k(m[1])
        k("s_barrier")
        rd = reads(0, 0)
        for x in rd[:3]: k(x)
        k(m[2])
        for x in rd[3:]: k(x)
        k(m[3]); k(m[4])
    adv = []
    def mainloop(vpath):
        k("s_barrier")
        k.stamp(2)
        for x in reads(0, 0): k(x)
        chunk(vpath, False, first=True)
        L = k.label("loop")
        k(f"s_mov_b32 s{s_cnt}, 8\n{L}:")
        chunk(vpath, False)
        k(f"s_sub_u32 s{s_cnt}, s{s_cnt}, 1\ns_cmp_lg_u32 s{s_cnt}, 0\ns_cbranch_scc1 {L}")
        chunk(vpath, True)
        k.stamp(3)
    def epilogue(vpath):
        t = vt
        la = fx[0][0]; rg = k.v(32, 4); hoff = t[3]
        k(f"""v_and_b32 v{t[0]}, 31, v{vl}
        s_lshl_b32 s{s_t2}, s{s_t2}, 7
        s_add_u32 s{s_ox}, s{s_t2}, {XCH}
        v_lshl_add_u32 v{t[2]}, v{t[0]}, 2, s{s_ox}
        s_lshl_b32 s{s_ow}, s{s_t0}, 8
        s_add_u32 s{s_ow}, s{s_ow}, {XCH}
        v_lshl_add_u32 v{t[1]}, v{t[0]}, 2, s{s_ow}
        v_lshrrev_b32 v{hoff}, 5, v{vl}
        v_lshlrev_b32 v{hoff}, 4, v{hoff}
        s_cmp_lt_u32 s{s_cg}, 5
        s_cselect_b32 s{s_cnt}, {f2u(QSCALE):#x}, 1.0
        ds_write_b32 v{t[2]}, v{acs} offset:{CS}
        s_waitcnt lgkmcnt(0)
        s_barrier""")
        if not vpath:
            k(f"""ds_read_b32 v{la+0}, v{t[1]} offset:{NM}
            ds_read_b32 v{la+2}, v{t[1]} offset:{RS}
            ds_read_b32 v{la+4}, v{t[1]} offset:{NM+128}
            ds_read_b32 v{la+6}, v{t[1]} offset:{RS+128}
            v_add_u32 v{t[5]}, s{s_ox}, v{hoff}
            v_xor_b32 v{t[4]}, 128, v{t[5]}""")
            for nt in range(2):
                for j in range(4):
                    k(f"ds_read_b128 {vr(rg+16*nt+4*j,4)}, v{t[5] if nt==0 else t[4]} offset:{CS+32*j}")
            k(f"""v_lshlrev_b32 v{t[0]}, 4, v{t[0]}
            v_lshl_add_u32 v{t[0]}, v{hoff}, 11, v{t[0]}
            s_lshl_b32 s{s_ox}, s{s_cg}, 19
            s_lshl_b32 s{s_ow}, s{s_t2}, 10
            s_add_u32 s{s_ox}, s{s_ox}, s{s_ow}
            s_lshl_b32 s{s_ow}, s{s_tb}, 11
            s_add_u32 s{s_ox}, s{s_ox}, s{s_ow}
            s_lshl_b32 s{s_ow}, s{s_t0}, 10
            s_add_u32 s{s_ox}, s{s_ox}, s{s_ow}
            s_waitcnt lgkmcnt(4)
            v_mov_b32 v{la+1}, v{la+0}
            v_mul_f32 v{la+3}, s{s_cnt}, v{la+2}
            v_mul_f32 v{la+2}, s{s_cnt}, v{la+2}
            v_mov_b32 v{la+5}, v{la+4}
            v_mul_f32 v{la+7}, s{s_cnt}, v{la+6}
            v_mul_f32 v{la+6}, s{s_cnt}, v{la+6}""")
            for nt in range(2):
                if nt == 1: k("s_waitcnt lgkmcnt(0)")
                for mt in range(2):
                    A = acc[nt][mt]
                    for p in range(8):
                        k(f"v_pk_fma_f32 {vr(A+2*p,2)}, {vr(rg+16*nt+2*p,2)}, {vr(la+4*mt,2)}, {vr(A+2*p,2)}")
                    for p in range(8):
                        k(f"v_pk_mul_f32 {vr(A+2*p,2)}, {vr(A+2*p,2)}, {vr(la+4*mt+2,2)}")
                    for p in range(8):
                        k(f"v_cvt_pk_bf16_f32 v{A+p}, v{A+2*p}, v{A+2*p+1}")
                    k(f"s_xor_b32 s{s_ow}, s{s_ox}, {(nt*4*32768) | (mt*512)}")
                    k(f"s_add_u32 s{s_rs}, s{s_ow}, {2*32768}")
                    for jp in range(2):
                        k(f"v_permlane32_swap_b32 v{A+4*jp}, v{A+4*jp+2}\nv_permlane32_swap_b32 v{A+4*jp+1}, v{A+4*jp+3}")
                    k(f"buffer_store_dwordx4 {vr(A,4)}, v{t[0]}, {sr(sO,4)}, s{s_ow} offen{sc}")
                    k(f"buffer_store_dwordx4 {vr(A+4,4)}, v{t[0]}, {sr(sO,4)}, s{s_rs} offen{sc}")
        else:
            rg2 = k.v(32, 4)
            k(f"""v_xor_b32 v{t[4]}, 128, v{t[2]}
            ds_read_b32 v{la+2}, v{t[4]} offset:{CS}
            v_add_u32 v{t[5]}, s{s_ow}, v{hoff}""")
            for mt in range(2):
                for j in range(4):
                    k(f"ds_read_b128 {vr(rg+16*mt+4*j,4)}, v{t[5]} offset:{NM+128*mt+32*j}")
                    k(f"ds_read_b128 {vr(rg2+16*mt+4*j,4)}, v{t[5]} offset:{RS+128*mt+32*j}")
            va = [la + 4, la + 5]
            k(f"""s_sub_u32 s{s_ox}, s{s_cg}, 10
            s_lshl_b32 s{s_ox}, s{s_ox}, 7
            s_lshr_b32 s{s_ow}, s{s_t2}, 2
            s_add_u32 s{s_ox}, s{s_ox}, s{s_ow}
            v_add_u32 v{t[0]}, s{s_ox}, v{t[0]}
            v_mul_u32_u24 v{hoff}, 21, v{hoff}""")
            for nt in range(2):
                if nt == 1: k(f"v_xor_b32 v{t[0]}, 32, v{t[0]}")
                k(f"""v_mul_u32_u24 v{t[1]}, 3277, v{t[0]}
                v_lshrrev_b32 v{t[1]}, 16, v{t[1]}
                v_mul_u32_u24 v{t[2]}, {VHEAD - 320}, v{t[1]}
                v_lshl_add_u32 v{t[2]}, v{t[0]}, 4, v{t[2]}
                v_add_u32 v{va[nt]}, v{t[2]}, v{hoff}""")
            k(f"""s_lshl_b32 s{s_ox}, s{s_tb}, 1
            s_add_u32 s{s_ox}, s{s_ox}, s{s_t0}
            s_mul_i32 s{s_ox}, s{s_ox}, 2688
            s_add_u32 s{s_ox}, s{s_ox}, {VIMG}
            v_mov_b32 v{la+0}, v{acs}
            v_mov_b32 v{la+1}, v{acs}
            s_waitcnt lgkmcnt(8)
            v_mov_b32 v{la+3}, v{la+2}""")
            for mt in range(2):
                if mt == 1: k("s_waitcnt lgkmcnt(0)")
                for nt in range(2):
                    A = acc[nt][mt]
                    for p in range(8):
                        k(f"v_pk_fma_f32 {vr(A+2*p,2)}, {vr(rg+16*mt+2*p,2)}, {vr(la+2*nt,2)}, {vr(A+2*p,2)}")
                    for p in range(8):
                        k(f"v_pk_mul_f32 {vr(A+2*p,2)}, {vr(A+2*p,2)}, {vr(rg2+16*mt+2*p,2)}")
                    for p in range(8):
                        k(f"v_cvt_pk_bf16_f32 v{A+p}, v{A+2*p}, v{A+2*p+1}")
                    k(f"buffer_store_dwordx4 {vr(A,4)}, v{va[nt]}, {sr(sO,4)}, s{s_ox} offen offset:{1344*mt}{sc}")
                    k(f"buffer_store_dwordx4 {vr(A+4,4)}, v{va[nt]}, {sr(sO,4)}, s{s_ox} offen offset:{1344*mt+672}{sc}")
    k(f"s_cmp_ge_u32 s{s_cg}, 10\ns_cbranch_scc1 {L_v}")
    vsave = k.vnext
    mainloop(False); epilogue(False); k(f"s_branch {L_J0}")
    k.vnext = vsave
    k(f"{L_v}:")
    mainloop(True); epilogue(True)
    k(f"{L_J0}:\ns_setprio 0")
    k.stamp(4)
    prep_decode(True)
    k(f"""s_lshl_b32 s{c.s_f}, s{s_cg}, 5
    s_add_u32 s{c.s_f}, s{c.s_f}, s{s_tb}
    s_lshl_b32 s{c.s_f}, s{c.s_f}, {FL}
    s_add_u32 s{c.s_f}, s{c.s_f}, {F1}""")
    def spare():
        o4 = acs; xb = acc[0][0]; sm = [fw[0][0], fw[0][0] + 1]; sq = [fw[0][0] + 2, fw[0][0] + 3]
        k(f"""{L_spare}:
        v_lshrrev_b32 v{vt[0]}, 3, v{vl}
        v_lshl_add_u32 v{vt[0]}, s{s_w}, 4, v{vt[0]}
        v_mul_u32_u24 v{vt[0]}, 1280, v{vt[0]}
        v_and_b32 v{vt[2]}, 7, v{vl}
        v_lshl_add_u32 v{vX[0]}, v{vt[2]}, 4, v{vt[0]}
        v_add_u32 v{vX[1]}, {8*1280}, v{vX[0]}
        s_mul_i32 s{s_t0}, s{s_tb}, {128*1280}
        s_mov_b32 s{sX+2}, {128*1280}
        s_mov_b32 s{sX+3}, 0x20000
        s_waitcnt lgkmcnt(0)
        s_add_u32 s{sX}, s{sP}, s{s_t0}
        s_addc_u32 s{sX+1}, s{sP+1}, 0""")
        for g in range(2):
            for i in range(10): k(f"buffer_load_dwordx4 {vr(xb+40*g+4*i,4)}, v{vX[g]}, {sr(sX,4)}, 0 offen offset:{128*i}")
        common_setup()
        srd(k, sW, sWS, sWS + 1, CSG + ZERO_BYTES)
        o4 = xb + 80
        k(f"""s_lshl_b32 s{s_t0}, s{s_tb}, 1
        s_mul_i32 s{s_t0}, s{s_t0}, {VHEAD}
        s_add_u32 s{s_t0}, s{s_t0}, {VIMG + 320}
        v_mul_u32_u24 v{vt[0]}, 336, v0
        v_lshlrev_b32 v{vt[1]}, 4, v0
        s_lshl_b32 s{s_t1}, s{s_tb}, 13
        s_add_u32 s{s_t1}, s{s_t1}, {CSG}
        s_mov_b32 s{s_msk}, 0x3f803f80""")
        for i in range(4): k(f"v_mov_b32 v{o4+i}, 0x3f803f80\nv_mov_b32 v{o4+4+i}, 0")
        nz = (ZERO_BYTES + 131071) // 131072
        for z in range(nz):
            k(f"buffer_store_dwordx4 {vr(o4+4,4)}, v{vt[1]}, {sr(sW,4)}, s{s_t1} offen{sc}\ns_add_u32 s{s_t1}, s{s_t1}, 131072")
        k(f"buffer_store_dwordx4 {vr(o4,4)}, v{vt[0]}, {sr(sO,4)}, s{s_t0} offen{sc}")
        st = o4 + 8
        for i in range(4): k(f"v_mov_b32 v{st+i}, 0")
        for g in range(2):
            for i in range(10):
                k(f"s_waitcnt vmcnt({19 - 10*g - i + nz + 1})")
                for j in range(4):
                    x = xb + 40 * g + 4 * i + j
                    k(f"v_dot2c_f32_bf16 v{st+2*g}, s{s_msk}, v{x}\nv_dot2c_f32_bf16 v{st+2*g+1}, v{x}, v{x}")
        for ctl in ("quad_perm:[1,0,3,2]", "quad_perm:[2,3,0,1]", "row_half_mirror"):
            for i in range(4): k(f"v_add_f32_dpp v{st+i}, v{st+i}, v{st+i} {ctl} row_mask:0xf bank_mask:0xf")
        Ln = k.label("sn")
        k(f"""v_and_b32 v{vt[2]}, 1, v{vl}
        v_cmp_eq_u32 vcc, 1, v{vt[2]}
        v_lshrrev_b32 v{vt[3]}, 3, v{vl}
        v_lshl_add_u32 v{vt[3]}, v{vt[2]}, 3, v{vt[3]}
        v_cndmask_b32 v{st}, v{st}, v{st+2}, vcc
        v_cndmask_b32 v{st+1}, v{st+1}, v{st+3}, vcc
        v_lshlrev_b32 v{vt[3]}, 2, v{vt[3]}
        v_mul_f32 v{st}, {f2u(-1.0/640):#x}, v{st}
        v_mul_f32 v{st+1}, {f2u(1.0/640):#x}, v{st+1}
        v_fma_f32 v{st+1}, -v{st}, v{st}, v{st+1}
        v_max_f32 v{st+1}, 0, v{st+1}
        v_add_f32 v{st+1}, {f2u(1e-5):#x}, v{st+1}
        v_rsq_f32 v{st+1}, v{st+1}
        s_lshl_b32 s{s_t0}, s{s_tb}, 10
        s_lshl_b32 s{s_t1}, s{s_w}, 6
        s_add_u32 s{s_t0}, s{s_t0}, s{s_t1}
        s_add_u32 s{s_t0}, s{s_t0}, {LN1}
        s_mov_b32 exec_lo, 0x03030303
        s_mov_b32 exec_hi, 0x03030303
        buffer_store_dword v{st}, v{vt[3]}, {sr(sO,4)}, s{s_t0} offen{sc}
        buffer_store_dword v{st+1}, v{vt[3]}, {sr(sO,4)}, s{s_t0} offen offset:512{sc}
        s_mov_b64 exec, -1
        s_waitcnt vmcnt(0)
        s_barrier
        s_cmp_lg_u32 s{s_w}, 4
        s_cbranch_scc1 {Ln}
        s_lshl_b32 s{s_t0}, s{s_tb}, 4
        v_mov_b32 v{vt[2]}, 1
        v_mov_b32 v{vt[3]}, 0
        s_mov_b64 exec, 1
        buffer_store_dword v{vt[2]}, v{vt[3]}, {sr(sD,4)}, s{s_t0} offen sc1
        s_mov_b64 exec, -1
        {Ln}:""")
        k.stamp(2); k.stamp(3)
        k(f"s_branch {L_J0}")
    def deferred(fn):
        n = len(k.lines); fn(); out = k.lines[n:]; del k.lines[n:]; return out
    spare_code = deferred(spare)
    c.reset()
    prio = o.get('prio', (18, 6, 3, 1))
    s_h = k.s(); s_pa = k.s(); s_pr = k.s(); s_odd8 = k.s(); s_tok = k.s()
    s_t0 = k.s(); s_t1 = k.s(); s_t2 = k.s(); s_t3 = k.s()
    so = [k.s() for _ in range(3)]; s_d = k.s(); s_mo = k.s(); s_ms = k.s(); s_q1 = k.s(); s_q2 = k.s()
    sG = k.s(2); sE = k.s(2)
    vq = k.v(); vr31 = k.v(); vKA = k.v(); vKR = k.v(); vVA = k.v(); vqr = k.v()
    vt = [k.v() for _ in range(6)]
    S = [k.v(32, 4), k.v(32, 4)]; O = k.v(16, 4); OY = k.v(16, 4); P = k.v(8, 4)
    Qm = k.v(4, 4); QmY = k.v(4, 4); Qr = k.v(2); Km = k.v(4, 4); Kr = k.v(2); V0 = k.v(4, 4); V1 = [k.v(4, 4), k.v(4, 4)]
    PR = k.v(16, 4); C = S[1]; vcs = k.v(4, 2); vca = k.v(); vfp = k.v(4, 4)
    L_slow = k.label("slow"); L_store = k.label("store")
    k(f"""s_and_b32 s{s_t0}, s2, 7
    s_lshl_b32 s{s_t0}, s{s_t0}, 2
    s_bfe_u32 s{s_t1}, s2, 0x20003
    s_add_u32 s{s_h}, s{s_t0}, s{s_t1}
    s_lshr_b32 s{s_q1}, s{s_h}, 1
    s_mul_i32 s{s_t0}, s{s_q1}, 5
    s_and_b32 s{s_t1}, s{s_h}, 1
    s_lshl_b32 s{s_odd8}, s{s_t1}, 3
    s_mul_i32 s{s_t1}, s{s_t1}, 3
    s_add_u32 s{s_pa}, s{s_t0}, s{s_t1}
    s_lshl_b32 s{s_pa}, s{s_pa}, 15
    s_add_u32 s{s_pr}, s{s_t0}, 2
    s_lshl_b32 s{s_pr}, s{s_pr}, 15
    s_lshr_b32 s{s_q2}, s{s_wl}, 1
    s_and_b32 s{s_t3}, s{s_w}, 1
    s_lshl_b32 s{s_t0}, s{s_q2}, 14
    s_lshl_b32 s{s_t1}, s{s_t3}, 10
    s_add_u32 s{s_t0}, s{s_t0}, s{s_t1}
    s_add_u32 s{s_t0}, s{s_t0}, {80*32768}
    s_add_u32 s{so[0]}, s{s_pa}, s{s_t0}
    s_add_u32 s{so[2]}, s{s_pr}, s{s_t0}
    s_mul_i32 s{s_mo}, s{s_q2}, 6144
    s_mul_i32 s{s_t3}, s{s_t3}, 3072
    s_mul_i32 s{s_t2}, s{s_h}, {VHEAD}
    s_mul_i32 s{s_t0}, s{s_q2}, {32*1344}
    s_add_u32 s{s_t2}, s{s_t2}, s{s_t0}
    s_add_u32 s{s_t2}, s{s_t2}, s{s_t3}
    s_add_u32 s{s_t2}, s{s_t2}, {VIMG}
    s_add_u32 s{s_t3}, s{s_t3}, {VB}
    s_add_u32 s{s_t0}, s{s_t2}, 2048
    s_cmp_lt_u32 s{s_w}, 4
    s_cselect_b32 s{so[0]}, s{so[0]}, s{s_t2}
    s_cselect_b32 s{so[2]}, s{so[2]}, s{s_t0}
    s_cselect_b32 s{s_t1}, s{s_t1}, s{s_t3}
    s_movk_i32 s{s_t0}, 1024
    s_cselect_b32 s{so[1]}, 32768, s{s_t0}
    s_movk_i32 s{s_d}, 5376
    s_cselect_b32 s{s_d}, 2048, s{s_d}
    s_cselect_b32 s{s_ms}, 2048, s{s_t0}
    s_add_u32 s{so[1]}, s{so[1]}, s{so[0]}
    s_add_u32 s{s_mo}, s{s_mo}, s{s_t1}
    s_lshr_b32 s{s_t3}, s{s_w}, 2
    s_mul_i32 s{s_t0}, s{s_t3}, 6144
    v_and_b32 v{vr31}, 31, v{vl}
    v_lshlrev_b32 v{vr31}, 4, v{vr31}
    v_lshrrev_b32 v{vt[1]}, 5, v{vl}
    v_lshl_add_u32 v{vq}, v{vt[1]}, 15, v{vr31}
    v_add_u32 v{vt[2]}, s{s_t0}, v{vr31}
    v_lshl_add_u32 v{vKA}, v{vt[1]}, 11, v{vt[2]}
    v_add_u32 v{vKR}, s{s_odd8}, v{vt[2]}
    v_add_u32 v{vKR}, 4096, v{vKR}
    v_mul_u32_u24 v{vt[0]}, 336, v{vt[1]}
    v_add_u32 v{vt[0]}, v{vt[0]}, v{vt[2]}
    v_add_u32 v{vVA}, {VB}, v{vt[0]}
    v_cmp_lt_u32 vcc, {20*16}, v{vr31}
    v_mov_b32 v{vt[0]}, 0x40000
    v_xor_b32 v{vt[1]}, s{s_t3}, v{vt[1]}
    v_cndmask_b32 v{vVA}, v{vVA}, v{vt[0]}, vcc
    v_lshl_add_u32 v{vqr}, v{vt[1]}, 9, v{vr31}
    s_lshr_b32 s{s_tok}, s2, 5
    s_lshl_b32 s{s_tok}, s{s_tok}, 8
    s_lshl_b32 s{s_t0}, s{s_wl}, 6
    s_add_u32 s{s_tok}, s{s_tok}, s{s_t0}
    s_lshl_b32 s{s_t0}, s{s_t3}, 5
    s_add_u32 s{s_tok}, s{s_tok}, s{s_t0}""")
    p1 = [f"s_mov_b32 m0, s{sR[4]}", "s_nop 0"]
    for i, (sd, so_) in enumerate(((sA, sR[0]), (sA, sR[2]), (sB, sR[1]), (sB, sR[3]))):
        p1.append(f"buffer_load_dwordx4 v{vPS}, {sr(sd,4)}, s{so_} offen lds")
        if i < 3: p1 += ["s_add_u32 m0, m0, 1024", "s_nop 0"]
    edge_prep = o.get('edge_prep', False)
    Lx = k.label("jx"); Lp = k.label("jp"); Lz = k.label("jz"); Lzx = k.label("jzx"); Lns = k.label("jns")
    k(f"""s_cmp_lg_u32 s{s_w}, 0
    s_cbranch_scc1 {Lzx}
    v_and_b32 v{vt[3]}, 15, v{vl}
    v_lshlrev_b32 v{vt[3]}, 4, v{vt[3]}
    s_mov_b32 s{s_t1}, 0
    {Lz}:
    buffer_load_dword v{vt[4]}, v{vt[3]}, {sr(sD,4)}, 0 offen sc1
    s_add_u32 s{s_t1}, s{s_t1}, 1
    s_cmp_gt_u32 s{s_t1}, 0x40000
    s_cbranch_scc1 {Lzx}
    s_waitcnt vmcnt(0)
    v_cmp_ne_u32 vcc, 0, v{vt[4]}
    s_cmp_eq_u64 vcc, -1
    s_cbranch_scc0 {Lz}
    {Lzx}:
    s_waitcnt vmcnt(0)""")
    k.stamp(5)
    k(f"""s_barrier
    s_cmp_lg_u32 s{s_w}, 0
    s_cbranch_scc1 {Lns}""")
    c.signal(c.s_f, vt[2])
    k(f"{Lns}:")
    if edge_prep:
        for x in p1: k(x)
    k(f"""s_cmp_lg_u32 s{s_w}, 0
    s_cbranch_scc1 {Lx}
    s_mul_i32 s{s_t0}, s{s_q1}, 40
    s_add_u32 s{s_t1}, s{s_t0}, 39
    s_lshr_b32 s{s_t0}, s{s_t0}, 7
    s_lshr_b32 s{s_t1}, s{s_t1}, 7
    s_lshl_b32 s{s_t0}, s{s_t0}, {FL+5}
    s_lshl_b32 s{s_t1}, s{s_t1}, {FL+5}
    s_add_u32 s{s_t0}, s{s_t0}, {F1}
    s_add_u32 s{s_t1}, s{s_t1}, {F1}
    v_lshrrev_b32 v{vt[2]}, 4, v{vl}
    v_min_u32 v{vt[2]}, 2, v{vt[2]}
    v_mul_u32_u24 v{vt[2]}, 160, v{vt[2]}
    v_and_b32 v{vt[3]}, 15, v{vl}
    v_add_u32 v{vt[3]}, v{vt[3]}, v{vt[2]}
    v_lshlrev_b32 v{vt[3]}, {FL}, v{vt[3]}
    s_mov_b32 s{s_t2}, 0
    {Lp}:
    buffer_load_dword v{vt[4]}, v{vt[3]}, {sr(sO,4)}, s{s_t0} offen sc1
    buffer_load_dword v{vt[5]}, v{vt[3]}, {sr(sO,4)}, s{s_t1} offen sc1
    s_add_u32 s{s_t2}, s{s_t2}, 1
    s_cmp_gt_u32 s{s_t2}, 0x40000
    s_cbranch_scc1 {Lx}
    s_waitcnt vmcnt(0)
    v_min_u32 v{vt[4]}, v{vt[4]}, v{vt[5]}
    v_cmp_ne_u32 vcc, 0, v{vt[4]}
    s_cmp_eq_u64 vcc, -1
    s_cbranch_scc0 {Lp}
    {Lx}:
    s_lshl_b32 s{s_t0}, s{s_tok}, 4
    s_add_u32 s{s_q1}, s{s_t0}, s{s_pa}
    s_xor_b32 s{s_t3}, s{s_q1}, 512
    s_andn2_b32 s{s_q2}, s{s_t0}, 512
    s_add_u32 s{s_q2}, s{s_q2}, s{s_pr}
    s_add_u32 s{s_q2}, s{s_q2}, s{s_odd8}
    s_barrier""")
    k.stamp(6)
    def dma(slot):
        out = [f"s_add_u32 m0, s{s_mo}, {slot*SL}", "s_nop 0"]
        for i in range(3):
            out.append(f"buffer_load_dwordx4 v{vl16}, {sr(sO,4)}, s{so[i]} offen lds")
            if i < 2: out.append(f"s_add_u32 m0, m0, s{s_ms}")
            out.append(f"s_add_u32 s{so[i]}, s{so[i]}, s{s_d}")
        return out
    for x in dma(0): k(x)
    k(f"""buffer_load_dwordx4 {vr(Qm,4)}, v{vq}, {sr(sO,4)}, s{s_q1} offen
    buffer_load_dwordx4 {vr(QmY,4)}, v{vq}, {sr(sO,4)}, s{s_t3} offen
    buffer_load_dwordx2 {vr(Qr,2)}, v{vqr}, {sr(sO,4)}, s{s_q2} offen""")
    for x in dma(1): k(x)
    p2a = [f"ds_read_b64_tr_b16 {vr(PR+4*Tl+2*rd,2)}, v{vPA} offset:{rd*1024+Tl*32}" for Tl in range(4) for rd in range(2)]
    p2c = [f"s_mov_b32 s{sE}, 0x3f803f80", f"v_lshlrev_b32 v{vca}, 2, v{vl}"] + [f"v_mov_b32 v{vcs+i}, 0" for i in range(4)]
    p2c += [f"v_dot2c_f32_bf16 v{vcs+Tl}, s{sE}, v{PR+4*Tl+i}" for i in range(4) for Tl in range(4)]
    p2c += ["s_nop 1", f"v_permlane32_swap_b32 v{vcs}, v{vcs+1}", f"v_permlane32_swap_b32 v{vcs+2}, v{vcs+3}",
            f"v_add_f32 v{vcs}, v{vcs}, v{vcs+1}", f"v_add_f32 v{vcs+2}, v{vcs+2}, v{vcs+3}"]
    late = [f"buffer_store_dwordx4 {vr(PR+4*Tl,4)}, v{vl16}, {sr(sO,4)}, s{s_po} offen offset:{Tl*1024}{sc}" for Tl in range(4)]
    late += [f"buffer_atomic_add_f32 v{vcs}, v{vca}, {sr(sO,4)}, s{s_cs} offen", f"buffer_atomic_add_f32 v{vcs+2}, v{vca}, {sr(sO,4)}, s{s_cs} offen offset:256"]
    TL = o.get('TL', 4); TP = 11
    late_t = o.get('late_t', [13, 15, 16, 17, 19, 20]); TSIG = 26
    assert not edge_prep
    M2B = "v_mfma_f32_32x32x4_2b_bf16"
    def rdK(t):
        o_ = ((t // 4) % 3) * SL + (t % 4) * 512
        return [f"ds_read_b128 {vr(Km,4)}, v{vKA} offset:{o_}", f"ds_read_b64 {vr(Kr,2)}, v{vKR} offset:{o_}"]
    def rdV(t):
        o_ = ((t // 4) % 3) * SL + (t % 4) * 1344
        return [f"ds_read_b128 {vr(V0,4)}, v{vVA} offset:{o_}", f"ds_read_b128 {vr(V1[t&1],4)}, v{vVA} offset:{o_+672}"]
    k("s_waitcnt vmcnt(3)\ns_barrier")
    k.stamp(7)
    for x in rdK(0): k(x)
    k(f"""s_waitcnt lgkmcnt(0)
    {M2B} {vr(S[0],32)}, {vr(Kr,2)}, {vr(Qr,2)}, 0
    {M16} {vr(S[0],16)}, {vr(Km,4)}, {vr(Qm,4)}, {vr(S[0],16)}
    {M16} {vr(S[0]+16,16)}, {vr(Km,4)}, {vr(QmY,4)}, {vr(S[0]+16,16)}""")
    for x in rdK(1) + rdV(0): k(x)
    side = []; vm = [0]
    def spread(n):
        for _ in range(n):
            if side:
                x = side.pop(0)
                if x == 'KV': vm[0] = 0; continue
                k(x)
                if x.startswith('buffer_'): vm[0] += 1
    NT = 32
    for t in range(NT):
        s = S[t & 1]; sn = S[(t + 1) & 1]; pe = t // 4; last = t == NT - 1
        e = lambda *a: [(k(f"v_exp_f32 v{s+i}, v{s+i}"), spread(1)) for i in a]
        cv = lambda i: k(f"v_cvt_pk_bf16_f32 v{P+i%8}, v{s+2*i}, v{s+2*i+1}")
        def pr(ph):
            if prio:
                q = (7 * t + ph - 19) % 28
                cum = 0
                for lvl, ln in enumerate(prio):
                    if (q == cum and ln > 0) or (t == 0 and ph == 0 and cum <= q < cum + ln): k(f"s_setprio {3 - lvl}")
                    cum += ln
        z = lambda r: '0' if t == 0 else vr(r, 16)
        pr(0)
        e(0, 1, 2, 3)
        if not last:
            k("s_waitcnt lgkmcnt(2)")
            k(f"{M2B} {vr(sn,32)}, {vr(Kr,2)}, {vr(Qr,2)}, 0")
        pr(1)
        e(4); cv(0); e(5); cv(1); e(6, 7); cv(2); e(8); cv(3); e(9, 10)
        k("s_waitcnt lgkmcnt(0)")
        k(f"{M16} {vr(O,16)}, {vr(V0,4)}, {vr(P,4)}, {z(O)}")
        pr(2)
        e(11); cv(4); e(12); cv(5); e(13, 14)
        if not last: k(f"{M16} {vr(sn,16)}, {vr(Km,4)}, {vr(Qm,4)}, {vr(sn,16)}")
        pr(3)
        e(15); cv(6); e(16); cv(7); e(17, 18)
        k(f"{M16} {vr(O,16)}, {vr(V1[t&1],4)}, {vr(P+4,4)}, {vr(O,16)}")
        pr(4)
        e(19); cv(8); e(20); cv(9); e(21, 22)
        if not last: k(f"{M16} {vr(sn+16,16)}, {vr(Km,4)}, {vr(QmY,4)}, {vr(sn+16,16)}")
        if t % 4 == 2 and pe < 7:
            assert not side
            k(f"s_waitcnt vmcnt({0 if t in (TP - 1, TSIG - 4) else vm[0]})\ns_barrier")
            if o.get('fine') == 2: k.stamp({0: 1, 1: 2, 2: 3, 3: 4, 4: 5, 5: 6, 6: 9}[pe])
            if pe < 6: side += dma((pe + 2) % 3) + ['KV']
            if t == TSIG - 4:
                Ln = k.label("nf")
                k(f"s_cmp_lg_u32 s{s_w}, 0\ns_cbranch_scc1 {Ln}\ns_lshl_b32 s{s_t0}, s2, 2\ns_add_u32 s{s_t0}, s{s_t0}, {FP}")
                c.signal(s_t0, vt[2]); k(f"{Ln}:")
        pr(5)
        if t < NT - 2:
            for x in rdK(t + 2): k(x)
        if t == TP:
            for x in p2a: k(x)
        if t == TL: side += p1
        if t == TP + 1 and not o.get('nocs'): side += p2c
        if t in late_t: side.append(late[late_t.index(t)])
        if t == 28: k(f"s_mov_b32 s{s_t0}, {FP}\nbuffer_load_dwordx4 {vr(vfp,4)}, v{vl16}, {sr(sO,4)}, s{s_t0} offen sc1")
        e(23); cv(10); e(24); cv(11); e(25, 26)
        k(f"{M16} {vr(OY,16)}, {vr(V0,4)}, {vr(P,4)}, {z(OY)}")
        pr(6)
        e(27); cv(12); e(28); cv(13); e(29, 30, 31); cv(14)
        if not last:
            rv = rdV(t + 1)
            k(rv[0]); cv(15); k(rv[1]); k("s_nop 0")
        else:
            cv(15)
        k(f"{M16} {vr(OY,16)}, {vr(V1[t&1],4)}, {vr(P+4,4)}, {vr(OY,16)}")
    assert not side
    if o.get('fine') == 2: k.stamp(10)
    k(f"""s_setprio 0
    s_mul_i32 s{s_t0}, s{s_w}, 3072
    s_add_u32 s{s_t0}, s{s_t0}, {PREP}
    v_add_u32 v{vt[0]}, s{s_t0}, v{vl16}
    s_xor_b32 s{s_t1}, s{s_w}, 4
    s_mul_i32 s{s_t1}, s{s_t1}, 3072
    s_add_u32 s{s_t1}, s{s_t1}, {PREP}
    v_add_u32 v{vt[1]}, s{s_t1}, v{vl16}""")
    for j in range(3): k(f"ds_write_b128 v{vt[0]}, {vr(OY+4*j,4)} offset:{1024*j}")
    k("s_waitcnt lgkmcnt(0)\ns_barrier")
    for j in range(3): k(f"ds_read_b128 {vr(OY+4*j,4)}, v{vt[1]} offset:{1024*j}")
    t0, t1, t2 = vt[0], vt[1], vt[2]
    k(f"""v_bfe_u32 v{vt[3]}, v{vl}, 4, 1
    v_mul_u32_u24 v{vt[3]}, {20*1024}, v{vt[3]}
    v_and_b32 v{vt[4]}, 15, v{vl}
    v_lshl_add_u32 v{vt[3]}, v{vt[4]}, 4, v{vt[3]}
    v_lshrrev_b32 v{vt[4]}, 5, v{vl}
    v_lshl_add_u32 v{vt[4]}, v{vt[4]}, 8, v{vt[3]}
    s_mov_b32 s{s_q1}, {f2u(2.0**64):#x}
    s_mov_b32 s{s_q2}, 0x7f800000
    s_waitcnt lgkmcnt(0)""")
    for i in range(12): k(f"v_add_f32 v{O+i}, v{O+i}, v{OY+i}")
    k(f"""v_mov_b32 v{t0}, v{O+8}
    v_mov_b32 v{t1}, v{O+8}
    v_add_f32 v{t2}, |v{O}|, |v{O+1}|
    v_add_f32 v{t2}, |v{O+2}|, v{t2}
    v_permlane32_swap_b32 v{t0}, v{t1}""")
    for i in range(3, 12): k(f"v_add_f32 v{t2}, |v{O+i}|, v{t2}")
    k(f"""v_cmp_lt_f32 vcc, {f2u(2.0**-64):#x}, v{t1}
    v_cmp_gt_f32 {sr(sE,2)}, s{s_q1}, v{t1}
    v_cmp_gt_f32 {sr(sG,2)}, s{s_q2}, v{t2}
    s_and_b64 vcc, vcc, {sr(sE,2)}
    s_and_b64 vcc, vcc, {sr(sG,2)}
    s_cmp_eq_u64 vcc, -1
    s_cbranch_scc0 {L_slow}
    {L_store}:
    v_rcp_f32 v{t1}, v{t1}
    s_lshr_b32 s{s_t0}, s{s_tok}, 4
    s_mul_i32 s{s_t0}, s{s_t0}, {20*1024}
    s_add_u32 s{s_t0}, s{s_t0}, {OIMG}
    s_lshl_b32 s{s_t1}, s{s_h}, 9
    s_add_u32 s{s_t1}, s{s_t1}, s{s_t0}
    s_lshr_b32 s{s_t2}, s{s_h}, 1
    s_lshl_b32 s{s_t2}, s{s_t2}, 8
    s_add_u32 s{s_t2}, s{s_t2}, s{s_t0}
    s_add_u32 s{s_t2}, s{s_t2}, s{s_odd8}
    s_add_u32 s{s_t2}, s{s_t2}, {16*1024}""")
    for i in range(12): k(f"v_mul_f32 v{O+i}, v{t1}, v{O+i}")
    for i in range(6): k(f"v_cvt_pk_bf16_f32 v{O+i}, v{O+2*i}, v{O+2*i+1}")
    k(f"""buffer_store_dwordx4 {vr(O,4)}, v{vt[4]}, {sr(sO,4)}, s{s_t1} offen{sc}
    s_mov_b32 exec_hi, 0
    buffer_store_dwordx2 {vr(O+4,2)}, v{vt[3]}, {sr(sO,4)}, s{s_t2} offen{sc}
    s_mov_b32 exec_hi, -1""")
    def slow():
        vV = vKA; vm = vKR; cnt = s_t3
        k(f"""{L_slow}:
        s_lshl_b32 s{so[0]}, s{s_tok}, 4
        s_add_u32 s{so[0]}, s{so[0]}, s{s_pr}
        s_add_u32 s{so[0]}, s{so[0]}, s{s_odd8}
        v_mov_b32 v{Qr}, 0
        v_mov_b32 v{Qr+1}, 0
        s_mov_b32 exec_hi, 0
        buffer_load_dwordx2 {vr(Qr,2)}, v{vr31}, {sr(sO,4)}, s{so[0]} offen
        s_mov_b32 exec_hi, -1
        s_add_u32 s{so[0]}, s{s_pa}, {80*32768}
        s_add_u32 s{so[1]}, s{s_pr}, {80*32768}
        s_add_u32 s{so[1]}, s{so[1]}, s{s_odd8}
        v_mov_b32 v{vm}, 0xff800000
        s_mov_b32 s{cnt}, 0""")
        L1 = k.label("mx")
        k(f"""{L1}:
        buffer_load_dwordx4 {vr(Km,4)}, v{vq}, {sr(sO,4)}, s{so[0]} offen
        buffer_load_dwordx2 {vr(Kr,2)}, v{vr31}, {sr(sO,4)}, s{so[1]} offen
        s_add_u32 s{so[0]}, s{so[0]}, 512
        s_add_u32 s{so[1]}, s{so[1]}, 512
        s_waitcnt vmcnt(0)
        {M8} {vr(S[0],16)}, {vr(Kr,2)}, {vr(Qr,2)}, 0
        {M16} {vr(S[0],16)}, {vr(Km,4)}, {vr(Qm,4)}, {vr(S[0],16)}""")
        for i in range(8): k(f"v_max3_f32 v{vm}, v{S[0]+2*i}, v{S[0]+2*i+1}, v{vm}")
        k(f"""s_add_u32 s{cnt}, s{cnt}, 1
        s_cmp_lt_u32 s{cnt}, 64
        s_cbranch_scc1 {L1}
        v_mov_b32 v{t0}, v{vm}
        v_permlane32_swap_b32 v{t0}, v{vm}
        v_max_f32 v{vm}, v{vm}, v{t0}""")
        for i in range(16): k(f"v_sub_f32 v{C+i}, 0, v{vm}\nv_mov_b32 v{O+i}, 0")
        k(f"""s_add_u32 s{so[0]}, s{s_pa}, {80*32768}
        s_add_u32 s{so[1]}, s{s_pr}, {80*32768}
        s_add_u32 s{so[1]}, s{so[1]}, s{s_odd8}
        s_mul_i32 s{so[2]}, s{s_h}, {VHEAD}
        s_add_u32 s{so[2]}, s{so[2]}, {VIMG}
        v_lshrrev_b32 v{vV}, 5, v{vl}
        v_mul_u32_u24 v{vV}, 336, v{vV}
        v_add_u32 v{vV}, v{vV}, v{vr31}
        s_mov_b32 s{cnt}, 0""")
        L2 = k.label("pv")
        k(f"""{L2}:
        buffer_load_dwordx4 {vr(Km,4)}, v{vq}, {sr(sO,4)}, s{so[0]} offen
        buffer_load_dwordx2 {vr(Kr,2)}, v{vr31}, {sr(sO,4)}, s{so[1]} offen
        buffer_load_dwordx4 {vr(V0,4)}, v{vV}, {sr(sO,4)}, s{so[2]} offen
        buffer_load_dwordx4 {vr(V1[0],4)}, v{vV}, {sr(sO,4)}, s{so[2]} offen offset:672
        s_add_u32 s{so[0]}, s{so[0]}, 512
        s_add_u32 s{so[1]}, s{so[1]}, 512
        s_add_u32 s{so[2]}, s{so[2]}, 1344
        s_waitcnt vmcnt(0)
        {M8} {vr(S[0],16)}, {vr(Kr,2)}, {vr(Qr,2)}, {vr(C,16)}
        {M16} {vr(S[0],16)}, {vr(Km,4)}, {vr(Qm,4)}, {vr(S[0],16)}""")
        for i in range(16): k(f"v_exp_f32 v{S[0]+i}, v{S[0]+i}")
        for i in range(8): k(f"v_cvt_pk_bf16_f32 v{P+i}, v{S[0]+2*i}, v{S[0]+2*i+1}")
        k(f"""{M16} {vr(O,16)}, {vr(V0,4)}, {vr(P,4)}, {vr(O,16)}
        {M16} {vr(O,16)}, {vr(V1[0],4)}, {vr(P+4,4)}, {vr(O,16)}
        s_add_u32 s{cnt}, s{cnt}, 1
        s_cmp_lt_u32 s{cnt}, 64
        s_cbranch_scc1 {L2}
        v_mov_b32 v{t0}, v{O+8}
        v_mov_b32 v{t1}, v{O+8}
        v_permlane32_swap_b32 v{t0}, v{t1}
        s_branch {L_store}""")
    slow_code = deferred(slow)
    L3 = k.label("ld")
    k.stamp(8); k.nst = 8
    if o.get('fine1') or o.get('fine') == 2:
        k.maxst = 14; k.stamp = lambda *a, **kw: None
    k(f"""s_lshr_b32 s{c.s_f}, s2, 5
    s_lshl_b32 s{c.s_f}, s{c.s_f}, 5
    s_add_u32 s{c.s_f}, s{c.s_f}, s{s_h}
    s_lshl_b32 s{c.s_f}, s{c.s_f}, {FL}
    s_add_u32 s{c.s_f}, s{c.s_f}, {F2}""")
    P3 = P35(c, 3, D=o.get('D3', 20), D0=o.get('D30', 6))
    P3.rowmap = o.get('row3', False)
    k(P3.ptr_load()); P3.ids()
    lw(c, L3)
    def handoff(vt, stmp, n):
        Ln = k.label("nw0")
        k("s_barrier")
        k(f"s_cmp_lg_u32 s{c.s_w}, 0\ns_cbranch_scc1 {Ln}")
        c.signal(c.s_f, vt); c.poll(c.s_p, n, vt, stmp)
        k(f"{Ln}:\ns_barrier")
    P3.setup()
    k(f"""s_lshr_b32 s{c.s_p}, s{P3.s_tb16}, 4
    s_lshl_b32 s{c.s_p}, s{c.s_p}, {FL+5}
    s_add_u32 s{c.s_p}, s{c.s_p}, {F2}
    s_waitcnt vmcnt(3)""")
    handoff(P3.vt[0], P3.s_t0, 32)
    k.stamp('n')
    if o.get('fine') == 3: P3.fine = {0: 2, 1: 3, 4: 4, 8: 5, 12: 6, 16: 7, 19: 8}
    P3.main(init=False, resident=True)
    k("s_barrier")
    P3.epilogue()
    k(f"""s_lshr_b32 s{c.s_f}, s{P3.s_tb16}, 3
    s_lshl_b32 s{c.s_f}, s{c.s_f}, 5
    s_bfe_u32 s{P3.s_t0}, s{P3.s_tb16}, 0x10002
    s_lshl_b32 s{P3.s_t0}, s{P3.s_t0}, 3
    s_add_u32 s{c.s_f}, s{c.s_f}, s{P3.s_t0}
    s_add_u32 s{c.s_f}, s{c.s_f}, s{P3.s_c}
    s_lshl_b32 s{c.s_f}, s{c.s_f}, {FL}
    s_add_u32 s{c.s_f}, s{c.s_f}, {F3}""")
    Q4 = P4(c, D=o.get('D4', 12), D0=o.get('D40', 4)); Q4.ahead = o.get('ahead4', 4); Q4.thin = o.get('thin4'); Q4.nob = o.get('nob')
    Q4.ids(); Q4.setup()
    k(f"""s_lshr_b32 s{c.s_p}, s{Q4.s_tb}, 2
    s_lshl_b32 s{c.s_p}, s{c.s_p}, {FL+5}
    s_add_u32 s{c.s_p}, s{c.s_p}, {F3}
    s_waitcnt vmcnt(0)""")
    k.stamp('n')
    handoff(Q4.st, Q4.s_t1, 16)
    k.stamp('n')
    if o.get('fine') == 4: Q4.fine = {0: 2, 1: 3, 4: 4, 12: 5, 20: 6, 30: 7, 39: 8}
    Q4.main(init=False, endbar=True)
    Q4.epilogue(k.label("fin"))
    k(f"""s_lshr_b32 s{c.s_f}, s{Q4.s_tb}, 2
    s_lshl_b32 s{c.s_f}, s{c.s_f}, 5
    s_add_u32 s{c.s_f}, s{c.s_f}, s{Q4.s_g}
    s_lshl_b32 s{c.s_f}, s{c.s_f}, {FL}
    s_add_u32 s{c.s_f}, s{c.s_f}, {F4}""")
    P5 = P35(c, 5, D=o.get('D5', 12), D0=o.get('D50', 4)); P5.ahead = o.get('ahead5', 5); P5.rowmap = o.get('row5', False); P5.bar8 = o.get('bar8', True)
    k("s_nop 1"); k(P5.ptr_load()); P5.ids(); P5.setup()
    k(f"""s_lshr_b32 s{c.s_p}, s{P5.s_tb16}, 3
    s_lshl_b32 s{c.s_p}, s{c.s_p}, {FL+5}
    s_add_u32 s{c.s_p}, s{c.s_p}, {F4}
    s_waitcnt vmcnt(0)""")
    k.stamp('n')
    handoff(P5.vt[0], P5.s_t0, 16)
    k.stamp('n')
    if o.get('fine') == 5: P5.fine = {0: 2, 1: 3, 8: 4, 16: 5, 28: 6, 40: 7, 53: 8}
    P5.main(init=False)
    P5.epilogue()
    if o.get('dbgst') is not None:
        Ln = k.label("dn")
        k.stamp(14); k.stamp_real(15)
        k(f"s_cmp_lg_u32 s2, {o['dbgst']}\ns_cbranch_scc1 {Ln}\ns_cmp_lg_u32 s{s_w}, 0\ns_cbranch_scc1 {Ln}\ns_waitcnt lgkmcnt(0)\nv_mov_b32 v1, 0\ns_mov_b64 exec, 1")
        pos = [1, 2, 3, 5, 6, 7, 9, 10, 11, 13, 14, 15]
        src = [2, 3, 6, 7, 8, 9, 11, 12, 13, 14]
        for p_, i in zip(pos, src):
            k(f"s_sub_u32 s66, s{k.sT+2*i}, s{k.sT+2}\nv_mov_b32 v2, s66\nbuffer_store_dword v2, v1, {sr(sD,4)}, 0 offen offset:{4*p_}")
        k(f"s_sub_u32 s66, s{k.sT+30}, s{k.sT}\nv_mov_b32 v2, s66\nbuffer_store_dword v2, v1, {sr(sD,4)}, 0 offen offset:60\n{Ln}:\ns_endpgm")
        k(f"{c.L_end}:\ns_endpgm")
    else:
        c.finish()
    k(f"{L3}:")
    Lp = k.label("fp"); Lok = k.label("fpok")
    k(f"""s_mov_b32 s{P3.s_cnt}, 0
    s_waitcnt vmcnt(2)
    {Lp}:
    v_min_u32 v{vfp}, v{vfp}, v{vfp+1}
    v_min3_u32 v{vfp}, v{vfp}, v{vfp+2}, v{vfp+3}
    s_add_u32 s{P3.s_cnt}, s{P3.s_cnt}, 1
    v_cmp_ne_u32 vcc, 0, v{vfp}
    s_cmp_eq_u64 vcc, -1
    s_cbranch_scc1 {Lok}
    s_cmp_gt_u32 s{P3.s_cnt}, 0x40000
    s_cbranch_scc1 {Lok}
    s_mov_b32 s{P3.s_t0}, {FP}
    buffer_load_dwordx4 {vr(vfp,4)}, v{c.vl16}, {sr(c.sO,4)}, s{P3.s_t0} offen sc1
    s_waitcnt vmcnt(0)
    s_branch {Lp}
    {Lok}:""")
    P3.ld_setup()
    k("s_waitcnt vmcnt(0)\ns_barrier")
    for ch in range(5): P3.ld_chunk(ch)
    k("s_waitcnt vmcnt(0)\ns_barrier")
    Q4.ids(); Q4.ld_setup()
    k("s_barrier")
    n4 = o.get('pre4', 2)
    for ch in range(n4): Q4.ld_chunk(ch)
    k("s_barrier")
    for ch in range(n4, 5): Q4.ld_chunk(ch)
    Q4.ld_cs()
    k("s_waitcnt vmcnt(29)\ns_barrier")
    rg5 = None
    if o.get('reg5', True):
        rg5 = dict(base=20, addr=[8, 9, 10])
        s5 = 64
        def warm():
            k(f"""s_bfe_u32 s{Q4.s_t0}, s2, 0x10002
            s_lshl_b32 s{Q4.s_t0}, s{Q4.s_t0}, 2
            s_lshr_b32 s{Q4.s_t1}, s2, 6
            s_add_u32 s{Q4.s_t0}, s{Q4.s_t0}, s{Q4.s_t1}
            s_lshl_b32 s{Q4.s_t1}, s{c.s_wl}, 3
            s_add_u32 s{Q4.s_t0}, s{Q4.s_t0}, s{Q4.s_t1}
            s_mul_i32 s{Q4.s_t0}, s{Q4.s_t0}, 5120
            s_add_u32 s{Q4.s_t0}, s{Q4.s_t0}, {WDP + 28*40960}""")
        def warm_chunk(j):
            k(f"s_add_u32 s{Q4.s_t1}, s{Q4.s_t0}, 4096")
            for i in range(5):
                k(f"buffer_load_dwordx4 {vr(rg5['base'] + 20*j + 4*i, 4)}, v{c.vl16}, {sr(c.sO,4)}, s{Q4.s_t0 if i < 4 else Q4.s_t1} offen offset:{(i%4)*1024}")
            k(f"s_add_u32 s{Q4.s_t0}, s{Q4.s_t0}, {4*40960}")
        assert not P5.rowmap
        Q4.warm = warm; Q4.warm_chunk = warm_chunk
    Q4.ld_main(5, 1, init=False)
    P5.ids(); P5.ld_setup()
    if rg5:
        k(f"""v_add_u32 v8, s{P5.s_m0}, v{c.vl16}
        v_add_u32 v9, {3*P5.SLOT}, v8
        v_add_u32 v10, {6*P5.SLOT}, v8""")
    k("s_barrier")
    n5 = o.get('pre5', 4)
    for ch in range(n5): P5.ld_chunk(ch)
    k("s_barrier")
    for ch in range(n5, 7): P5.ld_chunk(ch)
    if P5.bar8:
        k("s_waitcnt vmcnt(25)\ns_barrier")
        P5.ld_main8(rg5)
    else:
        k("s_waitcnt vmcnt(30)\ns_barrier")
        P5.ld_main(7, init=False)
    if K.STAMP and o.get('dbgst') is None:
        for i in range(9, 15): k.stamp(i)
        k.stamp_flush(c.sO, c.s_w)
    k("s_endpgm")
    k.lines += slow_code + spare_code
    return k, (256, 512, max(P3.lds, Q4.lds, P5.lds))
```

```python
from ph2 import *
NAME = "sequential_preLN__softmax_full_mha__swiglu_ffn__prompt_kernel"

def gen(opt):
    o = opt('M')
    c = Ctx(NAME, True); k = c.k
    sO = c.sO; sWS = c.sWS; s_w = c.s_w; s_wl = c.s_wl; vl = c.vl; vl16 = c.vl16; sc = c.sc
    rot = o.get('rot', True)
    sD = k.s(4)
    s_po = k.s(); s_cs = k.s(); vPA = k.v(); vPS = k.v(); sA = k.s(4); sB = k.s(4); sR = [k.s() for _ in range(5)]
    c.s0 = k.snext; c.v0 = k.vnext
    SLOT = 32768; NS = 4
    SL = 12288; VB = 3 * SL; PREP = 6 * SL; EXB = PREP
    sP = k.s(4); sX = sA; sW = sB; sQ = k.s(8); sWD = k.s(2); sPC = k.s(2)
    s_tb = k.s(); s_cg = k.s(); s_t0 = k.s(); s_t2 = k.s()
    s_ow, s_m0x, s_slot, s_delta, s_t1 = sR
    s_ox = k.s(); s_cnt = k.s(); s_rs = k.s(); s_msk = k.s()
    vt = [k.v() for _ in range(6)]
    vXA = [k.v() for _ in range(4)]; vWA = [k.v(), k.v()]
    vX = [k.v() for _ in range(4)]; vW = [k.v() for _ in range(4)]
    acc = [[k.v(16, 4) for _ in range(2)] for _ in range(2)]
    fx = [[k.v(4, 4) for _ in range(2)] for _ in range(2)]
    fw = [[k.v(4, 4) for _ in range(2)] for _ in range(2)]
    acs = k.v(16, 4); ones = k.v(4, 4); vpf = k.v(16, 4)
    XCH = NS * SLOT; NM, RS, CS = 0, 512, 1024
    L_spare = k.label("spare"); L_v = k.label("vpath"); L_J0 = k.label("J0"); L_comp = k.label("comp")
    k.kidx = 1; k.stamp_real(0); k.stamp(1)
    k(f"""s_load_dwordx4 {sr(sP,4)}, s[0:1], {KA_X}
    s_load_dwordx4 {sr(sD,4)}, s[0:1], {KA_DBG}
    s_cmp_ge_u32 s2, 256
    s_cbranch_scc1 {c.L_end}
    v_lshrrev_b32 v{vt[0]}, 6, v0
    v_and_b32 v{vl}, 63, v0
    v_readfirstlane_b32 s{s_w}, v{vt[0]}
    s_and_b32 s{s_t0}, s2, 3
    s_lshl_b32 s{s_t0}, s{s_t0}, 2
    s_bfe_u32 s{s_t1}, s2, 0x20003
    s_add_u32 s{s_tb}, s{s_t0}, s{s_t1}
    s_bfe_u32 s{s_t0}, s2, 0x10002
    s_lshl_b32 s{s_t0}, s{s_t0}, 3
    s_lshr_b32 s{s_t1}, s2, 5
    s_add_u32 s{s_cg}, s{s_t0}, s{s_t1}
    s_and_b32 s{s_wl}, s{s_w}, 3
    s_cmp_eq_u32 s{s_cg}, 15
    s_cbranch_scc1 {L_spare}
    s_cmp_ge_u32 s{s_w}, 4
    s_cbranch_scc1 {L_comp}
    v_lshrrev_b32 v{vt[0]}, 3, v{vl}
    v_lshl_add_u32 v{vt[0]}, s{s_w}, 5, v{vt[0]}
    v_mul_u32_u24 v{vt[0]}, 1280, v{vt[0]}
    v_lshrrev_b32 v{vt[1]}, 4, v{vl}
    v_and_b32 v{vt[2]}, 7, v{vl}
    v_xor_b32 v{vt[2]}, v{vt[2]}, v{vt[1]}
    v_lshl_add_u32 v{vX[0]}, v{vt[2]}, 4, v{vt[0]}
    v_xor_b32 v{vX[1]}, 64, v{vX[0]}
    v_add_u32 v{vX[2]}, {2*(8*1280-1024)}, v{vX[0]}
    v_add_u32 v{vX[1]}, {8*1280-1024}, v{vX[1]}
    v_add_u32 v{vX[3]}, {2*(8*1280-1024)}, v{vX[1]}
    v_lshl_add_u32 v{vt[0]}, s{s_w}, 4, v{vt[1]}
    v_mul_u32_u24 v{vt[0]}, 3840, v{vt[0]}
    v_and_b32 v{vt[2]}, 15, v{vl}
    v_lshlrev_b32 v{vt[3]}, 2, v{vt[1]}
    v_xor_b32 v{vt[2]}, v{vt[2]}, v{vt[3]}
    v_lshl_add_u32 v{vW[0]}, v{vt[2]}, 4, v{vt[0]}
    v_add_u32 v{vW[1]}, {4*3840-1024}, v{vW[0]}
    v_add_u32 v{vW[2]}, {2*(4*3840-1024)}, v{vW[0]}
    v_add_u32 v{vW[3]}, {3*(4*3840-1024)}, v{vW[0]}
    s_mul_i32 s{s_t0}, s{s_tb}, {128*1280}
    s_lshl_b32 s{s_t1}, s{s_cg}, 8
    s_lshl_b32 s{s_m0x}, s{s_w}, 12
    s_mov_b32 s{sX+2}, {128*1280}
    s_mov_b32 s{sX+3}, 0x20000
    s_sub_u32 s{sW+2}, {640*3840}, s{s_t1}
    s_mov_b32 s{sW+3}, 0x20000""")
    if rot: k(f"s_and_b32 s{s_t2}, s2, 7\ns_lshl_b32 s{s_ox}, s{s_t2}, 7\ns_mul_i32 s{s_ow}, s{s_t2}, {64*3840}")
    else: k(f"s_mov_b32 s{s_ox}, 0\ns_mov_b32 s{s_ow}, 0")
    k(f"""s_waitcnt lgkmcnt(0)
    s_add_u32 s{sX}, s{sP}, s{s_t0}
    s_addc_u32 s{sX+1}, s{sP+1}, 0
    s_add_u32 s{sW}, s{sP+2}, s{s_t1}
    s_addc_u32 s{sW+1}, s{sP+3}, 0""")
    def dma_chunk(slot_const=None):
        if slot_const is not None: k(f"s_add_u32 m0, s{s_m0x}, {slot_const*SLOT}")
        else: k(f"s_add_u32 m0, s{s_m0x}, s{s_rs}")
        k(f"s_add_u32 s{s_t0}, s{s_ox}, 128")
        for i in range(4):
            k(f"buffer_load_dwordx4 v{vX[i]}, {sr(sX,4)}, s{s_ox} offen offset:{i*1024} lds")
        k(f"s_add_u32 m0, m0, 16384\ns_add_u32 s{s_t1}, s{s_ow}, {64*3840}")
        for i in range(4):
            k(f"buffer_load_dwordx4 v{vW[i]}, {sr(sW,4)}, s{s_ow} offen offset:{i*1024} lds")
        k(f"s_cmp_eq_u32 s{s_t0}, 1280\ns_cselect_b32 s{s_ox}, 0, s{s_t0}\ns_cselect_b32 s{s_ow}, 0, s{s_t1}")
    def common_setup():
        k(f"""s_mov_b64 {sr(sWS,2)}, {sr(sD+2,2)}
        s_movk_i32 s{sD+2}, 256
        s_mov_b32 s{sD+3}, 0x20000
        v_lshlrev_b32 v{vl16}, 4, v{vl}""")
        srd(k, sO, sWS, sWS + 1, WSEND)
        k(f"s_load_dwordx8 {sr(sQ,8)}, s[0:1], {KA_WO}\ns_load_dwordx2 {sr(sWD,2)}, s[0:1], {KA_WD}")
    def xaddr():
        k(f"""v_and_b32 v{vt[0]}, 31, v{vl}
        v_lshrrev_b32 v{vt[1]}, 5, v{vl}
        v_bfe_u32 v{vt[2]}, v{vl}, 1, 3
        v_xor_b32 v{vt[2]}, v{vt[2]}, v{vt[1]}
        v_lshlrev_b32 v{vt[2]}, 4, v{vt[2]}
        v_lshl_add_u32 v{vt[2]}, v{vt[0]}, 7, v{vt[2]}""")
    def advance(regs):
        k(f"s_cmp_eq_u32 s{s_slot}, {(NS-1)*SLOT}\ns_mov_b32 s{s_delta}, {SLOT}")
        k(f"s_cselect_b32 s{s_delta}, {(-(NS-1)*SLOT) & 0xffffffff}, s{s_delta}")
        k(f"s_add_u32 s{s_slot}, s{s_slot}, s{s_delta}")
        return [f"v_add_u32 v{r}, s{s_delta}, v{r}" for r in regs]
    def prep_decode(loads):
        pid, cb, st = s_t0, s_t2, s_ox
        R0, A_, B_, C_, u = sR
        Ld = k.label("pd"); Lg = k.label("pg")
        k(f"""s_lshl_b32 s{pid}, s2, 2
        s_add_u32 s{pid}, s{pid}, s{s_wl}
        s_mov_b32 s{B_}, 8
        s_mov_b32 s{C_}, 4
        v_bfe_u32 v{vt[2]}, v{vl}, 4, 1
        v_lshrrev_b32 v{vt[1]}, 5, v{vl}
        s_waitcnt lgkmcnt(0)
        s_cmp_ge_u32 s{pid}, 560
        s_cbranch_scc1 {Ld}
        s_mul_i32 s{u}, s{pid}, 4682
        s_lshr_b32 s{u}, s{u}, 16
        s_mul_i32 s{cb}, s{u}, 14
        s_sub_u32 s{cb}, s{pid}, s{cb}
        s_mul_i32 s{s_po}, s{u}, {112*1024}
        s_add_u32 s{s_po}, s{s_po}, {WGUP}
        s_mov_b32 s{s_cs}, {CSG}
        v_lshlrev_b32 v{vt[2]}, 11, v{vt[2]}
        v_lshl_add_u32 v{vt[3]}, v{vt[1]}, 9, v{vt[2]}""")
        if loads:
            k(f"""s_lshl_b32 s{R0}, s{u}, 4
            s_mov_b32 s{A_}, 0
            s_movk_i32 s{st}, 3456
            s_mov_b64 {sr(sA,2)}, {sr(sQ+4,2)}
            s_mov_b64 {sr(sB,2)}, {sr(sQ+6,2)}
            s_mov_b32 s{sA+2}, {640*3456}""")
        k(f"""s_branch {Lg}
        {Ld}:
        s_min_u32 s{pid}, s{pid}, 929
        s_cmp_lt_u32 s{pid}, 830
        s_movk_i32 s{cb}, 830
        s_cselect_b32 s{cb}, 560, s{cb}
        s_mov_b32 s{s_po}, {WOP}
        s_cselect_b32 s{s_po}, {WDP}, s{s_po}""")
        if loads:
            k(f"""s_cselect_b64 {sr(sA,2)}, {sr(sWD,2)}, {sr(sQ,2)}
            s_cselect_b32 s{A_}, 16, 20
            s_cselect_b32 s{R0}, 32, 40
            s_mov_b32 s{sA+2}, {640*1280}
            s_cselect_b32 s{sA+2}, {1728*1280}, s{sA+2}""")
        k(f"""s_sub_u32 s{cb}, s{pid}, s{cb}
        s_mul_i32 s{u}, s{cb}, 13108
        s_lshr_b32 s{u}, s{u}, 16
        s_mul_i32 s{st}, s{u}, 5
        s_sub_u32 s{cb}, s{cb}, s{st}
        s_mul_i32 s{st}, s{u}, {40*1024}
        s_add_u32 s{s_po}, s{s_po}, s{st}
        s_mov_b32 s{s_cs}, {WSEND}
        v_lshlrev_b32 v{vt[2]}, 9, v{vt[2]}
        v_lshl_add_u32 v{vt[3]}, v{vt[1]}, 11, v{vt[2]}""")
        if loads:
            k(f"""s_mul_i32 s{R0}, s{R0}, s{u}
            s_mul_i32 s{st}, s{u}, 160
            s_sub_u32 s{st}, s{st}, {16*160-16}
            s_cmp_ge_u32 s{pid}, 910
            s_cselect_b32 s{R0}, s{st}, s{R0}
            s_cselect_b32 s{A_}, 80, s{A_}
            s_cselect_b32 s{B_}, 20, 8
            s_cselect_b32 s{C_}, 40, 4
            s_movk_i32 s{st}, 1280
            s_mov_b64 {sr(sB,2)}, {sr(sA,2)}""")
        k(f"""{Lg}:
        s_lshl_b32 s{cb}, s{cb}, 1
        s_lshr_b32 s{pid}, s{s_w}, 2
        s_add_u32 s{pid}, s{pid}, s{cb}
        s_lshl_b32 s{u}, s{pid}, 12
        s_add_u32 s{s_po}, s{s_po}, s{u}
        s_lshl_b32 s{u}, s{pid}, 9
        s_add_u32 s{s_cs}, s{s_cs}, s{u}
        v_bfe_u32 v{vt[2]}, v{vl}, 2, 2
        v_lshl_add_u32 v{vt[3]}, v{vt[2]}, 7, v{vt[3]}
        v_and_b32 v{vt[2]}, 3, v{vl}
        v_lshl_add_u32 v{vt[3]}, v{vt[2]}, 3, v{vt[3]}
        s_lshl_b32 s{u}, s{s_w}, 12
        s_add_u32 s{u}, s{u}, {PREP}
        v_add_u32 v{vPA}, s{u}, v{vt[3]}""")
        if loads:
            k(f"""s_mov_b32 s{sB+2}, s{sA+2}
            s_mov_b32 s{sA+3}, 0x20000
            s_mov_b32 s{sB+3}, 0x20000
            v_mul_u32_u24 v{vt[2]}, s{C_}, v{vt[1]}
            v_bfe_u32 v{vt[3]}, v{vl}, 3, 2
            v_add_u32 v{vt[2]}, v{vt[2]}, v{vt[3]}
            v_mul_u32_u24 v{vt[2]}, s{st}, v{vt[2]}
            v_and_b32 v{vt[3]}, 7, v{vl}
            v_lshl_add_u32 v{vPS}, v{vt[3]}, 4, v{vt[2]}
            s_mul_i32 s{R0}, s{R0}, s{st}
            s_lshl_b32 s{cb}, s{pid}, 7
            s_add_u32 s{R0}, s{R0}, s{cb}
            s_mul_i32 s{A_}, s{A_}, s{st}
            s_mul_i32 s{B_}, s{B_}, s{st}
            s_add_u32 s{A_}, s{A_}, s{R0}
            s_add_u32 s{C_}, s{A_}, s{B_}
            s_add_u32 s{B_}, s{B_}, s{R0}""")
    dma_chunk(0); dma_chunk(1)
    common_setup()
    d4 = o.get('d4', False)
    k(f"""s_mov_b32 s{s_rs}, {0 if d4 else 3*SLOT}
    s_waitcnt vmcnt(8)
    s_barrier""")
    k.stamp(2)
    dma_chunk(2)
    if d4: dma_chunk(3)
    L = k.label("hloop"); Lz = k.label("hz"); Lzx = k.label("hzx"); Lnz = k.label("hnz")
    k(f"s_mov_b32 s{s_cnt}, {6 if d4 else 7}\n{L}:\ns_waitcnt vmcnt({16 if d4 else 8})\ns_barrier")
    dma_chunk()
    k(f"""s_add_u32 s{s_rs}, s{s_rs}, {SLOT}
    s_and_b32 s{s_rs}, s{s_rs}, {NS*SLOT-1}
    s_sub_u32 s{s_cnt}, s{s_cnt}, 1
    s_cmp_lg_u32 s{s_cnt}, 0
    s_cbranch_scc1 {L}""")
    if d4: k("s_waitcnt vmcnt(16)\ns_barrier")
    k(f"""v_and_b32 v{vt[3]}, 15, v{vl}
    v_lshlrev_b32 v{vt[3]}, 4, v{vt[3]}
    buffer_load_dword v{vt[4]}, v{vt[3]}, {sr(sD,4)}, 0 offen sc1
    s_waitcnt vmcnt(9)
    s_barrier
    s_waitcnt vmcnt(1)
    s_barrier
    s_cmp_lg_u32 s{s_w}, 0
    s_cbranch_scc1 {Lnz}
    s_mov_b32 s{s_t1}, 0
    {Lz}:
    s_waitcnt vmcnt(0)
    v_cmp_ne_u32 vcc, 0, v{vt[4]}
    s_add_u32 s{s_t1}, s{s_t1}, 1
    s_cmp_eq_u64 vcc, -1
    s_cbranch_scc1 {Lzx}
    s_cmp_gt_u32 s{s_t1}, 0x40000
    s_cbranch_scc1 {Lzx}
    buffer_load_dword v{vt[4]}, v{vt[3]}, {sr(sD,4)}, 0 offen sc1
    s_branch {Lz}
    {Lzx}:
    s_mov_b32 m0, {XCH}
    s_lshl_b32 s{s_t0}, s{s_tb}, 10
    s_add_u32 s{s_t0}, s{s_t0}, {LN1}
    buffer_load_dwordx4 v{vl16}, {sr(sO,4)}, s{s_t0} offen sc1 lds
    {Lnz}:
    s_waitcnt vmcnt(0)""")
    k.stamp(3)
    k(f"s_barrier\ns_branch {L_J0}")
    k(f"""{L_comp}:
    s_getpc_b64 {sr(sPC,2)}
    L_pf_here:
    s_lshr_b32 s{s_t0}, s2, 3
    s_lshl_b32 s{s_t0}, s{s_t0}, 2
    s_add_u32 s{s_t0}, s{s_t0}, s{s_wl}
    s_lshl_b32 s{s_t0}, s{s_t0}, 10
    s_sub_u32 s{sPC}, s{sPC}, L_pf_here - {NAME}
    s_subb_u32 s{sPC+1}, s{sPC+1}, 0
    s_cmp_gt_u32 s{s_t0}, L_code_end - {NAME} - 1024
    s_cbranch_scc1 L_pf_skip
    v_lshl_add_u32 v{vt[0]}, v{vl}, 4, s{s_t0}
    global_load_dwordx4 {vr(vpf,4)}, v{vt[0]}, {sr(sPC,2)}
    L_pf_skip:
    s_waitcnt lgkmcnt(0)""")
    if o.get('spf'):
        k(f"""s_mov_b64 {sr(sX,2)}, {sr(sP,2)}
        s_mov_b32 s{sX+2}, {2048*1280}
        s_mov_b32 s{sX+3}, 0x20000
        s_mov_b64 {sr(sW,2)}, {sr(sP+2,2)}
        s_mov_b32 s{sW+2}, {640*3840}
        s_mov_b32 s{sW+3}, 0x20000
        s_mul_i32 s{s_t0}, s{s_tb}, 15
        s_add_u32 s{s_t0}, s{s_t0}, s{s_cg}
        s_lshl_b32 s{s_t0}, s{s_t0}, 2
        s_add_u32 s{s_t0}, s{s_t0}, s{s_wl}
        s_mul_i32 s{s_t0}, s{s_t0}, 3072
        v_lshlrev_b32 v{vt[0]}, 4, v{vl}""")
        for i in range(3):
            if o['spf'] & 1: k(f"buffer_load_dwordx4 {vr(vpf+4+4*i,4)}, v{vt[0]}, {sr(sX,4)}, s{s_t0} offen offset:{1024*i}")
            if o['spf'] & 2: k(f"buffer_load_dwordx4 {vr(vpf+4+4*i,4)}, v{vt[0]}, {sr(sW,4)}, s{s_t0} offen offset:{1024*i}")
    common_setup()
    xaddr()
    k(f"""s_lshr_b32 s{s_t0}, s{s_wl}, 1
    s_and_b32 s{s_t1}, s{s_wl}, 1
    s_lshl_b32 s{s_t2}, s{s_t0}, 13
    v_add_u32 v{vXA[0]}, s{s_t2}, v{vt[2]}""")
    for s in range(1, 4): k(f"v_xor_b32 v{vXA[s]}, {32*s}, v{vXA[0]}")
    k(f"""v_bfe_u32 v{vt[2]}, v{vl}, 2, 2
    v_lshl_add_u32 v{vt[3]}, v{vt[1]}, 3, v{vt[2]}
    v_lshlrev_b32 v{vt[3]}, 8, v{vt[3]}
    s_lshl_b32 s{s_t2}, s{s_t1}, 1
    s_add_u32 s{s_t2}, s{s_t2}, s{s_t0}
    v_xor_b32 v{vt[2]}, s{s_t2}, v{vt[2]}
    v_lshl_add_u32 v{vt[3]}, v{vt[2]}, 6, v{vt[3]}
    v_bfe_u32 v{vt[2]}, v{vl}, 4, 1
    v_lshl_add_u32 v{vt[3]}, v{vt[2]}, 5, v{vt[3]}
    v_and_b32 v{vt[2]}, 3, v{vl}
    v_lshl_add_u32 v{vt[3]}, v{vt[2]}, 3, v{vt[3]}
    v_add_u32 v{vWA[0]}, 16384, v{vt[3]}
    v_xor_b32 v{vWA[1]}, 64, v{vWA[0]}
    s_mov_b32 s{s_slot}, 0""")
    for i in range(4): k(f"v_mov_b32 v{ones+i}, 0x3f803f80")
    def reads(buf, s):
        out = []
        for mt in range(2):
            out.append(f"ds_read_b128 {vr(fx[buf][mt],4)}, v{vXA[s]} offset:{mt*4096}")
        for nt in range(2):
            for rd in range(2):
                out.append(f"ds_read_b64_tr_b16 {vr(fw[buf][nt]+2*rd,2)}, v{vWA[nt]} offset:{(16*s+4*rd)*256}")
        return [out[2], out[3], out[0], out[1], out[4], out[5]]
    def mfmas(buf, vpath, first):
        m = []
        for nt in range(2):
            for mt in range(2):
                a, b = (fx[buf][mt], fw[buf][nt]) if vpath else (fw[buf][nt], fx[buf][mt])
                m.append(f"{M16} {vr(acc[nt][mt],16)}, {vr(a,4)}, {vr(b,4)}, {'0' if first else vr(acc[nt][mt],16)}")
        m.append(f"{M16} {vr(acs,16)}, {vr(ones,4)}, {vr(fw[buf][0],4)}, {'0' if first else vr(acs,16)}")
        return m
    def chunk(vpath, last, first=False):
        for s in range(3):
            k("s_waitcnt lgkmcnt(0)")
            m = mfmas(s & 1, vpath, first and s == 0); rd = reads((s + 1) & 1, s + 1)
            ad = []
            if not last and s == 0: ad = [None]
            for i in range(5):
                k(m[i])
                for x in rd[2*i:2*i+2]: k(x)
                if i == 3 and not last:
                    if s == 0: adv[:] = advance([vXA[0], vXA[1], vXA[2], vXA[3], vWA[0], vWA[1]])
                    k(adv[s])
        k("s_waitcnt lgkmcnt(0)")
        m = mfmas(1, vpath, False)
        if last:
            for x in m: k(x)
            return
        k(m[0])
        for x in adv[3:]: k(x)
        k(m[1])
        k("s_barrier")
        rd = reads(0, 0)
        for x in rd[:3]: k(x)
        k(m[2])
        for x in rd[3:]: k(x)
        k(m[3]); k(m[4])
    adv = []
    def mainloop(vpath):
        k("s_barrier")
        k.stamp(2)
        for x in reads(0, 0): k(x)
        chunk(vpath, False, first=True)
        L = k.label("loop")
        k(f"s_mov_b32 s{s_cnt}, 8\n{L}:")
        chunk(vpath, False)
        k(f"s_sub_u32 s{s_cnt}, s{s_cnt}, 1\ns_cmp_lg_u32 s{s_cnt}, 0\ns_cbranch_scc1 {L}")
        chunk(vpath, True)
        k.stamp(3)
    def epilogue(vpath):
        t = vt
        la = fx[0][0]; rg = k.v(32, 4); hoff = t[3]
        k(f"""v_and_b32 v{t[0]}, 31, v{vl}
        s_lshl_b32 s{s_t2}, s{s_t2}, 7
        s_add_u32 s{s_ox}, s{s_t2}, {XCH}
        v_lshl_add_u32 v{t[2]}, v{t[0]}, 2, s{s_ox}
        s_lshl_b32 s{s_ow}, s{s_t0}, 8
        s_add_u32 s{s_ow}, s{s_ow}, {XCH}
        v_lshl_add_u32 v{t[1]}, v{t[0]}, 2, s{s_ow}
        v_lshrrev_b32 v{hoff}, 5, v{vl}
        v_lshlrev_b32 v{hoff}, 4, v{hoff}
        s_cmp_lt_u32 s{s_cg}, 5
        s_cselect_b32 s{s_cnt}, {f2u(QSCALE):#x}, 1.0
        ds_write_b32 v{t[2]}, v{acs} offset:{CS}
        s_waitcnt lgkmcnt(0)
        s_barrier""")
        if not vpath:
            k(f"""ds_read_b32 v{la+0}, v{t[1]} offset:{NM}
            ds_read_b32 v{la+2}, v{t[1]} offset:{RS}
            ds_read_b32 v{la+4}, v{t[1]} offset:{NM+128}
            ds_read_b32 v{la+6}, v{t[1]} offset:{RS+128}
            v_add_u32 v{t[5]}, s{s_ox}, v{hoff}
            v_xor_b32 v{t[4]}, 128, v{t[5]}""")
            for nt in range(2):
                for j in range(4):
                    k(f"ds_read_b128 {vr(rg+16*nt+4*j,4)}, v{t[5] if nt==0 else t[4]} offset:{CS+32*j}")
            k(f"""v_lshlrev_b32 v{t[0]}, 4, v{t[0]}
            v_lshl_add_u32 v{t[0]}, v{hoff}, 11, v{t[0]}
            s_lshl_b32 s{s_ox}, s{s_cg}, 19
            s_lshl_b32 s{s_ow}, s{s_t2}, 10
            s_add_u32 s{s_ox}, s{s_ox}, s{s_ow}
            s_lshl_b32 s{s_ow}, s{s_tb}, 11
            s_add_u32 s{s_ox}, s{s_ox}, s{s_ow}
            s_lshl_b32 s{s_ow}, s{s_t0}, 10
            s_add_u32 s{s_ox}, s{s_ox}, s{s_ow}
            s_waitcnt lgkmcnt(4)
            v_mov_b32 v{la+1}, v{la+0}
            v_mul_f32 v{la+3}, s{s_cnt}, v{la+2}
            v_mul_f32 v{la+2}, s{s_cnt}, v{la+2}
            v_mov_b32 v{la+5}, v{la+4}
            v_mul_f32 v{la+7}, s{s_cnt}, v{la+6}
            v_mul_f32 v{la+6}, s{s_cnt}, v{la+6}""")
            for nt in range(2):
                if nt == 1: k("s_waitcnt lgkmcnt(0)")
                for mt in range(2):
                    A = acc[nt][mt]
                    for p in range(8):
                        k(f"v_pk_fma_f32 {vr(A+2*p,2)}, {vr(rg+16*nt+2*p,2)}, {vr(la+4*mt,2)}, {vr(A+2*p,2)}")
                    for p in range(8):
                        k(f"v_pk_mul_f32 {vr(A+2*p,2)}, {vr(A+2*p,2)}, {vr(la+4*mt+2,2)}")
                    for p in range(8):
                        k(f"v_cvt_pk_bf16_f32 v{A+p}, v{A+2*p}, v{A+2*p+1}")
                    k(f"s_xor_b32 s{s_ow}, s{s_ox}, {(nt*4*32768) | (mt*512)}")
                    k(f"s_add_u32 s{s_rs}, s{s_ow}, {2*32768}")
                    for jp in range(2):
                        k(f"v_permlane32_swap_b32 v{A+4*jp}, v{A+4*jp+2}\nv_permlane32_swap_b32 v{A+4*jp+1}, v{A+4*jp+3}")
                    k(f"buffer_store_dwordx4 {vr(A,4)}, v{t[0]}, {sr(sO,4)}, s{s_ow} offen{sc}")
                    k(f"buffer_store_dwordx4 {vr(A+4,4)}, v{t[0]}, {sr(sO,4)}, s{s_rs} offen{sc}")
        else:
            rg2 = k.v(32, 4)
            k(f"""v_xor_b32 v{t[4]}, 128, v{t[2]}
            ds_read_b32 v{la+2}, v{t[4]} offset:{CS}
            v_add_u32 v{t[5]}, s{s_ow}, v{hoff}""")
            for mt in range(2):
                for j in range(4):
                    k(f"ds_read_b128 {vr(rg+16*mt+4*j,4)}, v{t[5]} offset:{NM+128*mt+32*j}")
                    k(f"ds_read_b128 {vr(rg2+16*mt+4*j,4)}, v{t[5]} offset:{RS+128*mt+32*j}")
            va = [la + 4, la + 5]
            k(f"""s_sub_u32 s{s_ox}, s{s_cg}, 10
            s_lshl_b32 s{s_ox}, s{s_ox}, 7
            s_lshr_b32 s{s_ow}, s{s_t2}, 2
            s_add_u32 s{s_ox}, s{s_ox}, s{s_ow}
            v_add_u32 v{t[0]}, s{s_ox}, v{t[0]}
            v_mul_u32_u24 v{hoff}, 21, v{hoff}""")
            for nt in range(2):
                if nt == 1: k(f"v_xor_b32 v{t[0]}, 32, v{t[0]}")
                k(f"""v_mul_u32_u24 v{t[1]}, 3277, v{t[0]}
                v_lshrrev_b32 v{t[1]}, 16, v{t[1]}
                v_mul_u32_u24 v{t[2]}, {VHEAD - 320}, v{t[1]}
                v_lshl_add_u32 v{t[2]}, v{t[0]}, 4, v{t[2]}
                v_add_u32 v{va[nt]}, v{t[2]}, v{hoff}""")
            k(f"""s_lshl_b32 s{s_ox}, s{s_tb}, 1
            s_add_u32 s{s_ox}, s{s_ox}, s{s_t0}
            s_mul_i32 s{s_ox}, s{s_ox}, 2688
            s_add_u32 s{s_ox}, s{s_ox}, {VIMG}
            v_mov_b32 v{la+0}, v{acs}
            v_mov_b32 v{la+1}, v{acs}
            s_waitcnt lgkmcnt(8)
            v_mov_b32 v{la+3}, v{la+2}""")
            for mt in range(2):
                if mt == 1: k("s_waitcnt lgkmcnt(0)")
                for nt in range(2):
                    A = acc[nt][mt]
                    for p in range(8):
                        k(f"v_pk_fma_f32 {vr(A+2*p,2)}, {vr(rg+16*mt+2*p,2)}, {vr(la+2*nt,2)}, {vr(A+2*p,2)}")
                    for p in range(8):
                        k(f"v_pk_mul_f32 {vr(A+2*p,2)}, {vr(A+2*p,2)}, {vr(rg2+16*mt+2*p,2)}")
                    for p in range(8):
                        k(f"v_cvt_pk_bf16_f32 v{A+p}, v{A+2*p}, v{A+2*p+1}")
                    k(f"buffer_store_dwordx4 {vr(A,4)}, v{va[nt]}, {sr(sO,4)}, s{s_ox} offen offset:{1344*mt}{sc}")
                    k(f"buffer_store_dwordx4 {vr(A+4,4)}, v{va[nt]}, {sr(sO,4)}, s{s_ox} offen offset:{1344*mt+672}{sc}")
    k(f"s_cmp_ge_u32 s{s_cg}, 10\ns_cbranch_scc1 {L_v}")
    vsave = k.vnext
    mainloop(False); epilogue(False); k(f"s_branch {L_J0}")
    k.vnext = vsave
    k(f"{L_v}:")
    mainloop(True); epilogue(True)
    k(f"{L_J0}:\ns_setprio 0")
    k.stamp(4)
    prep_decode(True)
    k(f"""s_lshl_b32 s{c.s_f}, s{s_cg}, 5
    s_add_u32 s{c.s_f}, s{c.s_f}, s{s_tb}
    s_lshl_b32 s{c.s_f}, s{c.s_f}, {FL}
    s_add_u32 s{c.s_f}, s{c.s_f}, {F1}""")
    def spare():
        o4 = acs; xb = acc[0][0]; sm = [fw[0][0], fw[0][0] + 1]; sq = [fw[0][0] + 2, fw[0][0] + 3]
        k(f"""{L_spare}:
        v_lshrrev_b32 v{vt[0]}, 3, v{vl}
        v_lshl_add_u32 v{vt[0]}, s{s_w}, 4, v{vt[0]}
        v_mul_u32_u24 v{vt[0]}, 1280, v{vt[0]}
        v_and_b32 v{vt[2]}, 7, v{vl}
        v_lshl_add_u32 v{vX[0]}, v{vt[2]}, 4, v{vt[0]}
        v_add_u32 v{vX[1]}, {8*1280}, v{vX[0]}
        s_mul_i32 s{s_t0}, s{s_tb}, {128*1280}
        s_mov_b32 s{sX+2}, {128*1280}
        s_mov_b32 s{sX+3}, 0x20000
        s_waitcnt lgkmcnt(0)
        s_add_u32 s{sX}, s{sP}, s{s_t0}
        s_addc_u32 s{sX+1}, s{sP+1}, 0""")
        for g in range(2):
            for i in range(10): k(f"buffer_load_dwordx4 {vr(xb+40*g+4*i,4)}, v{vX[g]}, {sr(sX,4)}, 0 offen offset:{128*i}")
        common_setup()
        srd(k, sW, sWS, sWS + 1, CSG + ZERO_BYTES)
        o4 = xb + 80
        k(f"""s_lshl_b32 s{s_t0}, s{s_tb}, 1
        s_mul_i32 s{s_t0}, s{s_t0}, {VHEAD}
        s_add_u32 s{s_t0}, s{s_t0}, {VIMG + 320}
        v_mul_u32_u24 v{vt[0]}, 336, v0
        v_lshlrev_b32 v{vt[1]}, 4, v0
        s_lshl_b32 s{s_t1}, s{s_tb}, 13
        s_add_u32 s{s_t1}, s{s_t1}, {CSG}
        s_mov_b32 s{s_msk}, 0x3f803f80""")
        for i in range(4): k(f"v_mov_b32 v{o4+i}, 0x3f803f80\nv_mov_b32 v{o4+4+i}, 0")
        nz = (ZERO_BYTES + 131071) // 131072
        for z in range(nz):
            k(f"buffer_store_dwordx4 {vr(o4+4,4)}, v{vt[1]}, {sr(sW,4)}, s{s_t1} offen{sc}\ns_add_u32 s{s_t1}, s{s_t1}, 131072")
        k(f"buffer_store_dwordx4 {vr(o4,4)}, v{vt[0]}, {sr(sO,4)}, s{s_t0} offen{sc}")
        st = o4 + 8
        for i in range(4): k(f"v_mov_b32 v{st+i}, 0")
        for g in range(2):
            for i in range(10):
                k(f"s_waitcnt vmcnt({19 - 10*g - i + nz + 1})")
                for j in range(4):
                    x = xb + 40 * g + 4 * i + j
                    k(f"v_dot2c_f32_bf16 v{st+2*g}, s{s_msk}, v{x}\nv_dot2c_f32_bf16 v{st+2*g+1}, v{x}, v{x}")
        for ctl in ("quad_perm:[1,0,3,2]", "quad_perm:[2,3,0,1]", "row_half_mirror"):
            for i in range(4): k(f"v_add_f32_dpp v{st+i}, v{st+i}, v{st+i} {ctl} row_mask:0xf bank_mask:0xf")
        Ln = k.label("sn")
        k(f"""v_and_b32 v{vt[2]}, 1, v{vl}
        v_cmp_eq_u32 vcc, 1, v{vt[2]}
        v_lshrrev_b32 v{vt[3]}, 3, v{vl}
        v_lshl_add_u32 v{vt[3]}, v{vt[2]}, 3, v{vt[3]}
        v_cndmask_b32 v{st}, v{st}, v{st+2}, vcc
        v_cndmask_b32 v{st+1}, v{st+1}, v{st+3}, vcc
        v_lshlrev_b32 v{vt[3]}, 2, v{vt[3]}
        v_mul_f32 v{st}, {f2u(-1.0/640):#x}, v{st}
        v_mul_f32 v{st+1}, {f2u(1.0/640):#x}, v{st+1}
        v_fma_f32 v{st+1}, -v{st}, v{st}, v{st+1}
        v_max_f32 v{st+1}, 0, v{st+1}
        v_add_f32 v{st+1}, {f2u(1e-5):#x}, v{st+1}
        v_rsq_f32 v{st+1}, v{st+1}
        s_lshl_b32 s{s_t0}, s{s_tb}, 10
        s_lshl_b32 s{s_t1}, s{s_w}, 6
        s_add_u32 s{s_t0}, s{s_t0}, s{s_t1}
        s_add_u32 s{s_t0}, s{s_t0}, {LN1}
        s_mov_b32 exec_lo, 0x03030303
        s_mov_b32 exec_hi, 0x03030303
        buffer_store_dword v{st}, v{vt[3]}, {sr(sO,4)}, s{s_t0} offen{sc}
        buffer_store_dword v{st+1}, v{vt[3]}, {sr(sO,4)}, s{s_t0} offen offset:512{sc}
        s_mov_b64 exec, -1
        s_waitcnt vmcnt(0)
        s_barrier
        s_cmp_lg_u32 s{s_w}, 4
        s_cbranch_scc1 {Ln}
        s_lshl_b32 s{s_t0}, s{s_tb}, 4
        v_mov_b32 v{vt[2]}, 1
        v_mov_b32 v{vt[3]}, 0
        s_mov_b64 exec, 1
        buffer_store_dword v{vt[2]}, v{vt[3]}, {sr(sD,4)}, s{s_t0} offen sc1
        s_mov_b64 exec, -1
        {Ln}:""")
        k.stamp(2); k.stamp(3)
        k(f"s_branch {L_J0}")
    def deferred(fn):
        n = len(k.lines); fn(); out = k.lines[n:]; del k.lines[n:]; return out
    spare_code = deferred(spare)
    c.reset()
    prio = o.get('prio', (18, 6, 3, 1))
    s_h = k.s(); s_pa = k.s(); s_pr = k.s(); s_odd8 = k.s(); s_tok = k.s()
    s_t0 = k.s(); s_t1 = k.s(); s_t2 = k.s(); s_t3 = k.s()
    so = [k.s() for _ in range(3)]; s_d = k.s(); s_mo = k.s(); s_ms = k.s(); s_q1 = k.s(); s_q2 = k.s()
    sG = k.s(2); sE = k.s(2)
    vq = k.v(); vr31 = k.v(); vKA = k.v(); vKR = k.v(); vVA = k.v(); vqr = k.v()
    vt0 = k.v(6, 2); vt = list(range(vt0, vt0 + 6))
    S = [k.v(32, 4), k.v(32, 4)]; O = k.v(16, 4); OY = k.v(16, 4); P = k.v(8, 4)
    Qm = k.v(4, 4); QmY = k.v(4, 4); Qr = k.v(2); Km = k.v(4, 4); Kr = k.v(2); V0 = k.v(4, 4); V1 = [k.v(4, 4), k.v(4, 4)]
    PR = k.v(16, 4); C = S[1]; vcs = k.v(16, 4); vsel = k.v(16, 4); vca = k.v(); vfp = k.v(4, 4); vo1 = k.v(); vo2 = k.v(); vx1 = k.v(); vx2 = k.v(); s_o1 = k.s(); s_o2 = k.s()
    L_slow = k.label("slow"); L_store = k.label("store")
    k(f"""s_and_b32 s{s_t0}, s2, 7
    s_lshl_b32 s{s_t0}, s{s_t0}, 2
    s_bfe_u32 s{s_t1}, s2, 0x20003
    s_add_u32 s{s_h}, s{s_t0}, s{s_t1}
    s_lshr_b32 s{s_q1}, s{s_h}, 1
    s_mul_i32 s{s_t0}, s{s_q1}, 5
    s_and_b32 s{s_t1}, s{s_h}, 1
    s_lshl_b32 s{s_odd8}, s{s_t1}, 3
    s_mul_i32 s{s_t1}, s{s_t1}, 3
    s_add_u32 s{s_pa}, s{s_t0}, s{s_t1}
    s_lshl_b32 s{s_pa}, s{s_pa}, 15
    s_add_u32 s{s_pr}, s{s_t0}, 2
    s_lshl_b32 s{s_pr}, s{s_pr}, 15
    s_lshr_b32 s{s_q2}, s{s_wl}, 1
    s_and_b32 s{s_t3}, s{s_w}, 1
    s_lshl_b32 s{s_t0}, s{s_q2}, 14
    s_lshl_b32 s{s_t1}, s{s_t3}, 10
    s_add_u32 s{s_t0}, s{s_t0}, s{s_t1}
    s_add_u32 s{s_t0}, s{s_t0}, {80*32768}
    s_add_u32 s{so[0]}, s{s_pa}, s{s_t0}
    s_add_u32 s{so[2]}, s{s_pr}, s{s_t0}
    s_mul_i32 s{s_mo}, s{s_q2}, 6144
    s_mul_i32 s{s_t3}, s{s_t3}, 3072
    s_mul_i32 s{s_t2}, s{s_h}, {VHEAD}
    s_mul_i32 s{s_t0}, s{s_q2}, {32*1344}
    s_add_u32 s{s_t2}, s{s_t2}, s{s_t0}
    s_add_u32 s{s_t2}, s{s_t2}, s{s_t3}
    s_add_u32 s{s_t2}, s{s_t2}, {VIMG}
    s_add_u32 s{s_t3}, s{s_t3}, {VB}
    s_add_u32 s{s_t0}, s{s_t2}, 2048
    s_cmp_lt_u32 s{s_w}, 4
    s_cselect_b32 s{so[0]}, s{so[0]}, s{s_t2}
    s_cselect_b32 s{so[2]}, s{so[2]}, s{s_t0}
    s_cselect_b32 s{s_t1}, s{s_t1}, s{s_t3}
    s_movk_i32 s{s_t0}, 1024
    s_cselect_b32 s{so[1]}, 32768, s{s_t0}
    s_movk_i32 s{s_d}, 5376
    s_cselect_b32 s{s_d}, 2048, s{s_d}
    s_cselect_b32 s{s_ms}, 2048, s{s_t0}
    s_add_u32 s{so[1]}, s{so[1]}, s{so[0]}
    s_add_u32 s{s_mo}, s{s_mo}, s{s_t1}
    s_lshr_b32 s{s_t3}, s{s_w}, 2
    s_mul_i32 s{s_t0}, s{s_t3}, 6144
    v_and_b32 v{vr31}, 31, v{vl}
    v_lshlrev_b32 v{vr31}, 4, v{vr31}
    v_lshrrev_b32 v{vt[1]}, 5, v{vl}
    v_lshl_add_u32 v{vq}, v{vt[1]}, 15, v{vr31}
    v_add_u32 v{vt[2]}, s{s_t0}, v{vr31}
    v_lshl_add_u32 v{vKA}, v{vt[1]}, 11, v{vt[2]}
    v_add_u32 v{vKR}, s{s_odd8}, v{vt[2]}
    v_add_u32 v{vKR}, 4096, v{vKR}
    v_mul_u32_u24 v{vt[0]}, 336, v{vt[1]}
    v_add_u32 v{vt[0]}, v{vt[0]}, v{vt[2]}
    v_add_u32 v{vVA}, {VB}, v{vt[0]}
    v_cmp_lt_u32 vcc, {20*16}, v{vr31}
    v_mov_b32 v{vt[0]}, 0x40000
    v_xor_b32 v{vt[1]}, s{s_t3}, v{vt[1]}
    v_cndmask_b32 v{vVA}, v{vVA}, v{vt[0]}, vcc
    v_lshl_add_u32 v{vqr}, v{vt[1]}, 9, v{vr31}
    s_lshr_b32 s{s_tok}, s2, 5
    s_lshl_b32 s{s_tok}, s{s_tok}, 8
    s_lshl_b32 s{s_t0}, s{s_wl}, 6
    s_add_u32 s{s_tok}, s{s_tok}, s{s_t0}
    s_lshl_b32 s{s_t0}, s{s_t3}, 5
    s_add_u32 s{s_tok}, s{s_tok}, s{s_t0}""")
    k(f"v_lshlrev_b32 v{vca}, 2, v{vl}\nv_mov_b32 v{vt[0]}, 0x3f803f80")
    for Tl, row in enumerate((0, 4, 1, 5)):
        k(f"v_cmp_eq_u32 vcc, {16*row}, v{vr31}")
        k(f"v_cndmask_b32 v{vsel+4*Tl}, 0, v{vt[0]}, vcc")
        for i in range(1, 4): k(f"v_mov_b32 v{vsel+4*Tl+i}, v{vsel+4*Tl}")
    k(f"""v_bfe_u32 v{vo2}, v{vl}, 4, 1
    v_mul_u32_u24 v{vo2}, {20*1024}, v{vo2}
    v_and_b32 v{vo1}, 15, v{vl}
    v_lshl_add_u32 v{vo2}, v{vo1}, 4, v{vo2}
    v_lshrrev_b32 v{vo1}, 5, v{vl}
    v_lshl_add_u32 v{vo1}, v{vo1}, 8, v{vo2}
    s_lshr_b32 s{s_t0}, s{s_tok}, 4
    s_mul_i32 s{s_t0}, s{s_t0}, {20*1024}
    s_add_u32 s{s_t0}, s{s_t0}, {OIMG}
    s_lshl_b32 s{s_o1}, s{s_h}, 9
    s_add_u32 s{s_o1}, s{s_o1}, s{s_t0}
    s_lshr_b32 s{s_o2}, s{s_h}, 1
    s_lshl_b32 s{s_o2}, s{s_o2}, 8
    s_add_u32 s{s_o2}, s{s_o2}, s{s_t0}
    s_add_u32 s{s_o2}, s{s_o2}, s{s_odd8}
    s_add_u32 s{s_o2}, s{s_o2}, {16*1024}
    s_mul_i32 s{s_t0}, s{s_w}, 3072
    s_add_u32 s{s_t0}, s{s_t0}, {EXB}
    v_add_u32 v{vx1}, s{s_t0}, v{vl16}
    s_xor_b32 s{s_t1}, s{s_w}, 4
    s_mul_i32 s{s_t1}, s{s_t1}, 3072
    s_add_u32 s{s_t1}, s{s_t1}, {EXB}
    v_add_u32 v{vx2}, s{s_t1}, v{vl16}""")
    p1 = [f"s_mov_b32 m0, s{sR[4]}", "s_nop 0"]
    for i, (sd, so_) in enumerate(((sA, sR[0]), (sA, sR[2]), (sB, sR[1]), (sB, sR[3]))):
        p1.append(f"buffer_load_dwordx4 v{vPS}, {sr(sd,4)}, s{so_} offen lds")
        if i < 3: p1 += ["s_add_u32 m0, m0, 1024", "s_nop 0"]
    edge_prep = o.get('edge_prep', False)
    Lx = k.label("jx"); Lp = k.label("jp"); Lz = k.label("jz"); Lzx = k.label("jzx"); Lns = k.label("jns")
    k(f"""s_cmp_lg_u32 s{s_w}, 0
    s_cbranch_scc1 {Lzx}
    v_and_b32 v{vt[3]}, 15, v{vl}
    v_lshlrev_b32 v{vt[3]}, 4, v{vt[3]}
    s_mov_b32 s{s_t1}, 0
    {Lz}:
    buffer_load_dword v{vt[4]}, v{vt[3]}, {sr(sD,4)}, 0 offen sc1
    s_add_u32 s{s_t1}, s{s_t1}, 1
    s_cmp_gt_u32 s{s_t1}, 0x40000
    s_cbranch_scc1 {Lzx}
    s_waitcnt vmcnt(0)
    v_cmp_ne_u32 vcc, 0, v{vt[4]}
    s_cmp_eq_u64 vcc, -1
    s_cbranch_scc0 {Lz}
    {Lzx}:
    s_waitcnt vmcnt(0)""")
    k.stamp(5)
    k(f"""s_barrier
    s_cmp_lg_u32 s{s_w}, 0
    s_cbranch_scc1 {Lns}""")
    c.signal(c.s_f, vt[2])
    k(f"{Lns}:")
    if edge_prep:
        for x in p1: k(x)
    k(f"""s_cmp_lg_u32 s{s_w}, 0
    s_cbranch_scc1 {Lx}
    s_mul_i32 s{s_t0}, s{s_q1}, 40
    s_add_u32 s{s_t1}, s{s_t0}, 39
    s_lshr_b32 s{s_t0}, s{s_t0}, 7
    s_lshr_b32 s{s_t1}, s{s_t1}, 7
    s_lshl_b32 s{s_t0}, s{s_t0}, {FL+5}
    s_lshl_b32 s{s_t1}, s{s_t1}, {FL+5}
    s_add_u32 s{s_t0}, s{s_t0}, {F1}
    s_add_u32 s{s_t1}, s{s_t1}, {F1}
    v_lshrrev_b32 v{vt[2]}, 4, v{vl}
    v_min_u32 v{vt[2]}, 2, v{vt[2]}
    v_mul_u32_u24 v{vt[2]}, 160, v{vt[2]}
    v_and_b32 v{vt[3]}, 15, v{vl}
    v_add_u32 v{vt[3]}, v{vt[3]}, v{vt[2]}
    v_lshlrev_b32 v{vt[3]}, {FL}, v{vt[3]}
    s_mov_b32 s{s_t2}, 0
    {Lp}:
    buffer_load_dword v{vt[4]}, v{vt[3]}, {sr(sO,4)}, s{s_t0} offen sc1
    buffer_load_dword v{vt[5]}, v{vt[3]}, {sr(sO,4)}, s{s_t1} offen sc1
    s_add_u32 s{s_t2}, s{s_t2}, 1
    s_cmp_gt_u32 s{s_t2}, 0x40000
    s_cbranch_scc1 {Lx}
    s_waitcnt vmcnt(0)
    v_min_u32 v{vt[4]}, v{vt[4]}, v{vt[5]}
    v_cmp_ne_u32 vcc, 0, v{vt[4]}
    s_cmp_eq_u64 vcc, -1
    s_cbranch_scc0 {Lp}
    {Lx}:
    s_lshl_b32 s{s_t0}, s{s_tok}, 4
    s_add_u32 s{s_q1}, s{s_t0}, s{s_pa}
    s_xor_b32 s{s_t3}, s{s_q1}, 512
    s_andn2_b32 s{s_q2}, s{s_t0}, 512
    s_add_u32 s{s_q2}, s{s_q2}, s{s_pr}
    s_add_u32 s{s_q2}, s{s_q2}, s{s_odd8}
    s_barrier""")
    k.stamp(6)
    def dma(slot):
        out = [f"s_add_u32 m0, s{s_mo}, {slot*SL}", "s_nop 0"]
        for i in range(3):
            out.append(f"buffer_load_dwordx4 v{vl16}, {sr(sO,4)}, s{so[i]} offen lds")
            if i < 2: out.append(f"s_add_u32 m0, m0, s{s_ms}")
            out.append(f"s_add_u32 s{so[i]}, s{so[i]}, s{s_d}")
        return out
    for x in dma(0): k(x)
    k(f"""buffer_load_dwordx4 {vr(Qm,4)}, v{vq}, {sr(sO,4)}, s{s_q1} offen
    buffer_load_dwordx4 {vr(QmY,4)}, v{vq}, {sr(sO,4)}, s{s_t3} offen
    buffer_load_dwordx2 {vr(Qr,2)}, v{vqr}, {sr(sO,4)}, s{s_q2} offen""")
    for x in dma(1): k(x)
    p2a = [f"ds_read_b64_tr_b16 {vr(PR+4*Tl+2*rd,2)}, v{vPA} offset:{rd*1024+Tl*32}" for Tl in range(4) for rd in range(2)]
    p2c = [f"{M16} {vr(vcs,16)}, {vr(vsel+4*Tl,4)}, {vr(PR+4*Tl,4)}, {'0' if Tl == 0 else vr(vcs,16)}" for Tl in range(4)]
    late = [f"buffer_store_dwordx4 {vr(PR+4*Tl,4)}, v{vl16}, {sr(sO,4)}, s{s_po} offen offset:{Tl*1024}{sc}" for Tl in range(4)]
    late += [f"buffer_atomic_add_f32 v{vcs}, v{vca}, {sr(sO,4)}, s{s_cs} offen", f"buffer_atomic_add_f32 v{vcs+1}, v{vca}, {sr(sO,4)}, s{s_cs} offen offset:256"]
    TL = o.get('TL', 4); TP = 11
    late_t = o.get('late_t', [13, 15, 16, 17, 19, 20]); TSIG = 26
    assert not edge_prep
    M2B = "v_mfma_f32_32x32x4_2b_bf16"
    def rdK(t):
        o_ = ((t // 4) % 3) * SL + (t % 4) * 512
        return [f"ds_read_b128 {vr(Km,4)}, v{vKA} offset:{o_}", f"ds_read_b64 {vr(Kr,2)}, v{vKR} offset:{o_}"]
    def rdV(t):
        o_ = ((t // 4) % 3) * SL + (t % 4) * 1344
        return [f"ds_read_b128 {vr(V0,4)}, v{vVA} offset:{o_}", f"ds_read_b128 {vr(V1[t&1],4)}, v{vVA} offset:{o_+672}"]
    k("s_waitcnt vmcnt(3)\ns_barrier")
    k.stamp(7)
    for x in rdK(0): k(x)
    k(f"""s_waitcnt lgkmcnt(0)
    {M2B} {vr(S[0],32)}, {vr(Kr,2)}, {vr(Qr,2)}, 0
    {M16} {vr(S[0],16)}, {vr(Km,4)}, {vr(Qm,4)}, {vr(S[0],16)}
    {M16} {vr(S[0]+16,16)}, {vr(Km,4)}, {vr(QmY,4)}, {vr(S[0]+16,16)}""")
    for x in rdK(1) + rdV(0): k(x)
    side = []; vm = [0]
    def spread(n):
        for _ in range(n):
            if side:
                x = side.pop(0)
                if x == 'KV': vm[0] = 0; continue
                k(x)
                if x.startswith('buffer_'): vm[0] += 1
    NT = 32
    for t in range(NT):
        s = S[t & 1]; sn = S[(t + 1) & 1]; pe = t // 4; last = t == NT - 1
        e = lambda *a: [(k(f"v_exp_f32 v{s+i}, v{s+i}"), spread(1)) for i in a]
        cv = lambda i: k(f"v_cvt_pk_bf16_f32 v{P+i%8}, v{s+2*i}, v{s+2*i+1}")
        def pr(ph):
            if prio:
                q = (7 * t + ph - 19) % 28
                cum = 0
                for lvl, ln in enumerate(prio):
                    if (q == cum and ln > 0) or (t == 0 and ph == 0 and cum <= q < cum + ln): k(f"s_setprio {3 - lvl}")
                    cum += ln
        z = lambda r: '0' if t == 0 else vr(r, 16)
        pr(0)
        e(0, 1, 2, 3)
        if not last:
            k("s_waitcnt lgkmcnt(2)")
            k(f"{M2B} {vr(sn,32)}, {vr(Kr,2)}, {vr(Qr,2)}, 0")
        pr(1)
        e(4); cv(0); e(5); cv(1); e(6, 7); cv(2); e(8); cv(3); e(9, 10)
        k("s_waitcnt lgkmcnt(0)")
        k(f"{M16} {vr(O,16)}, {vr(V0,4)}, {vr(P,4)}, {z(O)}")
        pr(2)
        e(11); cv(4); e(12); cv(5); e(13, 14)
        if not last: k(f"{M16} {vr(sn,16)}, {vr(Km,4)}, {vr(Qm,4)}, {vr(sn,16)}")
        pr(3)
        e(15); cv(6); e(16); cv(7); e(17, 18)
        k(f"{M16} {vr(O,16)}, {vr(V1[t&1],4)}, {vr(P+4,4)}, {vr(O,16)}")
        pr(4)
        e(19); cv(8); e(20); cv(9); e(21, 22)
        if not last: k(f"{M16} {vr(sn+16,16)}, {vr(Km,4)}, {vr(QmY,4)}, {vr(sn+16,16)}")
        if t % 4 == 2 and pe < 7:
            assert not side
            k(f"s_waitcnt vmcnt({0 if t in (TP - 1, TSIG - 4) else vm[0]})\ns_barrier")
            if o.get('fine') == 2: k.stamp({0: 1, 1: 2, 2: 3, 3: 4, 4: 5, 5: 6, 6: 9}[pe])
            if pe < 6: side += dma((pe + 2) % 3) + ['KV']
            if t == TSIG - 4:
                Ln = k.label("nf")
                k(f"s_cmp_lg_u32 s{s_w}, 0\ns_cbranch_scc1 {Ln}\ns_lshl_b32 s{s_t0}, s2, 2\ns_add_u32 s{s_t0}, s{s_t0}, {FP}")
                c.signal(s_t0, vt[2]); k(f"{Ln}:")
        pr(5)
        if t < NT - 2:
            for x in rdK(t + 2): k(x)
        if t == TP:
            for x in p2a: k(x)
        if t == TL: side += p1
        if TP < t <= TP + 4: k(p2c[t - TP - 1])
        if t in late_t: side.append(late[late_t.index(t)])
        if t == 28: k(f"s_mov_b32 s{s_t0}, {FP}\nbuffer_load_dwordx4 {vr(vfp,4)}, v{vl16}, {sr(sO,4)}, s{s_t0} offen sc1")
        e(23); cv(10); e(24); cv(11); e(25, 26)
        k(f"{M16} {vr(OY,16)}, {vr(V0,4)}, {vr(P,4)}, {z(OY)}")
        pr(6)
        e(27); cv(12); e(28); cv(13); e(29, 30, 31); cv(14)
        if not last:
            rv = rdV(t + 1)
            k(rv[0]); cv(15); k(rv[1]); k("s_nop 0")
        else:
            cv(15)
        k(f"{M16} {vr(OY,16)}, {vr(V1[t&1],4)}, {vr(P+4,4)}, {vr(OY,16)}")
    assert not side
    if o.get('fine') == 2: k.stamp(10)
    k("s_setprio 0")
    for j in range(3): k(f"ds_write_b128 v{vx1}, {vr(OY+4*j,4)} offset:{1024*j}")
    k(f"s_mov_b32 s{s_q1}, {f2u(2.0**64):#x}\ns_mov_b32 s{s_q2}, 0x7f800000")
    k("s_waitcnt lgkmcnt(0)\ns_barrier")
    for j in (2, 0, 1): k(f"ds_read_b128 {vr(OY+4*j,4)}, v{vx2} offset:{1024*j}")
    t0, t1, t2 = vt[0], vt[1], vt[2]
    k("s_waitcnt lgkmcnt(2)")
    for i in (4, 5): k(f"v_pk_add_f32 {vr(O+2*i,2)}, {vr(O+2*i,2)}, {vr(OY+2*i,2)}")
    k(f"v_mov_b32 v{t0}, v{O+8}\nv_mov_b32 v{t1}, v{O+8}\ns_waitcnt lgkmcnt(0)")
    for i in range(4): k(f"v_pk_add_f32 {vr(O+2*i,2)}, {vr(O+2*i,2)}, {vr(OY+2*i,2)}")
    k(f"""v_permlane32_swap_b32 v{t0}, v{t1}
    v_add_f32 v{t2}, |v{O+8}|, |v{O+9}|
    v_add_f32 v{vt[3]}, |v{O+10}|, |v{O+11}|""")
    for i in range(0, 8, 2): k(f"v_add_f32 v{t2}, |v{O+i}|, v{t2}\nv_add_f32 v{vt[3]}, |v{O+i+1}|, v{vt[3]}")
    k(f"""v_cmp_lt_f32 vcc, {f2u(2.0**-64):#x}, v{t1}
    v_add_f32 v{t2}, v{t2}, v{vt[3]}
    v_cmp_gt_f32 {sr(sE,2)}, s{s_q1}, v{t1}
    v_cmp_gt_f32 {sr(sG,2)}, s{s_q2}, v{t2}
    s_and_b64 vcc, vcc, {sr(sE,2)}
    s_and_b64 vcc, vcc, {sr(sG,2)}
    s_cmp_eq_u64 vcc, -1
    s_cbranch_scc0 {L_slow}
    {L_store}:
    v_rcp_f32 v{t0}, v{t1}
    v_rcp_f32 v{t1}, v{t1}""")
    assert t0 % 2 == 0 and t1 == t0 + 1
    for i in range(4): k(f"v_pk_mul_f32 {vr(O+2*i,2)}, {vr(O+2*i,2)}, {vr(t0,2)}")
    for i in range(4): k(f"v_cvt_pk_bf16_f32 v{O+i}, v{O+2*i}, v{O+2*i+1}")
    k(f"buffer_store_dwordx4 {vr(O,4)}, v{vo1}, {sr(sO,4)}, s{s_o1} offen{sc}")
    for i in range(4, 6): k(f"v_pk_mul_f32 {vr(O+2*i,2)}, {vr(O+2*i,2)}, {vr(t0,2)}")
    for i in range(4, 6): k(f"v_cvt_pk_bf16_f32 v{O+i}, v{O+2*i}, v{O+2*i+1}")
    k(f"""s_mov_b32 exec_hi, 0
    buffer_store_dwordx2 {vr(O+4,2)}, v{vo2}, {sr(sO,4)}, s{s_o2} offen{sc}
    s_mov_b32 exec_hi, -1""")
    def slow():
        vV = vKA; vm = vKR; cnt = s_t3
        k(f"""{L_slow}:
        s_lshl_b32 s{so[0]}, s{s_tok}, 4
        s_add_u32 s{so[0]}, s{so[0]}, s{s_pr}
        s_add_u32 s{so[0]}, s{so[0]}, s{s_odd8}
        v_mov_b32 v{Qr}, 0
        v_mov_b32 v{Qr+1}, 0
        s_mov_b32 exec_hi, 0
        buffer_load_dwordx2 {vr(Qr,2)}, v{vr31}, {sr(sO,4)}, s{so[0]} offen
        s_mov_b32 exec_hi, -1
        s_add_u32 s{so[0]}, s{s_pa}, {80*32768}
        s_add_u32 s{so[1]}, s{s_pr}, {80*32768}
        s_add_u32 s{so[1]}, s{so[1]}, s{s_odd8}
        v_mov_b32 v{vm}, 0xff800000
        s_mov_b32 s{cnt}, 0""")
        L1 = k.label("mx")
        k(f"""{L1}:
        buffer_load_dwordx4 {vr(Km,4)}, v{vq}, {sr(sO,4)}, s{so[0]} offen
        buffer_load_dwordx2 {vr(Kr,2)}, v{vr31}, {sr(sO,4)}, s{so[1]} offen
        s_add_u32 s{so[0]}, s{so[0]}, 512
        s_add_u32 s{so[1]}, s{so[1]}, 512
        s_waitcnt vmcnt(0)
        {M8} {vr(S[0],16)}, {vr(Kr,2)}, {vr(Qr,2)}, 0
        {M16} {vr(S[0],16)}, {vr(Km,4)}, {vr(Qm,4)}, {vr(S[0],16)}""")
        for i in range(8): k(f"v_max3_f32 v{vm}, v{S[0]+2*i}, v{S[0]+2*i+1}, v{vm}")
        k(f"""s_add_u32 s{cnt}, s{cnt}, 1
        s_cmp_lt_u32 s{cnt}, 64
        s_cbranch_scc1 {L1}
        v_mov_b32 v{t0}, v{vm}
        v_permlane32_swap_b32 v{t0}, v{vm}
        v_max_f32 v{vm}, v{vm}, v{t0}""")
        for i in range(16): k(f"v_sub_f32 v{C+i}, 0, v{vm}\nv_mov_b32 v{O+i}, 0")
        k(f"""s_add_u32 s{so[0]}, s{s_pa}, {80*32768}
        s_add_u32 s{so[1]}, s{s_pr}, {80*32768}
        s_add_u32 s{so[1]}, s{so[1]}, s{s_odd8}
        s_mul_i32 s{so[2]}, s{s_h}, {VHEAD}
        s_add_u32 s{so[2]}, s{so[2]}, {VIMG}
        v_lshrrev_b32 v{vV}, 5, v{vl}
        v_mul_u32_u24 v{vV}, 336, v{vV}
        v_add_u32 v{vV}, v{vV}, v{vr31}
        s_mov_b32 s{cnt}, 0""")
        L2 = k.label("pv")
        k(f"""{L2}:
        buffer_load_dwordx4 {vr(Km,4)}, v{vq}, {sr(sO,4)}, s{so[0]} offen
        buffer_load_dwordx2 {vr(Kr,2)}, v{vr31}, {sr(sO,4)}, s{so[1]} offen
        buffer_load_dwordx4 {vr(V0,4)}, v{vV}, {sr(sO,4)}, s{so[2]} offen
        buffer_load_dwordx4 {vr(V1[0],4)}, v{vV}, {sr(sO,4)}, s{so[2]} offen offset:672
        s_add_u32 s{so[0]}, s{so[0]}, 512
        s_add_u32 s{so[1]}, s{so[1]}, 512
        s_add_u32 s{so[2]}, s{so[2]}, 1344
        s_waitcnt vmcnt(0)
        {M8} {vr(S[0],16)}, {vr(Kr,2)}, {vr(Qr,2)}, {vr(C,16)}
        {M16} {vr(S[0],16)}, {vr(Km,4)}, {vr(Qm,4)}, {vr(S[0],16)}""")
        for i in range(16): k(f"v_exp_f32 v{S[0]+i}, v{S[0]+i}")
        for i in range(8): k(f"v_cvt_pk_bf16_f32 v{P+i}, v{S[0]+2*i}, v{S[0]+2*i+1}")
        k(f"""{M16} {vr(O,16)}, {vr(V0,4)}, {vr(P,4)}, {vr(O,16)}
        {M16} {vr(O,16)}, {vr(V1[0],4)}, {vr(P+4,4)}, {vr(O,16)}
        s_add_u32 s{cnt}, s{cnt}, 1
        s_cmp_lt_u32 s{cnt}, 64
        s_cbranch_scc1 {L2}
        v_mov_b32 v{t0}, v{O+8}
        v_mov_b32 v{t1}, v{O+8}
        v_permlane32_swap_b32 v{t0}, v{t1}
        s_branch {L_store}""")
    slow_code = deferred(slow)
    L3 = k.label("ld")
    k.stamp(8); k.nst = 8
    if o.get('fine1') or o.get('fine') == 2:
        k.maxst = 14; k.stamp = lambda *a, **kw: None
    k(f"""s_lshr_b32 s{c.s_f}, s2, 5
    s_lshl_b32 s{c.s_f}, s{c.s_f}, 5
    s_add_u32 s{c.s_f}, s{c.s_f}, s{s_h}
    s_lshl_b32 s{c.s_f}, s{c.s_f}, {FL}
    s_add_u32 s{c.s_f}, s{c.s_f}, {F2}""")
    P3 = P35(c, 3, D=o.get('D3', 20), D0=o.get('D30', 6))
    P3.rowmap = o.get('row3', False)
    k(P3.ptr_load()); P3.ids()
    lw(c, L3)
    def handoff(vt, stmp, n):
        Ln = k.label("nw0")
        k("s_barrier")
        k(f"s_cmp_lg_u32 s{c.s_w}, 0\ns_cbranch_scc1 {Ln}")
        c.signal(c.s_f, vt); c.poll(c.s_p, n, vt, stmp)
        k(f"{Ln}:\ns_barrier")
    P3.setup()
    k(f"""s_lshr_b32 s{c.s_p}, s{P3.s_tb16}, 4
    s_lshl_b32 s{c.s_p}, s{c.s_p}, {FL+5}
    s_add_u32 s{c.s_p}, s{c.s_p}, {F2}
    s_waitcnt vmcnt(3)""")
    handoff(P3.vt[0], P3.s_t0, 32)
    k.stamp('n')
    if o.get('fine') == 3: P3.fine = {0: 2, 1: 3, 4: 4, 8: 5, 12: 6, 16: 7, 19: 8}
    P3.main(init=False, resident=True)
    k("s_barrier")
    P3.epilogue()
    k(f"""s_lshr_b32 s{c.s_f}, s{P3.s_tb16}, 3
    s_lshl_b32 s{c.s_f}, s{c.s_f}, 5
    s_bfe_u32 s{P3.s_t0}, s{P3.s_tb16}, 0x10002
    s_lshl_b32 s{P3.s_t0}, s{P3.s_t0}, 3
    s_add_u32 s{c.s_f}, s{c.s_f}, s{P3.s_t0}
    s_add_u32 s{c.s_f}, s{c.s_f}, s{P3.s_c}
    s_lshl_b32 s{c.s_f}, s{c.s_f}, {FL}
    s_add_u32 s{c.s_f}, s{c.s_f}, {F3}""")
    Q4 = P4(c, D=o.get('D4', 12), D0=o.get('D40', 4)); Q4.ahead = o.get('ahead4', 4); Q4.thin = o.get('thin4'); Q4.nob = o.get('nob')
    Q4.ids(); Q4.setup()
    k(f"""s_lshr_b32 s{c.s_p}, s{Q4.s_tb}, 2
    s_lshl_b32 s{c.s_p}, s{c.s_p}, {FL+5}
    s_add_u32 s{c.s_p}, s{c.s_p}, {F3}
    s_waitcnt vmcnt(0)""")
    k.stamp('n')
    handoff(Q4.st, Q4.s_t1, 16)
    k.stamp('n')
    if o.get('fine') == 4: Q4.fine = {0: 2, 1: 3, 4: 4, 12: 5, 20: 6, 30: 7, 39: 8}
    Q4.main(init=False, endbar=True)
    Q4.epilogue(k.label("fin"))
    k(f"""s_lshr_b32 s{c.s_f}, s{Q4.s_tb}, 2
    s_lshl_b32 s{c.s_f}, s{c.s_f}, 5
    s_add_u32 s{c.s_f}, s{c.s_f}, s{Q4.s_g}
    s_lshl_b32 s{c.s_f}, s{c.s_f}, {FL}
    s_add_u32 s{c.s_f}, s{c.s_f}, {F4}""")
    P5 = P35(c, 5, D=o.get('D5', 12), D0=o.get('D50', 4)); P5.ahead = o.get('ahead5', 5); P5.rowmap = o.get('row5', False); P5.bar8 = o.get('bar8', True)
    k("s_nop 1"); k(P5.ptr_load()); P5.ids(); P5.setup()
    k(f"""s_lshr_b32 s{c.s_p}, s{P5.s_tb16}, 3
    s_lshl_b32 s{c.s_p}, s{c.s_p}, {FL+5}
    s_add_u32 s{c.s_p}, s{c.s_p}, {F4}
    s_waitcnt vmcnt(0)""")
    k.stamp('n')
    handoff(P5.vt[0], P5.s_t0, 16)
    k.stamp('n')
    if o.get('fine') == 5: P5.fine = {0: 2, 1: 3, 8: 4, 16: 5, 28: 6, 40: 7, 53: 8}
    P5.main(init=False)
    P5.epilogue()
    if o.get('dbgst') is not None:
        Ln = k.label("dn")
        k.stamp(14); k.stamp_real(15)
        k(f"s_cmp_lg_u32 s2, {o['dbgst']}\ns_cbranch_scc1 {Ln}\ns_cmp_lg_u32 s{s_w}, 0\ns_cbranch_scc1 {Ln}\ns_waitcnt lgkmcnt(0)\nv_mov_b32 v1, 0\ns_mov_b64 exec, 1")
        pos = [1, 2, 3, 5, 6, 7, 9, 10, 11, 13, 14, 15]
        src = [2, 3, 6, 7, 8, 9, 11, 12, 13, 14]
        for p_, i in zip(pos, src):
            k(f"s_sub_u32 s66, s{k.sT+2*i}, s{k.sT+2}\nv_mov_b32 v2, s66\nbuffer_store_dword v2, v1, {sr(sD,4)}, 0 offen offset:{4*p_}")
        k(f"s_sub_u32 s66, s{k.sT+30}, s{k.sT}\nv_mov_b32 v2, s66\nbuffer_store_dword v2, v1, {sr(sD,4)}, 0 offen offset:60\n{Ln}:\ns_endpgm")
        k(f"{c.L_end}:\ns_endpgm")
    else:
        c.finish()
    k(f"{L3}:")
    Lp = k.label("fp"); Lok = k.label("fpok")
    k(f"""s_mov_b32 s{P3.s_cnt}, 0
    s_waitcnt vmcnt(2)
    {Lp}:
    v_min_u32 v{vfp}, v{vfp}, v{vfp+1}
    v_min3_u32 v{vfp}, v{vfp}, v{vfp+2}, v{vfp+3}
    s_add_u32 s{P3.s_cnt}, s{P3.s_cnt}, 1
    v_cmp_ne_u32 vcc, 0, v{vfp}
    s_cmp_eq_u64 vcc, -1
    s_cbranch_scc1 {Lok}
    s_cmp_gt_u32 s{P3.s_cnt}, 0x40000
    s_cbranch_scc1 {Lok}
    s_mov_b32 s{P3.s_t0}, {FP}
    buffer_load_dwordx4 {vr(vfp,4)}, v{c.vl16}, {sr(c.sO,4)}, s{P3.s_t0} offen sc1
    s_waitcnt vmcnt(0)
    s_branch {Lp}
    {Lok}:""")
    P3.ld_setup()
    k("s_waitcnt vmcnt(0)\ns_barrier")
    for ch in range(5): P3.ld_chunk(ch)
    k("s_waitcnt vmcnt(0)\ns_barrier")
    Q4.ids(); Q4.ld_setup()
    k("s_barrier")
    n4 = o.get('pre4', 2)
    for ch in range(n4): Q4.ld_chunk(ch)
    k("s_barrier")
    for ch in range(n4, 5): Q4.ld_chunk(ch)
    Q4.ld_cs()
    k("s_waitcnt vmcnt(29)\ns_barrier")
    rg5 = None
    if o.get('reg5', True):
        rg5 = dict(base=20, addr=[8, 9, 10])
        s5 = 64
        def warm():
            k(f"""s_bfe_u32 s{Q4.s_t0}, s2, 0x10002
            s_lshl_b32 s{Q4.s_t0}, s{Q4.s_t0}, 2
            s_lshr_b32 s{Q4.s_t1}, s2, 6
            s_add_u32 s{Q4.s_t0}, s{Q4.s_t0}, s{Q4.s_t1}
            s_lshl_b32 s{Q4.s_t1}, s{c.s_wl}, 3
            s_add_u32 s{Q4.s_t0}, s{Q4.s_t0}, s{Q4.s_t1}
            s_mul_i32 s{Q4.s_t0}, s{Q4.s_t0}, 5120
            s_add_u32 s{Q4.s_t0}, s{Q4.s_t0}, {WDP + 28*40960}""")
        def warm_chunk(j):
            k(f"s_add_u32 s{Q4.s_t1}, s{Q4.s_t0}, 4096")
            for i in range(5):
                k(f"buffer_load_dwordx4 {vr(rg5['base'] + 20*j + 4*i, 4)}, v{c.vl16}, {sr(c.sO,4)}, s{Q4.s_t0 if i < 4 else Q4.s_t1} offen offset:{(i%4)*1024}")
            k(f"s_add_u32 s{Q4.s_t0}, s{Q4.s_t0}, {4*40960}")
        assert not P5.rowmap
        Q4.warm = warm; Q4.warm_chunk = warm_chunk
    Q4.ld_main(5, 1, init=False)
    P5.ids(); P5.ld_setup()
    if rg5:
        k(f"""v_add_u32 v8, s{P5.s_m0}, v{c.vl16}
        v_add_u32 v9, {3*P5.SLOT}, v8
        v_add_u32 v10, {6*P5.SLOT}, v8""")
    k("s_barrier")
    n5 = o.get('pre5', 4)
    for ch in range(n5): P5.ld_chunk(ch)
    k("s_barrier")
    for ch in range(n5, 7): P5.ld_chunk(ch)
    if P5.bar8:
        k("s_waitcnt vmcnt(25)\ns_barrier")
        P5.ld_main8(rg5)
    else:
        k("s_waitcnt vmcnt(30)\ns_barrier")
        P5.ld_main(7, init=False)
    if K.STAMP and o.get('dbgst') is None:
        for i in range(9, 15): k.stamp(i)
        k.stamp_flush(c.sO, c.s_w)
    k("s_endpgm")
    k.lines += slow_code + spare_code
    return k, (256, 512, max(P3.lds, Q4.lds, P5.lds))
```

```python
from ph2 import *
NAME = "sequential_preLN__softmax_full_mha__swiglu_ffn__prompt_kernel"

def gen(opt):
    o = opt('M')
    c = Ctx(NAME, True); k = c.k
    sO = c.sO; sWS = c.sWS; s_w = c.s_w; s_wl = c.s_wl; vl = c.vl; vl16 = c.vl16; sc = c.sc
    rot = o.get('rot', True); c.pdepth = o.get('pd', 1)
    sD = k.s(4)
    s_po = k.s(); s_cs = k.s(); vPA = k.v(); vPS = k.v(); sA = k.s(4); sB = k.s(4); sR = [k.s() for _ in range(5)]
    c.s0 = k.snext; c.v0 = k.vnext
    SLOT = 32768; NS = 4
    SL = 12288; VB = 3 * SL; PREP = 6 * SL; EXB = PREP
    sP = k.s(4); sX = sA; sW = sB; sQ = k.s(8); sWD = k.s(2); sPC = k.s(2)
    s_tb = k.s(); s_cg = k.s(); s_t0 = k.s(); s_t2 = k.s()
    s_ow, s_m0x, s_slot, s_delta, s_t1 = sR
    s_ox = k.s(); s_cnt = k.s(); s_rs = k.s(); s_msk = k.s()
    vt = [k.v() for _ in range(6)]
    vXA = [k.v() for _ in range(4)]; vWA = [k.v(), k.v()]
    vX = [k.v() for _ in range(4)]; vW = [k.v() for _ in range(4)]
    acc = [[k.v(16, 4) for _ in range(2)] for _ in range(2)]
    fx = [[k.v(4, 4) for _ in range(2)] for _ in range(2)]
    fw = [[k.v(4, 4) for _ in range(2)] for _ in range(2)]
    acs = k.v(16, 4); ones = k.v(4, 4); vpf = k.v(16, 4)
    XCH = NS * SLOT; NM, RS, CS = 0, 512, 1024
    L_spare = k.label("spare"); L_v = k.label("vpath"); L_J0 = k.label("J0"); L_comp = k.label("comp")
    k.kidx = 1; k.stamp_real(0); k.stamp(1)
    k(f"""s_load_dwordx4 {sr(sP,4)}, s[0:1], {KA_X}
    s_load_dwordx4 {sr(sD,4)}, s[0:1], {KA_DBG}
    s_cmp_ge_u32 s2, 256
    s_cbranch_scc1 {c.L_end}
    v_lshrrev_b32 v{vt[0]}, 6, v0
    v_and_b32 v{vl}, 63, v0
    v_readfirstlane_b32 s{s_w}, v{vt[0]}
    s_and_b32 s{s_t0}, s2, 3
    s_lshl_b32 s{s_t0}, s{s_t0}, 2
    s_bfe_u32 s{s_t1}, s2, 0x20003
    s_add_u32 s{s_tb}, s{s_t0}, s{s_t1}
    s_bfe_u32 s{s_t0}, s2, 0x10002
    s_lshl_b32 s{s_t0}, s{s_t0}, 3
    s_lshr_b32 s{s_t1}, s2, 5
    s_add_u32 s{s_cg}, s{s_t0}, s{s_t1}
    s_and_b32 s{s_wl}, s{s_w}, 3
    s_cmp_eq_u32 s{s_cg}, 15
    s_cbranch_scc1 {L_spare}
    s_cmp_ge_u32 s{s_w}, 4
    s_cbranch_scc1 {L_comp}
    v_lshrrev_b32 v{vt[0]}, 3, v{vl}
    v_lshl_add_u32 v{vt[0]}, s{s_w}, 5, v{vt[0]}
    v_mul_u32_u24 v{vt[0]}, 1280, v{vt[0]}
    v_lshrrev_b32 v{vt[1]}, 4, v{vl}
    v_and_b32 v{vt[2]}, 7, v{vl}
    v_xor_b32 v{vt[2]}, v{vt[2]}, v{vt[1]}
    v_lshl_add_u32 v{vX[0]}, v{vt[2]}, 4, v{vt[0]}
    v_xor_b32 v{vX[1]}, 64, v{vX[0]}
    v_add_u32 v{vX[2]}, {2*(8*1280-1024)}, v{vX[0]}
    v_add_u32 v{vX[1]}, {8*1280-1024}, v{vX[1]}
    v_add_u32 v{vX[3]}, {2*(8*1280-1024)}, v{vX[1]}
    v_lshl_add_u32 v{vt[0]}, s{s_w}, 4, v{vt[1]}
    v_mul_u32_u24 v{vt[0]}, 3840, v{vt[0]}
    v_and_b32 v{vt[2]}, 15, v{vl}
    v_lshlrev_b32 v{vt[3]}, 2, v{vt[1]}
    v_xor_b32 v{vt[2]}, v{vt[2]}, v{vt[3]}
    v_lshl_add_u32 v{vW[0]}, v{vt[2]}, 4, v{vt[0]}
    v_add_u32 v{vW[1]}, {4*3840-1024}, v{vW[0]}
    v_add_u32 v{vW[2]}, {2*(4*3840-1024)}, v{vW[0]}
    v_add_u32 v{vW[3]}, {3*(4*3840-1024)}, v{vW[0]}
    s_mul_i32 s{s_t0}, s{s_tb}, {128*1280}
    s_lshl_b32 s{s_t1}, s{s_cg}, 8
    s_lshl_b32 s{s_m0x}, s{s_w}, 12
    s_mov_b32 s{sX+2}, {128*1280}
    s_mov_b32 s{sX+3}, 0x20000
    s_sub_u32 s{sW+2}, {640*3840}, s{s_t1}
    s_mov_b32 s{sW+3}, 0x20000""")
    if rot: k(f"s_and_b32 s{s_t2}, s2, 7\ns_lshl_b32 s{s_ox}, s{s_t2}, 7\ns_mul_i32 s{s_ow}, s{s_t2}, {64*3840}")
    else: k(f"s_mov_b32 s{s_ox}, 0\ns_mov_b32 s{s_ow}, 0")
    k(f"""s_waitcnt lgkmcnt(0)
    s_add_u32 s{sX}, s{sP}, s{s_t0}
    s_addc_u32 s{sX+1}, s{sP+1}, 0
    s_add_u32 s{sW}, s{sP+2}, s{s_t1}
    s_addc_u32 s{sW+1}, s{sP+3}, 0""")
    def dma_chunk(slot_const=None):
        if slot_const is not None: k(f"s_add_u32 m0, s{s_m0x}, {slot_const*SLOT}")
        else: k(f"s_add_u32 m0, s{s_m0x}, s{s_rs}")
        k(f"s_add_u32 s{s_t0}, s{s_ox}, 128")
        for i in range(4):
            k(f"buffer_load_dwordx4 v{vX[i]}, {sr(sX,4)}, s{s_ox} offen offset:{i*1024} lds")
        k(f"s_add_u32 m0, m0, 16384\ns_add_u32 s{s_t1}, s{s_ow}, {64*3840}")
        for i in range(4):
            k(f"buffer_load_dwordx4 v{vW[i]}, {sr(sW,4)}, s{s_ow} offen offset:{i*1024} lds")
        k(f"s_cmp_eq_u32 s{s_t0}, 1280\ns_cselect_b32 s{s_ox}, 0, s{s_t0}\ns_cselect_b32 s{s_ow}, 0, s{s_t1}")
    def common_setup(ptrs=True):
        k(f"""s_mov_b64 {sr(sWS,2)}, {sr(sD+2,2)}
        s_movk_i32 s{sD+2}, 256
        s_mov_b32 s{sD+3}, 0x20000
        v_lshlrev_b32 v{vl16}, 4, v{vl}""")
        srd(k, sO, sWS, sWS + 1, WSEND)
        if ptrs: k(f"s_load_dwordx8 {sr(sQ,8)}, s[0:1], {KA_WO}\ns_load_dwordx2 {sr(sWD,2)}, s[0:1], {KA_WD}")
    def xaddr():
        k(f"""v_and_b32 v{vt[0]}, 31, v{vl}
        v_lshrrev_b32 v{vt[1]}, 5, v{vl}
        v_bfe_u32 v{vt[2]}, v{vl}, 1, 3
        v_xor_b32 v{vt[2]}, v{vt[2]}, v{vt[1]}
        v_lshlrev_b32 v{vt[2]}, 4, v{vt[2]}
        v_lshl_add_u32 v{vt[2]}, v{vt[0]}, 7, v{vt[2]}""")
    def advance(regs):
        k(f"s_cmp_eq_u32 s{s_slot}, {(NS-1)*SLOT}\ns_mov_b32 s{s_delta}, {SLOT}")
        k(f"s_cselect_b32 s{s_delta}, {(-(NS-1)*SLOT) & 0xffffffff}, s{s_delta}")
        k(f"s_add_u32 s{s_slot}, s{s_slot}, s{s_delta}")
        return [f"v_add_u32 v{r}, s{s_delta}, v{r}" for r in regs]
    def prep_decode(loads):
        pid, cb, st = s_t0, s_t2, s_ox
        R0, A_, B_, C_, u = sR
        Ld = k.label("pd"); Lg = k.label("pg")
        k(f"""s_lshl_b32 s{pid}, s2, 2
        s_add_u32 s{pid}, s{pid}, s{s_wl}
        s_mov_b32 s{B_}, 8
        s_mov_b32 s{C_}, 4
        v_bfe_u32 v{vt[2]}, v{vl}, 4, 1
        v_lshrrev_b32 v{vt[1]}, 5, v{vl}
        s_waitcnt lgkmcnt(0)
        s_cmp_ge_u32 s{pid}, 560
        s_cbranch_scc1 {Ld}
        s_mul_i32 s{u}, s{pid}, 4682
        s_lshr_b32 s{u}, s{u}, 16
        s_mul_i32 s{cb}, s{u}, 14
        s_sub_u32 s{cb}, s{pid}, s{cb}
        s_mul_i32 s{s_po}, s{u}, {112*1024}
        s_add_u32 s{s_po}, s{s_po}, {WGUP}
        s_mov_b32 s{s_cs}, {CSG}
        v_lshlrev_b32 v{vt[2]}, 11, v{vt[2]}
        v_lshl_add_u32 v{vt[3]}, v{vt[1]}, 9, v{vt[2]}""")
        if loads:
            k(f"""s_lshl_b32 s{R0}, s{u}, 4
            s_mov_b32 s{A_}, 0
            s_movk_i32 s{st}, 3456
            s_mov_b64 {sr(sA,2)}, {sr(sQ+4,2)}
            s_mov_b64 {sr(sB,2)}, {sr(sQ+6,2)}
            s_mov_b32 s{sA+2}, {640*3456}""")
        k(f"""s_branch {Lg}
        {Ld}:
        s_min_u32 s{pid}, s{pid}, 929
        s_cmp_lt_u32 s{pid}, 830
        s_movk_i32 s{cb}, 830
        s_cselect_b32 s{cb}, 560, s{cb}
        s_mov_b32 s{s_po}, {WOP}
        s_cselect_b32 s{s_po}, {WDP}, s{s_po}""")
        if loads:
            k(f"""s_cselect_b64 {sr(sA,2)}, {sr(sWD,2)}, {sr(sQ,2)}
            s_cselect_b32 s{A_}, 16, 20
            s_cselect_b32 s{R0}, 32, 40
            s_mov_b32 s{sA+2}, {640*1280}
            s_cselect_b32 s{sA+2}, {1728*1280}, s{sA+2}""")
        k(f"""s_sub_u32 s{cb}, s{pid}, s{cb}
        s_mul_i32 s{u}, s{cb}, 13108
        s_lshr_b32 s{u}, s{u}, 16
        s_mul_i32 s{st}, s{u}, 5
        s_sub_u32 s{cb}, s{cb}, s{st}
        s_mul_i32 s{st}, s{u}, {40*1024}
        s_add_u32 s{s_po}, s{s_po}, s{st}
        s_mov_b32 s{s_cs}, {WSEND}
        v_lshlrev_b32 v{vt[2]}, 9, v{vt[2]}
        v_lshl_add_u32 v{vt[3]}, v{vt[1]}, 11, v{vt[2]}""")
        if loads:
            k(f"""s_mul_i32 s{R0}, s{R0}, s{u}
            s_mul_i32 s{st}, s{u}, 160
            s_sub_u32 s{st}, s{st}, {16*160-16}
            s_cmp_ge_u32 s{pid}, 910
            s_cselect_b32 s{R0}, s{st}, s{R0}
            s_cselect_b32 s{A_}, 80, s{A_}
            s_cselect_b32 s{B_}, 20, 8
            s_cselect_b32 s{C_}, 40, 4
            s_movk_i32 s{st}, 1280
            s_mov_b64 {sr(sB,2)}, {sr(sA,2)}""")
        k(f"""{Lg}:
        s_lshl_b32 s{cb}, s{cb}, 1
        s_lshr_b32 s{pid}, s{s_w}, 2
        s_add_u32 s{pid}, s{pid}, s{cb}
        s_lshl_b32 s{u}, s{pid}, 12
        s_add_u32 s{s_po}, s{s_po}, s{u}
        s_lshl_b32 s{u}, s{pid}, 9
        s_add_u32 s{s_cs}, s{s_cs}, s{u}
        v_bfe_u32 v{vt[2]}, v{vl}, 2, 2
        v_lshl_add_u32 v{vt[3]}, v{vt[2]}, 7, v{vt[3]}
        v_and_b32 v{vt[2]}, 3, v{vl}
        v_lshl_add_u32 v{vt[3]}, v{vt[2]}, 3, v{vt[3]}
        s_lshl_b32 s{u}, s{s_w}, 12
        s_add_u32 s{u}, s{u}, {PREP}
        v_add_u32 v{vPA}, s{u}, v{vt[3]}""")
        if loads:
            k(f"""s_mov_b32 s{sB+2}, s{sA+2}
            s_mov_b32 s{sA+3}, 0x20000
            s_mov_b32 s{sB+3}, 0x20000
            v_mul_u32_u24 v{vt[2]}, s{C_}, v{vt[1]}
            v_bfe_u32 v{vt[3]}, v{vl}, 3, 2
            v_add_u32 v{vt[2]}, v{vt[2]}, v{vt[3]}
            v_mul_u32_u24 v{vt[2]}, s{st}, v{vt[2]}
            v_and_b32 v{vt[3]}, 7, v{vl}
            v_lshl_add_u32 v{vPS}, v{vt[3]}, 4, v{vt[2]}
            s_mul_i32 s{R0}, s{R0}, s{st}
            s_lshl_b32 s{cb}, s{pid}, 7
            s_add_u32 s{R0}, s{R0}, s{cb}
            s_mul_i32 s{A_}, s{A_}, s{st}
            s_mul_i32 s{B_}, s{B_}, s{st}
            s_add_u32 s{A_}, s{A_}, s{R0}
            s_add_u32 s{C_}, s{A_}, s{B_}
            s_add_u32 s{B_}, s{B_}, s{R0}""")
    TD = o.get('TD', 0)
    sTX, sTW = sQ, sQ + 4; s_tx, s_tw = sWD, sWD + 1; vTX, vTW = vXA[0], vXA[1]
    def touch():
        k(f"""s_mov_b64 exec, 0xf
        buffer_load_dword v{vXA[2]}, v{vTX}, {sr(sTX,4)}, s{s_tx} offen
        s_mov_b64 exec, 0xff
        buffer_load_dword v{vXA[3]}, v{vTW}, {sr(sTW,4)}, s{s_tw} offen
        s_mov_b64 exec, -1
        s_add_u32 s{s_tx}, s{s_tx}, 128
        s_add_u32 s{s_tw}, s{s_tw}, {64*3840}
        s_cmp_eq_u32 s{s_tx}, 1280
        s_cselect_b32 s{s_tx}, 0, s{s_tx}
        s_cselect_b32 s{s_tw}, 0, s{s_tw}""")
    dma_chunk(0); dma_chunk(1)
    if TD:
        k(f"""s_mov_b64 {sr(sTX,2)}, {sr(sP,2)}
        s_mov_b32 s{sTX+2}, {2048*1280}
        s_mov_b32 s{sTX+3}, 0x20000
        s_mov_b64 {sr(sTW,2)}, {sr(sP+2,2)}
        s_mov_b32 s{sTW+2}, {640*3840}
        s_mov_b32 s{sTW+3}, 0x20000
        s_lshr_b32 s{s_t0}, s2, 3
        s_lshl_b32 s{s_t0}, s{s_t0}, 2
        s_add_u32 s{s_t0}, s{s_t0}, s{s_w}
        s_lshl_b32 s{s_t1}, s{s_t0}, 2
        s_and_b32 s{s_t2}, s2, 3
        s_lshl_b32 s{s_t2}, s{s_t2}, 9
        s_add_u32 s{s_t1}, s{s_t1}, s{s_t2}
        v_add_u32 v{vTX}, s{s_t1}, v{vl}
        v_mul_u32_u24 v{vTX}, 1280, v{vTX}
        s_lshr_b32 s{s_t1}, s{s_t0}, 1
        s_mul_i32 s{s_t1}, s{s_t1}, 3840
        s_and_b32 s{s_t0}, s{s_t0}, 1
        s_lshl_b32 s{s_t0}, s{s_t0}, 10
        s_add_u32 s{s_t1}, s{s_t1}, s{s_t0}
        s_bfe_u32 s{s_t0}, s2, 0x10002
        s_lshl_b32 s{s_t0}, s{s_t0}, 11
        s_add_u32 s{s_t1}, s{s_t1}, s{s_t0}
        v_lshl_add_u32 v{vTW}, v{vl}, 7, s{s_t1}
        s_mov_b32 s{s_tx}, s{s_ox}
        s_mov_b32 s{s_tw}, s{s_ow}""")
        for _ in range(TD + 1): touch()
    common_setup(ptrs=not TD)
    k(f"""s_mov_b32 s{s_rs}, {3*SLOT}
    s_waitcnt vmcnt({8 + (2*TD+2 if TD else 0)})
    s_barrier""")
    k.stamp(2)
    dma_chunk(2)
    L = k.label("hloop"); Lz = k.label("hz"); Lzx = k.label("hzx"); Lnz = k.label("hnz")
    nt = 7 - TD if TD else 0
    def hit(n, tch, vm):
        if n <= 0: return
        L = k.label("hloop")
        k(f"s_mov_b32 s{s_cnt}, {n}\n{L}:\ns_waitcnt vmcnt({vm})\ns_barrier")
        dma_chunk()
        if tch: touch()
        k(f"""s_add_u32 s{s_rs}, s{s_rs}, {SLOT}
        s_and_b32 s{s_rs}, s{s_rs}, {NS*SLOT-1}
        s_sub_u32 s{s_cnt}, s{s_cnt}, 1
        s_cmp_lg_u32 s{s_cnt}, 0
        s_cbranch_scc1 {L}""")
    hit(nt, True, 8 if not TD else 10); hit(7 - nt, False, 8)
    if TD: k(f"s_load_dwordx8 {sr(sQ,8)}, s[0:1], {KA_WO}\ns_load_dwordx2 {sr(sWD,2)}, s[0:1], {KA_WD}")
    k(f"""v_and_b32 v{vt[3]}, 15, v{vl}
    v_lshlrev_b32 v{vt[3]}, 4, v{vt[3]}
    buffer_load_dword v{vt[4]}, v{vt[3]}, {sr(sD,4)}, 0 offen sc1
    s_waitcnt vmcnt(9)
    s_barrier
    s_waitcnt vmcnt(1)
    s_barrier
    s_cmp_lg_u32 s{s_w}, 0
    s_cbranch_scc1 {Lnz}
    s_mov_b32 s{s_t1}, 0
    {Lz}:
    s_waitcnt vmcnt(0)
    v_cmp_ne_u32 vcc, 0, v{vt[4]}
    s_add_u32 s{s_t1}, s{s_t1}, 1
    s_cmp_eq_u64 vcc, -1
    s_cbranch_scc1 {Lzx}
    s_cmp_gt_u32 s{s_t1}, 0x40000
    s_cbranch_scc1 {Lzx}
    buffer_load_dword v{vt[4]}, v{vt[3]}, {sr(sD,4)}, 0 offen sc1
    s_branch {Lz}
    {Lzx}:
    s_mov_b32 m0, {XCH}
    s_lshl_b32 s{s_t0}, s{s_tb}, 10
    s_add_u32 s{s_t0}, s{s_t0}, {LN1}
    buffer_load_dwordx4 v{vl16}, {sr(sO,4)}, s{s_t0} offen sc1 lds
    {Lnz}:
    s_waitcnt vmcnt(0)""")
    k.stamp(3)
    k(f"s_barrier\ns_branch {L_J0}")
    k(f"""{L_comp}:
    s_getpc_b64 {sr(sPC,2)}
    L_pf_here:
    s_lshr_b32 s{s_t0}, s2, 3
    s_lshl_b32 s{s_t0}, s{s_t0}, 2
    s_add_u32 s{s_t0}, s{s_t0}, s{s_wl}
    s_lshl_b32 s{s_t0}, s{s_t0}, 10
    s_sub_u32 s{sPC}, s{sPC}, L_pf_here - {NAME}
    s_subb_u32 s{sPC+1}, s{sPC+1}, 0
    s_cmp_gt_u32 s{s_t0}, L_code_end - {NAME} - 1024
    s_cbranch_scc1 L_pf_skip
    v_lshl_add_u32 v{vt[0]}, v{vl}, 4, s{s_t0}
    global_load_dwordx4 {vr(vpf,4)}, v{vt[0]}, {sr(sPC,2)}
    L_pf_skip:
    s_waitcnt lgkmcnt(0)""")
    if o.get('touch'):
        k(f"""s_mov_b64 {sr(sX,2)}, {sr(sP,2)}
        s_mov_b32 s{sX+2}, {2048*1280}
        s_mov_b32 s{sX+3}, 0x20000
        s_mov_b64 {sr(sW,2)}, {sr(sP+2,2)}
        s_mov_b32 s{sW+2}, {640*3840}
        s_mov_b32 s{sW+3}, 0x20000
        s_lshr_b32 s{s_t0}, s2, 3
        s_lshl_b32 s{s_t0}, s{s_t0}, 2
        s_add_u32 s{s_t0}, s{s_t0}, s{s_wl}
        s_mul_i32 s{s_t1}, s{s_t0}, 5
        v_lshrrev_b32 v{vt[0]}, 4, v{vl}
        v_add_u32 v{vt[0]}, s{s_t1}, v{vt[0]}
        v_mul_u32_u24 v{vt[0]}, 3840, v{vt[0]}
        v_and_b32 v{vt[1]}, 15, v{vl}
        v_lshl_add_u32 v{vt[0]}, v{vt[1]}, 7, v{vt[0]}
        s_bfe_u32 s{s_t1}, s2, 0x10002
        s_lshl_b32 s{s_t1}, s{s_t1}, 11
        s_add_u32 s{s_t2}, s{s_t1}, {4*3840}
        v_lshlrev_b32 v{vt[1]}, 7, v{vl}
        s_mul_i32 s{s_t0}, s{s_t0}, {40*128}
        s_and_b32 s{s_ox}, s2, 3
        s_mul_i32 s{s_ox}, s{s_ox}, {512*1280}
        s_add_u32 s{s_t0}, s{s_t0}, s{s_ox}
        buffer_load_dword v{vpf+4}, v{vt[0]}, {sr(sW,4)}, s{s_t1} offen
        s_mov_b32 exec_hi, 0xff
        buffer_load_dword v{vpf+5}, v{vt[1]}, {sr(sX,4)}, s{s_t0} offen
        s_mov_b64 exec, 0xffff
        buffer_load_dword v{vpf+6}, v{vt[0]}, {sr(sW,4)}, s{s_t2} offen
        s_mov_b64 exec, -1""")
    common_setup()
    xaddr()
    k(f"""s_lshr_b32 s{s_t0}, s{s_wl}, 1
    s_and_b32 s{s_t1}, s{s_wl}, 1
    s_lshl_b32 s{s_t2}, s{s_t0}, 13
    v_add_u32 v{vXA[0]}, s{s_t2}, v{vt[2]}""")
    for s in range(1, 4): k(f"v_xor_b32 v{vXA[s]}, {32*s}, v{vXA[0]}")
    k(f"""v_bfe_u32 v{vt[2]}, v{vl}, 2, 2
    v_lshl_add_u32 v{vt[3]}, v{vt[1]}, 3, v{vt[2]}
    v_lshlrev_b32 v{vt[3]}, 8, v{vt[3]}
    s_lshl_b32 s{s_t2}, s{s_t1}, 1
    s_add_u32 s{s_t2}, s{s_t2}, s{s_t0}
    v_xor_b32 v{vt[2]}, s{s_t2}, v{vt[2]}
    v_lshl_add_u32 v{vt[3]}, v{vt[2]}, 6, v{vt[3]}
    v_bfe_u32 v{vt[2]}, v{vl}, 4, 1
    v_lshl_add_u32 v{vt[3]}, v{vt[2]}, 5, v{vt[3]}
    v_and_b32 v{vt[2]}, 3, v{vl}
    v_lshl_add_u32 v{vt[3]}, v{vt[2]}, 3, v{vt[3]}
    v_add_u32 v{vWA[0]}, 16384, v{vt[3]}
    v_xor_b32 v{vWA[1]}, 64, v{vWA[0]}
    s_mov_b32 s{s_slot}, 0""")
    for i in range(4): k(f"v_mov_b32 v{ones+i}, 0x3f803f80")
    def reads(buf, s):
        out = []
        for mt in range(2):
            out.append(f"ds_read_b128 {vr(fx[buf][mt],4)}, v{vXA[s]} offset:{mt*4096}")
        for nt in range(2):
            for rd in range(2):
                out.append(f"ds_read_b64_tr_b16 {vr(fw[buf][nt]+2*rd,2)}, v{vWA[nt]} offset:{(16*s+4*rd)*256}")
        return [out[2], out[3], out[0], out[1], out[4], out[5]]
    def mfmas(buf, vpath, first):
        m = []
        for nt in range(2):
            for mt in range(2):
                a, b = (fx[buf][mt], fw[buf][nt]) if vpath else (fw[buf][nt], fx[buf][mt])
                m.append(f"{M16} {vr(acc[nt][mt],16)}, {vr(a,4)}, {vr(b,4)}, {'0' if first else vr(acc[nt][mt],16)}")
        m.append(f"{M16} {vr(acs,16)}, {vr(ones,4)}, {vr(fw[buf][0],4)}, {'0' if first else vr(acs,16)}")
        return m
    def chunk(vpath, last, first=False):
        for s in range(3):
            k("s_waitcnt lgkmcnt(0)")
            m = mfmas(s & 1, vpath, first and s == 0); rd = reads((s + 1) & 1, s + 1)
            ad = []
            if not last and s == 0: ad = [None]
            for i in range(5):
                k(m[i])
                for x in rd[2*i:2*i+2]: k(x)
                if i == 3 and not last:
                    if s == 0: adv[:] = advance([vXA[0], vXA[1], vXA[2], vXA[3], vWA[0], vWA[1]])
                    k(adv[s])
        k("s_waitcnt lgkmcnt(0)")
        m = mfmas(1, vpath, False)
        if last:
            for x in m: k(x)
            return
        k(m[0])
        for x in adv[3:]: k(x)
        k(m[1])
        k("s_barrier")
        rd = reads(0, 0)
        for x in rd[:3]: k(x)
        k(m[2])
        for x in rd[3:]: k(x)
        k(m[3]); k(m[4])
    adv = []
    def mainloop(vpath):
        k("s_barrier")
        k.stamp(2)
        for x in reads(0, 0): k(x)
        chunk(vpath, False, first=True)
        L = k.label("loop")
        if o.get('fine') == 1:
            for j in range(8):
                k.stamp(5 + j); chunk(vpath, False)
            k.stamp(13)
        else:
            k(f"s_mov_b32 s{s_cnt}, 8\n{L}:")
            chunk(vpath, False)
            k(f"s_sub_u32 s{s_cnt}, s{s_cnt}, 1\ns_cmp_lg_u32 s{s_cnt}, 0\ns_cbranch_scc1 {L}")
        chunk(vpath, True)
        k.stamp(3)
    def epilogue(vpath):
        t = vt
        la = fx[0][0]; rg = k.v(32, 4); hoff = t[3]
        k(f"""v_and_b32 v{t[0]}, 31, v{vl}
        s_lshl_b32 s{s_t2}, s{s_t2}, 7
        s_add_u32 s{s_ox}, s{s_t2}, {XCH}
        v_lshl_add_u32 v{t[2]}, v{t[0]}, 2, s{s_ox}
        s_lshl_b32 s{s_ow}, s{s_t0}, 8
        s_add_u32 s{s_ow}, s{s_ow}, {XCH}
        v_lshl_add_u32 v{t[1]}, v{t[0]}, 2, s{s_ow}
        v_lshrrev_b32 v{hoff}, 5, v{vl}
        v_lshlrev_b32 v{hoff}, 4, v{hoff}
        s_cmp_lt_u32 s{s_cg}, 5
        s_cselect_b32 s{s_cnt}, {f2u(QSCALE):#x}, 1.0
        ds_write_b32 v{t[2]}, v{acs} offset:{CS}
        s_waitcnt lgkmcnt(0)
        s_barrier""")
        if not vpath:
            k(f"""ds_read_b32 v{la+0}, v{t[1]} offset:{NM}
            ds_read_b32 v{la+2}, v{t[1]} offset:{RS}
            ds_read_b32 v{la+4}, v{t[1]} offset:{NM+128}
            ds_read_b32 v{la+6}, v{t[1]} offset:{RS+128}
            v_add_u32 v{t[5]}, s{s_ox}, v{hoff}
            v_xor_b32 v{t[4]}, 128, v{t[5]}""")
            for nt in range(2):
                for j in range(4):
                    k(f"ds_read_b128 {vr(rg+16*nt+4*j,4)}, v{t[5] if nt==0 else t[4]} offset:{CS+32*j}")
            k(f"""v_lshlrev_b32 v{t[0]}, 4, v{t[0]}
            v_lshl_add_u32 v{t[0]}, v{hoff}, 11, v{t[0]}
            s_lshl_b32 s{s_ox}, s{s_cg}, 19
            s_lshl_b32 s{s_ow}, s{s_t2}, 10
            s_add_u32 s{s_ox}, s{s_ox}, s{s_ow}
            s_lshl_b32 s{s_ow}, s{s_tb}, 11
            s_add_u32 s{s_ox}, s{s_ox}, s{s_ow}
            s_lshl_b32 s{s_ow}, s{s_t0}, 10
            s_add_u32 s{s_ox}, s{s_ox}, s{s_ow}
            s_waitcnt lgkmcnt(4)
            v_mov_b32 v{la+1}, v{la+0}
            v_mul_f32 v{la+3}, s{s_cnt}, v{la+2}
            v_mul_f32 v{la+2}, s{s_cnt}, v{la+2}
            v_mov_b32 v{la+5}, v{la+4}
            v_mul_f32 v{la+7}, s{s_cnt}, v{la+6}
            v_mul_f32 v{la+6}, s{s_cnt}, v{la+6}""")
            for nt in range(2):
                if nt == 1: k("s_waitcnt lgkmcnt(0)")
                for mt in range(2):
                    A = acc[nt][mt]
                    for p in range(8):
                        k(f"v_pk_fma_f32 {vr(A+2*p,2)}, {vr(rg+16*nt+2*p,2)}, {vr(la+4*mt,2)}, {vr(A+2*p,2)}")
                    for p in range(8):
                        k(f"v_pk_mul_f32 {vr(A+2*p,2)}, {vr(A+2*p,2)}, {vr(la+4*mt+2,2)}")
                    for p in range(8):
                        k(f"v_cvt_pk_bf16_f32 v{A+p}, v{A+2*p}, v{A+2*p+1}")
                    k(f"s_xor_b32 s{s_ow}, s{s_ox}, {(nt*4*32768) | (mt*512)}")
                    k(f"s_add_u32 s{s_rs}, s{s_ow}, {2*32768}")
                    for jp in range(2):
                        k(f"v_permlane32_swap_b32 v{A+4*jp}, v{A+4*jp+2}\nv_permlane32_swap_b32 v{A+4*jp+1}, v{A+4*jp+3}")
                    k(f"buffer_store_dwordx4 {vr(A,4)}, v{t[0]}, {sr(sO,4)}, s{s_ow} offen{sc}")
                    k(f"buffer_store_dwordx4 {vr(A+4,4)}, v{t[0]}, {sr(sO,4)}, s{s_rs} offen{sc}")
        else:
            rg2 = k.v(32, 4)
            k(f"""v_xor_b32 v{t[4]}, 128, v{t[2]}
            ds_read_b32 v{la+2}, v{t[4]} offset:{CS}
            v_add_u32 v{t[5]}, s{s_ow}, v{hoff}""")
            for mt in range(2):
                for j in range(4):
                    k(f"ds_read_b128 {vr(rg+16*mt+4*j,4)}, v{t[5]} offset:{NM+128*mt+32*j}")
                    k(f"ds_read_b128 {vr(rg2+16*mt+4*j,4)}, v{t[5]} offset:{RS+128*mt+32*j}")
            va = [la + 4, la + 5]
            k(f"""s_sub_u32 s{s_ox}, s{s_cg}, 10
            s_lshl_b32 s{s_ox}, s{s_ox}, 7
            s_lshr_b32 s{s_ow}, s{s_t2}, 2
            s_add_u32 s{s_ox}, s{s_ox}, s{s_ow}
            v_add_u32 v{t[0]}, s{s_ox}, v{t[0]}
            v_mul_u32_u24 v{hoff}, 21, v{hoff}""")
            for nt in range(2):
                if nt == 1: k(f"v_xor_b32 v{t[0]}, 32, v{t[0]}")
                k(f"""v_mul_u32_u24 v{t[1]}, 3277, v{t[0]}
                v_lshrrev_b32 v{t[1]}, 16, v{t[1]}
                v_mul_u32_u24 v{t[2]}, {VHEAD - 320}, v{t[1]}
                v_lshl_add_u32 v{t[2]}, v{t[0]}, 4, v{t[2]}
                v_add_u32 v{va[nt]}, v{t[2]}, v{hoff}""")
            k(f"""s_lshl_b32 s{s_ox}, s{s_tb}, 1
            s_add_u32 s{s_ox}, s{s_ox}, s{s_t0}
            s_mul_i32 s{s_ox}, s{s_ox}, 2688
            s_add_u32 s{s_ox}, s{s_ox}, {VIMG}
            v_mov_b32 v{la+0}, v{acs}
            v_mov_b32 v{la+1}, v{acs}
            s_waitcnt lgkmcnt(8)
            v_mov_b32 v{la+3}, v{la+2}""")
            for mt in range(2):
                if mt == 1: k("s_waitcnt lgkmcnt(0)")
                for nt in range(2):
                    A = acc[nt][mt]
                    for p in range(8):
                        k(f"v_pk_fma_f32 {vr(A+2*p,2)}, {vr(rg+16*mt+2*p,2)}, {vr(la+2*nt,2)}, {vr(A+2*p,2)}")
                    for p in range(8):
                        k(f"v_pk_mul_f32 {vr(A+2*p,2)}, {vr(A+2*p,2)}, {vr(rg2+16*mt+2*p,2)}")
                    for p in range(8):
                        k(f"v_cvt_pk_bf16_f32 v{A+p}, v{A+2*p}, v{A+2*p+1}")
                    k(f"buffer_store_dwordx4 {vr(A,4)}, v{va[nt]}, {sr(sO,4)}, s{s_ox} offen offset:{1344*mt}{sc}")
                    k(f"buffer_store_dwordx4 {vr(A+4,4)}, v{va[nt]}, {sr(sO,4)}, s{s_ox} offen offset:{1344*mt+672}{sc}")
    k(f"s_cmp_ge_u32 s{s_cg}, 10\ns_cbranch_scc1 {L_v}")
    vsave = k.vnext
    mainloop(False); epilogue(False); k(f"s_branch {L_J0}")
    k.vnext = vsave
    k(f"{L_v}:")
    mainloop(True); epilogue(True)
    if o.get('fine') == 1:
        k.maxst = 14; k.stamp = lambda *a, **kw: None
    k(f"{L_J0}:\ns_setprio 0")
    k.stamp(4)
    prep_decode(True)
    k(f"""s_lshl_b32 s{c.s_f}, s{s_cg}, 5
    s_add_u32 s{c.s_f}, s{c.s_f}, s{s_tb}
    s_lshl_b32 s{c.s_f}, s{c.s_f}, {FL}
    s_add_u32 s{c.s_f}, s{c.s_f}, {F1}""")
    def spare():
        o4 = acs; xb = acc[0][0]; sm = [fw[0][0], fw[0][0] + 1]; sq = [fw[0][0] + 2, fw[0][0] + 3]
        k(f"""{L_spare}:
        v_lshrrev_b32 v{vt[0]}, 3, v{vl}
        v_lshl_add_u32 v{vt[0]}, s{s_w}, 4, v{vt[0]}
        v_mul_u32_u24 v{vt[0]}, 1280, v{vt[0]}
        v_and_b32 v{vt[2]}, 7, v{vl}
        v_lshl_add_u32 v{vX[0]}, v{vt[2]}, 4, v{vt[0]}
        v_add_u32 v{vX[1]}, {8*1280}, v{vX[0]}
        s_mul_i32 s{s_t0}, s{s_tb}, {128*1280}
        s_mov_b32 s{sX+2}, {128*1280}
        s_mov_b32 s{sX+3}, 0x20000
        s_waitcnt lgkmcnt(0)
        s_add_u32 s{sX}, s{sP}, s{s_t0}
        s_addc_u32 s{sX+1}, s{sP+1}, 0""")
        for g in range(2):
            for i in range(10): k(f"buffer_load_dwordx4 {vr(xb+40*g+4*i,4)}, v{vX[g]}, {sr(sX,4)}, 0 offen offset:{128*i}")
        common_setup()
        srd(k, sW, sWS, sWS + 1, CSG + ZERO_BYTES)
        o4 = xb + 80
        k(f"""s_lshl_b32 s{s_t0}, s{s_tb}, 1
        s_mul_i32 s{s_t0}, s{s_t0}, {VHEAD}
        s_add_u32 s{s_t0}, s{s_t0}, {VIMG + 320}
        v_mul_u32_u24 v{vt[0]}, 336, v0
        v_lshlrev_b32 v{vt[1]}, 4, v0
        s_lshl_b32 s{s_t1}, s{s_tb}, 13
        s_add_u32 s{s_t1}, s{s_t1}, {CSG}
        s_mov_b32 s{s_msk}, 0x3f803f80""")
        for i in range(4): k(f"v_mov_b32 v{o4+i}, 0x3f803f80\nv_mov_b32 v{o4+4+i}, 0")
        nz = (ZERO_BYTES + 131071) // 131072
        for z in range(nz):
            k(f"buffer_store_dwordx4 {vr(o4+4,4)}, v{vt[1]}, {sr(sW,4)}, s{s_t1} offen{sc}\ns_add_u32 s{s_t1}, s{s_t1}, 131072")
        k(f"buffer_store_dwordx4 {vr(o4,4)}, v{vt[0]}, {sr(sO,4)}, s{s_t0} offen{sc}")
        st = o4 + 8
        for i in range(4): k(f"v_mov_b32 v{st+i}, 0")
        for g in range(2):
            for i in range(10):
                k(f"s_waitcnt vmcnt({19 - 10*g - i + nz + 1})")
                for j in range(4):
                    x = xb + 40 * g + 4 * i + j
                    k(f"v_dot2c_f32_bf16 v{st+2*g}, s{s_msk}, v{x}\nv_dot2c_f32_bf16 v{st+2*g+1}, v{x}, v{x}")
        for ctl in ("quad_perm:[1,0,3,2]", "quad_perm:[2,3,0,1]", "row_half_mirror"):
            for i in range(4): k(f"v_add_f32_dpp v{st+i}, v{st+i}, v{st+i} {ctl} row_mask:0xf bank_mask:0xf")
        Ln = k.label("sn")
        k(f"""v_and_b32 v{vt[2]}, 1, v{vl}
        v_cmp_eq_u32 vcc, 1, v{vt[2]}
        v_lshrrev_b32 v{vt[3]}, 3, v{vl}
        v_lshl_add_u32 v{vt[3]}, v{vt[2]}, 3, v{vt[3]}
        v_cndmask_b32 v{st}, v{st}, v{st+2}, vcc
        v_cndmask_b32 v{st+1}, v{st+1}, v{st+3}, vcc
        v_lshlrev_b32 v{vt[3]}, 2, v{vt[3]}
        v_mul_f32 v{st}, {f2u(-1.0/640):#x}, v{st}
        v_mul_f32 v{st+1}, {f2u(1.0/640):#x}, v{st+1}
        v_fma_f32 v{st+1}, -v{st}, v{st}, v{st+1}
        v_max_f32 v{st+1}, 0, v{st+1}
        v_add_f32 v{st+1}, {f2u(1e-5):#x}, v{st+1}
        v_rsq_f32 v{st+1}, v{st+1}
        s_lshl_b32 s{s_t0}, s{s_tb}, 10
        s_lshl_b32 s{s_t1}, s{s_w}, 6
        s_add_u32 s{s_t0}, s{s_t0}, s{s_t1}
        s_add_u32 s{s_t0}, s{s_t0}, {LN1}
        s_mov_b32 exec_lo, 0x03030303
        s_mov_b32 exec_hi, 0x03030303
        buffer_store_dword v{st}, v{vt[3]}, {sr(sO,4)}, s{s_t0} offen{sc}
        buffer_store_dword v{st+1}, v{vt[3]}, {sr(sO,4)}, s{s_t0} offen offset:512{sc}
        s_mov_b64 exec, -1
        s_waitcnt vmcnt(0)
        s_barrier
        s_cmp_lg_u32 s{s_w}, 4
        s_cbranch_scc1 {Ln}
        s_lshl_b32 s{s_t0}, s{s_tb}, 4
        v_mov_b32 v{vt[2]}, 1
        v_mov_b32 v{vt[3]}, 0
        s_mov_b64 exec, 1
        buffer_store_dword v{vt[2]}, v{vt[3]}, {sr(sD,4)}, s{s_t0} offen sc1
        s_mov_b64 exec, -1
        {Ln}:""")
        k.stamp(2); k.stamp(3)
        k(f"s_branch {L_J0}")
    def deferred(fn):
        n = len(k.lines); fn(); out = k.lines[n:]; del k.lines[n:]; return out
    spare_code = deferred(spare)
    c.reset()
    prio = o.get('prio', (18, 6, 3, 1))
    s_h = k.s(); s_pa = k.s(); s_pr = k.s(); s_odd8 = k.s(); s_tok = k.s()
    s_t0 = k.s(); s_t1 = k.s(); s_t2 = k.s(); s_t3 = k.s()
    so = [k.s() for _ in range(3)]; s_d = k.s(); s_mo = k.s(); s_ms = k.s(); s_q1 = k.s(); s_q2 = k.s()
    sG = k.s(2); sE = k.s(2)
    vq = k.v(); vr31 = k.v(); vKA = k.v(); vKR = k.v(); vVA = k.v(); vqr = k.v()
    vt0 = k.v(6, 2); vt = list(range(vt0, vt0 + 6))
    S = [k.v(32, 4), k.v(32, 4)]; O = k.v(16, 4); OY = k.v(16, 4); P = k.v(8, 4)
    Qm = k.v(4, 4); QmY = k.v(4, 4); Qr = k.v(2); Km = k.v(4, 4); Kr = k.v(2); V0 = k.v(4, 4); V1 = [k.v(4, 4), k.v(4, 4)]
    PR = k.v(16, 4); C = S[1]; vcs = k.v(16, 4); vsel = k.v(16, 4); vca = k.v(); vfp = k.v(4, 4); vo1 = k.v(); vo2 = k.v(); vx1 = k.v(); vx2 = k.v(); s_o1 = k.s(); s_o2 = k.s()
    L_slow = k.label("slow"); L_store = k.label("store")
    k(f"""s_and_b32 s{s_t0}, s2, 7
    s_lshl_b32 s{s_t0}, s{s_t0}, 2
    s_bfe_u32 s{s_t1}, s2, 0x20003
    s_add_u32 s{s_h}, s{s_t0}, s{s_t1}
    s_lshr_b32 s{s_q1}, s{s_h}, 1
    s_mul_i32 s{s_t0}, s{s_q1}, 5
    s_and_b32 s{s_t1}, s{s_h}, 1
    s_lshl_b32 s{s_odd8}, s{s_t1}, 3
    s_mul_i32 s{s_t1}, s{s_t1}, 3
    s_add_u32 s{s_pa}, s{s_t0}, s{s_t1}
    s_lshl_b32 s{s_pa}, s{s_pa}, 15
    s_add_u32 s{s_pr}, s{s_t0}, 2
    s_lshl_b32 s{s_pr}, s{s_pr}, 15
    s_lshr_b32 s{s_q2}, s{s_wl}, 1
    s_and_b32 s{s_t3}, s{s_w}, 1
    s_lshl_b32 s{s_t0}, s{s_q2}, 14
    s_lshl_b32 s{s_t1}, s{s_t3}, 10
    s_add_u32 s{s_t0}, s{s_t0}, s{s_t1}
    s_add_u32 s{s_t0}, s{s_t0}, {80*32768}
    s_add_u32 s{so[0]}, s{s_pa}, s{s_t0}
    s_add_u32 s{so[2]}, s{s_pr}, s{s_t0}
    s_mul_i32 s{s_mo}, s{s_q2}, 6144
    s_mul_i32 s{s_t3}, s{s_t3}, 3072
    s_mul_i32 s{s_t2}, s{s_h}, {VHEAD}
    s_mul_i32 s{s_t0}, s{s_q2}, {32*1344}
    s_add_u32 s{s_t2}, s{s_t2}, s{s_t0}
    s_add_u32 s{s_t2}, s{s_t2}, s{s_t3}
    s_add_u32 s{s_t2}, s{s_t2}, {VIMG}
    s_add_u32 s{s_t3}, s{s_t3}, {VB}
    s_add_u32 s{s_t0}, s{s_t2}, 2048
    s_cmp_lt_u32 s{s_w}, 4
    s_cselect_b32 s{so[0]}, s{so[0]}, s{s_t2}
    s_cselect_b32 s{so[2]}, s{so[2]}, s{s_t0}
    s_cselect_b32 s{s_t1}, s{s_t1}, s{s_t3}
    s_movk_i32 s{s_t0}, 1024
    s_cselect_b32 s{so[1]}, 32768, s{s_t0}
    s_movk_i32 s{s_d}, 5376
    s_cselect_b32 s{s_d}, 2048, s{s_d}
    s_cselect_b32 s{s_ms}, 2048, s{s_t0}
    s_add_u32 s{so[1]}, s{so[1]}, s{so[0]}
    s_add_u32 s{s_mo}, s{s_mo}, s{s_t1}
    s_lshr_b32 s{s_t3}, s{s_w}, 2
    s_mul_i32 s{s_t0}, s{s_t3}, 6144
    v_and_b32 v{vr31}, 31, v{vl}
    v_lshlrev_b32 v{vr31}, 4, v{vr31}
    v_lshrrev_b32 v{vt[1]}, 5, v{vl}
    v_lshl_add_u32 v{vq}, v{vt[1]}, 15, v{vr31}
    v_add_u32 v{vt[2]}, s{s_t0}, v{vr31}
    v_lshl_add_u32 v{vKA}, v{vt[1]}, 11, v{vt[2]}
    v_add_u32 v{vKR}, s{s_odd8}, v{vt[2]}
    v_add_u32 v{vKR}, 4096, v{vKR}
    v_mul_u32_u24 v{vt[0]}, 336, v{vt[1]}
    v_add_u32 v{vt[0]}, v{vt[0]}, v{vt[2]}
    v_add_u32 v{vVA}, {VB}, v{vt[0]}
    v_cmp_lt_u32 vcc, {20*16}, v{vr31}
    v_mov_b32 v{vt[0]}, 0x40000
    v_xor_b32 v{vt[1]}, s{s_t3}, v{vt[1]}
    v_cndmask_b32 v{vVA}, v{vVA}, v{vt[0]}, vcc
    v_lshl_add_u32 v{vqr}, v{vt[1]}, 9, v{vr31}
    s_lshr_b32 s{s_tok}, s2, 5
    s_lshl_b32 s{s_tok}, s{s_tok}, 8
    s_lshl_b32 s{s_t0}, s{s_wl}, 6
    s_add_u32 s{s_tok}, s{s_tok}, s{s_t0}
    s_lshl_b32 s{s_t0}, s{s_t3}, 5
    s_add_u32 s{s_tok}, s{s_tok}, s{s_t0}""")
    k(f"v_lshlrev_b32 v{vca}, 2, v{vl}\nv_mov_b32 v{vt[0]}, 0x3f803f80")
    for Tl, row in enumerate((0, 4, 1, 5)):
        k(f"v_cmp_eq_u32 vcc, {16*row}, v{vr31}")
        k(f"v_cndmask_b32 v{vsel+4*Tl}, 0, v{vt[0]}, vcc")
        for i in range(1, 4): k(f"v_mov_b32 v{vsel+4*Tl+i}, v{vsel+4*Tl}")
    k(f"""v_bfe_u32 v{vo2}, v{vl}, 4, 1
    v_mul_u32_u24 v{vo2}, {20*1024}, v{vo2}
    v_and_b32 v{vo1}, 15, v{vl}
    v_lshl_add_u32 v{vo2}, v{vo1}, 4, v{vo2}
    v_lshrrev_b32 v{vo1}, 5, v{vl}
    v_lshl_add_u32 v{vo1}, v{vo1}, 8, v{vo2}
    s_lshr_b32 s{s_t0}, s{s_tok}, 4
    s_mul_i32 s{s_t0}, s{s_t0}, {20*1024}
    s_add_u32 s{s_t0}, s{s_t0}, {OIMG}
    s_lshl_b32 s{s_o1}, s{s_h}, 9
    s_add_u32 s{s_o1}, s{s_o1}, s{s_t0}
    s_lshr_b32 s{s_o2}, s{s_h}, 1
    s_lshl_b32 s{s_o2}, s{s_o2}, 8
    s_add_u32 s{s_o2}, s{s_o2}, s{s_t0}
    s_add_u32 s{s_o2}, s{s_o2}, s{s_odd8}
    s_add_u32 s{s_o2}, s{s_o2}, {16*1024}
    s_mul_i32 s{s_t0}, s{s_wl}, 3072
    s_add_u32 s{s_t0}, s{s_t0}, {2*SL}
    s_add_u32 s{s_t1}, s{s_t0}, {VB}
    s_cmp_lt_u32 s{s_w}, 4
    s_cselect_b32 s{s_t2}, s{s_t0}, s{s_t1}
    s_cselect_b32 s{s_t1}, s{s_t1}, s{s_t0}
    v_add_u32 v{vx1}, s{s_t2}, v{vl16}
    v_add_u32 v{vx2}, s{s_t1}, v{vl16}""")
    early = o.get('early', True)
    p1 = [f"s_mov_b32 m0, s{sR[4]}", "s_nop 0"]
    for i, (sd, so_) in enumerate(((sA, sR[0]), (sA, sR[2]), (sB, sR[1]), (sB, sR[3]))):
        p1.append(f"buffer_load_dwordx4 v{vPS}, {sr(sd,4)}, s{so_} offen lds")
        if i < 3: p1 += ["s_add_u32 m0, m0, 1024", "s_nop 0"]
    edge_prep = o.get('edge_prep', False)
    Lx = k.label("jx"); Lp = k.label("jp"); Lz = k.label("jz"); Lzx = k.label("jzx"); Lns = k.label("jns")
    part = o.get('part', True)
    vfl = k.v(); vpl = k.v(); vf2 = k.v(2); s_f0 = sG; s_f1 = sG + 1
    k(f"""s_mul_i32 s{s_t0}, s{s_q1}, 40
    s_add_u32 s{s_t1}, s{s_t0}, 39
    s_lshr_b32 s{s_t0}, s{s_t0}, 7
    s_lshr_b32 s{s_t1}, s{s_t1}, 7
    s_lshl_b32 s{s_f0}, s{s_t0}, {FL+5}
    s_lshl_b32 s{s_f1}, s{s_t1}, {FL+5}
    s_add_u32 s{s_f0}, s{s_f0}, {F1}
    s_add_u32 s{s_f1}, s{s_f1}, {F1}
    v_lshrrev_b32 v{vt[2]}, 4, v{vl}
    v_min_u32 v{vt[2]}, 2, v{vt[2]}
    v_mul_u32_u24 v{vt[2]}, 160, v{vt[2]}
    v_and_b32 v{vt[3]}, 15, v{vl}
    v_add_u32 v{vt[3]}, v{vt[3]}, v{vt[2]}
    v_lshlrev_b32 v{vfl}, {FL}, v{vt[3]}""")
    if part:
        k(f"""s_sub_u32 s{s_t1}, s{s_t1}, s{s_t0}
        v_and_b32 v{vt[2]}, 1, v{vl}
        v_mul_u32_u24 v{vt[2]}, s{s_t1}, v{vt[2]}
        v_bfe_u32 v{vt[3]}, v{vl}, 1, 1
        v_bfe_u32 v{vt[4]}, v{vl}, 2, 1
        v_bfe_u32 v{vt[5]}, v{vl}, 3, 1
        v_lshl_add_u32 v{vt[4]}, v{vt[5]}, 3, v{vt[4]}
        v_mad_u32_u24 v{vt[5]}, v{vt[3]}, 5, 5
        s_lshr_b32 s{s_t1}, s2, 5
        s_lshl_b32 s{s_t1}, s{s_t1}, 1
        v_add_u32 v{vt[3]}, s{s_t1}, v{vt[3]}
        v_cmp_gt_u32 vcc, 16, v{vl}
        v_cndmask_b32 v{vt[5]}, 0, v{vt[5]}, vcc
        v_cndmask_b32 v{vt[4]}, v{vt[3]}, v{vt[4]}, vcc
        v_add_u32 v{vt[2]}, v{vt[2]}, v{vt[5]}
        v_lshl_add_u32 v{vt[2]}, v{vt[2]}, 5, v{vt[4]}
        v_lshlrev_b32 v{vpl}, {FL}, v{vt[2]}""")
    k(f"""s_cmp_lg_u32 s{s_w}, 0
    s_cbranch_scc1 {Lzx}
    v_and_b32 v{vt[3]}, 15, v{vl}
    v_lshlrev_b32 v{vt[3]}, 4, v{vt[3]}
    s_mov_b32 s{s_t1}, 0
    {Lz}:
    buffer_load_dword v{vt[4]}, v{vt[3]}, {sr(sD,4)}, 0 offen sc1
    s_add_u32 s{s_t1}, s{s_t1}, 1
    s_cmp_gt_u32 s{s_t1}, 0x40000
    s_cbranch_scc1 {Lzx}
    s_waitcnt vmcnt(0)
    v_cmp_ne_u32 vcc, 0, v{vt[4]}
    s_cmp_eq_u64 vcc, -1
    s_cbranch_scc0 {Lz}
    {Lzx}:
    s_waitcnt vmcnt(0)""")
    k.stamp(5)
    k(f"""s_barrier
    s_cmp_lg_u32 s{s_w}, 0
    s_cbranch_scc1 {Lx}""")
    c.signal(c.s_f, vt[2])
    fl = [f"buffer_load_dword v{vf2}, v{vfl}, {sr(sO,4)}, s{s_f0} offen sc1", f"buffer_load_dword v{vf2+1}, v{vfl}, {sr(sO,4)}, s{s_f1} offen sc1"]
    k(f"s_mov_b32 s{s_t2}, 0\n{Lp}:")
    if part: k(f"buffer_load_dword v{vf2}, v{vpl}, {sr(sO,4)}, s{s_f0} offen sc1")
    else: k(fl[0]); k(fl[1])
    k(f"""s_add_u32 s{s_t2}, s{s_t2}, 1
    s_cmp_gt_u32 s{s_t2}, 0x40000
    s_cbranch_scc1 {Lx}
    s_waitcnt vmcnt(0)""")
    if not part: k(f"v_min_u32 v{vf2}, v{vf2}, v{vf2+1}")
    k(f"""v_cmp_ne_u32 vcc, 0, v{vf2}
    s_cmp_eq_u64 vcc, -1
    s_cbranch_scc0 {Lp}
    {Lx}:
    s_lshl_b32 s{s_t0}, s{s_tok}, 4
    s_add_u32 s{s_q1}, s{s_t0}, s{s_pa}
    s_xor_b32 s{s_t3}, s{s_q1}, 512
    s_andn2_b32 s{s_q2}, s{s_t0}, 512
    s_add_u32 s{s_q2}, s{s_q2}, s{s_pr}
    s_add_u32 s{s_q2}, s{s_q2}, s{s_odd8}
    s_barrier""")
    k.stamp(6)
    def dma(slot):
        out = [f"s_add_u32 m0, s{s_mo}, {slot*SL}", "s_nop 0"]
        for i in range(3):
            out.append(f"buffer_load_dwordx4 v{vl16}, {sr(sO,4)}, s{so[i]} offen sc1 lds")
            if i < 2: out.append(f"s_add_u32 m0, m0, s{s_ms}")
            out.append(f"s_add_u32 s{so[i]}, s{so[i]}, s{s_d}")
        return out
    for x in dma(0): k(x)
    k(f"""buffer_load_dwordx4 {vr(Qm,4)}, v{vq}, {sr(sO,4)}, s{s_q1} offen
    buffer_load_dwordx4 {vr(QmY,4)}, v{vq}, {sr(sO,4)}, s{s_t3} offen
    buffer_load_dwordx2 {vr(Qr,2)}, v{vqr}, {sr(sO,4)}, s{s_q2} offen""")
    for x in dma(1): k(x)
    p2a = [f"ds_read_b64_tr_b16 {vr(PR+4*Tl+2*rd,2)}, v{vPA} offset:{rd*1024+Tl*32}" for Tl in range(4) for rd in range(2)]
    p2c = [f"{M16} {vr(vcs,16)}, {vr(vsel+4*Tl,4)}, {vr(PR+4*Tl,4)}, {'0' if Tl == 0 else vr(vcs,16)}" for Tl in range(4)]
    late = [f"buffer_store_dwordx4 {vr(PR+4*Tl,4)}, v{vl16}, {sr(sO,4)}, s{s_po} offen offset:{Tl*1024}{sc}" for Tl in range(4)]
    late += [f"buffer_atomic_add_f32 v{vcs}, v{vca}, {sr(sO,4)}, s{s_cs} offen", f"buffer_atomic_add_f32 v{vcs+1}, v{vca}, {sr(sO,4)}, s{s_cs} offen offset:256"]
    TL = o.get('TL', 3); TP = o.get('TP', 11); assert TL > 2
    late_t = o.get('late_t', [TP + 1, TP + 2, TP + 4, TP + 5, TP + 5.5, TP + 6]); TSIG = TP + 15
    assert not edge_prep
    M2B = "v_mfma_f32_32x32x4_2b_bf16"
    def rdK(t):
        o_ = ((t // 4) % 3) * SL + (t % 4) * 512
        return [f"ds_read_b128 {vr(Km,4)}, v{vKA} offset:{o_}", f"ds_read_b64 {vr(Kr,2)}, v{vKR} offset:{o_}"]
    def rdV(t):
        o_ = ((t // 4) % 3) * SL + (t % 4) * 1344
        return [f"ds_read_b128 {vr(V0,4)}, v{vVA} offset:{o_}", f"ds_read_b128 {vr(V1[t&1],4)}, v{vVA} offset:{o_+672}"]
    k("s_waitcnt vmcnt(3)\ns_barrier")
    k.stamp(7)
    for x in rdK(0): k(x)
    k(f"""s_waitcnt lgkmcnt(0)
    {M2B} {vr(S[0],32)}, {vr(Kr,2)}, {vr(Qr,2)}, 0
    {M16} {vr(S[0],16)}, {vr(Km,4)}, {vr(Qm,4)}, {vr(S[0],16)}
    {M16} {vr(S[0]+16,16)}, {vr(Km,4)}, {vr(QmY,4)}, {vr(S[0]+16,16)}""")
    for x in rdK(1) + rdV(0): k(x)
    side = []; vm = [0]
    def spread(n):
        for _ in range(n):
            if side:
                x = side.pop(0)
                if x is None: continue
                if x == 'KV': vm[0] = 0; continue
                k(x)
                if x.startswith('buffer_'): vm[0] += 1
    NT = 32
    for t in range(NT):
        s = S[t & 1]; sn = S[(t + 1) & 1]; pe = t // 4; last = t == NT - 1
        e = lambda *a: [(k(f"v_exp_f32 v{s+i}, v{s+i}"), spread(1)) for i in a]
        cv = lambda i: k(f"v_cvt_pk_bf16_f32 v{P+i%8}, v{s+2*i}, v{s+2*i+1}")
        def pr(ph):
            if prio:
                q = (7 * t + ph - 19) % 28
                cum = 0
                for lvl, ln in enumerate(prio):
                    if (q == cum and ln > 0) or (t == 0 and ph == 0 and cum <= q < cum + ln): k(f"s_setprio {3 - lvl}")
                    cum += ln
        z = lambda r: '0' if t == 0 else vr(r, 16)
        pr(0)
        e(0, 1, 2, 3)
        if not last:
            k("s_waitcnt lgkmcnt(2)")
            k(f"{M2B} {vr(sn,32)}, {vr(Kr,2)}, {vr(Qr,2)}, 0")
        pr(1)
        e(4); cv(0); e(5); cv(1); e(6, 7); cv(2); e(8); cv(3); e(9, 10)
        k("s_waitcnt lgkmcnt(0)")
        k(f"{M16} {vr(O,16)}, {vr(V0,4)}, {vr(P,4)}, {z(O)}")
        pr(2)
        e(11); cv(4); e(12); cv(5); e(13, 14)
        if not last: k(f"{M16} {vr(sn,16)}, {vr(Km,4)}, {vr(Qm,4)}, {vr(sn,16)}")
        pr(3)
        e(15); cv(6); e(16); cv(7); e(17, 18)
        k(f"{M16} {vr(O,16)}, {vr(V1[t&1],4)}, {vr(P+4,4)}, {vr(O,16)}")
        pr(4)
        e(19); cv(8); e(20); cv(9); e(21, 22)
        if not last: k(f"{M16} {vr(sn+16,16)}, {vr(Km,4)}, {vr(QmY,4)}, {vr(sn+16,16)}")
        if part and t == 1:
            Ln = k.label("nq"); k(f"s_cmp_lg_u32 s{s_w}, 0\ns_cbranch_scc1 {Ln}"); k(fl[0]); k(fl[1]); k(f"{Ln}:")
        if t % 4 == 2 and pe < 7:
            assert not side
            k(f"s_waitcnt vmcnt({0 if t in (TP - 1, TSIG - 4, 26) else vm[0]})")
            if part and t == 2:
                Ln = k.label("nq"); Lq = k.label("q")
                k(f"""s_cmp_lg_u32 s{s_w}, 0
                s_cbranch_scc1 {Ln}
                s_mov_b32 s{s_t2}, 0
                {Lq}:
                v_min_u32 v{vf2}, v{vf2}, v{vf2+1}
                s_add_u32 s{s_t2}, s{s_t2}, 1
                v_cmp_ne_u32 vcc, 0, v{vf2}
                s_cmp_eq_u64 vcc, -1
                s_cbranch_scc1 {Ln}
                s_cmp_gt_u32 s{s_t2}, 0x40000
                s_cbranch_scc1 {Ln}""")
                k(fl[0]); k(fl[1])
                k(f"s_waitcnt vmcnt(0)\ns_branch {Lq}\n{Ln}:")
            if early and t == 26:
                Ln = k.label("ne"); Lq = k.label("e")
                k(f"""s_cmp_lg_u32 s{s_w}, 0
                s_cbranch_scc1 {Ln}
                s_mov_b32 s{s_t2}, 0
                {Lq}:
                v_min_u32 v{vfp}, v{vfp}, v{vfp+1}
                v_min3_u32 v{vfp}, v{vfp}, v{vfp+2}, v{vfp+3}
                s_add_u32 s{s_t2}, s{s_t2}, 1
                v_cmp_ne_u32 vcc, 0, v{vfp}
                s_cmp_eq_u64 vcc, -1
                s_cbranch_scc1 {Ln}
                s_cmp_gt_u32 s{s_t2}, 0x40000
                s_cbranch_scc1 {Ln}
                buffer_load_dwordx4 {vr(vfp,4)}, v{vl16}, {sr(sO,4)}, s{s_t0} offen sc1
                s_waitcnt vmcnt(0)
                s_branch {Lq}
                {Ln}:""")
                assert not o.get('row3')
                side += [f"s_bfe_u32 s{s_t0}, s2, 0x10002", f"s_lshl_b32 s{s_t0}, s{s_t0}, 2", f"s_lshr_b32 s{s_t1}, s2, 6", f"s_add_u32 s{s_t0}, s{s_t0}, s{s_t1}",
                         f"s_lshl_b32 s{s_t1}, s{s_w}, 3", f"s_add_u32 s{s_t0}, s{s_t0}, s{s_t1}", f"s_mul_i32 s{s_t0}, s{s_t0}, 5120", f"s_add_u32 s{s_t0}, s{s_t0}, {WOP}",
                         f"s_mul_i32 s{s_t1}, s{s_w}, 5120"]
                for hf in range(2):
                    side += [f"s_add_u32 m0, s{s_t1}, {PREP + hf*8*5120}", f"s_add_u32 s{s_t2}, s{s_t0}, 4096"]
                    side += [f"buffer_load_dwordx4 v{vl16}, {sr(sO,4)}, s{s_t0} offen offset:{i*1024} lds" for i in range(4)]
                    side += ["s_add_u32 m0, m0, 4096", f"s_add_u32 s{s_t0}, s{s_t0}, {8*40960}", f"buffer_load_dwordx4 v{vl16}, {sr(sO,4)}, s{s_t2} offen lds"]
                sp = o.get('espace', 8)
                side[:] = [y for x in side for y in ([x] + [None] * sp if x.startswith('buffer') else [x])]
            k("s_barrier")
            if o.get('fine') == 2: k.stamp({0: 1, 1: 2, 2: 3, 3: 4, 4: 5, 5: 6, 6: 9}[pe])
            if pe < 6: side += dma((pe + 2) % 3) + ['KV']
            if t == TSIG - 4:
                Ln = k.label("nf")
                k(f"s_cmp_lg_u32 s{s_w}, 0\ns_cbranch_scc1 {Ln}\ns_lshl_b32 s{s_t0}, s2, 2\ns_add_u32 s{s_t0}, s{s_t0}, {FP}")
                c.signal(s_t0, vt[2]); k(f"{Ln}:")
        pr(5)
        if t < NT - 2:
            for x in rdK(t + 2): k(x)
        if t == TP:
            for x in p2a: k(x)
        if t == TL: side += p1
        if TP < t <= TP + 4: k(p2c[t - TP - 1])
        for i_, x_ in enumerate(late_t):
            if int(x_) == t: side.append(late[i_])
        if t == (o.get('TF', 24) if early else 28): k(f"s_mov_b32 s{s_t0}, {FP}\nbuffer_load_dwordx4 {vr(vfp,4)}, v{vl16}, {sr(sO,4)}, s{s_t0} offen sc1")
        e(23); cv(10); e(24); cv(11); e(25, 26)
        k(f"{M16} {vr(OY,16)}, {vr(V0,4)}, {vr(P,4)}, {z(OY)}")
        pr(6)
        e(27); cv(12); e(28); cv(13); e(29, 30, 31); cv(14)
        if not last:
            rv = rdV(t + 1)
            k(rv[0]); cv(15); k(rv[1]); k("s_nop 0")
        else:
            cv(15)
        k(f"{M16} {vr(OY,16)}, {vr(V1[t&1],4)}, {vr(P+4,4)}, {vr(OY,16)}")
    assert not side
    if o.get('fine') == 2: k.stamp(10)
    k("s_setprio 0")
    for j in range(3): k(f"ds_write_b128 v{vx1}, {vr(OY+4*j,4)} offset:{1024*j}")
    k(f"s_mov_b32 s{s_q1}, {f2u(2.0**64):#x}\ns_mov_b32 s{s_q2}, 0x7f800000")
    k("s_waitcnt lgkmcnt(0)\ns_barrier")
    for j in (2, 0, 1): k(f"ds_read_b128 {vr(OY+4*j,4)}, v{vx2} offset:{1024*j}")
    t0, t1, t2 = vt[0], vt[1], vt[2]
    k("s_waitcnt lgkmcnt(2)")
    for i in (4, 5): k(f"v_pk_add_f32 {vr(O+2*i,2)}, {vr(O+2*i,2)}, {vr(OY+2*i,2)}")
    k(f"v_mov_b32 v{t0}, v{O+8}\nv_mov_b32 v{t1}, v{O+8}\ns_waitcnt lgkmcnt(0)")
    for i in range(4): k(f"v_pk_add_f32 {vr(O+2*i,2)}, {vr(O+2*i,2)}, {vr(OY+2*i,2)}")
    k(f"""v_permlane32_swap_b32 v{t0}, v{t1}
    v_add_f32 v{t2}, |v{O+8}|, |v{O+9}|
    v_add_f32 v{vt[3]}, |v{O+10}|, |v{O+11}|""")
    for i in range(0, 8, 2): k(f"v_add_f32 v{t2}, |v{O+i}|, v{t2}\nv_add_f32 v{vt[3]}, |v{O+i+1}|, v{vt[3]}")
    k(f"""v_cmp_lt_f32 vcc, {f2u(2.0**-64):#x}, v{t1}
    v_add_f32 v{t2}, v{t2}, v{vt[3]}
    v_cmp_gt_f32 {sr(sE,2)}, s{s_q1}, v{t1}
    v_cmp_gt_f32 {sr(sG,2)}, s{s_q2}, v{t2}
    s_and_b64 vcc, vcc, {sr(sE,2)}
    s_and_b64 vcc, vcc, {sr(sG,2)}
    s_cmp_eq_u64 vcc, -1
    s_cbranch_scc0 {L_slow}
    {L_store}:
    v_rcp_f32 v{t0}, v{t1}
    v_rcp_f32 v{t1}, v{t1}""")
    assert t0 % 2 == 0 and t1 == t0 + 1
    for i in range(4): k(f"v_pk_mul_f32 {vr(O+2*i,2)}, {vr(O+2*i,2)}, {vr(t0,2)}")
    for i in range(4): k(f"v_cvt_pk_bf16_f32 v{O+i}, v{O+2*i}, v{O+2*i+1}")
    k(f"buffer_store_dwordx4 {vr(O,4)}, v{vo1}, {sr(sO,4)}, s{s_o1} offen{sc}")
    for i in range(4, 6): k(f"v_pk_mul_f32 {vr(O+2*i,2)}, {vr(O+2*i,2)}, {vr(t0,2)}")
    for i in range(4, 6): k(f"v_cvt_pk_bf16_f32 v{O+i}, v{O+2*i}, v{O+2*i+1}")
    k(f"""s_mov_b32 exec_hi, 0
    buffer_store_dwordx2 {vr(O+4,2)}, v{vo2}, {sr(sO,4)}, s{s_o2} offen{sc}
    s_mov_b32 exec_hi, -1""")
    def slow():
        vV = vKA; vm = vKR; cnt = s_t3
        k(f"""{L_slow}:
        s_lshl_b32 s{so[0]}, s{s_tok}, 4
        s_add_u32 s{so[0]}, s{so[0]}, s{s_pr}
        s_add_u32 s{so[0]}, s{so[0]}, s{s_odd8}
        v_mov_b32 v{Qr}, 0
        v_mov_b32 v{Qr+1}, 0
        s_mov_b32 exec_hi, 0
        buffer_load_dwordx2 {vr(Qr,2)}, v{vr31}, {sr(sO,4)}, s{so[0]} offen
        s_mov_b32 exec_hi, -1
        s_add_u32 s{so[0]}, s{s_pa}, {80*32768}
        s_add_u32 s{so[1]}, s{s_pr}, {80*32768}
        s_add_u32 s{so[1]}, s{so[1]}, s{s_odd8}
        v_mov_b32 v{vm}, 0xff800000
        s_mov_b32 s{cnt}, 0""")
        L1 = k.label("mx")
        k(f"""{L1}:
        buffer_load_dwordx4 {vr(Km,4)}, v{vq}, {sr(sO,4)}, s{so[0]} offen
        buffer_load_dwordx2 {vr(Kr,2)}, v{vr31}, {sr(sO,4)}, s{so[1]} offen
        s_add_u32 s{so[0]}, s{so[0]}, 512
        s_add_u32 s{so[1]}, s{so[1]}, 512
        s_waitcnt vmcnt(0)
        {M8} {vr(S[0],16)}, {vr(Kr,2)}, {vr(Qr,2)}, 0
        {M16} {vr(S[0],16)}, {vr(Km,4)}, {vr(Qm,4)}, {vr(S[0],16)}""")
        for i in range(8): k(f"v_max3_f32 v{vm}, v{S[0]+2*i}, v{S[0]+2*i+1}, v{vm}")
        k(f"""s_add_u32 s{cnt}, s{cnt}, 1
        s_cmp_lt_u32 s{cnt}, 64
        s_cbranch_scc1 {L1}
        v_mov_b32 v{t0}, v{vm}
        v_permlane32_swap_b32 v{t0}, v{vm}
        v_max_f32 v{vm}, v{vm}, v{t0}""")
        for i in range(16): k(f"v_sub_f32 v{C+i}, 0, v{vm}\nv_mov_b32 v{O+i}, 0")
        k(f"""s_add_u32 s{so[0]}, s{s_pa}, {80*32768}
        s_add_u32 s{so[1]}, s{s_pr}, {80*32768}
        s_add_u32 s{so[1]}, s{so[1]}, s{s_odd8}
        s_mul_i32 s{so[2]}, s{s_h}, {VHEAD}
        s_add_u32 s{so[2]}, s{so[2]}, {VIMG}
        v_lshrrev_b32 v{vV}, 5, v{vl}
        v_mul_u32_u24 v{vV}, 336, v{vV}
        v_add_u32 v{vV}, v{vV}, v{vr31}
        s_mov_b32 s{cnt}, 0""")
        L2 = k.label("pv")
        k(f"""{L2}:
        buffer_load_dwordx4 {vr(Km,4)}, v{vq}, {sr(sO,4)}, s{so[0]} offen
        buffer_load_dwordx2 {vr(Kr,2)}, v{vr31}, {sr(sO,4)}, s{so[1]} offen
        buffer_load_dwordx4 {vr(V0,4)}, v{vV}, {sr(sO,4)}, s{so[2]} offen
        buffer_load_dwordx4 {vr(V1[0],4)}, v{vV}, {sr(sO,4)}, s{so[2]} offen offset:672
        s_add_u32 s{so[0]}, s{so[0]}, 512
        s_add_u32 s{so[1]}, s{so[1]}, 512
        s_add_u32 s{so[2]}, s{so[2]}, 1344
        s_waitcnt vmcnt(0)
        {M8} {vr(S[0],16)}, {vr(Kr,2)}, {vr(Qr,2)}, {vr(C,16)}
        {M16} {vr(S[0],16)}, {vr(Km,4)}, {vr(Qm,4)}, {vr(S[0],16)}""")
        for i in range(16): k(f"v_exp_f32 v{S[0]+i}, v{S[0]+i}")
        for i in range(8): k(f"v_cvt_pk_bf16_f32 v{P+i}, v{S[0]+2*i}, v{S[0]+2*i+1}")
        k(f"""{M16} {vr(O,16)}, {vr(V0,4)}, {vr(P,4)}, {vr(O,16)}
        {M16} {vr(O,16)}, {vr(V1[0],4)}, {vr(P+4,4)}, {vr(O,16)}
        s_add_u32 s{cnt}, s{cnt}, 1
        s_cmp_lt_u32 s{cnt}, 64
        s_cbranch_scc1 {L2}
        v_mov_b32 v{t0}, v{O+8}
        v_mov_b32 v{t1}, v{O+8}
        v_permlane32_swap_b32 v{t0}, v{t1}
        s_branch {L_store}""")
    slow_code = deferred(slow)
    L3 = k.label("ld")
    k.stamp(8); k.nst = 8
    if o.get('fine1') or o.get('fine') == 2:
        k.maxst = 14; k.stamp = lambda *a, **kw: None
    k(f"""s_lshr_b32 s{c.s_f}, s2, 5
    s_lshl_b32 s{c.s_f}, s{c.s_f}, 5
    s_add_u32 s{c.s_f}, s{c.s_f}, s{s_h}
    s_lshl_b32 s{c.s_f}, s{c.s_f}, {FL}
    s_add_u32 s{c.s_f}, s{c.s_f}, {F2}""")
    P3 = P35(c, 3, D=o.get('D3', 20), D0=o.get('D30', 6), early=early)
    P3.rowmap = o.get('row3', False)
    k(P3.ptr_load()); P3.ids()
    lw(c, L3)
    def handoff(vt, stmp, n):
        Ln = k.label("nw0")
        k("s_barrier")
        k(f"s_cmp_lg_u32 s{c.s_w}, 0\ns_cbranch_scc1 {Ln}")
        c.signal(c.s_f, vt); c.poll(c.s_p, n, vt, stmp)
        k(f"{Ln}:\ns_barrier")
    P3.setup()
    k(f"""s_lshr_b32 s{c.s_p}, s{P3.s_tb16}, 4
    s_lshl_b32 s{c.s_p}, s{c.s_p}, {FL+5}
    s_add_u32 s{c.s_p}, s{c.s_p}, {F2}
    s_waitcnt vmcnt(3)""")
    handoff(P3.vt[0], P3.s_t0, 32)
    k.stamp('n')
    if o.get('fine') == 3: P3.fine = {0: 2, 1: 3, 4: 4, 8: 5, 12: 6, 16: 7, 19: 8}
    P3.main(init=False, resident=True)
    k("s_barrier")
    P3.epilogue()
    k(f"""s_lshr_b32 s{c.s_f}, s{P3.s_tb16}, 3
    s_lshl_b32 s{c.s_f}, s{c.s_f}, 5
    s_bfe_u32 s{P3.s_t0}, s{P3.s_tb16}, 0x10002
    s_lshl_b32 s{P3.s_t0}, s{P3.s_t0}, 3
    s_add_u32 s{c.s_f}, s{c.s_f}, s{P3.s_t0}
    s_add_u32 s{c.s_f}, s{c.s_f}, s{P3.s_c}
    s_lshl_b32 s{c.s_f}, s{c.s_f}, {FL}
    s_add_u32 s{c.s_f}, s{c.s_f}, {F3}""")
    Q4 = P4(c, D=o.get('D4', 12), D0=o.get('D40', 4)); Q4.ahead = o.get('ahead4', 4); Q4.thin = o.get('thin4'); Q4.nob = o.get('nob')
    Q4.ids(); Q4.setup()
    k(f"""s_lshr_b32 s{c.s_p}, s{Q4.s_tb}, 2
    s_lshl_b32 s{c.s_p}, s{c.s_p}, {FL+5}
    s_add_u32 s{c.s_p}, s{c.s_p}, {F3}
    s_waitcnt vmcnt(0)""")
    k.stamp('n')
    handoff(Q4.st, Q4.s_t1, 16)
    k.stamp('n')
    if o.get('fine') == 4: Q4.fine = {0: 2, 1: 3, 4: 4, 12: 5, 20: 6, 30: 7, 39: 8}
    Q4.main(init=False, endbar=True)
    Q4.epilogue(k.label("fin"))
    k(f"""s_lshr_b32 s{c.s_f}, s{Q4.s_tb}, 2
    s_lshl_b32 s{c.s_f}, s{c.s_f}, 5
    s_add_u32 s{c.s_f}, s{c.s_f}, s{Q4.s_g}
    s_lshl_b32 s{c.s_f}, s{c.s_f}, {FL}
    s_add_u32 s{c.s_f}, s{c.s_f}, {F4}""")
    pair5 = o.get('pair5', True)
    P5 = P35(c, 5, D=o.get('D5', 8 if pair5 else 12), D0=o.get('D50', 4), pair=pair5); P5.ahead = o.get('ahead5', 5); P5.rowmap = o.get('row5', True); P5.bar8 = o.get('bar8', True)
    k("s_nop 1"); k(P5.ptr_load()); P5.ids(); P5.setup()
    if pair5: P5.setup_pair()
    k(f"""s_lshr_b32 s{c.s_p}, s{P5.s_tb16}, 3
    s_lshl_b32 s{c.s_p}, s{c.s_p}, {FL+5}
    s_add_u32 s{c.s_p}, s{c.s_p}, {F4}
    s_waitcnt vmcnt(0)""")
    k.stamp('n')
    handoff(P5.vt[0], P5.s_t0, 16)
    k.stamp('n')
    if o.get('fine') == 5: P5.fine = {0: 2, 1: 3, 8: 4, 16: 5, 28: 6, 40: 7, 53: 8}
    if pair5:
        if o.get('fine') == 5: P5.fine = {0: 2, 1: 3, 4: 4, 8: 5, 14: 6, 20: 7, 26: 8}
        P5.main_pair()
    else: P5.main(init=False)
    P5.epilogue()
    if o.get('dbgst') is not None:
        Ln = k.label("dn")
        k.stamp(14); k.stamp_real(15)
        k(f"s_cmp_lg_u32 s2, {o['dbgst']}\ns_cbranch_scc1 {Ln}\ns_cmp_lg_u32 s{s_w}, 0\ns_cbranch_scc1 {Ln}\ns_waitcnt lgkmcnt(0)\nv_mov_b32 v1, 0\ns_mov_b64 exec, 1")
        pos = [1, 2, 3, 5, 6, 7, 9, 10, 11, 13, 14, 15]
        src = [2, 3, 6, 7, 8, 9, 11, 12, 13, 14]
        for p_, i in zip(pos, src):
            k(f"s_sub_u32 s66, s{k.sT+2*i}, s{k.sT+2}\nv_mov_b32 v2, s66\nbuffer_store_dword v2, v1, {sr(sD,4)}, 0 offen offset:{4*p_}")
        k(f"s_sub_u32 s66, s{k.sT+30}, s{k.sT}\nv_mov_b32 v2, s66\nbuffer_store_dword v2, v1, {sr(sD,4)}, 0 offen offset:60\n{Ln}:\ns_endpgm")
        k(f"{c.L_end}:\ns_endpgm")
    else:
        c.finish()
    k(f"{L3}:")
    if early:
        P3.ld_setup()
        k(f"s_add_u32 s{P3.s_wo}, s{P3.s_wo}, {16*40960}\ns_waitcnt vmcnt(0)\ns_barrier")
        P3.ld_chunk(0)
        k("s_waitcnt vmcnt(0)\ns_barrier")
    else:
        Lp = k.label("fp"); Lok = k.label("fpok")
        k(f"""s_mov_b32 s{P3.s_cnt}, 0
        s_waitcnt vmcnt(2)
        {Lp}:
        v_min_u32 v{vfp}, v{vfp}, v{vfp+1}
        v_min3_u32 v{vfp}, v{vfp}, v{vfp+2}, v{vfp+3}
        s_add_u32 s{P3.s_cnt}, s{P3.s_cnt}, 1
        v_cmp_ne_u32 vcc, 0, v{vfp}
        s_cmp_eq_u64 vcc, -1
        s_cbranch_scc1 {Lok}
        s_cmp_gt_u32 s{P3.s_cnt}, 0x40000
        s_cbranch_scc1 {Lok}
        s_mov_b32 s{P3.s_t0}, {FP}
        buffer_load_dwordx4 {vr(vfp,4)}, v{c.vl16}, {sr(c.sO,4)}, s{P3.s_t0} offen sc1
        s_waitcnt vmcnt(0)
        s_branch {Lp}
        {Lok}:""")
        P3.ld_setup()
        k("s_waitcnt vmcnt(0)\ns_barrier")
        for ch in range(5): P3.ld_chunk(ch)
        k("s_waitcnt vmcnt(0)\ns_barrier")
    Q4.ids(); Q4.ld_setup()
    k("s_barrier")
    n4 = o.get('pre4', 2)
    for ch in range(n4): Q4.ld_chunk(ch)
    k("s_barrier")
    for ch in range(n4, 5): Q4.ld_chunk(ch)
    Q4.ld_cs()
    k("s_waitcnt vmcnt(29)\ns_barrier")
    rg5 = None
    if o.get('reg5', True):
        rg5 = dict(base=20, addr=[8, 9, 10])
        s5 = 64
        def warm():
            if P5.rowmap: k(f"s_lshr_b32 s{Q4.s_t0}, s2, 5")
            else: k(f"""s_bfe_u32 s{Q4.s_t0}, s2, 0x10002
            s_lshl_b32 s{Q4.s_t0}, s{Q4.s_t0}, 2
            s_lshr_b32 s{Q4.s_t1}, s2, 6
            s_add_u32 s{Q4.s_t0}, s{Q4.s_t0}, s{Q4.s_t1}""")
            k(f"""s_lshl_b32 s{Q4.s_t1}, s{c.s_wl}, 3
            s_add_u32 s{Q4.s_t0}, s{Q4.s_t0}, s{Q4.s_t1}
            s_mul_i32 s{Q4.s_t0}, s{Q4.s_t0}, 5120
            s_add_u32 s{Q4.s_t0}, s{Q4.s_t0}, {WDP + 28*40960}""")
        def warm_chunk(j):
            k(f"s_add_u32 s{Q4.s_t1}, s{Q4.s_t0}, 4096")
            for i in range(5):
                k(f"buffer_load_dwordx4 {vr(rg5['base'] + 20*j + 4*i, 4)}, v{c.vl16}, {sr(c.sO,4)}, s{Q4.s_t0 if i < 4 else Q4.s_t1} offen offset:{(i%4)*1024}")
            k(f"s_add_u32 s{Q4.s_t0}, s{Q4.s_t0}, {4*40960}")
        Q4.warm = warm; Q4.warm_chunk = warm_chunk
    Q4.ld_main(5, 1, init=False)
    P5.ids(); P5.ld_setup()
    if rg5:
        k(f"""v_add_u32 v8, s{P5.s_m0}, v{c.vl16}
        v_add_u32 v9, {3*P5.SLOT}, v8
        v_add_u32 v10, {6*P5.SLOT}, v8""")
    k("s_barrier")
    n5 = o.get('pre5', 4)
    for ch in range(n5): P5.ld_chunk(ch)
    k("s_barrier")
    for ch in range(n5, 7): P5.ld_chunk(ch)
    if P5.bar8:
        k("s_waitcnt vmcnt(25)\ns_barrier")
        P5.ld_main8(rg5, 1 if pair5 else 0)
    else:
        k("s_waitcnt vmcnt(30)\ns_barrier")
        P5.ld_main(7, init=False)
    if K.STAMP and o.get('dbgst') is None:
        for i in range(9, 15): k.stamp(i)
        k.stamp_flush(c.sO, c.s_w)
    k("s_endpgm")
    k.lines += slow_code + spare_code
    return k, (256, 512, max(P3.lds, Q4.lds, P5.lds))
```

```python
from asmlib import *
from layout import *
from k1 import srd
import os
M16 = "v_mfma_f32_32x32x16_bf16"
M8 = "v_mfma_f32_32x32x8_bf16"
MF = "v_mfma_f32_16x16x32_bf16"
LDS_ALL = 163840

class Ctx:
    def __init__(self, name, fused):
        self.k = k = K(name); self.fused = fused
        self.sc = " sc1" if fused else ""; self.lsc = " sc1" if fused and os.environ.get("LSC") else ""
        self.sWS = k.s(2); self.sO = k.s(4); self.s_w = k.s(); self.s_wl = k.s(); self.s_f = k.s(); self.s_p = k.s()
        self.vl = k.v(); self.vl16 = k.v()
        self.L_end = k.label("end")
        self.s0 = k.snext; self.v0 = k.vnext
    def reset(self):
        self.k.snext = self.s0; self.k.vnext = self.v0; self.k.anext = 0
    def entry(self, kidx, extra_loads=""):
        k = self.k
        k.kidx = kidx; k.stamp_real(0); k.stamp(1)
        k(f"""s_load_dwordx2 {sr(self.sWS,2)}, s[0:1], {KA_WS}""")
        k(extra_loads)
        k(f"""s_cmp_ge_u32 s2, 256
        s_cbranch_scc1 {self.L_end}
        v_lshrrev_b32 v{self.vl16}, 6, v0
        v_and_b32 v{self.vl}, 63, v0
        v_readfirstlane_b32 s{self.s_w}, v{self.vl16}
        v_lshlrev_b32 v{self.vl16}, 4, v{self.vl}
        s_and_b32 s{self.s_wl}, s{self.s_w}, 3""")
    def ws_srd(self):
        self.k("s_waitcnt lgkmcnt(0)")
        if WSOFF: self.k(f"s_add_u32 s{self.sWS}, s{self.sWS}, {WSOFF}\ns_addc_u32 s{self.sWS+1}, s{self.sWS+1}, 0")
        srd(self.k, self.sO, self.sWS, self.sWS + 1, WSEND)
    def finish(self):
        k = self.k
        k.stamp('n' if self.fused else max(6, getattr(k, 'maxst', 0) + 1)); k.stamp_flush(self.sO, self.s_w)
        k(f"{self.L_end}:\ns_endpgm")
    def signal(self, s_off, vtmp):
        k = self.k
        k(f"""v_mov_b32 v{vtmp}, 1
        v_mov_b32 v{vtmp+1}, 0
        s_mov_b64 exec, 1
        buffer_store_dword v{vtmp}, v{vtmp+1}, {sr(self.sO,4)}, s{s_off} offen sc1
        s_mov_b64 exec, -1""")
    pdepth = 1
    def poll(self, s_off, n, vtmp, stmp):
        k = self.k; pd = self.pdepth
        L = k.label("poll"); Lx = k.label("pollx")
        ld = lambda j: f"buffer_load_dword v{vtmp+1+j}, v{vtmp}, {sr(self.sO,4)}, s{s_off} offen sc1"
        k(f"""v_and_b32 v{vtmp}, {n-1}, v{self.vl}
        v_lshlrev_b32 v{vtmp}, {FL}, v{vtmp}
        s_mov_b32 s{stmp}, 0""")
        for j in range(pd - 1): k(ld(j))
        k(f"{L}:")
        for j in range(pd):
            k(ld((j + pd - 1) % pd))
            k(f"""s_waitcnt vmcnt({pd-1})
            v_cmp_ne_u32 vcc, 0, v{vtmp+1+j}
            s_cmp_eq_u64 vcc, -1
            s_cbranch_scc1 {Lx}""")
        k(f"""s_add_u32 s{stmp}, s{stmp}, 1
        s_cmp_lt_u32 s{stmp}, 0x40000
        s_cbranch_scc1 {L}
        {Lx}:""")

def p2(c, prio=(16, 10, 4, 2), prep=True, cs_in=True, zv=False, zk=False, spread_st=3, oob=False, fine=False):
    k = c.k; sO = c.sO; s_w = c.s_w; vl = c.vl; vl16 = c.vl16; sc = c.sc
    SL = 12288; VB = 3 * SL; PREP = 6 * SL
    sP = k.s(8); sWD = k.s(2); sA = k.s(4); sB = k.s(4)
    s_h = k.s(); s_pa = k.s(); s_pr = k.s(); s_odd8 = k.s(); s_tok = k.s()
    s_t0 = k.s(); s_t1 = k.s(); s_t2 = k.s(); s_t3 = k.s()
    so = [k.s() for _ in range(3)]; s_d = k.s(); s_mo = k.s(); s_ms = k.s()
    sG = k.s(2); sZ = sP + 2
    sE = k.s(2); sF = k.s(2); p = [k.s() for _ in range(8)]
    vq = k.v(); vr31 = k.v(); vKA = k.v(); vKR = k.v(); vVA = k.v(); vPA = k.v(); vPS = k.v()
    vt = [k.v() for _ in range(6)]
    S = [k.v(16, 4), k.v(16, 4)]; O = k.v(16, 4); P = k.v(8, 4)
    Qm = k.v(4, 4); Qr = k.v(2); Km = k.v(4, 4); Kr = k.v(2); V0 = k.v(4, 4); V1 = [k.v(4, 4), k.v(4, 4)]
    PR = k.v(16, 4); C = S[1]; vcs = k.v(4, 2); vfp = k.v(4, 4)
    L_slow = k.label("slow"); L_store = k.label("store")
    c.entry(1, f"s_load_dwordx8 {sr(sP,8)}, s[0:1], {KA_WO}\ns_load_dwordx2 {sr(sWD,2)}, s[0:1], {KA_WD}")
    k(f"""s_and_b32 s{s_t0}, s2, 7
    s_lshl_b32 s{s_t0}, s{s_t0}, 2
    s_bfe_u32 s{s_t1}, s2, 0x20003
    s_add_u32 s{s_h}, s{s_t0}, s{s_t1}
    s_lshr_b32 s{s_t0}, s{s_h}, 1
    s_mul_i32 s{s_t0}, s{s_t0}, 5
    s_and_b32 s{s_t1}, s{s_h}, 1
    s_lshl_b32 s{s_odd8}, s{s_t1}, 3
    s_mul_i32 s{s_t1}, s{s_t1}, 3
    s_add_u32 s{s_pa}, s{s_t0}, s{s_t1}
    s_lshl_b32 s{s_pa}, s{s_pa}, 15
    s_add_u32 s{s_pr}, s{s_t0}, 2
    s_lshl_b32 s{s_pr}, s{s_pr}, 15
    s_lshl_b32 s{s_t0}, s{c.s_wl}, 10
    s_add_u32 s{s_t1}, s{s_t0}, {80*32768}
    s_add_u32 s{so[0]}, s{s_pa}, s{s_t1}
    s_add_u32 s{so[2]}, s{s_pr}, s{s_t1}
    s_mul_i32 s{s_t1}, s{c.s_wl}, 3072
    s_mul_i32 s{s_t2}, s{s_h}, {VHEAD}
    s_add_u32 s{s_t2}, s{s_t2}, s{s_t1}
    s_add_u32 s{s_t2}, s{s_t2}, {VIMG}
    s_add_u32 s{s_t3}, s{s_t2}, 2048
    s_add_u32 s{s_t1}, s{s_t1}, {VB}
    s_cmp_lt_u32 s{s_w}, 4
    s_cselect_b32 s{so[0]}, s{so[0]}, s{s_t2}
    s_cselect_b32 s{so[2]}, s{so[2]}, s{s_t3}
    s_cselect_b32 s{s_mo}, s{s_t0}, s{s_t1}
    s_movk_i32 s{s_t0}, 1024
    s_cselect_b32 s{so[1]}, 32768, s{s_t0}
    s_movk_i32 s{s_d}, 10752
    s_cselect_b32 s{s_d}, 4096, s{s_d}
    s_movk_i32 s{s_ms}, 1024
    s_cselect_b32 s{s_ms}, 4096, s{s_ms}
    s_add_u32 s{so[1]}, s{so[1]}, s{so[0]}""")
    c.ws_srd()
    def dma(slot):
        out = [f"s_add_u32 m0, s{s_mo}, {slot*SL}", "s_nop 0"]
        for i in range(3):
            out.append(f"buffer_load_dwordx4 v{vl16}, {sr(sO,4)}, s{so[i]} offen lds")
            if i < 2: out.append(f"s_add_u32 m0, m0, s{s_ms}")
            out.append(f"s_add_u32 s{so[i]}, s{so[i]}, s{s_d}")
        return out
    for x in dma(0): k(x)
    k(f"""v_and_b32 v{vr31}, 31, v{vl}
    v_lshlrev_b32 v{vr31}, 4, v{vr31}
    v_lshrrev_b32 v{vt[1]}, 5, v{vl}
    v_lshl_add_u32 v{vq}, v{vt[1]}, 15, v{vr31}
    s_lshr_b32 s{s_tok}, s2, 5
    s_lshl_b32 s{s_tok}, s{s_tok}, 8
    s_lshl_b32 s{s_t0}, s{s_w}, 5
    s_add_u32 s{s_tok}, s{s_tok}, s{s_t0}
    s_lshl_b32 s{s_t0}, s{s_tok}, 4
    s_add_u32 s{s_t1}, s{s_t0}, s{s_pa}
    s_add_u32 s{s_t2}, s{s_t0}, s{s_pr}
    s_add_u32 s{s_t2}, s{s_t2}, s{s_odd8}
    v_mov_b32 v{Qr}, 0
    v_mov_b32 v{Qr+1}, 0
    buffer_load_dwordx4 {vr(Qm,4)}, v{vq}, {sr(sO,4)}, s{s_t1} offen
    s_mov_b32 exec_hi, 0
    buffer_load_dwordx2 {vr(Qr,2)}, v{vr31}, {sr(sO,4)}, s{s_t2} offen
    s_mov_b32 exec_hi, -1""")
    for x in dma(1): k(x)
    k(f"""v_lshl_add_u32 v{vKA}, v{vt[1]}, 12, v{vr31}
    v_add_u32 v{vKR}, s{s_odd8}, v{vr31}
    v_add_u32 v{vKR}, 8192, v{vKR}
    v_mul_u32_u24 v{vt[0]}, 336, v{vt[1]}
    v_add_u32 v{vt[0]}, v{vt[0]}, v{vr31}
    v_add_u32 v{vVA}, {VB}, v{vt[0]}""")
    if oob:
        k(f"""v_cmp_lt_u32 vcc, {20*16}, v{vr31}
        v_mov_b32 v{vt[0]}, 0x40000
        v_cndmask_b32 v{vVA}, v{vVA}, v{vt[0]}, vcc
        v_cmp_lt_u32 vcc, 31, v{vl}
        v_cndmask_b32 v{vKR}, v{vKR}, v{vt[0]}, vcc""")
    id_, u, cb, st, R0, A_, B_, C_ = p
    s_po = s_t3
    def prep0():
        Ld = k.label("pd"); Lo = k.label("po"); Lc = k.label("pc"); Lg = k.label("pg")
        k(f"""s_lshl_b32 s{id_}, s2, 3
        s_add_u32 s{id_}, s{id_}, s{s_w}
        s_mov_b32 s{sA+3}, 0x20000
        s_mov_b32 s{sB+3}, 0x20000
        s_mov_b32 s{B_}, 8
        s_mov_b32 s{C_}, 4
        v_bfe_u32 v{vt[2]}, v{vl}, 4, 1
        s_cmp_ge_u32 s{id_}, 1080
        s_cbranch_scc1 {Ld}
        s_mul_i32 s{u}, s{id_}, 2428
        s_lshr_b32 s{u}, s{u}, 16
        s_mul_i32 s{cb}, s{u}, 27
        s_sub_u32 s{cb}, s{id_}, s{cb}
        s_lshl_b32 s{R0}, s{u}, 4
        s_mov_b32 s{A_}, 0
        s_movk_i32 s{st}, 3456
        s_mov_b64 {sr(sA,2)}, {sr(sP+4,2)}
        s_mov_b64 {sr(sB,2)}, {sr(sP+6,2)}
        s_mov_b32 s{sA+2}, {640*3456}
        s_mul_i32 s{s_po}, s{u}, {112*1024}
        s_add_u32 s{s_po}, s{s_po}, {WGUP}
        v_lshlrev_b32 v{vt[2]}, 11, v{vt[2]}
        v_lshl_add_u32 v{vt[3]}, v{vt[1]}, 9, v{vt[2]}
        s_branch {Lg}
        {Ld}:
        s_min_u32 s{id_}, s{id_}, 1819
        s_cmp_lt_u32 s{id_}, 1620
        s_movk_i32 s{cb}, 1620
        s_cselect_b32 s{cb}, 1080, s{cb}
        s_cselect_b64 {sr(sA,2)}, {sr(sWD,2)}, {sr(sP,2)}
        s_cselect_b32 s{A_}, 16, 20
        s_cselect_b32 s{R0}, 32, 40
        s_mov_b32 s{s_po}, {WOP}
        s_cselect_b32 s{s_po}, {WDP}, s{s_po}
        s_mov_b32 s{sA+2}, {640*1280}
        s_cselect_b32 s{sA+2}, {1728*1280}, s{sA+2}
        s_sub_u32 s{cb}, s{id_}, s{cb}
        s_mul_i32 s{u}, s{cb}, 6554
        s_lshr_b32 s{u}, s{u}, 16
        s_mul_i32 s{st}, s{u}, 10
        s_sub_u32 s{cb}, s{cb}, s{st}
        s_mul_i32 s{R0}, s{R0}, s{u}
        s_mul_i32 s{st}, s{u}, {40*1024}
        s_add_u32 s{s_po}, s{s_po}, s{st}
        s_mul_i32 s{st}, s{u}, 160
        s_sub_u32 s{st}, s{st}, {16*160-16}
        s_cmp_ge_u32 s{id_}, 1780
        s_cselect_b32 s{R0}, s{st}, s{R0}
        s_cselect_b32 s{A_}, 80, s{A_}
        s_cselect_b32 s{B_}, 20, 8
        s_cselect_b32 s{C_}, 40, 4
        s_movk_i32 s{st}, 1280
        s_mov_b64 {sr(sB,2)}, {sr(sA,2)}
        v_lshlrev_b32 v{vt[2]}, 9, v{vt[2]}
        v_lshl_add_u32 v{vt[3]}, v{vt[1]}, 11, v{vt[2]}
        {Lg}:
        s_mov_b32 s{sB+2}, s{sA+2}
        s_lshl_b32 s{sE}, s{cb}, 12
        s_add_u32 s{s_po}, s{s_po}, s{sE}
        s_lshl_b32 s{sF}, s{cb}, 9
        s_add_u32 s{sF}, s{sF}, {CSG}
        s_cmp_lt_u32 s{id_}, 1080
        s_cselect_b32 s{sF}, s{sF}, {WSEND}
        v_bfe_u32 v{vt[2]}, v{vl}, 2, 2
        v_lshl_add_u32 v{vt[3]}, v{vt[2]}, 7, v{vt[3]}
        v_and_b32 v{vt[2]}, 3, v{vl}
        v_lshl_add_u32 v{vt[3]}, v{vt[2]}, 3, v{vt[3]}
        s_lshl_b32 s{sF+1}, s{s_w}, 12
        s_add_u32 s{sF+1}, s{sF+1}, {PREP}
        v_add_u32 v{vPA}, s{sF+1}, v{vt[3]}
        v_mul_u32_u24 v{vt[2]}, s{C_}, v{vt[1]}
        v_bfe_u32 v{vt[3]}, v{vl}, 3, 2
        v_add_u32 v{vt[2]}, v{vt[2]}, v{vt[3]}
        v_mul_u32_u24 v{vt[2]}, s{st}, v{vt[2]}
        v_and_b32 v{vt[3]}, 7, v{vl}
        v_lshl_add_u32 v{vPS}, v{vt[3]}, 4, v{vt[2]}
        s_mul_i32 s{R0}, s{R0}, s{st}
        s_lshl_b32 s{cb}, s{cb}, 7
        s_add_u32 s{R0}, s{R0}, s{cb}
        s_mul_i32 s{A_}, s{A_}, s{st}
        s_mul_i32 s{B_}, s{B_}, s{st}
        s_add_u32 s{A_}, s{A_}, s{R0}
        s_add_u32 s{C_}, s{A_}, s{B_}
        s_add_u32 s{B_}, s{B_}, s{R0}""")
    def prep1():
        return [f"s_mov_b32 m0, s{sF+1}", "s_nop 0",
                f"buffer_load_dwordx4 v{vPS}, {sr(sA,4)}, s{R0} offen lds", "s_add_u32 m0, m0, 1024", "s_nop 0",
                f"buffer_load_dwordx4 v{vPS}, {sr(sA,4)}, s{B_} offen lds", "s_add_u32 m0, m0, 1024", "s_nop 0",
                f"buffer_load_dwordx4 v{vPS}, {sr(sB,4)}, s{A_} offen lds", "s_add_u32 m0, m0, 1024", "s_nop 0",
                f"buffer_load_dwordx4 v{vPS}, {sr(sB,4)}, s{C_} offen lds"]
    def prep2a():
        return [f"ds_read_b64_tr_b16 {vr(PR+4*Tl+2*rd,2)}, v{vPA} offset:{rd*1024+Tl*32}" for Tl in range(4) for rd in range(2)]
    def prep2b():
        return [f"buffer_store_dwordx4 {vr(PR+4*Tl,4)}, v{vl16}, {sr(sO,4)}, s{s_po} offen offset:{Tl*1024}{sc}" for Tl in range(4)]
    def prep3():
        o = [f"s_mov_b32 s{sE}, 0x3f803f80"]
        o += [f"v_mov_b32 v{vcs+i}, 0" for i in range(4)]
        o += [f"v_dot2c_f32_bf16 v{vcs+Tl}, s{sE}, v{PR+4*Tl+i}" for i in range(4) for Tl in range(4)]
        o += [f"v_lshlrev_b32 v{vPS}, 2, v{vl}", "s_nop 1",
              f"v_permlane32_swap_b32 v{vcs}, v{vcs+1}", f"v_permlane32_swap_b32 v{vcs+2}, v{vcs+3}",
              f"v_add_f32 v{vcs}, v{vcs}, v{vcs+1}", f"v_add_f32 v{vcs+2}, v{vcs+2}, v{vcs+3}",
              f"buffer_atomic_add_f32 v{vcs}, v{vPS}, {sr(sO,4)}, s{sF} offen",
              f"buffer_atomic_add_f32 v{vcs+2}, v{vPS}, {sr(sO,4)}, s{sF} offen offset:256"]
        return o
    if prep: prep0()
    def rdK(t):
        o = ((t // 8) % 3) * SL + (t % 8) * 512
        r = [f"ds_read_b128 {vr(Km,4)}, v{vKA} offset:{o}", f"ds_read_b64 {vr(Kr,2)}, v{vKR} offset:{o}"]
        if zk: r = [r[0], "s_mov_b32 exec_hi, 0\n" + r[1] + "\ns_mov_b32 exec_hi, -1"]
        return r
    def rdV(t):
        o = ((t // 8) % 3) * SL + (t % 8) * 1344
        return [f"ds_read_b128 {vr(V0,4)}, v{vVA} offset:{o}", f"ds_read_b128 {vr(V1[t&1],4)}, v{vVA} offset:{o+672}"]
    if not c.fused: k.stamp(2)
    k("s_waitcnt vmcnt(3)\ns_barrier")
    if not c.fused: k.stamp(3)
    if zv or zk:
        k(f"s_mov_b32 s{sZ}, 0x1fffff\ns_mov_b32 s{sZ+1}, 0x1fffff")
        for r in list(range(V0, V0 + 4)) + list(range(V1[0], V1[0] + 8)) + [Kr, Kr + 1]: k(f"v_mov_b32 v{r}, 0")
    for x in rdK(0): k(x)
    if zv: k(f"s_mov_b64 exec, {sr(sZ,2)}")
    for x in rdV(0): k(x)
    if zv: k("s_mov_b64 exec, -1")
    k(f"""s_waitcnt lgkmcnt(2)
    {M8} {vr(S[0],16)}, {vr(Kr,2)}, {vr(Qr,2)}, 0
    {M16} {vr(S[0],16)}, {vr(Km,4)}, {vr(Qm,4)}, {vr(S[0],16)}""")
    for x in rdK(1): k(x)
    TP = 23
    side = []
    vm = [0]
    def spread(n):
        for _ in range(n):
            if side:
                x = side.pop(0)
                if x == 'KV': vm[0] = 0; continue
                k(x)
                if x.startswith('buffer_'): vm[0] += 1
    for t in range(64):
        s = S[t & 1]; sn = S[(t + 1) & 1]; ch = t // 8; last = t == 63
        e = lambda *a: [(k(f"v_exp_f32 v{s+i}, v{s+i}"), spread(1)) for i in a]
        cv = lambda i: k(f"v_cvt_pk_bf16_f32 v{P+i}, v{s+2*i}, v{s+2*i+1}")
        def pr(ph):
            if prio:
                q = (4 * t + ph - 26) % 32
                cum = 0
                for lvl, ln in enumerate(prio):
                    if (q == cum and ln > 0) or (t == 0 and ph == 0 and cum <= q < cum + ln): k(f"s_setprio {3 - lvl}")
                    cum += ln
        pr(0)
        e(0, 1, 2, 3)
        if not last:
            k(f"s_waitcnt lgkmcnt({2 if t > 0 else 0})")
            k(f"{M8} {vr(sn,16)}, {vr(Kr,2)}, {vr(Qr,2)}, 0")
        pr(1)
        e(4); cv(0); e(5); cv(1); e(6, 7)
        if not last: k(f"{M16} {vr(sn,16)}, {vr(Km,4)}, {vr(Qm,4)}, {vr(sn,16)}")
        if t % 8 == 6 and ch < 7:
            assert not side
            k(f"s_waitcnt vmcnt({0 if ch in (2, 5) else vm[0]})\ns_barrier")
            if fine: k.stamp(4 + ch)
            if ch < 6: side += dma((ch + 2) % 3) + ['KV']
            if prep and ch == 0: side += prep1()
            if prep and ch == 5 and c.fused:
                Ln = k.label("nf")
                k(f"s_cmp_lg_u32 s{s_w}, 0\ns_cbranch_scc1 {Ln}\ns_lshl_b32 s{s_t0}, s2, 2\ns_add_u32 s{s_t0}, s{s_t0}, {FP}")
                c.signal(s_t0, vt[2]); k(f"{Ln}:")
            if prep and ch == 6 and c.fused:
                k(f"s_mov_b32 s{s_t0}, {FP}\nbuffer_load_dwordx4 {vr(vfp,4)}, v{vl16}, {sr(sO,4)}, s{s_t0} offen sc1")
        pr(2)
        if t < 62:
            for x in rdK(t + 2): k(x)
        if prep and t == TP:
            for x in prep2a(): k(x)
        cv(2); e(8); cv(3); e(9, 10, 11)
        nK = 2 if t < 62 else 0
        k(f"s_waitcnt lgkmcnt({nK + (8 if prep and t == TP else 0)})")
        k(f"{M16} {vr(O,16)}, {vr(V0,4)}, {vr(P,4)}, {'0' if t == 0 else vr(O,16)}")
        pr(3)
        if prep and t > TP and (t - TP - 1) % spread_st == 0 and (t - TP - 1) // spread_st < 4: side.append(prep2b()[(t - TP - 1) // spread_st])
        if prep and cs_in and t == TP + 2: side += prep3()
        cv(4); e(12); cv(5); e(13, 14, 15); cv(6)
        if not last:
            rv = rdV(t + 1)
            if zv:
                k("s_nop 0"); cv(7); k(f"s_mov_b64 exec, {sr(sZ,2)}"); k(rv[0]); k(rv[1]); k("s_mov_b64 exec, -1")
            else:
                k(rv[0]); cv(7); k(rv[1]); k("s_nop 0")
        else:
            cv(7)
        k(f"{M16} {vr(O,16)}, {vr(V1[t&1],4)}, {vr(P+4,4)}, {vr(O,16)}")
    assert not side
    t0, t1, t2 = vt[0], vt[1], vt[2]
    if fine: k.stamp(11)
    elif not c.fused: k.stamp(4); k.stamp(5)
    k(f"""s_setprio 0
    v_bfe_u32 v{vt[3]}, v{vl}, 4, 1
    v_mul_u32_u24 v{vt[3]}, {20*1024}, v{vt[3]}
    v_and_b32 v{vt[4]}, 15, v{vl}
    v_lshl_add_u32 v{vt[3]}, v{vt[4]}, 4, v{vt[3]}
    v_lshrrev_b32 v{vt[4]}, 5, v{vl}
    v_lshl_add_u32 v{vt[4]}, v{vt[4]}, 8, v{vt[3]}
    s_mov_b32 s{p[1]}, {f2u(2.0**64):#x}
    s_mov_b32 s{p[2]}, 0x7f800000
    v_mov_b32 v{t0}, v{O+8}
    v_mov_b32 v{t1}, v{O+8}
    v_add_f32 v{t2}, |v{O}|, |v{O+1}|
    v_add_f32 v{t2}, |v{O+2}|, v{t2}
    v_permlane32_swap_b32 v{t0}, v{t1}""")
    for i in range(3, 12):
        if i == 8: k("s_mov_b32 exec_hi, 0")
        k(f"v_add_f32 v{t2}, |v{O+i}|, v{t2}")
    k(f"""s_mov_b32 exec_hi, -1
    v_cmp_lt_f32 vcc, {f2u(2.0**-64):#x}, v{t1}
    v_cmp_gt_f32 {sr(sE,2)}, s{p[1]}, v{t1}
    v_cmp_gt_f32 {sr(sG,2)}, s{p[2]}, v{t2}
    s_and_b64 vcc, vcc, {sr(sE,2)}
    s_and_b64 vcc, vcc, {sr(sG,2)}
    s_cmp_eq_u64 vcc, -1
    s_cbranch_scc0 {L_slow}
    {L_store}:
    v_rcp_f32 v{t1}, v{t1}
    s_lshr_b32 s{s_t0}, s{s_tok}, 4
    s_mul_i32 s{s_t0}, s{s_t0}, {20*1024}
    s_add_u32 s{s_t0}, s{s_t0}, {OIMG}
    s_lshl_b32 s{s_t1}, s{s_h}, 9
    s_add_u32 s{s_t1}, s{s_t1}, s{s_t0}
    s_lshr_b32 s{s_t2}, s{s_h}, 1
    s_lshl_b32 s{s_t2}, s{s_t2}, 8
    s_add_u32 s{s_t2}, s{s_t2}, s{s_t0}
    s_add_u32 s{s_t2}, s{s_t2}, s{s_odd8}
    s_add_u32 s{s_t2}, s{s_t2}, {16*1024}""")
    for i in range(12): k(f"v_mul_f32 v{O+i}, v{t1}, v{O+i}")
    for i in range(6): k(f"v_cvt_pk_bf16_f32 v{O+i}, v{O+2*i}, v{O+2*i+1}")
    k(f"""buffer_store_dwordx4 {vr(O,4)}, v{vt[4]}, {sr(sO,4)}, s{s_t1} offen{sc}
    s_mov_b32 exec_hi, 0
    buffer_store_dwordx2 {vr(O+4,2)}, v{vt[3]}, {sr(sO,4)}, s{s_t2} offen{sc}
    s_mov_b32 exec_hi, -1""")
    def slow():
        vV = vKA; vm = vKR; cnt = p[3]
        k(f"""{L_slow}:
        s_add_u32 s{so[0]}, s{s_pa}, {80*32768}
        s_add_u32 s{so[1]}, s{s_pr}, {80*32768}
        s_add_u32 s{so[1]}, s{so[1]}, s{s_odd8}
        v_mov_b32 v{vm}, 0xff800000
        s_mov_b32 s{cnt}, 0""")
        L1 = k.label("mx")
        k(f"""{L1}:
        buffer_load_dwordx4 {vr(Km,4)}, v{vq}, {sr(sO,4)}, s{so[0]} offen
        buffer_load_dwordx2 {vr(Kr,2)}, v{vr31}, {sr(sO,4)}, s{so[1]} offen
        s_add_u32 s{so[0]}, s{so[0]}, 512
        s_add_u32 s{so[1]}, s{so[1]}, 512
        s_waitcnt vmcnt(0)
        {M8} {vr(S[0],16)}, {vr(Kr,2)}, {vr(Qr,2)}, 0
        {M16} {vr(S[0],16)}, {vr(Km,4)}, {vr(Qm,4)}, {vr(S[0],16)}""")
        for i in range(8): k(f"v_max3_f32 v{vm}, v{S[0]+2*i}, v{S[0]+2*i+1}, v{vm}")
        k(f"""s_add_u32 s{cnt}, s{cnt}, 1
        s_cmp_lt_u32 s{cnt}, 64
        s_cbranch_scc1 {L1}
        v_mov_b32 v{t0}, v{vm}
        v_permlane32_swap_b32 v{t0}, v{vm}
        v_max_f32 v{vm}, v{vm}, v{t0}""")
        for i in range(16): k(f"v_sub_f32 v{C+i}, 0, v{vm}\nv_mov_b32 v{O+i}, 0")
        k(f"""s_add_u32 s{so[0]}, s{s_pa}, {80*32768}
        s_add_u32 s{so[1]}, s{s_pr}, {80*32768}
        s_add_u32 s{so[1]}, s{so[1]}, s{s_odd8}
        s_mul_i32 s{so[2]}, s{s_h}, {VHEAD}
        s_add_u32 s{so[2]}, s{so[2]}, {VIMG}
        v_lshrrev_b32 v{vV}, 5, v{vl}
        v_mul_u32_u24 v{vV}, 336, v{vV}
        v_add_u32 v{vV}, v{vV}, v{vr31}
        s_mov_b32 s{cnt}, 0""")
        L2 = k.label("pv")
        k(f"""{L2}:
        buffer_load_dwordx4 {vr(Km,4)}, v{vq}, {sr(sO,4)}, s{so[0]} offen
        buffer_load_dwordx2 {vr(Kr,2)}, v{vr31}, {sr(sO,4)}, s{so[1]} offen
        buffer_load_dwordx4 {vr(V0,4)}, v{vV}, {sr(sO,4)}, s{so[2]} offen
        buffer_load_dwordx4 {vr(V1[0],4)}, v{vV}, {sr(sO,4)}, s{so[2]} offen offset:672
        s_add_u32 s{so[0]}, s{so[0]}, 512
        s_add_u32 s{so[1]}, s{so[1]}, 512
        s_add_u32 s{so[2]}, s{so[2]}, 1344
        s_waitcnt vmcnt(0)
        {M8} {vr(S[0],16)}, {vr(Kr,2)}, {vr(Qr,2)}, {vr(C,16)}
        {M16} {vr(S[0],16)}, {vr(Km,4)}, {vr(Qm,4)}, {vr(S[0],16)}""")
        for i in range(16): k(f"v_exp_f32 v{S[0]+i}, v{S[0]+i}")
        for i in range(8): k(f"v_cvt_pk_bf16_f32 v{P+i}, v{S[0]+2*i}, v{S[0]+2*i+1}")
        k(f"""{M16} {vr(O,16)}, {vr(V0,4)}, {vr(P,4)}, {vr(O,16)}
        {M16} {vr(O,16)}, {vr(V1[0],4)}, {vr(P+4,4)}, {vr(O,16)}
        s_add_u32 s{cnt}, s{cnt}, 1
        s_cmp_lt_u32 s{cnt}, 64
        s_cbranch_scc1 {L2}
        v_mov_b32 v{t0}, v{O+8}
        v_mov_b32 v{t1}, v{O+8}
        v_permlane32_swap_b32 v{t0}, v{t1}
        s_branch {L_store}""")
    c.p2 = dict(slow=slow, vfp=vfp, s_h=s_h, prep3=(lambda: [k(x) for x in prep3()]) if prep and not cs_in else (lambda: None), vt=vt, st=[s_t0, s_t1, s_t2])
    return PREP + 32768

def gen(which, opt):
    if which == '2':
        c = Ctx("k2_attn_kernel", False)
        lds = p2(c, **opt('K2'))
        c.p2['prep3'](); c.finish(); c.p2['slow']()
        return c.k, (256, 512, lds)
    import ph2
    return ph2.gen(which, opt)
```

```python
from ph import *

def lw(c, L):
    c.k(f"s_cmp_ge_u32 s{c.s_w}, 4\ns_cbranch_scc1 {L}")

class P35:
    def __init__(self, c, which, D=12, D0=None, pair=False, early=False):
        self.c = c; self.k3 = k3 = which == 3; k = c.k
        self.NU = 20 if k3 else 54; self.CK = 4; self.SLOT = 20480
        self.NCH = (self.NU + 3) // 4; self.NSL = 5 if k3 else 7
        self.XS = self.NSL * self.SLOT; self.D = D; self.D0 = D0 or D
        self.early = early
        if early: self.XS = 20480
        self.lds = (self.XS + 4 * 3072) if not early else 73728 + 4 * 20480
        c.reset()
        self.sPX = k.s(2); self.sB = k.s(4); self.sX = k.s(4)
        (self.s_tb16, self.s_c, self.s_t0, self.s_t1, self.s_t2, self.s_bo, self.s_wo, self.s_m0, self.s_xs, self.s_ho,
         self.s_cnt) = [k.s() for _ in range(11)]
        self.vt = [k.v() for _ in range(6)]; self.vH = k.v(); self.vD = k.v(); self.vA = [k.v() for _ in range(3)]
        self.vrow = [k.v() for _ in range(3)]
        self.acc = k.v(20, 4); self.fa = [k.v(20, 4) for _ in range(3)]; self.res = k.v(12, 4)
        self.fb = k.v(4 * self.D * (2 if pair else 1), 4)
        if pair: self.accY = k.v(20, 4); self.s_boY = k.s(); self.vE = [k.v(), k.v()]
    def ptr_load(self): return f"s_load_dwordx2 {sr(self.sPX,2)}, s[0:1], {KA_X if self.k3 else KA_OUT}"
    rowmap = False
    bar8 = False
    def ld_main8(self, regs=None, free1=0):
        k = self.c.k; c = self.c
        issued = 7
        for kb in range(6):
            need = min(13, 2 * kb + 3)
            if regs is None: k(f"s_waitcnt vmcnt({5*max(0, issued - 1 - need)})")
            else: k(f"s_waitcnt vmcnt({5*max(0, 6 - need)}) lgkmcnt(0)")
            k("s_barrier")
            while issued < 14 and issued <= 2 * kb + 7 + free1:
                if regs is None: self.ld_chunk(issued % 7)
                else:
                    slot = issued % 7
                    for i in range(5):
                        k(f"ds_write_b128 v{regs['addr'][slot // 3]}, {vr(regs['base'] + 20*(issued-7) + 4*i, 4)} offset:{(slot % 3)*self.SLOT + i*1024}")
                issued += 1
    def ids(self):
        k = self.c.k
        if self.rowmap:
            k(f"""s_and_b32 s{self.s_t0}, s2, 7
            s_lshl_b32 s{self.s_t0}, s{self.s_t0}, 2
            s_bfe_u32 s{self.s_t1}, s2, 0x20003
            s_add_u32 s{self.s_tb16}, s{self.s_t0}, s{self.s_t1}
            s_lshl_b32 s{self.s_tb16}, s{self.s_tb16}, 2
            s_add_u32 s{self.s_tb16}, s{self.s_tb16}, s{self.c.s_wl}
            s_lshr_b32 s{self.s_c}, s2, 5""")
            return
        k(f"""s_and_b32 s{self.s_t0}, s2, 3
        s_lshl_b32 s{self.s_t0}, s{self.s_t0}, 3
        s_bfe_u32 s{self.s_t1}, s2, 0x30003
        s_add_u32 s{self.s_tb16}, s{self.s_t0}, s{self.s_t1}
        s_lshl_b32 s{self.s_tb16}, s{self.s_tb16}, 2
        s_add_u32 s{self.s_tb16}, s{self.s_tb16}, s{self.c.s_wl}
        s_bfe_u32 s{self.s_t0}, s2, 0x10002
        s_lshl_b32 s{self.s_t0}, s{self.s_t0}, 2
        s_lshr_b32 s{self.s_t1}, s2, 6
        s_add_u32 s{self.s_c}, s{self.s_t0}, s{self.s_t1}""")
    def ld_setup(self):
        k = self.c.k
        k(f"""s_mul_i32 s{self.s_wo}, s{self.c.s_wl}, 8
        s_add_u32 s{self.s_wo}, s{self.s_wo}, s{self.s_c}
        s_mul_i32 s{self.s_wo}, s{self.s_wo}, 5120
        s_add_u32 s{self.s_wo}, s{self.s_wo}, {WOP if self.k3 else WDP}
        s_mul_i32 s{self.s_m0}, s{self.c.s_wl}, 5120""")
    def ld_chunk(self, slot):
        k = self.c.k; c = self.c
        k(f"s_add_u32 m0, s{self.s_m0}, {slot*self.SLOT}\ns_add_u32 s{self.s_t2}, s{self.s_wo}, 4096")
        for i in range(4):
            k(f"buffer_load_dwordx4 v{c.vl16}, {sr(c.sO,4)}, s{self.s_wo} offen offset:{i*1024}{c.lsc} lds")
        k(f"s_add_u32 m0, m0, 4096\ns_add_u32 s{self.s_wo}, s{self.s_wo}, {4*40960}")
        k(f"buffer_load_dwordx4 v{c.vl16}, {sr(c.sO,4)}, s{self.s_t2} offen{c.lsc} lds")
    def ld_main(self, issued, init=True):
        k = self.c.k; NCH = self.NCH
        if init: k(f"s_waitcnt vmcnt({5*(issued-1)})\ns_barrier")
        for ch in range(NCH - 1):
            k(f"s_waitcnt vmcnt({5*max(0, issued-ch-2)})\ns_barrier")
            while issued < NCH and issued < ch + self.NSL and issued <= ch + 1 + self.ahead:
                self.ld_chunk(issued % self.NSL); issued += 1
    def setup(self):
        k = self.c.k; c = self.c; vt = self.vt; vl = c.vl
        for i in range(3):
            k(f"""v_add_u32 v{vt[0]}, {64*i}, v{vl}
            v_mul_u32_u24 v{vt[1]}, 6554, v{vt[0]}
            v_lshrrev_b32 v{vt[1]}, 16, v{vt[1]}
            v_mul_u32_u24 v{vt[1]}, {1280-160}, v{vt[1]}
            v_lshl_add_u32 v{self.vrow[i]}, v{vt[0]}, 4, v{vt[1]}""")
        k(f"""s_mul_i32 s{self.s_t1}, s{self.s_tb16}, {16*1280}
        s_mul_i32 s{self.s_t2}, s{self.s_c}, 160
        s_add_u32 s{self.s_t1}, s{self.s_t1}, s{self.s_t2}
        s_waitcnt lgkmcnt(0)
        s_add_u32 s{self.sX}, s{self.sPX}, s{self.s_t1}
        s_addc_u32 s{self.sX+1}, s{self.sPX+1}, 0
        s_sub_u32 s{self.sX+2}, {2048*1280}, s{self.s_t1}
        s_mov_b32 s{self.sX+3}, 0x20000
        s_mul_i32 s{self.s_xs}, s{c.s_wl}, 3072
        s_add_u32 s{self.s_xs}, s{self.s_xs}, {self.XS}""")
        if self.k3:
            k(f"s_mov_b32 m0, s{self.s_xs}")
            for i in range(3):
                k(f"s_nop 0\nbuffer_load_dwordx4 v{self.vrow[i]}, {sr(self.sX,4)}, 0 offen lds")
                if i < 2: k("s_add_u32 m0, m0, 1024")
        k(f"""v_lshrrev_b32 v{vt[0]}, 4, v{vl}
        v_and_b32 v{vt[1]}, 15, v{vl}
        v_lshlrev_b32 v{vt[2]}, 4, v{vt[1]}
        v_lshl_add_u32 v{self.vH}, v{vt[0]}, 9, v{vt[2]}
        s_lshr_b32 s{self.s_t1}, s{self.s_tb16}, 1
        s_mul_i32 s{self.s_t1}, s{self.s_t1}, 40
        s_mul_i32 s{self.s_t2}, s{self.s_c}, 5
        s_add_u32 s{self.s_t1}, s{self.s_t1}, s{self.s_t2}
        s_lshl_b32 s{self.s_t1}, s{self.s_t1}, 10
        s_and_b32 s{self.s_t2}, s{c.s_w}, 1
        s_lshl_b32 s{self.s_t2}, s{self.s_t2}, 8
        s_add_u32 s{self.s_t1}, s{self.s_t1}, s{self.s_t2}
        s_add_u32 s{self.s_ho}, s{self.s_t1}, {HIMG}
        v_mul_u32_u24 v{vt[1]}, 160, v{vt[1]}
        v_lshl_add_u32 v{vt[1]}, v{vt[0]}, 3, v{vt[1]}
        v_add_u32 v{self.vD}, s{self.s_xs}, v{vt[1]}
        v_add_u32 v{self.vA[0]}, {73728 if self.early else 0}, v{c.vl16}
        v_add_u32 v{self.vA[1]}, {(73728 if self.early else 0) + 3*self.SLOT}, v{c.vl16}
        v_add_u32 v{self.vA[2]}, {0 if self.early else 6*self.SLOT}, v{c.vl16}
        s_mul_i32 s{self.s_bo}, s{self.s_tb16}, {self.NU*1024}
        s_add_u32 s{self.s_bo}, s{self.s_bo}, {OIMG if self.k3 else ACT}""")
    def loadB(self, u):
        k = self.c.k; c = self.c
        k(f"buffer_load_dwordx4 {vr(self.fb+4*(u % self.D),4)}, v{c.vl16}, {sr(c.sO,4)}, s{self.s_bo} offen offset:{(u%4)*1024}{c.lsc}")
        if u % 4 == 3: k(f"s_add_u32 s{self.s_bo}, s{self.s_bo}, 4096")
    def rdA(self, u):
        slot = (u // 4) % self.NSL
        if self.early and slot == 4: slot = 6
        return [f"ds_read_b128 {vr(self.fa[u%3]+4*T,4)}, v{self.vA[slot//3]} offset:{(slot%3)*self.SLOT+((u%4)*5+T)*1024}" for T in range(5)]
    def main(self, init=True, resident=False):
        k = self.c.k; c = self.c; NU = self.NU; D = self.D; res = self.res
        order = []
        def resld():
            k(f"""s_add_u32 s{self.s_t1}, s{self.s_ho}, 4096
            buffer_load_dwordx4 {vr(res,4)}, v{self.vH}, {sr(c.sO,4)}, s{self.s_ho} offen{c.lsc}
            buffer_load_dwordx4 {vr(res+4,4)}, v{self.vH}, {sr(c.sO,4)}, s{self.s_ho} offen offset:2048{c.lsc}
            buffer_load_dwordx4 {vr(res+8,4)}, v{self.vH}, {sr(c.sO,4)}, s{self.s_t1} offen{c.lsc}""")
            order.extend('rrr')
        nxt = 0
        for u in range(self.D0):
            self.loadB(u); order.append(u); nxt += 1
        if not c.fused: k.stamp(2)
        if init: k("s_barrier")
        if not c.fused: k.stamp(3)
        for x in self.rdA(0) + self.rdA(1): k(x)
        for u in range(NU):
            rd = []
            if self.bar8:
                if u % 8 == 6 and u < 48: k("s_barrier")
            elif u % 4 == 2 and u // 4 < self.NCH - 1 and not resident: k("s_barrier")
            if u + 2 < NU: rd = self.rdA(u + 2)
            younger = len(order) - 1 - order.index(u)
            if u == NU - 1: younger = 0
            k(f"s_waitcnt vmcnt({younger}) lgkmcnt({5 if u + 1 < NU else 0})")
            if u in getattr(self, 'fine', {}): k.stamp(self.fine[u]); k("s_waitcnt lgkmcnt(0)") if K.STAMP else None
            b = self.fb + 4 * (u % D)
            for T in range(5):
                k(f"{MF} {vr(self.acc+4*T,4)}, {vr(self.fa[u%3]+4*T,4)}, {vr(b,4)}, {'0' if u == 0 else vr(self.acc+4*T,4)}")
                if T < len(rd): k(rd[T])
                if T == 2 and nxt < NU and nxt < u + D:
                    self.loadB(nxt); order.append(nxt); nxt += 1
            if nxt < NU and nxt <= u + D:
                self.loadB(nxt); order.append(nxt); nxt += 1
            if not self.k3 and u == NU - 12: resld()
        if self.k3:
            for T in range(5): k(f"ds_read_b64 {vr(self.fa[0]+2*T,2)}, v{self.vD} offset:{T*32}")
            k("s_waitcnt lgkmcnt(0)")
    def setup_pair(self):
        k = self.c.k; c = self.c
        k(f"""s_and_b32 s{self.s_t1}, s{c.s_w}, 1
        s_mul_i32 s{self.s_t2}, s{self.s_t1}, 5120
        v_add_u32 v{self.vA[0]}, s{self.s_t2}, v{c.vl16}
        v_add_u32 v{self.vA[1]}, {3*self.SLOT}, v{self.vA[0]}
        v_add_u32 v{self.vA[2]}, {6*self.SLOT}, v{self.vA[0]}
        s_lshl_b32 s{self.s_t1}, s{self.s_t1}, 10
        s_add_u32 s{self.s_t1}, s{self.s_t1}, {OIMG if self.k3 else ACT}
        s_mul_i32 s{self.s_bo}, s{self.s_tb16}, {self.NU*1024}
        s_add_u32 s{self.s_bo}, s{self.s_bo}, s{self.s_t1}
        s_xor_b32 s{self.s_boY}, s{self.s_tb16}, 1
        s_mul_i32 s{self.s_boY}, s{self.s_boY}, {self.NU*1024}
        s_add_u32 s{self.s_boY}, s{self.s_boY}, s{self.s_t1}
        s_mul_i32 s{self.s_t1}, s{c.s_w}, 5120
        v_add_u32 v{self.vE[0]}, s{self.s_t1}, v{c.vl16}
        s_xor_b32 s{self.s_t1}, s{c.s_w}, 1
        s_mul_i32 s{self.s_t1}, s{self.s_t1}, 5120
        v_add_u32 v{self.vE[1]}, s{self.s_t1}, v{c.vl16}""")
    def main_pair(self):
        k = self.c.k; c = self.c; N = self.NU // 2; D = self.D; res = self.res
        order = []
        def loadB(u, y):
            so = self.s_boY if y else self.s_bo
            k(f"buffer_load_dwordx4 {vr(self.fb+8*(u % D)+4*y,4)}, v{c.vl16}, {sr(c.sO,4)}, s{so} offen offset:{(u%2)*2048}{c.lsc}")
            if u % 2 == 1: k(f"s_add_u32 s{so}, s{so}, 4096")
            order.append((u, y))
        def rdA(u):
            slot = (u // 2) % self.NSL
            return [f"ds_read_b128 {vr(self.fa[u%2]+4*T,4)}, v{self.vA[slot//3]} offset:{(slot%3)*self.SLOT+((u%2)*10+T)*1024}" for T in range(5)]
        q = [(u, y) for u in range(N) for y in range(2)]
        for _ in range(2 * self.D0): loadB(*q.pop(0))
        for x in rdA(0): k(x)
        for u in range(N):
            younger = 0 if u == N - 1 else len(order) - 1 - order.index((u, 1))
            k(f"s_waitcnt vmcnt({younger}) lgkmcnt(0)")
            if u in getattr(self, 'fine', {}): k.stamp(self.fine[u])
            bar = u % 4 == 3 and u < 24
            rd = rdA(u + 1) if u + 1 < N else []
            b = self.fb + 8 * (u % D)
            for i in range(10):
                T = i // 2; y = 1 - (i & 1)
                if u == N - 1: T = i % 5; y = 1 - i // 5
                a = (self.acc, self.accY)[y] + 4 * T
                k(f"{MF} {vr(a,4)}, {vr(self.fa[u%2]+4*T,4)}, {vr(b+4*y,4)}, {'0' if u == 0 else vr(a,4)}")
                if bar and i == 1: k("s_barrier")
                j = i - (1 if bar else 0)
                if 0 <= j < len(rd): k(rd[j])
                if i in (5, 7) and q and q[0][0] < u + D: loadB(*q.pop(0))
                if i in (6, 8) and q and q[0][0] < u + D and len(order) < 2 * (u + D) - 2: loadB(*q.pop(0))
            if u == N - 8:
                k(f"""s_add_u32 s{self.s_t1}, s{self.s_ho}, 4096
                buffer_load_dwordx4 {vr(res,4)}, v{self.vH}, {sr(c.sO,4)}, s{self.s_ho} offen{c.lsc}
                buffer_load_dwordx4 {vr(res+4,4)}, v{self.vH}, {sr(c.sO,4)}, s{self.s_ho} offen offset:2048{c.lsc}
                buffer_load_dwordx4 {vr(res+8,4)}, v{self.vH}, {sr(c.sO,4)}, s{self.s_t1} offen{c.lsc}""")
                order.extend('rrr')
        assert not q
        for T in range(5): k(f"ds_write_b128 v{self.vE[0]}, {vr(self.accY+4*T,4)} offset:{T*1024}")
        k("s_waitcnt lgkmcnt(0)\ns_barrier")
        for T in range(5): k(f"ds_read_b128 {vr(self.fb+4*T,4)}, v{self.vE[1]} offset:{T*1024}")
        for T in range(5):
            k(f"s_waitcnt lgkmcnt({4-T})")
            for p in range(2): k(f"v_pk_add_f32 {vr(self.acc+4*T+2*p,2)}, {vr(self.acc+4*T+2*p,2)}, {vr(self.fb+4*T+2*p,2)}")
    def epilogue(self):
        k = self.c.k; c = self.c; t = self.vt; acc = self.acc; res = self.res; sO = c.sO; vH = self.vH; sc = c.sc
        if self.k3:
            k(f"s_mov_b32 s{self.s_cnt}, 0x3f803f80\nv_mov_b32 v{t[0]}, 0\nv_mov_b32 v{t[1]}, 0")
            src = self.fa[0]
        else:
            for p in range(3):
                k(f"v_permlane32_swap_b32 v{res+4*p}, v{res+4*p+2}\nv_permlane32_swap_b32 v{res+4*p+1}, v{res+4*p+3}")
            src = res
        pk = self.fa[1]
        for T in range(5):
            for d in range(2):
                x = src + 2 * T + d; a = acc + 4 * T + 2 * d
                k(f"""v_lshlrev_b32 v{t[2+2*d]}, 16, v{x}
                v_and_b32 v{t[3+2*d]}, 0xffff0000, v{x}
                v_add_f32 v{a}, v{a}, v{t[2+2*d]}
                v_add_f32 v{a+1}, v{a+1}, v{t[3+2*d]}
                v_cvt_pk_bf16_f32 v{pk+2*T+d}, v{a}, v{a+1}""")
        if self.k3:
            for i in range(10):
                k(f"v_dot2c_f32_bf16 v{t[0]}, s{self.s_cnt}, v{pk+i}\nv_dot2c_f32_bf16 v{t[1]}, v{pk+i}, v{pk+i}")
            for p in range(3):
                k(f"v_permlane32_swap_b32 v{pk+4*p}, v{pk+4*p+2}\nv_permlane32_swap_b32 v{pk+4*p+1}, v{pk+4*p+3}")
            k(f"""s_add_u32 s{self.s_t1}, s{self.s_ho}, 4096
            buffer_store_dwordx4 {vr(pk,4)}, v{vH}, {sr(sO,4)}, s{self.s_ho} offen{sc}
            buffer_store_dwordx4 {vr(pk+4,4)}, v{vH}, {sr(sO,4)}, s{self.s_ho} offen offset:2048{sc}
            s_mov_b32 exec_hi, 0
            buffer_store_dwordx4 {vr(pk+8,4)}, v{vH}, {sr(sO,4)}, s{self.s_t1} offen{sc}
            s_mov_b32 exec_hi, -1
            v_mov_b32 v{t[2]}, v{t[0]}
            v_mov_b32 v{t[3]}, v{t[1]}
            v_permlane32_swap_b32 v{t[2]}, v{t[0]}
            v_permlane32_swap_b32 v{t[3]}, v{t[1]}
            v_add_f32 v{t[0]}, v{t[0]}, v{t[2]}
            v_add_f32 v{t[1]}, v{t[1]}, v{t[3]}
            v_mov_b32 v{t[2]}, v{t[0]}
            v_mov_b32 v{t[3]}, v{t[1]}
            v_permlane16_swap_b32 v{t[2]}, v{t[0]}
            v_permlane16_swap_b32 v{t[3]}, v{t[1]}
            v_add_f32 v{acc}, v{t[0]}, v{t[2]}
            v_add_f32 v{acc+1}, v{t[1]}, v{t[3]}
            v_lshlrev_b32 v{t[4]}, 3, v{c.vl}
            s_lshl_b32 s{self.s_t2}, s{self.s_c}, 14
            s_lshl_b32 s{self.s_t0}, s{self.s_tb16}, 7
            s_add_u32 s{self.s_t2}, s{self.s_t2}, s{self.s_t0}
            s_add_u32 s{self.s_t2}, s{self.s_t2}, {STATS}
            s_mov_b64 exec, 0xffff
            buffer_store_dwordx2 {vr(acc,2)}, v{t[4]}, {sr(sO,4)}, s{self.s_t2} offen{sc}
            s_mov_b64 exec, -1""")
        else:
            for T in range(5): k(f"ds_write_b64 v{self.vD}, {vr(pk+2*T,2)} offset:{T*32}")
            k(f"v_add_u32 v{t[0]}, s{self.s_xs}, v{c.vl16}\ns_waitcnt lgkmcnt(0)")
            for i in range(3): k(f"ds_read_b128 {vr(self.fa[0]+4*i,4)}, v{t[0]} offset:{i*1024}")
            for i in range(3):
                k(f"s_waitcnt lgkmcnt({2-i})")
                if i == 2: k("s_mov_b32 exec_hi, 0")
                k(f"buffer_store_dwordx4 {vr(self.fa[0]+4*i,4)}, v{self.vrow[i]}, {sr(self.sX,4)}, 0 offen")
            k("s_mov_b32 exec_hi, -1")

class P4:
    CK, NSL, NCH, SLOT = 4, 5, 10, 28672
    CSB = 5 * 28672
    def __init__(self, c, D=12, D0=None):
        self.c = c; k = c.k; self.D = D; self.D0 = D0 or D; self.lds = self.CSB + 1024
        c.reset()
        (self.s_tb, self.s_g, self.s_t0, self.s_t1, self.s_t2, self.s_bo, self.s_wo, self.s_m0) = [k.s() for _ in range(8)]
        self.vt = [k.v() for _ in range(4)]; self.vA = [k.v() for _ in range(3)]
        self.st = k.v(8, 4); self.par = k.v(6, 2)
        self.acc = [k.v(16, 4) for _ in range(7)]
        self.fa = [k.v(28, 4), k.v(28, 4)]
        self.fb = k.v(4 * D, 4)
    def ids(self):
        k = self.c.k
        k(f"""s_and_b32 s{self.s_t0}, s2, 1
        s_lshl_b32 s{self.s_t0}, s{self.s_t0}, 3
        s_bfe_u32 s{self.s_t1}, s2, 0x30003
        s_add_u32 s{self.s_tb}, s{self.s_t0}, s{self.s_t1}
        s_lshl_b32 s{self.s_tb}, s{self.s_tb}, 2
        s_add_u32 s{self.s_tb}, s{self.s_tb}, s{self.c.s_wl}
        s_bfe_u32 s{self.s_t0}, s2, 0x20001
        s_lshl_b32 s{self.s_t0}, s{self.s_t0}, 2
        s_lshr_b32 s{self.s_t1}, s2, 6
        s_add_u32 s{self.s_g}, s{self.s_t0}, s{self.s_t1}""")
    def ld_setup(self):
        k = self.c.k
        k(f"""s_mul_i32 s{self.s_wo}, s{self.c.s_wl}, 16
        s_add_u32 s{self.s_wo}, s{self.s_wo}, s{self.s_g}
        s_mul_i32 s{self.s_wo}, s{self.s_wo}, 7168
        s_add_u32 s{self.s_wo}, s{self.s_wo}, {WGUP}
        s_mul_i32 s{self.s_m0}, s{self.c.s_wl}, 7168""")
    thin = None
    def ld_chunk(self, slot, thin=False):
        k = self.c.k; c = self.c
        k(f"s_add_u32 m0, s{self.s_m0}, {slot*self.SLOT}\ns_add_u32 s{self.s_t2}, s{self.s_wo}, 4096")
        for i in range(4):
            k(f"buffer_load_dwordx4 v{c.vl16}, {sr(c.sO,4)}, s{self.s_wo} offen offset:{i*1024}{c.lsc} lds")
        k(f"s_add_u32 m0, m0, 4096\ns_add_u32 s{self.s_wo}, s{self.s_wo}, {4*112*1024}")
        if thin and self.thin is not None: k(f"s_waitcnt vmcnt({self.thin})")
        for i in range(3):
            k(f"buffer_load_dwordx4 v{c.vl16}, {sr(c.sO,4)}, s{self.s_t2} offen offset:{i*1024}{c.lsc} lds")
    def ld_cs(self):
        k = self.c.k; c = self.c
        k(f"""s_mul_i32 s{self.s_t2}, s{self.s_g}, 896
        s_mov_b32 m0, {self.CSB}
        s_add_u32 s{self.s_t2}, s{self.s_t2}, {CSG}
        buffer_load_dwordx4 v{c.vl16}, {sr(c.sO,4)}, s{self.s_t2} offen{c.lsc} lds""")
    def ld_main(self, issued, extra, init=True):
        k = self.c.k; NCH = self.NCH
        if init: k(f"s_waitcnt vmcnt({7*(issued-1)+extra})\ns_barrier")
        nw = 0
        for ch in range(NCH - 1):
            k(f"s_waitcnt vmcnt({min(63, 7*max(0, issued-ch-2) + 5*nw)})\ns_barrier")
            while issued < NCH and issued <= ch + self.NSL and issued <= ch + 1 + self.ahead:
                self.ld_chunk(issued % self.NSL, True); issued += 1
            if self.warm and ch >= 4:
                assert issued == NCH
                if ch == 4: self.warm()
                for i_, j in enumerate(self.wsched[ch]):
                    if i_ and self.thin is not None: k(f"s_waitcnt vmcnt({self.thin + 1})")
                    self.warm_chunk(j); nw += 1
    warm = None
    nob = False
    wsched = {4: (), 5: (0, 1), 6: (2, 3), 7: (4, 5), 8: (6,)}
    def setup(self):
        k = self.c.k; c = self.c; vt = self.vt
        k(f"""v_mov_b32 v{self.vA[0]}, v{c.vl16}
        v_add_u32 v{self.vA[1]}, {2*self.SLOT}, v{c.vl16}
        v_add_u32 v{self.vA[2]}, {4*self.SLOT}, v{c.vl16}
        s_mul_i32 s{self.s_bo}, s{self.s_tb}, 40960
        s_add_u32 s{self.s_bo}, s{self.s_bo}, {HIMG}
        v_and_b32 v{vt[0]}, 31, v{c.vl}
        v_lshrrev_b32 v{vt[1]}, 5, v{c.vl}
        v_lshlrev_b32 v{vt[2]}, 3, v{vt[0]}
        v_lshl_add_u32 v{vt[2]}, v{vt[1]}, 16, v{vt[2]}
        s_lshl_b32 s{self.s_t0}, s{self.s_tb}, 8
        s_add_u32 s{self.s_t0}, s{self.s_t0}, {STATS}""")
    def loadB(self, u):
        k = self.c.k; c = self.c
        k(f"buffer_load_dwordx4 {vr(self.fb+4*(u % self.D),4)}, v{c.vl16}, {sr(c.sO,4)}, s{self.s_bo} offen offset:{(u%4)*1024}{c.lsc}")
        if u % 4 == 3: k(f"s_add_u32 s{self.s_bo}, s{self.s_bo}, 4096")
    def rdA(self, u):
        slot = (u // 4) % self.NSL
        return [f"ds_read_b128 {vr(self.fa[u&1]+4*T,4)}, v{self.vA[slot//2]} offset:{(slot%2)*self.SLOT+((u%4)*7+T)*1024}" for T in range(7)]
    def main(self, init=True, endbar=False):
        k = self.c.k; c = self.c; D = self.D; st = self.st
        order = []; nxt = 0; pq = self.params()
        for u in range(self.D0):
            self.loadB(u); order.append(u); nxt += 1
        if not c.fused: k.stamp(2)
        if init: k("s_barrier")
        if not c.fused: k.stamp(3)
        for x in self.rdA(0): k(x)
        for u in range(40):
            younger = len(order) - 1 - order.index(u)
            if u == 39: younger = 0
            k(f"s_waitcnt vmcnt({younger}) lgkmcnt(0)")
            if u in getattr(self, 'fine', {}): k.stamp(self.fine[u])
            bar = u % 4 == 3 and (u < 39 or endbar)
            rd = self.rdA(u + 1) if u < 39 else []
            b = self.fb + 4 * (u % D)
            r0 = 2 if bar else 0
            for T in range(7):
                k(f"{M16} {vr(self.acc[T],16)}, {vr(self.fa[u&1]+4*T,4)}, {vr(b,4)}, {'0' if u == 0 else vr(self.acc[T],16)}")
                if bar and T == 1: k("s_barrier")
                if T >= r0 - 1 or not bar:
                    j = T - (r0 - 1 if bar else 0)
                    for x in rd[2*j:2*j+2]: k(x)
                if u >= 32 and T >= 4:
                    for x in pq[:2]: k(x)
                    del pq[:2]
                if T == 5 and nxt < 40 and nxt < u + D:
                    self.loadB(nxt); order.append(nxt); nxt += 1
            if nxt < 40 and nxt <= u + D:
                if not self.nob: self.loadB(nxt)
                order.append(nxt); nxt += 1
            if u == 16:
                for i in range(4):
                    k(f"buffer_load_dwordx2 {vr(st+2*i,2)}, v{self.vt[2]}, {sr(c.sO,4)}, s{self.s_t0} offen{c.lsc}")
                    if i < 3: k(f"s_add_u32 s{self.s_t0}, s{self.s_t0}, 16384")
                order.extend('ssss')
            if u == 39: assert not pq
    def params(self):
        c = self.c; t = self.vt; st = self.st; par = self.par; vl = c.vl
        return [x.strip() for x in f"""v_lshrrev_b32 v{t[0]}, 5, v{vl}
        v_lshlrev_b32 v{t[1]}, 4, v{t[0]}
        v_add_u32 v{t[1]}, {self.CSB}, v{t[1]}
        v_add_f32 v{st}, v{st}, v{st+2}
        v_add_f32 v{st+1}, v{st+1}, v{st+3}
        v_add_f32 v{st+4}, v{st+4}, v{st+6}
        v_add_f32 v{st+5}, v{st+5}, v{st+7}
        v_add_f32 v{st}, v{st}, v{st+4}
        v_add_f32 v{st+1}, v{st+1}, v{st+5}
        v_mov_b32 v{st+2}, v{st}
        v_mov_b32 v{st+3}, v{st+1}
        v_bfe_u32 v{t[2]}, v{vl}, 4, 1
        v_mul_u32_u24 v{t[2]}, 55296, v{t[2]}
        v_permlane32_swap_b32 v{st+2}, v{st}
        v_permlane32_swap_b32 v{st+3}, v{st+1}
        v_add_f32 v{st}, v{st}, v{st+2}
        v_add_f32 v{st+1}, v{st+1}, v{st+3}
        v_mul_f32 v{par}, {f2u(-1.0/640):#x}, v{st}
        v_mul_f32 v{st+1}, {f2u(1.0/640):#x}, v{st+1}
        v_fma_f32 v{st+1}, -v{par}, v{par}, v{st+1}
        v_max_f32 v{st+1}, 0, v{st+1}
        v_add_f32 v{par+4}, {f2u(1e-5):#x}, v{st+1}
        v_rsq_f32 v{par+2}, v{par+4}
        v_mov_b32 v{par+1}, v{par}
        v_mov_b32 v{par+5}, v{par+4}
        v_mul_f32 v{par+2}, {f2u(-math.log2(math.e)):#x}, v{par+2}
        v_lshl_add_u32 v{t[2]}, v{t[0]}, 8, v{t[2]}
        v_mov_b32 v{par+3}, v{par+2}
        v_and_b32 v{t[3]}, 15, v{vl}
        v_lshl_add_u32 v{t[2]}, v{t[3]}, 4, v{t[2]}
        s_mul_i32 s{self.s_t0}, s{self.s_tb}, {2*55296}
        s_mul_i32 s{self.s_t1}, s{self.s_g}, 3584
        s_add_u32 s{self.s_t0}, s{self.s_t0}, s{self.s_t1}
        s_add_u32 s{self.s_t0}, s{self.s_t0}, {ACT}""".split("\n")]
    def epilogue(self, L_fin):
        k = self.c.k; c = self.c; t = self.vt; st = self.st; par = self.par; vl = c.vl
        cs = [self.fa[0], self.fa[0] + 16, self.fa[0] + 32]; tmp = self.fb
        def rdcs(T):
            for j in range(4): k(f"ds_read_b128 {vr(cs[T%3]+4*j,4)}, v{t[1]} offset:{T*128+32*j}")
        rdcs(0); rdcs(1)
        for T in range(7):
            A = self.acc[T]; cc = cs[T % 3]
            if T + 2 < 7: rdcs(T + 2)
            k(f"s_waitcnt lgkmcnt({4*min(2, 6-T)})")
            for p in range(8): k(f"v_pk_fma_f32 {vr(A+2*p,2)}, {vr(cc+2*p,2)}, {vr(par,2)}, {vr(A+2*p,2)}")
            for p in range(4): k(f"v_pk_mul_f32 {vr(tmp+2*p,2)}, {vr(A+2*p,2)}, {vr(par+2,2)}")
            for i in range(8): k(f"v_exp_f32 v{tmp+i}, v{tmp+i}")
            for p in range(4): k(f"v_pk_mul_f32 {vr(A+2*p,2)}, {vr(A+2*p,2)}, {vr(A+8+2*p,2)}")
            for p in range(4): k(f"v_pk_fma_f32 {vr(tmp+2*p,2)}, {vr(tmp+2*p,2)}, {vr(par+4,2)}, {vr(par+4,2)}")
            for i in range(8): k(f"v_rcp_f32 v{tmp+i}, v{tmp+i}")
            for p in range(4): k(f"v_pk_mul_f32 {vr(A+2*p,2)}, {vr(A+2*p,2)}, {vr(tmp+2*p,2)}")
            for p in range(4): k(f"v_cvt_pk_bf16_f32 v{A+8+p}, v{A+2*p}, v{A+2*p+1}")
            k(f"buffer_store_dwordx4 {vr(A+8,4)}, v{t[2]}, {sr(c.sO,4)}, s{self.s_t0} offen offset:{T*512}{c.sc}")
            if T == 2: k(f"s_cmp_eq_u32 s{self.s_g}, 15\ns_cbranch_scc1 {L_fin}")
        k(f"{L_fin}:")

def gen(which, opt):
    if which in '35':
        o = opt('K' + which)
        c = Ctx("k3_oproj_kernel" if which == '3' else "k5_down_kernel", False); k = c.k
        P = P35(c, int(which), D=o.get('D', 12 if which == '5' else 20)); P.ahead = o.get('ahead', 2)
        c.entry(int(which) - 1, P.ptr_load())
        P.ids(); c.ws_srd()
        L = k.label("ld"); lw(c, L)
        P.setup(); P.main(); k.stamp(4); k.stamp(5); P.epilogue(); c.finish()
        k(f"{L}:"); P.ld_setup()
        for ch in range(2): P.ld_chunk(ch)
        P.ld_main(2); k("s_endpgm")
        return k, (256, 512, P.lds)
    if which == '4':
        o = opt('K4')
        c = Ctx("k4_gateup_kernel", False); k = c.k
        P = P4(c, D=o.get('D', 12)); P.ahead = o.get('ahead', 2)
        c.entry(3); P.ids(); c.ws_srd()
        L = k.label("ld"); lw(c, L)
        P.setup(); P.main(); k.stamp(4); k.stamp(5); P.epilogue(k.label("fin")); c.finish()
        k(f"{L}:"); P.ld_setup()
        for ch in range(2): P.ld_chunk(ch)
        P.ld_cs()
        P.ld_main(2, 1); k("s_endpgm")
        return k, (256, 512, P.lds)
    import mega
    return mega.gen(opt)
```

```python
from ph2 import *
NAME = "sequential_preLN__softmax_full_mha__swiglu_ffn__prompt_kernel"

def gen(opt):
    o = opt('M')
    c = Ctx(NAME, True); k = c.k
    sO = c.sO; sWS = c.sWS; s_w = c.s_w; s_wl = c.s_wl; vl = c.vl; vl16 = c.vl16; sc = c.sc
    rot = o.get('rot', True); c.pdepth = o.get('pd', 1)
    sD = k.s(4)
    s_po = k.s(); s_cs = k.s(); vPA = k.v(); vPS = k.v(); sA = k.s(4); sB = k.s(4); sR = [k.s() for _ in range(5)]
    c.s0 = k.snext; c.v0 = k.vnext
    SLOT = 32768; NS = 4
    SL = 12288; VB = 3 * SL; PREP = 6 * SL; EXB = PREP
    sP = k.s(4); sX = sA; sW = sB; sQ = k.s(8); sWD = k.s(2); sPC = k.s(2)
    s_tb = k.s(); s_cg = k.s(); s_t0 = k.s(); s_t2 = k.s()
    s_ow, s_m0x, s_slot, s_delta, s_t1 = sR
    s_ox = k.s(); s_cnt = k.s(); s_rs = k.s(); s_msk = k.s()
    vt = [k.v() for _ in range(6)]
    vXA = [k.v() for _ in range(4)]; vWA = [k.v(), k.v()]
    vX = [k.v() for _ in range(4)]; vW = [k.v() for _ in range(4)]
    acc = [[k.v(16, 4) for _ in range(2)] for _ in range(2)]
    fx = [[k.v(4, 4) for _ in range(2)] for _ in range(2)]
    fw = [[k.v(4, 4) for _ in range(2)] for _ in range(2)]
    acs = k.v(16, 4); ones = k.v(4, 4); vpf = k.v(16, 4)
    XCH = NS * SLOT; NM, RS, CS = 0, 512, 1024
    L_spare = k.label("spare"); L_v = k.label("vpath"); L_J0 = k.label("J0"); L_comp = k.label("comp")
    k.kidx = 1; k.stamp_real(0); k.stamp(1)
    k(f"""s_load_dwordx4 {sr(sP,4)}, s[0:1], {KA_X}
    s_load_dwordx4 {sr(sD,4)}, s[0:1], {KA_DBG}
    s_cmp_ge_u32 s2, 256
    s_cbranch_scc1 {c.L_end}
    v_lshrrev_b32 v{vt[0]}, 6, v0
    v_and_b32 v{vl}, 63, v0
    v_readfirstlane_b32 s{s_w}, v{vt[0]}
    s_and_b32 s{s_t0}, s2, 3
    s_lshl_b32 s{s_t0}, s{s_t0}, 2
    s_bfe_u32 s{s_t1}, s2, 0x20003
    s_add_u32 s{s_tb}, s{s_t0}, s{s_t1}
    s_bfe_u32 s{s_t0}, s2, 0x10002
    s_lshr_b32 s{s_t1}, s2, 5""")
    if o.get('sfirst', True): k(f"s_sub_u32 s{s_t1}, s{s_t1}, s{s_t0}\ns_and_b32 s{s_t1}, s{s_t1}, 7")
    k(f"""s_lshl_b32 s{s_t0}, s{s_t0}, 3
    s_add_u32 s{s_cg}, s{s_t0}, s{s_t1}
    s_and_b32 s{s_wl}, s{s_w}, 3
    s_cmp_eq_u32 s{s_cg}, 15
    s_cbranch_scc1 {L_spare}
    s_cmp_ge_u32 s{s_w}, 4
    s_cbranch_scc1 {L_comp}
    v_lshrrev_b32 v{vt[0]}, 3, v{vl}
    v_lshl_add_u32 v{vt[0]}, s{s_w}, 5, v{vt[0]}
    v_mul_u32_u24 v{vt[0]}, 1280, v{vt[0]}
    v_lshrrev_b32 v{vt[1]}, 4, v{vl}
    v_and_b32 v{vt[2]}, 7, v{vl}
    v_xor_b32 v{vt[2]}, v{vt[2]}, v{vt[1]}
    v_lshl_add_u32 v{vX[0]}, v{vt[2]}, 4, v{vt[0]}
    v_xor_b32 v{vX[1]}, 64, v{vX[0]}
    v_add_u32 v{vX[2]}, {2*(8*1280-1024)}, v{vX[0]}
    v_add_u32 v{vX[1]}, {8*1280-1024}, v{vX[1]}
    v_add_u32 v{vX[3]}, {2*(8*1280-1024)}, v{vX[1]}
    v_lshl_add_u32 v{vt[0]}, s{s_w}, 4, v{vt[1]}
    v_mul_u32_u24 v{vt[0]}, 3840, v{vt[0]}
    v_and_b32 v{vt[2]}, 15, v{vl}
    v_lshlrev_b32 v{vt[3]}, 2, v{vt[1]}
    v_xor_b32 v{vt[2]}, v{vt[2]}, v{vt[3]}
    v_lshl_add_u32 v{vW[0]}, v{vt[2]}, 4, v{vt[0]}
    v_add_u32 v{vW[1]}, {4*3840-1024}, v{vW[0]}
    v_add_u32 v{vW[2]}, {2*(4*3840-1024)}, v{vW[0]}
    v_add_u32 v{vW[3]}, {3*(4*3840-1024)}, v{vW[0]}
    s_mul_i32 s{s_t0}, s{s_tb}, {128*1280}
    s_lshl_b32 s{s_t1}, s{s_cg}, 8
    s_lshl_b32 s{s_m0x}, s{s_w}, 12
    s_mov_b32 s{sX+2}, {128*1280}
    s_mov_b32 s{sX+3}, 0x20000
    s_sub_u32 s{sW+2}, {640*3840}, s{s_t1}
    s_mov_b32 s{sW+3}, 0x20000""")
    if rot: k(f"s_and_b32 s{s_t2}, s2, 7\ns_lshl_b32 s{s_ox}, s{s_t2}, 7\ns_mul_i32 s{s_ow}, s{s_t2}, {64*3840}")
    else: k(f"s_mov_b32 s{s_ox}, 0\ns_mov_b32 s{s_ow}, 0")
    k(f"""s_waitcnt lgkmcnt(0)
    s_add_u32 s{sX}, s{sP}, s{s_t0}
    s_addc_u32 s{sX+1}, s{sP+1}, 0
    s_add_u32 s{sW}, s{sP+2}, s{s_t1}
    s_addc_u32 s{sW+1}, s{sP+3}, 0""")
    def dma_chunk(slot_const=None):
        if slot_const is not None: k(f"s_add_u32 m0, s{s_m0x}, {slot_const*SLOT}")
        else: k(f"s_add_u32 m0, s{s_m0x}, s{s_rs}")
        k(f"s_add_u32 s{s_t0}, s{s_ox}, 128")
        for i in range(4):
            k(f"buffer_load_dwordx4 v{vX[i]}, {sr(sX,4)}, s{s_ox} offen offset:{i*1024} lds")
        k(f"s_add_u32 m0, m0, 16384\ns_add_u32 s{s_t1}, s{s_ow}, {64*3840}")
        for i in range(4):
            k(f"buffer_load_dwordx4 v{vW[i]}, {sr(sW,4)}, s{s_ow} offen offset:{i*1024} lds")
        k(f"s_cmp_eq_u32 s{s_t0}, 1280\ns_cselect_b32 s{s_ox}, 0, s{s_t0}\ns_cselect_b32 s{s_ow}, 0, s{s_t1}")
    def common_setup(ptrs=True):
        k(f"""s_mov_b64 {sr(sWS,2)}, {sr(sD+2,2)}
        s_movk_i32 s{sD+2}, 256
        s_mov_b32 s{sD+3}, 0x20000
        v_lshlrev_b32 v{vl16}, 4, v{vl}""")
        srd(k, sO, sWS, sWS + 1, WSEND)
        if ptrs: k(f"s_load_dwordx8 {sr(sQ,8)}, s[0:1], {KA_WO}\ns_load_dwordx2 {sr(sWD,2)}, s[0:1], {KA_WD}")
    def xaddr():
        k(f"""v_and_b32 v{vt[0]}, 31, v{vl}
        v_lshrrev_b32 v{vt[1]}, 5, v{vl}
        v_bfe_u32 v{vt[2]}, v{vl}, 1, 3
        v_xor_b32 v{vt[2]}, v{vt[2]}, v{vt[1]}
        v_lshlrev_b32 v{vt[2]}, 4, v{vt[2]}
        v_lshl_add_u32 v{vt[2]}, v{vt[0]}, 7, v{vt[2]}""")
    def advance(regs):
        k(f"s_cmp_eq_u32 s{s_slot}, {(NS-1)*SLOT}\ns_mov_b32 s{s_delta}, {SLOT}")
        k(f"s_cselect_b32 s{s_delta}, {(-(NS-1)*SLOT) & 0xffffffff}, s{s_delta}")
        k(f"s_add_u32 s{s_slot}, s{s_slot}, s{s_delta}")
        return [f"v_add_u32 v{r}, s{s_delta}, v{r}" for r in regs]
    def prep_decode(loads):
        pid, cb, st = s_t0, s_t2, s_ox
        R0, A_, B_, C_, u = sR
        Ld = k.label("pd"); Lg = k.label("pg")
        k(f"""s_lshl_b32 s{pid}, s2, 2
        s_add_u32 s{pid}, s{pid}, s{s_wl}
        s_mov_b32 s{B_}, 8
        s_mov_b32 s{C_}, 4
        v_bfe_u32 v{vt[2]}, v{vl}, 4, 1
        v_lshrrev_b32 v{vt[1]}, 5, v{vl}
        s_waitcnt lgkmcnt(0)
        s_cmp_ge_u32 s{pid}, 560
        s_cbranch_scc1 {Ld}
        s_mul_i32 s{u}, s{pid}, 4682
        s_lshr_b32 s{u}, s{u}, 16
        s_mul_i32 s{cb}, s{u}, 14
        s_sub_u32 s{cb}, s{pid}, s{cb}
        s_mul_i32 s{s_po}, s{u}, {112*1024}
        s_add_u32 s{s_po}, s{s_po}, {WGUP}
        s_mov_b32 s{s_cs}, {CSG}
        v_lshlrev_b32 v{vt[2]}, 11, v{vt[2]}
        v_lshl_add_u32 v{vt[3]}, v{vt[1]}, 9, v{vt[2]}""")
        if loads:
            k(f"""s_lshl_b32 s{R0}, s{u}, 4
            s_mov_b32 s{A_}, 0
            s_movk_i32 s{st}, 3456
            s_mov_b64 {sr(sA,2)}, {sr(sQ+4,2)}
            s_mov_b64 {sr(sB,2)}, {sr(sQ+6,2)}
            s_mov_b32 s{sA+2}, {640*3456}""")
        k(f"""s_branch {Lg}
        {Ld}:
        s_min_u32 s{pid}, s{pid}, 929
        s_cmp_lt_u32 s{pid}, 830
        s_movk_i32 s{cb}, 830
        s_cselect_b32 s{cb}, 560, s{cb}
        s_mov_b32 s{s_po}, {WOP}
        s_cselect_b32 s{s_po}, {WDP}, s{s_po}""")
        if loads:
            k(f"""s_cselect_b64 {sr(sA,2)}, {sr(sWD,2)}, {sr(sQ,2)}
            s_cselect_b32 s{A_}, 16, 20
            s_cselect_b32 s{R0}, 32, 40
            s_mov_b32 s{sA+2}, {640*1280}
            s_cselect_b32 s{sA+2}, {1728*1280}, s{sA+2}""")
        k(f"""s_sub_u32 s{cb}, s{pid}, s{cb}
        s_mul_i32 s{u}, s{cb}, 13108
        s_lshr_b32 s{u}, s{u}, 16
        s_mul_i32 s{st}, s{u}, 5
        s_sub_u32 s{cb}, s{cb}, s{st}
        s_mul_i32 s{st}, s{u}, {40*1024}
        s_add_u32 s{s_po}, s{s_po}, s{st}
        s_mov_b32 s{s_cs}, {WSEND}
        v_lshlrev_b32 v{vt[2]}, 9, v{vt[2]}
        v_lshl_add_u32 v{vt[3]}, v{vt[1]}, 11, v{vt[2]}""")
        if loads:
            k(f"""s_mul_i32 s{R0}, s{R0}, s{u}
            s_mul_i32 s{st}, s{u}, 160
            s_sub_u32 s{st}, s{st}, {16*160-16}
            s_cmp_ge_u32 s{pid}, 910
            s_cselect_b32 s{R0}, s{st}, s{R0}
            s_cselect_b32 s{A_}, 80, s{A_}
            s_cselect_b32 s{B_}, 20, 8
            s_cselect_b32 s{C_}, 40, 4
            s_movk_i32 s{st}, 1280
            s_mov_b64 {sr(sB,2)}, {sr(sA,2)}""")
        k(f"""{Lg}:
        s_lshl_b32 s{cb}, s{cb}, 1
        s_lshr_b32 s{pid}, s{s_w}, 2
        s_add_u32 s{pid}, s{pid}, s{cb}
        s_lshl_b32 s{u}, s{pid}, 12
        s_add_u32 s{s_po}, s{s_po}, s{u}
        s_lshl_b32 s{u}, s{pid}, 9
        s_add_u32 s{s_cs}, s{s_cs}, s{u}
        v_bfe_u32 v{vt[2]}, v{vl}, 2, 2
        v_lshl_add_u32 v{vt[3]}, v{vt[2]}, 7, v{vt[3]}
        v_and_b32 v{vt[2]}, 3, v{vl}
        v_lshl_add_u32 v{vt[3]}, v{vt[2]}, 3, v{vt[3]}
        s_lshl_b32 s{u}, s{s_w}, 12
        s_add_u32 s{u}, s{u}, {PREP}
        v_add_u32 v{vPA}, s{u}, v{vt[3]}""")
        if loads:
            k(f"""s_mov_b32 s{sB+2}, s{sA+2}
            s_mov_b32 s{sA+3}, 0x20000
            s_mov_b32 s{sB+3}, 0x20000
            v_mul_u32_u24 v{vt[2]}, s{C_}, v{vt[1]}
            v_bfe_u32 v{vt[3]}, v{vl}, 3, 2
            v_add_u32 v{vt[2]}, v{vt[2]}, v{vt[3]}
            v_mul_u32_u24 v{vt[2]}, s{st}, v{vt[2]}
            v_and_b32 v{vt[3]}, 7, v{vl}
            v_lshl_add_u32 v{vPS}, v{vt[3]}, 4, v{vt[2]}
            s_mul_i32 s{R0}, s{R0}, s{st}
            s_lshl_b32 s{cb}, s{pid}, 7
            s_add_u32 s{R0}, s{R0}, s{cb}
            s_mul_i32 s{A_}, s{A_}, s{st}
            s_mul_i32 s{B_}, s{B_}, s{st}
            s_add_u32 s{A_}, s{A_}, s{R0}
            s_add_u32 s{C_}, s{A_}, s{B_}
            s_add_u32 s{B_}, s{B_}, s{R0}""")
    TD = o.get('TD', 0)
    sTX, sTW = sQ, sQ + 4; s_tx, s_tw = sWD, sWD + 1; vTX, vTW = vXA[0], vXA[1]
    def touch():
        k(f"""s_mov_b64 exec, 0xf
        buffer_load_dword v{vXA[2]}, v{vTX}, {sr(sTX,4)}, s{s_tx} offen
        s_mov_b64 exec, 0xff
        buffer_load_dword v{vXA[3]}, v{vTW}, {sr(sTW,4)}, s{s_tw} offen
        s_mov_b64 exec, -1
        s_add_u32 s{s_tx}, s{s_tx}, 128
        s_add_u32 s{s_tw}, s{s_tw}, {64*3840}
        s_cmp_eq_u32 s{s_tx}, 1280
        s_cselect_b32 s{s_tx}, 0, s{s_tx}
        s_cselect_b32 s{s_tw}, 0, s{s_tw}""")
    dma_chunk(0); dma_chunk(1)
    if TD:
        k(f"""s_mov_b64 {sr(sTX,2)}, {sr(sP,2)}
        s_mov_b32 s{sTX+2}, {2048*1280}
        s_mov_b32 s{sTX+3}, 0x20000
        s_mov_b64 {sr(sTW,2)}, {sr(sP+2,2)}
        s_mov_b32 s{sTW+2}, {640*3840}
        s_mov_b32 s{sTW+3}, 0x20000
        s_lshr_b32 s{s_t0}, s2, 3
        s_lshl_b32 s{s_t0}, s{s_t0}, 2
        s_add_u32 s{s_t0}, s{s_t0}, s{s_w}
        s_lshl_b32 s{s_t1}, s{s_t0}, 2
        s_and_b32 s{s_t2}, s2, 3
        s_lshl_b32 s{s_t2}, s{s_t2}, 9
        s_add_u32 s{s_t1}, s{s_t1}, s{s_t2}
        v_add_u32 v{vTX}, s{s_t1}, v{vl}
        v_mul_u32_u24 v{vTX}, 1280, v{vTX}
        s_lshr_b32 s{s_t1}, s{s_t0}, 1
        s_mul_i32 s{s_t1}, s{s_t1}, 3840
        s_and_b32 s{s_t0}, s{s_t0}, 1
        s_lshl_b32 s{s_t0}, s{s_t0}, 10
        s_add_u32 s{s_t1}, s{s_t1}, s{s_t0}
        s_bfe_u32 s{s_t0}, s2, 0x10002
        s_lshl_b32 s{s_t0}, s{s_t0}, 11
        s_add_u32 s{s_t1}, s{s_t1}, s{s_t0}
        v_lshl_add_u32 v{vTW}, v{vl}, 7, s{s_t1}
        s_mov_b32 s{s_tx}, s{s_ox}
        s_mov_b32 s{s_tw}, s{s_ow}""")
        for _ in range(TD + 1): touch()
    common_setup(ptrs=not TD)
    k(f"""s_mov_b32 s{s_rs}, {3*SLOT}
    s_waitcnt vmcnt({8 + (2*TD+2 if TD else 0)})
    s_barrier""")
    k.stamp(2)
    dma_chunk(2)
    L = k.label("hloop"); Lz = k.label("hz"); Lzx = k.label("hzx"); Lnz = k.label("hnz")
    nt = 7 - TD if TD else 0
    def hit(n, tch, vm):
        if n <= 0: return
        L = k.label("hloop")
        k(f"s_mov_b32 s{s_cnt}, {n}\n{L}:\ns_waitcnt vmcnt({vm})\ns_barrier")
        dma_chunk()
        if tch: touch()
        k(f"""s_add_u32 s{s_rs}, s{s_rs}, {SLOT}
        s_and_b32 s{s_rs}, s{s_rs}, {NS*SLOT-1}
        s_sub_u32 s{s_cnt}, s{s_cnt}, 1
        s_cmp_lg_u32 s{s_cnt}, 0
        s_cbranch_scc1 {L}""")
    hit(nt, True, 8 if not TD else 10); hit(7 - nt, False, 8)
    if TD: k(f"s_load_dwordx8 {sr(sQ,8)}, s[0:1], {KA_WO}\ns_load_dwordx2 {sr(sWD,2)}, s[0:1], {KA_WD}")
    k(f"""v_and_b32 v{vt[3]}, 15, v{vl}
    v_lshlrev_b32 v{vt[3]}, 4, v{vt[3]}
    buffer_load_dword v{vt[4]}, v{vt[3]}, {sr(sD,4)}, 0 offen sc1
    s_waitcnt vmcnt(9)
    s_barrier
    s_waitcnt vmcnt(1)
    s_barrier
    s_cmp_lg_u32 s{s_w}, 0
    s_cbranch_scc1 {Lnz}
    s_mov_b32 s{s_t1}, 0
    {Lz}:
    s_waitcnt vmcnt(0)
    v_cmp_ne_u32 vcc, 0, v{vt[4]}
    s_add_u32 s{s_t1}, s{s_t1}, 1
    s_cmp_eq_u64 vcc, -1
    s_cbranch_scc1 {Lzx}
    s_cmp_gt_u32 s{s_t1}, 0x40000
    s_cbranch_scc1 {Lzx}
    buffer_load_dword v{vt[4]}, v{vt[3]}, {sr(sD,4)}, 0 offen sc1
    s_branch {Lz}
    {Lzx}:
    s_mov_b32 m0, {XCH}
    s_lshl_b32 s{s_t0}, s{s_tb}, 10
    s_add_u32 s{s_t0}, s{s_t0}, {LN1}
    buffer_load_dwordx4 v{vl16}, {sr(sO,4)}, s{s_t0} offen sc1 lds
    {Lnz}:
    s_waitcnt vmcnt(0)""")
    k.stamp(3)
    k(f"s_barrier\ns_branch {L_J0}")
    k(f"""{L_comp}:
    s_getpc_b64 {sr(sPC,2)}
    L_pf_here:
    s_lshr_b32 s{s_t0}, s2, 3
    s_add_u32 s{s_t0}, s{s_t0}, {28 if o.get('sfirst', True) else 0}
    s_and_b32 s{s_t0}, s{s_t0}, 31
    s_lshl_b32 s{s_t0}, s{s_t0}, 2
    s_add_u32 s{s_t0}, s{s_t0}, s{s_wl}
    s_lshl_b32 s{s_t0}, s{s_t0}, 10
    s_sub_u32 s{sPC}, s{sPC}, L_pf_here - {NAME}
    s_subb_u32 s{sPC+1}, s{sPC+1}, 0
    s_cmp_gt_u32 s{s_t0}, L_code_end - {NAME} - 1024
    s_cbranch_scc1 L_pf_skip
    v_lshl_add_u32 v{vt[0]}, v{vl}, 4, s{s_t0}
    global_load_dwordx4 {vr(vpf,4)}, v{vt[0]}, {sr(sPC,2)}
    L_pf_skip:
    s_waitcnt lgkmcnt(0)""")
    if o.get('touch'):
        k(f"""s_mov_b64 {sr(sX,2)}, {sr(sP,2)}
        s_mov_b32 s{sX+2}, {2048*1280}
        s_mov_b32 s{sX+3}, 0x20000
        s_mov_b64 {sr(sW,2)}, {sr(sP+2,2)}
        s_mov_b32 s{sW+2}, {640*3840}
        s_mov_b32 s{sW+3}, 0x20000
        s_lshr_b32 s{s_t0}, s2, 3
        s_lshl_b32 s{s_t0}, s{s_t0}, 2
        s_add_u32 s{s_t0}, s{s_t0}, s{s_wl}
        s_mul_i32 s{s_t1}, s{s_t0}, 5
        v_lshrrev_b32 v{vt[0]}, 4, v{vl}
        v_add_u32 v{vt[0]}, s{s_t1}, v{vt[0]}
        v_mul_u32_u24 v{vt[0]}, 3840, v{vt[0]}
        v_and_b32 v{vt[1]}, 15, v{vl}
        v_lshl_add_u32 v{vt[0]}, v{vt[1]}, 7, v{vt[0]}
        s_bfe_u32 s{s_t1}, s2, 0x10002
        s_lshl_b32 s{s_t1}, s{s_t1}, 11
        s_add_u32 s{s_t2}, s{s_t1}, {4*3840}
        v_lshlrev_b32 v{vt[1]}, 7, v{vl}
        s_mul_i32 s{s_t0}, s{s_t0}, {40*128}
        s_and_b32 s{s_ox}, s2, 3
        s_mul_i32 s{s_ox}, s{s_ox}, {512*1280}
        s_add_u32 s{s_t0}, s{s_t0}, s{s_ox}
        buffer_load_dword v{vpf+4}, v{vt[0]}, {sr(sW,4)}, s{s_t1} offen
        s_mov_b32 exec_hi, 0xff
        buffer_load_dword v{vpf+5}, v{vt[1]}, {sr(sX,4)}, s{s_t0} offen
        s_mov_b64 exec, 0xffff
        buffer_load_dword v{vpf+6}, v{vt[0]}, {sr(sW,4)}, s{s_t2} offen
        s_mov_b64 exec, -1""")
    common_setup()
    xaddr()
    k(f"""s_lshr_b32 s{s_t0}, s{s_wl}, 1
    s_and_b32 s{s_t1}, s{s_wl}, 1
    s_lshl_b32 s{s_t2}, s{s_t0}, 13
    v_add_u32 v{vXA[0]}, s{s_t2}, v{vt[2]}""")
    for s in range(1, 4): k(f"v_xor_b32 v{vXA[s]}, {32*s}, v{vXA[0]}")
    k(f"""v_bfe_u32 v{vt[2]}, v{vl}, 2, 2
    v_lshl_add_u32 v{vt[3]}, v{vt[1]}, 3, v{vt[2]}
    v_lshlrev_b32 v{vt[3]}, 8, v{vt[3]}
    s_lshl_b32 s{s_t2}, s{s_t1}, 1
    s_add_u32 s{s_t2}, s{s_t2}, s{s_t0}
    v_xor_b32 v{vt[2]}, s{s_t2}, v{vt[2]}
    v_lshl_add_u32 v{vt[3]}, v{vt[2]}, 6, v{vt[3]}
    v_bfe_u32 v{vt[2]}, v{vl}, 4, 1
    v_lshl_add_u32 v{vt[3]}, v{vt[2]}, 5, v{vt[3]}
    v_and_b32 v{vt[2]}, 3, v{vl}
    v_lshl_add_u32 v{vt[3]}, v{vt[2]}, 3, v{vt[3]}
    v_add_u32 v{vWA[0]}, 16384, v{vt[3]}
    v_xor_b32 v{vWA[1]}, 64, v{vWA[0]}
    s_mov_b32 s{s_slot}, 0""")
    for i in range(4): k(f"v_mov_b32 v{ones+i}, 0x3f803f80")
    def reads(buf, s):
        out = []
        for mt in range(2):
            out.append(f"ds_read_b128 {vr(fx[buf][mt],4)}, v{vXA[s]} offset:{mt*4096}")
        for nt in range(2):
            for rd in range(2):
                out.append(f"ds_read_b64_tr_b16 {vr(fw[buf][nt]+2*rd,2)}, v{vWA[nt]} offset:{(16*s+4*rd)*256}")
        return [out[2], out[3], out[0], out[1], out[4], out[5]]
    def mfmas(buf, vpath, first):
        m = []
        for nt in range(2):
            for mt in range(2):
                a, b = (fx[buf][mt], fw[buf][nt]) if vpath else (fw[buf][nt], fx[buf][mt])
                m.append(f"{M16} {vr(acc[nt][mt],16)}, {vr(a,4)}, {vr(b,4)}, {'0' if first else vr(acc[nt][mt],16)}")
        m.append(f"{M16} {vr(acs,16)}, {vr(ones,4)}, {vr(fw[buf][0],4)}, {'0' if first else vr(acs,16)}")
        return m
    def chunk(vpath, last, first=False):
        for s in range(3):
            k("s_waitcnt lgkmcnt(0)")
            m = mfmas(s & 1, vpath, first and s == 0); rd = reads((s + 1) & 1, s + 1)
            ad = []
            if not last and s == 0: ad = [None]
            for i in range(5):
                k(m[i])
                for x in rd[2*i:2*i+2]: k(x)
                if i == 3 and not last:
                    if s == 0: adv[:] = advance([vXA[0], vXA[1], vXA[2], vXA[3], vWA[0], vWA[1]])
                    k(adv[s])
        k("s_waitcnt lgkmcnt(0)")
        m = mfmas(1, vpath, False)
        if last:
            for x in m: k(x)
            return
        k(m[0])
        for x in adv[3:]: k(x)
        k(m[1])
        k("s_barrier")
        rd = reads(0, 0)
        for x in rd[:3]: k(x)
        k(m[2])
        for x in rd[3:]: k(x)
        k(m[3]); k(m[4])
    adv = []
    def mainloop(vpath):
        k("s_barrier")
        k.stamp(2)
        for x in reads(0, 0): k(x)
        chunk(vpath, False, first=True)
        L = k.label("loop")
        if o.get('fine') == 1:
            for j in range(8):
                k.stamp(5 + j); chunk(vpath, False)
            k.stamp(13)
        else:
            k(f"s_mov_b32 s{s_cnt}, 8\n{L}:")
            chunk(vpath, False)
            k(f"s_sub_u32 s{s_cnt}, s{s_cnt}, 1\ns_cmp_lg_u32 s{s_cnt}, 0\ns_cbranch_scc1 {L}")
        chunk(vpath, True)
        k.stamp(3)
    def epilogue(vpath):
        t = vt
        la = fx[0][0]; rg = k.v(32, 4); hoff = t[3]
        k(f"""v_and_b32 v{t[0]}, 31, v{vl}
        s_lshl_b32 s{s_t2}, s{s_t2}, 7
        s_add_u32 s{s_ox}, s{s_t2}, {XCH}
        v_lshl_add_u32 v{t[2]}, v{t[0]}, 2, s{s_ox}
        s_lshl_b32 s{s_ow}, s{s_t0}, 8
        s_add_u32 s{s_ow}, s{s_ow}, {XCH}
        v_lshl_add_u32 v{t[1]}, v{t[0]}, 2, s{s_ow}
        v_lshrrev_b32 v{hoff}, 5, v{vl}
        v_lshlrev_b32 v{hoff}, 4, v{hoff}
        s_cmp_lt_u32 s{s_cg}, 5
        s_cselect_b32 s{s_cnt}, {f2u(QSCALE):#x}, 1.0
        ds_write_b32 v{t[2]}, v{acs} offset:{CS}
        s_waitcnt lgkmcnt(0)
        s_barrier""")
        if not vpath:
            k(f"""ds_read_b32 v{la+0}, v{t[1]} offset:{NM}
            ds_read_b32 v{la+2}, v{t[1]} offset:{RS}
            ds_read_b32 v{la+4}, v{t[1]} offset:{NM+128}
            ds_read_b32 v{la+6}, v{t[1]} offset:{RS+128}
            v_add_u32 v{t[5]}, s{s_ox}, v{hoff}
            v_xor_b32 v{t[4]}, 128, v{t[5]}""")
            for nt in range(2):
                for j in range(4):
                    k(f"ds_read_b128 {vr(rg+16*nt+4*j,4)}, v{t[5] if nt==0 else t[4]} offset:{CS+32*j}")
            k(f"""v_lshlrev_b32 v{t[0]}, 4, v{t[0]}
            v_lshl_add_u32 v{t[0]}, v{hoff}, 11, v{t[0]}
            s_lshl_b32 s{s_ox}, s{s_cg}, 19
            s_lshl_b32 s{s_ow}, s{s_t2}, 10
            s_add_u32 s{s_ox}, s{s_ox}, s{s_ow}
            s_lshl_b32 s{s_ow}, s{s_tb}, 11
            s_add_u32 s{s_ox}, s{s_ox}, s{s_ow}
            s_lshl_b32 s{s_ow}, s{s_t0}, 10
            s_add_u32 s{s_ox}, s{s_ox}, s{s_ow}
            s_waitcnt lgkmcnt(4)
            v_mov_b32 v{la+1}, v{la+0}
            v_mul_f32 v{la+3}, s{s_cnt}, v{la+2}
            v_mul_f32 v{la+2}, s{s_cnt}, v{la+2}
            v_mov_b32 v{la+5}, v{la+4}
            v_mul_f32 v{la+7}, s{s_cnt}, v{la+6}
            v_mul_f32 v{la+6}, s{s_cnt}, v{la+6}""")
            for nt in range(2):
                if nt == 1: k("s_waitcnt lgkmcnt(0)")
                for mt in range(2):
                    A = acc[nt][mt]
                    for p in range(8):
                        k(f"v_pk_fma_f32 {vr(A+2*p,2)}, {vr(rg+16*nt+2*p,2)}, {vr(la+4*mt,2)}, {vr(A+2*p,2)}")
                    for p in range(8):
                        k(f"v_pk_mul_f32 {vr(A+2*p,2)}, {vr(A+2*p,2)}, {vr(la+4*mt+2,2)}")
                    for p in range(8):
                        k(f"v_cvt_pk_bf16_f32 v{A+p}, v{A+2*p}, v{A+2*p+1}")
                    k(f"s_xor_b32 s{s_ow}, s{s_ox}, {(nt*4*32768) | (mt*512)}")
                    k(f"s_add_u32 s{s_rs}, s{s_ow}, {2*32768}")
                    for jp in range(2):
                        k(f"v_permlane32_swap_b32 v{A+4*jp}, v{A+4*jp+2}\nv_permlane32_swap_b32 v{A+4*jp+1}, v{A+4*jp+3}")
                    k(f"buffer_store_dwordx4 {vr(A,4)}, v{t[0]}, {sr(sO,4)}, s{s_ow} offen{sc}")
                    k(f"buffer_store_dwordx4 {vr(A+4,4)}, v{t[0]}, {sr(sO,4)}, s{s_rs} offen{sc}")
        else:
            rg2 = k.v(32, 4)
            k(f"""v_xor_b32 v{t[4]}, 128, v{t[2]}
            ds_read_b32 v{la+2}, v{t[4]} offset:{CS}
            v_add_u32 v{t[5]}, s{s_ow}, v{hoff}""")
            for mt in range(2):
                for j in range(4):
                    k(f"ds_read_b128 {vr(rg+16*mt+4*j,4)}, v{t[5]} offset:{NM+128*mt+32*j}")
                    k(f"ds_read_b128 {vr(rg2+16*mt+4*j,4)}, v{t[5]} offset:{RS+128*mt+32*j}")
            va = [la + 4, la + 5]
            k(f"""s_sub_u32 s{s_ox}, s{s_cg}, 10
            s_lshl_b32 s{s_ox}, s{s_ox}, 7
            s_lshr_b32 s{s_ow}, s{s_t2}, 2
            s_add_u32 s{s_ox}, s{s_ox}, s{s_ow}
            v_add_u32 v{t[0]}, s{s_ox}, v{t[0]}
            v_mul_u32_u24 v{hoff}, 21, v{hoff}""")
            for nt in range(2):
                if nt == 1: k(f"v_xor_b32 v{t[0]}, 32, v{t[0]}")
                k(f"""v_mul_u32_u24 v{t[1]}, 3277, v{t[0]}
                v_lshrrev_b32 v{t[1]}, 16, v{t[1]}
                v_mul_u32_u24 v{t[2]}, {VHEAD - 320}, v{t[1]}
                v_lshl_add_u32 v{t[2]}, v{t[0]}, 4, v{t[2]}
                v_add_u32 v{va[nt]}, v{t[2]}, v{hoff}""")
            k(f"""s_lshl_b32 s{s_ox}, s{s_tb}, 1
            s_add_u32 s{s_ox}, s{s_ox}, s{s_t0}
            s_mul_i32 s{s_ox}, s{s_ox}, 2688
            s_add_u32 s{s_ox}, s{s_ox}, {VIMG}
            v_mov_b32 v{la+0}, v{acs}
            v_mov_b32 v{la+1}, v{acs}
            s_waitcnt lgkmcnt(8)
            v_mov_b32 v{la+3}, v{la+2}""")
            for mt in range(2):
                if mt == 1: k("s_waitcnt lgkmcnt(0)")
                for nt in range(2):
                    A = acc[nt][mt]
                    for p in range(8):
                        k(f"v_pk_fma_f32 {vr(A+2*p,2)}, {vr(rg+16*mt+2*p,2)}, {vr(la+2*nt,2)}, {vr(A+2*p,2)}")
                    for p in range(8):
                        k(f"v_pk_mul_f32 {vr(A+2*p,2)}, {vr(A+2*p,2)}, {vr(rg2+16*mt+2*p,2)}")
                    for p in range(8):
                        k(f"v_cvt_pk_bf16_f32 v{A+p}, v{A+2*p}, v{A+2*p+1}")
                    k(f"buffer_store_dwordx4 {vr(A,4)}, v{va[nt]}, {sr(sO,4)}, s{s_ox} offen offset:{1344*mt}{sc}")
                    k(f"buffer_store_dwordx4 {vr(A+4,4)}, v{va[nt]}, {sr(sO,4)}, s{s_ox} offen offset:{1344*mt+672}{sc}")
    k(f"s_cmp_ge_u32 s{s_cg}, 10\ns_cbranch_scc1 {L_v}")
    vsave = k.vnext
    mainloop(False); epilogue(False); k(f"s_branch {L_J0}")
    k.vnext = vsave
    k(f"{L_v}:")
    mainloop(True); epilogue(True)
    if o.get('fine') == 1:
        k.maxst = 14; k.stamp = lambda *a, **kw: None
    k(f"{L_J0}:\ns_setprio 0")
    k.stamp(4)
    prep_decode(True)
    k(f"""s_lshl_b32 s{c.s_f}, s{s_cg}, 5
    s_add_u32 s{c.s_f}, s{c.s_f}, s{s_tb}
    s_lshl_b32 s{c.s_f}, s{c.s_f}, {FL}
    s_add_u32 s{c.s_f}, s{c.s_f}, {F1}""")
    def spare():
        o4 = acs; xb = acc[0][0]; sm = [fw[0][0], fw[0][0] + 1]; sq = [fw[0][0] + 2, fw[0][0] + 3]
        k(f"""{L_spare}:
        v_lshrrev_b32 v{vt[0]}, 3, v{vl}
        v_lshl_add_u32 v{vt[0]}, s{s_w}, 4, v{vt[0]}
        v_mul_u32_u24 v{vt[0]}, 1280, v{vt[0]}
        v_and_b32 v{vt[2]}, 7, v{vl}
        v_lshl_add_u32 v{vX[0]}, v{vt[2]}, 4, v{vt[0]}
        v_add_u32 v{vX[1]}, {8*1280}, v{vX[0]}
        s_mul_i32 s{s_t0}, s{s_tb}, {128*1280}
        s_mov_b32 s{sX+2}, {128*1280}
        s_mov_b32 s{sX+3}, 0x20000
        s_waitcnt lgkmcnt(0)
        s_add_u32 s{sX}, s{sP}, s{s_t0}
        s_addc_u32 s{sX+1}, s{sP+1}, 0""")
        for g in range(2):
            for i in range(10): k(f"buffer_load_dwordx4 {vr(xb+40*g+4*i,4)}, v{vX[g]}, {sr(sX,4)}, 0 offen offset:{128*i}")
        common_setup()
        srd(k, sW, sWS, sWS + 1, CSG + ZERO_BYTES)
        o4 = xb + 80
        k(f"""s_lshl_b32 s{s_t0}, s{s_tb}, 1
        s_mul_i32 s{s_t0}, s{s_t0}, {VHEAD}
        s_add_u32 s{s_t0}, s{s_t0}, {VIMG + 320}
        v_mul_u32_u24 v{vt[0]}, 336, v0
        v_lshlrev_b32 v{vt[1]}, 4, v0
        s_lshl_b32 s{s_t1}, s{s_tb}, 13
        s_add_u32 s{s_t1}, s{s_t1}, {CSG}
        s_mov_b32 s{s_msk}, 0x3f803f80""")
        for i in range(4): k(f"v_mov_b32 v{o4+i}, 0x3f803f80\nv_mov_b32 v{o4+4+i}, 0")
        nz = (ZERO_BYTES + 131071) // 131072
        for z in range(nz):
            k(f"buffer_store_dwordx4 {vr(o4+4,4)}, v{vt[1]}, {sr(sW,4)}, s{s_t1} offen{sc}\ns_add_u32 s{s_t1}, s{s_t1}, 131072")
        k(f"buffer_store_dwordx4 {vr(o4,4)}, v{vt[0]}, {sr(sO,4)}, s{s_t0} offen{sc}")
        st = o4 + 8
        for i in range(4): k(f"v_mov_b32 v{st+i}, 0")
        for g in range(2):
            for i in range(10):
                k(f"s_waitcnt vmcnt({19 - 10*g - i + nz + 1})")
                for j in range(4):
                    x = xb + 40 * g + 4 * i + j
                    k(f"v_dot2c_f32_bf16 v{st+2*g}, s{s_msk}, v{x}\nv_dot2c_f32_bf16 v{st+2*g+1}, v{x}, v{x}")
        for ctl in ("quad_perm:[1,0,3,2]", "quad_perm:[2,3,0,1]", "row_half_mirror"):
            for i in range(4): k(f"v_add_f32_dpp v{st+i}, v{st+i}, v{st+i} {ctl} row_mask:0xf bank_mask:0xf")
        Ln = k.label("sn")
        k(f"""v_and_b32 v{vt[2]}, 1, v{vl}
        v_cmp_eq_u32 vcc, 1, v{vt[2]}
        v_lshrrev_b32 v{vt[3]}, 3, v{vl}
        v_lshl_add_u32 v{vt[3]}, v{vt[2]}, 3, v{vt[3]}
        v_cndmask_b32 v{st}, v{st}, v{st+2}, vcc
        v_cndmask_b32 v{st+1}, v{st+1}, v{st+3}, vcc
        v_lshlrev_b32 v{vt[3]}, 2, v{vt[3]}
        v_mul_f32 v{st}, {f2u(-1.0/640):#x}, v{st}
        v_mul_f32 v{st+1}, {f2u(1.0/640):#x}, v{st+1}
        v_fma_f32 v{st+1}, -v{st}, v{st}, v{st+1}
        v_max_f32 v{st+1}, 0, v{st+1}
        v_add_f32 v{st+1}, {f2u(1e-5):#x}, v{st+1}
        v_rsq_f32 v{st+1}, v{st+1}
        s_lshl_b32 s{s_t0}, s{s_tb}, 10
        s_lshl_b32 s{s_t1}, s{s_w}, 6
        s_add_u32 s{s_t0}, s{s_t0}, s{s_t1}
        s_add_u32 s{s_t0}, s{s_t0}, {LN1}
        s_mov_b32 exec_lo, 0x03030303
        s_mov_b32 exec_hi, 0x03030303
        buffer_store_dword v{st}, v{vt[3]}, {sr(sO,4)}, s{s_t0} offen{sc}
        buffer_store_dword v{st+1}, v{vt[3]}, {sr(sO,4)}, s{s_t0} offen offset:512{sc}
        s_mov_b64 exec, -1
        s_waitcnt vmcnt(0)
        s_barrier
        s_cmp_lg_u32 s{s_w}, 4
        s_cbranch_scc1 {Ln}
        s_lshl_b32 s{s_t0}, s{s_tb}, 4
        v_mov_b32 v{vt[2]}, 1
        v_mov_b32 v{vt[3]}, 0
        s_mov_b64 exec, 1
        buffer_store_dword v{vt[2]}, v{vt[3]}, {sr(sD,4)}, s{s_t0} offen sc1
        s_mov_b64 exec, -1
        {Ln}:""")
        k.stamp(2); k.stamp(3)
        k(f"s_branch {L_J0}")
    def deferred(fn):
        n = len(k.lines); fn(); out = k.lines[n:]; del k.lines[n:]; return out
    spare_code = deferred(spare)
    c.reset()
    prio = o.get('prio', (18, 6, 3, 1))
    s_h = k.s(); s_pa = k.s(); s_pr = k.s(); s_odd8 = k.s(); s_tok = k.s()
    s_t0 = k.s(); s_t1 = k.s(); s_t2 = k.s(); s_t3 = k.s()
    so = [k.s() for _ in range(3)]; s_d = k.s(); s_mo = k.s(); s_ms = k.s(); s_q1 = k.s(); s_q2 = k.s()
    sG = k.s(2); sE = k.s(2)
    vq = k.v(); vr31 = k.v(); vKA = k.v(); vKR = k.v(); vVA = k.v(); vqr = k.v()
    vt0 = k.v(6, 2); vt = list(range(vt0, vt0 + 6))
    S = [k.v(32, 4), k.v(32, 4)]; O = k.v(16, 4); OY = k.v(16, 4); P = k.v(8, 4)
    Qm = k.v(4, 4); QmY = k.v(4, 4); Qr = k.v(2); Km = k.v(4, 4); Kr = k.v(2); V0 = k.v(4, 4); V1 = [k.v(4, 4), k.v(4, 4)]
    PR = k.v(16, 4); C = S[1]; vcs = k.v(16, 4); vsel = k.v(16, 4); vca = k.v(); vfp = k.v(4, 4); vo1 = k.v(); vo2 = k.v(); vx1 = k.v(); vx2 = k.v(); s_o1 = k.s(); s_o2 = k.s()
    L_slow = k.label("slow"); L_store = k.label("store")
    k(f"""s_and_b32 s{s_t0}, s2, 7
    s_lshl_b32 s{s_t0}, s{s_t0}, 2
    s_bfe_u32 s{s_t1}, s2, 0x20003
    s_add_u32 s{s_h}, s{s_t0}, s{s_t1}
    s_lshr_b32 s{s_q1}, s{s_h}, 1
    s_mul_i32 s{s_t0}, s{s_q1}, 5
    s_and_b32 s{s_t1}, s{s_h}, 1
    s_lshl_b32 s{s_odd8}, s{s_t1}, 3
    s_mul_i32 s{s_t1}, s{s_t1}, 3
    s_add_u32 s{s_pa}, s{s_t0}, s{s_t1}
    s_lshl_b32 s{s_pa}, s{s_pa}, 15
    s_add_u32 s{s_pr}, s{s_t0}, 2
    s_lshl_b32 s{s_pr}, s{s_pr}, 15
    s_lshr_b32 s{s_q2}, s{s_wl}, 1
    s_and_b32 s{s_t3}, s{s_w}, 1
    s_lshl_b32 s{s_t0}, s{s_q2}, 14
    s_lshl_b32 s{s_t1}, s{s_t3}, 10
    s_add_u32 s{s_t0}, s{s_t0}, s{s_t1}
    s_add_u32 s{s_t0}, s{s_t0}, {80*32768}
    s_add_u32 s{so[0]}, s{s_pa}, s{s_t0}
    s_add_u32 s{so[2]}, s{s_pr}, s{s_t0}
    s_mul_i32 s{s_mo}, s{s_q2}, 6144
    s_mul_i32 s{s_t3}, s{s_t3}, 3072
    s_mul_i32 s{s_t2}, s{s_h}, {VHEAD}
    s_mul_i32 s{s_t0}, s{s_q2}, {32*1344}
    s_add_u32 s{s_t2}, s{s_t2}, s{s_t0}
    s_add_u32 s{s_t2}, s{s_t2}, s{s_t3}
    s_add_u32 s{s_t2}, s{s_t2}, {VIMG}
    s_add_u32 s{s_t3}, s{s_t3}, {VB}
    s_add_u32 s{s_t0}, s{s_t2}, 2048
    s_cmp_lt_u32 s{s_w}, 4
    s_cselect_b32 s{so[0]}, s{so[0]}, s{s_t2}
    s_cselect_b32 s{so[2]}, s{so[2]}, s{s_t0}
    s_cselect_b32 s{s_t1}, s{s_t1}, s{s_t3}
    s_movk_i32 s{s_t0}, 1024
    s_cselect_b32 s{so[1]}, 32768, s{s_t0}
    s_movk_i32 s{s_d}, 5376
    s_cselect_b32 s{s_d}, 2048, s{s_d}
    s_cselect_b32 s{s_ms}, 2048, s{s_t0}
    s_add_u32 s{so[1]}, s{so[1]}, s{so[0]}
    s_add_u32 s{s_mo}, s{s_mo}, s{s_t1}
    s_lshr_b32 s{s_t3}, s{s_w}, 2
    s_mul_i32 s{s_t0}, s{s_t3}, 6144
    v_and_b32 v{vr31}, 31, v{vl}
    v_lshlrev_b32 v{vr31}, 4, v{vr31}
    v_lshrrev_b32 v{vt[1]}, 5, v{vl}
    v_lshl_add_u32 v{vq}, v{vt[1]}, 15, v{vr31}
    v_add_u32 v{vt[2]}, s{s_t0}, v{vr31}
    v_lshl_add_u32 v{vKA}, v{vt[1]}, 11, v{vt[2]}
    v_add_u32 v{vKR}, s{s_odd8}, v{vt[2]}
    v_add_u32 v{vKR}, 4096, v{vKR}
    v_mul_u32_u24 v{vt[0]}, 336, v{vt[1]}
    v_add_u32 v{vt[0]}, v{vt[0]}, v{vt[2]}
    v_add_u32 v{vVA}, {VB}, v{vt[0]}
    v_cmp_lt_u32 vcc, {20*16}, v{vr31}
    v_mov_b32 v{vt[0]}, 0x40000
    v_xor_b32 v{vt[1]}, s{s_t3}, v{vt[1]}
    v_cndmask_b32 v{vVA}, v{vVA}, v{vt[0]}, vcc
    v_lshl_add_u32 v{vqr}, v{vt[1]}, 9, v{vr31}
    s_lshr_b32 s{s_tok}, s2, 5
    s_lshl_b32 s{s_tok}, s{s_tok}, 8
    s_lshl_b32 s{s_t0}, s{s_wl}, 6
    s_add_u32 s{s_tok}, s{s_tok}, s{s_t0}
    s_lshl_b32 s{s_t0}, s{s_t3}, 5
    s_add_u32 s{s_tok}, s{s_tok}, s{s_t0}""")
    k(f"v_lshlrev_b32 v{vca}, 2, v{vl}\nv_mov_b32 v{vt[0]}, 0x3f803f80")
    for Tl, row in enumerate((0, 4, 1, 5)):
        k(f"v_cmp_eq_u32 vcc, {16*row}, v{vr31}")
        k(f"v_cndmask_b32 v{vsel+4*Tl}, 0, v{vt[0]}, vcc")
        for i in range(1, 4): k(f"v_mov_b32 v{vsel+4*Tl+i}, v{vsel+4*Tl}")
    k(f"""v_bfe_u32 v{vo2}, v{vl}, 4, 1
    v_mul_u32_u24 v{vo2}, {20*1024}, v{vo2}
    v_and_b32 v{vo1}, 15, v{vl}
    v_lshl_add_u32 v{vo2}, v{vo1}, 4, v{vo2}
    v_lshrrev_b32 v{vo1}, 5, v{vl}
    v_lshl_add_u32 v{vo1}, v{vo1}, 8, v{vo2}
    s_lshr_b32 s{s_t0}, s{s_tok}, 4
    s_mul_i32 s{s_t0}, s{s_t0}, {20*1024}
    s_add_u32 s{s_t0}, s{s_t0}, {OIMG}
    s_lshl_b32 s{s_o1}, s{s_h}, 9
    s_add_u32 s{s_o1}, s{s_o1}, s{s_t0}
    s_lshr_b32 s{s_o2}, s{s_h}, 1
    s_lshl_b32 s{s_o2}, s{s_o2}, 8
    s_add_u32 s{s_o2}, s{s_o2}, s{s_t0}
    s_add_u32 s{s_o2}, s{s_o2}, s{s_odd8}
    s_add_u32 s{s_o2}, s{s_o2}, {16*1024}
    s_mul_i32 s{s_t0}, s{s_wl}, 3072
    s_add_u32 s{s_t0}, s{s_t0}, {2*SL}
    s_add_u32 s{s_t1}, s{s_t0}, {VB}
    s_cmp_lt_u32 s{s_w}, 4
    s_cselect_b32 s{s_t2}, s{s_t0}, s{s_t1}
    s_cselect_b32 s{s_t1}, s{s_t1}, s{s_t0}
    v_add_u32 v{vx1}, s{s_t2}, v{vl16}
    v_add_u32 v{vx2}, s{s_t1}, v{vl16}""")
    early = o.get('early', True)
    p1 = [f"s_mov_b32 m0, s{sR[4]}", "s_nop 0"]
    for i, (sd, so_) in enumerate(((sA, sR[0]), (sA, sR[2]), (sB, sR[1]), (sB, sR[3]))):
        p1.append(f"buffer_load_dwordx4 v{vPS}, {sr(sd,4)}, s{so_} offen lds")
        if i < 3: p1 += ["s_add_u32 m0, m0, 1024", "s_nop 0"]
    edge_prep = o.get('edge_prep', False)
    Lx = k.label("jx"); Lp = k.label("jp"); Lz = k.label("jz"); Lzx = k.label("jzx"); Lns = k.label("jns")
    part = o.get('part', True)
    vfl = k.v(); vpl = k.v(); vf2 = k.v(2); s_f0 = sG; s_f1 = sG + 1
    k(f"""s_mul_i32 s{s_t0}, s{s_q1}, 40
    s_add_u32 s{s_t1}, s{s_t0}, 39
    s_lshr_b32 s{s_t0}, s{s_t0}, 7
    s_lshr_b32 s{s_t1}, s{s_t1}, 7
    s_lshl_b32 s{s_f0}, s{s_t0}, {FL+5}
    s_lshl_b32 s{s_f1}, s{s_t1}, {FL+5}
    s_add_u32 s{s_f0}, s{s_f0}, {F1}
    s_add_u32 s{s_f1}, s{s_f1}, {F1}
    v_lshrrev_b32 v{vt[2]}, 4, v{vl}
    v_min_u32 v{vt[2]}, 2, v{vt[2]}
    v_mul_u32_u24 v{vt[2]}, 160, v{vt[2]}
    v_and_b32 v{vt[3]}, 15, v{vl}
    v_add_u32 v{vt[3]}, v{vt[3]}, v{vt[2]}
    v_lshlrev_b32 v{vfl}, {FL}, v{vt[3]}""")
    if part:
        k(f"""s_sub_u32 s{s_t1}, s{s_t1}, s{s_t0}
        v_and_b32 v{vt[2]}, 1, v{vl}
        v_mul_u32_u24 v{vt[2]}, s{s_t1}, v{vt[2]}
        v_bfe_u32 v{vt[3]}, v{vl}, 1, 1
        v_bfe_u32 v{vt[4]}, v{vl}, 2, 1
        v_bfe_u32 v{vt[5]}, v{vl}, 3, 1
        v_lshl_add_u32 v{vt[4]}, v{vt[5]}, 3, v{vt[4]}
        v_mad_u32_u24 v{vt[5]}, v{vt[3]}, 5, 5
        s_lshr_b32 s{s_t1}, s2, 5
        s_lshl_b32 s{s_t1}, s{s_t1}, 1
        v_add_u32 v{vt[3]}, s{s_t1}, v{vt[3]}
        v_cmp_gt_u32 vcc, 16, v{vl}
        v_cndmask_b32 v{vt[5]}, 0, v{vt[5]}, vcc
        v_cndmask_b32 v{vt[4]}, v{vt[3]}, v{vt[4]}, vcc
        v_add_u32 v{vt[2]}, v{vt[2]}, v{vt[5]}
        v_lshl_add_u32 v{vt[2]}, v{vt[2]}, 5, v{vt[4]}
        v_lshlrev_b32 v{vpl}, {FL}, v{vt[2]}""")
    k(f"""s_cmp_lg_u32 s{s_w}, 0
    s_cbranch_scc1 {Lzx}
    v_and_b32 v{vt[3]}, 15, v{vl}
    v_lshlrev_b32 v{vt[3]}, 4, v{vt[3]}
    s_mov_b32 s{s_t1}, 0
    {Lz}:
    buffer_load_dword v{vt[4]}, v{vt[3]}, {sr(sD,4)}, 0 offen sc1
    s_add_u32 s{s_t1}, s{s_t1}, 1
    s_cmp_gt_u32 s{s_t1}, 0x40000
    s_cbranch_scc1 {Lzx}
    s_waitcnt vmcnt(0)
    v_cmp_ne_u32 vcc, 0, v{vt[4]}
    s_cmp_eq_u64 vcc, -1
    s_cbranch_scc0 {Lz}
    {Lzx}:
    s_waitcnt vmcnt(0)""")
    k.stamp(5)
    k(f"""s_barrier
    s_cmp_lg_u32 s{s_w}, 0
    s_cbranch_scc1 {Lx}""")
    c.signal(c.s_f, vt[2])
    fl = [f"buffer_load_dword v{vf2}, v{vfl}, {sr(sO,4)}, s{s_f0} offen sc1", f"buffer_load_dword v{vf2+1}, v{vfl}, {sr(sO,4)}, s{s_f1} offen sc1"]
    k(f"s_mov_b32 s{s_t2}, 0\n{Lp}:")
    if part: k(f"buffer_load_dword v{vf2}, v{vpl}, {sr(sO,4)}, s{s_f0} offen sc1")
    else: k(fl[0]); k(fl[1])
    k(f"""s_add_u32 s{s_t2}, s{s_t2}, 1
    s_cmp_gt_u32 s{s_t2}, 0x40000
    s_cbranch_scc1 {Lx}
    s_waitcnt vmcnt(0)""")
    if not part: k(f"v_min_u32 v{vf2}, v{vf2}, v{vf2+1}")
    k(f"""v_cmp_ne_u32 vcc, 0, v{vf2}
    s_cmp_eq_u64 vcc, -1
    s_cbranch_scc0 {Lp}
    {Lx}:
    s_lshl_b32 s{s_t0}, s{s_tok}, 4
    s_add_u32 s{s_q1}, s{s_t0}, s{s_pa}
    s_xor_b32 s{s_t3}, s{s_q1}, 512
    s_andn2_b32 s{s_q2}, s{s_t0}, 512
    s_add_u32 s{s_q2}, s{s_q2}, s{s_pr}
    s_add_u32 s{s_q2}, s{s_q2}, s{s_odd8}
    s_barrier""")
    k.stamp(6)
    def dma(slot):
        out = [f"s_add_u32 m0, s{s_mo}, {slot*SL}", "s_nop 0"]
        for i in range(3):
            out.append(f"buffer_load_dwordx4 v{vl16}, {sr(sO,4)}, s{so[i]} offen sc1 lds")
            if i < 2: out.append(f"s_add_u32 m0, m0, s{s_ms}")
            out.append(f"s_add_u32 s{so[i]}, s{so[i]}, s{s_d}")
        return out
    for x in dma(0): k(x)
    k(f"""buffer_load_dwordx4 {vr(Qm,4)}, v{vq}, {sr(sO,4)}, s{s_q1} offen
    buffer_load_dwordx4 {vr(QmY,4)}, v{vq}, {sr(sO,4)}, s{s_t3} offen
    buffer_load_dwordx2 {vr(Qr,2)}, v{vqr}, {sr(sO,4)}, s{s_q2} offen""")
    for x in dma(1): k(x)
    p2a = [f"ds_read_b64_tr_b16 {vr(PR+4*Tl+2*rd,2)}, v{vPA} offset:{rd*1024+Tl*32}" for Tl in range(4) for rd in range(2)]
    p2c = [f"{M16} {vr(vcs,16)}, {vr(vsel+4*Tl,4)}, {vr(PR+4*Tl,4)}, {'0' if Tl == 0 else vr(vcs,16)}" for Tl in range(4)]
    late = [f"buffer_store_dwordx4 {vr(PR+4*Tl,4)}, v{vl16}, {sr(sO,4)}, s{s_po} offen offset:{Tl*1024}{sc}" for Tl in range(4)]
    late += [f"buffer_atomic_add_f32 v{vcs}, v{vca}, {sr(sO,4)}, s{s_cs} offen", f"buffer_atomic_add_f32 v{vcs+1}, v{vca}, {sr(sO,4)}, s{s_cs} offen offset:256"]
    TL = o.get('TL', 3); TP = o.get('TP', 11); assert TL > 2
    late_t = o.get('late_t', [TP + 1, TP + 2, TP + 4, TP + 5, TP + 3, TP + 3]); TSIG = o.get('TSIG', TP + 11)
    assert not edge_prep
    M2B = "v_mfma_f32_32x32x4_2b_bf16"
    def rdK(t):
        o_ = ((t // 4) % 3) * SL + (t % 4) * 512
        return [f"ds_read_b128 {vr(Km,4)}, v{vKA} offset:{o_}", f"ds_read_b64 {vr(Kr,2)}, v{vKR} offset:{o_}"]
    def rdV(t):
        o_ = ((t // 4) % 3) * SL + (t % 4) * 1344
        return [f"ds_read_b128 {vr(V0,4)}, v{vVA} offset:{o_}", f"ds_read_b128 {vr(V1[t&1],4)}, v{vVA} offset:{o_+672}"]
    k("s_waitcnt vmcnt(3)\ns_barrier")
    k.stamp(7)
    for x in rdK(0): k(x)
    k(f"""s_waitcnt lgkmcnt(0)
    {M2B} {vr(S[0],32)}, {vr(Kr,2)}, {vr(Qr,2)}, 0
    {M16} {vr(S[0],16)}, {vr(Km,4)}, {vr(Qm,4)}, {vr(S[0],16)}
    {M16} {vr(S[0]+16,16)}, {vr(Km,4)}, {vr(QmY,4)}, {vr(S[0]+16,16)}""")
    for x in rdK(1) + rdV(0): k(x)
    side = []; vm = [0]
    def spread(n):
        for _ in range(n):
            if side:
                x = side.pop(0)
                if x is None: continue
                if x == 'KV': vm[0] = 0; continue
                k(x)
                if x.startswith('buffer_'): vm[0] += 1
    NT = 32
    for t in range(NT):
        s = S[t & 1]; sn = S[(t + 1) & 1]; pe = t // 4; last = t == NT - 1
        e = lambda *a: [(k(f"v_exp_f32 v{s+i}, v{s+i}"), spread(1)) for i in a]
        cv = lambda i: k(f"v_cvt_pk_bf16_f32 v{P+i%8}, v{s+2*i}, v{s+2*i+1}")
        def pr(ph):
            if prio:
                q = (7 * t + ph - 19) % 28
                cum = 0
                for lvl, ln in enumerate(prio):
                    if (q == cum and ln > 0) or (t == 0 and ph == 0 and cum <= q < cum + ln): k(f"s_setprio {3 - lvl}")
                    cum += ln
        z = lambda r: '0' if t == 0 else vr(r, 16)
        pr(0)
        e(0, 1, 2, 3)
        if not last:
            k("s_waitcnt lgkmcnt(2)")
            k(f"{M2B} {vr(sn,32)}, {vr(Kr,2)}, {vr(Qr,2)}, 0")
        pr(1)
        e(4); cv(0); e(5); cv(1); e(6, 7); cv(2); e(8); cv(3); e(9, 10)
        k("s_waitcnt lgkmcnt(0)")
        k(f"{M16} {vr(O,16)}, {vr(V0,4)}, {vr(P,4)}, {z(O)}")
        pr(2)
        e(11); cv(4); e(12); cv(5); e(13, 14)
        if not last: k(f"{M16} {vr(sn,16)}, {vr(Km,4)}, {vr(Qm,4)}, {vr(sn,16)}")
        pr(3)
        e(15); cv(6); e(16); cv(7); e(17, 18)
        k(f"{M16} {vr(O,16)}, {vr(V1[t&1],4)}, {vr(P+4,4)}, {vr(O,16)}")
        pr(4)
        e(19); cv(8); e(20); cv(9); e(21, 22)
        if not last: k(f"{M16} {vr(sn+16,16)}, {vr(Km,4)}, {vr(QmY,4)}, {vr(sn+16,16)}")
        if part and t == 1:
            Ln = k.label("nq"); k(f"s_cmp_lg_u32 s{s_w}, 0\ns_cbranch_scc1 {Ln}"); k(fl[0]); k(fl[1]); k(f"{Ln}:")
        if t % 4 == 2 and pe < 7:
            assert not side
            k(f"s_waitcnt vmcnt({0 if t in (TP - 1, TSIG - 4, 26) else vm[0]})")
            if part and t == 2:
                Ln = k.label("nq"); Lq = k.label("q")
                k(f"""s_cmp_lg_u32 s{s_w}, 0
                s_cbranch_scc1 {Ln}
                s_mov_b32 s{s_t2}, 0
                {Lq}:
                v_min_u32 v{vf2}, v{vf2}, v{vf2+1}
                s_add_u32 s{s_t2}, s{s_t2}, 1
                v_cmp_ne_u32 vcc, 0, v{vf2}
                s_cmp_eq_u64 vcc, -1
                s_cbranch_scc1 {Ln}
                s_cmp_gt_u32 s{s_t2}, 0x40000
                s_cbranch_scc1 {Ln}""")
                k(fl[0]); k(fl[1])
                k(f"s_waitcnt vmcnt(0)\ns_branch {Lq}\n{Ln}:")
            if early and t == 26:
                Ln = k.label("ne"); Lq = k.label("e")
                k(f"""s_cmp_lg_u32 s{s_w}, 0
                s_cbranch_scc1 {Ln}
                s_mov_b32 s{s_t2}, 0
                {Lq}:
                v_min_u32 v{vfp}, v{vfp}, v{vfp+1}
                v_min3_u32 v{vfp}, v{vfp}, v{vfp+2}, v{vfp+3}
                s_add_u32 s{s_t2}, s{s_t2}, 1
                v_cmp_ne_u32 vcc, 0, v{vfp}
                s_cmp_eq_u64 vcc, -1
                s_cbranch_scc1 {Ln}
                s_cmp_gt_u32 s{s_t2}, 0x40000
                s_cbranch_scc1 {Ln}
                buffer_load_dwordx4 {vr(vfp,4)}, v{vl16}, {sr(sO,4)}, s{s_t0} offen sc1
                s_waitcnt vmcnt(0)
                s_branch {Lq}
                {Ln}:""")
                assert not o.get('row3')
                side += [f"s_bfe_u32 s{s_t0}, s2, 0x10002", f"s_lshl_b32 s{s_t0}, s{s_t0}, 2", f"s_lshr_b32 s{s_t1}, s2, 6", f"s_add_u32 s{s_t0}, s{s_t0}, s{s_t1}",
                         f"s_lshl_b32 s{s_t1}, s{s_w}, 3", f"s_add_u32 s{s_t0}, s{s_t0}, s{s_t1}", f"s_mul_i32 s{s_t0}, s{s_t0}, 5120", f"s_add_u32 s{s_t0}, s{s_t0}, {WOP}",
                         f"s_mul_i32 s{s_t1}, s{s_w}, 5120"]
                for hf in range(2):
                    side += [f"s_add_u32 m0, s{s_t1}, {PREP + hf*8*5120}", f"s_add_u32 s{s_t2}, s{s_t0}, 4096"]
                    side += [f"buffer_load_dwordx4 v{vl16}, {sr(sO,4)}, s{s_t0} offen offset:{i*1024} lds" for i in range(4)]
                    side += ["s_add_u32 m0, m0, 4096", f"s_add_u32 s{s_t0}, s{s_t0}, {8*40960}", f"buffer_load_dwordx4 v{vl16}, {sr(sO,4)}, s{s_t2} offen lds"]
                sp = o.get('espace', 8)
                side[:] = [y for x in side for y in ([x] + [None] * sp if x.startswith('buffer') else [x])]
            k("s_barrier")
            if o.get('fine') == 2: k.stamp({0: 1, 1: 2, 2: 3, 3: 4, 4: 5, 5: 6, 6: 9}[pe])
            if pe < 6: side += dma((pe + 2) % 3) + ['KV']
            if t == TSIG - 4:
                Ln = k.label("nf")
                k(f"s_cmp_lg_u32 s{s_w}, 0\ns_cbranch_scc1 {Ln}\ns_lshl_b32 s{s_t0}, s2, 2\ns_add_u32 s{s_t0}, s{s_t0}, {FP}")
                c.signal(s_t0, vt[2]); k(f"{Ln}:")
        pr(5)
        if t < NT - 2:
            for x in rdK(t + 2): k(x)
        if t == TP:
            for x in p2a: k(x)
        if t == TL: side += p1
        if o.get('cs2', True):
            if TP < t <= TP + 2: k(p2c[2 * (t - TP - 1)]); side.insert(0, None); side.insert(0, None); side.insert(min(4, len(side)), p2c[2 * (t - TP - 1) + 1])
        elif TP < t <= TP + 4: k(p2c[t - TP - 1])
        for i_, x_ in enumerate(late_t):
            if int(x_) == t: side.append(late[i_])
        if t == (o.get('TF', 24) if early else 28): k(f"s_mov_b32 s{s_t0}, {FP}\nbuffer_load_dwordx4 {vr(vfp,4)}, v{vl16}, {sr(sO,4)}, s{s_t0} offen sc1")
        e(23); cv(10); e(24); cv(11); e(25, 26)
        k(f"{M16} {vr(OY,16)}, {vr(V0,4)}, {vr(P,4)}, {z(OY)}")
        pr(6)
        e(27); cv(12); e(28); cv(13); e(29, 30, 31); cv(14)
        if not last:
            rv = rdV(t + 1)
            k(rv[0]); cv(15); k(rv[1]); k("s_nop 0")
        else:
            cv(15)
        k(f"{M16} {vr(OY,16)}, {vr(V1[t&1],4)}, {vr(P+4,4)}, {vr(OY,16)}")
    assert not side
    if o.get('fine') == 2: k.stamp(10)
    k("s_setprio 0")
    for j in range(3): k(f"ds_write_b128 v{vx1}, {vr(OY+4*j,4)} offset:{1024*j}")
    k(f"s_mov_b32 s{s_q1}, {f2u(2.0**64):#x}\ns_mov_b32 s{s_q2}, 0x7f800000")
    k("s_waitcnt lgkmcnt(0)\ns_barrier")
    for j in (2, 0, 1): k(f"ds_read_b128 {vr(OY+4*j,4)}, v{vx2} offset:{1024*j}")
    t0, t1, t2 = vt[0], vt[1], vt[2]
    k("s_waitcnt lgkmcnt(2)")
    for i in (4, 5): k(f"v_pk_add_f32 {vr(O+2*i,2)}, {vr(O+2*i,2)}, {vr(OY+2*i,2)}")
    k(f"v_mov_b32 v{t0}, v{O+8}\nv_mov_b32 v{t1}, v{O+8}\ns_waitcnt lgkmcnt(0)")
    for i in range(4): k(f"v_pk_add_f32 {vr(O+2*i,2)}, {vr(O+2*i,2)}, {vr(OY+2*i,2)}")
    k(f"""v_permlane32_swap_b32 v{t0}, v{t1}
    v_add_f32 v{t2}, |v{O+8}|, |v{O+9}|
    v_add_f32 v{vt[3]}, |v{O+10}|, |v{O+11}|""")
    for i in range(0, 8, 2): k(f"v_add_f32 v{t2}, |v{O+i}|, v{t2}\nv_add_f32 v{vt[3]}, |v{O+i+1}|, v{vt[3]}")
    k(f"""v_cmp_lt_f32 vcc, {f2u(2.0**-64):#x}, v{t1}
    v_add_f32 v{t2}, v{t2}, v{vt[3]}
    v_cmp_gt_f32 {sr(sE,2)}, s{s_q1}, v{t1}
    v_cmp_gt_f32 {sr(sG,2)}, s{s_q2}, v{t2}
    s_and_b64 vcc, vcc, {sr(sE,2)}
    s_and_b64 vcc, vcc, {sr(sG,2)}
    s_cmp_eq_u64 vcc, -1
    s_cbranch_scc0 {L_slow}
    {L_store}:
    v_rcp_f32 v{t0}, v{t1}
    v_rcp_f32 v{t1}, v{t1}""")
    assert t0 % 2 == 0 and t1 == t0 + 1
    for i in range(4): k(f"v_pk_mul_f32 {vr(O+2*i,2)}, {vr(O+2*i,2)}, {vr(t0,2)}")
    for i in range(4): k(f"v_cvt_pk_bf16_f32 v{O+i}, v{O+2*i}, v{O+2*i+1}")
    k(f"buffer_store_dwordx4 {vr(O,4)}, v{vo1}, {sr(sO,4)}, s{s_o1} offen{sc}")
    for i in range(4, 6): k(f"v_pk_mul_f32 {vr(O+2*i,2)}, {vr(O+2*i,2)}, {vr(t0,2)}")
    for i in range(4, 6): k(f"v_cvt_pk_bf16_f32 v{O+i}, v{O+2*i}, v{O+2*i+1}")
    k(f"""s_mov_b32 exec_hi, 0
    buffer_store_dwordx2 {vr(O+4,2)}, v{vo2}, {sr(sO,4)}, s{s_o2} offen{sc}
    s_mov_b32 exec_hi, -1""")
    def slow():
        vV = vKA; vm = vKR; cnt = s_t3
        k(f"""{L_slow}:
        s_lshl_b32 s{so[0]}, s{s_tok}, 4
        s_add_u32 s{so[0]}, s{so[0]}, s{s_pr}
        s_add_u32 s{so[0]}, s{so[0]}, s{s_odd8}
        v_mov_b32 v{Qr}, 0
        v_mov_b32 v{Qr+1}, 0
        s_mov_b32 exec_hi, 0
        buffer_load_dwordx2 {vr(Qr,2)}, v{vr31}, {sr(sO,4)}, s{so[0]} offen
        s_mov_b32 exec_hi, -1
        s_add_u32 s{so[0]}, s{s_pa}, {80*32768}
        s_add_u32 s{so[1]}, s{s_pr}, {80*32768}
        s_add_u32 s{so[1]}, s{so[1]}, s{s_odd8}
        v_mov_b32 v{vm}, 0xff800000
        s_mov_b32 s{cnt}, 0""")
        L1 = k.label("mx")
        k(f"""{L1}:
        buffer_load_dwordx4 {vr(Km,4)}, v{vq}, {sr(sO,4)}, s{so[0]} offen
        buffer_load_dwordx2 {vr(Kr,2)}, v{vr31}, {sr(sO,4)}, s{so[1]} offen
        s_add_u32 s{so[0]}, s{so[0]}, 512
        s_add_u32 s{so[1]}, s{so[1]}, 512
        s_waitcnt vmcnt(0)
        {M8} {vr(S[0],16)}, {vr(Kr,2)}, {vr(Qr,2)}, 0
        {M16} {vr(S[0],16)}, {vr(Km,4)}, {vr(Qm,4)}, {vr(S[0],16)}""")
        for i in range(8): k(f"v_max3_f32 v{vm}, v{S[0]+2*i}, v{S[0]+2*i+1}, v{vm}")
        k(f"""s_add_u32 s{cnt}, s{cnt}, 1
        s_cmp_lt_u32 s{cnt}, 64
        s_cbranch_scc1 {L1}
        v_mov_b32 v{t0}, v{vm}
        v_permlane32_swap_b32 v{t0}, v{vm}
        v_max_f32 v{vm}, v{vm}, v{t0}""")
        for i in range(16): k(f"v_sub_f32 v{C+i}, 0, v{vm}\nv_mov_b32 v{O+i}, 0")
        k(f"""s_add_u32 s{so[0]}, s{s_pa}, {80*32768}
        s_add_u32 s{so[1]}, s{s_pr}, {80*32768}
        s_add_u32 s{so[1]}, s{so[1]}, s{s_odd8}
        s_mul_i32 s{so[2]}, s{s_h}, {VHEAD}
        s_add_u32 s{so[2]}, s{so[2]}, {VIMG}
        v_lshrrev_b32 v{vV}, 5, v{vl}
        v_mul_u32_u24 v{vV}, 336, v{vV}
        v_add_u32 v{vV}, v{vV}, v{vr31}
        s_mov_b32 s{cnt}, 0""")
        L2 = k.label("pv")
        k(f"""{L2}:
        buffer_load_dwordx4 {vr(Km,4)}, v{vq}, {sr(sO,4)}, s{so[0]} offen
        buffer_load_dwordx2 {vr(Kr,2)}, v{vr31}, {sr(sO,4)}, s{so[1]} offen
        buffer_load_dwordx4 {vr(V0,4)}, v{vV}, {sr(sO,4)}, s{so[2]} offen
        buffer_load_dwordx4 {vr(V1[0],4)}, v{vV}, {sr(sO,4)}, s{so[2]} offen offset:672
        s_add_u32 s{so[0]}, s{so[0]}, 512
        s_add_u32 s{so[1]}, s{so[1]}, 512
        s_add_u32 s{so[2]}, s{so[2]}, 1344
        s_waitcnt vmcnt(0)
        {M8} {vr(S[0],16)}, {vr(Kr,2)}, {vr(Qr,2)}, {vr(C,16)}
        {M16} {vr(S[0],16)}, {vr(Km,4)}, {vr(Qm,4)}, {vr(S[0],16)}""")
        for i in range(16): k(f"v_exp_f32 v{S[0]+i}, v{S[0]+i}")
        for i in range(8): k(f"v_cvt_pk_bf16_f32 v{P+i}, v{S[0]+2*i}, v{S[0]+2*i+1}")
        k(f"""{M16} {vr(O,16)}, {vr(V0,4)}, {vr(P,4)}, {vr(O,16)}
        {M16} {vr(O,16)}, {vr(V1[0],4)}, {vr(P+4,4)}, {vr(O,16)}
        s_add_u32 s{cnt}, s{cnt}, 1
        s_cmp_lt_u32 s{cnt}, 64
        s_cbranch_scc1 {L2}
        v_mov_b32 v{t0}, v{O+8}
        v_mov_b32 v{t1}, v{O+8}
        v_permlane32_swap_b32 v{t0}, v{t1}
        s_branch {L_store}""")
    slow_code = deferred(slow)
    L3 = k.label("ld")
    k.stamp(8); k.nst = 8
    if o.get('fine1') or o.get('fine') == 2:
        k.maxst = 14; k.stamp = lambda *a, **kw: None
    k(f"""s_lshr_b32 s{c.s_f}, s2, 5
    s_lshl_b32 s{c.s_f}, s{c.s_f}, 5
    s_add_u32 s{c.s_f}, s{c.s_f}, s{s_h}
    s_lshl_b32 s{c.s_f}, s{c.s_f}, {FL}
    s_add_u32 s{c.s_f}, s{c.s_f}, {F2}""")
    P3 = P35(c, 3, D=o.get('D3', 20), D0=o.get('D30', 6), early=early)
    P3.rowmap = o.get('row3', False)
    k(P3.ptr_load()); P3.ids()
    lw(c, L3)
    def handoff(vt, stmp, n):
        Ln = k.label("nw0")
        k("s_barrier")
        k(f"s_cmp_lg_u32 s{c.s_w}, 0\ns_cbranch_scc1 {Ln}")
        c.signal(c.s_f, vt); c.poll(c.s_p, n, vt, stmp)
        k(f"{Ln}:\ns_barrier")
    P3.setup()
    k(f"""s_lshr_b32 s{c.s_p}, s{P3.s_tb16}, 4
    s_lshl_b32 s{c.s_p}, s{c.s_p}, {FL+5}
    s_add_u32 s{c.s_p}, s{c.s_p}, {F2}
    s_waitcnt vmcnt(3)""")
    handoff(P3.vt[0], P3.s_t0, 32)
    k.stamp('n')
    if o.get('fine') == 3: P3.fine = {0: 2, 1: 3, 4: 4, 8: 5, 12: 6, 16: 7, 19: 8}
    P3.main(init=False, resident=True)
    k("s_barrier")
    P3.epilogue()
    k(f"""s_lshr_b32 s{c.s_f}, s{P3.s_tb16}, 3
    s_lshl_b32 s{c.s_f}, s{c.s_f}, 5
    s_bfe_u32 s{P3.s_t0}, s{P3.s_tb16}, 0x10002
    s_lshl_b32 s{P3.s_t0}, s{P3.s_t0}, 3
    s_add_u32 s{c.s_f}, s{c.s_f}, s{P3.s_t0}
    s_add_u32 s{c.s_f}, s{c.s_f}, s{P3.s_c}
    s_lshl_b32 s{c.s_f}, s{c.s_f}, {FL}
    s_add_u32 s{c.s_f}, s{c.s_f}, {F3}""")
    Q4 = P4(c, D=o.get('D4', 12), D0=o.get('D40', 4)); Q4.ahead = o.get('ahead4', 4); Q4.thin = o.get('thin4'); Q4.nob = o.get('nob'); Q4.mcorr = o.get('mcorr', True); Q4.lstat = o.get('lstat', True)
    Q4.ids(); Q4.setup()
    k(f"""s_lshr_b32 s{c.s_p}, s{Q4.s_tb}, 2
    s_lshl_b32 s{c.s_p}, s{c.s_p}, {FL+5}
    s_add_u32 s{c.s_p}, s{c.s_p}, {F3}
    s_waitcnt vmcnt(0)""")
    k.stamp('n')
    handoff(Q4.st, Q4.s_t1, 16)
    k.stamp('n')
    if o.get('fine') == 4: Q4.fine = {0: 2, 1: 3, 4: 4, 12: 5, 20: 6, 30: 7, 39: 8}
    Q4.main(init=False, endbar=True)
    Q4.epilogue(k.label("fin"))
    k(f"""s_lshr_b32 s{c.s_f}, s{Q4.s_tb}, 2
    s_lshl_b32 s{c.s_f}, s{c.s_f}, 5
    s_add_u32 s{c.s_f}, s{c.s_f}, s{Q4.s_g}
    s_lshl_b32 s{c.s_f}, s{c.s_f}, {FL}
    s_add_u32 s{c.s_f}, s{c.s_f}, {F4}""")
    pair5 = o.get('pair5', True)
    P5 = P35(c, 5, D=o.get('D5', 8 if pair5 else 12), D0=o.get('D50', 4), pair=pair5); P5.ahead = o.get('ahead5', 5); P5.rowmap = o.get('row5', True); P5.bar8 = o.get('bar8', True); P5.ofl = o.get('ofl', '')
    k("s_nop 1"); k(P5.ptr_load()); P5.ids(); P5.setup()
    if pair5: P5.setup_pair()
    k(f"""s_lshr_b32 s{c.s_p}, s{P5.s_tb16}, 3
    s_lshl_b32 s{c.s_p}, s{c.s_p}, {FL+5}
    s_add_u32 s{c.s_p}, s{c.s_p}, {F4}
    s_waitcnt vmcnt(0)""")
    k.stamp('n')
    handoff(P5.vt[0], P5.s_t0, 16)
    k.stamp('n')
    if o.get('fine') == 5: P5.fine = {0: 2, 1: 3, 8: 4, 16: 5, 28: 6, 40: 7, 53: 8}
    if pair5:
        if o.get('fine') == 5: P5.fine = {0: 2, 1: 3, 4: 4, 8: 5, 14: 6, 20: 7, 26: 8}
        P5.main_pair()
    else: P5.main(init=False)
    P5.epilogue()
    if o.get('dbgst') is not None:
        Ln = k.label("dn")
        k.stamp(14); k.stamp_real(15)
        k(f"s_cmp_lg_u32 s2, {o['dbgst']}\ns_cbranch_scc1 {Ln}\ns_cmp_lg_u32 s{s_w}, 0\ns_cbranch_scc1 {Ln}\ns_waitcnt lgkmcnt(0)\nv_mov_b32 v1, 0\ns_mov_b64 exec, 1")
        pos = [1, 2, 3, 5, 6, 7, 9, 10, 11, 13, 14, 15]
        src = [2, 3, 6, 7, 8, 9, 11, 12, 13, 14]
        for p_, i in zip(pos, src):
            k(f"s_sub_u32 s66, s{k.sT+2*i}, s{k.sT+2}\nv_mov_b32 v2, s66\nbuffer_store_dword v2, v1, {sr(sD,4)}, 0 offen offset:{4*p_}")
        k(f"s_sub_u32 s66, s{k.sT+30}, s{k.sT}\nv_mov_b32 v2, s66\nbuffer_store_dword v2, v1, {sr(sD,4)}, 0 offen offset:60\n{Ln}:\ns_endpgm")
        k(f"{c.L_end}:\ns_endpgm")
    else:
        c.finish()
    k(f"{L3}:")
    if early:
        P3.ld_setup()
        k(f"s_add_u32 s{P3.s_wo}, s{P3.s_wo}, {16*40960}\ns_waitcnt vmcnt(0)\ns_barrier")
        P3.ld_chunk(0)
        k("s_waitcnt vmcnt(0)\ns_barrier")
    else:
        Lp = k.label("fp"); Lok = k.label("fpok")
        k(f"""s_mov_b32 s{P3.s_cnt}, 0
        s_waitcnt vmcnt(2)
        {Lp}:
        v_min_u32 v{vfp}, v{vfp}, v{vfp+1}
        v_min3_u32 v{vfp}, v{vfp}, v{vfp+2}, v{vfp+3}
        s_add_u32 s{P3.s_cnt}, s{P3.s_cnt}, 1
        v_cmp_ne_u32 vcc, 0, v{vfp}
        s_cmp_eq_u64 vcc, -1
        s_cbranch_scc1 {Lok}
        s_cmp_gt_u32 s{P3.s_cnt}, 0x40000
        s_cbranch_scc1 {Lok}
        s_mov_b32 s{P3.s_t0}, {FP}
        buffer_load_dwordx4 {vr(vfp,4)}, v{c.vl16}, {sr(c.sO,4)}, s{P3.s_t0} offen sc1
        s_waitcnt vmcnt(0)
        s_branch {Lp}
        {Lok}:""")
        P3.ld_setup()
        k("s_waitcnt vmcnt(0)\ns_barrier")
        for ch in range(5): P3.ld_chunk(ch)
        k("s_waitcnt vmcnt(0)\ns_barrier")
    Q4.ids(); Q4.ld_setup()
    k("s_barrier")
    n4 = o.get('pre4', 2)
    for ch in range(n4): Q4.ld_chunk(ch)
    k("s_barrier")
    for ch in range(n4, 5): Q4.ld_chunk(ch)
    Q4.ld_cs()
    k("s_waitcnt vmcnt(29)\ns_barrier")
    rg5 = None
    if o.get('reg5', True):
        rg5 = dict(base=20, addr=[8, 9, 10])
        s5 = 64
        def warm():
            if P5.rowmap: k(f"s_lshr_b32 s{Q4.s_t0}, s2, 5")
            else: k(f"""s_bfe_u32 s{Q4.s_t0}, s2, 0x10002
            s_lshl_b32 s{Q4.s_t0}, s{Q4.s_t0}, 2
            s_lshr_b32 s{Q4.s_t1}, s2, 6
            s_add_u32 s{Q4.s_t0}, s{Q4.s_t0}, s{Q4.s_t1}""")
            k(f"""s_lshl_b32 s{Q4.s_t1}, s{c.s_wl}, 3
            s_add_u32 s{Q4.s_t0}, s{Q4.s_t0}, s{Q4.s_t1}
            s_mul_i32 s{Q4.s_t0}, s{Q4.s_t0}, 5120
            s_add_u32 s{Q4.s_t0}, s{Q4.s_t0}, {WDP + 28*40960}""")
        def warm_chunk(j):
            k(f"s_add_u32 s{Q4.s_t1}, s{Q4.s_t0}, 4096")
            for i in range(5):
                k(f"buffer_load_dwordx4 {vr(rg5['base'] + 20*j + 4*i, 4)}, v{c.vl16}, {sr(c.sO,4)}, s{Q4.s_t0 if i < 4 else Q4.s_t1} offen offset:{(i%4)*1024}")
            k(f"s_add_u32 s{Q4.s_t0}, s{Q4.s_t0}, {4*40960}")
        Q4.warm = warm; Q4.warm_chunk = warm_chunk
    if Q4.lstat: Q4.ld_stats()
    Q4.ld_main(5, 1, init=False)
    P5.ids(); P5.ld_setup()
    if rg5:
        k(f"""v_add_u32 v8, s{P5.s_m0}, v{c.vl16}
        v_add_u32 v9, {3*P5.SLOT}, v8
        v_add_u32 v10, {6*P5.SLOT}, v8""")
    k("s_barrier")
    n5 = o.get('pre5', 4)
    for ch in range(n5): P5.ld_chunk(ch)
    k("s_barrier")
    for ch in range(n5, 7): P5.ld_chunk(ch)
    if P5.bar8:
        k("s_waitcnt vmcnt(25)\ns_barrier")
        P5.ld_main8(rg5, 1 if pair5 else 0)
    else:
        k("s_waitcnt vmcnt(30)\ns_barrier")
        P5.ld_main(7, init=False)
    if K.STAMP and o.get('dbgst') is None:
        for i in range(9, 15): k.stamp(i)
        k.stamp_flush(c.sO, c.s_w)
    k("s_endpgm")
    k.lines += slow_code + spare_code
    return k, (256, 512, max(P3.lds, Q4.lds, P5.lds))
```

```python
from ph import *

def lw(c, L):
    c.k(f"s_cmp_ge_u32 s{c.s_w}, 4\ns_cbranch_scc1 {L}")

class P35:
    def __init__(self, c, which, D=12, D0=None, pair=False, early=False):
        self.c = c; self.k3 = k3 = which == 3; k = c.k
        self.NU = 20 if k3 else 54; self.CK = 4; self.SLOT = 20480
        self.NCH = (self.NU + 3) // 4; self.NSL = 5 if k3 else 7
        self.XS = self.NSL * self.SLOT; self.D = D; self.D0 = D0 or D
        self.early = early
        if early: self.XS = 20480
        self.lds = (self.XS + 4 * 3072) if not early else 73728 + 4 * 20480
        c.reset()
        self.sPX = k.s(2); self.sB = k.s(4); self.sX = k.s(4)
        (self.s_tb16, self.s_c, self.s_t0, self.s_t1, self.s_t2, self.s_bo, self.s_wo, self.s_m0, self.s_xs, self.s_ho,
         self.s_cnt) = [k.s() for _ in range(11)]
        self.vt = [k.v() for _ in range(6)]; self.vH = k.v(); self.vD = k.v(); self.vA = [k.v() for _ in range(3)]
        self.vrow = [k.v() for _ in range(3)]
        self.acc = k.v(20, 4); self.fa = [k.v(20, 4) for _ in range(3)]; self.res = k.v(12, 4)
        self.fb = k.v(4 * self.D * (2 if pair else 1), 4)
        if pair: self.accY = k.v(20, 4); self.s_boY = k.s(); self.vE = [k.v(), k.v()]
    def ptr_load(self): return f"s_load_dwordx2 {sr(self.sPX,2)}, s[0:1], {KA_X if self.k3 else KA_OUT}"
    rowmap = False
    ofl = ''
    bar8 = False
    def ld_main8(self, regs=None, free1=0):
        k = self.c.k; c = self.c
        issued = 7
        for kb in range(6):
            need = min(13, 2 * kb + 3)
            if regs is None: k(f"s_waitcnt vmcnt({5*max(0, issued - 1 - need)})")
            else: k(f"s_waitcnt vmcnt({5*max(0, 6 - need)}) lgkmcnt(0)")
            k("s_barrier")
            while issued < 14 and issued <= 2 * kb + 7 + free1:
                if regs is None: self.ld_chunk(issued % 7)
                else:
                    slot = issued % 7
                    for i in range(5):
                        k(f"ds_write_b128 v{regs['addr'][slot // 3]}, {vr(regs['base'] + 20*(issued-7) + 4*i, 4)} offset:{(slot % 3)*self.SLOT + i*1024}")
                issued += 1
    def ids(self):
        k = self.c.k
        if self.rowmap:
            k(f"""s_and_b32 s{self.s_t0}, s2, 7
            s_lshl_b32 s{self.s_t0}, s{self.s_t0}, 2
            s_bfe_u32 s{self.s_t1}, s2, 0x20003
            s_add_u32 s{self.s_tb16}, s{self.s_t0}, s{self.s_t1}
            s_lshl_b32 s{self.s_tb16}, s{self.s_tb16}, 2
            s_add_u32 s{self.s_tb16}, s{self.s_tb16}, s{self.c.s_wl}
            s_lshr_b32 s{self.s_c}, s2, 5""")
            return
        k(f"""s_and_b32 s{self.s_t0}, s2, 3
        s_lshl_b32 s{self.s_t0}, s{self.s_t0}, 3
        s_bfe_u32 s{self.s_t1}, s2, 0x30003
        s_add_u32 s{self.s_tb16}, s{self.s_t0}, s{self.s_t1}
        s_lshl_b32 s{self.s_tb16}, s{self.s_tb16}, 2
        s_add_u32 s{self.s_tb16}, s{self.s_tb16}, s{self.c.s_wl}
        s_bfe_u32 s{self.s_t0}, s2, 0x10002
        s_lshl_b32 s{self.s_t0}, s{self.s_t0}, 2
        s_lshr_b32 s{self.s_t1}, s2, 6
        s_add_u32 s{self.s_c}, s{self.s_t0}, s{self.s_t1}""")
    def ld_setup(self):
        k = self.c.k
        k(f"""s_mul_i32 s{self.s_wo}, s{self.c.s_wl}, 8
        s_add_u32 s{self.s_wo}, s{self.s_wo}, s{self.s_c}
        s_mul_i32 s{self.s_wo}, s{self.s_wo}, 5120
        s_add_u32 s{self.s_wo}, s{self.s_wo}, {WOP if self.k3 else WDP}
        s_mul_i32 s{self.s_m0}, s{self.c.s_wl}, 5120""")
    def ld_chunk(self, slot):
        k = self.c.k; c = self.c
        k(f"s_add_u32 m0, s{self.s_m0}, {slot*self.SLOT}\ns_add_u32 s{self.s_t2}, s{self.s_wo}, 4096")
        for i in range(4):
            k(f"buffer_load_dwordx4 v{c.vl16}, {sr(c.sO,4)}, s{self.s_wo} offen offset:{i*1024}{c.lsc} lds")
        k(f"s_add_u32 m0, m0, 4096\ns_add_u32 s{self.s_wo}, s{self.s_wo}, {4*40960}")
        k(f"buffer_load_dwordx4 v{c.vl16}, {sr(c.sO,4)}, s{self.s_t2} offen{c.lsc} lds")
    def ld_main(self, issued, init=True):
        k = self.c.k; NCH = self.NCH
        if init: k(f"s_waitcnt vmcnt({5*(issued-1)})\ns_barrier")
        for ch in range(NCH - 1):
            k(f"s_waitcnt vmcnt({5*max(0, issued-ch-2)})\ns_barrier")
            while issued < NCH and issued < ch + self.NSL and issued <= ch + 1 + self.ahead:
                self.ld_chunk(issued % self.NSL); issued += 1
    def setup(self):
        k = self.c.k; c = self.c; vt = self.vt; vl = c.vl
        for i in range(3):
            k(f"""v_add_u32 v{vt[0]}, {64*i}, v{vl}
            v_mul_u32_u24 v{vt[1]}, 6554, v{vt[0]}
            v_lshrrev_b32 v{vt[1]}, 16, v{vt[1]}
            v_mul_u32_u24 v{vt[1]}, {1280-160}, v{vt[1]}
            v_lshl_add_u32 v{self.vrow[i]}, v{vt[0]}, 4, v{vt[1]}""")
        k(f"""s_mul_i32 s{self.s_t1}, s{self.s_tb16}, {16*1280}
        s_mul_i32 s{self.s_t2}, s{self.s_c}, 160
        s_add_u32 s{self.s_t1}, s{self.s_t1}, s{self.s_t2}
        s_waitcnt lgkmcnt(0)
        s_add_u32 s{self.sX}, s{self.sPX}, s{self.s_t1}
        s_addc_u32 s{self.sX+1}, s{self.sPX+1}, 0
        s_sub_u32 s{self.sX+2}, {2048*1280}, s{self.s_t1}
        s_mov_b32 s{self.sX+3}, 0x20000
        s_mul_i32 s{self.s_xs}, s{c.s_wl}, 3072
        s_add_u32 s{self.s_xs}, s{self.s_xs}, {self.XS}""")
        if self.k3:
            k(f"s_mov_b32 m0, s{self.s_xs}")
            for i in range(3):
                k(f"s_nop 0\nbuffer_load_dwordx4 v{self.vrow[i]}, {sr(self.sX,4)}, 0 offen lds")
                if i < 2: k("s_add_u32 m0, m0, 1024")
        k(f"""v_lshrrev_b32 v{vt[0]}, 4, v{vl}
        v_and_b32 v{vt[1]}, 15, v{vl}
        v_lshlrev_b32 v{vt[2]}, 4, v{vt[1]}
        v_lshl_add_u32 v{self.vH}, v{vt[0]}, 9, v{vt[2]}
        s_lshr_b32 s{self.s_t1}, s{self.s_tb16}, 1
        s_mul_i32 s{self.s_t1}, s{self.s_t1}, 40
        s_mul_i32 s{self.s_t2}, s{self.s_c}, 5
        s_add_u32 s{self.s_t1}, s{self.s_t1}, s{self.s_t2}
        s_lshl_b32 s{self.s_t1}, s{self.s_t1}, 10
        s_and_b32 s{self.s_t2}, s{c.s_w}, 1
        s_lshl_b32 s{self.s_t2}, s{self.s_t2}, 8
        s_add_u32 s{self.s_t1}, s{self.s_t1}, s{self.s_t2}
        s_add_u32 s{self.s_ho}, s{self.s_t1}, {HIMG}
        v_mul_u32_u24 v{vt[1]}, 160, v{vt[1]}
        v_lshl_add_u32 v{vt[1]}, v{vt[0]}, 3, v{vt[1]}
        v_add_u32 v{self.vD}, s{self.s_xs}, v{vt[1]}
        v_add_u32 v{self.vA[0]}, {73728 if self.early else 0}, v{c.vl16}
        v_add_u32 v{self.vA[1]}, {(73728 if self.early else 0) + 3*self.SLOT}, v{c.vl16}
        v_add_u32 v{self.vA[2]}, {0 if self.early else 6*self.SLOT}, v{c.vl16}
        s_mul_i32 s{self.s_bo}, s{self.s_tb16}, {self.NU*1024}
        s_add_u32 s{self.s_bo}, s{self.s_bo}, {OIMG if self.k3 else ACT}""")
    def loadB(self, u):
        k = self.c.k; c = self.c
        k(f"buffer_load_dwordx4 {vr(self.fb+4*(u % self.D),4)}, v{c.vl16}, {sr(c.sO,4)}, s{self.s_bo} offen offset:{(u%4)*1024}{c.lsc}")
        if u % 4 == 3: k(f"s_add_u32 s{self.s_bo}, s{self.s_bo}, 4096")
    def rdA(self, u):
        slot = (u // 4) % self.NSL
        if self.early and slot == 4: slot = 6
        return [f"ds_read_b128 {vr(self.fa[u%3]+4*T,4)}, v{self.vA[slot//3]} offset:{(slot%3)*self.SLOT+((u%4)*5+T)*1024}" for T in range(5)]
    def main(self, init=True, resident=False):
        k = self.c.k; c = self.c; NU = self.NU; D = self.D; res = self.res
        order = []
        def resld():
            k(f"""s_add_u32 s{self.s_t1}, s{self.s_ho}, 4096
            buffer_load_dwordx4 {vr(res,4)}, v{self.vH}, {sr(c.sO,4)}, s{self.s_ho} offen{c.lsc}
            buffer_load_dwordx4 {vr(res+4,4)}, v{self.vH}, {sr(c.sO,4)}, s{self.s_ho} offen offset:2048{c.lsc}
            buffer_load_dwordx4 {vr(res+8,4)}, v{self.vH}, {sr(c.sO,4)}, s{self.s_t1} offen{c.lsc}""")
            order.extend('rrr')
        nxt = 0
        for u in range(self.D0):
            self.loadB(u); order.append(u); nxt += 1
        if not c.fused: k.stamp(2)
        if init: k("s_barrier")
        if not c.fused: k.stamp(3)
        for x in self.rdA(0) + self.rdA(1): k(x)
        for u in range(NU):
            rd = []
            if self.bar8:
                if u % 8 == 6 and u < 48: k("s_barrier")
            elif u % 4 == 2 and u // 4 < self.NCH - 1 and not resident: k("s_barrier")
            if u + 2 < NU: rd = self.rdA(u + 2)
            younger = len(order) - 1 - order.index(u)
            if u == NU - 1: younger = 0
            k(f"s_waitcnt vmcnt({younger}) lgkmcnt({5 if u + 1 < NU else 0})")
            if u in getattr(self, 'fine', {}): k.stamp(self.fine[u]); k("s_waitcnt lgkmcnt(0)") if K.STAMP else None
            b = self.fb + 4 * (u % D)
            for T in range(5):
                k(f"{MF} {vr(self.acc+4*T,4)}, {vr(self.fa[u%3]+4*T,4)}, {vr(b,4)}, {'0' if u == 0 else vr(self.acc+4*T,4)}")
                if T < len(rd): k(rd[T])
                if T == 2 and nxt < NU and nxt < u + D:
                    self.loadB(nxt); order.append(nxt); nxt += 1
            if nxt < NU and nxt <= u + D:
                self.loadB(nxt); order.append(nxt); nxt += 1
            if not self.k3 and u == NU - 12: resld()
        if self.k3:
            for T in range(5): k(f"ds_read_b64 {vr(self.fa[0]+2*T,2)}, v{self.vD} offset:{T*32}")
            k("s_waitcnt lgkmcnt(0)")
    def setup_pair(self):
        k = self.c.k; c = self.c
        k(f"""s_and_b32 s{self.s_t1}, s{c.s_w}, 1
        s_mul_i32 s{self.s_t2}, s{self.s_t1}, 5120
        v_add_u32 v{self.vA[0]}, s{self.s_t2}, v{c.vl16}
        v_add_u32 v{self.vA[1]}, {3*self.SLOT}, v{self.vA[0]}
        v_add_u32 v{self.vA[2]}, {6*self.SLOT}, v{self.vA[0]}
        s_lshl_b32 s{self.s_t1}, s{self.s_t1}, 10
        s_add_u32 s{self.s_t1}, s{self.s_t1}, {OIMG if self.k3 else ACT}
        s_mul_i32 s{self.s_bo}, s{self.s_tb16}, {self.NU*1024}
        s_add_u32 s{self.s_bo}, s{self.s_bo}, s{self.s_t1}
        s_xor_b32 s{self.s_boY}, s{self.s_tb16}, 1
        s_mul_i32 s{self.s_boY}, s{self.s_boY}, {self.NU*1024}
        s_add_u32 s{self.s_boY}, s{self.s_boY}, s{self.s_t1}
        s_mul_i32 s{self.s_t1}, s{c.s_w}, 5120
        v_add_u32 v{self.vE[0]}, s{self.s_t1}, v{c.vl16}
        s_xor_b32 s{self.s_t1}, s{c.s_w}, 1
        s_mul_i32 s{self.s_t1}, s{self.s_t1}, 5120
        v_add_u32 v{self.vE[1]}, s{self.s_t1}, v{c.vl16}""")
    def main_pair(self):
        k = self.c.k; c = self.c; N = self.NU // 2; D = self.D; res = self.res
        order = []
        def loadB(u, y):
            so = self.s_boY if y else self.s_bo
            k(f"buffer_load_dwordx4 {vr(self.fb+8*(u % D)+4*y,4)}, v{c.vl16}, {sr(c.sO,4)}, s{so} offen offset:{(u%2)*2048}{c.lsc}")
            if u % 2 == 1: k(f"s_add_u32 s{so}, s{so}, 4096")
            order.append((u, y))
        def rdA(u):
            slot = (u // 2) % self.NSL
            return [f"ds_read_b128 {vr(self.fa[u%2]+4*T,4)}, v{self.vA[slot//3]} offset:{(slot%3)*self.SLOT+((u%2)*10+T)*1024}" for T in range(5)]
        q = [(u, y) for u in range(N) for y in range(2)]
        for _ in range(2 * self.D0): loadB(*q.pop(0))
        for x in rdA(0): k(x)
        for u in range(N):
            younger = 0 if u == N - 1 else len(order) - 1 - order.index((u, 1))
            k(f"s_waitcnt vmcnt({younger}) lgkmcnt(0)")
            if u in getattr(self, 'fine', {}): k.stamp(self.fine[u])
            bar = u % 4 == 3 and u < 24
            rd = rdA(u + 1) if u + 1 < N else []
            b = self.fb + 8 * (u % D)
            for i in range(10):
                T = i // 2; y = 1 - (i & 1)
                if u == N - 1: T = i % 5; y = 1 - i // 5
                a = (self.acc, self.accY)[y] + 4 * T
                k(f"{MF} {vr(a,4)}, {vr(self.fa[u%2]+4*T,4)}, {vr(b+4*y,4)}, {'0' if u == 0 else vr(a,4)}")
                if bar and i == 1: k("s_barrier")
                j = i - (1 if bar else 0)
                if 0 <= j < len(rd): k(rd[j])
                if i in (5, 7) and q and q[0][0] < u + D: loadB(*q.pop(0))
                if i in (6, 8) and q and q[0][0] < u + D and len(order) < 2 * (u + D) - 2: loadB(*q.pop(0))
            if u == N - 8:
                k(f"""s_add_u32 s{self.s_t1}, s{self.s_ho}, 4096
                buffer_load_dwordx4 {vr(res,4)}, v{self.vH}, {sr(c.sO,4)}, s{self.s_ho} offen{c.lsc}
                buffer_load_dwordx4 {vr(res+4,4)}, v{self.vH}, {sr(c.sO,4)}, s{self.s_ho} offen offset:2048{c.lsc}
                buffer_load_dwordx4 {vr(res+8,4)}, v{self.vH}, {sr(c.sO,4)}, s{self.s_t1} offen{c.lsc}""")
                order.extend('rrr')
        assert not q
        for T in range(5): k(f"ds_write_b128 v{self.vE[0]}, {vr(self.accY+4*T,4)} offset:{T*1024}")
        k("s_waitcnt lgkmcnt(0)\ns_barrier")
        for T in range(5): k(f"ds_read_b128 {vr(self.fb+4*T,4)}, v{self.vE[1]} offset:{T*1024}")
        for T in range(5):
            k(f"s_waitcnt lgkmcnt({4-T})")
            for p in range(2): k(f"v_pk_add_f32 {vr(self.acc+4*T+2*p,2)}, {vr(self.acc+4*T+2*p,2)}, {vr(self.fb+4*T+2*p,2)}")
    def epilogue(self):
        k = self.c.k; c = self.c; t = self.vt; acc = self.acc; res = self.res; sO = c.sO; vH = self.vH; sc = c.sc
        if self.k3:
            k(f"s_mov_b32 s{self.s_cnt}, 0x3f803f80\nv_mov_b32 v{t[0]}, 0\nv_mov_b32 v{t[1]}, 0")
            src = self.fa[0]
        else:
            for p in range(3):
                k(f"v_permlane32_swap_b32 v{res+4*p}, v{res+4*p+2}\nv_permlane32_swap_b32 v{res+4*p+1}, v{res+4*p+3}")
            src = res
        pk = self.fa[1]
        for T in range(5):
            for d in range(2):
                x = src + 2 * T + d; a = acc + 4 * T + 2 * d
                k(f"""v_lshlrev_b32 v{t[2+2*d]}, 16, v{x}
                v_and_b32 v{t[3+2*d]}, 0xffff0000, v{x}
                v_add_f32 v{a}, v{a}, v{t[2+2*d]}
                v_add_f32 v{a+1}, v{a+1}, v{t[3+2*d]}
                v_cvt_pk_bf16_f32 v{pk+2*T+d}, v{a}, v{a+1}""")
        if self.k3:
            for i in range(10):
                k(f"v_dot2c_f32_bf16 v{t[0]}, s{self.s_cnt}, v{pk+i}\nv_dot2c_f32_bf16 v{t[1]}, v{pk+i}, v{pk+i}")
            for p in range(3):
                k(f"v_permlane32_swap_b32 v{pk+4*p}, v{pk+4*p+2}\nv_permlane32_swap_b32 v{pk+4*p+1}, v{pk+4*p+3}")
            k(f"""s_add_u32 s{self.s_t1}, s{self.s_ho}, 4096
            buffer_store_dwordx4 {vr(pk,4)}, v{vH}, {sr(sO,4)}, s{self.s_ho} offen{sc}
            buffer_store_dwordx4 {vr(pk+4,4)}, v{vH}, {sr(sO,4)}, s{self.s_ho} offen offset:2048{sc}
            s_mov_b32 exec_hi, 0
            buffer_store_dwordx4 {vr(pk+8,4)}, v{vH}, {sr(sO,4)}, s{self.s_t1} offen{sc}
            s_mov_b32 exec_hi, -1
            v_mov_b32 v{t[2]}, v{t[0]}
            v_mov_b32 v{t[3]}, v{t[1]}
            v_permlane32_swap_b32 v{t[2]}, v{t[0]}
            v_permlane32_swap_b32 v{t[3]}, v{t[1]}
            v_add_f32 v{t[0]}, v{t[0]}, v{t[2]}
            v_add_f32 v{t[1]}, v{t[1]}, v{t[3]}
            v_mov_b32 v{t[2]}, v{t[0]}
            v_mov_b32 v{t[3]}, v{t[1]}
            v_permlane16_swap_b32 v{t[2]}, v{t[0]}
            v_permlane16_swap_b32 v{t[3]}, v{t[1]}
            v_add_f32 v{acc}, v{t[0]}, v{t[2]}
            v_add_f32 v{acc+1}, v{t[1]}, v{t[3]}
            v_lshlrev_b32 v{t[4]}, 3, v{c.vl}
            s_lshl_b32 s{self.s_t2}, s{self.s_c}, 14
            s_lshl_b32 s{self.s_t0}, s{self.s_tb16}, 7
            s_add_u32 s{self.s_t2}, s{self.s_t2}, s{self.s_t0}
            s_add_u32 s{self.s_t2}, s{self.s_t2}, {STATS}
            s_mov_b64 exec, 0xffff
            buffer_store_dwordx2 {vr(acc,2)}, v{t[4]}, {sr(sO,4)}, s{self.s_t2} offen{sc}
            s_mov_b64 exec, -1""")
        else:
            for T in range(5): k(f"ds_write_b64 v{self.vD}, {vr(pk+2*T,2)} offset:{T*32}")
            k(f"v_add_u32 v{t[0]}, s{self.s_xs}, v{c.vl16}\ns_waitcnt lgkmcnt(0)")
            for i in range(3): k(f"ds_read_b128 {vr(self.fa[0]+4*i,4)}, v{t[0]} offset:{i*1024}")
            for i in range(3):
                k(f"s_waitcnt lgkmcnt({2-i})")
                if i == 2: k("s_mov_b32 exec_hi, 0")
                k(f"buffer_store_dwordx4 {vr(self.fa[0]+4*i,4)}, v{self.vrow[i]}, {sr(self.sX,4)}, 0 offen{self.ofl}")
            k("s_mov_b32 exec_hi, -1")

class P4:
    CK, NSL, NCH, SLOT = 4, 5, 10, 28672
    CSB = 5 * 28672
    def __init__(self, c, D=12, D0=None):
        self.c = c; k = c.k; self.D = D; self.D0 = D0 or D; self.lds = self.CSB + 1024 + 8192
        c.reset()
        (self.s_tb, self.s_g, self.s_t0, self.s_t1, self.s_t2, self.s_bo, self.s_wo, self.s_m0) = [k.s() for _ in range(8)]
        self.vt = [k.v() for _ in range(4)]; self.vA = [k.v() for _ in range(3)]
        self.st = k.v(8, 4); self.par = k.v(6, 2)
        self.acc = [k.v(16, 4) for _ in range(7)]
        self.fa = [k.v(28, 4), k.v(28, 4)]
        self.fb = k.v(4 * D, 4)
    def ids(self):
        k = self.c.k
        k(f"""s_and_b32 s{self.s_t0}, s2, 1
        s_lshl_b32 s{self.s_t0}, s{self.s_t0}, 3
        s_bfe_u32 s{self.s_t1}, s2, 0x30003
        s_add_u32 s{self.s_tb}, s{self.s_t0}, s{self.s_t1}
        s_lshl_b32 s{self.s_tb}, s{self.s_tb}, 2
        s_add_u32 s{self.s_tb}, s{self.s_tb}, s{self.c.s_wl}
        s_bfe_u32 s{self.s_t0}, s2, 0x20001
        s_lshl_b32 s{self.s_t0}, s{self.s_t0}, 2
        s_lshr_b32 s{self.s_t1}, s2, 6
        s_add_u32 s{self.s_g}, s{self.s_t0}, s{self.s_t1}""")
    def ld_setup(self):
        k = self.c.k
        k(f"""s_mul_i32 s{self.s_wo}, s{self.c.s_wl}, 16
        s_add_u32 s{self.s_wo}, s{self.s_wo}, s{self.s_g}
        s_mul_i32 s{self.s_wo}, s{self.s_wo}, 7168
        s_add_u32 s{self.s_wo}, s{self.s_wo}, {WGUP}
        s_mul_i32 s{self.s_m0}, s{self.c.s_wl}, 7168""")
    thin = None
    def ld_chunk(self, slot, thin=False):
        k = self.c.k; c = self.c
        k(f"s_add_u32 m0, s{self.s_m0}, {slot*self.SLOT}\ns_add_u32 s{self.s_t2}, s{self.s_wo}, 4096")
        for i in range(4):
            k(f"buffer_load_dwordx4 v{c.vl16}, {sr(c.sO,4)}, s{self.s_wo} offen offset:{i*1024}{c.lsc} lds")
        k(f"s_add_u32 m0, m0, 4096\ns_add_u32 s{self.s_wo}, s{self.s_wo}, {4*112*1024}")
        if thin and self.thin is not None: k(f"s_waitcnt vmcnt({self.thin})")
        for i in range(3):
            k(f"buffer_load_dwordx4 v{c.vl16}, {sr(c.sO,4)}, s{self.s_t2} offen offset:{i*1024}{c.lsc} lds")
    def ld_cs(self):
        k = self.c.k; c = self.c
        k(f"""s_mul_i32 s{self.s_t2}, s{self.s_g}, 896
        s_mov_b32 m0, {self.CSB}
        s_add_u32 s{self.s_t2}, s{self.s_t2}, {CSG}
        buffer_load_dwordx4 v{c.vl16}, {sr(c.sO,4)}, s{self.s_t2} offen{c.lsc} lds""")
    def ld_stats(self):
        k = self.c.k; c = self.c
        k(f"""s_lshr_b32 s{self.s_t0}, s{self.s_tb}, 2
        s_lshl_b32 s{self.s_t0}, s{self.s_t0}, 10
        s_lshl_b32 s{self.s_t1}, s{c.s_wl}, 15
        s_add_u32 s{self.s_t0}, s{self.s_t0}, s{self.s_t1}
        s_add_u32 s{self.s_t0}, s{self.s_t0}, {STATS}
        s_lshl_b32 s{self.s_t1}, s{c.s_wl}, 11
        s_add_u32 m0, s{self.s_t1}, {self.CSB + 1024}
        s_add_u32 s{self.s_t1}, s{self.s_t0}, {16384 - 1024}
        buffer_load_dwordx4 v{c.vl16}, {sr(c.sO,4)}, s{self.s_t0} offen{c.lsc} lds
        buffer_load_dwordx4 v{c.vl16}, {sr(c.sO,4)}, s{self.s_t1} offen offset:1024{c.lsc} lds""")
    def ld_main(self, issued, extra, init=True):
        k = self.c.k; NCH = self.NCH
        if init: k(f"s_waitcnt vmcnt({7*(issued-1)+extra})\ns_barrier")
        nw = 0
        for ch in range(NCH - 1):
            k(f"s_waitcnt vmcnt({min(63, 7*max(0, issued-ch-2) + 5*nw)})\ns_barrier")
            while issued < NCH and issued <= ch + self.NSL and issued <= ch + 1 + self.ahead:
                self.ld_chunk(issued % self.NSL, True); issued += 1
            if self.warm and ch >= 4:
                assert issued == NCH
                if ch == 4: self.warm()
                for i_, j in enumerate(self.wsched[ch]):
                    if i_ and self.thin is not None: k(f"s_waitcnt vmcnt({self.thin + 1})")
                    self.warm_chunk(j); nw += 1
    warm = None
    mcorr = True
    lstat = True
    nob = False
    wsched = {4: (), 5: (0, 1), 6: (2, 3), 7: (4, 5), 8: (6,)}
    def setup(self):
        k = self.c.k; c = self.c; vt = self.vt
        k(f"""v_mov_b32 v{self.vA[0]}, v{c.vl16}
        v_add_u32 v{self.vA[1]}, {2*self.SLOT}, v{c.vl16}
        v_add_u32 v{self.vA[2]}, {4*self.SLOT}, v{c.vl16}
        s_mul_i32 s{self.s_bo}, s{self.s_tb}, 40960
        s_add_u32 s{self.s_bo}, s{self.s_bo}, {HIMG}
        v_and_b32 v{vt[0]}, 31, v{c.vl}
        v_lshrrev_b32 v{vt[1]}, 5, v{c.vl}
        v_lshlrev_b32 v{vt[2]}, 3, v{vt[0]}
        v_lshl_add_u32 v{vt[2]}, v{vt[1]}, {12 if self.lstat else 16}, v{vt[2]}""")
        if self.lstat: k(f"""s_lshl_b32 s{self.s_t0}, s{c.s_wl}, 8
        s_add_u32 s{self.s_t0}, s{self.s_t0}, {self.CSB + 1024}
        v_add_u32 v{vt[2]}, s{self.s_t0}, v{vt[2]}""")
        else: k(f"s_lshl_b32 s{self.s_t0}, s{self.s_tb}, 8\ns_add_u32 s{self.s_t0}, s{self.s_t0}, {STATS}")
    def loadB(self, u):
        k = self.c.k; c = self.c
        k(f"buffer_load_dwordx4 {vr(self.fb+4*(u % self.D),4)}, v{c.vl16}, {sr(c.sO,4)}, s{self.s_bo} offen offset:{(u%4)*1024}{c.lsc}")
        if u % 4 == 3: k(f"s_add_u32 s{self.s_bo}, s{self.s_bo}, 4096")
    def rdA(self, u):
        slot = (u // 4) % self.NSL
        return [f"ds_read_b128 {vr(self.fa[u&1]+4*T,4)}, v{self.vA[slot//2]} offset:{(slot%2)*self.SLOT+((u%4)*7+T)*1024}" for T in range(7)]
    def main(self, init=True, endbar=False):
        k = self.c.k; c = self.c; D = self.D; st = self.st
        order = []; nxt = 0; pq = self.params(); assert D == 12; crd, ccv = self.corr_prep()
        for u in range(self.D0):
            self.loadB(u); order.append(u); nxt += 1
        if not c.fused: k.stamp(2)
        if init: k("s_barrier")
        if not c.fused: k.stamp(3)
        for x in self.rdA(0): k(x)
        for u in range(40):
            younger = len(order) - 1 - order.index(u)
            if u == 39: younger = 0
            k(f"s_waitcnt vmcnt({younger}) lgkmcnt(0)")
            if u in getattr(self, 'fine', {}): k.stamp(self.fine[u])
            bar = u % 4 == 3 and (u < 39 or endbar)
            rd = self.rdA(u + 1) if u < 39 else []
            b = self.fb + 4 * (u % D)
            r0 = 2 if bar else 0
            for T in range(7):
                k(f"{M16} {vr(self.acc[T],16)}, {vr(self.fa[u&1]+4*T,4)}, {vr(b,4)}, {'0' if u == 0 else vr(self.acc[T],16)}")
                if bar and T == 1: k("s_barrier")
                if T >= r0 - 1 or not bar:
                    j = T - (r0 - 1 if bar else 0)
                    for x in rd[2*j:2*j+2]: k(x)
                if u == 32 and T == 0 and self.mcorr: assert not pq; pq = crd
                if u == 34 and T == 0 and self.mcorr: assert not pq; pq = ccv
                if u >= 24 and T >= 4:
                    for x in pq[:2]: k(x)
                    del pq[:2]
                if T == 5 and nxt < 40 and nxt < u + D:
                    self.loadB(nxt); order.append(nxt); nxt += 1
            if nxt < 40 and nxt <= u + D:
                if not self.nob: self.loadB(nxt)
                order.append(nxt); nxt += 1
            if u == 20 and self.lstat:
                for i in range(4): k(f"ds_read_b64 {vr(st+2*i,2)}, v{self.vt[2]} offset:{i*1024}")
            if 4 <= u < 12 and u % 2 == 0 and not self.lstat:
                i = (u - 4) // 2
                k(f"buffer_load_dwordx2 {vr(st+2*i,2)}, v{self.vt[2]}, {sr(c.sO,4)}, s{self.s_t0} offen{c.lsc}")
                if i < 3: k(f"s_add_u32 s{self.s_t0}, s{self.s_t0}, 16384")
                order.append('s')
            if u == 38 and self.mcorr: k(self.corr(0))
            if u == 39: assert not pq
    def params(self):
        c = self.c; t = self.vt; st = self.st; par = self.par; vl = c.vl
        return [x.strip() for x in f"""v_lshrrev_b32 v{t[0]}, 5, v{vl}
        {f"v_and_b32 v{t[1]}, 31, v{vl}" if self.mcorr else f"v_lshlrev_b32 v{t[1]}, 2, v{t[0]}"}
        v_lshlrev_b32 v{t[1]}, 2, v{t[1]}
        v_add_u32 v{t[1]}, {self.CSB}, v{t[1]}
        v_add_f32 v{st}, v{st}, v{st+2}
        v_add_f32 v{st+1}, v{st+1}, v{st+3}
        v_add_f32 v{st+4}, v{st+4}, v{st+6}
        v_add_f32 v{st+5}, v{st+5}, v{st+7}
        v_add_f32 v{st}, v{st}, v{st+4}
        v_add_f32 v{st+1}, v{st+1}, v{st+5}
        v_mov_b32 v{st+2}, v{st}
        v_mov_b32 v{st+3}, v{st+1}
        v_bfe_u32 v{t[2]}, v{vl}, 4, 1
        v_mul_u32_u24 v{t[2]}, 55296, v{t[2]}
        v_permlane32_swap_b32 v{st+2}, v{st}
        v_permlane32_swap_b32 v{st+3}, v{st+1}
        v_add_f32 v{st}, v{st}, v{st+2}
        v_add_f32 v{st+1}, v{st+1}, v{st+3}
        v_mul_f32 v{par}, {f2u(-1.0/640):#x}, v{st}
        v_mul_f32 v{st+1}, {f2u(1.0/640):#x}, v{st+1}
        v_fma_f32 v{st+1}, -v{par}, v{par}, v{st+1}
        v_max_f32 v{st+1}, 0, v{st+1}
        v_add_f32 v{par+4}, {f2u(1e-5):#x}, v{st+1}
        v_rsq_f32 v{par+2}, v{par+4}
        v_cmp_gt_u32 vcc, 32, v{vl}
        v_mov_b32 v{par+5}, v{par+4}
        v_mul_f32 v{par+2}, {f2u(-math.log2(math.e)):#x}, v{par+2}
        v_lshl_add_u32 v{t[2]}, v{t[0]}, 8, v{t[2]}
        v_mov_b32 v{par+3}, v{par+2}
        v_and_b32 v{t[3]}, 15, v{vl}
        v_lshl_add_u32 v{t[2]}, v{t[3]}, 4, v{t[2]}
        s_mul_i32 s{self.s_t0}, s{self.s_tb}, {2*55296}
        s_mul_i32 s{self.s_t1}, s{self.s_g}, 3584
        s_add_u32 s{self.s_t0}, s{self.s_t0}, s{self.s_t1}
        s_add_u32 s{self.s_t0}, s{self.s_t0}, {ACT}
        v_cndmask_b32 v{par}, 0, v{par}, vcc
        v_cvt_pk_bf16_f32 v{st+4}, v{par}, v{par}
        v_and_b32 v{par+1}, 0xffff0000, v{st+4}
        v_sub_f32 v{par+1}, v{par}, v{par+1}
        v_cvt_pk_bf16_f32 v{st+5}, v{par+1}, 0""".split("\n")][:None if self.mcorr else -5] + ([] if self.mcorr else [f"v_mov_b32 v{par+1}, v{par}"])
    def corr_prep(self):
        ca = self.fb + 16
        rd = [f"ds_read_b32 v{ca+2*T}, v{self.vt[1]} offset:{T*128}" for T in range(7)]
        cv = []
        for T in range(7):
            a = ca + 2 * T; h = self.st + 6 + (T & 1)
            cv += [f"v_cvt_pk_bf16_f32 v{a+1}, v{a}, 0", f"v_lshlrev_b32 v{h}, 16, v{a+1}", f"v_sub_f32 v{a}, v{a}, v{h}", f"v_cvt_pk_bf16_f32 v{a}, v{h}, v{a}"]
        return rd, cv
    def corr(self, T): return f"{M8} {vr(self.acc[T],16)}, {vr(self.fb+16+2*T,2)}, {vr(self.st+4,2)}, {vr(self.acc[T],16)}"
    def epilogue(self, L_fin):
        k = self.c.k; c = self.c; t = self.vt; st = self.st; par = self.par; vl = c.vl
        tmp = self.fa[0] if self.mcorr else self.fb
        cs = [self.fa[0], self.fa[0] + 16, self.fa[0] + 32]
        def rdcs(T):
            for j in range(4): k(f"ds_read_b128 {vr(cs[T%3]+4*j,4)}, v{t[1]} offset:{T*128+32*j}")
        if not self.mcorr: rdcs(0); rdcs(1)
        for T in range(7):
            A = self.acc[T]; cc = cs[T % 3]
            if self.mcorr:
                if T + 1 < 7: k(self.corr(T + 1))
            else:
                if T + 2 < 7: rdcs(T + 2)
                k(f"s_waitcnt lgkmcnt({4*min(2, 6-T)})")
                for p in range(8): k(f"v_pk_fma_f32 {vr(A+2*p,2)}, {vr(cc+2*p,2)}, {vr(par,2)}, {vr(A+2*p,2)}")
            for p in range(4): k(f"v_pk_mul_f32 {vr(tmp+2*p,2)}, {vr(A+2*p,2)}, {vr(par+2,2)}")
            for i in range(8): k(f"v_exp_f32 v{tmp+i}, v{tmp+i}")
            for p in range(4): k(f"v_pk_mul_f32 {vr(A+2*p,2)}, {vr(A+2*p,2)}, {vr(A+8+2*p,2)}")
            for p in range(4): k(f"v_pk_fma_f32 {vr(tmp+2*p,2)}, {vr(tmp+2*p,2)}, {vr(par+4,2)}, {vr(par+4,2)}")
            for i in range(8): k(f"v_rcp_f32 v{tmp+i}, v{tmp+i}")
            for p in range(4): k(f"v_pk_mul_f32 {vr(A+2*p,2)}, {vr(A+2*p,2)}, {vr(tmp+2*p,2)}")
            for p in range(4): k(f"v_cvt_pk_bf16_f32 v{A+8+p}, v{A+2*p}, v{A+2*p+1}")
            k(f"buffer_store_dwordx4 {vr(A+8,4)}, v{t[2]}, {sr(c.sO,4)}, s{self.s_t0} offen offset:{T*512}{c.sc}")
            if T == 2: k(f"s_cmp_eq_u32 s{self.s_g}, 15\ns_cbranch_scc1 {L_fin}")
        k(f"{L_fin}:")

def gen(which, opt):
    if which in '35':
        o = opt('K' + which)
        c = Ctx("k3_oproj_kernel" if which == '3' else "k5_down_kernel", False); k = c.k
        P = P35(c, int(which), D=o.get('D', 12 if which == '5' else 20)); P.ahead = o.get('ahead', 2)
        c.entry(int(which) - 1, P.ptr_load())
        P.ids(); c.ws_srd()
        L = k.label("ld"); lw(c, L)
        P.setup(); P.main(); k.stamp(4); k.stamp(5); P.epilogue(); c.finish()
        k(f"{L}:"); P.ld_setup()
        for ch in range(2): P.ld_chunk(ch)
        P.ld_main(2); k("s_endpgm")
        return k, (256, 512, P.lds)
    if which == '4':
        o = opt('K4')
        c = Ctx("k4_gateup_kernel", False); k = c.k
        P = P4(c, D=o.get('D', 12)); P.ahead = o.get('ahead', 2)
        c.entry(3); P.ids(); c.ws_srd()
        L = k.label("ld"); lw(c, L)
        P.setup(); P.main(); k.stamp(4); k.stamp(5); P.epilogue(k.label("fin")); c.finish()
        k(f"{L}:"); P.ld_setup()
        for ch in range(2): P.ld_chunk(ch)
        P.ld_cs(); P.ld_stats()
        P.ld_main(2, 3); k("s_endpgm")
        return k, (256, 512, P.lds)
    import mega
    return mega.gen(opt)
```

```python
from ph2 import *
NAME = "sequential_preLN__softmax_full_mha__swiglu_ffn__prompt_kernel"

def gen(opt):
    o = opt('M')
    c = Ctx(NAME, True); k = c.k
    sO = c.sO; sWS = c.sWS; s_w = c.s_w; s_wl = c.s_wl; vl = c.vl; vl16 = c.vl16; sc = c.sc
    rot = o.get('rot', True); c.pdepth = o.get('pd', 1)
    sD = k.s(4)
    s_po = k.s(); s_cs = k.s(); vPA = k.v(); vPS = k.v(); sA = k.s(4); sB = k.s(4); sR = [k.s() for _ in range(5)]
    c.s0 = k.snext; c.v0 = k.vnext
    SLOT = 32768; NS = 4
    SL = 12288; VB = 3 * SL; PREP = 6 * SL; EXB = PREP
    sP = k.s(4); sX = sA; sW = sB; sQ = k.s(8); sWD = k.s(2); sPC = k.s(2)
    s_tb = k.s(); s_cg = k.s(); s_t0 = k.s(); s_t2 = k.s()
    s_ow, s_m0x, s_slot, s_delta, s_t1 = sR
    s_ox = k.s(); s_cnt = k.s(); s_rs = k.s(); s_msk = k.s()
    vt = [k.v() for _ in range(6)]
    vXA = [k.v() for _ in range(4)]; vWA = [k.v(), k.v()]
    vX = [k.v() for _ in range(4)]; vW = [k.v() for _ in range(4)]
    acc = [[k.v(16, 4) for _ in range(2)] for _ in range(2)]
    fx = [[k.v(4, 4) for _ in range(2)] for _ in range(2)]
    fw = [[k.v(4, 4) for _ in range(2)] for _ in range(2)]
    acs = k.v(16, 4); ones = k.v(4, 4); vpf = k.v(16, 4)
    XCH = NS * SLOT; NM, RS, CS = 0, 512, 1024
    L_spare = k.label("spare"); L_v = k.label("vpath"); L_J0 = k.label("J0"); L_comp = k.label("comp")
    k.kidx = 1; k.stamp_real(0); k.stamp(1)
    k(f"""s_load_dwordx4 {sr(sP,4)}, s[0:1], {KA_X}
    s_load_dwordx4 {sr(sD,4)}, s[0:1], {KA_DBG}
    s_cmp_ge_u32 s2, 256
    s_cbranch_scc1 {c.L_end}
    v_lshrrev_b32 v{vt[0]}, 6, v0
    v_and_b32 v{vl}, 63, v0
    v_readfirstlane_b32 s{s_w}, v{vt[0]}
    s_and_b32 s{s_t0}, s2, 3
    s_lshl_b32 s{s_t0}, s{s_t0}, 2
    s_bfe_u32 s{s_t1}, s2, 0x20003
    s_add_u32 s{s_tb}, s{s_t0}, s{s_t1}
    s_bfe_u32 s{s_t0}, s2, 0x10002
    s_lshr_b32 s{s_t1}, s2, 5""")
    if o.get('sfirst', True): k(f"s_sub_u32 s{s_t1}, s{s_t1}, s{s_t0}\ns_and_b32 s{s_t1}, s{s_t1}, 7")
    k(f"""s_lshl_b32 s{s_t0}, s{s_t0}, 3
    s_add_u32 s{s_cg}, s{s_t0}, s{s_t1}
    s_and_b32 s{s_wl}, s{s_w}, 3
    s_cmp_eq_u32 s{s_cg}, 15
    s_cbranch_scc1 {L_spare}
    s_cmp_ge_u32 s{s_w}, 4
    s_cbranch_scc1 {L_comp}
    v_lshrrev_b32 v{vt[0]}, 3, v{vl}
    v_lshl_add_u32 v{vt[0]}, s{s_w}, 5, v{vt[0]}
    v_mul_u32_u24 v{vt[0]}, 1280, v{vt[0]}
    v_lshrrev_b32 v{vt[1]}, 4, v{vl}
    v_and_b32 v{vt[2]}, 7, v{vl}
    v_xor_b32 v{vt[2]}, v{vt[2]}, v{vt[1]}
    v_lshl_add_u32 v{vX[0]}, v{vt[2]}, 4, v{vt[0]}
    v_xor_b32 v{vX[1]}, 64, v{vX[0]}
    v_add_u32 v{vX[2]}, {2*(8*1280-1024)}, v{vX[0]}
    v_add_u32 v{vX[1]}, {8*1280-1024}, v{vX[1]}
    v_add_u32 v{vX[3]}, {2*(8*1280-1024)}, v{vX[1]}
    v_lshl_add_u32 v{vt[0]}, s{s_w}, 4, v{vt[1]}
    v_mul_u32_u24 v{vt[0]}, 3840, v{vt[0]}
    v_and_b32 v{vt[2]}, 15, v{vl}
    v_lshlrev_b32 v{vt[3]}, 2, v{vt[1]}
    v_xor_b32 v{vt[2]}, v{vt[2]}, v{vt[3]}
    v_lshl_add_u32 v{vW[0]}, v{vt[2]}, 4, v{vt[0]}
    v_add_u32 v{vW[1]}, {4*3840-1024}, v{vW[0]}
    v_add_u32 v{vW[2]}, {2*(4*3840-1024)}, v{vW[0]}
    v_add_u32 v{vW[3]}, {3*(4*3840-1024)}, v{vW[0]}
    s_mul_i32 s{s_t0}, s{s_tb}, {128*1280}
    s_lshl_b32 s{s_t1}, s{s_cg}, 8
    s_lshl_b32 s{s_m0x}, s{s_w}, 12
    s_mov_b32 s{sX+2}, {128*1280}
    s_mov_b32 s{sX+3}, 0x20000
    s_sub_u32 s{sW+2}, {640*3840}, s{s_t1}
    s_mov_b32 s{sW+3}, 0x20000""")
    r0 = o.get('rot0', 1)
    if rot and not r0: k(f"s_and_b32 s{s_t2}, s2, 7\ns_lshl_b32 s{s_ox}, s{s_t2}, 7\ns_mul_i32 s{s_ow}, s{s_t2}, {64*3840}")
    else: k(f"s_mov_b32 s{s_ox}, 0\ns_mov_b32 s{s_ow}, 0")
    k(f"""s_waitcnt lgkmcnt(0)
    s_add_u32 s{sX}, s{sP}, s{s_t0}
    s_addc_u32 s{sX+1}, s{sP+1}, 0
    s_add_u32 s{sW}, s{sP+2}, s{s_t1}
    s_addc_u32 s{sW+1}, s{sP+3}, 0""")
    def dma_chunk(slot_const=None):
        if slot_const is not None: k(f"s_add_u32 m0, s{s_m0x}, {slot_const*SLOT}")
        else: k(f"s_add_u32 m0, s{s_m0x}, s{s_rs}")
        k(f"s_add_u32 s{s_t0}, s{s_ox}, 128")
        for i in range(4):
            k(f"buffer_load_dwordx4 v{vX[i]}, {sr(sX,4)}, s{s_ox} offen offset:{i*1024} lds")
        k(f"s_add_u32 m0, m0, 16384\ns_add_u32 s{s_t1}, s{s_ow}, {64*3840}")
        for i in range(4):
            k(f"buffer_load_dwordx4 v{vW[i]}, {sr(sW,4)}, s{s_ow} offen offset:{i*1024} lds")
        if r0 and slot_const == r0 - 1:
            k(f"s_and_b32 s{s_t2}, s2, 7\ns_add_u32 s{s_t2}, s{s_t2}, {r0}\ns_lshl_b32 s{s_ox}, s{s_t2}, 7\ns_mul_i32 s{s_ow}, s{s_t2}, {64*3840}")
        else:
            k(f"s_cmp_eq_u32 s{s_t0}, 1280\ns_cselect_b32 s{s_ox}, {128*r0}, s{s_t0}\ns_cselect_b32 s{s_ow}, {64*3840*r0}, s{s_t1}")
    def common_setup(ptrs=True):
        k(f"""s_mov_b64 {sr(sWS,2)}, {sr(sD+2,2)}
        s_movk_i32 s{sD+2}, 256
        s_mov_b32 s{sD+3}, 0x20000
        v_lshlrev_b32 v{vl16}, 4, v{vl}""")
        srd(k, sO, sWS, sWS + 1, WSEND)
        if ptrs: k(f"s_load_dwordx8 {sr(sQ,8)}, s[0:1], {KA_WO}\ns_load_dwordx2 {sr(sWD,2)}, s[0:1], {KA_WD}")
    def xaddr():
        k(f"""v_and_b32 v{vt[0]}, 31, v{vl}
        v_lshrrev_b32 v{vt[1]}, 5, v{vl}
        v_bfe_u32 v{vt[2]}, v{vl}, 1, 3
        v_xor_b32 v{vt[2]}, v{vt[2]}, v{vt[1]}
        v_lshlrev_b32 v{vt[2]}, 4, v{vt[2]}
        v_lshl_add_u32 v{vt[2]}, v{vt[0]}, 7, v{vt[2]}""")
    def advance(regs):
        k(f"s_cmp_eq_u32 s{s_slot}, {(NS-1)*SLOT}\ns_mov_b32 s{s_delta}, {SLOT}")
        k(f"s_cselect_b32 s{s_delta}, {(-(NS-1)*SLOT) & 0xffffffff}, s{s_delta}")
        k(f"s_add_u32 s{s_slot}, s{s_slot}, s{s_delta}")
        return [f"v_add_u32 v{r}, s{s_delta}, v{r}" for r in regs]
    def prep_decode(loads):
        pid, cb, st = s_t0, s_t2, s_ox
        R0, A_, B_, C_, u = sR
        Ld = k.label("pd"); Lg = k.label("pg")
        k(f"""s_lshl_b32 s{pid}, s2, 2
        s_add_u32 s{pid}, s{pid}, s{s_wl}
        s_mov_b32 s{B_}, 8
        s_mov_b32 s{C_}, 4
        v_bfe_u32 v{vt[2]}, v{vl}, 4, 1
        v_lshrrev_b32 v{vt[1]}, 5, v{vl}
        s_waitcnt lgkmcnt(0)
        s_cmp_ge_u32 s{pid}, 560
        s_cbranch_scc1 {Ld}
        s_mul_i32 s{u}, s{pid}, 4682
        s_lshr_b32 s{u}, s{u}, 16
        s_mul_i32 s{cb}, s{u}, 14
        s_sub_u32 s{cb}, s{pid}, s{cb}
        s_mul_i32 s{s_po}, s{u}, {112*1024}
        s_add_u32 s{s_po}, s{s_po}, {WGUP}
        s_mov_b32 s{s_cs}, {CSG}
        v_lshlrev_b32 v{vt[2]}, 11, v{vt[2]}
        v_lshl_add_u32 v{vt[3]}, v{vt[1]}, 9, v{vt[2]}""")
        if loads:
            k(f"""s_lshl_b32 s{R0}, s{u}, 4
            s_mov_b32 s{A_}, 0
            s_movk_i32 s{st}, 3456
            s_mov_b64 {sr(sA,2)}, {sr(sQ+4,2)}
            s_mov_b64 {sr(sB,2)}, {sr(sQ+6,2)}
            s_mov_b32 s{sA+2}, {640*3456}""")
        k(f"""s_branch {Lg}
        {Ld}:
        s_min_u32 s{pid}, s{pid}, 929
        s_cmp_lt_u32 s{pid}, 830
        s_movk_i32 s{cb}, 830
        s_cselect_b32 s{cb}, 560, s{cb}
        s_mov_b32 s{s_po}, {WOP}
        s_cselect_b32 s{s_po}, {WDP}, s{s_po}""")
        if loads:
            k(f"""s_cselect_b64 {sr(sA,2)}, {sr(sWD,2)}, {sr(sQ,2)}
            s_cselect_b32 s{A_}, 16, 20
            s_cselect_b32 s{R0}, 32, 40
            s_mov_b32 s{sA+2}, {640*1280}
            s_cselect_b32 s{sA+2}, {1728*1280}, s{sA+2}""")
        k(f"""s_sub_u32 s{cb}, s{pid}, s{cb}
        s_mul_i32 s{u}, s{cb}, 13108
        s_lshr_b32 s{u}, s{u}, 16
        s_mul_i32 s{st}, s{u}, 5
        s_sub_u32 s{cb}, s{cb}, s{st}
        s_mul_i32 s{st}, s{u}, {40*1024}
        s_add_u32 s{s_po}, s{s_po}, s{st}
        s_mov_b32 s{s_cs}, {WSEND}
        v_lshlrev_b32 v{vt[2]}, 9, v{vt[2]}
        v_lshl_add_u32 v{vt[3]}, v{vt[1]}, 11, v{vt[2]}""")
        if loads:
            k(f"""s_mul_i32 s{R0}, s{R0}, s{u}
            s_mul_i32 s{st}, s{u}, 160
            s_sub_u32 s{st}, s{st}, {16*160-16}
            s_cmp_ge_u32 s{pid}, 910
            s_cselect_b32 s{R0}, s{st}, s{R0}
            s_cselect_b32 s{A_}, 80, s{A_}
            s_cselect_b32 s{B_}, 20, 8
            s_cselect_b32 s{C_}, 40, 4
            s_movk_i32 s{st}, 1280
            s_mov_b64 {sr(sB,2)}, {sr(sA,2)}""")
        k(f"""{Lg}:
        s_lshl_b32 s{cb}, s{cb}, 1
        s_lshr_b32 s{pid}, s{s_w}, 2
        s_add_u32 s{pid}, s{pid}, s{cb}
        s_lshl_b32 s{u}, s{pid}, 12
        s_add_u32 s{s_po}, s{s_po}, s{u}
        s_lshl_b32 s{u}, s{pid}, 9
        s_add_u32 s{s_cs}, s{s_cs}, s{u}
        v_bfe_u32 v{vt[2]}, v{vl}, 2, 2
        v_lshl_add_u32 v{vt[3]}, v{vt[2]}, 7, v{vt[3]}
        v_and_b32 v{vt[2]}, 3, v{vl}
        v_lshl_add_u32 v{vt[3]}, v{vt[2]}, 3, v{vt[3]}
        s_lshl_b32 s{u}, s{s_w}, 12
        s_add_u32 s{u}, s{u}, {PREP}
        v_add_u32 v{vPA}, s{u}, v{vt[3]}""")
        if loads:
            k(f"""s_mov_b32 s{sB+2}, s{sA+2}
            s_mov_b32 s{sA+3}, 0x20000
            s_mov_b32 s{sB+3}, 0x20000
            v_mul_u32_u24 v{vt[2]}, s{C_}, v{vt[1]}
            v_bfe_u32 v{vt[3]}, v{vl}, 3, 2
            v_add_u32 v{vt[2]}, v{vt[2]}, v{vt[3]}
            v_mul_u32_u24 v{vt[2]}, s{st}, v{vt[2]}
            v_and_b32 v{vt[3]}, 7, v{vl}
            v_lshl_add_u32 v{vPS}, v{vt[3]}, 4, v{vt[2]}
            s_mul_i32 s{R0}, s{R0}, s{st}
            s_lshl_b32 s{cb}, s{pid}, 7
            s_add_u32 s{R0}, s{R0}, s{cb}
            s_mul_i32 s{A_}, s{A_}, s{st}
            s_mul_i32 s{B_}, s{B_}, s{st}
            s_add_u32 s{A_}, s{A_}, s{R0}
            s_add_u32 s{C_}, s{A_}, s{B_}
            s_add_u32 s{B_}, s{B_}, s{R0}""")
    TD = o.get('TD', 0)
    sTX, sTW = sQ, sQ + 4; s_tx, s_tw = sWD, sWD + 1; vTX, vTW = vXA[0], vXA[1]
    def touch():
        k(f"""s_mov_b64 exec, 0xf
        buffer_load_dword v{vXA[2]}, v{vTX}, {sr(sTX,4)}, s{s_tx} offen
        s_mov_b64 exec, 0xff
        buffer_load_dword v{vXA[3]}, v{vTW}, {sr(sTW,4)}, s{s_tw} offen
        s_mov_b64 exec, -1
        s_add_u32 s{s_tx}, s{s_tx}, 128
        s_add_u32 s{s_tw}, s{s_tw}, {64*3840}
        s_cmp_eq_u32 s{s_tx}, 1280
        s_cselect_b32 s{s_tx}, 0, s{s_tx}
        s_cselect_b32 s{s_tw}, 0, s{s_tw}""")
    dma_chunk(0); dma_chunk(1)
    if TD:
        k(f"""s_mov_b64 {sr(sTX,2)}, {sr(sP,2)}
        s_mov_b32 s{sTX+2}, {2048*1280}
        s_mov_b32 s{sTX+3}, 0x20000
        s_mov_b64 {sr(sTW,2)}, {sr(sP+2,2)}
        s_mov_b32 s{sTW+2}, {640*3840}
        s_mov_b32 s{sTW+3}, 0x20000
        s_lshr_b32 s{s_t0}, s2, 3
        s_lshl_b32 s{s_t0}, s{s_t0}, 2
        s_add_u32 s{s_t0}, s{s_t0}, s{s_w}
        s_lshl_b32 s{s_t1}, s{s_t0}, 2
        s_and_b32 s{s_t2}, s2, 3
        s_lshl_b32 s{s_t2}, s{s_t2}, 9
        s_add_u32 s{s_t1}, s{s_t1}, s{s_t2}
        v_add_u32 v{vTX}, s{s_t1}, v{vl}
        v_mul_u32_u24 v{vTX}, 1280, v{vTX}
        s_lshr_b32 s{s_t1}, s{s_t0}, 1
        s_mul_i32 s{s_t1}, s{s_t1}, 3840
        s_and_b32 s{s_t0}, s{s_t0}, 1
        s_lshl_b32 s{s_t0}, s{s_t0}, 10
        s_add_u32 s{s_t1}, s{s_t1}, s{s_t0}
        s_bfe_u32 s{s_t0}, s2, 0x10002
        s_lshl_b32 s{s_t0}, s{s_t0}, 11
        s_add_u32 s{s_t1}, s{s_t1}, s{s_t0}
        v_lshl_add_u32 v{vTW}, v{vl}, 7, s{s_t1}
        s_mov_b32 s{s_tx}, s{s_ox}
        s_mov_b32 s{s_tw}, s{s_ow}""")
        for _ in range(TD + 1): touch()
    common_setup(ptrs=not TD)
    k(f"""s_mov_b32 s{s_rs}, {3*SLOT}
    s_waitcnt vmcnt({8 + (2*TD+2 if TD else 0)})
    s_barrier""")
    k.stamp(2)
    dma_chunk(2)
    L = k.label("hloop"); Lz = k.label("hz"); Lzx = k.label("hzx"); Lnz = k.label("hnz")
    nt = 7 - TD if TD else 0
    def hit(n, tch, vm):
        if n <= 0: return
        L = k.label("hloop")
        k(f"s_mov_b32 s{s_cnt}, {n}\n{L}:\ns_waitcnt vmcnt({vm})\ns_barrier")
        dma_chunk()
        if tch: touch()
        k(f"""s_add_u32 s{s_rs}, s{s_rs}, {SLOT}
        s_and_b32 s{s_rs}, s{s_rs}, {NS*SLOT-1}
        s_sub_u32 s{s_cnt}, s{s_cnt}, 1
        s_cmp_lg_u32 s{s_cnt}, 0
        s_cbranch_scc1 {L}""")
    hit(nt, True, 8 if not TD else 10); hit(7 - nt, False, 8)
    if TD: k(f"s_load_dwordx8 {sr(sQ,8)}, s[0:1], {KA_WO}\ns_load_dwordx2 {sr(sWD,2)}, s[0:1], {KA_WD}")
    k(f"""v_and_b32 v{vt[3]}, 15, v{vl}
    v_lshlrev_b32 v{vt[3]}, 4, v{vt[3]}
    buffer_load_dword v{vt[4]}, v{vt[3]}, {sr(sD,4)}, 0 offen sc1
    s_waitcnt vmcnt(9)
    s_barrier
    s_waitcnt vmcnt(1)
    s_barrier
    s_cmp_lg_u32 s{s_w}, 0
    s_cbranch_scc1 {Lnz}
    s_mov_b32 s{s_t1}, 0
    {Lz}:
    s_waitcnt vmcnt(0)
    v_cmp_ne_u32 vcc, 0, v{vt[4]}
    s_add_u32 s{s_t1}, s{s_t1}, 1
    s_cmp_eq_u64 vcc, -1
    s_cbranch_scc1 {Lzx}
    s_cmp_gt_u32 s{s_t1}, 0x40000
    s_cbranch_scc1 {Lzx}
    buffer_load_dword v{vt[4]}, v{vt[3]}, {sr(sD,4)}, 0 offen sc1
    s_branch {Lz}
    {Lzx}:
    s_mov_b32 m0, {XCH}
    s_lshl_b32 s{s_t0}, s{s_tb}, 10
    s_add_u32 s{s_t0}, s{s_t0}, {LN1}
    buffer_load_dwordx4 v{vl16}, {sr(sO,4)}, s{s_t0} offen sc1 lds
    {Lnz}:
    s_waitcnt vmcnt(0)""")
    k.stamp(3)
    k(f"s_barrier\ns_branch {L_J0}")
    k(f"""{L_comp}:
    s_getpc_b64 {sr(sPC,2)}
    L_pf_here:
    s_lshr_b32 s{s_t0}, s2, 3
    s_add_u32 s{s_t0}, s{s_t0}, {28 if o.get('sfirst', True) else 0}
    s_and_b32 s{s_t0}, s{s_t0}, 31
    s_lshl_b32 s{s_t0}, s{s_t0}, 2
    s_add_u32 s{s_t0}, s{s_t0}, s{s_wl}
    s_lshl_b32 s{s_t0}, s{s_t0}, 10
    s_sub_u32 s{sPC}, s{sPC}, L_pf_here - {NAME}
    s_subb_u32 s{sPC+1}, s{sPC+1}, 0
    s_cmp_gt_u32 s{s_t0}, L_code_end - {NAME} - 1024
    s_cbranch_scc1 L_pf_skip
    v_lshl_add_u32 v{vt[0]}, v{vl}, 4, s{s_t0}
    global_load_dwordx4 {vr(vpf,4)}, v{vt[0]}, {sr(sPC,2)}
    L_pf_skip:
    s_waitcnt lgkmcnt(0)""")
    if o.get('touch'):
        k(f"""s_mov_b64 {sr(sX,2)}, {sr(sP,2)}
        s_mov_b32 s{sX+2}, {2048*1280}
        s_mov_b32 s{sX+3}, 0x20000
        s_mov_b64 {sr(sW,2)}, {sr(sP+2,2)}
        s_mov_b32 s{sW+2}, {640*3840}
        s_mov_b32 s{sW+3}, 0x20000
        s_lshr_b32 s{s_t0}, s2, 3
        s_lshl_b32 s{s_t0}, s{s_t0}, 2
        s_add_u32 s{s_t0}, s{s_t0}, s{s_wl}
        s_mul_i32 s{s_t1}, s{s_t0}, 5
        v_lshrrev_b32 v{vt[0]}, 4, v{vl}
        v_add_u32 v{vt[0]}, s{s_t1}, v{vt[0]}
        v_mul_u32_u24 v{vt[0]}, 3840, v{vt[0]}
        v_and_b32 v{vt[1]}, 15, v{vl}
        v_lshl_add_u32 v{vt[0]}, v{vt[1]}, 7, v{vt[0]}
        s_bfe_u32 s{s_t1}, s2, 0x10002
        s_lshl_b32 s{s_t1}, s{s_t1}, 11
        s_add_u32 s{s_t2}, s{s_t1}, {4*3840}
        v_lshlrev_b32 v{vt[1]}, 7, v{vl}
        s_mul_i32 s{s_t0}, s{s_t0}, {40*128}
        s_and_b32 s{s_ox}, s2, 3
        s_mul_i32 s{s_ox}, s{s_ox}, {512*1280}
        s_add_u32 s{s_t0}, s{s_t0}, s{s_ox}
        buffer_load_dword v{vpf+4}, v{vt[0]}, {sr(sW,4)}, s{s_t1} offen
        s_mov_b32 exec_hi, 0xff
        buffer_load_dword v{vpf+5}, v{vt[1]}, {sr(sX,4)}, s{s_t0} offen
        s_mov_b64 exec, 0xffff
        buffer_load_dword v{vpf+6}, v{vt[0]}, {sr(sW,4)}, s{s_t2} offen
        s_mov_b64 exec, -1""")
    common_setup()
    if o.get('ptouch'):
        k(f"""v_lshlrev_b32 v{vt[0]}, {o['ptouch']}, v{vl}
        s_lshl_b32 s{s_t0}, s{s_wl}, {o['ptouch'] + 6}
        buffer_load_dword v{vpf+4}, v{vt[0]}, {sr(sO,4)}, s{s_t0} offen sc1""")
    xaddr()
    k(f"""s_lshr_b32 s{s_t0}, s{s_wl}, 1
    s_and_b32 s{s_t1}, s{s_wl}, 1
    s_lshl_b32 s{s_t2}, s{s_t0}, 13
    v_add_u32 v{vXA[0]}, s{s_t2}, v{vt[2]}""")
    for s in range(1, 4): k(f"v_xor_b32 v{vXA[s]}, {32*s}, v{vXA[0]}")
    k(f"""v_bfe_u32 v{vt[2]}, v{vl}, 2, 2
    v_lshl_add_u32 v{vt[3]}, v{vt[1]}, 3, v{vt[2]}
    v_lshlrev_b32 v{vt[3]}, 8, v{vt[3]}
    s_lshl_b32 s{s_t2}, s{s_t1}, 1
    s_add_u32 s{s_t2}, s{s_t2}, s{s_t0}
    v_xor_b32 v{vt[2]}, s{s_t2}, v{vt[2]}
    v_lshl_add_u32 v{vt[3]}, v{vt[2]}, 6, v{vt[3]}
    v_bfe_u32 v{vt[2]}, v{vl}, 4, 1
    v_lshl_add_u32 v{vt[3]}, v{vt[2]}, 5, v{vt[3]}
    v_and_b32 v{vt[2]}, 3, v{vl}
    v_lshl_add_u32 v{vt[3]}, v{vt[2]}, 3, v{vt[3]}
    v_add_u32 v{vWA[0]}, 16384, v{vt[3]}
    v_xor_b32 v{vWA[1]}, 64, v{vWA[0]}
    s_mov_b32 s{s_slot}, 0""")
    for i in range(4): k(f"v_mov_b32 v{ones+i}, 0x3f803f80")
    def reads(buf, s):
        out = []
        for mt in range(2):
            out.append(f"ds_read_b128 {vr(fx[buf][mt],4)}, v{vXA[s]} offset:{mt*4096}")
        for nt in range(2):
            for rd in range(2):
                out.append(f"ds_read_b64_tr_b16 {vr(fw[buf][nt]+2*rd,2)}, v{vWA[nt]} offset:{(16*s+4*rd)*256}")
        return [out[2], out[3], out[0], out[1], out[4], out[5]]
    def mfmas(buf, vpath, first):
        m = []
        for nt in range(2):
            for mt in range(2):
                a, b = (fx[buf][mt], fw[buf][nt]) if vpath else (fw[buf][nt], fx[buf][mt])
                m.append(f"{M16} {vr(acc[nt][mt],16)}, {vr(a,4)}, {vr(b,4)}, {'0' if first else vr(acc[nt][mt],16)}")
        m.append(f"{M16} {vr(acs,16)}, {vr(ones,4)}, {vr(fw[buf][0],4)}, {'0' if first else vr(acs,16)}")
        return m
    def chunk(vpath, last, first=False):
        for s in range(3):
            k("s_waitcnt lgkmcnt(0)")
            m = mfmas(s & 1, vpath, first and s == 0); rd = reads((s + 1) & 1, s + 1)
            ad = []
            if not last and s == 0: ad = [None]
            for i in range(5):
                k(m[i])
                for x in rd[2*i:2*i+2]: k(x)
                if i == 3 and not last:
                    if s == 0: adv[:] = advance([vXA[0], vXA[1], vXA[2], vXA[3], vWA[0], vWA[1]])
                    k(adv[s])
        k("s_waitcnt lgkmcnt(0)")
        m = mfmas(1, vpath, False)
        if last:
            for x in m: k(x)
            return
        k(m[0])
        for x in adv[3:]: k(x)
        k(m[1])
        k("s_barrier")
        rd = reads(0, 0)
        for x in rd[:3]: k(x)
        k(m[2])
        for x in rd[3:]: k(x)
        k(m[3]); k(m[4])
    adv = []
    def mainloop(vpath):
        k("s_barrier")
        k.stamp(2)
        for x in reads(0, 0): k(x)
        chunk(vpath, False, first=True)
        L = k.label("loop")
        if o.get('fine') == 1:
            for j in range(8):
                k.stamp(5 + j); chunk(vpath, False)
            k.stamp(13)
        else:
            k(f"s_mov_b32 s{s_cnt}, 8\n{L}:")
            chunk(vpath, False)
            k(f"s_sub_u32 s{s_cnt}, s{s_cnt}, 1\ns_cmp_lg_u32 s{s_cnt}, 0\ns_cbranch_scc1 {L}")
        chunk(vpath, True)
        k.stamp(3)
    def epilogue(vpath):
        t = vt
        la = fx[0][0]; rg = k.v(32, 4); hoff = t[3]
        k(f"""v_and_b32 v{t[0]}, 31, v{vl}
        s_lshl_b32 s{s_t2}, s{s_t2}, 7
        s_add_u32 s{s_ox}, s{s_t2}, {XCH}
        v_lshl_add_u32 v{t[2]}, v{t[0]}, 2, s{s_ox}
        s_lshl_b32 s{s_ow}, s{s_t0}, 8
        s_add_u32 s{s_ow}, s{s_ow}, {XCH}
        v_lshl_add_u32 v{t[1]}, v{t[0]}, 2, s{s_ow}
        v_lshrrev_b32 v{hoff}, 5, v{vl}
        v_lshlrev_b32 v{hoff}, 4, v{hoff}
        s_cmp_lt_u32 s{s_cg}, 5
        s_cselect_b32 s{s_cnt}, {f2u(QSCALE):#x}, 1.0
        ds_write_b32 v{t[2]}, v{acs} offset:{CS}
        s_waitcnt lgkmcnt(0)
        s_barrier""")
        if not vpath:
            k(f"""ds_read_b32 v{la+0}, v{t[1]} offset:{NM}
            ds_read_b32 v{la+2}, v{t[1]} offset:{RS}
            ds_read_b32 v{la+4}, v{t[1]} offset:{NM+128}
            ds_read_b32 v{la+6}, v{t[1]} offset:{RS+128}
            v_add_u32 v{t[5]}, s{s_ox}, v{hoff}
            v_xor_b32 v{t[4]}, 128, v{t[5]}""")
            for nt in range(2):
                for j in range(4):
                    k(f"ds_read_b128 {vr(rg+16*nt+4*j,4)}, v{t[5] if nt==0 else t[4]} offset:{CS+32*j}")
            k(f"""v_lshlrev_b32 v{t[0]}, 4, v{t[0]}
            v_lshl_add_u32 v{t[0]}, v{hoff}, 11, v{t[0]}
            s_lshl_b32 s{s_ox}, s{s_cg}, 19
            s_lshl_b32 s{s_ow}, s{s_t2}, 10
            s_add_u32 s{s_ox}, s{s_ox}, s{s_ow}
            s_lshl_b32 s{s_ow}, s{s_tb}, 11
            s_add_u32 s{s_ox}, s{s_ox}, s{s_ow}
            s_lshl_b32 s{s_ow}, s{s_t0}, 10
            s_add_u32 s{s_ox}, s{s_ox}, s{s_ow}
            s_waitcnt lgkmcnt(4)
            v_mov_b32 v{la+1}, v{la+0}
            v_mul_f32 v{la+3}, s{s_cnt}, v{la+2}
            v_mul_f32 v{la+2}, s{s_cnt}, v{la+2}
            v_mov_b32 v{la+5}, v{la+4}
            v_mul_f32 v{la+7}, s{s_cnt}, v{la+6}
            v_mul_f32 v{la+6}, s{s_cnt}, v{la+6}""")
            for nt in range(2):
                if nt == 1: k("s_waitcnt lgkmcnt(0)")
                for mt in range(2):
                    A = acc[nt][mt]
                    for p in range(8):
                        k(f"v_pk_fma_f32 {vr(A+2*p,2)}, {vr(rg+16*nt+2*p,2)}, {vr(la+4*mt,2)}, {vr(A+2*p,2)}")
                    for p in range(8):
                        k(f"v_pk_mul_f32 {vr(A+2*p,2)}, {vr(A+2*p,2)}, {vr(la+4*mt+2,2)}")
                    for p in range(8):
                        k(f"v_cvt_pk_bf16_f32 v{A+p}, v{A+2*p}, v{A+2*p+1}")
                    k(f"s_xor_b32 s{s_ow}, s{s_ox}, {(nt*4*32768) | (mt*512)}")
                    k(f"s_add_u32 s{s_rs}, s{s_ow}, {2*32768}")
                    for jp in range(2):
                        k(f"v_permlane32_swap_b32 v{A+4*jp}, v{A+4*jp+2}\nv_permlane32_swap_b32 v{A+4*jp+1}, v{A+4*jp+3}")
                    k(f"buffer_store_dwordx4 {vr(A,4)}, v{t[0]}, {sr(sO,4)}, s{s_ow} offen{sc}")
                    k(f"buffer_store_dwordx4 {vr(A+4,4)}, v{t[0]}, {sr(sO,4)}, s{s_rs} offen{sc}")
        else:
            rg2 = k.v(32, 4)
            k(f"""v_xor_b32 v{t[4]}, 128, v{t[2]}
            ds_read_b32 v{la+2}, v{t[4]} offset:{CS}
            v_add_u32 v{t[5]}, s{s_ow}, v{hoff}""")
            for mt in range(2):
                for j in range(4):
                    k(f"ds_read_b128 {vr(rg+16*mt+4*j,4)}, v{t[5]} offset:{NM+128*mt+32*j}")
                    k(f"ds_read_b128 {vr(rg2+16*mt+4*j,4)}, v{t[5]} offset:{RS+128*mt+32*j}")
            va = [la + 4, la + 5]
            k(f"""s_sub_u32 s{s_ox}, s{s_cg}, 10
            s_lshl_b32 s{s_ox}, s{s_ox}, 7
            s_lshr_b32 s{s_ow}, s{s_t2}, 2
            s_add_u32 s{s_ox}, s{s_ox}, s{s_ow}
            v_add_u32 v{t[0]}, s{s_ox}, v{t[0]}
            v_mul_u32_u24 v{hoff}, 640, v{hoff}
            v_lshl_add_u32 v{va[0]}, v{t[0]}, 4, v{hoff}
            v_xor_b32 v{t[0]}, 32, v{t[0]}
            v_lshl_add_u32 v{va[1]}, v{t[0]}, 4, v{hoff}
            s_lshl_b32 s{s_ox}, s{s_tb}, 1
            s_add_u32 s{s_ox}, s{s_ox}, s{s_t0}
            s_mul_i32 s{s_ox}, s{s_ox}, 81920
            s_add_u32 s{s_ox}, s{s_ox}, {VIMG}
            v_mov_b32 v{la+0}, v{acs}
            v_mov_b32 v{la+1}, v{acs}
            s_waitcnt lgkmcnt(8)
            v_mov_b32 v{la+3}, v{la+2}""")
            for mt in range(2):
                if mt == 1: k("s_waitcnt lgkmcnt(0)")
                for nt in range(2):
                    A = acc[nt][mt]
                    for p in range(8):
                        k(f"v_pk_fma_f32 {vr(A+2*p,2)}, {vr(rg+16*mt+2*p,2)}, {vr(la+2*nt,2)}, {vr(A+2*p,2)}")
                    for p in range(8):
                        k(f"v_pk_mul_f32 {vr(A+2*p,2)}, {vr(A+2*p,2)}, {vr(rg2+16*mt+2*p,2)}")
                    for p in range(8):
                        k(f"v_cvt_pk_bf16_f32 v{A+p}, v{A+2*p}, v{A+2*p+1}")
                    k(f"s_add_u32 s{s_ow}, s{s_ox}, {40960*mt}\ns_add_u32 s{s_rs}, s{s_ox}, {40960*mt+20480}")
                    k(f"buffer_store_dwordx4 {vr(A,4)}, v{va[nt]}, {sr(sO,4)}, s{s_ow} offen{sc}")
                    k(f"buffer_store_dwordx4 {vr(A+4,4)}, v{va[nt]}, {sr(sO,4)}, s{s_rs} offen{sc}")
    k(f"s_cmp_ge_u32 s{s_cg}, 10\ns_cbranch_scc1 {L_v}")
    vsave = k.vnext
    mainloop(False); epilogue(False); k(f"s_branch {L_J0}")
    k.vnext = vsave
    k(f"{L_v}:")
    mainloop(True); epilogue(True)
    if o.get('fine') == 1:
        k.maxst = 14; k.stamp = lambda *a, **kw: None
    k(f"{L_J0}:\ns_setprio 0")
    k.stamp(4)
    prep_decode(True)
    k(f"""s_lshl_b32 s{c.s_f}, s{s_cg}, 5
    s_add_u32 s{c.s_f}, s{c.s_f}, s{s_tb}
    s_lshl_b32 s{c.s_f}, s{c.s_f}, {FL}
    s_add_u32 s{c.s_f}, s{c.s_f}, {F1}""")
    def spare():
        o4 = acs; xb = acc[0][0]; sm = [fw[0][0], fw[0][0] + 1]; sq = [fw[0][0] + 2, fw[0][0] + 3]
        k(f"""{L_spare}:
        v_lshrrev_b32 v{vt[0]}, 3, v{vl}
        v_lshl_add_u32 v{vt[0]}, s{s_w}, 4, v{vt[0]}
        v_mul_u32_u24 v{vt[0]}, 1280, v{vt[0]}
        v_and_b32 v{vt[2]}, 7, v{vl}
        v_lshl_add_u32 v{vX[0]}, v{vt[2]}, 4, v{vt[0]}
        v_add_u32 v{vX[1]}, {8*1280}, v{vX[0]}
        s_mul_i32 s{s_t0}, s{s_tb}, {128*1280}
        s_mov_b32 s{sX+2}, {128*1280}
        s_mov_b32 s{sX+3}, 0x20000
        s_waitcnt lgkmcnt(0)
        s_add_u32 s{sX}, s{sP}, s{s_t0}
        s_addc_u32 s{sX+1}, s{sP+1}, 0""")
        for g in range(2):
            for i in range(10): k(f"buffer_load_dwordx4 {vr(xb+40*g+4*i,4)}, v{vX[g]}, {sr(sX,4)}, 0 offen offset:{128*i}")
        common_setup()
        srd(k, sW, sWS, sWS + 1, CSG + ZERO_BYTES)
        o4 = xb + 80
        k(f"""s_mov_b32 s{s_t0}, {ONES}
        v_and_b32 v{vt[0]}, 0x70, v{vl16}
        v_lshlrev_b32 v{vt[1]}, 4, v0
        s_lshl_b32 s{s_t1}, s{s_tb}, 13
        s_add_u32 s{s_t1}, s{s_t1}, {CSG}
        s_mov_b32 s{s_msk}, 0x3f803f80""")
        for i in range(4): k(f"v_mov_b32 v{o4+i}, 0x3f803f80\nv_mov_b32 v{o4+4+i}, 0")
        nz = (ZERO_BYTES + 131071) // 131072
        for z in range(nz):
            k(f"buffer_store_dwordx4 {vr(o4+4,4)}, v{vt[1]}, {sr(sW,4)}, s{s_t1} offen{sc}\ns_add_u32 s{s_t1}, s{s_t1}, 131072")
        k(f"s_mov_b64 exec, 0xff\nbuffer_store_dwordx4 {vr(o4,4)}, v{vt[0]}, {sr(sO,4)}, s{s_t0} offen{sc}\ns_mov_b64 exec, -1")
        st = o4 + 8
        for i in range(4): k(f"v_mov_b32 v{st+i}, 0")
        for g in range(2):
            for i in range(10):
                k(f"s_waitcnt vmcnt({19 - 10*g - i + nz + 1})")
                for j in range(4):
                    x = xb + 40 * g + 4 * i + j
                    k(f"v_dot2c_f32_bf16 v{st+2*g}, s{s_msk}, v{x}\nv_dot2c_f32_bf16 v{st+2*g+1}, v{x}, v{x}")
        for ctl in ("quad_perm:[1,0,3,2]", "quad_perm:[2,3,0,1]", "row_half_mirror"):
            for i in range(4): k(f"v_add_f32_dpp v{st+i}, v{st+i}, v{st+i} {ctl} row_mask:0xf bank_mask:0xf")
        Ln = k.label("sn")
        k(f"""v_and_b32 v{vt[2]}, 1, v{vl}
        v_cmp_eq_u32 vcc, 1, v{vt[2]}
        v_lshrrev_b32 v{vt[3]}, 3, v{vl}
        v_lshl_add_u32 v{vt[3]}, v{vt[2]}, 3, v{vt[3]}
        v_cndmask_b32 v{st}, v{st}, v{st+2}, vcc
        v_cndmask_b32 v{st+1}, v{st+1}, v{st+3}, vcc
        v_lshlrev_b32 v{vt[3]}, 2, v{vt[3]}
        v_mul_f32 v{st}, {f2u(-1.0/640):#x}, v{st}
        v_mul_f32 v{st+1}, {f2u(1.0/640):#x}, v{st+1}
        v_fma_f32 v{st+1}, -v{st}, v{st}, v{st+1}
        v_max_f32 v{st+1}, 0, v{st+1}
        v_add_f32 v{st+1}, {f2u(1e-5):#x}, v{st+1}
        v_rsq_f32 v{st+1}, v{st+1}
        s_lshl_b32 s{s_t1}, s{s_w}, 6
        v_add_u32 v{vt[3]}, s{s_t1}, v{vt[3]}
        ds_write_b32 v{vt[3]}, v{st}
        ds_write_b32 v{vt[3]}, v{st+1} offset:512
        s_waitcnt vmcnt(0) lgkmcnt(0)
        s_barrier
        s_cmp_lg_u32 s{s_w}, 4
        s_cbranch_scc1 {Ln}
        ds_read_b128 {vr(st,4)}, v{vl16}
        s_lshl_b32 s{s_t0}, s{s_tb}, 10
        s_add_u32 s{s_t0}, s{s_t0}, {LN1}
        s_waitcnt lgkmcnt(0)
        buffer_store_dwordx4 {vr(st,4)}, v{vl16}, {sr(sO,4)}, s{s_t0} offen{sc}
        s_waitcnt vmcnt(0)
        s_lshl_b32 s{s_t0}, s{s_tb}, 4
        v_mov_b32 v{vt[2]}, 1
        v_mov_b32 v{vt[3]}, 0
        s_mov_b64 exec, 1
        buffer_store_dword v{vt[2]}, v{vt[3]}, {sr(sD,4)}, s{s_t0} offen sc1
        s_mov_b64 exec, -1
        {Ln}:""")
        k.stamp(2); k.stamp(3)
        k(f"s_branch {L_J0}")
    def deferred(fn):
        n = len(k.lines); fn(); out = k.lines[n:]; del k.lines[n:]; return out
    spare_code = deferred(spare)
    c.reset()
    prio = o.get('prio', (18, 6, 3, 1))
    s_h = k.s(); s_pa = k.s(); s_pr = k.s(); s_odd8 = k.s(); s_tok = k.s()
    s_t0 = k.s(); s_t1 = k.s(); s_t2 = k.s(); s_t3 = k.s()
    so = [k.s() for _ in range(3)]; s_d = k.s(); s_mo = k.s(); s_ms = k.s(); s_q1 = k.s(); s_q2 = k.s()
    sG = k.s(2); sE = k.s(2)
    vq = k.v(); vr31 = k.v(); vKA = k.v(); vKR = k.v(); vVA = k.v(); vqr = k.v()
    vt0 = k.v(6, 2); vt = list(range(vt0, vt0 + 6))
    S = [k.v(32, 4), k.v(32, 4)]; O = k.v(16, 4); OY = k.v(16, 4); P = k.v(8, 4)
    Qm = k.v(4, 4); QmY = k.v(4, 4); Qr = k.v(2); Km = k.v(4, 4); Kr = k.v(2); V0 = k.v(4, 4); V1 = [k.v(4, 4), k.v(4, 4)]
    PR = k.v(16, 4); C = S[1]; vcs = k.v(16, 4); vsel = k.v(16, 4); vca = k.v(); vfp = k.v(4, 4); vo1 = k.v(); vo2 = k.v(); vx1 = k.v(); vx2 = k.v(); s_o1 = k.s(); s_o2 = k.s()
    L_slow = k.label("slow"); L_store = k.label("store"); L_dv = k.label("dv"); L_dd = k.label("dd")
    vD = [k.v() for _ in range(3)]; vDd = [k.v() for _ in range(3)]
    k(f"""s_and_b32 s{s_t0}, s2, 7
    s_lshl_b32 s{s_t0}, s{s_t0}, 2
    s_bfe_u32 s{s_t1}, s2, 0x20003
    s_add_u32 s{s_h}, s{s_t0}, s{s_t1}
    s_lshr_b32 s{s_q1}, s{s_h}, 1
    s_mul_i32 s{s_t0}, s{s_q1}, 5
    s_and_b32 s{s_t1}, s{s_h}, 1
    s_lshl_b32 s{s_odd8}, s{s_t1}, 3
    s_mul_i32 s{s_t1}, s{s_t1}, 3
    s_add_u32 s{s_pa}, s{s_t0}, s{s_t1}
    s_lshl_b32 s{s_pa}, s{s_pa}, 15
    s_add_u32 s{s_pr}, s{s_t0}, 2
    s_lshl_b32 s{s_pr}, s{s_pr}, 15
    s_lshr_b32 s{s_q2}, s{s_wl}, 1
    s_and_b32 s{s_t3}, s{s_w}, 1
    s_mul_i32 s{s_mo}, s{s_q2}, 6144
    s_cmp_ge_u32 s{s_w}, 4
    s_cbranch_scc1 {L_dv}
    s_lshl_b32 s{s_t0}, s{s_q2}, 14
    s_lshl_b32 s{s_t1}, s{s_t3}, 10
    s_add_u32 s{s_mo}, s{s_mo}, s{s_t1}
    s_add_u32 s{s_t0}, s{s_t0}, s{s_t1}
    s_add_u32 s{s_t0}, s{s_t0}, {80*32768}
    s_add_u32 s{s_t1}, s{s_pa}, s{s_t0}
    s_add_u32 s{s_t2}, s{s_pr}, s{s_t0}
    v_add_u32 v{vD[0]}, s{s_t1}, v{vl16}
    v_add_u32 v{vD[1]}, 32768, v{vD[0]}
    v_add_u32 v{vD[2]}, s{s_t2}, v{vl16}
    v_mov_b32 v{vDd[0]}, 2048
    v_mov_b32 v{vDd[1]}, 2048
    v_mov_b32 v{vDd[2]}, 2048
    s_movk_i32 s{s_ms}, 2048
    s_branch {L_dd}
    {L_dv}:
    s_mul_i32 s{s_t1}, s{s_t3}, 3072
    s_add_u32 s{s_mo}, s{s_mo}, s{s_t1}
    s_add_u32 s{s_mo}, s{s_mo}, {VB}
    s_mul_i32 s{s_t0}, s{s_q2}, {128*10240}
    s_mul_i32 s{s_t1}, s{s_h}, 320
    s_add_u32 s{s_t0}, s{s_t0}, s{s_t1}
    s_add_u32 s{s_t0}, s{s_t0}, {VIMG}
    s_mul_i32 s{s_t3}, s{s_t3}, 192
    s_movk_i32 s{s_ms}, 1024
    v_mov_b32 v{vt[4]}, {ONES}
    v_mov_b32 v{vt[5]}, {16*10240}""")
    for i in range(3):
        k(f"""v_add_u32 v{vt[0]}, s{s_t3}, v{vl}
        s_add_u32 s{s_t3}, s{s_t3}, 64
        v_mul_u32_u24 v{vt[1]}, 3121, v{vt[0]}
        v_lshrrev_b32 v{vt[1]}, 16, v{vt[1]}
        v_mul_u32_u24 v{vt[2]}, 21, v{vt[1]}
        v_sub_u32 v{vt[2]}, v{vt[0]}, v{vt[2]}
        v_cmp_gt_u32 vcc, 20, v{vt[2]}
        v_cmp_gt_u32 {sr(sE,2)}, 16, v{vt[1]}
        v_mul_u32_u24 v{vt[1]}, 10240, v{vt[1]}
        v_lshl_add_u32 v{vt[1]}, v{vt[2]}, 4, v{vt[1]}
        s_and_b64 vcc, vcc, {sr(sE,2)}
        v_add_u32 v{vt[1]}, s{s_t0}, v{vt[1]}
        v_cndmask_b32 v{vD[i]}, v{vt[4]}, v{vt[1]}, vcc
        v_cndmask_b32 v{vDd[i]}, 0, v{vt[5]}, vcc""")
    k(f"""{L_dd}:
    s_lshr_b32 s{s_t3}, s{s_w}, 2
    s_mul_i32 s{s_t0}, s{s_t3}, 6144
    v_and_b32 v{vr31}, 31, v{vl}
    v_lshlrev_b32 v{vr31}, 4, v{vr31}
    v_lshrrev_b32 v{vt[1]}, 5, v{vl}
    v_lshl_add_u32 v{vq}, v{vt[1]}, 15, v{vr31}
    v_add_u32 v{vt[2]}, s{s_t0}, v{vr31}
    v_lshl_add_u32 v{vKA}, v{vt[1]}, 11, v{vt[2]}
    v_add_u32 v{vKR}, s{s_odd8}, v{vt[2]}
    v_add_u32 v{vKR}, 4096, v{vKR}
    v_mul_u32_u24 v{vt[0]}, 336, v{vt[1]}
    v_add_u32 v{vt[0]}, v{vt[0]}, v{vt[2]}
    v_add_u32 v{vVA}, {VB}, v{vt[0]}
    v_cmp_lt_u32 vcc, {20*16}, v{vr31}
    v_mov_b32 v{vt[0]}, 0x40000
    v_xor_b32 v{vt[1]}, s{s_t3}, v{vt[1]}
    v_cndmask_b32 v{vVA}, v{vVA}, v{vt[0]}, vcc
    v_lshl_add_u32 v{vqr}, v{vt[1]}, 9, v{vr31}
    s_lshr_b32 s{s_tok}, s2, 5
    s_lshl_b32 s{s_tok}, s{s_tok}, 8
    s_lshl_b32 s{s_t0}, s{s_wl}, 6
    s_add_u32 s{s_tok}, s{s_tok}, s{s_t0}
    s_lshl_b32 s{s_t0}, s{s_t3}, 5
    s_add_u32 s{s_tok}, s{s_tok}, s{s_t0}""")
    k(f"v_lshlrev_b32 v{vca}, 2, v{vl}\nv_mov_b32 v{vt[0]}, 0x3f803f80")
    for Tl, row in enumerate((0, 4, 1, 5)):
        k(f"v_cmp_eq_u32 vcc, {16*row}, v{vr31}")
        k(f"v_cndmask_b32 v{vsel+4*Tl}, 0, v{vt[0]}, vcc")
        for i in range(1, 4): k(f"v_mov_b32 v{vsel+4*Tl+i}, v{vsel+4*Tl}")
    k(f"""v_bfe_u32 v{vo2}, v{vl}, 4, 1
    v_mul_u32_u24 v{vo2}, {20*1024}, v{vo2}
    v_and_b32 v{vt[2]}, 15, v{vl}
    v_lshl_add_u32 v{vo1}, v{vt[2]}, 4, v{vo2}
    v_lshl_add_u32 v{vo2}, v{vt[2]}, 3, v{vo2}
    v_lshrrev_b32 v{vt[2]}, 5, v{vl}
    v_lshl_add_u32 v{vo1}, v{vt[2]}, 8, v{vo1}
    s_lshr_b32 s{s_t0}, s{s_tok}, 4
    s_mul_i32 s{s_t0}, s{s_t0}, {20*1024}
    s_add_u32 s{s_t0}, s{s_t0}, {OIMG}
    s_lshl_b32 s{s_o1}, s{s_h}, 9
    s_add_u32 s{s_o1}, s{s_o1}, s{s_t0}
    s_lshl_b32 s{s_o2}, s{s_h}, 7
    s_add_u32 s{s_o2}, s{s_o2}, s{s_t0}
    s_add_u32 s{s_o2}, s{s_o2}, {16*1024}
    s_mul_i32 s{s_t0}, s{s_wl}, 3072
    s_add_u32 s{s_t0}, s{s_t0}, {2*SL}
    s_add_u32 s{s_t1}, s{s_t0}, {VB}
    s_cmp_lt_u32 s{s_w}, 4
    s_cselect_b32 s{s_t2}, s{s_t0}, s{s_t1}
    s_cselect_b32 s{s_t1}, s{s_t1}, s{s_t0}
    v_add_u32 v{vx1}, s{s_t2}, v{vl16}
    v_add_u32 v{vx2}, s{s_t1}, v{vl16}""")
    early = o.get('early', True)
    p1 = [f"s_mov_b32 m0, s{sR[4]}", "s_nop 0"]
    for i, (sd, so_) in enumerate(((sA, sR[0]), (sA, sR[2]), (sB, sR[1]), (sB, sR[3]))):
        p1.append(f"buffer_load_dwordx4 v{vPS}, {sr(sd,4)}, s{so_} offen lds")
        if i < 3: p1 += ["s_add_u32 m0, m0, 1024", "s_nop 0"]
    edge_prep = o.get('edge_prep', False)
    Lx = k.label("jx"); Lp = k.label("jp"); Lz = k.label("jz"); Lzx = k.label("jzx"); Lns = k.label("jns")
    part = o.get('part', True)
    vfl = k.v(); vpl = k.v(); vf2 = k.v(2); s_f0 = sG; s_f1 = sG + 1
    k(f"""s_mul_i32 s{s_t0}, s{s_q1}, 40
    s_add_u32 s{s_t1}, s{s_t0}, 39
    s_lshr_b32 s{s_t0}, s{s_t0}, 7
    s_lshr_b32 s{s_t1}, s{s_t1}, 7
    s_lshl_b32 s{s_f0}, s{s_t0}, {FL+5}
    s_lshl_b32 s{s_f1}, s{s_t1}, {FL+5}
    s_add_u32 s{s_f0}, s{s_f0}, {F1}
    s_add_u32 s{s_f1}, s{s_f1}, {F1}
    v_lshrrev_b32 v{vt[2]}, 4, v{vl}
    v_min_u32 v{vt[2]}, 2, v{vt[2]}
    v_mul_u32_u24 v{vt[2]}, 160, v{vt[2]}
    v_and_b32 v{vt[3]}, 15, v{vl}
    v_add_u32 v{vt[3]}, v{vt[3]}, v{vt[2]}
    v_lshlrev_b32 v{vfl}, {FL}, v{vt[3]}""")
    if part:
        k(f"""s_sub_u32 s{s_t1}, s{s_t1}, s{s_t0}
        v_and_b32 v{vt[2]}, 1, v{vl}
        v_mul_u32_u24 v{vt[2]}, s{s_t1}, v{vt[2]}
        v_bfe_u32 v{vt[3]}, v{vl}, 1, 1
        v_bfe_u32 v{vt[4]}, v{vl}, 2, 1
        v_bfe_u32 v{vt[5]}, v{vl}, 3, 1
        v_lshl_add_u32 v{vt[4]}, v{vt[5]}, 3, v{vt[4]}
        v_mad_u32_u24 v{vt[5]}, v{vt[3]}, 5, 5
        s_lshr_b32 s{s_t1}, s2, 5
        s_lshl_b32 s{s_t1}, s{s_t1}, 1
        v_add_u32 v{vt[3]}, s{s_t1}, v{vt[3]}
        v_cmp_gt_u32 vcc, 16, v{vl}
        v_cndmask_b32 v{vt[5]}, 0, v{vt[5]}, vcc
        v_cndmask_b32 v{vt[4]}, v{vt[3]}, v{vt[4]}, vcc
        v_add_u32 v{vt[2]}, v{vt[2]}, v{vt[5]}
        v_lshl_add_u32 v{vt[2]}, v{vt[2]}, 5, v{vt[4]}
        v_lshlrev_b32 v{vpl}, {FL}, v{vt[2]}""")
    k(f"""s_cmp_lg_u32 s{s_w}, 0
    s_cbranch_scc1 {Lzx}
    v_and_b32 v{vt[3]}, 15, v{vl}
    v_lshlrev_b32 v{vt[3]}, 4, v{vt[3]}
    s_mov_b32 s{s_t1}, 0
    {Lz}:
    buffer_load_dword v{vt[4]}, v{vt[3]}, {sr(sD,4)}, 0 offen sc1
    s_add_u32 s{s_t1}, s{s_t1}, 1
    s_cmp_gt_u32 s{s_t1}, 0x40000
    s_cbranch_scc1 {Lzx}
    s_waitcnt vmcnt(0)
    v_cmp_ne_u32 vcc, 0, v{vt[4]}
    s_cmp_eq_u64 vcc, -1
    s_cbranch_scc0 {Lz}
    {Lzx}:
    s_waitcnt vmcnt(0)""")
    k.stamp(5)
    k(f"""s_barrier
    s_cmp_lg_u32 s{s_w}, 0
    s_cbranch_scc1 {Lx}""")
    c.signal(c.s_f, vt[2])
    fl = [f"buffer_load_dword v{vf2}, v{vfl}, {sr(sO,4)}, s{s_f0} offen sc1", f"buffer_load_dword v{vf2+1}, v{vfl}, {sr(sO,4)}, s{s_f1} offen sc1"]
    k(f"s_mov_b32 s{s_t2}, 0\n{Lp}:")
    if part: k(f"buffer_load_dword v{vf2}, v{vpl}, {sr(sO,4)}, s{s_f0} offen sc1")
    else: k(fl[0]); k(fl[1])
    k(f"""s_add_u32 s{s_t2}, s{s_t2}, 1
    s_cmp_gt_u32 s{s_t2}, 0x40000
    s_cbranch_scc1 {Lx}
    s_waitcnt vmcnt(0)""")
    if not part: k(f"v_min_u32 v{vf2}, v{vf2}, v{vf2+1}")
    k(f"""v_cmp_ne_u32 vcc, 0, v{vf2}
    s_cmp_eq_u64 vcc, -1
    s_cbranch_scc0 {Lp}
    {Lx}:
    s_lshl_b32 s{s_t0}, s{s_tok}, 4
    s_add_u32 s{s_q1}, s{s_t0}, s{s_pa}
    s_xor_b32 s{s_t3}, s{s_q1}, 512
    s_andn2_b32 s{s_q2}, s{s_t0}, 512
    s_add_u32 s{s_q2}, s{s_q2}, s{s_pr}
    s_add_u32 s{s_q2}, s{s_q2}, s{s_odd8}
    s_barrier""")
    k.stamp(6)
    def dma(slot):
        out = [f"s_add_u32 m0, s{s_mo}, {slot*SL}", "s_nop 0"]
        for i in range(3):
            out.append(f"buffer_load_dwordx4 v{vD[i]}, {sr(sO,4)}, 0 offen sc1 lds")
            if i < 2: out.append(f"s_add_u32 m0, m0, s{s_ms}")
            out.append(f"v_add_u32 v{vD[i]}, v{vD[i]}, v{vDd[i]}")
        return out
    k("; ---- P2 attention")
    for x in dma(0): k(x)
    k(f"""buffer_load_dwordx4 {vr(Qm,4)}, v{vq}, {sr(sO,4)}, s{s_q1} offen
    buffer_load_dwordx4 {vr(QmY,4)}, v{vq}, {sr(sO,4)}, s{s_t3} offen
    buffer_load_dwordx2 {vr(Qr,2)}, v{vqr}, {sr(sO,4)}, s{s_q2} offen""")
    for x in dma(1): k(x)
    p2a = [f"ds_read_b64_tr_b16 {vr(PR+4*Tl+2*rd,2)}, v{vPA} offset:{rd*1024+Tl*32}" for Tl in range(4) for rd in range(2)]
    p2c = [f"{M16} {vr(vcs,16)}, {vr(vsel+4*Tl,4)}, {vr(PR+4*Tl,4)}, {'0' if Tl == 0 else vr(vcs,16)}" for Tl in range(4)]
    late = [f"buffer_store_dwordx4 {vr(PR+4*Tl,4)}, v{vl16}, {sr(sO,4)}, s{s_po} offen offset:{Tl*1024}{sc}" for Tl in range(4)]
    late += [f"buffer_atomic_add_f32 v{vcs}, v{vca}, {sr(sO,4)}, s{s_cs} offen", f"buffer_atomic_add_f32 v{vcs+1}, v{vca}, {sr(sO,4)}, s{s_cs} offen offset:256"]
    TL = o.get('TL', 3); TP = o.get('TP', 11); assert TL > 2
    late_t = o.get('late_t', [TP + 1, TP + 2, TP + 4, TP + 5, TP + 3, TP + 3]); TSIG = o.get('TSIG', TP + 11)
    assert not edge_prep
    M2B = "v_mfma_f32_32x32x4_2b_bf16"
    def rdK(t):
        o_ = ((t // 4) % 3) * SL + (t % 4) * 512
        return [f"ds_read_b128 {vr(Km,4)}, v{vKA} offset:{o_}", f"ds_read_b64 {vr(Kr,2)}, v{vKR} offset:{o_}"]
    def rdV(t):
        o_ = ((t // 4) % 3) * SL + (t % 4) * 1344
        return [f"ds_read_b128 {vr(V0,4)}, v{vVA} offset:{o_}", f"ds_read_b128 {vr(V1[t&1],4)}, v{vVA} offset:{o_+672}"]
    k("s_waitcnt vmcnt(3)\ns_barrier")
    k.stamp(7)
    for x in rdK(0): k(x)
    k(f"""s_waitcnt lgkmcnt(0)
    {M2B} {vr(S[0],32)}, {vr(Kr,2)}, {vr(Qr,2)}, 0
    {M16} {vr(S[0],16)}, {vr(Km,4)}, {vr(Qm,4)}, {vr(S[0],16)}
    {M16} {vr(S[0]+16,16)}, {vr(Km,4)}, {vr(QmY,4)}, {vr(S[0]+16,16)}""")
    for x in rdK(1) + rdV(0): k(x)
    side = []; vm = [0]
    def spread(n):
        for _ in range(n):
            if side:
                x = side.pop(0)
                if x is None: continue
                if x == 'KV': vm[0] = 0; continue
                k(x)
                if x.startswith('buffer_'): vm[0] += 1
    NT = 32
    for t in range(NT):
        s = S[t & 1]; sn = S[(t + 1) & 1]; pe = t // 4; last = t == NT - 1
        e = lambda *a: [(k(f"v_exp_f32 v{s+i}, v{s+i}"), spread(1)) for i in a]
        cv = lambda i: k(f"v_cvt_pk_bf16_f32 v{P+i%8}, v{s+2*i}, v{s+2*i+1}")
        def pr(ph):
            if prio:
                q = (7 * t + ph - 19) % 28
                cum = 0
                for lvl, ln in enumerate(prio):
                    if (q == cum and ln > 0) or (t == 0 and ph == 0 and cum <= q < cum + ln): k(f"s_setprio {3 - lvl}")
                    cum += ln
        z = lambda r: '0' if t == 0 else vr(r, 16)
        pr(0)
        e(0, 1, 2, 3)
        if not last:
            k("s_waitcnt lgkmcnt(2)")
            k(f"{M2B} {vr(sn,32)}, {vr(Kr,2)}, {vr(Qr,2)}, 0")
        pr(1)
        e(4); cv(0); e(5); cv(1); e(6, 7); cv(2); e(8); cv(3); e(9, 10)
        k("s_waitcnt lgkmcnt(0)")
        k(f"{M16} {vr(O,16)}, {vr(V0,4)}, {vr(P,4)}, {z(O)}")
        pr(2)
        e(11); cv(4); e(12); cv(5); e(13, 14)
        if not last: k(f"{M16} {vr(sn,16)}, {vr(Km,4)}, {vr(Qm,4)}, {vr(sn,16)}")
        pr(3)
        e(15); cv(6); e(16); cv(7); e(17, 18)
        k(f"{M16} {vr(O,16)}, {vr(V1[t&1],4)}, {vr(P+4,4)}, {vr(O,16)}")
        pr(4)
        e(19); cv(8); e(20); cv(9); e(21, 22)
        if not last: k(f"{M16} {vr(sn+16,16)}, {vr(Km,4)}, {vr(QmY,4)}, {vr(sn+16,16)}")
        if part and t == 1:
            Ln = k.label("nq"); k(f"s_cmp_lg_u32 s{s_w}, 0\ns_cbranch_scc1 {Ln}"); k(fl[0]); k(fl[1]); k(f"{Ln}:")
        if t % 4 == 2 and pe < 7:
            assert not side
            k(f"s_waitcnt vmcnt({0 if t in (TP - 1, TSIG - 4, 26) else vm[0]})")
            if part and t == 2:
                Ln = k.label("nq"); Lq = k.label("q")
                k(f"""s_cmp_lg_u32 s{s_w}, 0
                s_cbranch_scc1 {Ln}
                s_mov_b32 s{s_t2}, 0
                {Lq}:
                v_min_u32 v{vf2}, v{vf2}, v{vf2+1}
                s_add_u32 s{s_t2}, s{s_t2}, 1
                v_cmp_ne_u32 vcc, 0, v{vf2}
                s_cmp_eq_u64 vcc, -1
                s_cbranch_scc1 {Ln}
                s_cmp_gt_u32 s{s_t2}, 0x40000
                s_cbranch_scc1 {Ln}""")
                k(fl[0]); k(fl[1])
                k(f"s_waitcnt vmcnt(0)\ns_branch {Lq}\n{Ln}:")
            if early and t == 26:
                Ln = k.label("ne"); Lq = k.label("e")
                k(f"""s_cmp_lg_u32 s{s_w}, 0
                s_cbranch_scc1 {Ln}
                s_mov_b32 s{s_t2}, 0
                {Lq}:
                v_min_u32 v{vfp}, v{vfp}, v{vfp+1}
                v_min3_u32 v{vfp}, v{vfp}, v{vfp+2}, v{vfp+3}
                s_add_u32 s{s_t2}, s{s_t2}, 1
                v_cmp_ne_u32 vcc, 0, v{vfp}
                s_cmp_eq_u64 vcc, -1
                s_cbranch_scc1 {Ln}
                s_cmp_gt_u32 s{s_t2}, 0x40000
                s_cbranch_scc1 {Ln}
                buffer_load_dwordx4 {vr(vfp,4)}, v{vl16}, {sr(sO,4)}, s{s_t0} offen sc1
                s_waitcnt vmcnt(0)
                s_branch {Lq}
                {Ln}:""")
                assert not o.get('row3')
                side += [f"s_bfe_u32 s{s_t0}, s2, 0x10002", f"s_lshl_b32 s{s_t0}, s{s_t0}, 2", f"s_lshr_b32 s{s_t1}, s2, 6", f"s_add_u32 s{s_t0}, s{s_t0}, s{s_t1}",
                         f"s_lshl_b32 s{s_t1}, s{s_w}, 3", f"s_add_u32 s{s_t0}, s{s_t0}, s{s_t1}", f"s_mul_i32 s{s_t0}, s{s_t0}, 5120", f"s_add_u32 s{s_t0}, s{s_t0}, {WOP}",
                         f"s_mul_i32 s{s_t1}, s{s_w}, 5120"]
                for hf in range(2):
                    side += [f"s_add_u32 m0, s{s_t1}, {PREP + hf*8*5120}", f"s_add_u32 s{s_t2}, s{s_t0}, 4096"]
                    side += [f"buffer_load_dwordx4 v{vl16}, {sr(sO,4)}, s{s_t0} offen offset:{i*1024} lds" for i in range(4)]
                    side += ["s_add_u32 m0, m0, 4096", f"s_add_u32 s{s_t0}, s{s_t0}, {8*40960}", f"buffer_load_dwordx4 v{vl16}, {sr(sO,4)}, s{s_t2} offen lds"]
                sp = o.get('espace', 8)
                side[:] = [y for x in side for y in ([x] + [None] * sp if x.startswith('buffer') else [x])]
            k("s_barrier")
            if o.get('fine') == 2: k.stamp({0: 1, 1: 2, 2: 3, 3: 4, 4: 5, 5: 6, 6: 9}[pe])
            if pe < 6: side += dma((pe + 2) % 3) + ['KV']
            if t == TSIG - 4:
                Ln = k.label("nf")
                k(f"s_cmp_lg_u32 s{s_w}, 0\ns_cbranch_scc1 {Ln}\ns_lshl_b32 s{s_t0}, s2, 2\ns_add_u32 s{s_t0}, s{s_t0}, {FP}")
                c.signal(s_t0, vt[2]); k(f"{Ln}:")
        pr(5)
        if t < NT - 2:
            for x in rdK(t + 2): k(x)
        if t == TP:
            for x in p2a: k(x)
        if t == TL: side += p1
        if o.get('cs2', True):
            if TP < t <= TP + 2: k(p2c[2 * (t - TP - 1)]); side.insert(0, None); side.insert(0, None); side.insert(min(4, len(side)), p2c[2 * (t - TP - 1) + 1])
        elif TP < t <= TP + 4: k(p2c[t - TP - 1])
        for i_, x_ in enumerate(late_t):
            if int(x_) == t: side.append(late[i_])
        if t == (o.get('TF', 24) if early else 28): k(f"s_mov_b32 s{s_t0}, {FP}\nbuffer_load_dwordx4 {vr(vfp,4)}, v{vl16}, {sr(sO,4)}, s{s_t0} offen sc1")
        e(23); cv(10); e(24); cv(11); e(25, 26)
        k(f"{M16} {vr(OY,16)}, {vr(V0,4)}, {vr(P,4)}, {z(OY)}")
        pr(6)
        e(27); cv(12); e(28); cv(13); e(29, 30, 31); cv(14)
        if not last:
            rv = rdV(t + 1)
            k(rv[0]); cv(15); k(rv[1]); k("s_nop 0")
        else:
            cv(15)
        k(f"{M16} {vr(OY,16)}, {vr(V1[t&1],4)}, {vr(P+4,4)}, {vr(OY,16)}")
    assert not side
    if o.get('fine') == 2: k.stamp(10)
    k("s_setprio 0")
    for j in range(3): k(f"ds_write_b128 v{vx1}, {vr(OY+4*j,4)} offset:{1024*j}")
    k(f"s_mov_b32 s{s_q1}, {f2u(2.0**64):#x}\ns_mov_b32 s{s_q2}, 0x7f800000")
    k("s_waitcnt lgkmcnt(0)\ns_barrier")
    for j in (2, 0, 1): k(f"ds_read_b128 {vr(OY+4*j,4)}, v{vx2} offset:{1024*j}")
    t0, t1, t2 = vt[0], vt[1], vt[2]
    k("s_waitcnt lgkmcnt(2)")
    for i in (4, 5): k(f"v_pk_add_f32 {vr(O+2*i,2)}, {vr(O+2*i,2)}, {vr(OY+2*i,2)}")
    k(f"v_mov_b32 v{t0}, v{O+8}\nv_mov_b32 v{t1}, v{O+8}\ns_waitcnt lgkmcnt(0)")
    for i in range(4): k(f"v_pk_add_f32 {vr(O+2*i,2)}, {vr(O+2*i,2)}, {vr(OY+2*i,2)}")
    k(f"""v_permlane32_swap_b32 v{t0}, v{t1}
    v_add_f32 v{t2}, |v{O+8}|, |v{O+9}|
    v_add_f32 v{vt[3]}, |v{O+10}|, |v{O+11}|""")
    for i in range(0, 8, 2): k(f"v_add_f32 v{t2}, |v{O+i}|, v{t2}\nv_add_f32 v{vt[3]}, |v{O+i+1}|, v{vt[3]}")
    k(f"""v_cmp_lt_f32 vcc, {f2u(2.0**-64):#x}, v{t1}
    v_add_f32 v{t2}, v{t2}, v{vt[3]}
    v_cmp_gt_f32 {sr(sE,2)}, s{s_q1}, v{t1}
    v_cmp_gt_f32 {sr(sG,2)}, s{s_q2}, v{t2}
    s_and_b64 vcc, vcc, {sr(sE,2)}
    s_and_b64 vcc, vcc, {sr(sG,2)}
    s_cmp_eq_u64 vcc, -1
    s_cbranch_scc0 {L_slow}
    {L_store}:
    v_rcp_f32 v{t0}, v{t1}
    v_rcp_f32 v{t1}, v{t1}""")
    assert t0 % 2 == 0 and t1 == t0 + 1
    for i in range(4): k(f"v_pk_mul_f32 {vr(O+2*i,2)}, {vr(O+2*i,2)}, {vr(t0,2)}")
    for i in range(4): k(f"v_cvt_pk_bf16_f32 v{O+i}, v{O+2*i}, v{O+2*i+1}")
    k(f"buffer_store_dwordx4 {vr(O,4)}, v{vo1}, {sr(sO,4)}, s{s_o1} offen{sc}")
    for i in range(4, 6): k(f"v_pk_mul_f32 {vr(O+2*i,2)}, {vr(O+2*i,2)}, {vr(t0,2)}")
    for i in range(4, 6): k(f"v_cvt_pk_bf16_f32 v{O+i}, v{O+2*i}, v{O+2*i+1}")
    k(f"""s_mov_b32 exec_hi, 0
    buffer_store_dwordx2 {vr(O+4,2)}, v{vo2}, {sr(sO,4)}, s{s_o2} offen{sc}
    s_mov_b32 exec_hi, -1""")
    def slow():
        vV = vKA; vm = vKR; cnt = s_t3
        k(f"""{L_slow}:
        s_lshl_b32 s{so[0]}, s{s_tok}, 4
        s_add_u32 s{so[0]}, s{so[0]}, s{s_pr}
        s_add_u32 s{so[0]}, s{so[0]}, s{s_odd8}
        v_mov_b32 v{Qr}, 0
        v_mov_b32 v{Qr+1}, 0
        s_mov_b32 exec_hi, 0
        buffer_load_dwordx2 {vr(Qr,2)}, v{vr31}, {sr(sO,4)}, s{so[0]} offen
        s_mov_b32 exec_hi, -1
        s_add_u32 s{so[0]}, s{s_pa}, {80*32768}
        s_add_u32 s{so[1]}, s{s_pr}, {80*32768}
        s_add_u32 s{so[1]}, s{so[1]}, s{s_odd8}
        v_mov_b32 v{vm}, 0xff800000
        s_mov_b32 s{cnt}, 0""")
        L1 = k.label("mx")
        k(f"""{L1}:
        buffer_load_dwordx4 {vr(Km,4)}, v{vq}, {sr(sO,4)}, s{so[0]} offen
        buffer_load_dwordx2 {vr(Kr,2)}, v{vr31}, {sr(sO,4)}, s{so[1]} offen
        s_add_u32 s{so[0]}, s{so[0]}, 512
        s_add_u32 s{so[1]}, s{so[1]}, 512
        s_waitcnt vmcnt(0)
        {M8} {vr(S[0],16)}, {vr(Kr,2)}, {vr(Qr,2)}, 0
        {M16} {vr(S[0],16)}, {vr(Km,4)}, {vr(Qm,4)}, {vr(S[0],16)}""")
        for i in range(8): k(f"v_max3_f32 v{vm}, v{S[0]+2*i}, v{S[0]+2*i+1}, v{vm}")
        k(f"""s_add_u32 s{cnt}, s{cnt}, 1
        s_cmp_lt_u32 s{cnt}, 64
        s_cbranch_scc1 {L1}
        v_mov_b32 v{t0}, v{vm}
        v_permlane32_swap_b32 v{t0}, v{vm}
        v_max_f32 v{vm}, v{vm}, v{t0}""")
        for i in range(16): k(f"v_sub_f32 v{C+i}, 0, v{vm}\nv_mov_b32 v{O+i}, 0")
        k(f"""s_add_u32 s{so[0]}, s{s_pa}, {80*32768}
        s_add_u32 s{so[1]}, s{s_pr}, {80*32768}
        s_add_u32 s{so[1]}, s{so[1]}, s{s_odd8}
        s_mul_i32 s{so[2]}, s{s_h}, 320
        s_add_u32 s{so[2]}, s{so[2]}, {VIMG}
        v_lshrrev_b32 v{vV}, 5, v{vl}
        v_mul_u32_u24 v{vV}, 10240, v{vV}
        v_add3_u32 v{vV}, v{vV}, v{vr31}, s{so[2]}
        v_add_u32 v{vD[1]}, 20480, v{vV}
        v_cmp_gt_u32 vcc, 320, v{vr31}
        v_mov_b32 v{vD[2]}, {ONES}
        v_mov_b32 v{vDd[0]}, 40960
        v_cndmask_b32 v{vV}, v{vD[2]}, v{vV}, vcc
        v_cndmask_b32 v{vD[1]}, v{vD[2]}, v{vD[1]}, vcc
        v_cndmask_b32 v{vDd[0]}, 0, v{vDd[0]}, vcc
        s_mov_b32 s{cnt}, 0""")
        L2 = k.label("pv")
        k(f"""{L2}:
        buffer_load_dwordx4 {vr(Km,4)}, v{vq}, {sr(sO,4)}, s{so[0]} offen
        buffer_load_dwordx2 {vr(Kr,2)}, v{vr31}, {sr(sO,4)}, s{so[1]} offen
        buffer_load_dwordx4 {vr(V0,4)}, v{vV}, {sr(sO,4)}, 0 offen
        buffer_load_dwordx4 {vr(V1[0],4)}, v{vD[1]}, {sr(sO,4)}, 0 offen
        s_add_u32 s{so[0]}, s{so[0]}, 512
        s_add_u32 s{so[1]}, s{so[1]}, 512
        v_add_u32 v{vV}, v{vV}, v{vDd[0]}
        v_add_u32 v{vD[1]}, v{vD[1]}, v{vDd[0]}
        s_waitcnt vmcnt(0)
        {M8} {vr(S[0],16)}, {vr(Kr,2)}, {vr(Qr,2)}, {vr(C,16)}
        {M16} {vr(S[0],16)}, {vr(Km,4)}, {vr(Qm,4)}, {vr(S[0],16)}""")
        for i in range(16): k(f"v_exp_f32 v{S[0]+i}, v{S[0]+i}")
        for i in range(8): k(f"v_cvt_pk_bf16_f32 v{P+i}, v{S[0]+2*i}, v{S[0]+2*i+1}")
        k(f"""{M16} {vr(O,16)}, {vr(V0,4)}, {vr(P,4)}, {vr(O,16)}
        {M16} {vr(O,16)}, {vr(V1[0],4)}, {vr(P+4,4)}, {vr(O,16)}
        s_add_u32 s{cnt}, s{cnt}, 1
        s_cmp_lt_u32 s{cnt}, 64
        s_cbranch_scc1 {L2}
        v_mov_b32 v{t0}, v{O+8}
        v_mov_b32 v{t1}, v{O+8}
        v_permlane32_swap_b32 v{t0}, v{t1}
        s_branch {L_store}""")
    slow_code = deferred(slow)
    L3 = k.label("ld")
    k.stamp(8); k.nst = 8
    if o.get('fine1') or o.get('fine') == 2:
        k.maxst = 14; k.stamp = lambda *a, **kw: None
    k(f"""s_lshr_b32 s{c.s_f}, s2, 5
    s_lshl_b32 s{c.s_f}, s{c.s_f}, 5
    s_add_u32 s{c.s_f}, s{c.s_f}, s{s_h}
    s_lshl_b32 s{c.s_f}, s{c.s_f}, {FL}
    s_add_u32 s{c.s_f}, s{c.s_f}, {F2}""")
    k("; ---- P3 o-proj")
    P3 = P35(c, 3, D=o.get('D3', 20), D0=o.get('D30', 6), early=early)
    P3.rowmap = o.get('row3', False)
    k(P3.ptr_load()); P3.ids()
    lw(c, L3)
    def handoff(vt, stmp, n):
        Ln = k.label("nw0")
        k("s_barrier")
        k(f"s_cmp_lg_u32 s{c.s_w}, 0\ns_cbranch_scc1 {Ln}")
        c.signal(c.s_f, vt); c.poll(c.s_p, n, vt, stmp)
        k(f"{Ln}:\ns_barrier")
    P3.setup()
    k(f"""s_lshr_b32 s{c.s_p}, s{P3.s_tb16}, 4
    s_lshl_b32 s{c.s_p}, s{c.s_p}, {FL+5}
    s_add_u32 s{c.s_p}, s{c.s_p}, {F2}
    s_waitcnt vmcnt(3)""")
    handoff(P3.vt[0], P3.s_t0, 32)
    k.stamp('n')
    if o.get('fine') == 3: P3.fine = {0: 2, 1: 3, 4: 4, 8: 5, 12: 6, 16: 7, 19: 8}
    P3.main(init=False, resident=True)
    k("s_barrier")
    P3.epilogue()
    k(f"""s_lshr_b32 s{c.s_f}, s{P3.s_tb16}, 3
    s_lshl_b32 s{c.s_f}, s{c.s_f}, 5
    s_bfe_u32 s{P3.s_t0}, s{P3.s_tb16}, 0x10002
    s_lshl_b32 s{P3.s_t0}, s{P3.s_t0}, 3
    s_add_u32 s{c.s_f}, s{c.s_f}, s{P3.s_t0}
    s_add_u32 s{c.s_f}, s{c.s_f}, s{P3.s_c}
    s_lshl_b32 s{c.s_f}, s{c.s_f}, {FL}
    s_add_u32 s{c.s_f}, s{c.s_f}, {F3}""")
    Q4 = P4(c, D=o.get('D4', 12), D0=o.get('D40', 4)); Q4.ahead = o.get('ahead4', 4); Q4.thin = o.get('thin4'); Q4.nob = o.get('nob'); Q4.mcorr = o.get('mcorr', True); Q4.lstat = o.get('lstat', True); Q4.bsched = o.get('bsched', (1, 2))
    Q4.ids(); Q4.setup()
    k(f"""s_lshr_b32 s{c.s_p}, s{Q4.s_tb}, 2
    s_lshl_b32 s{c.s_p}, s{c.s_p}, {FL+5}
    s_add_u32 s{c.s_p}, s{c.s_p}, {F3}
    s_waitcnt vmcnt(0)""")
    k.stamp('n')
    handoff(Q4.st, Q4.s_t1, 16)
    k.stamp('n')
    if o.get('fine') == 4: Q4.fine = {0: 2, 1: 3, 4: 4, 12: 5, 20: 6, 30: 7, 39: 8}
    Q4.main(init=False, endbar=True)
    Q4.epilogue(k.label("fin"))
    k(f"""s_lshr_b32 s{c.s_f}, s{Q4.s_tb}, 2
    s_lshl_b32 s{c.s_f}, s{c.s_f}, 5
    s_add_u32 s{c.s_f}, s{c.s_f}, s{Q4.s_g}
    s_lshl_b32 s{c.s_f}, s{c.s_f}, {FL}
    s_add_u32 s{c.s_f}, s{c.s_f}, {F4}""")
    pair5 = o.get('pair5', True)
    P5 = P35(c, 5, D=o.get('D5', 8 if pair5 else 12), D0=o.get('D50', 4), pair=pair5); P5.ahead = o.get('ahead5', 5); P5.rowmap = o.get('row5', True); P5.bar8 = o.get('bar8', True); P5.ofl = o.get('ofl', '')
    k("; ---- P5 down")
    k("s_nop 1"); k(P5.ptr_load()); P5.ids(); P5.setup()
    if pair5: P5.setup_pair()
    k(f"""s_lshr_b32 s{c.s_p}, s{P5.s_tb16}, 3
    s_lshl_b32 s{c.s_p}, s{c.s_p}, {FL+5}
    s_add_u32 s{c.s_p}, s{c.s_p}, {F4}
    s_waitcnt vmcnt(0)""")
    k.stamp('n')
    handoff(P5.vt[0], P5.s_t0, 16)
    k.stamp('n')
    if o.get('fine') == 5: P5.fine = {0: 2, 1: 3, 8: 4, 16: 5, 28: 6, 40: 7, 53: 8}
    if pair5:
        if o.get('fine') == 5: P5.fine = {0: 2, 1: 3, 4: 4, 8: 5, 14: 6, 20: 7, 26: 8}
        P5.main_pair()
    else: P5.main(init=False)
    P5.epilogue()
    if o.get('dbgst') is not None:
        Ln = k.label("dn")
        k.stamp(14); k.stamp_real(15)
        k(f"s_cmp_lg_u32 s2, {o['dbgst']}\ns_cbranch_scc1 {Ln}\ns_cmp_lg_u32 s{s_w}, 0\ns_cbranch_scc1 {Ln}\ns_waitcnt lgkmcnt(0)\nv_mov_b32 v1, 0\ns_mov_b64 exec, 1")
        pos = [1, 2, 3, 5, 6, 7, 9, 10, 11, 13, 14, 15]
        src = [2, 3, 6, 7, 8, 9, 11, 12, 13, 14]
        for p_, i in zip(pos, src):
            k(f"s_sub_u32 s66, s{k.sT+2*i}, s{k.sT+2}\nv_mov_b32 v2, s66\nbuffer_store_dword v2, v1, {sr(sD,4)}, 0 offen offset:{4*p_}")
        k(f"s_sub_u32 s66, s{k.sT+30}, s{k.sT}\nv_mov_b32 v2, s66\nbuffer_store_dword v2, v1, {sr(sD,4)}, 0 offen offset:60\n{Ln}:\ns_endpgm")
        k(f"{c.L_end}:\ns_endpgm")
    else:
        c.finish()
    k(f"{L3}:")
    if early:
        P3.ld_setup()
        k(f"s_add_u32 s{P3.s_wo}, s{P3.s_wo}, {16*40960}\ns_waitcnt vmcnt(0)\ns_barrier")
        P3.ld_chunk(0)
        k("s_waitcnt vmcnt(0)\ns_barrier")
    else:
        Lp = k.label("fp"); Lok = k.label("fpok")
        k(f"""s_mov_b32 s{P3.s_cnt}, 0
        s_waitcnt vmcnt(2)
        {Lp}:
        v_min_u32 v{vfp}, v{vfp}, v{vfp+1}
        v_min3_u32 v{vfp}, v{vfp}, v{vfp+2}, v{vfp+3}
        s_add_u32 s{P3.s_cnt}, s{P3.s_cnt}, 1
        v_cmp_ne_u32 vcc, 0, v{vfp}
        s_cmp_eq_u64 vcc, -1
        s_cbranch_scc1 {Lok}
        s_cmp_gt_u32 s{P3.s_cnt}, 0x40000
        s_cbranch_scc1 {Lok}
        s_mov_b32 s{P3.s_t0}, {FP}
        buffer_load_dwordx4 {vr(vfp,4)}, v{c.vl16}, {sr(c.sO,4)}, s{P3.s_t0} offen sc1
        s_waitcnt vmcnt(0)
        s_branch {Lp}
        {Lok}:""")
        P3.ld_setup()
        k("s_waitcnt vmcnt(0)\ns_barrier")
        for ch in range(5): P3.ld_chunk(ch)
        k("s_waitcnt vmcnt(0)\ns_barrier")
    Q4.ids(); Q4.ld_setup()
    k("s_barrier")
    n4 = o.get('pre4', 2)
    for ch in range(n4): Q4.ld_chunk(ch)
    k("s_barrier")
    for ch in range(n4, 5): Q4.ld_chunk(ch)
    Q4.ld_cs()
    k("s_waitcnt vmcnt(29)\ns_barrier")
    rg5 = None
    if o.get('reg5', True):
        rg5 = dict(base=20, addr=[8, 9, 10])
        s5 = 64
        def warm():
            if P5.rowmap: k(f"s_lshr_b32 s{Q4.s_t0}, s2, 5")
            else: k(f"""s_bfe_u32 s{Q4.s_t0}, s2, 0x10002
            s_lshl_b32 s{Q4.s_t0}, s{Q4.s_t0}, 2
            s_lshr_b32 s{Q4.s_t1}, s2, 6
            s_add_u32 s{Q4.s_t0}, s{Q4.s_t0}, s{Q4.s_t1}""")
            k(f"""s_lshl_b32 s{Q4.s_t1}, s{c.s_wl}, 3
            s_add_u32 s{Q4.s_t0}, s{Q4.s_t0}, s{Q4.s_t1}
            s_mul_i32 s{Q4.s_t0}, s{Q4.s_t0}, 5120
            s_add_u32 s{Q4.s_t0}, s{Q4.s_t0}, {WDP + 28*40960}""")
        def warm_chunk(j):
            k(f"s_add_u32 s{Q4.s_t1}, s{Q4.s_t0}, 4096")
            for i in range(5):
                k(f"buffer_load_dwordx4 {vr(rg5['base'] + 20*j + 4*i, 4)}, v{c.vl16}, {sr(c.sO,4)}, s{Q4.s_t0 if i < 4 else Q4.s_t1} offen offset:{(i%4)*1024}")
            k(f"s_add_u32 s{Q4.s_t0}, s{Q4.s_t0}, {4*40960}")
        Q4.warm = warm; Q4.warm_chunk = warm_chunk
    if Q4.lstat: Q4.ld_stats()
    Q4.ld_main(5, 1, init=False)
    P5.ids(); P5.ld_setup()
    if o.get('otouch'):
        k(P5.ptr_load())
        k(f"""v_mul_u32_u24 v11, 21846, v{c.vl}
        v_lshrrev_b32 v11, 16, v11
        v_mul_u32_u24 v12, 3, v11
        v_sub_u32 v12, v{c.vl}, v12
        v_mul_u32_u24 v11, 1280, v11
        v_mul_u32_u24 v12, 78, v12
        v_and_b32 v12, 0xfc, v12
        v_add_u32 v11, v11, v12
        s_mul_i32 s{P5.s_t1}, s{P5.s_tb16}, {16*1280}
        s_mul_i32 s{P5.s_t2}, s{P5.s_c}, 160
        s_add_u32 s{P5.s_t1}, s{P5.s_t1}, s{P5.s_t2}
        s_waitcnt lgkmcnt(0)
        s_mov_b64 {sr(P5.sX,2)}, {sr(P5.sPX,2)}
        s_mov_b32 s{P5.sX+2}, {2048*1280}
        s_mov_b32 s{P5.sX+3}, 0x20000
        s_mov_b32 exec_hi, 0xffff
        buffer_load_dword v12, v11, {sr(P5.sX,4)}, s{P5.s_t1} offen sc1
        s_mov_b32 exec_hi, -1""")
    if rg5:
        k(f"""v_add_u32 v8, s{P5.s_m0}, v{c.vl16}
        v_add_u32 v9, {3*P5.SLOT}, v8
        v_add_u32 v10, {6*P5.SLOT}, v8""")
    k("s_barrier")
    n5 = o.get('pre5', 4)
    for ch in range(n5): P5.ld_chunk(ch)
    k("s_barrier")
    for ch in range(n5, 7): P5.ld_chunk(ch)
    if P5.bar8:
        k("s_waitcnt vmcnt(25)\ns_barrier")
        P5.ld_main8(rg5, 1 if pair5 else 0)
    else:
        k("s_waitcnt vmcnt(30)\ns_barrier")
        P5.ld_main(7, init=False)
    if K.STAMP and o.get('dbgst') is None:
        for i in range(9, 15): k.stamp(i)
        k.stamp_flush(c.sO, c.s_w)
    k("s_endpgm")
    k.lines += ['    ; ---- softmax fall-back with the true row maximum'] + slow_code + ['    ; ---- statistics workgroups'] + spare_code
    return k, (256, 512, max(P3.lds, Q4.lds, P5.lds))
```

```python
from ph import *

def lw(c, L):
    c.k(f"s_cmp_ge_u32 s{c.s_w}, 4\ns_cbranch_scc1 {L}")

class P35:
    def __init__(self, c, which, D=12, D0=None, pair=False, early=False):
        self.c = c; self.k3 = k3 = which == 3; k = c.k
        self.NU = 20 if k3 else 54; self.CK = 4; self.SLOT = 20480
        self.NCH = (self.NU + 3) // 4; self.NSL = 5 if k3 else 7
        self.XS = self.NSL * self.SLOT; self.D = D; self.D0 = D0 or D
        self.early = early
        if early: self.XS = 20480
        self.lds = (self.XS + 4 * 3072) if not early else 73728 + 4 * 20480
        c.reset()
        self.sPX = k.s(2); self.sB = k.s(4); self.sX = k.s(4)
        (self.s_tb16, self.s_c, self.s_t0, self.s_t1, self.s_t2, self.s_bo, self.s_wo, self.s_m0, self.s_xs, self.s_ho,
         self.s_cnt) = [k.s() for _ in range(11)]
        self.vt = [k.v() for _ in range(6)]; self.vH = k.v(); self.vD = k.v(); self.vA = [k.v() for _ in range(3)]
        self.vrow = [k.v() for _ in range(3)]; self.vR = k.v()
        self.acc = k.v(20, 4); self.fa = [k.v(20, 4) for _ in range(3)]; self.res = k.v(12, 4)
        self.fb = k.v(4 * self.D * (2 if pair else 1), 4)
        if pair: self.accY = k.v(20, 4); self.s_boY = k.s(); self.vE = [k.v(), k.v()]
    def ptr_load(self): return f"s_load_dwordx2 {sr(self.sPX,2)}, s[0:1], {KA_X if self.k3 else KA_OUT}"
    rowmap = False
    ofl = ''
    bar8 = False
    def ld_main8(self, regs=None, free1=0):
        k = self.c.k; c = self.c
        issued = 7
        for kb in range(6):
            need = min(13, 2 * kb + 3)
            if regs is None: k(f"s_waitcnt vmcnt({5*max(0, issued - 1 - need)})")
            else: k(f"s_waitcnt vmcnt({5*max(0, 6 - need)}) lgkmcnt(0)")
            k("s_barrier")
            while issued < 14 and issued <= 2 * kb + 7 + free1:
                if regs is None: self.ld_chunk(issued % 7)
                else:
                    slot = issued % 7
                    for i in range(5):
                        k(f"ds_write_b128 v{regs['addr'][slot // 3]}, {vr(regs['base'] + 20*(issued-7) + 4*i, 4)} offset:{(slot % 3)*self.SLOT + i*1024}")
                issued += 1
    def ids(self):
        k = self.c.k
        if self.rowmap:
            k(f"""s_and_b32 s{self.s_t0}, s2, 7
            s_lshl_b32 s{self.s_t0}, s{self.s_t0}, 2
            s_bfe_u32 s{self.s_t1}, s2, 0x20003
            s_add_u32 s{self.s_tb16}, s{self.s_t0}, s{self.s_t1}
            s_lshl_b32 s{self.s_tb16}, s{self.s_tb16}, 2
            s_add_u32 s{self.s_tb16}, s{self.s_tb16}, s{self.c.s_wl}
            s_lshr_b32 s{self.s_c}, s2, 5""")
            return
        k(f"""s_and_b32 s{self.s_t0}, s2, 3
        s_lshl_b32 s{self.s_t0}, s{self.s_t0}, 3
        s_bfe_u32 s{self.s_t1}, s2, 0x30003
        s_add_u32 s{self.s_tb16}, s{self.s_t0}, s{self.s_t1}
        s_lshl_b32 s{self.s_tb16}, s{self.s_tb16}, 2
        s_add_u32 s{self.s_tb16}, s{self.s_tb16}, s{self.c.s_wl}
        s_bfe_u32 s{self.s_t0}, s2, 0x10002
        s_lshl_b32 s{self.s_t0}, s{self.s_t0}, 2
        s_lshr_b32 s{self.s_t1}, s2, 6
        s_add_u32 s{self.s_c}, s{self.s_t0}, s{self.s_t1}""")
    def ld_setup(self):
        k = self.c.k
        k(f"""s_mul_i32 s{self.s_wo}, s{self.c.s_wl}, 8
        s_add_u32 s{self.s_wo}, s{self.s_wo}, s{self.s_c}
        s_mul_i32 s{self.s_wo}, s{self.s_wo}, 5120
        s_add_u32 s{self.s_wo}, s{self.s_wo}, {WOP if self.k3 else WDP}
        s_mul_i32 s{self.s_m0}, s{self.c.s_wl}, 5120""")
    def ld_chunk(self, slot):
        k = self.c.k; c = self.c
        k(f"s_add_u32 m0, s{self.s_m0}, {slot*self.SLOT}\ns_add_u32 s{self.s_t2}, s{self.s_wo}, 4096")
        for i in range(4):
            k(f"buffer_load_dwordx4 v{c.vl16}, {sr(c.sO,4)}, s{self.s_wo} offen offset:{i*1024}{c.lsc} lds")
        k(f"s_add_u32 m0, m0, 4096\ns_add_u32 s{self.s_wo}, s{self.s_wo}, {4*40960}")
        k(f"buffer_load_dwordx4 v{c.vl16}, {sr(c.sO,4)}, s{self.s_t2} offen{c.lsc} lds")
    def ld_main(self, issued, init=True):
        k = self.c.k; NCH = self.NCH
        if init: k(f"s_waitcnt vmcnt({5*(issued-1)})\ns_barrier")
        for ch in range(NCH - 1):
            k(f"s_waitcnt vmcnt({5*max(0, issued-ch-2)})\ns_barrier")
            while issued < NCH and issued < ch + self.NSL and issued <= ch + 1 + self.ahead:
                self.ld_chunk(issued % self.NSL); issued += 1
    def setup(self):
        k = self.c.k; c = self.c; vt = self.vt; vl = c.vl
        for i in range(3):
            k(f"""v_add_u32 v{vt[0]}, {64*i}, v{vl}
            v_mul_u32_u24 v{vt[1]}, 6554, v{vt[0]}
            v_lshrrev_b32 v{vt[1]}, 16, v{vt[1]}
            v_mul_u32_u24 v{vt[1]}, {1280-160}, v{vt[1]}
            v_lshl_add_u32 v{self.vrow[i]}, v{vt[0]}, 4, v{vt[1]}""")
        k(f"""s_mul_i32 s{self.s_t1}, s{self.s_tb16}, {16*1280}
        s_mul_i32 s{self.s_t2}, s{self.s_c}, 160
        s_add_u32 s{self.s_t1}, s{self.s_t1}, s{self.s_t2}
        s_waitcnt lgkmcnt(0)
        s_add_u32 s{self.sX}, s{self.sPX}, s{self.s_t1}
        s_addc_u32 s{self.sX+1}, s{self.sPX+1}, 0
        s_sub_u32 s{self.sX+2}, {2048*1280}, s{self.s_t1}
        s_mov_b32 s{self.sX+3}, 0x20000
        s_mul_i32 s{self.s_xs}, s{c.s_wl}, 3072
        s_add_u32 s{self.s_xs}, s{self.s_xs}, {self.XS}""")
        if self.k3:
            k(f"s_mov_b32 m0, s{self.s_xs}")
            for i in range(3):
                k(f"s_nop 0\nbuffer_load_dwordx4 v{self.vrow[i]}, {sr(self.sX,4)}, 0 offen lds")
                if i < 2: k("s_add_u32 m0, m0, 1024")
        k(f"""v_lshrrev_b32 v{vt[0]}, 4, v{vl}
        v_and_b32 v{vt[1]}, 15, v{vl}
        v_lshlrev_b32 v{vt[2]}, 4, v{vt[1]}
        v_lshl_add_u32 v{self.vH}, v{vt[0]}, 9, v{vt[2]}
        v_lshlrev_b32 v{self.vR}, 3, v{vt[1]}
        v_lshl_add_u32 v{self.vR}, v{vt[0]}, 8, v{self.vR}
        s_lshr_b32 s{self.s_t1}, s{self.s_tb16}, 1
        s_mul_i32 s{self.s_t1}, s{self.s_t1}, 40
        s_mul_i32 s{self.s_t2}, s{self.s_c}, 5
        s_add_u32 s{self.s_t1}, s{self.s_t1}, s{self.s_t2}
        s_lshl_b32 s{self.s_t1}, s{self.s_t1}, 10
        s_and_b32 s{self.s_t2}, s{c.s_w}, 1
        s_lshl_b32 s{self.s_t2}, s{self.s_t2}, 8
        s_add_u32 s{self.s_t1}, s{self.s_t1}, s{self.s_t2}
        s_add_u32 s{self.s_ho}, s{self.s_t1}, {HIMG}
        v_mul_u32_u24 v{vt[1]}, 160, v{vt[1]}
        v_lshl_add_u32 v{vt[1]}, v{vt[0]}, 3, v{vt[1]}
        v_add_u32 v{self.vD}, s{self.s_xs}, v{vt[1]}
        v_add_u32 v{self.vA[0]}, {73728 if self.early else 0}, v{c.vl16}
        v_add_u32 v{self.vA[1]}, {(73728 if self.early else 0) + 3*self.SLOT}, v{c.vl16}
        v_add_u32 v{self.vA[2]}, {0 if self.early else 6*self.SLOT}, v{c.vl16}
        s_mul_i32 s{self.s_bo}, s{self.s_tb16}, {self.NU*1024}
        s_add_u32 s{self.s_bo}, s{self.s_bo}, {OIMG if self.k3 else ACT}""")
    def loadB(self, u):
        k = self.c.k; c = self.c
        if self.k3 and u >= 16:
            for j in range(2):
                k(f"buffer_load_dwordx2 {vr(self.fb+4*(u % self.D)+2*j,2)}, v{self.vR}, {sr(c.sO,4)}, s{self.s_bo} offen offset:{(u%4)*1024+128*j}{c.lsc}")
            return 2
        k(f"buffer_load_dwordx4 {vr(self.fb+4*(u % self.D),4)}, v{c.vl16}, {sr(c.sO,4)}, s{self.s_bo} offen offset:{(u%4)*1024}{c.lsc}")
        if u % 4 == 3: k(f"s_add_u32 s{self.s_bo}, s{self.s_bo}, 4096")
        return 1
    def rdA(self, u):
        slot = (u // 4) % self.NSL
        if self.early and slot == 4: slot = 6
        return [f"ds_read_b128 {vr(self.fa[u%3]+4*T,4)}, v{self.vA[slot//3]} offset:{(slot%3)*self.SLOT+((u%4)*5+T)*1024}" for T in range(5)]
    def main(self, init=True, resident=False):
        k = self.c.k; c = self.c; NU = self.NU; D = self.D; res = self.res
        order = []
        def resld():
            k(f"""s_add_u32 s{self.s_t1}, s{self.s_ho}, 4096
            buffer_load_dwordx4 {vr(res,4)}, v{self.vH}, {sr(c.sO,4)}, s{self.s_ho} offen{c.lsc}
            buffer_load_dwordx4 {vr(res+4,4)}, v{self.vH}, {sr(c.sO,4)}, s{self.s_ho} offen offset:2048{c.lsc}
            buffer_load_dwordx4 {vr(res+8,4)}, v{self.vH}, {sr(c.sO,4)}, s{self.s_t1} offen{c.lsc}""")
            order.extend('rrr')
        nxt = 0
        for u in range(self.D0):
            order.extend([u] * self.loadB(u)); nxt += 1
        if not c.fused: k.stamp(2)
        if init: k("s_barrier")
        if not c.fused: k.stamp(3)
        for x in self.rdA(0) + self.rdA(1): k(x)
        for u in range(NU):
            rd = []
            if self.bar8:
                if u % 8 == 6 and u < 48: k("s_barrier")
            elif u % 4 == 2 and u // 4 < self.NCH - 1 and not resident: k("s_barrier")
            if u + 2 < NU: rd = self.rdA(u + 2)
            younger = order[::-1].index(u)
            if u == NU - 1: younger = 0
            k(f"s_waitcnt vmcnt({younger}) lgkmcnt({5 if u + 1 < NU else 0})")
            if u in getattr(self, 'fine', {}): k.stamp(self.fine[u]); k("s_waitcnt lgkmcnt(0)") if K.STAMP else None
            b = self.fb + 4 * (u % D)
            for T in range(5):
                k(f"{MF} {vr(self.acc+4*T,4)}, {vr(self.fa[u%3]+4*T,4)}, {vr(b,4)}, {'0' if u == 0 else vr(self.acc+4*T,4)}")
                if T < len(rd): k(rd[T])
                if T == 2 and nxt < NU and nxt < u + D:
                    order.extend([nxt] * self.loadB(nxt)); nxt += 1
            if nxt < NU and nxt <= u + D:
                order.extend([nxt] * self.loadB(nxt)); nxt += 1
            if not self.k3 and u == NU - 12: resld()
        if self.k3:
            for T in range(5): k(f"ds_read_b64 {vr(self.fa[0]+2*T,2)}, v{self.vD} offset:{T*32}")
            k("s_waitcnt lgkmcnt(0)")
    def setup_pair(self):
        k = self.c.k; c = self.c
        k(f"""s_and_b32 s{self.s_t1}, s{c.s_w}, 1
        s_mul_i32 s{self.s_t2}, s{self.s_t1}, 5120
        v_add_u32 v{self.vA[0]}, s{self.s_t2}, v{c.vl16}
        v_add_u32 v{self.vA[1]}, {3*self.SLOT}, v{self.vA[0]}
        v_add_u32 v{self.vA[2]}, {6*self.SLOT}, v{self.vA[0]}
        s_lshl_b32 s{self.s_t1}, s{self.s_t1}, 10
        s_add_u32 s{self.s_t1}, s{self.s_t1}, {OIMG if self.k3 else ACT}
        s_mul_i32 s{self.s_bo}, s{self.s_tb16}, {self.NU*1024}
        s_add_u32 s{self.s_bo}, s{self.s_bo}, s{self.s_t1}
        s_xor_b32 s{self.s_boY}, s{self.s_tb16}, 1
        s_mul_i32 s{self.s_boY}, s{self.s_boY}, {self.NU*1024}
        s_add_u32 s{self.s_boY}, s{self.s_boY}, s{self.s_t1}
        s_mul_i32 s{self.s_t1}, s{c.s_w}, 5120
        v_add_u32 v{self.vE[0]}, s{self.s_t1}, v{c.vl16}
        s_xor_b32 s{self.s_t1}, s{c.s_w}, 1
        s_mul_i32 s{self.s_t1}, s{self.s_t1}, 5120
        v_add_u32 v{self.vE[1]}, s{self.s_t1}, v{c.vl16}""")
    def main_pair(self):
        k = self.c.k; c = self.c; N = self.NU // 2; D = self.D; res = self.res
        order = []
        def loadB(u, y):
            so = self.s_boY if y else self.s_bo
            k(f"buffer_load_dwordx4 {vr(self.fb+8*(u % D)+4*y,4)}, v{c.vl16}, {sr(c.sO,4)}, s{so} offen offset:{(u%2)*2048}{c.lsc}")
            if u % 2 == 1: k(f"s_add_u32 s{so}, s{so}, 4096")
            order.append((u, y))
        def rdA(u):
            slot = (u // 2) % self.NSL
            return [f"ds_read_b128 {vr(self.fa[u%2]+4*T,4)}, v{self.vA[slot//3]} offset:{(slot%3)*self.SLOT+((u%2)*10+T)*1024}" for T in range(5)]
        q = [(u, y) for u in range(N) for y in range(2)]
        for _ in range(2 * self.D0): loadB(*q.pop(0))
        for x in rdA(0): k(x)
        for u in range(N):
            younger = 0 if u == N - 1 else len(order) - 1 - order.index((u, 1))
            k(f"s_waitcnt vmcnt({younger}) lgkmcnt(0)")
            if u in getattr(self, 'fine', {}): k.stamp(self.fine[u])
            bar = u % 4 == 3 and u < 24
            rd = rdA(u + 1) if u + 1 < N else []
            b = self.fb + 8 * (u % D)
            for i in range(10):
                T = i // 2; y = 1 - (i & 1)
                if u == N - 1: T = i % 5; y = 1 - i // 5
                a = (self.acc, self.accY)[y] + 4 * T
                k(f"{MF} {vr(a,4)}, {vr(self.fa[u%2]+4*T,4)}, {vr(b+4*y,4)}, {'0' if u == 0 else vr(a,4)}")
                if bar and i == 1: k("s_barrier")
                j = i - (1 if bar else 0)
                if 0 <= j < len(rd): k(rd[j])
                if i in (5, 7) and q and q[0][0] < u + D: loadB(*q.pop(0))
                if i in (6, 8) and q and q[0][0] < u + D and len(order) < 2 * (u + D) - 2: loadB(*q.pop(0))
            if u == N - 8:
                k(f"""s_add_u32 s{self.s_t1}, s{self.s_ho}, 4096
                buffer_load_dwordx4 {vr(res,4)}, v{self.vH}, {sr(c.sO,4)}, s{self.s_ho} offen{c.lsc}
                buffer_load_dwordx4 {vr(res+4,4)}, v{self.vH}, {sr(c.sO,4)}, s{self.s_ho} offen offset:2048{c.lsc}
                buffer_load_dwordx4 {vr(res+8,4)}, v{self.vH}, {sr(c.sO,4)}, s{self.s_t1} offen{c.lsc}""")
                order.extend('rrr')
        assert not q
        for T in range(5): k(f"ds_write_b128 v{self.vE[0]}, {vr(self.accY+4*T,4)} offset:{T*1024}")
        k("s_waitcnt lgkmcnt(0)\ns_barrier")
        for T in range(5): k(f"ds_read_b128 {vr(self.fb+4*T,4)}, v{self.vE[1]} offset:{T*1024}")
        for T in range(5):
            k(f"s_waitcnt lgkmcnt({4-T})")
            for p in range(2): k(f"v_pk_add_f32 {vr(self.acc+4*T+2*p,2)}, {vr(self.acc+4*T+2*p,2)}, {vr(self.fb+4*T+2*p,2)}")
    def epilogue(self):
        k = self.c.k; c = self.c; t = self.vt; acc = self.acc; res = self.res; sO = c.sO; vH = self.vH; sc = c.sc
        if self.k3:
            k(f"s_mov_b32 s{self.s_cnt}, 0x3f803f80\nv_mov_b32 v{t[0]}, 0\nv_mov_b32 v{t[1]}, 0")
            src = self.fa[0]
        else:
            for p in range(3):
                k(f"v_permlane32_swap_b32 v{res+4*p}, v{res+4*p+2}\nv_permlane32_swap_b32 v{res+4*p+1}, v{res+4*p+3}")
            src = res
        pk = self.fa[1]
        for T in range(5):
            for d in range(2):
                x = src + 2 * T + d; a = acc + 4 * T + 2 * d
                k(f"""v_lshlrev_b32 v{t[2+2*d]}, 16, v{x}
                v_and_b32 v{t[3+2*d]}, 0xffff0000, v{x}
                v_add_f32 v{a}, v{a}, v{t[2+2*d]}
                v_add_f32 v{a+1}, v{a+1}, v{t[3+2*d]}
                v_cvt_pk_bf16_f32 v{pk+2*T+d}, v{a}, v{a+1}""")
        if self.k3:
            for i in range(10):
                k(f"v_dot2c_f32_bf16 v{t[0]}, s{self.s_cnt}, v{pk+i}\nv_dot2c_f32_bf16 v{t[1]}, v{pk+i}, v{pk+i}")
            for p in range(3):
                k(f"v_permlane32_swap_b32 v{pk+4*p}, v{pk+4*p+2}\nv_permlane32_swap_b32 v{pk+4*p+1}, v{pk+4*p+3}")
            k(f"""s_add_u32 s{self.s_t1}, s{self.s_ho}, 4096
            buffer_store_dwordx4 {vr(pk,4)}, v{vH}, {sr(sO,4)}, s{self.s_ho} offen{sc}
            buffer_store_dwordx4 {vr(pk+4,4)}, v{vH}, {sr(sO,4)}, s{self.s_ho} offen offset:2048{sc}
            s_mov_b32 exec_hi, 0
            buffer_store_dwordx4 {vr(pk+8,4)}, v{vH}, {sr(sO,4)}, s{self.s_t1} offen{sc}
            s_mov_b32 exec_hi, -1
            v_mov_b32 v{t[2]}, v{t[0]}
            v_mov_b32 v{t[3]}, v{t[1]}
            v_permlane32_swap_b32 v{t[2]}, v{t[0]}
            v_permlane32_swap_b32 v{t[3]}, v{t[1]}
            v_add_f32 v{t[0]}, v{t[0]}, v{t[2]}
            v_add_f32 v{t[1]}, v{t[1]}, v{t[3]}
            v_mov_b32 v{t[2]}, v{t[0]}
            v_mov_b32 v{t[3]}, v{t[1]}
            v_permlane16_swap_b32 v{t[2]}, v{t[0]}
            v_permlane16_swap_b32 v{t[3]}, v{t[1]}
            v_add_f32 v{acc}, v{t[0]}, v{t[2]}
            v_add_f32 v{acc+1}, v{t[1]}, v{t[3]}
            v_lshlrev_b32 v{t[4]}, 3, v{c.vl}
            s_lshl_b32 s{self.s_t2}, s{self.s_c}, 14
            s_lshl_b32 s{self.s_t0}, s{self.s_tb16}, 7
            s_add_u32 s{self.s_t2}, s{self.s_t2}, s{self.s_t0}
            s_add_u32 s{self.s_t2}, s{self.s_t2}, {STATS}
            s_mov_b64 exec, 0xffff
            buffer_store_dwordx2 {vr(acc,2)}, v{t[4]}, {sr(sO,4)}, s{self.s_t2} offen{sc}
            s_mov_b64 exec, -1""")
        else:
            for T in range(5): k(f"ds_write_b64 v{self.vD}, {vr(pk+2*T,2)} offset:{T*32}")
            k(f"v_add_u32 v{t[0]}, s{self.s_xs}, v{c.vl16}\ns_waitcnt lgkmcnt(0)")
            for i in range(3): k(f"ds_read_b128 {vr(self.fa[0]+4*i,4)}, v{t[0]} offset:{i*1024}")
            for i in range(3):
                k(f"s_waitcnt lgkmcnt({2-i})")
                if i == 2: k("s_mov_b32 exec_hi, 0")
                k(f"buffer_store_dwordx4 {vr(self.fa[0]+4*i,4)}, v{self.vrow[i]}, {sr(self.sX,4)}, 0 offen{self.ofl}")
            k("s_mov_b32 exec_hi, -1")

class P4:
    CK, NSL, NCH, SLOT = 4, 5, 10, 28672
    CSB = 5 * 28672
    def __init__(self, c, D=12, D0=None):
        self.c = c; k = c.k; self.D = D; self.D0 = D0 or D; self.lds = self.CSB + 1024 + 8192
        c.reset()
        (self.s_tb, self.s_g, self.s_t0, self.s_t1, self.s_t2, self.s_bo, self.s_wo, self.s_m0) = [k.s() for _ in range(8)]
        self.vt = [k.v() for _ in range(4)]; self.vA = [k.v() for _ in range(3)]
        self.st = k.v(8, 4); self.par = k.v(6, 2)
        self.acc = [k.v(16, 4) for _ in range(7)]
        self.fa = [k.v(28, 4), k.v(28, 4)]
        self.fb = k.v(4 * D, 4)
    def ids(self):
        k = self.c.k
        k(f"""s_and_b32 s{self.s_t0}, s2, 1
        s_lshl_b32 s{self.s_t0}, s{self.s_t0}, 3
        s_bfe_u32 s{self.s_t1}, s2, 0x30003
        s_add_u32 s{self.s_tb}, s{self.s_t0}, s{self.s_t1}
        s_lshl_b32 s{self.s_tb}, s{self.s_tb}, 2
        s_add_u32 s{self.s_tb}, s{self.s_tb}, s{self.c.s_wl}
        s_bfe_u32 s{self.s_t0}, s2, 0x20001
        s_lshl_b32 s{self.s_t0}, s{self.s_t0}, 2
        s_lshr_b32 s{self.s_t1}, s2, 6
        s_add_u32 s{self.s_g}, s{self.s_t0}, s{self.s_t1}""")
    def ld_setup(self):
        k = self.c.k
        k(f"""s_mul_i32 s{self.s_wo}, s{self.c.s_wl}, 16
        s_add_u32 s{self.s_wo}, s{self.s_wo}, s{self.s_g}
        s_mul_i32 s{self.s_wo}, s{self.s_wo}, 7168
        s_add_u32 s{self.s_wo}, s{self.s_wo}, {WGUP}
        s_mul_i32 s{self.s_m0}, s{self.c.s_wl}, 7168""")
    thin = None
    def ld_chunk(self, slot, thin=False):
        k = self.c.k; c = self.c
        k(f"s_add_u32 m0, s{self.s_m0}, {slot*self.SLOT}\ns_add_u32 s{self.s_t2}, s{self.s_wo}, 4096")
        for i in range(4):
            k(f"buffer_load_dwordx4 v{c.vl16}, {sr(c.sO,4)}, s{self.s_wo} offen offset:{i*1024}{c.lsc} lds")
        k(f"s_add_u32 m0, m0, 4096\ns_add_u32 s{self.s_wo}, s{self.s_wo}, {4*112*1024}")
        if thin and self.thin is not None: k(f"s_waitcnt vmcnt({self.thin})")
        for i in range(3):
            k(f"buffer_load_dwordx4 v{c.vl16}, {sr(c.sO,4)}, s{self.s_t2} offen offset:{i*1024}{c.lsc} lds")
    def ld_cs(self):
        k = self.c.k; c = self.c
        k(f"""s_mul_i32 s{self.s_t2}, s{self.s_g}, 896
        s_mov_b32 m0, {self.CSB}
        s_add_u32 s{self.s_t2}, s{self.s_t2}, {CSG}
        buffer_load_dwordx4 v{c.vl16}, {sr(c.sO,4)}, s{self.s_t2} offen{c.lsc} lds""")
    def ld_stats(self):
        k = self.c.k; c = self.c
        k(f"""s_lshr_b32 s{self.s_t0}, s{self.s_tb}, 2
        s_lshl_b32 s{self.s_t0}, s{self.s_t0}, 10
        s_lshl_b32 s{self.s_t1}, s{c.s_wl}, 15
        s_add_u32 s{self.s_t0}, s{self.s_t0}, s{self.s_t1}
        s_add_u32 s{self.s_t0}, s{self.s_t0}, {STATS}
        s_lshl_b32 s{self.s_t1}, s{c.s_wl}, 11
        s_add_u32 m0, s{self.s_t1}, {self.CSB + 1024}
        s_add_u32 s{self.s_t1}, s{self.s_t0}, {16384 - 1024}
        buffer_load_dwordx4 v{c.vl16}, {sr(c.sO,4)}, s{self.s_t0} offen{c.lsc} lds
        buffer_load_dwordx4 v{c.vl16}, {sr(c.sO,4)}, s{self.s_t1} offen offset:1024{c.lsc} lds""")
    def ld_main(self, issued, extra, init=True):
        k = self.c.k; NCH = self.NCH
        if init: k(f"s_waitcnt vmcnt({7*(issued-1)+extra})\ns_barrier")
        nw = 0
        for ch in range(NCH - 1):
            k(f"s_waitcnt vmcnt({min(63, 7*max(0, issued-ch-2) + 5*nw)})\ns_barrier")
            while issued < NCH and issued <= ch + self.NSL and issued <= ch + 1 + self.ahead:
                self.ld_chunk(issued % self.NSL, True); issued += 1
            if self.warm and ch >= 4:
                assert issued == NCH
                if ch == 4: self.warm()
                for i_, j in enumerate(self.wsched[ch]):
                    if i_ and self.thin is not None: k(f"s_waitcnt vmcnt({self.thin + 1})")
                    self.warm_chunk(j); nw += 1
    warm = None
    mcorr = True
    lstat = True
    bsched = None
    nob = False
    wsched = {4: (), 5: (0, 1), 6: (2, 3), 7: (4, 5), 8: (6,)}
    def setup(self):
        k = self.c.k; c = self.c; vt = self.vt
        k(f"""v_mov_b32 v{self.vA[0]}, v{c.vl16}
        v_add_u32 v{self.vA[1]}, {2*self.SLOT}, v{c.vl16}
        v_add_u32 v{self.vA[2]}, {4*self.SLOT}, v{c.vl16}
        s_mul_i32 s{self.s_bo}, s{self.s_tb}, 40960
        s_add_u32 s{self.s_bo}, s{self.s_bo}, {HIMG}
        v_and_b32 v{vt[0]}, 31, v{c.vl}
        v_lshrrev_b32 v{vt[1]}, 5, v{c.vl}
        v_lshlrev_b32 v{vt[2]}, 3, v{vt[0]}
        v_lshl_add_u32 v{vt[2]}, v{vt[1]}, {12 if self.lstat else 16}, v{vt[2]}""")
        if self.lstat: k(f"""s_lshl_b32 s{self.s_t0}, s{c.s_wl}, 8
        s_add_u32 s{self.s_t0}, s{self.s_t0}, {self.CSB + 1024}
        v_add_u32 v{vt[2]}, s{self.s_t0}, v{vt[2]}""")
        else: k(f"s_lshl_b32 s{self.s_t0}, s{self.s_tb}, 8\ns_add_u32 s{self.s_t0}, s{self.s_t0}, {STATS}")
    def loadB(self, u):
        k = self.c.k; c = self.c
        k(f"buffer_load_dwordx4 {vr(self.fb+4*(u % self.D),4)}, v{c.vl16}, {sr(c.sO,4)}, s{self.s_bo} offen offset:{(u%4)*1024}{c.lsc}")
        if u % 4 == 3: k(f"s_add_u32 s{self.s_bo}, s{self.s_bo}, 4096")
    def rdA(self, u):
        slot = (u // 4) % self.NSL
        return [f"ds_read_b128 {vr(self.fa[u&1]+4*T,4)}, v{self.vA[slot//2]} offset:{(slot%2)*self.SLOT+((u%4)*7+T)*1024}" for T in range(7)]
    def main(self, init=True, endbar=False):
        k = self.c.k; c = self.c; D = self.D; st = self.st
        order = []; nxt = 0; pq = self.params(); assert D == 12; crd, ccv = self.corr_prep()
        for u in range(self.D0):
            self.loadB(u); order.append(u); nxt += 1
        if not c.fused: k.stamp(2)
        if init: k("s_barrier")
        if not c.fused: k.stamp(3)
        for x in self.rdA(0): k(x)
        for u in range(40):
            younger = len(order) - 1 - order.index(u)
            if u == 39: younger = 0
            k(f"s_waitcnt vmcnt({younger}) lgkmcnt(0)")
            if u in getattr(self, 'fine', {}): k.stamp(self.fine[u])
            bar = u % 4 == 3 and (u < 39 or endbar)
            rd = self.rdA(u + 1) if u < 39 else []
            b = self.fb + 4 * (u % D)
            r0 = 2 if bar else 0
            for T in range(7):
                k(f"{M16} {vr(self.acc[T],16)}, {vr(self.fa[u&1]+4*T,4)}, {vr(b,4)}, {'0' if u == 0 else vr(self.acc[T],16)}")
                if bar and T == 1: k("s_barrier")
                if T >= r0 - 1 or not bar:
                    j = T - (r0 - 1 if bar else 0)
                    for x in rd[2*j:2*j+2]: k(x)
                if u == 32 and T == 0 and self.mcorr: assert not pq; pq = crd
                if u == 34 and T == 0 and self.mcorr: assert not pq; pq = ccv
                if u >= 24 and T >= 4:
                    for x in pq[:2]: k(x)
                    del pq[:2]
                if self.bsched and u >= 4:
                    if u % 4 in self.bsched and T in (3, 5) and nxt < 40 and nxt < u + D:
                        self.loadB(nxt); order.append(nxt); nxt += 1
                elif T == 5 and nxt < 40 and nxt < u + D:
                    self.loadB(nxt); order.append(nxt); nxt += 1
            if nxt < 40 and nxt <= u + D and not (self.bsched and u >= 4):
                if not self.nob: self.loadB(nxt)
                order.append(nxt); nxt += 1
            if u == 20 and self.lstat:
                for i in range(4): k(f"ds_read_b64 {vr(st+2*i,2)}, v{self.vt[2]} offset:{i*1024}")
            if 4 <= u < 12 and u % 2 == 0 and not self.lstat:
                i = (u - 4) // 2
                k(f"buffer_load_dwordx2 {vr(st+2*i,2)}, v{self.vt[2]}, {sr(c.sO,4)}, s{self.s_t0} offen{c.lsc}")
                if i < 3: k(f"s_add_u32 s{self.s_t0}, s{self.s_t0}, 16384")
                order.append('s')
            if u == 38 and self.mcorr: k(self.corr(0))
            if u == 39: assert not pq
    def params(self):
        c = self.c; t = self.vt; st = self.st; par = self.par; vl = c.vl
        return [x.strip() for x in f"""v_lshrrev_b32 v{t[0]}, 5, v{vl}
        {f"v_and_b32 v{t[1]}, 31, v{vl}" if self.mcorr else f"v_lshlrev_b32 v{t[1]}, 2, v{t[0]}"}
        v_lshlrev_b32 v{t[1]}, 2, v{t[1]}
        v_add_u32 v{t[1]}, {self.CSB}, v{t[1]}
        v_add_f32 v{st}, v{st}, v{st+2}
        v_add_f32 v{st+1}, v{st+1}, v{st+3}
        v_add_f32 v{st+4}, v{st+4}, v{st+6}
        v_add_f32 v{st+5}, v{st+5}, v{st+7}
        v_add_f32 v{st}, v{st}, v{st+4}
        v_add_f32 v{st+1}, v{st+1}, v{st+5}
        v_mov_b32 v{st+2}, v{st}
        v_mov_b32 v{st+3}, v{st+1}
        v_bfe_u32 v{t[2]}, v{vl}, 4, 1
        v_mul_u32_u24 v{t[2]}, 55296, v{t[2]}
        v_permlane32_swap_b32 v{st+2}, v{st}
        v_permlane32_swap_b32 v{st+3}, v{st+1}
        v_add_f32 v{st}, v{st}, v{st+2}
        v_add_f32 v{st+1}, v{st+1}, v{st+3}
        v_mul_f32 v{par}, {f2u(-1.0/640):#x}, v{st}
        v_mul_f32 v{st+1}, {f2u(1.0/640):#x}, v{st+1}
        v_fma_f32 v{st+1}, -v{par}, v{par}, v{st+1}
        v_max_f32 v{st+1}, 0, v{st+1}
        v_add_f32 v{par+4}, {f2u(1e-5):#x}, v{st+1}
        v_rsq_f32 v{par+2}, v{par+4}
        v_cmp_gt_u32 vcc, 32, v{vl}
        v_mov_b32 v{par+5}, v{par+4}
        v_mul_f32 v{par+2}, {f2u(-math.log2(math.e)):#x}, v{par+2}
        v_lshl_add_u32 v{t[2]}, v{t[0]}, 8, v{t[2]}
        v_mov_b32 v{par+3}, v{par+2}
        v_and_b32 v{t[3]}, 15, v{vl}
        v_lshl_add_u32 v{t[2]}, v{t[3]}, 4, v{t[2]}
        s_mul_i32 s{self.s_t0}, s{self.s_tb}, {2*55296}
        s_mul_i32 s{self.s_t1}, s{self.s_g}, 3584
        s_add_u32 s{self.s_t0}, s{self.s_t0}, s{self.s_t1}
        s_add_u32 s{self.s_t0}, s{self.s_t0}, {ACT}
        v_cndmask_b32 v{par}, 0, v{par}, vcc
        v_cvt_pk_bf16_f32 v{st+4}, v{par}, v{par}
        v_and_b32 v{par+1}, 0xffff0000, v{st+4}
        v_sub_f32 v{par+1}, v{par}, v{par+1}
        v_cvt_pk_bf16_f32 v{st+5}, v{par+1}, 0""".split("\n")][:None if self.mcorr else -5] + ([] if self.mcorr else [f"v_mov_b32 v{par+1}, v{par}"])
    def corr_prep(self):
        ca = self.fb + 16
        rd = [f"ds_read_b32 v{ca+2*T}, v{self.vt[1]} offset:{T*128}" for T in range(7)]
        cv = []
        for T in range(7):
            a = ca + 2 * T; h = self.st + 6 + (T & 1)
            cv += [f"v_cvt_pk_bf16_f32 v{a+1}, v{a}, 0", f"v_lshlrev_b32 v{h}, 16, v{a+1}", f"v_sub_f32 v{a}, v{a}, v{h}", f"v_cvt_pk_bf16_f32 v{a}, v{h}, v{a}"]
        return rd, cv
    def corr(self, T): return f"{M8} {vr(self.acc[T],16)}, {vr(self.fb+16+2*T,2)}, {vr(self.st+4,2)}, {vr(self.acc[T],16)}"
    def epilogue(self, L_fin):
        k = self.c.k; c = self.c; t = self.vt; st = self.st; par = self.par; vl = c.vl
        tmp = self.fa[0] if self.mcorr else self.fb
        cs = [self.fa[0], self.fa[0] + 16, self.fa[0] + 32]
        def rdcs(T):
            for j in range(4): k(f"ds_read_b128 {vr(cs[T%3]+4*j,4)}, v{t[1]} offset:{T*128+32*j}")
        if not self.mcorr: rdcs(0); rdcs(1)
        for T in range(7):
            A = self.acc[T]; cc = cs[T % 3]
            if self.mcorr:
                if T + 1 < 7: k(self.corr(T + 1))
            else:
                if T + 2 < 7: rdcs(T + 2)
                k(f"s_waitcnt lgkmcnt({4*min(2, 6-T)})")
                for p in range(8): k(f"v_pk_fma_f32 {vr(A+2*p,2)}, {vr(cc+2*p,2)}, {vr(par,2)}, {vr(A+2*p,2)}")
            for p in range(4): k(f"v_pk_mul_f32 {vr(tmp+2*p,2)}, {vr(A+2*p,2)}, {vr(par+2,2)}")
            for i in range(8): k(f"v_exp_f32 v{tmp+i}, v{tmp+i}")
            for p in range(4): k(f"v_pk_mul_f32 {vr(A+2*p,2)}, {vr(A+2*p,2)}, {vr(A+8+2*p,2)}")
            for p in range(4): k(f"v_pk_fma_f32 {vr(tmp+2*p,2)}, {vr(tmp+2*p,2)}, {vr(par+4,2)}, {vr(par+4,2)}")
            for i in range(8): k(f"v_rcp_f32 v{tmp+i}, v{tmp+i}")
            for p in range(4): k(f"v_pk_mul_f32 {vr(A+2*p,2)}, {vr(A+2*p,2)}, {vr(tmp+2*p,2)}")
            for p in range(4): k(f"v_cvt_pk_bf16_f32 v{A+8+p}, v{A+2*p}, v{A+2*p+1}")
            k(f"buffer_store_dwordx4 {vr(A+8,4)}, v{t[2]}, {sr(c.sO,4)}, s{self.s_t0} offen offset:{T*512}{c.sc}")
            if T == 2: k(f"s_cmp_eq_u32 s{self.s_g}, 15\ns_cbranch_scc1 {L_fin}")
        k(f"{L_fin}:")

def gen(which, opt):
    if which in '35':
        o = opt('K' + which)
        c = Ctx("k3_oproj_kernel" if which == '3' else "k5_down_kernel", False); k = c.k
        P = P35(c, int(which), D=o.get('D', 12 if which == '5' else 20)); P.ahead = o.get('ahead', 2)
        c.entry(int(which) - 1, P.ptr_load())
        P.ids(); c.ws_srd()
        L = k.label("ld"); lw(c, L)
        P.setup(); P.main(); k.stamp(4); k.stamp(5); P.epilogue(); c.finish()
        k(f"{L}:"); P.ld_setup()
        for ch in range(2): P.ld_chunk(ch)
        P.ld_main(2); k("s_endpgm")
        return k, (256, 512, P.lds)
    if which == '4':
        o = opt('K4')
        c = Ctx("k4_gateup_kernel", False); k = c.k
        P = P4(c, D=o.get('D', 12)); P.ahead = o.get('ahead', 2)
        c.entry(3); P.ids(); c.ws_srd()
        L = k.label("ld"); lw(c, L)
        P.setup(); P.main(); k.stamp(4); k.stamp(5); P.epilogue(k.label("fin")); c.finish()
        k(f"{L}:"); P.ld_setup()
        for ch in range(2): P.ld_chunk(ch)
        P.ld_cs(); P.ld_stats()
        P.ld_main(2, 3); k("s_endpgm")
        return k, (256, 512, P.lds)
    import mega
    return mega.gen(opt)
```

```python
from ph2 import *
NAME = "sequential_preLN__softmax_full_mha__swiglu_ffn__prompt_kernel"

def gen(opt):
    o = opt('M')
    c = Ctx(NAME, True); k = c.k
    sO = c.sO; sWS = c.sWS; s_w = c.s_w; s_wl = c.s_wl; vl = c.vl; vl16 = c.vl16; sc = c.sc
    rot = o.get('rot', True); c.pdepth = o.get('pd', 1)
    sD = k.s(4)
    s_po = k.s(); s_cs = k.s(); vPA = k.v(); vPS = k.v(); sA = k.s(4); sB = k.s(4); sR = [k.s() for _ in range(5)]
    c.s0 = k.snext; c.v0 = k.vnext
    SLOT = 32768; NS = 4
    SL = 12288; VB = 3 * SL; PREP = 6 * SL; EXB = PREP
    sP = k.s(4); sX = sA; sW = sB; sQ = k.s(8); sWD = k.s(2); sPC = k.s(2)
    s_tb = k.s(); s_cg = k.s(); s_t0 = k.s(); s_t2 = k.s()
    s_ow, s_m0x, s_slot, s_delta, s_t1 = sR
    s_ox = k.s(); s_cnt = k.s(); s_rs = k.s(); s_msk = k.s()
    vt = [k.v() for _ in range(6)]
    vXA = [k.v() for _ in range(4)]; vWA = [k.v(), k.v()]
    vX = [k.v() for _ in range(4)]; vW = [k.v() for _ in range(4)]
    acc = [[k.v(16, 4) for _ in range(2)] for _ in range(2)]
    fx = [[k.v(4, 4) for _ in range(2)] for _ in range(2)]
    fw = [[k.v(4, 4) for _ in range(2)] for _ in range(2)]
    acs = k.v(16, 4); ones = k.v(4, 4); vpf = k.v(16, 4)
    XCH = NS * SLOT; NM, RS, CS = 0, 512, 1024
    L_spare = k.label("spare"); L_v = k.label("vpath"); L_J0 = k.label("J0"); L_comp = k.label("comp")
    k.kidx = 1; k.stamp_real(0); k.stamp(1)
    k(f"""s_load_dwordx4 {sr(sP,4)}, s[0:1], {KA_X}
    s_load_dwordx4 {sr(sD,4)}, s[0:1], {KA_DBG}
    s_cmp_ge_u32 s2, 256
    s_cbranch_scc1 {c.L_end}
    v_lshrrev_b32 v{vt[0]}, 6, v0
    v_and_b32 v{vl}, 63, v0
    v_readfirstlane_b32 s{s_w}, v{vt[0]}
    s_and_b32 s{s_t0}, s2, 3
    s_lshl_b32 s{s_t0}, s{s_t0}, 2
    s_bfe_u32 s{s_t1}, s2, 0x20003
    s_add_u32 s{s_tb}, s{s_t0}, s{s_t1}
    s_bfe_u32 s{s_t0}, s2, 0x10002
    s_lshr_b32 s{s_t1}, s2, 5""")
    if o.get('sfirst', True): k(f"s_sub_u32 s{s_t1}, s{s_t1}, s{s_t0}\ns_and_b32 s{s_t1}, s{s_t1}, 7")
    k(f"""s_lshl_b32 s{s_t0}, s{s_t0}, 3
    s_add_u32 s{s_cg}, s{s_t0}, s{s_t1}
    s_and_b32 s{s_wl}, s{s_w}, 3
    s_cmp_eq_u32 s{s_cg}, 15
    s_cbranch_scc1 {L_spare}
    s_cmp_ge_u32 s{s_w}, 4
    s_cbranch_scc1 {L_comp}
    v_lshrrev_b32 v{vt[0]}, 3, v{vl}
    v_lshl_add_u32 v{vt[0]}, s{s_w}, 5, v{vt[0]}
    v_mul_u32_u24 v{vt[0]}, 1280, v{vt[0]}
    v_lshrrev_b32 v{vt[1]}, 4, v{vl}
    v_and_b32 v{vt[2]}, 7, v{vl}
    v_xor_b32 v{vt[2]}, v{vt[2]}, v{vt[1]}
    v_lshl_add_u32 v{vX[0]}, v{vt[2]}, 4, v{vt[0]}
    v_xor_b32 v{vX[1]}, 64, v{vX[0]}
    v_add_u32 v{vX[2]}, {2*(8*1280-1024)}, v{vX[0]}
    v_add_u32 v{vX[1]}, {8*1280-1024}, v{vX[1]}
    v_add_u32 v{vX[3]}, {2*(8*1280-1024)}, v{vX[1]}
    v_lshl_add_u32 v{vt[0]}, s{s_w}, 4, v{vt[1]}
    v_mul_u32_u24 v{vt[0]}, 3840, v{vt[0]}
    v_and_b32 v{vt[2]}, 15, v{vl}
    v_lshlrev_b32 v{vt[3]}, 2, v{vt[1]}
    v_xor_b32 v{vt[2]}, v{vt[2]}, v{vt[3]}
    v_lshl_add_u32 v{vW[0]}, v{vt[2]}, 4, v{vt[0]}
    v_add_u32 v{vW[1]}, {4*3840-1024}, v{vW[0]}
    v_add_u32 v{vW[2]}, {2*(4*3840-1024)}, v{vW[0]}
    v_add_u32 v{vW[3]}, {3*(4*3840-1024)}, v{vW[0]}
    s_mul_i32 s{s_t0}, s{s_tb}, {128*1280}
    s_lshl_b32 s{s_t1}, s{s_cg}, 8
    s_lshl_b32 s{s_m0x}, s{s_w}, 12
    s_mov_b32 s{sX+2}, {128*1280}
    s_mov_b32 s{sX+3}, 0x20000
    s_sub_u32 s{sW+2}, {640*3840}, s{s_t1}
    s_mov_b32 s{sW+3}, 0x20000""")
    r0 = o.get('rot0', 1)
    if rot and not r0: k(f"s_and_b32 s{s_t2}, s2, 7\ns_lshl_b32 s{s_ox}, s{s_t2}, 7\ns_mul_i32 s{s_ow}, s{s_t2}, {64*3840}")
    else: k(f"s_mov_b32 s{s_ox}, 0\ns_mov_b32 s{s_ow}, 0")
    k(f"""s_waitcnt lgkmcnt(0)
    s_add_u32 s{sX}, s{sP}, s{s_t0}
    s_addc_u32 s{sX+1}, s{sP+1}, 0
    s_add_u32 s{sW}, s{sP+2}, s{s_t1}
    s_addc_u32 s{sW+1}, s{sP+3}, 0""")
    def dma_chunk(slot_const=None):
        if slot_const is not None: k(f"s_add_u32 m0, s{s_m0x}, {slot_const*SLOT}")
        else: k(f"s_add_u32 m0, s{s_m0x}, s{s_rs}")
        k(f"s_add_u32 s{s_t0}, s{s_ox}, 128")
        for i in range(4):
            k(f"buffer_load_dwordx4 v{vX[i]}, {sr(sX,4)}, s{s_ox} offen offset:{i*1024} lds")
        k(f"s_add_u32 m0, m0, 16384\ns_add_u32 s{s_t1}, s{s_ow}, {64*3840}")
        for i in range(4):
            k(f"buffer_load_dwordx4 v{vW[i]}, {sr(sW,4)}, s{s_ow} offen offset:{i*1024} lds")
        if r0 and slot_const == r0 - 1:
            k(f"s_and_b32 s{s_t2}, s2, 7\ns_add_u32 s{s_t2}, s{s_t2}, {r0}\ns_lshl_b32 s{s_ox}, s{s_t2}, 7\ns_mul_i32 s{s_ow}, s{s_t2}, {64*3840}")
        else:
            k(f"s_cmp_eq_u32 s{s_t0}, 1280\ns_cselect_b32 s{s_ox}, {128*r0}, s{s_t0}\ns_cselect_b32 s{s_ow}, {64*3840*r0}, s{s_t1}")
    def common_setup(ptrs=True):
        k(f"""s_mov_b64 {sr(sWS,2)}, {sr(sD+2,2)}
        s_movk_i32 s{sD+2}, 256
        s_mov_b32 s{sD+3}, 0x20000
        v_lshlrev_b32 v{vl16}, 4, v{vl}""")
        srd(k, sO, sWS, sWS + 1, WSEND)
        if ptrs: k(f"s_load_dwordx8 {sr(sQ,8)}, s[0:1], {KA_WO}\ns_load_dwordx2 {sr(sWD,2)}, s[0:1], {KA_WD}")
    def xaddr():
        k(f"""v_and_b32 v{vt[0]}, 31, v{vl}
        v_lshrrev_b32 v{vt[1]}, 5, v{vl}
        v_bfe_u32 v{vt[2]}, v{vl}, 1, 3
        v_xor_b32 v{vt[2]}, v{vt[2]}, v{vt[1]}
        v_lshlrev_b32 v{vt[2]}, 4, v{vt[2]}
        v_lshl_add_u32 v{vt[2]}, v{vt[0]}, 7, v{vt[2]}""")
    def advance(regs):
        k(f"s_cmp_eq_u32 s{s_slot}, {(NS-1)*SLOT}\ns_mov_b32 s{s_delta}, {SLOT}")
        k(f"s_cselect_b32 s{s_delta}, {(-(NS-1)*SLOT) & 0xffffffff}, s{s_delta}")
        k(f"s_add_u32 s{s_slot}, s{s_slot}, s{s_delta}")
        return [f"v_add_u32 v{r}, s{s_delta}, v{r}" for r in regs]
    def prep_decode(loads):
        pid, cb, st = s_t0, s_t2, s_ox
        R0, A_, B_, C_, u = sR
        Ld = k.label("pd"); Lg = k.label("pg")
        k(f"""s_lshl_b32 s{pid}, s2, 2
        s_add_u32 s{pid}, s{pid}, s{s_wl}
        s_mov_b32 s{B_}, 8
        s_mov_b32 s{C_}, 4
        v_bfe_u32 v{vt[2]}, v{vl}, 4, 1
        v_lshrrev_b32 v{vt[1]}, 5, v{vl}
        s_waitcnt lgkmcnt(0)
        s_cmp_ge_u32 s{pid}, 560
        s_cbranch_scc1 {Ld}
        s_mul_i32 s{u}, s{pid}, 4682
        s_lshr_b32 s{u}, s{u}, 16
        s_mul_i32 s{cb}, s{u}, 14
        s_sub_u32 s{cb}, s{pid}, s{cb}
        s_mul_i32 s{s_po}, s{u}, {112*1024}
        s_add_u32 s{s_po}, s{s_po}, {WGUP}
        s_mov_b32 s{s_cs}, {CSG}
        v_lshlrev_b32 v{vt[2]}, 11, v{vt[2]}
        v_lshl_add_u32 v{vt[3]}, v{vt[1]}, 9, v{vt[2]}""")
        if loads:
            k(f"""s_lshl_b32 s{R0}, s{u}, 4
            s_mov_b32 s{A_}, 0
            s_movk_i32 s{st}, 3456
            s_mov_b64 {sr(sA,2)}, {sr(sQ+4,2)}
            s_mov_b64 {sr(sB,2)}, {sr(sQ+6,2)}
            s_mov_b32 s{sA+2}, {640*3456}""")
        k(f"""s_branch {Lg}
        {Ld}:
        s_min_u32 s{pid}, s{pid}, 929
        s_cmp_lt_u32 s{pid}, 830
        s_movk_i32 s{cb}, 830
        s_cselect_b32 s{cb}, 560, s{cb}
        s_mov_b32 s{s_po}, {WOP}
        s_cselect_b32 s{s_po}, {WDP}, s{s_po}""")
        if loads:
            k(f"""s_cselect_b64 {sr(sA,2)}, {sr(sWD,2)}, {sr(sQ,2)}
            s_cselect_b32 s{A_}, 16, 20
            s_cselect_b32 s{R0}, 32, 40
            s_mov_b32 s{sA+2}, {640*1280}
            s_cselect_b32 s{sA+2}, {1728*1280}, s{sA+2}""")
        k(f"""s_sub_u32 s{cb}, s{pid}, s{cb}
        s_mul_i32 s{u}, s{cb}, 13108
        s_lshr_b32 s{u}, s{u}, 16
        s_mul_i32 s{st}, s{u}, 5
        s_sub_u32 s{cb}, s{cb}, s{st}
        s_mul_i32 s{st}, s{u}, {40*1024}
        s_add_u32 s{s_po}, s{s_po}, s{st}
        s_mov_b32 s{s_cs}, {WSEND}
        v_lshlrev_b32 v{vt[2]}, 9, v{vt[2]}
        v_lshl_add_u32 v{vt[3]}, v{vt[1]}, 11, v{vt[2]}""")
        if loads:
            k(f"""s_mul_i32 s{R0}, s{R0}, s{u}
            s_mul_i32 s{st}, s{u}, 160
            s_sub_u32 s{st}, s{st}, {16*160-16}
            s_cmp_ge_u32 s{pid}, 910
            s_cselect_b32 s{R0}, s{st}, s{R0}
            s_cselect_b32 s{A_}, 80, s{A_}
            s_cselect_b32 s{B_}, 20, 8
            s_cselect_b32 s{C_}, 40, 4
            s_movk_i32 s{st}, 1280
            s_mov_b64 {sr(sB,2)}, {sr(sA,2)}""")
        k(f"""{Lg}:
        s_lshl_b32 s{cb}, s{cb}, 1
        s_lshr_b32 s{pid}, s{s_w}, 2
        s_add_u32 s{pid}, s{pid}, s{cb}
        s_lshl_b32 s{u}, s{pid}, 12
        s_add_u32 s{s_po}, s{s_po}, s{u}
        s_lshl_b32 s{u}, s{pid}, 9
        s_add_u32 s{s_cs}, s{s_cs}, s{u}
        v_bfe_u32 v{vt[2]}, v{vl}, 2, 2
        v_lshl_add_u32 v{vt[3]}, v{vt[2]}, 7, v{vt[3]}
        v_and_b32 v{vt[2]}, 3, v{vl}
        v_lshl_add_u32 v{vt[3]}, v{vt[2]}, 3, v{vt[3]}
        s_lshl_b32 s{u}, s{s_w}, 12
        s_add_u32 s{u}, s{u}, {PREP}
        v_add_u32 v{vPA}, s{u}, v{vt[3]}""")
        if loads:
            k(f"""s_mov_b32 s{sB+2}, s{sA+2}
            s_mov_b32 s{sA+3}, 0x20000
            s_mov_b32 s{sB+3}, 0x20000
            v_mul_u32_u24 v{vt[2]}, s{C_}, v{vt[1]}
            v_bfe_u32 v{vt[3]}, v{vl}, 3, 2
            v_add_u32 v{vt[2]}, v{vt[2]}, v{vt[3]}
            v_mul_u32_u24 v{vt[2]}, s{st}, v{vt[2]}
            v_and_b32 v{vt[3]}, 7, v{vl}
            v_lshl_add_u32 v{vPS}, v{vt[3]}, 4, v{vt[2]}
            s_mul_i32 s{R0}, s{R0}, s{st}
            s_lshl_b32 s{cb}, s{pid}, 7
            s_add_u32 s{R0}, s{R0}, s{cb}
            s_mul_i32 s{A_}, s{A_}, s{st}
            s_mul_i32 s{B_}, s{B_}, s{st}
            s_add_u32 s{A_}, s{A_}, s{R0}
            s_add_u32 s{C_}, s{A_}, s{B_}
            s_add_u32 s{B_}, s{B_}, s{R0}""")
    TD = o.get('TD', 0)
    sTX, sTW = sQ, sQ + 4; s_tx, s_tw = sWD, sWD + 1; vTX, vTW = vXA[0], vXA[1]
    def touch():
        k(f"""s_mov_b64 exec, 0xf
        buffer_load_dword v{vXA[2]}, v{vTX}, {sr(sTX,4)}, s{s_tx} offen
        s_mov_b64 exec, 0xff
        buffer_load_dword v{vXA[3]}, v{vTW}, {sr(sTW,4)}, s{s_tw} offen
        s_mov_b64 exec, -1
        s_add_u32 s{s_tx}, s{s_tx}, 128
        s_add_u32 s{s_tw}, s{s_tw}, {64*3840}
        s_cmp_eq_u32 s{s_tx}, 1280
        s_cselect_b32 s{s_tx}, 0, s{s_tx}
        s_cselect_b32 s{s_tw}, 0, s{s_tw}""")
    dma_chunk(0); dma_chunk(1)
    if TD:
        k(f"""s_mov_b64 {sr(sTX,2)}, {sr(sP,2)}
        s_mov_b32 s{sTX+2}, {2048*1280}
        s_mov_b32 s{sTX+3}, 0x20000
        s_mov_b64 {sr(sTW,2)}, {sr(sP+2,2)}
        s_mov_b32 s{sTW+2}, {640*3840}
        s_mov_b32 s{sTW+3}, 0x20000
        s_lshr_b32 s{s_t0}, s2, 3
        s_lshl_b32 s{s_t0}, s{s_t0}, 2
        s_add_u32 s{s_t0}, s{s_t0}, s{s_w}
        s_lshl_b32 s{s_t1}, s{s_t0}, 2
        s_and_b32 s{s_t2}, s2, 3
        s_lshl_b32 s{s_t2}, s{s_t2}, 9
        s_add_u32 s{s_t1}, s{s_t1}, s{s_t2}
        v_add_u32 v{vTX}, s{s_t1}, v{vl}
        v_mul_u32_u24 v{vTX}, 1280, v{vTX}
        s_lshr_b32 s{s_t1}, s{s_t0}, 1
        s_mul_i32 s{s_t1}, s{s_t1}, 3840
        s_and_b32 s{s_t0}, s{s_t0}, 1
        s_lshl_b32 s{s_t0}, s{s_t0}, 10
        s_add_u32 s{s_t1}, s{s_t1}, s{s_t0}
        s_bfe_u32 s{s_t0}, s2, 0x10002
        s_lshl_b32 s{s_t0}, s{s_t0}, 11
        s_add_u32 s{s_t1}, s{s_t1}, s{s_t0}
        v_lshl_add_u32 v{vTW}, v{vl}, 7, s{s_t1}
        s_mov_b32 s{s_tx}, s{s_ox}
        s_mov_b32 s{s_tw}, s{s_ow}""")
        for _ in range(TD + 1): touch()
    common_setup(ptrs=not TD)
    k(f"""s_mov_b32 s{s_rs}, {3*SLOT}
    s_waitcnt vmcnt({8 + (2*TD+2 if TD else 0)})
    s_barrier""")
    k.stamp(2)
    dma_chunk(2)
    L = k.label("hloop"); Lz = k.label("hz"); Lzx = k.label("hzx"); Lnz = k.label("hnz")
    nt = 7 - TD if TD else 0
    def hit(n, tch, vm):
        if n <= 0: return
        L = k.label("hloop")
        k(f"s_mov_b32 s{s_cnt}, {n}\n{L}:\ns_waitcnt vmcnt({vm})\ns_barrier")
        dma_chunk()
        if tch: touch()
        k(f"""s_add_u32 s{s_rs}, s{s_rs}, {SLOT}
        s_and_b32 s{s_rs}, s{s_rs}, {NS*SLOT-1}
        s_sub_u32 s{s_cnt}, s{s_cnt}, 1
        s_cmp_lg_u32 s{s_cnt}, 0
        s_cbranch_scc1 {L}""")
    hit(nt, True, 8 if not TD else 10); hit(7 - nt, False, 8)
    if TD: k(f"s_load_dwordx8 {sr(sQ,8)}, s[0:1], {KA_WO}\ns_load_dwordx2 {sr(sWD,2)}, s[0:1], {KA_WD}")
    k(f"""v_and_b32 v{vt[3]}, 15, v{vl}
    v_lshlrev_b32 v{vt[3]}, 4, v{vt[3]}
    buffer_load_dword v{vt[4]}, v{vt[3]}, {sr(sD,4)}, 0 offen sc1
    s_waitcnt vmcnt(9)
    s_barrier
    s_waitcnt vmcnt(1)
    s_barrier
    s_cmp_lg_u32 s{s_w}, 0
    s_cbranch_scc1 {Lnz}
    s_mov_b32 s{s_t1}, 0
    {Lz}:
    s_waitcnt vmcnt(0)
    v_cmp_ne_u32 vcc, 0, v{vt[4]}
    s_add_u32 s{s_t1}, s{s_t1}, 1
    s_cmp_eq_u64 vcc, -1
    s_cbranch_scc1 {Lzx}
    s_cmp_gt_u32 s{s_t1}, 0x40000
    s_cbranch_scc1 {Lzx}
    buffer_load_dword v{vt[4]}, v{vt[3]}, {sr(sD,4)}, 0 offen sc1
    s_branch {Lz}
    {Lzx}:
    s_mov_b32 m0, {XCH}
    s_lshl_b32 s{s_t0}, s{s_tb}, 10
    s_add_u32 s{s_t0}, s{s_t0}, {LN1}
    buffer_load_dwordx4 v{vl16}, {sr(sO,4)}, s{s_t0} offen sc1 lds
    {Lnz}:
    s_waitcnt vmcnt(0)""")
    k.stamp(3)
    k(f"s_barrier\ns_branch {L_J0}")
    k(f"""{L_comp}:
    s_getpc_b64 {sr(sPC,2)}
    L_pf_here:
    s_lshr_b32 s{s_t0}, s2, 3
    s_add_u32 s{s_t0}, s{s_t0}, {28 if o.get('sfirst', True) else 0}
    s_and_b32 s{s_t0}, s{s_t0}, 31
    s_lshl_b32 s{s_t0}, s{s_t0}, 2
    s_add_u32 s{s_t0}, s{s_t0}, s{s_wl}
    s_lshl_b32 s{s_t0}, s{s_t0}, 10
    s_sub_u32 s{sPC}, s{sPC}, L_pf_here - {NAME}
    s_subb_u32 s{sPC+1}, s{sPC+1}, 0
    s_cmp_gt_u32 s{s_t0}, L_code_end - {NAME} - 1024
    s_cbranch_scc1 L_pf_skip
    v_lshl_add_u32 v{vt[0]}, v{vl}, 4, s{s_t0}
    global_load_dwordx4 {vr(vpf,4)}, v{vt[0]}, {sr(sPC,2)}
    L_pf_skip:
    s_waitcnt lgkmcnt(0)""")
    if o.get('touch'):
        k(f"""s_mov_b64 {sr(sX,2)}, {sr(sP,2)}
        s_mov_b32 s{sX+2}, {2048*1280}
        s_mov_b32 s{sX+3}, 0x20000
        s_mov_b64 {sr(sW,2)}, {sr(sP+2,2)}
        s_mov_b32 s{sW+2}, {640*3840}
        s_mov_b32 s{sW+3}, 0x20000
        s_lshr_b32 s{s_t0}, s2, 3
        s_lshl_b32 s{s_t0}, s{s_t0}, 2
        s_add_u32 s{s_t0}, s{s_t0}, s{s_wl}
        s_mul_i32 s{s_t1}, s{s_t0}, 5
        v_lshrrev_b32 v{vt[0]}, 4, v{vl}
        v_add_u32 v{vt[0]}, s{s_t1}, v{vt[0]}
        v_mul_u32_u24 v{vt[0]}, 3840, v{vt[0]}
        v_and_b32 v{vt[1]}, 15, v{vl}
        v_lshl_add_u32 v{vt[0]}, v{vt[1]}, 7, v{vt[0]}
        s_bfe_u32 s{s_t1}, s2, 0x10002
        s_lshl_b32 s{s_t1}, s{s_t1}, 11
        s_add_u32 s{s_t2}, s{s_t1}, {4*3840}
        v_lshlrev_b32 v{vt[1]}, 7, v{vl}
        s_mul_i32 s{s_t0}, s{s_t0}, {40*128}
        s_and_b32 s{s_ox}, s2, 3
        s_mul_i32 s{s_ox}, s{s_ox}, {512*1280}
        s_add_u32 s{s_t0}, s{s_t0}, s{s_ox}
        buffer_load_dword v{vpf+4}, v{vt[0]}, {sr(sW,4)}, s{s_t1} offen
        s_mov_b32 exec_hi, 0xff
        buffer_load_dword v{vpf+5}, v{vt[1]}, {sr(sX,4)}, s{s_t0} offen
        s_mov_b64 exec, 0xffff
        buffer_load_dword v{vpf+6}, v{vt[0]}, {sr(sW,4)}, s{s_t2} offen
        s_mov_b64 exec, -1""")
    common_setup()
    if o.get('ptouch'):
        k(f"""v_lshlrev_b32 v{vt[0]}, {o['ptouch']}, v{vl}
        s_lshl_b32 s{s_t0}, s{s_wl}, {o['ptouch'] + 6}
        buffer_load_dword v{vpf+4}, v{vt[0]}, {sr(sO,4)}, s{s_t0} offen sc1""")
    xaddr()
    k(f"""s_lshr_b32 s{s_t0}, s{s_wl}, 1
    s_and_b32 s{s_t1}, s{s_wl}, 1
    s_lshl_b32 s{s_t2}, s{s_t0}, 13
    v_add_u32 v{vXA[0]}, s{s_t2}, v{vt[2]}""")
    for s in range(1, 4): k(f"v_xor_b32 v{vXA[s]}, {32*s}, v{vXA[0]}")
    k(f"""v_bfe_u32 v{vt[2]}, v{vl}, 2, 2
    v_lshl_add_u32 v{vt[3]}, v{vt[1]}, 3, v{vt[2]}
    v_lshlrev_b32 v{vt[3]}, 8, v{vt[3]}
    s_lshl_b32 s{s_t2}, s{s_t1}, 1
    s_add_u32 s{s_t2}, s{s_t2}, s{s_t0}
    v_xor_b32 v{vt[2]}, s{s_t2}, v{vt[2]}
    v_lshl_add_u32 v{vt[3]}, v{vt[2]}, 6, v{vt[3]}
    v_bfe_u32 v{vt[2]}, v{vl}, 4, 1
    v_lshl_add_u32 v{vt[3]}, v{vt[2]}, 5, v{vt[3]}
    v_and_b32 v{vt[2]}, 3, v{vl}
    v_lshl_add_u32 v{vt[3]}, v{vt[2]}, 3, v{vt[3]}
    v_add_u32 v{vWA[0]}, 16384, v{vt[3]}
    v_xor_b32 v{vWA[1]}, 64, v{vWA[0]}
    s_mov_b32 s{s_slot}, 0""")
    for i in range(4): k(f"v_mov_b32 v{ones+i}, 0x3f803f80")
    def reads(buf, s):
        out = []
        for mt in range(2):
            out.append(f"ds_read_b128 {vr(fx[buf][mt],4)}, v{vXA[s]} offset:{mt*4096}")
        for nt in range(2):
            for rd in range(2):
                out.append(f"ds_read_b64_tr_b16 {vr(fw[buf][nt]+2*rd,2)}, v{vWA[nt]} offset:{(16*s+4*rd)*256}")
        return [out[2], out[3], out[0], out[1], out[4], out[5]]
    def mfmas(buf, vpath, first):
        m = []
        for nt in range(2):
            for mt in range(2):
                a, b = (fx[buf][mt], fw[buf][nt]) if vpath else (fw[buf][nt], fx[buf][mt])
                m.append(f"{M16} {vr(acc[nt][mt],16)}, {vr(a,4)}, {vr(b,4)}, {'0' if first else vr(acc[nt][mt],16)}")
        m.append(f"{M16} {vr(acs,16)}, {vr(ones,4)}, {vr(fw[buf][0],4)}, {'0' if first else vr(acs,16)}")
        return m
    def chunk(vpath, last, first=False):
        for s in range(3):
            k("s_waitcnt lgkmcnt(0)")
            m = mfmas(s & 1, vpath, first and s == 0); rd = reads((s + 1) & 1, s + 1)
            ad = []
            if not last and s == 0: ad = [None]
            for i in range(5):
                k(m[i])
                for x in rd[2*i:2*i+2]: k(x)
                if i == 3 and not last:
                    if s == 0: adv[:] = advance([vXA[0], vXA[1], vXA[2], vXA[3], vWA[0], vWA[1]])
                    k(adv[s])
        k("s_waitcnt lgkmcnt(0)")
        m = mfmas(1, vpath, False)
        if last:
            for x in m: k(x)
            return
        k(m[0])
        for x in adv[3:]: k(x)
        k(m[1])
        k("s_barrier")
        rd = reads(0, 0)
        for x in rd[:3]: k(x)
        k(m[2])
        for x in rd[3:]: k(x)
        k(m[3]); k(m[4])
    adv = []
    def mainloop(vpath):
        k("s_barrier")
        k.stamp(2)
        for x in reads(0, 0): k(x)
        chunk(vpath, False, first=True)
        L = k.label("loop")
        if o.get('fine') == 1:
            for j in range(8):
                k.stamp(5 + j); chunk(vpath, False)
            k.stamp(13)
        else:
            k(f"s_mov_b32 s{s_cnt}, 8\n{L}:")
            chunk(vpath, False)
            k(f"s_sub_u32 s{s_cnt}, s{s_cnt}, 1\ns_cmp_lg_u32 s{s_cnt}, 0\ns_cbranch_scc1 {L}")
        chunk(vpath, True)
        k.stamp(3)
    def epilogue(vpath):
        t = vt
        la = fx[0][0]; rg = k.v(32, 4); hoff = t[3]
        k(f"""v_and_b32 v{t[0]}, 31, v{vl}
        s_lshl_b32 s{s_t2}, s{s_t2}, 7
        s_add_u32 s{s_ox}, s{s_t2}, {XCH}
        v_lshl_add_u32 v{t[2]}, v{t[0]}, 2, s{s_ox}
        s_lshl_b32 s{s_ow}, s{s_t0}, 8
        s_add_u32 s{s_ow}, s{s_ow}, {XCH}
        v_lshl_add_u32 v{t[1]}, v{t[0]}, 2, s{s_ow}
        v_lshrrev_b32 v{hoff}, 5, v{vl}
        v_lshlrev_b32 v{hoff}, 4, v{hoff}
        s_cmp_lt_u32 s{s_cg}, 5
        s_cselect_b32 s{s_cnt}, {f2u(QSCALE):#x}, 1.0
        ds_write_b32 v{t[2]}, v{acs} offset:{CS}
        s_waitcnt lgkmcnt(0)
        s_barrier""")
        if not vpath:
            k(f"""ds_read_b32 v{la+0}, v{t[1]} offset:{NM}
            ds_read_b32 v{la+2}, v{t[1]} offset:{RS}
            ds_read_b32 v{la+4}, v{t[1]} offset:{NM+128}
            ds_read_b32 v{la+6}, v{t[1]} offset:{RS+128}
            v_add_u32 v{t[5]}, s{s_ox}, v{hoff}
            v_xor_b32 v{t[4]}, 128, v{t[5]}""")
            for nt in range(2):
                for j in range(4):
                    k(f"ds_read_b128 {vr(rg+16*nt+4*j,4)}, v{t[5] if nt==0 else t[4]} offset:{CS+32*j}")
            k(f"""v_lshlrev_b32 v{t[0]}, 4, v{t[0]}
            v_lshl_add_u32 v{t[0]}, v{hoff}, 11, v{t[0]}
            s_lshl_b32 s{s_ox}, s{s_cg}, 19
            s_lshl_b32 s{s_ow}, s{s_t2}, 10
            s_add_u32 s{s_ox}, s{s_ox}, s{s_ow}
            s_lshl_b32 s{s_ow}, s{s_tb}, 11
            s_add_u32 s{s_ox}, s{s_ox}, s{s_ow}
            s_lshl_b32 s{s_ow}, s{s_t0}, 10
            s_add_u32 s{s_ox}, s{s_ox}, s{s_ow}
            s_waitcnt lgkmcnt(4)
            v_mov_b32 v{la+1}, v{la+0}
            v_mul_f32 v{la+3}, s{s_cnt}, v{la+2}
            v_mul_f32 v{la+2}, s{s_cnt}, v{la+2}
            v_mov_b32 v{la+5}, v{la+4}
            v_mul_f32 v{la+7}, s{s_cnt}, v{la+6}
            v_mul_f32 v{la+6}, s{s_cnt}, v{la+6}""")
            for nt in range(2):
                if nt == 1: k("s_waitcnt lgkmcnt(0)")
                for mt in range(2):
                    A = acc[nt][mt]
                    for p in range(8):
                        k(f"v_pk_fma_f32 {vr(A+2*p,2)}, {vr(rg+16*nt+2*p,2)}, {vr(la+4*mt,2)}, {vr(A+2*p,2)}")
                    for p in range(8):
                        k(f"v_pk_mul_f32 {vr(A+2*p,2)}, {vr(A+2*p,2)}, {vr(la+4*mt+2,2)}")
                    for p in range(8):
                        k(f"v_cvt_pk_bf16_f32 v{A+p}, v{A+2*p}, v{A+2*p+1}")
                    k(f"s_xor_b32 s{s_ow}, s{s_ox}, {(nt*4*32768) | (mt*512)}")
                    k(f"s_add_u32 s{s_rs}, s{s_ow}, {2*32768}")
                    for jp in range(2):
                        k(f"v_permlane32_swap_b32 v{A+4*jp}, v{A+4*jp+2}\nv_permlane32_swap_b32 v{A+4*jp+1}, v{A+4*jp+3}")
                    k(f"buffer_store_dwordx4 {vr(A,4)}, v{t[0]}, {sr(sO,4)}, s{s_ow} offen{sc}")
                    k(f"buffer_store_dwordx4 {vr(A+4,4)}, v{t[0]}, {sr(sO,4)}, s{s_rs} offen{sc}")
        else:
            rg2 = k.v(32, 4)
            k(f"""v_xor_b32 v{t[4]}, 128, v{t[2]}
            ds_read_b32 v{la+2}, v{t[4]} offset:{CS}
            v_add_u32 v{t[5]}, s{s_ow}, v{hoff}""")
            for mt in range(2):
                for j in range(4):
                    k(f"ds_read_b128 {vr(rg+16*mt+4*j,4)}, v{t[5]} offset:{NM+128*mt+32*j}")
                    k(f"ds_read_b128 {vr(rg2+16*mt+4*j,4)}, v{t[5]} offset:{RS+128*mt+32*j}")
            va = [la + 4, la + 5]
            k(f"""s_sub_u32 s{s_ox}, s{s_cg}, 10
            s_lshl_b32 s{s_ox}, s{s_ox}, 7
            s_lshr_b32 s{s_ow}, s{s_t2}, 2
            s_add_u32 s{s_ox}, s{s_ox}, s{s_ow}
            v_add_u32 v{t[0]}, s{s_ox}, v{t[0]}
            v_mul_u32_u24 v{hoff}, 640, v{hoff}
            v_lshl_add_u32 v{va[0]}, v{t[0]}, 4, v{hoff}
            v_xor_b32 v{t[0]}, 32, v{t[0]}
            v_lshl_add_u32 v{va[1]}, v{t[0]}, 4, v{hoff}
            s_lshl_b32 s{s_ox}, s{s_tb}, 1
            s_add_u32 s{s_ox}, s{s_ox}, s{s_t0}
            s_mul_i32 s{s_ox}, s{s_ox}, 81920
            s_add_u32 s{s_ox}, s{s_ox}, {VIMG}
            v_mov_b32 v{la+0}, v{acs}
            v_mov_b32 v{la+1}, v{acs}
            s_waitcnt lgkmcnt(8)
            v_mov_b32 v{la+3}, v{la+2}""")
            for mt in range(2):
                if mt == 1: k("s_waitcnt lgkmcnt(0)")
                for nt in range(2):
                    A = acc[nt][mt]
                    for p in range(8):
                        k(f"v_pk_fma_f32 {vr(A+2*p,2)}, {vr(rg+16*mt+2*p,2)}, {vr(la+2*nt,2)}, {vr(A+2*p,2)}")
                    for p in range(8):
                        k(f"v_pk_mul_f32 {vr(A+2*p,2)}, {vr(A+2*p,2)}, {vr(rg2+16*mt+2*p,2)}")
                    for p in range(8):
                        k(f"v_cvt_pk_bf16_f32 v{A+p}, v{A+2*p}, v{A+2*p+1}")
                    k(f"s_add_u32 s{s_ow}, s{s_ox}, {40960*mt}\ns_add_u32 s{s_rs}, s{s_ox}, {40960*mt+20480}")
                    k(f"buffer_store_dwordx4 {vr(A,4)}, v{va[nt]}, {sr(sO,4)}, s{s_ow} offen{sc}")
                    k(f"buffer_store_dwordx4 {vr(A+4,4)}, v{va[nt]}, {sr(sO,4)}, s{s_rs} offen{sc}")
    k(f"s_cmp_ge_u32 s{s_cg}, 10\ns_cbranch_scc1 {L_v}")
    vsave = k.vnext
    mainloop(False); epilogue(False); k(f"s_branch {L_J0}")
    k.vnext = vsave
    k(f"{L_v}:")
    mainloop(True); epilogue(True)
    if o.get('fine') == 1:
        k.maxst = 14; k.stamp = lambda *a, **kw: None
    k(f"{L_J0}:\ns_setprio 0")
    k.stamp(4)
    prep_decode(True)
    k(f"""s_lshl_b32 s{c.s_f}, s{s_cg}, 5
    s_add_u32 s{c.s_f}, s{c.s_f}, s{s_tb}
    s_lshl_b32 s{c.s_f}, s{c.s_f}, {FL}
    s_add_u32 s{c.s_f}, s{c.s_f}, {F1}""")
    def spare():
        o4 = acs; xb = acc[0][0]; sm = [fw[0][0], fw[0][0] + 1]; sq = [fw[0][0] + 2, fw[0][0] + 3]
        k(f"""{L_spare}:
        v_lshrrev_b32 v{vt[0]}, 3, v{vl}
        v_lshl_add_u32 v{vt[0]}, s{s_w}, 4, v{vt[0]}
        v_mul_u32_u24 v{vt[0]}, 1280, v{vt[0]}
        v_and_b32 v{vt[2]}, 7, v{vl}
        v_lshl_add_u32 v{vX[0]}, v{vt[2]}, 4, v{vt[0]}
        v_add_u32 v{vX[1]}, {8*1280}, v{vX[0]}
        s_mul_i32 s{s_t0}, s{s_tb}, {128*1280}
        s_mov_b32 s{sX+2}, {128*1280}
        s_mov_b32 s{sX+3}, 0x20000
        s_waitcnt lgkmcnt(0)
        s_add_u32 s{sX}, s{sP}, s{s_t0}
        s_addc_u32 s{sX+1}, s{sP+1}, 0""")
        for g in range(2):
            for i in range(10): k(f"buffer_load_dwordx4 {vr(xb+40*g+4*i,4)}, v{vX[g]}, {sr(sX,4)}, 0 offen offset:{128*i}")
        common_setup()
        srd(k, sW, sWS, sWS + 1, CSG + ZERO_BYTES)
        o4 = xb + 80
        k(f"""s_mov_b32 s{s_t0}, {ONES}
        v_and_b32 v{vt[0]}, 0x70, v{vl16}
        v_lshlrev_b32 v{vt[1]}, 4, v0
        s_lshl_b32 s{s_t1}, s{s_tb}, 13
        s_add_u32 s{s_t1}, s{s_t1}, {CSG}
        s_mov_b32 s{s_msk}, 0x3f803f80""")
        for i in range(4): k(f"v_mov_b32 v{o4+i}, 0x3f803f80\nv_mov_b32 v{o4+4+i}, 0")
        nz = (ZERO_BYTES + 131071) // 131072
        for z in range(nz):
            k(f"buffer_store_dwordx4 {vr(o4+4,4)}, v{vt[1]}, {sr(sW,4)}, s{s_t1} offen{sc}\ns_add_u32 s{s_t1}, s{s_t1}, 131072")
        k(f"s_mov_b64 exec, 0xff\nbuffer_store_dwordx4 {vr(o4,4)}, v{vt[0]}, {sr(sO,4)}, s{s_t0} offen{sc}\ns_mov_b64 exec, -1")
        st = o4 + 8
        for i in range(4): k(f"v_mov_b32 v{st+i}, 0")
        for g in range(2):
            for i in range(10):
                k(f"s_waitcnt vmcnt({19 - 10*g - i + nz + 1})")
                for j in range(4):
                    x = xb + 40 * g + 4 * i + j
                    k(f"v_dot2c_f32_bf16 v{st+2*g}, s{s_msk}, v{x}\nv_dot2c_f32_bf16 v{st+2*g+1}, v{x}, v{x}")
        for ctl in ("quad_perm:[1,0,3,2]", "quad_perm:[2,3,0,1]", "row_half_mirror"):
            for i in range(4): k(f"v_add_f32_dpp v{st+i}, v{st+i}, v{st+i} {ctl} row_mask:0xf bank_mask:0xf")
        Ln = k.label("sn")
        k(f"""v_and_b32 v{vt[2]}, 1, v{vl}
        v_cmp_eq_u32 vcc, 1, v{vt[2]}
        v_lshrrev_b32 v{vt[3]}, 3, v{vl}
        v_lshl_add_u32 v{vt[3]}, v{vt[2]}, 3, v{vt[3]}
        v_cndmask_b32 v{st}, v{st}, v{st+2}, vcc
        v_cndmask_b32 v{st+1}, v{st+1}, v{st+3}, vcc
        v_lshlrev_b32 v{vt[3]}, 2, v{vt[3]}
        v_mul_f32 v{st}, {f2u(-1.0/640):#x}, v{st}
        v_mul_f32 v{st+1}, {f2u(1.0/640):#x}, v{st+1}
        v_fma_f32 v{st+1}, -v{st}, v{st}, v{st+1}
        v_max_f32 v{st+1}, 0, v{st+1}
        v_add_f32 v{st+1}, {f2u(1e-5):#x}, v{st+1}
        v_rsq_f32 v{st+1}, v{st+1}
        s_lshl_b32 s{s_t1}, s{s_w}, 6
        v_add_u32 v{vt[3]}, s{s_t1}, v{vt[3]}
        ds_write_b32 v{vt[3]}, v{st}
        ds_write_b32 v{vt[3]}, v{st+1} offset:512
        s_waitcnt vmcnt(0) lgkmcnt(0)
        s_barrier
        s_cmp_lg_u32 s{s_w}, 4
        s_cbranch_scc1 {Ln}
        ds_read_b128 {vr(st,4)}, v{vl16}
        s_lshl_b32 s{s_t0}, s{s_tb}, 10
        s_add_u32 s{s_t0}, s{s_t0}, {LN1}
        s_waitcnt lgkmcnt(0)
        buffer_store_dwordx4 {vr(st,4)}, v{vl16}, {sr(sO,4)}, s{s_t0} offen{sc}
        s_waitcnt vmcnt(0)
        s_lshl_b32 s{s_t0}, s{s_tb}, 4
        v_mov_b32 v{vt[2]}, 1
        v_mov_b32 v{vt[3]}, 0
        s_mov_b64 exec, 1
        buffer_store_dword v{vt[2]}, v{vt[3]}, {sr(sD,4)}, s{s_t0} offen sc1
        s_mov_b64 exec, -1
        {Ln}:""")
        k.stamp(2); k.stamp(3)
        k(f"s_branch {L_J0}")
    def deferred(fn):
        n = len(k.lines); fn(); out = k.lines[n:]; del k.lines[n:]; return out
    spare_code = deferred(spare)
    c.reset()
    prio = o.get('prio', (18, 6, 3, 1))
    s_h = k.s(); s_pa = k.s(); s_pr = k.s(); s_odd8 = k.s(); s_tok = k.s()
    s_t0 = k.s(); s_t1 = k.s(); s_t2 = k.s(); s_t3 = k.s()
    so = [k.s() for _ in range(3)]; s_d = k.s(); s_mo = k.s(); s_ms = k.s(); s_q1 = k.s(); s_q2 = k.s()
    sG = k.s(2); sE = k.s(2)
    vq = k.v(); vr31 = k.v(); vKA = k.v(); vKR = k.v(); vVA = k.v(); vqr = k.v()
    vt0 = k.v(6, 2); vt = list(range(vt0, vt0 + 6))
    S = [k.v(32, 4), k.v(32, 4)]; O = k.v(16, 4); OY = k.v(16, 4); P = k.v(8, 4)
    Qm = k.v(4, 4); QmY = k.v(4, 4); Qr = k.v(2); Km = k.v(4, 4); Kr = k.v(2); V0 = k.v(4, 4); V1 = [k.v(4, 4), k.v(4, 4)]
    PR = k.v(16, 4); C = S[1]; vcs = k.v(16, 4); vsel = k.v(16, 4); vca = k.v(); vfp = k.v(4, 4); vo1 = k.v(); vo2 = k.v(); vx1 = k.v(); vx2 = k.v(); s_o1 = k.s(); s_o2 = k.s()
    L_slow = k.label("slow"); L_store = k.label("store"); L_dv = k.label("dv"); L_dd = k.label("dd")
    vD = [k.v() for _ in range(3)]; vDd = [k.v() for _ in range(3)]
    k(f"""s_and_b32 s{s_t0}, s2, 7
    s_lshl_b32 s{s_t0}, s{s_t0}, 2
    s_bfe_u32 s{s_t1}, s2, 0x20003
    s_add_u32 s{s_h}, s{s_t0}, s{s_t1}
    s_lshr_b32 s{s_q1}, s{s_h}, 1
    s_mul_i32 s{s_t0}, s{s_q1}, 5
    s_and_b32 s{s_t1}, s{s_h}, 1
    s_lshl_b32 s{s_odd8}, s{s_t1}, 3
    s_mul_i32 s{s_t1}, s{s_t1}, 3
    s_add_u32 s{s_pa}, s{s_t0}, s{s_t1}
    s_lshl_b32 s{s_pa}, s{s_pa}, 15
    s_add_u32 s{s_pr}, s{s_t0}, 2
    s_lshl_b32 s{s_pr}, s{s_pr}, 15
    s_lshr_b32 s{s_q2}, s{s_wl}, 1
    s_and_b32 s{s_t3}, s{s_w}, 1
    s_mul_i32 s{s_mo}, s{s_q2}, 6144
    s_cmp_ge_u32 s{s_w}, 4
    s_cbranch_scc1 {L_dv}
    s_lshl_b32 s{s_t0}, s{s_q2}, 14
    s_lshl_b32 s{s_t1}, s{s_t3}, 10
    s_add_u32 s{s_mo}, s{s_mo}, s{s_t1}
    s_add_u32 s{s_t0}, s{s_t0}, s{s_t1}
    s_add_u32 s{s_t0}, s{s_t0}, {80*32768}
    s_add_u32 s{s_t1}, s{s_pa}, s{s_t0}
    s_add_u32 s{s_t2}, s{s_pr}, s{s_t0}
    v_add_u32 v{vD[0]}, s{s_t1}, v{vl16}
    v_add_u32 v{vD[1]}, 32768, v{vD[0]}
    v_add_u32 v{vD[2]}, s{s_t2}, v{vl16}
    v_mov_b32 v{vDd[0]}, 2048
    v_mov_b32 v{vDd[1]}, 2048
    v_mov_b32 v{vDd[2]}, 2048
    s_movk_i32 s{s_ms}, 2048
    s_branch {L_dd}
    {L_dv}:
    s_mul_i32 s{s_t1}, s{s_t3}, 3072
    s_add_u32 s{s_mo}, s{s_mo}, s{s_t1}
    s_add_u32 s{s_mo}, s{s_mo}, {VB}
    s_mul_i32 s{s_t0}, s{s_q2}, {128*10240}
    s_mul_i32 s{s_t1}, s{s_h}, 320
    s_add_u32 s{s_t0}, s{s_t0}, s{s_t1}
    s_add_u32 s{s_t0}, s{s_t0}, {VIMG}
    s_mul_i32 s{s_t3}, s{s_t3}, 192
    s_movk_i32 s{s_ms}, 1024
    v_mov_b32 v{vt[4]}, {ONES}
    v_mov_b32 v{vt[5]}, {16*10240}""")
    for i in range(3):
        k(f"""v_add_u32 v{vt[0]}, s{s_t3}, v{vl}
        s_add_u32 s{s_t3}, s{s_t3}, 64
        v_mul_u32_u24 v{vt[1]}, 3121, v{vt[0]}
        v_lshrrev_b32 v{vt[1]}, 16, v{vt[1]}
        v_mul_u32_u24 v{vt[2]}, 21, v{vt[1]}
        v_sub_u32 v{vt[2]}, v{vt[0]}, v{vt[2]}
        v_cmp_gt_u32 vcc, 20, v{vt[2]}
        v_cmp_gt_u32 {sr(sE,2)}, 16, v{vt[1]}
        v_mul_u32_u24 v{vt[1]}, 10240, v{vt[1]}
        v_lshl_add_u32 v{vt[1]}, v{vt[2]}, 4, v{vt[1]}
        s_and_b64 vcc, vcc, {sr(sE,2)}
        v_add_u32 v{vt[1]}, s{s_t0}, v{vt[1]}
        v_cndmask_b32 v{vD[i]}, v{vt[4]}, v{vt[1]}, vcc
        v_cndmask_b32 v{vDd[i]}, 0, v{vt[5]}, vcc""")
    k(f"""{L_dd}:
    s_lshr_b32 s{s_t3}, s{s_w}, 2
    s_mul_i32 s{s_t0}, s{s_t3}, 6144
    v_and_b32 v{vr31}, 31, v{vl}
    v_lshlrev_b32 v{vr31}, 4, v{vr31}
    v_lshrrev_b32 v{vt[1]}, 5, v{vl}
    v_lshl_add_u32 v{vq}, v{vt[1]}, 15, v{vr31}
    v_add_u32 v{vt[2]}, s{s_t0}, v{vr31}
    v_lshl_add_u32 v{vKA}, v{vt[1]}, 11, v{vt[2]}
    v_add_u32 v{vKR}, s{s_odd8}, v{vt[2]}
    v_add_u32 v{vKR}, 4096, v{vKR}
    v_mul_u32_u24 v{vt[0]}, 336, v{vt[1]}
    v_add_u32 v{vt[0]}, v{vt[0]}, v{vt[2]}
    v_add_u32 v{vVA}, {VB}, v{vt[0]}
    v_cmp_lt_u32 vcc, {20*16}, v{vr31}
    v_mov_b32 v{vt[0]}, 0x40000
    v_xor_b32 v{vt[1]}, s{s_t3}, v{vt[1]}
    v_cndmask_b32 v{vVA}, v{vVA}, v{vt[0]}, vcc
    v_lshl_add_u32 v{vqr}, v{vt[1]}, 9, v{vr31}
    s_lshr_b32 s{s_tok}, s2, 5
    s_lshl_b32 s{s_tok}, s{s_tok}, 8
    s_lshl_b32 s{s_t0}, s{s_wl}, 6
    s_add_u32 s{s_tok}, s{s_tok}, s{s_t0}
    s_lshl_b32 s{s_t0}, s{s_t3}, 5
    s_add_u32 s{s_tok}, s{s_tok}, s{s_t0}""")
    k(f"v_lshlrev_b32 v{vca}, 2, v{vl}\nv_mov_b32 v{vt[0]}, 0x3f803f80")
    for Tl, row in enumerate((0, 4, 1, 5)):
        k(f"v_cmp_eq_u32 vcc, {16*row}, v{vr31}")
        k(f"v_cndmask_b32 v{vsel+4*Tl}, 0, v{vt[0]}, vcc")
        for i in range(1, 4): k(f"v_mov_b32 v{vsel+4*Tl+i}, v{vsel+4*Tl}")
    k(f"""v_bfe_u32 v{vo2}, v{vl}, 4, 1
    v_mul_u32_u24 v{vo2}, {20*1024}, v{vo2}
    v_and_b32 v{vt[2]}, 15, v{vl}
    v_lshl_add_u32 v{vo1}, v{vt[2]}, 4, v{vo2}
    v_lshl_add_u32 v{vo2}, v{vt[2]}, 3, v{vo2}
    v_lshrrev_b32 v{vt[2]}, 5, v{vl}
    v_lshl_add_u32 v{vo1}, v{vt[2]}, 8, v{vo1}
    s_lshr_b32 s{s_t0}, s{s_tok}, 4
    s_mul_i32 s{s_t0}, s{s_t0}, {20*1024}
    s_add_u32 s{s_t0}, s{s_t0}, {OIMG}
    s_lshl_b32 s{s_o1}, s{s_h}, 9
    s_add_u32 s{s_o1}, s{s_o1}, s{s_t0}
    s_lshl_b32 s{s_o2}, s{s_h}, 7
    s_add_u32 s{s_o2}, s{s_o2}, s{s_t0}
    s_add_u32 s{s_o2}, s{s_o2}, {16*1024}
    s_mul_i32 s{s_t0}, s{s_wl}, 3072
    s_add_u32 s{s_t0}, s{s_t0}, {2*SL}
    s_add_u32 s{s_t1}, s{s_t0}, {VB}
    s_cmp_lt_u32 s{s_w}, 4
    s_cselect_b32 s{s_t2}, s{s_t0}, s{s_t1}
    s_cselect_b32 s{s_t1}, s{s_t1}, s{s_t0}
    v_add_u32 v{vx1}, s{s_t2}, v{vl16}
    v_add_u32 v{vx2}, s{s_t1}, v{vl16}""")
    early = o.get('early', True)
    p1 = [f"s_mov_b32 m0, s{sR[4]}", "s_nop 0"]
    for i, (sd, so_) in enumerate(((sA, sR[0]), (sA, sR[2]), (sB, sR[1]), (sB, sR[3]))):
        p1.append(f"buffer_load_dwordx4 v{vPS}, {sr(sd,4)}, s{so_} offen lds")
        if i < 3: p1 += ["s_add_u32 m0, m0, 1024", "s_nop 0"]
    edge_prep = o.get('edge_prep', False)
    Lx = k.label("jx"); Lp = k.label("jp"); Lz = k.label("jz"); Lzx = k.label("jzx"); Lns = k.label("jns")
    part = o.get('part', True)
    vfl = k.v(); vpl = k.v(); vf2 = k.v(2); s_f0 = sG; s_f1 = sG + 1
    k(f"""s_mul_i32 s{s_t0}, s{s_q1}, 40
    s_add_u32 s{s_t1}, s{s_t0}, 39
    s_lshr_b32 s{s_t0}, s{s_t0}, 7
    s_lshr_b32 s{s_t1}, s{s_t1}, 7
    s_lshl_b32 s{s_f0}, s{s_t0}, {FL+5}
    s_lshl_b32 s{s_f1}, s{s_t1}, {FL+5}
    s_add_u32 s{s_f0}, s{s_f0}, {F1}
    s_add_u32 s{s_f1}, s{s_f1}, {F1}
    v_lshrrev_b32 v{vt[2]}, 4, v{vl}
    v_min_u32 v{vt[2]}, 2, v{vt[2]}
    v_mul_u32_u24 v{vt[2]}, 160, v{vt[2]}
    v_and_b32 v{vt[3]}, 15, v{vl}
    v_add_u32 v{vt[3]}, v{vt[3]}, v{vt[2]}
    v_lshlrev_b32 v{vfl}, {FL}, v{vt[3]}""")
    if part:
        k(f"""s_sub_u32 s{s_t1}, s{s_t1}, s{s_t0}
        v_and_b32 v{vt[2]}, 1, v{vl}
        v_mul_u32_u24 v{vt[2]}, s{s_t1}, v{vt[2]}
        v_bfe_u32 v{vt[3]}, v{vl}, 1, 1
        v_bfe_u32 v{vt[4]}, v{vl}, 2, 1
        v_bfe_u32 v{vt[5]}, v{vl}, 3, 1
        v_lshl_add_u32 v{vt[4]}, v{vt[5]}, 3, v{vt[4]}
        v_mad_u32_u24 v{vt[5]}, v{vt[3]}, 5, 5
        s_lshr_b32 s{s_t1}, s2, 5
        s_lshl_b32 s{s_t1}, s{s_t1}, 1
        v_add_u32 v{vt[3]}, s{s_t1}, v{vt[3]}
        v_cmp_gt_u32 vcc, 16, v{vl}
        v_cndmask_b32 v{vt[5]}, 0, v{vt[5]}, vcc
        v_cndmask_b32 v{vt[4]}, v{vt[3]}, v{vt[4]}, vcc
        v_add_u32 v{vt[2]}, v{vt[2]}, v{vt[5]}
        v_lshl_add_u32 v{vt[2]}, v{vt[2]}, 5, v{vt[4]}
        v_lshlrev_b32 v{vpl}, {FL}, v{vt[2]}""")
    k(f"""s_cmp_lg_u32 s{s_w}, 0
    s_cbranch_scc1 {Lzx}
    v_and_b32 v{vt[3]}, 15, v{vl}
    v_lshlrev_b32 v{vt[3]}, 4, v{vt[3]}
    s_mov_b32 s{s_t1}, 0
    {Lz}:
    buffer_load_dword v{vt[4]}, v{vt[3]}, {sr(sD,4)}, 0 offen sc1
    s_add_u32 s{s_t1}, s{s_t1}, 1
    s_cmp_gt_u32 s{s_t1}, 0x40000
    s_cbranch_scc1 {Lzx}
    s_waitcnt vmcnt(0)
    v_cmp_ne_u32 vcc, 0, v{vt[4]}
    s_cmp_eq_u64 vcc, -1
    s_cbranch_scc0 {Lz}
    {Lzx}:
    s_waitcnt vmcnt(0)""")
    k.stamp(5)
    k(f"""s_barrier
    s_cmp_lg_u32 s{s_w}, 0
    s_cbranch_scc1 {Lx}""")
    c.signal(c.s_f, vt[2])
    fl = [f"buffer_load_dword v{vf2}, v{vfl}, {sr(sO,4)}, s{s_f0} offen sc1", f"buffer_load_dword v{vf2+1}, v{vfl}, {sr(sO,4)}, s{s_f1} offen sc1"]
    k(f"s_mov_b32 s{s_t2}, 0\n{Lp}:")
    if part: k(f"buffer_load_dword v{vf2}, v{vpl}, {sr(sO,4)}, s{s_f0} offen sc1")
    else: k(fl[0]); k(fl[1])
    k(f"""s_add_u32 s{s_t2}, s{s_t2}, 1
    s_cmp_gt_u32 s{s_t2}, 0x40000
    s_cbranch_scc1 {Lx}
    s_waitcnt vmcnt(0)""")
    if not part: k(f"v_min_u32 v{vf2}, v{vf2}, v{vf2+1}")
    k(f"""v_cmp_ne_u32 vcc, 0, v{vf2}
    s_cmp_eq_u64 vcc, -1
    s_cbranch_scc0 {Lp}
    {Lx}:
    s_lshl_b32 s{s_t0}, s{s_tok}, 4
    s_add_u32 s{s_q1}, s{s_t0}, s{s_pa}
    s_xor_b32 s{s_t3}, s{s_q1}, 512
    s_andn2_b32 s{s_q2}, s{s_t0}, 512
    s_add_u32 s{s_q2}, s{s_q2}, s{s_pr}
    s_add_u32 s{s_q2}, s{s_q2}, s{s_odd8}
    s_barrier""")
    k.stamp(6)
    def dma(slot):
        out = [f"s_add_u32 m0, s{s_mo}, {slot*SL}", "s_nop 0"]
        for i in range(3):
            out.append(f"buffer_load_dwordx4 v{vD[i]}, {sr(sO,4)}, 0 offen sc1 lds")
            if i < 2: out.append(f"s_add_u32 m0, m0, s{s_ms}")
            out.append(f"v_add_u32 v{vD[i]}, v{vD[i]}, v{vDd[i]}")
        return out
    k("; ---- P2 attention")
    for x in dma(0): k(x)
    k(f"""buffer_load_dwordx4 {vr(Qm,4)}, v{vq}, {sr(sO,4)}, s{s_q1} offen
    buffer_load_dwordx4 {vr(QmY,4)}, v{vq}, {sr(sO,4)}, s{s_t3} offen
    buffer_load_dwordx2 {vr(Qr,2)}, v{vqr}, {sr(sO,4)}, s{s_q2} offen""")
    for x in dma(1): k(x)
    p2a = [f"ds_read_b64_tr_b16 {vr(PR+4*Tl+2*rd,2)}, v{vPA} offset:{rd*1024+Tl*32}" for Tl in range(4) for rd in range(2)]
    p2c = [f"{M16} {vr(vcs,16)}, {vr(vsel+4*Tl,4)}, {vr(PR+4*Tl,4)}, {'0' if Tl == 0 else vr(vcs,16)}" for Tl in range(4)]
    late = [f"buffer_store_dwordx4 {vr(PR+4*Tl,4)}, v{vl16}, {sr(sO,4)}, s{s_po} offen offset:{Tl*1024}{sc}" for Tl in range(4)]
    late += [f"buffer_atomic_add_f32 v{vcs}, v{vca}, {sr(sO,4)}, s{s_cs} offen", f"buffer_atomic_add_f32 v{vcs+1}, v{vca}, {sr(sO,4)}, s{s_cs} offen offset:256"]
    TL = o.get('TL', 3); TP = o.get('TP', 11); assert TL > 2
    late_t = o.get('late_t', [TP + 1, TP + 2, TP + 4, TP + 5, TP + 3, TP + 3]); TSIG = o.get('TSIG', TP + 11)
    assert not edge_prep
    M2B = "v_mfma_f32_32x32x4_2b_bf16"
    def rdK(t):
        o_ = ((t // 4) % 3) * SL + (t % 4) * 512
        return [f"ds_read_b128 {vr(Km,4)}, v{vKA} offset:{o_}", f"ds_read_b64 {vr(Kr,2)}, v{vKR} offset:{o_}"]
    def rdV(t):
        o_ = ((t // 4) % 3) * SL + (t % 4) * 1344
        return [f"ds_read_b128 {vr(V0,4)}, v{vVA} offset:{o_}", f"ds_read_b128 {vr(V1[t&1],4)}, v{vVA} offset:{o_+672}"]
    k("s_waitcnt vmcnt(3)\ns_barrier")
    k.stamp(7)
    for x in rdK(0): k(x)
    k(f"""s_waitcnt lgkmcnt(0)
    {M2B} {vr(S[0],32)}, {vr(Kr,2)}, {vr(Qr,2)}, 0
    {M16} {vr(S[0],16)}, {vr(Km,4)}, {vr(Qm,4)}, {vr(S[0],16)}
    {M16} {vr(S[0]+16,16)}, {vr(Km,4)}, {vr(QmY,4)}, {vr(S[0]+16,16)}""")
    for x in rdK(1) + rdV(0): k(x)
    side = []; vm = [0]
    def spread(n):
        for _ in range(n):
            if side:
                x = side.pop(0)
                if x is None: continue
                if x == 'KV': vm[0] = 0; continue
                k(x)
                if x.startswith('buffer_'): vm[0] += 1
    NT = 32
    for t in range(NT):
        s = S[t & 1]; sn = S[(t + 1) & 1]; pe = t // 4; last = t == NT - 1
        e = lambda *a: [(k(f"v_exp_f32 v{s+i}, v{s+i}"), spread(1)) for i in a]
        cv = lambda i: k(f"v_cvt_pk_bf16_f32 v{P+i%8}, v{s+2*i}, v{s+2*i+1}")
        def pr(ph):
            if prio:
                q = (7 * t + ph - 19) % 28
                cum = 0
                for lvl, ln in enumerate(prio):
                    if (q == cum and ln > 0) or (t == 0 and ph == 0 and cum <= q < cum + ln): k(f"s_setprio {3 - lvl}")
                    cum += ln
        z = lambda r: '0' if t == 0 else vr(r, 16)
        pr(0)
        e(0, 1, 2, 3)
        if not last:
            k("s_waitcnt lgkmcnt(2)")
            k(f"{M2B} {vr(sn,32)}, {vr(Kr,2)}, {vr(Qr,2)}, 0")
        pr(1)
        e(4); cv(0); e(5); cv(1); e(6, 7); cv(2); e(8); cv(3); e(9, 10)
        k("s_waitcnt lgkmcnt(0)")
        k(f"{M16} {vr(O,16)}, {vr(V0,4)}, {vr(P,4)}, {z(O)}")
        pr(2)
        e(11); cv(4); e(12); cv(5); e(13, 14)
        if not last: k(f"{M16} {vr(sn,16)}, {vr(Km,4)}, {vr(Qm,4)}, {vr(sn,16)}")
        pr(3)
        e(15); cv(6); e(16); cv(7); e(17, 18)
        k(f"{M16} {vr(O,16)}, {vr(V1[t&1],4)}, {vr(P+4,4)}, {vr(O,16)}")
        pr(4)
        e(19); cv(8); e(20); cv(9); e(21, 22)
        if not last: k(f"{M16} {vr(sn+16,16)}, {vr(Km,4)}, {vr(QmY,4)}, {vr(sn+16,16)}")
        if part and t == 1:
            Ln = k.label("nq"); k(f"s_cmp_lg_u32 s{s_w}, 0\ns_cbranch_scc1 {Ln}"); k(fl[0]); k(fl[1]); k(f"{Ln}:")
        if t % 4 == 2 and pe < 7:
            assert not side
            k(f"s_waitcnt vmcnt({0 if t in (TP - 1, TSIG - 4, 26) else vm[0]})")
            if part and t == 2:
                Ln = k.label("nq"); Lq = k.label("q")
                k(f"""s_cmp_lg_u32 s{s_w}, 0
                s_cbranch_scc1 {Ln}
                s_mov_b32 s{s_t2}, 0
                {Lq}:
                v_min_u32 v{vf2}, v{vf2}, v{vf2+1}
                s_add_u32 s{s_t2}, s{s_t2}, 1
                v_cmp_ne_u32 vcc, 0, v{vf2}
                s_cmp_eq_u64 vcc, -1
                s_cbranch_scc1 {Ln}
                s_cmp_gt_u32 s{s_t2}, 0x40000
                s_cbranch_scc1 {Ln}""")
                k(fl[0]); k(fl[1])
                k(f"s_waitcnt vmcnt(0)\ns_branch {Lq}\n{Ln}:")
            if early and t == 26:
                Ln = k.label("ne"); Lq = k.label("e")
                k(f"""s_cmp_lg_u32 s{s_w}, 0
                s_cbranch_scc1 {Ln}
                s_mov_b32 s{s_t2}, 0
                {Lq}:
                v_min_u32 v{vfp}, v{vfp}, v{vfp+1}
                v_min3_u32 v{vfp}, v{vfp}, v{vfp+2}, v{vfp+3}
                s_add_u32 s{s_t2}, s{s_t2}, 1
                v_cmp_ne_u32 vcc, 0, v{vfp}
                s_cmp_eq_u64 vcc, -1
                s_cbranch_scc1 {Ln}
                s_cmp_gt_u32 s{s_t2}, 0x40000
                s_cbranch_scc1 {Ln}
                buffer_load_dwordx4 {vr(vfp,4)}, v{vl16}, {sr(sO,4)}, s{s_t0} offen sc1
                s_waitcnt vmcnt(0)
                s_branch {Lq}
                {Ln}:""")
                assert not o.get('row3')
                side += [f"s_bfe_u32 s{s_t0}, s2, 0x10002", f"s_lshl_b32 s{s_t0}, s{s_t0}, 2", f"s_lshr_b32 s{s_t1}, s2, 6", f"s_add_u32 s{s_t0}, s{s_t0}, s{s_t1}",
                         f"s_lshl_b32 s{s_t1}, s{s_w}, 3", f"s_add_u32 s{s_t0}, s{s_t0}, s{s_t1}", f"s_mul_i32 s{s_t0}, s{s_t0}, 5120", f"s_add_u32 s{s_t0}, s{s_t0}, {WOP}",
                         f"s_mul_i32 s{s_t1}, s{s_w}, 5120"]
                for hf in range(2):
                    side += [f"s_add_u32 m0, s{s_t1}, {PREP + hf*8*5120}", f"s_add_u32 s{s_t2}, s{s_t0}, 4096"]
                    side += [f"buffer_load_dwordx4 v{vl16}, {sr(sO,4)}, s{s_t0} offen offset:{i*1024} lds" for i in range(4)]
                    side += ["s_add_u32 m0, m0, 4096", f"s_add_u32 s{s_t0}, s{s_t0}, {8*40960}", f"buffer_load_dwordx4 v{vl16}, {sr(sO,4)}, s{s_t2} offen lds"]
                sp = o.get('espace', 8)
                side[:] = [y for x in side for y in ([x] + [None] * sp if x.startswith('buffer') else [x])]
            k("s_barrier")
            if o.get('fine') == 2: k.stamp({0: 1, 1: 2, 2: 3, 3: 4, 4: 5, 5: 6, 6: 9}[pe])
            if pe < 6: side += dma((pe + 2) % 3) + ['KV']
            if t == TSIG - 4:
                Ln = k.label("nf")
                k(f"s_cmp_lg_u32 s{s_w}, 0\ns_cbranch_scc1 {Ln}\ns_lshl_b32 s{s_t0}, s2, 2\ns_add_u32 s{s_t0}, s{s_t0}, {FP}")
                c.signal(s_t0, vt[2]); k(f"{Ln}:")
        pr(5)
        if t < NT - 2:
            for x in rdK(t + 2): k(x)
        if t == TP:
            for x in p2a: k(x)
        if t == TL: side += p1
        if o.get('cs2', True):
            if TP < t <= TP + 2: k(p2c[2 * (t - TP - 1)]); side.insert(0, None); side.insert(0, None); side.insert(min(4, len(side)), p2c[2 * (t - TP - 1) + 1])
        elif TP < t <= TP + 4: k(p2c[t - TP - 1])
        for i_, x_ in enumerate(late_t):
            if int(x_) == t: side.append(late[i_])
        if t == (o.get('TF', 24) if early else 28): k(f"s_mov_b32 s{s_t0}, {FP}\nbuffer_load_dwordx4 {vr(vfp,4)}, v{vl16}, {sr(sO,4)}, s{s_t0} offen sc1")
        e(23); cv(10); e(24); cv(11); e(25, 26)
        k(f"{M16} {vr(OY,16)}, {vr(V0,4)}, {vr(P,4)}, {z(OY)}")
        pr(6)
        e(27); cv(12); e(28); cv(13); e(29, 30, 31); cv(14)
        if not last:
            rv = rdV(t + 1)
            k(rv[0]); cv(15); k(rv[1]); k("s_nop 0")
        else:
            cv(15)
        k(f"{M16} {vr(OY,16)}, {vr(V1[t&1],4)}, {vr(P+4,4)}, {vr(OY,16)}")
    assert not side
    if o.get('fine') == 2: k.stamp(10)
    k("s_setprio 0")
    for j in range(3): k(f"ds_write_b128 v{vx1}, {vr(OY+4*j,4)} offset:{1024*j}")
    k(f"s_mov_b32 s{s_q1}, {f2u(2.0**64):#x}\ns_mov_b32 s{s_q2}, 0x7f800000")
    k("s_waitcnt lgkmcnt(0)\ns_barrier")
    for j in (2, 0, 1): k(f"ds_read_b128 {vr(OY+4*j,4)}, v{vx2} offset:{1024*j}")
    t0, t1, t2 = vt[0], vt[1], vt[2]
    k("s_waitcnt lgkmcnt(2)")
    for i in (4, 5): k(f"v_pk_add_f32 {vr(O+2*i,2)}, {vr(O+2*i,2)}, {vr(OY+2*i,2)}")
    k(f"v_mov_b32 v{t0}, v{O+8}\nv_mov_b32 v{t1}, v{O+8}\ns_waitcnt lgkmcnt(0)")
    for i in range(4): k(f"v_pk_add_f32 {vr(O+2*i,2)}, {vr(O+2*i,2)}, {vr(OY+2*i,2)}")
    k(f"""v_permlane32_swap_b32 v{t0}, v{t1}
    v_add_f32 v{t2}, |v{O+8}|, |v{O+9}|
    v_add_f32 v{vt[3]}, |v{O+10}|, |v{O+11}|""")
    for i in range(0, 8, 2): k(f"v_add_f32 v{t2}, |v{O+i}|, v{t2}\nv_add_f32 v{vt[3]}, |v{O+i+1}|, v{vt[3]}")
    k(f"""v_cmp_lt_f32 vcc, {f2u(2.0**-64):#x}, v{t1}
    v_add_f32 v{t2}, v{t2}, v{vt[3]}
    v_cmp_gt_f32 {sr(sE,2)}, s{s_q1}, v{t1}
    v_cmp_gt_f32 {sr(sG,2)}, s{s_q2}, v{t2}
    s_and_b64 vcc, vcc, {sr(sE,2)}
    s_and_b64 vcc, vcc, {sr(sG,2)}
    s_cmp_eq_u64 vcc, -1
    s_cbranch_scc0 {L_slow}
    {L_store}:
    v_rcp_f32 v{t0}, v{t1}
    v_rcp_f32 v{t1}, v{t1}""")
    assert t0 % 2 == 0 and t1 == t0 + 1
    for i in range(4): k(f"v_pk_mul_f32 {vr(O+2*i,2)}, {vr(O+2*i,2)}, {vr(t0,2)}")
    for i in range(4): k(f"v_cvt_pk_bf16_f32 v{O+i}, v{O+2*i}, v{O+2*i+1}")
    k(f"buffer_store_dwordx4 {vr(O,4)}, v{vo1}, {sr(sO,4)}, s{s_o1} offen{sc}")
    for i in range(4, 6): k(f"v_pk_mul_f32 {vr(O+2*i,2)}, {vr(O+2*i,2)}, {vr(t0,2)}")
    for i in range(4, 6): k(f"v_cvt_pk_bf16_f32 v{O+i}, v{O+2*i}, v{O+2*i+1}")
    k(f"""s_mov_b32 exec_hi, 0
    buffer_store_dwordx2 {vr(O+4,2)}, v{vo2}, {sr(sO,4)}, s{s_o2} offen{sc}
    s_mov_b32 exec_hi, -1""")
    def slow():
        vV = vKA; vm = vKR; cnt = s_t3
        k(f"""{L_slow}:
        s_lshl_b32 s{so[0]}, s{s_tok}, 4
        s_add_u32 s{so[0]}, s{so[0]}, s{s_pr}
        s_add_u32 s{so[0]}, s{so[0]}, s{s_odd8}
        v_mov_b32 v{Qr}, 0
        v_mov_b32 v{Qr+1}, 0
        s_mov_b32 exec_hi, 0
        buffer_load_dwordx2 {vr(Qr,2)}, v{vr31}, {sr(sO,4)}, s{so[0]} offen
        s_mov_b32 exec_hi, -1
        s_add_u32 s{so[0]}, s{s_pa}, {80*32768}
        s_add_u32 s{so[1]}, s{s_pr}, {80*32768}
        s_add_u32 s{so[1]}, s{so[1]}, s{s_odd8}
        v_mov_b32 v{vm}, 0xff800000
        s_mov_b32 s{cnt}, 0""")
        L1 = k.label("mx")
        k(f"""{L1}:
        buffer_load_dwordx4 {vr(Km,4)}, v{vq}, {sr(sO,4)}, s{so[0]} offen
        buffer_load_dwordx2 {vr(Kr,2)}, v{vr31}, {sr(sO,4)}, s{so[1]} offen
        s_add_u32 s{so[0]}, s{so[0]}, 512
        s_add_u32 s{so[1]}, s{so[1]}, 512
        s_waitcnt vmcnt(0)
        {M8} {vr(S[0],16)}, {vr(Kr,2)}, {vr(Qr,2)}, 0
        {M16} {vr(S[0],16)}, {vr(Km,4)}, {vr(Qm,4)}, {vr(S[0],16)}""")
        for i in range(8): k(f"v_max3_f32 v{vm}, v{S[0]+2*i}, v{S[0]+2*i+1}, v{vm}")
        k(f"""s_add_u32 s{cnt}, s{cnt}, 1
        s_cmp_lt_u32 s{cnt}, 64
        s_cbranch_scc1 {L1}
        v_mov_b32 v{t0}, v{vm}
        v_permlane32_swap_b32 v{t0}, v{vm}
        v_max_f32 v{vm}, v{vm}, v{t0}""")
        for i in range(16): k(f"v_sub_f32 v{C+i}, 0, v{vm}\nv_mov_b32 v{O+i}, 0")
        k(f"""s_add_u32 s{so[0]}, s{s_pa}, {80*32768}
        s_add_u32 s{so[1]}, s{s_pr}, {80*32768}
        s_add_u32 s{so[1]}, s{so[1]}, s{s_odd8}
        s_mul_i32 s{so[2]}, s{s_h}, 320
        s_add_u32 s{so[2]}, s{so[2]}, {VIMG}
        v_lshrrev_b32 v{vV}, 5, v{vl}
        v_mul_u32_u24 v{vV}, 10240, v{vV}
        v_add3_u32 v{vV}, v{vV}, v{vr31}, s{so[2]}
        v_add_u32 v{vD[1]}, 20480, v{vV}
        v_cmp_gt_u32 vcc, 320, v{vr31}
        v_mov_b32 v{vD[2]}, {ONES}
        v_mov_b32 v{vDd[0]}, 40960
        v_cndmask_b32 v{vV}, v{vD[2]}, v{vV}, vcc
        v_cndmask_b32 v{vD[1]}, v{vD[2]}, v{vD[1]}, vcc
        v_cndmask_b32 v{vDd[0]}, 0, v{vDd[0]}, vcc
        s_mov_b32 s{cnt}, 0""")
        L2 = k.label("pv")
        k(f"""{L2}:
        buffer_load_dwordx4 {vr(Km,4)}, v{vq}, {sr(sO,4)}, s{so[0]} offen
        buffer_load_dwordx2 {vr(Kr,2)}, v{vr31}, {sr(sO,4)}, s{so[1]} offen
        buffer_load_dwordx4 {vr(V0,4)}, v{vV}, {sr(sO,4)}, 0 offen
        buffer_load_dwordx4 {vr(V1[0],4)}, v{vD[1]}, {sr(sO,4)}, 0 offen
        s_add_u32 s{so[0]}, s{so[0]}, 512
        s_add_u32 s{so[1]}, s{so[1]}, 512
        v_add_u32 v{vV}, v{vV}, v{vDd[0]}
        v_add_u32 v{vD[1]}, v{vD[1]}, v{vDd[0]}
        s_waitcnt vmcnt(0)
        {M8} {vr(S[0],16)}, {vr(Kr,2)}, {vr(Qr,2)}, {vr(C,16)}
        {M16} {vr(S[0],16)}, {vr(Km,4)}, {vr(Qm,4)}, {vr(S[0],16)}""")
        for i in range(16): k(f"v_exp_f32 v{S[0]+i}, v{S[0]+i}")
        for i in range(8): k(f"v_cvt_pk_bf16_f32 v{P+i}, v{S[0]+2*i}, v{S[0]+2*i+1}")
        k(f"""{M16} {vr(O,16)}, {vr(V0,4)}, {vr(P,4)}, {vr(O,16)}
        {M16} {vr(O,16)}, {vr(V1[0],4)}, {vr(P+4,4)}, {vr(O,16)}
        s_add_u32 s{cnt}, s{cnt}, 1
        s_cmp_lt_u32 s{cnt}, 64
        s_cbranch_scc1 {L2}
        v_mov_b32 v{t0}, v{O+8}
        v_mov_b32 v{t1}, v{O+8}
        v_permlane32_swap_b32 v{t0}, v{t1}
        s_branch {L_store}""")
    slow_code = deferred(slow)
    L3 = k.label("ld")
    k.stamp(8); k.nst = 8
    if o.get('fine1') or o.get('fine') == 2:
        k.maxst = 14; k.stamp = lambda *a, **kw: None
    k(f"""s_lshr_b32 s{c.s_f}, s2, 5
    s_lshl_b32 s{c.s_f}, s{c.s_f}, 5
    s_add_u32 s{c.s_f}, s{c.s_f}, s{s_h}
    s_lshl_b32 s{c.s_f}, s{c.s_f}, {FL}
    s_add_u32 s{c.s_f}, s{c.s_f}, {F2}""")
    k("; ---- P3 o-proj")
    P3 = P35(c, 3, D=o.get('D3', 20), D0=o.get('D30', 6), early=early)
    P3.rowmap = o.get('row3', False)
    k(P3.ptr_load()); P3.ids()
    lw(c, L3)
    def handoff(vt, stmp, n):
        Ln = k.label("nw0")
        k("s_barrier")
        k(f"s_cmp_lg_u32 s{c.s_w}, 0\ns_cbranch_scc1 {Ln}")
        c.signal(c.s_f, vt); c.poll(c.s_p, n, vt, stmp)
        k(f"{Ln}:\ns_barrier")
    P3.setup()
    k(f"""s_lshr_b32 s{c.s_p}, s{P3.s_tb16}, 4
    s_lshl_b32 s{c.s_p}, s{c.s_p}, {FL+5}
    s_add_u32 s{c.s_p}, s{c.s_p}, {F2}
    s_waitcnt vmcnt(3)""")
    handoff(P3.vt[0], P3.s_t0, 32)
    k.stamp('n')
    if o.get('fine') == 3: P3.fine = {0: 2, 1: 3, 4: 4, 8: 5, 12: 6, 16: 7, 19: 8}
    P3.main(init=False, resident=True)
    k("s_barrier")
    P3.epilogue()
    k(f"""s_lshr_b32 s{c.s_f}, s{P3.s_tb16}, 3
    s_lshl_b32 s{c.s_f}, s{c.s_f}, 5
    s_bfe_u32 s{P3.s_t0}, s{P3.s_tb16}, 0x10002
    s_lshl_b32 s{P3.s_t0}, s{P3.s_t0}, 3
    s_add_u32 s{c.s_f}, s{c.s_f}, s{P3.s_t0}
    s_add_u32 s{c.s_f}, s{c.s_f}, s{P3.s_c}
    s_lshl_b32 s{c.s_f}, s{c.s_f}, {FL}
    s_add_u32 s{c.s_f}, s{c.s_f}, {F3}""")
    Q4 = P4(c, D=o.get('D4', 12), D0=o.get('D40', 4)); Q4.ahead = o.get('ahead4', 4); Q4.thin = o.get('thin4'); Q4.nob = o.get('nob'); Q4.mcorr = o.get('mcorr', True); Q4.lstat = o.get('lstat', True); Q4.bsched = o.get('bsched', (1, 2)); Q4.tmaj = o.get('tmaj', True); Q4.pkall = o.get('pkall', False); Q4.jstart = o.get('jstart', 2)
    if Q4.tmaj: Q4.wsched = o.get('wsched', {4: (), 5: (0, 1), 6: (2, 3), 7: (4, 5, 6)})
    Q4.ids(); Q4.setup()
    k(f"""s_lshr_b32 s{c.s_p}, s{Q4.s_tb}, 2
    s_lshl_b32 s{c.s_p}, s{c.s_p}, {FL+5}
    s_add_u32 s{c.s_p}, s{c.s_p}, {F3}
    s_waitcnt vmcnt(0)""")
    k.stamp('n')
    handoff(Q4.st, Q4.s_t1, 16)
    k.stamp('n')
    Q4.fine2 = o.get('fine') == 41
    if o.get('fine') == 4: Q4.fine = {0: 2, 1: 3, 4: 4, 12: 5, 20: 6, 30: 7, 31: 8}
    Q4.main(init=False, endbar=True)
    if not Q4.tmaj: Q4.epilogue(k.label("fin"))
    k(f"""s_lshr_b32 s{c.s_f}, s{Q4.s_tb}, 2
    s_lshl_b32 s{c.s_f}, s{c.s_f}, 5
    s_add_u32 s{c.s_f}, s{c.s_f}, s{Q4.s_g}
    s_lshl_b32 s{c.s_f}, s{c.s_f}, {FL}
    s_add_u32 s{c.s_f}, s{c.s_f}, {F4}""")
    pair5 = o.get('pair5', True)
    P5 = P35(c, 5, D=o.get('D5', 8 if pair5 else 12), D0=o.get('D50', 4), pair=pair5); P5.ahead = o.get('ahead5', 5); P5.rowmap = o.get('row5', True); P5.bar8 = o.get('bar8', True); P5.ofl = o.get('ofl', '')
    k("; ---- P5 down")
    k("s_nop 1"); k(P5.ptr_load()); P5.ids(); P5.setup()
    if pair5: P5.setup_pair()
    k(f"""s_lshr_b32 s{c.s_p}, s{P5.s_tb16}, 3
    s_lshl_b32 s{c.s_p}, s{c.s_p}, {FL+5}
    s_add_u32 s{c.s_p}, s{c.s_p}, {F4}
    s_waitcnt vmcnt(0)""")
    k.stamp('n')
    handoff(P5.vt[0], P5.s_t0, 16)
    k.stamp('n')
    if o.get('fine') == 5: P5.fine = {0: 2, 1: 3, 8: 4, 16: 5, 28: 6, 40: 7, 53: 8}
    if pair5:
        if o.get('fine') == 5: P5.fine = {0: 2, 1: 3, 4: 4, 8: 5, 14: 6, 20: 7, 26: 8}
        P5.main_pair()
    else: P5.main(init=False)
    P5.epilogue()
    if o.get('dbgst') is not None:
        Ln = k.label("dn")
        k.stamp(14); k.stamp_real(15)
        k(f"s_cmp_lg_u32 s2, {o['dbgst']}\ns_cbranch_scc1 {Ln}\ns_cmp_lg_u32 s{s_w}, 0\ns_cbranch_scc1 {Ln}\ns_waitcnt lgkmcnt(0)\nv_mov_b32 v1, 0\ns_mov_b64 exec, 1")
        pos = [1, 2, 3, 5, 6, 7, 9, 10, 11, 13, 14, 15]
        src = [2, 3, 6, 7, 8, 9, 11, 12, 13, 14]
        for p_, i in zip(pos, src):
            k(f"s_sub_u32 s66, s{k.sT+2*i}, s{k.sT+2}\nv_mov_b32 v2, s66\nbuffer_store_dword v2, v1, {sr(sD,4)}, 0 offen offset:{4*p_}")
        k(f"s_sub_u32 s66, s{k.sT+30}, s{k.sT}\nv_mov_b32 v2, s66\nbuffer_store_dword v2, v1, {sr(sD,4)}, 0 offen offset:60\n{Ln}:\ns_endpgm")
        k(f"{c.L_end}:\ns_endpgm")
    else:
        c.finish()
    k(f"{L3}:")
    if early:
        P3.ld_setup()
        k(f"s_add_u32 s{P3.s_wo}, s{P3.s_wo}, {16*40960}\ns_waitcnt vmcnt(0)\ns_barrier")
        P3.ld_chunk(0)
        k("s_waitcnt vmcnt(0)\ns_barrier")
    else:
        Lp = k.label("fp"); Lok = k.label("fpok")
        k(f"""s_mov_b32 s{P3.s_cnt}, 0
        s_waitcnt vmcnt(2)
        {Lp}:
        v_min_u32 v{vfp}, v{vfp}, v{vfp+1}
        v_min3_u32 v{vfp}, v{vfp}, v{vfp+2}, v{vfp+3}
        s_add_u32 s{P3.s_cnt}, s{P3.s_cnt}, 1
        v_cmp_ne_u32 vcc, 0, v{vfp}
        s_cmp_eq_u64 vcc, -1
        s_cbranch_scc1 {Lok}
        s_cmp_gt_u32 s{P3.s_cnt}, 0x40000
        s_cbranch_scc1 {Lok}
        s_mov_b32 s{P3.s_t0}, {FP}
        buffer_load_dwordx4 {vr(vfp,4)}, v{c.vl16}, {sr(c.sO,4)}, s{P3.s_t0} offen sc1
        s_waitcnt vmcnt(0)
        s_branch {Lp}
        {Lok}:""")
        P3.ld_setup()
        k("s_waitcnt vmcnt(0)\ns_barrier")
        for ch in range(5): P3.ld_chunk(ch)
        k("s_waitcnt vmcnt(0)\ns_barrier")
    Q4.ids(); Q4.ld_setup()
    k("s_barrier")
    n4 = o.get('pre4', 2)
    for ch in range(n4): Q4.ld_chunk(ch)
    k("s_barrier")
    for ch in range(n4, 5): Q4.ld_chunk(ch)
    Q4.ld_cs()
    k("s_waitcnt vmcnt(29)\ns_barrier")
    rg5 = None
    if o.get('reg5', True):
        rg5 = dict(base=20, addr=[8, 9, 10])
        s5 = 64
        def warm():
            if P5.rowmap: k(f"s_lshr_b32 s{Q4.s_t0}, s2, 5")
            else: k(f"""s_bfe_u32 s{Q4.s_t0}, s2, 0x10002
            s_lshl_b32 s{Q4.s_t0}, s{Q4.s_t0}, 2
            s_lshr_b32 s{Q4.s_t1}, s2, 6
            s_add_u32 s{Q4.s_t0}, s{Q4.s_t0}, s{Q4.s_t1}""")
            k(f"""s_lshl_b32 s{Q4.s_t1}, s{c.s_wl}, 3
            s_add_u32 s{Q4.s_t0}, s{Q4.s_t0}, s{Q4.s_t1}
            s_mul_i32 s{Q4.s_t0}, s{Q4.s_t0}, 5120
            s_add_u32 s{Q4.s_t0}, s{Q4.s_t0}, {WDP + 28*40960}""")
        def warm_chunk(j):
            k(f"s_add_u32 s{Q4.s_t1}, s{Q4.s_t0}, 4096")
            for i in range(5):
                k(f"buffer_load_dwordx4 {vr(rg5['base'] + 20*j + 4*i, 4)}, v{c.vl16}, {sr(c.sO,4)}, s{Q4.s_t0 if i < 4 else Q4.s_t1} offen offset:{(i%4)*1024}")
            k(f"s_add_u32 s{Q4.s_t0}, s{Q4.s_t0}, {4*40960}")
        Q4.warm = warm; Q4.warm_chunk = warm_chunk
    if Q4.lstat: Q4.ld_stats()
    e5 = o.get('e5', 4) if Q4.tmaj else 0
    if e5:
        ws7 = Q4.wsched[7]; Q4.wsched = dict(Q4.wsched); Q4.wsched[7] = ()
        sv = (k.s(), )
    Q4.ld_main(5, 1, init=False)
    if e5: k(f"s_mov_b32 s{c.s_p}, s{Q4.s_t0}")
    P5.ids(); P5.ld_setup()
    k(f"""v_add_u32 v8, s{P5.s_m0}, v{c.vl16}
    v_add_u32 v9, {3*P5.SLOT}, v8
    v_add_u32 v10, {6*P5.SLOT}, v8""")
    if e5:
        def wc(j):
            k(f"s_add_u32 s{c.s_f}, s{c.s_p}, 4096")
            for i in range(5):
                k(f"buffer_load_dwordx4 {vr(rg5['base'] + 20*j + 4*i, 4)}, v{c.vl16}, {sr(c.sO,4)}, s{c.s_p if i < 4 else c.s_f} offen offset:{(i%4)*1024}")
            k(f"s_add_u32 s{c.s_p}, s{c.s_p}, {4*40960}")
        for j in ws7: wc(j)
        for ch in range(e5): P5.ld_chunk(ch)
    k("s_barrier")
    n5 = max(e5, o.get('pre5', 4))
    for ch in range(e5, n5): P5.ld_chunk(ch)
    k("s_barrier")
    for ch in range(n5, 7): P5.ld_chunk(ch)
    if P5.bar8:
        k("s_waitcnt vmcnt(25)\ns_barrier")
        P5.ld_main8(rg5, 1 if pair5 else 0)
    else:
        k("s_waitcnt vmcnt(30)\ns_barrier")
        P5.ld_main(7, init=False)
    if K.STAMP and o.get('dbgst') is None:
        for i in range(9, 15): k.stamp(i)
        k.stamp_flush(c.sO, c.s_w)
    k("s_endpgm")
    k.lines += ['    ; ---- softmax fall-back with the true row maximum'] + slow_code + ['    ; ---- statistics workgroups'] + spare_code
    return k, (256, 512, max(P3.lds, Q4.lds, P5.lds))
```

```python
from ph import *

def lw(c, L):
    c.k(f"s_cmp_ge_u32 s{c.s_w}, 4\ns_cbranch_scc1 {L}")

class P35:
    def __init__(self, c, which, D=12, D0=None, pair=False, early=False):
        self.c = c; self.k3 = k3 = which == 3; k = c.k
        self.NU = 20 if k3 else 54; self.CK = 4; self.SLOT = 20480
        self.NCH = (self.NU + 3) // 4; self.NSL = 5 if k3 else 7
        self.XS = self.NSL * self.SLOT; self.D = D; self.D0 = D0 or D
        self.early = early
        if early: self.XS = 20480
        self.lds = (self.XS + 4 * 3072) if not early else 73728 + 4 * 20480
        c.reset()
        self.sPX = k.s(2); self.sB = k.s(4); self.sX = k.s(4)
        (self.s_tb16, self.s_c, self.s_t0, self.s_t1, self.s_t2, self.s_bo, self.s_wo, self.s_m0, self.s_xs, self.s_ho,
         self.s_cnt) = [k.s() for _ in range(11)]
        self.vt = [k.v() for _ in range(6)]; self.vH = k.v(); self.vD = k.v(); self.vA = [k.v() for _ in range(3)]
        self.vrow = [k.v() for _ in range(3)]; self.vR = k.v()
        self.acc = k.v(20, 4); self.fa = [k.v(20, 4) for _ in range(3)]; self.res = k.v(12, 4)
        self.fb = k.v(4 * self.D * (2 if pair else 1), 4)
        if pair: self.accY = k.v(20, 4); self.s_boY = k.s(); self.vE = [k.v(), k.v()]
    def ptr_load(self): return f"s_load_dwordx2 {sr(self.sPX,2)}, s[0:1], {KA_X if self.k3 else KA_OUT}"
    rowmap = False
    ofl = ''
    bar8 = False
    def ld_main8(self, regs=None, free1=0):
        k = self.c.k; c = self.c
        issued = 7
        for kb in range(6):
            need = min(13, 2 * kb + 3)
            if regs is None: k(f"s_waitcnt vmcnt({5*max(0, issued - 1 - need)})")
            else: k(f"s_waitcnt vmcnt({5*max(0, 6 - need)}) lgkmcnt(0)")
            k("s_barrier")
            while issued < 14 and issued <= 2 * kb + 7 + free1:
                if regs is None: self.ld_chunk(issued % 7)
                else:
                    slot = issued % 7
                    for i in range(5):
                        k(f"ds_write_b128 v{regs['addr'][slot // 3]}, {vr(regs['base'] + 20*(issued-7) + 4*i, 4)} offset:{(slot % 3)*self.SLOT + i*1024}")
                issued += 1
    def ids(self):
        k = self.c.k
        if self.rowmap:
            k(f"""s_and_b32 s{self.s_t0}, s2, 7
            s_lshl_b32 s{self.s_t0}, s{self.s_t0}, 2
            s_bfe_u32 s{self.s_t1}, s2, 0x20003
            s_add_u32 s{self.s_tb16}, s{self.s_t0}, s{self.s_t1}
            s_lshl_b32 s{self.s_tb16}, s{self.s_tb16}, 2
            s_add_u32 s{self.s_tb16}, s{self.s_tb16}, s{self.c.s_wl}
            s_lshr_b32 s{self.s_c}, s2, 5""")
            return
        k(f"""s_and_b32 s{self.s_t0}, s2, 3
        s_lshl_b32 s{self.s_t0}, s{self.s_t0}, 3
        s_bfe_u32 s{self.s_t1}, s2, 0x30003
        s_add_u32 s{self.s_tb16}, s{self.s_t0}, s{self.s_t1}
        s_lshl_b32 s{self.s_tb16}, s{self.s_tb16}, 2
        s_add_u32 s{self.s_tb16}, s{self.s_tb16}, s{self.c.s_wl}
        s_bfe_u32 s{self.s_t0}, s2, 0x10002
        s_lshl_b32 s{self.s_t0}, s{self.s_t0}, 2
        s_lshr_b32 s{self.s_t1}, s2, 6
        s_add_u32 s{self.s_c}, s{self.s_t0}, s{self.s_t1}""")
    def ld_setup(self):
        k = self.c.k
        k(f"""s_mul_i32 s{self.s_wo}, s{self.c.s_wl}, 8
        s_add_u32 s{self.s_wo}, s{self.s_wo}, s{self.s_c}
        s_mul_i32 s{self.s_wo}, s{self.s_wo}, 5120
        s_add_u32 s{self.s_wo}, s{self.s_wo}, {WOP if self.k3 else WDP}
        s_mul_i32 s{self.s_m0}, s{self.c.s_wl}, 5120""")
    def ld_chunk(self, slot):
        k = self.c.k; c = self.c
        k(f"s_add_u32 m0, s{self.s_m0}, {slot*self.SLOT}\ns_add_u32 s{self.s_t2}, s{self.s_wo}, 4096")
        for i in range(4):
            k(f"buffer_load_dwordx4 v{c.vl16}, {sr(c.sO,4)}, s{self.s_wo} offen offset:{i*1024}{c.lsc} lds")
        k(f"s_add_u32 m0, m0, 4096\ns_add_u32 s{self.s_wo}, s{self.s_wo}, {4*40960}")
        k(f"buffer_load_dwordx4 v{c.vl16}, {sr(c.sO,4)}, s{self.s_t2} offen{c.lsc} lds")
    def ld_main(self, issued, init=True):
        k = self.c.k; NCH = self.NCH
        if init: k(f"s_waitcnt vmcnt({5*(issued-1)})\ns_barrier")
        for ch in range(NCH - 1):
            k(f"s_waitcnt vmcnt({5*max(0, issued-ch-2)})\ns_barrier")
            while issued < NCH and issued < ch + self.NSL and issued <= ch + 1 + self.ahead:
                self.ld_chunk(issued % self.NSL); issued += 1
    def setup(self):
        k = self.c.k; c = self.c; vt = self.vt; vl = c.vl
        for i in range(3):
            k(f"""v_add_u32 v{vt[0]}, {64*i}, v{vl}
            v_mul_u32_u24 v{vt[1]}, 6554, v{vt[0]}
            v_lshrrev_b32 v{vt[1]}, 16, v{vt[1]}
            v_mul_u32_u24 v{vt[1]}, {1280-160}, v{vt[1]}
            v_lshl_add_u32 v{self.vrow[i]}, v{vt[0]}, 4, v{vt[1]}""")
        k(f"""s_mul_i32 s{self.s_t1}, s{self.s_tb16}, {16*1280}
        s_mul_i32 s{self.s_t2}, s{self.s_c}, 160
        s_add_u32 s{self.s_t1}, s{self.s_t1}, s{self.s_t2}
        s_waitcnt lgkmcnt(0)
        s_add_u32 s{self.sX}, s{self.sPX}, s{self.s_t1}
        s_addc_u32 s{self.sX+1}, s{self.sPX+1}, 0
        s_sub_u32 s{self.sX+2}, {2048*1280}, s{self.s_t1}
        s_mov_b32 s{self.sX+3}, 0x20000
        s_mul_i32 s{self.s_xs}, s{c.s_wl}, 3072
        s_add_u32 s{self.s_xs}, s{self.s_xs}, {self.XS}""")
        if self.k3:
            k(f"s_mov_b32 m0, s{self.s_xs}")
            for i in range(3):
                k(f"s_nop 0\nbuffer_load_dwordx4 v{self.vrow[i]}, {sr(self.sX,4)}, 0 offen lds")
                if i < 2: k("s_add_u32 m0, m0, 1024")
        k(f"""v_lshrrev_b32 v{vt[0]}, 4, v{vl}
        v_and_b32 v{vt[1]}, 15, v{vl}
        v_lshlrev_b32 v{vt[2]}, 4, v{vt[1]}
        v_lshl_add_u32 v{self.vH}, v{vt[0]}, 9, v{vt[2]}
        v_lshlrev_b32 v{self.vR}, 3, v{vt[1]}
        v_lshl_add_u32 v{self.vR}, v{vt[0]}, 8, v{self.vR}
        s_lshr_b32 s{self.s_t1}, s{self.s_tb16}, 1
        s_mul_i32 s{self.s_t1}, s{self.s_t1}, 40
        s_mul_i32 s{self.s_t2}, s{self.s_c}, 5
        s_add_u32 s{self.s_t1}, s{self.s_t1}, s{self.s_t2}
        s_lshl_b32 s{self.s_t1}, s{self.s_t1}, 10
        s_and_b32 s{self.s_t2}, s{c.s_w}, 1
        s_lshl_b32 s{self.s_t2}, s{self.s_t2}, 8
        s_add_u32 s{self.s_t1}, s{self.s_t1}, s{self.s_t2}
        s_add_u32 s{self.s_ho}, s{self.s_t1}, {HIMG}
        v_mul_u32_u24 v{vt[1]}, 160, v{vt[1]}
        v_lshl_add_u32 v{vt[1]}, v{vt[0]}, 3, v{vt[1]}
        v_add_u32 v{self.vD}, s{self.s_xs}, v{vt[1]}
        v_add_u32 v{self.vA[0]}, {73728 if self.early else 0}, v{c.vl16}
        v_add_u32 v{self.vA[1]}, {(73728 if self.early else 0) + 3*self.SLOT}, v{c.vl16}
        v_add_u32 v{self.vA[2]}, {0 if self.early else 6*self.SLOT}, v{c.vl16}
        s_mul_i32 s{self.s_bo}, s{self.s_tb16}, {self.NU*1024}
        s_add_u32 s{self.s_bo}, s{self.s_bo}, {OIMG if self.k3 else ACT}""")
    def loadB(self, u):
        k = self.c.k; c = self.c
        if self.k3 and u >= 16:
            for j in range(2):
                k(f"buffer_load_dwordx2 {vr(self.fb+4*(u % self.D)+2*j,2)}, v{self.vR}, {sr(c.sO,4)}, s{self.s_bo} offen offset:{(u%4)*1024+128*j}{c.lsc}")
            return 2
        k(f"buffer_load_dwordx4 {vr(self.fb+4*(u % self.D),4)}, v{c.vl16}, {sr(c.sO,4)}, s{self.s_bo} offen offset:{(u%4)*1024}{c.lsc}")
        if u % 4 == 3: k(f"s_add_u32 s{self.s_bo}, s{self.s_bo}, 4096")
        return 1
    def rdA(self, u):
        slot = (u // 4) % self.NSL
        if self.early and slot == 4: slot = 6
        return [f"ds_read_b128 {vr(self.fa[u%3]+4*T,4)}, v{self.vA[slot//3]} offset:{(slot%3)*self.SLOT+((u%4)*5+T)*1024}" for T in range(5)]
    def main(self, init=True, resident=False):
        k = self.c.k; c = self.c; NU = self.NU; D = self.D; res = self.res
        order = []
        def resld():
            k(f"""s_add_u32 s{self.s_t1}, s{self.s_ho}, 4096
            buffer_load_dwordx4 {vr(res,4)}, v{self.vH}, {sr(c.sO,4)}, s{self.s_ho} offen{c.lsc}
            buffer_load_dwordx4 {vr(res+4,4)}, v{self.vH}, {sr(c.sO,4)}, s{self.s_ho} offen offset:2048{c.lsc}
            buffer_load_dwordx4 {vr(res+8,4)}, v{self.vH}, {sr(c.sO,4)}, s{self.s_t1} offen{c.lsc}""")
            order.extend('rrr')
        nxt = 0
        for u in range(self.D0):
            order.extend([u] * self.loadB(u)); nxt += 1
        if not c.fused: k.stamp(2)
        if init: k("s_barrier")
        if not c.fused: k.stamp(3)
        for x in self.rdA(0) + self.rdA(1): k(x)
        for u in range(NU):
            rd = []
            if self.bar8:
                if u % 8 == 6 and u < 48: k("s_barrier")
            elif u % 4 == 2 and u // 4 < self.NCH - 1 and not resident: k("s_barrier")
            if u + 2 < NU: rd = self.rdA(u + 2)
            younger = order[::-1].index(u)
            if u == NU - 1: younger = 0
            k(f"s_waitcnt vmcnt({younger}) lgkmcnt({5 if u + 1 < NU else 0})")
            if u in getattr(self, 'fine', {}): k.stamp(self.fine[u]); k("s_waitcnt lgkmcnt(0)") if K.STAMP else None
            b = self.fb + 4 * (u % D)
            for T in range(5):
                k(f"{MF} {vr(self.acc+4*T,4)}, {vr(self.fa[u%3]+4*T,4)}, {vr(b,4)}, {'0' if u == 0 else vr(self.acc+4*T,4)}")
                if T < len(rd): k(rd[T])
                if T == 2 and nxt < NU and nxt < u + D:
                    order.extend([nxt] * self.loadB(nxt)); nxt += 1
            if nxt < NU and nxt <= u + D:
                order.extend([nxt] * self.loadB(nxt)); nxt += 1
            if not self.k3 and u == NU - 12: resld()
        if self.k3:
            for T in range(5): k(f"ds_read_b64 {vr(self.fa[0]+2*T,2)}, v{self.vD} offset:{T*32}")
            k("s_waitcnt lgkmcnt(0)")
    def setup_pair(self):
        k = self.c.k; c = self.c
        k(f"""s_and_b32 s{self.s_t1}, s{c.s_w}, 1
        s_mul_i32 s{self.s_t2}, s{self.s_t1}, 5120
        v_add_u32 v{self.vA[0]}, s{self.s_t2}, v{c.vl16}
        v_add_u32 v{self.vA[1]}, {3*self.SLOT}, v{self.vA[0]}
        v_add_u32 v{self.vA[2]}, {6*self.SLOT}, v{self.vA[0]}
        s_lshl_b32 s{self.s_t1}, s{self.s_t1}, 10
        s_add_u32 s{self.s_t1}, s{self.s_t1}, {OIMG if self.k3 else ACT}
        s_mul_i32 s{self.s_bo}, s{self.s_tb16}, {self.NU*1024}
        s_add_u32 s{self.s_bo}, s{self.s_bo}, s{self.s_t1}
        s_xor_b32 s{self.s_boY}, s{self.s_tb16}, 1
        s_mul_i32 s{self.s_boY}, s{self.s_boY}, {self.NU*1024}
        s_add_u32 s{self.s_boY}, s{self.s_boY}, s{self.s_t1}
        s_mul_i32 s{self.s_t1}, s{c.s_w}, 5120
        v_add_u32 v{self.vE[0]}, s{self.s_t1}, v{c.vl16}
        s_xor_b32 s{self.s_t1}, s{c.s_w}, 1
        s_mul_i32 s{self.s_t1}, s{self.s_t1}, 5120
        v_add_u32 v{self.vE[1]}, s{self.s_t1}, v{c.vl16}""")
    def main_pair(self):
        k = self.c.k; c = self.c; N = self.NU // 2; D = self.D; res = self.res
        order = []
        def loadB(u, y):
            so = self.s_boY if y else self.s_bo
            k(f"buffer_load_dwordx4 {vr(self.fb+8*(u % D)+4*y,4)}, v{c.vl16}, {sr(c.sO,4)}, s{so} offen offset:{(u%2)*2048}{c.lsc}")
            if u % 2 == 1: k(f"s_add_u32 s{so}, s{so}, 4096")
            order.append((u, y))
        def rdA(u):
            slot = (u // 2) % self.NSL
            return [f"ds_read_b128 {vr(self.fa[u%2]+4*T,4)}, v{self.vA[slot//3]} offset:{(slot%3)*self.SLOT+((u%2)*10+T)*1024}" for T in range(5)]
        q = [(u, y) for u in range(N) for y in range(2)]
        for _ in range(2 * self.D0): loadB(*q.pop(0))
        for x in rdA(0): k(x)
        for u in range(N):
            younger = 0 if u == N - 1 else len(order) - 1 - order.index((u, 1))
            k(f"s_waitcnt vmcnt({younger}) lgkmcnt(0)")
            if u in getattr(self, 'fine', {}): k.stamp(self.fine[u])
            bar = u % 4 == 3 and u < 24
            rd = rdA(u + 1) if u + 1 < N else []
            b = self.fb + 8 * (u % D)
            for i in range(10):
                T = i // 2; y = 1 - (i & 1)
                if u == N - 1: T = i % 5; y = 1 - i // 5
                a = (self.acc, self.accY)[y] + 4 * T
                k(f"{MF} {vr(a,4)}, {vr(self.fa[u%2]+4*T,4)}, {vr(b+4*y,4)}, {'0' if u == 0 else vr(a,4)}")
                if bar and i == 1: k("s_barrier")
                j = i - (1 if bar else 0)
                if 0 <= j < len(rd): k(rd[j])
                if i in (5, 7) and q and q[0][0] < u + D: loadB(*q.pop(0))
                if i in (6, 8) and q and q[0][0] < u + D and len(order) < 2 * (u + D) - 2: loadB(*q.pop(0))
            if u == N - 8:
                k(f"""s_add_u32 s{self.s_t1}, s{self.s_ho}, 4096
                buffer_load_dwordx4 {vr(res,4)}, v{self.vH}, {sr(c.sO,4)}, s{self.s_ho} offen{c.lsc}
                buffer_load_dwordx4 {vr(res+4,4)}, v{self.vH}, {sr(c.sO,4)}, s{self.s_ho} offen offset:2048{c.lsc}
                buffer_load_dwordx4 {vr(res+8,4)}, v{self.vH}, {sr(c.sO,4)}, s{self.s_t1} offen{c.lsc}""")
                order.extend('rrr')
        assert not q
        for T in range(5): k(f"ds_write_b128 v{self.vE[0]}, {vr(self.accY+4*T,4)} offset:{T*1024}")
        k("s_waitcnt lgkmcnt(0)\ns_barrier")
        for T in range(5): k(f"ds_read_b128 {vr(self.fb+4*T,4)}, v{self.vE[1]} offset:{T*1024}")
        for T in range(5):
            k(f"s_waitcnt lgkmcnt({4-T})")
            for p in range(2): k(f"v_pk_add_f32 {vr(self.acc+4*T+2*p,2)}, {vr(self.acc+4*T+2*p,2)}, {vr(self.fb+4*T+2*p,2)}")
    def epilogue(self):
        k = self.c.k; c = self.c; t = self.vt; acc = self.acc; res = self.res; sO = c.sO; vH = self.vH; sc = c.sc
        if self.k3:
            k(f"s_mov_b32 s{self.s_cnt}, 0x3f803f80\nv_mov_b32 v{t[0]}, 0\nv_mov_b32 v{t[1]}, 0")
            src = self.fa[0]
        else:
            for p in range(3):
                k(f"v_permlane32_swap_b32 v{res+4*p}, v{res+4*p+2}\nv_permlane32_swap_b32 v{res+4*p+1}, v{res+4*p+3}")
            src = res
        pk = self.fa[1]
        for T in range(5):
            for d in range(2):
                x = src + 2 * T + d; a = acc + 4 * T + 2 * d
                k(f"""v_lshlrev_b32 v{t[2+2*d]}, 16, v{x}
                v_and_b32 v{t[3+2*d]}, 0xffff0000, v{x}
                v_add_f32 v{a}, v{a}, v{t[2+2*d]}
                v_add_f32 v{a+1}, v{a+1}, v{t[3+2*d]}
                v_cvt_pk_bf16_f32 v{pk+2*T+d}, v{a}, v{a+1}""")
        if self.k3:
            for i in range(10):
                k(f"v_dot2c_f32_bf16 v{t[0]}, s{self.s_cnt}, v{pk+i}\nv_dot2c_f32_bf16 v{t[1]}, v{pk+i}, v{pk+i}")
            for p in range(3):
                k(f"v_permlane32_swap_b32 v{pk+4*p}, v{pk+4*p+2}\nv_permlane32_swap_b32 v{pk+4*p+1}, v{pk+4*p+3}")
            k(f"""s_add_u32 s{self.s_t1}, s{self.s_ho}, 4096
            buffer_store_dwordx4 {vr(pk,4)}, v{vH}, {sr(sO,4)}, s{self.s_ho} offen{sc}
            buffer_store_dwordx4 {vr(pk+4,4)}, v{vH}, {sr(sO,4)}, s{self.s_ho} offen offset:2048{sc}
            s_mov_b32 exec_hi, 0
            buffer_store_dwordx4 {vr(pk+8,4)}, v{vH}, {sr(sO,4)}, s{self.s_t1} offen{sc}
            s_mov_b32 exec_hi, -1
            v_mov_b32 v{t[2]}, v{t[0]}
            v_mov_b32 v{t[3]}, v{t[1]}
            v_permlane32_swap_b32 v{t[2]}, v{t[0]}
            v_permlane32_swap_b32 v{t[3]}, v{t[1]}
            v_add_f32 v{t[0]}, v{t[0]}, v{t[2]}
            v_add_f32 v{t[1]}, v{t[1]}, v{t[3]}
            v_mov_b32 v{t[2]}, v{t[0]}
            v_mov_b32 v{t[3]}, v{t[1]}
            v_permlane16_swap_b32 v{t[2]}, v{t[0]}
            v_permlane16_swap_b32 v{t[3]}, v{t[1]}
            v_add_f32 v{acc}, v{t[0]}, v{t[2]}
            v_add_f32 v{acc+1}, v{t[1]}, v{t[3]}
            v_lshlrev_b32 v{t[4]}, 3, v{c.vl}
            s_lshl_b32 s{self.s_t2}, s{self.s_c}, 14
            s_lshl_b32 s{self.s_t0}, s{self.s_tb16}, 7
            s_add_u32 s{self.s_t2}, s{self.s_t2}, s{self.s_t0}
            s_add_u32 s{self.s_t2}, s{self.s_t2}, {STATS}
            s_mov_b64 exec, 0xffff
            buffer_store_dwordx2 {vr(acc,2)}, v{t[4]}, {sr(sO,4)}, s{self.s_t2} offen{sc}
            s_mov_b64 exec, -1""")
        else:
            for T in range(5): k(f"ds_write_b64 v{self.vD}, {vr(pk+2*T,2)} offset:{T*32}")
            k(f"v_add_u32 v{t[0]}, s{self.s_xs}, v{c.vl16}\ns_waitcnt lgkmcnt(0)")
            for i in range(3): k(f"ds_read_b128 {vr(self.fa[0]+4*i,4)}, v{t[0]} offset:{i*1024}")
            for i in range(3):
                k(f"s_waitcnt lgkmcnt({2-i})")
                if i == 2: k("s_mov_b32 exec_hi, 0")
                k(f"buffer_store_dwordx4 {vr(self.fa[0]+4*i,4)}, v{self.vrow[i]}, {sr(self.sX,4)}, 0 offen{self.ofl}")
            k("s_mov_b32 exec_hi, -1")

class P4:
    CK, NSL, NCH, SLOT = 4, 5, 10, 28672
    CSB = 5 * 28672
    def __init__(self, c, D=12, D0=None):
        self.c = c; k = c.k; self.D = D; self.D0 = D0 or D; self.lds = self.CSB + 1024 + 8192
        c.reset()
        (self.s_tb, self.s_g, self.s_t0, self.s_t1, self.s_t2, self.s_bo, self.s_wo, self.s_m0) = [k.s() for _ in range(8)]
        self.vt = [k.v() for _ in range(4)]; self.vA = [k.v() for _ in range(3)]
        self.st = k.v(8, 4); self.par = k.v(6, 2)
        self.acc = [k.v(16, 4) for _ in range(7)]
        self.fa = [k.v(28, 4), k.v(28, 4)]
        self.fb = k.v(4 * D, 4)
        x = k.v(12, 2); self.ca = [x + 2 * i for i in range(6)] + [self.st + 2]
    def ids(self):
        k = self.c.k
        k(f"""s_and_b32 s{self.s_t0}, s2, 1
        s_lshl_b32 s{self.s_t0}, s{self.s_t0}, 3
        s_bfe_u32 s{self.s_t1}, s2, 0x30003
        s_add_u32 s{self.s_tb}, s{self.s_t0}, s{self.s_t1}
        s_lshl_b32 s{self.s_tb}, s{self.s_tb}, 2
        s_add_u32 s{self.s_tb}, s{self.s_tb}, s{self.c.s_wl}
        s_bfe_u32 s{self.s_t0}, s2, 0x20001
        s_lshl_b32 s{self.s_t0}, s{self.s_t0}, 2
        s_lshr_b32 s{self.s_t1}, s2, 6
        s_add_u32 s{self.s_g}, s{self.s_t0}, s{self.s_t1}""")
    def ld_setup(self):
        k = self.c.k
        k(f"""s_mul_i32 s{self.s_wo}, s{self.c.s_wl}, 16
        s_add_u32 s{self.s_wo}, s{self.s_wo}, s{self.s_g}
        s_mul_i32 s{self.s_wo}, s{self.s_wo}, 7168
        s_add_u32 s{self.s_wo}, s{self.s_wo}, {WGUP}
        s_mul_i32 s{self.s_m0}, s{self.c.s_wl}, 7168""")
    thin = None
    def ld_chunk(self, slot, thin=False):
        k = self.c.k; c = self.c
        k(f"s_add_u32 m0, s{self.s_m0}, {slot*self.SLOT}\ns_add_u32 s{self.s_t2}, s{self.s_wo}, 4096")
        for i in range(4):
            k(f"buffer_load_dwordx4 v{c.vl16}, {sr(c.sO,4)}, s{self.s_wo} offen offset:{i*1024}{c.lsc} lds")
        k(f"s_add_u32 m0, m0, 4096\ns_add_u32 s{self.s_wo}, s{self.s_wo}, {4*112*1024}")
        if thin and self.thin is not None: k(f"s_waitcnt vmcnt({self.thin})")
        for i in range(3):
            k(f"buffer_load_dwordx4 v{c.vl16}, {sr(c.sO,4)}, s{self.s_t2} offen offset:{i*1024}{c.lsc} lds")
    def ld_cs(self):
        k = self.c.k; c = self.c
        k(f"""s_mul_i32 s{self.s_t2}, s{self.s_g}, 896
        s_mov_b32 m0, {self.CSB}
        s_add_u32 s{self.s_t2}, s{self.s_t2}, {CSG}
        buffer_load_dwordx4 v{c.vl16}, {sr(c.sO,4)}, s{self.s_t2} offen{c.lsc} lds""")
    def ld_stats(self):
        k = self.c.k; c = self.c
        k(f"""s_lshr_b32 s{self.s_t0}, s{self.s_tb}, 2
        s_lshl_b32 s{self.s_t0}, s{self.s_t0}, 10
        s_lshl_b32 s{self.s_t1}, s{c.s_wl}, 15
        s_add_u32 s{self.s_t0}, s{self.s_t0}, s{self.s_t1}
        s_add_u32 s{self.s_t0}, s{self.s_t0}, {STATS}
        s_lshl_b32 s{self.s_t1}, s{c.s_wl}, 11
        s_add_u32 m0, s{self.s_t1}, {self.CSB + 1024}
        s_add_u32 s{self.s_t1}, s{self.s_t0}, {16384 - 1024}
        buffer_load_dwordx4 v{c.vl16}, {sr(c.sO,4)}, s{self.s_t0} offen{c.lsc} lds
        buffer_load_dwordx4 v{c.vl16}, {sr(c.sO,4)}, s{self.s_t1} offen offset:1024{c.lsc} lds""")
    def ld_main(self, issued, extra, init=True):
        k = self.c.k; NCH = self.NCH
        if init: k(f"s_waitcnt vmcnt({7*(issued-1)+extra})\ns_barrier")
        nw = 0
        for ch in range(NCH - 1 - self.tmaj):
            k(f"s_waitcnt vmcnt({min(63, 7*max(0, issued-ch-2-(self.tmaj and ch == 7)) + 5*nw)})\ns_barrier")
            while issued < NCH and issued <= ch + self.NSL and issued <= ch + 1 + self.ahead:
                self.ld_chunk(issued % self.NSL, True); issued += 1
            if self.warm and ch >= 4:
                assert issued == NCH
                if ch == 4: self.warm()
                for i_, j in enumerate(self.wsched[ch]):
                    if i_ and self.thin is not None: k(f"s_waitcnt vmcnt({self.thin + 1})")
                    self.warm_chunk(j); nw += 1
    warm = None
    mcorr = True
    lstat = True
    bsched = None
    tmaj = False
    pkall = False
    jstart = 2
    nob = False
    wsched = {4: (), 5: (0, 1), 6: (2, 3), 7: (4, 5), 8: (6,)}
    def setup(self):
        k = self.c.k; c = self.c; vt = self.vt
        k(f"""v_mov_b32 v{self.vA[0]}, v{c.vl16}
        v_add_u32 v{self.vA[1]}, {2*self.SLOT}, v{c.vl16}
        v_add_u32 v{self.vA[2]}, {4*self.SLOT}, v{c.vl16}
        s_mul_i32 s{self.s_bo}, s{self.s_tb}, 40960
        s_add_u32 s{self.s_bo}, s{self.s_bo}, {HIMG}
        v_and_b32 v{vt[0]}, 31, v{c.vl}
        v_lshrrev_b32 v{vt[1]}, 5, v{c.vl}
        v_lshlrev_b32 v{vt[2]}, 3, v{vt[0]}
        v_lshl_add_u32 v{vt[2]}, v{vt[1]}, {12 if self.lstat else 16}, v{vt[2]}""")
        if self.lstat: k(f"""s_lshl_b32 s{self.s_t0}, s{c.s_wl}, 8
        s_add_u32 s{self.s_t0}, s{self.s_t0}, {self.CSB + 1024}
        v_add_u32 v{vt[2]}, s{self.s_t0}, v{vt[2]}""")
        else: k(f"s_lshl_b32 s{self.s_t0}, s{self.s_tb}, 8\ns_add_u32 s{self.s_t0}, s{self.s_t0}, {STATS}")
    def loadB(self, u):
        k = self.c.k; c = self.c
        k(f"buffer_load_dwordx4 {vr(self.fb+4*(u % self.D),4)}, v{c.vl16}, {sr(c.sO,4)}, s{self.s_bo} offen offset:{(u%4)*1024}{c.lsc}")
        if u % 4 == 3: k(f"s_add_u32 s{self.s_bo}, s{self.s_bo}, 4096")
    def rdA(self, u):
        slot = (u // 4) % self.NSL
        return [f"ds_read_b128 {vr(self.fa[u&1]+4*T,4)}, v{self.vA[slot//2]} offset:{(slot%2)*self.SLOT+((u%4)*7+T)*1024}" for T in range(7)]
    def main(self, init=True, endbar=False):
        k = self.c.k; c = self.c; D = self.D; st = self.st
        order = []; nxt = 0; pq = self.params(); assert D == 12; crd, ccv = self.corr_prep()
        for u in range(self.D0):
            self.loadB(u); order.append(u); nxt += 1
        if not c.fused: k.stamp(2)
        if init: k("s_barrier")
        if not c.fused: k.stamp(3)
        for x in self.rdA(0): k(x)
        NS_ = 32 if self.tmaj else 40
        seq = [(T, s_) for T in range(7) for s_ in range(32, 40)]
        def rdF(i):
            T, s_ = seq[i]; slot = (s_ // 4) % self.NSL
            return f"ds_read_b128 {vr(self.fa[0]+4*(i%12),4)}, v{self.vA[slot//2]} offset:{(slot%2)*self.SLOT+((s_%4)*7+T)*1024}"
        for u in range(NS_):
            younger = len(order) - 1 - order.index(u)
            if u == 39: younger = 0
            k(f"s_waitcnt vmcnt({younger}) lgkmcnt(0)")
            if u in getattr(self, 'fine', {}): k.stamp(self.fine[u])
            bar = u % 4 == 3 and (u < 39 or endbar)
            rd = self.rdA(u + 1) if u < 39 else []
            if self.tmaj and u == 31: rd = [rdF(i) for i in range(7)]
            b = self.fb + 4 * (u % D)
            r0 = 2 if bar else 0
            for T in range(7):
                k(f"{M16} {vr(self.acc[T],16)}, {vr(self.fa[u&1]+4*T,4)}, {vr(b,4)}, {'0' if u == 0 else vr(self.acc[T],16)}")
                if bar and T == 1: k("s_barrier")
                if T >= r0 - 1 or not bar:
                    j = T - (r0 - 1 if bar else 0)
                    for x in rd[2*j:2*j+2]: k(x)
                if u == 24 and T == 0 and self.mcorr: assert not pq; pq = crd
                if u == 26 and T == 0 and self.mcorr: assert not pq; pq = ccv
                if u >= 17 and T >= 4:
                    for x in pq[:2]: k(x)
                    del pq[:2]
                if self.bsched and u >= 4:
                    if u % 4 in self.bsched and T in ((1, 3, 5) if self.tmaj and u >= 17 else (3, 5)) and nxt < 40 and nxt < u + D:
                        self.loadB(nxt); order.append(nxt); nxt += 1
                elif T == 5 and nxt < 40 and nxt < u + D:
                    self.loadB(nxt); order.append(nxt); nxt += 1
            if nxt < 40 and nxt <= u + D and not (self.bsched and u >= 4):
                if not self.nob: self.loadB(nxt)
                order.append(nxt); nxt += 1
            if u == 16 and self.lstat:
                for i in range(4): k(f"ds_read_b64 {vr(st+2*i,2)}, v{self.vt[2]} offset:{i*1024}")
            if 4 <= u < 12 and u % 2 == 0 and not self.lstat:
                i = (u - 4) // 2
                k(f"buffer_load_dwordx2 {vr(st+2*i,2)}, v{self.vt[2]}, {sr(c.sO,4)}, s{self.s_t0} offen{c.lsc}")
                if i < 3: k(f"s_add_u32 s{self.s_t0}, s{self.s_t0}, 16384")
                order.append('s')
            if u == 38 and self.mcorr: k(self.corr(0))
            if u == 39: assert not pq
        if not self.tmaj: return
        assert not pq and nxt == 40 and self.mcorr
        par = self.par; t = self.vt; tmp = self.fa[0] + 48
        def epi(T, packed):
            A = self.acc[T]; e = []
            def op(pk, pl, n, *regs):
                if packed: e.extend(f"{pk} " + ", ".join(vr(r + 2*p if inc else r, 2) for r, inc in regs) for p in range(4))
                else: e.extend(f"{pl} " + ", ".join(f"v{r + p if inc else r}" for r, inc in regs) for p in range(8))
            op("v_pk_mul_f32", "v_mul_f32", 3, (tmp, 1), (A, 1), (par+2, 0))
            e.extend(f"v_exp_f32 v{tmp+i}, v{tmp+i}" for i in range(8))
            op("v_pk_mul_f32", "v_mul_f32", 3, (A, 1), (A, 1), (A+8, 1))
            op("v_pk_fma_f32", "v_fma_f32", 4, (tmp, 1), (tmp, 1), (par+4, 0), (par+4, 0))
            e.extend(f"v_rcp_f32 v{tmp+i}, v{tmp+i}" for i in range(8))
            op("v_pk_mul_f32", "v_mul_f32", 3, (A, 1), (A, 1), (tmp, 1))
            e.extend(f"v_cvt_pk_bf16_f32 v{A+8+p}, v{A+2*p}, v{A+2*p+1}" for p in range(4))
            if T == 3: e.append(f"s_cmp_eq_u32 s{self.s_g}, 15\ns_cselect_b32 s{self.s_t0}, {WSEND}, s{self.s_t0}")
            e.append(f"buffer_store_dwordx4 {vr(A+8,4)}, v{t[2]}, {sr(c.sO,4)}, s{self.s_t0} offen offset:{T*512}{c.sc}")
            return e
        lg = list(range(7))
        work = []
        k(self.corr(0))
        for i, (T, s_) in enumerate(seq):
            vmw = f"vmcnt({len(order) - 1 - order.index(s_)}) " if T == 0 else ""
            if i % 2 == 0 or T == 0:
                last = min(i + (0 if T == 0 else 1), 55)
                n = len(lg) - 1 - lg.index(last) if last in lg else None
                if n is not None:
                    k(f"s_waitcnt {vmw}lgkmcnt({min(n, 15)})"); del lg[:len(lg) - min(n, 15)]
                elif vmw: k(f"s_waitcnt {vmw}")
                if i == 50: k("s_waitcnt lgkmcnt(0)\ns_barrier"); lg.clear()
            k(f"{M16} {vr(self.acc[T],16)}, {vr(self.fa[0]+4*(i%12),4)}, {vr(self.fb+4*(s_%D),4)}, {vr(self.acc[T],16)}")
            if i + 7 < 56: k(rdF(i + 7)); lg.append(i + 7)
            j = i % 8
            if j == 7:
                for x in work: k(x)
                if getattr(self, 'fine2', False): k.stamp(2 + T)
                if T < 6: k(self.corr(T + 1))
                work = epi(T, T == 6 or self.pkall)
            elif work and j >= self.jstart:
                n = -(-len(work) // (8 - j))
                for x in work[:n]: k(x)
                del work[:n]
        for x in work: k(x)
        if getattr(self, 'fine2', False): k.stamp(9)
    def params(self):
        c = self.c; t = self.vt; st = self.st; par = self.par; vl = c.vl
        return [x.strip() for x in f"""v_lshrrev_b32 v{t[0]}, 5, v{vl}
        {f"v_and_b32 v{t[1]}, 31, v{vl}" if self.mcorr else f"v_lshlrev_b32 v{t[1]}, 2, v{t[0]}"}
        v_lshlrev_b32 v{t[1]}, 2, v{t[1]}
        v_add_u32 v{t[1]}, {self.CSB}, v{t[1]}
        v_add_f32 v{st}, v{st}, v{st+2}
        v_add_f32 v{st+1}, v{st+1}, v{st+3}
        v_add_f32 v{st+4}, v{st+4}, v{st+6}
        v_add_f32 v{st+5}, v{st+5}, v{st+7}
        v_add_f32 v{st}, v{st}, v{st+4}
        v_add_f32 v{st+1}, v{st+1}, v{st+5}
        v_mov_b32 v{st+2}, v{st}
        v_mov_b32 v{st+3}, v{st+1}
        v_bfe_u32 v{t[2]}, v{vl}, 4, 1
        v_mul_u32_u24 v{t[2]}, 55296, v{t[2]}
        v_permlane32_swap_b32 v{st+2}, v{st}
        v_permlane32_swap_b32 v{st+3}, v{st+1}
        v_add_f32 v{st}, v{st}, v{st+2}
        v_add_f32 v{st+1}, v{st+1}, v{st+3}
        v_mul_f32 v{par}, {f2u(-1.0/640):#x}, v{st}
        v_mul_f32 v{st+1}, {f2u(1.0/640):#x}, v{st+1}
        v_fma_f32 v{st+1}, -v{par}, v{par}, v{st+1}
        v_max_f32 v{st+1}, 0, v{st+1}
        v_add_f32 v{par+4}, {f2u(1e-5):#x}, v{st+1}
        v_rsq_f32 v{par+2}, v{par+4}
        v_cmp_gt_u32 vcc, 32, v{vl}
        v_mov_b32 v{par+5}, v{par+4}
        v_mul_f32 v{par+2}, {f2u(-math.log2(math.e)):#x}, v{par+2}
        v_lshl_add_u32 v{t[2]}, v{t[0]}, 8, v{t[2]}
        v_mov_b32 v{par+3}, v{par+2}
        v_and_b32 v{t[3]}, 15, v{vl}
        v_lshl_add_u32 v{t[2]}, v{t[3]}, 4, v{t[2]}
        s_mul_i32 s{self.s_t0}, s{self.s_tb}, {2*55296}
        s_mul_i32 s{self.s_t1}, s{self.s_g}, 3584
        s_add_u32 s{self.s_t0}, s{self.s_t0}, s{self.s_t1}
        s_add_u32 s{self.s_t0}, s{self.s_t0}, {ACT}
        v_cndmask_b32 v{par}, 0, v{par}, vcc
        v_cvt_pk_bf16_f32 v{st+4}, v{par}, v{par}
        v_and_b32 v{par+1}, 0xffff0000, v{st+4}
        v_sub_f32 v{par+1}, v{par}, v{par+1}
        v_cvt_pk_bf16_f32 v{st+5}, v{par+1}, 0""".split("\n")][:None if self.mcorr else -5] + ([] if self.mcorr else [f"v_mov_b32 v{par+1}, v{par}"])
    def corr_prep(self):
        rd = [f"ds_read_b32 v{self.ca[T]}, v{self.vt[1]} offset:{T*128}" for T in range(7)]
        cv = []
        for T in range(7):
            a = self.ca[T]; h = self.st + 6 + (T & 1)
            cv += [f"v_cvt_pk_bf16_f32 v{a+1}, v{a}, 0", f"v_lshlrev_b32 v{h}, 16, v{a+1}", f"v_sub_f32 v{a}, v{a}, v{h}", f"v_cvt_pk_bf16_f32 v{a}, v{h}, v{a}"]
        return rd, cv
    def corr(self, T): return f"{M8} {vr(self.acc[T],16)}, {vr(self.ca[T],2)}, {vr(self.st+4,2)}, {vr(self.acc[T],16)}"
    def epilogue(self, L_fin):
        k = self.c.k; c = self.c; t = self.vt; st = self.st; par = self.par; vl = c.vl
        tmp = self.fa[0] if self.mcorr else self.fb
        cs = [self.fa[0], self.fa[0] + 16, self.fa[0] + 32]
        def rdcs(T):
            for j in range(4): k(f"ds_read_b128 {vr(cs[T%3]+4*j,4)}, v{t[1]} offset:{T*128+32*j}")
        if not self.mcorr: rdcs(0); rdcs(1)
        for T in range(7):
            A = self.acc[T]; cc = cs[T % 3]
            if self.mcorr:
                if T + 1 < 7: k(self.corr(T + 1))
            else:
                if T + 2 < 7: rdcs(T + 2)
                k(f"s_waitcnt lgkmcnt({4*min(2, 6-T)})")
                for p in range(8): k(f"v_pk_fma_f32 {vr(A+2*p,2)}, {vr(cc+2*p,2)}, {vr(par,2)}, {vr(A+2*p,2)}")
            for p in range(4): k(f"v_pk_mul_f32 {vr(tmp+2*p,2)}, {vr(A+2*p,2)}, {vr(par+2,2)}")
            for i in range(8): k(f"v_exp_f32 v{tmp+i}, v{tmp+i}")
            for p in range(4): k(f"v_pk_mul_f32 {vr(A+2*p,2)}, {vr(A+2*p,2)}, {vr(A+8+2*p,2)}")
            for p in range(4): k(f"v_pk_fma_f32 {vr(tmp+2*p,2)}, {vr(tmp+2*p,2)}, {vr(par+4,2)}, {vr(par+4,2)}")
            for i in range(8): k(f"v_rcp_f32 v{tmp+i}, v{tmp+i}")
            for p in range(4): k(f"v_pk_mul_f32 {vr(A+2*p,2)}, {vr(A+2*p,2)}, {vr(tmp+2*p,2)}")
            for p in range(4): k(f"v_cvt_pk_bf16_f32 v{A+8+p}, v{A+2*p}, v{A+2*p+1}")
            k(f"buffer_store_dwordx4 {vr(A+8,4)}, v{t[2]}, {sr(c.sO,4)}, s{self.s_t0} offen offset:{T*512}{c.sc}")
            if T == 2: k(f"s_cmp_eq_u32 s{self.s_g}, 15\ns_cbranch_scc1 {L_fin}")
        k(f"{L_fin}:")

def gen(which, opt):
    if which in '35':
        o = opt('K' + which)
        c = Ctx("k3_oproj_kernel" if which == '3' else "k5_down_kernel", False); k = c.k
        P = P35(c, int(which), D=o.get('D', 12 if which == '5' else 20)); P.ahead = o.get('ahead', 2)
        c.entry(int(which) - 1, P.ptr_load())
        P.ids(); c.ws_srd()
        L = k.label("ld"); lw(c, L)
        P.setup(); P.main(); k.stamp(4); k.stamp(5); P.epilogue(); c.finish()
        k(f"{L}:"); P.ld_setup()
        for ch in range(2): P.ld_chunk(ch)
        P.ld_main(2); k("s_endpgm")
        return k, (256, 512, P.lds)
    if which == '4':
        o = opt('K4')
        c = Ctx("k4_gateup_kernel", False); k = c.k
        P = P4(c, D=o.get('D', 12)); P.ahead = o.get('ahead', 2)
        c.entry(3); P.ids(); c.ws_srd()
        L = k.label("ld"); lw(c, L)
        P.setup(); P.main(); k.stamp(4); k.stamp(5); P.epilogue(k.label("fin")); c.finish()
        k(f"{L}:"); P.ld_setup()
        for ch in range(2): P.ld_chunk(ch)
        P.ld_cs(); P.ld_stats()
        P.ld_main(2, 3); k("s_endpgm")
        return k, (256, 512, P.lds)
    import mega
    return mega.gen(opt)
```

```python
from ph2 import *
NAME = "sequential_preLN__softmax_full_mha__swiglu_ffn__prompt_kernel"

def gen(opt):
    o = opt('M')
    c = Ctx(NAME, True); k = c.k
    sO = c.sO; sWS = c.sWS; s_w = c.s_w; s_wl = c.s_wl; vl = c.vl; vl16 = c.vl16; sc = c.sc
    rot = o.get('rot', True); c.pdepth = o.get('pd', 1)
    sD = k.s(4)
    s_po = k.s(); s_cs = k.s(); vPA = k.v(); vPS = k.v(); sA = k.s(4); sB = k.s(4); sR = [k.s() for _ in range(5)]
    c.s0 = k.snext; c.v0 = k.vnext
    SLOT = 32768; NS = 4
    SL = 12288; VB = 3 * SL; PREP = 6 * SL; EXB = PREP
    sP = k.s(4); sX = sA; sW = sB; sQ = k.s(8); sWD = k.s(2); sPC = k.s(2)
    s_tb = k.s(); s_cg = k.s(); s_t0 = k.s(); s_t2 = k.s()
    s_ow, s_m0x, s_slot, s_delta, s_t1 = sR
    s_ox = k.s(); s_cnt = k.s(); s_rs = k.s(); s_msk = k.s()
    vt = [k.v() for _ in range(6)]
    vXA = [k.v() for _ in range(4)]; vWA = [k.v(), k.v()]
    vX = [k.v() for _ in range(4)]; vW = [k.v() for _ in range(4)]
    acc = [[k.v(16, 4) for _ in range(2)] for _ in range(2)]
    fx = [[k.v(4, 4) for _ in range(2)] for _ in range(2)]
    fw = [[k.v(4, 4) for _ in range(2)] for _ in range(2)]
    acs = k.v(16, 4); ones = k.v(4, 4); vpf = k.v(16, 4)
    XCH = NS * SLOT; NM, RS, CS = 0, 512, 1024
    L_spare = k.label("spare"); L_v = k.label("vpath"); L_J0 = k.label("J0"); L_comp = k.label("comp")
    k.kidx = 1; k.stamp_real(0); k.stamp(1)
    k(f"""s_load_dwordx4 {sr(sP,4)}, s[0:1], {KA_X}
    s_load_dwordx4 {sr(sD,4)}, s[0:1], {KA_DBG}
    s_cmp_ge_u32 s2, 256
    s_cbranch_scc1 {c.L_end}
    v_lshrrev_b32 v{vt[0]}, 6, v0
    v_and_b32 v{vl}, 63, v0
    v_readfirstlane_b32 s{s_w}, v{vt[0]}
    s_and_b32 s{s_t0}, s2, 3
    s_lshl_b32 s{s_t0}, s{s_t0}, 2
    s_bfe_u32 s{s_t1}, s2, 0x20003
    s_add_u32 s{s_tb}, s{s_t0}, s{s_t1}
    s_bfe_u32 s{s_t0}, s2, 0x10002
    s_lshr_b32 s{s_t1}, s2, 5""")
    if o.get('sfirst', True): k(f"s_sub_u32 s{s_t1}, s{s_t1}, s{s_t0}\ns_and_b32 s{s_t1}, s{s_t1}, 7")
    k(f"""s_lshl_b32 s{s_t0}, s{s_t0}, 3
    s_add_u32 s{s_cg}, s{s_t0}, s{s_t1}
    s_and_b32 s{s_wl}, s{s_w}, 3
    s_cmp_eq_u32 s{s_cg}, 15
    s_cbranch_scc1 {L_spare}
    s_cmp_ge_u32 s{s_w}, 4
    s_cbranch_scc1 {L_comp}
    v_lshrrev_b32 v{vt[0]}, 3, v{vl}
    v_lshl_add_u32 v{vt[0]}, s{s_w}, 5, v{vt[0]}
    v_mul_u32_u24 v{vt[0]}, 1280, v{vt[0]}
    v_lshrrev_b32 v{vt[1]}, 4, v{vl}
    v_and_b32 v{vt[2]}, 7, v{vl}
    v_xor_b32 v{vt[2]}, v{vt[2]}, v{vt[1]}
    v_lshl_add_u32 v{vX[0]}, v{vt[2]}, 4, v{vt[0]}
    v_xor_b32 v{vX[1]}, 64, v{vX[0]}
    v_add_u32 v{vX[2]}, {2*(8*1280-1024)}, v{vX[0]}
    v_add_u32 v{vX[1]}, {8*1280-1024}, v{vX[1]}
    v_add_u32 v{vX[3]}, {2*(8*1280-1024)}, v{vX[1]}
    v_lshl_add_u32 v{vt[0]}, s{s_w}, 4, v{vt[1]}
    v_mul_u32_u24 v{vt[0]}, 3840, v{vt[0]}
    v_and_b32 v{vt[2]}, 15, v{vl}
    v_lshlrev_b32 v{vt[3]}, 2, v{vt[1]}
    v_xor_b32 v{vt[2]}, v{vt[2]}, v{vt[3]}
    v_lshl_add_u32 v{vW[0]}, v{vt[2]}, 4, v{vt[0]}
    v_add_u32 v{vW[1]}, {4*3840-1024}, v{vW[0]}
    v_add_u32 v{vW[2]}, {2*(4*3840-1024)}, v{vW[0]}
    v_add_u32 v{vW[3]}, {3*(4*3840-1024)}, v{vW[0]}
    s_mul_i32 s{s_t0}, s{s_tb}, {128*1280}
    s_lshl_b32 s{s_t1}, s{s_cg}, 8
    s_lshl_b32 s{s_m0x}, s{s_w}, 12
    s_mov_b32 s{sX+2}, {128*1280}
    s_mov_b32 s{sX+3}, 0x20000
    s_sub_u32 s{sW+2}, {640*3840}, s{s_t1}
    s_mov_b32 s{sW+3}, 0x20000""")
    r0 = o.get('rot0', 1)
    if rot and not r0: k(f"s_and_b32 s{s_t2}, s2, 7\ns_lshl_b32 s{s_ox}, s{s_t2}, 7\ns_mul_i32 s{s_ow}, s{s_t2}, {64*3840}")
    else: k(f"s_mov_b32 s{s_ox}, 0\ns_mov_b32 s{s_ow}, 0")
    k(f"""s_waitcnt lgkmcnt(0)
    s_add_u32 s{sX}, s{sP}, s{s_t0}
    s_addc_u32 s{sX+1}, s{sP+1}, 0
    s_add_u32 s{sW}, s{sP+2}, s{s_t1}
    s_addc_u32 s{sW+1}, s{sP+3}, 0""")
    def dma_chunk(slot_const=None):
        if slot_const is not None: k(f"s_add_u32 m0, s{s_m0x}, {slot_const*SLOT}")
        else: k(f"s_add_u32 m0, s{s_m0x}, s{s_rs}")
        k(f"s_add_u32 s{s_t0}, s{s_ox}, 128")
        for i in range(4):
            k(f"buffer_load_dwordx4 v{vX[i]}, {sr(sX,4)}, s{s_ox} offen offset:{i*1024} lds")
        k(f"s_add_u32 m0, m0, 16384\ns_add_u32 s{s_t1}, s{s_ow}, {64*3840}")
        for i in range(4):
            k(f"buffer_load_dwordx4 v{vW[i]}, {sr(sW,4)}, s{s_ow} offen offset:{i*1024} lds")
        if r0 and slot_const == r0 - 1:
            k(f"s_and_b32 s{s_t2}, s2, 7\ns_add_u32 s{s_t2}, s{s_t2}, {r0}\ns_lshl_b32 s{s_ox}, s{s_t2}, 7\ns_mul_i32 s{s_ow}, s{s_t2}, {64*3840}")
        else:
            k(f"s_cmp_eq_u32 s{s_t0}, 1280\ns_cselect_b32 s{s_ox}, {128*r0}, s{s_t0}\ns_cselect_b32 s{s_ow}, {64*3840*r0}, s{s_t1}")
    def common_setup(ptrs=True):
        k(f"""s_mov_b64 {sr(sWS,2)}, {sr(sD+2,2)}
        s_movk_i32 s{sD+2}, 256
        s_mov_b32 s{sD+3}, 0x20000
        v_lshlrev_b32 v{vl16}, 4, v{vl}""")
        srd(k, sO, sWS, sWS + 1, WSEND)
        if ptrs: k(f"s_load_dwordx8 {sr(sQ,8)}, s[0:1], {KA_WO}\ns_load_dwordx2 {sr(sWD,2)}, s[0:1], {KA_WD}")
    def xaddr():
        k(f"""v_and_b32 v{vt[0]}, 31, v{vl}
        v_lshrrev_b32 v{vt[1]}, 5, v{vl}
        v_bfe_u32 v{vt[2]}, v{vl}, 1, 3
        v_xor_b32 v{vt[2]}, v{vt[2]}, v{vt[1]}
        v_lshlrev_b32 v{vt[2]}, 4, v{vt[2]}
        v_lshl_add_u32 v{vt[2]}, v{vt[0]}, 7, v{vt[2]}""")
    def advance(regs):
        k(f"s_cmp_eq_u32 s{s_slot}, {(NS-1)*SLOT}\ns_mov_b32 s{s_delta}, {SLOT}")
        k(f"s_cselect_b32 s{s_delta}, {(-(NS-1)*SLOT) & 0xffffffff}, s{s_delta}")
        k(f"s_add_u32 s{s_slot}, s{s_slot}, s{s_delta}")
        return [f"v_add_u32 v{r}, s{s_delta}, v{r}" for r in regs]
    def prep_decode(loads):
        pid, cb, st = s_t0, s_t2, s_ox
        R0, A_, B_, C_, u = sR
        Ld = k.label("pd"); Lg = k.label("pg")
        k(f"""s_lshl_b32 s{pid}, s2, 2
        s_add_u32 s{pid}, s{pid}, s{s_wl}
        s_mov_b32 s{B_}, 8
        s_mov_b32 s{C_}, 4
        v_bfe_u32 v{vt[2]}, v{vl}, 4, 1
        v_lshrrev_b32 v{vt[1]}, 5, v{vl}
        s_waitcnt lgkmcnt(0)
        s_cmp_ge_u32 s{pid}, 560
        s_cbranch_scc1 {Ld}
        s_mul_i32 s{u}, s{pid}, 4682
        s_lshr_b32 s{u}, s{u}, 16
        s_mul_i32 s{cb}, s{u}, 14
        s_sub_u32 s{cb}, s{pid}, s{cb}
        s_mul_i32 s{s_po}, s{u}, {112*1024}
        s_add_u32 s{s_po}, s{s_po}, {WGUP}
        s_mov_b32 s{s_cs}, {CSG}
        v_lshlrev_b32 v{vt[2]}, 11, v{vt[2]}
        v_lshl_add_u32 v{vt[3]}, v{vt[1]}, 9, v{vt[2]}""")
        if loads:
            k(f"""s_lshl_b32 s{R0}, s{u}, 4
            s_mov_b32 s{A_}, 0
            s_movk_i32 s{st}, 3456
            s_mov_b64 {sr(sA,2)}, {sr(sQ+4,2)}
            s_mov_b64 {sr(sB,2)}, {sr(sQ+6,2)}
            s_mov_b32 s{sA+2}, {640*3456}""")
        k(f"""s_branch {Lg}
        {Ld}:
        s_min_u32 s{pid}, s{pid}, 929
        s_cmp_lt_u32 s{pid}, 830
        s_movk_i32 s{cb}, 830
        s_cselect_b32 s{cb}, 560, s{cb}
        s_mov_b32 s{s_po}, {WOP}
        s_cselect_b32 s{s_po}, {WDP}, s{s_po}""")
        if loads:
            k(f"""s_cselect_b64 {sr(sA,2)}, {sr(sWD,2)}, {sr(sQ,2)}
            s_cselect_b32 s{A_}, 16, 20
            s_cselect_b32 s{R0}, 32, 40
            s_mov_b32 s{sA+2}, {640*1280}
            s_cselect_b32 s{sA+2}, {1728*1280}, s{sA+2}""")
        k(f"""s_sub_u32 s{cb}, s{pid}, s{cb}
        s_mul_i32 s{u}, s{cb}, 13108
        s_lshr_b32 s{u}, s{u}, 16
        s_mul_i32 s{st}, s{u}, 5
        s_sub_u32 s{cb}, s{cb}, s{st}
        s_mul_i32 s{st}, s{u}, {40*1024}
        s_add_u32 s{s_po}, s{s_po}, s{st}
        s_mov_b32 s{s_cs}, {WSEND}
        v_lshlrev_b32 v{vt[2]}, 9, v{vt[2]}
        v_lshl_add_u32 v{vt[3]}, v{vt[1]}, 11, v{vt[2]}""")
        if loads:
            k(f"""s_mul_i32 s{R0}, s{R0}, s{u}
            s_mul_i32 s{st}, s{u}, 160
            s_sub_u32 s{st}, s{st}, {16*160-16}
            s_cmp_ge_u32 s{pid}, 910
            s_cselect_b32 s{R0}, s{st}, s{R0}
            s_cselect_b32 s{A_}, 80, s{A_}
            s_cselect_b32 s{B_}, 20, 8
            s_cselect_b32 s{C_}, 40, 4
            s_movk_i32 s{st}, 1280
            s_mov_b64 {sr(sB,2)}, {sr(sA,2)}""")
        k(f"""{Lg}:
        s_lshl_b32 s{cb}, s{cb}, 1
        s_lshr_b32 s{pid}, s{s_w}, 2
        s_add_u32 s{pid}, s{pid}, s{cb}
        s_lshl_b32 s{u}, s{pid}, 12
        s_add_u32 s{s_po}, s{s_po}, s{u}
        s_lshl_b32 s{u}, s{pid}, 9
        s_add_u32 s{s_cs}, s{s_cs}, s{u}
        v_bfe_u32 v{vt[2]}, v{vl}, 2, 2
        v_lshl_add_u32 v{vt[3]}, v{vt[2]}, 7, v{vt[3]}
        v_and_b32 v{vt[2]}, 3, v{vl}
        v_lshl_add_u32 v{vt[3]}, v{vt[2]}, 3, v{vt[3]}
        s_lshl_b32 s{u}, s{s_w}, 12
        s_add_u32 s{u}, s{u}, {PREP}
        v_add_u32 v{vPA}, s{u}, v{vt[3]}""")
        if loads:
            k(f"""s_mov_b32 s{sB+2}, s{sA+2}
            s_mov_b32 s{sA+3}, 0x20000
            s_mov_b32 s{sB+3}, 0x20000
            v_mul_u32_u24 v{vt[2]}, s{C_}, v{vt[1]}
            v_bfe_u32 v{vt[3]}, v{vl}, 3, 2
            v_add_u32 v{vt[2]}, v{vt[2]}, v{vt[3]}
            v_mul_u32_u24 v{vt[2]}, s{st}, v{vt[2]}
            v_and_b32 v{vt[3]}, 7, v{vl}
            v_lshl_add_u32 v{vPS}, v{vt[3]}, 4, v{vt[2]}
            s_mul_i32 s{R0}, s{R0}, s{st}
            s_lshl_b32 s{cb}, s{pid}, 7
            s_add_u32 s{R0}, s{R0}, s{cb}
            s_mul_i32 s{A_}, s{A_}, s{st}
            s_mul_i32 s{B_}, s{B_}, s{st}
            s_add_u32 s{A_}, s{A_}, s{R0}
            s_add_u32 s{C_}, s{A_}, s{B_}
            s_add_u32 s{B_}, s{B_}, s{R0}""")
    TD = o.get('TD', 0)
    sTX, sTW = sQ, sQ + 4; s_tx, s_tw = sWD, sWD + 1; vTX, vTW = vXA[0], vXA[1]
    def touch():
        k(f"""s_mov_b64 exec, 0xf
        buffer_load_dword v{vXA[2]}, v{vTX}, {sr(sTX,4)}, s{s_tx} offen
        s_mov_b64 exec, 0xff
        buffer_load_dword v{vXA[3]}, v{vTW}, {sr(sTW,4)}, s{s_tw} offen
        s_mov_b64 exec, -1
        s_add_u32 s{s_tx}, s{s_tx}, 128
        s_add_u32 s{s_tw}, s{s_tw}, {64*3840}
        s_cmp_eq_u32 s{s_tx}, 1280
        s_cselect_b32 s{s_tx}, 0, s{s_tx}
        s_cselect_b32 s{s_tw}, 0, s{s_tw}""")
    dma_chunk(0); dma_chunk(1)
    if TD:
        k(f"""s_mov_b64 {sr(sTX,2)}, {sr(sP,2)}
        s_mov_b32 s{sTX+2}, {2048*1280}
        s_mov_b32 s{sTX+3}, 0x20000
        s_mov_b64 {sr(sTW,2)}, {sr(sP+2,2)}
        s_mov_b32 s{sTW+2}, {640*3840}
        s_mov_b32 s{sTW+3}, 0x20000
        s_lshr_b32 s{s_t0}, s2, 3
        s_lshl_b32 s{s_t0}, s{s_t0}, 2
        s_add_u32 s{s_t0}, s{s_t0}, s{s_w}
        s_lshl_b32 s{s_t1}, s{s_t0}, 2
        s_and_b32 s{s_t2}, s2, 3
        s_lshl_b32 s{s_t2}, s{s_t2}, 9
        s_add_u32 s{s_t1}, s{s_t1}, s{s_t2}
        v_add_u32 v{vTX}, s{s_t1}, v{vl}
        v_mul_u32_u24 v{vTX}, 1280, v{vTX}
        s_lshr_b32 s{s_t1}, s{s_t0}, 1
        s_mul_i32 s{s_t1}, s{s_t1}, 3840
        s_and_b32 s{s_t0}, s{s_t0}, 1
        s_lshl_b32 s{s_t0}, s{s_t0}, 10
        s_add_u32 s{s_t1}, s{s_t1}, s{s_t0}
        s_bfe_u32 s{s_t0}, s2, 0x10002
        s_lshl_b32 s{s_t0}, s{s_t0}, 11
        s_add_u32 s{s_t1}, s{s_t1}, s{s_t0}
        v_lshl_add_u32 v{vTW}, v{vl}, 7, s{s_t1}
        s_mov_b32 s{s_tx}, s{s_ox}
        s_mov_b32 s{s_tw}, s{s_ow}""")
        for _ in range(TD + 1): touch()
    common_setup(ptrs=not TD)
    k(f"""s_mov_b32 s{s_rs}, {3*SLOT}
    s_waitcnt vmcnt({8 + (2*TD+2 if TD else 0)})
    s_barrier""")
    k.stamp(2)
    dma_chunk(2)
    L = k.label("hloop"); Lz = k.label("hz"); Lzx = k.label("hzx"); Lnz = k.label("hnz")
    nt = 7 - TD if TD else 0
    def hit(n, tch, vm):
        if n <= 0: return
        L = k.label("hloop")
        k(f"s_mov_b32 s{s_cnt}, {n}\n{L}:\ns_waitcnt vmcnt({vm})\ns_barrier")
        dma_chunk()
        if tch: touch()
        k(f"""s_add_u32 s{s_rs}, s{s_rs}, {SLOT}
        s_and_b32 s{s_rs}, s{s_rs}, {NS*SLOT-1}
        s_sub_u32 s{s_cnt}, s{s_cnt}, 1
        s_cmp_lg_u32 s{s_cnt}, 0
        s_cbranch_scc1 {L}""")
    hit(nt, True, 8 if not TD else 10); hit(7 - nt, False, 8)
    if TD: k(f"s_load_dwordx8 {sr(sQ,8)}, s[0:1], {KA_WO}\ns_load_dwordx2 {sr(sWD,2)}, s[0:1], {KA_WD}")
    Lw0 = k.label("hw0")
    k(f"""s_cmp_eq_u32 s{s_w}, 0
    s_cbranch_scc1 {Lw0}
    s_waitcnt vmcnt(8)
    s_barrier
    s_waitcnt vmcnt(0)
    s_barrier
    s_branch {Lnz}
    {Lw0}:
    v_and_b32 v{vt[3]}, 15, v{vl}
    v_lshlrev_b32 v{vt[3]}, 4, v{vt[3]}
    buffer_load_dword v{vt[4]}, v{vt[3]}, {sr(sD,4)}, 0 offen sc1
    s_waitcnt vmcnt(9)
    s_barrier
    s_waitcnt vmcnt(1)
    s_barrier
    s_mov_b32 s{s_t1}, 0
    {Lz}:
    s_waitcnt vmcnt(0)
    v_cmp_ne_u32 vcc, 0, v{vt[4]}
    s_add_u32 s{s_t1}, s{s_t1}, 1
    s_cmp_eq_u64 vcc, -1
    s_cbranch_scc1 {Lzx}
    s_cmp_gt_u32 s{s_t1}, 0x40000
    s_cbranch_scc1 {Lzx}
    buffer_load_dword v{vt[4]}, v{vt[3]}, {sr(sD,4)}, 0 offen sc1
    s_branch {Lz}
    {Lzx}:
    s_mov_b32 m0, {XCH}
    s_lshl_b32 s{s_t0}, s{s_tb}, 10
    s_add_u32 s{s_t0}, s{s_t0}, {LN1}
    buffer_load_dwordx4 v{vl16}, {sr(sO,4)}, s{s_t0} offen sc1 lds
    {Lnz}:
    s_waitcnt vmcnt(0)""")
    k.stamp(3)
    k(f"s_barrier\ns_branch {L_J0}")
    k(f"""{L_comp}:
    s_getpc_b64 {sr(sPC,2)}
    L_pf_here:
    s_lshr_b32 s{s_t0}, s2, 3
    s_add_u32 s{s_t0}, s{s_t0}, {28 if o.get('sfirst', True) else 0}
    s_and_b32 s{s_t0}, s{s_t0}, 31
    s_lshl_b32 s{s_t0}, s{s_t0}, 2
    s_add_u32 s{s_t0}, s{s_t0}, s{s_wl}
    s_lshl_b32 s{s_t0}, s{s_t0}, 10
    s_sub_u32 s{sPC}, s{sPC}, L_pf_here - {NAME}
    s_subb_u32 s{sPC+1}, s{sPC+1}, 0
    s_cmp_gt_u32 s{s_t0}, L_code_end - {NAME} - 1024
    s_cbranch_scc1 L_pf_skip
    v_lshl_add_u32 v{vt[0]}, v{vl}, 4, s{s_t0}
    global_load_dwordx4 {vr(vpf,4)}, v{vt[0]}, {sr(sPC,2)}
    L_pf_skip:
    s_waitcnt lgkmcnt(0)""")
    if o.get('touch'):
        k(f"""s_mov_b64 {sr(sX,2)}, {sr(sP,2)}
        s_mov_b32 s{sX+2}, {2048*1280}
        s_mov_b32 s{sX+3}, 0x20000
        s_mov_b64 {sr(sW,2)}, {sr(sP+2,2)}
        s_mov_b32 s{sW+2}, {640*3840}
        s_mov_b32 s{sW+3}, 0x20000
        s_lshr_b32 s{s_t0}, s2, 3
        s_lshl_b32 s{s_t0}, s{s_t0}, 2
        s_add_u32 s{s_t0}, s{s_t0}, s{s_wl}
        s_mul_i32 s{s_t1}, s{s_t0}, 5
        v_lshrrev_b32 v{vt[0]}, 4, v{vl}
        v_add_u32 v{vt[0]}, s{s_t1}, v{vt[0]}
        v_mul_u32_u24 v{vt[0]}, 3840, v{vt[0]}
        v_and_b32 v{vt[1]}, 15, v{vl}
        v_lshl_add_u32 v{vt[0]}, v{vt[1]}, 7, v{vt[0]}
        s_bfe_u32 s{s_t1}, s2, 0x10002
        s_lshl_b32 s{s_t1}, s{s_t1}, 11
        s_add_u32 s{s_t2}, s{s_t1}, {4*3840}
        v_lshlrev_b32 v{vt[1]}, 7, v{vl}
        s_mul_i32 s{s_t0}, s{s_t0}, {40*128}
        s_and_b32 s{s_ox}, s2, 3
        s_mul_i32 s{s_ox}, s{s_ox}, {512*1280}
        s_add_u32 s{s_t0}, s{s_t0}, s{s_ox}
        buffer_load_dword v{vpf+4}, v{vt[0]}, {sr(sW,4)}, s{s_t1} offen
        s_mov_b32 exec_hi, 0xff
        buffer_load_dword v{vpf+5}, v{vt[1]}, {sr(sX,4)}, s{s_t0} offen
        s_mov_b64 exec, 0xffff
        buffer_load_dword v{vpf+6}, v{vt[0]}, {sr(sW,4)}, s{s_t2} offen
        s_mov_b64 exec, -1""")
    common_setup()
    if o.get('ptouch'):
        k(f"""v_lshlrev_b32 v{vt[0]}, {o['ptouch']}, v{vl}
        s_lshl_b32 s{s_t0}, s{s_wl}, {o['ptouch'] + 6}
        buffer_load_dword v{vpf+4}, v{vt[0]}, {sr(sO,4)}, s{s_t0} offen sc1""")
    xaddr()
    k(f"""s_lshr_b32 s{s_t0}, s{s_wl}, 1
    s_and_b32 s{s_t1}, s{s_wl}, 1
    s_lshl_b32 s{s_t2}, s{s_t0}, 13
    v_add_u32 v{vXA[0]}, s{s_t2}, v{vt[2]}""")
    for s in range(1, 4): k(f"v_xor_b32 v{vXA[s]}, {32*s}, v{vXA[0]}")
    k(f"""v_bfe_u32 v{vt[2]}, v{vl}, 2, 2
    v_lshl_add_u32 v{vt[3]}, v{vt[1]}, 3, v{vt[2]}
    v_lshlrev_b32 v{vt[3]}, 8, v{vt[3]}
    s_lshl_b32 s{s_t2}, s{s_t1}, 1
    s_add_u32 s{s_t2}, s{s_t2}, s{s_t0}
    v_xor_b32 v{vt[2]}, s{s_t2}, v{vt[2]}
    v_lshl_add_u32 v{vt[3]}, v{vt[2]}, 6, v{vt[3]}
    v_bfe_u32 v{vt[2]}, v{vl}, 4, 1
    v_lshl_add_u32 v{vt[3]}, v{vt[2]}, 5, v{vt[3]}
    v_and_b32 v{vt[2]}, 3, v{vl}
    v_lshl_add_u32 v{vt[3]}, v{vt[2]}, 3, v{vt[3]}
    v_add_u32 v{vWA[0]}, 16384, v{vt[3]}
    v_xor_b32 v{vWA[1]}, 64, v{vWA[0]}
    s_mov_b32 s{s_slot}, 0""")
    for i in range(4): k(f"v_mov_b32 v{ones+i}, 0x3f803f80")
    def reads(buf, s):
        out = []
        for mt in range(2):
            out.append(f"ds_read_b128 {vr(fx[buf][mt],4)}, v{vXA[s]} offset:{mt*4096}")
        for nt in range(2):
            for rd in range(2):
                out.append(f"ds_read_b64_tr_b16 {vr(fw[buf][nt]+2*rd,2)}, v{vWA[nt]} offset:{(16*s+4*rd)*256}")
        return [out[2], out[3], out[0], out[1], out[4], out[5]]
    def mfmas(buf, vpath, first):
        m = []
        for nt in range(2):
            for mt in range(2):
                a, b = (fx[buf][mt], fw[buf][nt]) if vpath else (fw[buf][nt], fx[buf][mt])
                m.append(f"{M16} {vr(acc[nt][mt],16)}, {vr(a,4)}, {vr(b,4)}, {'0' if first else vr(acc[nt][mt],16)}")
        m.append(f"{M16} {vr(acs,16)}, {vr(ones,4)}, {vr(fw[buf][0],4)}, {'0' if first else vr(acs,16)}")
        return m
    def chunk(vpath, last, first=False):
        for s in range(3):
            k("s_waitcnt lgkmcnt(0)")
            m = mfmas(s & 1, vpath, first and s == 0); rd = reads((s + 1) & 1, s + 1)
            ad = []
            if not last and s == 0: ad = [None]
            for i in range(5):
                k(m[i])
                for x in rd[2*i:2*i+2]: k(x)
                if i == 3 and not last:
                    if s == 0: adv[:] = advance([vXA[0], vXA[1], vXA[2], vXA[3], vWA[0], vWA[1]])
                    k(adv[s])
        k("s_waitcnt lgkmcnt(0)")
        m = mfmas(1, vpath, False)
        if last:
            for x in m: k(x)
            return
        k(m[0])
        for x in adv[3:]: k(x)
        k(m[1])
        k("s_barrier")
        rd = reads(0, 0)
        for x in rd[:3]: k(x)
        k(m[2])
        for x in rd[3:]: k(x)
        k(m[3]); k(m[4])
    adv = []
    def mainloop(vpath):
        k("s_barrier")
        k.stamp(2)
        for x in reads(0, 0): k(x)
        chunk(vpath, False, first=True)
        L = k.label("loop")
        if o.get('fine') == 1:
            for j in range(8):
                k.stamp(5 + j); chunk(vpath, False)
            k.stamp(13)
        else:
            k(f"s_mov_b32 s{s_cnt}, 8\n{L}:")
            chunk(vpath, False)
            k(f"s_sub_u32 s{s_cnt}, s{s_cnt}, 1\ns_cmp_lg_u32 s{s_cnt}, 0\ns_cbranch_scc1 {L}")
        chunk(vpath, True)
        k.stamp(3)
    def epilogue(vpath):
        t = vt
        la = fx[0][0]; rg = k.v(32, 4); hoff = t[3]
        k(f"""v_and_b32 v{t[0]}, 31, v{vl}
        s_lshl_b32 s{s_t2}, s{s_t2}, 7
        s_add_u32 s{s_ox}, s{s_t2}, {XCH}
        v_lshl_add_u32 v{t[2]}, v{t[0]}, 2, s{s_ox}
        s_lshl_b32 s{s_ow}, s{s_t0}, 8
        s_add_u32 s{s_ow}, s{s_ow}, {XCH}
        v_lshl_add_u32 v{t[1]}, v{t[0]}, 2, s{s_ow}
        v_lshrrev_b32 v{hoff}, 5, v{vl}
        v_lshlrev_b32 v{hoff}, 4, v{hoff}
        s_cmp_lt_u32 s{s_cg}, 5
        s_cselect_b32 s{s_cnt}, {f2u(QSCALE):#x}, 1.0
        ds_write_b32 v{t[2]}, v{acs} offset:{CS}
        s_waitcnt lgkmcnt(0)
        s_barrier""")
        if not vpath:
            k(f"""ds_read_b32 v{la+0}, v{t[1]} offset:{NM}
            ds_read_b32 v{la+2}, v{t[1]} offset:{RS}
            ds_read_b32 v{la+4}, v{t[1]} offset:{NM+128}
            ds_read_b32 v{la+6}, v{t[1]} offset:{RS+128}
            v_add_u32 v{t[5]}, s{s_ox}, v{hoff}
            v_xor_b32 v{t[4]}, 128, v{t[5]}""")
            for nt in range(2):
                for j in range(4):
                    k(f"ds_read_b128 {vr(rg+16*nt+4*j,4)}, v{t[5] if nt==0 else t[4]} offset:{CS+32*j}")
            k(f"""v_lshlrev_b32 v{t[0]}, 4, v{t[0]}
            v_lshl_add_u32 v{t[0]}, v{hoff}, 11, v{t[0]}
            s_lshl_b32 s{s_ox}, s{s_cg}, 19
            s_lshl_b32 s{s_ow}, s{s_t2}, 10
            s_add_u32 s{s_ox}, s{s_ox}, s{s_ow}
            s_lshl_b32 s{s_ow}, s{s_tb}, 11
            s_add_u32 s{s_ox}, s{s_ox}, s{s_ow}
            s_lshl_b32 s{s_ow}, s{s_t0}, 10
            s_add_u32 s{s_ox}, s{s_ox}, s{s_ow}
            s_waitcnt lgkmcnt(4)
            v_mov_b32 v{la+1}, v{la+0}
            v_mul_f32 v{la+3}, s{s_cnt}, v{la+2}
            v_mul_f32 v{la+2}, s{s_cnt}, v{la+2}
            v_mov_b32 v{la+5}, v{la+4}
            v_mul_f32 v{la+7}, s{s_cnt}, v{la+6}
            v_mul_f32 v{la+6}, s{s_cnt}, v{la+6}""")
            for nt in range(2):
                if nt == 1: k("s_waitcnt lgkmcnt(0)")
                for mt in range(2):
                    A = acc[nt][mt]
                    for p in range(8):
                        k(f"v_pk_fma_f32 {vr(A+2*p,2)}, {vr(rg+16*nt+2*p,2)}, {vr(la+4*mt,2)}, {vr(A+2*p,2)}")
                    for p in range(8):
                        k(f"v_pk_mul_f32 {vr(A+2*p,2)}, {vr(A+2*p,2)}, {vr(la+4*mt+2,2)}")
                    for p in range(8):
                        k(f"v_cvt_pk_bf16_f32 v{A+p}, v{A+2*p}, v{A+2*p+1}")
                    k(f"s_xor_b32 s{s_ow}, s{s_ox}, {(nt*4*32768) | (mt*512)}")
                    k(f"s_add_u32 s{s_rs}, s{s_ow}, {2*32768}")
                    for jp in range(2):
                        k(f"v_permlane32_swap_b32 v{A+4*jp}, v{A+4*jp+2}\nv_permlane32_swap_b32 v{A+4*jp+1}, v{A+4*jp+3}")
                    k(f"buffer_store_dwordx4 {vr(A,4)}, v{t[0]}, {sr(sO,4)}, s{s_ow} offen{sc}")
                    k(f"buffer_store_dwordx4 {vr(A+4,4)}, v{t[0]}, {sr(sO,4)}, s{s_rs} offen{sc}")
        else:
            rg2 = k.v(32, 4)
            k(f"""v_xor_b32 v{t[4]}, 128, v{t[2]}
            ds_read_b32 v{la+2}, v{t[4]} offset:{CS}
            v_add_u32 v{t[5]}, s{s_ow}, v{hoff}""")
            for mt in range(2):
                for j in range(4):
                    k(f"ds_read_b128 {vr(rg+16*mt+4*j,4)}, v{t[5]} offset:{NM+128*mt+32*j}")
                    k(f"ds_read_b128 {vr(rg2+16*mt+4*j,4)}, v{t[5]} offset:{RS+128*mt+32*j}")
            va = [la + 4, la + 5]
            k(f"""s_sub_u32 s{s_ox}, s{s_cg}, 10
            s_lshl_b32 s{s_ox}, s{s_ox}, 7
            s_lshr_b32 s{s_ow}, s{s_t2}, 2
            s_add_u32 s{s_ox}, s{s_ox}, s{s_ow}
            v_add_u32 v{t[0]}, s{s_ox}, v{t[0]}
            v_mul_u32_u24 v{hoff}, 640, v{hoff}
            v_lshl_add_u32 v{va[0]}, v{t[0]}, 4, v{hoff}
            v_xor_b32 v{t[0]}, 32, v{t[0]}
            v_lshl_add_u32 v{va[1]}, v{t[0]}, 4, v{hoff}
            s_lshl_b32 s{s_ox}, s{s_tb}, 1
            s_add_u32 s{s_ox}, s{s_ox}, s{s_t0}
            s_mul_i32 s{s_ox}, s{s_ox}, 81920
            s_add_u32 s{s_ox}, s{s_ox}, {VIMG}
            v_mov_b32 v{la+0}, v{acs}
            v_mov_b32 v{la+1}, v{acs}
            s_waitcnt lgkmcnt(8)
            v_mov_b32 v{la+3}, v{la+2}""")
            for mt in range(2):
                if mt == 1: k("s_waitcnt lgkmcnt(0)")
                for nt in range(2):
                    A = acc[nt][mt]
                    for p in range(8):
                        k(f"v_pk_fma_f32 {vr(A+2*p,2)}, {vr(rg+16*mt+2*p,2)}, {vr(la+2*nt,2)}, {vr(A+2*p,2)}")
                    for p in range(8):
                        k(f"v_pk_mul_f32 {vr(A+2*p,2)}, {vr(A+2*p,2)}, {vr(rg2+16*mt+2*p,2)}")
                    for p in range(8):
                        k(f"v_cvt_pk_bf16_f32 v{A+p}, v{A+2*p}, v{A+2*p+1}")
                    k(f"s_add_u32 s{s_ow}, s{s_ox}, {40960*mt}\ns_add_u32 s{s_rs}, s{s_ox}, {40960*mt+20480}")
                    k(f"buffer_store_dwordx4 {vr(A,4)}, v{va[nt]}, {sr(sO,4)}, s{s_ow} offen{sc}")
                    k(f"buffer_store_dwordx4 {vr(A+4,4)}, v{va[nt]}, {sr(sO,4)}, s{s_rs} offen{sc}")
    k(f"s_cmp_ge_u32 s{s_cg}, 10\ns_cbranch_scc1 {L_v}")
    vsave = k.vnext
    mainloop(False); epilogue(False); k(f"s_branch {L_J0}")
    k.vnext = vsave
    k(f"{L_v}:")
    mainloop(True); epilogue(True)
    if o.get('fine') == 1:
        k.maxst = 14; k.stamp = lambda *a, **kw: None
    k(f"{L_J0}:\ns_setprio 0")
    k.stamp(4)
    prep_decode(True)
    k(f"""s_mov_b32 s{c.s_p}, s{s_cg}
    s_lshl_b32 s{c.s_f}, s{s_cg}, 5
    s_add_u32 s{c.s_f}, s{c.s_f}, s{s_tb}
    s_lshl_b32 s{c.s_f}, s{c.s_f}, {FL}
    s_add_u32 s{c.s_f}, s{c.s_f}, {F1}""")
    def spare():
        o4 = acs; xb = acc[0][0]; sm = [fw[0][0], fw[0][0] + 1]; sq = [fw[0][0] + 2, fw[0][0] + 3]
        k(f"""{L_spare}:
        v_lshrrev_b32 v{vt[0]}, 3, v{vl}
        v_lshl_add_u32 v{vt[0]}, s{s_w}, 4, v{vt[0]}
        v_mul_u32_u24 v{vt[0]}, 1280, v{vt[0]}
        v_and_b32 v{vt[2]}, 7, v{vl}
        v_lshl_add_u32 v{vX[0]}, v{vt[2]}, 4, v{vt[0]}
        v_add_u32 v{vX[1]}, {8*1280}, v{vX[0]}
        s_mul_i32 s{s_t0}, s{s_tb}, {128*1280}
        s_mov_b32 s{sX+2}, {128*1280}
        s_mov_b32 s{sX+3}, 0x20000
        s_waitcnt lgkmcnt(0)
        s_add_u32 s{sX}, s{sP}, s{s_t0}
        s_addc_u32 s{sX+1}, s{sP+1}, 0""")
        for g in range(2):
            for i in range(10): k(f"buffer_load_dwordx4 {vr(xb+40*g+4*i,4)}, v{vX[g]}, {sr(sX,4)}, 0 offen offset:{128*i}")
        common_setup()
        srd(k, sW, sWS, sWS + 1, CSG + ZERO_BYTES)
        o4 = xb + 80
        k(f"""s_mov_b32 s{s_t0}, {ONES}
        v_and_b32 v{vt[0]}, 0x70, v{vl16}
        v_lshlrev_b32 v{vt[1]}, 4, v0
        s_lshl_b32 s{s_t1}, s{s_tb}, 13
        s_add_u32 s{s_t1}, s{s_t1}, {CSG}
        s_mov_b32 s{s_msk}, 0x3f803f80""")
        for i in range(4): k(f"v_mov_b32 v{o4+i}, 0x3f803f80\nv_mov_b32 v{o4+4+i}, 0")
        nz = (ZERO_BYTES + 131071) // 131072
        for z in range(nz):
            k(f"buffer_store_dwordx4 {vr(o4+4,4)}, v{vt[1]}, {sr(sW,4)}, s{s_t1} offen{sc}\ns_add_u32 s{s_t1}, s{s_t1}, 131072")
        k(f"s_mov_b64 exec, 0xff\nbuffer_store_dwordx4 {vr(o4,4)}, v{vt[0]}, {sr(sO,4)}, s{s_t0} offen{sc}\ns_mov_b64 exec, -1")
        st = o4 + 8
        for i in range(4): k(f"v_mov_b32 v{st+i}, 0")
        for g in range(2):
            for i in range(10):
                k(f"s_waitcnt vmcnt({19 - 10*g - i + nz + 1})")
                for j in range(4):
                    x = xb + 40 * g + 4 * i + j
                    k(f"v_dot2c_f32_bf16 v{st+2*g}, s{s_msk}, v{x}\nv_dot2c_f32_bf16 v{st+2*g+1}, v{x}, v{x}")
        for ctl in ("quad_perm:[1,0,3,2]", "quad_perm:[2,3,0,1]", "row_half_mirror"):
            for i in range(4): k(f"v_add_f32_dpp v{st+i}, v{st+i}, v{st+i} {ctl} row_mask:0xf bank_mask:0xf")
        Ln = k.label("sn")
        k(f"""v_and_b32 v{vt[2]}, 1, v{vl}
        v_cmp_eq_u32 vcc, 1, v{vt[2]}
        v_lshrrev_b32 v{vt[3]}, 3, v{vl}
        v_lshl_add_u32 v{vt[3]}, v{vt[2]}, 3, v{vt[3]}
        v_cndmask_b32 v{st}, v{st}, v{st+2}, vcc
        v_cndmask_b32 v{st+1}, v{st+1}, v{st+3}, vcc
        v_lshlrev_b32 v{vt[3]}, 2, v{vt[3]}
        v_mul_f32 v{st}, {f2u(-1.0/640):#x}, v{st}
        v_mul_f32 v{st+1}, {f2u(1.0/640):#x}, v{st+1}
        v_fma_f32 v{st+1}, -v{st}, v{st}, v{st+1}
        v_max_f32 v{st+1}, 0, v{st+1}
        v_add_f32 v{st+1}, {f2u(1e-5):#x}, v{st+1}
        v_rsq_f32 v{st+1}, v{st+1}
        s_lshl_b32 s{s_t1}, s{s_w}, 6
        v_add_u32 v{vt[3]}, s{s_t1}, v{vt[3]}
        ds_write_b32 v{vt[3]}, v{st}
        ds_write_b32 v{vt[3]}, v{st+1} offset:512
        s_waitcnt vmcnt(0) lgkmcnt(0)
        s_barrier
        s_cmp_lg_u32 s{s_w}, 4
        s_cbranch_scc1 {Ln}
        ds_read_b128 {vr(st,4)}, v{vl16}
        s_lshl_b32 s{s_t0}, s{s_tb}, 10
        s_add_u32 s{s_t0}, s{s_t0}, {LN1}
        s_waitcnt lgkmcnt(0)
        buffer_store_dwordx4 {vr(st,4)}, v{vl16}, {sr(sO,4)}, s{s_t0} offen{sc}
        s_waitcnt vmcnt(0)
        s_lshl_b32 s{s_t0}, s{s_tb}, 4
        v_mov_b32 v{vt[2]}, 1
        v_mov_b32 v{vt[3]}, 0
        s_mov_b64 exec, 1
        buffer_store_dword v{vt[2]}, v{vt[3]}, {sr(sD,4)}, s{s_t0} offen sc1
        s_mov_b64 exec, -1
        {Ln}:""")
        k.stamp(2); k.stamp(3)
        k(f"s_branch {L_J0}")
    def deferred(fn):
        n = len(k.lines); fn(); out = k.lines[n:]; del k.lines[n:]; return out
    spare_code = deferred(spare)
    c.reset()
    prio = o.get('prio', (18, 6, 3, 1))
    s_h = k.s(); s_pa = k.s(); s_pr = k.s(); s_odd8 = k.s(); s_tok = k.s()
    s_t0 = k.s(); s_t1 = k.s(); s_t2 = k.s(); s_t3 = k.s()
    so = [k.s() for _ in range(3)]; s_d = k.s(); s_mo = k.s(); s_ms = k.s(); s_q1 = k.s(); s_q2 = k.s()
    sG = k.s(2); sE = k.s(2)
    vq = k.v(); vr31 = k.v(); vKA = k.v(); vKR = k.v(); vVA = k.v(); vqr = k.v()
    vt0 = k.v(6, 2); vt = list(range(vt0, vt0 + 6))
    S = [k.v(32, 4), k.v(32, 4)]; O = k.v(16, 4); OY = k.v(16, 4); P = k.v(8, 4)
    Qm = k.v(4, 4); QmY = k.v(4, 4); Qr = k.v(2); Km = k.v(4, 4); Kr = k.v(2); V0 = k.v(4, 4); V1 = [k.v(4, 4), k.v(4, 4)]
    PR = k.v(16, 4); C = S[1]; vcs = k.v(16, 4); vsel = k.v(16, 4); vca = k.v(); vfp = k.v(4, 4); vo1 = k.v(); vo2 = k.v(); vx1 = k.v(); vx2 = k.v(); s_o1 = k.s(); s_o2 = k.s()
    L_slow = k.label("slow"); L_store = k.label("store"); L_dv = k.label("dv"); L_dd = k.label("dd")
    vD = [k.v() for _ in range(3)]; vDd = [k.v() for _ in range(3)]
    k(f"""s_and_b32 s{s_t0}, s2, 7
    s_lshl_b32 s{s_t0}, s{s_t0}, 2
    s_bfe_u32 s{s_t1}, s2, 0x20003
    s_add_u32 s{s_h}, s{s_t0}, s{s_t1}
    s_lshr_b32 s{s_q1}, s{s_h}, 1
    s_mul_i32 s{s_t0}, s{s_q1}, 5
    s_and_b32 s{s_t1}, s{s_h}, 1
    s_lshl_b32 s{s_odd8}, s{s_t1}, 3
    s_mul_i32 s{s_t1}, s{s_t1}, 3
    s_add_u32 s{s_pa}, s{s_t0}, s{s_t1}
    s_lshl_b32 s{s_pa}, s{s_pa}, 15
    s_add_u32 s{s_pr}, s{s_t0}, 2
    s_lshl_b32 s{s_pr}, s{s_pr}, 15
    s_lshr_b32 s{s_q2}, s{s_wl}, 1
    s_and_b32 s{s_t3}, s{s_w}, 1
    s_mul_i32 s{s_mo}, s{s_q2}, 6144
    s_cmp_ge_u32 s{s_w}, 4
    s_cbranch_scc1 {L_dv}
    s_lshl_b32 s{s_t0}, s{s_q2}, 14
    s_lshl_b32 s{s_t1}, s{s_t3}, 10
    s_add_u32 s{s_mo}, s{s_mo}, s{s_t1}
    s_add_u32 s{s_t0}, s{s_t0}, s{s_t1}
    s_add_u32 s{s_t0}, s{s_t0}, {80*32768}
    s_add_u32 s{s_t1}, s{s_pa}, s{s_t0}
    s_add_u32 s{s_t2}, s{s_pr}, s{s_t0}
    v_add_u32 v{vD[0]}, s{s_t1}, v{vl16}
    v_add_u32 v{vD[1]}, 32768, v{vD[0]}
    v_add_u32 v{vD[2]}, s{s_t2}, v{vl16}
    v_mov_b32 v{vDd[0]}, 2048
    v_mov_b32 v{vDd[1]}, 2048
    v_mov_b32 v{vDd[2]}, 2048
    s_movk_i32 s{s_ms}, 2048
    s_branch {L_dd}
    {L_dv}:
    s_mul_i32 s{s_t1}, s{s_t3}, 3072
    s_add_u32 s{s_mo}, s{s_mo}, s{s_t1}
    s_add_u32 s{s_mo}, s{s_mo}, {VB}
    s_mul_i32 s{s_t0}, s{s_q2}, {128*10240}
    s_mul_i32 s{s_t1}, s{s_h}, 320
    s_add_u32 s{s_t0}, s{s_t0}, s{s_t1}
    s_add_u32 s{s_t0}, s{s_t0}, {VIMG}
    s_mul_i32 s{s_t3}, s{s_t3}, 192
    s_movk_i32 s{s_ms}, 1024
    v_mov_b32 v{vt[4]}, {ONES}
    v_mov_b32 v{vt[5]}, {16*10240}""")
    for i in range(3):
        k(f"""v_add_u32 v{vt[0]}, s{s_t3}, v{vl}
        s_add_u32 s{s_t3}, s{s_t3}, 64
        v_mul_u32_u24 v{vt[1]}, 3121, v{vt[0]}
        v_lshrrev_b32 v{vt[1]}, 16, v{vt[1]}
        v_mul_u32_u24 v{vt[2]}, 21, v{vt[1]}
        v_sub_u32 v{vt[2]}, v{vt[0]}, v{vt[2]}
        v_cmp_gt_u32 vcc, 20, v{vt[2]}
        v_cmp_gt_u32 {sr(sE,2)}, 16, v{vt[1]}
        v_mul_u32_u24 v{vt[1]}, 10240, v{vt[1]}
        v_lshl_add_u32 v{vt[1]}, v{vt[2]}, 4, v{vt[1]}
        s_and_b64 vcc, vcc, {sr(sE,2)}
        v_add_u32 v{vt[1]}, s{s_t0}, v{vt[1]}
        v_cndmask_b32 v{vD[i]}, v{vt[4]}, v{vt[1]}, vcc
        v_cndmask_b32 v{vDd[i]}, 0, v{vt[5]}, vcc""")
    k(f"""{L_dd}:
    s_lshr_b32 s{s_t3}, s{s_w}, 2
    s_mul_i32 s{s_t0}, s{s_t3}, 6144
    v_and_b32 v{vr31}, 31, v{vl}
    v_lshlrev_b32 v{vr31}, 4, v{vr31}
    v_lshrrev_b32 v{vt[1]}, 5, v{vl}
    v_lshl_add_u32 v{vq}, v{vt[1]}, 15, v{vr31}
    v_add_u32 v{vt[2]}, s{s_t0}, v{vr31}
    v_lshl_add_u32 v{vKA}, v{vt[1]}, 11, v{vt[2]}
    v_add_u32 v{vKR}, s{s_odd8}, v{vt[2]}
    v_add_u32 v{vKR}, 4096, v{vKR}
    v_mul_u32_u24 v{vt[0]}, 336, v{vt[1]}
    v_add_u32 v{vt[0]}, v{vt[0]}, v{vt[2]}
    v_add_u32 v{vVA}, {VB}, v{vt[0]}
    v_cmp_lt_u32 vcc, {20*16}, v{vr31}
    v_mov_b32 v{vt[0]}, 0x40000
    v_xor_b32 v{vt[1]}, s{s_t3}, v{vt[1]}
    v_cndmask_b32 v{vVA}, v{vVA}, v{vt[0]}, vcc
    v_lshl_add_u32 v{vqr}, v{vt[1]}, 9, v{vr31}
    s_lshr_b32 s{s_tok}, s2, 5
    s_lshl_b32 s{s_tok}, s{s_tok}, 8
    s_lshl_b32 s{s_t0}, s{s_wl}, 6
    s_add_u32 s{s_tok}, s{s_tok}, s{s_t0}
    s_lshl_b32 s{s_t0}, s{s_t3}, 5
    s_add_u32 s{s_tok}, s{s_tok}, s{s_t0}""")
    k(f"v_lshlrev_b32 v{vca}, 2, v{vl}\nv_mov_b32 v{vt[0]}, 0x3f803f80")
    for Tl, row in enumerate((0, 4, 1, 5)):
        k(f"v_cmp_eq_u32 vcc, {16*row}, v{vr31}")
        k(f"v_cndmask_b32 v{vsel+4*Tl}, 0, v{vt[0]}, vcc")
        for i in range(1, 4): k(f"v_mov_b32 v{vsel+4*Tl+i}, v{vsel+4*Tl}")
    k(f"""v_bfe_u32 v{vo2}, v{vl}, 4, 1
    v_mul_u32_u24 v{vo2}, {20*1024}, v{vo2}
    v_and_b32 v{vt[2]}, 15, v{vl}
    v_lshl_add_u32 v{vo1}, v{vt[2]}, 4, v{vo2}
    v_lshl_add_u32 v{vo2}, v{vt[2]}, 3, v{vo2}
    v_lshrrev_b32 v{vt[2]}, 5, v{vl}
    v_lshl_add_u32 v{vo1}, v{vt[2]}, 8, v{vo1}
    s_lshr_b32 s{s_t0}, s{s_tok}, 4
    s_mul_i32 s{s_t0}, s{s_t0}, {20*1024}
    s_add_u32 s{s_t0}, s{s_t0}, {OIMG}
    s_lshl_b32 s{s_o1}, s{s_h}, 9
    s_add_u32 s{s_o1}, s{s_o1}, s{s_t0}
    s_lshl_b32 s{s_o2}, s{s_h}, 7
    s_add_u32 s{s_o2}, s{s_o2}, s{s_t0}
    s_add_u32 s{s_o2}, s{s_o2}, {16*1024}
    s_mul_i32 s{s_t0}, s{s_wl}, 3072
    s_add_u32 s{s_t0}, s{s_t0}, {2*SL}
    s_add_u32 s{s_t1}, s{s_t0}, {VB}
    s_cmp_lt_u32 s{s_w}, 4
    s_cselect_b32 s{s_t2}, s{s_t0}, s{s_t1}
    s_cselect_b32 s{s_t1}, s{s_t1}, s{s_t0}
    v_add_u32 v{vx1}, s{s_t2}, v{vl16}
    v_add_u32 v{vx2}, s{s_t1}, v{vl16}""")
    early = o.get('early', True)
    p1 = [f"s_mov_b32 m0, s{sR[4]}", "s_nop 0"]
    for i, (sd, so_) in enumerate(((sA, sR[0]), (sA, sR[2]), (sB, sR[1]), (sB, sR[3]))):
        p1.append(f"buffer_load_dwordx4 v{vPS}, {sr(sd,4)}, s{so_} offen lds")
        if i < 3: p1 += ["s_add_u32 m0, m0, 1024", "s_nop 0"]
    edge_prep = o.get('edge_prep', False)
    Lx = k.label("jx"); Lp = k.label("jp"); Lz = k.label("jz"); Lzx = k.label("jzx"); Lns = k.label("jns")
    part = o.get('part', True)
    vfl = k.v(); vpl = k.v(); vf2 = k.v(2); s_f0 = sG; s_f1 = sG + 1
    k(f"""s_mul_i32 s{s_t0}, s{s_q1}, 40
    s_add_u32 s{s_t1}, s{s_t0}, 39
    s_lshr_b32 s{s_t0}, s{s_t0}, 7
    s_lshr_b32 s{s_t1}, s{s_t1}, 7
    s_lshl_b32 s{s_f0}, s{s_t0}, {FL+5}
    s_lshl_b32 s{s_f1}, s{s_t1}, {FL+5}
    s_add_u32 s{s_f0}, s{s_f0}, {F1}
    s_add_u32 s{s_f1}, s{s_f1}, {F1}
    v_lshrrev_b32 v{vt[2]}, 4, v{vl}
    v_min_u32 v{vt[2]}, 2, v{vt[2]}
    v_mul_u32_u24 v{vt[2]}, 160, v{vt[2]}
    v_and_b32 v{vt[3]}, 15, v{vl}
    v_add_u32 v{vt[3]}, v{vt[3]}, v{vt[2]}
    v_lshlrev_b32 v{vfl}, {FL}, v{vt[3]}""")
    if part:
        k(f"""s_sub_u32 s{s_t1}, s{s_t1}, s{s_t0}
        v_and_b32 v{vt[2]}, 1, v{vl}
        v_mul_u32_u24 v{vt[2]}, s{s_t1}, v{vt[2]}
        v_bfe_u32 v{vt[3]}, v{vl}, 1, 1
        v_bfe_u32 v{vt[4]}, v{vl}, 2, 1
        v_bfe_u32 v{vt[5]}, v{vl}, 3, 1
        v_lshl_add_u32 v{vt[4]}, v{vt[5]}, 3, v{vt[4]}
        v_mad_u32_u24 v{vt[5]}, v{vt[3]}, 5, 5
        s_lshr_b32 s{s_t1}, s2, 5
        s_lshl_b32 s{s_t1}, s{s_t1}, 1
        v_add_u32 v{vt[3]}, s{s_t1}, v{vt[3]}
        v_cmp_gt_u32 vcc, 16, v{vl}
        v_cndmask_b32 v{vt[5]}, 0, v{vt[5]}, vcc
        v_cndmask_b32 v{vt[4]}, v{vt[3]}, v{vt[4]}, vcc
        v_add_u32 v{vt[2]}, v{vt[2]}, v{vt[5]}
        v_lshl_add_u32 v{vt[2]}, v{vt[2]}, 5, v{vt[4]}
        v_lshlrev_b32 v{vpl}, {FL}, v{vt[2]}""")
    k(f"""s_cmp_lg_u32 s{s_w}, 0
    s_cbranch_scc1 {Lzx}
    s_cmp_lg_u32 s{c.s_p}, 15
    s_cbranch_scc1 {Lzx}
    v_and_b32 v{vt[3]}, 15, v{vl}
    v_lshlrev_b32 v{vt[3]}, 4, v{vt[3]}
    s_mov_b32 s{s_t1}, 0
    {Lz}:
    buffer_load_dword v{vt[4]}, v{vt[3]}, {sr(sD,4)}, 0 offen sc1
    s_add_u32 s{s_t1}, s{s_t1}, 1
    s_cmp_gt_u32 s{s_t1}, 0x40000
    s_cbranch_scc1 {Lzx}
    s_waitcnt vmcnt(0)
    v_cmp_ne_u32 vcc, 0, v{vt[4]}
    s_cmp_eq_u64 vcc, -1
    s_cbranch_scc0 {Lz}
    {Lzx}:
    s_waitcnt vmcnt(0)""")
    k.stamp(5)
    k(f"""s_barrier
    s_cmp_lg_u32 s{s_w}, 0
    s_cbranch_scc1 {Lx}""")
    c.signal(c.s_f, vt[2])
    fl = [f"buffer_load_dword v{vf2}, v{vfl}, {sr(sO,4)}, s{s_f0} offen sc1", f"buffer_load_dword v{vf2+1}, v{vfl}, {sr(sO,4)}, s{s_f1} offen sc1"]
    k(f"s_mov_b32 s{s_t2}, 0\n{Lp}:")
    if part: k(f"buffer_load_dword v{vf2}, v{vpl}, {sr(sO,4)}, s{s_f0} offen sc1")
    else: k(fl[0]); k(fl[1])
    k(f"""s_add_u32 s{s_t2}, s{s_t2}, 1
    s_cmp_gt_u32 s{s_t2}, 0x40000
    s_cbranch_scc1 {Lx}
    s_waitcnt vmcnt(0)""")
    if not part: k(f"v_min_u32 v{vf2}, v{vf2}, v{vf2+1}")
    k(f"""v_cmp_ne_u32 vcc, 0, v{vf2}
    s_cmp_eq_u64 vcc, -1
    s_cbranch_scc0 {Lp}
    {Lx}:
    s_lshl_b32 s{s_t0}, s{s_tok}, 4
    s_add_u32 s{s_q1}, s{s_t0}, s{s_pa}
    s_xor_b32 s{s_t3}, s{s_q1}, 512
    s_andn2_b32 s{s_q2}, s{s_t0}, 512
    s_add_u32 s{s_q2}, s{s_q2}, s{s_pr}
    s_add_u32 s{s_q2}, s{s_q2}, s{s_odd8}
    s_barrier""")
    k.stamp(6)
    def dma(slot):
        out = [f"s_add_u32 m0, s{s_mo}, {slot*SL}", "s_nop 0"]
        for i in range(3):
            out.append(f"buffer_load_dwordx4 v{vD[i]}, {sr(sO,4)}, 0 offen sc1 lds")
            if i < 2: out.append(f"s_add_u32 m0, m0, s{s_ms}")
            out.append(f"v_add_u32 v{vD[i]}, v{vD[i]}, v{vDd[i]}")
        return out
    k("; ---- P2 attention")
    for x in dma(0): k(x)
    k(f"""buffer_load_dwordx4 {vr(Qm,4)}, v{vq}, {sr(sO,4)}, s{s_q1} offen
    buffer_load_dwordx4 {vr(QmY,4)}, v{vq}, {sr(sO,4)}, s{s_t3} offen
    buffer_load_dwordx2 {vr(Qr,2)}, v{vqr}, {sr(sO,4)}, s{s_q2} offen""")
    for x in dma(1): k(x)
    p2a = [f"ds_read_b64_tr_b16 {vr(PR+4*Tl+2*rd,2)}, v{vPA} offset:{rd*1024+Tl*32}" for Tl in range(4) for rd in range(2)]
    p2c = [f"{M16} {vr(vcs,16)}, {vr(vsel+4*Tl,4)}, {vr(PR+4*Tl,4)}, {'0' if Tl == 0 else vr(vcs,16)}" for Tl in range(4)]
    late = [f"buffer_store_dwordx4 {vr(PR+4*Tl,4)}, v{vl16}, {sr(sO,4)}, s{s_po} offen offset:{Tl*1024}{sc}" for Tl in range(4)]
    late += [f"buffer_atomic_add_f32 v{vcs}, v{vca}, {sr(sO,4)}, s{s_cs} offen", f"buffer_atomic_add_f32 v{vcs+1}, v{vca}, {sr(sO,4)}, s{s_cs} offen offset:256"]
    TL = o.get('TL', 3); TP = o.get('TP', 11); assert TL > 2
    late_t = o.get('late_t', [TP + 1, TP + 2, TP + 4, TP + 5, TP + 3, TP + 3]); TSIG = o.get('TSIG', TP + 11)
    assert not edge_prep
    M2B = "v_mfma_f32_32x32x4_2b_bf16"
    def rdK(t):
        o_ = ((t // 4) % 3) * SL + (t % 4) * 512
        return [f"ds_read_b128 {vr(Km,4)}, v{vKA} offset:{o_}", f"ds_read_b64 {vr(Kr,2)}, v{vKR} offset:{o_}"]
    def rdV(t):
        o_ = ((t // 4) % 3) * SL + (t % 4) * 1344
        return [f"ds_read_b128 {vr(V0,4)}, v{vVA} offset:{o_}", f"ds_read_b128 {vr(V1[t&1],4)}, v{vVA} offset:{o_+672}"]
    k("s_waitcnt vmcnt(3)\ns_barrier")
    k.stamp(7)
    for x in rdK(0): k(x)
    k(f"""s_waitcnt lgkmcnt(0)
    {M2B} {vr(S[0],32)}, {vr(Kr,2)}, {vr(Qr,2)}, 0
    {M16} {vr(S[0],16)}, {vr(Km,4)}, {vr(Qm,4)}, {vr(S[0],16)}
    {M16} {vr(S[0]+16,16)}, {vr(Km,4)}, {vr(QmY,4)}, {vr(S[0]+16,16)}""")
    for x in rdK(1) + rdV(0): k(x)
    side = []; vm = [0]
    def spread(n):
        for _ in range(n):
            if side:
                x = side.pop(0)
                if x is None: continue
                if x == 'KV': vm[0] = 0; continue
                k(x)
                if x.startswith('buffer_'): vm[0] += 1
    NT = 32
    for t in range(NT):
        s = S[t & 1]; sn = S[(t + 1) & 1]; pe = t // 4; last = t == NT - 1
        e = lambda *a: [(k(f"v_exp_f32 v{s+i}, v{s+i}"), spread(1)) for i in a]
        cv = lambda i: k(f"v_cvt_pk_bf16_f32 v{P+i%8}, v{s+2*i}, v{s+2*i+1}")
        def pr(ph):
            if prio:
                q = (7 * t + ph - 19) % 28
                cum = 0
                for lvl, ln in enumerate(prio):
                    if (q == cum and ln > 0) or (t == 0 and ph == 0 and cum <= q < cum + ln): k(f"s_setprio {3 - lvl}")
                    cum += ln
        z = lambda r: '0' if t == 0 else vr(r, 16)
        pr(0)
        e(0, 1, 2, 3)
        if not last:
            k("s_waitcnt lgkmcnt(2)")
            k(f"{M2B} {vr(sn,32)}, {vr(Kr,2)}, {vr(Qr,2)}, 0")
        pr(1)
        e(4); cv(0); e(5); cv(1); e(6, 7); cv(2); e(8); cv(3); e(9, 10)
        k("s_waitcnt lgkmcnt(0)")
        k(f"{M16} {vr(O,16)}, {vr(V0,4)}, {vr(P,4)}, {z(O)}")
        pr(2)
        e(11); cv(4); e(12); cv(5); e(13, 14)
        if not last: k(f"{M16} {vr(sn,16)}, {vr(Km,4)}, {vr(Qm,4)}, {vr(sn,16)}")
        pr(3)
        e(15); cv(6); e(16); cv(7); e(17, 18)
        k(f"{M16} {vr(O,16)}, {vr(V1[t&1],4)}, {vr(P+4,4)}, {vr(O,16)}")
        pr(4)
        e(19); cv(8); e(20); cv(9); e(21, 22)
        if not last: k(f"{M16} {vr(sn+16,16)}, {vr(Km,4)}, {vr(QmY,4)}, {vr(sn+16,16)}")
        if part and t == 1:
            Ln = k.label("nq"); k(f"s_cmp_lg_u32 s{s_w}, 0\ns_cbranch_scc1 {Ln}"); k(fl[0]); k(fl[1]); k(f"{Ln}:")
        if t % 4 == 2 and pe < 7:
            assert not side
            k(f"s_waitcnt vmcnt({0 if t in (TP - 1, TSIG - 4, 26) else vm[0]})")
            if part and t == 2:
                Ln = k.label("nq"); Lq = k.label("q")
                k(f"""s_cmp_lg_u32 s{s_w}, 0
                s_cbranch_scc1 {Ln}
                s_mov_b32 s{s_t2}, 0
                {Lq}:
                v_min_u32 v{vf2}, v{vf2}, v{vf2+1}
                s_add_u32 s{s_t2}, s{s_t2}, 1
                v_cmp_ne_u32 vcc, 0, v{vf2}
                s_cmp_eq_u64 vcc, -1
                s_cbranch_scc1 {Ln}
                s_cmp_gt_u32 s{s_t2}, 0x40000
                s_cbranch_scc1 {Ln}""")
                k(fl[0]); k(fl[1])
                k(f"s_waitcnt vmcnt(0)\ns_branch {Lq}\n{Ln}:")
            if early and t == 26:
                Ln = k.label("ne"); Lq = k.label("e")
                k(f"""s_cmp_lg_u32 s{s_w}, 0
                s_cbranch_scc1 {Ln}
                s_mov_b32 s{s_t2}, 0
                {Lq}:
                v_min_u32 v{vfp}, v{vfp}, v{vfp+1}
                v_min3_u32 v{vfp}, v{vfp}, v{vfp+2}, v{vfp+3}
                s_add_u32 s{s_t2}, s{s_t2}, 1
                v_cmp_ne_u32 vcc, 0, v{vfp}
                s_cmp_eq_u64 vcc, -1
                s_cbranch_scc1 {Ln}
                s_cmp_gt_u32 s{s_t2}, 0x40000
                s_cbranch_scc1 {Ln}
                buffer_load_dwordx4 {vr(vfp,4)}, v{vl16}, {sr(sO,4)}, s{s_t0} offen sc1
                s_waitcnt vmcnt(0)
                s_branch {Lq}
                {Ln}:""")
                side += [f"s_lshr_b32 s{s_t0}, s2, 5"] if o.get('row3', o.get('cinit', True)) else [f"s_bfe_u32 s{s_t0}, s2, 0x10002", f"s_lshl_b32 s{s_t0}, s{s_t0}, 2", f"s_lshr_b32 s{s_t1}, s2, 6", f"s_add_u32 s{s_t0}, s{s_t0}, s{s_t1}"]
                side += [
                         f"s_lshl_b32 s{s_t1}, s{s_w}, 3", f"s_add_u32 s{s_t0}, s{s_t0}, s{s_t1}", f"s_mul_i32 s{s_t0}, s{s_t0}, 5120", f"s_add_u32 s{s_t0}, s{s_t0}, {WOP}",
                         f"s_mul_i32 s{s_t1}, s{s_w}, 5120"]
                for hf in range(2):
                    side += [f"s_add_u32 m0, s{s_t1}, {PREP + hf*8*5120}", f"s_add_u32 s{s_t2}, s{s_t0}, 4096"]
                    side += [f"buffer_load_dwordx4 v{vl16}, {sr(sO,4)}, s{s_t0} offen offset:{i*1024} lds" for i in range(4)]
                    side += ["s_add_u32 m0, m0, 4096", f"s_add_u32 s{s_t0}, s{s_t0}, {8*40960}", f"buffer_load_dwordx4 v{vl16}, {sr(sO,4)}, s{s_t2} offen lds"]
                sp = o.get('espace', 8)
                side[:] = [y for x in side for y in ([x] + [None] * sp if x.startswith('buffer') else [x])]
            k("s_barrier")
            if o.get('fine') == 2: k.stamp({0: 1, 1: 2, 2: 3, 3: 4, 4: 5, 5: 6, 6: 9}[pe])
            if pe < 6: side += dma((pe + 2) % 3) + ['KV']
            if t == TSIG - 4:
                Ln = k.label("nf")
                k(f"s_cmp_lg_u32 s{s_w}, 0\ns_cbranch_scc1 {Ln}\ns_lshl_b32 s{s_t0}, s2, 2\ns_add_u32 s{s_t0}, s{s_t0}, {FP}")
                c.signal(s_t0, vt[2]); k(f"{Ln}:")
        pr(5)
        if t < NT - 2:
            for x in rdK(t + 2): k(x)
        if t == TP:
            for x in p2a: k(x)
        if t == TL: side += p1
        if o.get('cs2', True):
            if TP < t <= TP + 2: k(p2c[2 * (t - TP - 1)]); side.insert(0, None); side.insert(0, None); side.insert(min(4, len(side)), p2c[2 * (t - TP - 1) + 1])
        elif TP < t <= TP + 4: k(p2c[t - TP - 1])
        for i_, x_ in enumerate(late_t):
            if int(x_) == t: side.append(late[i_])
        if t == (o.get('TF', 24) if early else 28):
            Ln = k.label("nl")
            if early: k(f"s_cmp_lg_u32 s{s_w}, 0\ns_cbranch_scc1 {Ln}")
            k(f"s_mov_b32 s{s_t0}, {FP}\nbuffer_load_dwordx4 {vr(vfp,4)}, v{vl16}, {sr(sO,4)}, s{s_t0} offen sc1\n{Ln}:")
        e(23); cv(10); e(24); cv(11); e(25, 26)
        k(f"{M16} {vr(OY,16)}, {vr(V0,4)}, {vr(P,4)}, {z(OY)}")
        pr(6)
        e(27); cv(12); e(28); cv(13); e(29, 30, 31); cv(14)
        if not last:
            rv = rdV(t + 1)
            k(rv[0]); cv(15); k(rv[1]); k("s_nop 0")
        else:
            cv(15)
        k(f"{M16} {vr(OY,16)}, {vr(V1[t&1],4)}, {vr(P+4,4)}, {vr(OY,16)}")
    assert not side
    if o.get('fine') == 2: k.stamp(10)
    k("s_setprio 0")
    for j in range(3): k(f"ds_write_b128 v{vx1}, {vr(OY+4*j,4)} offset:{1024*j}")
    k(f"s_mov_b32 s{s_q1}, {f2u(2.0**64):#x}\ns_mov_b32 s{s_q2}, 0x7f800000")
    k("s_waitcnt lgkmcnt(0)\ns_barrier")
    for j in (2, 0, 1): k(f"ds_read_b128 {vr(OY+4*j,4)}, v{vx2} offset:{1024*j}")
    t0, t1, t2 = vt[0], vt[1], vt[2]
    k("s_waitcnt lgkmcnt(2)")
    for i in (4, 5): k(f"v_pk_add_f32 {vr(O+2*i,2)}, {vr(O+2*i,2)}, {vr(OY+2*i,2)}")
    k(f"v_mov_b32 v{t0}, v{O+8}\nv_mov_b32 v{t1}, v{O+8}\ns_waitcnt lgkmcnt(0)")
    for i in range(4): k(f"v_pk_add_f32 {vr(O+2*i,2)}, {vr(O+2*i,2)}, {vr(OY+2*i,2)}")
    k(f"""v_permlane32_swap_b32 v{t0}, v{t1}
    v_add_f32 v{t2}, |v{O+8}|, |v{O+9}|
    v_add_f32 v{vt[3]}, |v{O+10}|, |v{O+11}|""")
    for i in range(0, 8, 2): k(f"v_add_f32 v{t2}, |v{O+i}|, v{t2}\nv_add_f32 v{vt[3]}, |v{O+i+1}|, v{vt[3]}")
    k(f"""v_cmp_lt_f32 vcc, {f2u(2.0**-64):#x}, v{t1}
    v_add_f32 v{t2}, v{t2}, v{vt[3]}
    v_cmp_gt_f32 {sr(sE,2)}, s{s_q1}, v{t1}
    v_cmp_gt_f32 {sr(sG,2)}, s{s_q2}, v{t2}
    s_and_b64 vcc, vcc, {sr(sE,2)}
    s_and_b64 vcc, vcc, {sr(sG,2)}
    s_cmp_eq_u64 vcc, -1
    s_cbranch_scc0 {L_slow}
    {L_store}:
    v_rcp_f32 v{t0}, v{t1}
    v_rcp_f32 v{t1}, v{t1}""")
    assert t0 % 2 == 0 and t1 == t0 + 1
    for i in range(4): k(f"v_pk_mul_f32 {vr(O+2*i,2)}, {vr(O+2*i,2)}, {vr(t0,2)}")
    for i in range(4): k(f"v_cvt_pk_bf16_f32 v{O+i}, v{O+2*i}, v{O+2*i+1}")
    k(f"buffer_store_dwordx4 {vr(O,4)}, v{vo1}, {sr(sO,4)}, s{s_o1} offen{sc}")
    for i in range(4, 6): k(f"v_pk_mul_f32 {vr(O+2*i,2)}, {vr(O+2*i,2)}, {vr(t0,2)}")
    for i in range(4, 6): k(f"v_cvt_pk_bf16_f32 v{O+i}, v{O+2*i}, v{O+2*i+1}")
    k(f"""s_mov_b32 exec_hi, 0
    buffer_store_dwordx2 {vr(O+4,2)}, v{vo2}, {sr(sO,4)}, s{s_o2} offen{sc}
    s_mov_b32 exec_hi, -1""")
    def slow():
        vV = vKA; vm = vKR; cnt = s_t3
        k(f"""{L_slow}:
        s_lshl_b32 s{so[0]}, s{s_tok}, 4
        s_add_u32 s{so[0]}, s{so[0]}, s{s_pr}
        s_add_u32 s{so[0]}, s{so[0]}, s{s_odd8}
        v_mov_b32 v{Qr}, 0
        v_mov_b32 v{Qr+1}, 0
        s_mov_b32 exec_hi, 0
        buffer_load_dwordx2 {vr(Qr,2)}, v{vr31}, {sr(sO,4)}, s{so[0]} offen
        s_mov_b32 exec_hi, -1
        s_add_u32 s{so[0]}, s{s_pa}, {80*32768}
        s_add_u32 s{so[1]}, s{s_pr}, {80*32768}
        s_add_u32 s{so[1]}, s{so[1]}, s{s_odd8}
        v_mov_b32 v{vm}, 0xff800000
        s_mov_b32 s{cnt}, 0""")
        L1 = k.label("mx")
        k(f"""{L1}:
        buffer_load_dwordx4 {vr(Km,4)}, v{vq}, {sr(sO,4)}, s{so[0]} offen
        buffer_load_dwordx2 {vr(Kr,2)}, v{vr31}, {sr(sO,4)}, s{so[1]} offen
        s_add_u32 s{so[0]}, s{so[0]}, 512
        s_add_u32 s{so[1]}, s{so[1]}, 512
        s_waitcnt vmcnt(0)
        {M8} {vr(S[0],16)}, {vr(Kr,2)}, {vr(Qr,2)}, 0
        {M16} {vr(S[0],16)}, {vr(Km,4)}, {vr(Qm,4)}, {vr(S[0],16)}""")
        for i in range(8): k(f"v_max3_f32 v{vm}, v{S[0]+2*i}, v{S[0]+2*i+1}, v{vm}")
        k(f"""s_add_u32 s{cnt}, s{cnt}, 1
        s_cmp_lt_u32 s{cnt}, 64
        s_cbranch_scc1 {L1}
        v_mov_b32 v{t0}, v{vm}
        v_permlane32_swap_b32 v{t0}, v{vm}
        v_max_f32 v{vm}, v{vm}, v{t0}""")
        for i in range(16): k(f"v_sub_f32 v{C+i}, 0, v{vm}\nv_mov_b32 v{O+i}, 0")
        k(f"""s_add_u32 s{so[0]}, s{s_pa}, {80*32768}
        s_add_u32 s{so[1]}, s{s_pr}, {80*32768}
        s_add_u32 s{so[1]}, s{so[1]}, s{s_odd8}
        s_mul_i32 s{so[2]}, s{s_h}, 320
        s_add_u32 s{so[2]}, s{so[2]}, {VIMG}
        v_lshrrev_b32 v{vV}, 5, v{vl}
        v_mul_u32_u24 v{vV}, 10240, v{vV}
        v_add3_u32 v{vV}, v{vV}, v{vr31}, s{so[2]}
        v_add_u32 v{vD[1]}, 20480, v{vV}
        v_cmp_gt_u32 vcc, 320, v{vr31}
        v_mov_b32 v{vD[2]}, {ONES}
        v_mov_b32 v{vDd[0]}, 40960
        v_cndmask_b32 v{vV}, v{vD[2]}, v{vV}, vcc
        v_cndmask_b32 v{vD[1]}, v{vD[2]}, v{vD[1]}, vcc
        v_cndmask_b32 v{vDd[0]}, 0, v{vDd[0]}, vcc
        s_mov_b32 s{cnt}, 0""")
        L2 = k.label("pv")
        k(f"""{L2}:
        buffer_load_dwordx4 {vr(Km,4)}, v{vq}, {sr(sO,4)}, s{so[0]} offen
        buffer_load_dwordx2 {vr(Kr,2)}, v{vr31}, {sr(sO,4)}, s{so[1]} offen
        buffer_load_dwordx4 {vr(V0,4)}, v{vV}, {sr(sO,4)}, 0 offen
        buffer_load_dwordx4 {vr(V1[0],4)}, v{vD[1]}, {sr(sO,4)}, 0 offen
        s_add_u32 s{so[0]}, s{so[0]}, 512
        s_add_u32 s{so[1]}, s{so[1]}, 512
        v_add_u32 v{vV}, v{vV}, v{vDd[0]}
        v_add_u32 v{vD[1]}, v{vD[1]}, v{vDd[0]}
        s_waitcnt vmcnt(0)
        {M8} {vr(S[0],16)}, {vr(Kr,2)}, {vr(Qr,2)}, {vr(C,16)}
        {M16} {vr(S[0],16)}, {vr(Km,4)}, {vr(Qm,4)}, {vr(S[0],16)}""")
        for i in range(16): k(f"v_exp_f32 v{S[0]+i}, v{S[0]+i}")
        for i in range(8): k(f"v_cvt_pk_bf16_f32 v{P+i}, v{S[0]+2*i}, v{S[0]+2*i+1}")
        k(f"""{M16} {vr(O,16)}, {vr(V0,4)}, {vr(P,4)}, {vr(O,16)}
        {M16} {vr(O,16)}, {vr(V1[0],4)}, {vr(P+4,4)}, {vr(O,16)}
        s_add_u32 s{cnt}, s{cnt}, 1
        s_cmp_lt_u32 s{cnt}, 64
        s_cbranch_scc1 {L2}
        v_mov_b32 v{t0}, v{O+8}
        v_mov_b32 v{t1}, v{O+8}
        v_permlane32_swap_b32 v{t0}, v{t1}
        s_branch {L_store}""")
    slow_code = deferred(slow)
    L3 = k.label("ld")
    k.stamp(8); k.nst = 8
    if o.get('fine1') or o.get('fine') == 2:
        k.maxst = 14; k.stamp = lambda *a, **kw: None
    k(f"""s_lshr_b32 s{c.s_f}, s2, 5
    s_lshl_b32 s{c.s_f}, s{c.s_f}, 5
    s_add_u32 s{c.s_f}, s{c.s_f}, s{s_h}
    s_lshl_b32 s{c.s_f}, s{c.s_f}, {FL}
    s_add_u32 s{c.s_f}, s{c.s_f}, {F2}""")
    k("; ---- P3 o-proj")
    P3 = P35(c, 3, D=o.get('D3', 20), D0=o.get('D30', 6), early=early)
    cin = o.get('cinit', True)
    P3.rowmap = o.get('row3', cin); P3.cinit = cin
    k(P3.ptr_load()); P3.ids()
    lw(c, L3)
    def handoff(vt, stmp, n, idle=None):
        Ln = k.label("nw0"); Ls = k.label("ns0")
        k("s_barrier")
        k(f"s_cmp_lg_u32 s{c.s_w}, 0\ns_cbranch_scc1 {Ls}")
        c.signal(c.s_f, vt)
        k(f"{Ls}:")
        if idle: idle()
        k(f"s_cmp_lg_u32 s{c.s_w}, 0\ns_cbranch_scc1 {Ln}")
        c.poll(c.s_p, n, vt, stmp)
        k(f"{Ln}:\ns_barrier")
    P3.setup()
    k(f"""s_lshr_b32 s{c.s_p}, s{P3.s_tb16}, 4
    s_lshl_b32 s{c.s_p}, s{c.s_p}, {FL+5}
    s_add_u32 s{c.s_p}, s{c.s_p}, {F2}
    s_waitcnt vmcnt({0 if cin else 3})""")
    def idle3():
        P3.keep_addr(); P3.load_cinit()
    handoff(P3.vt[0], P3.s_t0, 32, idle3 if cin else None)
    k.stamp('n')
    if o.get('fine') == 3: P3.fine = {0: 2, 1: 3, 4: 4, 8: 5, 12: 6, 16: 7, 19: 8}
    P3.main(init=False, resident=True)
    P3.lateD = o.get('lateD', True)
    if not P3.lateD: k("s_barrier")
    P3.epilogue()
    k(f"""s_lshr_b32 s{c.s_f}, s{P3.s_tb16}, 3
    s_lshl_b32 s{c.s_f}, s{c.s_f}, 5
    s_bfe_u32 s{P3.s_t0}, s{P3.s_tb16}, 0x10002
    s_lshl_b32 s{P3.s_t0}, s{P3.s_t0}, 3
    s_add_u32 s{c.s_f}, s{c.s_f}, s{P3.s_t0}
    s_add_u32 s{c.s_f}, s{c.s_f}, s{P3.s_c}
    s_lshl_b32 s{c.s_f}, s{c.s_f}, {FL}
    s_add_u32 s{c.s_f}, s{c.s_f}, {F3}""")
    Q4 = P4(c, D=o.get('D4', 12), D0=o.get('D40', 4)); Q4.ahead = o.get('ahead4', 4); Q4.thin = o.get('thin4'); Q4.nob = o.get('nob'); Q4.mcorr = o.get('mcorr', True); Q4.lstat = o.get('lstat', True); Q4.bsched = o.get('bsched', (1, 2)); Q4.tmaj = o.get('tmaj', True); Q4.pkall = o.get('pkall', False); Q4.jstart = o.get('jstart', 2)
    if Q4.tmaj: Q4.wsched = o.get('wsched', {4: (), 5: (0, 1), 6: (2, 3), 7: (4, 5, 6)})
    Q4.ids(); Q4.setup()
    k(f"""s_lshr_b32 s{c.s_p}, s{Q4.s_tb}, 2
    s_lshl_b32 s{c.s_p}, s{c.s_p}, {FL+5}
    s_add_u32 s{c.s_p}, s{c.s_p}, {F3}
    s_waitcnt vmcnt(0)""")
    k.stamp('n')
    handoff(Q4.st, Q4.s_t1, 16)
    k.stamp('n')
    Q4.fine2 = o.get('fine') == 41
    if o.get('fine') == 4: Q4.fine = {0: 2, 1: 3, 4: 4, 12: 5, 20: 6, 30: 7, 31: 8}
    Q4.main(init=False, endbar=True)
    if not Q4.tmaj: Q4.epilogue(k.label("fin"))
    k(f"""s_lshr_b32 s{c.s_f}, s{Q4.s_tb}, 2
    s_lshl_b32 s{c.s_f}, s{c.s_f}, 5
    s_add_u32 s{c.s_f}, s{c.s_f}, s{Q4.s_g}
    s_lshl_b32 s{c.s_f}, s{c.s_f}, {FL}
    s_add_u32 s{c.s_f}, s{c.s_f}, {F4}""")
    pair5 = o.get('pair5', True)
    P5 = P35(c, 5, D=o.get('D5', 8 if pair5 else 12), D0=o.get('D50', 4), pair=pair5); P5.ahead = o.get('ahead5', 5); P5.rowmap = o.get('row5', True); P5.bar8 = o.get('bar8', True); P5.ofl = o.get('ofl', '')
    k("; ---- P5 down")
    k("s_nop 1"); k(P5.ptr_load()); P5.ids(); P5.setup()
    if pair5: P5.setup_pair()
    k(f"""s_lshr_b32 s{c.s_p}, s{P5.s_tb16}, 3
    s_lshl_b32 s{c.s_p}, s{c.s_p}, {FL+5}
    s_add_u32 s{c.s_p}, s{c.s_p}, {F4}
    s_waitcnt vmcnt(0)""")
    k.stamp('n')
    def idle5():
        P5.keep_addr(); P5.load_cinit()
    P5.cinit = cin and P3.rowmap == P5.rowmap
    handoff(P5.vt[0], P5.s_t0, 16, idle5 if P5.cinit else None)
    k.stamp('n')
    if o.get('fine') == 5: P5.fine = {0: 2, 1: 3, 8: 4, 16: 5, 28: 6, 40: 7, 53: 8}
    if pair5:
        if o.get('fine') == 5: P5.fine = {0: 2, 1: 3, 4: 4, 8: 5, 14: 6, 20: 7, 26: 8}
        P5.main_pair()
    else: P5.main(init=False)
    P5.epilogue()
    if o.get('dbgst') is not None:
        Ln = k.label("dn")
        k.stamp(14); k.stamp_real(15)
        k(f"s_cmp_lg_u32 s2, {o['dbgst']}\ns_cbranch_scc1 {Ln}\ns_cmp_lg_u32 s{s_w}, 0\ns_cbranch_scc1 {Ln}\ns_waitcnt lgkmcnt(0)\nv_mov_b32 v1, 0\ns_mov_b64 exec, 1")
        pos = [1, 2, 3, 5, 6, 7, 9, 10, 11, 13, 14, 15]
        src = [2, 3, 6, 7, 8, 9, 11, 12, 13, 14]
        for p_, i in zip(pos, src):
            k(f"s_sub_u32 s66, s{k.sT+2*i}, s{k.sT+2}\nv_mov_b32 v2, s66\nbuffer_store_dword v2, v1, {sr(sD,4)}, 0 offen offset:{4*p_}")
        k(f"s_sub_u32 s66, s{k.sT+30}, s{k.sT}\nv_mov_b32 v2, s66\nbuffer_store_dword v2, v1, {sr(sD,4)}, 0 offen offset:60\n{Ln}:\ns_endpgm")
        k(f"{c.L_end}:\ns_endpgm")
    else:
        c.finish()
    k(f"{L3}:")
    if early:
        P3.ld_setup()
        k(f"s_add_u32 s{P3.s_wo}, s{P3.s_wo}, {16*40960}\ns_waitcnt vmcnt(0)\ns_barrier")
        P3.ld_chunk(0)
        k("s_waitcnt vmcnt(0)\ns_barrier")
    else:
        Lp = k.label("fp"); Lok = k.label("fpok")
        k(f"""s_mov_b32 s{P3.s_cnt}, 0
        s_waitcnt vmcnt(2)
        {Lp}:
        v_min_u32 v{vfp}, v{vfp}, v{vfp+1}
        v_min3_u32 v{vfp}, v{vfp}, v{vfp+2}, v{vfp+3}
        s_add_u32 s{P3.s_cnt}, s{P3.s_cnt}, 1
        v_cmp_ne_u32 vcc, 0, v{vfp}
        s_cmp_eq_u64 vcc, -1
        s_cbranch_scc1 {Lok}
        s_cmp_gt_u32 s{P3.s_cnt}, 0x40000
        s_cbranch_scc1 {Lok}
        s_mov_b32 s{P3.s_t0}, {FP}
        buffer_load_dwordx4 {vr(vfp,4)}, v{c.vl16}, {sr(c.sO,4)}, s{P3.s_t0} offen sc1
        s_waitcnt vmcnt(0)
        s_branch {Lp}
        {Lok}:""")
        P3.ld_setup()
        k("s_waitcnt vmcnt(0)\ns_barrier")
        for ch in range(5): P3.ld_chunk(ch)
        k("s_waitcnt vmcnt(0)\ns_barrier")
    Q4.ids(); Q4.ld_setup()
    k("s_barrier")
    n4 = o.get('pre4', 3)
    for ch in range(n4): Q4.ld_chunk(ch)
    k("s_barrier")
    for ch in range(n4, 5): Q4.ld_chunk(ch)
    Q4.ld_cs()
    k("s_waitcnt vmcnt(29)\ns_barrier")
    rg5 = None
    if o.get('reg5', True):
        rg5 = dict(base=20, addr=[8, 9, 10])
        s5 = 64
        def warm():
            if P5.rowmap: k(f"s_lshr_b32 s{Q4.s_t0}, s2, 5")
            else: k(f"""s_bfe_u32 s{Q4.s_t0}, s2, 0x10002
            s_lshl_b32 s{Q4.s_t0}, s{Q4.s_t0}, 2
            s_lshr_b32 s{Q4.s_t1}, s2, 6
            s_add_u32 s{Q4.s_t0}, s{Q4.s_t0}, s{Q4.s_t1}""")
            k(f"""s_lshl_b32 s{Q4.s_t1}, s{c.s_wl}, 3
            s_add_u32 s{Q4.s_t0}, s{Q4.s_t0}, s{Q4.s_t1}
            s_mul_i32 s{Q4.s_t0}, s{Q4.s_t0}, 5120
            s_add_u32 s{Q4.s_t0}, s{Q4.s_t0}, {WDP + 28*40960}""")
        def warm_chunk(j):
            k(f"s_add_u32 s{Q4.s_t1}, s{Q4.s_t0}, 4096")
            for i in range(5):
                k(f"buffer_load_dwordx4 {vr(rg5['base'] + 20*j + 4*i, 4)}, v{c.vl16}, {sr(c.sO,4)}, s{Q4.s_t0 if i < 4 else Q4.s_t1} offen offset:{(i%4)*1024}")
            k(f"s_add_u32 s{Q4.s_t0}, s{Q4.s_t0}, {4*40960}")
        Q4.warm = warm; Q4.warm_chunk = warm_chunk
    if Q4.lstat: Q4.ld_stats()
    e5 = o.get('e5', 4) if Q4.tmaj else 0
    if e5:
        ws7 = Q4.wsched[7]; Q4.wsched = dict(Q4.wsched); Q4.wsched[7] = ()
        sv = (k.s(), )
    Q4.ld_main(5, 1, init=False)
    if e5: k(f"s_mov_b32 s{c.s_p}, s{Q4.s_t0}")
    P5.ids(); P5.ld_setup()
    k(f"""v_add_u32 v8, s{P5.s_m0}, v{c.vl16}
    v_add_u32 v9, {3*P5.SLOT}, v8
    v_add_u32 v10, {6*P5.SLOT}, v8""")
    if e5:
        def wc(j):
            k(f"s_add_u32 s{c.s_f}, s{c.s_p}, 4096")
            for i in range(5):
                k(f"buffer_load_dwordx4 {vr(rg5['base'] + 20*j + 4*i, 4)}, v{c.vl16}, {sr(c.sO,4)}, s{c.s_p if i < 4 else c.s_f} offen offset:{(i%4)*1024}")
            k(f"s_add_u32 s{c.s_p}, s{c.s_p}, {4*40960}")
        for j in ws7: wc(j)
        for ch in range(e5): P5.ld_chunk(ch)
    k("s_barrier")
    n5 = max(e5, o.get('pre5', 4))
    for ch in range(e5, n5): P5.ld_chunk(ch)
    k("s_barrier")
    for ch in range(n5, 7): P5.ld_chunk(ch)
    if P5.bar8:
        k("s_waitcnt vmcnt(25)\ns_barrier")
        P5.ld_main8(rg5, 1 if pair5 else 0)
    else:
        k("s_waitcnt vmcnt(30)\ns_barrier")
        P5.ld_main(7, init=False)
    if K.STAMP and o.get('dbgst') is None:
        for i in range(9, 15): k.stamp(i)
        k.stamp_flush(c.sO, c.s_w)
    k("s_endpgm")
    k.lines += ['    ; ---- softmax fall-back with the true row maximum'] + slow_code + ['    ; ---- statistics workgroups'] + spare_code
    return k, (256, 512, max(P3.lds, Q4.lds, P5.lds, P35.HKEEP + 10240 + 512 if cin else 0))
```

```python
from ph import *

def lw(c, L):
    c.k(f"s_cmp_ge_u32 s{c.s_w}, 4\ns_cbranch_scc1 {L}")

class P35:
    def __init__(self, c, which, D=12, D0=None, pair=False, early=False):
        self.c = c; self.k3 = k3 = which == 3; k = c.k
        self.NU = 20 if k3 else 54; self.CK = 4; self.SLOT = 20480
        self.NCH = (self.NU + 3) // 4; self.NSL = 5 if k3 else 7
        self.XS = self.NSL * self.SLOT; self.D = D; self.D0 = D0 or D
        self.early = early
        if early: self.XS = 40960
        self.lds = (self.XS + 4 * 3072) if not early else 73728 + 4 * 20480
        c.reset()
        self.sPX = k.s(2); self.sB = k.s(4); self.sX = k.s(4)
        (self.s_tb16, self.s_c, self.s_t0, self.s_t1, self.s_t2, self.s_bo, self.s_wo, self.s_m0, self.s_xs, self.s_ho,
         self.s_cnt) = [k.s() for _ in range(11)]
        self.vt = [k.v() for _ in range(6)]; self.vH = k.v(); self.vD = k.v(); self.vA = [k.v() for _ in range(3)]
        self.vrow = [k.v() for _ in range(3)]; self.vR = k.v(); self.vK = k.v()
        self.acc = k.v(20, 4); self.fa = [k.v(20, 4) for _ in range(3)]; self.res = k.v(12, 4)
        self.fb = k.v(4 * self.D * (2 if pair else 1), 4)
        if pair: self.accY = k.v(20, 4); self.s_boY = k.s(); self.vE = [k.v(), k.v()]
    def ptr_load(self): return f"s_load_dwordx2 {sr(self.sPX,2)}, s[0:1], {KA_X if self.k3 else KA_OUT}"
    rowmap = False
    ofl = ''
    bar8 = False
    def ld_main8(self, regs=None, free1=0):
        k = self.c.k; c = self.c
        issued = 7
        for kb in range(6):
            need = min(13, 2 * kb + 3)
            if regs is None: k(f"s_waitcnt vmcnt({5*max(0, issued - 1 - need)})")
            else: k(f"s_waitcnt vmcnt({5*max(0, 6 - need)}) lgkmcnt(0)")
            k("s_barrier")
            while issued < 14 and issued <= 2 * kb + 7 + free1:
                if regs is None: self.ld_chunk(issued % 7)
                else:
                    slot = issued % 7
                    for i in range(5):
                        k(f"ds_write_b128 v{regs['addr'][slot // 3]}, {vr(regs['base'] + 20*(issued-7) + 4*i, 4)} offset:{(slot % 3)*self.SLOT + i*1024}")
                issued += 1
    def ids(self):
        k = self.c.k
        if self.rowmap:
            k(f"""s_and_b32 s{self.s_t0}, s2, 7
            s_lshl_b32 s{self.s_t0}, s{self.s_t0}, 2
            s_bfe_u32 s{self.s_t1}, s2, 0x20003
            s_add_u32 s{self.s_tb16}, s{self.s_t0}, s{self.s_t1}
            s_lshl_b32 s{self.s_tb16}, s{self.s_tb16}, 2
            s_add_u32 s{self.s_tb16}, s{self.s_tb16}, s{self.c.s_wl}
            s_lshr_b32 s{self.s_c}, s2, 5""")
            return
        k(f"""s_and_b32 s{self.s_t0}, s2, 3
        s_lshl_b32 s{self.s_t0}, s{self.s_t0}, 3
        s_bfe_u32 s{self.s_t1}, s2, 0x30003
        s_add_u32 s{self.s_tb16}, s{self.s_t0}, s{self.s_t1}
        s_lshl_b32 s{self.s_tb16}, s{self.s_tb16}, 2
        s_add_u32 s{self.s_tb16}, s{self.s_tb16}, s{self.c.s_wl}
        s_bfe_u32 s{self.s_t0}, s2, 0x10002
        s_lshl_b32 s{self.s_t0}, s{self.s_t0}, 2
        s_lshr_b32 s{self.s_t1}, s2, 6
        s_add_u32 s{self.s_c}, s{self.s_t0}, s{self.s_t1}""")
    def ld_setup(self):
        k = self.c.k
        k(f"""s_mul_i32 s{self.s_wo}, s{self.c.s_wl}, 8
        s_add_u32 s{self.s_wo}, s{self.s_wo}, s{self.s_c}
        s_mul_i32 s{self.s_wo}, s{self.s_wo}, 5120
        s_add_u32 s{self.s_wo}, s{self.s_wo}, {WOP if self.k3 else WDP}
        s_mul_i32 s{self.s_m0}, s{self.c.s_wl}, 5120""")
    def ld_chunk(self, slot):
        k = self.c.k; c = self.c
        k(f"s_add_u32 m0, s{self.s_m0}, {slot*self.SLOT}\ns_add_u32 s{self.s_t2}, s{self.s_wo}, 4096")
        for i in range(4):
            k(f"buffer_load_dwordx4 v{c.vl16}, {sr(c.sO,4)}, s{self.s_wo} offen offset:{i*1024}{c.lsc} lds")
        k(f"s_add_u32 m0, m0, 4096\ns_add_u32 s{self.s_wo}, s{self.s_wo}, {4*40960}")
        k(f"buffer_load_dwordx4 v{c.vl16}, {sr(c.sO,4)}, s{self.s_t2} offen{c.lsc} lds")
    def ld_main(self, issued, init=True):
        k = self.c.k; NCH = self.NCH
        if init: k(f"s_waitcnt vmcnt({5*(issued-1)})\ns_barrier")
        for ch in range(NCH - 1):
            k(f"s_waitcnt vmcnt({5*max(0, issued-ch-2)})\ns_barrier")
            while issued < NCH and issued < ch + self.NSL and issued <= ch + 1 + self.ahead:
                self.ld_chunk(issued % self.NSL); issued += 1
    def setup(self):
        k = self.c.k; c = self.c; vt = self.vt; vl = c.vl
        for i in range(3):
            k(f"""v_add_u32 v{vt[0]}, {64*i}, v{vl}
            v_mul_u32_u24 v{vt[1]}, 6554, v{vt[0]}
            v_lshrrev_b32 v{vt[1]}, 16, v{vt[1]}
            v_mul_u32_u24 v{vt[1]}, {1280-160}, v{vt[1]}
            v_lshl_add_u32 v{self.vrow[i]}, v{vt[0]}, 4, v{vt[1]}""")
        k(f"""s_mul_i32 s{self.s_t1}, s{self.s_tb16}, {16*1280}
        s_mul_i32 s{self.s_t2}, s{self.s_c}, 160
        s_add_u32 s{self.s_t1}, s{self.s_t1}, s{self.s_t2}
        s_waitcnt lgkmcnt(0)
        s_add_u32 s{self.sX}, s{self.sPX}, s{self.s_t1}
        s_addc_u32 s{self.sX+1}, s{self.sPX+1}, 0
        s_sub_u32 s{self.sX+2}, {2048*1280}, s{self.s_t1}
        s_mov_b32 s{self.sX+3}, 0x20000
        s_mul_i32 s{self.s_xs}, s{c.s_wl}, 3072
        s_add_u32 s{self.s_xs}, s{self.s_xs}, {self.XS}""")
        if self.k3:
            k(f"s_mov_b32 m0, s{self.s_xs}")
            for i in range(3):
                k(f"s_nop 0\nbuffer_load_dwordx4 v{self.vrow[i]}, {sr(self.sX,4)}, 0 offen lds")
                if i < 2: k("s_add_u32 m0, m0, 1024")
        k(f"""v_lshrrev_b32 v{vt[0]}, 4, v{vl}
        v_and_b32 v{vt[1]}, 15, v{vl}
        v_lshlrev_b32 v{vt[2]}, 4, v{vt[1]}
        v_lshl_add_u32 v{self.vH}, v{vt[0]}, 9, v{vt[2]}
        v_lshlrev_b32 v{self.vR}, 3, v{vt[1]}
        v_lshl_add_u32 v{self.vR}, v{vt[0]}, 8, v{self.vR}
        s_lshr_b32 s{self.s_t1}, s{self.s_tb16}, 1
        s_mul_i32 s{self.s_t1}, s{self.s_t1}, 40
        s_mul_i32 s{self.s_t2}, s{self.s_c}, 5
        s_add_u32 s{self.s_t1}, s{self.s_t1}, s{self.s_t2}
        s_lshl_b32 s{self.s_t1}, s{self.s_t1}, 10
        s_and_b32 s{self.s_t2}, s{c.s_w}, 1
        s_lshl_b32 s{self.s_t2}, s{self.s_t2}, 8
        s_add_u32 s{self.s_t1}, s{self.s_t1}, s{self.s_t2}
        s_add_u32 s{self.s_ho}, s{self.s_t1}, {HIMG}
        v_mul_u32_u24 v{vt[1]}, 160, v{vt[1]}
        v_lshl_add_u32 v{vt[1]}, v{vt[0]}, 3, v{vt[1]}
        v_add_u32 v{self.vD}, s{self.s_xs}, v{vt[1]}
        v_add_u32 v{self.vA[0]}, {73728 if self.early else 0}, v{c.vl16}
        v_add_u32 v{self.vA[1]}, {(73728 if self.early else 0) + 3*self.SLOT}, v{c.vl16}
        v_add_u32 v{self.vA[2]}, {0 if self.early else 6*self.SLOT}, v{c.vl16}
        s_mul_i32 s{self.s_bo}, s{self.s_tb16}, {self.NU*1024}
        s_add_u32 s{self.s_bo}, s{self.s_bo}, {OIMG if self.k3 else ACT}""")
    def loadB(self, u):
        k = self.c.k; c = self.c
        if self.k3 and u >= 16:
            for j in range(2):
                k(f"buffer_load_dwordx2 {vr(self.fb+4*(u % self.D)+2*j,2)}, v{self.vR}, {sr(c.sO,4)}, s{self.s_bo} offen offset:{(u%4)*1024+128*j}{c.lsc}")
            return 2
        k(f"buffer_load_dwordx4 {vr(self.fb+4*(u % self.D),4)}, v{c.vl16}, {sr(c.sO,4)}, s{self.s_bo} offen offset:{(u%4)*1024}{c.lsc}")
        if u % 4 == 3: k(f"s_add_u32 s{self.s_bo}, s{self.s_bo}, 4096")
        return 1
    def rdA(self, u):
        slot = (u // 4) % self.NSL
        if self.early and slot == 4: slot = 6
        return [f"ds_read_b128 {vr(self.fa[u%3]+4*T,4)}, v{self.vA[slot//3]} offset:{(slot%3)*self.SLOT+((u%4)*5+T)*1024}" for T in range(5)]
    def main(self, init=True, resident=False):
        k = self.c.k; c = self.c; NU = self.NU; D = self.D; res = self.res
        order = []
        def resld():
            k(f"""s_add_u32 s{self.s_t1}, s{self.s_ho}, 4096
            buffer_load_dwordx4 {vr(res,4)}, v{self.vH}, {sr(c.sO,4)}, s{self.s_ho} offen{c.lsc}
            buffer_load_dwordx4 {vr(res+4,4)}, v{self.vH}, {sr(c.sO,4)}, s{self.s_ho} offen offset:2048{c.lsc}
            buffer_load_dwordx4 {vr(res+8,4)}, v{self.vH}, {sr(c.sO,4)}, s{self.s_t1} offen{c.lsc}""")
            order.extend('rrr')
        nxt = 0
        for u in range(self.D0):
            order.extend([u] * self.loadB(u)); nxt += 1
        if not c.fused: k.stamp(2)
        if init: k("s_barrier")
        if not c.fused: k.stamp(3)
        for x in self.rdA(0) + self.rdA(1): k(x)
        for u in range(NU):
            rd = []
            if self.bar8:
                if u % 8 == 6 and u < 48: k("s_barrier")
            elif u % 4 == 2 and u // 4 < self.NCH - 1 and not resident: k("s_barrier")
            if u + 2 < NU: rd = self.rdA(u + 2)
            younger = order[::-1].index(u)
            if u == NU - 1: younger = 0
            k(f"s_waitcnt vmcnt({younger}) lgkmcnt({5 if u + 1 < NU else 0})")
            if u in getattr(self, 'fine', {}): k.stamp(self.fine[u]); k("s_waitcnt lgkmcnt(0)") if K.STAMP else None
            b = self.fb + 4 * (u % D)
            for T in range(5):
                k(f"{MF} {vr(self.acc+4*T,4)}, {vr(self.fa[u%3]+4*T,4)}, {vr(b,4)}, {'0' if u == 0 and not self.cinit else vr(self.acc+4*T,4)}")
                if T < len(rd): k(rd[T])
                if T == 2 and nxt < NU and nxt < u + D:
                    order.extend([nxt] * self.loadB(nxt)); nxt += 1
            if nxt < NU and nxt <= u + D:
                order.extend([nxt] * self.loadB(nxt)); nxt += 1
            if not self.k3 and u == NU - 12: resld()
        if self.k3 and not self.cinit:
            for T in range(5): k(f"ds_read_b64 {vr(self.fa[0]+2*T,2)}, v{self.vD} offset:{T*32}")
            k("s_waitcnt lgkmcnt(0)")
    cinit = False
    lateD = False
    HKEEP = 152576
    def load_cinit(self):
        k = self.c.k; c = self.c; src = self.fa[0]
        if self.k3:
            for T in range(5): k(f"ds_read_b64 {vr(src+2*T,2)}, v{self.vD} offset:{T*32}")
        else:
            for p in range(3): k(f"ds_read_b128 {vr(src+4*p,4)}, v{self.vK} offset:{p*1024}")
        k("s_waitcnt lgkmcnt(0)")
        if not self.k3:
            for p in range(3):
                k(f"v_permlane32_swap_b32 v{src+4*p}, v{src+4*p+2}\nv_permlane32_swap_b32 v{src+4*p+1}, v{src+4*p+3}")
        for T in range(5):
            for d in range(2):
                k(f"v_lshlrev_b32 v{self.acc+4*T+2*d}, 16, v{src+2*T+d}\nv_and_b32 v{self.acc+4*T+2*d+1}, 0xffff0000, v{src+2*T+d}")
    def keep_addr(self):
        k = self.c.k; c = self.c
        k(f"""s_mul_i32 s{self.s_t1}, s{c.s_wl}, 2560
        s_add_u32 s{self.s_t1}, s{self.s_t1}, {self.HKEEP}
        v_add_u32 v{self.vK}, s{self.s_t1}, v{c.vl16}""")
    def setup_pair(self):
        k = self.c.k; c = self.c
        k(f"""s_and_b32 s{self.s_t1}, s{c.s_w}, 1
        s_mul_i32 s{self.s_t2}, s{self.s_t1}, 5120
        v_add_u32 v{self.vA[0]}, s{self.s_t2}, v{c.vl16}
        v_add_u32 v{self.vA[1]}, {3*self.SLOT}, v{self.vA[0]}
        v_add_u32 v{self.vA[2]}, {6*self.SLOT}, v{self.vA[0]}
        s_lshl_b32 s{self.s_t1}, s{self.s_t1}, 10
        s_add_u32 s{self.s_t1}, s{self.s_t1}, {OIMG if self.k3 else ACT}
        s_mul_i32 s{self.s_bo}, s{self.s_tb16}, {self.NU*1024}
        s_add_u32 s{self.s_bo}, s{self.s_bo}, s{self.s_t1}
        s_xor_b32 s{self.s_boY}, s{self.s_tb16}, 1
        s_mul_i32 s{self.s_boY}, s{self.s_boY}, {self.NU*1024}
        s_add_u32 s{self.s_boY}, s{self.s_boY}, s{self.s_t1}
        s_mul_i32 s{self.s_t1}, s{c.s_w}, 5120
        v_add_u32 v{self.vE[0]}, s{self.s_t1}, v{c.vl16}
        s_xor_b32 s{self.s_t1}, s{c.s_w}, 1
        s_mul_i32 s{self.s_t1}, s{self.s_t1}, 5120
        v_add_u32 v{self.vE[1]}, s{self.s_t1}, v{c.vl16}""")
    def main_pair(self):
        k = self.c.k; c = self.c; N = self.NU // 2; D = self.D; res = self.res
        order = []
        def loadB(u, y):
            so = self.s_boY if y else self.s_bo
            k(f"buffer_load_dwordx4 {vr(self.fb+8*(u % D)+4*y,4)}, v{c.vl16}, {sr(c.sO,4)}, s{so} offen offset:{(u%2)*2048}{c.lsc}")
            if u % 2 == 1: k(f"s_add_u32 s{so}, s{so}, 4096")
            order.append((u, y))
        def rdA(u):
            slot = (u // 2) % self.NSL
            return [f"ds_read_b128 {vr(self.fa[u%2]+4*T,4)}, v{self.vA[slot//3]} offset:{(slot%3)*self.SLOT+((u%2)*10+T)*1024}" for T in range(5)]
        q = [(u, y) for u in range(N) for y in range(2)]
        for _ in range(2 * self.D0): loadB(*q.pop(0))
        for x in rdA(0): k(x)
        for u in range(N):
            younger = 0 if u == N - 1 else len(order) - 1 - order.index((u, 1))
            k(f"s_waitcnt vmcnt({younger}) lgkmcnt(0)")
            if u in getattr(self, 'fine', {}): k.stamp(self.fine[u])
            bar = u % 4 == 3 and u < 24
            rd = rdA(u + 1) if u + 1 < N else []
            b = self.fb + 8 * (u % D)
            for i in range(10):
                T = i // 2; y = 1 - (i & 1)
                if u == N - 1: T = i % 5; y = 1 - i // 5
                a = (self.acc, self.accY)[y] + 4 * T
                k(f"{MF} {vr(a,4)}, {vr(self.fa[u%2]+4*T,4)}, {vr(b+4*y,4)}, {'0' if u == 0 and (y or not self.cinit) else vr(a,4)}")
                if bar and i == 1: k("s_barrier")
                j = i - (1 if bar else 0)
                if 0 <= j < len(rd): k(rd[j])
                if i in (5, 7) and q and q[0][0] < u + D: loadB(*q.pop(0))
                if i in (6, 8) and q and q[0][0] < u + D and len(order) < 2 * (u + D) - 2: loadB(*q.pop(0))
            if u == N - 8 and not self.cinit:
                k(f"""s_add_u32 s{self.s_t1}, s{self.s_ho}, 4096
                buffer_load_dwordx4 {vr(res,4)}, v{self.vH}, {sr(c.sO,4)}, s{self.s_ho} offen{c.lsc}
                buffer_load_dwordx4 {vr(res+4,4)}, v{self.vH}, {sr(c.sO,4)}, s{self.s_ho} offen offset:2048{c.lsc}
                buffer_load_dwordx4 {vr(res+8,4)}, v{self.vH}, {sr(c.sO,4)}, s{self.s_t1} offen{c.lsc}""")
                order.extend('rrr')
        assert not q
        for T in range(5): k(f"ds_write_b128 v{self.vE[0]}, {vr(self.accY+4*T,4)} offset:{T*1024}")
        k("s_waitcnt lgkmcnt(0)\ns_barrier")
        for T in range(5): k(f"ds_read_b128 {vr(self.fb+4*T,4)}, v{self.vE[1]} offset:{T*1024}")
        for T in range(5):
            k(f"s_waitcnt lgkmcnt({4-T})")
            for p in range(2): k(f"v_pk_add_f32 {vr(self.acc+4*T+2*p,2)}, {vr(self.acc+4*T+2*p,2)}, {vr(self.fb+4*T+2*p,2)}")
    def epilogue(self):
        k = self.c.k; c = self.c; t = self.vt; acc = self.acc; res = self.res; sO = c.sO; vH = self.vH; sc = c.sc
        pk = self.fa[1]
        if self.k3: k(f"s_mov_b32 s{self.s_cnt}, 0x3f803f80\nv_mov_b32 v{t[0]}, 0\nv_mov_b32 v{t[1]}, 0\nv_mov_b32 v{pk+10}, 0\nv_mov_b32 v{pk+11}, 0")
        if self.cinit:
            for i in range(10): k(f"v_cvt_pk_bf16_f32 v{pk+i}, v{acc+2*i}, v{acc+2*i+1}")
        else:
            src = self.fa[0]
            if not self.k3:
                for p in range(3):
                    k(f"v_permlane32_swap_b32 v{res+4*p}, v{res+4*p+2}\nv_permlane32_swap_b32 v{res+4*p+1}, v{res+4*p+3}")
                src = res
            for T in range(5):
                for d in range(2):
                    x = src + 2 * T + d; a = acc + 4 * T + 2 * d
                    k(f"""v_lshlrev_b32 v{t[2+2*d]}, 16, v{x}
                    v_and_b32 v{t[3+2*d]}, 0xffff0000, v{x}
                    v_add_f32 v{a}, v{a}, v{t[2+2*d]}
                    v_add_f32 v{a+1}, v{a+1}, v{t[3+2*d]}
                    v_cvt_pk_bf16_f32 v{pk+2*T+d}, v{a}, v{a+1}""")
        if self.k3:
            for p in range(3):
                k(f"v_permlane32_swap_b32 v{pk+4*p}, v{pk+4*p+2}\nv_permlane32_swap_b32 v{pk+4*p+1}, v{pk+4*p+3}")
            k(f"""s_add_u32 s{self.s_t1}, s{self.s_ho}, 4096
            buffer_store_dwordx4 {vr(pk,4)}, v{vH}, {sr(sO,4)}, s{self.s_ho} offen{sc}
            buffer_store_dwordx4 {vr(pk+4,4)}, v{vH}, {sr(sO,4)}, s{self.s_ho} offen offset:2048{sc}
            s_mov_b32 exec_hi, 0
            buffer_store_dwordx4 {vr(pk+8,4)}, v{vH}, {sr(sO,4)}, s{self.s_t1} offen{sc}
            s_mov_b32 exec_hi, -1""")
            if self.lateD: k("s_barrier")
            if self.cinit:
                k(f"""ds_write_b128 v{self.vK}, {vr(pk,4)}
                ds_write_b128 v{self.vK}, {vr(pk+4,4)} offset:1024
                s_mov_b32 exec_hi, 0
                ds_write_b128 v{self.vK}, {vr(pk+8,4)} offset:2048
                s_mov_b32 exec_hi, -1""")
            for i in range(12):
                k(f"v_dot2c_f32_bf16 v{t[0]}, s{self.s_cnt}, v{pk+i}\nv_dot2c_f32_bf16 v{t[1]}, v{pk+i}, v{pk+i}")
            k(f"""v_mov_b32 v{t[2]}, v{t[0]}
            v_mov_b32 v{t[3]}, v{t[1]}
            v_permlane32_swap_b32 v{t[2]}, v{t[0]}
            v_permlane32_swap_b32 v{t[3]}, v{t[1]}
            v_add_f32 v{t[0]}, v{t[0]}, v{t[2]}
            v_add_f32 v{t[1]}, v{t[1]}, v{t[3]}
            v_mov_b32 v{t[2]}, v{t[0]}
            v_mov_b32 v{t[3]}, v{t[1]}
            v_permlane16_swap_b32 v{t[2]}, v{t[0]}
            v_permlane16_swap_b32 v{t[3]}, v{t[1]}
            v_add_f32 v{acc}, v{t[0]}, v{t[2]}
            v_add_f32 v{acc+1}, v{t[1]}, v{t[3]}
            v_lshlrev_b32 v{t[4]}, 3, v{c.vl}
            s_lshl_b32 s{self.s_t2}, s{self.s_c}, 14
            s_lshl_b32 s{self.s_t0}, s{self.s_tb16}, 7
            s_add_u32 s{self.s_t2}, s{self.s_t2}, s{self.s_t0}
            s_add_u32 s{self.s_t2}, s{self.s_t2}, {STATS}
            s_mov_b64 exec, 0xffff
            buffer_store_dwordx2 {vr(acc,2)}, v{t[4]}, {sr(sO,4)}, s{self.s_t2} offen{sc}
            s_mov_b64 exec, -1""")
        else:
            for T in range(5): k(f"ds_write_b64 v{self.vD}, {vr(pk+2*T,2)} offset:{T*32}")
            k(f"v_add_u32 v{t[0]}, s{self.s_xs}, v{c.vl16}\ns_waitcnt lgkmcnt(0)")
            for i in range(3): k(f"ds_read_b128 {vr(self.fa[0]+4*i,4)}, v{t[0]} offset:{i*1024}")
            for i in range(3):
                k(f"s_waitcnt lgkmcnt({2-i})")
                if i == 2: k("s_mov_b32 exec_hi, 0")
                k(f"buffer_store_dwordx4 {vr(self.fa[0]+4*i,4)}, v{self.vrow[i]}, {sr(self.sX,4)}, 0 offen{self.ofl}")
            k("s_mov_b32 exec_hi, -1")

class P4:
    CK, NSL, NCH, SLOT = 4, 5, 10, 28672
    CSB = 5 * 28672
    def __init__(self, c, D=12, D0=None):
        self.c = c; k = c.k; self.D = D; self.D0 = D0 or D; self.lds = self.CSB + 1024 + 8192
        c.reset()
        (self.s_tb, self.s_g, self.s_t0, self.s_t1, self.s_t2, self.s_bo, self.s_wo, self.s_m0) = [k.s() for _ in range(8)]
        self.vt = [k.v() for _ in range(4)]; self.vA = [k.v() for _ in range(3)]
        self.st = k.v(8, 4); self.par = k.v(6, 2)
        self.acc = [k.v(16, 4) for _ in range(7)]
        self.fa = [k.v(28, 4), k.v(28, 4)]
        self.fb = k.v(4 * D, 4)
        x = k.v(12, 2); self.ca = [x + 2 * i for i in range(6)] + [self.st + 2]
    def ids(self):
        k = self.c.k
        k(f"""s_and_b32 s{self.s_t0}, s2, 1
        s_lshl_b32 s{self.s_t0}, s{self.s_t0}, 3
        s_bfe_u32 s{self.s_t1}, s2, 0x30003
        s_add_u32 s{self.s_tb}, s{self.s_t0}, s{self.s_t1}
        s_lshl_b32 s{self.s_tb}, s{self.s_tb}, 2
        s_add_u32 s{self.s_tb}, s{self.s_tb}, s{self.c.s_wl}
        s_bfe_u32 s{self.s_t0}, s2, 0x20001
        s_lshl_b32 s{self.s_t0}, s{self.s_t0}, 2
        s_lshr_b32 s{self.s_t1}, s2, 6
        s_add_u32 s{self.s_g}, s{self.s_t0}, s{self.s_t1}""")
    def ld_setup(self):
        k = self.c.k
        k(f"""s_mul_i32 s{self.s_wo}, s{self.c.s_wl}, 16
        s_add_u32 s{self.s_wo}, s{self.s_wo}, s{self.s_g}
        s_mul_i32 s{self.s_wo}, s{self.s_wo}, 7168
        s_add_u32 s{self.s_wo}, s{self.s_wo}, {WGUP}
        s_mul_i32 s{self.s_m0}, s{self.c.s_wl}, 7168""")
    thin = None
    def ld_chunk(self, slot, thin=False):
        k = self.c.k; c = self.c
        k(f"s_add_u32 m0, s{self.s_m0}, {slot*self.SLOT}\ns_add_u32 s{self.s_t2}, s{self.s_wo}, 4096")
        for i in range(4):
            k(f"buffer_load_dwordx4 v{c.vl16}, {sr(c.sO,4)}, s{self.s_wo} offen offset:{i*1024}{c.lsc} lds")
        k(f"s_add_u32 m0, m0, 4096\ns_add_u32 s{self.s_wo}, s{self.s_wo}, {4*112*1024}")
        if thin and self.thin is not None: k(f"s_waitcnt vmcnt({self.thin})")
        for i in range(3):
            k(f"buffer_load_dwordx4 v{c.vl16}, {sr(c.sO,4)}, s{self.s_t2} offen offset:{i*1024}{c.lsc} lds")
    def ld_cs(self):
        k = self.c.k; c = self.c
        k(f"""s_mul_i32 s{self.s_t2}, s{self.s_g}, 896
        s_mov_b32 m0, {self.CSB}
        s_add_u32 s{self.s_t2}, s{self.s_t2}, {CSG}
        buffer_load_dwordx4 v{c.vl16}, {sr(c.sO,4)}, s{self.s_t2} offen{c.lsc} lds""")
    def ld_stats(self):
        k = self.c.k; c = self.c
        k(f"""s_lshr_b32 s{self.s_t0}, s{self.s_tb}, 2
        s_lshl_b32 s{self.s_t0}, s{self.s_t0}, 10
        s_lshl_b32 s{self.s_t1}, s{c.s_wl}, 15
        s_add_u32 s{self.s_t0}, s{self.s_t0}, s{self.s_t1}
        s_add_u32 s{self.s_t0}, s{self.s_t0}, {STATS}
        s_lshl_b32 s{self.s_t1}, s{c.s_wl}, 11
        s_add_u32 m0, s{self.s_t1}, {self.CSB + 1024}
        s_add_u32 s{self.s_t1}, s{self.s_t0}, {16384 - 1024}
        buffer_load_dwordx4 v{c.vl16}, {sr(c.sO,4)}, s{self.s_t0} offen{c.lsc} lds
        buffer_load_dwordx4 v{c.vl16}, {sr(c.sO,4)}, s{self.s_t1} offen offset:1024{c.lsc} lds""")
    def ld_main(self, issued, extra, init=True):
        k = self.c.k; NCH = self.NCH
        if init: k(f"s_waitcnt vmcnt({7*(issued-1)+extra})\ns_barrier")
        nw = 0
        for ch in range(NCH - 1 - self.tmaj):
            k(f"s_waitcnt vmcnt({min(63, 7*max(0, issued-ch-2-(self.tmaj and ch == 7)) + 5*nw)})\ns_barrier")
            while issued < NCH and issued <= ch + self.NSL and issued <= ch + 1 + self.ahead:
                self.ld_chunk(issued % self.NSL, True); issued += 1
            if self.warm and ch >= 4:
                assert issued == NCH
                if ch == 4: self.warm()
                for i_, j in enumerate(self.wsched[ch]):
                    if i_ and self.thin is not None: k(f"s_waitcnt vmcnt({self.thin + 1})")
                    self.warm_chunk(j); nw += 1
    warm = None
    mcorr = True
    lstat = True
    bsched = None
    tmaj = False
    pkall = False
    jstart = 2
    nob = False
    wsched = {4: (), 5: (0, 1), 6: (2, 3), 7: (4, 5), 8: (6,)}
    def setup(self):
        k = self.c.k; c = self.c; vt = self.vt
        k(f"""v_mov_b32 v{self.vA[0]}, v{c.vl16}
        v_add_u32 v{self.vA[1]}, {2*self.SLOT}, v{c.vl16}
        v_add_u32 v{self.vA[2]}, {4*self.SLOT}, v{c.vl16}
        s_mul_i32 s{self.s_bo}, s{self.s_tb}, 40960
        s_add_u32 s{self.s_bo}, s{self.s_bo}, {HIMG}
        v_and_b32 v{vt[0]}, 31, v{c.vl}
        v_lshrrev_b32 v{vt[1]}, 5, v{c.vl}
        v_lshlrev_b32 v{vt[2]}, 3, v{vt[0]}
        v_lshl_add_u32 v{vt[2]}, v{vt[1]}, {12 if self.lstat else 16}, v{vt[2]}""")
        if self.lstat: k(f"""s_lshl_b32 s{self.s_t0}, s{c.s_wl}, 8
        s_add_u32 s{self.s_t0}, s{self.s_t0}, {self.CSB + 1024}
        v_add_u32 v{vt[2]}, s{self.s_t0}, v{vt[2]}""")
        else: k(f"s_lshl_b32 s{self.s_t0}, s{self.s_tb}, 8\ns_add_u32 s{self.s_t0}, s{self.s_t0}, {STATS}")
    def loadB(self, u):
        k = self.c.k; c = self.c
        k(f"buffer_load_dwordx4 {vr(self.fb+4*(u % self.D),4)}, v{c.vl16}, {sr(c.sO,4)}, s{self.s_bo} offen offset:{(u%4)*1024}{c.lsc}")
        if u % 4 == 3: k(f"s_add_u32 s{self.s_bo}, s{self.s_bo}, 4096")
    def rdA(self, u):
        slot = (u // 4) % self.NSL
        return [f"ds_read_b128 {vr(self.fa[u&1]+4*T,4)}, v{self.vA[slot//2]} offset:{(slot%2)*self.SLOT+((u%4)*7+T)*1024}" for T in range(7)]
    def main(self, init=True, endbar=False):
        k = self.c.k; c = self.c; D = self.D; st = self.st
        order = []; nxt = 0; pq = self.params(); assert D == 12; crd, ccv = self.corr_prep()
        for u in range(self.D0):
            self.loadB(u); order.append(u); nxt += 1
        if not c.fused: k.stamp(2)
        if init: k("s_barrier")
        if not c.fused: k.stamp(3)
        for x in self.rdA(0): k(x)
        NS_ = 32 if self.tmaj else 40
        seq = [(T, s_) for T in range(7) for s_ in range(32, 40)]
        def rdF(i):
            T, s_ = seq[i]; slot = (s_ // 4) % self.NSL
            return f"ds_read_b128 {vr(self.fa[0]+4*(i%12),4)}, v{self.vA[slot//2]} offset:{(slot%2)*self.SLOT+((s_%4)*7+T)*1024}"
        for u in range(NS_):
            younger = len(order) - 1 - order.index(u)
            if u == 39: younger = 0
            k(f"s_waitcnt vmcnt({younger}) lgkmcnt(0)")
            if u in getattr(self, 'fine', {}): k.stamp(self.fine[u])
            bar = u % 4 == 3 and (u < 39 or endbar)
            rd = self.rdA(u + 1) if u < 39 else []
            if self.tmaj and u == 31: rd = [rdF(i) for i in range(7)]
            b = self.fb + 4 * (u % D)
            r0 = 2 if bar else 0
            for T in range(7):
                k(f"{M16} {vr(self.acc[T],16)}, {vr(self.fa[u&1]+4*T,4)}, {vr(b,4)}, {'0' if u == 0 else vr(self.acc[T],16)}")
                if bar and T == 1: k("s_barrier")
                if T >= r0 - 1 or not bar:
                    j = T - (r0 - 1 if bar else 0)
                    for x in rd[2*j:2*j+2]: k(x)
                if u == 24 and T == 0 and self.mcorr: assert not pq; pq = crd
                if u == 26 and T == 0 and self.mcorr: assert not pq; pq = ccv
                if u >= 17 and T >= 4:
                    for x in pq[:2]: k(x)
                    del pq[:2]
                if self.bsched and u >= 4:
                    if u % 4 in self.bsched and T in ((1, 3, 5) if self.tmaj and u >= 17 else (3, 5)) and nxt < 40 and nxt < u + D:
                        self.loadB(nxt); order.append(nxt); nxt += 1
                elif T == 5 and nxt < 40 and nxt < u + D:
                    self.loadB(nxt); order.append(nxt); nxt += 1
            if nxt < 40 and nxt <= u + D and not (self.bsched and u >= 4):
                if not self.nob: self.loadB(nxt)
                order.append(nxt); nxt += 1
            if u == 16 and self.lstat:
                for i in range(4): k(f"ds_read_b64 {vr(st+2*i,2)}, v{self.vt[2]} offset:{i*1024}")
            if 4 <= u < 12 and u % 2 == 0 and not self.lstat:
                i = (u - 4) // 2
                k(f"buffer_load_dwordx2 {vr(st+2*i,2)}, v{self.vt[2]}, {sr(c.sO,4)}, s{self.s_t0} offen{c.lsc}")
                if i < 3: k(f"s_add_u32 s{self.s_t0}, s{self.s_t0}, 16384")
                order.append('s')
            if u == 38 and self.mcorr: k(self.corr(0))
            if u == 39: assert not pq
        if not self.tmaj: return
        assert not pq and nxt == 40 and self.mcorr
        par = self.par; t = self.vt; tmp = self.fa[0] + 48
        def epi(T, packed):
            A = self.acc[T]; e = []
            def op(pk, pl, n, *regs):
                if packed: e.extend(f"{pk} " + ", ".join(vr(r + 2*p if inc else r, 2) for r, inc in regs) for p in range(4))
                else: e.extend(f"{pl} " + ", ".join(f"v{r + p if inc else r}" for r, inc in regs) for p in range(8))
            op("v_pk_mul_f32", "v_mul_f32", 3, (tmp, 1), (A, 1), (par+2, 0))
            e.extend(f"v_exp_f32 v{tmp+i}, v{tmp+i}" for i in range(8))
            op("v_pk_mul_f32", "v_mul_f32", 3, (A, 1), (A, 1), (A+8, 1))
            op("v_pk_fma_f32", "v_fma_f32", 4, (tmp, 1), (tmp, 1), (par+4, 0), (par+4, 0))
            e.extend(f"v_rcp_f32 v{tmp+i}, v{tmp+i}" for i in range(8))
            op("v_pk_mul_f32", "v_mul_f32", 3, (A, 1), (A, 1), (tmp, 1))
            e.extend(f"v_cvt_pk_bf16_f32 v{A+8+p}, v{A+2*p}, v{A+2*p+1}" for p in range(4))
            if T == 3: e.append(f"s_cmp_eq_u32 s{self.s_g}, 15\ns_cselect_b32 s{self.s_t0}, {WSEND}, s{self.s_t0}")
            e.append(f"buffer_store_dwordx4 {vr(A+8,4)}, v{t[2]}, {sr(c.sO,4)}, s{self.s_t0} offen offset:{T*512}{c.sc}")
            return e
        lg = list(range(7))
        work = []
        k(self.corr(0))
        for i, (T, s_) in enumerate(seq):
            vmw = f"vmcnt({len(order) - 1 - order.index(s_)}) " if T == 0 else ""
            if i % 2 == 0 or T == 0:
                last = min(i + (0 if T == 0 else 1), 55)
                n = len(lg) - 1 - lg.index(last) if last in lg else None
                if n is not None:
                    k(f"s_waitcnt {vmw}lgkmcnt({min(n, 15)})"); del lg[:len(lg) - min(n, 15)]
                elif vmw: k(f"s_waitcnt {vmw}")
                if i == 50 and endbar: k("s_waitcnt lgkmcnt(0)\ns_barrier"); lg.clear()
            k(f"{M16} {vr(self.acc[T],16)}, {vr(self.fa[0]+4*(i%12),4)}, {vr(self.fb+4*(s_%D),4)}, {vr(self.acc[T],16)}")
            if i + 7 < 56: k(rdF(i + 7)); lg.append(i + 7)
            j = i % 8
            if j == 7:
                for x in work: k(x)
                if getattr(self, 'fine2', False): k.stamp(2 + T)
                if T < 6: k(self.corr(T + 1))
                work = epi(T, T == 6 or self.pkall)
            elif work and j >= self.jstart:
                n = -(-len(work) // (8 - j))
                for x in work[:n]: k(x)
                del work[:n]
        for x in work: k(x)
        if getattr(self, 'fine2', False): k.stamp(9)
    def params(self):
        c = self.c; t = self.vt; st = self.st; par = self.par; vl = c.vl
        return [x.strip() for x in f"""v_lshrrev_b32 v{t[0]}, 5, v{vl}
        {f"v_and_b32 v{t[1]}, 31, v{vl}" if self.mcorr else f"v_lshlrev_b32 v{t[1]}, 2, v{t[0]}"}
        v_lshlrev_b32 v{t[1]}, 2, v{t[1]}
        v_add_u32 v{t[1]}, {self.CSB}, v{t[1]}
        v_add_f32 v{st}, v{st}, v{st+2}
        v_add_f32 v{st+1}, v{st+1}, v{st+3}
        v_add_f32 v{st+4}, v{st+4}, v{st+6}
        v_add_f32 v{st+5}, v{st+5}, v{st+7}
        v_add_f32 v{st}, v{st}, v{st+4}
        v_add_f32 v{st+1}, v{st+1}, v{st+5}
        v_mov_b32 v{st+2}, v{st}
        v_mov_b32 v{st+3}, v{st+1}
        v_bfe_u32 v{t[2]}, v{vl}, 4, 1
        v_mul_u32_u24 v{t[2]}, 55296, v{t[2]}
        v_permlane32_swap_b32 v{st+2}, v{st}
        v_permlane32_swap_b32 v{st+3}, v{st+1}
        v_add_f32 v{st}, v{st}, v{st+2}
        v_add_f32 v{st+1}, v{st+1}, v{st+3}
        v_mul_f32 v{par}, {f2u(-1.0/640):#x}, v{st}
        v_mul_f32 v{st+1}, {f2u(1.0/640):#x}, v{st+1}
        v_fma_f32 v{st+1}, -v{par}, v{par}, v{st+1}
        v_max_f32 v{st+1}, 0, v{st+1}
        v_add_f32 v{par+4}, {f2u(1e-5):#x}, v{st+1}
        v_rsq_f32 v{par+2}, v{par+4}
        v_cmp_gt_u32 vcc, 32, v{vl}
        v_mov_b32 v{par+5}, v{par+4}
        v_mul_f32 v{par+2}, {f2u(-math.log2(math.e)):#x}, v{par+2}
        v_lshl_add_u32 v{t[2]}, v{t[0]}, 8, v{t[2]}
        v_mov_b32 v{par+3}, v{par+2}
        v_and_b32 v{t[3]}, 15, v{vl}
        v_lshl_add_u32 v{t[2]}, v{t[3]}, 4, v{t[2]}
        s_mul_i32 s{self.s_t0}, s{self.s_tb}, {2*55296}
        s_mul_i32 s{self.s_t1}, s{self.s_g}, 3584
        s_add_u32 s{self.s_t0}, s{self.s_t0}, s{self.s_t1}
        s_add_u32 s{self.s_t0}, s{self.s_t0}, {ACT}
        v_cndmask_b32 v{par}, 0, v{par}, vcc
        v_cvt_pk_bf16_f32 v{st+4}, v{par}, v{par}
        v_and_b32 v{par+1}, 0xffff0000, v{st+4}
        v_sub_f32 v{par+1}, v{par}, v{par+1}
        v_cvt_pk_bf16_f32 v{st+5}, v{par+1}, 0""".split("\n")][:None if self.mcorr else -5] + ([] if self.mcorr else [f"v_mov_b32 v{par+1}, v{par}"])
    def corr_prep(self):
        rd = [f"ds_read_b32 v{self.ca[T]}, v{self.vt[1]} offset:{T*128}" for T in range(7)]
        cv = []
        for T in range(7):
            a = self.ca[T]; h = self.st + 6 + (T & 1)
            cv += [f"v_cvt_pk_bf16_f32 v{a+1}, v{a}, 0", f"v_lshlrev_b32 v{h}, 16, v{a+1}", f"v_sub_f32 v{a}, v{a}, v{h}", f"v_cvt_pk_bf16_f32 v{a}, v{h}, v{a}"]
        return rd, cv
    def corr(self, T): return f"{M8} {vr(self.acc[T],16)}, {vr(self.ca[T],2)}, {vr(self.st+4,2)}, {vr(self.acc[T],16)}"
    def epilogue(self, L_fin):
        k = self.c.k; c = self.c; t = self.vt; st = self.st; par = self.par; vl = c.vl
        tmp = self.fa[0] if self.mcorr else self.fb
        cs = [self.fa[0], self.fa[0] + 16, self.fa[0] + 32]
        def rdcs(T):
            for j in range(4): k(f"ds_read_b128 {vr(cs[T%3]+4*j,4)}, v{t[1]} offset:{T*128+32*j}")
        if not self.mcorr: rdcs(0); rdcs(1)
        for T in range(7):
            A = self.acc[T]; cc = cs[T % 3]
            if self.mcorr:
                if T + 1 < 7: k(self.corr(T + 1))
            else:
                if T + 2 < 7: rdcs(T + 2)
                k(f"s_waitcnt lgkmcnt({4*min(2, 6-T)})")
                for p in range(8): k(f"v_pk_fma_f32 {vr(A+2*p,2)}, {vr(cc+2*p,2)}, {vr(par,2)}, {vr(A+2*p,2)}")
            for p in range(4): k(f"v_pk_mul_f32 {vr(tmp+2*p,2)}, {vr(A+2*p,2)}, {vr(par+2,2)}")
            for i in range(8): k(f"v_exp_f32 v{tmp+i}, v{tmp+i}")
            for p in range(4): k(f"v_pk_mul_f32 {vr(A+2*p,2)}, {vr(A+2*p,2)}, {vr(A+8+2*p,2)}")
            for p in range(4): k(f"v_pk_fma_f32 {vr(tmp+2*p,2)}, {vr(tmp+2*p,2)}, {vr(par+4,2)}, {vr(par+4,2)}")
            for i in range(8): k(f"v_rcp_f32 v{tmp+i}, v{tmp+i}")
            for p in range(4): k(f"v_pk_mul_f32 {vr(A+2*p,2)}, {vr(A+2*p,2)}, {vr(tmp+2*p,2)}")
            for p in range(4): k(f"v_cvt_pk_bf16_f32 v{A+8+p}, v{A+2*p}, v{A+2*p+1}")
            k(f"buffer_store_dwordx4 {vr(A+8,4)}, v{t[2]}, {sr(c.sO,4)}, s{self.s_t0} offen offset:{T*512}{c.sc}")
            if T == 2: k(f"s_cmp_eq_u32 s{self.s_g}, 15\ns_cbranch_scc1 {L_fin}")
        k(f"{L_fin}:")

def gen(which, opt):
    if which in '35':
        o = opt('K' + which)
        c = Ctx("k3_oproj_kernel" if which == '3' else "k5_down_kernel", False); k = c.k
        P = P35(c, int(which), D=o.get('D', 12 if which == '5' else 20)); P.ahead = o.get('ahead', 2)
        c.entry(int(which) - 1, P.ptr_load())
        P.ids(); c.ws_srd()
        L = k.label("ld"); lw(c, L)
        P.setup(); P.main(); k.stamp(4); k.stamp(5); P.epilogue(); c.finish()
        k(f"{L}:"); P.ld_setup()
        for ch in range(2): P.ld_chunk(ch)
        P.ld_main(2); k("s_endpgm")
        return k, (256, 512, P.lds)
    if which == '4':
        o = opt('K4')
        c = Ctx("k4_gateup_kernel", False); k = c.k
        P = P4(c, D=o.get('D', 12)); P.ahead = o.get('ahead', 2)
        c.entry(3); P.ids(); c.ws_srd()
        L = k.label("ld"); lw(c, L)
        P.setup(); P.main(); k.stamp(4); k.stamp(5); P.epilogue(k.label("fin")); c.finish()
        k(f"{L}:"); P.ld_setup()
        for ch in range(2): P.ld_chunk(ch)
        P.ld_cs(); P.ld_stats()
        P.ld_main(2, 3); k("s_endpgm")
        return k, (256, 512, P.lds)
    import mega
    return mega.gen(opt)
```

```python
from ph2 import *
NAME = "sequential_preLN__softmax_full_mha__swiglu_ffn__prompt_kernel"

def gen(opt):
    o = opt('M')
    c = Ctx(NAME, True); k = c.k
    sO = c.sO; sWS = c.sWS; s_w = c.s_w; s_wl = c.s_wl; vl = c.vl; vl16 = c.vl16; sc = c.sc
    rot = o.get('rot', True); c.pdepth = o.get('pd', 1)
    sD = k.s(4)
    s_po = k.s(); s_cs = k.s(); vPA = k.v(); vPS = k.v(); sA = k.s(4); sB = k.s(4); sR = [k.s() for _ in range(5)]
    c.s0 = k.snext; c.v0 = k.vnext
    SLOT = 32768; NS = 4
    SL = 12288; VB = 3 * SL; PREP = 6 * SL; EXB = PREP
    sP = k.s(4); sX = sA; sW = sB; sQ = k.s(8); sWD = k.s(2); sPC = k.s(2)
    s_tb = k.s(); s_cg = k.s(); s_t0 = k.s(); s_t2 = k.s()
    s_ow, s_m0x, s_slot, s_delta, s_t1 = sR
    s_ox = k.s(); s_cnt = k.s(); s_rs = k.s(); s_msk = k.s()
    vt = [k.v() for _ in range(6)]
    vXA = [k.v() for _ in range(4)]; vWA = [k.v(), k.v()]
    vX = [k.v() for _ in range(4)]; vW = [k.v() for _ in range(4)]
    acc = [[k.v(16, 4) for _ in range(2)] for _ in range(2)]
    fx = [[k.v(4, 4) for _ in range(2)] for _ in range(2)]
    fw = [[k.v(4, 4) for _ in range(2)] for _ in range(2)]
    acs = k.v(16, 4); ones = k.v(4, 4); vpf = k.v(16, 4)
    XCH = NS * SLOT; NM, RS, CS = 0, 512, 1024
    L_spare = k.label("spare"); L_v = k.label("vpath"); L_J0 = k.label("J0"); L_comp = k.label("comp")
    k.kidx = 1; k.stamp_real(0); k.stamp(1)
    k(f"""s_load_dwordx4 {sr(sP,4)}, s[0:1], {KA_X}
    s_load_dwordx4 {sr(sD,4)}, s[0:1], {KA_DBG}
    s_cmp_ge_u32 s2, 256
    s_cbranch_scc1 {c.L_end}
    v_lshrrev_b32 v{vt[0]}, 6, v0
    v_and_b32 v{vl}, 63, v0
    v_readfirstlane_b32 s{s_w}, v{vt[0]}
    s_and_b32 s{s_t0}, s2, 3
    s_lshl_b32 s{s_t0}, s{s_t0}, 2
    s_bfe_u32 s{s_t1}, s2, 0x20003
    s_add_u32 s{s_tb}, s{s_t0}, s{s_t1}
    s_bfe_u32 s{s_t0}, s2, 0x10002
    s_lshr_b32 s{s_t1}, s2, 5""")
    if o.get('sfirst', True): k(f"s_sub_u32 s{s_t1}, s{s_t1}, s{s_t0}\ns_and_b32 s{s_t1}, s{s_t1}, 7")
    k(f"""s_lshl_b32 s{s_t0}, s{s_t0}, 3
    s_add_u32 s{s_cg}, s{s_t0}, s{s_t1}
    s_and_b32 s{s_wl}, s{s_w}, 3
    s_cmp_eq_u32 s{s_cg}, 15
    s_cbranch_scc1 {L_spare}
    s_cmp_ge_u32 s{s_w}, 4
    s_cbranch_scc1 {L_comp}
    v_lshrrev_b32 v{vt[0]}, 3, v{vl}
    v_lshl_add_u32 v{vt[0]}, s{s_w}, 5, v{vt[0]}
    v_mul_u32_u24 v{vt[0]}, 1280, v{vt[0]}
    v_lshrrev_b32 v{vt[1]}, 4, v{vl}
    v_and_b32 v{vt[2]}, 7, v{vl}
    v_xor_b32 v{vt[2]}, v{vt[2]}, v{vt[1]}
    v_lshl_add_u32 v{vX[0]}, v{vt[2]}, 4, v{vt[0]}
    v_xor_b32 v{vX[1]}, 64, v{vX[0]}
    v_add_u32 v{vX[2]}, {2*(8*1280-1024)}, v{vX[0]}
    v_add_u32 v{vX[1]}, {8*1280-1024}, v{vX[1]}
    v_add_u32 v{vX[3]}, {2*(8*1280-1024)}, v{vX[1]}
    v_lshl_add_u32 v{vt[0]}, s{s_w}, 4, v{vt[1]}
    v_mul_u32_u24 v{vt[0]}, 3840, v{vt[0]}
    v_and_b32 v{vt[2]}, 15, v{vl}
    v_lshlrev_b32 v{vt[3]}, 2, v{vt[1]}
    v_xor_b32 v{vt[2]}, v{vt[2]}, v{vt[3]}
    v_lshl_add_u32 v{vW[0]}, v{vt[2]}, 4, v{vt[0]}
    v_add_u32 v{vW[1]}, {4*3840-1024}, v{vW[0]}
    v_add_u32 v{vW[2]}, {2*(4*3840-1024)}, v{vW[0]}
    v_add_u32 v{vW[3]}, {3*(4*3840-1024)}, v{vW[0]}
    s_mul_i32 s{s_t0}, s{s_tb}, {128*1280}
    s_lshl_b32 s{s_t1}, s{s_cg}, 8
    s_lshl_b32 s{s_m0x}, s{s_w}, 12
    s_mov_b32 s{sX+2}, {128*1280}
    s_mov_b32 s{sX+3}, 0x20000
    s_sub_u32 s{sW+2}, {640*3840}, s{s_t1}
    s_mov_b32 s{sW+3}, 0x20000""")
    r0 = o.get('rot0', 1)
    if rot and not r0: k(f"s_and_b32 s{s_t2}, s2, 7\ns_lshl_b32 s{s_ox}, s{s_t2}, 7\ns_mul_i32 s{s_ow}, s{s_t2}, {64*3840}")
    else: k(f"s_mov_b32 s{s_ox}, 0\ns_mov_b32 s{s_ow}, 0")
    k(f"""s_waitcnt lgkmcnt(0)
    s_add_u32 s{sX}, s{sP}, s{s_t0}
    s_addc_u32 s{sX+1}, s{sP+1}, 0
    s_add_u32 s{sW}, s{sP+2}, s{s_t1}
    s_addc_u32 s{sW+1}, s{sP+3}, 0""")
    def dma_chunk(slot_const=None):
        if slot_const is not None: k(f"s_add_u32 m0, s{s_m0x}, {slot_const*SLOT}")
        else: k(f"s_add_u32 m0, s{s_m0x}, s{s_rs}")
        k(f"s_add_u32 s{s_t0}, s{s_ox}, 128")
        for i in range(4):
            k(f"buffer_load_dwordx4 v{vX[i]}, {sr(sX,4)}, s{s_ox} offen offset:{i*1024} lds")
        k(f"s_add_u32 m0, m0, 16384\ns_add_u32 s{s_t1}, s{s_ow}, {64*3840}")
        for i in range(4):
            k(f"buffer_load_dwordx4 v{vW[i]}, {sr(sW,4)}, s{s_ow} offen offset:{i*1024} lds")
        if r0 and slot_const == r0 - 1:
            k(f"s_and_b32 s{s_t2}, s2, 7\ns_add_u32 s{s_t2}, s{s_t2}, {r0}\ns_lshl_b32 s{s_ox}, s{s_t2}, 7\ns_mul_i32 s{s_ow}, s{s_t2}, {64*3840}")
        else:
            k(f"s_cmp_eq_u32 s{s_t0}, 1280\ns_cselect_b32 s{s_ox}, {128*r0}, s{s_t0}\ns_cselect_b32 s{s_ow}, {64*3840*r0}, s{s_t1}")
    def common_setup(ptrs=True):
        k(f"""s_mov_b64 {sr(sWS,2)}, {sr(sD+2,2)}
        s_movk_i32 s{sD+2}, 256
        s_mov_b32 s{sD+3}, 0x20000
        v_lshlrev_b32 v{vl16}, 4, v{vl}""")
        srd(k, sO, sWS, sWS + 1, WSEND)
        if ptrs: k(f"s_load_dwordx8 {sr(sQ,8)}, s[0:1], {KA_WO}\ns_load_dwordx2 {sr(sWD,2)}, s[0:1], {KA_WD}")
    def xaddr():
        k(f"""v_and_b32 v{vt[0]}, 31, v{vl}
        v_lshrrev_b32 v{vt[1]}, 5, v{vl}
        v_bfe_u32 v{vt[2]}, v{vl}, 1, 3
        v_xor_b32 v{vt[2]}, v{vt[2]}, v{vt[1]}
        v_lshlrev_b32 v{vt[2]}, 4, v{vt[2]}
        v_lshl_add_u32 v{vt[2]}, v{vt[0]}, 7, v{vt[2]}""")
    def advance(regs):
        k(f"s_cmp_eq_u32 s{s_slot}, {(NS-1)*SLOT}\ns_mov_b32 s{s_delta}, {SLOT}")
        k(f"s_cselect_b32 s{s_delta}, {(-(NS-1)*SLOT) & 0xffffffff}, s{s_delta}")
        k(f"s_add_u32 s{s_slot}, s{s_slot}, s{s_delta}")
        return [f"v_add_u32 v{r}, s{s_delta}, v{r}" for r in regs]
    def prep_decode(loads):
        pid, cb, st = s_t0, s_t2, s_ox
        R0, A_, B_, C_, u = sR
        Ld = k.label("pd"); Lg = k.label("pg")
        k(f"""s_lshl_b32 s{pid}, s2, 2
        s_add_u32 s{pid}, s{pid}, s{s_wl}
        s_mov_b32 s{B_}, 8
        s_mov_b32 s{C_}, 4
        v_bfe_u32 v{vt[2]}, v{vl}, 4, 1
        v_lshrrev_b32 v{vt[1]}, 5, v{vl}
        s_waitcnt lgkmcnt(0)
        s_cmp_ge_u32 s{pid}, 560
        s_cbranch_scc1 {Ld}
        s_mul_i32 s{u}, s{pid}, 4682
        s_lshr_b32 s{u}, s{u}, 16
        s_mul_i32 s{cb}, s{u}, 14
        s_sub_u32 s{cb}, s{pid}, s{cb}
        s_mul_i32 s{s_po}, s{u}, {112*1024}
        s_add_u32 s{s_po}, s{s_po}, {WGUP}
        s_mov_b32 s{s_cs}, {CSG}
        v_lshlrev_b32 v{vt[2]}, 11, v{vt[2]}
        v_lshl_add_u32 v{vt[3]}, v{vt[1]}, 9, v{vt[2]}""")
        if loads:
            k(f"""s_lshl_b32 s{R0}, s{u}, 4
            s_mov_b32 s{A_}, 0
            s_movk_i32 s{st}, 3456
            s_mov_b64 {sr(sA,2)}, {sr(sQ+4,2)}
            s_mov_b64 {sr(sB,2)}, {sr(sQ+6,2)}
            s_mov_b32 s{sA+2}, {640*3456}""")
        k(f"""s_branch {Lg}
        {Ld}:
        s_min_u32 s{pid}, s{pid}, 929
        s_cmp_lt_u32 s{pid}, 830
        s_movk_i32 s{cb}, 830
        s_cselect_b32 s{cb}, 560, s{cb}
        s_mov_b32 s{s_po}, {WOP}
        s_cselect_b32 s{s_po}, {WDP}, s{s_po}""")
        if loads:
            k(f"""s_cselect_b64 {sr(sA,2)}, {sr(sWD,2)}, {sr(sQ,2)}
            s_cselect_b32 s{A_}, 16, 20
            s_cselect_b32 s{R0}, 32, 40
            s_mov_b32 s{sA+2}, {640*1280}
            s_cselect_b32 s{sA+2}, {1728*1280}, s{sA+2}""")
        k(f"""s_sub_u32 s{cb}, s{pid}, s{cb}
        s_mul_i32 s{u}, s{cb}, 13108
        s_lshr_b32 s{u}, s{u}, 16
        s_mul_i32 s{st}, s{u}, 5
        s_sub_u32 s{cb}, s{cb}, s{st}
        s_mul_i32 s{st}, s{u}, {40*1024}
        s_add_u32 s{s_po}, s{s_po}, s{st}
        s_mov_b32 s{s_cs}, {WSEND}
        v_lshlrev_b32 v{vt[2]}, 9, v{vt[2]}
        v_lshl_add_u32 v{vt[3]}, v{vt[1]}, 11, v{vt[2]}""")
        if loads:
            k(f"""s_mul_i32 s{R0}, s{R0}, s{u}
            s_mul_i32 s{st}, s{u}, 160
            s_sub_u32 s{st}, s{st}, {16*160-16}
            s_cmp_ge_u32 s{pid}, 910
            s_cselect_b32 s{R0}, s{st}, s{R0}
            s_cselect_b32 s{A_}, 80, s{A_}
            s_cselect_b32 s{B_}, 20, 8
            s_cselect_b32 s{C_}, 40, 4
            s_movk_i32 s{st}, 1280
            s_mov_b64 {sr(sB,2)}, {sr(sA,2)}""")
        k(f"""{Lg}:
        s_lshl_b32 s{cb}, s{cb}, 1
        s_lshr_b32 s{pid}, s{s_w}, 2
        s_add_u32 s{pid}, s{pid}, s{cb}
        s_lshl_b32 s{u}, s{pid}, 12
        s_add_u32 s{s_po}, s{s_po}, s{u}
        s_lshl_b32 s{u}, s{pid}, 9
        s_add_u32 s{s_cs}, s{s_cs}, s{u}
        v_bfe_u32 v{vt[2]}, v{vl}, 2, 2
        v_lshl_add_u32 v{vt[3]}, v{vt[2]}, 7, v{vt[3]}
        v_and_b32 v{vt[2]}, 3, v{vl}
        v_lshl_add_u32 v{vt[3]}, v{vt[2]}, 3, v{vt[3]}
        s_lshl_b32 s{u}, s{s_w}, 12
        s_add_u32 s{u}, s{u}, {PREP}
        v_add_u32 v{vPA}, s{u}, v{vt[3]}""")
        if loads:
            k(f"""s_mov_b32 s{sB+2}, s{sA+2}
            s_mov_b32 s{sA+3}, 0x20000
            s_mov_b32 s{sB+3}, 0x20000
            v_mul_u32_u24 v{vt[2]}, s{C_}, v{vt[1]}
            v_bfe_u32 v{vt[3]}, v{vl}, 3, 2
            v_add_u32 v{vt[2]}, v{vt[2]}, v{vt[3]}
            v_mul_u32_u24 v{vt[2]}, s{st}, v{vt[2]}
            v_and_b32 v{vt[3]}, 7, v{vl}
            v_lshl_add_u32 v{vPS}, v{vt[3]}, 4, v{vt[2]}
            s_mul_i32 s{R0}, s{R0}, s{st}
            s_lshl_b32 s{cb}, s{pid}, 7
            s_add_u32 s{R0}, s{R0}, s{cb}
            s_mul_i32 s{A_}, s{A_}, s{st}
            s_mul_i32 s{B_}, s{B_}, s{st}
            s_add_u32 s{A_}, s{A_}, s{R0}
            s_add_u32 s{C_}, s{A_}, s{B_}
            s_add_u32 s{B_}, s{B_}, s{R0}""")
    TD = o.get('TD', 0)
    sTX, sTW = sQ, sQ + 4; s_tx, s_tw = sWD, sWD + 1; vTX, vTW = vXA[0], vXA[1]
    def touch():
        k(f"""s_mov_b64 exec, 0xf
        buffer_load_dword v{vXA[2]}, v{vTX}, {sr(sTX,4)}, s{s_tx} offen
        s_mov_b64 exec, 0xff
        buffer_load_dword v{vXA[3]}, v{vTW}, {sr(sTW,4)}, s{s_tw} offen
        s_mov_b64 exec, -1
        s_add_u32 s{s_tx}, s{s_tx}, 128
        s_add_u32 s{s_tw}, s{s_tw}, {64*3840}
        s_cmp_eq_u32 s{s_tx}, 1280
        s_cselect_b32 s{s_tx}, 0, s{s_tx}
        s_cselect_b32 s{s_tw}, 0, s{s_tw}""")
    dma_chunk(0); dma_chunk(1)
    if TD:
        k(f"""s_mov_b64 {sr(sTX,2)}, {sr(sP,2)}
        s_mov_b32 s{sTX+2}, {2048*1280}
        s_mov_b32 s{sTX+3}, 0x20000
        s_mov_b64 {sr(sTW,2)}, {sr(sP+2,2)}
        s_mov_b32 s{sTW+2}, {640*3840}
        s_mov_b32 s{sTW+3}, 0x20000
        s_lshr_b32 s{s_t0}, s2, 3
        s_lshl_b32 s{s_t0}, s{s_t0}, 2
        s_add_u32 s{s_t0}, s{s_t0}, s{s_w}
        s_lshl_b32 s{s_t1}, s{s_t0}, 2
        s_and_b32 s{s_t2}, s2, 3
        s_lshl_b32 s{s_t2}, s{s_t2}, 9
        s_add_u32 s{s_t1}, s{s_t1}, s{s_t2}
        v_add_u32 v{vTX}, s{s_t1}, v{vl}
        v_mul_u32_u24 v{vTX}, 1280, v{vTX}
        s_lshr_b32 s{s_t1}, s{s_t0}, 1
        s_mul_i32 s{s_t1}, s{s_t1}, 3840
        s_and_b32 s{s_t0}, s{s_t0}, 1
        s_lshl_b32 s{s_t0}, s{s_t0}, 10
        s_add_u32 s{s_t1}, s{s_t1}, s{s_t0}
        s_bfe_u32 s{s_t0}, s2, 0x10002
        s_lshl_b32 s{s_t0}, s{s_t0}, 11
        s_add_u32 s{s_t1}, s{s_t1}, s{s_t0}
        v_lshl_add_u32 v{vTW}, v{vl}, 7, s{s_t1}
        s_mov_b32 s{s_tx}, s{s_ox}
        s_mov_b32 s{s_tw}, s{s_ow}""")
        for _ in range(TD + 1): touch()
    common_setup(ptrs=not TD)
    k(f"""s_mov_b32 s{s_rs}, {3*SLOT}
    s_waitcnt vmcnt({8 + (2*TD+2 if TD else 0)})
    s_barrier""")
    k.stamp(2)
    dma_chunk(2)
    L = k.label("hloop"); Lz = k.label("hz"); Lzx = k.label("hzx"); Lnz = k.label("hnz")
    nt = 7 - TD if TD else 0
    def hit(n, tch, vm):
        if n <= 0: return
        L = k.label("hloop")
        k(f"s_mov_b32 s{s_cnt}, {n}\n{L}:\ns_waitcnt vmcnt({vm})\ns_barrier")
        dma_chunk()
        if tch: touch()
        k(f"""s_add_u32 s{s_rs}, s{s_rs}, {SLOT}
        s_and_b32 s{s_rs}, s{s_rs}, {NS*SLOT-1}
        s_sub_u32 s{s_cnt}, s{s_cnt}, 1
        s_cmp_lg_u32 s{s_cnt}, 0
        s_cbranch_scc1 {L}""")
    hit(nt, True, 8 if not TD else 10); hit(7 - nt, False, 8)
    if TD: k(f"s_load_dwordx8 {sr(sQ,8)}, s[0:1], {KA_WO}\ns_load_dwordx2 {sr(sWD,2)}, s[0:1], {KA_WD}")
    Lw0 = k.label("hw0")
    k(f"""s_cmp_eq_u32 s{s_w}, 0
    s_cbranch_scc1 {Lw0}
    s_waitcnt vmcnt(8)
    s_barrier
    s_waitcnt vmcnt(0)
    s_barrier
    s_branch {Lnz}
    {Lw0}:
    v_and_b32 v{vt[3]}, 15, v{vl}
    v_lshlrev_b32 v{vt[3]}, 4, v{vt[3]}
    buffer_load_dword v{vt[4]}, v{vt[3]}, {sr(sD,4)}, 0 offen sc1
    s_waitcnt vmcnt(9)
    s_barrier
    s_waitcnt vmcnt(1)
    s_barrier
    s_mov_b32 s{s_t1}, 0
    {Lz}:
    s_waitcnt vmcnt(0)
    v_cmp_ne_u32 vcc, 0, v{vt[4]}
    s_add_u32 s{s_t1}, s{s_t1}, 1
    s_cmp_eq_u64 vcc, -1
    s_cbranch_scc1 {Lzx}
    s_cmp_gt_u32 s{s_t1}, 0x40000
    s_cbranch_scc1 {Lzx}
    buffer_load_dword v{vt[4]}, v{vt[3]}, {sr(sD,4)}, 0 offen sc1
    s_branch {Lz}
    {Lzx}:
    s_mov_b32 m0, {XCH}
    s_lshl_b32 s{s_t0}, s{s_tb}, 10
    s_add_u32 s{s_t0}, s{s_t0}, {LN1}
    buffer_load_dwordx4 v{vl16}, {sr(sO,4)}, s{s_t0} offen sc1 lds
    {Lnz}:
    s_waitcnt vmcnt(0)""")
    k.stamp(3)
    k(f"s_barrier\ns_branch {L_J0}")
    k(f"""{L_comp}:
    s_getpc_b64 {sr(sPC,2)}
    L_pf_here:
    s_lshr_b32 s{s_t0}, s2, 3
    s_add_u32 s{s_t0}, s{s_t0}, {28 if o.get('sfirst', True) else 0}
    s_and_b32 s{s_t0}, s{s_t0}, 31
    s_lshl_b32 s{s_t0}, s{s_t0}, 2
    s_add_u32 s{s_t0}, s{s_t0}, s{s_wl}
    s_lshl_b32 s{s_t0}, s{s_t0}, 10
    s_sub_u32 s{sPC}, s{sPC}, L_pf_here - {NAME}
    s_subb_u32 s{sPC+1}, s{sPC+1}, 0
    s_cmp_gt_u32 s{s_t0}, L_code_end - {NAME} - 1024
    s_cbranch_scc1 L_pf_skip
    v_lshl_add_u32 v{vt[0]}, v{vl}, 4, s{s_t0}
    global_load_dwordx4 {vr(vpf,4)}, v{vt[0]}, {sr(sPC,2)}
    L_pf_skip:
    s_waitcnt lgkmcnt(0)""")
    if o.get('touch'):
        k(f"""s_mov_b64 {sr(sX,2)}, {sr(sP,2)}
        s_mov_b32 s{sX+2}, {2048*1280}
        s_mov_b32 s{sX+3}, 0x20000
        s_mov_b64 {sr(sW,2)}, {sr(sP+2,2)}
        s_mov_b32 s{sW+2}, {640*3840}
        s_mov_b32 s{sW+3}, 0x20000
        s_lshr_b32 s{s_t0}, s2, 3
        s_lshl_b32 s{s_t0}, s{s_t0}, 2
        s_add_u32 s{s_t0}, s{s_t0}, s{s_wl}
        s_mul_i32 s{s_t1}, s{s_t0}, 5
        v_lshrrev_b32 v{vt[0]}, 4, v{vl}
        v_add_u32 v{vt[0]}, s{s_t1}, v{vt[0]}
        v_mul_u32_u24 v{vt[0]}, 3840, v{vt[0]}
        v_and_b32 v{vt[1]}, 15, v{vl}
        v_lshl_add_u32 v{vt[0]}, v{vt[1]}, 7, v{vt[0]}
        s_bfe_u32 s{s_t1}, s2, 0x10002
        s_lshl_b32 s{s_t1}, s{s_t1}, 11
        s_add_u32 s{s_t2}, s{s_t1}, {4*3840}
        v_lshlrev_b32 v{vt[1]}, 7, v{vl}
        s_mul_i32 s{s_t0}, s{s_t0}, {40*128}
        s_and_b32 s{s_ox}, s2, 3
        s_mul_i32 s{s_ox}, s{s_ox}, {512*1280}
        s_add_u32 s{s_t0}, s{s_t0}, s{s_ox}
        buffer_load_dword v{vpf+4}, v{vt[0]}, {sr(sW,4)}, s{s_t1} offen
        s_mov_b32 exec_hi, 0xff
        buffer_load_dword v{vpf+5}, v{vt[1]}, {sr(sX,4)}, s{s_t0} offen
        s_mov_b64 exec, 0xffff
        buffer_load_dword v{vpf+6}, v{vt[0]}, {sr(sW,4)}, s{s_t2} offen
        s_mov_b64 exec, -1""")
    common_setup()
    if o.get('ptouch'):
        k(f"""v_lshlrev_b32 v{vt[0]}, {o['ptouch']}, v{vl}
        s_lshl_b32 s{s_t0}, s{s_wl}, {o['ptouch'] + 6}
        buffer_load_dword v{vpf+4}, v{vt[0]}, {sr(sO,4)}, s{s_t0} offen sc1""")
    xaddr()
    k(f"""s_lshr_b32 s{s_t0}, s{s_wl}, 1
    s_and_b32 s{s_t1}, s{s_wl}, 1
    s_lshl_b32 s{s_t2}, s{s_t0}, 13
    v_add_u32 v{vXA[0]}, s{s_t2}, v{vt[2]}""")
    for s in range(1, 4): k(f"v_xor_b32 v{vXA[s]}, {32*s}, v{vXA[0]}")
    k(f"""v_bfe_u32 v{vt[2]}, v{vl}, 2, 2
    v_lshl_add_u32 v{vt[3]}, v{vt[1]}, 3, v{vt[2]}
    v_lshlrev_b32 v{vt[3]}, 8, v{vt[3]}
    s_lshl_b32 s{s_t2}, s{s_t1}, 1
    s_add_u32 s{s_t2}, s{s_t2}, s{s_t0}
    v_xor_b32 v{vt[2]}, s{s_t2}, v{vt[2]}
    v_lshl_add_u32 v{vt[3]}, v{vt[2]}, 6, v{vt[3]}
    v_bfe_u32 v{vt[2]}, v{vl}, 4, 1
    v_lshl_add_u32 v{vt[3]}, v{vt[2]}, 5, v{vt[3]}
    v_and_b32 v{vt[2]}, 3, v{vl}
    v_lshl_add_u32 v{vt[3]}, v{vt[2]}, 3, v{vt[3]}
    v_add_u32 v{vWA[0]}, 16384, v{vt[3]}
    v_xor_b32 v{vWA[1]}, 64, v{vWA[0]}
    s_mov_b32 s{s_slot}, 0""")
    for i in range(4): k(f"v_mov_b32 v{ones+i}, 0x3f803f80")
    def reads(buf, s):
        out = []
        for mt in range(2):
            out.append(f"ds_read_b128 {vr(fx[buf][mt],4)}, v{vXA[s]} offset:{mt*4096}")
        for nt in range(2):
            for rd in range(2):
                out.append(f"ds_read_b64_tr_b16 {vr(fw[buf][nt]+2*rd,2)}, v{vWA[nt]} offset:{(16*s+4*rd)*256}")
        return [out[2], out[3], out[0], out[1], out[4], out[5]]
    def mfmas(buf, vpath, first):
        m = []
        for nt in range(2):
            for mt in range(2):
                a, b = (fx[buf][mt], fw[buf][nt]) if vpath else (fw[buf][nt], fx[buf][mt])
                m.append(f"{M16} {vr(acc[nt][mt],16)}, {vr(a,4)}, {vr(b,4)}, {'0' if first else vr(acc[nt][mt],16)}")
        m.append(f"{M16} {vr(acs,16)}, {vr(ones,4)}, {vr(fw[buf][0],4)}, {'0' if first else vr(acs,16)}")
        return m
    def chunk(vpath, last, first=False):
        for s in range(3):
            k("s_waitcnt lgkmcnt(0)")
            m = mfmas(s & 1, vpath, first and s == 0); rd = reads((s + 1) & 1, s + 1)
            ad = []
            if not last and s == 0: ad = [None]
            for i in range(5):
                k(m[i])
                for x in rd[2*i:2*i+2]: k(x)
                if i == 3 and not last:
                    if s == 0: adv[:] = advance([vXA[0], vXA[1], vXA[2], vXA[3], vWA[0], vWA[1]])
                    k(adv[s])
        k("s_waitcnt lgkmcnt(0)")
        m = mfmas(1, vpath, False)
        if last:
            for x in m: k(x)
            return
        k(m[0])
        for x in adv[3:]: k(x)
        k(m[1])
        k("s_barrier")
        rd = reads(0, 0)
        for x in rd[:3]: k(x)
        k(m[2])
        for x in rd[3:]: k(x)
        k(m[3]); k(m[4])
    adv = []
    def mainloop(vpath):
        k("s_barrier")
        k.stamp(2)
        for x in reads(0, 0): k(x)
        chunk(vpath, False, first=True)
        L = k.label("loop")
        if o.get('fine') == 1:
            for j in range(8):
                k.stamp(5 + j); chunk(vpath, False)
            k.stamp(13)
        else:
            k(f"s_mov_b32 s{s_cnt}, 8\n{L}:")
            chunk(vpath, False)
            k(f"s_sub_u32 s{s_cnt}, s{s_cnt}, 1\ns_cmp_lg_u32 s{s_cnt}, 0\ns_cbranch_scc1 {L}")
        chunk(vpath, True)
        k.stamp(3)
    def epilogue(vpath):
        t = vt
        la = fx[0][0]; rg = k.v(32, 4); hoff = t[3]
        k(f"""v_and_b32 v{t[0]}, 31, v{vl}
        s_lshl_b32 s{s_t2}, s{s_t2}, 7
        s_add_u32 s{s_ox}, s{s_t2}, {XCH}
        v_lshl_add_u32 v{t[2]}, v{t[0]}, 2, s{s_ox}
        s_lshl_b32 s{s_ow}, s{s_t0}, 8
        s_add_u32 s{s_ow}, s{s_ow}, {XCH}
        v_lshl_add_u32 v{t[1]}, v{t[0]}, 2, s{s_ow}
        v_lshrrev_b32 v{hoff}, 5, v{vl}
        v_lshlrev_b32 v{hoff}, 4, v{hoff}
        s_cmp_lt_u32 s{s_cg}, 5
        s_cselect_b32 s{s_cnt}, {f2u(QSCALE):#x}, 1.0
        ds_write_b32 v{t[2]}, v{acs} offset:{CS}
        s_waitcnt lgkmcnt(0)
        s_barrier""")
        if not vpath:
            k(f"""ds_read_b32 v{la+0}, v{t[1]} offset:{NM}
            ds_read_b32 v{la+2}, v{t[1]} offset:{RS}
            ds_read_b32 v{la+4}, v{t[1]} offset:{NM+128}
            ds_read_b32 v{la+6}, v{t[1]} offset:{RS+128}
            v_add_u32 v{t[5]}, s{s_ox}, v{hoff}
            v_xor_b32 v{t[4]}, 128, v{t[5]}""")
            for nt in range(2):
                for j in range(4):
                    k(f"ds_read_b128 {vr(rg+16*nt+4*j,4)}, v{t[5] if nt==0 else t[4]} offset:{CS+32*j}")
            k(f"""v_lshlrev_b32 v{t[0]}, 4, v{t[0]}
            v_lshl_add_u32 v{t[0]}, v{hoff}, 11, v{t[0]}
            s_lshl_b32 s{s_ox}, s{s_cg}, 19
            s_lshl_b32 s{s_ow}, s{s_t2}, 10
            s_add_u32 s{s_ox}, s{s_ox}, s{s_ow}
            s_lshl_b32 s{s_ow}, s{s_tb}, 11
            s_add_u32 s{s_ox}, s{s_ox}, s{s_ow}
            s_lshl_b32 s{s_ow}, s{s_t0}, 10
            s_add_u32 s{s_ox}, s{s_ox}, s{s_ow}
            s_waitcnt lgkmcnt(4)
            v_mov_b32 v{la+1}, v{la+0}
            v_mul_f32 v{la+3}, s{s_cnt}, v{la+2}
            v_mul_f32 v{la+2}, s{s_cnt}, v{la+2}
            v_mov_b32 v{la+5}, v{la+4}
            v_mul_f32 v{la+7}, s{s_cnt}, v{la+6}
            v_mul_f32 v{la+6}, s{s_cnt}, v{la+6}""")
            for nt in range(2):
                if nt == 1: k("s_waitcnt lgkmcnt(0)")
                for mt in range(2):
                    A = acc[nt][mt]
                    for p in range(8):
                        k(f"v_pk_fma_f32 {vr(A+2*p,2)}, {vr(rg+16*nt+2*p,2)}, {vr(la+4*mt,2)}, {vr(A+2*p,2)}")
                    for p in range(8):
                        k(f"v_pk_mul_f32 {vr(A+2*p,2)}, {vr(A+2*p,2)}, {vr(la+4*mt+2,2)}")
                    for p in range(8):
                        k(f"v_cvt_pk_bf16_f32 v{A+p}, v{A+2*p}, v{A+2*p+1}")
                    k(f"s_xor_b32 s{s_ow}, s{s_ox}, {(nt*4*32768) | (mt*512)}")
                    k(f"s_add_u32 s{s_rs}, s{s_ow}, {2*32768}")
                    for jp in range(2):
                        k(f"v_permlane32_swap_b32 v{A+4*jp}, v{A+4*jp+2}\nv_permlane32_swap_b32 v{A+4*jp+1}, v{A+4*jp+3}")
                    k(f"buffer_store_dwordx4 {vr(A,4)}, v{t[0]}, {sr(sO,4)}, s{s_ow} offen{sc}")
                    k(f"buffer_store_dwordx4 {vr(A+4,4)}, v{t[0]}, {sr(sO,4)}, s{s_rs} offen{sc}")
        else:
            rg2 = k.v(32, 4)
            k(f"""v_xor_b32 v{t[4]}, 128, v{t[2]}
            ds_read_b32 v{la+2}, v{t[4]} offset:{CS}
            v_add_u32 v{t[5]}, s{s_ow}, v{hoff}""")
            for mt in range(2):
                for j in range(4):
                    k(f"ds_read_b128 {vr(rg+16*mt+4*j,4)}, v{t[5]} offset:{NM+128*mt+32*j}")
                    k(f"ds_read_b128 {vr(rg2+16*mt+4*j,4)}, v{t[5]} offset:{RS+128*mt+32*j}")
            va = [la + 4, la + 5]
            k(f"""s_sub_u32 s{s_ox}, s{s_cg}, 10
            s_lshl_b32 s{s_ox}, s{s_ox}, 7
            s_lshr_b32 s{s_ow}, s{s_t2}, 2
            s_add_u32 s{s_ox}, s{s_ox}, s{s_ow}
            v_add_u32 v{t[0]}, s{s_ox}, v{t[0]}
            v_mul_u32_u24 v{hoff}, 640, v{hoff}
            v_lshl_add_u32 v{va[0]}, v{t[0]}, 4, v{hoff}
            v_xor_b32 v{t[0]}, 32, v{t[0]}
            v_lshl_add_u32 v{va[1]}, v{t[0]}, 4, v{hoff}
            s_lshl_b32 s{s_ox}, s{s_tb}, 1
            s_add_u32 s{s_ox}, s{s_ox}, s{s_t0}
            s_mul_i32 s{s_ox}, s{s_ox}, 81920
            s_add_u32 s{s_ox}, s{s_ox}, {VIMG}
            v_mov_b32 v{la+0}, v{acs}
            v_mov_b32 v{la+1}, v{acs}
            s_waitcnt lgkmcnt(8)
            v_mov_b32 v{la+3}, v{la+2}""")
            for mt in range(2):
                if mt == 1: k("s_waitcnt lgkmcnt(0)")
                for nt in range(2):
                    A = acc[nt][mt]
                    for p in range(8):
                        k(f"v_pk_fma_f32 {vr(A+2*p,2)}, {vr(rg+16*mt+2*p,2)}, {vr(la+2*nt,2)}, {vr(A+2*p,2)}")
                    for p in range(8):
                        k(f"v_pk_mul_f32 {vr(A+2*p,2)}, {vr(A+2*p,2)}, {vr(rg2+16*mt+2*p,2)}")
                    for p in range(8):
                        k(f"v_cvt_pk_bf16_f32 v{A+p}, v{A+2*p}, v{A+2*p+1}")
                    k(f"s_add_u32 s{s_ow}, s{s_ox}, {40960*mt}\ns_add_u32 s{s_rs}, s{s_ox}, {40960*mt+20480}")
                    k(f"buffer_store_dwordx4 {vr(A,4)}, v{va[nt]}, {sr(sO,4)}, s{s_ow} offen{sc}")
                    k(f"buffer_store_dwordx4 {vr(A+4,4)}, v{va[nt]}, {sr(sO,4)}, s{s_rs} offen{sc}")
    k(f"s_cmp_ge_u32 s{s_cg}, 10\ns_cbranch_scc1 {L_v}")
    vsave = k.vnext
    mainloop(False); epilogue(False); k(f"s_branch {L_J0}")
    k.vnext = vsave
    k(f"{L_v}:")
    mainloop(True); epilogue(True)
    if o.get('fine') == 1:
        k.maxst = 14; k.stamp = lambda *a, **kw: None
    k(f"{L_J0}:\ns_setprio 0")
    k.stamp(4)
    prep_decode(True)
    k(f"""s_mov_b32 s{c.s_p}, s{s_cg}
    s_lshl_b32 s{c.s_f}, s{s_cg}, 5
    s_add_u32 s{c.s_f}, s{c.s_f}, s{s_tb}
    s_lshl_b32 s{c.s_f}, s{c.s_f}, {FL}
    s_add_u32 s{c.s_f}, s{c.s_f}, {F1}""")
    def spare():
        o4 = acs; xb = acc[0][0]; sm = [fw[0][0], fw[0][0] + 1]; sq = [fw[0][0] + 2, fw[0][0] + 3]
        k(f"""{L_spare}:
        v_lshrrev_b32 v{vt[0]}, 3, v{vl}
        v_lshl_add_u32 v{vt[0]}, s{s_w}, 4, v{vt[0]}
        v_mul_u32_u24 v{vt[0]}, 1280, v{vt[0]}
        v_and_b32 v{vt[2]}, 7, v{vl}
        v_lshl_add_u32 v{vX[0]}, v{vt[2]}, 4, v{vt[0]}
        v_add_u32 v{vX[1]}, {8*1280}, v{vX[0]}
        s_mul_i32 s{s_t0}, s{s_tb}, {128*1280}
        s_mov_b32 s{sX+2}, {128*1280}
        s_mov_b32 s{sX+3}, 0x20000
        s_waitcnt lgkmcnt(0)
        s_add_u32 s{sX}, s{sP}, s{s_t0}
        s_addc_u32 s{sX+1}, s{sP+1}, 0""")
        for g in range(2):
            for i in range(10): k(f"buffer_load_dwordx4 {vr(xb+40*g+4*i,4)}, v{vX[g]}, {sr(sX,4)}, 0 offen offset:{128*i}")
        common_setup()
        srd(k, sW, sWS, sWS + 1, CSG + ZERO_BYTES)
        o4 = xb + 80
        k(f"""s_mov_b32 s{s_t0}, {ONES}
        v_and_b32 v{vt[0]}, 0x70, v{vl16}
        v_lshlrev_b32 v{vt[1]}, 4, v0
        s_lshl_b32 s{s_t1}, s{s_tb}, 13
        s_add_u32 s{s_t1}, s{s_t1}, {CSG}
        s_mov_b32 s{s_msk}, 0x3f803f80""")
        for i in range(4): k(f"v_mov_b32 v{o4+i}, 0x3f803f80\nv_mov_b32 v{o4+4+i}, 0")
        nz = (ZERO_BYTES + 131071) // 131072
        for z in range(nz):
            k(f"buffer_store_dwordx4 {vr(o4+4,4)}, v{vt[1]}, {sr(sW,4)}, s{s_t1} offen{sc}\ns_add_u32 s{s_t1}, s{s_t1}, 131072")
        k(f"s_mov_b64 exec, 0xff\nbuffer_store_dwordx4 {vr(o4,4)}, v{vt[0]}, {sr(sO,4)}, s{s_t0} offen{sc}\ns_mov_b64 exec, -1")
        st = o4 + 8
        for i in range(4): k(f"v_mov_b32 v{st+i}, 0")
        for g in range(2):
            for i in range(10):
                k(f"s_waitcnt vmcnt({19 - 10*g - i + nz + 1})")
                for j in range(4):
                    x = xb + 40 * g + 4 * i + j
                    k(f"v_dot2c_f32_bf16 v{st+2*g}, s{s_msk}, v{x}\nv_dot2c_f32_bf16 v{st+2*g+1}, v{x}, v{x}")
        for ctl in ("quad_perm:[1,0,3,2]", "quad_perm:[2,3,0,1]", "row_half_mirror"):
            for i in range(4): k(f"v_add_f32_dpp v{st+i}, v{st+i}, v{st+i} {ctl} row_mask:0xf bank_mask:0xf")
        Ln = k.label("sn")
        k(f"""v_and_b32 v{vt[2]}, 1, v{vl}
        v_cmp_eq_u32 vcc, 1, v{vt[2]}
        v_lshrrev_b32 v{vt[3]}, 3, v{vl}
        v_lshl_add_u32 v{vt[3]}, v{vt[2]}, 3, v{vt[3]}
        v_cndmask_b32 v{st}, v{st}, v{st+2}, vcc
        v_cndmask_b32 v{st+1}, v{st+1}, v{st+3}, vcc
        v_lshlrev_b32 v{vt[3]}, 2, v{vt[3]}
        v_mul_f32 v{st}, {f2u(-1.0/640):#x}, v{st}
        v_mul_f32 v{st+1}, {f2u(1.0/640):#x}, v{st+1}
        v_fma_f32 v{st+1}, -v{st}, v{st}, v{st+1}
        v_max_f32 v{st+1}, 0, v{st+1}
        v_add_f32 v{st+1}, {f2u(1e-5):#x}, v{st+1}
        v_rsq_f32 v{st+1}, v{st+1}
        s_lshl_b32 s{s_t1}, s{s_w}, 6
        v_add_u32 v{vt[3]}, s{s_t1}, v{vt[3]}
        ds_write_b32 v{vt[3]}, v{st}
        ds_write_b32 v{vt[3]}, v{st+1} offset:512
        s_waitcnt vmcnt(0) lgkmcnt(0)
        s_barrier
        s_cmp_lg_u32 s{s_w}, 4
        s_cbranch_scc1 {Ln}
        ds_read_b128 {vr(st,4)}, v{vl16}
        s_lshl_b32 s{s_t0}, s{s_tb}, 10
        s_add_u32 s{s_t0}, s{s_t0}, {LN1}
        s_waitcnt lgkmcnt(0)
        buffer_store_dwordx4 {vr(st,4)}, v{vl16}, {sr(sO,4)}, s{s_t0} offen{sc}
        s_waitcnt vmcnt(0)
        s_lshl_b32 s{s_t0}, s{s_tb}, 4
        v_mov_b32 v{vt[2]}, 1
        v_mov_b32 v{vt[3]}, 0
        s_mov_b64 exec, 1
        buffer_store_dword v{vt[2]}, v{vt[3]}, {sr(sD,4)}, s{s_t0} offen sc1
        s_mov_b64 exec, -1
        {Ln}:""")
        k.stamp(2); k.stamp(3)
        k(f"s_branch {L_J0}")
    def deferred(fn):
        n = len(k.lines); fn(); out = k.lines[n:]; del k.lines[n:]; return out
    spare_code = deferred(spare)
    c.reset()
    prio = o.get('prio', (18, 6, 3, 1))
    s_h = k.s(); s_pa = k.s(); s_pr = k.s(); s_odd8 = k.s(); s_tok = k.s()
    s_t0 = k.s(); s_t1 = k.s(); s_t2 = k.s(); s_t3 = k.s()
    so = [k.s() for _ in range(3)]; s_d = k.s(); s_mo = k.s(); s_ms = k.s(); s_q1 = k.s(); s_q2 = k.s()
    sG = k.s(2); sE = k.s(2)
    vq = k.v(); vr31 = k.v(); vKA = k.v(); vKR = k.v(); vVA = k.v(); vqr = k.v()
    vt0 = k.v(6, 2); vt = list(range(vt0, vt0 + 6))
    S = [k.v(32, 4), k.v(32, 4)]; O = k.v(16, 4); OY = k.v(16, 4); P = k.v(8, 4)
    Qm = k.v(4, 4); QmY = k.v(4, 4); Qr = k.v(2); Km = k.v(4, 4); Kr = k.v(2); V0 = k.v(4, 4); V1 = [k.v(4, 4), k.v(4, 4)]
    PR = k.v(16, 4); C = S[1]; vcs = k.v(16, 4); vsel = k.v(16, 4); vca = k.v(); vfp = k.v(4, 4); vo1 = k.v(); vo2 = k.v(); vx1 = k.v(); vx2 = k.v(); s_o1 = k.s(); s_o2 = k.s()
    L_slow = k.label("slow"); L_store = k.label("store"); L_dv = k.label("dv"); L_dd = k.label("dd")
    vD = [k.v() for _ in range(3)]; vDd = [k.v() for _ in range(3)]
    k(f"""s_and_b32 s{s_t0}, s2, 7
    s_lshl_b32 s{s_t0}, s{s_t0}, 2
    s_bfe_u32 s{s_t1}, s2, 0x20003
    s_add_u32 s{s_h}, s{s_t0}, s{s_t1}
    s_lshr_b32 s{s_q1}, s{s_h}, 1
    s_mul_i32 s{s_t0}, s{s_q1}, 5
    s_and_b32 s{s_t1}, s{s_h}, 1
    s_lshl_b32 s{s_odd8}, s{s_t1}, 3
    s_mul_i32 s{s_t1}, s{s_t1}, 3
    s_add_u32 s{s_pa}, s{s_t0}, s{s_t1}
    s_lshl_b32 s{s_pa}, s{s_pa}, 15
    s_add_u32 s{s_pr}, s{s_t0}, 2
    s_lshl_b32 s{s_pr}, s{s_pr}, 15
    s_lshr_b32 s{s_q2}, s{s_wl}, 1
    s_and_b32 s{s_t3}, s{s_w}, 1
    s_mul_i32 s{s_mo}, s{s_q2}, 6144
    s_cmp_ge_u32 s{s_w}, 4
    s_cbranch_scc1 {L_dv}
    s_lshl_b32 s{s_t0}, s{s_q2}, 14
    s_lshl_b32 s{s_t1}, s{s_t3}, 10
    s_add_u32 s{s_mo}, s{s_mo}, s{s_t1}
    s_add_u32 s{s_t0}, s{s_t0}, s{s_t1}
    s_add_u32 s{s_t0}, s{s_t0}, {80*32768}
    s_add_u32 s{s_t1}, s{s_pa}, s{s_t0}
    s_add_u32 s{s_t2}, s{s_pr}, s{s_t0}
    v_add_u32 v{vD[0]}, s{s_t1}, v{vl16}
    v_add_u32 v{vD[1]}, 32768, v{vD[0]}
    v_add_u32 v{vD[2]}, s{s_t2}, v{vl16}
    v_mov_b32 v{vDd[0]}, 2048
    v_mov_b32 v{vDd[1]}, 2048
    v_mov_b32 v{vDd[2]}, 2048
    s_movk_i32 s{s_ms}, 2048
    s_branch {L_dd}
    {L_dv}:
    s_mul_i32 s{s_t1}, s{s_t3}, 3072
    s_add_u32 s{s_mo}, s{s_mo}, s{s_t1}
    s_add_u32 s{s_mo}, s{s_mo}, {VB}
    s_mul_i32 s{s_t0}, s{s_q2}, {128*10240}
    s_mul_i32 s{s_t1}, s{s_h}, 320
    s_add_u32 s{s_t0}, s{s_t0}, s{s_t1}
    s_add_u32 s{s_t0}, s{s_t0}, {VIMG}
    s_mul_i32 s{s_t3}, s{s_t3}, 192
    s_movk_i32 s{s_ms}, 1024
    v_mov_b32 v{vt[4]}, {ONES}
    v_mov_b32 v{vt[5]}, {16*10240}""")
    for i in range(3):
        k(f"""v_add_u32 v{vt[0]}, s{s_t3}, v{vl}
        s_add_u32 s{s_t3}, s{s_t3}, 64
        v_mul_u32_u24 v{vt[1]}, 3121, v{vt[0]}
        v_lshrrev_b32 v{vt[1]}, 16, v{vt[1]}
        v_mul_u32_u24 v{vt[2]}, 21, v{vt[1]}
        v_sub_u32 v{vt[2]}, v{vt[0]}, v{vt[2]}
        v_cmp_gt_u32 vcc, 20, v{vt[2]}
        v_cmp_gt_u32 {sr(sE,2)}, 16, v{vt[1]}
        v_mul_u32_u24 v{vt[1]}, 10240, v{vt[1]}
        v_lshl_add_u32 v{vt[1]}, v{vt[2]}, 4, v{vt[1]}
        s_and_b64 vcc, vcc, {sr(sE,2)}
        v_add_u32 v{vt[1]}, s{s_t0}, v{vt[1]}
        v_cndmask_b32 v{vD[i]}, v{vt[4]}, v{vt[1]}, vcc
        v_cndmask_b32 v{vDd[i]}, 0, v{vt[5]}, vcc""")
    k(f"""{L_dd}:
    s_lshr_b32 s{s_t3}, s{s_w}, 2
    s_mul_i32 s{s_t0}, s{s_t3}, 6144
    v_and_b32 v{vr31}, 31, v{vl}
    v_lshlrev_b32 v{vr31}, 4, v{vr31}
    v_lshrrev_b32 v{vt[1]}, 5, v{vl}
    v_lshl_add_u32 v{vq}, v{vt[1]}, 15, v{vr31}
    v_add_u32 v{vt[2]}, s{s_t0}, v{vr31}
    v_lshl_add_u32 v{vKA}, v{vt[1]}, 11, v{vt[2]}
    v_add_u32 v{vKR}, s{s_odd8}, v{vt[2]}
    v_add_u32 v{vKR}, 4096, v{vKR}
    v_mul_u32_u24 v{vt[0]}, 336, v{vt[1]}
    v_add_u32 v{vt[0]}, v{vt[0]}, v{vt[2]}
    v_add_u32 v{vVA}, {VB}, v{vt[0]}
    v_cmp_lt_u32 vcc, {20*16}, v{vr31}
    v_mov_b32 v{vt[0]}, 0x40000
    v_xor_b32 v{vt[1]}, s{s_t3}, v{vt[1]}
    v_cndmask_b32 v{vVA}, v{vVA}, v{vt[0]}, vcc
    v_lshl_add_u32 v{vqr}, v{vt[1]}, 9, v{vr31}
    s_lshr_b32 s{s_tok}, s2, 5
    s_lshl_b32 s{s_tok}, s{s_tok}, 8
    s_lshl_b32 s{s_t0}, s{s_wl}, 6
    s_add_u32 s{s_tok}, s{s_tok}, s{s_t0}
    s_lshl_b32 s{s_t0}, s{s_t3}, 5
    s_add_u32 s{s_tok}, s{s_tok}, s{s_t0}""")
    k(f"v_lshlrev_b32 v{vca}, 2, v{vl}\nv_mov_b32 v{vt[0]}, 0x3f803f80")
    for Tl, row in enumerate((0, 4, 1, 5)):
        k(f"v_cmp_eq_u32 vcc, {16*row}, v{vr31}")
        k(f"v_cndmask_b32 v{vsel+4*Tl}, 0, v{vt[0]}, vcc")
        for i in range(1, 4): k(f"v_mov_b32 v{vsel+4*Tl+i}, v{vsel+4*Tl}")
    k(f"""v_bfe_u32 v{vo2}, v{vl}, 4, 1
    v_mul_u32_u24 v{vo2}, {20*1024}, v{vo2}
    v_and_b32 v{vt[2]}, 15, v{vl}
    v_lshl_add_u32 v{vo1}, v{vt[2]}, 4, v{vo2}
    v_lshl_add_u32 v{vo2}, v{vt[2]}, 3, v{vo2}
    v_lshrrev_b32 v{vt[2]}, 5, v{vl}
    v_lshl_add_u32 v{vo1}, v{vt[2]}, 8, v{vo1}
    s_lshr_b32 s{s_t0}, s{s_tok}, 4
    s_mul_i32 s{s_t0}, s{s_t0}, {20*1024}
    s_add_u32 s{s_t0}, s{s_t0}, {OIMG}
    s_lshl_b32 s{s_o1}, s{s_h}, 9
    s_add_u32 s{s_o1}, s{s_o1}, s{s_t0}
    s_lshl_b32 s{s_o2}, s{s_h}, 7
    s_add_u32 s{s_o2}, s{s_o2}, s{s_t0}
    s_add_u32 s{s_o2}, s{s_o2}, {16*1024}
    s_mul_i32 s{s_t0}, s{s_wl}, 3072
    s_add_u32 s{s_t0}, s{s_t0}, {2*SL}
    s_add_u32 s{s_t1}, s{s_t0}, {VB}
    s_cmp_lt_u32 s{s_w}, 4
    s_cselect_b32 s{s_t2}, s{s_t0}, s{s_t1}
    s_cselect_b32 s{s_t1}, s{s_t1}, s{s_t0}
    v_add_u32 v{vx1}, s{s_t2}, v{vl16}
    v_add_u32 v{vx2}, s{s_t1}, v{vl16}""")
    early = o.get('early', True)
    p1 = [f"s_mov_b32 m0, s{sR[4]}", "s_nop 0"]
    for i, (sd, so_) in enumerate(((sA, sR[0]), (sA, sR[2]), (sB, sR[1]), (sB, sR[3]))):
        p1.append(f"buffer_load_dwordx4 v{vPS}, {sr(sd,4)}, s{so_} offen lds")
        if i < 3: p1 += ["s_add_u32 m0, m0, 1024", "s_nop 0"]
    edge_prep = o.get('edge_prep', False)
    Lx = k.label("jx"); Lp = k.label("jp"); Lz = k.label("jz"); Lzx = k.label("jzx"); Lns = k.label("jns")
    part = o.get('part', True)
    vfl = k.v(); vpl = k.v(); vf2 = k.v(2); s_f0 = sG; s_f1 = sG + 1
    k(f"""s_mul_i32 s{s_t0}, s{s_q1}, 40
    s_add_u32 s{s_t1}, s{s_t0}, 39
    s_lshr_b32 s{s_t0}, s{s_t0}, 7
    s_lshr_b32 s{s_t1}, s{s_t1}, 7
    s_lshl_b32 s{s_f0}, s{s_t0}, {FL+5}
    s_lshl_b32 s{s_f1}, s{s_t1}, {FL+5}
    s_add_u32 s{s_f0}, s{s_f0}, {F1}
    s_add_u32 s{s_f1}, s{s_f1}, {F1}
    v_lshrrev_b32 v{vt[2]}, 4, v{vl}
    v_min_u32 v{vt[2]}, 2, v{vt[2]}
    v_mul_u32_u24 v{vt[2]}, 160, v{vt[2]}
    v_and_b32 v{vt[3]}, 15, v{vl}
    v_add_u32 v{vt[3]}, v{vt[3]}, v{vt[2]}
    v_lshlrev_b32 v{vfl}, {FL}, v{vt[3]}""")
    if part:
        k(f"""s_sub_u32 s{s_t1}, s{s_t1}, s{s_t0}
        v_and_b32 v{vt[2]}, 1, v{vl}
        v_mul_u32_u24 v{vt[2]}, s{s_t1}, v{vt[2]}
        v_bfe_u32 v{vt[3]}, v{vl}, 1, 1
        v_bfe_u32 v{vt[4]}, v{vl}, 2, 1
        v_bfe_u32 v{vt[5]}, v{vl}, 3, 1
        v_lshl_add_u32 v{vt[4]}, v{vt[5]}, 3, v{vt[4]}
        v_mad_u32_u24 v{vt[5]}, v{vt[3]}, 5, 5
        s_lshr_b32 s{s_t1}, s2, 5
        s_lshl_b32 s{s_t1}, s{s_t1}, 1
        v_add_u32 v{vt[3]}, s{s_t1}, v{vt[3]}
        v_cmp_gt_u32 vcc, 16, v{vl}
        v_cndmask_b32 v{vt[5]}, 0, v{vt[5]}, vcc
        v_cndmask_b32 v{vt[4]}, v{vt[3]}, v{vt[4]}, vcc
        v_add_u32 v{vt[2]}, v{vt[2]}, v{vt[5]}
        v_lshl_add_u32 v{vt[2]}, v{vt[2]}, 5, v{vt[4]}
        v_lshlrev_b32 v{vpl}, {FL}, v{vt[2]}""")
    k(f"""s_cmp_lg_u32 s{s_w}, 0
    s_cbranch_scc1 {Lzx}
    s_cmp_lg_u32 s{c.s_p}, 15
    s_cbranch_scc1 {Lzx}
    v_and_b32 v{vt[3]}, 15, v{vl}
    v_lshlrev_b32 v{vt[3]}, 4, v{vt[3]}
    s_mov_b32 s{s_t1}, 0
    {Lz}:
    buffer_load_dword v{vt[4]}, v{vt[3]}, {sr(sD,4)}, 0 offen sc1
    s_add_u32 s{s_t1}, s{s_t1}, 1
    s_cmp_gt_u32 s{s_t1}, 0x40000
    s_cbranch_scc1 {Lzx}
    s_waitcnt vmcnt(0)
    v_cmp_ne_u32 vcc, 0, v{vt[4]}
    s_cmp_eq_u64 vcc, -1
    s_cbranch_scc0 {Lz}
    {Lzx}:
    s_waitcnt vmcnt(0)""")
    k.stamp(5)
    k(f"""s_barrier
    s_cmp_lg_u32 s{s_w}, 0
    s_cbranch_scc1 {Lx}""")
    c.signal(c.s_f, vt[2])
    fl = [f"buffer_load_dword v{vf2}, v{vfl}, {sr(sO,4)}, s{s_f0} offen sc1", f"buffer_load_dword v{vf2+1}, v{vfl}, {sr(sO,4)}, s{s_f1} offen sc1"]
    k(f"s_mov_b32 s{s_t2}, 0\n{Lp}:")
    if part: k(f"buffer_load_dword v{vf2}, v{vpl}, {sr(sO,4)}, s{s_f0} offen sc1")
    else: k(fl[0]); k(fl[1])
    k(f"""s_add_u32 s{s_t2}, s{s_t2}, 1
    s_cmp_gt_u32 s{s_t2}, 0x40000
    s_cbranch_scc1 {Lx}
    s_waitcnt vmcnt(0)""")
    if not part: k(f"v_min_u32 v{vf2}, v{vf2}, v{vf2+1}")
    k(f"""v_cmp_ne_u32 vcc, 0, v{vf2}
    s_cmp_eq_u64 vcc, -1
    s_cbranch_scc0 {Lp}
    {Lx}:
    s_lshl_b32 s{s_t0}, s{s_tok}, 4
    s_add_u32 s{s_q1}, s{s_t0}, s{s_pa}
    s_xor_b32 s{s_t3}, s{s_q1}, 512
    s_andn2_b32 s{s_q2}, s{s_t0}, 512
    s_add_u32 s{s_q2}, s{s_q2}, s{s_pr}
    s_add_u32 s{s_q2}, s{s_q2}, s{s_odd8}
    s_barrier""")
    k.stamp(6)
    def dma(slot):
        out = [f"s_add_u32 m0, s{s_mo}, {slot*SL}", "s_nop 0"]
        for i in range(3):
            out.append(f"buffer_load_dwordx4 v{vD[i]}, {sr(sO,4)}, 0 offen sc1 lds")
            if i < 2: out.append(f"s_add_u32 m0, m0, s{s_ms}")
            out.append(f"v_add_u32 v{vD[i]}, v{vD[i]}, v{vDd[i]}")
        return out
    k("; ---- P2 attention")
    for x in dma(0): k(x)
    k(f"""buffer_load_dwordx4 {vr(Qm,4)}, v{vq}, {sr(sO,4)}, s{s_q1} offen
    buffer_load_dwordx4 {vr(QmY,4)}, v{vq}, {sr(sO,4)}, s{s_t3} offen
    buffer_load_dwordx2 {vr(Qr,2)}, v{vqr}, {sr(sO,4)}, s{s_q2} offen""")
    for x in dma(1): k(x)
    p2a = [f"ds_read_b64_tr_b16 {vr(PR+4*Tl+2*rd,2)}, v{vPA} offset:{rd*1024+Tl*32}" for Tl in range(4) for rd in range(2)]
    p2c = [f"{M16} {vr(vcs,16)}, {vr(vsel+4*Tl,4)}, {vr(PR+4*Tl,4)}, {'0' if Tl == 0 else vr(vcs,16)}" for Tl in range(4)]
    late = [f"buffer_store_dwordx4 {vr(PR+4*Tl,4)}, v{vl16}, {sr(sO,4)}, s{s_po} offen offset:{Tl*1024}{sc}" for Tl in range(4)]
    late += [f"buffer_atomic_add_f32 v{vcs}, v{vca}, {sr(sO,4)}, s{s_cs} offen", f"buffer_atomic_add_f32 v{vcs+1}, v{vca}, {sr(sO,4)}, s{s_cs} offen offset:256"]
    TL = o.get('TL', 3); TP = o.get('TP', 11); assert TL > 2
    late_t = o.get('late_t', [TP + 1, TP + 2, TP + 4, TP + 5, TP + 3, TP + 3]); TSIG = o.get('TSIG', TP + 11)
    assert not edge_prep
    M2B = "v_mfma_f32_32x32x4_2b_bf16"
    def rdK(t):
        o_ = ((t // 4) % 3) * SL + (t % 4) * 512
        return [f"ds_read_b128 {vr(Km,4)}, v{vKA} offset:{o_}", f"ds_read_b64 {vr(Kr,2)}, v{vKR} offset:{o_}"]
    def rdV(t):
        o_ = ((t // 4) % 3) * SL + (t % 4) * 1344
        return [f"ds_read_b128 {vr(V0,4)}, v{vVA} offset:{o_}", f"ds_read_b128 {vr(V1[t&1],4)}, v{vVA} offset:{o_+672}"]
    k("s_waitcnt vmcnt(3)\ns_barrier")
    k.stamp(7)
    for x in rdK(0): k(x)
    k(f"""s_waitcnt lgkmcnt(0)
    {M2B} {vr(S[0],32)}, {vr(Kr,2)}, {vr(Qr,2)}, 0
    {M16} {vr(S[0],16)}, {vr(Km,4)}, {vr(Qm,4)}, {vr(S[0],16)}
    {M16} {vr(S[0]+16,16)}, {vr(Km,4)}, {vr(QmY,4)}, {vr(S[0]+16,16)}""")
    for x in rdK(1) + rdV(0): k(x)
    side = []; vm = [0]
    def spread(n):
        for _ in range(n):
            if side:
                x = side.pop(0)
                if x is None: continue
                if x == 'KV': vm[0] = 0; continue
                k(x)
                if x.startswith('buffer_'): vm[0] += 1
    NT = 32
    for t in range(NT):
        s = S[t & 1]; sn = S[(t + 1) & 1]; pe = t // 4; last = t == NT - 1
        e = lambda *a: [(k(f"v_exp_f32 v{s+i}, v{s+i}"), spread(1)) for i in a]
        cv = lambda i: k(f"v_cvt_pk_bf16_f32 v{P+i%8}, v{s+2*i}, v{s+2*i+1}")
        def pr(ph):
            if prio:
                q = (7 * t + ph - 19) % 28
                cum = 0
                for lvl, ln in enumerate(prio):
                    if (q == cum and ln > 0) or (t == 0 and ph == 0 and cum <= q < cum + ln): k(f"s_setprio {3 - lvl}")
                    cum += ln
        z = lambda r: '0' if t == 0 else vr(r, 16)
        pr(0)
        e(0, 1, 2, 3)
        if not last:
            k("s_waitcnt lgkmcnt(2)")
            k(f"{M2B} {vr(sn,32)}, {vr(Kr,2)}, {vr(Qr,2)}, 0")
        pr(1)
        e(4); cv(0); e(5); cv(1); e(6, 7); cv(2); e(8); cv(3); e(9, 10)
        k("s_waitcnt lgkmcnt(0)")
        k(f"{M16} {vr(O,16)}, {vr(V0,4)}, {vr(P,4)}, {z(O)}")
        pr(2)
        e(11); cv(4); e(12); cv(5); e(13, 14)
        if not last: k(f"{M16} {vr(sn,16)}, {vr(Km,4)}, {vr(Qm,4)}, {vr(sn,16)}")
        pr(3)
        e(15); cv(6); e(16); cv(7); e(17, 18)
        k(f"{M16} {vr(O,16)}, {vr(V1[t&1],4)}, {vr(P+4,4)}, {vr(O,16)}")
        pr(4)
        e(19); cv(8); e(20); cv(9); e(21, 22)
        if not last: k(f"{M16} {vr(sn+16,16)}, {vr(Km,4)}, {vr(QmY,4)}, {vr(sn+16,16)}")
        if part and t == 1:
            Ln = k.label("nq"); k(f"s_cmp_lg_u32 s{s_w}, 0\ns_cbranch_scc1 {Ln}"); k(fl[0]); k(fl[1]); k(f"{Ln}:")
        if t % 4 == 2 and pe < 7:
            assert not side
            k(f"s_waitcnt vmcnt({0 if t in (TP - 1, TSIG - 4, 26) else vm[0]})")
            if part and t == 2:
                Ln = k.label("nq"); Lq = k.label("q")
                k(f"""s_cmp_lg_u32 s{s_w}, 0
                s_cbranch_scc1 {Ln}
                s_mov_b32 s{s_t2}, 0
                {Lq}:
                v_min_u32 v{vf2}, v{vf2}, v{vf2+1}
                s_add_u32 s{s_t2}, s{s_t2}, 1
                v_cmp_ne_u32 vcc, 0, v{vf2}
                s_cmp_eq_u64 vcc, -1
                s_cbranch_scc1 {Ln}
                s_cmp_gt_u32 s{s_t2}, 0x40000
                s_cbranch_scc1 {Ln}""")
                k(fl[0]); k(fl[1])
                k(f"s_waitcnt vmcnt(0)\ns_branch {Lq}\n{Ln}:")
            if early and t == 26:
                Ln = k.label("ne"); Lq = k.label("e")
                k(f"""s_cmp_lg_u32 s{s_w}, 0
                s_cbranch_scc1 {Ln}
                s_mov_b32 s{s_t2}, 0
                {Lq}:
                v_min_u32 v{vfp}, v{vfp}, v{vfp+1}
                v_min3_u32 v{vfp}, v{vfp}, v{vfp+2}, v{vfp+3}
                s_add_u32 s{s_t2}, s{s_t2}, 1
                v_cmp_ne_u32 vcc, 0, v{vfp}
                s_cmp_eq_u64 vcc, -1
                s_cbranch_scc1 {Ln}
                s_cmp_gt_u32 s{s_t2}, 0x40000
                s_cbranch_scc1 {Ln}
                buffer_load_dwordx4 {vr(vfp,4)}, v{vl16}, {sr(sO,4)}, s{s_t0} offen sc1
                s_waitcnt vmcnt(0)
                s_branch {Lq}
                {Ln}:""")
                side += [f"s_lshr_b32 s{s_t0}, s2, 5"] if o.get('row3', o.get('cinit', True)) else [f"s_bfe_u32 s{s_t0}, s2, 0x10002", f"s_lshl_b32 s{s_t0}, s{s_t0}, 2", f"s_lshr_b32 s{s_t1}, s2, 6", f"s_add_u32 s{s_t0}, s{s_t0}, s{s_t1}"]
                side += [
                         f"s_lshl_b32 s{s_t1}, s{s_w}, 3", f"s_add_u32 s{s_t0}, s{s_t0}, s{s_t1}", f"s_mul_i32 s{s_t0}, s{s_t0}, 5120", f"s_add_u32 s{s_t0}, s{s_t0}, {WOP}",
                         f"s_mul_i32 s{s_t1}, s{s_w}, 5120"]
                for hf in range(2):
                    side += [f"s_add_u32 m0, s{s_t1}, {PREP + hf*8*5120}", f"s_add_u32 s{s_t2}, s{s_t0}, 4096"]
                    side += [f"buffer_load_dwordx4 v{vl16}, {sr(sO,4)}, s{s_t0} offen offset:{i*1024} lds" for i in range(4)]
                    side += ["s_add_u32 m0, m0, 4096", f"s_add_u32 s{s_t0}, s{s_t0}, {8*40960}", f"buffer_load_dwordx4 v{vl16}, {sr(sO,4)}, s{s_t2} offen lds"]
                sp = o.get('espace', 8)
                side[:] = [y for x in side for y in ([x] + [None] * sp if x.startswith('buffer') else [x])]
            k("s_barrier")
            if o.get('fine') == 2: k.stamp({0: 1, 1: 2, 2: 3, 3: 4, 4: 5, 5: 6, 6: 9}[pe])
            if pe < 6: side += dma((pe + 2) % 3) + ['KV']
            if t == TSIG - 4:
                Ln = k.label("nf")
                k(f"s_cmp_lg_u32 s{s_w}, 0\ns_cbranch_scc1 {Ln}\ns_lshl_b32 s{s_t0}, s2, 2\ns_add_u32 s{s_t0}, s{s_t0}, {FP}")
                c.signal(s_t0, vt[2]); k(f"{Ln}:")
        pr(5)
        if t < NT - 2:
            for x in rdK(t + 2): k(x)
        if t == TP:
            for x in p2a: k(x)
        if t == TL: side += p1
        if o.get('cs2', True):
            if TP < t <= TP + 2: k(p2c[2 * (t - TP - 1)]); side.insert(0, None); side.insert(0, None); side.insert(min(4, len(side)), p2c[2 * (t - TP - 1) + 1])
        elif TP < t <= TP + 4: k(p2c[t - TP - 1])
        for i_, x_ in enumerate(late_t):
            if int(x_) == t: side.append(late[i_])
        if t == (o.get('TF', 24) if early else 28):
            Ln = k.label("nl")
            if early: k(f"s_cmp_lg_u32 s{s_w}, 0\ns_cbranch_scc1 {Ln}")
            k(f"s_mov_b32 s{s_t0}, {FP}\nbuffer_load_dwordx4 {vr(vfp,4)}, v{vl16}, {sr(sO,4)}, s{s_t0} offen sc1\n{Ln}:")
        e(23); cv(10); e(24); cv(11); e(25, 26)
        k(f"{M16} {vr(OY,16)}, {vr(V0,4)}, {vr(P,4)}, {z(OY)}")
        pr(6)
        e(27); cv(12); e(28); cv(13); e(29, 30, 31); cv(14)
        if not last:
            rv = rdV(t + 1)
            k(rv[0]); cv(15); k(rv[1]); k("s_nop 0")
        else:
            cv(15)
        k(f"{M16} {vr(OY,16)}, {vr(V1[t&1],4)}, {vr(P+4,4)}, {vr(OY,16)}")
    assert not side
    if o.get('fine') == 2: k.stamp(10)
    k("s_setprio 0")
    for j in range(3): k(f"ds_write_b128 v{vx1}, {vr(OY+4*j,4)} offset:{1024*j}")
    k(f"s_mov_b32 s{s_q1}, {f2u(2.0**64):#x}\ns_mov_b32 s{s_q2}, 0x7f800000")
    k("s_waitcnt lgkmcnt(0)\ns_barrier")
    for j in (2, 0, 1): k(f"ds_read_b128 {vr(OY+4*j,4)}, v{vx2} offset:{1024*j}")
    t0, t1, t2 = vt[0], vt[1], vt[2]
    k("s_waitcnt lgkmcnt(2)")
    for i in (4, 5): k(f"v_pk_add_f32 {vr(O+2*i,2)}, {vr(O+2*i,2)}, {vr(OY+2*i,2)}")
    k(f"v_mov_b32 v{t0}, v{O+8}\nv_mov_b32 v{t1}, v{O+8}\ns_waitcnt lgkmcnt(0)")
    for i in range(4): k(f"v_pk_add_f32 {vr(O+2*i,2)}, {vr(O+2*i,2)}, {vr(OY+2*i,2)}")
    k(f"""v_permlane32_swap_b32 v{t0}, v{t1}
    v_add_f32 v{t2}, |v{O+8}|, |v{O+9}|
    v_add_f32 v{vt[3]}, |v{O+10}|, |v{O+11}|""")
    for i in range(0, 8, 2): k(f"v_add_f32 v{t2}, |v{O+i}|, v{t2}\nv_add_f32 v{vt[3]}, |v{O+i+1}|, v{vt[3]}")
    k(f"""v_cmp_lt_f32 vcc, {f2u(2.0**-64):#x}, v{t1}
    v_add_f32 v{t2}, v{t2}, v{vt[3]}
    v_cmp_gt_f32 {sr(sE,2)}, s{s_q1}, v{t1}
    v_cmp_gt_f32 {sr(sG,2)}, s{s_q2}, v{t2}
    s_and_b64 vcc, vcc, {sr(sE,2)}
    s_and_b64 vcc, vcc, {sr(sG,2)}
    s_cmp_eq_u64 vcc, -1
    s_cbranch_scc0 {L_slow}
    {L_store}:
    v_rcp_f32 v{t0}, v{t1}
    v_rcp_f32 v{t1}, v{t1}""")
    assert t0 % 2 == 0 and t1 == t0 + 1
    for i in range(4): k(f"v_pk_mul_f32 {vr(O+2*i,2)}, {vr(O+2*i,2)}, {vr(t0,2)}")
    for i in range(4): k(f"v_cvt_pk_bf16_f32 v{O+i}, v{O+2*i}, v{O+2*i+1}")
    k(f"buffer_store_dwordx4 {vr(O,4)}, v{vo1}, {sr(sO,4)}, s{s_o1} offen{sc}")
    for i in range(4, 6): k(f"v_pk_mul_f32 {vr(O+2*i,2)}, {vr(O+2*i,2)}, {vr(t0,2)}")
    for i in range(4, 6): k(f"v_cvt_pk_bf16_f32 v{O+i}, v{O+2*i}, v{O+2*i+1}")
    k(f"""s_mov_b32 exec_hi, 0
    buffer_store_dwordx2 {vr(O+4,2)}, v{vo2}, {sr(sO,4)}, s{s_o2} offen{sc}
    s_mov_b32 exec_hi, -1""")
    def slow():
        vV = vKA; vm = vKR; cnt = s_t3
        k(f"""{L_slow}:
        s_lshl_b32 s{so[0]}, s{s_tok}, 4
        s_add_u32 s{so[0]}, s{so[0]}, s{s_pr}
        s_add_u32 s{so[0]}, s{so[0]}, s{s_odd8}
        v_mov_b32 v{Qr}, 0
        v_mov_b32 v{Qr+1}, 0
        s_mov_b32 exec_hi, 0
        buffer_load_dwordx2 {vr(Qr,2)}, v{vr31}, {sr(sO,4)}, s{so[0]} offen
        s_mov_b32 exec_hi, -1
        s_add_u32 s{so[0]}, s{s_pa}, {80*32768}
        s_add_u32 s{so[1]}, s{s_pr}, {80*32768}
        s_add_u32 s{so[1]}, s{so[1]}, s{s_odd8}
        v_mov_b32 v{vm}, 0xff800000
        s_mov_b32 s{cnt}, 0""")
        L1 = k.label("mx")
        k(f"""{L1}:
        buffer_load_dwordx4 {vr(Km,4)}, v{vq}, {sr(sO,4)}, s{so[0]} offen
        buffer_load_dwordx2 {vr(Kr,2)}, v{vr31}, {sr(sO,4)}, s{so[1]} offen
        s_add_u32 s{so[0]}, s{so[0]}, 512
        s_add_u32 s{so[1]}, s{so[1]}, 512
        s_waitcnt vmcnt(0)
        {M8} {vr(S[0],16)}, {vr(Kr,2)}, {vr(Qr,2)}, 0
        {M16} {vr(S[0],16)}, {vr(Km,4)}, {vr(Qm,4)}, {vr(S[0],16)}""")
        for i in range(8): k(f"v_max3_f32 v{vm}, v{S[0]+2*i}, v{S[0]+2*i+1}, v{vm}")
        k(f"""s_add_u32 s{cnt}, s{cnt}, 1
        s_cmp_lt_u32 s{cnt}, 64
        s_cbranch_scc1 {L1}
        v_mov_b32 v{t0}, v{vm}
        v_permlane32_swap_b32 v{t0}, v{vm}
        v_max_f32 v{vm}, v{vm}, v{t0}""")
        for i in range(16): k(f"v_sub_f32 v{C+i}, 0, v{vm}\nv_mov_b32 v{O+i}, 0")
        k(f"""s_add_u32 s{so[0]}, s{s_pa}, {80*32768}
        s_add_u32 s{so[1]}, s{s_pr}, {80*32768}
        s_add_u32 s{so[1]}, s{so[1]}, s{s_odd8}
        s_mul_i32 s{so[2]}, s{s_h}, 320
        s_add_u32 s{so[2]}, s{so[2]}, {VIMG}
        v_lshrrev_b32 v{vV}, 5, v{vl}
        v_mul_u32_u24 v{vV}, 10240, v{vV}
        v_add3_u32 v{vV}, v{vV}, v{vr31}, s{so[2]}
        v_add_u32 v{vD[1]}, 20480, v{vV}
        v_cmp_gt_u32 vcc, 320, v{vr31}
        v_mov_b32 v{vD[2]}, {ONES}
        v_mov_b32 v{vDd[0]}, 40960
        v_cndmask_b32 v{vV}, v{vD[2]}, v{vV}, vcc
        v_cndmask_b32 v{vD[1]}, v{vD[2]}, v{vD[1]}, vcc
        v_cndmask_b32 v{vDd[0]}, 0, v{vDd[0]}, vcc
        s_mov_b32 s{cnt}, 0""")
        L2 = k.label("pv")
        k(f"""{L2}:
        buffer_load_dwordx4 {vr(Km,4)}, v{vq}, {sr(sO,4)}, s{so[0]} offen
        buffer_load_dwordx2 {vr(Kr,2)}, v{vr31}, {sr(sO,4)}, s{so[1]} offen
        buffer_load_dwordx4 {vr(V0,4)}, v{vV}, {sr(sO,4)}, 0 offen
        buffer_load_dwordx4 {vr(V1[0],4)}, v{vD[1]}, {sr(sO,4)}, 0 offen
        s_add_u32 s{so[0]}, s{so[0]}, 512
        s_add_u32 s{so[1]}, s{so[1]}, 512
        v_add_u32 v{vV}, v{vV}, v{vDd[0]}
        v_add_u32 v{vD[1]}, v{vD[1]}, v{vDd[0]}
        s_waitcnt vmcnt(0)
        {M8} {vr(S[0],16)}, {vr(Kr,2)}, {vr(Qr,2)}, {vr(C,16)}
        {M16} {vr(S[0],16)}, {vr(Km,4)}, {vr(Qm,4)}, {vr(S[0],16)}""")
        for i in range(16): k(f"v_exp_f32 v{S[0]+i}, v{S[0]+i}")
        for i in range(8): k(f"v_cvt_pk_bf16_f32 v{P+i}, v{S[0]+2*i}, v{S[0]+2*i+1}")
        k(f"""{M16} {vr(O,16)}, {vr(V0,4)}, {vr(P,4)}, {vr(O,16)}
        {M16} {vr(O,16)}, {vr(V1[0],4)}, {vr(P+4,4)}, {vr(O,16)}
        s_add_u32 s{cnt}, s{cnt}, 1
        s_cmp_lt_u32 s{cnt}, 64
        s_cbranch_scc1 {L2}
        v_mov_b32 v{t0}, v{O+8}
        v_mov_b32 v{t1}, v{O+8}
        v_permlane32_swap_b32 v{t0}, v{t1}
        s_branch {L_store}""")
    slow_code = deferred(slow)
    L3 = k.label("ld")
    k.stamp(8); k.nst = 8
    if o.get('fine1') or o.get('fine') == 2:
        k.maxst = 14; k.stamp = lambda *a, **kw: None
    k(f"""s_lshr_b32 s{c.s_f}, s2, 5
    s_lshl_b32 s{c.s_f}, s{c.s_f}, 5
    s_add_u32 s{c.s_f}, s{c.s_f}, s{s_h}
    s_lshl_b32 s{c.s_f}, s{c.s_f}, {FL}
    s_add_u32 s{c.s_f}, s{c.s_f}, {F2}""")
    k("; ---- P3 o-proj")
    P3 = P35(c, 3, D=o.get('D3', 20), D0=o.get('D30', 6), early=early)
    cin = o.get('cinit', True)
    P3.rowmap = o.get('row3', cin); P3.cinit = cin
    k(P3.ptr_load()); P3.ids()
    lw(c, L3)
    def handoff(vt, stmp, n, idle=None):
        Ln = k.label("nw0"); Ls = k.label("ns0")
        k("s_barrier")
        k(f"s_cmp_lg_u32 s{c.s_w}, 0\ns_cbranch_scc1 {Ls}")
        c.signal(c.s_f, vt)
        k(f"{Ls}:")
        if idle: idle()
        k(f"s_cmp_lg_u32 s{c.s_w}, 0\ns_cbranch_scc1 {Ln}")
        c.poll(c.s_p, n, vt, stmp)
        k(f"{Ln}:\ns_barrier")
    P3.setup()
    k(f"""s_lshr_b32 s{c.s_p}, s{P3.s_tb16}, 4
    s_lshl_b32 s{c.s_p}, s{c.s_p}, {FL+5}
    s_add_u32 s{c.s_p}, s{c.s_p}, {F2}
    s_waitcnt vmcnt({0 if cin else 3})""")
    def idle3():
        P3.keep_addr(); P3.load_cinit()
    handoff(P3.vt[0], P3.s_t0, 32, idle3 if cin else None)
    k.stamp('n')
    if o.get('fine') == 3: P3.fine = {0: 2, 1: 3, 4: 4, 8: 5, 12: 6, 16: 7, 19: 8}
    P3.main(init=False, resident=True)
    P3.lateD = o.get('lateD', True)
    if not P3.lateD: k("s_barrier")
    P3.epilogue()
    k(f"""s_lshr_b32 s{c.s_f}, s{P3.s_tb16}, 3
    s_lshl_b32 s{c.s_f}, s{c.s_f}, 5
    s_bfe_u32 s{P3.s_t0}, s{P3.s_tb16}, 0x10002
    s_lshl_b32 s{P3.s_t0}, s{P3.s_t0}, 3
    s_add_u32 s{c.s_f}, s{c.s_f}, s{P3.s_t0}
    s_add_u32 s{c.s_f}, s{c.s_f}, s{P3.s_c}
    s_lshl_b32 s{c.s_f}, s{c.s_f}, {FL}
    s_add_u32 s{c.s_f}, s{c.s_f}, {F3}""")
    Q4 = P4(c, D=o.get('D4', 12), D0=o.get('D40', 4)); Q4.ahead = o.get('ahead4', 4); Q4.thin = o.get('thin4'); Q4.nob = o.get('nob'); Q4.mcorr = o.get('mcorr', True); Q4.lstat = o.get('lstat', True); Q4.bsched = o.get('bsched', (1, 2)); Q4.tmaj = o.get('tmaj', True); Q4.pkall = o.get('pkall', False); Q4.jstart = o.get('jstart', 2)
    if Q4.tmaj: Q4.wsched = o.get('wsched', {4: (), 5: (0, 1), 6: (2, 3), 7: (4, 5, 6)})
    Q4.ids(); Q4.setup()
    k(f"""s_lshr_b32 s{c.s_p}, s{Q4.s_tb}, 2
    s_lshl_b32 s{c.s_p}, s{c.s_p}, {FL+5}
    s_add_u32 s{c.s_p}, s{c.s_p}, {F3}
    s_waitcnt vmcnt(0)""")
    k.stamp('n')
    handoff(Q4.st, Q4.s_t1, 16)
    k.stamp('n')
    Q4.fine2 = o.get('fine') == 41
    if o.get('fine') == 4: Q4.fine = {0: 2, 1: 3, 4: 4, 12: 5, 20: 6, 30: 7, 31: 8}
    noG = Q4.tmaj and o.get('e5', 4) >= o.get('pre5', 4) and o.get('noG', True)
    Q4.main(init=False, endbar=not noG)
    if not Q4.tmaj: Q4.epilogue(k.label("fin"))
    k(f"""s_lshr_b32 s{c.s_f}, s{Q4.s_tb}, 2
    s_lshl_b32 s{c.s_f}, s{c.s_f}, 5
    s_add_u32 s{c.s_f}, s{c.s_f}, s{Q4.s_g}
    s_lshl_b32 s{c.s_f}, s{c.s_f}, {FL}
    s_add_u32 s{c.s_f}, s{c.s_f}, {F4}""")
    pair5 = o.get('pair5', True)
    P5 = P35(c, 5, D=o.get('D5', 8 if pair5 else 12), D0=o.get('D50', 4), pair=pair5); P5.ahead = o.get('ahead5', 5); P5.rowmap = o.get('row5', True); P5.bar8 = o.get('bar8', True); P5.ofl = o.get('ofl', '')
    k("; ---- P5 down")
    k("s_nop 1"); k(P5.ptr_load()); P5.ids(); P5.setup()
    if pair5: P5.setup_pair()
    k(f"""s_lshr_b32 s{c.s_p}, s{P5.s_tb16}, 3
    s_lshl_b32 s{c.s_p}, s{c.s_p}, {FL+5}
    s_add_u32 s{c.s_p}, s{c.s_p}, {F4}
    s_waitcnt vmcnt(0)""")
    k.stamp('n')
    def idle5():
        P5.keep_addr(); P5.load_cinit()
    P5.cinit = cin and P3.rowmap == P5.rowmap
    handoff(P5.vt[0], P5.s_t0, 16, idle5 if P5.cinit else None)
    k.stamp('n')
    if o.get('fine') == 5: P5.fine = {0: 2, 1: 3, 8: 4, 16: 5, 28: 6, 40: 7, 53: 8}
    if pair5:
        if o.get('fine') == 5: P5.fine = {0: 2, 1: 3, 4: 4, 8: 5, 14: 6, 20: 7, 26: 8}
        P5.main_pair()
    else: P5.main(init=False)
    P5.epilogue()
    if o.get('dbgst') is not None:
        Ln = k.label("dn")
        k.stamp(14); k.stamp_real(15)
        k(f"s_cmp_lg_u32 s2, {o['dbgst']}\ns_cbranch_scc1 {Ln}\ns_cmp_lg_u32 s{s_w}, 0\ns_cbranch_scc1 {Ln}\ns_waitcnt lgkmcnt(0)\nv_mov_b32 v1, 0\ns_mov_b64 exec, 1")
        pos = [1, 2, 3, 5, 6, 7, 9, 10, 11, 13, 14, 15]
        src = [2, 3, 6, 7, 8, 9, 11, 12, 13, 14]
        for p_, i in zip(pos, src):
            k(f"s_sub_u32 s66, s{k.sT+2*i}, s{k.sT+2}\nv_mov_b32 v2, s66\nbuffer_store_dword v2, v1, {sr(sD,4)}, 0 offen offset:{4*p_}")
        k(f"s_sub_u32 s66, s{k.sT+30}, s{k.sT}\nv_mov_b32 v2, s66\nbuffer_store_dword v2, v1, {sr(sD,4)}, 0 offen offset:60\n{Ln}:\ns_endpgm")
        k(f"{c.L_end}:\ns_endpgm")
    else:
        c.finish()
    k(f"{L3}:")
    if early:
        P3.ld_setup()
        k(f"s_add_u32 s{P3.s_wo}, s{P3.s_wo}, {16*40960}\ns_waitcnt vmcnt(0)\ns_barrier")
        P3.ld_chunk(0)
        k("s_waitcnt vmcnt(0)\ns_barrier")
    else:
        Lp = k.label("fp"); Lok = k.label("fpok")
        k(f"""s_mov_b32 s{P3.s_cnt}, 0
        s_waitcnt vmcnt(2)
        {Lp}:
        v_min_u32 v{vfp}, v{vfp}, v{vfp+1}
        v_min3_u32 v{vfp}, v{vfp}, v{vfp+2}, v{vfp+3}
        s_add_u32 s{P3.s_cnt}, s{P3.s_cnt}, 1
        v_cmp_ne_u32 vcc, 0, v{vfp}
        s_cmp_eq_u64 vcc, -1
        s_cbranch_scc1 {Lok}
        s_cmp_gt_u32 s{P3.s_cnt}, 0x40000
        s_cbranch_scc1 {Lok}
        s_mov_b32 s{P3.s_t0}, {FP}
        buffer_load_dwordx4 {vr(vfp,4)}, v{c.vl16}, {sr(c.sO,4)}, s{P3.s_t0} offen sc1
        s_waitcnt vmcnt(0)
        s_branch {Lp}
        {Lok}:""")
        P3.ld_setup()
        k("s_waitcnt vmcnt(0)\ns_barrier")
        for ch in range(5): P3.ld_chunk(ch)
        k("s_waitcnt vmcnt(0)\ns_barrier")
    Q4.ids(); Q4.ld_setup()
    k("s_barrier")
    n4 = o.get('pre4', 3)
    for ch in range(n4): Q4.ld_chunk(ch)
    k("s_barrier")
    for ch in range(n4, 5): Q4.ld_chunk(ch)
    Q4.ld_cs()
    k("s_waitcnt vmcnt(29)\ns_barrier")
    rg5 = None
    if o.get('reg5', True):
        rg5 = dict(base=20, addr=[8, 9, 10])
        s5 = 64
        def warm():
            if P5.rowmap: k(f"s_lshr_b32 s{Q4.s_t0}, s2, 5")
            else: k(f"""s_bfe_u32 s{Q4.s_t0}, s2, 0x10002
            s_lshl_b32 s{Q4.s_t0}, s{Q4.s_t0}, 2
            s_lshr_b32 s{Q4.s_t1}, s2, 6
            s_add_u32 s{Q4.s_t0}, s{Q4.s_t0}, s{Q4.s_t1}""")
            k(f"""s_lshl_b32 s{Q4.s_t1}, s{c.s_wl}, 3
            s_add_u32 s{Q4.s_t0}, s{Q4.s_t0}, s{Q4.s_t1}
            s_mul_i32 s{Q4.s_t0}, s{Q4.s_t0}, 5120
            s_add_u32 s{Q4.s_t0}, s{Q4.s_t0}, {WDP + 28*40960}""")
        def warm_chunk(j):
            k(f"s_add_u32 s{Q4.s_t1}, s{Q4.s_t0}, 4096")
            for i in range(5):
                k(f"buffer_load_dwordx4 {vr(rg5['base'] + 20*j + 4*i, 4)}, v{c.vl16}, {sr(c.sO,4)}, s{Q4.s_t0 if i < 4 else Q4.s_t1} offen offset:{(i%4)*1024}")
            k(f"s_add_u32 s{Q4.s_t0}, s{Q4.s_t0}, {4*40960}")
        Q4.warm = warm; Q4.warm_chunk = warm_chunk
    if Q4.lstat: Q4.ld_stats()
    e5 = o.get('e5', 4) if Q4.tmaj else 0
    if e5:
        ws7 = Q4.wsched[7]; Q4.wsched = dict(Q4.wsched); Q4.wsched[7] = ()
        sv = (k.s(), )
    Q4.ld_main(5, 1, init=False)
    if e5: k(f"s_mov_b32 s{c.s_p}, s{Q4.s_t0}")
    P5.ids(); P5.ld_setup()
    k(f"""v_add_u32 v8, s{P5.s_m0}, v{c.vl16}
    v_add_u32 v9, {3*P5.SLOT}, v8
    v_add_u32 v10, {6*P5.SLOT}, v8""")
    if e5:
        def wc(j):
            k(f"s_add_u32 s{c.s_f}, s{c.s_p}, 4096")
            for i in range(5):
                k(f"buffer_load_dwordx4 {vr(rg5['base'] + 20*j + 4*i, 4)}, v{c.vl16}, {sr(c.sO,4)}, s{c.s_p if i < 4 else c.s_f} offen offset:{(i%4)*1024}")
            k(f"s_add_u32 s{c.s_p}, s{c.s_p}, {4*40960}")
        th = o.get('thin5')
        if o.get('e5first'):
            for ch in range(e5):
                P5.ld_chunk(ch)
                if th is not None: k(f"s_waitcnt vmcnt({th})")
        for j in ws7:
            wc(j)
            if th is not None: k(f"s_waitcnt vmcnt({th})")
        if not o.get('e5first'):
            for ch in range(e5):
                P5.ld_chunk(ch)
                if th is not None and ch < e5 - 1: k(f"s_waitcnt vmcnt({th})")
    if not noG: k("s_barrier")
    n5 = max(e5, o.get('pre5', 4))
    for ch in range(e5, n5): P5.ld_chunk(ch)
    k("s_barrier")
    for ch in range(n5, 7): P5.ld_chunk(ch)
    if P5.bar8:
        k("s_waitcnt vmcnt(25)\ns_barrier")
        P5.ld_main8(rg5, 1 if pair5 else 0)
    else:
        k("s_waitcnt vmcnt(30)\ns_barrier")
        P5.ld_main(7, init=False)
    if K.STAMP and o.get('dbgst') is None:
        for i in range(9, 15): k.stamp(i)
        k.stamp_flush(c.sO, c.s_w)
    k("s_endpgm")
    k.lines += ['    ; ---- softmax fall-back with the true row maximum'] + slow_code + ['    ; ---- statistics workgroups'] + spare_code
    return k, (256, 512, max(P3.lds, Q4.lds, P5.lds, P35.HKEEP + 10240 + 512 if cin else 0))
```

```python
from ph2 import *
NAME = "sequential_preLN__softmax_full_mha__swiglu_ffn__prompt_kernel"

def gen(opt):
    o = opt('M')
    c = Ctx(NAME, True); k = c.k
    sO = c.sO; sWS = c.sWS; s_w = c.s_w; s_wl = c.s_wl; vl = c.vl; vl16 = c.vl16; sc = c.sc
    rot = o.get('rot', True); c.pdepth = o.get('pd', 1)
    sD = k.s(4)
    s_po = k.s(); s_cs = k.s(); vPA = k.v(); vPS = k.v(); sA = k.s(4); sB = k.s(4); sR = [k.s() for _ in range(5)]
    c.s0 = k.snext; c.v0 = k.vnext
    SLOT = 32768; NS = 4
    SL = 12288; VB = 3 * SL; PREP = 6 * SL; EXB = PREP
    sP = k.s(4); sX = sA; sW = sB; sQ = k.s(8); sWD = k.s(2); sPC = k.s(2)
    s_tb = k.s(); s_cg = k.s(); s_t0 = k.s(); s_t2 = k.s()
    s_ow, s_m0x, s_slot, s_delta, s_t1 = sR
    s_ox = k.s(); s_cnt = k.s(); s_rs = k.s(); s_msk = k.s()
    vt = [k.v() for _ in range(6)]
    vXA = [k.v() for _ in range(4)]; vWA = [k.v(), k.v()]
    vX = [k.v() for _ in range(4)]; vW = [k.v() for _ in range(4)]
    acc = [[k.v(16, 4) for _ in range(2)] for _ in range(2)]
    fx = [[k.v(4, 4) for _ in range(2)] for _ in range(2)]
    fw = [[k.v(4, 4) for _ in range(2)] for _ in range(2)]
    acs = k.v(16, 4); ones = k.v(4, 4); vpf = k.v(16, 4)
    XCH = NS * SLOT; NM, RS, CS = 0, 512, 1024
    L_spare = k.label("spare"); L_v = k.label("vpath"); L_J0 = k.label("J0"); L_comp = k.label("comp")
    k.kidx = 1; k.stamp_real(0); k.stamp(1)
    k(f"""s_load_dwordx4 {sr(sP,4)}, s[0:1], {KA_X}
    s_load_dwordx4 {sr(sD,4)}, s[0:1], {KA_DBG}
    s_cmp_ge_u32 s2, 256
    s_cbranch_scc1 {c.L_end}
    v_lshrrev_b32 v{vt[0]}, 6, v0
    v_and_b32 v{vl}, 63, v0
    v_readfirstlane_b32 s{s_w}, v{vt[0]}
    s_and_b32 s{s_t0}, s2, 3
    s_lshl_b32 s{s_t0}, s{s_t0}, 2
    s_bfe_u32 s{s_t1}, s2, 0x20003
    s_add_u32 s{s_tb}, s{s_t0}, s{s_t1}
    s_bfe_u32 s{s_t0}, s2, 0x10002
    s_lshr_b32 s{s_t1}, s2, 5""")
    if o.get('sfirst', True): k(f"s_sub_u32 s{s_t1}, s{s_t1}, s{s_t0}\ns_and_b32 s{s_t1}, s{s_t1}, 7")
    k(f"""s_lshl_b32 s{s_t0}, s{s_t0}, 3
    s_add_u32 s{s_cg}, s{s_t0}, s{s_t1}
    s_and_b32 s{s_wl}, s{s_w}, 3
    s_cmp_eq_u32 s{s_cg}, 15
    s_cbranch_scc1 {L_spare}
    s_cmp_ge_u32 s{s_w}, 4
    s_cbranch_scc1 {L_comp}
    v_lshrrev_b32 v{vt[0]}, 3, v{vl}
    v_lshl_add_u32 v{vt[0]}, s{s_w}, 5, v{vt[0]}
    v_mul_u32_u24 v{vt[0]}, 1280, v{vt[0]}
    v_lshrrev_b32 v{vt[1]}, 4, v{vl}
    v_and_b32 v{vt[2]}, 7, v{vl}
    v_xor_b32 v{vt[2]}, v{vt[2]}, v{vt[1]}
    v_lshl_add_u32 v{vX[0]}, v{vt[2]}, 4, v{vt[0]}
    v_xor_b32 v{vX[1]}, 64, v{vX[0]}
    v_add_u32 v{vX[2]}, {2*(8*1280-1024)}, v{vX[0]}
    v_add_u32 v{vX[1]}, {8*1280-1024}, v{vX[1]}
    v_add_u32 v{vX[3]}, {2*(8*1280-1024)}, v{vX[1]}
    v_lshl_add_u32 v{vt[0]}, s{s_w}, 4, v{vt[1]}
    v_mul_u32_u24 v{vt[0]}, 3840, v{vt[0]}
    v_and_b32 v{vt[2]}, 15, v{vl}
    v_lshlrev_b32 v{vt[3]}, 2, v{vt[1]}
    v_xor_b32 v{vt[2]}, v{vt[2]}, v{vt[3]}
    v_lshl_add_u32 v{vW[0]}, v{vt[2]}, 4, v{vt[0]}
    v_add_u32 v{vW[1]}, {4*3840-1024}, v{vW[0]}
    v_add_u32 v{vW[2]}, {2*(4*3840-1024)}, v{vW[0]}
    v_add_u32 v{vW[3]}, {3*(4*3840-1024)}, v{vW[0]}
    s_mul_i32 s{s_t0}, s{s_tb}, {128*1280}
    s_lshl_b32 s{s_t1}, s{s_cg}, 8
    s_lshl_b32 s{s_m0x}, s{s_w}, 12
    s_mov_b32 s{sX+2}, {128*1280}
    s_mov_b32 s{sX+3}, 0x20000
    s_sub_u32 s{sW+2}, {640*3840}, s{s_t1}
    s_mov_b32 s{sW+3}, 0x20000""")
    r0 = o.get('rot0', 1)
    if rot and not r0: k(f"s_and_b32 s{s_t2}, s2, 7\ns_lshl_b32 s{s_ox}, s{s_t2}, 7\ns_mul_i32 s{s_ow}, s{s_t2}, {64*3840}")
    else: k(f"s_mov_b32 s{s_ox}, 0\ns_mov_b32 s{s_ow}, 0")
    k(f"""s_waitcnt lgkmcnt(0)
    s_add_u32 s{sX}, s{sP}, s{s_t0}
    s_addc_u32 s{sX+1}, s{sP+1}, 0
    s_add_u32 s{sW}, s{sP+2}, s{s_t1}
    s_addc_u32 s{sW+1}, s{sP+3}, 0""")
    def dma_chunk(slot_const=None):
        if slot_const is not None: k(f"s_add_u32 m0, s{s_m0x}, {slot_const*SLOT}")
        else: k(f"s_add_u32 m0, s{s_m0x}, s{s_rs}")
        k(f"s_add_u32 s{s_t0}, s{s_ox}, 128")
        for i in range(4):
            k(f"buffer_load_dwordx4 v{vX[i]}, {sr(sX,4)}, s{s_ox} offen offset:{i*1024} lds")
        k(f"s_add_u32 m0, m0, 16384\ns_add_u32 s{s_t1}, s{s_ow}, {64*3840}")
        for i in range(4):
            k(f"buffer_load_dwordx4 v{vW[i]}, {sr(sW,4)}, s{s_ow} offen offset:{i*1024} lds")
        if r0 and slot_const == r0 - 1:
            k(f"s_and_b32 s{s_t2}, s2, 7\ns_add_u32 s{s_t2}, s{s_t2}, {r0}\ns_lshl_b32 s{s_ox}, s{s_t2}, 7\ns_mul_i32 s{s_ow}, s{s_t2}, {64*3840}")
        else:
            k(f"s_cmp_eq_u32 s{s_t0}, 1280\ns_cselect_b32 s{s_ox}, {128*r0}, s{s_t0}\ns_cselect_b32 s{s_ow}, {64*3840*r0}, s{s_t1}")
    def common_setup(ptrs=True):
        k(f"""s_mov_b64 {sr(sWS,2)}, {sr(sD+2,2)}
        s_movk_i32 s{sD+2}, 256
        s_mov_b32 s{sD+3}, 0x20000
        v_lshlrev_b32 v{vl16}, 4, v{vl}""")
        srd(k, sO, sWS, sWS + 1, WSEND)
        if ptrs: k(f"s_load_dwordx8 {sr(sQ,8)}, s[0:1], {KA_WO}\ns_load_dwordx2 {sr(sWD,2)}, s[0:1], {KA_WD}")
    def xaddr():
        k(f"""v_and_b32 v{vt[0]}, 31, v{vl}
        v_lshrrev_b32 v{vt[1]}, 5, v{vl}
        v_bfe_u32 v{vt[2]}, v{vl}, 1, 3
        v_xor_b32 v{vt[2]}, v{vt[2]}, v{vt[1]}
        v_lshlrev_b32 v{vt[2]}, 4, v{vt[2]}
        v_lshl_add_u32 v{vt[2]}, v{vt[0]}, 7, v{vt[2]}""")
    def advance(regs):
        k(f"s_cmp_eq_u32 s{s_slot}, {(NS-1)*SLOT}\ns_mov_b32 s{s_delta}, {SLOT}")
        k(f"s_cselect_b32 s{s_delta}, {(-(NS-1)*SLOT) & 0xffffffff}, s{s_delta}")
        k(f"s_add_u32 s{s_slot}, s{s_slot}, s{s_delta}")
        return [f"v_add_u32 v{r}, s{s_delta}, v{r}" for r in regs]
    def prep_decode(loads):
        pid, cb, st = s_t0, s_t2, s_ox
        R0, A_, B_, C_, u = sR
        Ld = k.label("pd"); Lg = k.label("pg")
        k(f"""s_lshl_b32 s{pid}, s2, 2
        s_add_u32 s{pid}, s{pid}, s{s_wl}
        s_mov_b32 s{B_}, 8
        s_mov_b32 s{C_}, 4
        v_bfe_u32 v{vt[2]}, v{vl}, 4, 1
        v_lshrrev_b32 v{vt[1]}, 5, v{vl}
        s_waitcnt lgkmcnt(0)
        s_cmp_ge_u32 s{pid}, 560
        s_cbranch_scc1 {Ld}
        s_mul_i32 s{u}, s{pid}, 4682
        s_lshr_b32 s{u}, s{u}, 16
        s_mul_i32 s{cb}, s{u}, 14
        s_sub_u32 s{cb}, s{pid}, s{cb}
        s_mul_i32 s{s_po}, s{u}, {112*1024}
        s_add_u32 s{s_po}, s{s_po}, {WGUP}
        s_mov_b32 s{s_cs}, {CSG}
        v_lshlrev_b32 v{vt[2]}, 11, v{vt[2]}
        v_lshl_add_u32 v{vt[3]}, v{vt[1]}, 9, v{vt[2]}""")
        if loads:
            k(f"""s_lshl_b32 s{R0}, s{u}, 4
            s_mov_b32 s{A_}, 0
            s_movk_i32 s{st}, 3456
            s_mov_b64 {sr(sA,2)}, {sr(sQ+4,2)}
            s_mov_b64 {sr(sB,2)}, {sr(sQ+6,2)}
            s_mov_b32 s{sA+2}, {640*3456}""")
        k(f"""s_branch {Lg}
        {Ld}:
        s_min_u32 s{pid}, s{pid}, 929
        s_cmp_lt_u32 s{pid}, 830
        s_movk_i32 s{cb}, 830
        s_cselect_b32 s{cb}, 560, s{cb}
        s_mov_b32 s{s_po}, {WOP}
        s_cselect_b32 s{s_po}, {WDP}, s{s_po}""")
        if loads:
            k(f"""s_cselect_b64 {sr(sA,2)}, {sr(sWD,2)}, {sr(sQ,2)}
            s_cselect_b32 s{A_}, 16, 20
            s_cselect_b32 s{R0}, 32, 40
            s_mov_b32 s{sA+2}, {640*1280}
            s_cselect_b32 s{sA+2}, {1728*1280}, s{sA+2}""")
        k(f"""s_sub_u32 s{cb}, s{pid}, s{cb}
        s_mul_i32 s{u}, s{cb}, 13108
        s_lshr_b32 s{u}, s{u}, 16
        s_mul_i32 s{st}, s{u}, 5
        s_sub_u32 s{cb}, s{cb}, s{st}
        s_mul_i32 s{st}, s{u}, {40*1024}
        s_add_u32 s{s_po}, s{s_po}, s{st}
        s_mov_b32 s{s_cs}, {WSEND}
        v_lshlrev_b32 v{vt[2]}, 9, v{vt[2]}
        v_lshl_add_u32 v{vt[3]}, v{vt[1]}, 11, v{vt[2]}""")
        if loads:
            k(f"""s_mul_i32 s{R0}, s{R0}, s{u}
            s_mul_i32 s{st}, s{u}, 160
            s_sub_u32 s{st}, s{st}, {16*160-16}
            s_cmp_ge_u32 s{pid}, 910
            s_cselect_b32 s{R0}, s{st}, s{R0}
            s_cselect_b32 s{A_}, 80, s{A_}
            s_cselect_b32 s{B_}, 20, 8
            s_cselect_b32 s{C_}, 40, 4
            s_movk_i32 s{st}, 1280
            s_mov_b64 {sr(sB,2)}, {sr(sA,2)}""")
        k(f"""{Lg}:
        s_lshl_b32 s{cb}, s{cb}, 1
        s_lshr_b32 s{pid}, s{s_w}, 2
        s_add_u32 s{pid}, s{pid}, s{cb}
        s_lshl_b32 s{u}, s{pid}, 12
        s_add_u32 s{s_po}, s{s_po}, s{u}
        s_lshl_b32 s{u}, s{pid}, 9
        s_add_u32 s{s_cs}, s{s_cs}, s{u}
        v_bfe_u32 v{vt[2]}, v{vl}, 2, 2
        v_lshl_add_u32 v{vt[3]}, v{vt[2]}, 7, v{vt[3]}
        v_and_b32 v{vt[2]}, 3, v{vl}
        v_lshl_add_u32 v{vt[3]}, v{vt[2]}, 3, v{vt[3]}
        s_lshl_b32 s{u}, s{s_w}, 12
        s_add_u32 s{u}, s{u}, {PREP}
        v_add_u32 v{vPA}, s{u}, v{vt[3]}""")
        if loads:
            k(f"""s_mov_b32 s{sB+2}, s{sA+2}
            s_mov_b32 s{sA+3}, 0x20000
            s_mov_b32 s{sB+3}, 0x20000
            v_mul_u32_u24 v{vt[2]}, s{C_}, v{vt[1]}
            v_bfe_u32 v{vt[3]}, v{vl}, 3, 2
            v_add_u32 v{vt[2]}, v{vt[2]}, v{vt[3]}
            v_mul_u32_u24 v{vt[2]}, s{st}, v{vt[2]}
            v_and_b32 v{vt[3]}, 7, v{vl}
            v_lshl_add_u32 v{vPS}, v{vt[3]}, 4, v{vt[2]}
            s_mul_i32 s{R0}, s{R0}, s{st}
            s_lshl_b32 s{cb}, s{pid}, 7
            s_add_u32 s{R0}, s{R0}, s{cb}
            s_mul_i32 s{A_}, s{A_}, s{st}
            s_mul_i32 s{B_}, s{B_}, s{st}
            s_add_u32 s{A_}, s{A_}, s{R0}
            s_add_u32 s{C_}, s{A_}, s{B_}
            s_add_u32 s{B_}, s{B_}, s{R0}""")
    TD = o.get('TD', 0)
    sTX, sTW = sQ, sQ + 4; s_tx, s_tw = sWD, sWD + 1; vTX, vTW = vXA[0], vXA[1]
    def touch():
        k(f"""s_mov_b64 exec, 0xf
        buffer_load_dword v{vXA[2]}, v{vTX}, {sr(sTX,4)}, s{s_tx} offen
        s_mov_b64 exec, 0xff
        buffer_load_dword v{vXA[3]}, v{vTW}, {sr(sTW,4)}, s{s_tw} offen
        s_mov_b64 exec, -1
        s_add_u32 s{s_tx}, s{s_tx}, 128
        s_add_u32 s{s_tw}, s{s_tw}, {64*3840}
        s_cmp_eq_u32 s{s_tx}, 1280
        s_cselect_b32 s{s_tx}, 0, s{s_tx}
        s_cselect_b32 s{s_tw}, 0, s{s_tw}""")
    dma_chunk(0); dma_chunk(1)
    if TD:
        k(f"""s_mov_b64 {sr(sTX,2)}, {sr(sP,2)}
        s_mov_b32 s{sTX+2}, {2048*1280}
        s_mov_b32 s{sTX+3}, 0x20000
        s_mov_b64 {sr(sTW,2)}, {sr(sP+2,2)}
        s_mov_b32 s{sTW+2}, {640*3840}
        s_mov_b32 s{sTW+3}, 0x20000
        s_lshr_b32 s{s_t0}, s2, 3
        s_lshl_b32 s{s_t0}, s{s_t0}, 2
        s_add_u32 s{s_t0}, s{s_t0}, s{s_w}
        s_lshl_b32 s{s_t1}, s{s_t0}, 2
        s_and_b32 s{s_t2}, s2, 3
        s_lshl_b32 s{s_t2}, s{s_t2}, 9
        s_add_u32 s{s_t1}, s{s_t1}, s{s_t2}
        v_add_u32 v{vTX}, s{s_t1}, v{vl}
        v_mul_u32_u24 v{vTX}, 1280, v{vTX}
        s_lshr_b32 s{s_t1}, s{s_t0}, 1
        s_mul_i32 s{s_t1}, s{s_t1}, 3840
        s_and_b32 s{s_t0}, s{s_t0}, 1
        s_lshl_b32 s{s_t0}, s{s_t0}, 10
        s_add_u32 s{s_t1}, s{s_t1}, s{s_t0}
        s_bfe_u32 s{s_t0}, s2, 0x10002
        s_lshl_b32 s{s_t0}, s{s_t0}, 11
        s_add_u32 s{s_t1}, s{s_t1}, s{s_t0}
        v_lshl_add_u32 v{vTW}, v{vl}, 7, s{s_t1}
        s_mov_b32 s{s_tx}, s{s_ox}
        s_mov_b32 s{s_tw}, s{s_ow}""")
        for _ in range(TD + 1): touch()
    common_setup(ptrs=not TD)
    k(f"""s_mov_b32 s{s_rs}, {3*SLOT}
    s_waitcnt vmcnt({8 + (2*TD+2 if TD else 0)})
    s_barrier""")
    k.stamp(2)
    dma_chunk(2)
    L = k.label("hloop"); Lz = k.label("hz"); Lzx = k.label("hzx"); Lnz = k.label("hnz")
    nt = 7 - TD if TD else 0
    def hit(n, tch, vm):
        if n <= 0: return
        L = k.label("hloop")
        k(f"s_mov_b32 s{s_cnt}, {n}\n{L}:\ns_waitcnt vmcnt({vm})\ns_barrier")
        dma_chunk()
        if tch: touch()
        k(f"""s_add_u32 s{s_rs}, s{s_rs}, {SLOT}
        s_and_b32 s{s_rs}, s{s_rs}, {NS*SLOT-1}
        s_sub_u32 s{s_cnt}, s{s_cnt}, 1
        s_cmp_lg_u32 s{s_cnt}, 0
        s_cbranch_scc1 {L}""")
    hit(nt, True, 8 if not TD else 10); hit(7 - nt, False, 8)
    if TD: k(f"s_load_dwordx8 {sr(sQ,8)}, s[0:1], {KA_WO}\ns_load_dwordx2 {sr(sWD,2)}, s[0:1], {KA_WD}")
    Lw0 = k.label("hw0")
    k(f"""s_cmp_eq_u32 s{s_w}, 0
    s_cbranch_scc1 {Lw0}
    s_waitcnt vmcnt(8)
    s_barrier
    s_waitcnt vmcnt(0)
    s_barrier
    s_branch {Lnz}
    {Lw0}:
    v_and_b32 v{vt[3]}, 15, v{vl}
    v_lshlrev_b32 v{vt[3]}, 4, v{vt[3]}
    buffer_load_dword v{vt[4]}, v{vt[3]}, {sr(sD,4)}, 0 offen sc1
    s_waitcnt vmcnt(9)
    s_barrier
    s_waitcnt vmcnt(1)
    s_barrier
    s_mov_b32 s{s_t1}, 0
    {Lz}:
    s_waitcnt vmcnt(0)
    v_cmp_ne_u32 vcc, 0, v{vt[4]}
    s_add_u32 s{s_t1}, s{s_t1}, 1
    s_cmp_eq_u64 vcc, -1
    s_cbranch_scc1 {Lzx}
    s_cmp_gt_u32 s{s_t1}, 0x40000
    s_cbranch_scc1 {Lzx}
    buffer_load_dword v{vt[4]}, v{vt[3]}, {sr(sD,4)}, 0 offen sc1
    s_branch {Lz}
    {Lzx}:
    s_mov_b32 m0, {XCH}
    s_lshl_b32 s{s_t0}, s{s_tb}, 10
    s_add_u32 s{s_t0}, s{s_t0}, {LN1}
    buffer_load_dwordx4 v{vl16}, {sr(sO,4)}, s{s_t0} offen sc1 lds
    {Lnz}:
    s_waitcnt vmcnt(0)""")
    k.stamp(3)
    k(f"s_barrier\ns_branch {L_J0}")
    k(f"""{L_comp}:
    s_getpc_b64 {sr(sPC,2)}
    L_pf_here:
    s_lshr_b32 s{s_t0}, s2, 3
    s_add_u32 s{s_t0}, s{s_t0}, {28 if o.get('sfirst', True) else 0}
    s_and_b32 s{s_t0}, s{s_t0}, 31
    s_lshl_b32 s{s_t0}, s{s_t0}, 2
    s_add_u32 s{s_t0}, s{s_t0}, s{s_wl}
    s_lshl_b32 s{s_t0}, s{s_t0}, 10
    s_sub_u32 s{sPC}, s{sPC}, L_pf_here - {NAME}
    s_subb_u32 s{sPC+1}, s{sPC+1}, 0
    s_cmp_gt_u32 s{s_t0}, L_code_end - {NAME} - 1024
    s_cbranch_scc1 L_pf_skip
    v_lshl_add_u32 v{vt[0]}, v{vl}, 4, s{s_t0}
    global_load_dwordx4 {vr(vpf,4)}, v{vt[0]}, {sr(sPC,2)}
    L_pf_skip:
    s_waitcnt lgkmcnt(0)""")
    if o.get('touch'):
        k(f"""s_mov_b64 {sr(sX,2)}, {sr(sP,2)}
        s_mov_b32 s{sX+2}, {2048*1280}
        s_mov_b32 s{sX+3}, 0x20000
        s_mov_b64 {sr(sW,2)}, {sr(sP+2,2)}
        s_mov_b32 s{sW+2}, {640*3840}
        s_mov_b32 s{sW+3}, 0x20000
        s_lshr_b32 s{s_t0}, s2, 3
        s_lshl_b32 s{s_t0}, s{s_t0}, 2
        s_add_u32 s{s_t0}, s{s_t0}, s{s_wl}
        s_mul_i32 s{s_t1}, s{s_t0}, 5
        v_lshrrev_b32 v{vt[0]}, 4, v{vl}
        v_add_u32 v{vt[0]}, s{s_t1}, v{vt[0]}
        v_mul_u32_u24 v{vt[0]}, 3840, v{vt[0]}
        v_and_b32 v{vt[1]}, 15, v{vl}
        v_lshl_add_u32 v{vt[0]}, v{vt[1]}, 7, v{vt[0]}
        s_bfe_u32 s{s_t1}, s2, 0x10002
        s_lshl_b32 s{s_t1}, s{s_t1}, 11
        s_add_u32 s{s_t2}, s{s_t1}, {4*3840}
        v_lshlrev_b32 v{vt[1]}, 7, v{vl}
        s_mul_i32 s{s_t0}, s{s_t0}, {40*128}
        s_and_b32 s{s_ox}, s2, 3
        s_mul_i32 s{s_ox}, s{s_ox}, {512*1280}
        s_add_u32 s{s_t0}, s{s_t0}, s{s_ox}
        buffer_load_dword v{vpf+4}, v{vt[0]}, {sr(sW,4)}, s{s_t1} offen
        s_mov_b32 exec_hi, 0xff
        buffer_load_dword v{vpf+5}, v{vt[1]}, {sr(sX,4)}, s{s_t0} offen
        s_mov_b64 exec, 0xffff
        buffer_load_dword v{vpf+6}, v{vt[0]}, {sr(sW,4)}, s{s_t2} offen
        s_mov_b64 exec, -1""")
    common_setup()
    if o.get('ptouch'):
        k(f"""v_lshlrev_b32 v{vt[0]}, {o['ptouch']}, v{vl}
        s_lshl_b32 s{s_t0}, s{s_wl}, {o['ptouch'] + 6}
        buffer_load_dword v{vpf+4}, v{vt[0]}, {sr(sO,4)}, s{s_t0} offen sc1""")
    xaddr()
    k(f"""s_lshr_b32 s{s_t0}, s{s_wl}, 1
    s_and_b32 s{s_t1}, s{s_wl}, 1
    s_lshl_b32 s{s_t2}, s{s_t0}, 13
    v_add_u32 v{vXA[0]}, s{s_t2}, v{vt[2]}""")
    for s in range(1, 4): k(f"v_xor_b32 v{vXA[s]}, {32*s}, v{vXA[0]}")
    k(f"""v_bfe_u32 v{vt[2]}, v{vl}, 2, 2
    v_lshl_add_u32 v{vt[3]}, v{vt[1]}, 3, v{vt[2]}
    v_lshlrev_b32 v{vt[3]}, 8, v{vt[3]}
    s_lshl_b32 s{s_t2}, s{s_t1}, 1
    s_add_u32 s{s_t2}, s{s_t2}, s{s_t0}
    v_xor_b32 v{vt[2]}, s{s_t2}, v{vt[2]}
    v_lshl_add_u32 v{vt[3]}, v{vt[2]}, 6, v{vt[3]}
    v_bfe_u32 v{vt[2]}, v{vl}, 4, 1
    v_lshl_add_u32 v{vt[3]}, v{vt[2]}, 5, v{vt[3]}
    v_and_b32 v{vt[2]}, 3, v{vl}
    v_lshl_add_u32 v{vt[3]}, v{vt[2]}, 3, v{vt[3]}
    v_add_u32 v{vWA[0]}, 16384, v{vt[3]}
    v_xor_b32 v{vWA[1]}, 64, v{vWA[0]}
    s_mov_b32 s{s_slot}, 0""")
    for i in range(4): k(f"v_mov_b32 v{ones+i}, 0x3f803f80")
    def reads(buf, s):
        out = []
        for mt in range(2):
            out.append(f"ds_read_b128 {vr(fx[buf][mt],4)}, v{vXA[s]} offset:{mt*4096}")
        for nt in range(2):
            for rd in range(2):
                out.append(f"ds_read_b64_tr_b16 {vr(fw[buf][nt]+2*rd,2)}, v{vWA[nt]} offset:{(16*s+4*rd)*256}")
        return [out[2], out[3], out[0], out[1], out[4], out[5]]
    def mfmas(buf, vpath, first):
        m = []
        for nt in range(2):
            for mt in range(2):
                a, b = (fx[buf][mt], fw[buf][nt]) if vpath else (fw[buf][nt], fx[buf][mt])
                m.append(f"{M16} {vr(acc[nt][mt],16)}, {vr(a,4)}, {vr(b,4)}, {'0' if first else vr(acc[nt][mt],16)}")
        m.append(f"{M16} {vr(acs,16)}, {vr(ones,4)}, {vr(fw[buf][0],4)}, {'0' if first else vr(acs,16)}")
        return m
    def chunk(vpath, last, first=False):
        for s in range(3):
            k("s_waitcnt lgkmcnt(0)")
            m = mfmas(s & 1, vpath, first and s == 0); rd = reads((s + 1) & 1, s + 1)
            ad = []
            if not last and s == 0: ad = [None]
            for i in range(5):
                k(m[i])
                for x in rd[2*i:2*i+2]: k(x)
                if i == 3 and not last:
                    if s == 0: adv[:] = advance([vXA[0], vXA[1], vXA[2], vXA[3], vWA[0], vWA[1]])
                    k(adv[s])
        k("s_waitcnt lgkmcnt(0)")
        m = mfmas(1, vpath, False)
        if last:
            for x in m: k(x)
            return
        k(m[0])
        for x in adv[3:]: k(x)
        k(m[1])
        k("s_barrier")
        rd = reads(0, 0)
        for x in rd[:3]: k(x)
        k(m[2])
        for x in rd[3:]: k(x)
        k(m[3]); k(m[4])
    adv = []
    def mainloop(vpath):
        k("s_barrier")
        k.stamp(2)
        for x in reads(0, 0): k(x)
        chunk(vpath, False, first=True)
        L = k.label("loop")
        if o.get('fine') == 1:
            for j in range(8):
                k.stamp(5 + j); chunk(vpath, False)
            k.stamp(13)
        else:
            k(f"s_mov_b32 s{s_cnt}, 8\n{L}:")
            chunk(vpath, False)
            k(f"s_sub_u32 s{s_cnt}, s{s_cnt}, 1\ns_cmp_lg_u32 s{s_cnt}, 0\ns_cbranch_scc1 {L}")
        chunk(vpath, True)
        k.stamp(3)
    def epilogue(vpath):
        t = vt
        la = fx[0][0]; rg = k.v(32, 4); hoff = t[3]
        k(f"""v_and_b32 v{t[0]}, 31, v{vl}
        s_lshl_b32 s{s_t2}, s{s_t2}, 7
        s_add_u32 s{s_ox}, s{s_t2}, {XCH}
        v_lshl_add_u32 v{t[2]}, v{t[0]}, 2, s{s_ox}
        s_lshl_b32 s{s_ow}, s{s_t0}, 8
        s_add_u32 s{s_ow}, s{s_ow}, {XCH}
        v_lshl_add_u32 v{t[1]}, v{t[0]}, 2, s{s_ow}
        v_lshrrev_b32 v{hoff}, 5, v{vl}
        v_lshlrev_b32 v{hoff}, 4, v{hoff}
        s_cmp_lt_u32 s{s_cg}, 5
        s_cselect_b32 s{s_cnt}, {f2u(QSCALE):#x}, 1.0
        ds_write_b32 v{t[2]}, v{acs} offset:{CS}
        s_waitcnt lgkmcnt(0)
        s_barrier""")
        if not vpath:
            k(f"""ds_read_b32 v{la+0}, v{t[1]} offset:{NM}
            ds_read_b32 v{la+2}, v{t[1]} offset:{RS}
            ds_read_b32 v{la+4}, v{t[1]} offset:{NM+128}
            ds_read_b32 v{la+6}, v{t[1]} offset:{RS+128}
            v_add_u32 v{t[5]}, s{s_ox}, v{hoff}
            v_xor_b32 v{t[4]}, 128, v{t[5]}""")
            for nt in range(2):
                for j in range(4):
                    k(f"ds_read_b128 {vr(rg+16*nt+4*j,4)}, v{t[5] if nt==0 else t[4]} offset:{CS+32*j}")
            k(f"""v_lshlrev_b32 v{t[0]}, 4, v{t[0]}
            v_lshl_add_u32 v{t[0]}, v{hoff}, 11, v{t[0]}
            s_lshl_b32 s{s_ox}, s{s_cg}, 19
            s_lshl_b32 s{s_ow}, s{s_t2}, 10
            s_add_u32 s{s_ox}, s{s_ox}, s{s_ow}
            s_lshl_b32 s{s_ow}, s{s_tb}, 11
            s_add_u32 s{s_ox}, s{s_ox}, s{s_ow}
            s_lshl_b32 s{s_ow}, s{s_t0}, 10
            s_add_u32 s{s_ox}, s{s_ox}, s{s_ow}
            s_waitcnt lgkmcnt(4)
            v_mov_b32 v{la+1}, v{la+0}
            v_mul_f32 v{la+3}, s{s_cnt}, v{la+2}
            v_mul_f32 v{la+2}, s{s_cnt}, v{la+2}
            v_mov_b32 v{la+5}, v{la+4}
            v_mul_f32 v{la+7}, s{s_cnt}, v{la+6}
            v_mul_f32 v{la+6}, s{s_cnt}, v{la+6}""")
            for nt in range(2):
                if nt == 1: k("s_waitcnt lgkmcnt(0)")
                for mt in range(2):
                    A = acc[nt][mt]
                    for p in range(8):
                        k(f"v_pk_fma_f32 {vr(A+2*p,2)}, {vr(rg+16*nt+2*p,2)}, {vr(la+4*mt,2)}, {vr(A+2*p,2)}")
                    for p in range(8):
                        k(f"v_pk_mul_f32 {vr(A+2*p,2)}, {vr(A+2*p,2)}, {vr(la+4*mt+2,2)}")
                    for p in range(8):
                        k(f"v_cvt_pk_bf16_f32 v{A+p}, v{A+2*p}, v{A+2*p+1}")
                    k(f"s_xor_b32 s{s_ow}, s{s_ox}, {(nt*4*32768) | (mt*512)}")
                    k(f"s_add_u32 s{s_rs}, s{s_ow}, {2*32768}")
                    for jp in range(2):
                        k(f"v_permlane32_swap_b32 v{A+4*jp}, v{A+4*jp+2}\nv_permlane32_swap_b32 v{A+4*jp+1}, v{A+4*jp+3}")
                    k(f"buffer_store_dwordx4 {vr(A,4)}, v{t[0]}, {sr(sO,4)}, s{s_ow} offen{sc}")
                    k(f"buffer_store_dwordx4 {vr(A+4,4)}, v{t[0]}, {sr(sO,4)}, s{s_rs} offen{sc}")
        else:
            rg2 = k.v(32, 4)
            k(f"""v_xor_b32 v{t[4]}, 128, v{t[2]}
            ds_read_b32 v{la+2}, v{t[4]} offset:{CS}
            v_add_u32 v{t[5]}, s{s_ow}, v{hoff}""")
            for mt in range(2):
                for j in range(4):
                    k(f"ds_read_b128 {vr(rg+16*mt+4*j,4)}, v{t[5]} offset:{NM+128*mt+32*j}")
                    k(f"ds_read_b128 {vr(rg2+16*mt+4*j,4)}, v{t[5]} offset:{RS+128*mt+32*j}")
            va = [la + 4, la + 5]
            k(f"""s_sub_u32 s{s_ox}, s{s_cg}, 10
            s_lshl_b32 s{s_ox}, s{s_ox}, 7
            s_lshr_b32 s{s_ow}, s{s_t2}, 2
            s_add_u32 s{s_ox}, s{s_ox}, s{s_ow}
            v_add_u32 v{t[0]}, s{s_ox}, v{t[0]}
            v_mul_u32_u24 v{hoff}, 640, v{hoff}
            v_lshl_add_u32 v{va[0]}, v{t[0]}, 4, v{hoff}
            v_xor_b32 v{t[0]}, 32, v{t[0]}
            v_lshl_add_u32 v{va[1]}, v{t[0]}, 4, v{hoff}
            s_lshl_b32 s{s_ox}, s{s_tb}, 1
            s_add_u32 s{s_ox}, s{s_ox}, s{s_t0}
            s_mul_i32 s{s_ox}, s{s_ox}, 81920
            s_add_u32 s{s_ox}, s{s_ox}, {VIMG}
            v_mov_b32 v{la+0}, v{acs}
            v_mov_b32 v{la+1}, v{acs}
            s_waitcnt lgkmcnt(8)
            v_mov_b32 v{la+3}, v{la+2}""")
            for mt in range(2):
                if mt == 1: k("s_waitcnt lgkmcnt(0)")
                for nt in range(2):
                    A = acc[nt][mt]
                    for p in range(8):
                        k(f"v_pk_fma_f32 {vr(A+2*p,2)}, {vr(rg+16*mt+2*p,2)}, {vr(la+2*nt,2)}, {vr(A+2*p,2)}")
                    for p in range(8):
                        k(f"v_pk_mul_f32 {vr(A+2*p,2)}, {vr(A+2*p,2)}, {vr(rg2+16*mt+2*p,2)}")
                    for p in range(8):
                        k(f"v_cvt_pk_bf16_f32 v{A+p}, v{A+2*p}, v{A+2*p+1}")
                    k(f"s_add_u32 s{s_ow}, s{s_ox}, {40960*mt}\ns_add_u32 s{s_rs}, s{s_ox}, {40960*mt+20480}")
                    k(f"buffer_store_dwordx4 {vr(A,4)}, v{va[nt]}, {sr(sO,4)}, s{s_ow} offen{sc}")
                    k(f"buffer_store_dwordx4 {vr(A+4,4)}, v{va[nt]}, {sr(sO,4)}, s{s_rs} offen{sc}")
    k(f"s_cmp_ge_u32 s{s_cg}, 10\ns_cbranch_scc1 {L_v}")
    vsave = k.vnext
    mainloop(False); epilogue(False); k(f"s_branch {L_J0}")
    k.vnext = vsave
    k(f"{L_v}:")
    mainloop(True); epilogue(True)
    if o.get('fine') == 1:
        k.maxst = 14; k.stamp = lambda *a, **kw: None
    k(f"{L_J0}:\ns_setprio 0")
    k.stamp(4)
    prep_decode(True)
    k(f"""s_mov_b32 s{c.s_p}, s{s_cg}
    s_lshl_b32 s{c.s_f}, s{s_cg}, 5
    s_add_u32 s{c.s_f}, s{c.s_f}, s{s_tb}
    s_lshl_b32 s{c.s_f}, s{c.s_f}, {FL}
    s_add_u32 s{c.s_f}, s{c.s_f}, {F1}""")
    def spare():
        o4 = acs; xb = acc[0][0]; sm = [fw[0][0], fw[0][0] + 1]; sq = [fw[0][0] + 2, fw[0][0] + 3]
        k(f"""{L_spare}:
        v_lshrrev_b32 v{vt[0]}, 3, v{vl}
        v_lshl_add_u32 v{vt[0]}, s{s_w}, 4, v{vt[0]}
        v_mul_u32_u24 v{vt[0]}, 1280, v{vt[0]}
        v_and_b32 v{vt[2]}, 7, v{vl}
        v_lshl_add_u32 v{vX[0]}, v{vt[2]}, 4, v{vt[0]}
        v_add_u32 v{vX[1]}, {8*1280}, v{vX[0]}
        s_mul_i32 s{s_t0}, s{s_tb}, {128*1280}
        s_mov_b32 s{sX+2}, {128*1280}
        s_mov_b32 s{sX+3}, 0x20000
        s_waitcnt lgkmcnt(0)
        s_add_u32 s{sX}, s{sP}, s{s_t0}
        s_addc_u32 s{sX+1}, s{sP+1}, 0""")
        for g in range(2):
            for i in range(10): k(f"buffer_load_dwordx4 {vr(xb+40*g+4*i,4)}, v{vX[g]}, {sr(sX,4)}, 0 offen offset:{128*i}")
        common_setup()
        srd(k, sW, sWS, sWS + 1, CSG + ZERO_BYTES)
        o4 = xb + 80
        k(f"""s_mov_b32 s{s_t0}, {ONES}
        v_and_b32 v{vt[0]}, 0x70, v{vl16}
        v_lshlrev_b32 v{vt[1]}, 4, v0
        s_lshl_b32 s{s_t1}, s{s_tb}, 13
        s_add_u32 s{s_t1}, s{s_t1}, {CSG}
        s_mov_b32 s{s_msk}, 0x3f803f80""")
        for i in range(4): k(f"v_mov_b32 v{o4+i}, 0x3f803f80\nv_mov_b32 v{o4+4+i}, 0")
        nz = (ZERO_BYTES + 131071) // 131072
        for z in range(nz):
            k(f"buffer_store_dwordx4 {vr(o4+4,4)}, v{vt[1]}, {sr(sW,4)}, s{s_t1} offen{sc}\ns_add_u32 s{s_t1}, s{s_t1}, 131072")
        k(f"s_mov_b64 exec, 0xff\nbuffer_store_dwordx4 {vr(o4,4)}, v{vt[0]}, {sr(sO,4)}, s{s_t0} offen{sc}\ns_mov_b64 exec, -1")
        st = o4 + 8
        for i in range(4): k(f"v_mov_b32 v{st+i}, 0")
        for g in range(2):
            for i in range(10):
                k(f"s_waitcnt vmcnt({19 - 10*g - i + nz + 1})")
                for j in range(4):
                    x = xb + 40 * g + 4 * i + j
                    k(f"v_dot2c_f32_bf16 v{st+2*g}, s{s_msk}, v{x}\nv_dot2c_f32_bf16 v{st+2*g+1}, v{x}, v{x}")
        for ctl in ("quad_perm:[1,0,3,2]", "quad_perm:[2,3,0,1]", "row_half_mirror"):
            for i in range(4): k(f"v_add_f32_dpp v{st+i}, v{st+i}, v{st+i} {ctl} row_mask:0xf bank_mask:0xf")
        Ln = k.label("sn")
        k(f"""v_and_b32 v{vt[2]}, 1, v{vl}
        v_cmp_eq_u32 vcc, 1, v{vt[2]}
        v_lshrrev_b32 v{vt[3]}, 3, v{vl}
        v_lshl_add_u32 v{vt[3]}, v{vt[2]}, 3, v{vt[3]}
        v_cndmask_b32 v{st}, v{st}, v{st+2}, vcc
        v_cndmask_b32 v{st+1}, v{st+1}, v{st+3}, vcc
        v_lshlrev_b32 v{vt[3]}, 2, v{vt[3]}
        v_mul_f32 v{st}, {f2u(-1.0/640):#x}, v{st}
        v_mul_f32 v{st+1}, {f2u(1.0/640):#x}, v{st+1}
        v_fma_f32 v{st+1}, -v{st}, v{st}, v{st+1}
        v_max_f32 v{st+1}, 0, v{st+1}
        v_add_f32 v{st+1}, {f2u(1e-5):#x}, v{st+1}
        v_rsq_f32 v{st+1}, v{st+1}
        s_lshl_b32 s{s_t1}, s{s_w}, 6
        v_add_u32 v{vt[3]}, s{s_t1}, v{vt[3]}
        ds_write_b32 v{vt[3]}, v{st}
        ds_write_b32 v{vt[3]}, v{st+1} offset:512
        s_waitcnt vmcnt(0) lgkmcnt(0)
        s_barrier
        s_cmp_lg_u32 s{s_w}, 4
        s_cbranch_scc1 {Ln}
        ds_read_b128 {vr(st,4)}, v{vl16}
        s_lshl_b32 s{s_t0}, s{s_tb}, 10
        s_add_u32 s{s_t0}, s{s_t0}, {LN1}
        s_waitcnt lgkmcnt(0)
        buffer_store_dwordx4 {vr(st,4)}, v{vl16}, {sr(sO,4)}, s{s_t0} offen{sc}
        s_waitcnt vmcnt(0)
        s_lshl_b32 s{s_t0}, s{s_tb}, 4
        v_mov_b32 v{vt[2]}, 1
        v_mov_b32 v{vt[3]}, 0
        s_mov_b64 exec, 1
        buffer_store_dword v{vt[2]}, v{vt[3]}, {sr(sD,4)}, s{s_t0} offen sc1
        s_mov_b64 exec, -1
        {Ln}:""")
        k.stamp(2); k.stamp(3)
        k(f"s_branch {L_J0}")
    def deferred(fn):
        n = len(k.lines); fn(); out = k.lines[n:]; del k.lines[n:]; return out
    spare_code = deferred(spare)
    c.reset()
    prio = o.get('prio', (18, 6, 3, 1))
    s_h = k.s(); s_pa = k.s(); s_pr = k.s(); s_odd8 = k.s(); s_tok = k.s()
    s_t0 = k.s(); s_t1 = k.s(); s_t2 = k.s(); s_t3 = k.s()
    so = [k.s() for _ in range(3)]; s_d = k.s(); s_mo = k.s(); s_ms = k.s(); s_q1 = k.s(); s_q2 = k.s()
    sG = k.s(2); sE = k.s(2)
    vq = k.v(); vr31 = k.v(); vKA = k.v(); vKR = k.v(); vVA = k.v(); vqr = k.v()
    vt0 = k.v(6, 2); vt = list(range(vt0, vt0 + 6))
    S = [k.v(32, 4), k.v(32, 4)]; O = k.v(16, 4); OY = k.v(16, 4); P = k.v(8, 4)
    Qm = k.v(4, 4); QmY = k.v(4, 4); Qr = k.v(2); Km = k.v(4, 4); Kr = k.v(2); V0 = k.v(4, 4); V1 = [k.v(4, 4), k.v(4, 4)]
    PR = k.v(16, 4); C = S[1]; vcs = k.v(16, 4); vsel = k.v(16, 4); vca = k.v(); vfp = k.v(4, 4); vo1 = k.v(); vo2 = k.v(); vx1 = k.v(); vx2 = k.v(); s_o1 = k.s(); s_o2 = k.s()
    L_slow = k.label("slow"); L_store = k.label("store"); L_dv = k.label("dv"); L_dd = k.label("dd")
    vD = [k.v() for _ in range(3)]; vDd = [k.v() for _ in range(3)]
    k(f"""s_and_b32 s{s_t0}, s2, 7
    s_lshl_b32 s{s_t0}, s{s_t0}, 2
    s_bfe_u32 s{s_t1}, s2, 0x20003
    s_add_u32 s{s_h}, s{s_t0}, s{s_t1}
    s_lshr_b32 s{s_q1}, s{s_h}, 1
    s_mul_i32 s{s_t0}, s{s_q1}, 5
    s_and_b32 s{s_t1}, s{s_h}, 1
    s_lshl_b32 s{s_odd8}, s{s_t1}, 3
    s_mul_i32 s{s_t1}, s{s_t1}, 3
    s_add_u32 s{s_pa}, s{s_t0}, s{s_t1}
    s_lshl_b32 s{s_pa}, s{s_pa}, 15
    s_add_u32 s{s_pr}, s{s_t0}, 2
    s_lshl_b32 s{s_pr}, s{s_pr}, 15
    s_lshr_b32 s{s_q2}, s{s_wl}, 1
    s_and_b32 s{s_t3}, s{s_w}, 1
    s_mul_i32 s{s_mo}, s{s_q2}, 6144
    s_cmp_ge_u32 s{s_w}, 4
    s_cbranch_scc1 {L_dv}
    s_lshl_b32 s{s_t0}, s{s_q2}, 14
    s_lshl_b32 s{s_t1}, s{s_t3}, 10
    s_add_u32 s{s_mo}, s{s_mo}, s{s_t1}
    s_add_u32 s{s_t0}, s{s_t0}, s{s_t1}
    s_add_u32 s{s_t0}, s{s_t0}, {80*32768}
    s_add_u32 s{s_t1}, s{s_pa}, s{s_t0}
    s_add_u32 s{s_t2}, s{s_pr}, s{s_t0}
    v_add_u32 v{vD[0]}, s{s_t1}, v{vl16}
    v_add_u32 v{vD[1]}, 32768, v{vD[0]}
    v_add_u32 v{vD[2]}, s{s_t2}, v{vl16}
    v_mov_b32 v{vDd[0]}, 2048
    v_mov_b32 v{vDd[1]}, 2048
    v_mov_b32 v{vDd[2]}, 2048
    s_movk_i32 s{s_ms}, 2048
    s_branch {L_dd}
    {L_dv}:
    s_mul_i32 s{s_t1}, s{s_t3}, 3072
    s_add_u32 s{s_mo}, s{s_mo}, s{s_t1}
    s_add_u32 s{s_mo}, s{s_mo}, {VB}
    s_mul_i32 s{s_t0}, s{s_q2}, {128*10240}
    s_mul_i32 s{s_t1}, s{s_h}, 320
    s_add_u32 s{s_t0}, s{s_t0}, s{s_t1}
    s_add_u32 s{s_t0}, s{s_t0}, {VIMG}
    s_mul_i32 s{s_t3}, s{s_t3}, 192
    s_movk_i32 s{s_ms}, 1024
    v_mov_b32 v{vt[4]}, {ONES}
    v_mov_b32 v{vt[5]}, {16*10240}""")
    for i in range(3):
        k(f"""v_add_u32 v{vt[0]}, s{s_t3}, v{vl}
        s_add_u32 s{s_t3}, s{s_t3}, 64
        v_mul_u32_u24 v{vt[1]}, 3121, v{vt[0]}
        v_lshrrev_b32 v{vt[1]}, 16, v{vt[1]}
        v_mul_u32_u24 v{vt[2]}, 21, v{vt[1]}
        v_sub_u32 v{vt[2]}, v{vt[0]}, v{vt[2]}
        v_cmp_gt_u32 vcc, 20, v{vt[2]}
        v_cmp_gt_u32 {sr(sE,2)}, 16, v{vt[1]}
        v_mul_u32_u24 v{vt[1]}, 10240, v{vt[1]}
        v_lshl_add_u32 v{vt[1]}, v{vt[2]}, 4, v{vt[1]}
        s_and_b64 vcc, vcc, {sr(sE,2)}
        v_add_u32 v{vt[1]}, s{s_t0}, v{vt[1]}
        v_cndmask_b32 v{vD[i]}, v{vt[4]}, v{vt[1]}, vcc
        v_cndmask_b32 v{vDd[i]}, 0, v{vt[5]}, vcc""")
    k(f"""{L_dd}:
    s_lshr_b32 s{s_t3}, s{s_w}, 2
    s_mul_i32 s{s_t0}, s{s_t3}, 6144
    v_and_b32 v{vr31}, 31, v{vl}
    v_lshlrev_b32 v{vr31}, 4, v{vr31}
    v_lshrrev_b32 v{vt[1]}, 5, v{vl}
    v_lshl_add_u32 v{vq}, v{vt[1]}, 15, v{vr31}
    v_add_u32 v{vt[2]}, s{s_t0}, v{vr31}
    v_lshl_add_u32 v{vKA}, v{vt[1]}, 11, v{vt[2]}
    v_add_u32 v{vKR}, s{s_odd8}, v{vt[2]}
    v_add_u32 v{vKR}, 4096, v{vKR}
    v_mul_u32_u24 v{vt[0]}, 336, v{vt[1]}
    v_add_u32 v{vt[0]}, v{vt[0]}, v{vt[2]}
    v_add_u32 v{vVA}, {VB}, v{vt[0]}
    v_cmp_lt_u32 vcc, {20*16}, v{vr31}
    v_mov_b32 v{vt[0]}, 0x40000
    v_xor_b32 v{vt[1]}, s{s_t3}, v{vt[1]}
    v_cndmask_b32 v{vVA}, v{vVA}, v{vt[0]}, vcc
    v_lshl_add_u32 v{vqr}, v{vt[1]}, 9, v{vr31}
    s_lshr_b32 s{s_tok}, s2, 5
    s_lshl_b32 s{s_tok}, s{s_tok}, 8
    s_lshl_b32 s{s_t0}, s{s_wl}, 6
    s_add_u32 s{s_tok}, s{s_tok}, s{s_t0}
    s_lshl_b32 s{s_t0}, s{s_t3}, 5
    s_add_u32 s{s_tok}, s{s_tok}, s{s_t0}""")
    k(f"v_lshlrev_b32 v{vca}, 2, v{vl}\nv_mov_b32 v{vt[0]}, 0x3f803f80")
    for Tl, row in enumerate((0, 4, 1, 5)):
        k(f"v_cmp_eq_u32 vcc, {16*row}, v{vr31}")
        k(f"v_cndmask_b32 v{vsel+4*Tl}, 0, v{vt[0]}, vcc")
        for i in range(1, 4): k(f"v_mov_b32 v{vsel+4*Tl+i}, v{vsel+4*Tl}")
    k(f"""v_bfe_u32 v{vo2}, v{vl}, 4, 1
    v_mul_u32_u24 v{vo2}, {20*1024}, v{vo2}
    v_and_b32 v{vt[2]}, 15, v{vl}
    v_lshl_add_u32 v{vo1}, v{vt[2]}, 4, v{vo2}
    v_lshl_add_u32 v{vo2}, v{vt[2]}, 3, v{vo2}
    v_lshrrev_b32 v{vt[2]}, 5, v{vl}
    v_lshl_add_u32 v{vo1}, v{vt[2]}, 8, v{vo1}
    s_lshr_b32 s{s_t0}, s{s_tok}, 4
    s_mul_i32 s{s_t0}, s{s_t0}, {20*1024}
    s_add_u32 s{s_t0}, s{s_t0}, {OIMG}
    s_lshl_b32 s{s_o1}, s{s_h}, 9
    s_add_u32 s{s_o1}, s{s_o1}, s{s_t0}
    s_lshl_b32 s{s_o2}, s{s_h}, 7
    s_add_u32 s{s_o2}, s{s_o2}, s{s_t0}
    s_add_u32 s{s_o2}, s{s_o2}, {16*1024}
    s_mul_i32 s{s_t0}, s{s_wl}, 3072
    s_add_u32 s{s_t0}, s{s_t0}, {2*SL}
    s_add_u32 s{s_t1}, s{s_t0}, {VB}
    s_cmp_lt_u32 s{s_w}, 4
    s_cselect_b32 s{s_t2}, s{s_t0}, s{s_t1}
    s_cselect_b32 s{s_t1}, s{s_t1}, s{s_t0}
    v_add_u32 v{vx1}, s{s_t2}, v{vl16}
    v_add_u32 v{vx2}, s{s_t1}, v{vl16}""")
    early = o.get('early', 2)
    p1 = [f"s_mov_b32 m0, s{sR[4]}", "s_nop 0"]
    for i, (sd, so_) in enumerate(((sA, sR[0]), (sA, sR[2]), (sB, sR[1]), (sB, sR[3]))):
        p1.append(f"buffer_load_dwordx4 v{vPS}, {sr(sd,4)}, s{so_} offen lds")
        if i < 3: p1 += ["s_add_u32 m0, m0, 1024", "s_nop 0"]
    edge_prep = o.get('edge_prep', False)
    Lx = k.label("jx"); Lp = k.label("jp"); Lz = k.label("jz"); Lzx = k.label("jzx"); Lns = k.label("jns")
    part = o.get('part', True)
    vfl = k.v(); vpl = k.v(); vf2 = k.v(2); s_f0 = sG; s_f1 = sG + 1
    k(f"""s_mul_i32 s{s_t0}, s{s_q1}, 40
    s_add_u32 s{s_t1}, s{s_t0}, 39
    s_lshr_b32 s{s_t0}, s{s_t0}, 7
    s_lshr_b32 s{s_t1}, s{s_t1}, 7
    s_lshl_b32 s{s_f0}, s{s_t0}, {FL+5}
    s_lshl_b32 s{s_f1}, s{s_t1}, {FL+5}
    s_add_u32 s{s_f0}, s{s_f0}, {F1}
    s_add_u32 s{s_f1}, s{s_f1}, {F1}
    v_lshrrev_b32 v{vt[2]}, 4, v{vl}
    v_min_u32 v{vt[2]}, 2, v{vt[2]}
    v_mul_u32_u24 v{vt[2]}, 160, v{vt[2]}
    v_and_b32 v{vt[3]}, 15, v{vl}
    v_add_u32 v{vt[3]}, v{vt[3]}, v{vt[2]}
    v_lshlrev_b32 v{vfl}, {FL}, v{vt[3]}""")
    if part:
        k(f"""s_sub_u32 s{s_t1}, s{s_t1}, s{s_t0}
        v_and_b32 v{vt[2]}, 1, v{vl}
        v_mul_u32_u24 v{vt[2]}, s{s_t1}, v{vt[2]}
        v_bfe_u32 v{vt[3]}, v{vl}, 1, 1
        v_bfe_u32 v{vt[4]}, v{vl}, 2, 1
        v_bfe_u32 v{vt[5]}, v{vl}, 3, 1
        v_lshl_add_u32 v{vt[4]}, v{vt[5]}, 3, v{vt[4]}
        v_mad_u32_u24 v{vt[5]}, v{vt[3]}, 5, 5
        s_lshr_b32 s{s_t1}, s2, 5
        s_lshl_b32 s{s_t1}, s{s_t1}, 1
        v_add_u32 v{vt[3]}, s{s_t1}, v{vt[3]}
        v_cmp_gt_u32 vcc, 16, v{vl}
        v_cndmask_b32 v{vt[5]}, 0, v{vt[5]}, vcc
        v_cndmask_b32 v{vt[4]}, v{vt[3]}, v{vt[4]}, vcc
        v_add_u32 v{vt[2]}, v{vt[2]}, v{vt[5]}
        v_lshl_add_u32 v{vt[2]}, v{vt[2]}, 5, v{vt[4]}
        v_lshlrev_b32 v{vpl}, {FL}, v{vt[2]}""")
    k(f"""s_cmp_lg_u32 s{s_w}, 0
    s_cbranch_scc1 {Lzx}
    s_cmp_lg_u32 s{c.s_p}, 15
    s_cbranch_scc1 {Lzx}
    v_and_b32 v{vt[3]}, 15, v{vl}
    v_lshlrev_b32 v{vt[3]}, 4, v{vt[3]}
    s_mov_b32 s{s_t1}, 0
    {Lz}:
    buffer_load_dword v{vt[4]}, v{vt[3]}, {sr(sD,4)}, 0 offen sc1
    s_add_u32 s{s_t1}, s{s_t1}, 1
    s_cmp_gt_u32 s{s_t1}, 0x40000
    s_cbranch_scc1 {Lzx}
    s_waitcnt vmcnt(0)
    v_cmp_ne_u32 vcc, 0, v{vt[4]}
    s_cmp_eq_u64 vcc, -1
    s_cbranch_scc0 {Lz}
    {Lzx}:
    s_waitcnt vmcnt(0)""")
    k.stamp(5)
    k(f"""s_barrier
    s_cmp_lg_u32 s{s_w}, 0
    s_cbranch_scc1 {Lx}""")
    c.signal(c.s_f, vt[2])
    fl = [f"buffer_load_dword v{vf2}, v{vfl}, {sr(sO,4)}, s{s_f0} offen sc1", f"buffer_load_dword v{vf2+1}, v{vfl}, {sr(sO,4)}, s{s_f1} offen sc1"]
    k(f"s_mov_b32 s{s_t2}, 0\n{Lp}:")
    if part: k(f"buffer_load_dword v{vf2}, v{vpl}, {sr(sO,4)}, s{s_f0} offen sc1")
    else: k(fl[0]); k(fl[1])
    k(f"""s_add_u32 s{s_t2}, s{s_t2}, 1
    s_cmp_gt_u32 s{s_t2}, 0x40000
    s_cbranch_scc1 {Lx}
    s_waitcnt vmcnt(0)""")
    if not part: k(f"v_min_u32 v{vf2}, v{vf2}, v{vf2+1}")
    k(f"""v_cmp_ne_u32 vcc, 0, v{vf2}
    s_cmp_eq_u64 vcc, -1
    s_cbranch_scc0 {Lp}
    {Lx}:
    s_lshl_b32 s{s_t0}, s{s_tok}, 4
    s_add_u32 s{s_q1}, s{s_t0}, s{s_pa}
    s_xor_b32 s{s_t3}, s{s_q1}, 512
    s_andn2_b32 s{s_q2}, s{s_t0}, 512
    s_add_u32 s{s_q2}, s{s_q2}, s{s_pr}
    s_add_u32 s{s_q2}, s{s_q2}, s{s_odd8}
    s_barrier""")
    k.stamp(6)
    def dma(slot):
        out = [f"s_add_u32 m0, s{s_mo}, {slot*SL}", "s_nop 0"]
        for i in range(3):
            out.append(f"buffer_load_dwordx4 v{vD[i]}, {sr(sO,4)}, 0 offen sc1 lds")
            if i < 2: out.append(f"s_add_u32 m0, m0, s{s_ms}")
            out.append(f"v_add_u32 v{vD[i]}, v{vD[i]}, v{vDd[i]}")
        return out
    k("; ---- P2 attention")
    for x in dma(0): k(x)
    k(f"""buffer_load_dwordx4 {vr(Qm,4)}, v{vq}, {sr(sO,4)}, s{s_q1} offen
    buffer_load_dwordx4 {vr(QmY,4)}, v{vq}, {sr(sO,4)}, s{s_t3} offen
    buffer_load_dwordx2 {vr(Qr,2)}, v{vqr}, {sr(sO,4)}, s{s_q2} offen""")
    for x in dma(1): k(x)
    p2a = [f"ds_read_b64_tr_b16 {vr(PR+4*Tl+2*rd,2)}, v{vPA} offset:{rd*1024+Tl*32}" for Tl in range(4) for rd in range(2)]
    p2c = [f"{M16} {vr(vcs,16)}, {vr(vsel+4*Tl,4)}, {vr(PR+4*Tl,4)}, {'0' if Tl == 0 else vr(vcs,16)}" for Tl in range(4)]
    late = [f"buffer_store_dwordx4 {vr(PR+4*Tl,4)}, v{vl16}, {sr(sO,4)}, s{s_po} offen offset:{Tl*1024}{sc}" for Tl in range(4)]
    late += [f"buffer_atomic_add_f32 v{vcs}, v{vca}, {sr(sO,4)}, s{s_cs} offen", f"buffer_atomic_add_f32 v{vcs+1}, v{vca}, {sr(sO,4)}, s{s_cs} offen offset:256"]
    TL = o.get('TL', 3); TP = o.get('TP', 11); assert TL > 2
    late_t = o.get('late_t', [TP + 1, TP + 2, TP + 4, TP + 5, TP + 3, TP + 3]); TSIG = o.get('TSIG', TP + 11)
    assert not edge_prep
    M2B = "v_mfma_f32_32x32x4_2b_bf16"
    def rdK(t):
        o_ = ((t // 4) % 3) * SL + (t % 4) * 512
        return [f"ds_read_b128 {vr(Km,4)}, v{vKA} offset:{o_}", f"ds_read_b64 {vr(Kr,2)}, v{vKR} offset:{o_}"]
    def rdV(t):
        o_ = ((t // 4) % 3) * SL + (t % 4) * 1344
        return [f"ds_read_b128 {vr(V0,4)}, v{vVA} offset:{o_}", f"ds_read_b128 {vr(V1[t&1],4)}, v{vVA} offset:{o_+672}"]
    k("s_waitcnt vmcnt(3)\ns_barrier")
    k.stamp(7)
    for x in rdK(0): k(x)
    k(f"""s_waitcnt lgkmcnt(0)
    {M2B} {vr(S[0],32)}, {vr(Kr,2)}, {vr(Qr,2)}, 0
    {M16} {vr(S[0],16)}, {vr(Km,4)}, {vr(Qm,4)}, {vr(S[0],16)}
    {M16} {vr(S[0]+16,16)}, {vr(Km,4)}, {vr(QmY,4)}, {vr(S[0]+16,16)}""")
    for x in rdK(1) + rdV(0): k(x)
    side = []; vm = [0]
    def spread(n):
        for _ in range(n):
            if side:
                x = side.pop(0)
                if x is None: continue
                if x == 'KV': vm[0] = 0; continue
                k(x)
                if x.startswith('buffer_'): vm[0] += 1
    NT = 32
    for t in range(NT):
        s = S[t & 1]; sn = S[(t + 1) & 1]; pe = t // 4; last = t == NT - 1
        e = lambda *a: [(k(f"v_exp_f32 v{s+i}, v{s+i}"), spread(1)) for i in a]
        cv = lambda i: k(f"v_cvt_pk_bf16_f32 v{P+i%8}, v{s+2*i}, v{s+2*i+1}")
        def pr(ph):
            if prio:
                q = (7 * t + ph - 19) % 28
                cum = 0
                for lvl, ln in enumerate(prio):
                    if (q == cum and ln > 0) or (t == 0 and ph == 0 and cum <= q < cum + ln): k(f"s_setprio {3 - lvl}")
                    cum += ln
        z = lambda r: '0' if t == 0 else vr(r, 16)
        pr(0)
        e(0, 1, 2, 3)
        if not last:
            k("s_waitcnt lgkmcnt(2)")
            k(f"{M2B} {vr(sn,32)}, {vr(Kr,2)}, {vr(Qr,2)}, 0")
        pr(1)
        e(4); cv(0); e(5); cv(1); e(6, 7); cv(2); e(8); cv(3); e(9, 10)
        k("s_waitcnt lgkmcnt(0)")
        k(f"{M16} {vr(O,16)}, {vr(V0,4)}, {vr(P,4)}, {z(O)}")
        pr(2)
        e(11); cv(4); e(12); cv(5); e(13, 14)
        if not last: k(f"{M16} {vr(sn,16)}, {vr(Km,4)}, {vr(Qm,4)}, {vr(sn,16)}")
        pr(3)
        e(15); cv(6); e(16); cv(7); e(17, 18)
        k(f"{M16} {vr(O,16)}, {vr(V1[t&1],4)}, {vr(P+4,4)}, {vr(O,16)}")
        pr(4)
        e(19); cv(8); e(20); cv(9); e(21, 22)
        if not last: k(f"{M16} {vr(sn+16,16)}, {vr(Km,4)}, {vr(QmY,4)}, {vr(sn+16,16)}")
        if part and t == 1:
            Ln = k.label("nq"); k(f"s_cmp_lg_u32 s{s_w}, 0\ns_cbranch_scc1 {Ln}"); k(fl[0]); k(fl[1]); k(f"{Ln}:")
        if t % 4 == 2 and pe < 7:
            assert not side
            k(f"s_waitcnt vmcnt({0 if t in (TP - 1, TSIG - 4, 26) else vm[0]})")
            if part and t == 2:
                Ln = k.label("nq"); Lq = k.label("q")
                k(f"""s_cmp_lg_u32 s{s_w}, 0
                s_cbranch_scc1 {Ln}
                s_mov_b32 s{s_t2}, 0
                {Lq}:
                v_min_u32 v{vf2}, v{vf2}, v{vf2+1}
                s_add_u32 s{s_t2}, s{s_t2}, 1
                v_cmp_ne_u32 vcc, 0, v{vf2}
                s_cmp_eq_u64 vcc, -1
                s_cbranch_scc1 {Ln}
                s_cmp_gt_u32 s{s_t2}, 0x40000
                s_cbranch_scc1 {Ln}""")
                k(fl[0]); k(fl[1])
                k(f"s_waitcnt vmcnt(0)\ns_branch {Lq}\n{Ln}:")
            if early and t == 26:
                Ln = k.label("ne"); Lq = k.label("e")
                k(f"""s_cmp_lg_u32 s{s_w}, 0
                s_cbranch_scc1 {Ln}
                s_mov_b32 s{s_t2}, 0
                {Lq}:
                v_min_u32 v{vfp}, v{vfp}, v{vfp+1}
                v_min3_u32 v{vfp}, v{vfp}, v{vfp+2}, v{vfp+3}
                s_add_u32 s{s_t2}, s{s_t2}, 1
                v_cmp_ne_u32 vcc, 0, v{vfp}
                s_cmp_eq_u64 vcc, -1
                s_cbranch_scc1 {Ln}
                s_cmp_gt_u32 s{s_t2}, 0x40000
                s_cbranch_scc1 {Ln}
                buffer_load_dwordx4 {vr(vfp,4)}, v{vl16}, {sr(sO,4)}, s{s_t0} offen sc1
                s_waitcnt vmcnt(0)
                s_branch {Lq}
                {Ln}:""")
                side += [f"s_lshr_b32 s{s_t0}, s2, 5"] if o.get('row3', o.get('cinit', True)) else [f"s_bfe_u32 s{s_t0}, s2, 0x10002", f"s_lshl_b32 s{s_t0}, s{s_t0}, 2", f"s_lshr_b32 s{s_t1}, s2, 6", f"s_add_u32 s{s_t0}, s{s_t0}, s{s_t1}"]
                side += [
                         f"s_lshl_b32 s{s_t1}, s{s_w}, 3", f"s_add_u32 s{s_t0}, s{s_t0}, s{s_t1}", f"s_mul_i32 s{s_t0}, s{s_t0}, 5120", f"s_add_u32 s{s_t0}, s{s_t0}, {WOP}",
                         f"s_mul_i32 s{s_t1}, s{s_w}, 5120"]
                for hf in range(2):
                    side += [f"s_add_u32 m0, s{s_t1}, {PREP + hf*8*5120}", f"s_add_u32 s{s_t2}, s{s_t0}, 4096"]
                    side += [f"buffer_load_dwordx4 v{vl16}, {sr(sO,4)}, s{s_t0} offen offset:{i*1024} lds" for i in range(4)]
                    side += ["s_add_u32 m0, m0, 4096", f"s_add_u32 s{s_t0}, s{s_t0}, {8*40960}", f"buffer_load_dwordx4 v{vl16}, {sr(sO,4)}, s{s_t2} offen lds"]
                sp = o.get('espace', 8)
                side[:] = [y for x in side for y in ([x] + [None] * sp if x.startswith('buffer') else [x])]
            k("s_barrier")
            if o.get('fine') == 2: k.stamp({0: 1, 1: 2, 2: 3, 3: 4, 4: 5, 5: 6, 6: 9}[pe])
            if pe < 6: side += dma((pe + 2) % 3) + ['KV']
            if t == TSIG - 4:
                Ln = k.label("nf")
                k(f"s_cmp_lg_u32 s{s_w}, 0\ns_cbranch_scc1 {Ln}\ns_lshl_b32 s{s_t0}, s2, 2\ns_add_u32 s{s_t0}, s{s_t0}, {FP}")
                c.signal(s_t0, vt[2]); k(f"{Ln}:")
        pr(5)
        if t < NT - 2:
            for x in rdK(t + 2): k(x)
        if t == TP:
            for x in p2a: k(x)
        if t == TL: side += p1
        if o.get('cs2', True):
            if TP < t <= TP + 2: k(p2c[2 * (t - TP - 1)]); side.insert(0, None); side.insert(0, None); side.insert(min(4, len(side)), p2c[2 * (t - TP - 1) + 1])
        elif TP < t <= TP + 4: k(p2c[t - TP - 1])
        for i_, x_ in enumerate(late_t):
            if int(x_) == t: side.append(late[i_])
        if t == (o.get('TF', 24) if early else 28):
            Ln = k.label("nl")
            if early: k(f"s_cmp_lg_u32 s{s_w}, 0\ns_cbranch_scc1 {Ln}")
            k(f"s_mov_b32 s{s_t0}, {FP}\nbuffer_load_dwordx4 {vr(vfp,4)}, v{vl16}, {sr(sO,4)}, s{s_t0} offen sc1\n{Ln}:")
        e(23); cv(10); e(24); cv(11); e(25, 26)
        k(f"{M16} {vr(OY,16)}, {vr(V0,4)}, {vr(P,4)}, {z(OY)}")
        pr(6)
        e(27); cv(12); e(28); cv(13); e(29, 30, 31); cv(14)
        if not last:
            rv = rdV(t + 1)
            k(rv[0]); cv(15); k(rv[1]); k("s_nop 0")
        else:
            cv(15)
        k(f"{M16} {vr(OY,16)}, {vr(V1[t&1],4)}, {vr(P+4,4)}, {vr(OY,16)}")
    assert not side
    if o.get('fine') == 2: k.stamp(10)
    k("s_setprio 0")
    for j in range(3): k(f"ds_write_b128 v{vx1}, {vr(OY+4*j,4)} offset:{1024*j}")
    k(f"s_mov_b32 s{s_q1}, {f2u(2.0**64):#x}\ns_mov_b32 s{s_q2}, 0x7f800000")
    k("s_waitcnt lgkmcnt(0)\ns_barrier")
    for j in (2, 0, 1): k(f"ds_read_b128 {vr(OY+4*j,4)}, v{vx2} offset:{1024*j}")
    t0, t1, t2 = vt[0], vt[1], vt[2]
    k("s_waitcnt lgkmcnt(2)")
    for i in (4, 5): k(f"v_pk_add_f32 {vr(O+2*i,2)}, {vr(O+2*i,2)}, {vr(OY+2*i,2)}")
    k(f"v_mov_b32 v{t0}, v{O+8}\nv_mov_b32 v{t1}, v{O+8}\ns_waitcnt lgkmcnt(0)")
    for i in range(4): k(f"v_pk_add_f32 {vr(O+2*i,2)}, {vr(O+2*i,2)}, {vr(OY+2*i,2)}")
    k(f"""v_permlane32_swap_b32 v{t0}, v{t1}
    v_add_f32 v{t2}, |v{O+8}|, |v{O+9}|
    v_add_f32 v{vt[3]}, |v{O+10}|, |v{O+11}|""")
    for i in range(0, 8, 2): k(f"v_add_f32 v{t2}, |v{O+i}|, v{t2}\nv_add_f32 v{vt[3]}, |v{O+i+1}|, v{vt[3]}")
    k(f"""v_cmp_lt_f32 vcc, {f2u(2.0**-64):#x}, v{t1}
    v_add_f32 v{t2}, v{t2}, v{vt[3]}
    v_cmp_gt_f32 {sr(sE,2)}, s{s_q1}, v{t1}
    v_cmp_gt_f32 {sr(sG,2)}, s{s_q2}, v{t2}
    s_and_b64 vcc, vcc, {sr(sE,2)}
    s_and_b64 vcc, vcc, {sr(sG,2)}
    s_cmp_eq_u64 vcc, -1
    s_cbranch_scc0 {L_slow}
    {L_store}:
    v_rcp_f32 v{t0}, v{t1}
    v_rcp_f32 v{t1}, v{t1}""")
    assert t0 % 2 == 0 and t1 == t0 + 1
    for i in range(4): k(f"v_pk_mul_f32 {vr(O+2*i,2)}, {vr(O+2*i,2)}, {vr(t0,2)}")
    for i in range(4): k(f"v_cvt_pk_bf16_f32 v{O+i}, v{O+2*i}, v{O+2*i+1}")
    k(f"buffer_store_dwordx4 {vr(O,4)}, v{vo1}, {sr(sO,4)}, s{s_o1} offen{sc}")
    for i in range(4, 6): k(f"v_pk_mul_f32 {vr(O+2*i,2)}, {vr(O+2*i,2)}, {vr(t0,2)}")
    for i in range(4, 6): k(f"v_cvt_pk_bf16_f32 v{O+i}, v{O+2*i}, v{O+2*i+1}")
    k(f"""s_mov_b32 exec_hi, 0
    buffer_store_dwordx2 {vr(O+4,2)}, v{vo2}, {sr(sO,4)}, s{s_o2} offen{sc}
    s_mov_b32 exec_hi, -1""")
    def slow():
        vV = vKA; vm = vKR; cnt = s_t3
        k(f"""{L_slow}:
        s_lshl_b32 s{so[0]}, s{s_tok}, 4
        s_add_u32 s{so[0]}, s{so[0]}, s{s_pr}
        s_add_u32 s{so[0]}, s{so[0]}, s{s_odd8}
        v_mov_b32 v{Qr}, 0
        v_mov_b32 v{Qr+1}, 0
        s_mov_b32 exec_hi, 0
        buffer_load_dwordx2 {vr(Qr,2)}, v{vr31}, {sr(sO,4)}, s{so[0]} offen
        s_mov_b32 exec_hi, -1
        s_add_u32 s{so[0]}, s{s_pa}, {80*32768}
        s_add_u32 s{so[1]}, s{s_pr}, {80*32768}
        s_add_u32 s{so[1]}, s{so[1]}, s{s_odd8}
        v_mov_b32 v{vm}, 0xff800000
        s_mov_b32 s{cnt}, 0""")
        L1 = k.label("mx")
        k(f"""{L1}:
        buffer_load_dwordx4 {vr(Km,4)}, v{vq}, {sr(sO,4)}, s{so[0]} offen
        buffer_load_dwordx2 {vr(Kr,2)}, v{vr31}, {sr(sO,4)}, s{so[1]} offen
        s_add_u32 s{so[0]}, s{so[0]}, 512
        s_add_u32 s{so[1]}, s{so[1]}, 512
        s_waitcnt vmcnt(0)
        {M8} {vr(S[0],16)}, {vr(Kr,2)}, {vr(Qr,2)}, 0
        {M16} {vr(S[0],16)}, {vr(Km,4)}, {vr(Qm,4)}, {vr(S[0],16)}""")
        for i in range(8): k(f"v_max3_f32 v{vm}, v{S[0]+2*i}, v{S[0]+2*i+1}, v{vm}")
        k(f"""s_add_u32 s{cnt}, s{cnt}, 1
        s_cmp_lt_u32 s{cnt}, 64
        s_cbranch_scc1 {L1}
        v_mov_b32 v{t0}, v{vm}
        v_permlane32_swap_b32 v{t0}, v{vm}
        v_max_f32 v{vm}, v{vm}, v{t0}""")
        for i in range(16): k(f"v_sub_f32 v{C+i}, 0, v{vm}\nv_mov_b32 v{O+i}, 0")
        k(f"""s_add_u32 s{so[0]}, s{s_pa}, {80*32768}
        s_add_u32 s{so[1]}, s{s_pr}, {80*32768}
        s_add_u32 s{so[1]}, s{so[1]}, s{s_odd8}
        s_mul_i32 s{so[2]}, s{s_h}, 320
        s_add_u32 s{so[2]}, s{so[2]}, {VIMG}
        v_lshrrev_b32 v{vV}, 5, v{vl}
        v_mul_u32_u24 v{vV}, 10240, v{vV}
        v_add3_u32 v{vV}, v{vV}, v{vr31}, s{so[2]}
        v_add_u32 v{vD[1]}, 20480, v{vV}
        v_cmp_gt_u32 vcc, 320, v{vr31}
        v_mov_b32 v{vD[2]}, {ONES}
        v_mov_b32 v{vDd[0]}, 40960
        v_cndmask_b32 v{vV}, v{vD[2]}, v{vV}, vcc
        v_cndmask_b32 v{vD[1]}, v{vD[2]}, v{vD[1]}, vcc
        v_cndmask_b32 v{vDd[0]}, 0, v{vDd[0]}, vcc
        s_mov_b32 s{cnt}, 0""")
        L2 = k.label("pv")
        k(f"""{L2}:
        buffer_load_dwordx4 {vr(Km,4)}, v{vq}, {sr(sO,4)}, s{so[0]} offen
        buffer_load_dwordx2 {vr(Kr,2)}, v{vr31}, {sr(sO,4)}, s{so[1]} offen
        buffer_load_dwordx4 {vr(V0,4)}, v{vV}, {sr(sO,4)}, 0 offen
        buffer_load_dwordx4 {vr(V1[0],4)}, v{vD[1]}, {sr(sO,4)}, 0 offen
        s_add_u32 s{so[0]}, s{so[0]}, 512
        s_add_u32 s{so[1]}, s{so[1]}, 512
        v_add_u32 v{vV}, v{vV}, v{vDd[0]}
        v_add_u32 v{vD[1]}, v{vD[1]}, v{vDd[0]}
        s_waitcnt vmcnt(0)
        {M8} {vr(S[0],16)}, {vr(Kr,2)}, {vr(Qr,2)}, {vr(C,16)}
        {M16} {vr(S[0],16)}, {vr(Km,4)}, {vr(Qm,4)}, {vr(S[0],16)}""")
        for i in range(16): k(f"v_exp_f32 v{S[0]+i}, v{S[0]+i}")
        for i in range(8): k(f"v_cvt_pk_bf16_f32 v{P+i}, v{S[0]+2*i}, v{S[0]+2*i+1}")
        k(f"""{M16} {vr(O,16)}, {vr(V0,4)}, {vr(P,4)}, {vr(O,16)}
        {M16} {vr(O,16)}, {vr(V1[0],4)}, {vr(P+4,4)}, {vr(O,16)}
        s_add_u32 s{cnt}, s{cnt}, 1
        s_cmp_lt_u32 s{cnt}, 64
        s_cbranch_scc1 {L2}
        v_mov_b32 v{t0}, v{O+8}
        v_mov_b32 v{t1}, v{O+8}
        v_permlane32_swap_b32 v{t0}, v{t1}
        s_branch {L_store}""")
    slow_code = deferred(slow)
    L3 = k.label("ld")
    k.stamp(8); k.nst = 8
    if o.get('fine1') or o.get('fine') == 2:
        k.maxst = 14; k.stamp = lambda *a, **kw: None
    k(f"""s_lshr_b32 s{c.s_f}, s2, 5
    s_lshl_b32 s{c.s_f}, s{c.s_f}, 5
    s_add_u32 s{c.s_f}, s{c.s_f}, s{s_h}
    s_lshl_b32 s{c.s_f}, s{c.s_f}, {FL}
    s_add_u32 s{c.s_f}, s{c.s_f}, {F2}""")
    k("; ---- P3 o-proj")
    P3 = P35(c, 3, D=o.get('D3', 20), D0=o.get('D30', 6), early=early)
    cin = o.get('cinit', True)
    P3.rowmap = o.get('row3', cin); P3.cinit = cin
    k(P3.ptr_load()); P3.ids()
    lw(c, L3)
    def handoff(vt, stmp, n, idle=None):
        Ln = k.label("nw0"); Ls = k.label("ns0")
        k("s_barrier")
        k(f"s_cmp_lg_u32 s{c.s_w}, 0\ns_cbranch_scc1 {Ls}")
        c.signal(c.s_f, vt)
        k(f"{Ls}:")
        if idle: idle()
        k(f"s_cmp_lg_u32 s{c.s_w}, 0\ns_cbranch_scc1 {Ln}")
        c.poll(c.s_p, n, vt, stmp)
        k(f"{Ln}:\ns_barrier")
    P3.setup()
    k(f"""s_lshr_b32 s{c.s_p}, s{P3.s_tb16}, 4
    s_lshl_b32 s{c.s_p}, s{c.s_p}, {FL+5}
    s_add_u32 s{c.s_p}, s{c.s_p}, {F2}
    s_waitcnt vmcnt({0 if cin else 3})""")
    def idle3():
        P3.keep_addr(); P3.load_cinit()
    handoff(P3.vt[0], P3.s_t0, 32, idle3 if cin else None)
    k.stamp('n')
    if o.get('fine') == 3: P3.fine = {0: 2, 1: 3, 4: 4, 8: 5, 12: 6, 16: 7, 19: 8}
    P3.main(init=False, resident=True)
    P3.lateD = o.get('lateD', True)
    if not P3.lateD: k("s_barrier")
    P3.epilogue()
    k(f"""s_lshr_b32 s{c.s_f}, s{P3.s_tb16}, 3
    s_lshl_b32 s{c.s_f}, s{c.s_f}, 5
    s_bfe_u32 s{P3.s_t0}, s{P3.s_tb16}, 0x10002
    s_lshl_b32 s{P3.s_t0}, s{P3.s_t0}, 3
    s_add_u32 s{c.s_f}, s{c.s_f}, s{P3.s_t0}
    s_add_u32 s{c.s_f}, s{c.s_f}, s{P3.s_c}
    s_lshl_b32 s{c.s_f}, s{c.s_f}, {FL}
    s_add_u32 s{c.s_f}, s{c.s_f}, {F3}""")
    Q4 = P4(c, D=o.get('D4', 12), D0=o.get('D40', 4)); Q4.ahead = o.get('ahead4', 4); Q4.thin = o.get('thin4'); Q4.nob = o.get('nob'); Q4.mcorr = o.get('mcorr', True); Q4.lstat = o.get('lstat', True); Q4.bsched = o.get('bsched', (1, 2)); Q4.tmaj = o.get('tmaj', True); Q4.pkall = o.get('pkall', False); Q4.jstart = o.get('jstart', 2)
    if Q4.tmaj: Q4.wsched = o.get('wsched', {4: (), 5: (0, 1), 6: (2, 3), 7: (4, 5, 6)})
    Q4.ids(); Q4.setup()
    k(f"""s_lshr_b32 s{c.s_p}, s{Q4.s_tb}, 2
    s_lshl_b32 s{c.s_p}, s{c.s_p}, {FL+5}
    s_add_u32 s{c.s_p}, s{c.s_p}, {F3}
    s_waitcnt vmcnt(0)""")
    k.stamp('n')
    handoff(Q4.st, Q4.s_t1, 16)
    k.stamp('n')
    Q4.fine2 = o.get('fine') == 41
    if o.get('fine') == 4: Q4.fine = {0: 2, 1: 3, 4: 4, 12: 5, 20: 6, 30: 7, 31: 8}
    noG = Q4.tmaj and o.get('e5', 4) >= o.get('pre5', 4) and o.get('noG', True)
    Q4.main(init=False, endbar=not noG)
    if not Q4.tmaj: Q4.epilogue(k.label("fin"))
    k(f"""s_lshr_b32 s{c.s_f}, s{Q4.s_tb}, 2
    s_lshl_b32 s{c.s_f}, s{c.s_f}, 5
    s_add_u32 s{c.s_f}, s{c.s_f}, s{Q4.s_g}
    s_lshl_b32 s{c.s_f}, s{c.s_f}, {FL}
    s_add_u32 s{c.s_f}, s{c.s_f}, {F4}""")
    pair5 = o.get('pair5', True)
    P5 = P35(c, 5, D=o.get('D5', 8 if pair5 else 12), D0=o.get('D50', 4), pair=pair5); P5.ahead = o.get('ahead5', 5); P5.rowmap = o.get('row5', True); P5.bar8 = o.get('bar8', True); P5.ofl = o.get('ofl', '')
    k("; ---- P5 down")
    k("s_nop 1"); k(P5.ptr_load()); P5.ids(); P5.setup()
    if pair5: P5.setup_pair()
    k(f"""s_lshr_b32 s{c.s_p}, s{P5.s_tb16}, 3
    s_lshl_b32 s{c.s_p}, s{c.s_p}, {FL+5}
    s_add_u32 s{c.s_p}, s{c.s_p}, {F4}
    s_waitcnt vmcnt(0)""")
    k.stamp('n')
    def idle5():
        P5.keep_addr(); P5.load_cinit()
    P5.cinit = cin and P3.rowmap == P5.rowmap
    handoff(P5.vt[0], P5.s_t0, 16, idle5 if P5.cinit else None)
    k.stamp('n')
    if o.get('fine') == 5: P5.fine = {0: 2, 1: 3, 8: 4, 16: 5, 28: 6, 40: 7, 53: 8}
    if pair5:
        if o.get('fine') == 5: P5.fine = {0: 2, 1: 3, 4: 4, 8: 5, 14: 6, 20: 7, 26: 8}
        P5.main_pair()
    else: P5.main(init=False)
    P5.epilogue()
    if o.get('dbgst') is not None:
        Ln = k.label("dn")
        k.stamp(14); k.stamp_real(15)
        k(f"s_cmp_lg_u32 s2, {o['dbgst']}\ns_cbranch_scc1 {Ln}\ns_cmp_lg_u32 s{s_w}, 0\ns_cbranch_scc1 {Ln}\ns_waitcnt lgkmcnt(0)\nv_mov_b32 v1, 0\ns_mov_b64 exec, 1")
        pos = [1, 2, 3, 5, 6, 7, 9, 10, 11, 13, 14, 15]
        src = [2, 3, 6, 7, 8, 9, 11, 12, 13, 14]
        for p_, i in zip(pos, src):
            k(f"s_sub_u32 s66, s{k.sT+2*i}, s{k.sT+2}\nv_mov_b32 v2, s66\nbuffer_store_dword v2, v1, {sr(sD,4)}, 0 offen offset:{4*p_}")
        k(f"s_sub_u32 s66, s{k.sT+30}, s{k.sT}\nv_mov_b32 v2, s66\nbuffer_store_dword v2, v1, {sr(sD,4)}, 0 offen offset:60\n{Ln}:\ns_endpgm")
        k(f"{c.L_end}:\ns_endpgm")
    else:
        c.finish()
    k(f"{L3}:")
    if early:
        P3.ld_setup()
        k(f"s_add_u32 s{P3.s_wo}, s{P3.s_wo}, {16*40960}\ns_waitcnt vmcnt(0)\ns_barrier")
        if early == 2:
            k(f"s_add_u32 s{P3.s_m0}, s{P3.s_m0}, 12288\ns_cmp_eq_u32 s{c.s_wl}, 3\ns_cselect_b32 s{P3.s_m0}, 57344, s{P3.s_m0}")
        P3.ld_chunk(0)
        k("s_waitcnt vmcnt(0)\ns_barrier")
    else:
        Lp = k.label("fp"); Lok = k.label("fpok")
        k(f"""s_mov_b32 s{P3.s_cnt}, 0
        s_waitcnt vmcnt(2)
        {Lp}:
        v_min_u32 v{vfp}, v{vfp}, v{vfp+1}
        v_min3_u32 v{vfp}, v{vfp}, v{vfp+2}, v{vfp+3}
        s_add_u32 s{P3.s_cnt}, s{P3.s_cnt}, 1
        v_cmp_ne_u32 vcc, 0, v{vfp}
        s_cmp_eq_u64 vcc, -1
        s_cbranch_scc1 {Lok}
        s_cmp_gt_u32 s{P3.s_cnt}, 0x40000
        s_cbranch_scc1 {Lok}
        s_mov_b32 s{P3.s_t0}, {FP}
        buffer_load_dwordx4 {vr(vfp,4)}, v{c.vl16}, {sr(c.sO,4)}, s{P3.s_t0} offen sc1
        s_waitcnt vmcnt(0)
        s_branch {Lp}
        {Lok}:""")
        P3.ld_setup()
        k("s_waitcnt vmcnt(0)\ns_barrier")
        for ch in range(5): P3.ld_chunk(ch)
        k("s_waitcnt vmcnt(0)\ns_barrier")
    Q4.ids(); Q4.ld_setup()
    CH4 = 4 * 112 * 1024
    if early == 2:
        k(f"s_add_u32 s{Q4.s_wo}, s{Q4.s_wo}, {CH4}"); Q4.ld_chunk(1); k(f"s_sub_u32 s{Q4.s_wo}, s{Q4.s_wo}, {2*CH4}")
    k("s_barrier")
    n4 = o.get('pre4', 3 if early == 2 else 2)
    for ch in range(n4):
        if early == 2 and ch == 1: k(f"s_add_u32 s{Q4.s_wo}, s{Q4.s_wo}, {CH4}")
        else: Q4.ld_chunk(ch)
    k("s_barrier")
    nF = o.get('nF', 5)
    for ch in range(n4, nF): Q4.ld_chunk(ch)
    if nF == 5: Q4.ld_cs()
    k(f"s_waitcnt vmcnt({7*(nF-1-(early == 2)) + (nF == 5)})\ns_barrier")
    for ch in range(nF, 5): Q4.ld_chunk(ch)
    if nF < 5: Q4.ld_cs()
    rg5 = None
    if o.get('reg5', True):
        rg5 = dict(base=20, addr=[8, 9, 10])
        s5 = 64
        def warm():
            if P5.rowmap: k(f"s_lshr_b32 s{Q4.s_t0}, s2, 5")
            else: k(f"""s_bfe_u32 s{Q4.s_t0}, s2, 0x10002
            s_lshl_b32 s{Q4.s_t0}, s{Q4.s_t0}, 2
            s_lshr_b32 s{Q4.s_t1}, s2, 6
            s_add_u32 s{Q4.s_t0}, s{Q4.s_t0}, s{Q4.s_t1}""")
            k(f"""s_lshl_b32 s{Q4.s_t1}, s{c.s_wl}, 3
            s_add_u32 s{Q4.s_t0}, s{Q4.s_t0}, s{Q4.s_t1}
            s_mul_i32 s{Q4.s_t0}, s{Q4.s_t0}, 5120
            s_add_u32 s{Q4.s_t0}, s{Q4.s_t0}, {WDP + 28*40960}""")
        def warm_chunk(j):
            k(f"s_add_u32 s{Q4.s_t1}, s{Q4.s_t0}, 4096")
            for i in range(5):
                k(f"buffer_load_dwordx4 {vr(rg5['base'] + 20*j + 4*i, 4)}, v{c.vl16}, {sr(c.sO,4)}, s{Q4.s_t0 if i < 4 else Q4.s_t1} offen offset:{(i%4)*1024}")
            k(f"s_add_u32 s{Q4.s_t0}, s{Q4.s_t0}, {4*40960}")
        Q4.warm = warm; Q4.warm_chunk = warm_chunk
    if Q4.lstat: Q4.ld_stats()
    e5 = o.get('e5', 4) if Q4.tmaj else 0
    if e5:
        ws7 = Q4.wsched[7]; Q4.wsched = dict(Q4.wsched); Q4.wsched[7] = ()
        sv = (k.s(), )
    Q4.ld_main(5, 1, init=False)
    if e5: k(f"s_mov_b32 s{c.s_p}, s{Q4.s_t0}")
    P5.ids(); P5.ld_setup()
    k(f"""v_add_u32 v8, s{P5.s_m0}, v{c.vl16}
    v_add_u32 v9, {3*P5.SLOT}, v8
    v_add_u32 v10, {6*P5.SLOT}, v8""")
    if e5:
        def wc(j):
            k(f"s_add_u32 s{c.s_f}, s{c.s_p}, 4096")
            for i in range(5):
                k(f"buffer_load_dwordx4 {vr(rg5['base'] + 20*j + 4*i, 4)}, v{c.vl16}, {sr(c.sO,4)}, s{c.s_p if i < 4 else c.s_f} offen offset:{(i%4)*1024}")
            k(f"s_add_u32 s{c.s_p}, s{c.s_p}, {4*40960}")
        th = o.get('thin5')
        if o.get('e5first'):
            for ch in range(e5):
                P5.ld_chunk(ch)
                if th is not None: k(f"s_waitcnt vmcnt({th})")
        for j in ws7:
            wc(j)
            if th is not None: k(f"s_waitcnt vmcnt({th})")
        if not o.get('e5first'):
            for ch in range(e5):
                P5.ld_chunk(ch)
                if th is not None and ch < e5 - 1: k(f"s_waitcnt vmcnt({th})")
    if not noG: k("s_barrier")
    n5 = max(e5, o.get('pre5', 4))
    for ch in range(e5, n5): P5.ld_chunk(ch)
    k("s_barrier")
    for ch in range(n5, 7): P5.ld_chunk(ch)
    if P5.bar8:
        k("s_waitcnt vmcnt(25)\ns_barrier")
        P5.ld_main8(rg5, 1 if pair5 else 0)
    else:
        k("s_waitcnt vmcnt(30)\ns_barrier")
        P5.ld_main(7, init=False)
    if K.STAMP and o.get('dbgst') is None:
        for i in range(9, 15): k.stamp(i)
        k.stamp_flush(c.sO, c.s_w)
    k("s_endpgm")
    k.lines += ['    ; ---- softmax fall-back with the true row maximum'] + slow_code + ['    ; ---- statistics workgroups'] + spare_code
    return k, (256, 512, max(P3.lds, Q4.lds, P5.lds, P35.HKEEP + 10240 + 512 if cin else 0))
```

```python
from ph import *

def lw(c, L):
    c.k(f"s_cmp_ge_u32 s{c.s_w}, 4\ns_cbranch_scc1 {L}")

class P35:
    def __init__(self, c, which, D=12, D0=None, pair=False, early=False):
        self.c = c; self.k3 = k3 = which == 3; k = c.k
        self.NU = 20 if k3 else 54; self.CK = 4; self.SLOT = 20480
        self.NCH = (self.NU + 3) // 4; self.NSL = 5 if k3 else 7
        self.XS = self.NSL * self.SLOT; self.D = D; self.D0 = D0 or D
        self.early = early
        if early: self.XS = 0 if early == 2 else 40960
        self.lds = (self.XS + 4 * 3072) if not early else 73728 + 4 * 20480
        c.reset()
        self.sPX = k.s(2); self.sB = k.s(4); self.sX = k.s(4)
        (self.s_tb16, self.s_c, self.s_t0, self.s_t1, self.s_t2, self.s_bo, self.s_wo, self.s_m0, self.s_xs, self.s_ho,
         self.s_cnt) = [k.s() for _ in range(11)]
        self.vt = [k.v() for _ in range(6)]; self.vH = k.v(); self.vD = k.v(); self.vA = [k.v() for _ in range(3)]
        self.vrow = [k.v() for _ in range(3)]; self.vR = k.v(); self.vK = k.v()
        self.acc = k.v(20, 4); self.fa = [k.v(20, 4) for _ in range(3)]; self.res = k.v(12, 4)
        self.fb = k.v(4 * self.D * (2 if pair else 1), 4)
        if pair: self.accY = k.v(20, 4); self.s_boY = k.s(); self.vE = [k.v(), k.v()]
    def ptr_load(self): return f"s_load_dwordx2 {sr(self.sPX,2)}, s[0:1], {KA_X if self.k3 else KA_OUT}"
    rowmap = False
    ofl = ''
    bar8 = False
    def ld_main8(self, regs=None, free1=0):
        k = self.c.k; c = self.c
        issued = 7
        for kb in range(6):
            need = min(13, 2 * kb + 3)
            if regs is None: k(f"s_waitcnt vmcnt({5*max(0, issued - 1 - need)})")
            else: k(f"s_waitcnt vmcnt({5*max(0, 6 - need)}) lgkmcnt(0)")
            k("s_barrier")
            while issued < 14 and issued <= 2 * kb + 7 + free1:
                if regs is None: self.ld_chunk(issued % 7)
                else:
                    slot = issued % 7
                    for i in range(5):
                        k(f"ds_write_b128 v{regs['addr'][slot // 3]}, {vr(regs['base'] + 20*(issued-7) + 4*i, 4)} offset:{(slot % 3)*self.SLOT + i*1024}")
                issued += 1
    def ids(self):
        k = self.c.k
        if self.rowmap:
            k(f"""s_and_b32 s{self.s_t0}, s2, 7
            s_lshl_b32 s{self.s_t0}, s{self.s_t0}, 2
            s_bfe_u32 s{self.s_t1}, s2, 0x20003
            s_add_u32 s{self.s_tb16}, s{self.s_t0}, s{self.s_t1}
            s_lshl_b32 s{self.s_tb16}, s{self.s_tb16}, 2
            s_add_u32 s{self.s_tb16}, s{self.s_tb16}, s{self.c.s_wl}
            s_lshr_b32 s{self.s_c}, s2, 5""")
            return
        k(f"""s_and_b32 s{self.s_t0}, s2, 3
        s_lshl_b32 s{self.s_t0}, s{self.s_t0}, 3
        s_bfe_u32 s{self.s_t1}, s2, 0x30003
        s_add_u32 s{self.s_tb16}, s{self.s_t0}, s{self.s_t1}
        s_lshl_b32 s{self.s_tb16}, s{self.s_tb16}, 2
        s_add_u32 s{self.s_tb16}, s{self.s_tb16}, s{self.c.s_wl}
        s_bfe_u32 s{self.s_t0}, s2, 0x10002
        s_lshl_b32 s{self.s_t0}, s{self.s_t0}, 2
        s_lshr_b32 s{self.s_t1}, s2, 6
        s_add_u32 s{self.s_c}, s{self.s_t0}, s{self.s_t1}""")
    def ld_setup(self):
        k = self.c.k
        k(f"""s_mul_i32 s{self.s_wo}, s{self.c.s_wl}, 8
        s_add_u32 s{self.s_wo}, s{self.s_wo}, s{self.s_c}
        s_mul_i32 s{self.s_wo}, s{self.s_wo}, 5120
        s_add_u32 s{self.s_wo}, s{self.s_wo}, {WOP if self.k3 else WDP}
        s_mul_i32 s{self.s_m0}, s{self.c.s_wl}, 5120""")
    def ld_chunk(self, slot):
        k = self.c.k; c = self.c
        k(f"s_add_u32 m0, s{self.s_m0}, {slot*self.SLOT}\ns_add_u32 s{self.s_t2}, s{self.s_wo}, 4096")
        for i in range(4):
            k(f"buffer_load_dwordx4 v{c.vl16}, {sr(c.sO,4)}, s{self.s_wo} offen offset:{i*1024}{c.lsc} lds")
        k(f"s_add_u32 m0, m0, 4096\ns_add_u32 s{self.s_wo}, s{self.s_wo}, {4*40960}")
        k(f"buffer_load_dwordx4 v{c.vl16}, {sr(c.sO,4)}, s{self.s_t2} offen{c.lsc} lds")
    def ld_main(self, issued, init=True):
        k = self.c.k; NCH = self.NCH
        if init: k(f"s_waitcnt vmcnt({5*(issued-1)})\ns_barrier")
        for ch in range(NCH - 1):
            k(f"s_waitcnt vmcnt({5*max(0, issued-ch-2)})\ns_barrier")
            while issued < NCH and issued < ch + self.NSL and issued <= ch + 1 + self.ahead:
                self.ld_chunk(issued % self.NSL); issued += 1
    def setup(self):
        k = self.c.k; c = self.c; vt = self.vt; vl = c.vl
        for i in range(3):
            k(f"""v_add_u32 v{vt[0]}, {64*i}, v{vl}
            v_mul_u32_u24 v{vt[1]}, 6554, v{vt[0]}
            v_lshrrev_b32 v{vt[1]}, 16, v{vt[1]}
            v_mul_u32_u24 v{vt[1]}, {1280-160}, v{vt[1]}
            v_lshl_add_u32 v{self.vrow[i]}, v{vt[0]}, 4, v{vt[1]}""")
        k(f"""s_mul_i32 s{self.s_t1}, s{self.s_tb16}, {16*1280}
        s_mul_i32 s{self.s_t2}, s{self.s_c}, 160
        s_add_u32 s{self.s_t1}, s{self.s_t1}, s{self.s_t2}
        s_waitcnt lgkmcnt(0)
        s_add_u32 s{self.sX}, s{self.sPX}, s{self.s_t1}
        s_addc_u32 s{self.sX+1}, s{self.sPX+1}, 0
        s_sub_u32 s{self.sX+2}, {2048*1280}, s{self.s_t1}
        s_mov_b32 s{self.sX+3}, 0x20000
        s_mul_i32 s{self.s_xs}, s{c.s_wl}, 3072
        s_add_u32 s{self.s_xs}, s{self.s_xs}, {self.XS}""")
        if self.k3:
            k(f"s_mov_b32 m0, s{self.s_xs}")
            for i in range(3):
                k(f"s_nop 0\nbuffer_load_dwordx4 v{self.vrow[i]}, {sr(self.sX,4)}, 0 offen lds")
                if i < 2: k("s_add_u32 m0, m0, 1024")
        k(f"""v_lshrrev_b32 v{vt[0]}, 4, v{vl}
        v_and_b32 v{vt[1]}, 15, v{vl}
        v_lshlrev_b32 v{vt[2]}, 4, v{vt[1]}
        v_lshl_add_u32 v{self.vH}, v{vt[0]}, 9, v{vt[2]}
        v_lshlrev_b32 v{self.vR}, 3, v{vt[1]}
        v_lshl_add_u32 v{self.vR}, v{vt[0]}, 8, v{self.vR}
        s_lshr_b32 s{self.s_t1}, s{self.s_tb16}, 1
        s_mul_i32 s{self.s_t1}, s{self.s_t1}, 40
        s_mul_i32 s{self.s_t2}, s{self.s_c}, 5
        s_add_u32 s{self.s_t1}, s{self.s_t1}, s{self.s_t2}
        s_lshl_b32 s{self.s_t1}, s{self.s_t1}, 10
        s_and_b32 s{self.s_t2}, s{c.s_w}, 1
        s_lshl_b32 s{self.s_t2}, s{self.s_t2}, 8
        s_add_u32 s{self.s_t1}, s{self.s_t1}, s{self.s_t2}
        s_add_u32 s{self.s_ho}, s{self.s_t1}, {HIMG}
        v_mul_u32_u24 v{vt[1]}, 160, v{vt[1]}
        v_lshl_add_u32 v{vt[1]}, v{vt[0]}, 3, v{vt[1]}
        v_add_u32 v{self.vD}, s{self.s_xs}, v{vt[1]}
        v_add_u32 v{self.vA[0]}, {73728 if self.early else 0}, v{c.vl16}
        v_add_u32 v{self.vA[1]}, {(73728 if self.early else 0) + 3*self.SLOT}, v{c.vl16}
        v_add_u32 v{self.vA[2]}, {(12288 if self.early == 2 else 0) if self.early else 6*self.SLOT}, v{c.vl16}
        s_mul_i32 s{self.s_bo}, s{self.s_tb16}, {self.NU*1024}
        s_add_u32 s{self.s_bo}, s{self.s_bo}, {OIMG if self.k3 else ACT}""")
    def loadB(self, u):
        k = self.c.k; c = self.c
        if self.k3 and u >= 16:
            for j in range(2):
                k(f"buffer_load_dwordx2 {vr(self.fb+4*(u % self.D)+2*j,2)}, v{self.vR}, {sr(c.sO,4)}, s{self.s_bo} offen offset:{(u%4)*1024+128*j}{c.lsc}")
            return 2
        k(f"buffer_load_dwordx4 {vr(self.fb+4*(u % self.D),4)}, v{c.vl16}, {sr(c.sO,4)}, s{self.s_bo} offen offset:{(u%4)*1024}{c.lsc}")
        if u % 4 == 3: k(f"s_add_u32 s{self.s_bo}, s{self.s_bo}, 4096")
        return 1
    def rdA(self, u):
        slot = (u // 4) % self.NSL
        if self.early == 2 and u == 19:
            return [f"ds_read_b128 {vr(self.fa[u%3]+4*T,4)}, v{self.vA[2]} offset:{57344-12288+T*1024}" for T in range(5)]
        if self.early and slot == 4: slot = 6
        return [f"ds_read_b128 {vr(self.fa[u%3]+4*T,4)}, v{self.vA[slot//3]} offset:{(slot%3)*self.SLOT+((u%4)*5+T)*1024}" for T in range(5)]
    def main(self, init=True, resident=False):
        k = self.c.k; c = self.c; NU = self.NU; D = self.D; res = self.res
        order = []
        def resld():
            k(f"""s_add_u32 s{self.s_t1}, s{self.s_ho}, 4096
            buffer_load_dwordx4 {vr(res,4)}, v{self.vH}, {sr(c.sO,4)}, s{self.s_ho} offen{c.lsc}
            buffer_load_dwordx4 {vr(res+4,4)}, v{self.vH}, {sr(c.sO,4)}, s{self.s_ho} offen offset:2048{c.lsc}
            buffer_load_dwordx4 {vr(res+8,4)}, v{self.vH}, {sr(c.sO,4)}, s{self.s_t1} offen{c.lsc}""")
            order.extend('rrr')
        nxt = 0
        for u in range(self.D0):
            order.extend([u] * self.loadB(u)); nxt += 1
        if not c.fused: k.stamp(2)
        if init: k("s_barrier")
        if not c.fused: k.stamp(3)
        for x in self.rdA(0) + self.rdA(1): k(x)
        for u in range(NU):
            rd = []
            if self.bar8:
                if u % 8 == 6 and u < 48: k("s_barrier")
            elif u % 4 == 2 and u // 4 < self.NCH - 1 and not resident: k("s_barrier")
            if u + 2 < NU: rd = self.rdA(u + 2)
            younger = order[::-1].index(u)
            if u == NU - 1: younger = 0
            k(f"s_waitcnt vmcnt({younger}) lgkmcnt({5 if u + 1 < NU else 0})")
            if u in getattr(self, 'fine', {}): k.stamp(self.fine[u]); k("s_waitcnt lgkmcnt(0)") if K.STAMP else None
            b = self.fb + 4 * (u % D)
            for T in range(5):
                k(f"{MF} {vr(self.acc+4*T,4)}, {vr(self.fa[u%3]+4*T,4)}, {vr(b,4)}, {'0' if u == 0 and not self.cinit else vr(self.acc+4*T,4)}")
                if T < len(rd): k(rd[T])
                if T == 2 and nxt < NU and nxt < u + D:
                    order.extend([nxt] * self.loadB(nxt)); nxt += 1
            if nxt < NU and nxt <= u + D:
                order.extend([nxt] * self.loadB(nxt)); nxt += 1
            if not self.k3 and u == NU - 12: resld()
        if self.k3 and not self.cinit:
            for T in range(5): k(f"ds_read_b64 {vr(self.fa[0]+2*T,2)}, v{self.vD} offset:{T*32}")
            k("s_waitcnt lgkmcnt(0)")
    cinit = False
    lateD = False
    HKEEP = 152576
    def load_cinit(self):
        k = self.c.k; c = self.c; src = self.fa[0]
        if self.k3:
            for T in range(5): k(f"ds_read_b64 {vr(src+2*T,2)}, v{self.vD} offset:{T*32}")
        else:
            for p in range(3): k(f"ds_read_b128 {vr(src+4*p,4)}, v{self.vK} offset:{p*1024}")
        k("s_waitcnt lgkmcnt(0)")
        if not self.k3:
            for p in range(3):
                k(f"v_permlane32_swap_b32 v{src+4*p}, v{src+4*p+2}\nv_permlane32_swap_b32 v{src+4*p+1}, v{src+4*p+3}")
        for T in range(5):
            for d in range(2):
                k(f"v_lshlrev_b32 v{self.acc+4*T+2*d}, 16, v{src+2*T+d}\nv_and_b32 v{self.acc+4*T+2*d+1}, 0xffff0000, v{src+2*T+d}")
    def keep_addr(self):
        k = self.c.k; c = self.c
        k(f"""s_mul_i32 s{self.s_t1}, s{c.s_wl}, 2560
        s_add_u32 s{self.s_t1}, s{self.s_t1}, {self.HKEEP}
        v_add_u32 v{self.vK}, s{self.s_t1}, v{c.vl16}""")
    def setup_pair(self):
        k = self.c.k; c = self.c
        k(f"""s_and_b32 s{self.s_t1}, s{c.s_w}, 1
        s_mul_i32 s{self.s_t2}, s{self.s_t1}, 5120
        v_add_u32 v{self.vA[0]}, s{self.s_t2}, v{c.vl16}
        v_add_u32 v{self.vA[1]}, {3*self.SLOT}, v{self.vA[0]}
        v_add_u32 v{self.vA[2]}, {6*self.SLOT}, v{self.vA[0]}
        s_lshl_b32 s{self.s_t1}, s{self.s_t1}, 10
        s_add_u32 s{self.s_t1}, s{self.s_t1}, {OIMG if self.k3 else ACT}
        s_mul_i32 s{self.s_bo}, s{self.s_tb16}, {self.NU*1024}
        s_add_u32 s{self.s_bo}, s{self.s_bo}, s{self.s_t1}
        s_xor_b32 s{self.s_boY}, s{self.s_tb16}, 1
        s_mul_i32 s{self.s_boY}, s{self.s_boY}, {self.NU*1024}
        s_add_u32 s{self.s_boY}, s{self.s_boY}, s{self.s_t1}
        s_mul_i32 s{self.s_t1}, s{c.s_w}, 5120
        v_add_u32 v{self.vE[0]}, s{self.s_t1}, v{c.vl16}
        s_xor_b32 s{self.s_t1}, s{c.s_w}, 1
        s_mul_i32 s{self.s_t1}, s{self.s_t1}, 5120
        v_add_u32 v{self.vE[1]}, s{self.s_t1}, v{c.vl16}""")
    def main_pair(self):
        k = self.c.k; c = self.c; N = self.NU // 2; D = self.D; res = self.res
        order = []
        def loadB(u, y):
            so = self.s_boY if y else self.s_bo
            k(f"buffer_load_dwordx4 {vr(self.fb+8*(u % D)+4*y,4)}, v{c.vl16}, {sr(c.sO,4)}, s{so} offen offset:{(u%2)*2048}{c.lsc}")
            if u % 2 == 1: k(f"s_add_u32 s{so}, s{so}, 4096")
            order.append((u, y))
        def rdA(u):
            slot = (u // 2) % self.NSL
            return [f"ds_read_b128 {vr(self.fa[u%2]+4*T,4)}, v{self.vA[slot//3]} offset:{(slot%3)*self.SLOT+((u%2)*10+T)*1024}" for T in range(5)]
        q = [(u, y) for u in range(N) for y in range(2)]
        for _ in range(2 * self.D0): loadB(*q.pop(0))
        for x in rdA(0): k(x)
        for u in range(N):
            younger = 0 if u == N - 1 else len(order) - 1 - order.index((u, 1))
            k(f"s_waitcnt vmcnt({younger}) lgkmcnt(0)")
            if u in getattr(self, 'fine', {}): k.stamp(self.fine[u])
            bar = u % 4 == 3 and u < 24
            rd = rdA(u + 1) if u + 1 < N else []
            b = self.fb + 8 * (u % D)
            for i in range(10):
                T = i // 2; y = 1 - (i & 1)
                if u == N - 1: T = i % 5; y = 1 - i // 5
                a = (self.acc, self.accY)[y] + 4 * T
                k(f"{MF} {vr(a,4)}, {vr(self.fa[u%2]+4*T,4)}, {vr(b+4*y,4)}, {'0' if u == 0 and (y or not self.cinit) else vr(a,4)}")
                if bar and i == 1: k("s_barrier")
                j = i - (1 if bar else 0)
                if 0 <= j < len(rd): k(rd[j])
                if i in (5, 7) and q and q[0][0] < u + D: loadB(*q.pop(0))
                if i in (6, 8) and q and q[0][0] < u + D and len(order) < 2 * (u + D) - 2: loadB(*q.pop(0))
            if u == N - 8 and not self.cinit:
                k(f"""s_add_u32 s{self.s_t1}, s{self.s_ho}, 4096
                buffer_load_dwordx4 {vr(res,4)}, v{self.vH}, {sr(c.sO,4)}, s{self.s_ho} offen{c.lsc}
                buffer_load_dwordx4 {vr(res+4,4)}, v{self.vH}, {sr(c.sO,4)}, s{self.s_ho} offen offset:2048{c.lsc}
                buffer_load_dwordx4 {vr(res+8,4)}, v{self.vH}, {sr(c.sO,4)}, s{self.s_t1} offen{c.lsc}""")
                order.extend('rrr')
        assert not q
        for T in range(5): k(f"ds_write_b128 v{self.vE[0]}, {vr(self.accY+4*T,4)} offset:{T*1024}")
        k("s_waitcnt lgkmcnt(0)\ns_barrier")
        for T in range(5): k(f"ds_read_b128 {vr(self.fb+4*T,4)}, v{self.vE[1]} offset:{T*1024}")
        for T in range(5):
            k(f"s_waitcnt lgkmcnt({4-T})")
            for p in range(2): k(f"v_pk_add_f32 {vr(self.acc+4*T+2*p,2)}, {vr(self.acc+4*T+2*p,2)}, {vr(self.fb+4*T+2*p,2)}")
    def epilogue(self):
        k = self.c.k; c = self.c; t = self.vt; acc = self.acc; res = self.res; sO = c.sO; vH = self.vH; sc = c.sc
        pk = self.fa[1]
        if self.k3: k(f"s_mov_b32 s{self.s_cnt}, 0x3f803f80\nv_mov_b32 v{t[0]}, 0\nv_mov_b32 v{t[1]}, 0\nv_mov_b32 v{pk+10}, 0\nv_mov_b32 v{pk+11}, 0")
        if self.cinit:
            for i in range(10): k(f"v_cvt_pk_bf16_f32 v{pk+i}, v{acc+2*i}, v{acc+2*i+1}")
        else:
            src = self.fa[0]
            if not self.k3:
                for p in range(3):
                    k(f"v_permlane32_swap_b32 v{res+4*p}, v{res+4*p+2}\nv_permlane32_swap_b32 v{res+4*p+1}, v{res+4*p+3}")
                src = res
            for T in range(5):
                for d in range(2):
                    x = src + 2 * T + d; a = acc + 4 * T + 2 * d
                    k(f"""v_lshlrev_b32 v{t[2+2*d]}, 16, v{x}
                    v_and_b32 v{t[3+2*d]}, 0xffff0000, v{x}
                    v_add_f32 v{a}, v{a}, v{t[2+2*d]}
                    v_add_f32 v{a+1}, v{a+1}, v{t[3+2*d]}
                    v_cvt_pk_bf16_f32 v{pk+2*T+d}, v{a}, v{a+1}""")
        if self.k3:
            for p in range(3):
                k(f"v_permlane32_swap_b32 v{pk+4*p}, v{pk+4*p+2}\nv_permlane32_swap_b32 v{pk+4*p+1}, v{pk+4*p+3}")
            k(f"""s_add_u32 s{self.s_t1}, s{self.s_ho}, 4096
            buffer_store_dwordx4 {vr(pk,4)}, v{vH}, {sr(sO,4)}, s{self.s_ho} offen{sc}
            buffer_store_dwordx4 {vr(pk+4,4)}, v{vH}, {sr(sO,4)}, s{self.s_ho} offen offset:2048{sc}
            s_mov_b32 exec_hi, 0
            buffer_store_dwordx4 {vr(pk+8,4)}, v{vH}, {sr(sO,4)}, s{self.s_t1} offen{sc}
            s_mov_b32 exec_hi, -1""")
            if self.lateD: k("s_barrier")
            if self.cinit:
                k(f"""ds_write_b128 v{self.vK}, {vr(pk,4)}
                ds_write_b128 v{self.vK}, {vr(pk+4,4)} offset:1024
                s_mov_b32 exec_hi, 0
                ds_write_b128 v{self.vK}, {vr(pk+8,4)} offset:2048
                s_mov_b32 exec_hi, -1""")
            for i in range(12):
                k(f"v_dot2c_f32_bf16 v{t[0]}, s{self.s_cnt}, v{pk+i}\nv_dot2c_f32_bf16 v{t[1]}, v{pk+i}, v{pk+i}")
            k(f"""v_mov_b32 v{t[2]}, v{t[0]}
            v_mov_b32 v{t[3]}, v{t[1]}
            v_permlane32_swap_b32 v{t[2]}, v{t[0]}
            v_permlane32_swap_b32 v{t[3]}, v{t[1]}
            v_add_f32 v{t[0]}, v{t[0]}, v{t[2]}
            v_add_f32 v{t[1]}, v{t[1]}, v{t[3]}
            v_mov_b32 v{t[2]}, v{t[0]}
            v_mov_b32 v{t[3]}, v{t[1]}
            v_permlane16_swap_b32 v{t[2]}, v{t[0]}
            v_permlane16_swap_b32 v{t[3]}, v{t[1]}
            v_add_f32 v{acc}, v{t[0]}, v{t[2]}
            v_add_f32 v{acc+1}, v{t[1]}, v{t[3]}
            v_lshlrev_b32 v{t[4]}, 3, v{c.vl}
            s_lshl_b32 s{self.s_t2}, s{self.s_c}, 14
            s_lshl_b32 s{self.s_t0}, s{self.s_tb16}, 7
            s_add_u32 s{self.s_t2}, s{self.s_t2}, s{self.s_t0}
            s_add_u32 s{self.s_t2}, s{self.s_t2}, {STATS}
            s_mov_b64 exec, 0xffff
            buffer_store_dwordx2 {vr(acc,2)}, v{t[4]}, {sr(sO,4)}, s{self.s_t2} offen{sc}
            s_mov_b64 exec, -1""")
        else:
            for T in range(5): k(f"ds_write_b64 v{self.vD}, {vr(pk+2*T,2)} offset:{T*32}")
            k(f"v_add_u32 v{t[0]}, s{self.s_xs}, v{c.vl16}\ns_waitcnt lgkmcnt(0)")
            for i in range(3): k(f"ds_read_b128 {vr(self.fa[0]+4*i,4)}, v{t[0]} offset:{i*1024}")
            for i in range(3):
                k(f"s_waitcnt lgkmcnt({2-i})")
                if i == 2: k("s_mov_b32 exec_hi, 0")
                k(f"buffer_store_dwordx4 {vr(self.fa[0]+4*i,4)}, v{self.vrow[i]}, {sr(self.sX,4)}, 0 offen{self.ofl}")
            k("s_mov_b32 exec_hi, -1")

class P4:
    CK, NSL, NCH, SLOT = 4, 5, 10, 28672
    CSB = 5 * 28672
    def __init__(self, c, D=12, D0=None):
        self.c = c; k = c.k; self.D = D; self.D0 = D0 or D; self.lds = self.CSB + 1024 + 8192
        c.reset()
        (self.s_tb, self.s_g, self.s_t0, self.s_t1, self.s_t2, self.s_bo, self.s_wo, self.s_m0) = [k.s() for _ in range(8)]
        self.vt = [k.v() for _ in range(4)]; self.vA = [k.v() for _ in range(3)]
        self.st = k.v(8, 4); self.par = k.v(6, 2)
        self.acc = [k.v(16, 4) for _ in range(7)]
        self.fa = [k.v(28, 4), k.v(28, 4)]
        self.fb = k.v(4 * D, 4)
        x = k.v(12, 2); self.ca = [x + 2 * i for i in range(6)] + [self.st + 2]
    def ids(self):
        k = self.c.k
        k(f"""s_and_b32 s{self.s_t0}, s2, 1
        s_lshl_b32 s{self.s_t0}, s{self.s_t0}, 3
        s_bfe_u32 s{self.s_t1}, s2, 0x30003
        s_add_u32 s{self.s_tb}, s{self.s_t0}, s{self.s_t1}
        s_lshl_b32 s{self.s_tb}, s{self.s_tb}, 2
        s_add_u32 s{self.s_tb}, s{self.s_tb}, s{self.c.s_wl}
        s_bfe_u32 s{self.s_t0}, s2, 0x20001
        s_lshl_b32 s{self.s_t0}, s{self.s_t0}, 2
        s_lshr_b32 s{self.s_t1}, s2, 6
        s_add_u32 s{self.s_g}, s{self.s_t0}, s{self.s_t1}""")
    def ld_setup(self):
        k = self.c.k
        k(f"""s_mul_i32 s{self.s_wo}, s{self.c.s_wl}, 16
        s_add_u32 s{self.s_wo}, s{self.s_wo}, s{self.s_g}
        s_mul_i32 s{self.s_wo}, s{self.s_wo}, 7168
        s_add_u32 s{self.s_wo}, s{self.s_wo}, {WGUP}
        s_mul_i32 s{self.s_m0}, s{self.c.s_wl}, 7168""")
    thin = None
    def ld_chunk(self, slot, thin=False):
        k = self.c.k; c = self.c
        k(f"s_add_u32 m0, s{self.s_m0}, {slot*self.SLOT}\ns_add_u32 s{self.s_t2}, s{self.s_wo}, 4096")
        for i in range(4):
            k(f"buffer_load_dwordx4 v{c.vl16}, {sr(c.sO,4)}, s{self.s_wo} offen offset:{i*1024}{c.lsc} lds")
        k(f"s_add_u32 m0, m0, 4096\ns_add_u32 s{self.s_wo}, s{self.s_wo}, {4*112*1024}")
        if thin and self.thin is not None: k(f"s_waitcnt vmcnt({self.thin})")
        for i in range(3):
            k(f"buffer_load_dwordx4 v{c.vl16}, {sr(c.sO,4)}, s{self.s_t2} offen offset:{i*1024}{c.lsc} lds")
    def ld_cs(self):
        k = self.c.k; c = self.c
        k(f"""s_mul_i32 s{self.s_t2}, s{self.s_g}, 896
        s_mov_b32 m0, {self.CSB}
        s_add_u32 s{self.s_t2}, s{self.s_t2}, {CSG}
        buffer_load_dwordx4 v{c.vl16}, {sr(c.sO,4)}, s{self.s_t2} offen{c.lsc} lds""")
    def ld_stats(self):
        k = self.c.k; c = self.c
        k(f"""s_lshr_b32 s{self.s_t0}, s{self.s_tb}, 2
        s_lshl_b32 s{self.s_t0}, s{self.s_t0}, 10
        s_lshl_b32 s{self.s_t1}, s{c.s_wl}, 15
        s_add_u32 s{self.s_t0}, s{self.s_t0}, s{self.s_t1}
        s_add_u32 s{self.s_t0}, s{self.s_t0}, {STATS}
        s_lshl_b32 s{self.s_t1}, s{c.s_wl}, 11
        s_add_u32 m0, s{self.s_t1}, {self.CSB + 1024}
        s_add_u32 s{self.s_t1}, s{self.s_t0}, {16384 - 1024}
        buffer_load_dwordx4 v{c.vl16}, {sr(c.sO,4)}, s{self.s_t0} offen{c.lsc} lds
        buffer_load_dwordx4 v{c.vl16}, {sr(c.sO,4)}, s{self.s_t1} offen offset:1024{c.lsc} lds""")
    def ld_main(self, issued, extra, init=True):
        k = self.c.k; NCH = self.NCH
        if init: k(f"s_waitcnt vmcnt({7*(issued-1)+extra})\ns_barrier")
        nw = 0
        for ch in range(NCH - 1 - self.tmaj):
            k(f"s_waitcnt vmcnt({min(63, 7*max(0, issued-ch-2-(self.tmaj and ch == 7)) + 5*nw)})\ns_barrier")
            while issued < NCH and issued <= ch + self.NSL and issued <= ch + 1 + self.ahead:
                self.ld_chunk(issued % self.NSL, True); issued += 1
            if self.warm and ch >= 4:
                assert issued == NCH
                if ch == 4: self.warm()
                for i_, j in enumerate(self.wsched[ch]):
                    if i_ and self.thin is not None: k(f"s_waitcnt vmcnt({self.thin + 1})")
                    self.warm_chunk(j); nw += 1
    warm = None
    mcorr = True
    lstat = True
    bsched = None
    tmaj = False
    pkall = False
    jstart = 2
    nob = False
    wsched = {4: (), 5: (0, 1), 6: (2, 3), 7: (4, 5), 8: (6,)}
    def setup(self):
        k = self.c.k; c = self.c; vt = self.vt
        k(f"""v_mov_b32 v{self.vA[0]}, v{c.vl16}
        v_add_u32 v{self.vA[1]}, {2*self.SLOT}, v{c.vl16}
        v_add_u32 v{self.vA[2]}, {4*self.SLOT}, v{c.vl16}
        s_mul_i32 s{self.s_bo}, s{self.s_tb}, 40960
        s_add_u32 s{self.s_bo}, s{self.s_bo}, {HIMG}
        v_and_b32 v{vt[0]}, 31, v{c.vl}
        v_lshrrev_b32 v{vt[1]}, 5, v{c.vl}
        v_lshlrev_b32 v{vt[2]}, 3, v{vt[0]}
        v_lshl_add_u32 v{vt[2]}, v{vt[1]}, {12 if self.lstat else 16}, v{vt[2]}""")
        if self.lstat: k(f"""s_lshl_b32 s{self.s_t0}, s{c.s_wl}, 8
        s_add_u32 s{self.s_t0}, s{self.s_t0}, {self.CSB + 1024}
        v_add_u32 v{vt[2]}, s{self.s_t0}, v{vt[2]}""")
        else: k(f"s_lshl_b32 s{self.s_t0}, s{self.s_tb}, 8\ns_add_u32 s{self.s_t0}, s{self.s_t0}, {STATS}")
    def loadB(self, u):
        k = self.c.k; c = self.c
        k(f"buffer_load_dwordx4 {vr(self.fb+4*(u % self.D),4)}, v{c.vl16}, {sr(c.sO,4)}, s{self.s_bo} offen offset:{(u%4)*1024}{c.lsc}")
        if u % 4 == 3: k(f"s_add_u32 s{self.s_bo}, s{self.s_bo}, 4096")
    def rdA(self, u):
        slot = (u // 4) % self.NSL
        return [f"ds_read_b128 {vr(self.fa[u&1]+4*T,4)}, v{self.vA[slot//2]} offset:{(slot%2)*self.SLOT+((u%4)*7+T)*1024}" for T in range(7)]
    def main(self, init=True, endbar=False):
        k = self.c.k; c = self.c; D = self.D; st = self.st
        order = []; nxt = 0; pq = self.params(); assert D == 12; crd, ccv = self.corr_prep()
        for u in range(self.D0):
            self.loadB(u); order.append(u); nxt += 1
        if not c.fused: k.stamp(2)
        if init: k("s_barrier")
        if not c.fused: k.stamp(3)
        for x in self.rdA(0): k(x)
        NS_ = 32 if self.tmaj else 40
        seq = [(T, s_) for T in range(7) for s_ in range(32, 40)]
        def rdF(i):
            T, s_ = seq[i]; slot = (s_ // 4) % self.NSL
            return f"ds_read_b128 {vr(self.fa[0]+4*(i%12),4)}, v{self.vA[slot//2]} offset:{(slot%2)*self.SLOT+((s_%4)*7+T)*1024}"
        for u in range(NS_):
            younger = len(order) - 1 - order.index(u)
            if u == 39: younger = 0
            k(f"s_waitcnt vmcnt({younger}) lgkmcnt(0)")
            if u in getattr(self, 'fine', {}): k.stamp(self.fine[u])
            bar = u % 4 == 3 and (u < 39 or endbar)
            rd = self.rdA(u + 1) if u < 39 else []
            if self.tmaj and u == 31: rd = [rdF(i) for i in range(7)]
            b = self.fb + 4 * (u % D)
            r0 = 2 if bar else 0
            for T in range(7):
                k(f"{M16} {vr(self.acc[T],16)}, {vr(self.fa[u&1]+4*T,4)}, {vr(b,4)}, {'0' if u == 0 else vr(self.acc[T],16)}")
                if bar and T == 1: k("s_barrier")
                if T >= r0 - 1 or not bar:
                    j = T - (r0 - 1 if bar else 0)
                    for x in rd[2*j:2*j+2]: k(x)
                if u == 24 and T == 0 and self.mcorr: assert not pq; pq = crd
                if u == 26 and T == 0 and self.mcorr: assert not pq; pq = ccv
                if u >= 17 and T >= 4:
                    for x in pq[:2]: k(x)
                    del pq[:2]
                if self.bsched and u >= 4:
                    if u % 4 in self.bsched and T in ((1, 3, 5) if self.tmaj and u >= 17 else (3, 5)) and nxt < 40 and nxt < u + D:
                        self.loadB(nxt); order.append(nxt); nxt += 1
                elif T == 5 and nxt < 40 and nxt < u + D:
                    self.loadB(nxt); order.append(nxt); nxt += 1
            if nxt < 40 and nxt <= u + D and not (self.bsched and u >= 4):
                if not self.nob: self.loadB(nxt)
                order.append(nxt); nxt += 1
            if u == 16 and self.lstat:
                for i in range(4): k(f"ds_read_b64 {vr(st+2*i,2)}, v{self.vt[2]} offset:{i*1024}")
            if 4 <= u < 12 and u % 2 == 0 and not self.lstat:
                i = (u - 4) // 2
                k(f"buffer_load_dwordx2 {vr(st+2*i,2)}, v{self.vt[2]}, {sr(c.sO,4)}, s{self.s_t0} offen{c.lsc}")
                if i < 3: k(f"s_add_u32 s{self.s_t0}, s{self.s_t0}, 16384")
                order.append('s')
            if u == 38 and self.mcorr: k(self.corr(0))
            if u == 39: assert not pq
        if not self.tmaj: return
        assert not pq and nxt == 40 and self.mcorr
        par = self.par; t = self.vt; tmp = self.fa[0] + 48
        def epi(T, packed):
            A = self.acc[T]; e = []
            def op(pk, pl, n, *regs):
                if packed: e.extend(f"{pk} " + ", ".join(vr(r + 2*p if inc else r, 2) for r, inc in regs) for p in range(4))
                else: e.extend(f"{pl} " + ", ".join(f"v{r + p if inc else r}" for r, inc in regs) for p in range(8))
            op("v_pk_mul_f32", "v_mul_f32", 3, (tmp, 1), (A, 1), (par+2, 0))
            e.extend(f"v_exp_f32 v{tmp+i}, v{tmp+i}" for i in range(8))
            op("v_pk_mul_f32", "v_mul_f32", 3, (A, 1), (A, 1), (A+8, 1))
            op("v_pk_fma_f32", "v_fma_f32", 4, (tmp, 1), (tmp, 1), (par+4, 0), (par+4, 0))
            e.extend(f"v_rcp_f32 v{tmp+i}, v{tmp+i}" for i in range(8))
            op("v_pk_mul_f32", "v_mul_f32", 3, (A, 1), (A, 1), (tmp, 1))
            e.extend(f"v_cvt_pk_bf16_f32 v{A+8+p}, v{A+2*p}, v{A+2*p+1}" for p in range(4))
            if T == 3: e.append(f"s_cmp_eq_u32 s{self.s_g}, 15\ns_cselect_b32 s{self.s_t0}, {WSEND}, s{self.s_t0}")
            e.append(f"buffer_store_dwordx4 {vr(A+8,4)}, v{t[2]}, {sr(c.sO,4)}, s{self.s_t0} offen offset:{T*512}{c.sc}")
            return e
        lg = list(range(7))
        work = []
        k(self.corr(0))
        for i, (T, s_) in enumerate(seq):
            vmw = f"vmcnt({len(order) - 1 - order.index(s_)}) " if T == 0 else ""
            if i % 2 == 0 or T == 0:
                last = min(i + (0 if T == 0 else 1), 55)
                n = len(lg) - 1 - lg.index(last) if last in lg else None
                if n is not None:
                    k(f"s_waitcnt {vmw}lgkmcnt({min(n, 15)})"); del lg[:len(lg) - min(n, 15)]
                elif vmw: k(f"s_waitcnt {vmw}")
                if i == 50 and endbar: k("s_waitcnt lgkmcnt(0)\ns_barrier"); lg.clear()
            k(f"{M16} {vr(self.acc[T],16)}, {vr(self.fa[0]+4*(i%12),4)}, {vr(self.fb+4*(s_%D),4)}, {vr(self.acc[T],16)}")
            if i + 7 < 56: k(rdF(i + 7)); lg.append(i + 7)
            j = i % 8
            if j == 7:
                for x in work: k(x)
                if getattr(self, 'fine2', False): k.stamp(2 + T)
                if T < 6: k(self.corr(T + 1))
                work = epi(T, T == 6 or self.pkall)
            elif work and j >= self.jstart:
                n = -(-len(work) // (8 - j))
                for x in work[:n]: k(x)
                del work[:n]
        for x in work: k(x)
        if getattr(self, 'fine2', False): k.stamp(9)
    def params(self):
        c = self.c; t = self.vt; st = self.st; par = self.par; vl = c.vl
        return [x.strip() for x in f"""v_lshrrev_b32 v{t[0]}, 5, v{vl}
        {f"v_and_b32 v{t[1]}, 31, v{vl}" if self.mcorr else f"v_lshlrev_b32 v{t[1]}, 2, v{t[0]}"}
        v_lshlrev_b32 v{t[1]}, 2, v{t[1]}
        v_add_u32 v{t[1]}, {self.CSB}, v{t[1]}
        v_add_f32 v{st}, v{st}, v{st+2}
        v_add_f32 v{st+1}, v{st+1}, v{st+3}
        v_add_f32 v{st+4}, v{st+4}, v{st+6}
        v_add_f32 v{st+5}, v{st+5}, v{st+7}
        v_add_f32 v{st}, v{st}, v{st+4}
        v_add_f32 v{st+1}, v{st+1}, v{st+5}
        v_mov_b32 v{st+2}, v{st}
        v_mov_b32 v{st+3}, v{st+1}
        v_bfe_u32 v{t[2]}, v{vl}, 4, 1
        v_mul_u32_u24 v{t[2]}, 55296, v{t[2]}
        v_permlane32_swap_b32 v{st+2}, v{st}
        v_permlane32_swap_b32 v{st+3}, v{st+1}
        v_add_f32 v{st}, v{st}, v{st+2}
        v_add_f32 v{st+1}, v{st+1}, v{st+3}
        v_mul_f32 v{par}, {f2u(-1.0/640):#x}, v{st}
        v_mul_f32 v{st+1}, {f2u(1.0/640):#x}, v{st+1}
        v_fma_f32 v{st+1}, -v{par}, v{par}, v{st+1}
        v_max_f32 v{st+1}, 0, v{st+1}
        v_add_f32 v{par+4}, {f2u(1e-5):#x}, v{st+1}
        v_rsq_f32 v{par+2}, v{par+4}
        v_cmp_gt_u32 vcc, 32, v{vl}
        v_mov_b32 v{par+5}, v{par+4}
        v_mul_f32 v{par+2}, {f2u(-math.log2(math.e)):#x}, v{par+2}
        v_lshl_add_u32 v{t[2]}, v{t[0]}, 8, v{t[2]}
        v_mov_b32 v{par+3}, v{par+2}
        v_and_b32 v{t[3]}, 15, v{vl}
        v_lshl_add_u32 v{t[2]}, v{t[3]}, 4, v{t[2]}
        s_mul_i32 s{self.s_t0}, s{self.s_tb}, {2*55296}
        s_mul_i32 s{self.s_t1}, s{self.s_g}, 3584
        s_add_u32 s{self.s_t0}, s{self.s_t0}, s{self.s_t1}
        s_add_u32 s{self.s_t0}, s{self.s_t0}, {ACT}
        v_cndmask_b32 v{par}, 0, v{par}, vcc
        v_cvt_pk_bf16_f32 v{st+4}, v{par}, v{par}
        v_and_b32 v{par+1}, 0xffff0000, v{st+4}
        v_sub_f32 v{par+1}, v{par}, v{par+1}
        v_cvt_pk_bf16_f32 v{st+5}, v{par+1}, 0""".split("\n")][:None if self.mcorr else -5] + ([] if self.mcorr else [f"v_mov_b32 v{par+1}, v{par}"])
    def corr_prep(self):
        rd = [f"ds_read_b32 v{self.ca[T]}, v{self.vt[1]} offset:{T*128}" for T in range(7)]
        cv = []
        for T in range(7):
            a = self.ca[T]; h = self.st + 6 + (T & 1)
            cv += [f"v_cvt_pk_bf16_f32 v{a+1}, v{a}, 0", f"v_lshlrev_b32 v{h}, 16, v{a+1}", f"v_sub_f32 v{a}, v{a}, v{h}", f"v_cvt_pk_bf16_f32 v{a}, v{h}, v{a}"]
        return rd, cv
    def corr(self, T): return f"{M8} {vr(self.acc[T],16)}, {vr(self.ca[T],2)}, {vr(self.st+4,2)}, {vr(self.acc[T],16)}"
    def epilogue(self, L_fin):
        k = self.c.k; c = self.c; t = self.vt; st = self.st; par = self.par; vl = c.vl
        tmp = self.fa[0] if self.mcorr else self.fb
        cs = [self.fa[0], self.fa[0] + 16, self.fa[0] + 32]
        def rdcs(T):
            for j in range(4): k(f"ds_read_b128 {vr(cs[T%3]+4*j,4)}, v{t[1]} offset:{T*128+32*j}")
        if not self.mcorr: rdcs(0); rdcs(1)
        for T in range(7):
            A = self.acc[T]; cc = cs[T % 3]
            if self.mcorr:
                if T + 1 < 7: k(self.corr(T + 1))
            else:
                if T + 2 < 7: rdcs(T + 2)
                k(f"s_waitcnt lgkmcnt({4*min(2, 6-T)})")
                for p in range(8): k(f"v_pk_fma_f32 {vr(A+2*p,2)}, {vr(cc+2*p,2)}, {vr(par,2)}, {vr(A+2*p,2)}")
            for p in range(4): k(f"v_pk_mul_f32 {vr(tmp+2*p,2)}, {vr(A+2*p,2)}, {vr(par+2,2)}")
            for i in range(8): k(f"v_exp_f32 v{tmp+i}, v{tmp+i}")
            for p in range(4): k(f"v_pk_mul_f32 {vr(A+2*p,2)}, {vr(A+2*p,2)}, {vr(A+8+2*p,2)}")
            for p in range(4): k(f"v_pk_fma_f32 {vr(tmp+2*p,2)}, {vr(tmp+2*p,2)}, {vr(par+4,2)}, {vr(par+4,2)}")
            for i in range(8): k(f"v_rcp_f32 v{tmp+i}, v{tmp+i}")
            for p in range(4): k(f"v_pk_mul_f32 {vr(A+2*p,2)}, {vr(A+2*p,2)}, {vr(tmp+2*p,2)}")
            for p in range(4): k(f"v_cvt_pk_bf16_f32 v{A+8+p}, v{A+2*p}, v{A+2*p+1}")
            k(f"buffer_store_dwordx4 {vr(A+8,4)}, v{t[2]}, {sr(c.sO,4)}, s{self.s_t0} offen offset:{T*512}{c.sc}")
            if T == 2: k(f"s_cmp_eq_u32 s{self.s_g}, 15\ns_cbranch_scc1 {L_fin}")
        k(f"{L_fin}:")

def gen(which, opt):
    if which in '35':
        o = opt('K' + which)
        c = Ctx("k3_oproj_kernel" if which == '3' else "k5_down_kernel", False); k = c.k
        P = P35(c, int(which), D=o.get('D', 12 if which == '5' else 20)); P.ahead = o.get('ahead', 2)
        c.entry(int(which) - 1, P.ptr_load())
        P.ids(); c.ws_srd()
        L = k.label("ld"); lw(c, L)
        P.setup(); P.main(); k.stamp(4); k.stamp(5); P.epilogue(); c.finish()
        k(f"{L}:"); P.ld_setup()
        for ch in range(2): P.ld_chunk(ch)
        P.ld_main(2); k("s_endpgm")
        return k, (256, 512, P.lds)
    if which == '4':
        o = opt('K4')
        c = Ctx("k4_gateup_kernel", False); k = c.k
        P = P4(c, D=o.get('D', 12)); P.ahead = o.get('ahead', 2)
        c.entry(3); P.ids(); c.ws_srd()
        L = k.label("ld"); lw(c, L)
        P.setup(); P.main(); k.stamp(4); k.stamp(5); P.epilogue(k.label("fin")); c.finish()
        k(f"{L}:"); P.ld_setup()
        for ch in range(2): P.ld_chunk(ch)
        P.ld_cs(); P.ld_stats()
        P.ld_main(2, 3); k("s_endpgm")
        return k, (256, 512, P.lds)
    import mega
    return mega.gen(opt)
```

```python
from ph2 import *
NAME = "sequential_preLN__softmax_full_mha__swiglu_ffn__prompt_kernel"

def gen(opt):
    o = opt('M')
    c = Ctx(NAME, True); k = c.k
    sO = c.sO; sWS = c.sWS; s_w = c.s_w; s_wl = c.s_wl; vl = c.vl; vl16 = c.vl16; sc = c.sc
    rot = o.get('rot', True); c.pdepth = o.get('pd', 1)
    sD = k.s(4)
    s_po = k.s(); s_cs = k.s(); vPA = k.v(); vPS = k.v(); sA = k.s(4); sB = k.s(4); sR = [k.s() for _ in range(5)]
    c.s0 = k.snext; c.v0 = k.vnext
    SLOT = 32768; NS = 4
    SL = 12288; VB = 3 * SL; PREP = 6 * SL; EXB = PREP
    sP = k.s(4); sX = sA; sW = sB; sQ = k.s(8); sWD = k.s(2); sPC = k.s(2)
    s_tb = k.s(); s_cg = k.s(); s_t0 = k.s(); s_t2 = k.s()
    s_ow, s_m0x, s_slot, s_delta, s_t1 = sR
    s_ox = k.s(); s_cnt = k.s(); s_rs = k.s(); s_msk = k.s()
    vt = [k.v() for _ in range(6)]
    vXA = [k.v() for _ in range(4)]; vWA = [k.v(), k.v()]
    vX = [k.v() for _ in range(4)]; vW = [k.v() for _ in range(4)]
    acc = [[k.v(16, 4) for _ in range(2)] for _ in range(2)]
    fx = [[k.v(4, 4) for _ in range(2)] for _ in range(2)]
    fw = [[k.v(4, 4) for _ in range(2)] for _ in range(2)]
    acs = k.v(16, 4); ones = k.v(4, 4); vpf = k.v(16, 4)
    XCH = NS * SLOT; NM, RS, CS = 0, 512, 1024
    L_spare = k.label("spare"); L_v = k.label("vpath"); L_J0 = k.label("J0"); L_comp = k.label("comp")
    k.kidx = 1; k.stamp_real(0); k.stamp(1)
    k(f"""s_load_dwordx4 {sr(sP,4)}, s[0:1], {KA_X}
    s_load_dwordx4 {sr(sD,4)}, s[0:1], {KA_DBG}
    s_cmp_ge_u32 s2, 256
    s_cbranch_scc1 {c.L_end}
    v_lshrrev_b32 v{vt[0]}, 6, v0
    v_and_b32 v{vl}, 63, v0
    v_readfirstlane_b32 s{s_w}, v{vt[0]}
    s_and_b32 s{s_t0}, s2, 3
    s_lshl_b32 s{s_t0}, s{s_t0}, 2
    s_bfe_u32 s{s_t1}, s2, 0x20003
    s_add_u32 s{s_tb}, s{s_t0}, s{s_t1}
    s_bfe_u32 s{s_t0}, s2, 0x10002
    s_lshr_b32 s{s_t1}, s2, 5""")
    if o.get('sfirst', True): k(f"s_sub_u32 s{s_t1}, s{s_t1}, s{s_t0}\ns_and_b32 s{s_t1}, s{s_t1}, 7")
    k(f"""s_lshl_b32 s{s_t0}, s{s_t0}, 3
    s_add_u32 s{s_cg}, s{s_t0}, s{s_t1}
    s_and_b32 s{s_wl}, s{s_w}, 3
    s_cmp_eq_u32 s{s_cg}, 15
    s_cbranch_scc1 {L_spare}
    s_cmp_ge_u32 s{s_w}, 4
    s_cbranch_scc1 {L_comp}
    v_lshrrev_b32 v{vt[0]}, 3, v{vl}
    v_lshl_add_u32 v{vt[0]}, s{s_w}, 5, v{vt[0]}
    v_mul_u32_u24 v{vt[0]}, 1280, v{vt[0]}
    v_lshrrev_b32 v{vt[1]}, 4, v{vl}
    v_and_b32 v{vt[2]}, 7, v{vl}
    v_xor_b32 v{vt[2]}, v{vt[2]}, v{vt[1]}
    v_lshl_add_u32 v{vX[0]}, v{vt[2]}, 4, v{vt[0]}
    v_xor_b32 v{vX[1]}, 64, v{vX[0]}
    v_add_u32 v{vX[2]}, {2*(8*1280-1024)}, v{vX[0]}
    v_add_u32 v{vX[1]}, {8*1280-1024}, v{vX[1]}
    v_add_u32 v{vX[3]}, {2*(8*1280-1024)}, v{vX[1]}
    v_lshl_add_u32 v{vt[0]}, s{s_w}, 4, v{vt[1]}
    v_mul_u32_u24 v{vt[0]}, 3840, v{vt[0]}
    v_and_b32 v{vt[2]}, 15, v{vl}
    v_lshlrev_b32 v{vt[3]}, 2, v{vt[1]}
    v_xor_b32 v{vt[2]}, v{vt[2]}, v{vt[3]}
    v_lshl_add_u32 v{vW[0]}, v{vt[2]}, 4, v{vt[0]}
    v_add_u32 v{vW[1]}, {4*3840-1024}, v{vW[0]}
    v_add_u32 v{vW[2]}, {2*(4*3840-1024)}, v{vW[0]}
    v_add_u32 v{vW[3]}, {3*(4*3840-1024)}, v{vW[0]}
    s_mul_i32 s{s_t0}, s{s_tb}, {128*1280}
    s_lshl_b32 s{s_t1}, s{s_cg}, 8
    s_lshl_b32 s{s_m0x}, s{s_w}, 12
    s_mov_b32 s{sX+2}, {128*1280}
    s_mov_b32 s{sX+3}, 0x20000
    s_sub_u32 s{sW+2}, {640*3840}, s{s_t1}
    s_mov_b32 s{sW+3}, 0x20000""")
    r0 = o.get('rot0', 1)
    if rot and not r0: k(f"s_and_b32 s{s_t2}, s2, 7\ns_lshl_b32 s{s_ox}, s{s_t2}, 7\ns_mul_i32 s{s_ow}, s{s_t2}, {64*3840}")
    else: k(f"s_mov_b32 s{s_ox}, 0\ns_mov_b32 s{s_ow}, 0")
    k(f"""s_waitcnt lgkmcnt(0)
    s_add_u32 s{sX}, s{sP}, s{s_t0}
    s_addc_u32 s{sX+1}, s{sP+1}, 0
    s_add_u32 s{sW}, s{sP+2}, s{s_t1}
    s_addc_u32 s{sW+1}, s{sP+3}, 0""")
    def dma_chunk(slot_const=None):
        if slot_const is not None: k(f"s_add_u32 m0, s{s_m0x}, {slot_const*SLOT}")
        else: k(f"s_add_u32 m0, s{s_m0x}, s{s_rs}")
        k(f"s_add_u32 s{s_t0}, s{s_ox}, 128")
        for i in range(4):
            k(f"buffer_load_dwordx4 v{vX[i]}, {sr(sX,4)}, s{s_ox} offen offset:{i*1024} lds")
        k(f"s_add_u32 m0, m0, 16384\ns_add_u32 s{s_t1}, s{s_ow}, {64*3840}")
        for i in range(4):
            k(f"buffer_load_dwordx4 v{vW[i]}, {sr(sW,4)}, s{s_ow} offen offset:{i*1024} lds")
        if r0 and slot_const == r0 - 1:
            k(f"s_and_b32 s{s_t2}, s2, 7\ns_add_u32 s{s_t2}, s{s_t2}, {r0}\ns_lshl_b32 s{s_ox}, s{s_t2}, 7\ns_mul_i32 s{s_ow}, s{s_t2}, {64*3840}")
        else:
            k(f"s_cmp_eq_u32 s{s_t0}, 1280\ns_cselect_b32 s{s_ox}, {128*r0}, s{s_t0}\ns_cselect_b32 s{s_ow}, {64*3840*r0}, s{s_t1}")
    def common_setup(ptrs=True):
        k(f"""s_mov_b64 {sr(sWS,2)}, {sr(sD+2,2)}
        s_movk_i32 s{sD+2}, 256
        s_mov_b32 s{sD+3}, 0x20000
        v_lshlrev_b32 v{vl16}, 4, v{vl}""")
        srd(k, sO, sWS, sWS + 1, WSEND)
        if ptrs: k(f"s_load_dwordx8 {sr(sQ,8)}, s[0:1], {KA_WO}\ns_load_dwordx2 {sr(sWD,2)}, s[0:1], {KA_WD}")
    def xaddr():
        k(f"""v_and_b32 v{vt[0]}, 31, v{vl}
        v_lshrrev_b32 v{vt[1]}, 5, v{vl}
        v_bfe_u32 v{vt[2]}, v{vl}, 1, 3
        v_xor_b32 v{vt[2]}, v{vt[2]}, v{vt[1]}
        v_lshlrev_b32 v{vt[2]}, 4, v{vt[2]}
        v_lshl_add_u32 v{vt[2]}, v{vt[0]}, 7, v{vt[2]}""")
    def advance(regs):
        k(f"s_cmp_eq_u32 s{s_slot}, {(NS-1)*SLOT}\ns_mov_b32 s{s_delta}, {SLOT}")
        k(f"s_cselect_b32 s{s_delta}, {(-(NS-1)*SLOT) & 0xffffffff}, s{s_delta}")
        k(f"s_add_u32 s{s_slot}, s{s_slot}, s{s_delta}")
        return [f"v_add_u32 v{r}, s{s_delta}, v{r}" for r in regs]
    def prep_decode(loads):
        pid, cb, st = s_t0, s_t2, s_ox
        R0, A_, B_, C_, u = sR
        Ld = k.label("pd"); Lg = k.label("pg")
        k(f"""s_lshl_b32 s{pid}, s2, 2
        s_add_u32 s{pid}, s{pid}, s{s_wl}
        s_mov_b32 s{B_}, 8
        s_mov_b32 s{C_}, 4
        v_bfe_u32 v{vt[2]}, v{vl}, 4, 1
        v_lshrrev_b32 v{vt[1]}, 5, v{vl}
        s_waitcnt lgkmcnt(0)
        s_cmp_ge_u32 s{pid}, 560
        s_cbranch_scc1 {Ld}
        s_mul_i32 s{u}, s{pid}, 4682
        s_lshr_b32 s{u}, s{u}, 16
        s_mul_i32 s{cb}, s{u}, 14
        s_sub_u32 s{cb}, s{pid}, s{cb}
        s_mul_i32 s{s_po}, s{u}, {112*1024}
        s_add_u32 s{s_po}, s{s_po}, {WGUP}
        s_mov_b32 s{s_cs}, {CSG}
        v_lshlrev_b32 v{vt[2]}, 11, v{vt[2]}
        v_lshl_add_u32 v{vt[3]}, v{vt[1]}, 9, v{vt[2]}""")
        if loads:
            k(f"""s_lshl_b32 s{R0}, s{u}, 4
            s_mov_b32 s{A_}, 0
            s_movk_i32 s{st}, 3456
            s_mov_b64 {sr(sA,2)}, {sr(sQ+4,2)}
            s_mov_b64 {sr(sB,2)}, {sr(sQ+6,2)}
            s_mov_b32 s{sA+2}, {640*3456}""")
        k(f"""s_branch {Lg}
        {Ld}:
        s_min_u32 s{pid}, s{pid}, 929
        s_cmp_lt_u32 s{pid}, 830
        s_movk_i32 s{cb}, 830
        s_cselect_b32 s{cb}, 560, s{cb}
        s_mov_b32 s{s_po}, {WOP}
        s_cselect_b32 s{s_po}, {WDP}, s{s_po}""")
        if loads:
            k(f"""s_cselect_b64 {sr(sA,2)}, {sr(sWD,2)}, {sr(sQ,2)}
            s_cselect_b32 s{A_}, 16, 20
            s_cselect_b32 s{R0}, 32, 40
            s_mov_b32 s{sA+2}, {640*1280}
            s_cselect_b32 s{sA+2}, {1728*1280}, s{sA+2}""")
        k(f"""s_sub_u32 s{cb}, s{pid}, s{cb}
        s_mul_i32 s{u}, s{cb}, 13108
        s_lshr_b32 s{u}, s{u}, 16
        s_mul_i32 s{st}, s{u}, 5
        s_sub_u32 s{cb}, s{cb}, s{st}
        s_mul_i32 s{st}, s{u}, {40*1024}
        s_add_u32 s{s_po}, s{s_po}, s{st}
        s_mov_b32 s{s_cs}, {WSEND}
        v_lshlrev_b32 v{vt[2]}, 9, v{vt[2]}
        v_lshl_add_u32 v{vt[3]}, v{vt[1]}, 11, v{vt[2]}""")
        if loads:
            k(f"""s_mul_i32 s{R0}, s{R0}, s{u}
            s_mul_i32 s{st}, s{u}, 160
            s_sub_u32 s{st}, s{st}, {16*160-16}
            s_cmp_ge_u32 s{pid}, 910
            s_cselect_b32 s{R0}, s{st}, s{R0}
            s_cselect_b32 s{A_}, 80, s{A_}
            s_cselect_b32 s{B_}, 20, 8
            s_cselect_b32 s{C_}, 40, 4
            s_movk_i32 s{st}, 1280
            s_mov_b64 {sr(sB,2)}, {sr(sA,2)}""")
        k(f"""{Lg}:
        s_lshl_b32 s{cb}, s{cb}, 1
        s_lshr_b32 s{pid}, s{s_w}, 2
        s_add_u32 s{pid}, s{pid}, s{cb}
        s_lshl_b32 s{u}, s{pid}, 12
        s_add_u32 s{s_po}, s{s_po}, s{u}
        s_lshl_b32 s{u}, s{pid}, 9
        s_add_u32 s{s_cs}, s{s_cs}, s{u}
        v_bfe_u32 v{vt[2]}, v{vl}, 2, 2
        v_lshl_add_u32 v{vt[3]}, v{vt[2]}, 7, v{vt[3]}
        v_and_b32 v{vt[2]}, 3, v{vl}
        v_lshl_add_u32 v{vt[3]}, v{vt[2]}, 3, v{vt[3]}
        s_lshl_b32 s{u}, s{s_w}, 12
        s_add_u32 s{u}, s{u}, {PREP}
        v_add_u32 v{vPA}, s{u}, v{vt[3]}""")
        if loads:
            k(f"""s_mov_b32 s{sB+2}, s{sA+2}
            s_mov_b32 s{sA+3}, 0x20000
            s_mov_b32 s{sB+3}, 0x20000
            v_mul_u32_u24 v{vt[2]}, s{C_}, v{vt[1]}
            v_bfe_u32 v{vt[3]}, v{vl}, 3, 2
            v_add_u32 v{vt[2]}, v{vt[2]}, v{vt[3]}
            v_mul_u32_u24 v{vt[2]}, s{st}, v{vt[2]}
            v_and_b32 v{vt[3]}, 7, v{vl}
            v_lshl_add_u32 v{vPS}, v{vt[3]}, 4, v{vt[2]}
            s_mul_i32 s{R0}, s{R0}, s{st}
            s_lshl_b32 s{cb}, s{pid}, 7
            s_add_u32 s{R0}, s{R0}, s{cb}
            s_mul_i32 s{A_}, s{A_}, s{st}
            s_mul_i32 s{B_}, s{B_}, s{st}
            s_add_u32 s{A_}, s{A_}, s{R0}
            s_add_u32 s{C_}, s{A_}, s{B_}
            s_add_u32 s{B_}, s{B_}, s{R0}""")
    TD = o.get('TD', 0)
    sTX, sTW = sQ, sQ + 4; s_tx, s_tw = sWD, sWD + 1; vTX, vTW = vXA[0], vXA[1]
    def touch():
        k(f"""s_mov_b64 exec, 0xf
        buffer_load_dword v{vXA[2]}, v{vTX}, {sr(sTX,4)}, s{s_tx} offen
        s_mov_b64 exec, 0xff
        buffer_load_dword v{vXA[3]}, v{vTW}, {sr(sTW,4)}, s{s_tw} offen
        s_mov_b64 exec, -1
        s_add_u32 s{s_tx}, s{s_tx}, 128
        s_add_u32 s{s_tw}, s{s_tw}, {64*3840}
        s_cmp_eq_u32 s{s_tx}, 1280
        s_cselect_b32 s{s_tx}, 0, s{s_tx}
        s_cselect_b32 s{s_tw}, 0, s{s_tw}""")
    dma_chunk(0); dma_chunk(1)
    if TD:
        k(f"""s_mov_b64 {sr(sTX,2)}, {sr(sP,2)}
        s_mov_b32 s{sTX+2}, {2048*1280}
        s_mov_b32 s{sTX+3}, 0x20000
        s_mov_b64 {sr(sTW,2)}, {sr(sP+2,2)}
        s_mov_b32 s{sTW+2}, {640*3840}
        s_mov_b32 s{sTW+3}, 0x20000
        s_lshr_b32 s{s_t0}, s2, 3
        s_lshl_b32 s{s_t0}, s{s_t0}, 2
        s_add_u32 s{s_t0}, s{s_t0}, s{s_w}
        s_lshl_b32 s{s_t1}, s{s_t0}, 2
        s_and_b32 s{s_t2}, s2, 3
        s_lshl_b32 s{s_t2}, s{s_t2}, 9
        s_add_u32 s{s_t1}, s{s_t1}, s{s_t2}
        v_add_u32 v{vTX}, s{s_t1}, v{vl}
        v_mul_u32_u24 v{vTX}, 1280, v{vTX}
        s_lshr_b32 s{s_t1}, s{s_t0}, 1
        s_mul_i32 s{s_t1}, s{s_t1}, 3840
        s_and_b32 s{s_t0}, s{s_t0}, 1
        s_lshl_b32 s{s_t0}, s{s_t0}, 10
        s_add_u32 s{s_t1}, s{s_t1}, s{s_t0}
        s_bfe_u32 s{s_t0}, s2, 0x10002
        s_lshl_b32 s{s_t0}, s{s_t0}, 11
        s_add_u32 s{s_t1}, s{s_t1}, s{s_t0}
        v_lshl_add_u32 v{vTW}, v{vl}, 7, s{s_t1}
        s_mov_b32 s{s_tx}, s{s_ox}
        s_mov_b32 s{s_tw}, s{s_ow}""")
        for _ in range(TD + 1): touch()
    common_setup(ptrs=not TD)
    k(f"""s_mov_b32 s{s_rs}, {3*SLOT}
    s_waitcnt vmcnt({8 + (2*TD+2 if TD else 0)})
    s_barrier""")
    k.stamp(2)
    dma_chunk(2)
    L = k.label("hloop"); Lz = k.label("hz"); Lzx = k.label("hzx"); Lnz = k.label("hnz")
    nt = 7 - TD if TD else 0
    def hit(n, tch, vm):
        if n <= 0: return
        L = k.label("hloop")
        k(f"s_mov_b32 s{s_cnt}, {n}\n{L}:\ns_waitcnt vmcnt({vm})\ns_barrier")
        dma_chunk()
        if tch: touch()
        k(f"""s_add_u32 s{s_rs}, s{s_rs}, {SLOT}
        s_and_b32 s{s_rs}, s{s_rs}, {NS*SLOT-1}
        s_sub_u32 s{s_cnt}, s{s_cnt}, 1
        s_cmp_lg_u32 s{s_cnt}, 0
        s_cbranch_scc1 {L}""")
    hit(nt, True, 8 if not TD else 10); hit(7 - nt, False, 8)
    if TD: k(f"s_load_dwordx8 {sr(sQ,8)}, s[0:1], {KA_WO}\ns_load_dwordx2 {sr(sWD,2)}, s[0:1], {KA_WD}")
    Lw0 = k.label("hw0")
    k(f"""s_cmp_eq_u32 s{s_w}, 0
    s_cbranch_scc1 {Lw0}
    s_waitcnt vmcnt(8)
    s_barrier
    s_waitcnt vmcnt(0)
    s_barrier
    s_branch {Lnz}
    {Lw0}:
    v_and_b32 v{vt[3]}, 15, v{vl}
    v_lshlrev_b32 v{vt[3]}, 4, v{vt[3]}
    buffer_load_dword v{vt[4]}, v{vt[3]}, {sr(sD,4)}, 0 offen sc1
    s_waitcnt vmcnt(9)
    s_barrier
    s_waitcnt vmcnt(1)
    s_barrier
    s_mov_b32 s{s_t1}, 0
    {Lz}:
    s_waitcnt vmcnt(0)
    v_cmp_ne_u32 vcc, 0, v{vt[4]}
    s_add_u32 s{s_t1}, s{s_t1}, 1
    s_cmp_eq_u64 vcc, -1
    s_cbranch_scc1 {Lzx}
    s_cmp_gt_u32 s{s_t1}, 0x40000
    s_cbranch_scc1 {Lzx}
    buffer_load_dword v{vt[4]}, v{vt[3]}, {sr(sD,4)}, 0 offen sc1
    s_branch {Lz}
    {Lzx}:
    s_mov_b32 m0, {XCH}
    s_lshl_b32 s{s_t0}, s{s_tb}, 10
    s_add_u32 s{s_t0}, s{s_t0}, {LN1}
    buffer_load_dwordx4 v{vl16}, {sr(sO,4)}, s{s_t0} offen sc1 lds
    {Lnz}:
    s_waitcnt vmcnt(0)""")
    k.stamp(3)
    k(f"s_barrier\ns_branch {L_J0}")
    k(f"""{L_comp}:
    s_getpc_b64 {sr(sPC,2)}
    L_pf_here:
    s_lshr_b32 s{s_t0}, s2, 3
    s_add_u32 s{s_t0}, s{s_t0}, {28 if o.get('sfirst', True) else 0}
    s_and_b32 s{s_t0}, s{s_t0}, 31
    s_lshl_b32 s{s_t0}, s{s_t0}, 2
    s_add_u32 s{s_t0}, s{s_t0}, s{s_wl}
    s_lshl_b32 s{s_t0}, s{s_t0}, 10
    s_sub_u32 s{sPC}, s{sPC}, L_pf_here - {NAME}
    s_subb_u32 s{sPC+1}, s{sPC+1}, 0
    s_cmp_gt_u32 s{s_t0}, L_code_end - {NAME} - 1024
    s_cbranch_scc1 L_pf_skip
    v_lshl_add_u32 v{vt[0]}, v{vl}, 4, s{s_t0}
    global_load_dwordx4 {vr(vpf,4)}, v{vt[0]}, {sr(sPC,2)}
    L_pf_skip:
    s_waitcnt lgkmcnt(0)""")
    if o.get('touch'):
        k(f"""s_mov_b64 {sr(sX,2)}, {sr(sP,2)}
        s_mov_b32 s{sX+2}, {2048*1280}
        s_mov_b32 s{sX+3}, 0x20000
        s_mov_b64 {sr(sW,2)}, {sr(sP+2,2)}
        s_mov_b32 s{sW+2}, {640*3840}
        s_mov_b32 s{sW+3}, 0x20000
        s_lshr_b32 s{s_t0}, s2, 3
        s_lshl_b32 s{s_t0}, s{s_t0}, 2
        s_add_u32 s{s_t0}, s{s_t0}, s{s_wl}
        s_mul_i32 s{s_t1}, s{s_t0}, 5
        v_lshrrev_b32 v{vt[0]}, 4, v{vl}
        v_add_u32 v{vt[0]}, s{s_t1}, v{vt[0]}
        v_mul_u32_u24 v{vt[0]}, 3840, v{vt[0]}
        v_and_b32 v{vt[1]}, 15, v{vl}
        v_lshl_add_u32 v{vt[0]}, v{vt[1]}, 7, v{vt[0]}
        s_bfe_u32 s{s_t1}, s2, 0x10002
        s_lshl_b32 s{s_t1}, s{s_t1}, 11
        s_add_u32 s{s_t2}, s{s_t1}, {4*3840}
        v_lshlrev_b32 v{vt[1]}, 7, v{vl}
        s_mul_i32 s{s_t0}, s{s_t0}, {40*128}
        s_and_b32 s{s_ox}, s2, 3
        s_mul_i32 s{s_ox}, s{s_ox}, {512*1280}
        s_add_u32 s{s_t0}, s{s_t0}, s{s_ox}
        buffer_load_dword v{vpf+4}, v{vt[0]}, {sr(sW,4)}, s{s_t1} offen
        s_mov_b32 exec_hi, 0xff
        buffer_load_dword v{vpf+5}, v{vt[1]}, {sr(sX,4)}, s{s_t0} offen
        s_mov_b64 exec, 0xffff
        buffer_load_dword v{vpf+6}, v{vt[0]}, {sr(sW,4)}, s{s_t2} offen
        s_mov_b64 exec, -1""")
    common_setup()
    if o.get('ptouch'):
        k(f"""v_lshlrev_b32 v{vt[0]}, {o['ptouch']}, v{vl}
        s_lshl_b32 s{s_t0}, s{s_wl}, {o['ptouch'] + 6}
        buffer_load_dword v{vpf+4}, v{vt[0]}, {sr(sO,4)}, s{s_t0} offen sc1""")
    xaddr()
    k(f"""s_lshr_b32 s{s_t0}, s{s_wl}, 1
    s_and_b32 s{s_t1}, s{s_wl}, 1
    s_lshl_b32 s{s_t2}, s{s_t0}, 13
    v_add_u32 v{vXA[0]}, s{s_t2}, v{vt[2]}""")
    for s in range(1, 4): k(f"v_xor_b32 v{vXA[s]}, {32*s}, v{vXA[0]}")
    k(f"""v_bfe_u32 v{vt[2]}, v{vl}, 2, 2
    v_lshl_add_u32 v{vt[3]}, v{vt[1]}, 3, v{vt[2]}
    v_lshlrev_b32 v{vt[3]}, 8, v{vt[3]}
    s_lshl_b32 s{s_t2}, s{s_t1}, 1
    s_add_u32 s{s_t2}, s{s_t2}, s{s_t0}
    v_xor_b32 v{vt[2]}, s{s_t2}, v{vt[2]}
    v_lshl_add_u32 v{vt[3]}, v{vt[2]}, 6, v{vt[3]}
    v_bfe_u32 v{vt[2]}, v{vl}, 4, 1
    v_lshl_add_u32 v{vt[3]}, v{vt[2]}, 5, v{vt[3]}
    v_and_b32 v{vt[2]}, 3, v{vl}
    v_lshl_add_u32 v{vt[3]}, v{vt[2]}, 3, v{vt[3]}
    v_add_u32 v{vWA[0]}, 16384, v{vt[3]}
    v_xor_b32 v{vWA[1]}, 64, v{vWA[0]}
    s_mov_b32 s{s_slot}, 0""")
    for i in range(4): k(f"v_mov_b32 v{ones+i}, 0x3f803f80")
    def reads(buf, s):
        out = []
        for mt in range(2):
            out.append(f"ds_read_b128 {vr(fx[buf][mt],4)}, v{vXA[s]} offset:{mt*4096}")
        for nt in range(2):
            for rd in range(2):
                out.append(f"ds_read_b64_tr_b16 {vr(fw[buf][nt]+2*rd,2)}, v{vWA[nt]} offset:{(16*s+4*rd)*256}")
        return [out[2], out[3], out[0], out[1], out[4], out[5]]
    def mfmas(buf, vpath, first):
        m = []
        for nt in range(2):
            for mt in range(2):
                a, b = (fx[buf][mt], fw[buf][nt]) if vpath else (fw[buf][nt], fx[buf][mt])
                m.append(f"{M16} {vr(acc[nt][mt],16)}, {vr(a,4)}, {vr(b,4)}, {'0' if first else vr(acc[nt][mt],16)}")
        m.append(f"{M16} {vr(acs,16)}, {vr(ones,4)}, {vr(fw[buf][0],4)}, {'0' if first else vr(acs,16)}")
        return m
    def chunk(vpath, last, first=False):
        for s in range(3):
            k("s_waitcnt lgkmcnt(0)")
            m = mfmas(s & 1, vpath, first and s == 0); rd = reads((s + 1) & 1, s + 1)
            ad = []
            if not last and s == 0: ad = [None]
            for i in range(5):
                k(m[i])
                for x in rd[2*i:2*i+2]: k(x)
                if i == 3 and not last:
                    if s == 0: adv[:] = advance([vXA[0], vXA[1], vXA[2], vXA[3], vWA[0], vWA[1]])
                    k(adv[s])
        k("s_waitcnt lgkmcnt(0)")
        m = mfmas(1, vpath, False)
        if last:
            for x in m: k(x)
            return
        k(m[0])
        for x in adv[3:]: k(x)
        k(m[1])
        k("s_barrier")
        rd = reads(0, 0)
        for x in rd[:3]: k(x)
        k(m[2])
        for x in rd[3:]: k(x)
        k(m[3]); k(m[4])
    adv = []
    def mainloop(vpath):
        k("s_barrier")
        k.stamp(2)
        for x in reads(0, 0): k(x)
        chunk(vpath, False, first=True)
        L = k.label("loop")
        if o.get('fine') == 1:
            for j in range(8):
                k.stamp(5 + j); chunk(vpath, False)
            k.stamp(13)
        else:
            k(f"s_mov_b32 s{s_cnt}, 8\n{L}:")
            chunk(vpath, False)
            k(f"s_sub_u32 s{s_cnt}, s{s_cnt}, 1\ns_cmp_lg_u32 s{s_cnt}, 0\ns_cbranch_scc1 {L}")
        chunk(vpath, True)
        k.stamp(3)
    def epilogue(vpath):
        t = vt
        la = fx[0][0]; rg = k.v(32, 4); hoff = t[3]
        k(f"""v_and_b32 v{t[0]}, 31, v{vl}
        s_lshl_b32 s{s_t2}, s{s_t2}, 7
        s_add_u32 s{s_ox}, s{s_t2}, {XCH}
        v_lshl_add_u32 v{t[2]}, v{t[0]}, 2, s{s_ox}
        s_lshl_b32 s{s_ow}, s{s_t0}, 8
        s_add_u32 s{s_ow}, s{s_ow}, {XCH}
        v_lshl_add_u32 v{t[1]}, v{t[0]}, 2, s{s_ow}
        v_lshrrev_b32 v{hoff}, 5, v{vl}
        v_lshlrev_b32 v{hoff}, 4, v{hoff}
        s_cmp_lt_u32 s{s_cg}, 5
        s_cselect_b32 s{s_cnt}, {f2u(QSCALE):#x}, 1.0
        ds_write_b32 v{t[2]}, v{acs} offset:{CS}
        s_waitcnt lgkmcnt(0)
        s_barrier""")
        if not vpath:
            k(f"""ds_read_b32 v{la+0}, v{t[1]} offset:{NM}
            ds_read_b32 v{la+2}, v{t[1]} offset:{RS}
            ds_read_b32 v{la+4}, v{t[1]} offset:{NM+128}
            ds_read_b32 v{la+6}, v{t[1]} offset:{RS+128}
            v_add_u32 v{t[5]}, s{s_ox}, v{hoff}
            v_xor_b32 v{t[4]}, 128, v{t[5]}""")
            for nt in range(2):
                for j in range(4):
                    k(f"ds_read_b128 {vr(rg+16*nt+4*j,4)}, v{t[5] if nt==0 else t[4]} offset:{CS+32*j}")
            k(f"""v_lshlrev_b32 v{t[0]}, 4, v{t[0]}
            v_lshl_add_u32 v{t[0]}, v{hoff}, 11, v{t[0]}
            s_lshl_b32 s{s_ox}, s{s_cg}, 19
            s_lshl_b32 s{s_ow}, s{s_t2}, 10
            s_add_u32 s{s_ox}, s{s_ox}, s{s_ow}
            s_lshl_b32 s{s_ow}, s{s_tb}, 11
            s_add_u32 s{s_ox}, s{s_ox}, s{s_ow}
            s_lshl_b32 s{s_ow}, s{s_t0}, 10
            s_add_u32 s{s_ox}, s{s_ox}, s{s_ow}
            s_waitcnt lgkmcnt(4)
            v_mov_b32 v{la+1}, v{la+0}
            v_mul_f32 v{la+3}, s{s_cnt}, v{la+2}
            v_mul_f32 v{la+2}, s{s_cnt}, v{la+2}
            v_mov_b32 v{la+5}, v{la+4}
            v_mul_f32 v{la+7}, s{s_cnt}, v{la+6}
            v_mul_f32 v{la+6}, s{s_cnt}, v{la+6}""")
            for nt in range(2):
                if nt == 1: k("s_waitcnt lgkmcnt(0)")
                for mt in range(2):
                    A = acc[nt][mt]
                    for p in range(8):
                        k(f"v_pk_fma_f32 {vr(A+2*p,2)}, {vr(rg+16*nt+2*p,2)}, {vr(la+4*mt,2)}, {vr(A+2*p,2)}")
                    for p in range(8):
                        k(f"v_pk_mul_f32 {vr(A+2*p,2)}, {vr(A+2*p,2)}, {vr(la+4*mt+2,2)}")
                    for p in range(8):
                        k(f"v_cvt_pk_bf16_f32 v{A+p}, v{A+2*p}, v{A+2*p+1}")
                    k(f"s_xor_b32 s{s_ow}, s{s_ox}, {(nt*4*32768) | (mt*512)}")
                    k(f"s_add_u32 s{s_rs}, s{s_ow}, {2*32768}")
                    for jp in range(2):
                        k(f"v_permlane32_swap_b32 v{A+4*jp}, v{A+4*jp+2}\nv_permlane32_swap_b32 v{A+4*jp+1}, v{A+4*jp+3}")
                    k(f"buffer_store_dwordx4 {vr(A,4)}, v{t[0]}, {sr(sO,4)}, s{s_ow} offen{sc}")
                    k(f"buffer_store_dwordx4 {vr(A+4,4)}, v{t[0]}, {sr(sO,4)}, s{s_rs} offen{sc}")
        else:
            rg2 = k.v(32, 4)
            k(f"""v_xor_b32 v{t[4]}, 128, v{t[2]}
            ds_read_b32 v{la+2}, v{t[4]} offset:{CS}
            v_add_u32 v{t[5]}, s{s_ow}, v{hoff}""")
            for mt in range(2):
                for j in range(4):
                    k(f"ds_read_b128 {vr(rg+16*mt+4*j,4)}, v{t[5]} offset:{NM+128*mt+32*j}")
                    k(f"ds_read_b128 {vr(rg2+16*mt+4*j,4)}, v{t[5]} offset:{RS+128*mt+32*j}")
            va = [la + 4, la + 5]
            k(f"""s_sub_u32 s{s_ox}, s{s_cg}, 10
            s_lshl_b32 s{s_ox}, s{s_ox}, 7
            s_lshr_b32 s{s_ow}, s{s_t2}, 2
            s_add_u32 s{s_ox}, s{s_ox}, s{s_ow}
            v_add_u32 v{t[0]}, s{s_ox}, v{t[0]}
            v_mul_u32_u24 v{hoff}, 640, v{hoff}
            v_lshl_add_u32 v{va[0]}, v{t[0]}, 4, v{hoff}
            v_xor_b32 v{t[0]}, 32, v{t[0]}
            v_lshl_add_u32 v{va[1]}, v{t[0]}, 4, v{hoff}
            s_lshl_b32 s{s_ox}, s{s_tb}, 1
            s_add_u32 s{s_ox}, s{s_ox}, s{s_t0}
            s_mul_i32 s{s_ox}, s{s_ox}, 81920
            s_add_u32 s{s_ox}, s{s_ox}, {VIMG}
            v_mov_b32 v{la+0}, v{acs}
            v_mov_b32 v{la+1}, v{acs}
            s_waitcnt lgkmcnt(8)
            v_mov_b32 v{la+3}, v{la+2}""")
            for mt in range(2):
                if mt == 1: k("s_waitcnt lgkmcnt(0)")
                for nt in range(2):
                    A = acc[nt][mt]
                    for p in range(8):
                        k(f"v_pk_fma_f32 {vr(A+2*p,2)}, {vr(rg+16*mt+2*p,2)}, {vr(la+2*nt,2)}, {vr(A+2*p,2)}")
                    for p in range(8):
                        k(f"v_pk_mul_f32 {vr(A+2*p,2)}, {vr(A+2*p,2)}, {vr(rg2+16*mt+2*p,2)}")
                    for p in range(8):
                        k(f"v_cvt_pk_bf16_f32 v{A+p}, v{A+2*p}, v{A+2*p+1}")
                    k(f"s_add_u32 s{s_ow}, s{s_ox}, {40960*mt}\ns_add_u32 s{s_rs}, s{s_ox}, {40960*mt+20480}")
                    k(f"buffer_store_dwordx4 {vr(A,4)}, v{va[nt]}, {sr(sO,4)}, s{s_ow} offen{sc}")
                    k(f"buffer_store_dwordx4 {vr(A+4,4)}, v{va[nt]}, {sr(sO,4)}, s{s_rs} offen{sc}")
    k(f"s_cmp_ge_u32 s{s_cg}, 10\ns_cbranch_scc1 {L_v}")
    vsave = k.vnext
    mainloop(False); epilogue(False); k(f"s_branch {L_J0}")
    k.vnext = vsave
    k(f"{L_v}:")
    mainloop(True); epilogue(True)
    if o.get('fine') == 1:
        k.maxst = 14; k.stamp = lambda *a, **kw: None
    k(f"{L_J0}:\ns_setprio 0")
    k.stamp(4)
    prep_decode(True)
    k(f"""s_mov_b32 s{c.s_p}, s{s_cg}
    s_lshl_b32 s{c.s_f}, s{s_cg}, 5
    s_add_u32 s{c.s_f}, s{c.s_f}, s{s_tb}
    s_lshl_b32 s{c.s_f}, s{c.s_f}, {FL}
    s_add_u32 s{c.s_f}, s{c.s_f}, {F1}""")
    def spare():
        o4 = acs; xb = acc[0][0]; sm = [fw[0][0], fw[0][0] + 1]; sq = [fw[0][0] + 2, fw[0][0] + 3]
        k(f"""{L_spare}:
        v_lshrrev_b32 v{vt[0]}, 3, v{vl}
        v_lshl_add_u32 v{vt[0]}, s{s_w}, 4, v{vt[0]}
        v_mul_u32_u24 v{vt[0]}, 1280, v{vt[0]}
        v_and_b32 v{vt[2]}, 7, v{vl}
        v_lshl_add_u32 v{vX[0]}, v{vt[2]}, 4, v{vt[0]}
        v_add_u32 v{vX[1]}, {8*1280}, v{vX[0]}
        s_mul_i32 s{s_t0}, s{s_tb}, {128*1280}
        s_mov_b32 s{sX+2}, {128*1280}
        s_mov_b32 s{sX+3}, 0x20000
        s_waitcnt lgkmcnt(0)
        s_add_u32 s{sX}, s{sP}, s{s_t0}
        s_addc_u32 s{sX+1}, s{sP+1}, 0""")
        for g in range(2):
            for i in range(10): k(f"buffer_load_dwordx4 {vr(xb+40*g+4*i,4)}, v{vX[g]}, {sr(sX,4)}, 0 offen offset:{128*i}")
        common_setup()
        srd(k, sW, sWS, sWS + 1, CSG + ZERO_BYTES)
        o4 = xb + 80
        k(f"""s_mov_b32 s{s_t0}, {ONES}
        v_and_b32 v{vt[0]}, 0x70, v{vl16}
        v_lshlrev_b32 v{vt[1]}, 4, v0
        s_lshl_b32 s{s_t1}, s{s_tb}, 13
        s_add_u32 s{s_t1}, s{s_t1}, {CSG}
        s_mov_b32 s{s_msk}, 0x3f803f80""")
        for i in range(4): k(f"v_mov_b32 v{o4+i}, 0x3f803f80\nv_mov_b32 v{o4+4+i}, 0")
        nz = (ZERO_BYTES + 131071) // 131072
        for z in range(nz):
            k(f"buffer_store_dwordx4 {vr(o4+4,4)}, v{vt[1]}, {sr(sW,4)}, s{s_t1} offen{sc}\ns_add_u32 s{s_t1}, s{s_t1}, 131072")
        k(f"s_mov_b64 exec, 0xff\nbuffer_store_dwordx4 {vr(o4,4)}, v{vt[0]}, {sr(sO,4)}, s{s_t0} offen{sc}\ns_mov_b64 exec, -1")
        st = o4 + 8
        for i in range(4): k(f"v_mov_b32 v{st+i}, 0")
        for g in range(2):
            for i in range(10):
                k(f"s_waitcnt vmcnt({19 - 10*g - i + nz + 1})")
                for j in range(4):
                    x = xb + 40 * g + 4 * i + j
                    k(f"v_dot2c_f32_bf16 v{st+2*g}, s{s_msk}, v{x}\nv_dot2c_f32_bf16 v{st+2*g+1}, v{x}, v{x}")
        for ctl in ("quad_perm:[1,0,3,2]", "quad_perm:[2,3,0,1]", "row_half_mirror"):
            for i in range(4): k(f"v_add_f32_dpp v{st+i}, v{st+i}, v{st+i} {ctl} row_mask:0xf bank_mask:0xf")
        Ln = k.label("sn")
        k(f"""v_and_b32 v{vt[2]}, 1, v{vl}
        v_cmp_eq_u32 vcc, 1, v{vt[2]}
        v_lshrrev_b32 v{vt[3]}, 3, v{vl}
        v_lshl_add_u32 v{vt[3]}, v{vt[2]}, 3, v{vt[3]}
        v_cndmask_b32 v{st}, v{st}, v{st+2}, vcc
        v_cndmask_b32 v{st+1}, v{st+1}, v{st+3}, vcc
        v_lshlrev_b32 v{vt[3]}, 2, v{vt[3]}
        v_mul_f32 v{st}, {f2u(-1.0/640):#x}, v{st}
        v_mul_f32 v{st+1}, {f2u(1.0/640):#x}, v{st+1}
        v_fma_f32 v{st+1}, -v{st}, v{st}, v{st+1}
        v_max_f32 v{st+1}, 0, v{st+1}
        v_add_f32 v{st+1}, {f2u(1e-5):#x}, v{st+1}
        v_rsq_f32 v{st+1}, v{st+1}
        s_lshl_b32 s{s_t1}, s{s_w}, 6
        v_add_u32 v{vt[3]}, s{s_t1}, v{vt[3]}
        ds_write_b32 v{vt[3]}, v{st}
        ds_write_b32 v{vt[3]}, v{st+1} offset:512
        s_waitcnt vmcnt(0) lgkmcnt(0)
        s_barrier
        s_cmp_lg_u32 s{s_w}, 4
        s_cbranch_scc1 {Ln}
        ds_read_b128 {vr(st,4)}, v{vl16}
        s_lshl_b32 s{s_t0}, s{s_tb}, 10
        s_add_u32 s{s_t0}, s{s_t0}, {LN1}
        s_waitcnt lgkmcnt(0)
        buffer_store_dwordx4 {vr(st,4)}, v{vl16}, {sr(sO,4)}, s{s_t0} offen{sc}
        s_waitcnt vmcnt(0)
        s_lshl_b32 s{s_t0}, s{s_tb}, 4
        v_mov_b32 v{vt[2]}, 1
        v_mov_b32 v{vt[3]}, 0
        s_mov_b64 exec, 1
        buffer_store_dword v{vt[2]}, v{vt[3]}, {sr(sD,4)}, s{s_t0} offen sc1
        s_mov_b64 exec, -1
        {Ln}:""")
        k.stamp(2); k.stamp(3)
        k(f"s_branch {L_J0}")
    def deferred(fn):
        n = len(k.lines); fn(); out = k.lines[n:]; del k.lines[n:]; return out
    spare_code = deferred(spare)
    c.reset()
    prio = o.get('prio', (18, 6, 3, 1))
    s_h = k.s(); s_pa = k.s(); s_pr = k.s(); s_odd8 = k.s(); s_tok = k.s()
    s_t0 = k.s(); s_t1 = k.s(); s_t2 = k.s(); s_t3 = k.s()
    so = [k.s() for _ in range(3)]; s_d = k.s(); s_mo = k.s(); s_ms = k.s(); s_q1 = k.s(); s_q2 = k.s()
    sG = k.s(2); sE = k.s(2)
    vq = k.v(); vr31 = k.v(); vKA = k.v(); vKR = k.v(); vVA = k.v(); vqr = k.v()
    vt0 = k.v(6, 2); vt = list(range(vt0, vt0 + 6))
    S = [k.v(32, 4), k.v(32, 4)]; O = k.v(16, 4); OY = k.v(16, 4); P = k.v(8, 4)
    Qm = k.v(4, 4); QmY = k.v(4, 4); Qr = k.v(2); Km = k.v(4, 4); Kr = k.v(2); V0 = k.v(4, 4); V1 = [k.v(4, 4), k.v(4, 4)]
    PR = k.v(16, 4); C = S[1]; vcs = k.v(16, 4); vsel = k.v(16, 4); vca = k.v(); vfp = k.v(4, 4); vo1 = k.v(); vo2 = k.v(); vx1 = k.v(); vx2 = k.v(); s_o1 = k.s(); s_o2 = k.s()
    L_slow = k.label("slow"); L_store = k.label("store"); L_dv = k.label("dv"); L_dd = k.label("dd")
    vD = [k.v() for _ in range(3)]; vDd = [k.v() for _ in range(3)]
    k(f"""s_and_b32 s{s_t0}, s2, 7
    s_lshl_b32 s{s_t0}, s{s_t0}, 2
    s_bfe_u32 s{s_t1}, s2, 0x20003
    s_add_u32 s{s_h}, s{s_t0}, s{s_t1}
    s_lshr_b32 s{s_q1}, s{s_h}, 1
    s_mul_i32 s{s_t0}, s{s_q1}, 5
    s_and_b32 s{s_t1}, s{s_h}, 1
    s_lshl_b32 s{s_odd8}, s{s_t1}, 3
    s_mul_i32 s{s_t1}, s{s_t1}, 3
    s_add_u32 s{s_pa}, s{s_t0}, s{s_t1}
    s_lshl_b32 s{s_pa}, s{s_pa}, 15
    s_add_u32 s{s_pr}, s{s_t0}, 2
    s_lshl_b32 s{s_pr}, s{s_pr}, 15
    s_lshr_b32 s{s_q2}, s{s_wl}, 1
    s_and_b32 s{s_t3}, s{s_w}, 1
    s_mul_i32 s{s_mo}, s{s_q2}, 6144
    s_cmp_ge_u32 s{s_w}, 4
    s_cbranch_scc1 {L_dv}
    s_lshl_b32 s{s_t0}, s{s_q2}, 14
    s_lshl_b32 s{s_t1}, s{s_t3}, 10
    s_add_u32 s{s_mo}, s{s_mo}, s{s_t1}
    s_add_u32 s{s_t0}, s{s_t0}, s{s_t1}
    s_add_u32 s{s_t0}, s{s_t0}, {80*32768}
    s_add_u32 s{s_t1}, s{s_pa}, s{s_t0}
    s_add_u32 s{s_t2}, s{s_pr}, s{s_t0}
    v_add_u32 v{vD[0]}, s{s_t1}, v{vl16}
    v_add_u32 v{vD[1]}, 32768, v{vD[0]}
    v_add_u32 v{vD[2]}, s{s_t2}, v{vl16}
    v_mov_b32 v{vDd[0]}, 2048
    v_mov_b32 v{vDd[1]}, 2048
    v_mov_b32 v{vDd[2]}, 2048
    s_movk_i32 s{s_ms}, 2048
    s_branch {L_dd}
    {L_dv}:
    s_mul_i32 s{s_t1}, s{s_t3}, 3072
    s_add_u32 s{s_mo}, s{s_mo}, s{s_t1}
    s_add_u32 s{s_mo}, s{s_mo}, {VB}
    s_mul_i32 s{s_t0}, s{s_q2}, {128*10240}
    s_mul_i32 s{s_t1}, s{s_h}, 320
    s_add_u32 s{s_t0}, s{s_t0}, s{s_t1}
    s_add_u32 s{s_t0}, s{s_t0}, {VIMG}
    s_mul_i32 s{s_t3}, s{s_t3}, 192
    s_movk_i32 s{s_ms}, 1024
    v_mov_b32 v{vt[4]}, {ONES}
    v_mov_b32 v{vt[5]}, {16*10240}""")
    for i in range(3):
        k(f"""v_add_u32 v{vt[0]}, s{s_t3}, v{vl}
        s_add_u32 s{s_t3}, s{s_t3}, 64
        v_mul_u32_u24 v{vt[1]}, 3121, v{vt[0]}
        v_lshrrev_b32 v{vt[1]}, 16, v{vt[1]}
        v_mul_u32_u24 v{vt[2]}, 21, v{vt[1]}
        v_sub_u32 v{vt[2]}, v{vt[0]}, v{vt[2]}
        v_cmp_gt_u32 vcc, 20, v{vt[2]}
        v_cmp_gt_u32 {sr(sE,2)}, 16, v{vt[1]}
        v_mul_u32_u24 v{vt[1]}, 10240, v{vt[1]}
        v_lshl_add_u32 v{vt[1]}, v{vt[2]}, 4, v{vt[1]}
        s_and_b64 vcc, vcc, {sr(sE,2)}
        v_add_u32 v{vt[1]}, s{s_t0}, v{vt[1]}
        v_cndmask_b32 v{vD[i]}, v{vt[4]}, v{vt[1]}, vcc
        v_cndmask_b32 v{vDd[i]}, 0, v{vt[5]}, vcc""")
    k(f"""{L_dd}:
    s_lshr_b32 s{s_t3}, s{s_w}, 2
    s_mul_i32 s{s_t0}, s{s_t3}, 6144
    v_and_b32 v{vr31}, 31, v{vl}
    v_lshlrev_b32 v{vr31}, 4, v{vr31}
    v_lshrrev_b32 v{vt[1]}, 5, v{vl}
    v_lshl_add_u32 v{vq}, v{vt[1]}, 15, v{vr31}
    v_add_u32 v{vt[2]}, s{s_t0}, v{vr31}
    v_lshl_add_u32 v{vKA}, v{vt[1]}, 11, v{vt[2]}
    v_add_u32 v{vKR}, s{s_odd8}, v{vt[2]}
    v_add_u32 v{vKR}, 4096, v{vKR}
    v_mul_u32_u24 v{vt[0]}, 336, v{vt[1]}
    v_add_u32 v{vt[0]}, v{vt[0]}, v{vt[2]}
    v_add_u32 v{vVA}, {VB}, v{vt[0]}
    v_cmp_lt_u32 vcc, {20*16}, v{vr31}
    v_mov_b32 v{vt[0]}, 0x40000
    v_xor_b32 v{vt[1]}, s{s_t3}, v{vt[1]}
    v_cndmask_b32 v{vVA}, v{vVA}, v{vt[0]}, vcc
    v_lshl_add_u32 v{vqr}, v{vt[1]}, 9, v{vr31}
    s_lshr_b32 s{s_tok}, s2, 5
    s_lshl_b32 s{s_tok}, s{s_tok}, 8
    s_lshl_b32 s{s_t0}, s{s_wl}, 6
    s_add_u32 s{s_tok}, s{s_tok}, s{s_t0}
    s_lshl_b32 s{s_t0}, s{s_t3}, 5
    s_add_u32 s{s_tok}, s{s_tok}, s{s_t0}""")
    k(f"v_lshlrev_b32 v{vca}, 2, v{vl}\nv_mov_b32 v{vt[0]}, 0x3f803f80")
    for Tl, row in enumerate((0, 4, 1, 5)):
        k(f"v_cmp_eq_u32 vcc, {16*row}, v{vr31}")
        k(f"v_cndmask_b32 v{vsel+4*Tl}, 0, v{vt[0]}, vcc")
        for i in range(1, 4): k(f"v_mov_b32 v{vsel+4*Tl+i}, v{vsel+4*Tl}")
    k(f"""v_bfe_u32 v{vo2}, v{vl}, 4, 1
    v_mul_u32_u24 v{vo2}, {20*1024}, v{vo2}
    v_and_b32 v{vt[2]}, 15, v{vl}
    v_lshl_add_u32 v{vo1}, v{vt[2]}, 4, v{vo2}
    v_lshl_add_u32 v{vo2}, v{vt[2]}, 3, v{vo2}
    v_lshrrev_b32 v{vt[2]}, 5, v{vl}
    v_lshl_add_u32 v{vo1}, v{vt[2]}, 8, v{vo1}
    s_lshr_b32 s{s_t0}, s{s_tok}, 4
    s_mul_i32 s{s_t0}, s{s_t0}, {20*1024}
    s_add_u32 s{s_t0}, s{s_t0}, {OIMG}
    s_lshl_b32 s{s_o1}, s{s_h}, 9
    s_add_u32 s{s_o1}, s{s_o1}, s{s_t0}
    s_lshl_b32 s{s_o2}, s{s_h}, 7
    s_add_u32 s{s_o2}, s{s_o2}, s{s_t0}
    s_add_u32 s{s_o2}, s{s_o2}, {16*1024}
    s_mul_i32 s{s_t0}, s{s_wl}, 3072
    s_add_u32 s{s_t0}, s{s_t0}, {2*SL}
    s_add_u32 s{s_t1}, s{s_t0}, {VB}
    s_cmp_lt_u32 s{s_w}, 4
    s_cselect_b32 s{s_t2}, s{s_t0}, s{s_t1}
    s_cselect_b32 s{s_t1}, s{s_t1}, s{s_t0}
    v_add_u32 v{vx1}, s{s_t2}, v{vl16}
    v_add_u32 v{vx2}, s{s_t1}, v{vl16}""")
    early = o.get('early', 1)
    p1 = [f"s_mov_b32 m0, s{sR[4]}", "s_nop 0"]
    for i, (sd, so_) in enumerate(((sA, sR[0]), (sA, sR[2]), (sB, sR[1]), (sB, sR[3]))):
        p1.append(f"buffer_load_dwordx4 v{vPS}, {sr(sd,4)}, s{so_} offen lds")
        if i < 3: p1 += ["s_add_u32 m0, m0, 1024", "s_nop 0"]
    edge_prep = o.get('edge_prep', False)
    Lx = k.label("jx"); Lp = k.label("jp"); Lz = k.label("jz"); Lzx = k.label("jzx"); Lns = k.label("jns")
    part = o.get('part', True)
    vfl = k.v(); vpl = k.v(); vf2 = k.v(2); s_f0 = sG; s_f1 = sG + 1
    k(f"""s_mul_i32 s{s_t0}, s{s_q1}, 40
    s_add_u32 s{s_t1}, s{s_t0}, 39
    s_lshr_b32 s{s_t0}, s{s_t0}, 7
    s_lshr_b32 s{s_t1}, s{s_t1}, 7
    s_lshl_b32 s{s_f0}, s{s_t0}, {FL+5}
    s_lshl_b32 s{s_f1}, s{s_t1}, {FL+5}
    s_add_u32 s{s_f0}, s{s_f0}, {F1}
    s_add_u32 s{s_f1}, s{s_f1}, {F1}
    v_lshrrev_b32 v{vt[2]}, 4, v{vl}
    v_min_u32 v{vt[2]}, 2, v{vt[2]}
    v_mul_u32_u24 v{vt[2]}, 160, v{vt[2]}
    v_and_b32 v{vt[3]}, 15, v{vl}
    v_add_u32 v{vt[3]}, v{vt[3]}, v{vt[2]}
    v_lshlrev_b32 v{vfl}, {FL}, v{vt[3]}""")
    if part:
        k(f"""s_sub_u32 s{s_t1}, s{s_t1}, s{s_t0}
        v_and_b32 v{vt[2]}, 1, v{vl}
        v_mul_u32_u24 v{vt[2]}, s{s_t1}, v{vt[2]}
        v_bfe_u32 v{vt[3]}, v{vl}, 1, 1
        v_bfe_u32 v{vt[4]}, v{vl}, 2, 1
        v_bfe_u32 v{vt[5]}, v{vl}, 3, 1
        v_lshl_add_u32 v{vt[4]}, v{vt[5]}, 3, v{vt[4]}
        v_mad_u32_u24 v{vt[5]}, v{vt[3]}, 5, 5
        s_lshr_b32 s{s_t1}, s2, 5
        s_lshl_b32 s{s_t1}, s{s_t1}, 1
        v_add_u32 v{vt[3]}, s{s_t1}, v{vt[3]}
        v_cmp_gt_u32 vcc, 16, v{vl}
        v_cndmask_b32 v{vt[5]}, 0, v{vt[5]}, vcc
        v_cndmask_b32 v{vt[4]}, v{vt[3]}, v{vt[4]}, vcc
        v_add_u32 v{vt[2]}, v{vt[2]}, v{vt[5]}
        v_lshl_add_u32 v{vt[2]}, v{vt[2]}, 5, v{vt[4]}
        v_lshlrev_b32 v{vpl}, {FL}, v{vt[2]}""")
    k(f"""s_cmp_lg_u32 s{s_w}, 0
    s_cbranch_scc1 {Lzx}
    s_cmp_lg_u32 s{c.s_p}, 15
    s_cbranch_scc1 {Lzx}
    v_and_b32 v{vt[3]}, 15, v{vl}
    v_lshlrev_b32 v{vt[3]}, 4, v{vt[3]}
    s_mov_b32 s{s_t1}, 0
    {Lz}:
    buffer_load_dword v{vt[4]}, v{vt[3]}, {sr(sD,4)}, 0 offen sc1
    s_add_u32 s{s_t1}, s{s_t1}, 1
    s_cmp_gt_u32 s{s_t1}, 0x40000
    s_cbranch_scc1 {Lzx}
    s_waitcnt vmcnt(0)
    v_cmp_ne_u32 vcc, 0, v{vt[4]}
    s_cmp_eq_u64 vcc, -1
    s_cbranch_scc0 {Lz}
    {Lzx}:
    s_waitcnt vmcnt(0)""")
    k.stamp(5)
    k(f"""s_barrier
    s_cmp_lg_u32 s{s_w}, 0
    s_cbranch_scc1 {Lx}""")
    c.signal(c.s_f, vt[2])
    fl = [f"buffer_load_dword v{vf2}, v{vfl}, {sr(sO,4)}, s{s_f0} offen sc1", f"buffer_load_dword v{vf2+1}, v{vfl}, {sr(sO,4)}, s{s_f1} offen sc1"]
    k(f"s_mov_b32 s{s_t2}, 0\n{Lp}:")
    if part: k(f"buffer_load_dword v{vf2}, v{vpl}, {sr(sO,4)}, s{s_f0} offen sc1")
    else: k(fl[0]); k(fl[1])
    k(f"""s_add_u32 s{s_t2}, s{s_t2}, 1
    s_cmp_gt_u32 s{s_t2}, 0x40000
    s_cbranch_scc1 {Lx}
    s_waitcnt vmcnt(0)""")
    if not part: k(f"v_min_u32 v{vf2}, v{vf2}, v{vf2+1}")
    k(f"""v_cmp_ne_u32 vcc, 0, v{vf2}
    s_cmp_eq_u64 vcc, -1
    s_cbranch_scc0 {Lp}
    {Lx}:
    s_lshl_b32 s{s_t0}, s{s_tok}, 4
    s_add_u32 s{s_q1}, s{s_t0}, s{s_pa}
    s_xor_b32 s{s_t3}, s{s_q1}, 512
    s_andn2_b32 s{s_q2}, s{s_t0}, 512
    s_add_u32 s{s_q2}, s{s_q2}, s{s_pr}
    s_add_u32 s{s_q2}, s{s_q2}, s{s_odd8}
    s_barrier""")
    k.stamp(6)
    def dma(slot):
        out = [f"s_add_u32 m0, s{s_mo}, {slot*SL}", "s_nop 0"]
        for i in range(3):
            out.append(f"buffer_load_dwordx4 v{vD[i]}, {sr(sO,4)}, 0 offen sc1 lds")
            if i < 2: out.append(f"s_add_u32 m0, m0, s{s_ms}")
            out.append(f"v_add_u32 v{vD[i]}, v{vD[i]}, v{vDd[i]}")
        return out
    k("; ---- P2 attention")
    for x in dma(0): k(x)
    k(f"""buffer_load_dwordx4 {vr(Qm,4)}, v{vq}, {sr(sO,4)}, s{s_q1} offen
    buffer_load_dwordx4 {vr(QmY,4)}, v{vq}, {sr(sO,4)}, s{s_t3} offen
    buffer_load_dwordx2 {vr(Qr,2)}, v{vqr}, {sr(sO,4)}, s{s_q2} offen""")
    for x in dma(1): k(x)
    p2a = [f"ds_read_b64_tr_b16 {vr(PR+4*Tl+2*rd,2)}, v{vPA} offset:{rd*1024+Tl*32}" for Tl in range(4) for rd in range(2)]
    p2c = [f"{M16} {vr(vcs,16)}, {vr(vsel+4*Tl,4)}, {vr(PR+4*Tl,4)}, {'0' if Tl == 0 else vr(vcs,16)}" for Tl in range(4)]
    late = [f"buffer_store_dwordx4 {vr(PR+4*Tl,4)}, v{vl16}, {sr(sO,4)}, s{s_po} offen offset:{Tl*1024}{sc}" for Tl in range(4)]
    late += [f"buffer_atomic_add_f32 v{vcs}, v{vca}, {sr(sO,4)}, s{s_cs} offen", f"buffer_atomic_add_f32 v{vcs+1}, v{vca}, {sr(sO,4)}, s{s_cs} offen offset:256"]
    TL = o.get('TL', 3); TP = o.get('TP', 11); assert TL > 2
    late_t = o.get('late_t', [TP + 1, TP + 2, TP + 4, TP + 5, TP + 3, TP + 3]); TSIG = o.get('TSIG', TP + 11)
    assert not edge_prep
    M2B = "v_mfma_f32_32x32x4_2b_bf16"
    def rdK(t):
        o_ = ((t // 4) % 3) * SL + (t % 4) * 512
        return [f"ds_read_b128 {vr(Km,4)}, v{vKA} offset:{o_}", f"ds_read_b64 {vr(Kr,2)}, v{vKR} offset:{o_}"]
    def rdV(t):
        o_ = ((t // 4) % 3) * SL + (t % 4) * 1344
        return [f"ds_read_b128 {vr(V0,4)}, v{vVA} offset:{o_}", f"ds_read_b128 {vr(V1[t&1],4)}, v{vVA} offset:{o_+672}"]
    k("s_waitcnt vmcnt(3)\ns_barrier")
    k.stamp(7)
    for x in rdK(0): k(x)
    k(f"""s_waitcnt lgkmcnt(0)
    {M2B} {vr(S[0],32)}, {vr(Kr,2)}, {vr(Qr,2)}, 0
    {M16} {vr(S[0],16)}, {vr(Km,4)}, {vr(Qm,4)}, {vr(S[0],16)}
    {M16} {vr(S[0]+16,16)}, {vr(Km,4)}, {vr(QmY,4)}, {vr(S[0]+16,16)}""")
    for x in rdK(1) + rdV(0): k(x)
    side = []; vm = [0]
    def spread(n):
        for _ in range(n):
            if side:
                x = side.pop(0)
                if x is None: continue
                if x == 'KV': vm[0] = 0; continue
                k(x)
                if x.startswith('buffer_'): vm[0] += 1
    NT = 32
    for t in range(NT):
        s = S[t & 1]; sn = S[(t + 1) & 1]; pe = t // 4; last = t == NT - 1
        yf = 16 if last and o.get('yfirst', True) else 0
        Oa, Ob = (OY, O) if yf else (O, OY)
        e = lambda *a: [(k(f"v_exp_f32 v{s+(i^yf)}, v{s+(i^yf)}"), spread(1)) for i in a]
        cv = lambda i: k(f"v_cvt_pk_bf16_f32 v{P+i%8}, v{s+((2*i)^yf)}, v{s+((2*i)^yf)+1}")
        def pr(ph):
            if prio:
                q = (7 * t + ph - 19) % 28; tab = prio
                if 7 * t + ph >= 187 and o.get('lastprio', True): q = 7 * t + ph - 187; tab = (24, 8, 3, 2)
                cum = 0
                for lvl, ln in enumerate(tab):
                    if (q == cum and ln > 0) or (t == 0 and ph == 0 and cum <= q < cum + ln): k(f"s_setprio {3 - lvl}")
                    cum += ln
        z = lambda r: '0' if t == 0 else vr(r, 16)
        pr(0)
        e(0, 1, 2, 3)
        if not last:
            k("s_waitcnt lgkmcnt(2)")
            k(f"{M2B} {vr(sn,32)}, {vr(Kr,2)}, {vr(Qr,2)}, 0")
        pr(1)
        e(4); cv(0); e(5); cv(1); e(6, 7); cv(2); e(8); cv(3); e(9, 10)
        k("s_waitcnt lgkmcnt(0)")
        k(f"{M16} {vr(Oa,16)}, {vr(V0,4)}, {vr(P,4)}, {z(Oa)}")
        pr(2)
        e(11); cv(4); e(12); cv(5); e(13, 14)
        if not last: k(f"{M16} {vr(sn,16)}, {vr(Km,4)}, {vr(Qm,4)}, {vr(sn,16)}")
        pr(3)
        e(15); cv(6); e(16); cv(7); e(17, 18)
        k(f"{M16} {vr(Oa,16)}, {vr(V1[t&1],4)}, {vr(P+4,4)}, {vr(Oa,16)}")
        pr(4)
        e(19); cv(8); e(20); cv(9); e(21, 22)
        if not last: k(f"{M16} {vr(sn+16,16)}, {vr(Km,4)}, {vr(QmY,4)}, {vr(sn+16,16)}")
        if part and t == 1:
            Ln = k.label("nq"); k(f"s_cmp_lg_u32 s{s_w}, 0\ns_cbranch_scc1 {Ln}"); k(fl[0]); k(fl[1]); k(f"{Ln}:")
        if t % 4 == 2 and pe < 7:
            assert not side
            k(f"s_waitcnt vmcnt({0 if t in (TP - 1, TSIG - 4, 26) else vm[0]})")
            if part and t == 2:
                Ln = k.label("nq"); Lq = k.label("q")
                k(f"""s_cmp_lg_u32 s{s_w}, 0
                s_cbranch_scc1 {Ln}
                s_mov_b32 s{s_t2}, 0
                {Lq}:
                v_min_u32 v{vf2}, v{vf2}, v{vf2+1}
                s_add_u32 s{s_t2}, s{s_t2}, 1
                v_cmp_ne_u32 vcc, 0, v{vf2}
                s_cmp_eq_u64 vcc, -1
                s_cbranch_scc1 {Ln}
                s_cmp_gt_u32 s{s_t2}, 0x40000
                s_cbranch_scc1 {Ln}""")
                k(fl[0]); k(fl[1])
                k(f"s_waitcnt vmcnt(0)\ns_branch {Lq}\n{Ln}:")
            if early and t == 26:
                Ln = k.label("ne"); Lq = k.label("e")
                k(f"""s_cmp_lg_u32 s{s_w}, 0
                s_cbranch_scc1 {Ln}
                s_mov_b32 s{s_t2}, 0
                {Lq}:
                v_min_u32 v{vfp}, v{vfp}, v{vfp+1}
                v_min3_u32 v{vfp}, v{vfp}, v{vfp+2}, v{vfp+3}
                s_add_u32 s{s_t2}, s{s_t2}, 1
                v_cmp_ne_u32 vcc, 0, v{vfp}
                s_cmp_eq_u64 vcc, -1
                s_cbranch_scc1 {Ln}
                s_cmp_gt_u32 s{s_t2}, 0x40000
                s_cbranch_scc1 {Ln}
                buffer_load_dwordx4 {vr(vfp,4)}, v{vl16}, {sr(sO,4)}, s{s_t0} offen sc1
                s_waitcnt vmcnt(0)
                s_branch {Lq}
                {Ln}:""")
                side += [f"s_lshr_b32 s{s_t0}, s2, 5"] if o.get('row3', o.get('cinit', True)) else [f"s_bfe_u32 s{s_t0}, s2, 0x10002", f"s_lshl_b32 s{s_t0}, s{s_t0}, 2", f"s_lshr_b32 s{s_t1}, s2, 6", f"s_add_u32 s{s_t0}, s{s_t0}, s{s_t1}"]
                side += [
                         f"s_lshl_b32 s{s_t1}, s{s_w}, 3", f"s_add_u32 s{s_t0}, s{s_t0}, s{s_t1}", f"s_mul_i32 s{s_t0}, s{s_t0}, 5120", f"s_add_u32 s{s_t0}, s{s_t0}, {WOP}",
                         f"s_mul_i32 s{s_t1}, s{s_w}, 5120"]
                for hf in range(2):
                    side += [f"s_add_u32 m0, s{s_t1}, {PREP + hf*8*5120}", f"s_add_u32 s{s_t2}, s{s_t0}, 4096"]
                    side += [f"buffer_load_dwordx4 v{vl16}, {sr(sO,4)}, s{s_t0} offen offset:{i*1024} lds" for i in range(4)]
                    side += ["s_add_u32 m0, m0, 4096", f"s_add_u32 s{s_t0}, s{s_t0}, {8*40960}", f"buffer_load_dwordx4 v{vl16}, {sr(sO,4)}, s{s_t2} offen lds"]
                sp = o.get('espace', 8)
                side[:] = [y for x in side for y in ([x] + [None] * sp if x.startswith('buffer') else [x])]
            k("s_barrier")
            if o.get('fine') == 2: k.stamp({0: 1, 1: 2, 2: 3, 3: 4, 4: 5, 5: 6, 6: 9}[pe])
            if pe < 6: side += dma((pe + 2) % 3) + ['KV']
            if t == TSIG - 4:
                Ln = k.label("nf")
                k(f"s_cmp_lg_u32 s{s_w}, 0\ns_cbranch_scc1 {Ln}\ns_lshl_b32 s{s_t0}, s2, 2\ns_add_u32 s{s_t0}, s{s_t0}, {FP}")
                c.signal(s_t0, vt[2]); k(f"{Ln}:")
        pr(5)
        if t < NT - 2:
            for x in rdK(t + 2): k(x)
        if t == TP:
            for x in p2a: k(x)
        if t == TL: side += p1
        if o.get('cs2', True):
            if TP < t <= TP + 2: k(p2c[2 * (t - TP - 1)]); side.insert(0, None); side.insert(0, None); side.insert(min(4, len(side)), p2c[2 * (t - TP - 1) + 1])
        elif TP < t <= TP + 4: k(p2c[t - TP - 1])
        for i_, x_ in enumerate(late_t):
            if int(x_) == t: side.append(late[i_])
        if t == (o.get('TF', 24) if early else 28):
            Ln = k.label("nl")
            if early: k(f"s_cmp_lg_u32 s{s_w}, 0\ns_cbranch_scc1 {Ln}")
            k(f"s_mov_b32 s{s_t0}, {FP}\nbuffer_load_dwordx4 {vr(vfp,4)}, v{vl16}, {sr(sO,4)}, s{s_t0} offen sc1\n{Ln}:")
        e(23); cv(10); e(24); cv(11); e(25, 26)
        k(f"{M16} {vr(Ob,16)}, {vr(V0,4)}, {vr(P,4)}, {z(Ob)}")
        if yf:
            for j in range(3): k(f"ds_write_b128 v{vx1}, {vr(OY+4*j,4)} offset:{1024*j}")
        pr(6)
        e(27); cv(12); e(28); cv(13); e(29, 30, 31); cv(14)
        if not last:
            rv = rdV(t + 1)
            k(rv[0]); cv(15); k(rv[1]); k("s_nop 0")
        else:
            cv(15)
        k(f"{M16} {vr(Ob,16)}, {vr(V1[t&1],4)}, {vr(P+4,4)}, {vr(Ob,16)}")
    assert not side
    if o.get('fine') == 2: k.stamp(10)
    k("s_setprio 0")
    if not o.get('yfirst', True):
        for j in range(3): k(f"ds_write_b128 v{vx1}, {vr(OY+4*j,4)} offset:{1024*j}")
    k(f"s_mov_b32 s{s_q1}, {f2u(2.0**64):#x}\ns_mov_b32 s{s_q2}, 0x7f800000")
    k("s_waitcnt lgkmcnt(0)\ns_barrier")
    for j in (2, 0, 1): k(f"ds_read_b128 {vr(OY+4*j,4)}, v{vx2} offset:{1024*j}")
    t0, t1, t2 = vt[0], vt[1], vt[2]
    k("s_waitcnt lgkmcnt(2)")
    for i in (4, 5): k(f"v_pk_add_f32 {vr(O+2*i,2)}, {vr(O+2*i,2)}, {vr(OY+2*i,2)}")
    k(f"v_mov_b32 v{t0}, v{O+8}\nv_mov_b32 v{t1}, v{O+8}\ns_waitcnt lgkmcnt(0)")
    for i in range(4): k(f"v_pk_add_f32 {vr(O+2*i,2)}, {vr(O+2*i,2)}, {vr(OY+2*i,2)}")
    k(f"""v_permlane32_swap_b32 v{t0}, v{t1}
    v_add_f32 v{t2}, |v{O+8}|, |v{O+9}|
    v_add_f32 v{vt[3]}, |v{O+10}|, |v{O+11}|""")
    for i in range(0, 8, 2): k(f"v_add_f32 v{t2}, |v{O+i}|, v{t2}\nv_add_f32 v{vt[3]}, |v{O+i+1}|, v{vt[3]}")
    k(f"""v_cmp_lt_f32 vcc, {f2u(2.0**-64):#x}, v{t1}
    v_add_f32 v{t2}, v{t2}, v{vt[3]}
    v_cmp_gt_f32 {sr(sE,2)}, s{s_q1}, v{t1}
    v_cmp_gt_f32 {sr(sG,2)}, s{s_q2}, v{t2}
    s_and_b64 vcc, vcc, {sr(sE,2)}
    s_and_b64 vcc, vcc, {sr(sG,2)}
    s_cmp_eq_u64 vcc, -1
    s_cbranch_scc0 {L_slow}
    {L_store}:
    v_rcp_f32 v{t0}, v{t1}
    v_rcp_f32 v{t1}, v{t1}""")
    assert t0 % 2 == 0 and t1 == t0 + 1
    for i in range(4): k(f"v_pk_mul_f32 {vr(O+2*i,2)}, {vr(O+2*i,2)}, {vr(t0,2)}")
    for i in range(4): k(f"v_cvt_pk_bf16_f32 v{O+i}, v{O+2*i}, v{O+2*i+1}")
    k(f"buffer_store_dwordx4 {vr(O,4)}, v{vo1}, {sr(sO,4)}, s{s_o1} offen{sc}")
    for i in range(4, 6): k(f"v_pk_mul_f32 {vr(O+2*i,2)}, {vr(O+2*i,2)}, {vr(t0,2)}")
    for i in range(4, 6): k(f"v_cvt_pk_bf16_f32 v{O+i}, v{O+2*i}, v{O+2*i+1}")
    k(f"""s_mov_b32 exec_hi, 0
    buffer_store_dwordx2 {vr(O+4,2)}, v{vo2}, {sr(sO,4)}, s{s_o2} offen{sc}
    s_mov_b32 exec_hi, -1""")
    def slow():
        vV = vKA; vm = vKR; cnt = s_t3
        k(f"""{L_slow}:
        s_lshl_b32 s{so[0]}, s{s_tok}, 4
        s_add_u32 s{so[0]}, s{so[0]}, s{s_pr}
        s_add_u32 s{so[0]}, s{so[0]}, s{s_odd8}
        v_mov_b32 v{Qr}, 0
        v_mov_b32 v{Qr+1}, 0
        s_mov_b32 exec_hi, 0
        buffer_load_dwordx2 {vr(Qr,2)}, v{vr31}, {sr(sO,4)}, s{so[0]} offen
        s_mov_b32 exec_hi, -1
        s_add_u32 s{so[0]}, s{s_pa}, {80*32768}
        s_add_u32 s{so[1]}, s{s_pr}, {80*32768}
        s_add_u32 s{so[1]}, s{so[1]}, s{s_odd8}
        v_mov_b32 v{vm}, 0xff800000
        s_mov_b32 s{cnt}, 0""")
        L1 = k.label("mx")
        k(f"""{L1}:
        buffer_load_dwordx4 {vr(Km,4)}, v{vq}, {sr(sO,4)}, s{so[0]} offen
        buffer_load_dwordx2 {vr(Kr,2)}, v{vr31}, {sr(sO,4)}, s{so[1]} offen
        s_add_u32 s{so[0]}, s{so[0]}, 512
        s_add_u32 s{so[1]}, s{so[1]}, 512
        s_waitcnt vmcnt(0)
        {M8} {vr(S[0],16)}, {vr(Kr,2)}, {vr(Qr,2)}, 0
        {M16} {vr(S[0],16)}, {vr(Km,4)}, {vr(Qm,4)}, {vr(S[0],16)}""")
        for i in range(8): k(f"v_max3_f32 v{vm}, v{S[0]+2*i}, v{S[0]+2*i+1}, v{vm}")
        k(f"""s_add_u32 s{cnt}, s{cnt}, 1
        s_cmp_lt_u32 s{cnt}, 64
        s_cbranch_scc1 {L1}
        v_mov_b32 v{t0}, v{vm}
        v_permlane32_swap_b32 v{t0}, v{vm}
        v_max_f32 v{vm}, v{vm}, v{t0}""")
        for i in range(16): k(f"v_sub_f32 v{C+i}, 0, v{vm}\nv_mov_b32 v{O+i}, 0")
        k(f"""s_add_u32 s{so[0]}, s{s_pa}, {80*32768}
        s_add_u32 s{so[1]}, s{s_pr}, {80*32768}
        s_add_u32 s{so[1]}, s{so[1]}, s{s_odd8}
        s_mul_i32 s{so[2]}, s{s_h}, 320
        s_add_u32 s{so[2]}, s{so[2]}, {VIMG}
        v_lshrrev_b32 v{vV}, 5, v{vl}
        v_mul_u32_u24 v{vV}, 10240, v{vV}
        v_add3_u32 v{vV}, v{vV}, v{vr31}, s{so[2]}
        v_add_u32 v{vD[1]}, 20480, v{vV}
        v_cmp_gt_u32 vcc, 320, v{vr31}
        v_mov_b32 v{vD[2]}, {ONES}
        v_mov_b32 v{vDd[0]}, 40960
        v_cndmask_b32 v{vV}, v{vD[2]}, v{vV}, vcc
        v_cndmask_b32 v{vD[1]}, v{vD[2]}, v{vD[1]}, vcc
        v_cndmask_b32 v{vDd[0]}, 0, v{vDd[0]}, vcc
        s_mov_b32 s{cnt}, 0""")
        L2 = k.label("pv")
        k(f"""{L2}:
        buffer_load_dwordx4 {vr(Km,4)}, v{vq}, {sr(sO,4)}, s{so[0]} offen
        buffer_load_dwordx2 {vr(Kr,2)}, v{vr31}, {sr(sO,4)}, s{so[1]} offen
        buffer_load_dwordx4 {vr(V0,4)}, v{vV}, {sr(sO,4)}, 0 offen
        buffer_load_dwordx4 {vr(V1[0],4)}, v{vD[1]}, {sr(sO,4)}, 0 offen
        s_add_u32 s{so[0]}, s{so[0]}, 512
        s_add_u32 s{so[1]}, s{so[1]}, 512
        v_add_u32 v{vV}, v{vV}, v{vDd[0]}
        v_add_u32 v{vD[1]}, v{vD[1]}, v{vDd[0]}
        s_waitcnt vmcnt(0)
        {M8} {vr(S[0],16)}, {vr(Kr,2)}, {vr(Qr,2)}, {vr(C,16)}
        {M16} {vr(S[0],16)}, {vr(Km,4)}, {vr(Qm,4)}, {vr(S[0],16)}""")
        for i in range(16): k(f"v_exp_f32 v{S[0]+i}, v{S[0]+i}")
        for i in range(8): k(f"v_cvt_pk_bf16_f32 v{P+i}, v{S[0]+2*i}, v{S[0]+2*i+1}")
        k(f"""{M16} {vr(O,16)}, {vr(V0,4)}, {vr(P,4)}, {vr(O,16)}
        {M16} {vr(O,16)}, {vr(V1[0],4)}, {vr(P+4,4)}, {vr(O,16)}
        s_add_u32 s{cnt}, s{cnt}, 1
        s_cmp_lt_u32 s{cnt}, 64
        s_cbranch_scc1 {L2}
        v_mov_b32 v{t0}, v{O+8}
        v_mov_b32 v{t1}, v{O+8}
        v_permlane32_swap_b32 v{t0}, v{t1}
        s_branch {L_store}""")
    slow_code = deferred(slow)
    L3 = k.label("ld")
    k.stamp(8); k.nst = 8
    if o.get('fine1') or o.get('fine') == 2:
        k.maxst = 14; k.stamp = lambda *a, **kw: None
    k(f"""s_lshr_b32 s{c.s_f}, s2, 5
    s_lshl_b32 s{c.s_f}, s{c.s_f}, 5
    s_add_u32 s{c.s_f}, s{c.s_f}, s{s_h}
    s_lshl_b32 s{c.s_f}, s{c.s_f}, {FL}
    s_add_u32 s{c.s_f}, s{c.s_f}, {F2}""")
    k("; ---- P3 o-proj")
    P3 = P35(c, 3, D=o.get('D3', 20), D0=o.get('D30', 6), early=early)
    cin = o.get('cinit', True)
    P3.rowmap = o.get('row3', cin); P3.cinit = cin
    k(P3.ptr_load()); P3.ids()
    lw(c, L3)
    def handoff(vt, stmp, n, idle=None):
        Ln = k.label("nw0"); Ls = k.label("ns0")
        k("s_barrier")
        k(f"s_cmp_lg_u32 s{c.s_w}, 0\ns_cbranch_scc1 {Ls}")
        c.signal(c.s_f, vt)
        k(f"{Ls}:")
        if idle: idle()
        k(f"s_cmp_lg_u32 s{c.s_w}, 0\ns_cbranch_scc1 {Ln}")
        c.poll(c.s_p, n, vt, stmp)
        k(f"{Ln}:\ns_barrier")
    P3.setup()
    k(f"""s_lshr_b32 s{c.s_p}, s{P3.s_tb16}, 4
    s_lshl_b32 s{c.s_p}, s{c.s_p}, {FL+5}
    s_add_u32 s{c.s_p}, s{c.s_p}, {F2}
    s_waitcnt vmcnt({0 if cin else 3})""")
    def idle3():
        P3.keep_addr(); P3.load_cinit()
    handoff(P3.vt[0], P3.s_t0, 32, idle3 if cin else None)
    k.stamp('n')
    if o.get('fine') == 3: P3.fine = {0: 2, 1: 3, 4: 4, 8: 5, 12: 6, 16: 7, 19: 8}
    P3.main(init=False, resident=True)
    P3.lateD = o.get('lateD', True)
    if not P3.lateD: k("s_barrier")
    P3.epilogue()
    k(f"""s_lshr_b32 s{c.s_f}, s{P3.s_tb16}, 3
    s_lshl_b32 s{c.s_f}, s{c.s_f}, 5
    s_bfe_u32 s{P3.s_t0}, s{P3.s_tb16}, 0x10002
    s_lshl_b32 s{P3.s_t0}, s{P3.s_t0}, 3
    s_add_u32 s{c.s_f}, s{c.s_f}, s{P3.s_t0}
    s_add_u32 s{c.s_f}, s{c.s_f}, s{P3.s_c}
    s_lshl_b32 s{c.s_f}, s{c.s_f}, {FL}
    s_add_u32 s{c.s_f}, s{c.s_f}, {F3}""")
    Q4 = P4(c, D=o.get('D4', 12), D0=o.get('D40', 4)); Q4.ahead = o.get('ahead4', 4); Q4.thin = o.get('thin4'); Q4.nob = o.get('nob'); Q4.mcorr = o.get('mcorr', True); Q4.lstat = o.get('lstat', True); Q4.bsched = o.get('bsched', (1, 2)); Q4.tmaj = o.get('tmaj', True); Q4.pkall = o.get('pkall', False); Q4.jstart = o.get('jstart', 2)
    if Q4.tmaj: Q4.wsched = o.get('wsched', {4: (), 5: (0, 1), 6: (2, 3), 7: (4, 5, 6)})
    Q4.ids(); Q4.setup()
    k(f"""s_lshr_b32 s{c.s_p}, s{Q4.s_tb}, 2
    s_lshl_b32 s{c.s_p}, s{c.s_p}, {FL+5}
    s_add_u32 s{c.s_p}, s{c.s_p}, {F3}
    s_waitcnt vmcnt(0)""")
    k.stamp('n')
    handoff(Q4.st, Q4.s_t1, 16)
    k.stamp('n')
    Q4.fine2 = o.get('fine') == 41
    if o.get('fine') == 4: Q4.fine = {0: 2, 1: 3, 4: 4, 12: 5, 20: 6, 30: 7, 31: 8}
    noG = Q4.tmaj and o.get('e5', 4) >= o.get('pre5', 4) and o.get('noG', True)
    Q4.main(init=False, endbar=not noG)
    if not Q4.tmaj: Q4.epilogue(k.label("fin"))
    k(f"""s_lshr_b32 s{c.s_f}, s{Q4.s_tb}, 2
    s_lshl_b32 s{c.s_f}, s{c.s_f}, 5
    s_add_u32 s{c.s_f}, s{c.s_f}, s{Q4.s_g}
    s_lshl_b32 s{c.s_f}, s{c.s_f}, {FL}
    s_add_u32 s{c.s_f}, s{c.s_f}, {F4}""")
    pair5 = o.get('pair5', True)
    P5 = P35(c, 5, D=o.get('D5', 8 if pair5 else 12), D0=o.get('D50', 4), pair=pair5); P5.ahead = o.get('ahead5', 5); P5.rowmap = o.get('row5', True); P5.bar8 = o.get('bar8', True); P5.ofl = o.get('ofl', '')
    k("; ---- P5 down")
    k("s_nop 1"); k(P5.ptr_load()); P5.ids(); P5.setup()
    if pair5: P5.setup_pair()
    k(f"""s_lshr_b32 s{c.s_p}, s{P5.s_tb16}, 3
    s_lshl_b32 s{c.s_p}, s{c.s_p}, {FL+5}
    s_add_u32 s{c.s_p}, s{c.s_p}, {F4}
    s_waitcnt vmcnt(0)""")
    k.stamp('n')
    def idle5():
        P5.keep_addr(); P5.load_cinit()
    P5.cinit = cin and P3.rowmap == P5.rowmap
    handoff(P5.vt[0], P5.s_t0, 16, idle5 if P5.cinit else None)
    k.stamp('n')
    if o.get('fine') == 5: P5.fine = {0: 2, 1: 3, 8: 4, 16: 5, 28: 6, 40: 7, 53: 8}
    if pair5:
        if o.get('fine') == 5: P5.fine = {0: 2, 1: 3, 4: 4, 8: 5, 14: 6, 20: 7, 26: 8}
        P5.main_pair()
    else: P5.main(init=False)
    P5.epilogue()
    if o.get('dbgst') is not None:
        Ln = k.label("dn")
        k.stamp(14); k.stamp_real(15)
        k(f"s_cmp_lg_u32 s2, {o['dbgst']}\ns_cbranch_scc1 {Ln}\ns_cmp_lg_u32 s{s_w}, 0\ns_cbranch_scc1 {Ln}\ns_waitcnt lgkmcnt(0)\nv_mov_b32 v1, 0\ns_mov_b64 exec, 1")
        pos = [1, 2, 3, 5, 6, 7, 9, 10, 11, 13, 14, 15]
        src = [2, 3, 6, 7, 8, 9, 11, 12, 13, 14]
        for p_, i in zip(pos, src):
            k(f"s_sub_u32 s66, s{k.sT+2*i}, s{k.sT+2}\nv_mov_b32 v2, s66\nbuffer_store_dword v2, v1, {sr(sD,4)}, 0 offen offset:{4*p_}")
        k(f"s_sub_u32 s66, s{k.sT+30}, s{k.sT}\nv_mov_b32 v2, s66\nbuffer_store_dword v2, v1, {sr(sD,4)}, 0 offen offset:60\n{Ln}:\ns_endpgm")
        k(f"{c.L_end}:\ns_endpgm")
    else:
        c.finish()
    k(f"{L3}:")
    if early:
        P3.ld_setup()
        k(f"s_add_u32 s{P3.s_wo}, s{P3.s_wo}, {16*40960}\ns_waitcnt vmcnt(0)\ns_barrier")
        if early == 2:
            k(f"s_add_u32 s{P3.s_m0}, s{P3.s_m0}, 12288\ns_cmp_eq_u32 s{c.s_wl}, 3\ns_cselect_b32 s{P3.s_m0}, 57344, s{P3.s_m0}")
        P3.ld_chunk(0)
        k("s_waitcnt vmcnt(0)\ns_barrier")
    else:
        Lp = k.label("fp"); Lok = k.label("fpok")
        k(f"""s_mov_b32 s{P3.s_cnt}, 0
        s_waitcnt vmcnt(2)
        {Lp}:
        v_min_u32 v{vfp}, v{vfp}, v{vfp+1}
        v_min3_u32 v{vfp}, v{vfp}, v{vfp+2}, v{vfp+3}
        s_add_u32 s{P3.s_cnt}, s{P3.s_cnt}, 1
        v_cmp_ne_u32 vcc, 0, v{vfp}
        s_cmp_eq_u64 vcc, -1
        s_cbranch_scc1 {Lok}
        s_cmp_gt_u32 s{P3.s_cnt}, 0x40000
        s_cbranch_scc1 {Lok}
        s_mov_b32 s{P3.s_t0}, {FP}
        buffer_load_dwordx4 {vr(vfp,4)}, v{c.vl16}, {sr(c.sO,4)}, s{P3.s_t0} offen sc1
        s_waitcnt vmcnt(0)
        s_branch {Lp}
        {Lok}:""")
        P3.ld_setup()
        k("s_waitcnt vmcnt(0)\ns_barrier")
        for ch in range(5): P3.ld_chunk(ch)
        k("s_waitcnt vmcnt(0)\ns_barrier")
    Q4.ids(); Q4.ld_setup()
    CH4 = 4 * 112 * 1024
    if early == 2:
        k(f"s_add_u32 s{Q4.s_wo}, s{Q4.s_wo}, {CH4}"); Q4.ld_chunk(1); k(f"s_sub_u32 s{Q4.s_wo}, s{Q4.s_wo}, {2*CH4}")
    k("s_barrier")
    n4 = o.get('pre4', 3 if early == 2 else 2)
    for ch in range(n4):
        if early == 2 and ch == 1: k(f"s_add_u32 s{Q4.s_wo}, s{Q4.s_wo}, {CH4}")
        else: Q4.ld_chunk(ch)
    k("s_barrier")
    nF = o.get('nF', 5)
    for ch in range(n4, nF): Q4.ld_chunk(ch)
    if nF == 5: Q4.ld_cs()
    k(f"s_waitcnt vmcnt({7*(nF-1-(early == 2)) + (nF == 5)})\ns_barrier")
    for ch in range(nF, 5): Q4.ld_chunk(ch)
    if nF < 5: Q4.ld_cs()
    rg5 = None
    if o.get('reg5', True):
        rg5 = dict(base=20, addr=[8, 9, 10])
        s5 = 64
        def warm():
            if P5.rowmap: k(f"s_lshr_b32 s{Q4.s_t0}, s2, 5")
            else: k(f"""s_bfe_u32 s{Q4.s_t0}, s2, 0x10002
            s_lshl_b32 s{Q4.s_t0}, s{Q4.s_t0}, 2
            s_lshr_b32 s{Q4.s_t1}, s2, 6
            s_add_u32 s{Q4.s_t0}, s{Q4.s_t0}, s{Q4.s_t1}""")
            k(f"""s_lshl_b32 s{Q4.s_t1}, s{c.s_wl}, 3
            s_add_u32 s{Q4.s_t0}, s{Q4.s_t0}, s{Q4.s_t1}
            s_mul_i32 s{Q4.s_t0}, s{Q4.s_t0}, 5120
            s_add_u32 s{Q4.s_t0}, s{Q4.s_t0}, {WDP + 28*40960}""")
        def warm_chunk(j):
            k(f"s_add_u32 s{Q4.s_t1}, s{Q4.s_t0}, 4096")
            for i in range(5):
                k(f"buffer_load_dwordx4 {vr(rg5['base'] + 20*j + 4*i, 4)}, v{c.vl16}, {sr(c.sO,4)}, s{Q4.s_t0 if i < 4 else Q4.s_t1} offen offset:{(i%4)*1024}")
            k(f"s_add_u32 s{Q4.s_t0}, s{Q4.s_t0}, {4*40960}")
        Q4.warm = warm; Q4.warm_chunk = warm_chunk
    if Q4.lstat: Q4.ld_stats()
    e5 = o.get('e5', 4) if Q4.tmaj else 0
    if e5:
        ws7 = Q4.wsched[7]; Q4.wsched = dict(Q4.wsched); Q4.wsched[7] = ()
        sv = (k.s(), )
    Q4.ld_main(5, 1, init=False)
    if e5: k(f"s_mov_b32 s{c.s_p}, s{Q4.s_t0}")
    P5.ids(); P5.ld_setup()
    k(f"""v_add_u32 v8, s{P5.s_m0}, v{c.vl16}
    v_add_u32 v9, {3*P5.SLOT}, v8
    v_add_u32 v10, {6*P5.SLOT}, v8""")
    if e5:
        def wc(j):
            k(f"s_add_u32 s{c.s_f}, s{c.s_p}, 4096")
            for i in range(5):
                k(f"buffer_load_dwordx4 {vr(rg5['base'] + 20*j + 4*i, 4)}, v{c.vl16}, {sr(c.sO,4)}, s{c.s_p if i < 4 else c.s_f} offen offset:{(i%4)*1024}")
            k(f"s_add_u32 s{c.s_p}, s{c.s_p}, {4*40960}")
        th = o.get('thin5')
        if o.get('e5first'):
            for ch in range(e5):
                P5.ld_chunk(ch)
                if th is not None: k(f"s_waitcnt vmcnt({th})")
        for j in ws7:
            wc(j)
            if th is not None: k(f"s_waitcnt vmcnt({th})")
        if not o.get('e5first'):
            for ch in range(e5):
                P5.ld_chunk(ch)
                if th is not None and ch < e5 - 1: k(f"s_waitcnt vmcnt({th})")
    if not noG: k("s_barrier")
    n5 = max(e5, o.get('pre5', 4))
    for ch in range(e5, n5): P5.ld_chunk(ch)
    k("s_barrier")
    for ch in range(n5, 7): P5.ld_chunk(ch)
    if P5.bar8:
        k("s_waitcnt vmcnt(25)\ns_barrier")
        P5.ld_main8(rg5, 1 if pair5 else 0)
    else:
        k("s_waitcnt vmcnt(30)\ns_barrier")
        P5.ld_main(7, init=False)
    if K.STAMP and o.get('dbgst') is None:
        for i in range(9, 15): k.stamp(i)
        k.stamp_flush(c.sO, c.s_w)
    k("s_endpgm")
    k.lines += ['    ; ---- softmax fall-back with the true row maximum'] + slow_code + ['    ; ---- statistics workgroups'] + spare_code
    return k, (256, 512, max(P3.lds, Q4.lds, P5.lds, P35.HKEEP + 10240 + 512 if cin else 0))
```

```python
from ph2 import *
NAME = "sequential_preLN__softmax_full_mha__swiglu_ffn__prompt_kernel"

def gen(opt):
    o = opt('M')
    c = Ctx(NAME, True); k = c.k
    sO = c.sO; sWS = c.sWS; s_w = c.s_w; s_wl = c.s_wl; vl = c.vl; vl16 = c.vl16; sc = c.sc
    rot = o.get('rot', True); c.pdepth = o.get('pd', 1)
    sD = k.s(4)
    s_po = k.s(); s_cs = k.s(); vPA = k.v(); vPS = k.v(); sA = k.s(4); sB = k.s(4); sR = [k.s() for _ in range(5)]
    c.s0 = k.snext; c.v0 = k.vnext
    SLOT = 32768; NS = 4
    SL = 12288; VB = 3 * SL; PREP = 6 * SL; EXB = PREP
    sP = k.s(4); sX = sA; sW = sB; sQ = k.s(8); sWD = k.s(2); sPC = k.s(2)
    s_tb = k.s(); s_cg = k.s(); s_t0 = k.s(); s_t2 = k.s()
    s_ow, s_m0x, s_slot, s_delta, s_t1 = sR
    s_ox = k.s(); s_cnt = k.s(); s_rs = k.s(); s_msk = k.s()
    vt = [k.v() for _ in range(6)]
    vXA = [k.v() for _ in range(4)]; vWA = [k.v(), k.v()]
    vX = [k.v() for _ in range(4)]; vW = [k.v() for _ in range(4)]
    acc = [[k.v(16, 4) for _ in range(2)] for _ in range(2)]
    fx = [[k.v(4, 4) for _ in range(2)] for _ in range(2)]
    fw = [[k.v(4, 4) for _ in range(2)] for _ in range(2)]
    acs = k.v(16, 4); ones = k.v(4, 4); vpf = k.v(16, 4)
    XCH = NS * SLOT; NM, RS, CS = 0, 512, 1024
    L_spare = k.label("spare"); L_v = k.label("vpath"); L_J0 = k.label("J0"); L_comp = k.label("comp")
    k.kidx = 1; k.stamp_real(0); k.stamp(1)
    k(f"""s_load_dwordx4 {sr(sP,4)}, s[0:1], {KA_X}
    s_load_dwordx4 {sr(sD,4)}, s[0:1], {KA_DBG}
    s_cmp_ge_u32 s2, 256
    s_cbranch_scc1 {c.L_end}
    v_lshrrev_b32 v{vt[0]}, 6, v0
    v_and_b32 v{vl}, 63, v0
    v_readfirstlane_b32 s{s_w}, v{vt[0]}
    s_and_b32 s{s_t0}, s2, 3
    s_lshl_b32 s{s_t0}, s{s_t0}, 2
    s_bfe_u32 s{s_t1}, s2, 0x20003
    s_add_u32 s{s_tb}, s{s_t0}, s{s_t1}
    s_bfe_u32 s{s_t0}, s2, 0x10002
    s_lshr_b32 s{s_t1}, s2, 5""")
    if o.get('sfirst', True): k(f"s_sub_u32 s{s_t1}, s{s_t1}, s{s_t0}\ns_and_b32 s{s_t1}, s{s_t1}, 7")
    k(f"""s_lshl_b32 s{s_t0}, s{s_t0}, 3
    s_add_u32 s{s_cg}, s{s_t0}, s{s_t1}
    s_and_b32 s{s_wl}, s{s_w}, 3
    s_cmp_eq_u32 s{s_cg}, 15
    s_cbranch_scc1 {L_spare}
    s_cmp_ge_u32 s{s_w}, 4
    s_cbranch_scc1 {L_comp}
    v_lshrrev_b32 v{vt[0]}, 3, v{vl}
    v_lshl_add_u32 v{vt[0]}, s{s_w}, 5, v{vt[0]}
    v_mul_u32_u24 v{vt[0]}, 1280, v{vt[0]}
    v_lshrrev_b32 v{vt[1]}, 4, v{vl}
    v_and_b32 v{vt[2]}, 7, v{vl}
    v_xor_b32 v{vt[2]}, v{vt[2]}, v{vt[1]}
    v_lshl_add_u32 v{vX[0]}, v{vt[2]}, 4, v{vt[0]}
    v_xor_b32 v{vX[1]}, 64, v{vX[0]}
    v_add_u32 v{vX[2]}, {2*(8*1280-1024)}, v{vX[0]}
    v_add_u32 v{vX[1]}, {8*1280-1024}, v{vX[1]}
    v_add_u32 v{vX[3]}, {2*(8*1280-1024)}, v{vX[1]}
    v_lshl_add_u32 v{vt[0]}, s{s_w}, 4, v{vt[1]}
    v_mul_u32_u24 v{vt[0]}, 3840, v{vt[0]}
    v_and_b32 v{vt[2]}, 15, v{vl}
    v_lshlrev_b32 v{vt[3]}, 2, v{vt[1]}
    v_xor_b32 v{vt[2]}, v{vt[2]}, v{vt[3]}
    v_lshl_add_u32 v{vW[0]}, v{vt[2]}, 4, v{vt[0]}
    v_add_u32 v{vW[1]}, {4*3840-1024}, v{vW[0]}
    v_add_u32 v{vW[2]}, {2*(4*3840-1024)}, v{vW[0]}
    v_add_u32 v{vW[3]}, {3*(4*3840-1024)}, v{vW[0]}
    s_mul_i32 s{s_t0}, s{s_tb}, {128*1280}
    s_lshl_b32 s{s_t1}, s{s_cg}, 8
    s_lshl_b32 s{s_m0x}, s{s_w}, 12
    s_mov_b32 s{sX+2}, {128*1280}
    s_mov_b32 s{sX+3}, 0x20000
    s_sub_u32 s{sW+2}, {640*3840}, s{s_t1}
    s_mov_b32 s{sW+3}, 0x20000""")
    r0 = o.get('rot0', 1)
    if rot and not r0: k(f"s_and_b32 s{s_t2}, s2, 7\ns_lshl_b32 s{s_ox}, s{s_t2}, 7\ns_mul_i32 s{s_ow}, s{s_t2}, {64*3840}")
    else: k(f"s_mov_b32 s{s_ox}, 0\ns_mov_b32 s{s_ow}, 0")
    k(f"""s_waitcnt lgkmcnt(0)
    s_add_u32 s{sX}, s{sP}, s{s_t0}
    s_addc_u32 s{sX+1}, s{sP+1}, 0
    s_add_u32 s{sW}, s{sP+2}, s{s_t1}
    s_addc_u32 s{sW+1}, s{sP+3}, 0""")
    def dma_chunk(slot_const=None):
        if slot_const is not None: k(f"s_add_u32 m0, s{s_m0x}, {slot_const*SLOT}")
        else: k(f"s_add_u32 m0, s{s_m0x}, s{s_rs}")
        k(f"s_add_u32 s{s_t0}, s{s_ox}, 128")
        for i in range(4):
            k(f"buffer_load_dwordx4 v{vX[i]}, {sr(sX,4)}, s{s_ox} offen offset:{i*1024} lds")
        k(f"s_add_u32 m0, m0, 16384\ns_add_u32 s{s_t1}, s{s_ow}, {64*3840}")
        for i in range(4):
            k(f"buffer_load_dwordx4 v{vW[i]}, {sr(sW,4)}, s{s_ow} offen offset:{i*1024} lds")
        if r0 and slot_const == r0 - 1:
            k(f"s_and_b32 s{s_t2}, s2, 7\ns_add_u32 s{s_t2}, s{s_t2}, {r0}\ns_lshl_b32 s{s_ox}, s{s_t2}, 7\ns_mul_i32 s{s_ow}, s{s_t2}, {64*3840}")
        else:
            k(f"s_cmp_eq_u32 s{s_t0}, 1280\ns_cselect_b32 s{s_ox}, {128*r0}, s{s_t0}\ns_cselect_b32 s{s_ow}, {64*3840*r0}, s{s_t1}")
    def common_setup(ptrs=True):
        k(f"""s_mov_b64 {sr(sWS,2)}, {sr(sD+2,2)}
        s_movk_i32 s{sD+2}, 256
        s_mov_b32 s{sD+3}, 0x20000
        v_lshlrev_b32 v{vl16}, 4, v{vl}""")
        srd(k, sO, sWS, sWS + 1, WSEND)
        if ptrs: k(f"s_load_dwordx8 {sr(sQ,8)}, s[0:1], {KA_WO}\ns_load_dwordx2 {sr(sWD,2)}, s[0:1], {KA_WD}")
    def xaddr():
        k(f"""v_and_b32 v{vt[0]}, 31, v{vl}
        v_lshrrev_b32 v{vt[1]}, 5, v{vl}
        v_bfe_u32 v{vt[2]}, v{vl}, 1, 3
        v_xor_b32 v{vt[2]}, v{vt[2]}, v{vt[1]}
        v_lshlrev_b32 v{vt[2]}, 4, v{vt[2]}
        v_lshl_add_u32 v{vt[2]}, v{vt[0]}, 7, v{vt[2]}""")
    def advance(regs):
        k(f"s_cmp_eq_u32 s{s_slot}, {(NS-1)*SLOT}\ns_mov_b32 s{s_delta}, {SLOT}")
        k(f"s_cselect_b32 s{s_delta}, {(-(NS-1)*SLOT) & 0xffffffff}, s{s_delta}")
        k(f"s_add_u32 s{s_slot}, s{s_slot}, s{s_delta}")
        return [f"v_add_u32 v{r}, s{s_delta}, v{r}" for r in regs]
    def prep_decode(loads):
        pid, cb, st = s_t0, s_t2, s_ox
        R0, A_, B_, C_, u = sR
        Ld = k.label("pd"); Lg = k.label("pg")
        k(f"""s_lshl_b32 s{pid}, s2, 2
        s_add_u32 s{pid}, s{pid}, s{s_wl}
        s_mov_b32 s{B_}, 8
        s_mov_b32 s{C_}, 4
        v_bfe_u32 v{vt[2]}, v{vl}, 4, 1
        v_lshrrev_b32 v{vt[1]}, 5, v{vl}
        s_waitcnt lgkmcnt(0)
        s_cmp_ge_u32 s{pid}, 560
        s_cbranch_scc1 {Ld}
        s_mul_i32 s{u}, s{pid}, 4682
        s_lshr_b32 s{u}, s{u}, 16
        s_mul_i32 s{cb}, s{u}, 14
        s_sub_u32 s{cb}, s{pid}, s{cb}
        s_mul_i32 s{s_po}, s{u}, {112*1024}
        s_add_u32 s{s_po}, s{s_po}, {WGUP}
        s_mov_b32 s{s_cs}, {CSG}
        v_lshlrev_b32 v{vt[2]}, 11, v{vt[2]}
        v_lshl_add_u32 v{vt[3]}, v{vt[1]}, 9, v{vt[2]}""")
        if loads:
            k(f"""s_lshl_b32 s{R0}, s{u}, 4
            s_mov_b32 s{A_}, 0
            s_movk_i32 s{st}, 3456
            s_mov_b64 {sr(sA,2)}, {sr(sQ+4,2)}
            s_mov_b64 {sr(sB,2)}, {sr(sQ+6,2)}
            s_mov_b32 s{sA+2}, {640*3456}""")
        k(f"""s_branch {Lg}
        {Ld}:
        s_min_u32 s{pid}, s{pid}, 929
        s_cmp_lt_u32 s{pid}, 830
        s_movk_i32 s{cb}, 830
        s_cselect_b32 s{cb}, 560, s{cb}
        s_mov_b32 s{s_po}, {WOP}
        s_cselect_b32 s{s_po}, {WDP}, s{s_po}""")
        if loads:
            k(f"""s_cselect_b64 {sr(sA,2)}, {sr(sWD,2)}, {sr(sQ,2)}
            s_cselect_b32 s{A_}, 16, 20
            s_cselect_b32 s{R0}, 32, 40
            s_mov_b32 s{sA+2}, {640*1280}
            s_cselect_b32 s{sA+2}, {1728*1280}, s{sA+2}""")
        k(f"""s_sub_u32 s{cb}, s{pid}, s{cb}
        s_mul_i32 s{u}, s{cb}, 13108
        s_lshr_b32 s{u}, s{u}, 16
        s_mul_i32 s{st}, s{u}, 5
        s_sub_u32 s{cb}, s{cb}, s{st}
        s_mul_i32 s{st}, s{u}, {40*1024}
        s_add_u32 s{s_po}, s{s_po}, s{st}
        s_mov_b32 s{s_cs}, {WSEND}
        v_lshlrev_b32 v{vt[2]}, 9, v{vt[2]}
        v_lshl_add_u32 v{vt[3]}, v{vt[1]}, 11, v{vt[2]}""")
        if loads:
            k(f"""s_mul_i32 s{R0}, s{R0}, s{u}
            s_mul_i32 s{st}, s{u}, 160
            s_sub_u32 s{st}, s{st}, {16*160-16}
            s_cmp_ge_u32 s{pid}, 910
            s_cselect_b32 s{R0}, s{st}, s{R0}
            s_cselect_b32 s{A_}, 80, s{A_}
            s_cselect_b32 s{B_}, 20, 8
            s_cselect_b32 s{C_}, 40, 4
            s_movk_i32 s{st}, 1280
            s_mov_b64 {sr(sB,2)}, {sr(sA,2)}""")
        k(f"""{Lg}:
        s_lshl_b32 s{cb}, s{cb}, 1
        s_lshr_b32 s{pid}, s{s_w}, 2
        s_add_u32 s{pid}, s{pid}, s{cb}
        s_lshl_b32 s{u}, s{pid}, 12
        s_add_u32 s{s_po}, s{s_po}, s{u}
        s_lshl_b32 s{u}, s{pid}, 9
        s_add_u32 s{s_cs}, s{s_cs}, s{u}
        v_bfe_u32 v{vt[2]}, v{vl}, 2, 2
        v_lshl_add_u32 v{vt[3]}, v{vt[2]}, 7, v{vt[3]}
        v_and_b32 v{vt[2]}, 3, v{vl}
        v_lshl_add_u32 v{vt[3]}, v{vt[2]}, 3, v{vt[3]}
        s_lshl_b32 s{u}, s{s_w}, 12
        s_add_u32 s{u}, s{u}, {PREP}
        v_add_u32 v{vPA}, s{u}, v{vt[3]}""")
        if loads:
            k(f"""s_mov_b32 s{sB+2}, s{sA+2}
            s_mov_b32 s{sA+3}, 0x20000
            s_mov_b32 s{sB+3}, 0x20000
            v_mul_u32_u24 v{vt[2]}, s{C_}, v{vt[1]}
            v_bfe_u32 v{vt[3]}, v{vl}, 3, 2
            v_add_u32 v{vt[2]}, v{vt[2]}, v{vt[3]}
            v_mul_u32_u24 v{vt[2]}, s{st}, v{vt[2]}
            v_and_b32 v{vt[3]}, 7, v{vl}
            v_lshl_add_u32 v{vPS}, v{vt[3]}, 4, v{vt[2]}
            s_mul_i32 s{R0}, s{R0}, s{st}
            s_lshl_b32 s{cb}, s{pid}, 7
            s_add_u32 s{R0}, s{R0}, s{cb}
            s_mul_i32 s{A_}, s{A_}, s{st}
            s_mul_i32 s{B_}, s{B_}, s{st}
            s_add_u32 s{A_}, s{A_}, s{R0}
            s_add_u32 s{C_}, s{A_}, s{B_}
            s_add_u32 s{B_}, s{B_}, s{R0}""")
    TD = o.get('TD', 0)
    sTX, sTW = sQ, sQ + 4; s_tx, s_tw = sWD, sWD + 1; vTX, vTW = vXA[0], vXA[1]
    def touch():
        k(f"""s_mov_b64 exec, 0xf
        buffer_load_dword v{vXA[2]}, v{vTX}, {sr(sTX,4)}, s{s_tx} offen
        s_mov_b64 exec, 0xff
        buffer_load_dword v{vXA[3]}, v{vTW}, {sr(sTW,4)}, s{s_tw} offen
        s_mov_b64 exec, -1
        s_add_u32 s{s_tx}, s{s_tx}, 128
        s_add_u32 s{s_tw}, s{s_tw}, {64*3840}
        s_cmp_eq_u32 s{s_tx}, 1280
        s_cselect_b32 s{s_tx}, 0, s{s_tx}
        s_cselect_b32 s{s_tw}, 0, s{s_tw}""")
    dma_chunk(0); dma_chunk(1)
    if TD:
        k(f"""s_mov_b64 {sr(sTX,2)}, {sr(sP,2)}
        s_mov_b32 s{sTX+2}, {2048*1280}
        s_mov_b32 s{sTX+3}, 0x20000
        s_mov_b64 {sr(sTW,2)}, {sr(sP+2,2)}
        s_mov_b32 s{sTW+2}, {640*3840}
        s_mov_b32 s{sTW+3}, 0x20000
        s_lshr_b32 s{s_t0}, s2, 3
        s_lshl_b32 s{s_t0}, s{s_t0}, 2
        s_add_u32 s{s_t0}, s{s_t0}, s{s_w}
        s_lshl_b32 s{s_t1}, s{s_t0}, 2
        s_and_b32 s{s_t2}, s2, 3
        s_lshl_b32 s{s_t2}, s{s_t2}, 9
        s_add_u32 s{s_t1}, s{s_t1}, s{s_t2}
        v_add_u32 v{vTX}, s{s_t1}, v{vl}
        v_mul_u32_u24 v{vTX}, 1280, v{vTX}
        s_lshr_b32 s{s_t1}, s{s_t0}, 1
        s_mul_i32 s{s_t1}, s{s_t1}, 3840
        s_and_b32 s{s_t0}, s{s_t0}, 1
        s_lshl_b32 s{s_t0}, s{s_t0}, 10
        s_add_u32 s{s_t1}, s{s_t1}, s{s_t0}
        s_bfe_u32 s{s_t0}, s2, 0x10002
        s_lshl_b32 s{s_t0}, s{s_t0}, 11
        s_add_u32 s{s_t1}, s{s_t1}, s{s_t0}
        v_lshl_add_u32 v{vTW}, v{vl}, 7, s{s_t1}
        s_mov_b32 s{s_tx}, s{s_ox}
        s_mov_b32 s{s_tw}, s{s_ow}""")
        for _ in range(TD + 1): touch()
    common_setup(ptrs=not TD)
    k(f"""s_mov_b32 s{s_rs}, {3*SLOT}
    s_waitcnt vmcnt({8 + (2*TD+2 if TD else 0)})
    s_barrier""")
    k.stamp(2)
    dma_chunk(2)
    L = k.label("hloop"); Lz = k.label("hz"); Lzx = k.label("hzx"); Lnz = k.label("hnz")
    nt = 7 - TD if TD else 0
    def hit(n, tch, vm):
        if n <= 0: return
        L = k.label("hloop")
        k(f"s_mov_b32 s{s_cnt}, {n}\n{L}:\ns_waitcnt vmcnt({vm})\ns_barrier")
        dma_chunk()
        if tch: touch()
        k(f"""s_add_u32 s{s_rs}, s{s_rs}, {SLOT}
        s_and_b32 s{s_rs}, s{s_rs}, {NS*SLOT-1}
        s_sub_u32 s{s_cnt}, s{s_cnt}, 1
        s_cmp_lg_u32 s{s_cnt}, 0
        s_cbranch_scc1 {L}""")
    hit(nt, True, 8 if not TD else 10); hit(7 - nt, False, 8)
    if TD: k(f"s_load_dwordx8 {sr(sQ,8)}, s[0:1], {KA_WO}\ns_load_dwordx2 {sr(sWD,2)}, s[0:1], {KA_WD}")
    Lw0 = k.label("hw0")
    k(f"""s_cmp_eq_u32 s{s_w}, 0
    s_cbranch_scc1 {Lw0}
    s_waitcnt vmcnt(8)
    s_barrier
    s_waitcnt vmcnt(0)
    s_barrier
    s_branch {Lnz}
    {Lw0}:
    v_and_b32 v{vt[3]}, 15, v{vl}
    v_lshlrev_b32 v{vt[3]}, 4, v{vt[3]}
    buffer_load_dword v{vt[4]}, v{vt[3]}, {sr(sD,4)}, 0 offen sc1
    s_waitcnt vmcnt(9)
    s_barrier
    s_waitcnt vmcnt(1)
    s_barrier
    s_mov_b32 s{s_t1}, 0
    {Lz}:
    s_waitcnt vmcnt(0)
    v_cmp_ne_u32 vcc, 0, v{vt[4]}
    s_add_u32 s{s_t1}, s{s_t1}, 1
    s_cmp_eq_u64 vcc, -1
    s_cbranch_scc1 {Lzx}
    s_cmp_gt_u32 s{s_t1}, 0x40000
    s_cbranch_scc1 {Lzx}
    buffer_load_dword v{vt[4]}, v{vt[3]}, {sr(sD,4)}, 0 offen sc1
    s_branch {Lz}
    {Lzx}:
    s_mov_b32 m0, {XCH}
    s_lshl_b32 s{s_t0}, s{s_tb}, 10
    s_add_u32 s{s_t0}, s{s_t0}, {LN1}
    buffer_load_dwordx4 v{vl16}, {sr(sO,4)}, s{s_t0} offen sc1 lds
    {Lnz}:
    s_waitcnt vmcnt(0)""")
    k.stamp(3)
    k(f"s_barrier\ns_branch {L_J0}")
    k(f"""{L_comp}:
    s_getpc_b64 {sr(sPC,2)}
    L_pf_here:
    s_lshr_b32 s{s_t0}, s2, 3
    s_add_u32 s{s_t0}, s{s_t0}, {28 if o.get('sfirst', True) else 0}
    s_and_b32 s{s_t0}, s{s_t0}, 31
    s_lshl_b32 s{s_t0}, s{s_t0}, 2
    s_add_u32 s{s_t0}, s{s_t0}, s{s_wl}
    s_lshl_b32 s{s_t0}, s{s_t0}, 10
    s_sub_u32 s{sPC}, s{sPC}, L_pf_here - {NAME}
    s_subb_u32 s{sPC+1}, s{sPC+1}, 0
    s_cmp_gt_u32 s{s_t0}, L_code_end - {NAME} - 1024
    s_cbranch_scc1 L_pf_skip
    v_lshl_add_u32 v{vt[0]}, v{vl}, 4, s{s_t0}
    global_load_dwordx4 {vr(vpf,4)}, v{vt[0]}, {sr(sPC,2)}
    L_pf_skip:
    s_waitcnt lgkmcnt(0)""")
    if o.get('touch'):
        k(f"""s_mov_b64 {sr(sX,2)}, {sr(sP,2)}
        s_mov_b32 s{sX+2}, {2048*1280}
        s_mov_b32 s{sX+3}, 0x20000
        s_mov_b64 {sr(sW,2)}, {sr(sP+2,2)}
        s_mov_b32 s{sW+2}, {640*3840}
        s_mov_b32 s{sW+3}, 0x20000
        s_lshr_b32 s{s_t0}, s2, 3
        s_lshl_b32 s{s_t0}, s{s_t0}, 2
        s_add_u32 s{s_t0}, s{s_t0}, s{s_wl}
        s_mul_i32 s{s_t1}, s{s_t0}, 5
        v_lshrrev_b32 v{vt[0]}, 4, v{vl}
        v_add_u32 v{vt[0]}, s{s_t1}, v{vt[0]}
        v_mul_u32_u24 v{vt[0]}, 3840, v{vt[0]}
        v_and_b32 v{vt[1]}, 15, v{vl}
        v_lshl_add_u32 v{vt[0]}, v{vt[1]}, 7, v{vt[0]}
        s_bfe_u32 s{s_t1}, s2, 0x10002
        s_lshl_b32 s{s_t1}, s{s_t1}, 11
        s_add_u32 s{s_t2}, s{s_t1}, {4*3840}
        v_lshlrev_b32 v{vt[1]}, 7, v{vl}
        s_mul_i32 s{s_t0}, s{s_t0}, {40*128}
        s_and_b32 s{s_ox}, s2, 3
        s_mul_i32 s{s_ox}, s{s_ox}, {512*1280}
        s_add_u32 s{s_t0}, s{s_t0}, s{s_ox}
        buffer_load_dword v{vpf+4}, v{vt[0]}, {sr(sW,4)}, s{s_t1} offen
        s_mov_b32 exec_hi, 0xff
        buffer_load_dword v{vpf+5}, v{vt[1]}, {sr(sX,4)}, s{s_t0} offen
        s_mov_b64 exec, 0xffff
        buffer_load_dword v{vpf+6}, v{vt[0]}, {sr(sW,4)}, s{s_t2} offen
        s_mov_b64 exec, -1""")
    common_setup()
    if o.get('ptouch'):
        k(f"""v_lshlrev_b32 v{vt[0]}, {o['ptouch']}, v{vl}
        s_lshl_b32 s{s_t0}, s{s_wl}, {o['ptouch'] + 6}
        buffer_load_dword v{vpf+4}, v{vt[0]}, {sr(sO,4)}, s{s_t0} offen sc1""")
    xaddr()
    k(f"""s_lshr_b32 s{s_t0}, s{s_wl}, 1
    s_and_b32 s{s_t1}, s{s_wl}, 1
    s_lshl_b32 s{s_t2}, s{s_t0}, 13
    v_add_u32 v{vXA[0]}, s{s_t2}, v{vt[2]}""")
    for s in range(1, 4): k(f"v_xor_b32 v{vXA[s]}, {32*s}, v{vXA[0]}")
    k(f"""v_bfe_u32 v{vt[2]}, v{vl}, 2, 2
    v_lshl_add_u32 v{vt[3]}, v{vt[1]}, 3, v{vt[2]}
    v_lshlrev_b32 v{vt[3]}, 8, v{vt[3]}
    s_lshl_b32 s{s_t2}, s{s_t1}, 1
    s_add_u32 s{s_t2}, s{s_t2}, s{s_t0}
    v_xor_b32 v{vt[2]}, s{s_t2}, v{vt[2]}
    v_lshl_add_u32 v{vt[3]}, v{vt[2]}, 6, v{vt[3]}
    v_bfe_u32 v{vt[2]}, v{vl}, 4, 1
    v_lshl_add_u32 v{vt[3]}, v{vt[2]}, 5, v{vt[3]}
    v_and_b32 v{vt[2]}, 3, v{vl}
    v_lshl_add_u32 v{vt[3]}, v{vt[2]}, 3, v{vt[3]}
    v_add_u32 v{vWA[0]}, 16384, v{vt[3]}
    v_xor_b32 v{vWA[1]}, 64, v{vWA[0]}
    s_mov_b32 s{s_slot}, 0""")
    for i in range(4): k(f"v_mov_b32 v{ones+i}, 0x3f803f80")
    def reads(buf, s):
        out = []
        for mt in range(2):
            out.append(f"ds_read_b128 {vr(fx[buf][mt],4)}, v{vXA[s]} offset:{mt*4096}")
        for nt in range(2):
            for rd in range(2):
                out.append(f"ds_read_b64_tr_b16 {vr(fw[buf][nt]+2*rd,2)}, v{vWA[nt]} offset:{(16*s+4*rd)*256}")
        return [out[2], out[3], out[0], out[1], out[4], out[5]]
    def mfmas(buf, vpath, first):
        m = []
        for nt in range(2):
            for mt in range(2):
                a, b = (fx[buf][mt], fw[buf][nt]) if vpath else (fw[buf][nt], fx[buf][mt])
                m.append(f"{M16} {vr(acc[nt][mt],16)}, {vr(a,4)}, {vr(b,4)}, {'0' if first else vr(acc[nt][mt],16)}")
        m.append(f"{M16} {vr(acs,16)}, {vr(ones,4)}, {vr(fw[buf][0],4)}, {'0' if first else vr(acs,16)}")
        return m
    def chunk(vpath, last, first=False):
        for s in range(3):
            k("s_waitcnt lgkmcnt(0)")
            m = mfmas(s & 1, vpath, first and s == 0); rd = reads((s + 1) & 1, s + 1)
            ad = []
            if not last and s == 0: ad = [None]
            for i in range(5):
                k(m[i])
                for x in rd[2*i:2*i+2]: k(x)
                if i == 3 and not last:
                    if s == 0: adv[:] = advance([vXA[0], vXA[1], vXA[2], vXA[3], vWA[0], vWA[1]])
                    k(adv[s])
        k("s_waitcnt lgkmcnt(0)")
        m = mfmas(1, vpath, False)
        if last:
            for x in m: k(x)
            return
        k(m[0])
        for x in adv[3:]: k(x)
        k(m[1])
        k("s_barrier")
        rd = reads(0, 0)
        for x in rd[:3]: k(x)
        k(m[2])
        for x in rd[3:]: k(x)
        k(m[3]); k(m[4])
    adv = []
    def mainloop(vpath):
        k("s_barrier")
        k.stamp(2)
        for x in reads(0, 0): k(x)
        chunk(vpath, False, first=True)
        L = k.label("loop")
        if o.get('fine') == 1:
            for j in range(8):
                k.stamp(5 + j); chunk(vpath, False)
            k.stamp(13)
        else:
            k(f"s_mov_b32 s{s_cnt}, 8\n{L}:")
            chunk(vpath, False)
            k(f"s_sub_u32 s{s_cnt}, s{s_cnt}, 1\ns_cmp_lg_u32 s{s_cnt}, 0\ns_cbranch_scc1 {L}")
        chunk(vpath, True)
        k.stamp(3)
    def epilogue(vpath):
        t = vt
        la = fx[0][0]; rg = k.v(32, 4); hoff = t[3]
        k(f"""v_and_b32 v{t[0]}, 31, v{vl}
        s_lshl_b32 s{s_t2}, s{s_t2}, 7
        s_add_u32 s{s_ox}, s{s_t2}, {XCH}
        v_lshl_add_u32 v{t[2]}, v{t[0]}, 2, s{s_ox}
        s_lshl_b32 s{s_ow}, s{s_t0}, 8
        s_add_u32 s{s_ow}, s{s_ow}, {XCH}
        v_lshl_add_u32 v{t[1]}, v{t[0]}, 2, s{s_ow}
        v_lshrrev_b32 v{hoff}, 5, v{vl}
        v_lshlrev_b32 v{hoff}, 4, v{hoff}
        s_cmp_lt_u32 s{s_cg}, 5
        s_cselect_b32 s{s_cnt}, {f2u(QSCALE):#x}, 1.0
        ds_write_b32 v{t[2]}, v{acs} offset:{CS}
        s_waitcnt lgkmcnt(0)
        s_barrier""")
        if not vpath:
            k(f"""ds_read_b32 v{la+0}, v{t[1]} offset:{NM}
            ds_read_b32 v{la+2}, v{t[1]} offset:{RS}
            ds_read_b32 v{la+4}, v{t[1]} offset:{NM+128}
            ds_read_b32 v{la+6}, v{t[1]} offset:{RS+128}
            v_add_u32 v{t[5]}, s{s_ox}, v{hoff}
            v_xor_b32 v{t[4]}, 128, v{t[5]}""")
            for nt in range(2):
                for j in range(4):
                    k(f"ds_read_b128 {vr(rg+16*nt+4*j,4)}, v{t[5] if nt==0 else t[4]} offset:{CS+32*j}")
            k(f"""v_lshlrev_b32 v{t[0]}, 4, v{t[0]}
            v_lshl_add_u32 v{t[0]}, v{hoff}, 11, v{t[0]}
            s_lshl_b32 s{s_ox}, s{s_cg}, 19
            s_lshl_b32 s{s_ow}, s{s_t2}, 10
            s_add_u32 s{s_ox}, s{s_ox}, s{s_ow}
            s_lshl_b32 s{s_ow}, s{s_tb}, 11
            s_add_u32 s{s_ox}, s{s_ox}, s{s_ow}
            s_lshl_b32 s{s_ow}, s{s_t0}, 10
            s_add_u32 s{s_ox}, s{s_ox}, s{s_ow}
            s_waitcnt lgkmcnt(4)
            v_mov_b32 v{la+1}, v{la+0}
            v_mul_f32 v{la+3}, s{s_cnt}, v{la+2}
            v_mul_f32 v{la+2}, s{s_cnt}, v{la+2}
            v_mov_b32 v{la+5}, v{la+4}
            v_mul_f32 v{la+7}, s{s_cnt}, v{la+6}
            v_mul_f32 v{la+6}, s{s_cnt}, v{la+6}""")
            for nt in range(2):
                if nt == 1: k("s_waitcnt lgkmcnt(0)")
                for mt in range(2):
                    A = acc[nt][mt]
                    for p in range(8):
                        k(f"v_pk_fma_f32 {vr(A+2*p,2)}, {vr(rg+16*nt+2*p,2)}, {vr(la+4*mt,2)}, {vr(A+2*p,2)}")
                    for p in range(8):
                        k(f"v_pk_mul_f32 {vr(A+2*p,2)}, {vr(A+2*p,2)}, {vr(la+4*mt+2,2)}")
                    for p in range(8):
                        k(f"v_cvt_pk_bf16_f32 v{A+p}, v{A+2*p}, v{A+2*p+1}")
                    k(f"s_xor_b32 s{s_ow}, s{s_ox}, {(nt*4*32768) | (mt*512)}")
                    k(f"s_add_u32 s{s_rs}, s{s_ow}, {2*32768}")
                    for jp in range(2):
                        k(f"v_permlane32_swap_b32 v{A+4*jp}, v{A+4*jp+2}\nv_permlane32_swap_b32 v{A+4*jp+1}, v{A+4*jp+3}")
                    k(f"buffer_store_dwordx4 {vr(A,4)}, v{t[0]}, {sr(sO,4)}, s{s_ow} offen{sc}")
                    k(f"buffer_store_dwordx4 {vr(A+4,4)}, v{t[0]}, {sr(sO,4)}, s{s_rs} offen{sc}")
        else:
            rg2 = k.v(32, 4)
            k(f"""v_xor_b32 v{t[4]}, 128, v{t[2]}
            ds_read_b32 v{la+2}, v{t[4]} offset:{CS}
            v_add_u32 v{t[5]}, s{s_ow}, v{hoff}""")
            for mt in range(2):
                for j in range(4):
                    k(f"ds_read_b128 {vr(rg+16*mt+4*j,4)}, v{t[5]} offset:{NM+128*mt+32*j}")
                    k(f"ds_read_b128 {vr(rg2+16*mt+4*j,4)}, v{t[5]} offset:{RS+128*mt+32*j}")
            va = [la + 4, la + 5]
            k(f"""s_sub_u32 s{s_ox}, s{s_cg}, 10
            s_lshl_b32 s{s_ox}, s{s_ox}, 7
            s_lshr_b32 s{s_ow}, s{s_t2}, 2
            s_add_u32 s{s_ox}, s{s_ox}, s{s_ow}
            v_add_u32 v{t[0]}, s{s_ox}, v{t[0]}
            v_mul_u32_u24 v{hoff}, 640, v{hoff}
            v_lshl_add_u32 v{va[0]}, v{t[0]}, 4, v{hoff}
            v_xor_b32 v{t[0]}, 32, v{t[0]}
            v_lshl_add_u32 v{va[1]}, v{t[0]}, 4, v{hoff}
            s_lshl_b32 s{s_ox}, s{s_tb}, 1
            s_add_u32 s{s_ox}, s{s_ox}, s{s_t0}
            s_mul_i32 s{s_ox}, s{s_ox}, 81920
            s_add_u32 s{s_ox}, s{s_ox}, {VIMG}
            v_mov_b32 v{la+0}, v{acs}
            v_mov_b32 v{la+1}, v{acs}
            s_waitcnt lgkmcnt(8)
            v_mov_b32 v{la+3}, v{la+2}""")
            for mt in range(2):
                if mt == 1: k("s_waitcnt lgkmcnt(0)")
                for nt in range(2):
                    A = acc[nt][mt]
                    for p in range(8):
                        k(f"v_pk_fma_f32 {vr(A+2*p,2)}, {vr(rg+16*mt+2*p,2)}, {vr(la+2*nt,2)}, {vr(A+2*p,2)}")
                    for p in range(8):
                        k(f"v_pk_mul_f32 {vr(A+2*p,2)}, {vr(A+2*p,2)}, {vr(rg2+16*mt+2*p,2)}")
                    for p in range(8):
                        k(f"v_cvt_pk_bf16_f32 v{A+p}, v{A+2*p}, v{A+2*p+1}")
                    k(f"s_add_u32 s{s_ow}, s{s_ox}, {40960*mt}\ns_add_u32 s{s_rs}, s{s_ox}, {40960*mt+20480}")
                    k(f"buffer_store_dwordx4 {vr(A,4)}, v{va[nt]}, {sr(sO,4)}, s{s_ow} offen{sc}")
                    k(f"buffer_store_dwordx4 {vr(A+4,4)}, v{va[nt]}, {sr(sO,4)}, s{s_rs} offen{sc}")
    k(f"s_cmp_ge_u32 s{s_cg}, 10\ns_cbranch_scc1 {L_v}")
    vsave = k.vnext
    mainloop(False); epilogue(False); k(f"s_branch {L_J0}")
    k.vnext = vsave
    k(f"{L_v}:")
    mainloop(True); epilogue(True)
    if o.get('fine') == 1:
        k.maxst = 14; k.stamp = lambda *a, **kw: None
    k(f"{L_J0}:\ns_setprio 0")
    k.stamp(4)
    prep_decode(True)
    k(f"""s_mov_b32 s{c.s_p}, s{s_cg}
    s_lshl_b32 s{c.s_f}, s{s_cg}, 5
    s_add_u32 s{c.s_f}, s{c.s_f}, s{s_tb}
    s_lshl_b32 s{c.s_f}, s{c.s_f}, {FL}
    s_add_u32 s{c.s_f}, s{c.s_f}, {F1}""")
    def spare():
        o4 = acs; xb = acc[0][0]; sm = [fw[0][0], fw[0][0] + 1]; sq = [fw[0][0] + 2, fw[0][0] + 3]
        k(f"""{L_spare}:
        v_lshrrev_b32 v{vt[0]}, 3, v{vl}
        v_lshl_add_u32 v{vt[0]}, s{s_w}, 4, v{vt[0]}
        v_mul_u32_u24 v{vt[0]}, 1280, v{vt[0]}
        v_and_b32 v{vt[2]}, 7, v{vl}
        v_lshl_add_u32 v{vX[0]}, v{vt[2]}, 4, v{vt[0]}
        v_add_u32 v{vX[1]}, {8*1280}, v{vX[0]}
        s_mul_i32 s{s_t0}, s{s_tb}, {128*1280}
        s_mov_b32 s{sX+2}, {128*1280}
        s_mov_b32 s{sX+3}, 0x20000
        s_waitcnt lgkmcnt(0)
        s_add_u32 s{sX}, s{sP}, s{s_t0}
        s_addc_u32 s{sX+1}, s{sP+1}, 0""")
        for g in range(2):
            for i in range(10): k(f"buffer_load_dwordx4 {vr(xb+40*g+4*i,4)}, v{vX[g]}, {sr(sX,4)}, 0 offen offset:{128*i}")
        common_setup()
        srd(k, sW, sWS, sWS + 1, CSG + ZERO_BYTES)
        o4 = xb + 80
        k(f"""s_mov_b32 s{s_t0}, {ONES}
        v_and_b32 v{vt[0]}, 0x70, v{vl16}
        v_lshlrev_b32 v{vt[1]}, 4, v0
        s_lshl_b32 s{s_t1}, s{s_tb}, 13
        s_add_u32 s{s_t1}, s{s_t1}, {CSG}
        s_mov_b32 s{s_msk}, 0x3f803f80""")
        for i in range(4): k(f"v_mov_b32 v{o4+i}, 0x3f803f80\nv_mov_b32 v{o4+4+i}, 0")
        nz = (ZERO_BYTES + 131071) // 131072
        for z in range(nz):
            k(f"buffer_store_dwordx4 {vr(o4+4,4)}, v{vt[1]}, {sr(sW,4)}, s{s_t1} offen{sc}\ns_add_u32 s{s_t1}, s{s_t1}, 131072")
        k(f"s_mov_b64 exec, 0xff\nbuffer_store_dwordx4 {vr(o4,4)}, v{vt[0]}, {sr(sO,4)}, s{s_t0} offen{sc}\ns_mov_b64 exec, -1")
        st = o4 + 8
        for i in range(4): k(f"v_mov_b32 v{st+i}, 0")
        for g in range(2):
            for i in range(10):
                k(f"s_waitcnt vmcnt({19 - 10*g - i + nz + 1})")
                for j in range(4):
                    x = xb + 40 * g + 4 * i + j
                    k(f"v_dot2c_f32_bf16 v{st+2*g}, s{s_msk}, v{x}\nv_dot2c_f32_bf16 v{st+2*g+1}, v{x}, v{x}")
        for ctl in ("quad_perm:[1,0,3,2]", "quad_perm:[2,3,0,1]", "row_half_mirror"):
            for i in range(4): k(f"v_add_f32_dpp v{st+i}, v{st+i}, v{st+i} {ctl} row_mask:0xf bank_mask:0xf")
        Ln = k.label("sn")
        k(f"""v_and_b32 v{vt[2]}, 1, v{vl}
        v_cmp_eq_u32 vcc, 1, v{vt[2]}
        v_lshrrev_b32 v{vt[3]}, 3, v{vl}
        v_lshl_add_u32 v{vt[3]}, v{vt[2]}, 3, v{vt[3]}
        v_cndmask_b32 v{st}, v{st}, v{st+2}, vcc
        v_cndmask_b32 v{st+1}, v{st+1}, v{st+3}, vcc
        v_lshlrev_b32 v{vt[3]}, 2, v{vt[3]}
        v_mul_f32 v{st}, {f2u(-1.0/640):#x}, v{st}
        v_mul_f32 v{st+1}, {f2u(1.0/640):#x}, v{st+1}
        v_fma_f32 v{st+1}, -v{st}, v{st}, v{st+1}
        v_max_f32 v{st+1}, 0, v{st+1}
        v_add_f32 v{st+1}, {f2u(1e-5):#x}, v{st+1}
        v_rsq_f32 v{st+1}, v{st+1}
        s_lshl_b32 s{s_t1}, s{s_w}, 6
        v_add_u32 v{vt[3]}, s{s_t1}, v{vt[3]}
        ds_write_b32 v{vt[3]}, v{st}
        ds_write_b32 v{vt[3]}, v{st+1} offset:512
        s_waitcnt vmcnt(0) lgkmcnt(0)
        s_barrier
        s_cmp_lg_u32 s{s_w}, 4
        s_cbranch_scc1 {Ln}
        ds_read_b128 {vr(st,4)}, v{vl16}
        s_lshl_b32 s{s_t0}, s{s_tb}, 10
        s_add_u32 s{s_t0}, s{s_t0}, {LN1}
        s_waitcnt lgkmcnt(0)
        buffer_store_dwordx4 {vr(st,4)}, v{vl16}, {sr(sO,4)}, s{s_t0} offen{sc}
        s_waitcnt vmcnt(0)
        s_lshl_b32 s{s_t0}, s{s_tb}, 4
        v_mov_b32 v{vt[2]}, 1
        v_mov_b32 v{vt[3]}, 0
        s_mov_b64 exec, 1
        buffer_store_dword v{vt[2]}, v{vt[3]}, {sr(sD,4)}, s{s_t0} offen sc1
        s_mov_b64 exec, -1
        {Ln}:""")
        k.stamp(2); k.stamp(3)
        k(f"s_branch {L_J0}")
    def deferred(fn):
        n = len(k.lines); fn(); out = k.lines[n:]; del k.lines[n:]; return out
    spare_code = deferred(spare)
    c.reset()
    prio = o.get('prio', (18, 6, 3, 1))
    s_h = k.s(); s_pa = k.s(); s_pr = k.s(); s_odd8 = k.s(); s_tok = k.s()
    s_t0 = k.s(); s_t1 = k.s(); s_t2 = k.s(); s_t3 = k.s()
    so = [k.s() for _ in range(3)]; s_d = k.s(); s_mo = k.s(); s_ms = k.s(); s_q1 = k.s(); s_q2 = k.s()
    sG = k.s(2); sE = k.s(2)
    vq = k.v(); vr31 = k.v(); vKA = k.v(); vKR = k.v(); vVA = k.v(); vqr = k.v()
    vt0 = k.v(6, 2); vt = list(range(vt0, vt0 + 6))
    S = [k.v(32, 4), k.v(32, 4)]; O = k.v(16, 4); OY = k.v(16, 4); P = k.v(8, 4)
    Qm = k.v(4, 4); QmY = k.v(4, 4); Qr = k.v(2); Km = k.v(4, 4); Kr = k.v(2); V0 = k.v(4, 4); V1 = [k.v(4, 4), k.v(4, 4)]
    PR = k.v(16, 4); C = S[1]; vcs = k.v(16, 4); vsel = k.v(16, 4); vca = k.v(); vfp = k.v(4, 4); vo1 = k.v(); vo2 = k.v(); vx1 = k.v(); vx2 = k.v(); s_o1 = k.s(); s_o2 = k.s()
    L_slow = k.label("slow"); L_store = k.label("store"); L_dv = k.label("dv"); L_dd = k.label("dd")
    vD = [k.v() for _ in range(3)]; vDd = [k.v() for _ in range(3)]
    k(f"""s_and_b32 s{s_t0}, s2, 7
    s_lshl_b32 s{s_t0}, s{s_t0}, 2
    s_bfe_u32 s{s_t1}, s2, 0x20003
    s_add_u32 s{s_h}, s{s_t0}, s{s_t1}
    s_lshr_b32 s{s_q1}, s{s_h}, 1
    s_mul_i32 s{s_t0}, s{s_q1}, 5
    s_and_b32 s{s_t1}, s{s_h}, 1
    s_lshl_b32 s{s_odd8}, s{s_t1}, 3
    s_mul_i32 s{s_t1}, s{s_t1}, 3
    s_add_u32 s{s_pa}, s{s_t0}, s{s_t1}
    s_lshl_b32 s{s_pa}, s{s_pa}, 15
    s_add_u32 s{s_pr}, s{s_t0}, 2
    s_lshl_b32 s{s_pr}, s{s_pr}, 15
    s_lshr_b32 s{s_q2}, s{s_wl}, 1
    s_and_b32 s{s_t3}, s{s_w}, 1
    s_mul_i32 s{s_mo}, s{s_q2}, 6144
    s_cmp_ge_u32 s{s_w}, 4
    s_cbranch_scc1 {L_dv}
    s_lshl_b32 s{s_t0}, s{s_q2}, 14
    s_lshl_b32 s{s_t1}, s{s_t3}, 10
    s_add_u32 s{s_mo}, s{s_mo}, s{s_t1}
    s_add_u32 s{s_t0}, s{s_t0}, s{s_t1}
    s_add_u32 s{s_t0}, s{s_t0}, {80*32768}
    s_add_u32 s{s_t1}, s{s_pa}, s{s_t0}
    s_add_u32 s{s_t2}, s{s_pr}, s{s_t0}
    v_add_u32 v{vD[0]}, s{s_t1}, v{vl16}
    v_add_u32 v{vD[1]}, 32768, v{vD[0]}
    v_add_u32 v{vD[2]}, s{s_t2}, v{vl16}
    v_mov_b32 v{vDd[0]}, 2048
    v_mov_b32 v{vDd[1]}, 2048
    v_mov_b32 v{vDd[2]}, 2048
    s_movk_i32 s{s_ms}, 2048
    s_branch {L_dd}
    {L_dv}:
    s_mul_i32 s{s_t1}, s{s_t3}, 3072
    s_add_u32 s{s_mo}, s{s_mo}, s{s_t1}
    s_add_u32 s{s_mo}, s{s_mo}, {VB}
    s_mul_i32 s{s_t0}, s{s_q2}, {128*10240}
    s_mul_i32 s{s_t1}, s{s_h}, 320
    s_add_u32 s{s_t0}, s{s_t0}, s{s_t1}
    s_add_u32 s{s_t0}, s{s_t0}, {VIMG}
    s_mul_i32 s{s_t3}, s{s_t3}, 192
    s_movk_i32 s{s_ms}, 1024
    v_mov_b32 v{vt[4]}, {ONES}
    v_mov_b32 v{vt[5]}, {16*10240}""")
    for i in range(3):
        k(f"""v_add_u32 v{vt[0]}, s{s_t3}, v{vl}
        s_add_u32 s{s_t3}, s{s_t3}, 64
        v_mul_u32_u24 v{vt[1]}, 3121, v{vt[0]}
        v_lshrrev_b32 v{vt[1]}, 16, v{vt[1]}
        v_mul_u32_u24 v{vt[2]}, 21, v{vt[1]}
        v_sub_u32 v{vt[2]}, v{vt[0]}, v{vt[2]}
        v_cmp_gt_u32 vcc, 20, v{vt[2]}
        v_cmp_gt_u32 {sr(sE,2)}, 16, v{vt[1]}
        v_mul_u32_u24 v{vt[1]}, 10240, v{vt[1]}
        v_lshl_add_u32 v{vt[1]}, v{vt[2]}, 4, v{vt[1]}
        s_and_b64 vcc, vcc, {sr(sE,2)}
        v_add_u32 v{vt[1]}, s{s_t0}, v{vt[1]}
        v_cndmask_b32 v{vD[i]}, v{vt[4]}, v{vt[1]}, vcc
        v_cndmask_b32 v{vDd[i]}, 0, v{vt[5]}, vcc""")
    k(f"""{L_dd}:
    s_lshr_b32 s{s_t3}, s{s_w}, 2
    s_mul_i32 s{s_t0}, s{s_t3}, 6144
    v_and_b32 v{vr31}, 31, v{vl}
    v_lshlrev_b32 v{vr31}, 4, v{vr31}
    v_lshrrev_b32 v{vt[1]}, 5, v{vl}
    v_lshl_add_u32 v{vq}, v{vt[1]}, 15, v{vr31}
    v_add_u32 v{vt[2]}, s{s_t0}, v{vr31}
    v_lshl_add_u32 v{vKA}, v{vt[1]}, 11, v{vt[2]}
    v_add_u32 v{vKR}, s{s_odd8}, v{vt[2]}
    v_add_u32 v{vKR}, 4096, v{vKR}
    v_mul_u32_u24 v{vt[0]}, 336, v{vt[1]}
    v_add_u32 v{vt[0]}, v{vt[0]}, v{vt[2]}
    v_add_u32 v{vVA}, {VB}, v{vt[0]}
    v_cmp_lt_u32 vcc, {20*16}, v{vr31}
    v_mov_b32 v{vt[0]}, 0x40000
    v_xor_b32 v{vt[1]}, s{s_t3}, v{vt[1]}
    v_cndmask_b32 v{vVA}, v{vVA}, v{vt[0]}, vcc
    v_lshl_add_u32 v{vqr}, v{vt[1]}, 9, v{vr31}
    s_lshr_b32 s{s_tok}, s2, 5
    s_lshl_b32 s{s_tok}, s{s_tok}, 8
    s_lshl_b32 s{s_t0}, s{s_wl}, 6
    s_add_u32 s{s_tok}, s{s_tok}, s{s_t0}
    s_lshl_b32 s{s_t0}, s{s_t3}, 5
    s_add_u32 s{s_tok}, s{s_tok}, s{s_t0}""")
    k(f"v_lshlrev_b32 v{vca}, 2, v{vl}\nv_mov_b32 v{vt[0]}, 0x3f803f80")
    for Tl, row in enumerate((0, 4, 1, 5)):
        k(f"v_cmp_eq_u32 vcc, {16*row}, v{vr31}")
        k(f"v_cndmask_b32 v{vsel+4*Tl}, 0, v{vt[0]}, vcc")
        for i in range(1, 4): k(f"v_mov_b32 v{vsel+4*Tl+i}, v{vsel+4*Tl}")
    k(f"""v_bfe_u32 v{vo2}, v{vl}, 4, 1
    v_mul_u32_u24 v{vo2}, {20*1024}, v{vo2}
    v_and_b32 v{vt[2]}, 15, v{vl}
    v_lshl_add_u32 v{vo1}, v{vt[2]}, 4, v{vo2}
    v_lshl_add_u32 v{vo2}, v{vt[2]}, 3, v{vo2}
    v_lshrrev_b32 v{vt[2]}, 5, v{vl}
    v_lshl_add_u32 v{vo1}, v{vt[2]}, 8, v{vo1}
    s_lshr_b32 s{s_t0}, s{s_tok}, 4
    s_mul_i32 s{s_t0}, s{s_t0}, {20*1024}
    s_add_u32 s{s_t0}, s{s_t0}, {OIMG}
    s_lshl_b32 s{s_o1}, s{s_h}, 9
    s_add_u32 s{s_o1}, s{s_o1}, s{s_t0}
    s_lshl_b32 s{s_o2}, s{s_h}, 7
    s_add_u32 s{s_o2}, s{s_o2}, s{s_t0}
    s_add_u32 s{s_o2}, s{s_o2}, {16*1024}
    s_mul_i32 s{s_t0}, s{s_wl}, 3072
    s_add_u32 s{s_t0}, s{s_t0}, {2*SL}
    s_add_u32 s{s_t1}, s{s_t0}, {VB}
    s_cmp_lt_u32 s{s_w}, 4
    s_cselect_b32 s{s_t2}, s{s_t0}, s{s_t1}
    s_cselect_b32 s{s_t1}, s{s_t1}, s{s_t0}
    v_add_u32 v{vx1}, s{s_t2}, v{vl16}
    v_add_u32 v{vx2}, s{s_t1}, v{vl16}""")
    early = o.get('early', 1)
    p1 = [f"s_mov_b32 m0, s{sR[4]}", "s_nop 0"]
    for i, (sd, so_) in enumerate(((sA, sR[0]), (sA, sR[2]), (sB, sR[1]), (sB, sR[3]))):
        p1.append(f"buffer_load_dwordx4 v{vPS}, {sr(sd,4)}, s{so_} offen lds")
        if i < 3: p1 += ["s_add_u32 m0, m0, 1024", "s_nop 0"]
    edge_prep = o.get('edge_prep', False)
    Lx = k.label("jx"); Lp = k.label("jp"); Lz = k.label("jz"); Lzx = k.label("jzx"); Lns = k.label("jns")
    part = o.get('part', True)
    vfl = k.v(); vpl = k.v(); vf2 = k.v(2); s_f0 = sG; s_f1 = sG + 1
    k(f"""s_mul_i32 s{s_t0}, s{s_q1}, 40
    s_add_u32 s{s_t1}, s{s_t0}, 39
    s_lshr_b32 s{s_t0}, s{s_t0}, 7
    s_lshr_b32 s{s_t1}, s{s_t1}, 7
    s_lshl_b32 s{s_f0}, s{s_t0}, {FL+5}
    s_lshl_b32 s{s_f1}, s{s_t1}, {FL+5}
    s_add_u32 s{s_f0}, s{s_f0}, {F1}
    s_add_u32 s{s_f1}, s{s_f1}, {F1}
    v_lshrrev_b32 v{vt[2]}, 4, v{vl}
    v_min_u32 v{vt[2]}, 2, v{vt[2]}
    v_mul_u32_u24 v{vt[2]}, 160, v{vt[2]}
    v_and_b32 v{vt[3]}, 15, v{vl}
    v_add_u32 v{vt[3]}, v{vt[3]}, v{vt[2]}
    v_lshlrev_b32 v{vfl}, {FL}, v{vt[3]}""")
    if part:
        k(f"""s_sub_u32 s{s_t1}, s{s_t1}, s{s_t0}
        v_and_b32 v{vt[2]}, 1, v{vl}
        v_mul_u32_u24 v{vt[2]}, s{s_t1}, v{vt[2]}
        v_bfe_u32 v{vt[3]}, v{vl}, 1, 1
        v_bfe_u32 v{vt[4]}, v{vl}, 2, 1
        v_bfe_u32 v{vt[5]}, v{vl}, 3, 1
        v_lshl_add_u32 v{vt[4]}, v{vt[5]}, 3, v{vt[4]}
        v_mad_u32_u24 v{vt[5]}, v{vt[3]}, 5, 5
        s_lshr_b32 s{s_t1}, s2, 5
        s_lshl_b32 s{s_t1}, s{s_t1}, 1
        v_add_u32 v{vt[3]}, s{s_t1}, v{vt[3]}
        v_cmp_gt_u32 vcc, 16, v{vl}
        v_cndmask_b32 v{vt[5]}, 0, v{vt[5]}, vcc
        v_cndmask_b32 v{vt[4]}, v{vt[3]}, v{vt[4]}, vcc
        v_add_u32 v{vt[2]}, v{vt[2]}, v{vt[5]}
        v_lshl_add_u32 v{vt[2]}, v{vt[2]}, 5, v{vt[4]}
        v_lshlrev_b32 v{vpl}, {FL}, v{vt[2]}""")
    k(f"""s_cmp_lg_u32 s{s_w}, 0
    s_cbranch_scc1 {Lzx}
    s_cmp_lg_u32 s{c.s_p}, 15
    s_cbranch_scc1 {Lzx}
    v_and_b32 v{vt[3]}, 15, v{vl}
    v_lshlrev_b32 v{vt[3]}, 4, v{vt[3]}
    s_mov_b32 s{s_t1}, 0
    {Lz}:
    buffer_load_dword v{vt[4]}, v{vt[3]}, {sr(sD,4)}, 0 offen sc1
    s_add_u32 s{s_t1}, s{s_t1}, 1
    s_cmp_gt_u32 s{s_t1}, 0x40000
    s_cbranch_scc1 {Lzx}
    s_waitcnt vmcnt(0)
    v_cmp_ne_u32 vcc, 0, v{vt[4]}
    s_cmp_eq_u64 vcc, -1
    s_cbranch_scc0 {Lz}
    {Lzx}:
    s_waitcnt vmcnt(0)""")
    k.stamp(5)
    k(f"""s_barrier
    s_cmp_lg_u32 s{s_w}, 0
    s_cbranch_scc1 {Lx}""")
    c.signal(c.s_f, vt[2])
    fl = [f"buffer_load_dword v{vf2}, v{vfl}, {sr(sO,4)}, s{s_f0} offen sc1", f"buffer_load_dword v{vf2+1}, v{vfl}, {sr(sO,4)}, s{s_f1} offen sc1"]
    k(f"s_mov_b32 s{s_t2}, 0\n{Lp}:")
    if part: k(f"buffer_load_dword v{vf2}, v{vpl}, {sr(sO,4)}, s{s_f0} offen sc1")
    else: k(fl[0]); k(fl[1])
    k(f"""s_add_u32 s{s_t2}, s{s_t2}, 1
    s_cmp_gt_u32 s{s_t2}, 0x40000
    s_cbranch_scc1 {Lx}
    s_waitcnt vmcnt(0)""")
    if not part: k(f"v_min_u32 v{vf2}, v{vf2}, v{vf2+1}")
    k(f"""v_cmp_ne_u32 vcc, 0, v{vf2}
    s_cmp_eq_u64 vcc, -1
    s_cbranch_scc0 {Lp}
    {Lx}:
    s_lshl_b32 s{s_t0}, s{s_tok}, 4
    s_add_u32 s{s_q1}, s{s_t0}, s{s_pa}
    s_xor_b32 s{s_t3}, s{s_q1}, 512
    s_andn2_b32 s{s_q2}, s{s_t0}, 512
    s_add_u32 s{s_q2}, s{s_q2}, s{s_pr}
    s_add_u32 s{s_q2}, s{s_q2}, s{s_odd8}
    s_barrier""")
    k.stamp(6)
    def dma(slot):
        out = [f"s_add_u32 m0, s{s_mo}, {slot*SL}", "s_nop 0"]
        for i in range(3):
            out.append(f"buffer_load_dwordx4 v{vD[i]}, {sr(sO,4)}, 0 offen sc1 lds")
            if i < 2: out.append(f"s_add_u32 m0, m0, s{s_ms}")
            out.append(f"v_add_u32 v{vD[i]}, v{vD[i]}, v{vDd[i]}")
        return out
    k("; ---- P2 attention")
    for x in dma(0): k(x)
    k(f"""buffer_load_dwordx4 {vr(Qm,4)}, v{vq}, {sr(sO,4)}, s{s_q1} offen
    buffer_load_dwordx4 {vr(QmY,4)}, v{vq}, {sr(sO,4)}, s{s_t3} offen
    buffer_load_dwordx2 {vr(Qr,2)}, v{vqr}, {sr(sO,4)}, s{s_q2} offen""")
    for x in dma(1): k(x)
    p2a = [f"ds_read_b64_tr_b16 {vr(PR+4*Tl+2*rd,2)}, v{vPA} offset:{rd*1024+Tl*32}" for Tl in range(4) for rd in range(2)]
    p2c = [f"{M16} {vr(vcs,16)}, {vr(vsel+4*Tl,4)}, {vr(PR+4*Tl,4)}, {'0' if Tl == 0 else vr(vcs,16)}" for Tl in range(4)]
    late = [f"buffer_store_dwordx4 {vr(PR+4*Tl,4)}, v{vl16}, {sr(sO,4)}, s{s_po} offen offset:{Tl*1024}{sc}" for Tl in range(4)]
    late += [f"buffer_atomic_add_f32 v{vcs}, v{vca}, {sr(sO,4)}, s{s_cs} offen", f"buffer_atomic_add_f32 v{vcs+1}, v{vca}, {sr(sO,4)}, s{s_cs} offen offset:256"]
    TL = o.get('TL', 3); TP = o.get('TP', 11); assert TL > 2
    fp2 = o.get('fp2', False); fpo = o.get('fpo', False)
    late_t = o.get('late_t', [TP + 1, TP + 2, TP + 2, TP + 4, TP + 5, TP + 6] if fp2 else [TP + 1, TP + 2, TP + 4, TP + 5, TP + 3, TP + 3]); TSIG = o.get('TSIG', TP + (15 if fpo else 11))
    assert not edge_prep
    M2B = "v_mfma_f32_32x32x4_2b_bf16"
    def rdK(t):
        o_ = ((t // 4) % 3) * SL + (t % 4) * 512
        return [f"ds_read_b128 {vr(Km,4)}, v{vKA} offset:{o_}", f"ds_read_b64 {vr(Kr,2)}, v{vKR} offset:{o_}"]
    def rdV(t):
        o_ = ((t // 4) % 3) * SL + (t % 4) * 1344
        return [f"ds_read_b128 {vr(V0,4)}, v{vVA} offset:{o_}", f"ds_read_b128 {vr(V1[t&1],4)}, v{vVA} offset:{o_+672}"]
    k("s_waitcnt vmcnt(3)\ns_barrier")
    k.stamp(7)
    for x in rdK(0): k(x)
    k(f"""s_waitcnt lgkmcnt(0)
    {M2B} {vr(S[0],32)}, {vr(Kr,2)}, {vr(Qr,2)}, 0
    {M16} {vr(S[0],16)}, {vr(Km,4)}, {vr(Qm,4)}, {vr(S[0],16)}
    {M16} {vr(S[0]+16,16)}, {vr(Km,4)}, {vr(QmY,4)}, {vr(S[0]+16,16)}""")
    for x in rdK(1) + rdV(0): k(x)
    side = []; vm = [0]
    def spread(n):
        for _ in range(n):
            if side:
                x = side.pop(0)
                if x is None: continue
                if x == 'KV': vm[0] = 0; continue
                k(x)
                if x.startswith('buffer_'): vm[0] += 1
    NT = 32
    for t in range(NT):
        s = S[t & 1]; sn = S[(t + 1) & 1]; pe = t // 4; last = t == NT - 1
        yf = 16 if last and o.get('yfirst', True) else 0
        Oa, Ob = (OY, O) if yf else (O, OY)
        e = lambda *a: [(k(f"v_exp_f32 v{s+(i^yf)}, v{s+(i^yf)}"), spread(1)) for i in a]
        cv = lambda i: k(f"v_cvt_pk_bf16_f32 v{P+i%8}, v{s+((2*i)^yf)}, v{s+((2*i)^yf)+1}")
        def pr(ph):
            if prio:
                q = (7 * t + ph - 19) % 28; tab = prio
                if 7 * t + ph >= 187 and o.get('lastprio', True): q = 7 * t + ph - 187; tab = (24, 8, 3, 2)
                cum = 0
                for lvl, ln in enumerate(tab):
                    if (q == cum and ln > 0) or (t == 0 and ph == 0 and cum <= q < cum + ln): k(f"s_setprio {3 - lvl}")
                    cum += ln
        z = lambda r: '0' if t == 0 else vr(r, 16)
        pr(0)
        e(0, 1, 2, 3)
        if not last:
            k("s_waitcnt lgkmcnt(2)")
            k(f"{M2B} {vr(sn,32)}, {vr(Kr,2)}, {vr(Qr,2)}, 0")
        pr(1)
        e(4); cv(0); e(5); cv(1); e(6, 7); cv(2); e(8); cv(3); e(9, 10)
        k("s_waitcnt lgkmcnt(0)")
        k(f"{M16} {vr(Oa,16)}, {vr(V0,4)}, {vr(P,4)}, {z(Oa)}")
        pr(2)
        e(11); cv(4); e(12); cv(5); e(13, 14)
        if not last: k(f"{M16} {vr(sn,16)}, {vr(Km,4)}, {vr(Qm,4)}, {vr(sn,16)}")
        pr(3)
        e(15); cv(6); e(16); cv(7); e(17, 18)
        k(f"{M16} {vr(Oa,16)}, {vr(V1[t&1],4)}, {vr(P+4,4)}, {vr(Oa,16)}")
        pr(4)
        e(19); cv(8); e(20); cv(9); e(21, 22)
        if not last: k(f"{M16} {vr(sn+16,16)}, {vr(Km,4)}, {vr(QmY,4)}, {vr(sn+16,16)}")
        if part and t == 1:
            Ln = k.label("nq"); k(f"s_cmp_lg_u32 s{s_w}, 0\ns_cbranch_scc1 {Ln}"); k(fl[0]); k(fl[1]); k(f"{Ln}:")
        if t % 4 == 2 and pe < 7:
            assert not side
            k(f"s_waitcnt vmcnt({2 if fp2 and t == TSIG - 4 else 0 if t in (TP - 1, TSIG - 4, 26) else vm[0]})")
            if part and t == 2:
                Ln = k.label("nq"); Lq = k.label("q")
                k(f"""s_cmp_lg_u32 s{s_w}, 0
                s_cbranch_scc1 {Ln}
                s_mov_b32 s{s_t2}, 0
                {Lq}:
                v_min_u32 v{vf2}, v{vf2}, v{vf2+1}
                s_add_u32 s{s_t2}, s{s_t2}, 1
                v_cmp_ne_u32 vcc, 0, v{vf2}
                s_cmp_eq_u64 vcc, -1
                s_cbranch_scc1 {Ln}
                s_cmp_gt_u32 s{s_t2}, 0x40000
                s_cbranch_scc1 {Ln}""")
                k(fl[0]); k(fl[1])
                k(f"s_waitcnt vmcnt(0)\ns_branch {Lq}\n{Ln}:")
            if early and t == 26:
                Ln = k.label("ne"); Lq = k.label("e")
                k(f"""s_cmp_lg_u32 s{s_w}, 0
                s_cbranch_scc1 {Ln}
                s_mov_b32 s{s_t2}, 0
                {Lq}:
                v_min_u32 v{vfp}, v{vfp}, v{vfp+1}
                v_min3_u32 v{vfp}, v{vfp}, v{vfp+2}, v{vfp+3}
                s_add_u32 s{s_t2}, s{s_t2}, 1
                v_cmp_ne_u32 vcc, 0, v{vfp}
                s_nop 0
                {"s_bfe_u32 vcc_lo, vcc_hi, 0x80013" if fpo else ""}
                {"s_cmp_eq_u32 vcc_lo, 0xff" if fpo else "s_cmp_eq_u64 vcc, -1"}
                s_cbranch_scc1 {Ln}
                s_cmp_gt_u32 s{s_t2}, 0x40000
                s_cbranch_scc1 {Ln}
                buffer_load_dwordx4 {vr(vfp,4)}, v{vl16}, {sr(sO,4)}, s{s_t0} offen sc1
                s_waitcnt vmcnt(0)
                s_branch {Lq}
                {Ln}:""")
                side += [f"s_lshr_b32 s{s_t0}, s2, 5"] if o.get('row3', o.get('cinit', True)) else [f"s_bfe_u32 s{s_t0}, s2, 0x10002", f"s_lshl_b32 s{s_t0}, s{s_t0}, 2", f"s_lshr_b32 s{s_t1}, s2, 6", f"s_add_u32 s{s_t0}, s{s_t0}, s{s_t1}"]
                side += [
                         f"s_lshl_b32 s{s_t1}, s{s_w}, 3", f"s_add_u32 s{s_t0}, s{s_t0}, s{s_t1}", f"s_mul_i32 s{s_t0}, s{s_t0}, 5120", f"s_add_u32 s{s_t0}, s{s_t0}, {WOP}",
                         f"s_mul_i32 s{s_t1}, s{s_w}, 5120"]
                for hf in range(2):
                    side += [f"s_add_u32 m0, s{s_t1}, {PREP + hf*8*5120}", f"s_add_u32 s{s_t2}, s{s_t0}, 4096"]
                    side += [f"buffer_load_dwordx4 v{vl16}, {sr(sO,4)}, s{s_t0} offen offset:{i*1024} lds" for i in range(4)]
                    side += ["s_add_u32 m0, m0, 4096", f"s_add_u32 s{s_t0}, s{s_t0}, {8*40960}", f"buffer_load_dwordx4 v{vl16}, {sr(sO,4)}, s{s_t2} offen lds"]
                sp = o.get('espace', 8)
                side[:] = [y for x in side for y in ([x] + [None] * sp if x.startswith('buffer') else [x])]
            k("s_barrier")
            if o.get('fine') == 2: k.stamp({0: 1, 1: 2, 2: 3, 3: 4, 4: 5, 5: 6, 6: 9}[pe])
            if pe < 6: side += dma((pe + 2) % 3) + ['KV']
            if t == TSIG - 4 or (fp2 and t == TSIG):
                assert t == TSIG - 4 or vm[0] == 0
                Ln = k.label("nf")
                k(f"s_cmp_lg_u32 s{s_w}, 0\ns_cbranch_scc1 {Ln}\ns_lshl_b32 s{s_t0}, s2, 2\ns_add_u32 s{s_t0}, s{s_t0}, {FP if t == TSIG - 4 else FP2}")
                c.signal(s_t0, vt[2]); k(f"{Ln}:")
        pr(5)
        if t < NT - 2:
            for x in rdK(t + 2): k(x)
        if t == TP:
            for x in p2a: k(x)
        if t == TL: side += p1
        if o.get('cs2', True):
            if TP < t <= TP + 2: k(p2c[2 * (t - TP - 1)]); side.insert(0, None); side.insert(0, None); side.insert(min(4, len(side)), p2c[2 * (t - TP - 1) + 1])
        elif TP < t <= TP + 4: k(p2c[t - TP - 1])
        for i_, x_ in enumerate(late_t):
            if int(x_) == t: side.append(late[i_])
        if t == (o.get('TF', 24) if early else 28):
            Ln = k.label("nl")
            if early: k(f"s_cmp_lg_u32 s{s_w}, 0\ns_cbranch_scc1 {Ln}")
            k(f"s_mov_b32 s{s_t0}, {FP}\nbuffer_load_dwordx4 {vr(vfp,4)}, v{vl16}, {sr(sO,4)}, s{s_t0} offen sc1\n{Ln}:")
        e(23); cv(10); e(24); cv(11); e(25, 26)
        k(f"{M16} {vr(Ob,16)}, {vr(V0,4)}, {vr(P,4)}, {z(Ob)}")
        if yf:
            for j in range(3): k(f"ds_write_b128 v{vx1}, {vr(OY+4*j,4)} offset:{1024*j}")
        pr(6)
        e(27); cv(12); e(28); cv(13); e(29, 30, 31); cv(14)
        if not last:
            rv = rdV(t + 1)
            k(rv[0]); cv(15); k(rv[1]); k("s_nop 0")
        else:
            cv(15)
        k(f"{M16} {vr(Ob,16)}, {vr(V1[t&1],4)}, {vr(P+4,4)}, {vr(Ob,16)}")
    assert not side
    if o.get('fine') == 2: k.stamp(10)
    k("s_setprio 0")
    if not o.get('yfirst', True):
        for j in range(3): k(f"ds_write_b128 v{vx1}, {vr(OY+4*j,4)} offset:{1024*j}")
    k(f"s_mov_b32 s{s_q1}, {f2u(2.0**64):#x}\ns_mov_b32 s{s_q2}, 0x7f800000")
    k("s_waitcnt lgkmcnt(0)\ns_barrier")
    for j in (2, 0, 1): k(f"ds_read_b128 {vr(OY+4*j,4)}, v{vx2} offset:{1024*j}")
    t0, t1, t2 = vt[0], vt[1], vt[2]
    k("s_waitcnt lgkmcnt(2)")
    for i in (4, 5): k(f"v_pk_add_f32 {vr(O+2*i,2)}, {vr(O+2*i,2)}, {vr(OY+2*i,2)}")
    k(f"v_mov_b32 v{t0}, v{O+8}\nv_mov_b32 v{t1}, v{O+8}\ns_waitcnt lgkmcnt(0)")
    for i in range(4): k(f"v_pk_add_f32 {vr(O+2*i,2)}, {vr(O+2*i,2)}, {vr(OY+2*i,2)}")
    k(f"""v_permlane32_swap_b32 v{t0}, v{t1}
    v_add_f32 v{t2}, |v{O+8}|, |v{O+9}|
    v_add_f32 v{vt[3]}, |v{O+10}|, |v{O+11}|""")
    for i in range(0, 8, 2): k(f"v_add_f32 v{t2}, |v{O+i}|, v{t2}\nv_add_f32 v{vt[3]}, |v{O+i+1}|, v{vt[3]}")
    k(f"""v_cmp_lt_f32 vcc, {f2u(2.0**-64):#x}, v{t1}
    v_add_f32 v{t2}, v{t2}, v{vt[3]}
    v_cmp_gt_f32 {sr(sE,2)}, s{s_q1}, v{t1}
    v_cmp_gt_f32 {sr(sG,2)}, s{s_q2}, v{t2}
    s_and_b64 vcc, vcc, {sr(sE,2)}
    s_and_b64 vcc, vcc, {sr(sG,2)}
    s_cmp_eq_u64 vcc, -1
    s_cbranch_scc0 {L_slow}
    {L_store}:
    v_rcp_f32 v{t0}, v{t1}
    v_rcp_f32 v{t1}, v{t1}""")
    assert t0 % 2 == 0 and t1 == t0 + 1
    for i in range(4): k(f"v_pk_mul_f32 {vr(O+2*i,2)}, {vr(O+2*i,2)}, {vr(t0,2)}")
    for i in range(4): k(f"v_cvt_pk_bf16_f32 v{O+i}, v{O+2*i}, v{O+2*i+1}")
    k(f"buffer_store_dwordx4 {vr(O,4)}, v{vo1}, {sr(sO,4)}, s{s_o1} offen{sc}")
    for i in range(4, 6): k(f"v_pk_mul_f32 {vr(O+2*i,2)}, {vr(O+2*i,2)}, {vr(t0,2)}")
    for i in range(4, 6): k(f"v_cvt_pk_bf16_f32 v{O+i}, v{O+2*i}, v{O+2*i+1}")
    k(f"""s_mov_b32 exec_hi, 0
    buffer_store_dwordx2 {vr(O+4,2)}, v{vo2}, {sr(sO,4)}, s{s_o2} offen{sc}
    s_mov_b32 exec_hi, -1""")
    def slow():
        vV = vKA; vm = vKR; cnt = s_t3
        k(f"""{L_slow}:
        s_lshl_b32 s{so[0]}, s{s_tok}, 4
        s_add_u32 s{so[0]}, s{so[0]}, s{s_pr}
        s_add_u32 s{so[0]}, s{so[0]}, s{s_odd8}
        v_mov_b32 v{Qr}, 0
        v_mov_b32 v{Qr+1}, 0
        s_mov_b32 exec_hi, 0
        buffer_load_dwordx2 {vr(Qr,2)}, v{vr31}, {sr(sO,4)}, s{so[0]} offen
        s_mov_b32 exec_hi, -1
        s_add_u32 s{so[0]}, s{s_pa}, {80*32768}
        s_add_u32 s{so[1]}, s{s_pr}, {80*32768}
        s_add_u32 s{so[1]}, s{so[1]}, s{s_odd8}
        v_mov_b32 v{vm}, 0xff800000
        s_mov_b32 s{cnt}, 0""")
        L1 = k.label("mx")
        k(f"""{L1}:
        buffer_load_dwordx4 {vr(Km,4)}, v{vq}, {sr(sO,4)}, s{so[0]} offen
        buffer_load_dwordx2 {vr(Kr,2)}, v{vr31}, {sr(sO,4)}, s{so[1]} offen
        s_add_u32 s{so[0]}, s{so[0]}, 512
        s_add_u32 s{so[1]}, s{so[1]}, 512
        s_waitcnt vmcnt(0)
        {M8} {vr(S[0],16)}, {vr(Kr,2)}, {vr(Qr,2)}, 0
        {M16} {vr(S[0],16)}, {vr(Km,4)}, {vr(Qm,4)}, {vr(S[0],16)}""")
        for i in range(8): k(f"v_max3_f32 v{vm}, v{S[0]+2*i}, v{S[0]+2*i+1}, v{vm}")
        k(f"""s_add_u32 s{cnt}, s{cnt}, 1
        s_cmp_lt_u32 s{cnt}, 64
        s_cbranch_scc1 {L1}
        v_mov_b32 v{t0}, v{vm}
        v_permlane32_swap_b32 v{t0}, v{vm}
        v_max_f32 v{vm}, v{vm}, v{t0}""")
        for i in range(16): k(f"v_sub_f32 v{C+i}, 0, v{vm}\nv_mov_b32 v{O+i}, 0")
        k(f"""s_add_u32 s{so[0]}, s{s_pa}, {80*32768}
        s_add_u32 s{so[1]}, s{s_pr}, {80*32768}
        s_add_u32 s{so[1]}, s{so[1]}, s{s_odd8}
        s_mul_i32 s{so[2]}, s{s_h}, 320
        s_add_u32 s{so[2]}, s{so[2]}, {VIMG}
        v_lshrrev_b32 v{vV}, 5, v{vl}
        v_mul_u32_u24 v{vV}, 10240, v{vV}
        v_add3_u32 v{vV}, v{vV}, v{vr31}, s{so[2]}
        v_add_u32 v{vD[1]}, 20480, v{vV}
        v_cmp_gt_u32 vcc, 320, v{vr31}
        v_mov_b32 v{vD[2]}, {ONES}
        v_mov_b32 v{vDd[0]}, 40960
        v_cndmask_b32 v{vV}, v{vD[2]}, v{vV}, vcc
        v_cndmask_b32 v{vD[1]}, v{vD[2]}, v{vD[1]}, vcc
        v_cndmask_b32 v{vDd[0]}, 0, v{vDd[0]}, vcc
        s_mov_b32 s{cnt}, 0""")
        L2 = k.label("pv")
        k(f"""{L2}:
        buffer_load_dwordx4 {vr(Km,4)}, v{vq}, {sr(sO,4)}, s{so[0]} offen
        buffer_load_dwordx2 {vr(Kr,2)}, v{vr31}, {sr(sO,4)}, s{so[1]} offen
        buffer_load_dwordx4 {vr(V0,4)}, v{vV}, {sr(sO,4)}, 0 offen
        buffer_load_dwordx4 {vr(V1[0],4)}, v{vD[1]}, {sr(sO,4)}, 0 offen
        s_add_u32 s{so[0]}, s{so[0]}, 512
        s_add_u32 s{so[1]}, s{so[1]}, 512
        v_add_u32 v{vV}, v{vV}, v{vDd[0]}
        v_add_u32 v{vD[1]}, v{vD[1]}, v{vDd[0]}
        s_waitcnt vmcnt(0)
        {M8} {vr(S[0],16)}, {vr(Kr,2)}, {vr(Qr,2)}, {vr(C,16)}
        {M16} {vr(S[0],16)}, {vr(Km,4)}, {vr(Qm,4)}, {vr(S[0],16)}""")
        for i in range(16): k(f"v_exp_f32 v{S[0]+i}, v{S[0]+i}")
        for i in range(8): k(f"v_cvt_pk_bf16_f32 v{P+i}, v{S[0]+2*i}, v{S[0]+2*i+1}")
        k(f"""{M16} {vr(O,16)}, {vr(V0,4)}, {vr(P,4)}, {vr(O,16)}
        {M16} {vr(O,16)}, {vr(V1[0],4)}, {vr(P+4,4)}, {vr(O,16)}
        s_add_u32 s{cnt}, s{cnt}, 1
        s_cmp_lt_u32 s{cnt}, 64
        s_cbranch_scc1 {L2}
        v_mov_b32 v{t0}, v{O+8}
        v_mov_b32 v{t1}, v{O+8}
        v_permlane32_swap_b32 v{t0}, v{t1}
        s_branch {L_store}""")
    slow_code = deferred(slow)
    L3 = k.label("ld")
    k.stamp(8); k.nst = 8
    if o.get('fine1') or o.get('fine') == 2:
        k.maxst = 14; k.stamp = lambda *a, **kw: None
    k(f"""s_lshr_b32 s{c.s_f}, s2, 5
    s_lshl_b32 s{c.s_f}, s{c.s_f}, 5
    s_add_u32 s{c.s_f}, s{c.s_f}, s{s_h}
    s_lshl_b32 s{c.s_f}, s{c.s_f}, {FL}
    s_add_u32 s{c.s_f}, s{c.s_f}, {F2}""")
    k("; ---- P3 o-proj")
    P3 = P35(c, 3, D=o.get('D3', 20), D0=o.get('D30', 6), early=early)
    cin = o.get('cinit', True)
    P3.rowmap = o.get('row3', cin); P3.cinit = cin
    k(P3.ptr_load()); P3.ids()
    lw(c, L3)
    def handoff(vt, stmp, n, idle=None):
        Ln = k.label("nw0"); Ls = k.label("ns0")
        k("s_barrier")
        k(f"s_cmp_lg_u32 s{c.s_w}, 0\ns_cbranch_scc1 {Ls}")
        c.signal(c.s_f, vt)
        k(f"{Ls}:")
        if idle: idle()
        k(f"s_cmp_lg_u32 s{c.s_w}, 0\ns_cbranch_scc1 {Ln}")
        c.poll(c.s_p, n, vt, stmp)
        k(f"{Ln}:\ns_barrier")
    P3.setup()
    k(f"""s_lshr_b32 s{c.s_p}, s{P3.s_tb16}, 4
    s_lshl_b32 s{c.s_p}, s{c.s_p}, {FL+5}
    s_add_u32 s{c.s_p}, s{c.s_p}, {F2}
    s_waitcnt vmcnt({0 if cin else 3})""")
    def idle3():
        P3.keep_addr(); P3.load_cinit()
    handoff(P3.vt[0], P3.s_t0, 32, idle3 if cin else None)
    k.stamp('n')
    if o.get('fine') == 3: P3.fine = {0: 2, 1: 3, 4: 4, 8: 5, 12: 6, 16: 7, 19: 8}
    P3.main(init=False, resident=True)
    P3.lateD = o.get('lateD', True)
    if not P3.lateD: k("s_barrier")
    P3.epilogue()
    k(f"""s_lshr_b32 s{c.s_f}, s{P3.s_tb16}, 3
    s_lshl_b32 s{c.s_f}, s{c.s_f}, 5
    s_bfe_u32 s{P3.s_t0}, s{P3.s_tb16}, 0x10002
    s_lshl_b32 s{P3.s_t0}, s{P3.s_t0}, 3
    s_add_u32 s{c.s_f}, s{c.s_f}, s{P3.s_t0}
    s_add_u32 s{c.s_f}, s{c.s_f}, s{P3.s_c}
    s_lshl_b32 s{c.s_f}, s{c.s_f}, {FL}
    s_add_u32 s{c.s_f}, s{c.s_f}, {F3}""")
    Q4 = P4(c, D=o.get('D4', 12), D0=o.get('D40', 4)); Q4.ahead = o.get('ahead4', 4); Q4.thin = o.get('thin4'); Q4.nob = o.get('nob'); Q4.mcorr = o.get('mcorr', True); Q4.lstat = o.get('lstat', True); Q4.bsched = o.get('bsched', (1, 2)); Q4.tmaj = o.get('tmaj', True); Q4.pkall = o.get('pkall', False); Q4.jstart = o.get('jstart', 2)
    if Q4.tmaj: Q4.wsched = o.get('wsched', {4: (), 5: (0, 1), 6: (2, 3), 7: (4, 5, 6)})
    Q4.ids(); Q4.setup()
    k(f"""s_lshr_b32 s{c.s_p}, s{Q4.s_tb}, 2
    s_lshl_b32 s{c.s_p}, s{c.s_p}, {FL+5}
    s_add_u32 s{c.s_p}, s{c.s_p}, {F3}
    s_waitcnt vmcnt(0)""")
    k.stamp('n')
    handoff(Q4.st, Q4.s_t1, 16)
    k.stamp('n')
    Q4.fine2 = o.get('fine') == 41
    if o.get('fine') == 4: Q4.fine = {0: 2, 1: 3, 4: 4, 12: 5, 20: 6, 30: 7, 31: 8}
    noG = Q4.tmaj and o.get('e5', 4) >= o.get('pre5', 4) and o.get('noG', True)
    Q4.main(init=False, endbar=not noG)
    if not Q4.tmaj: Q4.epilogue(k.label("fin"))
    k(f"""s_lshr_b32 s{c.s_f}, s{Q4.s_tb}, 2
    s_lshl_b32 s{c.s_f}, s{c.s_f}, 5
    s_add_u32 s{c.s_f}, s{c.s_f}, s{Q4.s_g}
    s_lshl_b32 s{c.s_f}, s{c.s_f}, {FL}
    s_add_u32 s{c.s_f}, s{c.s_f}, {F4}""")
    pair5 = o.get('pair5', True)
    P5 = P35(c, 5, D=o.get('D5', 8 if pair5 else 12), D0=o.get('D50', 4), pair=pair5); P5.ahead = o.get('ahead5', 5); P5.rowmap = o.get('row5', True); P5.bar8 = o.get('bar8', True); P5.ofl = o.get('ofl', '')
    k("; ---- P5 down")
    k("s_nop 1"); k(P5.ptr_load()); P5.ids(); P5.setup()
    if pair5: P5.setup_pair()
    k(f"""s_lshr_b32 s{c.s_p}, s{P5.s_tb16}, 3
    s_lshl_b32 s{c.s_p}, s{c.s_p}, {FL+5}
    s_add_u32 s{c.s_p}, s{c.s_p}, {F4}
    s_waitcnt vmcnt(0)""")
    k.stamp('n')
    def idle5():
        P5.keep_addr(); P5.load_cinit()
    P5.cinit = cin and P3.rowmap == P5.rowmap
    handoff(P5.vt[0], P5.s_t0, 16, idle5 if P5.cinit else None)
    k.stamp('n')
    if o.get('fine') == 5: P5.fine = {0: 2, 1: 3, 8: 4, 16: 5, 28: 6, 40: 7, 53: 8}
    if pair5:
        if o.get('fine') == 5: P5.fine = {0: 2, 1: 3, 4: 4, 8: 5, 14: 6, 20: 7, 26: 8}
        P5.main_pair()
    else: P5.main(init=False)
    P5.epilogue()
    if o.get('dbgst') is not None:
        Ln = k.label("dn")
        k.stamp(14); k.stamp_real(15)
        k(f"s_cmp_lg_u32 s2, {o['dbgst']}\ns_cbranch_scc1 {Ln}\ns_cmp_lg_u32 s{s_w}, 0\ns_cbranch_scc1 {Ln}\ns_waitcnt lgkmcnt(0)\nv_mov_b32 v1, 0\ns_mov_b64 exec, 1")
        pos = [1, 2, 3, 5, 6, 7, 9, 10, 11, 13, 14, 15]
        src = [2, 3, 6, 7, 8, 9, 11, 12, 13, 14]
        for p_, i in zip(pos, src):
            k(f"s_sub_u32 s66, s{k.sT+2*i}, s{k.sT+2}\nv_mov_b32 v2, s66\nbuffer_store_dword v2, v1, {sr(sD,4)}, 0 offen offset:{4*p_}")
        k(f"s_sub_u32 s66, s{k.sT+30}, s{k.sT}\nv_mov_b32 v2, s66\nbuffer_store_dword v2, v1, {sr(sD,4)}, 0 offen offset:60\n{Ln}:\ns_endpgm")
        k(f"{c.L_end}:\ns_endpgm")
    else:
        c.finish()
    k(f"{L3}:")
    if early:
        P3.ld_setup()
        k(f"s_add_u32 s{P3.s_wo}, s{P3.s_wo}, {16*40960}\ns_waitcnt vmcnt(0)\ns_barrier")
        if early == 2:
            k(f"s_add_u32 s{P3.s_m0}, s{P3.s_m0}, 12288\ns_cmp_eq_u32 s{c.s_wl}, 3\ns_cselect_b32 s{P3.s_m0}, 57344, s{P3.s_m0}")
        P3.ld_chunk(0)
        k("s_waitcnt vmcnt(0)\ns_barrier")
    else:
        Lp = k.label("fp"); Lok = k.label("fpok")
        k(f"""s_mov_b32 s{P3.s_cnt}, 0
        s_waitcnt vmcnt(2)
        {Lp}:
        v_min_u32 v{vfp}, v{vfp}, v{vfp+1}
        v_min3_u32 v{vfp}, v{vfp}, v{vfp+2}, v{vfp+3}
        s_add_u32 s{P3.s_cnt}, s{P3.s_cnt}, 1
        v_cmp_ne_u32 vcc, 0, v{vfp}
        s_cmp_eq_u64 vcc, -1
        s_cbranch_scc1 {Lok}
        s_cmp_gt_u32 s{P3.s_cnt}, 0x40000
        s_cbranch_scc1 {Lok}
        s_mov_b32 s{P3.s_t0}, {FP}
        buffer_load_dwordx4 {vr(vfp,4)}, v{c.vl16}, {sr(c.sO,4)}, s{P3.s_t0} offen sc1
        s_waitcnt vmcnt(0)
        s_branch {Lp}
        {Lok}:""")
        P3.ld_setup()
        k("s_waitcnt vmcnt(0)\ns_barrier")
        for ch in range(5): P3.ld_chunk(ch)
        k("s_waitcnt vmcnt(0)\ns_barrier")
    if fp2 or fpo:
        Ln = k.label("c2"); Lq = k.label("c2l")
        k(f"""s_cmp_lg_u32 s{c.s_w}, 4
        s_cbranch_scc1 {Ln}
        s_mov_b32 s{P3.s_cnt}, 0
        s_mov_b32 s{P3.s_t0}, {FP2 if fp2 else FP}
        {Lq}:
        buffer_load_dwordx4 {vr(vfp,4)}, v{c.vl16}, {sr(c.sO,4)}, s{P3.s_t0} offen sc1
        s_add_u32 s{P3.s_cnt}, s{P3.s_cnt}, 1
        s_cmp_gt_u32 s{P3.s_cnt}, 0x40000
        s_cbranch_scc1 {Ln}
        s_waitcnt vmcnt(0)
        v_min_u32 v{vfp}, v{vfp}, v{vfp+1}
        v_min3_u32 v{vfp}, v{vfp}, v{vfp+2}, v{vfp+3}
        v_cmp_ne_u32 vcc, 0, v{vfp}
        s_cmp_eq_u64 vcc, -1
        s_cbranch_scc0 {Lq}
        {Ln}:""")
    Q4.ids(); Q4.ld_setup()
    CH4 = 4 * 112 * 1024
    if early == 2:
        k(f"s_add_u32 s{Q4.s_wo}, s{Q4.s_wo}, {CH4}"); Q4.ld_chunk(1); k(f"s_sub_u32 s{Q4.s_wo}, s{Q4.s_wo}, {2*CH4}")
    k("s_barrier")
    n4 = o.get('pre4', 3 if early == 2 else 2)
    for ch in range(n4):
        if early == 2 and ch == 1: k(f"s_add_u32 s{Q4.s_wo}, s{Q4.s_wo}, {CH4}")
        else: Q4.ld_chunk(ch)
    k("s_barrier")
    nF = o.get('nF', 5)
    for ch in range(n4, nF): Q4.ld_chunk(ch)
    if nF == 5: Q4.ld_cs()
    k(f"s_waitcnt vmcnt({7*(nF-1-(early == 2)) + (nF == 5)})\ns_barrier")
    for ch in range(nF, 5): Q4.ld_chunk(ch)
    if nF < 5: Q4.ld_cs()
    rg5 = None
    if o.get('reg5', True):
        rg5 = dict(base=20, addr=[8, 9, 10])
        s5 = 64
        def warm():
            if P5.rowmap: k(f"s_lshr_b32 s{Q4.s_t0}, s2, 5")
            else: k(f"""s_bfe_u32 s{Q4.s_t0}, s2, 0x10002
            s_lshl_b32 s{Q4.s_t0}, s{Q4.s_t0}, 2
            s_lshr_b32 s{Q4.s_t1}, s2, 6
            s_add_u32 s{Q4.s_t0}, s{Q4.s_t0}, s{Q4.s_t1}""")
            k(f"""s_lshl_b32 s{Q4.s_t1}, s{c.s_wl}, 3
            s_add_u32 s{Q4.s_t0}, s{Q4.s_t0}, s{Q4.s_t1}
            s_mul_i32 s{Q4.s_t0}, s{Q4.s_t0}, 5120
            s_add_u32 s{Q4.s_t0}, s{Q4.s_t0}, {WDP + 28*40960}""")
        def warm_chunk(j):
            k(f"s_add_u32 s{Q4.s_t1}, s{Q4.s_t0}, 4096")
            for i in range(5):
                k(f"buffer_load_dwordx4 {vr(rg5['base'] + 20*j + 4*i, 4)}, v{c.vl16}, {sr(c.sO,4)}, s{Q4.s_t0 if i < 4 else Q4.s_t1} offen offset:{(i%4)*1024}")
            k(f"s_add_u32 s{Q4.s_t0}, s{Q4.s_t0}, {4*40960}")
        Q4.warm = warm; Q4.warm_chunk = warm_chunk
    if Q4.lstat: Q4.ld_stats()
    e5 = o.get('e5', 4) if Q4.tmaj else 0
    if e5:
        ws7 = Q4.wsched[7]; Q4.wsched = dict(Q4.wsched); Q4.wsched[7] = ()
        sv = (k.s(), )
    Q4.ld_main(5, 1, init=False)
    if e5: k(f"s_mov_b32 s{c.s_p}, s{Q4.s_t0}")
    P5.ids(); P5.ld_setup()
    k(f"""v_add_u32 v8, s{P5.s_m0}, v{c.vl16}
    v_add_u32 v9, {3*P5.SLOT}, v8
    v_add_u32 v10, {6*P5.SLOT}, v8""")
    if e5:
        def wc(j):
            k(f"s_add_u32 s{c.s_f}, s{c.s_p}, 4096")
            for i in range(5):
                k(f"buffer_load_dwordx4 {vr(rg5['base'] + 20*j + 4*i, 4)}, v{c.vl16}, {sr(c.sO,4)}, s{c.s_p if i < 4 else c.s_f} offen offset:{(i%4)*1024}")
            k(f"s_add_u32 s{c.s_p}, s{c.s_p}, {4*40960}")
        th = o.get('thin5')
        if o.get('e5first'):
            for ch in range(e5):
                P5.ld_chunk(ch)
                if th is not None: k(f"s_waitcnt vmcnt({th})")
        for j in ws7:
            wc(j)
            if th is not None: k(f"s_waitcnt vmcnt({th})")
        if not o.get('e5first'):
            for ch in range(e5):
                P5.ld_chunk(ch)
                if th is not None and ch < e5 - 1: k(f"s_waitcnt vmcnt({th})")
    if not noG: k("s_barrier")
    n5 = max(e5, o.get('pre5', 4))
    for ch in range(e5, n5): P5.ld_chunk(ch)
    k("s_barrier")
    for ch in range(n5, 7): P5.ld_chunk(ch)
    if P5.bar8:
        k("s_waitcnt vmcnt(25)\ns_barrier")
        P5.ld_main8(rg5, 1 if pair5 else 0)
    else:
        k("s_waitcnt vmcnt(30)\ns_barrier")
        P5.ld_main(7, init=False)
    if K.STAMP and o.get('dbgst') is None:
        for i in range(9, 15): k.stamp(i)
        k.stamp_flush(c.sO, c.s_w)
    k("s_endpgm")
    k.lines += ['    ; ---- softmax fall-back with the true row maximum'] + slow_code + ['    ; ---- statistics workgroups'] + spare_code
    return k, (256, 512, max(P3.lds, Q4.lds, P5.lds, P35.HKEEP + 10240 + 512 if cin else 0))
```

```python
from ph2 import *
NAME = "sequential_preLN__softmax_full_mha__swiglu_ffn__prompt_kernel"

def gen(opt):
    o = opt('M')
    c = Ctx(NAME, True); k = c.k
    sO = c.sO; sWS = c.sWS; s_w = c.s_w; s_wl = c.s_wl; vl = c.vl; vl16 = c.vl16; sc = c.sc
    rot = o.get('rot', True); c.pdepth = o.get('pd', 1)
    sD = k.s(4)
    s_po = k.s(); s_cs = k.s(); vPA = k.v(); vPS = k.v(); sA = k.s(4); sB = k.s(4); sR = [k.s() for _ in range(5)]
    c.s0 = k.snext; c.v0 = k.vnext
    SLOT = 32768; NS = 4
    SL = 12288; VB = 3 * SL; PREP = 6 * SL; EXB = PREP
    sP = k.s(4); sX = sA; sW = sB; sQ = k.s(8); sWD = k.s(2); sPC = k.s(2)
    s_tb = k.s(); s_cg = k.s(); s_t0 = k.s(); s_t2 = k.s()
    s_ow, s_m0x, s_slot, s_delta, s_t1 = sR
    s_ox = k.s(); s_cnt = k.s(); s_rs = k.s(); s_msk = k.s()
    vt = [k.v() for _ in range(6)]
    vXA = [k.v() for _ in range(4)]; vWA = [k.v(), k.v()]
    vX = [k.v() for _ in range(4)]; vW = [k.v() for _ in range(4)]
    acc = [[k.v(16, 4) for _ in range(2)] for _ in range(2)]
    fx = [[k.v(4, 4) for _ in range(2)] for _ in range(2)]
    fw = [[k.v(4, 4) for _ in range(2)] for _ in range(2)]
    acs = k.v(16, 4); ones = k.v(4, 4); vpf = k.v(16, 4)
    XCH = NS * SLOT; NM, RS, CS = 0, 512, 1024
    L_spare = k.label("spare"); L_v = k.label("vpath"); L_J0 = k.label("J0"); L_comp = k.label("comp")
    k.kidx = 1; k.stamp_real(0); k.stamp(1)
    k(f"""s_load_dwordx4 {sr(sP,4)}, s[0:1], {KA_X}
    s_load_dwordx4 {sr(sD,4)}, s[0:1], {KA_DBG}
    s_cmp_ge_u32 s2, 256
    s_cbranch_scc1 {c.L_end}
    v_lshrrev_b32 v{vt[0]}, 6, v0
    v_and_b32 v{vl}, 63, v0
    v_readfirstlane_b32 s{s_w}, v{vt[0]}
    s_and_b32 s{s_t0}, s2, 3
    s_lshl_b32 s{s_t0}, s{s_t0}, 2
    s_bfe_u32 s{s_t1}, s2, 0x20003
    s_add_u32 s{s_tb}, s{s_t0}, s{s_t1}
    s_bfe_u32 s{s_t0}, s2, 0x10002
    s_lshr_b32 s{s_t1}, s2, 5""")
    if o.get('sfirst', True): k(f"s_sub_u32 s{s_t1}, s{s_t1}, s{s_t0}\ns_and_b32 s{s_t1}, s{s_t1}, 7")
    k(f"""s_lshl_b32 s{s_t0}, s{s_t0}, 3
    s_add_u32 s{s_cg}, s{s_t0}, s{s_t1}
    s_and_b32 s{s_wl}, s{s_w}, 3
    s_cmp_eq_u32 s{s_cg}, 15
    s_cbranch_scc1 {L_spare}
    s_cmp_ge_u32 s{s_w}, 4
    s_cbranch_scc1 {L_comp}
    v_lshrrev_b32 v{vt[0]}, 3, v{vl}
    v_lshl_add_u32 v{vt[0]}, s{s_w}, 5, v{vt[0]}
    v_mul_u32_u24 v{vt[0]}, 1280, v{vt[0]}
    v_lshrrev_b32 v{vt[1]}, 4, v{vl}
    v_and_b32 v{vt[2]}, 7, v{vl}
    v_xor_b32 v{vt[2]}, v{vt[2]}, v{vt[1]}
    v_lshl_add_u32 v{vX[0]}, v{vt[2]}, 4, v{vt[0]}
    v_xor_b32 v{vX[1]}, 64, v{vX[0]}
    v_add_u32 v{vX[2]}, {2*(8*1280-1024)}, v{vX[0]}
    v_add_u32 v{vX[1]}, {8*1280-1024}, v{vX[1]}
    v_add_u32 v{vX[3]}, {2*(8*1280-1024)}, v{vX[1]}
    v_lshl_add_u32 v{vt[0]}, s{s_w}, 4, v{vt[1]}
    v_mul_u32_u24 v{vt[0]}, 3840, v{vt[0]}
    v_and_b32 v{vt[2]}, 15, v{vl}
    v_lshlrev_b32 v{vt[3]}, 2, v{vt[1]}
    v_xor_b32 v{vt[2]}, v{vt[2]}, v{vt[3]}
    v_lshl_add_u32 v{vW[0]}, v{vt[2]}, 4, v{vt[0]}
    v_add_u32 v{vW[1]}, {4*3840-1024}, v{vW[0]}
    v_add_u32 v{vW[2]}, {2*(4*3840-1024)}, v{vW[0]}
    v_add_u32 v{vW[3]}, {3*(4*3840-1024)}, v{vW[0]}
    s_mul_i32 s{s_t0}, s{s_tb}, {128*1280}
    s_lshl_b32 s{s_t1}, s{s_cg}, 8
    s_lshl_b32 s{s_m0x}, s{s_w}, 12
    s_mov_b32 s{sX+2}, {128*1280}
    s_mov_b32 s{sX+3}, 0x20000
    s_sub_u32 s{sW+2}, {640*3840}, s{s_t1}
    s_mov_b32 s{sW+3}, 0x20000""")
    r0 = o.get('rot0', 1)
    if rot and not r0: k(f"s_and_b32 s{s_t2}, s2, 7\ns_lshl_b32 s{s_ox}, s{s_t2}, 7\ns_mul_i32 s{s_ow}, s{s_t2}, {64*3840}")
    else: k(f"s_mov_b32 s{s_ox}, 0\ns_mov_b32 s{s_ow}, 0")
    k(f"""s_waitcnt lgkmcnt(0)
    s_add_u32 s{sX}, s{sP}, s{s_t0}
    s_addc_u32 s{sX+1}, s{sP+1}, 0
    s_add_u32 s{sW}, s{sP+2}, s{s_t1}
    s_addc_u32 s{sW+1}, s{sP+3}, 0""")
    def dma_chunk(slot_const=None):
        if slot_const is not None: k(f"s_add_u32 m0, s{s_m0x}, {slot_const*SLOT}")
        else: k(f"s_add_u32 m0, s{s_m0x}, s{s_rs}")
        k(f"s_add_u32 s{s_t0}, s{s_ox}, 128")
        for i in range(4):
            k(f"buffer_load_dwordx4 v{vX[i]}, {sr(sX,4)}, s{s_ox} offen offset:{i*1024} lds")
        k(f"s_add_u32 m0, m0, 16384\ns_add_u32 s{s_t1}, s{s_ow}, {64*3840}")
        for i in range(4):
            k(f"buffer_load_dwordx4 v{vW[i]}, {sr(sW,4)}, s{s_ow} offen offset:{i*1024} lds")
        if r0 and slot_const == r0 - 1:
            k(f"s_and_b32 s{s_t2}, s2, 7\ns_add_u32 s{s_t2}, s{s_t2}, {r0}\ns_lshl_b32 s{s_ox}, s{s_t2}, 7\ns_mul_i32 s{s_ow}, s{s_t2}, {64*3840}")
        else:
            k(f"s_cmp_eq_u32 s{s_t0}, 1280\ns_cselect_b32 s{s_ox}, {128*r0}, s{s_t0}\ns_cselect_b32 s{s_ow}, {64*3840*r0}, s{s_t1}")
    def common_setup(ptrs=True):
        k(f"""s_mov_b64 {sr(sWS,2)}, {sr(sD+2,2)}
        s_movk_i32 s{sD+2}, 256
        s_mov_b32 s{sD+3}, 0x20000
        v_lshlrev_b32 v{vl16}, 4, v{vl}""")
        srd(k, sO, sWS, sWS + 1, WSEND)
        if ptrs: k(f"s_load_dwordx8 {sr(sQ,8)}, s[0:1], {KA_WO}\ns_load_dwordx2 {sr(sWD,2)}, s[0:1], {KA_WD}")
    def xaddr():
        k(f"""v_and_b32 v{vt[0]}, 31, v{vl}
        v_lshrrev_b32 v{vt[1]}, 5, v{vl}
        v_bfe_u32 v{vt[2]}, v{vl}, 1, 3
        v_xor_b32 v{vt[2]}, v{vt[2]}, v{vt[1]}
        v_lshlrev_b32 v{vt[2]}, 4, v{vt[2]}
        v_lshl_add_u32 v{vt[2]}, v{vt[0]}, 7, v{vt[2]}""")
    def advance(regs):
        k(f"s_cmp_eq_u32 s{s_slot}, {(NS-1)*SLOT}\ns_mov_b32 s{s_delta}, {SLOT}")
        k(f"s_cselect_b32 s{s_delta}, {(-(NS-1)*SLOT) & 0xffffffff}, s{s_delta}")
        k(f"s_add_u32 s{s_slot}, s{s_slot}, s{s_delta}")
        return [f"v_add_u32 v{r}, s{s_delta}, v{r}" for r in regs]
    def prep_decode(loads):
        pid, cb, st = s_t0, s_t2, s_ox
        R0, A_, B_, C_, u = sR
        Ld = k.label("pd"); Lg = k.label("pg")
        k(f"""s_lshl_b32 s{pid}, s2, 2
        s_add_u32 s{pid}, s{pid}, s{s_wl}
        s_mov_b32 s{B_}, 8
        s_mov_b32 s{C_}, 4
        v_bfe_u32 v{vt[2]}, v{vl}, 4, 1
        v_lshrrev_b32 v{vt[1]}, 5, v{vl}
        s_waitcnt lgkmcnt(0)
        s_cmp_ge_u32 s{pid}, 560
        s_cbranch_scc1 {Ld}
        s_mul_i32 s{u}, s{pid}, 4682
        s_lshr_b32 s{u}, s{u}, 16
        s_mul_i32 s{cb}, s{u}, 14
        s_sub_u32 s{cb}, s{pid}, s{cb}
        s_mul_i32 s{s_po}, s{u}, {112*1024}
        s_add_u32 s{s_po}, s{s_po}, {WGUP}
        s_mov_b32 s{s_cs}, {CSG}
        v_lshlrev_b32 v{vt[2]}, 11, v{vt[2]}
        v_lshl_add_u32 v{vt[3]}, v{vt[1]}, 9, v{vt[2]}""")
        if loads:
            k(f"""s_lshl_b32 s{R0}, s{u}, 4
            s_mov_b32 s{A_}, 0
            s_movk_i32 s{st}, 3456
            s_mov_b64 {sr(sA,2)}, {sr(sQ+4,2)}
            s_mov_b64 {sr(sB,2)}, {sr(sQ+6,2)}
            s_mov_b32 s{sA+2}, {640*3456}""")
        k(f"""s_branch {Lg}
        {Ld}:
        s_min_u32 s{pid}, s{pid}, 929
        s_cmp_lt_u32 s{pid}, 830
        s_movk_i32 s{cb}, 830
        s_cselect_b32 s{cb}, 560, s{cb}
        s_mov_b32 s{s_po}, {WOP}
        s_cselect_b32 s{s_po}, {WDP}, s{s_po}""")
        if loads:
            k(f"""s_cselect_b64 {sr(sA,2)}, {sr(sWD,2)}, {sr(sQ,2)}
            s_cselect_b32 s{A_}, 16, 20
            s_cselect_b32 s{R0}, 32, 40
            s_mov_b32 s{sA+2}, {640*1280}
            s_cselect_b32 s{sA+2}, {1728*1280}, s{sA+2}""")
        k(f"""s_sub_u32 s{cb}, s{pid}, s{cb}
        s_mul_i32 s{u}, s{cb}, 13108
        s_lshr_b32 s{u}, s{u}, 16
        s_mul_i32 s{st}, s{u}, 5
        s_sub_u32 s{cb}, s{cb}, s{st}
        s_mul_i32 s{st}, s{u}, {40*1024}
        s_add_u32 s{s_po}, s{s_po}, s{st}
        s_mov_b32 s{s_cs}, {WSEND}
        v_lshlrev_b32 v{vt[2]}, 9, v{vt[2]}
        v_lshl_add_u32 v{vt[3]}, v{vt[1]}, 11, v{vt[2]}""")
        if loads:
            k(f"""s_mul_i32 s{R0}, s{R0}, s{u}
            s_mul_i32 s{st}, s{u}, 160
            s_sub_u32 s{st}, s{st}, {16*160-16}
            s_cmp_ge_u32 s{pid}, 910
            s_cselect_b32 s{R0}, s{st}, s{R0}
            s_cselect_b32 s{A_}, 80, s{A_}
            s_cselect_b32 s{B_}, 20, 8
            s_cselect_b32 s{C_}, 40, 4
            s_movk_i32 s{st}, 1280
            s_mov_b64 {sr(sB,2)}, {sr(sA,2)}""")
        k(f"""{Lg}:
        s_lshl_b32 s{cb}, s{cb}, 1
        s_lshr_b32 s{pid}, s{s_w}, 2
        s_add_u32 s{pid}, s{pid}, s{cb}
        s_lshl_b32 s{u}, s{pid}, 12
        s_add_u32 s{s_po}, s{s_po}, s{u}
        s_lshl_b32 s{u}, s{pid}, 9
        s_add_u32 s{s_cs}, s{s_cs}, s{u}
        v_bfe_u32 v{vt[2]}, v{vl}, 2, 2
        v_lshl_add_u32 v{vt[3]}, v{vt[2]}, 7, v{vt[3]}
        v_and_b32 v{vt[2]}, 3, v{vl}
        v_lshl_add_u32 v{vt[3]}, v{vt[2]}, 3, v{vt[3]}
        s_lshl_b32 s{u}, s{s_w}, 12
        s_add_u32 s{u}, s{u}, {PREP}
        v_add_u32 v{vPA}, s{u}, v{vt[3]}""")
        if loads:
            k(f"""s_mov_b32 s{sB+2}, s{sA+2}
            s_mov_b32 s{sA+3}, 0x20000
            s_mov_b32 s{sB+3}, 0x20000
            v_mul_u32_u24 v{vt[2]}, s{C_}, v{vt[1]}
            v_bfe_u32 v{vt[3]}, v{vl}, 3, 2
            v_add_u32 v{vt[2]}, v{vt[2]}, v{vt[3]}
            v_mul_u32_u24 v{vt[2]}, s{st}, v{vt[2]}
            v_and_b32 v{vt[3]}, 7, v{vl}
            v_lshl_add_u32 v{vPS}, v{vt[3]}, 4, v{vt[2]}
            s_mul_i32 s{R0}, s{R0}, s{st}
            s_lshl_b32 s{cb}, s{pid}, 7
            s_add_u32 s{R0}, s{R0}, s{cb}
            s_mul_i32 s{A_}, s{A_}, s{st}
            s_mul_i32 s{B_}, s{B_}, s{st}
            s_add_u32 s{A_}, s{A_}, s{R0}
            s_add_u32 s{C_}, s{A_}, s{B_}
            s_add_u32 s{B_}, s{B_}, s{R0}""")
    TD = o.get('TD', 0)
    sTX, sTW = sQ, sQ + 4; s_tx, s_tw = sWD, sWD + 1; vTX, vTW = vXA[0], vXA[1]
    def touch():
        k(f"""s_mov_b64 exec, 0xf
        buffer_load_dword v{vXA[2]}, v{vTX}, {sr(sTX,4)}, s{s_tx} offen
        s_mov_b64 exec, 0xff
        buffer_load_dword v{vXA[3]}, v{vTW}, {sr(sTW,4)}, s{s_tw} offen
        s_mov_b64 exec, -1
        s_add_u32 s{s_tx}, s{s_tx}, 128
        s_add_u32 s{s_tw}, s{s_tw}, {64*3840}
        s_cmp_eq_u32 s{s_tx}, 1280
        s_cselect_b32 s{s_tx}, 0, s{s_tx}
        s_cselect_b32 s{s_tw}, 0, s{s_tw}""")
    dma_chunk(0); dma_chunk(1)
    if TD:
        k(f"""s_mov_b64 {sr(sTX,2)}, {sr(sP,2)}
        s_mov_b32 s{sTX+2}, {2048*1280}
        s_mov_b32 s{sTX+3}, 0x20000
        s_mov_b64 {sr(sTW,2)}, {sr(sP+2,2)}
        s_mov_b32 s{sTW+2}, {640*3840}
        s_mov_b32 s{sTW+3}, 0x20000
        s_lshr_b32 s{s_t0}, s2, 3
        s_lshl_b32 s{s_t0}, s{s_t0}, 2
        s_add_u32 s{s_t0}, s{s_t0}, s{s_w}
        s_lshl_b32 s{s_t1}, s{s_t0}, 2
        s_and_b32 s{s_t2}, s2, 3
        s_lshl_b32 s{s_t2}, s{s_t2}, 9
        s_add_u32 s{s_t1}, s{s_t1}, s{s_t2}
        v_add_u32 v{vTX}, s{s_t1}, v{vl}
        v_mul_u32_u24 v{vTX}, 1280, v{vTX}
        s_lshr_b32 s{s_t1}, s{s_t0}, 1
        s_mul_i32 s{s_t1}, s{s_t1}, 3840
        s_and_b32 s{s_t0}, s{s_t0}, 1
        s_lshl_b32 s{s_t0}, s{s_t0}, 10
        s_add_u32 s{s_t1}, s{s_t1}, s{s_t0}
        s_bfe_u32 s{s_t0}, s2, 0x10002
        s_lshl_b32 s{s_t0}, s{s_t0}, 11
        s_add_u32 s{s_t1}, s{s_t1}, s{s_t0}
        v_lshl_add_u32 v{vTW}, v{vl}, 7, s{s_t1}
        s_mov_b32 s{s_tx}, s{s_ox}
        s_mov_b32 s{s_tw}, s{s_ow}""")
        for _ in range(TD + 1): touch()
    common_setup(ptrs=not TD)
    k(f"""s_mov_b32 s{s_rs}, {3*SLOT}
    s_waitcnt vmcnt({8 + (2*TD+2 if TD else 0)})
    s_barrier""")
    k.stamp(2)
    dma_chunk(2)
    L = k.label("hloop"); Lz = k.label("hz"); Lzx = k.label("hzx"); Lnz = k.label("hnz")
    nt = 7 - TD if TD else 0
    def hit(n, tch, vm):
        if n <= 0: return
        L = k.label("hloop")
        k(f"s_mov_b32 s{s_cnt}, {n}\n{L}:\ns_waitcnt vmcnt({vm})\ns_barrier")
        dma_chunk()
        if tch: touch()
        k(f"""s_add_u32 s{s_rs}, s{s_rs}, {SLOT}
        s_and_b32 s{s_rs}, s{s_rs}, {NS*SLOT-1}
        s_sub_u32 s{s_cnt}, s{s_cnt}, 1
        s_cmp_lg_u32 s{s_cnt}, 0
        s_cbranch_scc1 {L}""")
    hit(nt, True, 8 if not TD else 10); hit(7 - nt, False, 8)
    if TD: k(f"s_load_dwordx8 {sr(sQ,8)}, s[0:1], {KA_WO}\ns_load_dwordx2 {sr(sWD,2)}, s[0:1], {KA_WD}")
    Lw0 = k.label("hw0")
    k(f"""s_cmp_eq_u32 s{s_w}, 0
    s_cbranch_scc1 {Lw0}
    s_waitcnt vmcnt(8)
    s_barrier
    s_waitcnt vmcnt(0)
    s_barrier
    s_branch {Lnz}
    {Lw0}:
    v_and_b32 v{vt[3]}, 15, v{vl}
    v_lshlrev_b32 v{vt[3]}, 4, v{vt[3]}
    buffer_load_dword v{vt[4]}, v{vt[3]}, {sr(sD,4)}, 0 offen sc1
    s_waitcnt vmcnt(9)
    s_barrier
    s_waitcnt vmcnt(1)
    s_barrier
    s_mov_b32 s{s_t1}, 0
    {Lz}:
    s_waitcnt vmcnt(0)
    v_cmp_ne_u32 vcc, 0, v{vt[4]}
    s_add_u32 s{s_t1}, s{s_t1}, 1
    s_cmp_eq_u64 vcc, -1
    s_cbranch_scc1 {Lzx}
    s_cmp_gt_u32 s{s_t1}, 0x40000
    s_cbranch_scc1 {Lzx}
    buffer_load_dword v{vt[4]}, v{vt[3]}, {sr(sD,4)}, 0 offen sc1
    s_branch {Lz}
    {Lzx}:
    s_mov_b32 m0, {XCH}
    s_lshl_b32 s{s_t0}, s{s_tb}, 10
    s_add_u32 s{s_t0}, s{s_t0}, {LN1}
    buffer_load_dwordx4 v{vl16}, {sr(sO,4)}, s{s_t0} offen sc1 lds
    {Lnz}:
    s_waitcnt vmcnt(0)""")
    k.stamp(3)
    k(f"s_barrier\ns_branch {L_J0}")
    k(f"""{L_comp}:
    s_getpc_b64 {sr(sPC,2)}
    L_pf_here:
    s_lshr_b32 s{s_t0}, s2, 3
    s_add_u32 s{s_t0}, s{s_t0}, {28 if o.get('sfirst', True) else 0}
    s_and_b32 s{s_t0}, s{s_t0}, 31
    s_lshl_b32 s{s_t0}, s{s_t0}, 2
    s_add_u32 s{s_t0}, s{s_t0}, s{s_wl}
    s_lshl_b32 s{s_t0}, s{s_t0}, 10
    s_sub_u32 s{sPC}, s{sPC}, L_pf_here - {NAME}
    s_subb_u32 s{sPC+1}, s{sPC+1}, 0
    s_cmp_gt_u32 s{s_t0}, L_code_end - {NAME} - 1024
    s_cbranch_scc1 L_pf_skip
    v_lshl_add_u32 v{vt[0]}, v{vl}, 4, s{s_t0}
    global_load_dwordx4 {vr(vpf,4)}, v{vt[0]}, {sr(sPC,2)}
    L_pf_skip:
    s_waitcnt lgkmcnt(0)""")
    if o.get('touch'):
        k(f"""s_mov_b64 {sr(sX,2)}, {sr(sP,2)}
        s_mov_b32 s{sX+2}, {2048*1280}
        s_mov_b32 s{sX+3}, 0x20000
        s_mov_b64 {sr(sW,2)}, {sr(sP+2,2)}
        s_mov_b32 s{sW+2}, {640*3840}
        s_mov_b32 s{sW+3}, 0x20000
        s_lshr_b32 s{s_t0}, s2, 3
        s_lshl_b32 s{s_t0}, s{s_t0}, 2
        s_add_u32 s{s_t0}, s{s_t0}, s{s_wl}
        s_mul_i32 s{s_t1}, s{s_t0}, 5
        v_lshrrev_b32 v{vt[0]}, 4, v{vl}
        v_add_u32 v{vt[0]}, s{s_t1}, v{vt[0]}
        v_mul_u32_u24 v{vt[0]}, 3840, v{vt[0]}
        v_and_b32 v{vt[1]}, 15, v{vl}
        v_lshl_add_u32 v{vt[0]}, v{vt[1]}, 7, v{vt[0]}
        s_bfe_u32 s{s_t1}, s2, 0x10002
        s_lshl_b32 s{s_t1}, s{s_t1}, 11
        s_add_u32 s{s_t2}, s{s_t1}, {4*3840}
        v_lshlrev_b32 v{vt[1]}, 7, v{vl}
        s_mul_i32 s{s_t0}, s{s_t0}, {40*128}
        s_and_b32 s{s_ox}, s2, 3
        s_mul_i32 s{s_ox}, s{s_ox}, {512*1280}
        s_add_u32 s{s_t0}, s{s_t0}, s{s_ox}
        buffer_load_dword v{vpf+4}, v{vt[0]}, {sr(sW,4)}, s{s_t1} offen
        s_mov_b32 exec_hi, 0xff
        buffer_load_dword v{vpf+5}, v{vt[1]}, {sr(sX,4)}, s{s_t0} offen
        s_mov_b64 exec, 0xffff
        buffer_load_dword v{vpf+6}, v{vt[0]}, {sr(sW,4)}, s{s_t2} offen
        s_mov_b64 exec, -1""")
    common_setup()
    if o.get('ptouch'):
        k(f"""v_lshlrev_b32 v{vt[0]}, {o['ptouch']}, v{vl}
        s_lshl_b32 s{s_t0}, s{s_wl}, {o['ptouch'] + 6}
        buffer_load_dword v{vpf+4}, v{vt[0]}, {sr(sO,4)}, s{s_t0} offen sc1""")
    xaddr()
    k(f"""s_lshr_b32 s{s_t0}, s{s_wl}, 1
    s_and_b32 s{s_t1}, s{s_wl}, 1
    s_lshl_b32 s{s_t2}, s{s_t0}, 13
    v_add_u32 v{vXA[0]}, s{s_t2}, v{vt[2]}""")
    for s in range(1, 4): k(f"v_xor_b32 v{vXA[s]}, {32*s}, v{vXA[0]}")
    k(f"""v_bfe_u32 v{vt[2]}, v{vl}, 2, 2
    v_lshl_add_u32 v{vt[3]}, v{vt[1]}, 3, v{vt[2]}
    v_lshlrev_b32 v{vt[3]}, 8, v{vt[3]}
    s_lshl_b32 s{s_t2}, s{s_t1}, 1
    s_add_u32 s{s_t2}, s{s_t2}, s{s_t0}
    v_xor_b32 v{vt[2]}, s{s_t2}, v{vt[2]}
    v_lshl_add_u32 v{vt[3]}, v{vt[2]}, 6, v{vt[3]}
    v_bfe_u32 v{vt[2]}, v{vl}, 4, 1
    v_lshl_add_u32 v{vt[3]}, v{vt[2]}, 5, v{vt[3]}
    v_and_b32 v{vt[2]}, 3, v{vl}
    v_lshl_add_u32 v{vt[3]}, v{vt[2]}, 3, v{vt[3]}
    v_add_u32 v{vWA[0]}, 16384, v{vt[3]}
    v_xor_b32 v{vWA[1]}, 64, v{vWA[0]}
    s_mov_b32 s{s_slot}, 0""")
    for i in range(4): k(f"v_mov_b32 v{ones+i}, 0x3f803f80")
    def reads(buf, s):
        out = []
        for mt in range(2):
            out.append(f"ds_read_b128 {vr(fx[buf][mt],4)}, v{vXA[s]} offset:{mt*4096}")
        for nt in range(2):
            for rd in range(2):
                out.append(f"ds_read_b64_tr_b16 {vr(fw[buf][nt]+2*rd,2)}, v{vWA[nt]} offset:{(16*s+4*rd)*256}")
        return [out[2], out[3], out[0], out[1], out[4], out[5]]
    def mfmas(buf, vpath, first):
        m = []
        for nt in range(2):
            for mt in range(2):
                a, b = (fx[buf][mt], fw[buf][nt]) if vpath else (fw[buf][nt], fx[buf][mt])
                m.append(f"{M16} {vr(acc[nt][mt],16)}, {vr(a,4)}, {vr(b,4)}, {'0' if first else vr(acc[nt][mt],16)}")
        m.append(f"{M16} {vr(acs,16)}, {vr(ones,4)}, {vr(fw[buf][0],4)}, {'0' if first else vr(acs,16)}")
        return m
    def chunk(vpath, last, first=False):
        for s in range(3):
            k("s_waitcnt lgkmcnt(0)")
            m = mfmas(s & 1, vpath, first and s == 0); rd = reads((s + 1) & 1, s + 1)
            ad = []
            if not last and s == 0: ad = [None]
            for i in range(5):
                k(m[i])
                for x in rd[2*i:2*i+2]: k(x)
                if i == 3 and not last:
                    if s == 0: adv[:] = advance([vXA[0], vXA[1], vXA[2], vXA[3], vWA[0], vWA[1]])
                    k(adv[s])
        k("s_waitcnt lgkmcnt(0)")
        m = mfmas(1, vpath, False)
        if last:
            for x in m: k(x)
            return
        k(m[0])
        for x in adv[3:]: k(x)
        k(m[1])
        k("s_barrier")
        rd = reads(0, 0)
        for x in rd[:3]: k(x)
        k(m[2])
        for x in rd[3:]: k(x)
        k(m[3]); k(m[4])
    adv = []
    def mainloop(vpath):
        k("s_barrier")
        k.stamp(2)
        for x in reads(0, 0): k(x)
        chunk(vpath, False, first=True)
        L = k.label("loop")
        if o.get('fine') == 1:
            for j in range(8):
                k.stamp(5 + j); chunk(vpath, False)
            k.stamp(13)
        else:
            k(f"s_mov_b32 s{s_cnt}, 8\n{L}:")
            chunk(vpath, False)
            k(f"s_sub_u32 s{s_cnt}, s{s_cnt}, 1\ns_cmp_lg_u32 s{s_cnt}, 0\ns_cbranch_scc1 {L}")
        chunk(vpath, True)
        k.stamp(3)
    def epilogue(vpath):
        t = vt
        la = fx[0][0]; rg = k.v(32, 4); hoff = t[3]
        k(f"""v_and_b32 v{t[0]}, 31, v{vl}
        s_lshl_b32 s{s_t2}, s{s_t2}, 7
        s_add_u32 s{s_ox}, s{s_t2}, {XCH}
        v_lshl_add_u32 v{t[2]}, v{t[0]}, 2, s{s_ox}
        s_lshl_b32 s{s_ow}, s{s_t0}, 8
        s_add_u32 s{s_ow}, s{s_ow}, {XCH}
        v_lshl_add_u32 v{t[1]}, v{t[0]}, 2, s{s_ow}
        v_lshrrev_b32 v{hoff}, 5, v{vl}
        v_lshlrev_b32 v{hoff}, 4, v{hoff}
        s_cmp_lt_u32 s{s_cg}, 5
        s_cselect_b32 s{s_cnt}, {f2u(QSCALE):#x}, 1.0
        ds_write_b32 v{t[2]}, v{acs} offset:{CS}
        s_waitcnt lgkmcnt(0)
        s_barrier""")
        if not vpath:
            k(f"""ds_read_b32 v{la+0}, v{t[1]} offset:{NM}
            ds_read_b32 v{la+2}, v{t[1]} offset:{RS}
            ds_read_b32 v{la+4}, v{t[1]} offset:{NM+128}
            ds_read_b32 v{la+6}, v{t[1]} offset:{RS+128}
            v_add_u32 v{t[5]}, s{s_ox}, v{hoff}
            v_xor_b32 v{t[4]}, 128, v{t[5]}""")
            for nt in range(2):
                for j in range(4):
                    k(f"ds_read_b128 {vr(rg+16*nt+4*j,4)}, v{t[5] if nt==0 else t[4]} offset:{CS+32*j}")
            k(f"""v_lshlrev_b32 v{t[0]}, 4, v{t[0]}
            v_lshl_add_u32 v{t[0]}, v{hoff}, 11, v{t[0]}
            s_lshl_b32 s{s_ox}, s{s_cg}, 19
            s_lshl_b32 s{s_ow}, s{s_t2}, 10
            s_add_u32 s{s_ox}, s{s_ox}, s{s_ow}
            s_lshl_b32 s{s_ow}, s{s_tb}, 11
            s_add_u32 s{s_ox}, s{s_ox}, s{s_ow}
            s_lshl_b32 s{s_ow}, s{s_t0}, 10
            s_add_u32 s{s_ox}, s{s_ox}, s{s_ow}
            s_waitcnt lgkmcnt(4)
            v_mov_b32 v{la+1}, v{la+0}
            v_mul_f32 v{la+3}, s{s_cnt}, v{la+2}
            v_mul_f32 v{la+2}, s{s_cnt}, v{la+2}
            v_mov_b32 v{la+5}, v{la+4}
            v_mul_f32 v{la+7}, s{s_cnt}, v{la+6}
            v_mul_f32 v{la+6}, s{s_cnt}, v{la+6}""")
            for nt in range(2):
                if nt == 1: k("s_waitcnt lgkmcnt(0)")
                for mt in range(2):
                    A = acc[nt][mt]
                    for p in range(8):
                        k(f"v_pk_fma_f32 {vr(A+2*p,2)}, {vr(rg+16*nt+2*p,2)}, {vr(la+4*mt,2)}, {vr(A+2*p,2)}")
                    for p in range(8):
                        k(f"v_pk_mul_f32 {vr(A+2*p,2)}, {vr(A+2*p,2)}, {vr(la+4*mt+2,2)}")
                    for p in range(8):
                        k(f"v_cvt_pk_bf16_f32 v{A+p}, v{A+2*p}, v{A+2*p+1}")
                    k(f"s_xor_b32 s{s_ow}, s{s_ox}, {(nt*4*32768) | (mt*512)}")
                    k(f"s_add_u32 s{s_rs}, s{s_ow}, {2*32768}")
                    for jp in range(2):
                        k(f"v_permlane32_swap_b32 v{A+4*jp}, v{A+4*jp+2}\nv_permlane32_swap_b32 v{A+4*jp+1}, v{A+4*jp+3}")
                    k(f"buffer_store_dwordx4 {vr(A,4)}, v{t[0]}, {sr(sO,4)}, s{s_ow} offen{sc}")
                    k(f"buffer_store_dwordx4 {vr(A+4,4)}, v{t[0]}, {sr(sO,4)}, s{s_rs} offen{sc}")
        else:
            rg2 = k.v(32, 4)
            k(f"""v_xor_b32 v{t[4]}, 128, v{t[2]}
            ds_read_b32 v{la+2}, v{t[4]} offset:{CS}
            v_add_u32 v{t[5]}, s{s_ow}, v{hoff}""")
            for mt in range(2):
                for j in range(4):
                    k(f"ds_read_b128 {vr(rg+16*mt+4*j,4)}, v{t[5]} offset:{NM+128*mt+32*j}")
                    k(f"ds_read_b128 {vr(rg2+16*mt+4*j,4)}, v{t[5]} offset:{RS+128*mt+32*j}")
            va = [la + 4, la + 5]
            k(f"""s_sub_u32 s{s_ox}, s{s_cg}, 10
            s_lshl_b32 s{s_ox}, s{s_ox}, 7
            s_lshr_b32 s{s_ow}, s{s_t2}, 2
            s_add_u32 s{s_ox}, s{s_ox}, s{s_ow}
            v_add_u32 v{t[0]}, s{s_ox}, v{t[0]}
            v_mul_u32_u24 v{hoff}, 640, v{hoff}
            v_lshl_add_u32 v{va[0]}, v{t[0]}, 4, v{hoff}
            v_xor_b32 v{t[0]}, 32, v{t[0]}
            v_lshl_add_u32 v{va[1]}, v{t[0]}, 4, v{hoff}
            s_lshl_b32 s{s_ox}, s{s_tb}, 1
            s_add_u32 s{s_ox}, s{s_ox}, s{s_t0}
            s_mul_i32 s{s_ox}, s{s_ox}, 81920
            s_add_u32 s{s_ox}, s{s_ox}, {VIMG}
            v_mov_b32 v{la+0}, v{acs}
            v_mov_b32 v{la+1}, v{acs}
            s_waitcnt lgkmcnt(8)
            v_mov_b32 v{la+3}, v{la+2}""")
            for mt in range(2):
                if mt == 1: k("s_waitcnt lgkmcnt(0)")
                for nt in range(2):
                    A = acc[nt][mt]
                    for p in range(8):
                        k(f"v_pk_fma_f32 {vr(A+2*p,2)}, {vr(rg+16*mt+2*p,2)}, {vr(la+2*nt,2)}, {vr(A+2*p,2)}")
                    for p in range(8):
                        k(f"v_pk_mul_f32 {vr(A+2*p,2)}, {vr(A+2*p,2)}, {vr(rg2+16*mt+2*p,2)}")
                    for p in range(8):
                        k(f"v_cvt_pk_bf16_f32 v{A+p}, v{A+2*p}, v{A+2*p+1}")
                    k(f"s_add_u32 s{s_ow}, s{s_ox}, {40960*mt}\ns_add_u32 s{s_rs}, s{s_ox}, {40960*mt+20480}")
                    k(f"buffer_store_dwordx4 {vr(A,4)}, v{va[nt]}, {sr(sO,4)}, s{s_ow} offen{sc}")
                    k(f"buffer_store_dwordx4 {vr(A+4,4)}, v{va[nt]}, {sr(sO,4)}, s{s_rs} offen{sc}")
    k(f"s_cmp_ge_u32 s{s_cg}, 10\ns_cbranch_scc1 {L_v}")
    vsave = k.vnext
    mainloop(False); epilogue(False); k(f"s_branch {L_J0}")
    k.vnext = vsave
    k(f"{L_v}:")
    mainloop(True); epilogue(True)
    if o.get('fine') == 1:
        k.maxst = 14; k.stamp = lambda *a, **kw: None
    k(f"{L_J0}:\ns_setprio 0")
    k.stamp(4)
    prep_decode(True)
    k(f"""s_mov_b32 s{c.s_p}, s{s_cg}
    s_lshl_b32 s{c.s_f}, s{s_cg}, 5
    s_add_u32 s{c.s_f}, s{c.s_f}, s{s_tb}
    s_lshl_b32 s{c.s_f}, s{c.s_f}, {FL}
    s_add_u32 s{c.s_f}, s{c.s_f}, {F1}""")
    def spare():
        o4 = acs; xb = acc[0][0]; sm = [fw[0][0], fw[0][0] + 1]; sq = [fw[0][0] + 2, fw[0][0] + 3]
        k(f"""{L_spare}:
        v_lshrrev_b32 v{vt[0]}, 3, v{vl}
        v_lshl_add_u32 v{vt[0]}, s{s_w}, 4, v{vt[0]}
        v_mul_u32_u24 v{vt[0]}, 1280, v{vt[0]}
        v_and_b32 v{vt[2]}, 7, v{vl}
        v_lshl_add_u32 v{vX[0]}, v{vt[2]}, 4, v{vt[0]}
        v_add_u32 v{vX[1]}, {8*1280}, v{vX[0]}
        s_mul_i32 s{s_t0}, s{s_tb}, {128*1280}
        s_mov_b32 s{sX+2}, {128*1280}
        s_mov_b32 s{sX+3}, 0x20000
        s_waitcnt lgkmcnt(0)
        s_add_u32 s{sX}, s{sP}, s{s_t0}
        s_addc_u32 s{sX+1}, s{sP+1}, 0""")
        for g in range(2):
            for i in range(10): k(f"buffer_load_dwordx4 {vr(xb+40*g+4*i,4)}, v{vX[g]}, {sr(sX,4)}, 0 offen offset:{128*i}")
        common_setup()
        srd(k, sW, sWS, sWS + 1, CSG + ZERO_BYTES)
        o4 = xb + 80
        k(f"""s_mov_b32 s{s_t0}, {ONES}
        v_and_b32 v{vt[0]}, 0x70, v{vl16}
        v_lshlrev_b32 v{vt[1]}, 4, v0
        s_lshl_b32 s{s_t1}, s{s_tb}, 13
        s_add_u32 s{s_t1}, s{s_t1}, {CSG}
        s_mov_b32 s{s_msk}, 0x3f803f80""")
        for i in range(4): k(f"v_mov_b32 v{o4+i}, 0x3f803f80\nv_mov_b32 v{o4+4+i}, 0")
        nz = (ZERO_BYTES + 131071) // 131072
        for z in range(nz):
            k(f"buffer_store_dwordx4 {vr(o4+4,4)}, v{vt[1]}, {sr(sW,4)}, s{s_t1} offen{sc}\ns_add_u32 s{s_t1}, s{s_t1}, 131072")
        k(f"s_mov_b64 exec, 0xff\nbuffer_store_dwordx4 {vr(o4,4)}, v{vt[0]}, {sr(sO,4)}, s{s_t0} offen{sc}\ns_mov_b64 exec, -1")
        st = o4 + 8
        for i in range(4): k(f"v_mov_b32 v{st+i}, 0")
        for g in range(2):
            for i in range(10):
                k(f"s_waitcnt vmcnt({19 - 10*g - i + nz + 1})")
                for j in range(4):
                    x = xb + 40 * g + 4 * i + j
                    k(f"v_dot2c_f32_bf16 v{st+2*g}, s{s_msk}, v{x}\nv_dot2c_f32_bf16 v{st+2*g+1}, v{x}, v{x}")
        for ctl in ("quad_perm:[1,0,3,2]", "quad_perm:[2,3,0,1]", "row_half_mirror"):
            for i in range(4): k(f"v_add_f32_dpp v{st+i}, v{st+i}, v{st+i} {ctl} row_mask:0xf bank_mask:0xf")
        Ln = k.label("sn")
        k(f"""v_and_b32 v{vt[2]}, 1, v{vl}
        v_cmp_eq_u32 vcc, 1, v{vt[2]}
        v_lshrrev_b32 v{vt[3]}, 3, v{vl}
        v_lshl_add_u32 v{vt[3]}, v{vt[2]}, 3, v{vt[3]}
        v_cndmask_b32 v{st}, v{st}, v{st+2}, vcc
        v_cndmask_b32 v{st+1}, v{st+1}, v{st+3}, vcc
        v_lshlrev_b32 v{vt[3]}, 2, v{vt[3]}
        v_mul_f32 v{st}, {f2u(-1.0/640):#x}, v{st}
        v_mul_f32 v{st+1}, {f2u(1.0/640):#x}, v{st+1}
        v_fma_f32 v{st+1}, -v{st}, v{st}, v{st+1}
        v_max_f32 v{st+1}, 0, v{st+1}
        v_add_f32 v{st+1}, {f2u(1e-5):#x}, v{st+1}
        v_rsq_f32 v{st+1}, v{st+1}
        s_lshl_b32 s{s_t1}, s{s_w}, 6
        v_add_u32 v{vt[3]}, s{s_t1}, v{vt[3]}
        ds_write_b32 v{vt[3]}, v{st}
        ds_write_b32 v{vt[3]}, v{st+1} offset:512
        s_waitcnt vmcnt(0) lgkmcnt(0)
        s_barrier
        s_cmp_lg_u32 s{s_w}, 4
        s_cbranch_scc1 {Ln}
        ds_read_b128 {vr(st,4)}, v{vl16}
        s_lshl_b32 s{s_t0}, s{s_tb}, 10
        s_add_u32 s{s_t0}, s{s_t0}, {LN1}
        s_waitcnt lgkmcnt(0)
        buffer_store_dwordx4 {vr(st,4)}, v{vl16}, {sr(sO,4)}, s{s_t0} offen{sc}
        s_waitcnt vmcnt(0)
        s_lshl_b32 s{s_t0}, s{s_tb}, 4
        v_mov_b32 v{vt[2]}, 1
        v_mov_b32 v{vt[3]}, 0
        s_mov_b64 exec, 1
        buffer_store_dword v{vt[2]}, v{vt[3]}, {sr(sD,4)}, s{s_t0} offen sc1
        s_mov_b64 exec, -1
        {Ln}:""")
        k.stamp(2); k.stamp(3)
        k(f"s_branch {L_J0}")
    def deferred(fn):
        n = len(k.lines); fn(); out = k.lines[n:]; del k.lines[n:]; return out
    spare_code = deferred(spare)
    c.reset()
    prio = o.get('prio', (18, 6, 3, 1))
    s_h = k.s(); s_pa = k.s(); s_pr = k.s(); s_odd8 = k.s(); s_tok = k.s()
    s_t0 = k.s(); s_t1 = k.s(); s_t2 = k.s(); s_t3 = k.s()
    so = [k.s() for _ in range(3)]; s_d = k.s(); s_mo = k.s(); s_ms = k.s(); s_q1 = k.s(); s_q2 = k.s()
    sG = k.s(2); sE = k.s(2)
    vq = k.v(); vr31 = k.v(); vKA = k.v(); vKR = k.v(); vVA = k.v(); vqr = k.v()
    vt0 = k.v(6, 2); vt = list(range(vt0, vt0 + 6))
    S = [k.v(32, 4), k.v(32, 4)]; O = k.v(16, 4); OY = k.v(16, 4); P = k.v(8, 4)
    Qm = k.v(4, 4); QmY = k.v(4, 4); Qr = k.v(2); Km = k.v(4, 4); Kr = k.v(2); V0 = k.v(4, 4); V1 = [k.v(4, 4), k.v(4, 4)]
    PR = k.v(16, 4); C = S[1]; vcs = k.v(16, 4); vsel = k.v(16, 4); vca = k.v(); vfp = k.v(4, 4); vo1 = k.v(); vo2 = k.v(); vx1 = k.v(); vx2 = k.v(); s_o1 = k.s(); s_o2 = k.s()
    L_slow = k.label("slow"); L_store = k.label("store"); L_dv = k.label("dv"); L_dd = k.label("dd")
    vD = [k.v() for _ in range(3)]; vDd = [k.v() for _ in range(3)]
    k(f"""s_and_b32 s{s_t0}, s2, 7
    s_lshl_b32 s{s_t0}, s{s_t0}, 2
    s_bfe_u32 s{s_t1}, s2, 0x20003
    s_add_u32 s{s_h}, s{s_t0}, s{s_t1}
    s_lshr_b32 s{s_q1}, s{s_h}, 1
    s_mul_i32 s{s_t0}, s{s_q1}, 5
    s_and_b32 s{s_t1}, s{s_h}, 1
    s_lshl_b32 s{s_odd8}, s{s_t1}, 3
    s_mul_i32 s{s_t1}, s{s_t1}, 3
    s_add_u32 s{s_pa}, s{s_t0}, s{s_t1}
    s_lshl_b32 s{s_pa}, s{s_pa}, 15
    s_add_u32 s{s_pr}, s{s_t0}, 2
    s_lshl_b32 s{s_pr}, s{s_pr}, 15
    s_lshr_b32 s{s_q2}, s{s_wl}, 1
    s_and_b32 s{s_t3}, s{s_w}, 1
    s_mul_i32 s{s_mo}, s{s_q2}, 6144
    s_cmp_ge_u32 s{s_w}, 4
    s_cbranch_scc1 {L_dv}
    s_lshl_b32 s{s_t0}, s{s_q2}, 14
    s_lshl_b32 s{s_t1}, s{s_t3}, 10
    s_add_u32 s{s_mo}, s{s_mo}, s{s_t1}
    s_add_u32 s{s_t0}, s{s_t0}, s{s_t1}
    s_add_u32 s{s_t0}, s{s_t0}, {80*32768}
    s_add_u32 s{s_t1}, s{s_pa}, s{s_t0}
    s_add_u32 s{s_t2}, s{s_pr}, s{s_t0}
    v_add_u32 v{vD[0]}, s{s_t1}, v{vl16}
    v_add_u32 v{vD[1]}, 32768, v{vD[0]}
    v_add_u32 v{vD[2]}, s{s_t2}, v{vl16}
    v_mov_b32 v{vDd[0]}, 2048
    v_mov_b32 v{vDd[1]}, 2048
    v_mov_b32 v{vDd[2]}, 2048
    s_movk_i32 s{s_ms}, 2048
    s_branch {L_dd}
    {L_dv}:
    s_mul_i32 s{s_t1}, s{s_t3}, 3072
    s_add_u32 s{s_mo}, s{s_mo}, s{s_t1}
    s_add_u32 s{s_mo}, s{s_mo}, {VB}
    s_mul_i32 s{s_t0}, s{s_q2}, {128*10240}
    s_mul_i32 s{s_t1}, s{s_h}, 320
    s_add_u32 s{s_t0}, s{s_t0}, s{s_t1}
    s_add_u32 s{s_t0}, s{s_t0}, {VIMG}
    s_mul_i32 s{s_t3}, s{s_t3}, 192
    s_movk_i32 s{s_ms}, 1024
    v_mov_b32 v{vt[4]}, {ONES}
    v_mov_b32 v{vt[5]}, {16*10240}""")
    for i in range(3):
        k(f"""v_add_u32 v{vt[0]}, s{s_t3}, v{vl}
        s_add_u32 s{s_t3}, s{s_t3}, 64
        v_mul_u32_u24 v{vt[1]}, 3121, v{vt[0]}
        v_lshrrev_b32 v{vt[1]}, 16, v{vt[1]}
        v_mul_u32_u24 v{vt[2]}, 21, v{vt[1]}
        v_sub_u32 v{vt[2]}, v{vt[0]}, v{vt[2]}
        v_cmp_gt_u32 vcc, 20, v{vt[2]}
        v_cmp_gt_u32 {sr(sE,2)}, 16, v{vt[1]}
        v_mul_u32_u24 v{vt[1]}, 10240, v{vt[1]}
        v_lshl_add_u32 v{vt[1]}, v{vt[2]}, 4, v{vt[1]}
        s_and_b64 vcc, vcc, {sr(sE,2)}
        v_add_u32 v{vt[1]}, s{s_t0}, v{vt[1]}
        v_cndmask_b32 v{vD[i]}, v{vt[4]}, v{vt[1]}, vcc
        v_cndmask_b32 v{vDd[i]}, 0, v{vt[5]}, vcc""")
    k(f"""{L_dd}:
    s_lshr_b32 s{s_t3}, s{s_w}, 2
    s_mul_i32 s{s_t0}, s{s_t3}, 6144
    v_and_b32 v{vr31}, 31, v{vl}
    v_lshlrev_b32 v{vr31}, 4, v{vr31}
    v_lshrrev_b32 v{vt[1]}, 5, v{vl}
    v_lshl_add_u32 v{vq}, v{vt[1]}, 15, v{vr31}
    v_add_u32 v{vt[2]}, s{s_t0}, v{vr31}
    v_lshl_add_u32 v{vKA}, v{vt[1]}, 11, v{vt[2]}
    v_add_u32 v{vKR}, s{s_odd8}, v{vt[2]}
    v_add_u32 v{vKR}, 4096, v{vKR}
    v_mul_u32_u24 v{vt[0]}, 336, v{vt[1]}
    v_add_u32 v{vt[0]}, v{vt[0]}, v{vt[2]}
    v_add_u32 v{vVA}, {VB}, v{vt[0]}
    v_cmp_lt_u32 vcc, {20*16}, v{vr31}
    v_mov_b32 v{vt[0]}, 0x40000
    v_xor_b32 v{vt[1]}, s{s_t3}, v{vt[1]}
    v_cndmask_b32 v{vVA}, v{vVA}, v{vt[0]}, vcc
    v_lshl_add_u32 v{vqr}, v{vt[1]}, 9, v{vr31}
    s_lshr_b32 s{s_tok}, s2, 5
    s_lshl_b32 s{s_tok}, s{s_tok}, 8
    s_lshl_b32 s{s_t0}, s{s_wl}, 6
    s_add_u32 s{s_tok}, s{s_tok}, s{s_t0}
    s_lshl_b32 s{s_t0}, s{s_t3}, 5
    s_add_u32 s{s_tok}, s{s_tok}, s{s_t0}""")
    k(f"v_lshlrev_b32 v{vca}, 2, v{vl}\nv_mov_b32 v{vt[0]}, 0x3f803f80")
    for Tl, row in enumerate((0, 4, 1, 5)):
        k(f"v_cmp_eq_u32 vcc, {16*row}, v{vr31}")
        k(f"v_cndmask_b32 v{vsel+4*Tl}, 0, v{vt[0]}, vcc")
        for i in range(1, 4): k(f"v_mov_b32 v{vsel+4*Tl+i}, v{vsel+4*Tl}")
    k(f"""v_bfe_u32 v{vo2}, v{vl}, 4, 1
    v_mul_u32_u24 v{vo2}, {20*1024}, v{vo2}
    v_and_b32 v{vt[2]}, 15, v{vl}
    v_lshl_add_u32 v{vo1}, v{vt[2]}, 4, v{vo2}
    v_lshl_add_u32 v{vo2}, v{vt[2]}, 3, v{vo2}
    v_lshrrev_b32 v{vt[2]}, 5, v{vl}
    v_lshl_add_u32 v{vo1}, v{vt[2]}, 8, v{vo1}
    s_lshr_b32 s{s_t0}, s{s_tok}, 4
    s_mul_i32 s{s_t0}, s{s_t0}, {20*1024}
    s_add_u32 s{s_t0}, s{s_t0}, {OIMG}
    s_lshl_b32 s{s_o1}, s{s_h}, 9
    s_add_u32 s{s_o1}, s{s_o1}, s{s_t0}
    s_lshl_b32 s{s_o2}, s{s_h}, 7
    s_add_u32 s{s_o2}, s{s_o2}, s{s_t0}
    s_add_u32 s{s_o2}, s{s_o2}, {16*1024}
    s_mul_i32 s{s_t0}, s{s_wl}, 3072
    s_add_u32 s{s_t0}, s{s_t0}, {2*SL}
    s_add_u32 s{s_t1}, s{s_t0}, {VB}
    s_cmp_lt_u32 s{s_w}, 4
    s_cselect_b32 s{s_t2}, s{s_t0}, s{s_t1}
    s_cselect_b32 s{s_t1}, s{s_t1}, s{s_t0}
    v_add_u32 v{vx1}, s{s_t2}, v{vl16}
    v_add_u32 v{vx2}, s{s_t1}, v{vl16}""")
    early = o.get('early', 1)
    p1 = [f"s_mov_b32 m0, s{sR[4]}", "s_nop 0"]
    for i, (sd, so_) in enumerate(((sA, sR[0]), (sA, sR[2]), (sB, sR[1]), (sB, sR[3]))):
        p1.append(f"buffer_load_dwordx4 v{vPS}, {sr(sd,4)}, s{so_} offen lds")
        if i < 3: p1 += ["s_add_u32 m0, m0, 1024", "s_nop 0"]
    edge_prep = o.get('edge_prep', False)
    Lx = k.label("jx"); Lp = k.label("jp"); Lz = k.label("jz"); Lzx = k.label("jzx"); Lns = k.label("jns")
    part = o.get('part', True)
    vfl = k.v(); vpl = k.v(); vf2 = k.v(2); s_f0 = sG; s_f1 = sG + 1
    k(f"""s_mul_i32 s{s_t0}, s{s_q1}, 40
    s_add_u32 s{s_t1}, s{s_t0}, 39
    s_lshr_b32 s{s_t0}, s{s_t0}, 7
    s_lshr_b32 s{s_t1}, s{s_t1}, 7
    s_lshl_b32 s{s_f0}, s{s_t0}, {FL+5}
    s_lshl_b32 s{s_f1}, s{s_t1}, {FL+5}
    s_add_u32 s{s_f0}, s{s_f0}, {F1}
    s_add_u32 s{s_f1}, s{s_f1}, {F1}
    v_lshrrev_b32 v{vt[2]}, 4, v{vl}
    v_min_u32 v{vt[2]}, 2, v{vt[2]}
    v_mul_u32_u24 v{vt[2]}, 160, v{vt[2]}
    v_and_b32 v{vt[3]}, 15, v{vl}
    v_add_u32 v{vt[3]}, v{vt[3]}, v{vt[2]}
    v_lshlrev_b32 v{vfl}, {FL}, v{vt[3]}""")
    if part:
        k(f"""s_sub_u32 s{s_t1}, s{s_t1}, s{s_t0}
        v_and_b32 v{vt[2]}, 1, v{vl}
        v_mul_u32_u24 v{vt[2]}, s{s_t1}, v{vt[2]}
        v_bfe_u32 v{vt[3]}, v{vl}, 1, 1
        v_bfe_u32 v{vt[4]}, v{vl}, 2, 1
        v_bfe_u32 v{vt[5]}, v{vl}, 3, 1
        v_lshl_add_u32 v{vt[4]}, v{vt[5]}, 3, v{vt[4]}
        v_mad_u32_u24 v{vt[5]}, v{vt[3]}, 5, 5
        s_lshr_b32 s{s_t1}, s2, 5
        s_lshl_b32 s{s_t1}, s{s_t1}, 1
        v_add_u32 v{vt[3]}, s{s_t1}, v{vt[3]}
        v_cmp_gt_u32 vcc, 16, v{vl}
        v_cndmask_b32 v{vt[5]}, 0, v{vt[5]}, vcc
        v_cndmask_b32 v{vt[4]}, v{vt[3]}, v{vt[4]}, vcc
        v_add_u32 v{vt[2]}, v{vt[2]}, v{vt[5]}
        v_lshl_add_u32 v{vt[2]}, v{vt[2]}, 5, v{vt[4]}
        v_lshlrev_b32 v{vpl}, {FL}, v{vt[2]}""")
    k(f"""s_cmp_lg_u32 s{s_w}, 0
    s_cbranch_scc1 {Lzx}
    s_cmp_lg_u32 s{c.s_p}, 15
    s_cbranch_scc1 {Lzx}
    v_and_b32 v{vt[3]}, 15, v{vl}
    v_lshlrev_b32 v{vt[3]}, 4, v{vt[3]}
    s_mov_b32 s{s_t1}, 0
    {Lz}:
    buffer_load_dword v{vt[4]}, v{vt[3]}, {sr(sD,4)}, 0 offen sc1
    s_add_u32 s{s_t1}, s{s_t1}, 1
    s_cmp_gt_u32 s{s_t1}, 0x40000
    s_cbranch_scc1 {Lzx}
    s_waitcnt vmcnt(0)
    v_cmp_ne_u32 vcc, 0, v{vt[4]}
    s_cmp_eq_u64 vcc, -1
    s_cbranch_scc0 {Lz}
    {Lzx}:
    s_waitcnt vmcnt(0)""")
    k.stamp(5)
    k(f"""s_barrier
    s_cmp_lg_u32 s{s_w}, 0
    s_cbranch_scc1 {Lx}""")
    c.signal(c.s_f, vt[2])
    fl = [f"buffer_load_dword v{vf2}, v{vfl}, {sr(sO,4)}, s{s_f0} offen sc1", f"buffer_load_dword v{vf2+1}, v{vfl}, {sr(sO,4)}, s{s_f1} offen sc1"]
    k(f"s_mov_b32 s{s_t2}, 0\n{Lp}:")
    if part: k(f"buffer_load_dword v{vf2}, v{vpl}, {sr(sO,4)}, s{s_f0} offen sc1")
    else: k(fl[0]); k(fl[1])
    k(f"""s_add_u32 s{s_t2}, s{s_t2}, 1
    s_cmp_gt_u32 s{s_t2}, 0x40000
    s_cbranch_scc1 {Lx}
    s_waitcnt vmcnt(0)""")
    if not part: k(f"v_min_u32 v{vf2}, v{vf2}, v{vf2+1}")
    k(f"""v_cmp_ne_u32 vcc, 0, v{vf2}
    s_cmp_eq_u64 vcc, -1
    s_cbranch_scc0 {Lp}
    {Lx}:
    s_lshl_b32 s{s_t0}, s{s_tok}, 4
    s_add_u32 s{s_q1}, s{s_t0}, s{s_pa}
    s_xor_b32 s{s_t3}, s{s_q1}, 512
    s_andn2_b32 s{s_q2}, s{s_t0}, 512
    s_add_u32 s{s_q2}, s{s_q2}, s{s_pr}
    s_add_u32 s{s_q2}, s{s_q2}, s{s_odd8}
    s_barrier""")
    k.stamp(6)
    def dma(slot):
        out = [f"s_add_u32 m0, s{s_mo}, {slot*SL}", "s_nop 0"]
        for i in range(3):
            out.append(f"buffer_load_dwordx4 v{vD[i]}, {sr(sO,4)}, 0 offen sc1 lds")
            if i < 2: out.append(f"s_add_u32 m0, m0, s{s_ms}")
            out.append(f"v_add_u32 v{vD[i]}, v{vD[i]}, v{vDd[i]}")
        return out
    k("; ---- P2 attention")
    for x in dma(0): k(x)
    k(f"""buffer_load_dwordx4 {vr(Qm,4)}, v{vq}, {sr(sO,4)}, s{s_q1} offen
    buffer_load_dwordx4 {vr(QmY,4)}, v{vq}, {sr(sO,4)}, s{s_t3} offen
    buffer_load_dwordx2 {vr(Qr,2)}, v{vqr}, {sr(sO,4)}, s{s_q2} offen""")
    for x in dma(1): k(x)
    p2a = [f"ds_read_b64_tr_b16 {vr(PR+4*Tl+2*rd,2)}, v{vPA} offset:{rd*1024+Tl*32}" for Tl in range(4) for rd in range(2)]
    p2c = [f"{M16} {vr(vcs,16)}, {vr(vsel+4*Tl,4)}, {vr(PR+4*Tl,4)}, {'0' if Tl == 0 else vr(vcs,16)}" for Tl in range(4)]
    late = [f"buffer_store_dwordx4 {vr(PR+4*Tl,4)}, v{vl16}, {sr(sO,4)}, s{s_po} offen offset:{Tl*1024}{sc}" for Tl in range(4)]
    late += [f"buffer_atomic_add_f32 v{vcs}, v{vca}, {sr(sO,4)}, s{s_cs} offen", f"buffer_atomic_add_f32 v{vcs+1}, v{vca}, {sr(sO,4)}, s{s_cs} offen offset:256"]
    TL = o.get('TL', 3); TP = o.get('TP', 11); assert TL > 2
    fp2 = o.get('fp2', False); fpo = o.get('fpo', False)
    late_t = o.get('late_t', [TP + 1, TP + 2, TP + 2, TP + 4, TP + 5, TP + 6] if fp2 else [TP + 1, TP + 1, TP + 2, TP + 2, TP + 3, TP + 3]); TSIG = o.get('TSIG', TP + (15 if fpo else 11))
    assert not edge_prep
    M2B = "v_mfma_f32_32x32x4_2b_bf16"
    def rdK(t):
        o_ = ((t // 4) % 3) * SL + (t % 4) * 512
        return [f"ds_read_b128 {vr(Km,4)}, v{vKA} offset:{o_}", f"ds_read_b64 {vr(Kr,2)}, v{vKR} offset:{o_}"]
    def rdV(t):
        o_ = ((t // 4) % 3) * SL + (t % 4) * 1344
        return [f"ds_read_b128 {vr(V0,4)}, v{vVA} offset:{o_}", f"ds_read_b128 {vr(V1[t&1],4)}, v{vVA} offset:{o_+672}"]
    k("s_waitcnt vmcnt(3)\ns_barrier")
    k.stamp(7)
    for x in rdK(0): k(x)
    k(f"""s_waitcnt lgkmcnt(0)
    {M2B} {vr(S[0],32)}, {vr(Kr,2)}, {vr(Qr,2)}, 0
    {M16} {vr(S[0],16)}, {vr(Km,4)}, {vr(Qm,4)}, {vr(S[0],16)}
    {M16} {vr(S[0]+16,16)}, {vr(Km,4)}, {vr(QmY,4)}, {vr(S[0]+16,16)}""")
    for x in rdK(1) + rdV(0): k(x)
    side = []; vm = [0]
    def spread(n):
        for _ in range(n):
            if side:
                x = side.pop(0)
                if x is None: continue
                if x == 'KV': vm[0] = 0; continue
                k(x)
                if x.startswith('buffer_'): vm[0] += 1
    NT = 32
    for t in range(NT):
        s = S[t & 1]; sn = S[(t + 1) & 1]; pe = t // 4; last = t == NT - 1
        yf = 16 if last and o.get('yfirst', True) else 0
        Oa, Ob = (OY, O) if yf else (O, OY)
        e = lambda *a: [(k(f"v_exp_f32 v{s+(i^yf)}, v{s+(i^yf)}"), spread(1)) for i in a]
        cv = lambda i: k(f"v_cvt_pk_bf16_f32 v{P+i%8}, v{s+((2*i)^yf)}, v{s+((2*i)^yf)+1}")
        def pr(ph):
            if prio:
                q = (7 * t + ph - 19) % 28; tab = prio
                if 7 * t + ph >= 187 and o.get('lastprio', True): q = 7 * t + ph - 187; tab = (24, 8, 3, 2)
                cum = 0
                for lvl, ln in enumerate(tab):
                    if (q == cum and ln > 0) or (t == 0 and ph == 0 and cum <= q < cum + ln): k(f"s_setprio {3 - lvl}")
                    cum += ln
        z = lambda r: '0' if t == 0 else vr(r, 16)
        pr(0)
        e(0, 1, 2, 3)
        if not last:
            k("s_waitcnt lgkmcnt(2)")
            k(f"{M2B} {vr(sn,32)}, {vr(Kr,2)}, {vr(Qr,2)}, 0")
        pr(1)
        e(4); cv(0); e(5); cv(1); e(6, 7); cv(2); e(8); cv(3); e(9, 10)
        k("s_waitcnt lgkmcnt(0)")
        k(f"{M16} {vr(Oa,16)}, {vr(V0,4)}, {vr(P,4)}, {z(Oa)}")
        pr(2)
        e(11); cv(4); e(12); cv(5); e(13, 14)
        if not last: k(f"{M16} {vr(sn,16)}, {vr(Km,4)}, {vr(Qm,4)}, {vr(sn,16)}")
        pr(3)
        e(15); cv(6); e(16); cv(7); e(17, 18)
        k(f"{M16} {vr(Oa,16)}, {vr(V1[t&1],4)}, {vr(P+4,4)}, {vr(Oa,16)}")
        pr(4)
        e(19); cv(8); e(20); cv(9); e(21, 22)
        if not last: k(f"{M16} {vr(sn+16,16)}, {vr(Km,4)}, {vr(QmY,4)}, {vr(sn+16,16)}")
        if part and t == 1:
            Ln = k.label("nq"); k(f"s_cmp_lg_u32 s{s_w}, 0\ns_cbranch_scc1 {Ln}"); k(fl[0]); k(fl[1]); k(f"{Ln}:")
        if t % 4 == 2 and pe < 7:
            assert not side
            k(f"s_waitcnt vmcnt({2 if fp2 and t == TSIG - 4 else 0 if t in (TP - 1, TSIG - 4, 26) else vm[0]})")
            if part and t == 2:
                Ln = k.label("nq"); Lq = k.label("q")
                k(f"""s_cmp_lg_u32 s{s_w}, 0
                s_cbranch_scc1 {Ln}
                s_mov_b32 s{s_t2}, 0
                {Lq}:
                v_min_u32 v{vf2}, v{vf2}, v{vf2+1}
                s_add_u32 s{s_t2}, s{s_t2}, 1
                v_cmp_ne_u32 vcc, 0, v{vf2}
                s_cmp_eq_u64 vcc, -1
                s_cbranch_scc1 {Ln}
                s_cmp_gt_u32 s{s_t2}, 0x40000
                s_cbranch_scc1 {Ln}""")
                k(fl[0]); k(fl[1])
                k(f"s_waitcnt vmcnt(0)\ns_branch {Lq}\n{Ln}:")
            if early and t == 26:
                Ln = k.label("ne"); Lq = k.label("e")
                k(f"""s_cmp_lg_u32 s{s_w}, 0
                s_cbranch_scc1 {Ln}
                s_mov_b32 s{s_t2}, 0
                {Lq}:
                v_min_u32 v{vfp}, v{vfp}, v{vfp+1}
                v_min3_u32 v{vfp}, v{vfp}, v{vfp+2}, v{vfp+3}
                s_add_u32 s{s_t2}, s{s_t2}, 1
                v_cmp_ne_u32 vcc, 0, v{vfp}
                s_nop 0
                {"s_bfe_u32 vcc_lo, vcc_hi, 0x80013" if fpo else ""}
                {"s_cmp_eq_u32 vcc_lo, 0xff" if fpo else "s_cmp_eq_u64 vcc, -1"}
                s_cbranch_scc1 {Ln}
                s_cmp_gt_u32 s{s_t2}, 0x40000
                s_cbranch_scc1 {Ln}
                buffer_load_dwordx4 {vr(vfp,4)}, v{vl16}, {sr(sO,4)}, s{s_t0} offen sc1
                s_waitcnt vmcnt(0)
                s_branch {Lq}
                {Ln}:""")
                side += [f"s_lshr_b32 s{s_t0}, s2, 5"] if o.get('row3', o.get('cinit', True)) else [f"s_bfe_u32 s{s_t0}, s2, 0x10002", f"s_lshl_b32 s{s_t0}, s{s_t0}, 2", f"s_lshr_b32 s{s_t1}, s2, 6", f"s_add_u32 s{s_t0}, s{s_t0}, s{s_t1}"]
                side += [
                         f"s_lshl_b32 s{s_t1}, s{s_w}, 3", f"s_add_u32 s{s_t0}, s{s_t0}, s{s_t1}", f"s_mul_i32 s{s_t0}, s{s_t0}, 5120", f"s_add_u32 s{s_t0}, s{s_t0}, {WOP}",
                         f"s_mul_i32 s{s_t1}, s{s_w}, 5120"]
                for hf in range(2):
                    side += [f"s_add_u32 m0, s{s_t1}, {PREP + hf*8*5120}", f"s_add_u32 s{s_t2}, s{s_t0}, 4096"]
                    side += [f"buffer_load_dwordx4 v{vl16}, {sr(sO,4)}, s{s_t0} offen offset:{i*1024} lds" for i in range(4)]
                    side += ["s_add_u32 m0, m0, 4096", f"s_add_u32 s{s_t0}, s{s_t0}, {8*40960}", f"buffer_load_dwordx4 v{vl16}, {sr(sO,4)}, s{s_t2} offen lds"]
                sp = o.get('espace', 8)
                side[:] = [y for x in side for y in ([x] + [None] * sp if x.startswith('buffer') else [x])]
            k("s_barrier")
            if o.get('fine') == 2: k.stamp({0: 1, 1: 2, 2: 3, 3: 4, 4: 5, 5: 6, 6: 9}[pe])
            if pe < 6: side += dma((pe + 2) % 3) + ['KV']
            if t == TSIG - 4 or (fp2 and t == TSIG):
                assert t == TSIG - 4 or vm[0] == 0
                Ln = k.label("nf")
                k(f"s_cmp_lg_u32 s{s_w}, 0\ns_cbranch_scc1 {Ln}\ns_lshl_b32 s{s_t0}, s2, 2\ns_add_u32 s{s_t0}, s{s_t0}, {FP if t == TSIG - 4 else FP2}")
                c.signal(s_t0, vt[2]); k(f"{Ln}:")
        pr(5)
        if t < NT - 2:
            for x in rdK(t + 2): k(x)
        if t == TP:
            for x in p2a: k(x)
        if t == TL: side += p1
        if o.get('cs2', True):
            if TP < t <= TP + 2: k(p2c[2 * (t - TP - 1)]); side.insert(0, None); side.insert(0, None); side.insert(min(4, len(side)), p2c[2 * (t - TP - 1) + 1])
        elif TP < t <= TP + 4: k(p2c[t - TP - 1])
        for i_, x_ in enumerate(late_t):
            if int(x_) == t: side.append(late[i_])
        if t == (o.get('TF', 24) if early else 28):
            Ln = k.label("nl")
            if early: k(f"s_cmp_lg_u32 s{s_w}, 0\ns_cbranch_scc1 {Ln}")
            k(f"s_mov_b32 s{s_t0}, {FP}\nbuffer_load_dwordx4 {vr(vfp,4)}, v{vl16}, {sr(sO,4)}, s{s_t0} offen sc1\n{Ln}:")
        e(23); cv(10); e(24); cv(11); e(25, 26)
        k(f"{M16} {vr(Ob,16)}, {vr(V0,4)}, {vr(P,4)}, {z(Ob)}")
        if yf:
            for j in range(3): k(f"ds_write_b128 v{vx1}, {vr(OY+4*j,4)} offset:{1024*j}")
        pr(6)
        e(27); cv(12); e(28); cv(13); e(29, 30, 31); cv(14)
        if not last:
            rv = rdV(t + 1)
            k(rv[0]); cv(15); k(rv[1]); k("s_nop 0")
        else:
            cv(15)
        k(f"{M16} {vr(Ob,16)}, {vr(V1[t&1],4)}, {vr(P+4,4)}, {vr(Ob,16)}")
    assert not side
    if o.get('fine') == 2: k.stamp(10)
    k("s_setprio 0")
    if not o.get('yfirst', True):
        for j in range(3): k(f"ds_write_b128 v{vx1}, {vr(OY+4*j,4)} offset:{1024*j}")
    k(f"s_mov_b32 s{s_q1}, {f2u(2.0**64):#x}\ns_mov_b32 s{s_q2}, 0x7f800000")
    k("s_waitcnt lgkmcnt(0)\ns_barrier")
    for j in (2, 0, 1): k(f"ds_read_b128 {vr(OY+4*j,4)}, v{vx2} offset:{1024*j}")
    t0, t1, t2 = vt[0], vt[1], vt[2]
    k("s_waitcnt lgkmcnt(2)")
    for i in (4, 5): k(f"v_pk_add_f32 {vr(O+2*i,2)}, {vr(O+2*i,2)}, {vr(OY+2*i,2)}")
    k(f"v_mov_b32 v{t0}, v{O+8}\nv_mov_b32 v{t1}, v{O+8}\ns_waitcnt lgkmcnt(0)")
    for i in range(4): k(f"v_pk_add_f32 {vr(O+2*i,2)}, {vr(O+2*i,2)}, {vr(OY+2*i,2)}")
    k(f"""v_permlane32_swap_b32 v{t0}, v{t1}
    v_add_f32 v{t2}, |v{O+8}|, |v{O+9}|
    v_add_f32 v{vt[3]}, |v{O+10}|, |v{O+11}|""")
    for i in range(0, 8, 2): k(f"v_add_f32 v{t2}, |v{O+i}|, v{t2}\nv_add_f32 v{vt[3]}, |v{O+i+1}|, v{vt[3]}")
    k(f"""v_cmp_lt_f32 vcc, {f2u(2.0**-64):#x}, v{t1}
    v_add_f32 v{t2}, v{t2}, v{vt[3]}
    v_cmp_gt_f32 {sr(sE,2)}, s{s_q1}, v{t1}
    v_cmp_gt_f32 {sr(sG,2)}, s{s_q2}, v{t2}
    s_and_b64 vcc, vcc, {sr(sE,2)}
    s_and_b64 vcc, vcc, {sr(sG,2)}
    s_cmp_eq_u64 vcc, -1
    s_cbranch_scc0 {L_slow}
    {L_store}:
    v_rcp_f32 v{t0}, v{t1}
    v_rcp_f32 v{t1}, v{t1}""")
    assert t0 % 2 == 0 and t1 == t0 + 1
    for i in range(4): k(f"v_pk_mul_f32 {vr(O+2*i,2)}, {vr(O+2*i,2)}, {vr(t0,2)}")
    for i in range(4): k(f"v_cvt_pk_bf16_f32 v{O+i}, v{O+2*i}, v{O+2*i+1}")
    k(f"buffer_store_dwordx4 {vr(O,4)}, v{vo1}, {sr(sO,4)}, s{s_o1} offen{sc}")
    for i in range(4, 6): k(f"v_pk_mul_f32 {vr(O+2*i,2)}, {vr(O+2*i,2)}, {vr(t0,2)}")
    for i in range(4, 6): k(f"v_cvt_pk_bf16_f32 v{O+i}, v{O+2*i}, v{O+2*i+1}")
    k(f"""s_mov_b32 exec_hi, 0
    buffer_store_dwordx2 {vr(O+4,2)}, v{vo2}, {sr(sO,4)}, s{s_o2} offen{sc}
    s_mov_b32 exec_hi, -1""")
    def slow():
        vV = vKA; vm = vKR; cnt = s_t3
        k(f"""{L_slow}:
        s_lshl_b32 s{so[0]}, s{s_tok}, 4
        s_add_u32 s{so[0]}, s{so[0]}, s{s_pr}
        s_add_u32 s{so[0]}, s{so[0]}, s{s_odd8}
        v_mov_b32 v{Qr}, 0
        v_mov_b32 v{Qr+1}, 0
        s_mov_b32 exec_hi, 0
        buffer_load_dwordx2 {vr(Qr,2)}, v{vr31}, {sr(sO,4)}, s{so[0]} offen
        s_mov_b32 exec_hi, -1
        s_add_u32 s{so[0]}, s{s_pa}, {80*32768}
        s_add_u32 s{so[1]}, s{s_pr}, {80*32768}
        s_add_u32 s{so[1]}, s{so[1]}, s{s_odd8}
        v_mov_b32 v{vm}, 0xff800000
        s_mov_b32 s{cnt}, 0""")
        L1 = k.label("mx")
        k(f"""{L1}:
        buffer_load_dwordx4 {vr(Km,4)}, v{vq}, {sr(sO,4)}, s{so[0]} offen
        buffer_load_dwordx2 {vr(Kr,2)}, v{vr31}, {sr(sO,4)}, s{so[1]} offen
        s_add_u32 s{so[0]}, s{so[0]}, 512
        s_add_u32 s{so[1]}, s{so[1]}, 512
        s_waitcnt vmcnt(0)
        {M8} {vr(S[0],16)}, {vr(Kr,2)}, {vr(Qr,2)}, 0
        {M16} {vr(S[0],16)}, {vr(Km,4)}, {vr(Qm,4)}, {vr(S[0],16)}""")
        for i in range(8): k(f"v_max3_f32 v{vm}, v{S[0]+2*i}, v{S[0]+2*i+1}, v{vm}")
        k(f"""s_add_u32 s{cnt}, s{cnt}, 1
        s_cmp_lt_u32 s{cnt}, 64
        s_cbranch_scc1 {L1}
        v_mov_b32 v{t0}, v{vm}
        v_permlane32_swap_b32 v{t0}, v{vm}
        v_max_f32 v{vm}, v{vm}, v{t0}""")
        for i in range(16): k(f"v_sub_f32 v{C+i}, 0, v{vm}\nv_mov_b32 v{O+i}, 0")
        k(f"""s_add_u32 s{so[0]}, s{s_pa}, {80*32768}
        s_add_u32 s{so[1]}, s{s_pr}, {80*32768}
        s_add_u32 s{so[1]}, s{so[1]}, s{s_odd8}
        s_mul_i32 s{so[2]}, s{s_h}, 320
        s_add_u32 s{so[2]}, s{so[2]}, {VIMG}
        v_lshrrev_b32 v{vV}, 5, v{vl}
        v_mul_u32_u24 v{vV}, 10240, v{vV}
        v_add3_u32 v{vV}, v{vV}, v{vr31}, s{so[2]}
        v_add_u32 v{vD[1]}, 20480, v{vV}
        v_cmp_gt_u32 vcc, 320, v{vr31}
        v_mov_b32 v{vD[2]}, {ONES}
        v_mov_b32 v{vDd[0]}, 40960
        v_cndmask_b32 v{vV}, v{vD[2]}, v{vV}, vcc
        v_cndmask_b32 v{vD[1]}, v{vD[2]}, v{vD[1]}, vcc
        v_cndmask_b32 v{vDd[0]}, 0, v{vDd[0]}, vcc
        s_mov_b32 s{cnt}, 0""")
        L2 = k.label("pv")
        k(f"""{L2}:
        buffer_load_dwordx4 {vr(Km,4)}, v{vq}, {sr(sO,4)}, s{so[0]} offen
        buffer_load_dwordx2 {vr(Kr,2)}, v{vr31}, {sr(sO,4)}, s{so[1]} offen
        buffer_load_dwordx4 {vr(V0,4)}, v{vV}, {sr(sO,4)}, 0 offen
        buffer_load_dwordx4 {vr(V1[0],4)}, v{vD[1]}, {sr(sO,4)}, 0 offen
        s_add_u32 s{so[0]}, s{so[0]}, 512
        s_add_u32 s{so[1]}, s{so[1]}, 512
        v_add_u32 v{vV}, v{vV}, v{vDd[0]}
        v_add_u32 v{vD[1]}, v{vD[1]}, v{vDd[0]}
        s_waitcnt vmcnt(0)
        {M8} {vr(S[0],16)}, {vr(Kr,2)}, {vr(Qr,2)}, {vr(C,16)}
        {M16} {vr(S[0],16)}, {vr(Km,4)}, {vr(Qm,4)}, {vr(S[0],16)}""")
        for i in range(16): k(f"v_exp_f32 v{S[0]+i}, v{S[0]+i}")
        for i in range(8): k(f"v_cvt_pk_bf16_f32 v{P+i}, v{S[0]+2*i}, v{S[0]+2*i+1}")
        k(f"""{M16} {vr(O,16)}, {vr(V0,4)}, {vr(P,4)}, {vr(O,16)}
        {M16} {vr(O,16)}, {vr(V1[0],4)}, {vr(P+4,4)}, {vr(O,16)}
        s_add_u32 s{cnt}, s{cnt}, 1
        s_cmp_lt_u32 s{cnt}, 64
        s_cbranch_scc1 {L2}
        v_mov_b32 v{t0}, v{O+8}
        v_mov_b32 v{t1}, v{O+8}
        v_permlane32_swap_b32 v{t0}, v{t1}
        s_branch {L_store}""")
    slow_code = deferred(slow)
    L3 = k.label("ld")
    k.stamp(8); k.nst = 8
    if o.get('fine1') or o.get('fine') == 2:
        k.maxst = 14; k.stamp = lambda *a, **kw: None
    k(f"""s_lshr_b32 s{c.s_f}, s2, 5
    s_lshl_b32 s{c.s_f}, s{c.s_f}, 5
    s_add_u32 s{c.s_f}, s{c.s_f}, s{s_h}
    s_lshl_b32 s{c.s_f}, s{c.s_f}, {FL}
    s_add_u32 s{c.s_f}, s{c.s_f}, {F2}""")
    k("; ---- P3 o-proj")
    P3 = P35(c, 3, D=o.get('D3', 20), D0=o.get('D30', 6), early=early)
    cin = o.get('cinit', True)
    P3.rowmap = o.get('row3', cin); P3.cinit = cin
    k(P3.ptr_load()); P3.ids()
    lw(c, L3)
    def handoff(vt, stmp, n, idle=None):
        Ln = k.label("nw0"); Ls = k.label("ns0")
        k("s_barrier")
        k(f"s_cmp_lg_u32 s{c.s_w}, 0\ns_cbranch_scc1 {Ls}")
        c.signal(c.s_f, vt)
        k(f"{Ls}:")
        if idle: idle()
        k(f"s_cmp_lg_u32 s{c.s_w}, 0\ns_cbranch_scc1 {Ln}")
        c.poll(c.s_p, n, vt, stmp)
        k(f"{Ln}:\ns_barrier")
    P3.setup()
    k(f"""s_lshr_b32 s{c.s_p}, s{P3.s_tb16}, 4
    s_lshl_b32 s{c.s_p}, s{c.s_p}, {FL+5}
    s_add_u32 s{c.s_p}, s{c.s_p}, {F2}
    s_waitcnt vmcnt({0 if cin else 3})""")
    def idle3():
        P3.keep_addr(); P3.load_cinit()
    handoff(P3.vt[0], P3.s_t0, 32, idle3 if cin else None)
    k.stamp('n')
    if o.get('fine') == 3: P3.fine = {0: 2, 1: 3, 4: 4, 8: 5, 12: 6, 16: 7, 19: 8}
    P3.main(init=False, resident=True)
    P3.lateD = o.get('lateD', True)
    if not P3.lateD: k("s_barrier")
    P3.epilogue()
    k(f"""s_lshr_b32 s{c.s_f}, s{P3.s_tb16}, 3
    s_lshl_b32 s{c.s_f}, s{c.s_f}, 5
    s_bfe_u32 s{P3.s_t0}, s{P3.s_tb16}, 0x10002
    s_lshl_b32 s{P3.s_t0}, s{P3.s_t0}, 3
    s_add_u32 s{c.s_f}, s{c.s_f}, s{P3.s_t0}
    s_add_u32 s{c.s_f}, s{c.s_f}, s{P3.s_c}
    s_lshl_b32 s{c.s_f}, s{c.s_f}, {FL}
    s_add_u32 s{c.s_f}, s{c.s_f}, {F3}""")
    Q4 = P4(c, D=o.get('D4', 12), D0=o.get('D40', 4)); Q4.ahead = o.get('ahead4', 4); Q4.thin = o.get('thin4'); Q4.nob = o.get('nob'); Q4.mcorr = o.get('mcorr', True); Q4.lstat = o.get('lstat', True); Q4.bsched = o.get('bsched', (1, 2)); Q4.tmaj = o.get('tmaj', True); Q4.pkall = o.get('pkall', False); Q4.jstart = o.get('jstart', 2)
    if Q4.tmaj: Q4.wsched = o.get('wsched', {4: (), 5: (0, 1), 6: (2, 3), 7: (4, 5, 6)})
    Q4.ids(); Q4.setup()
    k(f"""s_lshr_b32 s{c.s_p}, s{Q4.s_tb}, 2
    s_lshl_b32 s{c.s_p}, s{c.s_p}, {FL+5}
    s_add_u32 s{c.s_p}, s{c.s_p}, {F3}
    s_waitcnt vmcnt(0)""")
    k.stamp('n')
    handoff(Q4.st, Q4.s_t1, 16)
    k.stamp('n')
    Q4.fine2 = o.get('fine') == 41
    if o.get('fine') == 4: Q4.fine = {0: 2, 1: 3, 4: 4, 12: 5, 20: 6, 30: 7, 31: 8}
    noG = Q4.tmaj and o.get('e5', 4) >= o.get('pre5', 4) and o.get('noG', True)
    Q4.main(init=False, endbar=not noG)
    if not Q4.tmaj: Q4.epilogue(k.label("fin"))
    k(f"""s_lshr_b32 s{c.s_f}, s{Q4.s_tb}, 2
    s_lshl_b32 s{c.s_f}, s{c.s_f}, 5
    s_add_u32 s{c.s_f}, s{c.s_f}, s{Q4.s_g}
    s_lshl_b32 s{c.s_f}, s{c.s_f}, {FL}
    s_add_u32 s{c.s_f}, s{c.s_f}, {F4}""")
    pair5 = o.get('pair5', True)
    P5 = P35(c, 5, D=o.get('D5', 8 if pair5 else 12), D0=o.get('D50', 4), pair=pair5); P5.ahead = o.get('ahead5', 5); P5.rowmap = o.get('row5', True); P5.bar8 = o.get('bar8', True); P5.ofl = o.get('ofl', ''); P5.wpace = o.get('wpace', 0)
    k("; ---- P5 down")
    k("s_nop 1"); k(P5.ptr_load()); P5.ids(); P5.setup()
    if pair5: P5.setup_pair()
    k(f"""s_lshr_b32 s{c.s_p}, s{P5.s_tb16}, 3
    s_lshl_b32 s{c.s_p}, s{c.s_p}, {FL+5}
    s_add_u32 s{c.s_p}, s{c.s_p}, {F4}
    s_waitcnt vmcnt(0)""")
    k.stamp('n')
    def idle5():
        P5.keep_addr(); P5.load_cinit()
    P5.cinit = cin and P3.rowmap == P5.rowmap
    handoff(P5.vt[0], P5.s_t0, 16, idle5 if P5.cinit else None)
    k.stamp('n')
    if o.get('fine') == 5: P5.fine = {0: 2, 1: 3, 8: 4, 16: 5, 28: 6, 40: 7, 53: 8}
    if pair5:
        if o.get('fine') == 5: P5.fine = {0: 2, 1: 3, 4: 4, 8: 5, 14: 6, 20: 7, 26: 8}
        P5.main_pair()
    else: P5.main(init=False)
    P5.epilogue()
    if o.get('dbgst') is not None:
        Ln = k.label("dn")
        k.stamp(14); k.stamp_real(15)
        k(f"s_cmp_lg_u32 s2, {o['dbgst']}\ns_cbranch_scc1 {Ln}\ns_cmp_lg_u32 s{s_w}, 0\ns_cbranch_scc1 {Ln}\ns_waitcnt lgkmcnt(0)\nv_mov_b32 v1, 0\ns_mov_b64 exec, 1")
        pos = [1, 2, 3, 5, 6, 7, 9, 10, 11, 13, 14, 15]
        src = [2, 3, 6, 7, 8, 9, 11, 12, 13, 14]
        for p_, i in zip(pos, src):
            k(f"s_sub_u32 s66, s{k.sT+2*i}, s{k.sT+2}\nv_mov_b32 v2, s66\nbuffer_store_dword v2, v1, {sr(sD,4)}, 0 offen offset:{4*p_}")
        k(f"s_sub_u32 s66, s{k.sT+30}, s{k.sT}\nv_mov_b32 v2, s66\nbuffer_store_dword v2, v1, {sr(sD,4)}, 0 offen offset:60\n{Ln}:\ns_endpgm")
        k(f"{c.L_end}:\ns_endpgm")
    else:
        c.finish()
    k(f"{L3}:")
    if early:
        P3.ld_setup()
        k(f"s_add_u32 s{P3.s_wo}, s{P3.s_wo}, {16*40960}\ns_waitcnt vmcnt(0)\ns_barrier")
        if early == 2:
            k(f"s_add_u32 s{P3.s_m0}, s{P3.s_m0}, 12288\ns_cmp_eq_u32 s{c.s_wl}, 3\ns_cselect_b32 s{P3.s_m0}, 57344, s{P3.s_m0}")
        P3.ld_chunk(0)
        k("s_waitcnt vmcnt(0)\ns_barrier")
    else:
        Lp = k.label("fp"); Lok = k.label("fpok")
        k(f"""s_mov_b32 s{P3.s_cnt}, 0
        s_waitcnt vmcnt(2)
        {Lp}:
        v_min_u32 v{vfp}, v{vfp}, v{vfp+1}
        v_min3_u32 v{vfp}, v{vfp}, v{vfp+2}, v{vfp+3}
        s_add_u32 s{P3.s_cnt}, s{P3.s_cnt}, 1
        v_cmp_ne_u32 vcc, 0, v{vfp}
        s_cmp_eq_u64 vcc, -1
        s_cbranch_scc1 {Lok}
        s_cmp_gt_u32 s{P3.s_cnt}, 0x40000
        s_cbranch_scc1 {Lok}
        s_mov_b32 s{P3.s_t0}, {FP}
        buffer_load_dwordx4 {vr(vfp,4)}, v{c.vl16}, {sr(c.sO,4)}, s{P3.s_t0} offen sc1
        s_waitcnt vmcnt(0)
        s_branch {Lp}
        {Lok}:""")
        P3.ld_setup()
        k("s_waitcnt vmcnt(0)\ns_barrier")
        for ch in range(5): P3.ld_chunk(ch)
        k("s_waitcnt vmcnt(0)\ns_barrier")
    if fp2 or fpo:
        Ln = k.label("c2"); Lq = k.label("c2l")
        k(f"""s_cmp_lg_u32 s{c.s_w}, 4
        s_cbranch_scc1 {Ln}
        s_mov_b32 s{P3.s_cnt}, 0
        s_mov_b32 s{P3.s_t0}, {FP2 if fp2 else FP}
        {Lq}:
        buffer_load_dwordx4 {vr(vfp,4)}, v{c.vl16}, {sr(c.sO,4)}, s{P3.s_t0} offen sc1
        s_add_u32 s{P3.s_cnt}, s{P3.s_cnt}, 1
        s_cmp_gt_u32 s{P3.s_cnt}, 0x40000
        s_cbranch_scc1 {Ln}
        s_waitcnt vmcnt(0)
        v_min_u32 v{vfp}, v{vfp}, v{vfp+1}
        v_min3_u32 v{vfp}, v{vfp}, v{vfp+2}, v{vfp+3}
        v_cmp_ne_u32 vcc, 0, v{vfp}
        s_cmp_eq_u64 vcc, -1
        s_cbranch_scc0 {Lq}
        {Ln}:""")
    Q4.ids(); Q4.ld_setup()
    CH4 = 4 * 112 * 1024
    if early == 2:
        k(f"s_add_u32 s{Q4.s_wo}, s{Q4.s_wo}, {CH4}"); Q4.ld_chunk(1); k(f"s_sub_u32 s{Q4.s_wo}, s{Q4.s_wo}, {2*CH4}")
    k("s_barrier")
    n4 = o.get('pre4', 3 if early == 2 else 2)
    for ch in range(n4):
        if early == 2 and ch == 1: k(f"s_add_u32 s{Q4.s_wo}, s{Q4.s_wo}, {CH4}")
        else: Q4.ld_chunk(ch)
    k("s_barrier")
    nF = o.get('nF', 5)
    for ch in range(n4, nF): Q4.ld_chunk(ch)
    if nF == 5: Q4.ld_cs()
    k(f"s_waitcnt vmcnt({7*(nF-1-(early == 2)) + (nF == 5)})\ns_barrier")
    for ch in range(nF, 5): Q4.ld_chunk(ch)
    if nF < 5: Q4.ld_cs()
    rg5 = None
    if o.get('reg5', True):
        nreg = o.get('nreg', 7)
        rg5 = dict(base=20, addr=[8, 9, 10], n=nreg)
        Q4.wsched = {ch: tuple(j for j in js if j < nreg) for ch, js in Q4.wsched.items()}
        s5 = 64
        def warm():
            if P5.rowmap: k(f"s_lshr_b32 s{Q4.s_t0}, s2, 5")
            else: k(f"""s_bfe_u32 s{Q4.s_t0}, s2, 0x10002
            s_lshl_b32 s{Q4.s_t0}, s{Q4.s_t0}, 2
            s_lshr_b32 s{Q4.s_t1}, s2, 6
            s_add_u32 s{Q4.s_t0}, s{Q4.s_t0}, s{Q4.s_t1}""")
            k(f"""s_lshl_b32 s{Q4.s_t1}, s{c.s_wl}, 3
            s_add_u32 s{Q4.s_t0}, s{Q4.s_t0}, s{Q4.s_t1}
            s_mul_i32 s{Q4.s_t0}, s{Q4.s_t0}, 5120
            s_add_u32 s{Q4.s_t0}, s{Q4.s_t0}, {WDP + (56 - 4*nreg)*40960}""")
        def warm_chunk(j):
            k(f"s_add_u32 s{Q4.s_t1}, s{Q4.s_t0}, 4096")
            for i in range(5):
                k(f"buffer_load_dwordx4 {vr(rg5['base'] + 20*j + 4*i, 4)}, v{c.vl16}, {sr(c.sO,4)}, s{Q4.s_t0 if i < 4 else Q4.s_t1} offen offset:{(i%4)*1024}")
            k(f"s_add_u32 s{Q4.s_t0}, s{Q4.s_t0}, {4*40960}")
        Q4.warm = warm; Q4.warm_chunk = warm_chunk
    if Q4.lstat: Q4.ld_stats()
    e5 = o.get('e5', 4) if Q4.tmaj else 0
    if e5:
        ws7 = Q4.wsched[7]; Q4.wsched = dict(Q4.wsched); Q4.wsched[7] = ()
        sv = (k.s(), )
    Q4.ld_main(5, 1, init=False)
    if e5: k(f"s_mov_b32 s{c.s_p}, s{Q4.s_t0}")
    P5.ids(); P5.ld_setup()
    k(f"""v_add_u32 v8, s{P5.s_m0}, v{c.vl16}
    v_add_u32 v9, {3*P5.SLOT}, v8
    v_add_u32 v10, {6*P5.SLOT}, v8""")
    if e5:
        def wc(j):
            k(f"s_add_u32 s{c.s_f}, s{c.s_p}, 4096")
            for i in range(5):
                k(f"buffer_load_dwordx4 {vr(rg5['base'] + 20*j + 4*i, 4)}, v{c.vl16}, {sr(c.sO,4)}, s{c.s_p if i < 4 else c.s_f} offen offset:{(i%4)*1024}")
            k(f"s_add_u32 s{c.s_p}, s{c.s_p}, {4*40960}")
        th = o.get('thin5')
        if o.get('e5first'):
            for ch in range(e5):
                P5.ld_chunk(ch)
                if th is not None: k(f"s_waitcnt vmcnt({th})")
        for j in ws7:
            wc(j)
            if th is not None: k(f"s_waitcnt vmcnt({th})")
        if not o.get('e5first'):
            for ch in range(e5):
                P5.ld_chunk(ch)
                if th is not None and ch < e5 - 1: k(f"s_waitcnt vmcnt({th})")
    if not noG: k("s_barrier")
    n5 = max(e5, o.get('pre5', 4))
    for ch in range(e5, n5): P5.ld_chunk(ch)
    k("s_barrier")
    for ch in range(n5, 7): P5.ld_chunk(ch)
    if P5.bar8:
        k("s_waitcnt vmcnt(25)\ns_barrier")
        P5.ld_main8(rg5, 1 if pair5 else 0)
    else:
        k("s_waitcnt vmcnt(30)\ns_barrier")
        P5.ld_main(7, init=False)
    if K.STAMP and o.get('dbgst') is None:
        for i in range(9, 15): k.stamp(i)
        k.stamp_flush(c.sO, c.s_w)
    k("s_endpgm")
    k.lines += ['    ; ---- softmax fall-back with the true row maximum'] + slow_code + ['    ; ---- statistics workgroups'] + spare_code
    return k, (256, 512, max(P3.lds, Q4.lds, P5.lds, P35.HKEEP + 10240 + 512 if cin else 0))
```

```python
from ph import *

def lw(c, L):
    c.k(f"s_cmp_ge_u32 s{c.s_w}, 4\ns_cbranch_scc1 {L}")

class P35:
    def __init__(self, c, which, D=12, D0=None, pair=False, early=False):
        self.c = c; self.k3 = k3 = which == 3; k = c.k
        self.NU = 20 if k3 else 54; self.CK = 4; self.SLOT = 20480
        self.NCH = (self.NU + 3) // 4; self.NSL = 5 if k3 else 7
        self.XS = self.NSL * self.SLOT; self.D = D; self.D0 = D0 or D
        self.early = early
        if early: self.XS = 0 if early == 2 else 40960
        self.lds = (self.XS + 4 * 3072) if not early else 73728 + 4 * 20480
        c.reset()
        self.sPX = k.s(2); self.sB = k.s(4); self.sX = k.s(4)
        (self.s_tb16, self.s_c, self.s_t0, self.s_t1, self.s_t2, self.s_bo, self.s_wo, self.s_m0, self.s_xs, self.s_ho,
         self.s_cnt) = [k.s() for _ in range(11)]
        self.vt = [k.v() for _ in range(6)]; self.vH = k.v(); self.vD = k.v(); self.vA = [k.v() for _ in range(3)]
        self.vrow = [k.v() for _ in range(3)]; self.vR = k.v(); self.vK = k.v()
        self.acc = k.v(20, 4); self.fa = [k.v(20, 4) for _ in range(3)]; self.res = k.v(12, 4)
        self.fb = k.v(4 * self.D * (2 if pair else 1), 4)
        if pair: self.accY = k.v(20, 4); self.s_boY = k.s(); self.vE = [k.v(), k.v()]
    def ptr_load(self): return f"s_load_dwordx2 {sr(self.sPX,2)}, s[0:1], {KA_X if self.k3 else KA_OUT}"
    rowmap = False
    ofl = ''
    bar8 = False
    wpace = 0
    def ld_main8(self, regs=None, free1=0):
        k = self.c.k; c = self.c
        issued = 7; first = 14 - (regs['n'] if regs else 0)
        for kb in range(6):
            need = min(13, 2 * kb + 3)
            k(f"s_waitcnt vmcnt({5*max(0, min(issued, first) - 1 - need)}) lgkmcnt(0)")
            k("s_barrier")
            while issued < 14 and issued <= 2 * kb + 7 + free1:
                slot = issued % 7
                if issued < first: self.ld_chunk(slot)
                else:
                    for i in range(5):
                        k(f"ds_write_b128 v{regs['addr'][slot // 3]}, {vr(regs['base'] + 20*(issued-first) + 4*i, 4)} offset:{(slot % 3)*self.SLOT + i*1024}")
                issued += 1
    def ids(self):
        k = self.c.k
        if self.rowmap:
            k(f"""s_and_b32 s{self.s_t0}, s2, 7
            s_lshl_b32 s{self.s_t0}, s{self.s_t0}, 2
            s_bfe_u32 s{self.s_t1}, s2, 0x20003
            s_add_u32 s{self.s_tb16}, s{self.s_t0}, s{self.s_t1}
            s_lshl_b32 s{self.s_tb16}, s{self.s_tb16}, 2
            s_add_u32 s{self.s_tb16}, s{self.s_tb16}, s{self.c.s_wl}
            s_lshr_b32 s{self.s_c}, s2, 5""")
            return
        k(f"""s_and_b32 s{self.s_t0}, s2, 3
        s_lshl_b32 s{self.s_t0}, s{self.s_t0}, 3
        s_bfe_u32 s{self.s_t1}, s2, 0x30003
        s_add_u32 s{self.s_tb16}, s{self.s_t0}, s{self.s_t1}
        s_lshl_b32 s{self.s_tb16}, s{self.s_tb16}, 2
        s_add_u32 s{self.s_tb16}, s{self.s_tb16}, s{self.c.s_wl}
        s_bfe_u32 s{self.s_t0}, s2, 0x10002
        s_lshl_b32 s{self.s_t0}, s{self.s_t0}, 2
        s_lshr_b32 s{self.s_t1}, s2, 6
        s_add_u32 s{self.s_c}, s{self.s_t0}, s{self.s_t1}""")
    def ld_setup(self):
        k = self.c.k
        k(f"""s_mul_i32 s{self.s_wo}, s{self.c.s_wl}, 8
        s_add_u32 s{self.s_wo}, s{self.s_wo}, s{self.s_c}
        s_mul_i32 s{self.s_wo}, s{self.s_wo}, 5120
        s_add_u32 s{self.s_wo}, s{self.s_wo}, {WOP if self.k3 else WDP}
        s_mul_i32 s{self.s_m0}, s{self.c.s_wl}, 5120""")
    def ld_chunk(self, slot):
        k = self.c.k; c = self.c
        k(f"s_add_u32 m0, s{self.s_m0}, {slot*self.SLOT}\ns_add_u32 s{self.s_t2}, s{self.s_wo}, 4096")
        for i in range(4):
            k(f"buffer_load_dwordx4 v{c.vl16}, {sr(c.sO,4)}, s{self.s_wo} offen offset:{i*1024}{c.lsc} lds")
        k(f"s_add_u32 m0, m0, 4096\ns_add_u32 s{self.s_wo}, s{self.s_wo}, {4*40960}")
        k(f"buffer_load_dwordx4 v{c.vl16}, {sr(c.sO,4)}, s{self.s_t2} offen{c.lsc} lds")
    def ld_main(self, issued, init=True):
        k = self.c.k; NCH = self.NCH
        if init: k(f"s_waitcnt vmcnt({5*(issued-1)})\ns_barrier")
        for ch in range(NCH - 1):
            k(f"s_waitcnt vmcnt({5*max(0, issued-ch-2)})\ns_barrier")
            while issued < NCH and issued < ch + self.NSL and issued <= ch + 1 + self.ahead:
                self.ld_chunk(issued % self.NSL); issued += 1
    def setup(self):
        k = self.c.k; c = self.c; vt = self.vt; vl = c.vl
        for i in range(3):
            k(f"""v_add_u32 v{vt[0]}, {64*i}, v{vl}
            v_mul_u32_u24 v{vt[1]}, 6554, v{vt[0]}
            v_lshrrev_b32 v{vt[1]}, 16, v{vt[1]}
            v_mul_u32_u24 v{vt[1]}, {1280-160}, v{vt[1]}
            v_lshl_add_u32 v{self.vrow[i]}, v{vt[0]}, 4, v{vt[1]}""")
        k(f"""s_mul_i32 s{self.s_t1}, s{self.s_tb16}, {16*1280}
        s_mul_i32 s{self.s_t2}, s{self.s_c}, 160
        s_add_u32 s{self.s_t1}, s{self.s_t1}, s{self.s_t2}
        s_waitcnt lgkmcnt(0)
        s_add_u32 s{self.sX}, s{self.sPX}, s{self.s_t1}
        s_addc_u32 s{self.sX+1}, s{self.sPX+1}, 0
        s_sub_u32 s{self.sX+2}, {2048*1280}, s{self.s_t1}
        s_mov_b32 s{self.sX+3}, 0x20000
        s_mul_i32 s{self.s_xs}, s{c.s_wl}, 3072
        s_add_u32 s{self.s_xs}, s{self.s_xs}, {self.XS}""")
        if self.k3:
            k(f"s_mov_b32 m0, s{self.s_xs}")
            for i in range(3):
                k(f"s_nop 0\nbuffer_load_dwordx4 v{self.vrow[i]}, {sr(self.sX,4)}, 0 offen lds")
                if i < 2: k("s_add_u32 m0, m0, 1024")
        k(f"""v_lshrrev_b32 v{vt[0]}, 4, v{vl}
        v_and_b32 v{vt[1]}, 15, v{vl}
        v_lshlrev_b32 v{vt[2]}, 4, v{vt[1]}
        v_lshl_add_u32 v{self.vH}, v{vt[0]}, 9, v{vt[2]}
        v_lshlrev_b32 v{self.vR}, 3, v{vt[1]}
        v_lshl_add_u32 v{self.vR}, v{vt[0]}, 8, v{self.vR}
        s_lshr_b32 s{self.s_t1}, s{self.s_tb16}, 1
        s_mul_i32 s{self.s_t1}, s{self.s_t1}, 40
        s_mul_i32 s{self.s_t2}, s{self.s_c}, 5
        s_add_u32 s{self.s_t1}, s{self.s_t1}, s{self.s_t2}
        s_lshl_b32 s{self.s_t1}, s{self.s_t1}, 10
        s_and_b32 s{self.s_t2}, s{c.s_w}, 1
        s_lshl_b32 s{self.s_t2}, s{self.s_t2}, 8
        s_add_u32 s{self.s_t1}, s{self.s_t1}, s{self.s_t2}
        s_add_u32 s{self.s_ho}, s{self.s_t1}, {HIMG}
        v_mul_u32_u24 v{vt[1]}, 160, v{vt[1]}
        v_lshl_add_u32 v{vt[1]}, v{vt[0]}, 3, v{vt[1]}
        v_add_u32 v{self.vD}, s{self.s_xs}, v{vt[1]}
        v_add_u32 v{self.vA[0]}, {73728 if self.early else 0}, v{c.vl16}
        v_add_u32 v{self.vA[1]}, {(73728 if self.early else 0) + 3*self.SLOT}, v{c.vl16}
        v_add_u32 v{self.vA[2]}, {(12288 if self.early == 2 else 0) if self.early else 6*self.SLOT}, v{c.vl16}
        s_mul_i32 s{self.s_bo}, s{self.s_tb16}, {self.NU*1024}
        s_add_u32 s{self.s_bo}, s{self.s_bo}, {OIMG if self.k3 else ACT}""")
    def loadB(self, u):
        k = self.c.k; c = self.c
        if self.k3 and u >= 16:
            for j in range(2):
                k(f"buffer_load_dwordx2 {vr(self.fb+4*(u % self.D)+2*j,2)}, v{self.vR}, {sr(c.sO,4)}, s{self.s_bo} offen offset:{(u%4)*1024+128*j}{c.lsc}")
            return 2
        k(f"buffer_load_dwordx4 {vr(self.fb+4*(u % self.D),4)}, v{c.vl16}, {sr(c.sO,4)}, s{self.s_bo} offen offset:{(u%4)*1024}{c.lsc}")
        if u % 4 == 3: k(f"s_add_u32 s{self.s_bo}, s{self.s_bo}, 4096")
        return 1
    def rdA(self, u):
        slot = (u // 4) % self.NSL
        if self.early == 2 and u == 19:
            return [f"ds_read_b128 {vr(self.fa[u%3]+4*T,4)}, v{self.vA[2]} offset:{57344-12288+T*1024}" for T in range(5)]
        if self.early and slot == 4: slot = 6
        return [f"ds_read_b128 {vr(self.fa[u%3]+4*T,4)}, v{self.vA[slot//3]} offset:{(slot%3)*self.SLOT+((u%4)*5+T)*1024}" for T in range(5)]
    def main(self, init=True, resident=False):
        k = self.c.k; c = self.c; NU = self.NU; D = self.D; res = self.res
        order = []
        def resld():
            k(f"""s_add_u32 s{self.s_t1}, s{self.s_ho}, 4096
            buffer_load_dwordx4 {vr(res,4)}, v{self.vH}, {sr(c.sO,4)}, s{self.s_ho} offen{c.lsc}
            buffer_load_dwordx4 {vr(res+4,4)}, v{self.vH}, {sr(c.sO,4)}, s{self.s_ho} offen offset:2048{c.lsc}
            buffer_load_dwordx4 {vr(res+8,4)}, v{self.vH}, {sr(c.sO,4)}, s{self.s_t1} offen{c.lsc}""")
            order.extend('rrr')
        nxt = 0
        for u in range(self.D0):
            order.extend([u] * self.loadB(u)); nxt += 1
        if not c.fused: k.stamp(2)
        if init: k("s_barrier")
        if not c.fused: k.stamp(3)
        for x in self.rdA(0) + self.rdA(1): k(x)
        for u in range(NU):
            rd = []
            if self.bar8:
                if u % 8 == 6 and u < 48: k("s_barrier")
            elif u % 4 == 2 and u // 4 < self.NCH - 1 and not resident: k("s_barrier")
            if u + 2 < NU: rd = self.rdA(u + 2)
            younger = order[::-1].index(u)
            if u == NU - 1: younger = 0
            k(f"s_waitcnt vmcnt({younger}) lgkmcnt({5 if u + 1 < NU else 0})")
            if u in getattr(self, 'fine', {}): k.stamp(self.fine[u]); k("s_waitcnt lgkmcnt(0)") if K.STAMP else None
            b = self.fb + 4 * (u % D)
            for T in range(5):
                k(f"{MF} {vr(self.acc+4*T,4)}, {vr(self.fa[u%3]+4*T,4)}, {vr(b,4)}, {'0' if u == 0 and not self.cinit else vr(self.acc+4*T,4)}")
                if T < len(rd): k(rd[T])
                if T == 2 and nxt < NU and nxt < u + D:
                    order.extend([nxt] * self.loadB(nxt)); nxt += 1
            if nxt < NU and nxt <= u + D:
                order.extend([nxt] * self.loadB(nxt)); nxt += 1
            if not self.k3 and u == NU - 12: resld()
        if self.k3 and not self.cinit:
            for T in range(5): k(f"ds_read_b64 {vr(self.fa[0]+2*T,2)}, v{self.vD} offset:{T*32}")
            k("s_waitcnt lgkmcnt(0)")
    cinit = False
    lateD = False
    HKEEP = 152576
    def load_cinit(self):
        k = self.c.k; c = self.c; src = self.fa[0]
        if self.k3:
            for T in range(5): k(f"ds_read_b64 {vr(src+2*T,2)}, v{self.vD} offset:{T*32}")
        else:
            for p in range(3): k(f"ds_read_b128 {vr(src+4*p,4)}, v{self.vK} offset:{p*1024}")
        k("s_waitcnt lgkmcnt(0)")
        if not self.k3:
            for p in range(3):
                k(f"v_permlane32_swap_b32 v{src+4*p}, v{src+4*p+2}\nv_permlane32_swap_b32 v{src+4*p+1}, v{src+4*p+3}")
        for T in range(5):
            for d in range(2):
                k(f"v_lshlrev_b32 v{self.acc+4*T+2*d}, 16, v{src+2*T+d}\nv_and_b32 v{self.acc+4*T+2*d+1}, 0xffff0000, v{src+2*T+d}")
    def keep_addr(self):
        k = self.c.k; c = self.c
        k(f"""s_mul_i32 s{self.s_t1}, s{c.s_wl}, 2560
        s_add_u32 s{self.s_t1}, s{self.s_t1}, {self.HKEEP}
        v_add_u32 v{self.vK}, s{self.s_t1}, v{c.vl16}""")
    def setup_pair(self):
        k = self.c.k; c = self.c
        k(f"""s_and_b32 s{self.s_t1}, s{c.s_w}, 1
        s_mul_i32 s{self.s_t2}, s{self.s_t1}, 5120
        v_add_u32 v{self.vA[0]}, s{self.s_t2}, v{c.vl16}
        v_add_u32 v{self.vA[1]}, {3*self.SLOT}, v{self.vA[0]}
        v_add_u32 v{self.vA[2]}, {6*self.SLOT}, v{self.vA[0]}
        s_lshl_b32 s{self.s_t1}, s{self.s_t1}, 10
        s_add_u32 s{self.s_t1}, s{self.s_t1}, {OIMG if self.k3 else ACT}
        s_mul_i32 s{self.s_bo}, s{self.s_tb16}, {self.NU*1024}
        s_add_u32 s{self.s_bo}, s{self.s_bo}, s{self.s_t1}
        s_xor_b32 s{self.s_boY}, s{self.s_tb16}, 1
        s_mul_i32 s{self.s_boY}, s{self.s_boY}, {self.NU*1024}
        s_add_u32 s{self.s_boY}, s{self.s_boY}, s{self.s_t1}
        s_mul_i32 s{self.s_t1}, s{c.s_w}, 5120
        v_add_u32 v{self.vE[0]}, s{self.s_t1}, v{c.vl16}
        s_xor_b32 s{self.s_t1}, s{c.s_w}, 1
        s_mul_i32 s{self.s_t1}, s{self.s_t1}, 5120
        v_add_u32 v{self.vE[1]}, s{self.s_t1}, v{c.vl16}""")
    def main_pair(self):
        k = self.c.k; c = self.c; N = self.NU // 2; D = self.D; res = self.res
        order = []
        def loadB(u, y):
            so = self.s_boY if y else self.s_bo
            k(f"buffer_load_dwordx4 {vr(self.fb+8*(u % D)+4*y,4)}, v{c.vl16}, {sr(c.sO,4)}, s{so} offen offset:{(u%2)*2048}{c.lsc}")
            if u % 2 == 1: k(f"s_add_u32 s{so}, s{so}, 4096")
            order.append((u, y))
        def rdA(u):
            slot = (u // 2) % self.NSL
            return [f"ds_read_b128 {vr(self.fa[u%2]+4*T,4)}, v{self.vA[slot//3]} offset:{(slot%3)*self.SLOT+((u%2)*10+T)*1024}" for T in range(5)]
        q = [(u, y) for u in range(N) for y in range(2)]
        for _ in range(2 * self.D0): loadB(*q.pop(0))
        for x in rdA(0): k(x)
        for u in range(N):
            younger = 0 if u == N - 1 else len(order) - 1 - order.index((u, 1))
            k(f"s_waitcnt vmcnt({younger}) lgkmcnt(0)")
            if u in getattr(self, 'fine', {}): k.stamp(self.fine[u])
            bar = u % 4 == 3 and u < 24
            rd = rdA(u + 1) if u + 1 < N else []
            b = self.fb + 8 * (u % D)
            for i in range(10):
                T = i // 2; y = 1 - (i & 1)
                if u == N - 1: T = i % 5; y = 1 - i // 5
                a = (self.acc, self.accY)[y] + 4 * T
                k(f"{MF} {vr(a,4)}, {vr(self.fa[u%2]+4*T,4)}, {vr(b+4*y,4)}, {'0' if u == 0 and (y or not self.cinit) else vr(a,4)}")
                if bar and i == 1: k("s_barrier")
                j = i - (1 if bar else 0)
                if 0 <= j < len(rd): k(rd[j])
                if i in (5, 7) and q and q[0][0] < u + D: loadB(*q.pop(0))
                if i in (6, 8) and q and q[0][0] < u + D and len(order) < 2 * (u + D) - 2: loadB(*q.pop(0))
            if u == N - 8 and not self.cinit:
                k(f"""s_add_u32 s{self.s_t1}, s{self.s_ho}, 4096
                buffer_load_dwordx4 {vr(res,4)}, v{self.vH}, {sr(c.sO,4)}, s{self.s_ho} offen{c.lsc}
                buffer_load_dwordx4 {vr(res+4,4)}, v{self.vH}, {sr(c.sO,4)}, s{self.s_ho} offen offset:2048{c.lsc}
                buffer_load_dwordx4 {vr(res+8,4)}, v{self.vH}, {sr(c.sO,4)}, s{self.s_t1} offen{c.lsc}""")
                order.extend('rrr')
        assert not q
        for T in range(5): k(f"ds_write_b128 v{self.vE[0]}, {vr(self.accY+4*T,4)} offset:{T*1024}")
        k("s_waitcnt lgkmcnt(0)\ns_barrier")
        for T in range(5): k(f"ds_read_b128 {vr(self.fb+4*T,4)}, v{self.vE[1]} offset:{T*1024}")
        for T in range(5):
            k(f"s_waitcnt lgkmcnt({4-T})")
            for p in range(2): k(f"v_pk_add_f32 {vr(self.acc+4*T+2*p,2)}, {vr(self.acc+4*T+2*p,2)}, {vr(self.fb+4*T+2*p,2)}")
    def epilogue(self):
        k = self.c.k; c = self.c; t = self.vt; acc = self.acc; res = self.res; sO = c.sO; vH = self.vH; sc = c.sc
        pk = self.fa[1]
        if self.k3: k(f"s_mov_b32 s{self.s_cnt}, 0x3f803f80\nv_mov_b32 v{t[0]}, 0\nv_mov_b32 v{t[1]}, 0\nv_mov_b32 v{pk+10}, 0\nv_mov_b32 v{pk+11}, 0")
        if self.cinit:
            for i in range(10): k(f"v_cvt_pk_bf16_f32 v{pk+i}, v{acc+2*i}, v{acc+2*i+1}")
        else:
            src = self.fa[0]
            if not self.k3:
                for p in range(3):
                    k(f"v_permlane32_swap_b32 v{res+4*p}, v{res+4*p+2}\nv_permlane32_swap_b32 v{res+4*p+1}, v{res+4*p+3}")
                src = res
            for T in range(5):
                for d in range(2):
                    x = src + 2 * T + d; a = acc + 4 * T + 2 * d
                    k(f"""v_lshlrev_b32 v{t[2+2*d]}, 16, v{x}
                    v_and_b32 v{t[3+2*d]}, 0xffff0000, v{x}
                    v_add_f32 v{a}, v{a}, v{t[2+2*d]}
                    v_add_f32 v{a+1}, v{a+1}, v{t[3+2*d]}
                    v_cvt_pk_bf16_f32 v{pk+2*T+d}, v{a}, v{a+1}""")
        if self.k3:
            for p in range(3):
                k(f"v_permlane32_swap_b32 v{pk+4*p}, v{pk+4*p+2}\nv_permlane32_swap_b32 v{pk+4*p+1}, v{pk+4*p+3}")
            k(f"""s_add_u32 s{self.s_t1}, s{self.s_ho}, 4096
            buffer_store_dwordx4 {vr(pk,4)}, v{vH}, {sr(sO,4)}, s{self.s_ho} offen{sc}
            buffer_store_dwordx4 {vr(pk+4,4)}, v{vH}, {sr(sO,4)}, s{self.s_ho} offen offset:2048{sc}
            s_mov_b32 exec_hi, 0
            buffer_store_dwordx4 {vr(pk+8,4)}, v{vH}, {sr(sO,4)}, s{self.s_t1} offen{sc}
            s_mov_b32 exec_hi, -1""")
            if self.lateD: k("s_barrier")
            if self.cinit:
                k(f"""ds_write_b128 v{self.vK}, {vr(pk,4)}
                ds_write_b128 v{self.vK}, {vr(pk+4,4)} offset:1024
                s_mov_b32 exec_hi, 0
                ds_write_b128 v{self.vK}, {vr(pk+8,4)} offset:2048
                s_mov_b32 exec_hi, -1""")
            for i in range(12):
                k(f"v_dot2c_f32_bf16 v{t[0]}, s{self.s_cnt}, v{pk+i}\nv_dot2c_f32_bf16 v{t[1]}, v{pk+i}, v{pk+i}")
            k(f"""v_mov_b32 v{t[2]}, v{t[0]}
            v_mov_b32 v{t[3]}, v{t[1]}
            v_permlane32_swap_b32 v{t[2]}, v{t[0]}
            v_permlane32_swap_b32 v{t[3]}, v{t[1]}
            v_add_f32 v{t[0]}, v{t[0]}, v{t[2]}
            v_add_f32 v{t[1]}, v{t[1]}, v{t[3]}
            v_mov_b32 v{t[2]}, v{t[0]}
            v_mov_b32 v{t[3]}, v{t[1]}
            v_permlane16_swap_b32 v{t[2]}, v{t[0]}
            v_permlane16_swap_b32 v{t[3]}, v{t[1]}
            v_add_f32 v{acc}, v{t[0]}, v{t[2]}
            v_add_f32 v{acc+1}, v{t[1]}, v{t[3]}
            v_lshlrev_b32 v{t[4]}, 3, v{c.vl}
            s_lshl_b32 s{self.s_t2}, s{self.s_c}, 14
            s_lshl_b32 s{self.s_t0}, s{self.s_tb16}, 7
            s_add_u32 s{self.s_t2}, s{self.s_t2}, s{self.s_t0}
            s_add_u32 s{self.s_t2}, s{self.s_t2}, {STATS}
            s_mov_b64 exec, 0xffff
            buffer_store_dwordx2 {vr(acc,2)}, v{t[4]}, {sr(sO,4)}, s{self.s_t2} offen{sc}
            s_mov_b64 exec, -1""")
        else:
            for T in range(5): k(f"ds_write_b64 v{self.vD}, {vr(pk+2*T,2)} offset:{T*32}")
            k(f"v_add_u32 v{t[0]}, s{self.s_xs}, v{c.vl16}\ns_waitcnt lgkmcnt(0)")
            for i in range(3): k(f"ds_read_b128 {vr(self.fa[0]+4*i,4)}, v{t[0]} offset:{i*1024}")
            for i in range(3):
                k(f"s_waitcnt lgkmcnt({2-i})")
                if i == 2: k("s_mov_b32 exec_hi, 0")
                k(f"buffer_store_dwordx4 {vr(self.fa[0]+4*i,4)}, v{self.vrow[i]}, {sr(self.sX,4)}, 0 offen{self.ofl}")
            k("s_mov_b32 exec_hi, -1")

class P4:
    CK, NSL, NCH, SLOT = 4, 5, 10, 28672
    CSB = 5 * 28672
    def __init__(self, c, D=12, D0=None):
        self.c = c; k = c.k; self.D = D; self.D0 = D0 or D; self.lds = self.CSB + 1024 + 8192
        c.reset()
        (self.s_tb, self.s_g, self.s_t0, self.s_t1, self.s_t2, self.s_bo, self.s_wo, self.s_m0) = [k.s() for _ in range(8)]
        self.vt = [k.v() for _ in range(4)]; self.vA = [k.v() for _ in range(3)]
        self.st = k.v(8, 4); self.par = k.v(6, 2)
        self.acc = [k.v(16, 4) for _ in range(7)]
        self.fa = [k.v(28, 4), k.v(28, 4)]
        self.fb = k.v(4 * D, 4)
        x = k.v(12, 2); self.ca = [x + 2 * i for i in range(6)] + [self.st + 2]
    def ids(self):
        k = self.c.k
        k(f"""s_and_b32 s{self.s_t0}, s2, 1
        s_lshl_b32 s{self.s_t0}, s{self.s_t0}, 3
        s_bfe_u32 s{self.s_t1}, s2, 0x30003
        s_add_u32 s{self.s_tb}, s{self.s_t0}, s{self.s_t1}
        s_lshl_b32 s{self.s_tb}, s{self.s_tb}, 2
        s_add_u32 s{self.s_tb}, s{self.s_tb}, s{self.c.s_wl}
        s_bfe_u32 s{self.s_t0}, s2, 0x20001
        s_lshl_b32 s{self.s_t0}, s{self.s_t0}, 2
        s_lshr_b32 s{self.s_t1}, s2, 6
        s_add_u32 s{self.s_g}, s{self.s_t0}, s{self.s_t1}""")
    def ld_setup(self):
        k = self.c.k
        k(f"""s_mul_i32 s{self.s_wo}, s{self.c.s_wl}, 16
        s_add_u32 s{self.s_wo}, s{self.s_wo}, s{self.s_g}
        s_mul_i32 s{self.s_wo}, s{self.s_wo}, 7168
        s_add_u32 s{self.s_wo}, s{self.s_wo}, {WGUP}
        s_mul_i32 s{self.s_m0}, s{self.c.s_wl}, 7168""")
    thin = None
    def ld_chunk(self, slot, thin=False):
        k = self.c.k; c = self.c
        k(f"s_add_u32 m0, s{self.s_m0}, {slot*self.SLOT}\ns_add_u32 s{self.s_t2}, s{self.s_wo}, 4096")
        for i in range(4):
            k(f"buffer_load_dwordx4 v{c.vl16}, {sr(c.sO,4)}, s{self.s_wo} offen offset:{i*1024}{c.lsc} lds")
        k(f"s_add_u32 m0, m0, 4096\ns_add_u32 s{self.s_wo}, s{self.s_wo}, {4*112*1024}")
        if thin and self.thin is not None: k(f"s_waitcnt vmcnt({self.thin})")
        for i in range(3):
            k(f"buffer_load_dwordx4 v{c.vl16}, {sr(c.sO,4)}, s{self.s_t2} offen offset:{i*1024}{c.lsc} lds")
    def ld_cs(self):
        k = self.c.k; c = self.c
        k(f"""s_mul_i32 s{self.s_t2}, s{self.s_g}, 896
        s_mov_b32 m0, {self.CSB}
        s_add_u32 s{self.s_t2}, s{self.s_t2}, {CSG}
        buffer_load_dwordx4 v{c.vl16}, {sr(c.sO,4)}, s{self.s_t2} offen{c.lsc} lds""")
    def ld_stats(self):
        k = self.c.k; c = self.c
        k(f"""s_lshr_b32 s{self.s_t0}, s{self.s_tb}, 2
        s_lshl_b32 s{self.s_t0}, s{self.s_t0}, 10
        s_lshl_b32 s{self.s_t1}, s{c.s_wl}, 15
        s_add_u32 s{self.s_t0}, s{self.s_t0}, s{self.s_t1}
        s_add_u32 s{self.s_t0}, s{self.s_t0}, {STATS}
        s_lshl_b32 s{self.s_t1}, s{c.s_wl}, 11
        s_add_u32 m0, s{self.s_t1}, {self.CSB + 1024}
        s_add_u32 s{self.s_t1}, s{self.s_t0}, {16384 - 1024}
        buffer_load_dwordx4 v{c.vl16}, {sr(c.sO,4)}, s{self.s_t0} offen{c.lsc} lds
        buffer_load_dwordx4 v{c.vl16}, {sr(c.sO,4)}, s{self.s_t1} offen offset:1024{c.lsc} lds""")
    def ld_main(self, issued, extra, init=True):
        k = self.c.k; NCH = self.NCH
        if init: k(f"s_waitcnt vmcnt({7*(issued-1)+extra})\ns_barrier")
        nw = 0
        for ch in range(NCH - 1 - self.tmaj):
            k(f"s_waitcnt vmcnt({min(63, 7*max(0, issued-ch-2-(self.tmaj and ch == 7)) + 5*nw)})\ns_barrier")
            while issued < NCH and issued <= ch + self.NSL and issued <= ch + 1 + self.ahead:
                self.ld_chunk(issued % self.NSL, True); issued += 1
            if self.warm and ch >= 4:
                assert issued == NCH
                if ch == 4: self.warm()
                for i_, j in enumerate(self.wsched[ch]):
                    if i_ and self.thin is not None: k(f"s_waitcnt vmcnt({self.thin + 1})")
                    self.warm_chunk(j); nw += 1
    warm = None
    mcorr = True
    lstat = True
    bsched = None
    tmaj = False
    pkall = False
    jstart = 2
    nob = False
    wsched = {4: (), 5: (0, 1), 6: (2, 3), 7: (4, 5), 8: (6,)}
    def setup(self):
        k = self.c.k; c = self.c; vt = self.vt
        k(f"""v_mov_b32 v{self.vA[0]}, v{c.vl16}
        v_add_u32 v{self.vA[1]}, {2*self.SLOT}, v{c.vl16}
        v_add_u32 v{self.vA[2]}, {4*self.SLOT}, v{c.vl16}
        s_mul_i32 s{self.s_bo}, s{self.s_tb}, 40960
        s_add_u32 s{self.s_bo}, s{self.s_bo}, {HIMG}
        v_and_b32 v{vt[0]}, 31, v{c.vl}
        v_lshrrev_b32 v{vt[1]}, 5, v{c.vl}
        v_lshlrev_b32 v{vt[2]}, 3, v{vt[0]}
        v_lshl_add_u32 v{vt[2]}, v{vt[1]}, {12 if self.lstat else 16}, v{vt[2]}""")
        if self.lstat: k(f"""s_lshl_b32 s{self.s_t0}, s{c.s_wl}, 8
        s_add_u32 s{self.s_t0}, s{self.s_t0}, {self.CSB + 1024}
        v_add_u32 v{vt[2]}, s{self.s_t0}, v{vt[2]}""")
        else: k(f"s_lshl_b32 s{self.s_t0}, s{self.s_tb}, 8\ns_add_u32 s{self.s_t0}, s{self.s_t0}, {STATS}")
    def loadB(self, u):
        k = self.c.k; c = self.c
        k(f"buffer_load_dwordx4 {vr(self.fb+4*(u % self.D),4)}, v{c.vl16}, {sr(c.sO,4)}, s{self.s_bo} offen offset:{(u%4)*1024}{c.lsc}")
        if u % 4 == 3: k(f"s_add_u32 s{self.s_bo}, s{self.s_bo}, 4096")
    def rdA(self, u):
        slot = (u // 4) % self.NSL
        return [f"ds_read_b128 {vr(self.fa[u&1]+4*T,4)}, v{self.vA[slot//2]} offset:{(slot%2)*self.SLOT+((u%4)*7+T)*1024}" for T in range(7)]
    def main(self, init=True, endbar=False):
        k = self.c.k; c = self.c; D = self.D; st = self.st
        order = []; nxt = 0; pq = self.params(); assert D == 12; crd, ccv = self.corr_prep()
        for u in range(self.D0):
            self.loadB(u); order.append(u); nxt += 1
        if not c.fused: k.stamp(2)
        if init: k("s_barrier")
        if not c.fused: k.stamp(3)
        for x in self.rdA(0): k(x)
        NS_ = 32 if self.tmaj else 40
        seq = [(T, s_) for T in range(7) for s_ in range(32, 40)]
        def rdF(i):
            T, s_ = seq[i]; slot = (s_ // 4) % self.NSL
            return f"ds_read_b128 {vr(self.fa[0]+4*(i%12),4)}, v{self.vA[slot//2]} offset:{(slot%2)*self.SLOT+((s_%4)*7+T)*1024}"
        for u in range(NS_):
            younger = len(order) - 1 - order.index(u)
            if u == 39: younger = 0
            k(f"s_waitcnt vmcnt({younger}) lgkmcnt(0)")
            if u in getattr(self, 'fine', {}): k.stamp(self.fine[u])
            bar = u % 4 == 3 and (u < 39 or endbar)
            rd = self.rdA(u + 1) if u < 39 else []
            if self.tmaj and u == 31: rd = [rdF(i) for i in range(7)]
            b = self.fb + 4 * (u % D)
            r0 = 2 if bar else 0
            for T in range(7):
                k(f"{M16} {vr(self.acc[T],16)}, {vr(self.fa[u&1]+4*T,4)}, {vr(b,4)}, {'0' if u == 0 else vr(self.acc[T],16)}")
                if bar and T == 1: k("s_barrier")
                if T >= r0 - 1 or not bar:
                    j = T - (r0 - 1 if bar else 0)
                    for x in rd[2*j:2*j+2]: k(x)
                if u == 24 and T == 0 and self.mcorr: assert not pq; pq = crd
                if u == 26 and T == 0 and self.mcorr: assert not pq; pq = ccv
                if u >= 17 and T >= 4:
                    for x in pq[:2]: k(x)
                    del pq[:2]
                if self.bsched and u >= 4:
                    if u % 4 in self.bsched and T in ((1, 3, 5) if self.tmaj and u >= 17 else (3, 5)) and nxt < 40 and nxt < u + D:
                        self.loadB(nxt); order.append(nxt); nxt += 1
                elif T == 5 and nxt < 40 and nxt < u + D:
                    self.loadB(nxt); order.append(nxt); nxt += 1
            if nxt < 40 and nxt <= u + D and not (self.bsched and u >= 4):
                if not self.nob: self.loadB(nxt)
                order.append(nxt); nxt += 1
            if u == 16 and self.lstat:
                for i in range(4): k(f"ds_read_b64 {vr(st+2*i,2)}, v{self.vt[2]} offset:{i*1024}")
            if 4 <= u < 12 and u % 2 == 0 and not self.lstat:
                i = (u - 4) // 2
                k(f"buffer_load_dwordx2 {vr(st+2*i,2)}, v{self.vt[2]}, {sr(c.sO,4)}, s{self.s_t0} offen{c.lsc}")
                if i < 3: k(f"s_add_u32 s{self.s_t0}, s{self.s_t0}, 16384")
                order.append('s')
            if u == 38 and self.mcorr: k(self.corr(0))
            if u == 39: assert not pq
        if not self.tmaj: return
        assert not pq and nxt == 40 and self.mcorr
        par = self.par; t = self.vt; tmp = self.fa[0] + 48
        def epi(T, packed):
            A = self.acc[T]; e = []
            def op(pk, pl, n, *regs):
                if packed: e.extend(f"{pk} " + ", ".join(vr(r + 2*p if inc else r, 2) for r, inc in regs) for p in range(4))
                else: e.extend(f"{pl} " + ", ".join(f"v{r + p if inc else r}" for r, inc in regs) for p in range(8))
            op("v_pk_mul_f32", "v_mul_f32", 3, (tmp, 1), (A, 1), (par+2, 0))
            e.extend(f"v_exp_f32 v{tmp+i}, v{tmp+i}" for i in range(8))
            op("v_pk_mul_f32", "v_mul_f32", 3, (A, 1), (A, 1), (A+8, 1))
            op("v_pk_fma_f32", "v_fma_f32", 4, (tmp, 1), (tmp, 1), (par+4, 0), (par+4, 0))
            e.extend(f"v_rcp_f32 v{tmp+i}, v{tmp+i}" for i in range(8))
            op("v_pk_mul_f32", "v_mul_f32", 3, (A, 1), (A, 1), (tmp, 1))
            e.extend(f"v_cvt_pk_bf16_f32 v{A+8+p}, v{A+2*p}, v{A+2*p+1}" for p in range(4))
            if T == 3: e.append(f"s_cmp_eq_u32 s{self.s_g}, 15\ns_cselect_b32 s{self.s_t0}, {WSEND}, s{self.s_t0}")
            e.append(f"buffer_store_dwordx4 {vr(A+8,4)}, v{t[2]}, {sr(c.sO,4)}, s{self.s_t0} offen offset:{T*512}{c.sc}")
            return e
        lg = list(range(7))
        work = []
        k(self.corr(0))
        for i, (T, s_) in enumerate(seq):
            vmw = f"vmcnt({len(order) - 1 - order.index(s_)}) " if T == 0 else ""
            if i % 2 == 0 or T == 0:
                last = min(i + (0 if T == 0 else 1), 55)
                n = len(lg) - 1 - lg.index(last) if last in lg else None
                if n is not None:
                    k(f"s_waitcnt {vmw}lgkmcnt({min(n, 15)})"); del lg[:len(lg) - min(n, 15)]
                elif vmw: k(f"s_waitcnt {vmw}")
                if i == 50 and endbar: k("s_waitcnt lgkmcnt(0)\ns_barrier"); lg.clear()
            k(f"{M16} {vr(self.acc[T],16)}, {vr(self.fa[0]+4*(i%12),4)}, {vr(self.fb+4*(s_%D),4)}, {vr(self.acc[T],16)}")
            if i + 7 < 56: k(rdF(i + 7)); lg.append(i + 7)
            j = i % 8
            if j == 7:
                for x in work: k(x)
                if getattr(self, 'fine2', False): k.stamp(2 + T)
                if T < 6: k(self.corr(T + 1))
                work = epi(T, T == 6 or self.pkall)
            elif work and j >= self.jstart:
                n = -(-len(work) // (8 - j))
                for x in work[:n]: k(x)
                del work[:n]
        for x in work: k(x)
        if getattr(self, 'fine2', False): k.stamp(9)
    def params(self):
        c = self.c; t = self.vt; st = self.st; par = self.par; vl = c.vl
        return [x.strip() for x in f"""v_lshrrev_b32 v{t[0]}, 5, v{vl}
        {f"v_and_b32 v{t[1]}, 31, v{vl}" if self.mcorr else f"v_lshlrev_b32 v{t[1]}, 2, v{t[0]}"}
        v_lshlrev_b32 v{t[1]}, 2, v{t[1]}
        v_add_u32 v{t[1]}, {self.CSB}, v{t[1]}
        v_add_f32 v{st}, v{st}, v{st+2}
        v_add_f32 v{st+1}, v{st+1}, v{st+3}
        v_add_f32 v{st+4}, v{st+4}, v{st+6}
        v_add_f32 v{st+5}, v{st+5}, v{st+7}
        v_add_f32 v{st}, v{st}, v{st+4}
        v_add_f32 v{st+1}, v{st+1}, v{st+5}
        v_mov_b32 v{st+2}, v{st}
        v_mov_b32 v{st+3}, v{st+1}
        v_bfe_u32 v{t[2]}, v{vl}, 4, 1
        v_mul_u32_u24 v{t[2]}, 55296, v{t[2]}
        v_permlane32_swap_b32 v{st+2}, v{st}
        v_permlane32_swap_b32 v{st+3}, v{st+1}
        v_add_f32 v{st}, v{st}, v{st+2}
        v_add_f32 v{st+1}, v{st+1}, v{st+3}
        v_mul_f32 v{par}, {f2u(-1.0/640):#x}, v{st}
        v_mul_f32 v{st+1}, {f2u(1.0/640):#x}, v{st+1}
        v_fma_f32 v{st+1}, -v{par}, v{par}, v{st+1}
        v_max_f32 v{st+1}, 0, v{st+1}
        v_add_f32 v{par+4}, {f2u(1e-5):#x}, v{st+1}
        v_rsq_f32 v{par+2}, v{par+4}
        v_cmp_gt_u32 vcc, 32, v{vl}
        v_mov_b32 v{par+5}, v{par+4}
        v_mul_f32 v{par+2}, {f2u(-math.log2(math.e)):#x}, v{par+2}
        v_lshl_add_u32 v{t[2]}, v{t[0]}, 8, v{t[2]}
        v_mov_b32 v{par+3}, v{par+2}
        v_and_b32 v{t[3]}, 15, v{vl}
        v_lshl_add_u32 v{t[2]}, v{t[3]}, 4, v{t[2]}
        s_mul_i32 s{self.s_t0}, s{self.s_tb}, {2*55296}
        s_mul_i32 s{self.s_t1}, s{self.s_g}, 3584
        s_add_u32 s{self.s_t0}, s{self.s_t0}, s{self.s_t1}
        s_add_u32 s{self.s_t0}, s{self.s_t0}, {ACT}
        v_cndmask_b32 v{par}, 0, v{par}, vcc
        v_cvt_pk_bf16_f32 v{st+4}, v{par}, v{par}
        v_and_b32 v{par+1}, 0xffff0000, v{st+4}
        v_sub_f32 v{par+1}, v{par}, v{par+1}
        v_cvt_pk_bf16_f32 v{st+5}, v{par+1}, 0""".split("\n")][:None if self.mcorr else -5] + ([] if self.mcorr else [f"v_mov_b32 v{par+1}, v{par}"])
    def corr_prep(self):
        rd = [f"ds_read_b32 v{self.ca[T]}, v{self.vt[1]} offset:{T*128}" for T in range(7)]
        cv = []
        for T in range(7):
            a = self.ca[T]; h = self.st + 6 + (T & 1)
            cv += [f"v_cvt_pk_bf16_f32 v{a+1}, v{a}, 0", f"v_lshlrev_b32 v{h}, 16, v{a+1}", f"v_sub_f32 v{a}, v{a}, v{h}", f"v_cvt_pk_bf16_f32 v{a}, v{h}, v{a}"]
        return rd, cv
    def corr(self, T): return f"{M8} {vr(self.acc[T],16)}, {vr(self.ca[T],2)}, {vr(self.st+4,2)}, {vr(self.acc[T],16)}"
    def epilogue(self, L_fin):
        k = self.c.k; c = self.c; t = self.vt; st = self.st; par = self.par; vl = c.vl
        tmp = self.fa[0] if self.mcorr else self.fb
        cs = [self.fa[0], self.fa[0] + 16, self.fa[0] + 32]
        def rdcs(T):
            for j in range(4): k(f"ds_read_b128 {vr(cs[T%3]+4*j,4)}, v{t[1]} offset:{T*128+32*j}")
        if not self.mcorr: rdcs(0); rdcs(1)
        for T in range(7):
            A = self.acc[T]; cc = cs[T % 3]
            if self.mcorr:
                if T + 1 < 7: k(self.corr(T + 1))
            else:
                if T + 2 < 7: rdcs(T + 2)
                k(f"s_waitcnt lgkmcnt({4*min(2, 6-T)})")
                for p in range(8): k(f"v_pk_fma_f32 {vr(A+2*p,2)}, {vr(cc+2*p,2)}, {vr(par,2)}, {vr(A+2*p,2)}")
            for p in range(4): k(f"v_pk_mul_f32 {vr(tmp+2*p,2)}, {vr(A+2*p,2)}, {vr(par+2,2)}")
            for i in range(8): k(f"v_exp_f32 v{tmp+i}, v{tmp+i}")
            for p in range(4): k(f"v_pk_mul_f32 {vr(A+2*p,2)}, {vr(A+2*p,2)}, {vr(A+8+2*p,2)}")
            for p in range(4): k(f"v_pk_fma_f32 {vr(tmp+2*p,2)}, {vr(tmp+2*p,2)}, {vr(par+4,2)}, {vr(par+4,2)}")
            for i in range(8): k(f"v_rcp_f32 v{tmp+i}, v{tmp+i}")
            for p in range(4): k(f"v_pk_mul_f32 {vr(A+2*p,2)}, {vr(A+2*p,2)}, {vr(tmp+2*p,2)}")
            for p in range(4): k(f"v_cvt_pk_bf16_f32 v{A+8+p}, v{A+2*p}, v{A+2*p+1}")
            k(f"buffer_store_dwordx4 {vr(A+8,4)}, v{t[2]}, {sr(c.sO,4)}, s{self.s_t0} offen offset:{T*512}{c.sc}")
            if T == 2: k(f"s_cmp_eq_u32 s{self.s_g}, 15\ns_cbranch_scc1 {L_fin}")
        k(f"{L_fin}:")

def gen(which, opt):
    if which in '35':
        o = opt('K' + which)
        c = Ctx("k3_oproj_kernel" if which == '3' else "k5_down_kernel", False); k = c.k
        P = P35(c, int(which), D=o.get('D', 12 if which == '5' else 20)); P.ahead = o.get('ahead', 2)
        c.entry(int(which) - 1, P.ptr_load())
        P.ids(); c.ws_srd()
        L = k.label("ld"); lw(c, L)
        P.setup(); P.main(); k.stamp(4); k.stamp(5); P.epilogue(); c.finish()
        k(f"{L}:"); P.ld_setup()
        for ch in range(2): P.ld_chunk(ch)
        P.ld_main(2); k("s_endpgm")
        return k, (256, 512, P.lds)
    if which == '4':
        o = opt('K4')
        c = Ctx("k4_gateup_kernel", False); k = c.k
        P = P4(c, D=o.get('D', 12)); P.ahead = o.get('ahead', 2)
        c.entry(3); P.ids(); c.ws_srd()
        L = k.label("ld"); lw(c, L)
        P.setup(); P.main(); k.stamp(4); k.stamp(5); P.epilogue(k.label("fin")); c.finish()
        k(f"{L}:"); P.ld_setup()
        for ch in range(2): P.ld_chunk(ch)
        P.ld_cs(); P.ld_stats()
        P.ld_main(2, 3); k("s_endpgm")
        return k, (256, 512, P.lds)
    import mega
    return mega.gen(opt)
```

```python
import sys, os
from build import build
from asmlib import K
K.STAMP = os.environ.get('STAMP') or False
seq = os.environ.get("SEQ", "12345")
def opt(n): return eval(os.environ.get(n, '{}') or '{}')
def empty():
    k = K("k0_empty_kernel"); k("s_endpgm"); return k, (256, 256, 0)
def dump():
    from layout import STAMPS, KA_WS, KA_DBG
    k = K("k9_dump_kernel")
    k(f'''s_load_dwordx2 s[4:5], s[0:1], {KA_WS}
    s_load_dwordx2 s[6:7], s[0:1], {KA_DBG}
    s_cmp_ge_u32 s2, 1
    s_cbranch_scc1 L_dump_end
    s_waitcnt lgkmcnt(0)
    s_mov_b32 s8, s4
    s_mov_b32 s9, s5
    s_mov_b32 s10, 0x2000000
    s_mov_b32 s11, 0x20000
    s_mov_b32 s12, s6
    s_mov_b32 s13, s7
    s_mov_b32 s14, 64
    s_mov_b32 s15, 0x20000
    v_mul_u32_u24 v1, 21846, v0
    v_lshrrev_b32 v1, 16, v1
    v_mul_u32_u24 v2, 3, v1
    v_sub_u32 v2, v0, v2
    v_lshlrev_b32 v3, 17, v1
    v_mul_u32_u24 v4, 28, v2
    v_cmp_eq_u32 vcc, 2, v2
    v_add_u32 v3, v3, v4
    s_mov_b32 s16, {STAMPS}
    v_cndmask_b32 v5, 0, 52, vcc
    v_sub_u32 v3, v3, v5
    buffer_load_dword v6, v3, s[8:11], s16 offen
    buffer_load_dword v7, v3, s[8:11], s16 offen offset:20
    s_waitcnt vmcnt(0)
    v_sub_u32 v7, v7, v6
    v_cndmask_b32 v6, v6, v7, vcc
    v_lshlrev_b32 v8, 2, v0
    buffer_store_dword v6, v8, s[12:15], 0 offen
    L_dump_end:
    s_endpgm''')
    return k, (1, 64, 0)
g = {}
for c in set(seq):
    if c == '0': g[c] = empty()
    elif c == '9': g[c] = dump()
    elif c == 'f':
        import full; g[c] = full.gen(opt)
    elif c == '1':
        import k1; g[c] = k1.gen_k1(**opt('K1'))
    else:
        import ph; g[c] = ph.gen(c, opt)
if os.environ.get('JIT'):
    mask, val, where, n = [int(x) for x in os.environ['JIT'].split(',')]
    k = g['f'][0]; out = []; cnt = 0
    for l in k.lines:
        if l.strip() == 's_barrier':
            cnt += 1
            j = [f'    s_cselect_b32 s65, 1, 0', f'    s_add_u32 s64, s12, s2' if where & 4 else '    s_mov_b32 s64, s12', f'    s_and_b32 s64, s64, {mask}', f'    s_cmp_lg_u32 s64, {val}',
                 f'    s_cbranch_scc1 L_jit_{cnt}', f'    s_sleep {n}', f'L_jit_{cnt}:', f'    s_cmp_eq_u32 s65, 1']
            out += (j if where & 1 else []) + [l] + ([x.replace('L_jit_', 'L_jitb_') for x in j] if where & 2 else [])
        else: out.append(l)
    k.lines = out
ks = [g[c] for c in seq]
build(ks, sys.argv[1] if len(sys.argv)>1 else "t.s", verbose=bool(os.environ.get("V")))
```
